```python
import torch

def _softmax(x, axis=-1):
    return torch.softmax(x, dim=axis)
def _gelu(x):
    return torch.nn.functional.gelu(x, approximate="tanh")
def _silu(x):
    return torch.nn.functional.silu(x)
def _sigmoid(x):
    return torch.sigmoid(x)
def _layernorm(x, axis=-1, eps=1e-5):
    m = x.mean(dim=axis, keepdim=True)
    v = x.var(dim=axis, keepdim=True, unbiased=False)
    return (x - m) / torch.sqrt(v + eps)
def _scatter_add(tgt, idx, src, axis=0):
    return tgt.clone().index_add_(axis, idx, src)
def _segment_sum(src, seg, n):
    out = torch.zeros((n,) + src.shape[1:], dtype=src.dtype)
    return out.index_add_(0, seg, src)
def _pad(x, pw):
    flat = tuple(v for pair in reversed(pw) for v in pair)
    return torch.nn.functional.pad(x, flat)

kernel_name = 'parallel_sum__ssm_conv_s5__glu_gated_swiglu__prompt'

def setup_inputs():

    _w = (lambda a: (lambda t: t.to(torch.bfloat16) if t.is_floating_point() else t)(torch.as_tensor(a)))
    def _A_setup():
        B, S, D = 1, 2048, 640
        P = D
        Lambda_re = -0.5 * (lambda _x: torch.exp(torch.as_tensor(_x)))((lambda *s: torch.randn(*s, dtype=torch.bfloat16) * 0.2)(P))
        Lambda_im = (lambda *s: torch.randn(*s, dtype=torch.bfloat16) * 0.8)(P) * 1.0
        B_re = (lambda *s: torch.randn(*s, dtype=torch.bfloat16) * 0.2)(P, D) * (D ** -0.5)
        B_im = (lambda *s: torch.randn(*s, dtype=torch.bfloat16) * 0.2)(P, D) * (D ** -0.5)
        C_re = (lambda *s: torch.randn(*s, dtype=torch.bfloat16) * 0.2)(D, P) * (P ** -0.5)
        C_im = (lambda *s: torch.randn(*s, dtype=torch.bfloat16) * 0.2)(D, P) * (P ** -0.5)
        log_dt = (lambda *s: torch.randn(*s, dtype=torch.bfloat16) * 0.2)(P) * 0.3 - 2.0
        Dskip = (lambda *s: torch.randn(*s, dtype=torch.bfloat16) * 0.05)(D)
        return {
            "x": _w((lambda *s: torch.randn(*s, dtype=torch.bfloat16) * 0.05)(B, S, D)),
            "Lambda_re": _w(Lambda_re),
            "Lambda_im": _w(Lambda_im),
            "B_re": _w(B_re),
            "B_im": _w(B_im),
            "C_re": _w(C_re),
            "C_im": _w(C_im),
            "log_dt": _w(log_dt),
            "Dskip": _w(Dskip),
        }
    _A_in = _A_setup()

    def _B_setup():
        B, S, D, F = 1, 2048, 640, 1728
        return {
            "x": _w((lambda *s: torch.randn(*s, dtype=torch.bfloat16) * 0.05)(B, S, D)),
            "w1": _w((lambda *s: torch.randn(*s, dtype=torch.bfloat16) * 0.4)(D, F) * (2.0 / D) ** 0.5),
            "w3": _w((lambda *s: torch.randn(*s, dtype=torch.bfloat16) * 0.4)(D, F) * (2.0 / D) ** 0.5),
            "w2": _w((lambda *s: torch.randn(*s, dtype=torch.bfloat16) * 0.4)(F, D) * (2.0 / F) ** 0.5),
        }
    _B_in = _B_setup()

    return {
        "A_x": _A_in["x"],
        "A_Lambda_re": _A_in["Lambda_re"],
        "A_Lambda_im": _A_in["Lambda_im"],
        "A_B_re": _A_in["B_re"],
        "A_B_im": _A_in["B_im"],
        "A_C_re": _A_in["C_re"],
        "A_C_im": _A_in["C_im"],
        "A_log_dt": _A_in["log_dt"],
        "A_Dskip": _A_in["Dskip"],
        "B_x": _B_in["x"],
        "B_w1": _B_in["w1"],
        "B_w3": _B_in["w3"],
        "B_w2": _B_in["w2"],
    }

def reference(A_x, A_Lambda_re, A_Lambda_im, A_B_re, A_B_im, A_C_re, A_C_im, A_log_dt, A_Dskip, B_x, B_w1, B_w3, B_w2):
    def _A_ref(x, Lambda_re, Lambda_im, B_re, B_im, C_re, C_im, log_dt, Dskip):
        Bsz, L, H = x.shape
        Lam = Lambda_re + 1j * Lambda_im
        Bmat = B_re + 1j * B_im
        Cmat = C_re + 1j * C_im
        dt = torch.exp(log_dt)
        Lam_bar = torch.exp(dt * Lam)
        B_bar = ((Lam_bar - 1.0) / Lam)[:, None] * Bmat
        Bu = torch.einsum("bld,pd->blp", x + 0j, B_bar)
        h = torch.zeros_like(Bu[:, 0, :])
        hs = []
        for t in range(L):
            h = Lam_bar[None, :] * h + Bu[:, t, :]
            hs.append(h)
        hseq = torch.stack(hs, 1)
        y = 2.0 * torch.einsum("blp,dp->bld", hseq, Cmat).real + x * Dskip[None, None, :]
        return y

    def _B_ref(x, w1, w3, w2):
        gate = torch.einsum("bsd,df->bsf", x, w1)
        up = torch.einsum("bsd,df->bsf", x, w3)
        h = _silu(gate) * up
        out = torch.einsum("bsf,fd->bsd", h, w2)
        return out

    x = A_x
    xn = _layernorm(x, axis=-1)
    return x + _A_ref(xn, A_Lambda_re, A_Lambda_im, A_B_re, A_B_im, A_C_re, A_C_im, A_log_dt, A_Dskip) + _B_ref(xn, B_w1, B_w3, B_w2)
```

```python
import re
class Asm:
    def __init__(self): self.L = []
    def __call__(self, s):
        for ln in s.split("\n"):
            ln = ln.strip()
            if ln: self.L.append(ln)
    def label(self, n): self.L.append(n + ":")
    def ext(self, lines):
        for l in lines: self(l)

REG = re.compile(r"\b([vas])(\d+)\b|\b([vas])\[(\d+):(\d+)\]|\b(vcc|exec|m0|scc)\b")
def regs(op):
    out = set()
    for m in REG.finditer(op):
        if m.group(1): out.add((m.group(1), int(m.group(2))))
        elif m.group(3):
            for i in range(int(m.group(4)), int(m.group(5))+1): out.add((m.group(3), i))
        else: out.add((m.group(6), 0))
    return out
TRANS = ("v_exp_f32","v_log_f32","v_rcp_f32","v_rsq_f32","v_sqrt_f32","v_sin_f32","v_cos_f32","v_rcp_iflag_f32")
def split_ops(s):
    parts = s.split(None, 1)
    mn = parts[0]; ops = []
    if len(parts) > 1:
        depth = 0; cur = ""
        for ch in parts[1]:
            if ch == "[": depth += 1
            if ch == "]": depth -= 1
            if ch == "," and depth == 0: ops.append(cur.strip()); cur = ""
            else: cur += ch
        ops.append(cur.strip())
    return mn, ops
class I:
    def __init__(self, s):
        self.s = s; mn, ops = split_ops(s.split(";")[0].strip()); self.mn = mn; self.ops = ops
        b = re.sub(r"_(e32|e64|dpp|sdwa)$", "", mn); self.b = b
        self.mfma = b.startswith("v_mfma"); self.valu = b.startswith("v_") and not self.mfma
        self.salu = b.startswith("s_"); self.trans = b in TRANS
        self.vmem = b.startswith(("buffer_","global_","flat_")); self.ds = b.startswith("ds_")
        self.dpp = mn.endswith("_dpp") or any(k in s for k in ("row_shr","row_shl","row_ror","quad_perm","row_bcast","row_mirror","row_half_mirror","wave_shr","row_newbcast"))
        self.lds_dma = self.vmem and re.search(r"\blds\b", s) is not None
        self.w = set(); self.r = set(); self.srcC = set(); self.AB = set(); self.stdata = set()
        R = [regs(o) for o in ops]
        if self.mfma:
            self.w = R[0]; self.AB = R[1] | R[2]; self.srcC = R[3]; self.r = self.AB | self.srcC
            self.passes = 4 if "16x16x32" in b else 8
        elif self.valu:
            if b.startswith("v_cmpx"): self.w = R[0] | {("exec",0)}; self.r = set().union(*R[1:])
            elif b.startswith("v_permlane") and "swap" in b: self.w = R[0] | R[1]; self.r = R[0] | R[1]
            elif b in ("v_add_co_u32","v_sub_co_u32","v_addc_co_u32","v_subb_co_u32","v_div_scale_f32","v_mad_u64_u32"):
                self.w = R[0] | R[1]; self.r = set().union(*R[2:])
            else:
                self.w = R[0]; self.r = set().union(*R[1:]) if len(R) > 1 else set()
                if b in ("v_fmac_f32","v_pk_fmac_f16","v_writelane_b32","v_dot2c_f32_bf16") or self.dpp: self.r |= R[0]
                if b == "v_div_fmas_f32": self.r |= {("vcc",0)}
        elif self.vmem:
            st = "store" in b; at = "atomic" in b
            if self.lds_dma: self.r = set().union(*R) | {("m0",0)}
            elif st or at:
                self.r = set().union(*R)
                self.stdata = R[0] if b.startswith("buffer_") else R[1]
                if at and "sc0" in s: self.w = R[0]
            else: self.w = R[0]; self.r = set().union(*R[1:])
            self.wide_store = st and ("x3" in b or "x4" in b)
        elif self.ds:
            if b.startswith(("ds_read","ds_bpermute","ds_permute","ds_swizzle")): self.w = R[0]; self.r = set().union(*R[1:])
            else: self.r = set().union(*R)
        elif self.salu:
            if b.startswith(("s_cmp","s_cbranch","s_branch","s_waitcnt","s_barrier","s_nop","s_endpgm","s_sleep","s_setprio","s_bitcmp")):
                self.r = set().union(*R) if R else set()
            else:
                self.w = R[0] if R else set(); self.r = set().union(*R[1:]) if len(R) > 1 else set()
                if "saveexec" in b: self.w |= {("exec",0)}
    def states(self):
        if self.b == "s_nop": return int(self.ops[0], 0) + 1
        return 1
def need(p, c):
    n = 0
    vw = {x for x in p.w if x[0] in "va"}; sw = {x for x in p.w if x[0] in ("s","vcc")}
    if p.valu:
        if c.mfma and vw & c.r: n = max(n, 2)
        if c.valu and c.dpp and vw & c.r: n = max(n, 2)
        if c.b.startswith("v_permlane") and vw & c.r: n = max(n, 2)
        if c.b in ("v_readfirstlane_b32","v_readlane_b32") and vw & c.r: n = max(n, 1)
        if p.trans and (c.valu or c.mfma) and vw & c.r: n = max(n, 1)
        if sw & c.r:
            if c.vmem: n = max(n, 5)
            if c.valu: n = max(n, 4 if c.b in ("v_readlane_b32","v_writelane_b32","v_div_fmas_f32") else 2)
            if c.salu: n = max(n, 1)
        if ("exec",0) in p.w:
            if c.mfma: n = max(n, 4)
            if c.valu and c.dpp: n = max(n, 5)
            if c.b.startswith(("v_readlane","v_readfirstlane","v_writelane","v_permlane")): n = max(n, 4)
    if p.salu and ("m0",0) in p.w and c.lds_dma: n = max(n, 1)
    if p.vmem and getattr(p, "wide_store", False) and p.stdata & c.w: n = max(n, 2 if (c.valu or c.mfma) else 1)
    if p.mfma:
        big = p.passes == 8
        if c.mfma:
            if p.w & c.AB: n = max(n, 12 if big else 8)
            if p.w & c.srcC and p.w != c.srcC: n = max(n, 10 if big else 6)
            if p.w & c.w and not (p.w & c.srcC): n = max(n, 12 if big else 8)
        elif (p.w & (c.r | c.w)): n = max(n, 12 if big else 8)
        if c.valu and p.srcC & c.w: n = max(n, 7 if big else 3)
    return n
def hazard_pass(lines, verbose=False):
    out = []; hist = []
    ins = 0
    for s in lines:
        if s.endswith(":") or s.startswith((".", ";")): out.append(s); continue
        c = I(s); req = 0; dist = 0
        for p in reversed(hist[-14:]):
            k = need(p, c) - dist
            if k > req: req = k
            dist += p.states()
            if dist >= 13: break
        if req > 0:
            nop = f"s_nop {req-1}"; out.append(nop); hist.append(I(nop)); ins += 1
            if verbose: print("hazard pad", req, "before", s)
        out.append(s); hist.append(c)
    return out
def interleave(mf, fill, lo=0, hi=None):
    hi = len(mf) if hi is None else hi
    slots = [[] for _ in mf]
    n = hi - lo
    for i, f in enumerate(fill): slots[lo + i*n//len(fill)].append(f)
    return slots
def kd(name, vgpr, agpr, sgpr=96):
    acc = (vgpr + 3)//4*4
    return f""".section .rodata,"a"
.p2align 6
.amdhsa_kernel {name}
  .amdhsa_next_free_vgpr {acc+agpr}
  .amdhsa_next_free_sgpr {sgpr}
  .amdhsa_accum_offset {acc}
  .amdhsa_group_segment_fixed_size 0
  .amdhsa_kernarg_size 128
  .amdhsa_user_sgpr_count 2
  .amdhsa_user_sgpr_kernarg_segment_ptr 1
  .amdhsa_system_sgpr_workgroup_id_x 1
  .amdhsa_float_denorm_mode_32 3
.end_amdhsa_kernel
"""
def kernel_text(name, lines):
    body = "\n".join(l if l.endswith(":") or l.startswith(".") else "  " + l for l in lines)
    return f".text\n.globl {name}\n.p2align 8\n.type {name},@function\n{name}:\n{body}\n"
```

```python
import sys
from asmlib import *
NAME = "parallel_sum__ssm_conv_s5__glu_gated_swiglu__prompt"
OPT = dict(a.split("=") for a in sys.argv[2:])
TS = int(OPT.get("ts", 0))
KA = dict(x=0, lre=8, lim=16, bre=24, bim=32, cre=40, cim=48, ldt=56, dsk=64, w1=80, w3=88, w2=96, out=104, dbg=112, ws=120)
WS_XN = 0; WS_H = 0x300000; WS_W2P = 0x1000000; WS_AGG = 0x1400000; WS_TS = 0x1500000
SZ_X = 2048*640*2; SZ_H = 128*94*1024; SZ_W2P = 40*94*1024; SZ_AGG = 8*640*8; SZ_B = 640*640*2; SZ_W = 640*1728*2; SZ_OUT = 2048*640*4
SENT = 0xFFFFFFFF

def srd(A, d, lo, size, add=0):
    if add:
        A(f"s_add_u32 s{d}, s{lo}, {hex(add)}\ns_addc_u32 s{d+1}, s{lo+1}, 0")
    else:
        A(f"s_mov_b32 s{d}, s{lo}\ns_mov_b32 s{d+1}, s{lo+1}")
    A(f"s_mov_b32 s{d+2}, {hex(size)}\ns_mov_b32 s{d+3}, 0x20000")
def stamp(A, kidx, slot, wsreg, tmpv=(2,3,4)):
    if not TS: return
    a, b, c = tmpv
    A(f"s_memrealtime s[90:91]\ns_waitcnt lgkmcnt(0)\ns_add_u32 s92, s94, {WS_TS + kidx*65536*4 + slot*8}")
    A(f"v_mov_b32 v{a}, s90\nv_mov_b32 v{b}, s91\nv_mov_b32 v{c}, s92\nglobal_store_dwordx2 v{c}, v[{a}:{b}], s[{wsreg}:{wsreg+1}]")

def gen_k0():
    A = Asm()
    NLN, NC, NW2, NAG, NPF = 128, 100, 270, 10, 93
    total = NLN + NC + NW2 + NAG + (NPF if int(OPT.get("pf", 1)) else 0)
    A(f"s_cmp_ge_u32 s2, {total}\ns_cbranch_scc1 K0_end")
    A("s_load_dwordx2 s[4:5], s[0:1], 120")
    A("v_and_b32 v1, 63, v0\nv_lshrrev_b32 v2, 6, v0\ns_nop 0\nv_readfirstlane_b32 s3, v2")
    A(f"s_cmp_ge_u32 s2, {NLN}\ns_cbranch_scc1 K0_c")
    A("s_load_dwordx2 s[6:7], s[0:1], 0\ns_waitcnt lgkmcnt(0)")
    srd(A, 8, 6, SZ_X); srd(A, 12, 4, SZ_X, WS_XN)
    A("s_lshl_b32 s16, s2, 4\ns_lshl_b32 s17, s3, 2\ns_add_u32 s16, s16, s17\ns_mul_i32 s16, s16, 1280")
    A("v_lshrrev_b32 v2, 4, v1\nv_mul_u32_u24 v2, 1280, v2\nv_and_b32 v3, 15, v1\nv_lshl_add_u32 v2, v3, 4, v2")
    for i in range(5): A(f"buffer_load_dwordx4 v[{4+4*i}:{7+4*i}], v2, s[8:11], s16 offen offset:{256*i}")
    A("s_waitcnt vmcnt(0)")
    for i in range(20):
        A(f"v_lshlrev_b32 v{24+2*i}, 16, v{4+i}\nv_and_b32 v{25+2*i}, 0xffff0000, v{4+i}")
    def red(v):
        for r in (8, 4, 2, 1): A(f"v_add_f32_dpp v{v}, v{v}, v{v} row_ror:{r} row_mask:0xf bank_mask:0xf")
    A("v_add_f32 v64, v24, v25\nv_add_f32 v65, v26, v27")
    for i in range(4, 40, 2): A(f"v_add_f32 v64, v64, v{24+i}\nv_add_f32 v65, v65, v{25+i}")
    A("v_add_f32 v64, v64, v65"); red(64)
    A("v_mul_f32 v64, 0x3acccccd, v64")
    A("v_mov_b32 v65, 0\nv_mov_b32 v66, 0")
    for i in range(0, 40, 2):
        A(f"v_sub_f32 v67, v{24+i}, v64\nv_sub_f32 v68, v{25+i}, v64\nv_fmac_f32 v65, v67, v67\nv_fmac_f32 v66, v68, v68")
    A("v_add_f32 v65, v65, v66"); red(65)
    A("v_mul_f32 v65, 0x3acccccd, v65")
    A("v_cvt_pk_bf16_f32 v66, v64, v65\nv_lshlrev_b32 v64, 16, v66\nv_and_b32 v65, 0xffff0000, v66")
    A("v_add_f32 v65, 0x3727c5ac, v65\nv_cvt_pk_bf16_f32 v65, v65, v65\nv_and_b32 v65, 0xffff0000, v65")
    A("v_sqrt_f32 v65, v65\nv_cvt_pk_bf16_f32 v65, v65, v65\nv_and_b32 v65, 0xffff0000, v65\nv_rcp_f32 v65, v65")
    for i in range(20):
        a, b = 24+2*i, 25+2*i
        A(f"v_sub_f32 v{a}, v{a}, v64\nv_sub_f32 v{b}, v{b}, v64\nv_cvt_pk_bf16_f32 v67, v{a}, v{b}")
        A(f"v_lshlrev_b32 v{a}, 16, v67\nv_and_b32 v{b}, 0xffff0000, v67\nv_mul_f32 v{a}, v{a}, v65\nv_mul_f32 v{b}, v{b}, v65\nv_cvt_pk_bf16_f32 v{4+i}, v{a}, v{b}")
    for i in range(5): A(f"buffer_store_dwordx4 v[{4+4*i}:{7+4*i}], v2, s[12:15], s16 offen offset:{256*i}")
    A("s_endpgm")
    A.label("K0_c")
    A(f"s_cmp_ge_u32 s2, {NLN+NC}\ns_cbranch_scc1 K0_w2")
    A("s_load_dwordx4 s[8:11], s[0:1], 40\ns_waitcnt lgkmcnt(0)")
    srd(A, 16, 8, SZ_B); srd(A, 20, 10, SZ_B); srd(A, 12, 4, SZ_W2P, WS_W2P)
    A(f"s_sub_u32 s24, s2, {NLN}\ns_lshl_b32 s24, s24, 2\ns_add_u32 s24, s24, s3")
    A("s_mul_i32 s25, s24, 52429\ns_lshr_b32 s25, s25, 19\ns_mul_i32 s26, s25, 10\ns_sub_u32 s26, s24, s26")
    A("s_mul_i32 s27, s25, 52429\ns_lshr_b32 s27, s27, 18\ns_mul_i32 s28, s27, 5\ns_sub_u32 s28, s25, s28")
    A("s_mul_i32 s29, s25, 20480\ns_lshl_b32 s30, s26, 7\ns_add_u32 s29, s29, s30")
    A("v_and_b32 v2, 15, v1\nv_mul_u32_u24 v2, 1280, v2\nv_lshrrev_b32 v3, 4, v1\nv_lshl_add_u32 v2, v3, 4, v2")
    for i in range(4):
        A(f"buffer_load_dwordx4 v[{4+4*i}:{7+4*i}], v2, s[{16+4*(i&1)}:{19+4*(i&1)}], s29 offen offset:{64*(i>>1)}")
    A("s_mul_i32 s30, s27, 94\ns_lshl_b32 s31, s26, 2\ns_add_u32 s30, s30, s31\ns_mul_i32 s30, s30, 5\ns_add_u32 s30, s30, s28\ns_lshl_b32 s30, s30, 10")
    A("v_lshlrev_b32 v3, 4, v1")
    for i in range(4):
        A(f"s_waitcnt vmcnt(3)\nbuffer_store_dwordx4 v[{4+4*i}:{7+4*i}], v3, s[12:15], s30 offen\ns_add_u32 s30, s30, 5120")
    A("s_endpgm")
    A.label("K0_w2")
    A(f"s_cmp_ge_u32 s2, {NLN+NC+NW2}\ns_cbranch_scc1 K0_ag")
    A("s_load_dwordx2 s[8:9], s[0:1], 96\ns_waitcnt lgkmcnt(0)")
    srd(A, 16, 8, SZ_W); srd(A, 12, 4, SZ_W2P, WS_W2P)
    A(f"s_sub_u32 s24, s2, {NLN+NC}\ns_lshl_b32 s24, s24, 2\ns_add_u32 s24, s24, s3")
    A("s_mul_i32 s25, s24, 52429\ns_lshr_b32 s25, s25, 20\ns_mul_i32 s26, s25, 20\ns_sub_u32 s26, s24, s26")
    A("s_mul_i32 s27, s25, 52429\ns_lshr_b32 s27, s27, 18\ns_mul_i32 s27, s27, 5\ns_sub_u32 s27, s25, s27")
    A("s_cmp_lt_u32 s25, 50\ns_cselect_b32 s28, 2, 1\ns_cmp_eq_u32 s27, s28")
    A("s_cselect_b32 s28, 2, 1\ns_cselect_b32 s29, 1, 4\ns_mul_i32 s28, s28, 5120\ns_mul_i32 s29, s29, 5120")
    A("v_lshrrev_b32 v2, 4, v1\nv_mul_lo_u32 v2, v2, s28\nv_and_b32 v3, 15, v1\nv_lshl_add_u32 v2, v3, 1, v2\nv_add_u32 v3, s29, v2")
    A("s_mul_i32 s30, s25, 40960\ns_lshl_b32 s31, s26, 6\ns_add_u32 s30, s30, s31")
    for i in range(2):
        for j in range(8):
            A(f"buffer_load_ushort v{8+8*i+j}, v{2+(j>>2)}, s[16:19], s30 offen offset:{(j&3)*1280+32*i}")
    A("v_lshlrev_b32 v4, 4, v1")
    for i in range(2):
        A(f"s_lshl_b32 s31, s26, 1\ns_add_u32 s31, s31, {i}")
        A("s_mul_i32 s32, s31, 52429\ns_lshr_b32 s32, s32, 18\ns_mul_i32 s33, s32, 5\ns_sub_u32 s33, s31, s33")
        A("s_mul_i32 s32, s32, 94\ns_add_u32 s32, s32, s25\ns_add_u32 s32, s32, 40\ns_mul_i32 s32, s32, 5\ns_add_u32 s32, s32, s33\ns_lshl_b32 s32, s32, 10")
        A(f"s_waitcnt vmcnt({8 if i == 0 else 1})")
        for j in range(4): A(f"v_lshl_or_b32 v{24+4*i+j}, v{9+8*i+2*j}, 16, v{8+8*i+2*j}")
        A(f"buffer_store_dwordx4 v[{24+4*i}:{27+4*i}], v4, s[12:15], s32 offen")
    A("s_endpgm")
    A.label("K0_ag")
    A(f"s_cmp_ge_u32 s2, {NLN+NC+NW2+NAG}\ns_cbranch_scc1 K0_pf")
    A("s_waitcnt lgkmcnt(0)")
    srd(A, 12, 4, SZ_AGG, WS_AGG)
    A(f"s_sub_u32 s24, s2, {NLN+NC+NW2}\ns_lshl_b32 s24, s24, 12\nv_lshlrev_b32 v2, 4, v0")
    A("v_mov_b32 v4, -1\nv_mov_b32 v5, -1\nv_mov_b32 v6, -1\nv_mov_b32 v7, -1\nbuffer_store_dwordx4 v[4:7], v2, s[12:15], s24 offen\ns_endpgm")
    A.label("K0_pf")
    A("s_load_dwordx4 s[8:11], s[0:1], 24\ns_load_dwordx4 s[12:15], s[0:1], 80\ns_waitcnt lgkmcnt(0)")
    srd(A, 16, 8, SZ_B); srd(A, 20, 10, SZ_B); srd(A, 24, 12, SZ_W); srd(A, 28, 14, SZ_W)
    A(f"s_sub_u32 s32, s2, {NLN+NC+NW2+NAG}\ns_lshl_b32 s33, s32, 12\nv_lshlrev_b32 v2, 4, v0")
    r = 4
    for base, n in ((16, 3), (20, 3), (24, 6), (28, 6)):
        for i in range(n):
            A(f"s_add_u32 s34, s33, {i*NPF*4096}\nbuffer_load_dwordx4 v[{r}:{r+3}], v2, s[{base}:{base+3}], s34 offen"); r += 4
    A("s_waitcnt vmcnt(0)")
    A.label("K0_end"); A("s_endpgm")
    return A.L, total, 80, 0

class VM:
    def __init__(self): self.n = 0; self.tag = {}
    def issue(self, tag=None):
        self.n += 1
        if tag is not None: self.tag[tag] = self.n
    def wait(self, tags):
        last = max(self.tag[t] for t in tags)
        assert self.n - last <= 63
        return f"s_waitcnt vmcnt({self.n - last})"

W_SLOT = 20480; X_BASE = 5*W_SLOT; X_SLOT = 16384
def gen_ffn(A):
    A("s_load_dwordx4 s[8:11], s[0:1], 80")
    A("s_mul_i32 s22, s21, 160\ns_min_u32 s22, s22, 1568")
    A("s_and_b32 s23, s3, 1\ns_lshr_b32 s24, s3, 1")
    A("s_mul_i32 s25, s23, 320\ns_lshl_b32 s26, s22, 1\ns_movk_i32 s27, 3277")
    for i in range(5):
        A(f"v_add_u32 v2, s25, v1\nv_add_u32 v2, {64*i}, v2\nv_mul_lo_u32 v3, v2, s27\nv_lshrrev_b32 v3, 16, v3")
        A("v_mul_u32_u24 v4, 20, v3\nv_sub_u32 v4, v2, v4\nv_lshrrev_b32 v5, 2, v3\nv_and_b32 v5, 2, v5\nv_xor_b32 v4, v4, v5")
        A(f"v_mul_u32_u24 v3, 3456, v3\nv_lshl_add_u32 v3, v4, 4, v3\nv_add_u32 v3, s26, v3\nv_subrev_u32 v{10+i}, {1024*(i&3)}, v3")
    A("s_lshl_b32 s25, s20, 7\ns_lshl_b32 s26, s3, 5\ns_add_u32 s25, s25, s26")
    for i in range(4):
        A(f"v_lshrrev_b32 v2, 3, v1\nv_add_u32 v2, {8*i}, v2\nv_lshrrev_b32 v3, 1, v2\nv_xor_b32 v3, v3, v1\nv_and_b32 v3, 7, v3")
        A(f"v_add_u32 v2, s25, v2\nv_mul_u32_u24 v2, 1280, v2\nv_lshl_add_u32 v2, v3, 4, v2\nv_subrev_u32 v{15+i}, {1024*(i&1)}, v2")
    A("s_waitcnt lgkmcnt(0)")
    A("s_cmp_eq_u32 s24, 0\ns_cselect_b32 s12, s8, s10\ns_cselect_b32 s13, s9, s11")
    A(f"s_mov_b32 s14, {SZ_W}\ns_mov_b32 s15, 0x20000")
    srd(A, 16, 4, SZ_X, WS_XN)
    A(f"s_mul_i32 s28, s3, 5120\ns_lshl_b32 s29, s3, 12\ns_add_u32 s29, s29, {X_BASE}")
    vm = VM()
    def dmaW(s):
        L = [f"s_add_u32 m0, s28, {(s%5)*W_SLOT}", f"s_mov_b32 s30, {s*32*3456}"]
        for i in range(5):
            if i == 4: L.append(f"s_add_u32 m0, s28, {(s%5)*W_SLOT+4096}")
            L.append(("W", s, f"buffer_load_dwordx4 v{10+i}, s[12:15], s30 offen offset:{1024*(i&3)} lds"))
        return L
    def dmaX(u, h):
        L = [f"s_add_u32 m0, s29, {(u%3)*X_SLOT+2048*h}", f"s_movk_i32 s31, {u*128}"]
        for i in range(2): L.append(("X", u, f"buffer_load_dwordx4 v{15+2*h+i}, s[16:19], s31 offen offset:{1024*i} lds"))
        return L
    def emit(x):
        if isinstance(x, tuple): vm.issue((x[0], x[1])); A(x[2])
        else: A(x)
    for x in dmaX(0,0)+dmaX(0,1)+dmaW(0)+dmaW(1)+dmaX(1,0)+dmaX(1,1)+dmaW(2)+dmaW(3)+dmaX(2,0)+dmaW(4): emit(x)
    A("v_lshrrev_b32 v2, 4, v1\nv_lshrrev_b32 v3, 2, v1\nv_and_b32 v3, 3, v3\nv_lshl_add_u32 v3, v2, 3, v3\nv_mul_u32_u24 v3, 320, v3")
    A("v_and_b32 v4, 3, v1\nv_lshl_add_u32 v3, v4, 3, v3\nv_and_b32 v4, 1, v2\nv_lshlrev_b32 v4, 5, v4")
    A("s_mul_i32 s25, s24, 192\nv_add_u32 v5, s25, v3\nv_add_u32 v20, v5, v4\nv_sub_u32 v21, v5, v4")
    A("s_lshl_b32 s25, s24, 5\ns_add_u32 s25, s25, 128\nv_xor_b32 v5, s25, v4\nv_add_u32 v22, v3, v5")
    for i in range(3): A(f"v_add_u32 v{23+i}, {3*W_SLOT}, v{20+i}")
    A("v_and_b32 v3, 15, v1\nv_lshrrev_b32 v4, 1, v3\nv_xor_b32 v4, v4, v2\nv_lshlrev_b32 v4, 4, v4\nv_lshl_add_u32 v3, v3, 7, v4")
    A(f"s_lshl_b32 s25, s23, 13\ns_add_u32 s25, s25, {X_BASE}\nv_add_u32 v26, s25, v3\nv_xor_b32 v27, 64, v26")
    ACC = 96
    def acc(j, tb): return ACC + (j*4+tb)*4
    def Wr(par, j): return par*56 + j*4
    def Xr(par, tb): return par*56 + 40 + tb*4
    def reads(s):
        par = s & 1; L = []
        sl = s % 5; hi = 3 if sl >= 3 else 0; so = (sl - (3 if sl >= 3 else 0))*W_SLOT
        for tb in range(4):
            L.append(f"ds_read_b128 a[{Xr(par,tb)}:{Xr(par,tb)+3}], v{26+(s&1)} offset:{((s>>1)%3)*X_SLOT + tb*2048}")
        for j in range(10):
            pr, m = j >> 1, j & 1
            ar = 22 if pr == 4 else 20 + (pr & 1)
            co = 0 if pr == 4 else pr*32
            for hh in range(2):
                L.append(f"ds_read_b64_tr_b16 a[{Wr(par,j)+2*hh}:{Wr(par,j)+2*hh+1}], v{ar+hi} offset:{so + m*10240 + hh*1280 + co}")
        return L
    A(vm.wait([("X",0),("W",0)])); A("s_barrier")
    for x in reads(0): A(x)
    for s in range(20):
        need_tags = [("W", s+1), ("X", (s+1) >> 1)] if s < 19 else None
        A((vm.wait(need_tags) + " lgkmcnt(0)") if need_tags else "s_waitcnt lgkmcnt(0)")
        if s < 19: A("s_barrier")
        par = s & 1
        mf = []
        for j in range(10):
            for tb in range(4):
                c = acc(j, tb); srcc = f"v[{c}:{c+3}]" if s else "0"
                mf.append(f"v_mfma_f32_16x16x32_bf16 v[{c}:{c+3}], a[{Wr(par,j)}:{Wr(par,j)+3}], a[{Xr(par,tb)}:{Xr(par,tb)+3}], {srcc}")
        d = []
        u3 = (s - 1)//2 + 3 if s & 1 else (s - 2)//2 + 3
        if u3 <= 9: d += dmaX(u3, 0 if s & 1 else 1)
        if s + 5 <= 19: d += dmaW(s+5)
        s1 = interleave(mf, reads(s+1), 0, 30) if s < 19 else [[] for _ in mf]
        s2 = interleave(mf, d, 0, 38) if d else [[] for _ in mf]
        for i, m in enumerate(mf):
            A(m)
            for x in s1[i]: A(x)
            for x in s2[i]: emit(x)
    stamp(A, 1, 1, 4)
    srd(A, 8, 4, SZ_H, WS_H)
    A("s_lshl_b32 s25, s20, 1\ns_add_u32 s25, s25, s23\ns_mul_i32 s25, s25, 94\ns_lshr_b32 s26, s22, 5\ns_add_u32 s25, s25, s26\ns_add_u32 s25, s25, 40")
    A("s_add_u32 s27, s25, 2\ns_lshl_b32 s27, s27, 12\ns_mul_i32 s26, s24, 3\ns_add_u32 s25, s25, s26\ns_lshl_b32 s25, s25, 12\ns_add_u32 s26, s25, 4096")
    A("v_lshlrev_b32 v10, 4, v1")
    A("v_lshrrev_b32 v2, 4, v1\nv_and_b32 v3, 1, v2\nv_lshlrev_b32 v3, 10, v3\nv_lshrrev_b32 v2, 1, v2\nv_lshl_add_u32 v3, v2, 8, v3")
    A("v_and_b32 v2, 15, v1\nv_lshl_add_u32 v3, v2, 4, v3\ns_lshl_b32 s30, s24, 9\nv_add_u32 v11, s30, v3")
    A("s_mov_b32 s31, 0xbfb8aa3b")
    T = 32
    def silu_block(pr, tb, dst):
        g, u = acc(2*pr, tb), acc(2*pr+1, tb)
        for e in range(4): A(f"v_mul_f32 v{T+e}, s31, v{g+e}")
        for e in range(4): A(f"v_exp_f32 v{T+e}, v{T+e}")
        for e in range(4): A(f"v_mul_f32 v{g+e}, v{g+e}, v{u+e}")
        for e in range(4): A(f"v_add_f32 v{T+e}, 1.0, v{T+e}")
        for e in range(4): A(f"v_rcp_f32 v{T+e}, v{T+e}")
        for e in range(4): A(f"v_mul_f32 v{g+e}, v{g+e}, v{T+e}")
        A(f"v_cvt_pk_bf16_f32 v{dst}, v{g}, v{g+1}\nv_cvt_pk_bf16_f32 v{dst+1}, v{g+2}, v{g+3}")
    O = 40; n = 0
    for fr in range(2):
        for tb in range(4):
            o = O + 4*n; n += 1
            silu_block(2*fr, tb, o); silu_block(2*fr+1, tb, o+2)
            A(f"buffer_store_dwordx4 v[{o}:{o+3}], v10, s[8:11], s{25+fr} offen offset:{tb*1024}")
    for tp in range(2):
        o = O + 4*n; n += 1
        silu_block(4, 2*tp, o); silu_block(4, 2*tp+1, o+2)
        A(f"v_permlane16_swap_b32 v{o}, v{o+2}\nv_permlane16_swap_b32 v{o+1}, v{o+3}")
        A(f"buffer_store_dwordx4 v[{o}:{o+3}], v11, s[8:11], s27 offen offset:{tp*2048}")
    stamp(A, 1, 2, 4)
    A("s_endpgm")

S_SLOT = 49152
def gen_ssm(A):
    A("s_load_dwordx4 s[8:11], s[0:1], 24\ns_load_dwordx4 s[36:39], s[0:1], 8\ns_load_dwordx2 s[40:41], s[0:1], 56")
    A("s_and_b32 s23, s3, 1\ns_lshr_b32 s24, s3, 1")
    A("s_lshl_b32 s25, s20, 8\ns_lshl_b32 s26, s24, 7\ns_add_u32 s25, s25, s26\ns_lshl_b32 s26, s23, 4\ns_add_u32 s25, s25, s26")
    A("v_lshrrev_b32 v2, 5, v1\nv_lshlrev_b32 v2, 5, v2\nv_bfe_u32 v3, v1, 3, 2\nv_add3_u32 v2, v2, v3, s25\nv_mul_u32_u24 v2, 1280, v2")
    A("v_lshrrev_b32 v3, 4, v1\nv_xor_b32 v3, v3, v1\nv_and_b32 v3, 7, v3\nv_lshlrev_b32 v3, 4, v3\nv_xor_b32 v4, 64, v3")
    A("v_add_u32 v5, v2, v3\nv_add_u32 v6, v2, v4")
    for ii in range(8):
        A(f"v_add_u32 v{10+ii}, {(64*(ii&1) + 4*(ii>>1))*1280 - 1024*(ii&3)}, v{5+(ii&1)}")
    A("s_lshl_b32 s25, s21, 6\ns_lshl_b32 s26, s23, 5\ns_add_u32 s25, s25, s26")
    A("v_lshrrev_b32 v2, 3, v1\nv_add_u32 v2, s25, v2\nv_mul_u32_u24 v2, 1280, v2\nv_add_u32 v5, v2, v3\nv_add_u32 v6, v2, v4")
    for i in range(4): A(f"v_add_u32 v{18+i}, {8*i*1280 - 1024*i}, v{5+(i&1)}")
    A("s_waitcnt lgkmcnt(0)")
    A("s_cmp_eq_u32 s24, 0\ns_cselect_b32 s12, s8, s10\ns_cselect_b32 s13, s9, s11")
    A(f"s_mov_b32 s14, {SZ_B}\ns_mov_b32 s15, 0x20000")
    srd(A, 16, 4, SZ_X, WS_XN)
    A("s_lshl_b32 s28, s3, 13\ns_lshl_b32 s29, s3, 12\ns_add_u32 s29, s29, 32768")
    vm = VM()
    A("s_lshl_b32 s25, s21, 6\ns_lshl_b32 s26, s24, 5\ns_add_u32 s25, s25, s26\nv_and_b32 v2, 15, v1\nv_add_u32 v30, s25, v2\nv_lshlrev_b32 v2, 1, v30")
    for cb in range(2):
        for q, sp in enumerate((36, 38, 40)):
            A(f"global_load_ushort v{32+3*cb+q}, v2, s[{sp}:{sp+1}] offset:{32*cb}"); vm.issue("P")
    def dma(u, h):
        b = (u % 3)*S_SLOT
        L = [f"s_add_u32 m0, s28, {b+4096*h}", f"s_movk_i32 s31, {u*128}"]
        for i in range(4): L.append(("S", u, f"buffer_load_dwordx4 v{10+4*h+i}, s[16:19], s31 offen offset:{1024*i} lds"))
        L.append(f"s_add_u32 m0, s29, {b}")
        for i in range(2): L.append(("S", u, f"buffer_load_dwordx4 v{18+2*h+i}, s[12:15], s31 offen offset:{1024*(2*h+i)} lds"))
        return L
    def emit(x):
        if isinstance(x, tuple): vm.issue((x[0], x[1])); A(x[2])
        else: A(x)
    for x in dma(0,0)+dma(0,1)+dma(1,0)+dma(1,1)+dma(2,0): emit(x)
    A("v_lshrrev_b32 v2, 4, v1\nv_and_b32 v3, 15, v1\nv_lshrrev_b32 v4, 1, v3\nv_xor_b32 v4, v4, v2\nv_lshlrev_b32 v4, 4, v4\nv_lshl_add_u32 v3, v3, 7, v4")
    A("s_lshl_b32 s25, s23, 14\ns_lshl_b32 s26, s24, 12\ns_add_u32 s26, s26, 32768")
    A("v_add_u32 v22, s25, v3\nv_xor_b32 v23, 64, v22\nv_add_u32 v60, s26, v3\nv_xor_b32 v61, 64, v60")
    for sl in (1, 2):
        for ks in range(2):
            A(f"v_add_u32 v{22+2*sl+ks}, {sl*S_SLOT}, v{22+ks}\nv_add_u32 v{60+2*sl+ks}, {sl*S_SLOT}, v{60+ks}")
    A(vm.wait(["P"]))
    A("s_lshl_b32 s25, s23, 2\nv_lshrrev_b32 v28, 4, v1\nv_add_u32 v28, s25, v28")
    def cexp(dr, di, zr2, zt, t0, t1):
        A(f"v_exp_f32 v{t0}, v{zr2}\nv_fract_f32 v{t1}, v{zt}\nv_cos_f32 v{dr}, v{t1}\nv_sin_f32 v{di}, v{t1}\nv_mul_f32 v{dr}, v{dr}, v{t0}\nv_mul_f32 v{di}, v{di}, v{t0}")
    def csq(r, i, t):
        A(f"v_mul_f32 v{t}, v{i}, v{i}\nv_mul_f32 v{i}, v{r}, v{i}\nv_fma_f32 v{r}, v{r}, v{r}, -v{t}\nv_add_f32 v{i}, v{i}, v{i}")
    for cb in range(2):
        P = 70 + 16*cb; i0 = 32 + 3*cb
        LR, LI, NLI, CA, CB, L32R, L32I, L256R, L256I, QR, QI = range(P, P+11)
        A(f"v_lshlrev_b32 v{i0}, 16, v{i0}\nv_lshlrev_b32 v{i0+1}, 16, v{i0+1}\nv_lshlrev_b32 v{i0+2}, 16, v{i0+2}")
        A(f"v_mul_f32 v2, 0x3fb8aa3b, v{i0+2}\nv_exp_f32 v2, v2\nv_cvt_pk_bf16_f32 v2, v2, v2\nv_and_b32 v2, 0xffff0000, v2")
        A(f"v_mul_f32 v3, v2, v{i0}\nv_mul_f32 v4, v2, v{i0+1}\nv_mul_f32 v3, 0x3fb8aa3b, v3\nv_mul_f32 v4, 0.15915494, v4")
        cexp(LR, LI, 3, 4, 5, 6)
        A(f"v_sub_f32 v{NLI}, 0, v{LI}")
        A(f"v_add_f32 v5, -1.0, v{LR}\nv_mul_f32 v6, v{i0}, v{i0}\nv_fmac_f32 v6, v{i0+1}, v{i0+1}\nv_rcp_f32 v6, v6\nv_add_f32 v6, v6, v6")
        A(f"v_mul_f32 v7, v5, v{i0}\nv_fmac_f32 v7, v{LI}, v{i0+1}\nv_mul_f32 v{CA}, v7, v6")
        A(f"v_mul_f32 v7, v{LI}, v{i0}\nv_fma_f32 v7, -v5, v{i0+1}, v7\nv_mul_f32 v{CB}, v7, v6")
        A(f"v_mov_b32 v{L32R}, v{LR}\nv_mov_b32 v{L32I}, v{LI}")
        for _ in range(5): csq(L32R, L32I, 5)
        A(f"v_mov_b32 v{L256R}, v{L32R}\nv_mov_b32 v{L256I}, v{L32I}\nv_mov_b32 v{QR}, 1.0\nv_mov_b32 v{QI}, 0")
        for bit in range(3):
            A(f"v_and_b32 v5, {1<<bit}, v28\nv_cmp_ne_u32 vcc, 0, v5")
            A(f"v_mul_f32 v5, v{QR}, v{L256R}\nv_fma_f32 v5, -v{QI}, v{L256I}, v5\nv_mul_f32 v6, v{QR}, v{L256I}\nv_fmac_f32 v6, v{QI}, v{L256R}")
            A(f"v_cndmask_b32 v{QR}, v{QR}, v5, vcc\nv_cndmask_b32 v{QI}, v{QI}, v6, vcc")
            csq(L256R, L256I, 5)
    ACC = 128
    def acc(b, c): return ACC + (c*8+b)*4
    def Xr(par, b): return par*48 + b*4
    def Br(par, c): return par*48 + 32 + c*4
    def reads(s):
        par = s & 1; sl = (s >> 1) % 3; L = []
        for c in range(4): L.append(f"ds_read_b128 a[{Br(par,c)}:{Br(par,c)+3}], v{60+2*sl+(s&1)} offset:{(c>>1)*8192 + (c&1)*2048}")
        for b in range(8): L.append(f"ds_read_b128 a[{Xr(par,b)}:{Xr(par,b)+3}], v{22+2*sl+(s&1)} offset:{b*2048}")
        return L
    A(vm.wait([("S",0)])); A("s_barrier")
    for x in reads(0): A(x)
    for s in range(20):
        if s < 19 and (s & 1): A(vm.wait([("S", (s+1) >> 1)]) + " lgkmcnt(0)"); A("s_barrier")
        else: A("s_waitcnt lgkmcnt(0)")
        par = s & 1; mf = []
        for b in range(8):
            for c in range(4):
                r = acc(b, c); srcc = f"v[{r}:{r+3}]" if s else "0"
                mf.append(f"v_mfma_f32_16x16x32_bf16 v[{r}:{r+3}], a[{Xr(par,b)}:{Xr(par,b)+3}], a[{Br(par,c)}:{Br(par,c)+3}], {srcc}")
        u3 = (s - 1)//2 + 3 if s & 1 else (s - 2)//2 + 3
        d = dma(u3, 0 if s & 1 else 1) if u3 <= 9 else []
        s1 = interleave(mf, reads(s+1), 0, 24) if s < 19 else [[] for _ in mf]
        s2 = interleave(mf, d, 0, 30) if d else [[] for _ in mf]
        for i, m in enumerate(mf):
            A(m)
            for x in s1[i]: A(x)
            for x in s2[i]: emit(x)
    stamp(A, 1, 1, 4)
    def Pm(cb):
        P = 70 + 16*cb; return dict(zip("LR LI NLI CA CB L32R L32I L256R L256I QR QI PR PI T0 T1".split(), range(P, P+15)))
    def gre(cb, t): return acc(0, cb) + t
    def gim(cb, t): return acc(0, 2+cb) + t
    for t in range(1, 32):
        for cb in range(2):
            p = Pm(cb); A(f"v_fmac_f32 v{gre(cb,t)}, v{p['LR']}, v{gre(cb,t-1)}\nv_fmac_f32 v{gim(cb,t)}, v{p['LR']}, v{gim(cb,t-1)}")
        for cb in range(2):
            p = Pm(cb); A(f"v_fmac_f32 v{gre(cb,t)}, v{p['NLI']}, v{gim(cb,t-1)}\nv_fmac_f32 v{gim(cb,t)}, v{p['LI']}, v{gre(cb,t-1)}")
    SEGB = 2*S_SLOT
    A(f"v_and_b32 v2, 63, v30\nv_lshlrev_b32 v2, 3, v2\nv_add_u32 v2, {SEGB}, v2\nv_lshl_add_u32 v3, v28, 9, v2")
    for cb in range(2):
        A(f"v_mov_b32 v4, v{gre(cb,31)}\nv_mov_b32 v5, v{gim(cb,31)}\nds_write_b64 v3, v[4:5] offset:{128*cb}")
    A("s_waitcnt lgkmcnt(0)\ns_barrier")
    for s in range(7):
        for cb in range(2): A(f"ds_read_b64 v[{32+4*s+2*cb}:{33+4*s+2*cb}], v2 offset:{512*s+128*cb}")
    for cb in range(2):
        p = Pm(cb); A(f"v_mov_b32 v{p['PR']}, 0\nv_mov_b32 v{p['PI']}, 0")
    A("s_waitcnt lgkmcnt(0)")
    def horner(cb, mr, mi, ar, ai, dr=None, di=None):
        p = Pm(cb); dr = p['PR'] if dr is None else dr; di = p['PI'] if di is None else di
        A(f"v_fmac_f32 v{ar}, v{mr}, v{p['PR']}\nv_fmac_f32 v{ai}, v{mr}, v{p['PI']}")
        A(f"v_fma_f32 v{p['T0']}, -v{mi}, v{p['PI']}, v{ar}\nv_fma_f32 v{di}, v{mi}, v{p['PR']}, v{ai}\nv_mov_b32 v{dr}, v{p['T0']}")
    for s in range(7):
        A(f"v_cmp_lt_u32 vcc, {s}, v28\ns_and_b64 exec, exec, vcc")
        for cb in range(2): horner(cb, Pm(cb)['L32R'], Pm(cb)['L32I'], 32+4*s+2*cb, 33+4*s+2*cb)
    srd(A, 8, 4, SZ_AGG, WS_AGG)
    A("s_mul_i32 s25, s20, 5120\ns_cbranch_execz SSM_nopub")
    A("v_lshlrev_b32 v3, 3, v30")
    for cb in range(2):
        A(f"v_mov_b32 v4, v{gre(cb,31)}\nv_mov_b32 v5, v{gim(cb,31)}")
        horner(cb, Pm(cb)['L32R'], Pm(cb)['L32I'], 4, 5, 6+2*cb, 7+2*cb)
        A(f"v_min_u32 v{6+2*cb}, 0xfffffffe, v{6+2*cb}\nv_min_u32 v{7+2*cb}, 0xfffffffe, v{7+2*cb}")
        A(f"buffer_store_dwordx2 v[{6+2*cb}:{7+2*cb}], v3, s[8:11], s25 offen offset:{128*cb} sc0 sc1")
    A.label("SSM_nopub")
    A("s_mov_b64 exec, -1")
    for t in range(32):
        for cb in range(2):
            p = Pm(cb); r, i = gre(cb,t), gim(cb,t)
            A(f"v_mul_f32 v{p['T0']}, v{p['CB']}, v{i}\nv_mul_f32 v{p['T1']}, v{p['CB']}, v{r}")
            A(f"v_fma_f32 v{r}, v{p['CA']}, v{r}, -v{p['T0']}\nv_fma_f32 v{i}, -v{p['CA']}, v{i}, -v{p['T1']}")
    stamp(A, 1, 2, 4)
    A("v_lshlrev_b32 v3, 3, v30\ns_sub_u32 s25, s25, 35840\nv_add_u32 v3, s25, v3")
    for i in range(7): A(f"v_add_u32 v{10+i}, {5120*i}, v3")
    A("s_mov_b32 s33, 0x40000")
    A.label("SSM_poll")
    for i in range(7):
        for cb in range(2): A(f"buffer_load_dwordx2 v[{32+4*i+2*cb}:{33+4*i+2*cb}], v{10+i}, s[8:11], 0 offen offset:{128*cb} sc0 sc1")
    A("s_waitcnt vmcnt(0)")
    A("v_max3_u32 v2, v32, v33, v34")
    for r in range(35, 59, 2): A(f"v_max3_u32 v2, v2, v{r}, v{r+1}")
    A("v_max_u32 v2, v2, v59\nv_cmp_eq_u32 vcc, -1, v2\ns_sub_u32 s33, s33, 1\ns_cbranch_scc1 SSM_go\ns_cbranch_vccnz SSM_poll")
    A.label("SSM_go")
    stamp(A, 1, 3, 4)
    for cb in range(2):
        p = Pm(cb)
        cr, ci = 4+2*cb, 5+2*cb
        A(f"v_mov_b32 v{cr}, v{32+2*cb}\nv_mov_b32 v{ci}, v{33+2*cb}")
        for i in range(1, 7):
            ar, ai = 32+4*i+2*cb, 33+4*i+2*cb
            A(f"v_fmac_f32 v{ar}, v{p['L256R']}, v{cr}\nv_fmac_f32 v{ai}, v{p['L256R']}, v{ci}")
            A(f"v_fma_f32 v{p['T0']}, -v{p['L256I']}, v{ci}, v{ar}\nv_fma_f32 v{ci}, v{p['L256I']}, v{cr}, v{ai}\nv_mov_b32 v{cr}, v{p['T0']}")
        A(f"v_fmac_f32 v{p['PR']}, v{p['QR']}, v{cr}\nv_fmac_f32 v{p['PI']}, v{p['QR']}, v{ci}")
        A(f"v_fma_f32 v{p['PR']}, -v{p['QI']}, v{ci}, v{p['PR']}\nv_fmac_f32 v{p['PI']}, v{p['QI']}, v{cr}")
        A(f"v_mul_f32 v{p['T0']}, v{p['CB']}, v{p['PI']}\nv_mul_f32 v{p['T1']}, v{p['CB']}, v{p['PR']}")
        A(f"v_fma_f32 v{cr}, v{p['CA']}, v{p['PR']}, -v{p['T0']}\nv_fma_f32 v{ci}, -v{p['CA']}, v{p['PI']}, -v{p['T1']}")
    PK = 32
    PITCH = 288; IMG = 32*PITCH
    A(f"s_mul_i32 s25, s3, {2*IMG}\nv_and_b32 v2, 15, v1\nv_mul_u32_u24 v2, {PITCH}, v2\nv_lshrrev_b32 v3, 4, v1\nv_lshl_add_u32 v2, v3, 6, v2\nv_add_u32 v17, s25, v2")
    A(f"v_bfe_u32 v2, v1, 2, 2\nv_lshl_add_u32 v2, v3, 3, v2\nv_mul_u32_u24 v2, {PITCH}, v2\nv_and_b32 v3, 3, v1\nv_lshl_add_u32 v2, v3, 3, v2\nv_add_u32 v18, s25, v2")
    for t in range(32):
        cur = [(4+2*cb, 5+2*cb) if t % 2 == 0 else (Pm(cb)['T0'], Pm(cb)['T1']) for cb in range(2)]
        nxt = [(4+2*cb, 5+2*cb) if t % 2 == 1 else (Pm(cb)['T0'], Pm(cb)['T1']) for cb in range(2)]
        for cb in range(2):
            p = Pm(cb); A(f"v_mul_f32 v{nxt[cb][0]}, v{p['LR']}, v{cur[cb][0]}\nv_mul_f32 v{nxt[cb][1]}, v{p['LR']}, v{cur[cb][1]}")
        for cb in range(2):
            p = Pm(cb); A(f"v_fmac_f32 v{nxt[cb][0]}, v{p['LI']}, v{cur[cb][1]}\nv_fmac_f32 v{nxt[cb][1]}, v{p['NLI']}, v{cur[cb][0]}")
        for cb in range(2):
            A(f"v_add_f32 v{gre(cb,t)}, v{gre(cb,t)}, v{nxt[cb][0]}\nv_add_f32 v{gim(cb,t)}, v{gim(cb,t)}, v{nxt[cb][1]}")
        if t & 1:
            bank = 16*((t >> 3) & 1)
            for cb in range(2):
                A(f"v_cvt_pk_bf16_f32 v{PK+bank+8*cb+((t>>1)&3)}, v{gre(cb,t-1)}, v{gre(cb,t)}\nv_cvt_pk_bf16_f32 v{PK+bank+8*cb+4+((t>>1)&3)}, v{gim(cb,t-1)}, v{gim(cb,t)}")
            if t & 7 == 7:
                for cb in range(2):
                    for im in range(2):
                        r = PK+bank+8*cb+4*im
                        A(f"ds_write_b128 v17, v[{r}:{r+3}] offset:{im*IMG + cb*16*PITCH + (t>>3)*16}")
    srd(A, 8, 4, SZ_H, WS_H)
    A("s_lshl_b32 s25, s20, 2\ns_lshl_b32 s26, s23, 1\ns_add_u32 s25, s25, s26\ns_mul_i32 s25, s25, 94")
    A("s_lshl_b32 s26, s21, 2\ns_add_u32 s25, s25, s26\ns_lshl_b32 s26, s24, 1\ns_add_u32 s25, s25, s26\ns_lshl_b32 s25, s25, 12")
    A(f"s_add_u32 s26, s25, 4096\ns_add_u32 s27, s25, {94*4096}\ns_add_u32 s28, s25, {95*4096}\nv_lshlrev_b32 v10, 4, v1\ns_waitcnt lgkmcnt(0)")
    n = 0
    for im in range(2):
        for tb in range(8):
            r = 128 + 4*n; n += 1
            for hh in range(2): A(f"ds_read_b64_tr_b16 v[{r+2*hh}:{r+2*hh+1}], v18 offset:{im*IMG + hh*4*PITCH + tb*32}")
    n = 0
    for im in range(2):
        for tb in range(8):
            r = 128 + 4*n
            A(f"s_waitcnt lgkmcnt({min(15, 30-2*n)})\nbuffer_store_dwordx4 v[{r}:{r+3}], v10, s[8:11], s{25+im+2*(tb>>2)} offen offset:{(tb&3)*1024}"); n += 1
    stamp(A, 1, 4, 4)
    A("s_endpgm")

def gen_k1():
    A = Asm()
    A("s_cmp_ge_u32 s2, 256\ns_cbranch_scc1 K1_end")
    A("s_load_dwordx2 s[4:5], s[0:1], 120")
    A("v_and_b32 v1, 63, v0\nv_lshrrev_b32 v2, 6, v0\ns_nop 0\nv_readfirstlane_b32 s3, v2")
    if TS:
        A("s_lshl_b32 s94, s2, 2\ns_add_u32 s94, s94, s3\ns_lshl_b32 s94, s94, 6\ns_waitcnt lgkmcnt(0)"); stamp(A, 1, 0, 4)
    A("s_and_b32 s20, s2, 7\ns_lshr_b32 s21, s2, 3\ns_lshr_b32 s22, s20, 2\ns_and_b32 s23, s20, 3")
    A("s_cmp_eq_u32 s23, 3\ns_cselect_b32 s24, 16, 8\ns_cmp_lt_u32 s21, s24\ns_cbranch_scc1 K1_ssm")
    A("s_sub_u32 s21, s21, s24\ns_and_b32 s20, s21, 7\ns_lshl_b32 s22, s22, 3\ns_add_u32 s20, s20, s22")
    A("s_lshr_b32 s21, s21, 3\ns_mul_i32 s23, s23, 3\ns_add_u32 s21, s21, s23")
    gen_ffn(A)
    A.label("K1_ssm")
    A("s_and_b32 s20, s21, 3\ns_lshl_b32 s22, s22, 2\ns_add_u32 s20, s20, s22\ns_lshr_b32 s21, s21, 2\ns_lshl_b32 s23, s23, 1\ns_add_u32 s21, s21, s23")
    gen_ssm(A)
    A.label("K1_end"); A("s_endpgm")
    return A.L, 256, 256, 112

def gen_k2():
    A = Asm(); D = 4
    A("s_cmp_ge_u32 s2, 256\ns_cbranch_scc1 K2_end")
    A("s_load_dwordx2 s[4:5], s[0:1], 120\ns_load_dwordx2 s[6:7], s[0:1], 0\ns_load_dwordx2 s[32:33], s[0:1], 64\ns_load_dwordx2 s[34:35], s[0:1], 104")
    A("v_and_b32 v1, 63, v0\nv_lshrrev_b32 v2, 6, v0\ns_nop 0\nv_readfirstlane_b32 s3, v2")
    A("s_and_b32 s20, s2, 7\ns_lshr_b32 s21, s2, 3\ns_lshl_b32 s20, s20, 2\ns_lshr_b32 s22, s21, 3\ns_add_u32 s20, s20, s22\ns_and_b32 s21, s21, 7")
    A("s_mul_i32 s24, s3, 24\ns_min_u32 s24, s24, 71\ns_cmp_ge_u32 s3, 2\ns_cselect_b32 s25, 23, 24\ns_add_u32 s26, s24, s25")
    A("s_mul_i32 s27, s21, 3\ns_mul_i32 s28, s22, 5\ns_add_u32 s27, s27, s28\ns_cmp_ge_u32 s27, 23\ns_cselect_b32 s28, 23, 0\ns_sub_u32 s27, s27, s28")
    if not int(OPT.get("rot", 1)): A("s_mov_b32 s27, 0")
    A("s_add_u32 s27, s27, s24")
    A("s_waitcnt lgkmcnt(0)")
    if TS:
        A("s_lshl_b32 s94, s2, 2\ns_add_u32 s94, s94, s3\ns_lshl_b32 s94, s94, 6"); stamp(A, 2, 0, 4)
    A(f"s_mul_i32 s28, s20, {94*4096}\ns_add_u32 s8, s4, s28\ns_addc_u32 s9, s5, 0\ns_add_u32 s8, s8, {WS_H}\ns_addc_u32 s9, s9, 0\ns_mov_b32 s10, {94*4096}\ns_mov_b32 s11, 0x20000")
    A(f"s_mul_i32 s28, s21, {94*5120}\ns_add_u32 s12, s4, s28\ns_addc_u32 s13, s5, 0\ns_add_u32 s12, s12, {WS_W2P}\ns_addc_u32 s13, s13, 0\ns_mov_b32 s14, {94*5120}\ns_mov_b32 s15, 0x20000")
    A("v_lshlrev_b32 v10, 4, v1\nv_add_u32 v11, 4096, v10")
    vm = VM()
    def Hr(d, tb): return d*36 + tb*4
    def Wr(d, nb): return d*36 + 16 + nb*4
    def loads(i):
        d = i % D
        L = []
        if i == 23: L += ["s_cmp_eq_u32 s25, 23", "s_cselect_b32 s10, 0, s10", "s_cselect_b32 s14, 0, s14"]
        L += ["s_lshl_b32 s29, s27, 12", "s_mul_i32 s30, s27, 5120"]
        for tb in range(4): L.append((i, f"buffer_load_dwordx4 a[{Hr(d,tb)}:{Hr(d,tb)+3}], v10, s[8:11], s29 offen offset:{tb*1024}"))
        for nb in range(5): L.append((i, f"buffer_load_dwordx4 a[{Wr(d,nb)}:{Wr(d,nb)+3}], v{10+(nb>>2)}, s[12:15], s30 offen offset:{(nb&3)*1024}"))
        L += ["s_add_u32 s27, s27, 1", "s_cmp_eq_u32 s27, s26", "s_cselect_b32 s27, s24, s27"]
        return L
    def emit(x):
        if isinstance(x, tuple): vm.issue(x[0]); A(x[1])
        else: A(x)
    for i in range(D-1):
        for x in loads(i): emit(x)
    srd(A, 16, 6, SZ_X); srd(A, 36, 4, SZ_X, WS_XN); srd(A, 40, 32, 1280); srd(A, 44, 34, SZ_OUT)
    A("s_lshl_b32 s28, s20, 6\ns_lshl_b32 s31, s3, 4\ns_add_u32 s28, s28, s31\nv_lshrrev_b32 v2, 2, v1\nv_add_u32 v2, s28, v2\nv_mul_u32_u24 v2, 640, v2")
    A("s_mul_i32 s28, s21, 80\nv_and_b32 v3, 3, v1\nv_lshlrev_b32 v3, 2, v3\nv_add_u32 v3, s28, v3\nv_add_u32 v2, v2, v3")
    A("v_lshlrev_b32 v12, 1, v2\nv_lshlrev_b32 v13, 2, v2\nv_lshlrev_b32 v14, 1, v3")
    for nb in range(5):
        A(f"buffer_load_dwordx2 v[{16+2*nb}:{17+2*nb}], v12, s[16:19], 0 offen offset:{32*nb}"); vm.issue()
        A(f"buffer_load_dwordx2 v[{26+2*nb}:{27+2*nb}], v12, s[36:39], 0 offen offset:{32*nb}"); vm.issue()
        A(f"buffer_load_dwordx2 v[{36+2*nb}:{37+2*nb}], v14, s[40:43], 0 offen offset:{32*nb}"); vm.issue()
    ACC = 48
    def acc(nb, tb): return ACC + (tb*5+nb)*4
    for i in range(24):
        d = i % D
        A(vm.wait([i]))
        mf = []
        for nb in range(5):
            for tb in range(4):
                c = acc(nb, tb); srcc = f"v[{c}:{c+3}]" if i else "0"
                mf.append(f"v_mfma_f32_16x16x32_bf16 v[{c}:{c+3}], a[{Wr(d,nb)}:{Wr(d,nb)+3}], a[{Hr(d,tb)}:{Hr(d,tb)+3}], {srcc}")
        ld = loads(i+D-1) if i+D-1 < 24 else []
        sl = interleave(mf, ld, 0, 18) if ld else [[] for _ in mf]
        for k, m in enumerate(mf):
            A(m)
            for x in sl[k]: emit(x)
    stamp(A, 2, 1, 4)
    A("v_lshrrev_b32 v2, 4, v1\nv_lshlrev_b32 v3, 2, v2\nv_xor_b32 v3, v3, v1\nv_lshlrev_b32 v3, 4, v3\ns_mul_i32 s28, s3, 20480\nv_add_u32 v3, s28, v3")
    for k in range(20): A(f"ds_write_b128 v3, v[{ACC+4*k}:{ACC+4*k+3}] offset:{k*1024}")
    A("v_and_b32 v2, 3, v1\nv_lshrrev_b32 v4, 2, v1\nv_lshlrev_b32 v5, 2, v2\nv_xor_b32 v4, v4, v5\nv_lshl_add_u32 v4, v2, 4, v4\nv_lshlrev_b32 v4, 4, v4\ns_mul_i32 s28, s3, 5120\nv_add_u32 v4, s28, v4\nv_add_u32 v5, 40960, v4")
    for nb in range(5):
        for h in range(2):
            x, xn, dk, o = 16+2*nb+h, 26+2*nb+h, 36+2*nb+h, 128+4*nb+2*h
            A(f"v_lshlrev_b32 v6, 16, v{xn}\nv_and_b32 v7, 0xffff0000, v{xn}\nv_lshlrev_b32 v8, 16, v{dk}\nv_and_b32 v9, 0xffff0000, v{dk}")
            A(f"v_mul_f32 v6, v6, v8\nv_mul_f32 v7, v7, v9\nv_cvt_pk_bf16_f32 v6, v6, v7\nv_and_b32 v7, 0xffff0000, v6\nv_lshlrev_b32 v6, 16, v6")
            A(f"v_lshlrev_b32 v8, 16, v{x}\nv_and_b32 v9, 0xffff0000, v{x}\nv_add_f32 v{o}, v6, v8\nv_add_f32 v{o+1}, v7, v9")
    A("s_waitcnt lgkmcnt(0)\ns_barrier")
    for nb in range(5):
        for w in range(4):
            r = ACC + (nb*4+w)*4
            A(f"ds_read_b128 v[{r}:{r+3}], v{4+(w>>1)} offset:{(w&1)*20480 + nb*1024}")
    for nb in range(5):
        A(f"s_waitcnt lgkmcnt({min(15, 16-4*nb)})")
        r = ACC + nb*16; o = 128+4*nb
        for e in range(4): A(f"v_add_f32 v{r+e}, v{r+e}, v{r+4+e}\nv_add_f32 v{r+8+e}, v{r+8+e}, v{r+12+e}")
        for e in range(4): A(f"v_add_f32 v{r+e}, v{r+e}, v{r+8+e}")
        for e in range(4): A(f"v_add_f32 v{o+e}, v{o+e}, v{r+e}")
        A(f"buffer_store_dwordx4 v[{o}:{o+3}], v13, s[44:47], 0 offen offset:{64*nb}")
    stamp(A, 2, 2, 4)
    A.label("K2_end"); A("s_endpgm")
    return A.L, 256, 148, 144

def main():
    ref = open(f"cdna_kernels/{NAME}.s.ref").read().split("\n")
    hdr = [l for l in ref if l.startswith(";") and "@launch" not in l and "Override" not in l and "grid=ceil" not in l]
    ks = [("prep_kernel", gen_k0(), 0), ("gemm1_kernel", gen_k1(), 151552), ("gemm2_kernel", gen_k2(), 81920)]
    out = "\n".join(hdr) + "\n"
    for n, (L, grid, v, a), lds in ks: out += f"; @launch kernel={n} grid=({grid},1,1) block=(256,1,1) lds={lds}\n"
    out += '.amdgcn_target "amdgcn-amd-amdhsa--gfx950"\n'
    for n, (L, grid, v, a), lds in ks: out += kernel_text(n, hazard_pass(L, "v" in OPT))
    for n, (L, grid, v, a), lds in ks: out += kd(n, v, a)
    open(sys.argv[1], "w").write(out)
main()
```

```python
import sys
from asmlib import *
NAME = "parallel_sum__ssm_conv_s5__glu_gated_swiglu__prompt"
OPT = dict(a.split("=") for a in sys.argv[2:])
TS = int(OPT.get("ts", 0))
KA = dict(x=0, lre=8, lim=16, bre=24, bim=32, cre=40, cim=48, ldt=56, dsk=64, w1=80, w3=88, w2=96, out=104, dbg=112, ws=120)
WS_XN = 0; WS_H = 0x300000; WS_W2P = 0x1000000; WS_AGG = 0x1400000; WS_TS = 0x1500000
SZ_X = 2048*640*2; SZ_H = 128*94*1024; SZ_W2P = 40*94*1024; SZ_AGG = 8*640*8; SZ_B = 640*640*2; SZ_W = 640*1728*2; SZ_OUT = 2048*640*4
SENT = 0xFFFFFFFF

def srd(A, d, lo, size, add=0):
    if add:
        A(f"s_add_u32 s{d}, s{lo}, {hex(add)}\ns_addc_u32 s{d+1}, s{lo+1}, 0")
    else:
        A(f"s_mov_b32 s{d}, s{lo}\ns_mov_b32 s{d+1}, s{lo+1}")
    A(f"s_mov_b32 s{d+2}, {hex(size)}\ns_mov_b32 s{d+3}, 0x20000")
def stamp(A, kidx, slot, wsreg, tmpv=(2,3,4)):
    if not TS: return
    a, b, c = tmpv
    A(f"s_memrealtime s[90:91]\ns_waitcnt lgkmcnt(0)\ns_add_u32 s92, s94, {WS_TS + kidx*65536*4 + slot*8}")
    A(f"v_mov_b32 v{a}, s90\nv_mov_b32 v{b}, s91\nv_mov_b32 v{c}, s92\nglobal_store_dwordx2 v{c}, v[{a}:{b}], s[{wsreg}:{wsreg+1}]")

def gen_k0():
    A = Asm()
    NLN, NC, NW2, NAG, NPF = 128, 100, 270, 10, 93
    total = NLN + NC + NW2 + NAG + (NPF if int(OPT.get("pf", 1)) else 0)
    A(f"s_cmp_ge_u32 s2, {total}\ns_cbranch_scc1 K0_end")
    A("s_load_dwordx2 s[4:5], s[0:1], 120")
    A("v_and_b32 v1, 63, v0\nv_lshrrev_b32 v2, 6, v0\ns_nop 0\nv_readfirstlane_b32 s3, v2")
    A(f"s_cmp_ge_u32 s2, {NLN}\ns_cbranch_scc1 K0_c")
    A("s_load_dwordx2 s[6:7], s[0:1], 0\ns_waitcnt lgkmcnt(0)")
    srd(A, 8, 6, SZ_X); srd(A, 12, 4, SZ_X, WS_XN)
    A("s_lshl_b32 s16, s2, 4\ns_lshl_b32 s17, s3, 2\ns_add_u32 s16, s16, s17\ns_mul_i32 s16, s16, 1280")
    A("v_lshrrev_b32 v2, 4, v1\nv_mul_u32_u24 v2, 1280, v2\nv_and_b32 v3, 15, v1\nv_lshl_add_u32 v2, v3, 4, v2")
    for i in range(5): A(f"buffer_load_dwordx4 v[{4+4*i}:{7+4*i}], v2, s[8:11], s16 offen offset:{256*i}")
    A("s_waitcnt vmcnt(0)")
    for i in range(20):
        A(f"v_lshlrev_b32 v{24+2*i}, 16, v{4+i}\nv_and_b32 v{25+2*i}, 0xffff0000, v{4+i}")
    def red(v):
        for r in (8, 4, 2, 1): A(f"v_add_f32_dpp v{v}, v{v}, v{v} row_ror:{r} row_mask:0xf bank_mask:0xf")
    A("v_add_f32 v64, v24, v25\nv_add_f32 v65, v26, v27")
    for i in range(4, 40, 2): A(f"v_add_f32 v64, v64, v{24+i}\nv_add_f32 v65, v65, v{25+i}")
    A("v_add_f32 v64, v64, v65"); red(64)
    A("v_mul_f32 v64, 0x3acccccd, v64")
    A("v_mov_b32 v65, 0\nv_mov_b32 v66, 0")
    for i in range(0, 40, 2):
        A(f"v_sub_f32 v67, v{24+i}, v64\nv_sub_f32 v68, v{25+i}, v64\nv_fmac_f32 v65, v67, v67\nv_fmac_f32 v66, v68, v68")
    A("v_add_f32 v65, v65, v66"); red(65)
    A("v_mul_f32 v65, 0x3acccccd, v65")
    A("v_cvt_pk_bf16_f32 v66, v64, v65\nv_lshlrev_b32 v64, 16, v66\nv_and_b32 v65, 0xffff0000, v66")
    A("v_add_f32 v65, 0x3727c5ac, v65\nv_cvt_pk_bf16_f32 v65, v65, v65\nv_and_b32 v65, 0xffff0000, v65")
    A("v_sqrt_f32 v65, v65\nv_cvt_pk_bf16_f32 v65, v65, v65\nv_and_b32 v65, 0xffff0000, v65\nv_rcp_f32 v65, v65")
    for i in range(20):
        a, b = 24+2*i, 25+2*i
        A(f"v_sub_f32 v{a}, v{a}, v64\nv_sub_f32 v{b}, v{b}, v64\nv_cvt_pk_bf16_f32 v67, v{a}, v{b}")
        A(f"v_lshlrev_b32 v{a}, 16, v67\nv_and_b32 v{b}, 0xffff0000, v67\nv_mul_f32 v{a}, v{a}, v65\nv_mul_f32 v{b}, v{b}, v65\nv_cvt_pk_bf16_f32 v{4+i}, v{a}, v{b}")
    for i in range(5): A(f"buffer_store_dwordx4 v[{4+4*i}:{7+4*i}], v2, s[12:15], s16 offen offset:{256*i}")
    A("s_endpgm")
    A.label("K0_c")
    A(f"s_cmp_ge_u32 s2, {NLN+NC}\ns_cbranch_scc1 K0_w2")
    A("s_load_dwordx4 s[8:11], s[0:1], 40\ns_waitcnt lgkmcnt(0)")
    srd(A, 16, 8, SZ_B); srd(A, 20, 10, SZ_B); srd(A, 12, 4, SZ_W2P, WS_W2P)
    A(f"s_sub_u32 s24, s2, {NLN}\ns_lshl_b32 s24, s24, 2\ns_add_u32 s24, s24, s3")
    A("s_mul_i32 s25, s24, 52429\ns_lshr_b32 s25, s25, 19\ns_mul_i32 s26, s25, 10\ns_sub_u32 s26, s24, s26")
    A("s_mul_i32 s27, s25, 52429\ns_lshr_b32 s27, s27, 18\ns_mul_i32 s28, s27, 5\ns_sub_u32 s28, s25, s28")
    A("s_mul_i32 s29, s25, 20480\ns_lshl_b32 s30, s26, 7\ns_add_u32 s29, s29, s30")
    A("v_and_b32 v2, 15, v1\nv_mul_u32_u24 v2, 1280, v2\nv_lshrrev_b32 v3, 4, v1\nv_lshl_add_u32 v2, v3, 4, v2")
    for i in range(4):
        A(f"buffer_load_dwordx4 v[{4+4*i}:{7+4*i}], v2, s[{16+4*(i&1)}:{19+4*(i&1)}], s29 offen offset:{64*(i>>1)}")
    A("s_mul_i32 s30, s27, 94\ns_lshl_b32 s31, s26, 2\ns_add_u32 s30, s30, s31\ns_mul_i32 s30, s30, 5\ns_add_u32 s30, s30, s28\ns_lshl_b32 s30, s30, 10")
    A("v_lshlrev_b32 v3, 4, v1")
    for i in range(4):
        A(f"s_waitcnt vmcnt(3)\nbuffer_store_dwordx4 v[{4+4*i}:{7+4*i}], v3, s[12:15], s30 offen\ns_add_u32 s30, s30, 5120")
    A("s_endpgm")
    A.label("K0_w2")
    A(f"s_cmp_ge_u32 s2, {NLN+NC+NW2}\ns_cbranch_scc1 K0_ag")
    A("s_load_dwordx2 s[8:9], s[0:1], 96\ns_waitcnt lgkmcnt(0)")
    srd(A, 16, 8, SZ_W); srd(A, 12, 4, SZ_W2P, WS_W2P)
    A(f"s_sub_u32 s24, s2, {NLN+NC}\ns_lshl_b32 s24, s24, 2\ns_add_u32 s24, s24, s3")
    A("s_mul_i32 s25, s24, 52429\ns_lshr_b32 s25, s25, 20\ns_mul_i32 s26, s25, 20\ns_sub_u32 s26, s24, s26")
    A("s_mul_i32 s27, s25, 52429\ns_lshr_b32 s27, s27, 18\ns_mul_i32 s27, s27, 5\ns_sub_u32 s27, s25, s27")
    A("s_cmp_lt_u32 s25, 50\ns_cselect_b32 s28, 2, 1\ns_cmp_eq_u32 s27, s28")
    A("s_cselect_b32 s28, 2, 1\ns_cselect_b32 s29, 1, 4\ns_mul_i32 s28, s28, 5120\ns_mul_i32 s29, s29, 5120")
    A("v_lshrrev_b32 v2, 4, v1\nv_mul_lo_u32 v2, v2, s28\nv_and_b32 v3, 15, v1\nv_lshl_add_u32 v2, v3, 1, v2\nv_add_u32 v3, s29, v2")
    A("s_mul_i32 s30, s25, 40960\ns_lshl_b32 s31, s26, 6\ns_add_u32 s30, s30, s31")
    for i in range(2):
        for j in range(8):
            A(f"buffer_load_ushort v{8+8*i+j}, v{2+(j>>2)}, s[16:19], s30 offen offset:{(j&3)*1280+32*i}")
    A("v_lshlrev_b32 v4, 4, v1")
    for i in range(2):
        A(f"s_lshl_b32 s31, s26, 1\ns_add_u32 s31, s31, {i}")
        A("s_mul_i32 s32, s31, 52429\ns_lshr_b32 s32, s32, 18\ns_mul_i32 s33, s32, 5\ns_sub_u32 s33, s31, s33")
        A("s_mul_i32 s32, s32, 94\ns_add_u32 s32, s32, s25\ns_add_u32 s32, s32, 40\ns_mul_i32 s32, s32, 5\ns_add_u32 s32, s32, s33\ns_lshl_b32 s32, s32, 10")
        A(f"s_waitcnt vmcnt({8 if i == 0 else 1})")
        for j in range(4): A(f"v_lshl_or_b32 v{24+4*i+j}, v{9+8*i+2*j}, 16, v{8+8*i+2*j}")
        A(f"buffer_store_dwordx4 v[{24+4*i}:{27+4*i}], v4, s[12:15], s32 offen")
    A("s_endpgm")
    A.label("K0_ag")
    A(f"s_cmp_ge_u32 s2, {NLN+NC+NW2+NAG}\ns_cbranch_scc1 K0_pf")
    A("s_waitcnt lgkmcnt(0)")
    srd(A, 12, 4, SZ_AGG, WS_AGG)
    A(f"s_sub_u32 s24, s2, {NLN+NC+NW2}\ns_lshl_b32 s24, s24, 12\nv_lshlrev_b32 v2, 4, v0")
    A("v_mov_b32 v4, -1\nv_mov_b32 v5, -1\nv_mov_b32 v6, -1\nv_mov_b32 v7, -1\nbuffer_store_dwordx4 v[4:7], v2, s[12:15], s24 offen\ns_endpgm")
    A.label("K0_pf")
    A("s_load_dwordx4 s[8:11], s[0:1], 24\ns_load_dwordx4 s[12:15], s[0:1], 80\ns_waitcnt lgkmcnt(0)")
    srd(A, 16, 8, SZ_B); srd(A, 20, 10, SZ_B); srd(A, 24, 12, SZ_W); srd(A, 28, 14, SZ_W)
    A(f"s_sub_u32 s32, s2, {NLN+NC+NW2+NAG}\ns_lshl_b32 s33, s32, 12\nv_lshlrev_b32 v2, 4, v0")
    r = 4
    for base, n in ((16, 3), (20, 3), (24, 6), (28, 6)):
        for i in range(n):
            A(f"s_add_u32 s34, s33, {i*NPF*4096}\nbuffer_load_dwordx4 v[{r}:{r+3}], v2, s[{base}:{base+3}], s34 offen"); r += 4
    A("s_waitcnt vmcnt(0)")
    A.label("K0_end"); A("s_endpgm")
    return A.L, total, 80, 0

class VM:
    def __init__(self): self.n = 0; self.tag = {}
    def issue(self, tag=None):
        self.n += 1
        if tag is not None: self.tag[tag] = self.n
    def wait(self, tags):
        last = max(self.tag[t] for t in tags)
        assert self.n - last <= 63
        return f"s_waitcnt vmcnt({self.n - last})"

W_SLOT = 20480; X_BASE = 5*W_SLOT; X_SLOT = 16384
def gen_ffn(A):
    A("s_load_dwordx4 s[8:11], s[0:1], 80")
    A("s_mul_i32 s22, s21, 160\ns_min_u32 s22, s22, 1568")
    A("s_and_b32 s23, s3, 1\ns_lshr_b32 s24, s3, 1")
    A("s_mul_i32 s25, s23, 320\ns_lshl_b32 s26, s22, 1\ns_movk_i32 s27, 3277")
    for i in range(5):
        A(f"v_add_u32 v2, s25, v1\nv_add_u32 v2, {64*i}, v2\nv_mul_lo_u32 v3, v2, s27\nv_lshrrev_b32 v3, 16, v3")
        A("v_mul_u32_u24 v4, 20, v3\nv_sub_u32 v4, v2, v4\nv_lshrrev_b32 v5, 2, v3\nv_and_b32 v5, 2, v5\nv_xor_b32 v4, v4, v5")
        A(f"v_mul_u32_u24 v3, 3456, v3\nv_lshl_add_u32 v3, v4, 4, v3\nv_add_u32 v3, s26, v3\nv_subrev_u32 v{10+i}, {1024*(i&3)}, v3")
    A("s_lshl_b32 s25, s20, 7\ns_lshl_b32 s26, s3, 5\ns_add_u32 s25, s25, s26")
    for i in range(4):
        A(f"v_lshrrev_b32 v2, 3, v1\nv_add_u32 v2, {8*i}, v2\nv_lshrrev_b32 v3, 1, v2\nv_xor_b32 v3, v3, v1\nv_and_b32 v3, 7, v3")
        A(f"v_add_u32 v2, s25, v2\nv_mul_u32_u24 v2, 1280, v2\nv_lshl_add_u32 v2, v3, 4, v2\nv_subrev_u32 v{15+i}, {1024*(i&1)}, v2")
    A("s_waitcnt lgkmcnt(0)")
    A("s_cmp_eq_u32 s24, 0\ns_cselect_b32 s12, s8, s10\ns_cselect_b32 s13, s9, s11")
    A(f"s_mov_b32 s14, {SZ_W}\ns_mov_b32 s15, 0x20000")
    srd(A, 16, 4, SZ_X, WS_XN)
    A(f"s_mul_i32 s28, s3, 5120\ns_lshl_b32 s29, s3, 12\ns_add_u32 s29, s29, {X_BASE}")
    vm = VM()
    def dmaW(s):
        L = [f"s_add_u32 m0, s28, {(s%5)*W_SLOT}", f"s_mov_b32 s30, {s*32*3456}"]
        for i in range(5):
            if i == 4: L.append(f"s_add_u32 m0, s28, {(s%5)*W_SLOT+4096}")
            L.append(("W", s, f"buffer_load_dwordx4 v{10+i}, s[12:15], s30 offen offset:{1024*(i&3)} lds"))
        return L
    def dmaX(u, h):
        L = [f"s_add_u32 m0, s29, {(u%3)*X_SLOT+2048*h}", f"s_movk_i32 s31, {u*128}"]
        for i in range(2): L.append(("X", u, f"buffer_load_dwordx4 v{15+2*h+i}, s[16:19], s31 offen offset:{1024*i} lds"))
        return L
    def emit(x):
        if isinstance(x, tuple): vm.issue((x[0], x[1])); A(x[2])
        else: A(x)
    for x in dmaX(0,0)+dmaX(0,1)+dmaW(0)+dmaW(1)+dmaX(1,0)+dmaX(1,1)+dmaW(2)+dmaW(3)+dmaX(2,0)+dmaW(4): emit(x)
    A("v_lshrrev_b32 v2, 4, v1\nv_lshrrev_b32 v3, 2, v1\nv_and_b32 v3, 3, v3\nv_lshl_add_u32 v3, v2, 3, v3\nv_mul_u32_u24 v3, 320, v3")
    A("v_and_b32 v4, 3, v1\nv_lshl_add_u32 v3, v4, 3, v3\nv_and_b32 v4, 1, v2\nv_lshlrev_b32 v4, 5, v4")
    A("s_mul_i32 s25, s24, 192\nv_add_u32 v5, s25, v3\nv_add_u32 v20, v5, v4\nv_sub_u32 v21, v5, v4")
    A("s_lshl_b32 s25, s24, 5\ns_add_u32 s25, s25, 128\nv_xor_b32 v5, s25, v4\nv_add_u32 v22, v3, v5")
    for i in range(3): A(f"v_add_u32 v{23+i}, {3*W_SLOT}, v{20+i}")
    A("v_and_b32 v3, 15, v1\nv_lshrrev_b32 v4, 1, v3\nv_xor_b32 v4, v4, v2\nv_lshlrev_b32 v4, 4, v4\nv_lshl_add_u32 v3, v3, 7, v4")
    A(f"s_lshl_b32 s25, s23, 13\ns_add_u32 s25, s25, {X_BASE}\nv_add_u32 v26, s25, v3\nv_xor_b32 v27, 64, v26")
    ACC = 96
    def acc(j, tb): return ACC + (j*4+tb)*4
    def Wr(par, j): return par*56 + j*4
    def Xr(par, tb): return par*56 + 40 + tb*4
    def reads(s):
        par = s & 1; L = []
        sl = s % 5; hi = 3 if sl >= 3 else 0; so = (sl - (3 if sl >= 3 else 0))*W_SLOT
        for tb in range(4):
            L.append(f"ds_read_b128 a[{Xr(par,tb)}:{Xr(par,tb)+3}], v{26+(s&1)} offset:{((s>>1)%3)*X_SLOT + tb*2048}")
        for j in range(10):
            pr, m = j >> 1, j & 1
            ar = 22 if pr == 4 else 20 + (pr & 1)
            co = 0 if pr == 4 else pr*32
            for hh in range(2):
                L.append(f"ds_read_b64_tr_b16 a[{Wr(par,j)+2*hh}:{Wr(par,j)+2*hh+1}], v{ar+hi} offset:{so + m*10240 + hh*1280 + co}")
        return L
    A(vm.wait([("X",0),("W",0)])); A("s_barrier")
    for x in reads(0): A(x)
    for s in range(20):
        need_tags = [("W", s+1), ("X", (s+1) >> 1)] if s < 19 else None
        A((vm.wait(need_tags) + " lgkmcnt(0)") if need_tags else "s_waitcnt lgkmcnt(0)")
        if s < 19: A("s_barrier")
        par = s & 1
        mf = []
        for j in range(10):
            for tb in range(4):
                c = acc(j, tb); srcc = f"v[{c}:{c+3}]" if s else "0"
                mf.append(f"v_mfma_f32_16x16x32_bf16 v[{c}:{c+3}], a[{Wr(par,j)}:{Wr(par,j)+3}], a[{Xr(par,tb)}:{Xr(par,tb)+3}], {srcc}")
        d = []
        u3 = (s - 1)//2 + 3 if s & 1 else (s - 2)//2 + 3
        if u3 <= 9: d += dmaX(u3, 0 if s & 1 else 1)
        if s + 5 <= 19: d += dmaW(s+5)
        s1 = interleave(mf, reads(s+1), 0, 30) if s < 19 else [[] for _ in mf]
        s2 = interleave(mf, d, 0, 38) if d else [[] for _ in mf]
        for i, m in enumerate(mf):
            A(m)
            for x in s1[i]: A(x)
            for x in s2[i]: emit(x)
    stamp(A, 1, 1, 4)
    srd(A, 8, 4, SZ_H, WS_H)
    A("s_lshl_b32 s25, s20, 1\ns_add_u32 s25, s25, s23\ns_mul_i32 s25, s25, 94\ns_lshr_b32 s26, s22, 5\ns_add_u32 s25, s25, s26\ns_add_u32 s25, s25, 40")
    A("s_add_u32 s27, s25, 2\ns_lshl_b32 s27, s27, 12\ns_mul_i32 s26, s24, 3\ns_add_u32 s25, s25, s26\ns_lshl_b32 s25, s25, 12\ns_add_u32 s26, s25, 4096")
    A("v_lshlrev_b32 v10, 4, v1")
    A("v_lshrrev_b32 v2, 4, v1\nv_and_b32 v3, 1, v2\nv_lshlrev_b32 v3, 10, v3\nv_lshrrev_b32 v2, 1, v2\nv_lshl_add_u32 v3, v2, 8, v3")
    A("v_and_b32 v2, 15, v1\nv_lshl_add_u32 v3, v2, 4, v3\ns_lshl_b32 s30, s24, 9\nv_add_u32 v11, s30, v3")
    A("s_mov_b32 s31, 0xbfb8aa3b")
    T = 32
    def silu_block(pr, tb, dst):
        g, u = acc(2*pr, tb), acc(2*pr+1, tb)
        for e in range(4): A(f"v_mul_f32 v{T+e}, s31, v{g+e}")
        for e in range(4): A(f"v_exp_f32 v{T+e}, v{T+e}")
        for e in range(4): A(f"v_mul_f32 v{g+e}, v{g+e}, v{u+e}")
        for e in range(4): A(f"v_add_f32 v{T+e}, 1.0, v{T+e}")
        for e in range(4): A(f"v_rcp_f32 v{T+e}, v{T+e}")
        for e in range(4): A(f"v_mul_f32 v{g+e}, v{g+e}, v{T+e}")
        A(f"v_cvt_pk_bf16_f32 v{dst}, v{g}, v{g+1}\nv_cvt_pk_bf16_f32 v{dst+1}, v{g+2}, v{g+3}")
    O = 40; n = 0
    for fr in range(2):
        for tb in range(4):
            o = O + 4*n; n += 1
            silu_block(2*fr, tb, o); silu_block(2*fr+1, tb, o+2)
            A(f"buffer_store_dwordx4 v[{o}:{o+3}], v10, s[8:11], s{25+fr} offen offset:{tb*1024}")
    for tp in range(2):
        o = O + 4*n; n += 1
        silu_block(4, 2*tp, o); silu_block(4, 2*tp+1, o+2)
        A(f"v_permlane16_swap_b32 v{o}, v{o+2}\nv_permlane16_swap_b32 v{o+1}, v{o+3}")
        A(f"buffer_store_dwordx4 v[{o}:{o+3}], v11, s[8:11], s27 offen offset:{tp*2048}")
    stamp(A, 1, 2, 4)
    A("s_endpgm")

S_SLOT = 49152
def gen_ssm(A):
    A("s_load_dwordx4 s[8:11], s[0:1], 24\ns_load_dwordx4 s[36:39], s[0:1], 8\ns_load_dwordx2 s[40:41], s[0:1], 56")
    A("s_and_b32 s23, s3, 1\ns_lshr_b32 s24, s3, 1")
    A("s_lshl_b32 s25, s20, 8\ns_lshl_b32 s26, s24, 7\ns_add_u32 s25, s25, s26\ns_lshl_b32 s26, s23, 4\ns_add_u32 s25, s25, s26")
    A("v_lshrrev_b32 v2, 5, v1\nv_lshlrev_b32 v2, 5, v2\nv_bfe_u32 v3, v1, 3, 2\nv_add3_u32 v2, v2, v3, s25\nv_mul_u32_u24 v2, 1280, v2")
    A("v_lshrrev_b32 v3, 4, v1\nv_xor_b32 v3, v3, v1\nv_and_b32 v3, 7, v3\nv_lshlrev_b32 v3, 4, v3\nv_xor_b32 v4, 64, v3")
    A("v_add_u32 v5, v2, v3\nv_add_u32 v6, v2, v4")
    for ii in range(8):
        A(f"v_add_u32 v{10+ii}, {(64*(ii&1) + 4*(ii>>1))*1280 - 1024*(ii&3)}, v{5+(ii&1)}")
    A("s_lshl_b32 s25, s21, 6\ns_lshl_b32 s26, s23, 5\ns_add_u32 s25, s25, s26")
    A("v_lshrrev_b32 v2, 3, v1\nv_add_u32 v2, s25, v2\nv_mul_u32_u24 v2, 1280, v2\nv_add_u32 v5, v2, v3\nv_add_u32 v6, v2, v4")
    for i in range(4): A(f"v_add_u32 v{18+i}, {8*i*1280 - 1024*i}, v{5+(i&1)}")
    A("s_waitcnt lgkmcnt(0)")
    A("s_cmp_eq_u32 s24, 0\ns_cselect_b32 s12, s8, s10\ns_cselect_b32 s13, s9, s11")
    A(f"s_mov_b32 s14, {SZ_B}\ns_mov_b32 s15, 0x20000")
    srd(A, 16, 4, SZ_X, WS_XN)
    A("s_lshl_b32 s28, s3, 13\ns_lshl_b32 s29, s3, 12\ns_add_u32 s29, s29, 32768")
    vm = VM()
    A("s_lshl_b32 s25, s21, 6\ns_lshl_b32 s26, s24, 5\ns_add_u32 s25, s25, s26\nv_and_b32 v2, 15, v1\nv_add_u32 v30, s25, v2\nv_lshlrev_b32 v2, 1, v30")
    for cb in range(2):
        for q, sp in enumerate((36, 38, 40)):
            A(f"global_load_ushort v{32+3*cb+q}, v2, s[{sp}:{sp+1}] offset:{32*cb}"); vm.issue("P")
    def dma(u, h):
        b = (u % 3)*S_SLOT
        L = [f"s_add_u32 m0, s28, {b+4096*h}", f"s_movk_i32 s31, {u*128}"]
        for i in range(4): L.append(("S", u, f"buffer_load_dwordx4 v{10+4*h+i}, s[16:19], s31 offen offset:{1024*i} lds"))
        L.append(f"s_add_u32 m0, s29, {b}")
        for i in range(2): L.append(("S", u, f"buffer_load_dwordx4 v{18+2*h+i}, s[12:15], s31 offen offset:{1024*(2*h+i)} lds"))
        return L
    def emit(x):
        if isinstance(x, tuple): vm.issue((x[0], x[1])); A(x[2])
        else: A(x)
    for x in dma(0,0)+dma(0,1)+dma(1,0)+dma(1,1)+dma(2,0): emit(x)
    A("v_lshrrev_b32 v2, 4, v1\nv_and_b32 v3, 15, v1\nv_lshrrev_b32 v4, 1, v3\nv_xor_b32 v4, v4, v2\nv_lshlrev_b32 v4, 4, v4\nv_lshl_add_u32 v3, v3, 7, v4")
    A("s_lshl_b32 s25, s23, 14\ns_lshl_b32 s26, s24, 12\ns_add_u32 s26, s26, 32768")
    A("v_add_u32 v22, s25, v3\nv_xor_b32 v23, 64, v22\nv_add_u32 v60, s26, v3\nv_xor_b32 v61, 64, v60")
    for sl in (1, 2):
        for ks in range(2):
            A(f"v_add_u32 v{22+2*sl+ks}, {sl*S_SLOT}, v{22+ks}\nv_add_u32 v{60+2*sl+ks}, {sl*S_SLOT}, v{60+ks}")
    A(vm.wait(["P"]))
    A("s_lshl_b32 s25, s23, 2\nv_lshrrev_b32 v28, 4, v1\nv_add_u32 v28, s25, v28")
    def cexp(dr, di, zr2, zt, t0, t1):
        A(f"v_exp_f32 v{t0}, v{zr2}\nv_fract_f32 v{t1}, v{zt}\nv_cos_f32 v{dr}, v{t1}\nv_sin_f32 v{di}, v{t1}\nv_mul_f32 v{dr}, v{dr}, v{t0}\nv_mul_f32 v{di}, v{di}, v{t0}")
    def csq(r, i, t):
        A(f"v_mul_f32 v{t}, v{i}, v{i}\nv_mul_f32 v{i}, v{r}, v{i}\nv_fma_f32 v{r}, v{r}, v{r}, -v{t}\nv_add_f32 v{i}, v{i}, v{i}")
    for cb in range(2):
        P = 70 + 16*cb; i0 = 32 + 3*cb
        LR, LI, NLI, CA, CB, L32R, L32I, L256R, L256I, QR, QI = range(P, P+11)
        A(f"v_lshlrev_b32 v{i0}, 16, v{i0}\nv_lshlrev_b32 v{i0+1}, 16, v{i0+1}\nv_lshlrev_b32 v{i0+2}, 16, v{i0+2}")
        A(f"v_mul_f32 v2, 0x3fb8aa3b, v{i0+2}\nv_exp_f32 v2, v2\nv_cvt_pk_bf16_f32 v2, v2, v2\nv_and_b32 v2, 0xffff0000, v2")
        A(f"v_mul_f32 v3, v2, v{i0}\nv_mul_f32 v4, v2, v{i0+1}\nv_mul_f32 v3, 0x3fb8aa3b, v3\nv_mul_f32 v4, 0.15915494, v4")
        cexp(LR, LI, 3, 4, 5, 6)
        A(f"v_sub_f32 v{NLI}, 0, v{LI}")
        A(f"v_add_f32 v5, -1.0, v{LR}\nv_mul_f32 v6, v{i0}, v{i0}\nv_fmac_f32 v6, v{i0+1}, v{i0+1}\nv_rcp_f32 v6, v6\nv_add_f32 v6, v6, v6")
        A(f"v_mul_f32 v7, v5, v{i0}\nv_fmac_f32 v7, v{LI}, v{i0+1}\nv_mul_f32 v{CA}, v7, v6")
        A(f"v_mul_f32 v7, v{LI}, v{i0}\nv_fma_f32 v7, -v5, v{i0+1}, v7\nv_mul_f32 v{CB}, v7, v6")
        A(f"v_mov_b32 v{L32R}, v{LR}\nv_mov_b32 v{L32I}, v{LI}")
        for _ in range(5): csq(L32R, L32I, 5)
        A(f"v_mov_b32 v{L256R}, v{L32R}\nv_mov_b32 v{L256I}, v{L32I}\nv_mov_b32 v{QR}, 1.0\nv_mov_b32 v{QI}, 0")
        for bit in range(3):
            A(f"v_and_b32 v5, {1<<bit}, v28\nv_cmp_ne_u32 vcc, 0, v5")
            A(f"v_mul_f32 v5, v{QR}, v{L256R}\nv_fma_f32 v5, -v{QI}, v{L256I}, v5\nv_mul_f32 v6, v{QR}, v{L256I}\nv_fmac_f32 v6, v{QI}, v{L256R}")
            A(f"v_cndmask_b32 v{QR}, v{QR}, v5, vcc\nv_cndmask_b32 v{QI}, v{QI}, v6, vcc")
            csq(L256R, L256I, 5)
    ACC = 128
    def acc(b, c): return ACC + (c*8+b)*4
    def Xr(par, b): return par*48 + b*4
    def Br(par, c): return par*48 + 32 + c*4
    def reads(s):
        par = s & 1; sl = (s >> 1) % 3; L = []
        for c in range(4): L.append(f"ds_read_b128 a[{Br(par,c)}:{Br(par,c)+3}], v{60+2*sl+(s&1)} offset:{(c>>1)*8192 + (c&1)*2048}")
        for b in range(8): L.append(f"ds_read_b128 a[{Xr(par,b)}:{Xr(par,b)+3}], v{22+2*sl+(s&1)} offset:{b*2048}")
        return L
    A(vm.wait([("S",0)])); A("s_barrier")
    for x in reads(0): A(x)
    for s in range(20):
        if s < 19 and (s & 1): A(vm.wait([("S", (s+1) >> 1)]) + " lgkmcnt(0)"); A("s_barrier")
        else: A("s_waitcnt lgkmcnt(0)")
        par = s & 1; mf = []
        for b in range(8):
            for c in range(4):
                r = acc(b, c); srcc = f"v[{r}:{r+3}]" if s else "0"
                mf.append(f"v_mfma_f32_16x16x32_bf16 v[{r}:{r+3}], a[{Xr(par,b)}:{Xr(par,b)+3}], a[{Br(par,c)}:{Br(par,c)+3}], {srcc}")
        u3 = (s - 1)//2 + 3 if s & 1 else (s - 2)//2 + 3
        d = dma(u3, 0 if s & 1 else 1) if u3 <= 9 else []
        s1 = interleave(mf, reads(s+1), 0, 24) if s < 19 else [[] for _ in mf]
        s2 = interleave(mf, d, 0, 30) if d else [[] for _ in mf]
        for i, m in enumerate(mf):
            A(m)
            for x in s1[i]: A(x)
            for x in s2[i]: emit(x)
    stamp(A, 1, 1, 4)
    def Pm(cb):
        P = 70 + 16*cb; return dict(zip("LR LI NLI CA CB L32R L32I L256R L256I QR QI PR PI T0 T1".split(), range(P, P+15)))
    def gre(cb, t): return acc(0, cb) + t
    def gim(cb, t): return acc(0, 2+cb) + t
    for t in range(1, 32):
        for cb in range(2):
            p = Pm(cb); A(f"v_fmac_f32 v{gre(cb,t)}, v{p['LR']}, v{gre(cb,t-1)}\nv_fmac_f32 v{gim(cb,t)}, v{p['LR']}, v{gim(cb,t-1)}")
        for cb in range(2):
            p = Pm(cb); A(f"v_fmac_f32 v{gre(cb,t)}, v{p['NLI']}, v{gim(cb,t-1)}\nv_fmac_f32 v{gim(cb,t)}, v{p['LI']}, v{gre(cb,t-1)}")
    SEGB = 2*S_SLOT
    A(f"v_and_b32 v2, 63, v30\nv_lshlrev_b32 v2, 3, v2\nv_add_u32 v2, {SEGB}, v2\nv_lshl_add_u32 v3, v28, 9, v2")
    for cb in range(2):
        A(f"v_mov_b32 v4, v{gre(cb,31)}\nv_mov_b32 v5, v{gim(cb,31)}\nds_write_b64 v3, v[4:5] offset:{128*cb}")
    A("s_waitcnt lgkmcnt(0)\ns_barrier")
    for s in range(7):
        for cb in range(2): A(f"ds_read_b64 v[{32+4*s+2*cb}:{33+4*s+2*cb}], v2 offset:{512*s+128*cb}")
    for cb in range(2):
        p = Pm(cb); A(f"v_mov_b32 v{p['PR']}, 0\nv_mov_b32 v{p['PI']}, 0")
    A("s_waitcnt lgkmcnt(0)")
    def horner(cb, mr, mi, ar, ai, dr=None, di=None):
        p = Pm(cb); dr = p['PR'] if dr is None else dr; di = p['PI'] if di is None else di
        A(f"v_fmac_f32 v{ar}, v{mr}, v{p['PR']}\nv_fmac_f32 v{ai}, v{mr}, v{p['PI']}")
        A(f"v_fma_f32 v{p['T0']}, -v{mi}, v{p['PI']}, v{ar}\nv_fma_f32 v{di}, v{mi}, v{p['PR']}, v{ai}\nv_mov_b32 v{dr}, v{p['T0']}")
    for s in range(7):
        A(f"v_cmp_lt_u32 vcc, {s}, v28\ns_and_b64 exec, exec, vcc")
        for cb in range(2): horner(cb, Pm(cb)['L32R'], Pm(cb)['L32I'], 32+4*s+2*cb, 33+4*s+2*cb)
    srd(A, 8, 4, SZ_AGG, WS_AGG)
    A("s_mul_i32 s25, s20, 5120\ns_cbranch_execz SSM_nopub")
    A("v_lshlrev_b32 v3, 3, v30")
    for cb in range(2):
        A(f"v_mov_b32 v4, v{gre(cb,31)}\nv_mov_b32 v5, v{gim(cb,31)}")
        horner(cb, Pm(cb)['L32R'], Pm(cb)['L32I'], 4, 5, 6+2*cb, 7+2*cb)
        A(f"v_min_u32 v{6+2*cb}, 0xfffffffe, v{6+2*cb}\nv_min_u32 v{7+2*cb}, 0xfffffffe, v{7+2*cb}")
        A(f"buffer_store_dwordx2 v[{6+2*cb}:{7+2*cb}], v3, s[8:11], s25 offen offset:{128*cb} sc0 sc1")
    A.label("SSM_nopub")
    A("s_mov_b64 exec, -1")
    for t in range(32):
        for cb in range(2):
            p = Pm(cb); r, i = gre(cb,t), gim(cb,t)
            A(f"v_mul_f32 v{p['T0']}, v{p['CB']}, v{i}\nv_mul_f32 v{p['T1']}, v{p['CB']}, v{r}")
            A(f"v_fma_f32 v{r}, v{p['CA']}, v{r}, -v{p['T0']}\nv_fma_f32 v{i}, -v{p['CA']}, v{i}, -v{p['T1']}")
    stamp(A, 1, 2, 4)
    A("v_lshlrev_b32 v3, 3, v30\ns_sub_u32 s25, s25, 35840\nv_add_u32 v3, s25, v3")
    for i in range(7): A(f"v_add_u32 v{10+i}, {5120*i}, v3")
    A("s_mov_b32 s33, 0x40000")
    A.label("SSM_poll")
    for i in range(7):
        for cb in range(2): A(f"buffer_load_dwordx2 v[{32+4*i+2*cb}:{33+4*i+2*cb}], v{10+i}, s[8:11], 0 offen offset:{128*cb} sc0 sc1")
    A("s_waitcnt vmcnt(0)")
    A("v_max3_u32 v2, v32, v33, v34")
    for r in range(35, 59, 2): A(f"v_max3_u32 v2, v2, v{r}, v{r+1}")
    A("v_max_u32 v2, v2, v59\nv_cmp_eq_u32 vcc, -1, v2\ns_sub_u32 s33, s33, 1\ns_cbranch_scc1 SSM_go\ns_cbranch_vccnz SSM_poll")
    A.label("SSM_go")
    stamp(A, 1, 3, 4)
    for cb in range(2):
        p = Pm(cb)
        cr, ci = 4+2*cb, 5+2*cb
        A(f"v_mov_b32 v{cr}, v{32+2*cb}\nv_mov_b32 v{ci}, v{33+2*cb}")
        for i in range(1, 7):
            ar, ai = 32+4*i+2*cb, 33+4*i+2*cb
            A(f"v_fmac_f32 v{ar}, v{p['L256R']}, v{cr}\nv_fmac_f32 v{ai}, v{p['L256R']}, v{ci}")
            A(f"v_fma_f32 v{p['T0']}, -v{p['L256I']}, v{ci}, v{ar}\nv_fma_f32 v{ci}, v{p['L256I']}, v{cr}, v{ai}\nv_mov_b32 v{cr}, v{p['T0']}")
        A(f"v_fmac_f32 v{p['PR']}, v{p['QR']}, v{cr}\nv_fmac_f32 v{p['PI']}, v{p['QR']}, v{ci}")
        A(f"v_fma_f32 v{p['PR']}, -v{p['QI']}, v{ci}, v{p['PR']}\nv_fmac_f32 v{p['PI']}, v{p['QI']}, v{cr}")
        A(f"v_mul_f32 v{p['T0']}, v{p['CB']}, v{p['PI']}\nv_mul_f32 v{p['T1']}, v{p['CB']}, v{p['PR']}")
        A(f"v_fma_f32 v{cr}, v{p['CA']}, v{p['PR']}, -v{p['T0']}\nv_fma_f32 v{ci}, -v{p['CA']}, v{p['PI']}, -v{p['T1']}")
    PK = 32
    PITCH = 288; IMG = 32*PITCH
    A(f"s_mul_i32 s25, s3, {2*IMG}\nv_and_b32 v2, 15, v1\nv_mul_u32_u24 v2, {PITCH}, v2\nv_lshrrev_b32 v3, 4, v1\nv_lshl_add_u32 v2, v3, 6, v2\nv_add_u32 v17, s25, v2")
    A(f"v_bfe_u32 v2, v1, 2, 2\nv_lshl_add_u32 v2, v3, 3, v2\nv_mul_u32_u24 v2, {PITCH}, v2\nv_and_b32 v3, 3, v1\nv_lshl_add_u32 v2, v3, 3, v2\nv_add_u32 v18, s25, v2")
    for t in range(32):
        cur = [(4+2*cb, 5+2*cb) if t % 2 == 0 else (Pm(cb)['T0'], Pm(cb)['T1']) for cb in range(2)]
        nxt = [(4+2*cb, 5+2*cb) if t % 2 == 1 else (Pm(cb)['T0'], Pm(cb)['T1']) for cb in range(2)]
        for cb in range(2):
            p = Pm(cb); A(f"v_mul_f32 v{nxt[cb][0]}, v{p['LR']}, v{cur[cb][0]}\nv_mul_f32 v{nxt[cb][1]}, v{p['LR']}, v{cur[cb][1]}")
        for cb in range(2):
            p = Pm(cb); A(f"v_fmac_f32 v{nxt[cb][0]}, v{p['LI']}, v{cur[cb][1]}\nv_fmac_f32 v{nxt[cb][1]}, v{p['NLI']}, v{cur[cb][0]}")
        for cb in range(2):
            A(f"v_add_f32 v{gre(cb,t)}, v{gre(cb,t)}, v{nxt[cb][0]}\nv_add_f32 v{gim(cb,t)}, v{gim(cb,t)}, v{nxt[cb][1]}")
        if t & 1:
            bank = 16*((t >> 3) & 1)
            for cb in range(2):
                A(f"v_cvt_pk_bf16_f32 v{PK+bank+8*cb+((t>>1)&3)}, v{gre(cb,t-1)}, v{gre(cb,t)}\nv_cvt_pk_bf16_f32 v{PK+bank+8*cb+4+((t>>1)&3)}, v{gim(cb,t-1)}, v{gim(cb,t)}")
            if t & 7 == 7:
                for cb in range(2):
                    for im in range(2):
                        r = PK+bank+8*cb+4*im
                        A(f"ds_write_b128 v17, v[{r}:{r+3}] offset:{im*IMG + cb*16*PITCH + (t>>3)*16}")
    srd(A, 8, 4, SZ_H, WS_H)
    A("s_lshl_b32 s25, s20, 2\ns_lshl_b32 s26, s23, 1\ns_add_u32 s25, s25, s26\ns_mul_i32 s25, s25, 94")
    A("s_lshl_b32 s26, s21, 2\ns_add_u32 s25, s25, s26\ns_lshl_b32 s26, s24, 1\ns_add_u32 s25, s25, s26\ns_lshl_b32 s25, s25, 12")
    A(f"s_add_u32 s26, s25, 4096\ns_add_u32 s27, s25, {94*4096}\ns_add_u32 s28, s25, {95*4096}\nv_lshlrev_b32 v10, 4, v1\ns_waitcnt lgkmcnt(0)")
    n = 0
    for im in range(2):
        for tb in range(8):
            r = 128 + 4*n; n += 1
            for hh in range(2): A(f"ds_read_b64_tr_b16 v[{r+2*hh}:{r+2*hh+1}], v18 offset:{im*IMG + hh*4*PITCH + tb*32}")
    n = 0
    for im in range(2):
        for tb in range(8):
            r = 128 + 4*n
            A(f"s_waitcnt lgkmcnt({min(15, 30-2*n)})\nbuffer_store_dwordx4 v[{r}:{r+3}], v10, s[8:11], s{25+im+2*(tb>>2)} offen offset:{(tb&3)*1024}"); n += 1
    stamp(A, 1, 4, 4)
    A("s_endpgm")

def gen_k1():
    A = Asm()
    A("s_cmp_ge_u32 s2, 256\ns_cbranch_scc1 K1_end")
    A("s_load_dwordx2 s[4:5], s[0:1], 120")
    A("v_and_b32 v1, 63, v0\nv_lshrrev_b32 v2, 6, v0\ns_nop 0\nv_readfirstlane_b32 s3, v2")
    if TS:
        A("s_lshl_b32 s94, s2, 2\ns_add_u32 s94, s94, s3\ns_lshl_b32 s94, s94, 6\ns_waitcnt lgkmcnt(0)"); stamp(A, 1, 0, 4)
    A("s_and_b32 s20, s2, 7\ns_lshr_b32 s21, s2, 3\ns_lshr_b32 s22, s20, 2\ns_and_b32 s23, s20, 3")
    A("s_cmp_eq_u32 s23, 3\ns_cselect_b32 s24, 16, 8\ns_cmp_lt_u32 s21, s24\ns_cbranch_scc1 K1_ssm")
    A("s_sub_u32 s21, s21, s24\ns_and_b32 s20, s21, 7\ns_lshl_b32 s22, s22, 3\ns_add_u32 s20, s20, s22")
    A("s_lshr_b32 s21, s21, 3\ns_mul_i32 s23, s23, 3\ns_add_u32 s21, s21, s23")
    gen_ffn(A)
    A.label("K1_ssm")
    A("s_and_b32 s20, s21, 3\ns_lshl_b32 s22, s22, 2\ns_add_u32 s20, s20, s22\ns_lshr_b32 s21, s21, 2\ns_lshl_b32 s23, s23, 1\ns_add_u32 s21, s21, s23")
    gen_ssm(A)
    A.label("K1_end"); A("s_endpgm")
    return A.L, 256, 256, 112

def gen_k2():
    A = Asm(); D = 4
    A("s_cmp_ge_u32 s2, 256\ns_cbranch_scc1 K2_end")
    A("s_load_dwordx2 s[4:5], s[0:1], 120\ns_load_dwordx2 s[6:7], s[0:1], 0\ns_load_dwordx2 s[32:33], s[0:1], 64\ns_load_dwordx2 s[34:35], s[0:1], 104")
    A("v_and_b32 v1, 63, v0\nv_lshrrev_b32 v2, 6, v0\ns_nop 0\nv_readfirstlane_b32 s3, v2")
    A("s_and_b32 s20, s2, 7\ns_lshr_b32 s21, s2, 3\ns_lshl_b32 s20, s20, 2\ns_lshr_b32 s22, s21, 3\ns_add_u32 s20, s20, s22\ns_and_b32 s21, s21, 7")
    A("s_mul_i32 s24, s3, 24\ns_min_u32 s24, s24, 71\ns_cmp_ge_u32 s3, 2\ns_cselect_b32 s25, 23, 24\ns_add_u32 s26, s24, s25")
    A("s_mul_i32 s27, s21, 3\ns_mul_i32 s28, s22, 5\ns_add_u32 s27, s27, s28\ns_cmp_ge_u32 s27, 23\ns_cselect_b32 s28, 23, 0\ns_sub_u32 s27, s27, s28")
    if not int(OPT.get("rot", 0)): A("s_mov_b32 s27, 0")
    A("s_add_u32 s27, s27, s24")
    A("s_waitcnt lgkmcnt(0)")
    if TS:
        A("s_lshl_b32 s94, s2, 2\ns_add_u32 s94, s94, s3\ns_lshl_b32 s94, s94, 6"); stamp(A, 2, 0, 4)
    A(f"s_mul_i32 s28, s20, {94*4096}\ns_add_u32 s8, s4, s28\ns_addc_u32 s9, s5, 0\ns_add_u32 s8, s8, {WS_H}\ns_addc_u32 s9, s9, 0\ns_mov_b32 s10, {94*4096}\ns_mov_b32 s11, 0x20000")
    A(f"s_mul_i32 s28, s21, {94*5120}\ns_add_u32 s12, s4, s28\ns_addc_u32 s13, s5, 0\ns_add_u32 s12, s12, {WS_W2P}\ns_addc_u32 s13, s13, 0\ns_mov_b32 s14, {94*5120}\ns_mov_b32 s15, 0x20000")
    A("v_lshlrev_b32 v10, 4, v1\nv_add_u32 v11, 4096, v10")
    vm = VM()
    def Hr(d, tb): return d*36 + tb*4
    def Wr(d, nb): return d*36 + 16 + nb*4
    def loads(i):
        d = i % D
        L = []
        if i == 23: L += ["s_cmp_eq_u32 s25, 23", "s_cselect_b32 s10, 0, s10", "s_cselect_b32 s14, 0, s14"]
        L += ["s_lshl_b32 s29, s27, 12", "s_mul_i32 s30, s27, 5120"]
        for tb in range(4): L.append((i, f"buffer_load_dwordx4 a[{Hr(d,tb)}:{Hr(d,tb)+3}], v10, s[8:11], s29 offen offset:{tb*1024}"))
        for nb in range(5): L.append((i, f"buffer_load_dwordx4 a[{Wr(d,nb)}:{Wr(d,nb)+3}], v{10+(nb>>2)}, s[12:15], s30 offen offset:{(nb&3)*1024}"))
        L += ["s_add_u32 s27, s27, 1", "s_cmp_eq_u32 s27, s26", "s_cselect_b32 s27, s24, s27"]
        return L
    def emit(x):
        if isinstance(x, tuple): vm.issue(x[0]); A(x[1])
        else: A(x)
    for i in range(D-1):
        for x in loads(i): emit(x)
    srd(A, 16, 6, SZ_X); srd(A, 36, 4, SZ_X, WS_XN); srd(A, 40, 32, 1280); srd(A, 44, 34, SZ_OUT)
    A("s_lshl_b32 s28, s20, 6\ns_lshl_b32 s31, s3, 4\ns_add_u32 s28, s28, s31\nv_lshrrev_b32 v2, 2, v1\nv_add_u32 v2, s28, v2\nv_mul_u32_u24 v2, 640, v2")
    A("s_mul_i32 s28, s21, 80\nv_and_b32 v3, 3, v1\nv_lshlrev_b32 v3, 2, v3\nv_add_u32 v3, s28, v3\nv_add_u32 v2, v2, v3")
    A("v_lshlrev_b32 v12, 1, v2\nv_lshlrev_b32 v13, 2, v2\nv_lshlrev_b32 v14, 1, v3")
    for nb in range(5):
        A(f"buffer_load_dwordx2 v[{16+2*nb}:{17+2*nb}], v12, s[16:19], 0 offen offset:{32*nb}"); vm.issue()
        A(f"buffer_load_dwordx2 v[{26+2*nb}:{27+2*nb}], v12, s[36:39], 0 offen offset:{32*nb}"); vm.issue()
        A(f"buffer_load_dwordx2 v[{36+2*nb}:{37+2*nb}], v14, s[40:43], 0 offen offset:{32*nb}"); vm.issue()
    ACC = 48
    def acc(nb, tb): return ACC + (tb*5+nb)*4
    for i in range(24):
        d = i % D
        A(vm.wait([i]))
        mf = []
        for nb in range(5):
            for tb in range(4):
                c = acc(nb, tb); srcc = f"v[{c}:{c+3}]" if i else "0"
                mf.append(f"v_mfma_f32_16x16x32_bf16 v[{c}:{c+3}], a[{Wr(d,nb)}:{Wr(d,nb)+3}], a[{Hr(d,tb)}:{Hr(d,tb)+3}], {srcc}")
        ld = loads(i+D-1) if i+D-1 < 24 else []
        sl = interleave(mf, ld, 0, 18) if ld else [[] for _ in mf]
        for k, m in enumerate(mf):
            A(m)
            for x in sl[k]: emit(x)
    stamp(A, 2, 1, 4)
    A("v_lshrrev_b32 v2, 4, v1\nv_lshlrev_b32 v3, 2, v2\nv_xor_b32 v3, v3, v1\nv_lshlrev_b32 v3, 4, v3\ns_mul_i32 s28, s3, 20480\nv_add_u32 v3, s28, v3")
    for k in range(20): A(f"ds_write_b128 v3, v[{ACC+4*k}:{ACC+4*k+3}] offset:{k*1024}")
    A("v_and_b32 v2, 3, v1\nv_lshrrev_b32 v4, 2, v1\nv_lshlrev_b32 v5, 2, v2\nv_xor_b32 v4, v4, v5\nv_lshl_add_u32 v4, v2, 4, v4\nv_lshlrev_b32 v4, 4, v4\ns_mul_i32 s28, s3, 5120\nv_add_u32 v4, s28, v4\nv_add_u32 v5, 40960, v4")
    for nb in range(5):
        for h in range(2):
            x, xn, dk, o = 16+2*nb+h, 26+2*nb+h, 36+2*nb+h, 128+4*nb+2*h
            A(f"v_lshlrev_b32 v6, 16, v{xn}\nv_and_b32 v7, 0xffff0000, v{xn}\nv_lshlrev_b32 v8, 16, v{dk}\nv_and_b32 v9, 0xffff0000, v{dk}")
            A(f"v_mul_f32 v6, v6, v8\nv_mul_f32 v7, v7, v9\nv_cvt_pk_bf16_f32 v6, v6, v7\nv_and_b32 v7, 0xffff0000, v6\nv_lshlrev_b32 v6, 16, v6")
            A(f"v_lshlrev_b32 v8, 16, v{x}\nv_and_b32 v9, 0xffff0000, v{x}\nv_add_f32 v{o}, v6, v8\nv_add_f32 v{o+1}, v7, v9")
    A("s_waitcnt lgkmcnt(0)\ns_barrier")
    for nb in range(5):
        for w in range(4):
            r = ACC + (nb*4+w)*4
            A(f"ds_read_b128 v[{r}:{r+3}], v{4+(w>>1)} offset:{(w&1)*20480 + nb*1024}")
    for nb in range(5):
        A(f"s_waitcnt lgkmcnt({min(15, 16-4*nb)})")
        r = ACC + nb*16; o = 128+4*nb
        for e in range(4): A(f"v_add_f32 v{r+e}, v{r+e}, v{r+4+e}\nv_add_f32 v{r+8+e}, v{r+8+e}, v{r+12+e}")
        for e in range(4): A(f"v_add_f32 v{r+e}, v{r+e}, v{r+8+e}")
        for e in range(4): A(f"v_add_f32 v{o+e}, v{o+e}, v{r+e}")
        A(f"buffer_store_dwordx4 v[{o}:{o+3}], v13, s[44:47], 0 offen offset:{64*nb}")
    stamp(A, 2, 2, 4)
    A.label("K2_end"); A("s_endpgm")
    return A.L, 256, 148, 144

def main():
    ref = open(f"cdna_kernels/{NAME}.s.ref").read().split("\n")
    hdr = [l for l in ref if l.startswith(";") and "@launch" not in l and "Override" not in l and "grid=ceil" not in l]
    ks = [("prep_kernel", gen_k0(), 0), ("gemm1_kernel", gen_k1(), 151552), ("gemm2_kernel", gen_k2(), 81920)]
    out = "\n".join(hdr) + "\n"
    for i in range(int(OPT.get("pre", 0))): out += "; @launch kernel=nop_kernel grid=(256,1,1) block=(256,1,1) lds=0\n"
    for n, (L, grid, v, a), lds in ks: out += f"; @launch kernel={n} grid=({grid},1,1) block=(256,1,1) lds={lds}\n"
    for i in range(int(OPT.get("post", 0))): out += "; @launch kernel=nop_kernel grid=(256,1,1) block=(256,1,1) lds=0\n"
    if "pre" in OPT or "post" in OPT: ks.append(("nop_kernel", (["s_endpgm"], 256, 8, 0), 0))
    out += '.amdgcn_target "amdgcn-amd-amdhsa--gfx950"\n'
    for n, (L, grid, v, a), lds in ks: out += kernel_text(n, hazard_pass(L, "v" in OPT))
    for n, (L, grid, v, a), lds in ks: out += kd(n, v, a)
    open(sys.argv[1], "w").write(out)
main()
```

```python
import sys
from asmlib import *
NAME = "parallel_sum__ssm_conv_s5__glu_gated_swiglu__prompt"
OPT = dict(a.split("=") for a in sys.argv[2:])
TS = int(OPT.get("ts", 0))
KA = dict(x=0, lre=8, lim=16, bre=24, bim=32, cre=40, cim=48, ldt=56, dsk=64, w1=80, w3=88, w2=96, out=104, dbg=112, ws=120)
WS_XN = 0; WS_H = 0x300000; WS_W2P = 0x1000000; WS_AGG = 0x1400000; WS_TS = 0x1500000
SZ_X = 2048*640*2; SZ_H = 128*94*1024; SZ_W2P = 40*94*1024; SZ_AGG = 8*640*8; SZ_B = 640*640*2; SZ_W = 640*1728*2; SZ_OUT = 2048*640*4
SENT = 0xFFFFFFFF

def srd(A, d, lo, size, add=0):
    if add:
        A(f"s_add_u32 s{d}, s{lo}, {hex(add)}\ns_addc_u32 s{d+1}, s{lo+1}, 0")
    else:
        A(f"s_mov_b32 s{d}, s{lo}\ns_mov_b32 s{d+1}, s{lo+1}")
    A(f"s_mov_b32 s{d+2}, {hex(size)}\ns_mov_b32 s{d+3}, 0x20000")
def stamp(A, kidx, slot, wsreg, tmpv=(2,3,4)):
    if not TS: return
    a, b, c = tmpv
    A(f"s_memrealtime s[90:91]\ns_waitcnt lgkmcnt(0)\ns_add_u32 s92, s94, {WS_TS + kidx*65536*4 + slot*8}")
    A(f"v_mov_b32 v{a}, s90\nv_mov_b32 v{b}, s91\nv_mov_b32 v{c}, s92\nglobal_store_dwordx2 v{c}, v[{a}:{b}], s[{wsreg}:{wsreg+1}]")

def gen_k0():
    A = Asm()
    NLN, NC, NW2, NAG, NPF = 128, 100, 270, 10, 93
    total = NLN + NC + NW2 + NAG + (NPF if int(OPT.get("pf", 1)) else 0)
    A(f"s_cmp_ge_u32 s2, {total}\ns_cbranch_scc1 K0_end")
    A("s_load_dwordx2 s[4:5], s[0:1], 120")
    A("v_and_b32 v1, 63, v0\nv_lshrrev_b32 v2, 6, v0\ns_nop 0\nv_readfirstlane_b32 s3, v2")
    if TS:
        A("s_lshl_b32 s94, s2, 2\ns_add_u32 s94, s94, s3\ns_lshl_b32 s94, s94, 6\ns_waitcnt lgkmcnt(0)"); stamp(A, 0, 0, 4)
    A(f"s_cmp_ge_u32 s2, {NLN}\ns_cbranch_scc1 K0_c")
    A("s_load_dwordx2 s[6:7], s[0:1], 0\ns_waitcnt lgkmcnt(0)")
    srd(A, 8, 6, SZ_X); srd(A, 12, 4, SZ_X, WS_XN)
    A("s_lshl_b32 s16, s2, 4\ns_lshl_b32 s17, s3, 2\ns_add_u32 s16, s16, s17\ns_mul_i32 s16, s16, 1280")
    A("v_lshrrev_b32 v2, 4, v1\nv_mul_u32_u24 v2, 1280, v2\nv_and_b32 v3, 15, v1\nv_lshl_add_u32 v2, v3, 4, v2")
    for i in range(5): A(f"buffer_load_dwordx4 v[{4+4*i}:{7+4*i}], v2, s[8:11], s16 offen offset:{256*i}")
    A("s_waitcnt vmcnt(0)")
    for i in range(20):
        A(f"v_lshlrev_b32 v{24+2*i}, 16, v{4+i}\nv_and_b32 v{25+2*i}, 0xffff0000, v{4+i}")
    def red(v):
        for r in (8, 4, 2, 1): A(f"v_add_f32_dpp v{v}, v{v}, v{v} row_ror:{r} row_mask:0xf bank_mask:0xf")
    A("v_add_f32 v64, v24, v25\nv_add_f32 v65, v26, v27")
    for i in range(4, 40, 2): A(f"v_add_f32 v64, v64, v{24+i}\nv_add_f32 v65, v65, v{25+i}")
    A("v_add_f32 v64, v64, v65"); red(64)
    A("v_mul_f32 v64, 0x3acccccd, v64")
    A("v_mov_b32 v65, 0\nv_mov_b32 v66, 0")
    for i in range(0, 40, 2):
        A(f"v_sub_f32 v67, v{24+i}, v64\nv_sub_f32 v68, v{25+i}, v64\nv_fmac_f32 v65, v67, v67\nv_fmac_f32 v66, v68, v68")
    A("v_add_f32 v65, v65, v66"); red(65)
    A("v_mul_f32 v65, 0x3acccccd, v65")
    A("v_cvt_pk_bf16_f32 v66, v64, v65\nv_lshlrev_b32 v64, 16, v66\nv_and_b32 v65, 0xffff0000, v66")
    A("v_add_f32 v65, 0x3727c5ac, v65\nv_cvt_pk_bf16_f32 v65, v65, v65\nv_and_b32 v65, 0xffff0000, v65")
    A("v_sqrt_f32 v65, v65\nv_cvt_pk_bf16_f32 v65, v65, v65\nv_and_b32 v65, 0xffff0000, v65\nv_rcp_f32 v65, v65")
    for i in range(20):
        a, b = 24+2*i, 25+2*i
        A(f"v_sub_f32 v{a}, v{a}, v64\nv_sub_f32 v{b}, v{b}, v64\nv_cvt_pk_bf16_f32 v67, v{a}, v{b}")
        A(f"v_lshlrev_b32 v{a}, 16, v67\nv_and_b32 v{b}, 0xffff0000, v67\nv_mul_f32 v{a}, v{a}, v65\nv_mul_f32 v{b}, v{b}, v65\nv_cvt_pk_bf16_f32 v{4+i}, v{a}, v{b}")
    for i in range(5): A(f"buffer_store_dwordx4 v[{4+4*i}:{7+4*i}], v2, s[12:15], s16 offen offset:{256*i}")
    A("s_endpgm")
    A.label("K0_c")
    A(f"s_cmp_ge_u32 s2, {NLN+NC}\ns_cbranch_scc1 K0_w2")
    A("s_load_dwordx4 s[8:11], s[0:1], 40\ns_waitcnt lgkmcnt(0)")
    srd(A, 16, 8, SZ_B); srd(A, 20, 10, SZ_B); srd(A, 12, 4, SZ_W2P, WS_W2P)
    A(f"s_sub_u32 s24, s2, {NLN}\ns_lshl_b32 s24, s24, 2\ns_add_u32 s24, s24, s3")
    A("s_mul_i32 s25, s24, 52429\ns_lshr_b32 s25, s25, 19\ns_mul_i32 s26, s25, 10\ns_sub_u32 s26, s24, s26")
    A("s_mul_i32 s27, s25, 52429\ns_lshr_b32 s27, s27, 18\ns_mul_i32 s28, s27, 5\ns_sub_u32 s28, s25, s28")
    A("s_mul_i32 s29, s25, 20480\ns_lshl_b32 s30, s26, 7\ns_add_u32 s29, s29, s30")
    A("v_and_b32 v2, 15, v1\nv_mul_u32_u24 v2, 1280, v2\nv_lshrrev_b32 v3, 4, v1\nv_lshl_add_u32 v2, v3, 4, v2")
    for i in range(4):
        A(f"buffer_load_dwordx4 v[{4+4*i}:{7+4*i}], v2, s[{16+4*(i&1)}:{19+4*(i&1)}], s29 offen offset:{64*(i>>1)}")
    A("s_mul_i32 s30, s27, 94\ns_lshl_b32 s31, s26, 2\ns_add_u32 s30, s30, s31\ns_mul_i32 s30, s30, 5\ns_add_u32 s30, s30, s28\ns_lshl_b32 s30, s30, 10")
    A("v_lshlrev_b32 v3, 4, v1")
    for i in range(4):
        A(f"s_waitcnt vmcnt(3)\nbuffer_store_dwordx4 v[{4+4*i}:{7+4*i}], v3, s[12:15], s30 offen\ns_add_u32 s30, s30, 5120")
    A("s_endpgm")
    A.label("K0_w2")
    A(f"s_cmp_ge_u32 s2, {NLN+NC+NW2}\ns_cbranch_scc1 K0_ag")
    A("s_load_dwordx2 s[8:9], s[0:1], 96\ns_waitcnt lgkmcnt(0)")
    srd(A, 16, 8, SZ_W); srd(A, 12, 4, SZ_W2P, WS_W2P)
    A(f"s_sub_u32 s24, s2, {NLN+NC}\ns_lshl_b32 s24, s24, 2\ns_add_u32 s24, s24, s3")
    A("s_mul_i32 s25, s24, 52429\ns_lshr_b32 s25, s25, 20\ns_mul_i32 s26, s25, 20\ns_sub_u32 s26, s24, s26")
    A("s_mul_i32 s27, s25, 52429\ns_lshr_b32 s27, s27, 18\ns_mul_i32 s27, s27, 5\ns_sub_u32 s27, s25, s27")
    A("s_cmp_lt_u32 s25, 50\ns_cselect_b32 s28, 2, 1\ns_cmp_eq_u32 s27, s28")
    A("s_cselect_b32 s28, 2, 1\ns_cselect_b32 s29, 1, 4\ns_mul_i32 s28, s28, 5120\ns_mul_i32 s29, s29, 5120")
    A("v_lshrrev_b32 v2, 4, v1\nv_mul_lo_u32 v2, v2, s28\nv_and_b32 v3, 15, v1\nv_lshl_add_u32 v2, v3, 1, v2\nv_add_u32 v3, s29, v2")
    A("s_mul_i32 s30, s25, 40960\ns_lshl_b32 s31, s26, 6\ns_add_u32 s30, s30, s31")
    for i in range(2):
        for j in range(8):
            A(f"buffer_load_ushort v{8+8*i+j}, v{2+(j>>2)}, s[16:19], s30 offen offset:{(j&3)*1280+32*i}")
    A("v_lshlrev_b32 v4, 4, v1")
    for i in range(2):
        A(f"s_lshl_b32 s31, s26, 1\ns_add_u32 s31, s31, {i}")
        A("s_mul_i32 s32, s31, 52429\ns_lshr_b32 s32, s32, 18\ns_mul_i32 s33, s32, 5\ns_sub_u32 s33, s31, s33")
        A("s_mul_i32 s32, s32, 94\ns_add_u32 s32, s32, s25\ns_add_u32 s32, s32, 40\ns_mul_i32 s32, s32, 5\ns_add_u32 s32, s32, s33\ns_lshl_b32 s32, s32, 10")
        A(f"s_waitcnt vmcnt({8 if i == 0 else 1})")
        for j in range(4): A(f"v_lshl_or_b32 v{24+4*i+j}, v{9+8*i+2*j}, 16, v{8+8*i+2*j}")
        A(f"buffer_store_dwordx4 v[{24+4*i}:{27+4*i}], v4, s[12:15], s32 offen")
    A("s_endpgm")
    A.label("K0_ag")
    A(f"s_cmp_ge_u32 s2, {NLN+NC+NW2+NAG}\ns_cbranch_scc1 K0_pf")
    A("s_waitcnt lgkmcnt(0)")
    srd(A, 12, 4, SZ_AGG, WS_AGG)
    A(f"s_sub_u32 s24, s2, {NLN+NC+NW2}\ns_lshl_b32 s24, s24, 12\nv_lshlrev_b32 v2, 4, v0")
    A("v_mov_b32 v4, -1\nv_mov_b32 v5, -1\nv_mov_b32 v6, -1\nv_mov_b32 v7, -1\nbuffer_store_dwordx4 v[4:7], v2, s[12:15], s24 offen\ns_endpgm")
    A.label("K0_pf")
    A("s_load_dwordx4 s[8:11], s[0:1], 24\ns_load_dwordx4 s[12:15], s[0:1], 80\ns_waitcnt lgkmcnt(0)")
    srd(A, 16, 8, SZ_B); srd(A, 20, 10, SZ_B); srd(A, 24, 12, SZ_W); srd(A, 28, 14, SZ_W)
    A(f"s_sub_u32 s32, s2, {NLN+NC+NW2+NAG}\ns_lshl_b32 s33, s32, 12\nv_lshlrev_b32 v2, 4, v0")
    r = 4
    for base, n in ((16, 3), (20, 3), (24, 6), (28, 6)):
        for i in range(n):
            A(f"s_add_u32 s34, s33, {i*NPF*4096}\nbuffer_load_dwordx4 v[{r}:{r+3}], v2, s[{base}:{base+3}], s34 offen"); r += 4
    A("s_waitcnt vmcnt(0)")
    A.label("K0_end"); A("s_endpgm")
    return A.L, total, 80, 0

class VM:
    def __init__(self): self.n = 0; self.tag = {}
    def issue(self, tag=None):
        self.n += 1
        if tag is not None: self.tag[tag] = self.n
    def wait(self, tags):
        last = max(self.tag[t] for t in tags)
        assert self.n - last <= 63
        return f"s_waitcnt vmcnt({self.n - last})"

W_SLOT = 20480; X_BASE = 5*W_SLOT; X_SLOT = 16384
def gen_ffn(A):
    A("s_load_dwordx4 s[8:11], s[0:1], 80")
    A("s_mul_i32 s22, s21, 160\ns_min_u32 s22, s22, 1568")
    A("s_and_b32 s23, s3, 1\ns_lshr_b32 s24, s3, 1")
    A("s_mul_i32 s25, s23, 320\ns_lshl_b32 s26, s22, 1\ns_movk_i32 s27, 3277")
    for i in range(5):
        A(f"v_add_u32 v2, s25, v1\nv_add_u32 v2, {64*i}, v2\nv_mul_lo_u32 v3, v2, s27\nv_lshrrev_b32 v3, 16, v3")
        A("v_mul_u32_u24 v4, 20, v3\nv_sub_u32 v4, v2, v4\nv_lshrrev_b32 v5, 2, v3\nv_and_b32 v5, 2, v5\nv_xor_b32 v4, v4, v5")
        A(f"v_mul_u32_u24 v3, 3456, v3\nv_lshl_add_u32 v3, v4, 4, v3\nv_add_u32 v3, s26, v3\nv_subrev_u32 v{10+i}, {1024*(i&3)}, v3")
    A("s_lshl_b32 s25, s20, 7\ns_lshl_b32 s26, s3, 5\ns_add_u32 s25, s25, s26")
    for i in range(4):
        A(f"v_lshrrev_b32 v2, 3, v1\nv_add_u32 v2, {8*i}, v2\nv_lshrrev_b32 v3, 1, v2\nv_xor_b32 v3, v3, v1\nv_and_b32 v3, 7, v3")
        A(f"v_add_u32 v2, s25, v2\nv_mul_u32_u24 v2, 1280, v2\nv_lshl_add_u32 v2, v3, 4, v2\nv_subrev_u32 v{15+i}, {1024*(i&1)}, v2")
    A("s_waitcnt lgkmcnt(0)")
    A("s_cmp_eq_u32 s24, 0\ns_cselect_b32 s12, s8, s10\ns_cselect_b32 s13, s9, s11")
    A(f"s_mov_b32 s14, {SZ_W}\ns_mov_b32 s15, 0x20000")
    srd(A, 16, 4, SZ_X, WS_XN)
    A(f"s_mul_i32 s28, s3, 5120\ns_lshl_b32 s29, s3, 12\ns_add_u32 s29, s29, {X_BASE}")
    vm = VM()
    def dmaW(s):
        L = [f"s_add_u32 m0, s28, {(s%5)*W_SLOT}", f"s_mov_b32 s30, {s*32*3456}"]
        for i in range(5):
            if i == 4: L.append(f"s_add_u32 m0, s28, {(s%5)*W_SLOT+4096}")
            L.append(("W", s, f"buffer_load_dwordx4 v{10+i}, s[12:15], s30 offen offset:{1024*(i&3)} lds"))
        return L
    def dmaX(u, h):
        L = [f"s_add_u32 m0, s29, {(u%3)*X_SLOT+2048*h}", f"s_movk_i32 s31, {u*128}"]
        for i in range(2): L.append(("X", u, f"buffer_load_dwordx4 v{15+2*h+i}, s[16:19], s31 offen offset:{1024*i} lds"))
        return L
    def emit(x):
        if isinstance(x, tuple): vm.issue((x[0], x[1])); A(x[2])
        else: A(x)
    for x in dmaX(0,0)+dmaX(0,1)+dmaW(0)+dmaW(1)+dmaX(1,0)+dmaX(1,1)+dmaW(2)+dmaW(3)+dmaX(2,0)+dmaW(4): emit(x)
    A("v_lshrrev_b32 v2, 4, v1\nv_lshrrev_b32 v3, 2, v1\nv_and_b32 v3, 3, v3\nv_lshl_add_u32 v3, v2, 3, v3\nv_mul_u32_u24 v3, 320, v3")
    A("v_and_b32 v4, 3, v1\nv_lshl_add_u32 v3, v4, 3, v3\nv_and_b32 v4, 1, v2\nv_lshlrev_b32 v4, 5, v4")
    A("s_mul_i32 s25, s24, 192\nv_add_u32 v5, s25, v3\nv_add_u32 v20, v5, v4\nv_sub_u32 v21, v5, v4")
    A("s_lshl_b32 s25, s24, 5\ns_add_u32 s25, s25, 128\nv_xor_b32 v5, s25, v4\nv_add_u32 v22, v3, v5")
    for i in range(3): A(f"v_add_u32 v{23+i}, {3*W_SLOT}, v{20+i}")
    A("v_and_b32 v3, 15, v1\nv_lshrrev_b32 v4, 1, v3\nv_xor_b32 v4, v4, v2\nv_lshlrev_b32 v4, 4, v4\nv_lshl_add_u32 v3, v3, 7, v4")
    A(f"s_lshl_b32 s25, s23, 13\ns_add_u32 s25, s25, {X_BASE}\nv_add_u32 v26, s25, v3\nv_xor_b32 v27, 64, v26")
    ACC = 96
    def acc(j, tb): return ACC + (j*4+tb)*4
    def Wr(par, j): return par*56 + j*4
    def Xr(par, tb): return par*56 + 40 + tb*4
    def reads(s):
        par = s & 1; L = []
        sl = s % 5; hi = 3 if sl >= 3 else 0; so = (sl - (3 if sl >= 3 else 0))*W_SLOT
        for tb in range(4):
            L.append(f"ds_read_b128 a[{Xr(par,tb)}:{Xr(par,tb)+3}], v{26+(s&1)} offset:{((s>>1)%3)*X_SLOT + tb*2048}")
        for j in range(10):
            pr, m = j >> 1, j & 1
            ar = 22 if pr == 4 else 20 + (pr & 1)
            co = 0 if pr == 4 else pr*32
            for hh in range(2):
                L.append(f"ds_read_b64_tr_b16 a[{Wr(par,j)+2*hh}:{Wr(par,j)+2*hh+1}], v{ar+hi} offset:{so + m*10240 + hh*1280 + co}")
        return L
    A(vm.wait([("X",0),("W",0)])); A("s_barrier")
    for x in reads(0): A(x)
    for s in range(20):
        need_tags = [("W", s+1), ("X", (s+1) >> 1)] if s < 19 else None
        A((vm.wait(need_tags) + " lgkmcnt(0)") if need_tags else "s_waitcnt lgkmcnt(0)")
        if s < 19: A("s_barrier")
        par = s & 1
        mf = []
        for j in range(10):
            for tb in range(4):
                c = acc(j, tb); srcc = f"v[{c}:{c+3}]" if s else "0"
                mf.append(f"v_mfma_f32_16x16x32_bf16 v[{c}:{c+3}], a[{Wr(par,j)}:{Wr(par,j)+3}], a[{Xr(par,tb)}:{Xr(par,tb)+3}], {srcc}")
        d = []
        u3 = (s - 1)//2 + 3 if s & 1 else (s - 2)//2 + 3
        if u3 <= 9: d += dmaX(u3, 0 if s & 1 else 1)
        if s + 5 <= 19: d += dmaW(s+5)
        s1 = interleave(mf, reads(s+1), 0, 30) if s < 19 else [[] for _ in mf]
        s2 = interleave(mf, d, 0, 38) if d else [[] for _ in mf]
        for i, m in enumerate(mf):
            A(m)
            for x in s1[i]: A(x)
            for x in s2[i]: emit(x)
    stamp(A, 1, 1, 4)
    srd(A, 8, 4, SZ_H, WS_H)
    A("s_lshl_b32 s25, s20, 1\ns_add_u32 s25, s25, s23\ns_mul_i32 s25, s25, 94\ns_lshr_b32 s26, s22, 5\ns_add_u32 s25, s25, s26\ns_add_u32 s25, s25, 40")
    A("s_add_u32 s27, s25, 2\ns_lshl_b32 s27, s27, 12\ns_mul_i32 s26, s24, 3\ns_add_u32 s25, s25, s26\ns_lshl_b32 s25, s25, 12\ns_add_u32 s26, s25, 4096")
    A("v_lshlrev_b32 v10, 4, v1")
    A("v_lshrrev_b32 v2, 4, v1\nv_and_b32 v3, 1, v2\nv_lshlrev_b32 v3, 10, v3\nv_lshrrev_b32 v2, 1, v2\nv_lshl_add_u32 v3, v2, 8, v3")
    A("v_and_b32 v2, 15, v1\nv_lshl_add_u32 v3, v2, 4, v3\ns_lshl_b32 s30, s24, 9\nv_add_u32 v11, s30, v3")
    A("s_mov_b32 s31, 0xbfb8aa3b")
    T = 32
    def silu_block(pr, tb, dst):
        g, u = acc(2*pr, tb), acc(2*pr+1, tb)
        for e in range(4): A(f"v_mul_f32 v{T+e}, s31, v{g+e}")
        for e in range(4): A(f"v_exp_f32 v{T+e}, v{T+e}")
        for e in range(4): A(f"v_mul_f32 v{g+e}, v{g+e}, v{u+e}")
        for e in range(4): A(f"v_add_f32 v{T+e}, 1.0, v{T+e}")
        for e in range(4): A(f"v_rcp_f32 v{T+e}, v{T+e}")
        for e in range(4): A(f"v_mul_f32 v{g+e}, v{g+e}, v{T+e}")
        A(f"v_cvt_pk_bf16_f32 v{dst}, v{g}, v{g+1}\nv_cvt_pk_bf16_f32 v{dst+1}, v{g+2}, v{g+3}")
    O = 40; n = 0
    for fr in range(2):
        for tb in range(4):
            o = O + 4*n; n += 1
            silu_block(2*fr, tb, o); silu_block(2*fr+1, tb, o+2)
            A(f"buffer_store_dwordx4 v[{o}:{o+3}], v10, s[8:11], s{25+fr} offen offset:{tb*1024}")
    for tp in range(2):
        o = O + 4*n; n += 1
        silu_block(4, 2*tp, o); silu_block(4, 2*tp+1, o+2)
        A(f"v_permlane16_swap_b32 v{o}, v{o+2}\nv_permlane16_swap_b32 v{o+1}, v{o+3}")
        A(f"buffer_store_dwordx4 v[{o}:{o+3}], v11, s[8:11], s27 offen offset:{tp*2048}")
    stamp(A, 1, 2, 4)
    A("s_endpgm")

S_SLOT = 49152
def gen_ssm(A):
    A("s_load_dwordx4 s[8:11], s[0:1], 24\ns_load_dwordx4 s[36:39], s[0:1], 8\ns_load_dwordx2 s[40:41], s[0:1], 56")
    A("s_and_b32 s23, s3, 1\ns_lshr_b32 s24, s3, 1")
    A("s_lshl_b32 s25, s20, 8\ns_lshl_b32 s26, s24, 7\ns_add_u32 s25, s25, s26\ns_lshl_b32 s26, s23, 4\ns_add_u32 s25, s25, s26")
    A("v_lshrrev_b32 v2, 5, v1\nv_lshlrev_b32 v2, 5, v2\nv_bfe_u32 v3, v1, 3, 2\nv_add3_u32 v2, v2, v3, s25\nv_mul_u32_u24 v2, 1280, v2")
    A("v_lshrrev_b32 v3, 4, v1\nv_xor_b32 v3, v3, v1\nv_and_b32 v3, 7, v3\nv_lshlrev_b32 v3, 4, v3\nv_xor_b32 v4, 64, v3")
    A("v_add_u32 v5, v2, v3\nv_add_u32 v6, v2, v4")
    for ii in range(8):
        A(f"v_add_u32 v{10+ii}, {(64*(ii&1) + 4*(ii>>1))*1280 - 1024*(ii&3)}, v{5+(ii&1)}")
    A("s_lshl_b32 s25, s21, 6\ns_lshl_b32 s26, s23, 5\ns_add_u32 s25, s25, s26")
    A("v_lshrrev_b32 v2, 3, v1\nv_add_u32 v2, s25, v2\nv_mul_u32_u24 v2, 1280, v2\nv_add_u32 v5, v2, v3\nv_add_u32 v6, v2, v4")
    for i in range(4): A(f"v_add_u32 v{18+i}, {8*i*1280 - 1024*i}, v{5+(i&1)}")
    A("s_waitcnt lgkmcnt(0)")
    A("s_cmp_eq_u32 s24, 0\ns_cselect_b32 s12, s8, s10\ns_cselect_b32 s13, s9, s11")
    A(f"s_mov_b32 s14, {SZ_B}\ns_mov_b32 s15, 0x20000")
    srd(A, 16, 4, SZ_X, WS_XN)
    A("s_lshl_b32 s28, s3, 13\ns_lshl_b32 s29, s3, 12\ns_add_u32 s29, s29, 32768")
    vm = VM()
    A("s_lshl_b32 s25, s21, 6\ns_lshl_b32 s26, s24, 5\ns_add_u32 s25, s25, s26\nv_and_b32 v2, 15, v1\nv_add_u32 v30, s25, v2\nv_lshlrev_b32 v2, 1, v30")
    for cb in range(2):
        for q, sp in enumerate((36, 38, 40)):
            A(f"global_load_ushort v{32+3*cb+q}, v2, s[{sp}:{sp+1}] offset:{32*cb}"); vm.issue("P")
    def dma(u, h):
        b = (u % 3)*S_SLOT
        L = [f"s_add_u32 m0, s28, {b+4096*h}", f"s_movk_i32 s31, {u*128}"]
        for i in range(4): L.append(("S", u, f"buffer_load_dwordx4 v{10+4*h+i}, s[16:19], s31 offen offset:{1024*i} lds"))
        L.append(f"s_add_u32 m0, s29, {b}")
        for i in range(2): L.append(("S", u, f"buffer_load_dwordx4 v{18+2*h+i}, s[12:15], s31 offen offset:{1024*(2*h+i)} lds"))
        return L
    def emit(x):
        if isinstance(x, tuple): vm.issue((x[0], x[1])); A(x[2])
        else: A(x)
    for x in dma(0,0)+dma(0,1)+dma(1,0)+dma(1,1)+dma(2,0): emit(x)
    A("v_lshrrev_b32 v2, 4, v1\nv_and_b32 v3, 15, v1\nv_lshrrev_b32 v4, 1, v3\nv_xor_b32 v4, v4, v2\nv_lshlrev_b32 v4, 4, v4\nv_lshl_add_u32 v3, v3, 7, v4")
    A("s_lshl_b32 s25, s23, 14\ns_lshl_b32 s26, s24, 12\ns_add_u32 s26, s26, 32768")
    A("v_add_u32 v22, s25, v3\nv_xor_b32 v23, 64, v22\nv_add_u32 v60, s26, v3\nv_xor_b32 v61, 64, v60")
    for sl in (1, 2):
        for ks in range(2):
            A(f"v_add_u32 v{22+2*sl+ks}, {sl*S_SLOT}, v{22+ks}\nv_add_u32 v{60+2*sl+ks}, {sl*S_SLOT}, v{60+ks}")
    A(vm.wait(["P"]))
    A("s_lshl_b32 s25, s23, 2\nv_lshrrev_b32 v28, 4, v1\nv_add_u32 v28, s25, v28")
    def cexp(dr, di, zr2, zt, t0, t1):
        A(f"v_exp_f32 v{t0}, v{zr2}\nv_fract_f32 v{t1}, v{zt}\nv_cos_f32 v{dr}, v{t1}\nv_sin_f32 v{di}, v{t1}\nv_mul_f32 v{dr}, v{dr}, v{t0}\nv_mul_f32 v{di}, v{di}, v{t0}")
    def csq(r, i, t):
        A(f"v_mul_f32 v{t}, v{i}, v{i}\nv_mul_f32 v{i}, v{r}, v{i}\nv_fma_f32 v{r}, v{r}, v{r}, -v{t}\nv_add_f32 v{i}, v{i}, v{i}")
    for cb in range(2):
        P = 70 + 16*cb; i0 = 32 + 3*cb
        LR, LI, NLI, CA, CB, L32R, L32I, L256R, L256I, QR, QI = range(P, P+11)
        A(f"v_lshlrev_b32 v{i0}, 16, v{i0}\nv_lshlrev_b32 v{i0+1}, 16, v{i0+1}\nv_lshlrev_b32 v{i0+2}, 16, v{i0+2}")
        A(f"v_mul_f32 v2, 0x3fb8aa3b, v{i0+2}\nv_exp_f32 v2, v2\nv_cvt_pk_bf16_f32 v2, v2, v2\nv_and_b32 v2, 0xffff0000, v2")
        A(f"v_mul_f32 v3, v2, v{i0}\nv_mul_f32 v4, v2, v{i0+1}\nv_mul_f32 v3, 0x3fb8aa3b, v3\nv_mul_f32 v4, 0.15915494, v4")
        cexp(LR, LI, 3, 4, 5, 6)
        A(f"v_sub_f32 v{NLI}, 0, v{LI}")
        A(f"v_add_f32 v5, -1.0, v{LR}\nv_mul_f32 v6, v{i0}, v{i0}\nv_fmac_f32 v6, v{i0+1}, v{i0+1}\nv_rcp_f32 v6, v6\nv_add_f32 v6, v6, v6")
        A(f"v_mul_f32 v7, v5, v{i0}\nv_fmac_f32 v7, v{LI}, v{i0+1}\nv_mul_f32 v{CA}, v7, v6")
        A(f"v_mul_f32 v7, v{LI}, v{i0}\nv_fma_f32 v7, -v5, v{i0+1}, v7\nv_mul_f32 v{CB}, v7, v6")
        A(f"v_mov_b32 v{L32R}, v{LR}\nv_mov_b32 v{L32I}, v{LI}")
        for _ in range(5): csq(L32R, L32I, 5)
        A(f"v_mov_b32 v{L256R}, v{L32R}\nv_mov_b32 v{L256I}, v{L32I}\nv_mov_b32 v{QR}, 1.0\nv_mov_b32 v{QI}, 0")
        for bit in range(3):
            A(f"v_and_b32 v5, {1<<bit}, v28\nv_cmp_ne_u32 vcc, 0, v5")
            A(f"v_mul_f32 v5, v{QR}, v{L256R}\nv_fma_f32 v5, -v{QI}, v{L256I}, v5\nv_mul_f32 v6, v{QR}, v{L256I}\nv_fmac_f32 v6, v{QI}, v{L256R}")
            A(f"v_cndmask_b32 v{QR}, v{QR}, v5, vcc\nv_cndmask_b32 v{QI}, v{QI}, v6, vcc")
            csq(L256R, L256I, 5)
    ACC = 128
    def acc(b, c): return ACC + (c*8+b)*4
    def Xr(par, b): return par*48 + b*4
    def Br(par, c): return par*48 + 32 + c*4
    def reads(s):
        par = s & 1; sl = (s >> 1) % 3; L = []
        for c in range(4): L.append(f"ds_read_b128 a[{Br(par,c)}:{Br(par,c)+3}], v{60+2*sl+(s&1)} offset:{(c>>1)*8192 + (c&1)*2048}")
        for b in range(8): L.append(f"ds_read_b128 a[{Xr(par,b)}:{Xr(par,b)+3}], v{22+2*sl+(s&1)} offset:{b*2048}")
        return L
    A(vm.wait([("S",0)])); A("s_barrier")
    for x in reads(0): A(x)
    for s in range(20):
        if s < 19 and (s & 1): A(vm.wait([("S", (s+1) >> 1)]) + " lgkmcnt(0)"); A("s_barrier")
        else: A("s_waitcnt lgkmcnt(0)")
        par = s & 1; mf = []
        for b in range(8):
            for c in range(4):
                r = acc(b, c); srcc = f"v[{r}:{r+3}]" if s else "0"
                mf.append(f"v_mfma_f32_16x16x32_bf16 v[{r}:{r+3}], a[{Xr(par,b)}:{Xr(par,b)+3}], a[{Br(par,c)}:{Br(par,c)+3}], {srcc}")
        u3 = (s - 1)//2 + 3 if s & 1 else (s - 2)//2 + 3
        d = dma(u3, 0 if s & 1 else 1) if u3 <= 9 else []
        s1 = interleave(mf, reads(s+1), 0, 24) if s < 19 else [[] for _ in mf]
        s2 = interleave(mf, d, 0, 30) if d else [[] for _ in mf]
        for i, m in enumerate(mf):
            A(m)
            for x in s1[i]: A(x)
            for x in s2[i]: emit(x)
    stamp(A, 1, 1, 4)
    def Pm(cb):
        P = 70 + 16*cb; return dict(zip("LR LI NLI CA CB L32R L32I L256R L256I QR QI PR PI T0 T1".split(), range(P, P+15)))
    def gre(cb, t): return acc(0, cb) + t
    def gim(cb, t): return acc(0, 2+cb) + t
    for t in range(1, 32):
        for cb in range(2):
            p = Pm(cb); A(f"v_fmac_f32 v{gre(cb,t)}, v{p['LR']}, v{gre(cb,t-1)}\nv_fmac_f32 v{gim(cb,t)}, v{p['LR']}, v{gim(cb,t-1)}")
        for cb in range(2):
            p = Pm(cb); A(f"v_fmac_f32 v{gre(cb,t)}, v{p['NLI']}, v{gim(cb,t-1)}\nv_fmac_f32 v{gim(cb,t)}, v{p['LI']}, v{gre(cb,t-1)}")
    SEGB = 2*S_SLOT
    A(f"v_and_b32 v2, 63, v30\nv_lshlrev_b32 v2, 3, v2\nv_add_u32 v2, {SEGB}, v2\nv_lshl_add_u32 v3, v28, 9, v2")
    for cb in range(2):
        A(f"v_mov_b32 v4, v{gre(cb,31)}\nv_mov_b32 v5, v{gim(cb,31)}\nds_write_b64 v3, v[4:5] offset:{128*cb}")
    A("s_waitcnt lgkmcnt(0)\ns_barrier")
    for s in range(7):
        for cb in range(2): A(f"ds_read_b64 v[{32+4*s+2*cb}:{33+4*s+2*cb}], v2 offset:{512*s+128*cb}")
    for cb in range(2):
        p = Pm(cb); A(f"v_mov_b32 v{p['PR']}, 0\nv_mov_b32 v{p['PI']}, 0")
    A("s_waitcnt lgkmcnt(0)")
    def horner(cb, mr, mi, ar, ai, dr=None, di=None):
        p = Pm(cb); dr = p['PR'] if dr is None else dr; di = p['PI'] if di is None else di
        A(f"v_fmac_f32 v{ar}, v{mr}, v{p['PR']}\nv_fmac_f32 v{ai}, v{mr}, v{p['PI']}")
        A(f"v_fma_f32 v{p['T0']}, -v{mi}, v{p['PI']}, v{ar}\nv_fma_f32 v{di}, v{mi}, v{p['PR']}, v{ai}\nv_mov_b32 v{dr}, v{p['T0']}")
    for s in range(7):
        A(f"v_cmp_lt_u32 vcc, {s}, v28\ns_and_b64 exec, exec, vcc")
        for cb in range(2): horner(cb, Pm(cb)['L32R'], Pm(cb)['L32I'], 32+4*s+2*cb, 33+4*s+2*cb)
    srd(A, 8, 4, SZ_AGG, WS_AGG)
    A("s_mul_i32 s25, s20, 5120\ns_cbranch_execz SSM_nopub")
    A("v_lshlrev_b32 v3, 3, v30")
    for cb in range(2):
        A(f"v_mov_b32 v4, v{gre(cb,31)}\nv_mov_b32 v5, v{gim(cb,31)}")
        horner(cb, Pm(cb)['L32R'], Pm(cb)['L32I'], 4, 5, 6+2*cb, 7+2*cb)
        A(f"v_min_u32 v{6+2*cb}, 0xfffffffe, v{6+2*cb}\nv_min_u32 v{7+2*cb}, 0xfffffffe, v{7+2*cb}")
        A(f"buffer_store_dwordx2 v[{6+2*cb}:{7+2*cb}], v3, s[8:11], s25 offen offset:{128*cb} sc0 sc1")
    A.label("SSM_nopub")
    A("s_mov_b64 exec, -1")
    for t in range(32):
        for cb in range(2):
            p = Pm(cb); r, i = gre(cb,t), gim(cb,t)
            A(f"v_mul_f32 v{p['T0']}, v{p['CB']}, v{i}\nv_mul_f32 v{p['T1']}, v{p['CB']}, v{r}")
            A(f"v_fma_f32 v{r}, v{p['CA']}, v{r}, -v{p['T0']}\nv_fma_f32 v{i}, -v{p['CA']}, v{i}, -v{p['T1']}")
    stamp(A, 1, 2, 4)
    A("v_lshlrev_b32 v3, 3, v30\ns_sub_u32 s25, s25, 35840\nv_add_u32 v3, s25, v3")
    for i in range(7): A(f"v_add_u32 v{10+i}, {5120*i}, v3")
    A("s_mov_b32 s33, 0x40000")
    A.label("SSM_poll")
    for i in range(7):
        for cb in range(2): A(f"buffer_load_dwordx2 v[{32+4*i+2*cb}:{33+4*i+2*cb}], v{10+i}, s[8:11], 0 offen offset:{128*cb} sc0 sc1")
    A("s_waitcnt vmcnt(0)")
    A("v_max3_u32 v2, v32, v33, v34")
    for r in range(35, 59, 2): A(f"v_max3_u32 v2, v2, v{r}, v{r+1}")
    A("v_max_u32 v2, v2, v59\nv_cmp_eq_u32 vcc, -1, v2\ns_sub_u32 s33, s33, 1\ns_cbranch_scc1 SSM_go\ns_cbranch_vccnz SSM_poll")
    A.label("SSM_go")
    stamp(A, 1, 3, 4)
    for cb in range(2):
        p = Pm(cb)
        cr, ci = 4+2*cb, 5+2*cb
        A(f"v_mov_b32 v{cr}, v{32+2*cb}\nv_mov_b32 v{ci}, v{33+2*cb}")
        for i in range(1, 7):
            ar, ai = 32+4*i+2*cb, 33+4*i+2*cb
            A(f"v_fmac_f32 v{ar}, v{p['L256R']}, v{cr}\nv_fmac_f32 v{ai}, v{p['L256R']}, v{ci}")
            A(f"v_fma_f32 v{p['T0']}, -v{p['L256I']}, v{ci}, v{ar}\nv_fma_f32 v{ci}, v{p['L256I']}, v{cr}, v{ai}\nv_mov_b32 v{cr}, v{p['T0']}")
        A(f"v_fmac_f32 v{p['PR']}, v{p['QR']}, v{cr}\nv_fmac_f32 v{p['PI']}, v{p['QR']}, v{ci}")
        A(f"v_fma_f32 v{p['PR']}, -v{p['QI']}, v{ci}, v{p['PR']}\nv_fmac_f32 v{p['PI']}, v{p['QI']}, v{cr}")
        A(f"v_mul_f32 v{p['T0']}, v{p['CB']}, v{p['PI']}\nv_mul_f32 v{p['T1']}, v{p['CB']}, v{p['PR']}")
        A(f"v_fma_f32 v{cr}, v{p['CA']}, v{p['PR']}, -v{p['T0']}\nv_fma_f32 v{ci}, -v{p['CA']}, v{p['PI']}, -v{p['T1']}")
    PK = 32
    PITCH = 288; IMG = 32*PITCH
    A(f"s_mul_i32 s25, s3, {2*IMG}\nv_and_b32 v2, 15, v1\nv_mul_u32_u24 v2, {PITCH}, v2\nv_lshrrev_b32 v3, 4, v1\nv_lshl_add_u32 v2, v3, 6, v2\nv_add_u32 v17, s25, v2")
    A(f"v_bfe_u32 v2, v1, 2, 2\nv_lshl_add_u32 v2, v3, 3, v2\nv_mul_u32_u24 v2, {PITCH}, v2\nv_and_b32 v3, 3, v1\nv_lshl_add_u32 v2, v3, 3, v2\nv_add_u32 v18, s25, v2")
    for t in range(32):
        cur = [(4+2*cb, 5+2*cb) if t % 2 == 0 else (Pm(cb)['T0'], Pm(cb)['T1']) for cb in range(2)]
        nxt = [(4+2*cb, 5+2*cb) if t % 2 == 1 else (Pm(cb)['T0'], Pm(cb)['T1']) for cb in range(2)]
        for cb in range(2):
            p = Pm(cb); A(f"v_mul_f32 v{nxt[cb][0]}, v{p['LR']}, v{cur[cb][0]}\nv_mul_f32 v{nxt[cb][1]}, v{p['LR']}, v{cur[cb][1]}")
        for cb in range(2):
            p = Pm(cb); A(f"v_fmac_f32 v{nxt[cb][0]}, v{p['LI']}, v{cur[cb][1]}\nv_fmac_f32 v{nxt[cb][1]}, v{p['NLI']}, v{cur[cb][0]}")
        for cb in range(2):
            A(f"v_add_f32 v{gre(cb,t)}, v{gre(cb,t)}, v{nxt[cb][0]}\nv_add_f32 v{gim(cb,t)}, v{gim(cb,t)}, v{nxt[cb][1]}")
        if t & 1:
            bank = 16*((t >> 3) & 1)
            for cb in range(2):
                A(f"v_cvt_pk_bf16_f32 v{PK+bank+8*cb+((t>>1)&3)}, v{gre(cb,t-1)}, v{gre(cb,t)}\nv_cvt_pk_bf16_f32 v{PK+bank+8*cb+4+((t>>1)&3)}, v{gim(cb,t-1)}, v{gim(cb,t)}")
            if t & 7 == 7:
                for cb in range(2):
                    for im in range(2):
                        r = PK+bank+8*cb+4*im
                        A(f"ds_write_b128 v17, v[{r}:{r+3}] offset:{im*IMG + cb*16*PITCH + (t>>3)*16}")
    srd(A, 8, 4, SZ_H, WS_H)
    A("s_lshl_b32 s25, s20, 2\ns_lshl_b32 s26, s23, 1\ns_add_u32 s25, s25, s26\ns_mul_i32 s25, s25, 94")
    A("s_lshl_b32 s26, s21, 2\ns_add_u32 s25, s25, s26\ns_lshl_b32 s26, s24, 1\ns_add_u32 s25, s25, s26\ns_lshl_b32 s25, s25, 12")
    A(f"s_add_u32 s26, s25, 4096\ns_add_u32 s27, s25, {94*4096}\ns_add_u32 s28, s25, {95*4096}\nv_lshlrev_b32 v10, 4, v1\ns_waitcnt lgkmcnt(0)")
    n = 0
    for im in range(2):
        for tb in range(8):
            r = 128 + 4*n; n += 1
            for hh in range(2): A(f"ds_read_b64_tr_b16 v[{r+2*hh}:{r+2*hh+1}], v18 offset:{im*IMG + hh*4*PITCH + tb*32}")
    n = 0
    for im in range(2):
        for tb in range(8):
            r = 128 + 4*n
            A(f"s_waitcnt lgkmcnt({min(15, 30-2*n)})\nbuffer_store_dwordx4 v[{r}:{r+3}], v10, s[8:11], s{25+im+2*(tb>>2)} offen offset:{(tb&3)*1024}"); n += 1
    stamp(A, 1, 4, 4)
    A("s_endpgm")

def gen_k1():
    A = Asm()
    A("s_cmp_ge_u32 s2, 256\ns_cbranch_scc1 K1_end")
    A("s_load_dwordx2 s[4:5], s[0:1], 120")
    A("v_and_b32 v1, 63, v0\nv_lshrrev_b32 v2, 6, v0\ns_nop 0\nv_readfirstlane_b32 s3, v2")
    if TS:
        A("s_lshl_b32 s94, s2, 2\ns_add_u32 s94, s94, s3\ns_lshl_b32 s94, s94, 6\ns_waitcnt lgkmcnt(0)"); stamp(A, 1, 0, 4)
    A("s_and_b32 s20, s2, 7\ns_lshr_b32 s21, s2, 3\ns_lshr_b32 s22, s20, 2\ns_and_b32 s23, s20, 3")
    A("s_cmp_eq_u32 s23, 3\ns_cselect_b32 s24, 16, 8\ns_cmp_lt_u32 s21, s24\ns_cbranch_scc1 K1_ssm")
    A("s_sub_u32 s21, s21, s24\ns_and_b32 s20, s21, 7\ns_lshl_b32 s22, s22, 3\ns_add_u32 s20, s20, s22")
    A("s_lshr_b32 s21, s21, 3\ns_mul_i32 s23, s23, 3\ns_add_u32 s21, s21, s23")
    gen_ffn(A)
    A.label("K1_ssm")
    A("s_and_b32 s20, s21, 3\ns_lshl_b32 s22, s22, 2\ns_add_u32 s20, s20, s22\ns_lshr_b32 s21, s21, 2\ns_lshl_b32 s23, s23, 1\ns_add_u32 s21, s21, s23")
    gen_ssm(A)
    A.label("K1_end"); A("s_endpgm")
    return A.L, 256, 256, 112

def gen_k2():
    A = Asm(); D = 4
    A("s_cmp_ge_u32 s2, 256\ns_cbranch_scc1 K2_end")
    A("s_load_dwordx2 s[4:5], s[0:1], 120\ns_load_dwordx2 s[6:7], s[0:1], 0\ns_load_dwordx2 s[32:33], s[0:1], 64\ns_load_dwordx2 s[34:35], s[0:1], 104")
    A("v_and_b32 v1, 63, v0\nv_lshrrev_b32 v2, 6, v0\ns_nop 0\nv_readfirstlane_b32 s3, v2")
    A("s_and_b32 s20, s2, 7\ns_lshr_b32 s21, s2, 3\ns_lshl_b32 s20, s20, 2\ns_lshr_b32 s22, s21, 3\ns_add_u32 s20, s20, s22\ns_and_b32 s21, s21, 7")
    A("s_mul_i32 s24, s3, 24\ns_min_u32 s24, s24, 71\ns_cmp_ge_u32 s3, 2\ns_cselect_b32 s25, 23, 24\ns_add_u32 s26, s24, s25")
    A("s_mul_i32 s27, s21, 3\ns_mul_i32 s28, s22, 5\ns_add_u32 s27, s27, s28\ns_cmp_ge_u32 s27, 23\ns_cselect_b32 s28, 23, 0\ns_sub_u32 s27, s27, s28")
    if not int(OPT.get("rot", 0)): A("s_mov_b32 s27, 0")
    A("s_add_u32 s27, s27, s24")
    A("s_waitcnt lgkmcnt(0)")
    if TS:
        A("s_lshl_b32 s94, s2, 2\ns_add_u32 s94, s94, s3\ns_lshl_b32 s94, s94, 6"); stamp(A, 2, 0, 4)
    A(f"s_mul_i32 s28, s20, {94*4096}\ns_add_u32 s8, s4, s28\ns_addc_u32 s9, s5, 0\ns_add_u32 s8, s8, {WS_H}\ns_addc_u32 s9, s9, 0\ns_mov_b32 s10, {94*4096}\ns_mov_b32 s11, 0x20000")
    A(f"s_mul_i32 s28, s21, {94*5120}\ns_add_u32 s12, s4, s28\ns_addc_u32 s13, s5, 0\ns_add_u32 s12, s12, {WS_W2P}\ns_addc_u32 s13, s13, 0\ns_mov_b32 s14, {94*5120}\ns_mov_b32 s15, 0x20000")
    A("v_lshlrev_b32 v10, 4, v1\nv_add_u32 v11, 4096, v10")
    vm = VM()
    def Hr(d, tb): return d*36 + tb*4
    def Wr(d, nb): return d*36 + 16 + nb*4
    def loads(i):
        d = i % D
        L = []
        if i == 23: L += ["s_cmp_eq_u32 s25, 23", "s_cselect_b32 s10, 0, s10", "s_cselect_b32 s14, 0, s14"]
        L += ["s_lshl_b32 s29, s27, 12", "s_mul_i32 s30, s27, 5120"]
        for tb in range(4): L.append((i, f"buffer_load_dwordx4 a[{Hr(d,tb)}:{Hr(d,tb)+3}], v10, s[8:11], s29 offen offset:{tb*1024}"))
        for nb in range(5): L.append((i, f"buffer_load_dwordx4 a[{Wr(d,nb)}:{Wr(d,nb)+3}], v{10+(nb>>2)}, s[12:15], s30 offen offset:{(nb&3)*1024}"))
        L += ["s_add_u32 s27, s27, 1", "s_cmp_eq_u32 s27, s26", "s_cselect_b32 s27, s24, s27"]
        return L
    def emit(x):
        if isinstance(x, tuple): vm.issue(x[0]); A(x[1])
        else: A(x)
    for i in range(D-1):
        for x in loads(i): emit(x)
    srd(A, 16, 6, SZ_X); srd(A, 36, 4, SZ_X, WS_XN); srd(A, 40, 32, 1280); srd(A, 44, 34, SZ_OUT)
    A("s_lshl_b32 s28, s20, 6\ns_lshl_b32 s31, s3, 4\ns_add_u32 s28, s28, s31\nv_lshrrev_b32 v2, 2, v1\nv_add_u32 v2, s28, v2\nv_mul_u32_u24 v2, 640, v2")
    A("s_mul_i32 s28, s21, 80\nv_and_b32 v3, 3, v1\nv_lshlrev_b32 v3, 2, v3\nv_add_u32 v3, s28, v3\nv_add_u32 v2, v2, v3")
    A("v_lshlrev_b32 v12, 1, v2\nv_lshlrev_b32 v13, 2, v2\nv_lshlrev_b32 v14, 1, v3")
    for nb in range(5):
        A(f"buffer_load_dwordx2 v[{16+2*nb}:{17+2*nb}], v12, s[16:19], 0 offen offset:{32*nb}"); vm.issue()
        A(f"buffer_load_dwordx2 v[{26+2*nb}:{27+2*nb}], v12, s[36:39], 0 offen offset:{32*nb}"); vm.issue()
        A(f"buffer_load_dwordx2 v[{36+2*nb}:{37+2*nb}], v14, s[40:43], 0 offen offset:{32*nb}"); vm.issue()
    ACC = 48
    def acc(nb, tb): return ACC + (tb*5+nb)*4
    for i in range(24):
        d = i % D
        A(vm.wait([i]))
        mf = []
        for nb in range(5):
            for tb in range(4):
                c = acc(nb, tb); srcc = f"v[{c}:{c+3}]" if i else "0"
                mf.append(f"v_mfma_f32_16x16x32_bf16 v[{c}:{c+3}], a[{Wr(d,nb)}:{Wr(d,nb)+3}], a[{Hr(d,tb)}:{Hr(d,tb)+3}], {srcc}")
        ld = loads(i+D-1) if i+D-1 < 24 else []
        sl = interleave(mf, ld, 0, 18) if ld else [[] for _ in mf]
        for k, m in enumerate(mf):
            A(m)
            for x in sl[k]: emit(x)
    stamp(A, 2, 1, 4)
    A("v_lshrrev_b32 v2, 4, v1\nv_lshlrev_b32 v3, 2, v2\nv_xor_b32 v3, v3, v1\nv_lshlrev_b32 v3, 4, v3\ns_mul_i32 s28, s3, 20480\nv_add_u32 v3, s28, v3")
    for k in range(20): A(f"ds_write_b128 v3, v[{ACC+4*k}:{ACC+4*k+3}] offset:{k*1024}")
    A("v_and_b32 v2, 3, v1\nv_lshrrev_b32 v4, 2, v1\nv_lshlrev_b32 v5, 2, v2\nv_xor_b32 v4, v4, v5\nv_lshl_add_u32 v4, v2, 4, v4\nv_lshlrev_b32 v4, 4, v4\ns_mul_i32 s28, s3, 5120\nv_add_u32 v4, s28, v4\nv_add_u32 v5, 40960, v4")
    for nb in range(5):
        for h in range(2):
            x, xn, dk, o = 16+2*nb+h, 26+2*nb+h, 36+2*nb+h, 128+4*nb+2*h
            A(f"v_lshlrev_b32 v6, 16, v{xn}\nv_and_b32 v7, 0xffff0000, v{xn}\nv_lshlrev_b32 v8, 16, v{dk}\nv_and_b32 v9, 0xffff0000, v{dk}")
            A(f"v_mul_f32 v6, v6, v8\nv_mul_f32 v7, v7, v9\nv_cvt_pk_bf16_f32 v6, v6, v7\nv_and_b32 v7, 0xffff0000, v6\nv_lshlrev_b32 v6, 16, v6")
            A(f"v_lshlrev_b32 v8, 16, v{x}\nv_and_b32 v9, 0xffff0000, v{x}\nv_add_f32 v{o}, v6, v8\nv_add_f32 v{o+1}, v7, v9")
    A("s_waitcnt lgkmcnt(0)\ns_barrier")
    for nb in range(5):
        for w in range(4):
            r = ACC + (nb*4+w)*4
            A(f"ds_read_b128 v[{r}:{r+3}], v{4+(w>>1)} offset:{(w&1)*20480 + nb*1024}")
    for nb in range(5):
        A(f"s_waitcnt lgkmcnt({min(15, 16-4*nb)})")
        r = ACC + nb*16; o = 128+4*nb
        for e in range(4): A(f"v_add_f32 v{r+e}, v{r+e}, v{r+4+e}\nv_add_f32 v{r+8+e}, v{r+8+e}, v{r+12+e}")
        for e in range(4): A(f"v_add_f32 v{r+e}, v{r+e}, v{r+8+e}")
        for e in range(4): A(f"v_add_f32 v{o+e}, v{o+e}, v{r+e}")
        A(f"buffer_store_dwordx4 v[{o}:{o+3}], v13, s[44:47], 0 offen offset:{64*nb}")
    stamp(A, 2, 2, 4)
    A.label("K2_end"); A("s_endpgm")
    return A.L, 256, 148, 144

def main():
    ref = open(f"cdna_kernels/{NAME}.s.ref").read().split("\n")
    hdr = [l for l in ref if l.startswith(";") and "@launch" not in l and "Override" not in l and "grid=ceil" not in l]
    ks = [("prep_kernel", gen_k0(), 0), ("gemm1_kernel", gen_k1(), 151552), ("gemm2_kernel", gen_k2(), 81920)]
    out = "\n".join(hdr) + "\n"
    for i in range(int(OPT.get("pre", 0))): out += "; @launch kernel=nop_kernel grid=(256,1,1) block=(256,1,1) lds=0\n"
    for n, (L, grid, v, a), lds in ks: out += f"; @launch kernel={n} grid=({grid},1,1) block=(256,1,1) lds={lds}\n"
    for i in range(int(OPT.get("post", 0))): out += "; @launch kernel=nop_kernel grid=(256,1,1) block=(256,1,1) lds=0\n"
    if "spin" in OPT:
        kidx, wg, slot = [int(v) for v in OPT["spin"].split(",")]
        off = WS_TS + kidx*65536*4 + wg*4*64 + slot*8
        out += "; @launch kernel=spin_kernel grid=(1,1,1) block=(64,1,1) lds=0\n"
        L = ["s_load_dwordx2 s[4:5], s[0:1], 120", "s_waitcnt lgkmcnt(0)", f"s_add_u32 s4, s4, {off}", "s_addc_u32 s5, s5, 0", "s_load_dwordx2 s[6:7], s[4:5], 0", "s_mov_b32 s12, 0x100000",
             "SP_l:", "s_memrealtime s[8:9]", "s_waitcnt lgkmcnt(0)", "s_sub_u32 s10, s8, s6", "s_sub_u32 s12, s12, 1", "s_cbranch_scc1 SP_e", "s_cmp_lt_u32 s10, 8000", "s_cbranch_scc1 SP_l", "SP_e:", "s_endpgm"]
        ks.append(("spin_kernel", (L, 1, 8, 0), 0))
    if "pre" in OPT or "post" in OPT: ks.append(("nop_kernel", (["s_endpgm"], 256, 8, 0), 0))
    out += '.amdgcn_target "amdgcn-amd-amdhsa--gfx950"\n'
    for n, (L, grid, v, a), lds in ks: out += kernel_text(n, hazard_pass(L, "v" in OPT))
    for n, (L, grid, v, a), lds in ks: out += kd(n, v, a)
    open(sys.argv[1], "w").write(out)
main()
```

```python
import sys
from asmlib import *
NAME = "parallel_sum__ssm_conv_s5__glu_gated_swiglu__prompt"
OPT = dict(a.split("=") for a in sys.argv[2:])
TS = int(OPT.get("ts", 0))
KA = dict(x=0, lre=8, lim=16, bre=24, bim=32, cre=40, cim=48, ldt=56, dsk=64, w1=80, w3=88, w2=96, out=104, dbg=112, ws=120)
WS_XN = 0; WS_H = 0x300000; WS_W2P = 0x1000000; WS_AGG = 0x1400000; WS_TS = 0x1500000
SZ_X = 2048*640*2; SZ_H = 128*94*1024; SZ_W2P = 40*94*1024; SZ_AGG = 8*640*8; SZ_B = 640*640*2; SZ_W = 640*1728*2; SZ_OUT = 2048*640*4
SENT = 0xFFFFFFFF

def srd(A, d, lo, size, add=0):
    if add:
        A(f"s_add_u32 s{d}, s{lo}, {hex(add)}\ns_addc_u32 s{d+1}, s{lo+1}, 0")
    else:
        A(f"s_mov_b32 s{d}, s{lo}\ns_mov_b32 s{d+1}, s{lo+1}")
    A(f"s_mov_b32 s{d+2}, {hex(size)}\ns_mov_b32 s{d+3}, 0x20000")
def stamp(A, kidx, slot, wsreg, tmpv=(2,3,4)):
    if not TS: return
    a, b, c = tmpv
    A(f"s_memrealtime s[90:91]\ns_memtime s[88:89]\ns_waitcnt lgkmcnt(0)\ns_add_u32 s92, s94, {WS_TS + kidx*65536*4 + slot*8}")
    A(f"v_mov_b32 v{a}, s90\nv_mov_b32 v{b}, s88\nv_mov_b32 v{c}, s92\nglobal_store_dwordx2 v{c}, v[{a}:{b}], s[{wsreg}:{wsreg+1}]")

def gen_k0():
    A = Asm()
    NLN, NC, NW2, NAG, NPF = 128, 100, 270, 10, 93
    total = NLN + NC + NW2 + NAG + (NPF if int(OPT.get("pf", 1)) else 0)
    A(f"s_cmp_ge_u32 s2, {total}\ns_cbranch_scc1 K0_end")
    A("s_load_dwordx2 s[4:5], s[0:1], 120")
    A("v_and_b32 v1, 63, v0\nv_lshrrev_b32 v2, 6, v0\ns_nop 0\nv_readfirstlane_b32 s3, v2")
    if TS:
        A("s_lshl_b32 s94, s2, 2\ns_add_u32 s94, s94, s3\ns_lshl_b32 s94, s94, 6\ns_waitcnt lgkmcnt(0)"); stamp(A, 0, 0, 4)
    A(f"s_cmp_ge_u32 s2, {NLN}\ns_cbranch_scc1 K0_c")
    A("s_load_dwordx2 s[6:7], s[0:1], 0\ns_waitcnt lgkmcnt(0)")
    srd(A, 8, 6, SZ_X); srd(A, 12, 4, SZ_X, WS_XN)
    A("s_lshl_b32 s16, s2, 4\ns_lshl_b32 s17, s3, 2\ns_add_u32 s16, s16, s17\ns_mul_i32 s16, s16, 1280")
    A("v_lshrrev_b32 v2, 4, v1\nv_mul_u32_u24 v2, 1280, v2\nv_and_b32 v3, 15, v1\nv_lshl_add_u32 v2, v3, 4, v2")
    for i in range(5): A(f"buffer_load_dwordx4 v[{4+4*i}:{7+4*i}], v2, s[8:11], s16 offen offset:{256*i}")
    A("s_waitcnt vmcnt(0)")
    for i in range(20):
        A(f"v_lshlrev_b32 v{24+2*i}, 16, v{4+i}\nv_and_b32 v{25+2*i}, 0xffff0000, v{4+i}")
    def red(v):
        for r in (8, 4, 2, 1): A(f"v_add_f32_dpp v{v}, v{v}, v{v} row_ror:{r} row_mask:0xf bank_mask:0xf")
    A("v_add_f32 v64, v24, v25\nv_add_f32 v65, v26, v27")
    for i in range(4, 40, 2): A(f"v_add_f32 v64, v64, v{24+i}\nv_add_f32 v65, v65, v{25+i}")
    A("v_add_f32 v64, v64, v65"); red(64)
    A("v_mul_f32 v64, 0x3acccccd, v64")
    A("v_mov_b32 v65, 0\nv_mov_b32 v66, 0")
    for i in range(0, 40, 2):
        A(f"v_sub_f32 v67, v{24+i}, v64\nv_sub_f32 v68, v{25+i}, v64\nv_fmac_f32 v65, v67, v67\nv_fmac_f32 v66, v68, v68")
    A("v_add_f32 v65, v65, v66"); red(65)
    A("v_mul_f32 v65, 0x3acccccd, v65")
    A("v_cvt_pk_bf16_f32 v66, v64, v65\nv_lshlrev_b32 v64, 16, v66\nv_and_b32 v65, 0xffff0000, v66")
    A("v_add_f32 v65, 0x3727c5ac, v65\nv_cvt_pk_bf16_f32 v65, v65, v65\nv_and_b32 v65, 0xffff0000, v65")
    A("v_sqrt_f32 v65, v65\nv_cvt_pk_bf16_f32 v65, v65, v65\nv_and_b32 v65, 0xffff0000, v65\nv_rcp_f32 v65, v65")
    for i in range(20):
        a, b = 24+2*i, 25+2*i
        A(f"v_sub_f32 v{a}, v{a}, v64\nv_sub_f32 v{b}, v{b}, v64\nv_cvt_pk_bf16_f32 v67, v{a}, v{b}")
        A(f"v_lshlrev_b32 v{a}, 16, v67\nv_and_b32 v{b}, 0xffff0000, v67\nv_mul_f32 v{a}, v{a}, v65\nv_mul_f32 v{b}, v{b}, v65\nv_cvt_pk_bf16_f32 v{4+i}, v{a}, v{b}")
    for i in range(5): A(f"buffer_store_dwordx4 v[{4+4*i}:{7+4*i}], v2, s[12:15], s16 offen offset:{256*i}")
    A("s_endpgm")
    A.label("K0_c")
    A(f"s_cmp_ge_u32 s2, {NLN+NC}\ns_cbranch_scc1 K0_w2")
    A("s_load_dwordx4 s[8:11], s[0:1], 40\ns_waitcnt lgkmcnt(0)")
    srd(A, 16, 8, SZ_B); srd(A, 20, 10, SZ_B); srd(A, 12, 4, SZ_W2P, WS_W2P)
    A(f"s_sub_u32 s24, s2, {NLN}\ns_lshl_b32 s24, s24, 2\ns_add_u32 s24, s24, s3")
    A("s_mul_i32 s25, s24, 52429\ns_lshr_b32 s25, s25, 19\ns_mul_i32 s26, s25, 10\ns_sub_u32 s26, s24, s26")
    A("s_mul_i32 s27, s25, 52429\ns_lshr_b32 s27, s27, 18\ns_mul_i32 s28, s27, 5\ns_sub_u32 s28, s25, s28")
    A("s_mul_i32 s29, s25, 20480\ns_lshl_b32 s30, s26, 7\ns_add_u32 s29, s29, s30")
    A("v_and_b32 v2, 15, v1\nv_mul_u32_u24 v2, 1280, v2\nv_lshrrev_b32 v3, 4, v1\nv_lshl_add_u32 v2, v3, 4, v2")
    for i in range(4):
        A(f"buffer_load_dwordx4 v[{4+4*i}:{7+4*i}], v2, s[{16+4*(i&1)}:{19+4*(i&1)}], s29 offen offset:{64*(i>>1)}")
    A("s_mul_i32 s30, s27, 94\ns_lshl_b32 s31, s26, 2\ns_add_u32 s30, s30, s31\ns_mul_i32 s30, s30, 5\ns_add_u32 s30, s30, s28\ns_lshl_b32 s30, s30, 10")
    A("v_lshlrev_b32 v3, 4, v1")
    for i in range(4):
        A(f"s_waitcnt vmcnt(3)\nbuffer_store_dwordx4 v[{4+4*i}:{7+4*i}], v3, s[12:15], s30 offen\ns_add_u32 s30, s30, 5120")
    A("s_endpgm")
    A.label("K0_w2")
    A(f"s_cmp_ge_u32 s2, {NLN+NC+NW2}\ns_cbranch_scc1 K0_ag")
    A("s_load_dwordx2 s[8:9], s[0:1], 96\ns_waitcnt lgkmcnt(0)")
    srd(A, 16, 8, SZ_W); srd(A, 12, 4, SZ_W2P, WS_W2P)
    A(f"s_sub_u32 s24, s2, {NLN+NC}\ns_lshl_b32 s24, s24, 2\ns_add_u32 s24, s24, s3")
    A("s_mul_i32 s25, s24, 52429\ns_lshr_b32 s25, s25, 20\ns_mul_i32 s26, s25, 20\ns_sub_u32 s26, s24, s26")
    A("s_mul_i32 s27, s25, 52429\ns_lshr_b32 s27, s27, 18\ns_mul_i32 s27, s27, 5\ns_sub_u32 s27, s25, s27")
    A("s_cmp_lt_u32 s25, 50\ns_cselect_b32 s28, 2, 1\ns_cmp_eq_u32 s27, s28")
    A("s_cselect_b32 s28, 2, 1\ns_cselect_b32 s29, 1, 4\ns_mul_i32 s28, s28, 5120\ns_mul_i32 s29, s29, 5120")
    A("v_lshrrev_b32 v2, 4, v1\nv_mul_lo_u32 v2, v2, s28\nv_and_b32 v3, 15, v1\nv_lshl_add_u32 v2, v3, 1, v2\nv_add_u32 v3, s29, v2")
    A("s_mul_i32 s30, s25, 40960\ns_lshl_b32 s31, s26, 6\ns_add_u32 s30, s30, s31")
    for i in range(2):
        for j in range(8):
            A(f"buffer_load_ushort v{8+8*i+j}, v{2+(j>>2)}, s[16:19], s30 offen offset:{(j&3)*1280+32*i}")
    A("v_lshlrev_b32 v4, 4, v1")
    for i in range(2):
        A(f"s_lshl_b32 s31, s26, 1\ns_add_u32 s31, s31, {i}")
        A("s_mul_i32 s32, s31, 52429\ns_lshr_b32 s32, s32, 18\ns_mul_i32 s33, s32, 5\ns_sub_u32 s33, s31, s33")
        A("s_mul_i32 s32, s32, 94\ns_add_u32 s32, s32, s25\ns_add_u32 s32, s32, 40\ns_mul_i32 s32, s32, 5\ns_add_u32 s32, s32, s33\ns_lshl_b32 s32, s32, 10")
        A(f"s_waitcnt vmcnt({8 if i == 0 else 1})")
        for j in range(4): A(f"v_lshl_or_b32 v{24+4*i+j}, v{9+8*i+2*j}, 16, v{8+8*i+2*j}")
        A(f"buffer_store_dwordx4 v[{24+4*i}:{27+4*i}], v4, s[12:15], s32 offen")
    A("s_endpgm")
    A.label("K0_ag")
    A(f"s_cmp_ge_u32 s2, {NLN+NC+NW2+NAG}\ns_cbranch_scc1 K0_pf")
    A("s_waitcnt lgkmcnt(0)")
    srd(A, 12, 4, SZ_AGG, WS_AGG)
    A(f"s_sub_u32 s24, s2, {NLN+NC+NW2}\ns_lshl_b32 s24, s24, 12\nv_lshlrev_b32 v2, 4, v0")
    A("v_mov_b32 v4, -1\nv_mov_b32 v5, -1\nv_mov_b32 v6, -1\nv_mov_b32 v7, -1\nbuffer_store_dwordx4 v[4:7], v2, s[12:15], s24 offen\ns_endpgm")
    A.label("K0_pf")
    A("s_load_dwordx4 s[8:11], s[0:1], 24\ns_load_dwordx4 s[12:15], s[0:1], 80\ns_waitcnt lgkmcnt(0)")
    srd(A, 16, 8, SZ_B); srd(A, 20, 10, SZ_B); srd(A, 24, 12, SZ_W); srd(A, 28, 14, SZ_W)
    A(f"s_sub_u32 s32, s2, {NLN+NC+NW2+NAG}\ns_lshl_b32 s33, s32, 12\nv_lshlrev_b32 v2, 4, v0")
    r = 4
    for base, n in ((16, 3), (20, 3), (24, 6), (28, 6)):
        for i in range(n):
            A(f"s_add_u32 s34, s33, {i*NPF*4096}\nbuffer_load_dwordx4 v[{r}:{r+3}], v2, s[{base}:{base+3}], s34 offen"); r += 4
    A("s_waitcnt vmcnt(0)")
    A.label("K0_end"); A("s_endpgm")
    return A.L, total, 80, 0

class VM:
    def __init__(self): self.n = 0; self.tag = {}
    def issue(self, tag=None):
        self.n += 1
        if tag is not None: self.tag[tag] = self.n
    def wait(self, tags):
        last = max(self.tag[t] for t in tags)
        assert self.n - last <= 63
        return f"s_waitcnt vmcnt({self.n - last})"

W_SLOT = 20480; X_BASE = 5*W_SLOT; X_SLOT = 16384
def gen_ffn(A):
    A("s_load_dwordx4 s[8:11], s[0:1], 80")
    A("s_mul_i32 s22, s21, 160\ns_min_u32 s22, s22, 1568")
    A("s_and_b32 s23, s3, 1\ns_lshr_b32 s24, s3, 1")
    A("s_mul_i32 s25, s23, 320\ns_lshl_b32 s26, s22, 1\ns_movk_i32 s27, 3277")
    for i in range(5):
        A(f"v_add_u32 v2, s25, v1\nv_add_u32 v2, {64*i}, v2\nv_mul_lo_u32 v3, v2, s27\nv_lshrrev_b32 v3, 16, v3")
        A("v_mul_u32_u24 v4, 20, v3\nv_sub_u32 v4, v2, v4\nv_lshrrev_b32 v5, 2, v3\nv_and_b32 v5, 2, v5\nv_xor_b32 v4, v4, v5")
        A(f"v_mul_u32_u24 v3, 3456, v3\nv_lshl_add_u32 v3, v4, 4, v3\nv_add_u32 v3, s26, v3\nv_subrev_u32 v{10+i}, {1024*(i&3)}, v3")
    A("s_lshl_b32 s25, s20, 7\ns_lshl_b32 s26, s3, 5\ns_add_u32 s25, s25, s26")
    for i in range(4):
        A(f"v_lshrrev_b32 v2, 3, v1\nv_add_u32 v2, {8*i}, v2\nv_lshrrev_b32 v3, 1, v2\nv_xor_b32 v3, v3, v1\nv_and_b32 v3, 7, v3")
        A(f"v_add_u32 v2, s25, v2\nv_mul_u32_u24 v2, 1280, v2\nv_lshl_add_u32 v2, v3, 4, v2\nv_subrev_u32 v{15+i}, {1024*(i&1)}, v2")
    A("s_waitcnt lgkmcnt(0)")
    A("s_cmp_eq_u32 s24, 0\ns_cselect_b32 s12, s8, s10\ns_cselect_b32 s13, s9, s11")
    A(f"s_mov_b32 s14, {SZ_W}\ns_mov_b32 s15, 0x20000")
    srd(A, 16, 4, SZ_X, WS_XN)
    A(f"s_mul_i32 s28, s3, 5120\ns_lshl_b32 s29, s3, 12\ns_add_u32 s29, s29, {X_BASE}")
    vm = VM()
    def dmaW(s):
        L = [f"s_add_u32 m0, s28, {(s%5)*W_SLOT}", f"s_mov_b32 s30, {s*32*3456}"]
        for i in range(5):
            if i == 4: L.append(f"s_add_u32 m0, s28, {(s%5)*W_SLOT+4096}")
            L.append(("W", s, f"buffer_load_dwordx4 v{10+i}, s[12:15], s30 offen offset:{1024*(i&3)} lds"))
        return L
    def dmaX(u, h):
        L = [f"s_add_u32 m0, s29, {(u%3)*X_SLOT+2048*h}", f"s_movk_i32 s31, {u*128}"]
        for i in range(2): L.append(("X", u, f"buffer_load_dwordx4 v{15+2*h+i}, s[16:19], s31 offen offset:{1024*i} lds"))
        return L
    def emit(x):
        if isinstance(x, tuple): vm.issue((x[0], x[1])); A(x[2])
        else: A(x)
    for x in dmaX(0,0)+dmaX(0,1)+dmaW(0)+dmaW(1)+dmaX(1,0)+dmaX(1,1)+dmaW(2)+dmaW(3)+dmaX(2,0)+dmaW(4): emit(x)
    A("v_lshrrev_b32 v2, 4, v1\nv_lshrrev_b32 v3, 2, v1\nv_and_b32 v3, 3, v3\nv_lshl_add_u32 v3, v2, 3, v3\nv_mul_u32_u24 v3, 320, v3")
    A("v_and_b32 v4, 3, v1\nv_lshl_add_u32 v3, v4, 3, v3\nv_and_b32 v4, 1, v2\nv_lshlrev_b32 v4, 5, v4")
    A("s_mul_i32 s25, s24, 192\nv_add_u32 v5, s25, v3\nv_add_u32 v20, v5, v4\nv_sub_u32 v21, v5, v4")
    A("s_lshl_b32 s25, s24, 5\ns_add_u32 s25, s25, 128\nv_xor_b32 v5, s25, v4\nv_add_u32 v22, v3, v5")
    for i in range(3): A(f"v_add_u32 v{23+i}, {3*W_SLOT}, v{20+i}")
    A("v_and_b32 v3, 15, v1\nv_lshrrev_b32 v4, 1, v3\nv_xor_b32 v4, v4, v2\nv_lshlrev_b32 v4, 4, v4\nv_lshl_add_u32 v3, v3, 7, v4")
    A(f"s_lshl_b32 s25, s23, 13\ns_add_u32 s25, s25, {X_BASE}\nv_add_u32 v26, s25, v3\nv_xor_b32 v27, 64, v26")
    ACC = 96
    def acc(j, tb): return ACC + (j*4+tb)*4
    def Wr(par, j): return par*56 + j*4
    def Xr(par, tb): return par*56 + 40 + tb*4
    def reads(s):
        par = s & 1; L = []
        sl = s % 5; hi = 3 if sl >= 3 else 0; so = (sl - (3 if sl >= 3 else 0))*W_SLOT
        for tb in range(4):
            L.append(f"ds_read_b128 a[{Xr(par,tb)}:{Xr(par,tb)+3}], v{26+(s&1)} offset:{((s>>1)%3)*X_SLOT + tb*2048}")
        for j in range(10):
            pr, m = j >> 1, j & 1
            ar = 22 if pr == 4 else 20 + (pr & 1)
            co = 0 if pr == 4 else pr*32
            for hh in range(2):
                L.append(f"ds_read_b64_tr_b16 a[{Wr(par,j)+2*hh}:{Wr(par,j)+2*hh+1}], v{ar+hi} offset:{so + m*10240 + hh*1280 + co}")
        return L
    A(vm.wait([("X",0),("W",0)])); A("s_barrier")
    if TS: stamp(A, 1, 5, 4); vm.issue()
    for x in reads(0): A(x)
    for s in range(20):
        need_tags = [("W", s+1), ("X", (s+1) >> 1)] if s < 19 else None
        A((vm.wait(need_tags) + " lgkmcnt(0)") if need_tags else "s_waitcnt lgkmcnt(0)")
        if s < 19: A("s_barrier")
        par = s & 1
        mf = []
        for j in range(10):
            for tb in range(4):
                c = acc(j, tb); srcc = f"v[{c}:{c+3}]" if s else "0"
                mf.append(f"v_mfma_f32_16x16x32_bf16 v[{c}:{c+3}], a[{Wr(par,j)}:{Wr(par,j)+3}], a[{Xr(par,tb)}:{Xr(par,tb)+3}], {srcc}")
        d = []
        u3 = (s - 1)//2 + 3 if s & 1 else (s - 2)//2 + 3
        if u3 <= 9: d += dmaX(u3, 0 if s & 1 else 1)
        if s + 5 <= 19: d += dmaW(s+5)
        s1 = interleave(mf, reads(s+1), 0, 30) if s < 19 else [[] for _ in mf]
        s2 = interleave(mf, d, 0, 38) if d else [[] for _ in mf]
        for i, m in enumerate(mf):
            A(m)
            for x in s1[i]: A(x)
            for x in s2[i]: emit(x)
    stamp(A, 1, 1, 4)
    srd(A, 8, 4, SZ_H, WS_H)
    A("s_lshl_b32 s25, s20, 1\ns_add_u32 s25, s25, s23\ns_mul_i32 s25, s25, 94\ns_lshr_b32 s26, s22, 5\ns_add_u32 s25, s25, s26\ns_add_u32 s25, s25, 40")
    A("s_add_u32 s27, s25, 2\ns_lshl_b32 s27, s27, 12\ns_mul_i32 s26, s24, 3\ns_add_u32 s25, s25, s26\ns_lshl_b32 s25, s25, 12\ns_add_u32 s26, s25, 4096")
    A("v_lshlrev_b32 v10, 4, v1")
    A("v_lshrrev_b32 v2, 4, v1\nv_and_b32 v3, 1, v2\nv_lshlrev_b32 v3, 10, v3\nv_lshrrev_b32 v2, 1, v2\nv_lshl_add_u32 v3, v2, 8, v3")
    A("v_and_b32 v2, 15, v1\nv_lshl_add_u32 v3, v2, 4, v3\ns_lshl_b32 s30, s24, 9\nv_add_u32 v11, s30, v3")
    A("s_mov_b32 s31, 0xbfb8aa3b")
    T = 32
    def silu_block(pr, tb, dst):
        g, u = acc(2*pr, tb), acc(2*pr+1, tb)
        for e in range(4): A(f"v_mul_f32 v{T+e}, s31, v{g+e}")
        for e in range(4): A(f"v_exp_f32 v{T+e}, v{T+e}")
        for e in range(4): A(f"v_mul_f32 v{g+e}, v{g+e}, v{u+e}")
        for e in range(4): A(f"v_add_f32 v{T+e}, 1.0, v{T+e}")
        for e in range(4): A(f"v_rcp_f32 v{T+e}, v{T+e}")
        for e in range(4): A(f"v_mul_f32 v{g+e}, v{g+e}, v{T+e}")
        A(f"v_cvt_pk_bf16_f32 v{dst}, v{g}, v{g+1}\nv_cvt_pk_bf16_f32 v{dst+1}, v{g+2}, v{g+3}")
    O = 40; n = 0
    for fr in range(2):
        for tb in range(4):
            o = O + 4*n; n += 1
            silu_block(2*fr, tb, o); silu_block(2*fr+1, tb, o+2)
            A(f"buffer_store_dwordx4 v[{o}:{o+3}], v10, s[8:11], s{25+fr} offen offset:{tb*1024}")
    for tp in range(2):
        o = O + 4*n; n += 1
        silu_block(4, 2*tp, o); silu_block(4, 2*tp+1, o+2)
        A(f"v_permlane16_swap_b32 v{o}, v{o+2}\nv_permlane16_swap_b32 v{o+1}, v{o+3}")
        A(f"buffer_store_dwordx4 v[{o}:{o+3}], v11, s[8:11], s27 offen offset:{tp*2048}")
    stamp(A, 1, 2, 4)
    A("s_endpgm")

S_SLOT = 49152
def gen_ssm(A):
    A("s_load_dwordx4 s[8:11], s[0:1], 24\ns_load_dwordx4 s[36:39], s[0:1], 8\ns_load_dwordx2 s[40:41], s[0:1], 56")
    A("s_and_b32 s23, s3, 1\ns_lshr_b32 s24, s3, 1")
    A("s_lshl_b32 s25, s20, 8\ns_lshl_b32 s26, s24, 7\ns_add_u32 s25, s25, s26\ns_lshl_b32 s26, s23, 4\ns_add_u32 s25, s25, s26")
    A("v_lshrrev_b32 v2, 5, v1\nv_lshlrev_b32 v2, 5, v2\nv_bfe_u32 v3, v1, 3, 2\nv_add3_u32 v2, v2, v3, s25\nv_mul_u32_u24 v2, 1280, v2")
    A("v_lshrrev_b32 v3, 4, v1\nv_xor_b32 v3, v3, v1\nv_and_b32 v3, 7, v3\nv_lshlrev_b32 v3, 4, v3\nv_xor_b32 v4, 64, v3")
    A("v_add_u32 v5, v2, v3\nv_add_u32 v6, v2, v4")
    for ii in range(8):
        A(f"v_add_u32 v{10+ii}, {(64*(ii&1) + 4*(ii>>1))*1280 - 1024*(ii&3)}, v{5+(ii&1)}")
    A("s_lshl_b32 s25, s21, 6\ns_lshl_b32 s26, s23, 5\ns_add_u32 s25, s25, s26")
    A("v_lshrrev_b32 v2, 3, v1\nv_add_u32 v2, s25, v2\nv_mul_u32_u24 v2, 1280, v2\nv_add_u32 v5, v2, v3\nv_add_u32 v6, v2, v4")
    for i in range(4): A(f"v_add_u32 v{18+i}, {8*i*1280 - 1024*i}, v{5+(i&1)}")
    A("s_waitcnt lgkmcnt(0)")
    A("s_cmp_eq_u32 s24, 0\ns_cselect_b32 s12, s8, s10\ns_cselect_b32 s13, s9, s11")
    A(f"s_mov_b32 s14, {SZ_B}\ns_mov_b32 s15, 0x20000")
    srd(A, 16, 4, SZ_X, WS_XN)
    A("s_lshl_b32 s28, s3, 13\ns_lshl_b32 s29, s3, 12\ns_add_u32 s29, s29, 32768")
    vm = VM()
    A("s_lshl_b32 s25, s21, 6\ns_lshl_b32 s26, s24, 5\ns_add_u32 s25, s25, s26\nv_and_b32 v2, 15, v1\nv_add_u32 v30, s25, v2\nv_lshlrev_b32 v2, 1, v30")
    for cb in range(2):
        for q, sp in enumerate((36, 38, 40)):
            A(f"global_load_ushort v{32+3*cb+q}, v2, s[{sp}:{sp+1}] offset:{32*cb}"); vm.issue("P")
    def dma(u, h):
        b = (u % 3)*S_SLOT
        L = [f"s_add_u32 m0, s28, {b+4096*h}", f"s_movk_i32 s31, {u*128}"]
        for i in range(4): L.append(("S", u, f"buffer_load_dwordx4 v{10+4*h+i}, s[16:19], s31 offen offset:{1024*i} lds"))
        L.append(f"s_add_u32 m0, s29, {b}")
        for i in range(2): L.append(("S", u, f"buffer_load_dwordx4 v{18+2*h+i}, s[12:15], s31 offen offset:{1024*(2*h+i)} lds"))
        return L
    def emit(x):
        if isinstance(x, tuple): vm.issue((x[0], x[1])); A(x[2])
        else: A(x)
    for x in dma(0,0)+dma(0,1)+dma(1,0)+dma(1,1)+dma(2,0): emit(x)
    A("v_lshrrev_b32 v2, 4, v1\nv_and_b32 v3, 15, v1\nv_lshrrev_b32 v4, 1, v3\nv_xor_b32 v4, v4, v2\nv_lshlrev_b32 v4, 4, v4\nv_lshl_add_u32 v3, v3, 7, v4")
    A("s_lshl_b32 s25, s23, 14\ns_lshl_b32 s26, s24, 12\ns_add_u32 s26, s26, 32768")
    A("v_add_u32 v22, s25, v3\nv_xor_b32 v23, 64, v22\nv_add_u32 v60, s26, v3\nv_xor_b32 v61, 64, v60")
    for sl in (1, 2):
        for ks in range(2):
            A(f"v_add_u32 v{22+2*sl+ks}, {sl*S_SLOT}, v{22+ks}\nv_add_u32 v{60+2*sl+ks}, {sl*S_SLOT}, v{60+ks}")
    A(vm.wait(["P"]))
    A("s_lshl_b32 s25, s23, 2\nv_lshrrev_b32 v28, 4, v1\nv_add_u32 v28, s25, v28")
    def cexp(dr, di, zr2, zt, t0, t1):
        A(f"v_exp_f32 v{t0}, v{zr2}\nv_fract_f32 v{t1}, v{zt}\nv_cos_f32 v{dr}, v{t1}\nv_sin_f32 v{di}, v{t1}\nv_mul_f32 v{dr}, v{dr}, v{t0}\nv_mul_f32 v{di}, v{di}, v{t0}")
    def csq(r, i, t):
        A(f"v_mul_f32 v{t}, v{i}, v{i}\nv_mul_f32 v{i}, v{r}, v{i}\nv_fma_f32 v{r}, v{r}, v{r}, -v{t}\nv_add_f32 v{i}, v{i}, v{i}")
    for cb in range(2):
        P = 70 + 16*cb; i0 = 32 + 3*cb
        LR, LI, NLI, CA, CB, L32R, L32I, L256R, L256I, QR, QI = range(P, P+11)
        A(f"v_lshlrev_b32 v{i0}, 16, v{i0}\nv_lshlrev_b32 v{i0+1}, 16, v{i0+1}\nv_lshlrev_b32 v{i0+2}, 16, v{i0+2}")
        A(f"v_mul_f32 v2, 0x3fb8aa3b, v{i0+2}\nv_exp_f32 v2, v2\nv_cvt_pk_bf16_f32 v2, v2, v2\nv_and_b32 v2, 0xffff0000, v2")
        A(f"v_mul_f32 v3, v2, v{i0}\nv_mul_f32 v4, v2, v{i0+1}\nv_mul_f32 v3, 0x3fb8aa3b, v3\nv_mul_f32 v4, 0.15915494, v4")
        cexp(LR, LI, 3, 4, 5, 6)
        A(f"v_sub_f32 v{NLI}, 0, v{LI}")
        A(f"v_add_f32 v5, -1.0, v{LR}\nv_mul_f32 v6, v{i0}, v{i0}\nv_fmac_f32 v6, v{i0+1}, v{i0+1}\nv_rcp_f32 v6, v6\nv_add_f32 v6, v6, v6")
        A(f"v_mul_f32 v7, v5, v{i0}\nv_fmac_f32 v7, v{LI}, v{i0+1}\nv_mul_f32 v{CA}, v7, v6")
        A(f"v_mul_f32 v7, v{LI}, v{i0}\nv_fma_f32 v7, -v5, v{i0+1}, v7\nv_mul_f32 v{CB}, v7, v6")
        A(f"v_mov_b32 v{L32R}, v{LR}\nv_mov_b32 v{L32I}, v{LI}")
        for _ in range(5): csq(L32R, L32I, 5)
        A(f"v_mov_b32 v{L256R}, v{L32R}\nv_mov_b32 v{L256I}, v{L32I}\nv_mov_b32 v{QR}, 1.0\nv_mov_b32 v{QI}, 0")
        for bit in range(3):
            A(f"v_and_b32 v5, {1<<bit}, v28\nv_cmp_ne_u32 vcc, 0, v5")
            A(f"v_mul_f32 v5, v{QR}, v{L256R}\nv_fma_f32 v5, -v{QI}, v{L256I}, v5\nv_mul_f32 v6, v{QR}, v{L256I}\nv_fmac_f32 v6, v{QI}, v{L256R}")
            A(f"v_cndmask_b32 v{QR}, v{QR}, v5, vcc\nv_cndmask_b32 v{QI}, v{QI}, v6, vcc")
            csq(L256R, L256I, 5)
    ACC = 128
    def acc(b, c): return ACC + (c*8+b)*4
    def Xr(par, b): return par*48 + b*4
    def Br(par, c): return par*48 + 32 + c*4
    def reads(s):
        par = s & 1; sl = (s >> 1) % 3; L = []
        for c in range(4): L.append(f"ds_read_b128 a[{Br(par,c)}:{Br(par,c)+3}], v{60+2*sl+(s&1)} offset:{(c>>1)*8192 + (c&1)*2048}")
        for b in range(8): L.append(f"ds_read_b128 a[{Xr(par,b)}:{Xr(par,b)+3}], v{22+2*sl+(s&1)} offset:{b*2048}")
        return L
    A(vm.wait([("S",0)])); A("s_barrier")
    if TS: stamp(A, 1, 5, 4); vm.issue()
    for x in reads(0): A(x)
    for s in range(20):
        if s < 19 and (s & 1): A(vm.wait([("S", (s+1) >> 1)]) + " lgkmcnt(0)"); A("s_barrier")
        else: A("s_waitcnt lgkmcnt(0)")
        par = s & 1; mf = []
        for b in range(8):
            for c in range(4):
                r = acc(b, c); srcc = f"v[{r}:{r+3}]" if s else "0"
                mf.append(f"v_mfma_f32_16x16x32_bf16 v[{r}:{r+3}], a[{Xr(par,b)}:{Xr(par,b)+3}], a[{Br(par,c)}:{Br(par,c)+3}], {srcc}")
        u3 = (s - 1)//2 + 3 if s & 1 else (s - 2)//2 + 3
        d = dma(u3, 0 if s & 1 else 1) if u3 <= 9 else []
        s1 = interleave(mf, reads(s+1), 0, 24) if s < 19 else [[] for _ in mf]
        s2 = interleave(mf, d, 0, 30) if d else [[] for _ in mf]
        for i, m in enumerate(mf):
            A(m)
            for x in s1[i]: A(x)
            for x in s2[i]: emit(x)
    stamp(A, 1, 1, 4)
    def Pm(cb):
        P = 70 + 16*cb; return dict(zip("LR LI NLI CA CB L32R L32I L256R L256I QR QI PR PI T0 T1".split(), range(P, P+15)))
    def gre(cb, t): return acc(0, cb) + t
    def gim(cb, t): return acc(0, 2+cb) + t
    for t in range(1, 32):
        for cb in range(2):
            p = Pm(cb); A(f"v_fmac_f32 v{gre(cb,t)}, v{p['LR']}, v{gre(cb,t-1)}\nv_fmac_f32 v{gim(cb,t)}, v{p['LR']}, v{gim(cb,t-1)}")
        for cb in range(2):
            p = Pm(cb); A(f"v_fmac_f32 v{gre(cb,t)}, v{p['NLI']}, v{gim(cb,t-1)}\nv_fmac_f32 v{gim(cb,t)}, v{p['LI']}, v{gre(cb,t-1)}")
    SEGB = 2*S_SLOT
    A(f"v_and_b32 v2, 63, v30\nv_lshlrev_b32 v2, 3, v2\nv_add_u32 v2, {SEGB}, v2\nv_lshl_add_u32 v3, v28, 9, v2")
    for cb in range(2):
        A(f"v_mov_b32 v4, v{gre(cb,31)}\nv_mov_b32 v5, v{gim(cb,31)}\nds_write_b64 v3, v[4:5] offset:{128*cb}")
    A("s_waitcnt lgkmcnt(0)\ns_barrier")
    for s in range(7):
        for cb in range(2): A(f"ds_read_b64 v[{32+4*s+2*cb}:{33+4*s+2*cb}], v2 offset:{512*s+128*cb}")
    for cb in range(2):
        p = Pm(cb); A(f"v_mov_b32 v{p['PR']}, 0\nv_mov_b32 v{p['PI']}, 0")
    A("s_waitcnt lgkmcnt(0)")
    def horner(cb, mr, mi, ar, ai, dr=None, di=None):
        p = Pm(cb); dr = p['PR'] if dr is None else dr; di = p['PI'] if di is None else di
        A(f"v_fmac_f32 v{ar}, v{mr}, v{p['PR']}\nv_fmac_f32 v{ai}, v{mr}, v{p['PI']}")
        A(f"v_fma_f32 v{p['T0']}, -v{mi}, v{p['PI']}, v{ar}\nv_fma_f32 v{di}, v{mi}, v{p['PR']}, v{ai}\nv_mov_b32 v{dr}, v{p['T0']}")
    for s in range(7):
        A(f"v_cmp_lt_u32 vcc, {s}, v28\ns_and_b64 exec, exec, vcc")
        for cb in range(2): horner(cb, Pm(cb)['L32R'], Pm(cb)['L32I'], 32+4*s+2*cb, 33+4*s+2*cb)
    srd(A, 8, 4, SZ_AGG, WS_AGG)
    A("s_mul_i32 s25, s20, 5120\ns_cbranch_execz SSM_nopub")
    A("v_lshlrev_b32 v3, 3, v30")
    for cb in range(2):
        A(f"v_mov_b32 v4, v{gre(cb,31)}\nv_mov_b32 v5, v{gim(cb,31)}")
        horner(cb, Pm(cb)['L32R'], Pm(cb)['L32I'], 4, 5, 6+2*cb, 7+2*cb)
        A(f"v_min_u32 v{6+2*cb}, 0xfffffffe, v{6+2*cb}\nv_min_u32 v{7+2*cb}, 0xfffffffe, v{7+2*cb}")
        A(f"buffer_store_dwordx2 v[{6+2*cb}:{7+2*cb}], v3, s[8:11], s25 offen offset:{128*cb} sc0 sc1")
    A.label("SSM_nopub")
    A("s_mov_b64 exec, -1")
    for t in range(32):
        for cb in range(2):
            p = Pm(cb); r, i = gre(cb,t), gim(cb,t)
            A(f"v_mul_f32 v{p['T0']}, v{p['CB']}, v{i}\nv_mul_f32 v{p['T1']}, v{p['CB']}, v{r}")
            A(f"v_fma_f32 v{r}, v{p['CA']}, v{r}, -v{p['T0']}\nv_fma_f32 v{i}, -v{p['CA']}, v{i}, -v{p['T1']}")
    stamp(A, 1, 2, 4)
    A("v_lshlrev_b32 v3, 3, v30\ns_sub_u32 s25, s25, 35840\nv_add_u32 v3, s25, v3")
    for i in range(7): A(f"v_add_u32 v{10+i}, {5120*i}, v3")
    A("s_mov_b32 s33, 0x40000")
    A.label("SSM_poll")
    for i in range(7):
        for cb in range(2): A(f"buffer_load_dwordx2 v[{32+4*i+2*cb}:{33+4*i+2*cb}], v{10+i}, s[8:11], 0 offen offset:{128*cb} sc0 sc1")
    A("s_waitcnt vmcnt(0)")
    A("v_max3_u32 v2, v32, v33, v34")
    for r in range(35, 59, 2): A(f"v_max3_u32 v2, v2, v{r}, v{r+1}")
    A("v_max_u32 v2, v2, v59\nv_cmp_eq_u32 vcc, -1, v2\ns_sub_u32 s33, s33, 1\ns_cbranch_scc1 SSM_go\ns_cbranch_vccnz SSM_poll")
    A.label("SSM_go")
    stamp(A, 1, 3, 4)
    for cb in range(2):
        p = Pm(cb)
        cr, ci = 4+2*cb, 5+2*cb
        A(f"v_mov_b32 v{cr}, v{32+2*cb}\nv_mov_b32 v{ci}, v{33+2*cb}")
        for i in range(1, 7):
            ar, ai = 32+4*i+2*cb, 33+4*i+2*cb
            A(f"v_fmac_f32 v{ar}, v{p['L256R']}, v{cr}\nv_fmac_f32 v{ai}, v{p['L256R']}, v{ci}")
            A(f"v_fma_f32 v{p['T0']}, -v{p['L256I']}, v{ci}, v{ar}\nv_fma_f32 v{ci}, v{p['L256I']}, v{cr}, v{ai}\nv_mov_b32 v{cr}, v{p['T0']}")
        A(f"v_fmac_f32 v{p['PR']}, v{p['QR']}, v{cr}\nv_fmac_f32 v{p['PI']}, v{p['QR']}, v{ci}")
        A(f"v_fma_f32 v{p['PR']}, -v{p['QI']}, v{ci}, v{p['PR']}\nv_fmac_f32 v{p['PI']}, v{p['QI']}, v{cr}")
        A(f"v_mul_f32 v{p['T0']}, v{p['CB']}, v{p['PI']}\nv_mul_f32 v{p['T1']}, v{p['CB']}, v{p['PR']}")
        A(f"v_fma_f32 v{cr}, v{p['CA']}, v{p['PR']}, -v{p['T0']}\nv_fma_f32 v{ci}, -v{p['CA']}, v{p['PI']}, -v{p['T1']}")
    PK = 32
    PITCH = 288; IMG = 32*PITCH
    A(f"s_mul_i32 s25, s3, {2*IMG}\nv_and_b32 v2, 15, v1\nv_mul_u32_u24 v2, {PITCH}, v2\nv_lshrrev_b32 v3, 4, v1\nv_lshl_add_u32 v2, v3, 6, v2\nv_add_u32 v17, s25, v2")
    A(f"v_bfe_u32 v2, v1, 2, 2\nv_lshl_add_u32 v2, v3, 3, v2\nv_mul_u32_u24 v2, {PITCH}, v2\nv_and_b32 v3, 3, v1\nv_lshl_add_u32 v2, v3, 3, v2\nv_add_u32 v18, s25, v2")
    for t in range(32):
        cur = [(4+2*cb, 5+2*cb) if t % 2 == 0 else (Pm(cb)['T0'], Pm(cb)['T1']) for cb in range(2)]
        nxt = [(4+2*cb, 5+2*cb) if t % 2 == 1 else (Pm(cb)['T0'], Pm(cb)['T1']) for cb in range(2)]
        for cb in range(2):
            p = Pm(cb); A(f"v_mul_f32 v{nxt[cb][0]}, v{p['LR']}, v{cur[cb][0]}\nv_mul_f32 v{nxt[cb][1]}, v{p['LR']}, v{cur[cb][1]}")
        for cb in range(2):
            p = Pm(cb); A(f"v_fmac_f32 v{nxt[cb][0]}, v{p['LI']}, v{cur[cb][1]}\nv_fmac_f32 v{nxt[cb][1]}, v{p['NLI']}, v{cur[cb][0]}")
        for cb in range(2):
            A(f"v_add_f32 v{gre(cb,t)}, v{gre(cb,t)}, v{nxt[cb][0]}\nv_add_f32 v{gim(cb,t)}, v{gim(cb,t)}, v{nxt[cb][1]}")
        if t & 1:
            bank = 16*((t >> 3) & 1)
            for cb in range(2):
                A(f"v_cvt_pk_bf16_f32 v{PK+bank+8*cb+((t>>1)&3)}, v{gre(cb,t-1)}, v{gre(cb,t)}\nv_cvt_pk_bf16_f32 v{PK+bank+8*cb+4+((t>>1)&3)}, v{gim(cb,t-1)}, v{gim(cb,t)}")
            if t & 7 == 7:
                for cb in range(2):
                    for im in range(2):
                        r = PK+bank+8*cb+4*im
                        A(f"ds_write_b128 v17, v[{r}:{r+3}] offset:{im*IMG + cb*16*PITCH + (t>>3)*16}")
    srd(A, 8, 4, SZ_H, WS_H)
    A("s_lshl_b32 s25, s20, 2\ns_lshl_b32 s26, s23, 1\ns_add_u32 s25, s25, s26\ns_mul_i32 s25, s25, 94")
    A("s_lshl_b32 s26, s21, 2\ns_add_u32 s25, s25, s26\ns_lshl_b32 s26, s24, 1\ns_add_u32 s25, s25, s26\ns_lshl_b32 s25, s25, 12")
    A(f"s_add_u32 s26, s25, 4096\ns_add_u32 s27, s25, {94*4096}\ns_add_u32 s28, s25, {95*4096}\nv_lshlrev_b32 v10, 4, v1\ns_waitcnt lgkmcnt(0)")
    n = 0
    for im in range(2):
        for tb in range(8):
            r = 128 + 4*n; n += 1
            for hh in range(2): A(f"ds_read_b64_tr_b16 v[{r+2*hh}:{r+2*hh+1}], v18 offset:{im*IMG + hh*4*PITCH + tb*32}")
    n = 0
    for im in range(2):
        for tb in range(8):
            r = 128 + 4*n
            A(f"s_waitcnt lgkmcnt({min(15, 30-2*n)})\nbuffer_store_dwordx4 v[{r}:{r+3}], v10, s[8:11], s{25+im+2*(tb>>2)} offen offset:{(tb&3)*1024}"); n += 1
    stamp(A, 1, 4, 4)
    A("s_endpgm")

def gen_k1():
    A = Asm()
    A("s_cmp_ge_u32 s2, 256\ns_cbranch_scc1 K1_end")
    A("s_load_dwordx2 s[4:5], s[0:1], 120")
    A("v_and_b32 v1, 63, v0\nv_lshrrev_b32 v2, 6, v0\ns_nop 0\nv_readfirstlane_b32 s3, v2")
    if TS:
        A("s_lshl_b32 s94, s2, 2\ns_add_u32 s94, s94, s3\ns_lshl_b32 s94, s94, 6\ns_waitcnt lgkmcnt(0)"); stamp(A, 1, 0, 4)
    A("s_and_b32 s20, s2, 7\ns_lshr_b32 s21, s2, 3\ns_lshr_b32 s22, s20, 2\ns_and_b32 s23, s20, 3")
    A("s_cmp_eq_u32 s23, 3\ns_cselect_b32 s24, 16, 8\ns_cmp_lt_u32 s21, s24\ns_cbranch_scc1 K1_ssm")
    A("s_sub_u32 s21, s21, s24\ns_and_b32 s20, s21, 7\ns_lshl_b32 s22, s22, 3\ns_add_u32 s20, s20, s22")
    A("s_lshr_b32 s21, s21, 3\ns_mul_i32 s23, s23, 3\ns_add_u32 s21, s21, s23")
    gen_ffn(A)
    A.label("K1_ssm")
    A("s_and_b32 s20, s21, 3\ns_lshl_b32 s22, s22, 2\ns_add_u32 s20, s20, s22\ns_lshr_b32 s21, s21, 2\ns_lshl_b32 s23, s23, 1\ns_add_u32 s21, s21, s23")
    gen_ssm(A)
    A.label("K1_end"); A("s_endpgm")
    return A.L, 256, 256, 112

def gen_k2():
    A = Asm(); D = 4
    A("s_cmp_ge_u32 s2, 256\ns_cbranch_scc1 K2_end")
    A("s_load_dwordx2 s[4:5], s[0:1], 120\ns_load_dwordx2 s[6:7], s[0:1], 0\ns_load_dwordx2 s[32:33], s[0:1], 64\ns_load_dwordx2 s[34:35], s[0:1], 104")
    A("v_and_b32 v1, 63, v0\nv_lshrrev_b32 v2, 6, v0\ns_nop 0\nv_readfirstlane_b32 s3, v2")
    A("s_and_b32 s20, s2, 7\ns_lshr_b32 s21, s2, 3\ns_lshl_b32 s20, s20, 2\ns_lshr_b32 s22, s21, 3\ns_add_u32 s20, s20, s22\ns_and_b32 s21, s21, 7")
    A("s_mul_i32 s24, s3, 24\ns_min_u32 s24, s24, 71\ns_cmp_ge_u32 s3, 2\ns_cselect_b32 s25, 23, 24\ns_add_u32 s26, s24, s25")
    A("s_mul_i32 s27, s21, 3\ns_mul_i32 s28, s22, 5\ns_add_u32 s27, s27, s28\ns_cmp_ge_u32 s27, 23\ns_cselect_b32 s28, 23, 0\ns_sub_u32 s27, s27, s28")
    if not int(OPT.get("rot", 0)): A("s_mov_b32 s27, 0")
    A("s_add_u32 s27, s27, s24")
    A("s_waitcnt lgkmcnt(0)")
    if TS:
        A("s_lshl_b32 s94, s2, 2\ns_add_u32 s94, s94, s3\ns_lshl_b32 s94, s94, 6"); stamp(A, 2, 0, 4)
    A(f"s_mul_i32 s28, s20, {94*4096}\ns_add_u32 s8, s4, s28\ns_addc_u32 s9, s5, 0\ns_add_u32 s8, s8, {WS_H}\ns_addc_u32 s9, s9, 0\ns_mov_b32 s10, {94*4096}\ns_mov_b32 s11, 0x20000")
    A(f"s_mul_i32 s28, s21, {94*5120}\ns_add_u32 s12, s4, s28\ns_addc_u32 s13, s5, 0\ns_add_u32 s12, s12, {WS_W2P}\ns_addc_u32 s13, s13, 0\ns_mov_b32 s14, {94*5120}\ns_mov_b32 s15, 0x20000")
    A("v_lshlrev_b32 v10, 4, v1\nv_add_u32 v11, 4096, v10")
    vm = VM()
    def Hr(d, tb): return d*36 + tb*4
    def Wr(d, nb): return d*36 + 16 + nb*4
    def loads(i):
        d = i % D
        L = []
        if i == 23: L += ["s_cmp_eq_u32 s25, 23", "s_cselect_b32 s10, 0, s10", "s_cselect_b32 s14, 0, s14"]
        L += ["s_lshl_b32 s29, s27, 12", "s_mul_i32 s30, s27, 5120"]
        for tb in range(4): L.append((i, f"buffer_load_dwordx4 a[{Hr(d,tb)}:{Hr(d,tb)+3}], v10, s[8:11], s29 offen offset:{tb*1024}"))
        for nb in range(5): L.append((i, f"buffer_load_dwordx4 a[{Wr(d,nb)}:{Wr(d,nb)+3}], v{10+(nb>>2)}, s[12:15], s30 offen offset:{(nb&3)*1024}"))
        L += ["s_add_u32 s27, s27, 1", "s_cmp_eq_u32 s27, s26", "s_cselect_b32 s27, s24, s27"]
        return L
    def emit(x):
        if isinstance(x, tuple): vm.issue(x[0]); A(x[1])
        else: A(x)
    for i in range(D-1):
        for x in loads(i): emit(x)
    srd(A, 16, 6, SZ_X); srd(A, 36, 4, SZ_X, WS_XN); srd(A, 40, 32, 1280); srd(A, 44, 34, SZ_OUT)
    A("s_lshl_b32 s28, s20, 6\ns_lshl_b32 s31, s3, 4\ns_add_u32 s28, s28, s31\nv_lshrrev_b32 v2, 2, v1\nv_add_u32 v2, s28, v2\nv_mul_u32_u24 v2, 640, v2")
    A("s_mul_i32 s28, s21, 80\nv_and_b32 v3, 3, v1\nv_lshlrev_b32 v3, 2, v3\nv_add_u32 v3, s28, v3\nv_add_u32 v2, v2, v3")
    A("v_lshlrev_b32 v12, 1, v2\nv_lshlrev_b32 v13, 2, v2\nv_lshlrev_b32 v14, 1, v3")
    for nb in range(5):
        A(f"buffer_load_dwordx2 v[{16+2*nb}:{17+2*nb}], v12, s[16:19], 0 offen offset:{32*nb}"); vm.issue()
        A(f"buffer_load_dwordx2 v[{26+2*nb}:{27+2*nb}], v12, s[36:39], 0 offen offset:{32*nb}"); vm.issue()
        A(f"buffer_load_dwordx2 v[{36+2*nb}:{37+2*nb}], v14, s[40:43], 0 offen offset:{32*nb}"); vm.issue()
    ACC = 48
    def acc(nb, tb): return ACC + (tb*5+nb)*4
    for i in range(24):
        d = i % D
        A(vm.wait([i]))
        mf = []
        for nb in range(5):
            for tb in range(4):
                c = acc(nb, tb); srcc = f"v[{c}:{c+3}]" if i else "0"
                mf.append(f"v_mfma_f32_16x16x32_bf16 v[{c}:{c+3}], a[{Wr(d,nb)}:{Wr(d,nb)+3}], a[{Hr(d,tb)}:{Hr(d,tb)+3}], {srcc}")
        ld = loads(i+D-1) if i+D-1 < 24 else []
        sl = interleave(mf, ld, 0, 18) if ld else [[] for _ in mf]
        for k, m in enumerate(mf):
            A(m)
            for x in sl[k]: emit(x)
    stamp(A, 2, 1, 4)
    A("v_lshrrev_b32 v2, 4, v1\nv_lshlrev_b32 v3, 2, v2\nv_xor_b32 v3, v3, v1\nv_lshlrev_b32 v3, 4, v3\ns_mul_i32 s28, s3, 20480\nv_add_u32 v3, s28, v3")
    for k in range(20): A(f"ds_write_b128 v3, v[{ACC+4*k}:{ACC+4*k+3}] offset:{k*1024}")
    A("v_and_b32 v2, 3, v1\nv_lshrrev_b32 v4, 2, v1\nv_lshlrev_b32 v5, 2, v2\nv_xor_b32 v4, v4, v5\nv_lshl_add_u32 v4, v2, 4, v4\nv_lshlrev_b32 v4, 4, v4\ns_mul_i32 s28, s3, 5120\nv_add_u32 v4, s28, v4\nv_add_u32 v5, 40960, v4")
    for nb in range(5):
        for h in range(2):
            x, xn, dk, o = 16+2*nb+h, 26+2*nb+h, 36+2*nb+h, 128+4*nb+2*h
            A(f"v_lshlrev_b32 v6, 16, v{xn}\nv_and_b32 v7, 0xffff0000, v{xn}\nv_lshlrev_b32 v8, 16, v{dk}\nv_and_b32 v9, 0xffff0000, v{dk}")
            A(f"v_mul_f32 v6, v6, v8\nv_mul_f32 v7, v7, v9\nv_cvt_pk_bf16_f32 v6, v6, v7\nv_and_b32 v7, 0xffff0000, v6\nv_lshlrev_b32 v6, 16, v6")
            A(f"v_lshlrev_b32 v8, 16, v{x}\nv_and_b32 v9, 0xffff0000, v{x}\nv_add_f32 v{o}, v6, v8\nv_add_f32 v{o+1}, v7, v9")
    A("s_waitcnt lgkmcnt(0)\ns_barrier")
    for nb in range(5):
        for w in range(4):
            r = ACC + (nb*4+w)*4
            A(f"ds_read_b128 v[{r}:{r+3}], v{4+(w>>1)} offset:{(w&1)*20480 + nb*1024}")
    for nb in range(5):
        A(f"s_waitcnt lgkmcnt({min(15, 16-4*nb)})")
        r = ACC + nb*16; o = 128+4*nb
        for e in range(4): A(f"v_add_f32 v{r+e}, v{r+e}, v{r+4+e}\nv_add_f32 v{r+8+e}, v{r+8+e}, v{r+12+e}")
        for e in range(4): A(f"v_add_f32 v{r+e}, v{r+e}, v{r+8+e}")
        for e in range(4): A(f"v_add_f32 v{o+e}, v{o+e}, v{r+e}")
        if "eps" in OPT:
            import struct
            lit = hex(struct.unpack("<I", struct.pack("<f", 1.0 + float(OPT["eps"])))[0])
            for e in range(4): A(f"v_mul_f32 v{o+e}, {lit}, v{o+e}")
        A(f"buffer_store_dwordx4 v[{o}:{o+3}], v13, s[44:47], 0 offen offset:{64*nb}")
    stamp(A, 2, 2, 4)
    A.label("K2_end"); A("s_endpgm")
    return A.L, 256, 148, 144

def main():
    ref = open(f"cdna_kernels/{NAME}.s.ref").read().split("\n")
    hdr = [l for l in ref if l.startswith(";") and "@launch" not in l and "Override" not in l and "grid=ceil" not in l]
    ks = [("prep_kernel", gen_k0(), 0), ("gemm1_kernel", gen_k1(), 151552), ("gemm2_kernel", gen_k2(), 81920)]
    out = "\n".join(hdr) + "\n"
    for i in range(int(OPT.get("pre", 0))): out += "; @launch kernel=nop_kernel grid=(256,1,1) block=(256,1,1) lds=0\n"
    for n, (L, grid, v, a), lds in ks: out += f"; @launch kernel={n} grid=({grid},1,1) block=(256,1,1) lds={lds}\n"
    for i in range(int(OPT.get("post", 0))): out += "; @launch kernel=nop_kernel grid=(256,1,1) block=(256,1,1) lds=0\n"
    if "spin" in OPT:
        kidx, wg, slot = [int(v) for v in OPT["spin"].split(",")]
        off = WS_TS + kidx*65536*4 + wg*4*64 + slot*8
        out += "; @launch kernel=spin_kernel grid=(1,1,1) block=(64,1,1) lds=0\n"
        L = ["s_load_dwordx2 s[4:5], s[0:1], 120", "s_waitcnt lgkmcnt(0)", f"s_add_u32 s4, s4, {off}", "s_addc_u32 s5, s5, 0", "s_load_dwordx2 s[6:7], s[4:5], 0", "s_mov_b32 s12, 0x100000",
             "SP_l:", "s_memrealtime s[8:9]", "s_waitcnt lgkmcnt(0)", "s_sub_u32 s10, s8, s6", "s_sub_u32 s12, s12, 1", "s_cbranch_scc1 SP_e", "s_cmp_lt_u32 s10, 8000", "s_cbranch_scc1 SP_l", "SP_e:", "s_endpgm"]
        ks.append(("spin_kernel", (L, 1, 8, 0), 0))
    if "pre" in OPT or "post" in OPT: ks.append(("nop_kernel", (["s_endpgm"], 256, 8, 0), 0))
    out += '.amdgcn_target "amdgcn-amd-amdhsa--gfx950"\n'
    for n, (L, grid, v, a), lds in ks: out += kernel_text(n, hazard_pass(L, "v" in OPT))
    for n, (L, grid, v, a), lds in ks: out += kd(n, v, a)
    open(sys.argv[1], "w").write(out)
main()
```

```python
import re
class Asm:
    def __init__(self): self.L = []
    def __call__(self, s):
        for ln in s.split("\n"):
            ln = ln.strip()
            if ln: self.L.append(ln)
    def label(self, n): self.L.append(n + ":")
    def ext(self, lines):
        for l in lines: self(l)

REG = re.compile(r"\b([vas])(\d+)\b|\b([vas])\[(\d+):(\d+)\]|\b(vcc|exec|m0|scc)\b")
def regs(op):
    out = set()
    for m in REG.finditer(op):
        if m.group(1): out.add((m.group(1), int(m.group(2))))
        elif m.group(3):
            for i in range(int(m.group(4)), int(m.group(5))+1): out.add((m.group(3), i))
        else: out.add((m.group(6), 0))
    return out
TRANS = ("v_exp_f32","v_log_f32","v_rcp_f32","v_rsq_f32","v_sqrt_f32","v_sin_f32","v_cos_f32","v_rcp_iflag_f32")
def split_ops(s):
    parts = s.split(None, 1)
    mn = parts[0]; ops = []
    if len(parts) > 1:
        depth = 0; cur = ""
        for ch in parts[1]:
            if ch == "[": depth += 1
            if ch == "]": depth -= 1
            if ch == "," and depth == 0: ops.append(cur.strip()); cur = ""
            else: cur += ch
        ops.append(cur.strip())
    return mn, ops
class I:
    def __init__(self, s):
        self.s = s; mn, ops = split_ops(s.split(";")[0].strip()); self.mn = mn; self.ops = ops
        b = re.sub(r"_(e32|e64|dpp|sdwa)$", "", mn); self.b = b
        self.mfma = b.startswith("v_mfma"); self.valu = b.startswith("v_") and not self.mfma
        self.salu = b.startswith("s_"); self.trans = b in TRANS
        self.vmem = b.startswith(("buffer_","global_","flat_")); self.ds = b.startswith("ds_")
        self.dpp = mn.endswith("_dpp") or any(k in s for k in ("row_shr","row_shl","row_ror","quad_perm","row_bcast","row_mirror","row_half_mirror","wave_shr","row_newbcast"))
        self.lds_dma = self.vmem and re.search(r"\blds\b", s) is not None
        self.w = set(); self.r = set(); self.srcC = set(); self.AB = set(); self.stdata = set()
        R = [regs(o) for o in ops]
        if self.mfma:
            self.w = R[0]; self.AB = R[1] | R[2]; self.srcC = R[3]; self.r = self.AB | self.srcC
            self.passes = 4 if "16x16x32" in b else 8
        elif self.valu:
            if b.startswith("v_cmpx"): self.w = R[0] | {("exec",0)}; self.r = set().union(*R[1:])
            elif b.startswith("v_permlane") and "swap" in b: self.w = R[0] | R[1]; self.r = R[0] | R[1]
            elif b in ("v_add_co_u32","v_sub_co_u32","v_addc_co_u32","v_subb_co_u32","v_div_scale_f32","v_mad_u64_u32"):
                self.w = R[0] | R[1]; self.r = set().union(*R[2:])
            else:
                self.w = R[0]; self.r = set().union(*R[1:]) if len(R) > 1 else set()
                if b in ("v_fmac_f32","v_pk_fmac_f16","v_writelane_b32","v_dot2c_f32_bf16") or self.dpp: self.r |= R[0]
                if b == "v_div_fmas_f32": self.r |= {("vcc",0)}
        elif self.vmem:
            st = "store" in b; at = "atomic" in b
            if self.lds_dma: self.r = set().union(*R) | {("m0",0)}
            elif st or at:
                self.r = set().union(*R)
                self.stdata = R[0] if b.startswith("buffer_") else R[1]
                if at and "sc0" in s: self.w = R[0]
            else: self.w = R[0]; self.r = set().union(*R[1:])
            self.wide_store = st and ("x3" in b or "x4" in b)
        elif self.ds:
            if b.startswith(("ds_read","ds_bpermute","ds_permute","ds_swizzle")): self.w = R[0]; self.r = set().union(*R[1:])
            else: self.r = set().union(*R)
        elif self.salu:
            if b.startswith(("s_cmp","s_cbranch","s_branch","s_waitcnt","s_barrier","s_nop","s_endpgm","s_sleep","s_setprio","s_bitcmp")):
                self.r = set().union(*R) if R else set()
            else:
                self.w = R[0] if R else set(); self.r = set().union(*R[1:]) if len(R) > 1 else set()
                if "saveexec" in b: self.w |= {("exec",0)}
    def states(self):
        if self.b == "s_nop": return int(self.ops[0], 0) + 1
        return 1
def need(p, c):
    n = 0
    vw = {x for x in p.w if x[0] in "va"}; sw = {x for x in p.w if x[0] in ("s","vcc")}
    if p.valu:
        if c.mfma and vw & c.r: n = max(n, 2)
        if c.valu and c.dpp and vw & c.r: n = max(n, 2)
        if c.b.startswith("v_permlane") and vw & c.r: n = max(n, 2)
        if c.b in ("v_readfirstlane_b32","v_readlane_b32") and vw & c.r: n = max(n, 1)
        if p.trans and (c.valu or c.mfma) and vw & c.r: n = max(n, 1)
        if sw & c.r:
            if c.vmem: n = max(n, 5)
            if c.valu: n = max(n, 4 if c.b in ("v_readlane_b32","v_writelane_b32","v_div_fmas_f32") else 2)
            if c.salu: n = max(n, 1)
        if ("exec",0) in p.w:
            if c.mfma: n = max(n, 4)
            if c.valu and c.dpp: n = max(n, 5)
            if c.b.startswith(("v_readlane","v_readfirstlane","v_writelane","v_permlane")): n = max(n, 4)
    if p.salu and ("m0",0) in p.w and c.lds_dma: n = max(n, 1)
    if p.vmem and getattr(p, "wide_store", False) and p.stdata & c.w: n = max(n, 2 if (c.valu or c.mfma) else 1)
    if p.mfma:
        big = p.passes == 8
        if c.mfma:
            if p.w & c.AB: n = max(n, 12 if big else 8)
            if p.w & c.srcC and p.w != c.srcC: n = max(n, 10 if big else 6)
            if p.w & c.w and not (p.w & c.srcC): n = max(n, 12 if big else 8)
        elif (p.w & (c.r | c.w)): n = max(n, 12 if big else 8)
        if c.valu and p.srcC & c.w: n = max(n, 7 if big else 3)
    return n
def hazard_pass(lines, verbose=False):
    out = []; hist = []
    ins = 0
    for s in lines:
        if s.endswith(":") or s.startswith((".", ";")): out.append(s); continue
        c = I(s); req = 0; dist = 0
        if c.mfma:
            for p in hist[-3:]:
                m = re.search(r"op_sel:\[([01,]+)\]", p.s)
                assert not (m and "1" in m.group(1).split(",")[1:]), ("op_sel hazard", p.s)
        for p in reversed(hist[-14:]):
            k = need(p, c) - dist
            if k > req: req = k
            dist += p.states()
            if dist >= 13: break
        if req > 0:
            nop = f"s_nop {req-1}"; out.append(nop); hist.append(I(nop)); ins += 1
            if verbose: print("hazard pad", req, "before", s)
        out.append(s); hist.append(c)
    return out
def interleave(mf, fill, lo=0, hi=None):
    hi = len(mf) if hi is None else hi
    slots = [[] for _ in mf]
    n = hi - lo
    for i, f in enumerate(fill): slots[lo + i*n//len(fill)].append(f)
    return slots
def kd(name, vgpr, agpr, sgpr=96):
    acc = (vgpr + 3)//4*4
    return f""".section .rodata,"a"
.p2align 6
.amdhsa_kernel {name}
  .amdhsa_next_free_vgpr {acc+agpr}
  .amdhsa_next_free_sgpr {sgpr}
  .amdhsa_accum_offset {acc}
  .amdhsa_group_segment_fixed_size 0
  .amdhsa_kernarg_size 128
  .amdhsa_user_sgpr_count 2
  .amdhsa_user_sgpr_kernarg_segment_ptr 1
  .amdhsa_system_sgpr_workgroup_id_x 1
  .amdhsa_float_denorm_mode_32 3
.end_amdhsa_kernel
"""
def kernel_text(name, lines):
    body = "\n".join(l if l.endswith(":") or l.startswith(".") else "  " + l for l in lines)
    return f".text\n.globl {name}\n.p2align 8\n.type {name},@function\n{name}:\n{body}\n"
```

```python
import sys
from asmlib import *
NAME = "parallel_sum__ssm_conv_s5__glu_gated_swiglu__prompt"
OPT = dict(a.split("=") for a in sys.argv[2:])
TS = int(OPT.get("ts", 0))
WS_AGG = 0; WS_FLG = 0x10000; WS_STAT = 0x14000; WS_CS = 0x18000; WS_H = 0x100000; WS_W2P = 0xE00000; WS_END = 0x11C0000; WS_TS = 0x1500000
SZ_X = 2048*640*2; SZ_B = 640*640*2; SZ_W = 640*1728*2; SZ_OUT = 2048*640*4
OOB = 0x7F000000
P = dict(x=36, lre=38, lim=40, bre=42, bim=44, cre=46, cim=48, ldt=50, dsk=52, w1=56, w3=58, w2=60, out=62, dbg=64, ws=66)
MF = "v_mfma_f32_16x16x32_bf16"

class E(Asm):
    def __init__(self): super().__init__(); self.reset()
    def reset(self): self.nv = 0; self.tv = {}; self.dv = 0; self.nd = 0; self.td = {}; self.dd = 0
    def vmw(self, tags):
        last = max(self.tv[t] for t in tags)
        if last <= self.dv: return None
        self.dv = last; return min(63, self.nv - last)
    def dsw(self, tags):
        last = max(self.td[t] for t in tags)
        if last <= self.dd: return None
        n = min(15, self.nd - last); self.dd = self.nd - n; return n
    def it(self, x):
        if isinstance(x, str): self(x)
        elif x[0] == "vm": self.nv += 1; self.tv[x[1]] = self.nv; self(x[2])
        elif x[0] == "ds": self.nd += 1; self.td[x[1]] = self.nd; self(x[2])
        elif x[0] == "wvm":
            n = self.vmw(x[1])
            if n is not None: self(f"s_waitcnt vmcnt({n})")
        elif x[0] == "wds":
            n = self.dsw(x[1])
            if n is not None: self(f"s_waitcnt lgkmcnt({n})")
        elif x[0] == "fn": x[1]()
    def its(self, L):
        for x in L: self.it(x)
    def sync(self, vtags, barrier=True):
        n = self.vmw(vtags) if vtags else None
        self.dd = self.nd
        self((f"s_waitcnt vmcnt({n}) lgkmcnt(0)" if n is not None else "s_waitcnt lgkmcnt(0)"))
        if barrier: self("s_barrier")
    def weave(self, mf, streams):
        sl = [interleave(mf, it, lo, hi) for it, lo, hi in streams if it]
        for i, m in enumerate(mf):
            self(m)
            for s in sl:
                for x in s[i]: self.it(x)
def lines(s): return [l.strip() for l in s.split("\n") if l.strip()]
def srd(A, d, lo, size):
    A(f"s_mov_b32 s{d}, s{lo}\ns_mov_b32 s{d+1}, s{lo+1}\ns_mov_b32 s{d+2}, {hex(size)}\ns_mov_b32 s{d+3}, 0x20000")
def srd_sel(A, d, lo0, lo1, size):
    A(f"s_cselect_b32 s{d}, s{lo0}, s{lo1}\ns_cselect_b32 s{d+1}, s{lo0+1}, s{lo1+1}\ns_mov_b32 s{d+2}, {hex(size)}\ns_mov_b32 s{d+3}, 0x20000")
def stamp(A, slot):
    if not TS: return
    A(f"s_memrealtime s[90:91]\ns_memtime s[88:89]\ns_waitcnt lgkmcnt(0)\ns_add_u32 s92, s94, {WS_TS + slot*8}")
    A.dd = A.nd
    A(f"v_mov_b32 v6, s90\nv_mov_b32 v7, s88\nv_mov_b32 v8, s92"); A.it(("vm", None, "global_store_dwordx2 v8, v[6:7], s[66:67]"))
def bc(n, which, hi=False):
    lo = [0]*n; h = [1]*n
    for w in which:
        if isinstance(w, tuple): lo[w[0]] = 1
        else: h[w] = 0
    s = ""
    if any(lo): s += " op_sel:[" + ",".join(map(str, lo)) + "]"
    s += " op_sel_hi:[" + ",".join(map(str, h)) + "]"
    return s
def B(r):
    return f"v[{r & ~1}:{(r & ~1)+1}]", (r & 1)
def pk(op, d, *src, neg=()):
    t = []; w = []
    src = list(src)
    if isinstance(src[1], tuple) and src[1][1] & 1:
        src[0], src[1] = src[1], src[0]; neg = tuple({0: 1, 1: 0}.get(n, n) for n in neg)
    for i, s in enumerate(src):
        if isinstance(s, tuple):
            x, hi = B(s[1]); t.append(x); w.append((i,) if hi else i)
        else:
            assert s % 2 == 0; t.append(f"v[{s}:{s+1}]")
    assert d % 2 == 0
    m = bc(len(src), w)
    if neg:
        nn = ",".join("1" if i in neg else "0" for i in range(len(src))); m += f" neg_lo:[{nn}] neg_hi:[{nn}]"
    return f"v_pk_{op}_f32 v[{d}:{d+1}], " + ", ".join(t) + m

def stats_job(R):
    L0, U, T = R, R+10, R+30
    ld = lines(f"v_lshrrev_b32 v{T}, 5, v1\nv_mul_u32_u24 v{T}, 1280, v{T}\nv_and_b32 v{T+1}, 31, v1\nv_lshl_add_u32 v{T}, v{T+1}, 3, v{T}\ns_mul_i32 s75, s95, 2560")
    for i in range(5): ld.append(("vm", "st", f"buffer_load_dwordx2 v[{L0+2*i}:{L0+2*i+1}], v{T}, s[16:19], s75 offen offset:{256*i}"))
    c = [("wvm", ["st"])]
    for i in range(10): c += [f"v_lshlrev_b32 v{U+2*i}, 16, v{L0+i}", f"v_and_b32 v{U+2*i+1}, 0xffff0000, v{L0+i}"]
    def red(v, t):
        o = [f"v_add_f32 v{v}, v{v}, v{v+1}"]
        for r in (8, 4, 2, 1): o.append(f"v_add_f32_dpp v{v}, v{v}, v{v} row_ror:{r} row_mask:0xf bank_mask:0xf")
        o += [f"v_mov_b32 v{t}, v{v}", f"v_permlane16_swap_b32 v{v}, v{t}", f"v_add_f32 v{v}, v{v}, v{t}", f"v_mul_f32 v{v}, 0x3acccccd, v{v}"]
        return o
    c.append(pk("add", T, U, U+2))
    for i in range(2, 10): c.append(pk("add", T, T, U+2*i))
    c += red(T, T+1)
    for i in range(10): c.append(pk("add", U+2*i, U+2*i, ("b", T), neg=(1,)))
    c.append(pk("mul", T+2, U, U))
    for i in range(1, 10): c.append(pk("fma", T+2, U+2*i, U+2*i, T+2))
    c += red(T+2, T+3)
    c += lines(f"""v_cvt_pk_bf16_f32 v{T}, v{T}, v{T+2}
v_and_b32 v{T+2}, 0xffff0000, v{T}
v_add_f32 v{T+2}, 0x3727c5ac, v{T+2}
v_cvt_pk_bf16_f32 v{T+2}, v{T+2}, v{T+2}
v_and_b32 v{T+2}, 0xffff0000, v{T+2}
v_sqrt_f32 v{T+2}, v{T+2}
v_and_b32 v{T}, 0xffff, v{T}
v_cvt_pk_bf16_f32 v{T+2}, v{T+2}, v{T+2}
v_and_b32 v{T+1}, 31, v1
v_and_or_b32 v{T}, v{T+2}, s96, v{T}
v_lshlrev_b32 v{T+1}, 25, v{T+1}
v_lshrrev_b32 v{T+2}, 3, v1
v_or_b32 v{T+1}, v{T+1}, v{T+2}
s_lshl_b32 s75, s95, 3
s_add_u32 s75, s75, {WS_STAT}""")
    c.append(("vm", "side", f"buffer_store_dword v{T}, v{T+1}, s[8:11], s75 offen sc1"))
    return ld, c
def sigma_ffn(A, ft, pos_is, dst, t0):
    pass
def prep_signal():
    return lines("v_lshlrev_b32 v2, 8, v0\nv_mov_b32 v3, 1") + [("vm", None, "buffer_atomic_add v3, v2, s[28:31], 0 offen")]
def prep_poll(): return ["v_mov_b32 v9, 0", ("vm", "prep", "buffer_load_dword v9, v9, s[28:31], 0 offen sc1")]
def prep_check(A, name):
    A.it(("wvm", ["prep"]))
    A(f"v_readfirstlane_b32 s75, v9\ns_cmpk_eq_u32 s75, 256\ns_cbranch_scc1 {name}_ok\ns_mov_b32 s76, 0x40000")
    A.label(f"{name}_l")
    A(f"s_sleep 2\nv_mov_b32 v9, 0\nbuffer_load_dword v9, v9, s[28:31], 0 offen sc1\ns_waitcnt vmcnt(0)\nv_readfirstlane_b32 s75, v9\ns_sub_u32 s76, s76, 1\ns_cbranch_scc1 {name}_ok\ns_cmpk_lg_u32 s75, 256\ns_cbranch_scc1 {name}_l")
    A.label(f"{name}_ok")
def w2reg(i):
    i %= 12
    return 112 + 20*i if i < 7 else 20*(i-7)
def w2load(i):
    L = [f"s_add_u32 s79, s82, {i*5120}"]
    if i == 5: L += ["s_cmp_ge_u32 s3, 2", f"s_cselect_b32 s79, {hex(OOB)}, s79"]
    for nb in range(5):
        r = w2reg(i) + 4*nb
        L.append(("vm", ("w2", i), f"buffer_load_dwordx4 a[{r}:{r+3}], v{28+(nb>>2)}, s[8:11], s79 offen offset:{(nb&3)*1024} sc1"))
    return L

W_SLOT = 20480; NWS = 4; X_BASE = NWS*W_SLOT; X_SLOT = 16384; F_SCR = X_BASE + 3*X_SLOT
def gen_ffn(A):
    A.reset()
    A("s_mul_i32 s70, s69, 160\ns_min_u32 s70, s70, 1568")
    A("s_lshl_b32 s32, s68, 7\ns_lshl_b32 s33, s3, 5\ns_add_u32 s32, s32, s33")
    A("v_lshrrev_b32 v2, 3, v1\nv_add_u32 v2, s32, v2\nv_mul_u32_u24 v2, 1280, v2\nv_lshrrev_b32 v3, 4, v1\nv_xor_b32 v3, v3, v1\nv_and_b32 v3, 7, v3\nv_lshlrev_b32 v3, 4, v3")
    A(f"v_add_u32 v15, v2, v3\nv_xor_b32 v3, 64, v3\nv_add_u32 v16, v2, v3\nv_add_u32 v16, {8*1280-1024}, v16\nv_add_u32 v17, {16*1280}, v15\nv_add_u32 v18, {16*1280}, v16")
    A(f"s_mul_i32 s73, s3, 5120\ns_lshl_b32 s74, s3, 12\ns_add_u32 s74, s74, {X_BASE}")
    def dmaW(s):
        L = [f"s_add_u32 m0, s73, {(s%NWS)*W_SLOT}", f"s_mov_b32 s77, {s*32*3456}"]
        for i in range(5):
            if i == 4: L.append(f"s_add_u32 m0, s73, {(s%NWS)*W_SLOT+4096}")
            L.append(("vm", ("W", s), f"buffer_load_dwordx4 v{10+i}, s[12:15], s77 offen offset:{1024*(i&3)} lds"))
        return L
    def dmaX(u, hs=(0, 1)):
        L = []
        for h in hs:
            L += [f"s_add_u32 m0, s74, {(u%3)*X_SLOT+2048*h}", f"s_movk_i32 s78, {u*128}"]
            for i in range(2): L.append(("vm", ("X", u), f"buffer_load_dwordx4 v{15+2*h+i}, s[16:19], s78 offen offset:{1024*i} lds"))
        return L
    A("s_waitcnt lgkmcnt(0)")
    srd(A, 16, P["x"], SZ_X)
    A.its(dmaX(0))
    A("s_cmp_eq_u32 s72, 0"); srd_sel(A, 12, P["w1"], P["w3"], SZ_W)
    A("s_mul_i32 s32, s71, 320\ns_lshl_b32 s33, s70, 1\ns_movk_i32 s34, 3277")
    for i in range(5):
        A(f"v_add_u32 v2, s32, v1\nv_add_u32 v2, {64*i}, v2\nv_mul_u32_u24 v3, s34, v2\nv_lshrrev_b32 v3, 16, v3")
        A("v_mul_u32_u24 v4, 20, v3\nv_sub_u32 v4, v2, v4\nv_lshrrev_b32 v5, 2, v3\nv_and_b32 v5, 2, v5\nv_xor_b32 v4, v4, v5")
        A(f"v_mul_u32_u24 v3, 3456, v3\nv_lshl_add_u32 v3, v4, 4, v3\nv_add_u32 v3, s33, v3\nv_subrev_u32 v{10+i}, {1024*(i&3)}, v3")
    A.its(dmaW(0) + dmaW(1))
    common_setup(A)
    A("v_lshrrev_b32 v2, 4, v1\nv_bfe_u32 v3, v1, 2, 2\nv_lshl_add_u32 v3, v2, 3, v3\nv_mul_u32_u24 v3, 320, v3")
    A("v_and_b32 v4, 3, v1\nv_lshl_add_u32 v3, v4, 3, v3\nv_and_b32 v4, 1, v2\nv_lshlrev_b32 v4, 5, v4")
    A("s_mul_i32 s32, s72, 192\nv_add_u32 v5, s32, v3\nv_add_u32 v20, v5, v4\nv_sub_u32 v21, v5, v4")
    A("s_lshl_b32 s32, s72, 5\ns_add_u32 s32, s32, 128\nv_xor_b32 v5, s32, v4\nv_add_u32 v22, v3, v5")
    A.its(dmaX(1))
    for i in range(3): A(f"v_add_u32 v{23+i}, {3*W_SLOT}, v{20+i}")
    A("v_and_b32 v3, 15, v1\nv_lshrrev_b32 v4, 1, v3\nv_xor_b32 v4, v4, v2\nv_lshlrev_b32 v4, 4, v4\nv_lshl_add_u32 v3, v3, 7, v4")
    A(f"s_lshl_b32 s32, s71, 13\ns_add_u32 s32, s32, {X_BASE}\nv_add_u32 v26, s32, v3\nv_xor_b32 v27, 64, v26")
    A.its(dmaW(2))
    A("s_lshl1_add_u32 s32, s69, s72\ns_mov_b32 s84, s32")
    for th, add in ((6, 18), (12, 18), (17, 19)):
        A(f"s_cmp_ge_u32 s32, {th}\ns_cselect_b32 s33, {add}, 0\ns_add_u32 s84, s84, s33")
    A("s_mul_i32 s33, s69, 3\ns_cmp_eq_u32 s69, 10\ns_cselect_b32 s34, 1, 0\ns_sub_u32 s33, s33, s34")
    A("s_lshl1_add_u32 s85, s72, s33\ns_add_u32 s86, s33, 1")
    for r in (85, 86): A(f"s_lshr_b32 s34, s{r}, 3\ns_lshl_b32 s34, s34, 4\ns_add_u32 s{r}, s{r}, s34\ns_add_u32 s{r}, s{r}, 6")
    A(f"s_lshl1_add_u32 s33, s68, s71\ns_mul_i32 s34, s33, 96")
    for r in (84, 85, 86): A(f"s_add_u32 s{r}, s{r}, s34\ns_lshl_b32 s{r}, s{r}, 12\ns_add_u32 s{r}, s{r}, {WS_H}")
    A(f"s_cmp_eq_u32 s32, 19\ns_cselect_b32 s85, {hex(OOB)}, s85")
    A(f"s_lshl_b32 s87, s33, 8\ns_lshl2_add_u32 s87, s32, s87\ns_add_u32 s87, s87, {WS_FLG}")
    A("s_mul_i32 s32, s68, 11\ns_add_u32 s32, s32, s69")
    A("s_cmp_lt_u32 s32, 54"); srd_sel(A, 24, P["w1"], P["w3"], SZ_W)
    A(f"s_cselect_b32 s33, 0, 54\ns_sub_u32 s33, s32, s33\ns_lshl_b32 s33, s33, 6\ns_mul_i32 s34, s3, {160*3456}\ns_add_u32 s97, s33, s34")
    A(f"s_lshl_b32 s98, s32, 7\ns_add_u32 s98, s98, {WS_CS+5120}\ns_cmp_lt_u32 s32, 108\ns_cselect_b32 s97, s97, {hex(OOB)}\ns_cselect_b32 s98, s98, {hex(OOB)}")
    cs_ld = lines("v_lshrrev_b32 v2, 2, v1\nv_mul_u32_u24 v2, 3456, v2\nv_and_b32 v3, 3, v1\nv_lshl_add_u32 v30, v3, 4, v2")
    for i in range(10):
        cs_ld += [f"s_add_u32 s75, s97, {i*16*3456}", ("vm", "csl", f"buffer_load_dwordx4 a[{112+4*i}:{115+4*i}], v30, s[24:27], s75 offen")]
    cs_c = ["v_and_b32 v2, 15, v1"]
    for r in range(4):
        cs_c += lines(f"v_cmp_eq_u32 vcc, {2*r}, v2\nv_mov_b32 v3, 0x3f80\nv_cndmask_b32 v{72+r}, 0, v3, vcc\nv_cmp_eq_u32 vcc, {2*r+1}, v2\nv_lshlrev_b32 v3, 16, v3\nv_cndmask_b32 v{72+r}, v{72+r}, v3, vcc")
    cs_c.append(("wvm", ["csl"]))
    for i in range(10): cs_c.append(f"{MF} v[76:79], v[72:75], a[{112+4*i}:{115+4*i}], " + ("v[76:79]" if i else "0"))
    cs_c += lines(f"v_and_b32 v2, 3, v1\nv_lshlrev_b32 v2, 5, v2\nv_and_b32 v3, 16, v1\nv_add_u32 v2, v2, v3\ns_lshl_b32 s75, s3, 7\ns_add_u32 s75, s75, {F_SCR+20480}")
    cs_c += lines("v_add_u32 v2, s75, v2\nv_and_b32 v3, 32, v1\nv_lshl_add_u32 v2, v3, 4, v2")
    for r in (4, 8):
        for e in range(4): cs_c.append(f"v_add_f32_dpp v{76+e}, v{76+e}, v{76+e} row_ror:{r} row_mask:0xf bank_mask:0xf")
    cs_c.append(("ds", None, "ds_write_b128 v2, v[76:79]"))
    cs_f = lines(f"v_and_b32 v2, 31, v1\nv_lshlrev_b32 v2, 2, v2\nv_add_u32 v3, {F_SCR+20480}, v2")
    for w in range(4): cs_f.append(("ds", "csf", f"ds_read_b32 v{72+w}, v3 offset:{128*w}"))
    cs_f += ["v_lshlrev_b32 v3, 20, v0", "v_and_b32 v3, 0xfe000000, v3", "v_or_b32 v2, v2, v3", ("wds", ["csf"]), "v_add_f32 v72, v72, v73", "v_add_f32 v74, v74, v75", "v_add_f32 v72, v72, v74",
             ("vm", "side", "buffer_store_dword v72, v2, s[8:11], s98 offen sc1")]
    srd(A, 20, P["w2"], SZ_W)
    A("s_sub_u32 s33, s32, 68\ns_lshl2_add_u32 s33, s33, s3\ns_lshr_b32 s34, s33, 3\ns_and_b32 s33, s33, 7")
    A("s_mul_i32 s99, s34, 40960\ns_mul_i32 s35, s33, 160\ns_add_u32 s99, s99, s35")
    A("s_mul_i32 s35, s34, 52429\ns_lshr_b32 s35, s35, 18\ns_mul_i32 s75, s35, 5\ns_sub_u32 s75, s34, s75\ns_sub_u32 s76, s34, 49\ns_cmp_ge_u32 s34, 49\ns_cselect_b32 s35, 10, s35\ns_cselect_b32 s75, s76, s75")
    A("s_cmp_eq_u32 s75, 3\ns_cselect_b32 s76, 1, 0\ns_lshl1_add_u32 s76, s35, s76\ns_mov_b32 s100, s76")
    for th, add in ((6, 18), (12, 18), (17, 19)):
        A(f"s_cmp_ge_u32 s76, {th}\ns_cselect_b32 s79, {add}, 0\ns_add_u32 s100, s100, s79")
    A("s_mul_i32 s76, s35, 3\ns_lshr_b32 s79, s75, 1\ns_add_u32 s76, s76, s79\ns_cmp_eq_u32 s35, 10\ns_cselect_b32 s79, 1, 0\ns_sub_u32 s76, s76, s79")
    A("s_lshr_b32 s79, s76, 3\ns_lshl_b32 s79, s79, 4\ns_add_u32 s76, s76, s79\ns_add_u32 s76, s76, 6")
    A("s_lshr_b32 s79, 9, s75\ns_bitcmp1_b32 s79, 0\ns_cselect_b32 s100, s100, s76")
    A(f"s_mul_i32 s33, s33, 96\ns_add_u32 s100, s100, s33\ns_mul_i32 s100, s100, 5120\ns_add_u32 s100, s100, {WS_W2P}")
    A(f"s_cmp_ge_u32 s32, 68\ns_cselect_b32 s99, s99, {hex(OOB)}\ns_cselect_b32 s100, s100, {hex(OOB)}")
    A("s_cmp_eq_u32 s75, 2\ns_cselect_b32 s75, 8, 4\ns_cselect_b32 s76, 1, 4\ns_mul_i32 s76, s76, 640")
    A(f"v_lshrrev_b32 v2, 4, v1\nv_mul_u32_u24 v2, s75, v2\nv_bfe_u32 v3, v1, 2, 2\nv_add_u32 v2, v2, v3\nv_mul_u32_u24 v2, 160, v2\nv_and_b32 v3, 3, v1\nv_lshl_add_u32 v2, v3, 3, v2")
    A(f"s_add_u32 s101, s73, {F_SCR}\nv_add_u32 v80, s101, v2\nv_add_u32 v81, s76, v80")
    w2_ld = ["s_movk_i32 s75, 6554"]
    for i in range(5):
        w2_ld += lines(f"v_add_u32 v2, {64*i}, v1\nv_mul_u32_u24 v3, s75, v2\nv_lshrrev_b32 v3, 16, v3\nv_mul_u32_u24 v3, 1120, v3\nv_lshl_add_u32 v2, v2, 4, v3\ns_add_u32 m0, s101, {1024*i}")
        w2_ld.append(("vm", "w2l", "buffer_load_dwordx4 v2, s[20:23], s99 offen lds"))
    w2_c = [("wvm", ["w2l"])]
    for nb in range(5):
        for hh in range(2): w2_c.append(("ds", "w2t", f"ds_read_b64_tr_b16 a[{152+4*nb+2*hh}:{153+4*nb+2*hh}], v{80+hh} offset:{32*nb}"))
    w2_s = [("wds", ["w2t"])]
    for nb in range(5): w2_s.append(("vm", "side", f"buffer_store_dwordx4 a[{152+4*nb}:{155+4*nb}], v{28+(nb>>2)}, s[8:11], s100 offen offset:{(nb&3)*1024} sc1"))
    clr = lines("v_mul_u32_u24 v2, 88, v1\nv_lshlrev_b32 v3, 24, v1\nv_and_b32 v3, 0xfe000000, v3\nv_or_b32 v2, v2, v3\nv_mov_b32 v3, 0") + [("vm", "side", "buffer_store_dword v3, v2, s[8:11], s87 offen sc1")]
    st_ld, st_c = stats_job(32)
    ep_ld = lines(f"v_and_b32 v2, 48, v1\ns_mul_i32 s75, s72, 384\ns_lshl2_add_u32 s75, s70, s75\ns_add_u32 s75, s75, {WS_CS+5120}\ns_add_u32 s76, s75, 6912")
    ep_ld += lines("s_mul_i32 s34, s72, 320\ns_sub_u32 s34, s75, s34\ns_add_u32 s35, s34, 6912")
    for j in range(10):
        pr, m = j >> 1, j & 1
        ep_ld.append(("vm", "ep", f"buffer_load_dwordx4 v[{56+4*j}:{59+4*j}], v2, s[8:11], s{(34 if pr == 4 else 75)+m} offen offset:{64*pr} sc1"))
    ep_ld += lines(f"v_and_b32 v2, 15, v1\nv_lshlrev_b32 v2, 2, v2\ns_lshl1_add_u32 s75, s68, s71\ns_lshl_b32 s75, s75, 8\ns_add_u32 s75, s75, {WS_STAT}")
    for tb in range(4): ep_ld.append(("vm", "ep", f"buffer_load_dword v{40+tb}, v2, s[8:11], s75 offen offset:{64*tb} sc1"))
    ep_c = [("wvm", ["ep"])]
    for tb in range(4):
        ep_c += lines(f"v_lshlrev_b32 v{44+tb}, 16, v{40+tb}\nv_and_b32 v{52+tb}, 0xffff0000, v{40+tb}\nv_rcp_f32 v{48+tb}, v{52+tb}\nv_mul_f32 v{52+tb}, v{52+tb}, v{52+tb}\nv_mul_f32 v{48+tb}, 0xbfb8aa3b, v{48+tb}")
    ACC = 96
    def acc(j, tb): return ACC + (j*4+tb)*4
    def Wr(par, j): return par*56 + j*4
    def Xr(par, tb): return par*56 + 40 + tb*4
    def reads(s):
        par = s & 1; L = []; sl = s % NWS; hi = 3 if sl >= 3 else 0; so = (sl - hi)*W_SLOT
        for tb in range(4): L.append(("ds", None, f"ds_read_b128 a[{Xr(par,tb)}:{Xr(par,tb)+3}], v{26+(s&1)} offset:{((s>>1)%3)*X_SLOT + tb*2048}"))
        for j in range(10):
            pr, m = j >> 1, j & 1; ar = 22 if pr == 4 else 20 + (pr & 1); co = 0 if pr == 4 else pr*32
            for hh in range(2): L.append(("ds", None, f"ds_read_b64_tr_b16 a[{Wr(par,j)+2*hh}:{Wr(par,j)+2*hh+1}], v{ar+hi} offset:{so + m*10240 + hh*1280 + co}"))
        return L
    h = len(st_c)//2
    sched = {0: dmaW(3) + cs_ld + clr, 1: dmaW(4) + dmaX(2) + st_ld, 2: dmaW(5) + w2_ld + cs_c, 3: dmaW(6) + dmaX(3) + cs_f + st_c[:h],
             4: dmaW(7) + w2_c + st_c[h:] + w2_s + dmaW(8), 5: dmaW(9) + dmaX(4), 6: dmaW(10) + dmaX(5, (0,)), 7: prep_signal() + dmaW(11) + dmaX(5, (1,)) + dmaX(6, (0,)),
             8: dmaW(12) + dmaX(6, (1,)), 9: dmaW(13) + dmaX(7, (0,)), 10: dmaW(14) + dmaX(7, (1,)), 11: dmaW(15) + dmaX(8, (0,)), 12: dmaW(16) + dmaX(8, (1,)),
             13: prep_poll() + dmaW(17) + dmaX(9, (0,)), 14: dmaW(18) + dmaX(9, (1,)), 15: dmaW(19) + ep_ld, 16: w2load(0) + w2load(1), 17: w2load(2) + w2load(3),
             18: w2load(4) + w2load(5), 19: w2load(6) + ep_c}
    A.sync([("X", 0), ("W", 0)]); stamp(A, 1)
    A.its(reads(0))
    for s in range(20):
        tags = [("W", s+1), ("X", (s+1) >> 1)] if s < 19 else []
        if s == 7: tags.append("side")
        A.sync(tags, barrier=(s < 19))
        if s == 15: prep_check(A, "FP")
        par = s & 1; mf = []
        for j in range(10):
            for tb in range(4):
                c = acc(j, tb); mf.append(f"{MF} v[{c}:{c+3}], a[{Wr(par,j)}:{Wr(par,j)+3}], a[{Xr(par,tb)}:{Xr(par,tb)+3}], " + (f"v[{c}:{c+3}]" if s else "0"))
        A.weave(mf, [(reads(s+1) if s < 19 else [], 0, 30), (sched.get(s, []), 0, 39)])
    stamp(A, 2)
    A("v_lshrrev_b32 v2, 4, v1\nv_and_b32 v3, 1, v2\nv_lshlrev_b32 v3, 10, v3\nv_lshrrev_b32 v2, 1, v2\nv_lshl_add_u32 v3, v2, 8, v3")
    A("v_and_b32 v2, 15, v1\nv_lshl_add_u32 v3, v2, 4, v3\ns_lshl_b32 s75, s72, 9\nv_add_u32 v11, s75, v3\nv_lshlrev_b32 v12, 25, v1\nv_mov_b32 v13, 1")
    T = 32
    def silu(pr, tb, dst):
        g, u = acc(2*pr, tb), acc(2*pr+1, tb); cg, cu = 56+8*pr, 60+8*pr
        L = []
        for k in (0, 2): L.append(pk("fma", g+k, cg+k, ("b", 44+tb), g+k, neg=(1,)))
        for k in (0, 2): L.append(pk("mul", T+k, g+k, ("b", 48+tb)))
        for k in (0, 2): L.append(pk("fma", u+k, cu+k, ("b", 44+tb), u+k, neg=(1,)))
        for e in range(4): L.append(f"v_exp_f32 v{T+e}, v{T+e}")
        for k in (0, 2): L.append(pk("mul", g+k, g+k, u+k))
        for k in (0, 2): L.append(pk("fma", T+k, T+k, ("b", 52+tb), ("b", 52+tb)))
        for e in range(4): L.append(f"v_rcp_f32 v{T+e}, v{T+e}")
        for k in (0, 2): L.append(pk("mul", g+k, g+k, T+k))
        L += [f"v_cvt_pk_bf16_f32 v{dst}, v{g}, v{g+1}", f"v_cvt_pk_bf16_f32 v{dst+1}, v{g+2}, v{g+3}"]
        return L
    ep = []
    for fr in range(2):
        for tb in range(4):
            o = acc(4*fr+1, tb)
            ep += silu(2*fr, tb, o) + silu(2*fr+1, tb, o+2)
            ep.append(("vm", ("H", fr), f"buffer_store_dwordx4 v[{o}:{o+3}], v28, s[8:11], s{84+fr} offen offset:{tb*1024} sc1"))
    ep += [("wvm", [("H", 0)]), ("vm", None, "buffer_store_dword v13, v12, s[8:11], s87 offen sc1")]
    for tp in range(2):
        o = acc(9, 2*tp)
        ep += silu(4, 2*tp, o) + silu(4, 2*tp+1, o+2)
        ep += [f"v_permlane16_swap_b32 v{o}, v{o+2}", f"v_permlane16_swap_b32 v{o+1}, v{o+3}"]
        ep.append(("vm", ("H", 2), f"buffer_store_dwordx4 v[{o}:{o+3}], v11, s[8:11], s86 offen offset:{tp*2048} sc1"))
    pre = sum((w2load(i) for i in range(7, 12)), [])
    sl = interleave(ep, pre, 8, len(ep) - 60)
    for i, x in enumerate(ep):
        A.it(x)
        for y in sl[i]: A.it(y)
    stamp(A, 3)
    A("s_waitcnt vmcnt(0)\nbuffer_store_dword v13, v12, s[8:11], s87 offen offset:88 sc1")
    A("s_branch PH2")

def common_setup(A):
    srd(A, 8, P["ws"], WS_END); srd(A, 28, P["dbg"], 256)
    A("s_lshl2_add_u32 s95, s2, s3\ns_mov_b32 s96, 0xffff0000\nv_lshlrev_b32 v28, 4, v1\nv_add_u32 v29, 4096, v28")
    A("s_and_b32 s32, s2, 7\ns_lshr_b32 s33, s2, 3")
    if int(OPT.get("map2", 0)) == 0:
        A("s_lshr_b32 s34, s33, 3\ns_lshl2_add_u32 s80, s32, s34\ns_and_b32 s81, s33, 7")
    else:
        A("s_lshr_b32 s34, s32, 1\ns_lshl_b32 s34, s34, 3\ns_lshr_b32 s35, s33, 2\ns_add_u32 s80, s34, s35\ns_and_b32 s34, s32, 1\ns_and_b32 s35, s33, 3\ns_lshl2_add_u32 s81, s34, s35")
    A(f"s_mul_i32 s32, s3, 24\ns_mul_i32 s33, s81, 96\ns_add_u32 s33, s33, s32\ns_mul_i32 s82, s33, 5120\ns_add_u32 s82, s82, {WS_W2P}")
    A(f"s_mul_i32 s33, s80, 96\ns_add_u32 s33, s33, s32\ns_lshl_b32 s83, s33, 12\ns_add_u32 s83, s83, {WS_H}")

S_SLOT = 49152; S_SCR = 3*S_SLOT
def gen_ssm(A):
    A.reset()
    A("s_lshl_b32 s32, s68, 8\ns_lshl_b32 s33, s72, 7\ns_add_u32 s32, s32, s33\ns_lshl_b32 s33, s71, 3\ns_add_u32 s32, s32, s33")
    A("v_and_b32 v2, 32, v1\nv_bfe_u32 v3, v1, 3, 1\nv_lshl_add_u32 v2, v3, 4, v2\nv_bfe_u32 v3, v1, 4, 1\nv_add3_u32 v2, v2, v3, s32\nv_mul_u32_u24 v2, 1280, v2")
    A("v_lshrrev_b32 v3, 4, v1\nv_xor_b32 v3, v3, v1\nv_and_b32 v3, 7, v3\nv_lshlrev_b32 v3, 4, v3\nv_xor_b32 v4, 64, v3\nv_add_u32 v5, v2, v3\nv_add_u32 v6, v2, v4")
    for ii in range(8): A(f"v_add_u32 v{10+ii}, {(64*(ii&1) + 2*(ii>>1))*1280 - 1024*(ii&3)}, v{5+(ii&1)}")
    A("s_lshl_b32 s32, s69, 6\ns_lshl_b32 s33, s71, 5\ns_add_u32 s32, s32, s33")
    A("v_lshrrev_b32 v2, 3, v1\nv_add_u32 v2, s32, v2\nv_mul_u32_u24 v2, 1280, v2\nv_add_u32 v5, v2, v3\nv_add_u32 v6, v2, v4")
    for i in range(4): A(f"v_add_u32 v{18+i}, {8*i*1280 - 1024*i}, v{5+(i&1)}")
    A("s_lshl_b32 s73, s3, 13\ns_lshl_b32 s74, s3, 12\ns_add_u32 s74, s74, 32768\ns_waitcnt lgkmcnt(0)")
    srd(A, 16, P["x"], SZ_X)
    A("s_cmp_eq_u32 s72, 0"); srd_sel(A, 12, P["bre"], P["bim"], SZ_B)
    def dma(u, hs=(0, 1)):
        b = (u % 3)*S_SLOT; L = []
        for h in hs:
            L += [f"s_add_u32 m0, s73, {b+4096*h}", f"s_movk_i32 s78, {u*128}"]
            for i in range(4): L.append(("vm", ("S", u), f"buffer_load_dwordx4 v{10+4*h+i}, s[16:19], s78 offen offset:{1024*i} lds"))
            L.append(f"s_add_u32 m0, s74, {b}")
            for i in range(2): L.append(("vm", ("S", u), f"buffer_load_dwordx4 v{18+2*h+i}, s[12:15], s78 offen offset:{1024*(2*h+i)} lds"))
        return L
    A("s_lshl_b32 s32, s69, 6\ns_lshl_b32 s33, s72, 5\ns_add_u32 s32, s32, s33\nv_and_b32 v2, 15, v1\nv_add_u32 v30, s32, v2\nv_lshlrev_b32 v2, 1, v30")
    for cb in range(2):
        for q, sp in enumerate((P["lre"], P["lim"], P["ldt"])):
            A.it(("vm", "P", f"global_load_ushort v{110+3*cb+q}, v2, s[{sp}:{sp+1}] offset:{32*cb}"))
    A.its(dma(0))
    common_setup(A)
    A("v_lshrrev_b32 v2, 4, v1\nv_and_b32 v3, 15, v1\nv_lshrrev_b32 v4, 1, v3\nv_xor_b32 v4, v4, v2\nv_lshlrev_b32 v4, 4, v4\nv_lshl_add_u32 v3, v3, 7, v4")
    A("s_lshl_b32 s32, s71, 14\ns_lshl_b32 s33, s72, 12\ns_add_u32 s33, s33, 32768")
    A("v_add_u32 v22, s32, v3\nv_xor_b32 v23, 64, v22\nv_add_u32 v120, s33, v3\nv_xor_b32 v121, 64, v120")
    for sl in (1, 2):
        for ks in range(2): A(f"v_add_u32 v{22+2*sl+ks}, {sl*S_SLOT}, v{22+ks}\nv_add_u32 v{120+2*sl+ks}, {sl*S_SLOT}, v{120+ks}")
    A.its(dma(1))
    A("s_lshl_b32 s32, s71, 2\nv_lshrrev_b32 v31, 4, v1\nv_add_u32 v31, s32, v31")
    A("s_lshl1_add_u32 s32, s69, s72\ns_lshl_b32 s33, s32, 1\ns_mul_i32 s34, s33, 52429\ns_lshr_b32 s34, s34, 19\ns_mul_i32 s34, s34, 14\ns_add_u32 s33, s33, s34\ns_add_u32 s33, s33, 14")
    A(f"s_lshl1_add_u32 s34, s68, s71\ns_mul_i32 s35, s34, 192\ns_add_u32 s33, s33, s35\ns_lshl_b32 s84, s33, 12\ns_add_u32 s84, s84, {WS_H}")
    A(f"s_lshl_b32 s87, s34, 9\ns_lshl2_add_u32 s87, s32, s87\ns_add_u32 s87, s87, {WS_FLG+176}")
    A("s_mul_i32 s32, s68, 10\ns_add_u32 s32, s32, s69\ns_lshl2_add_u32 s32, s32, s3\ns_lshr_b32 s33, s32, 3\ns_and_b32 s34, s32, 7")
    A("s_bitcmp0_b32 s33, 0"); srd_sel(A, 20, P["cre"], P["cim"], SZ_B)
    A("s_mul_i32 s99, s34, 102400\ns_lshr_b32 s35, s33, 1\ns_lshl_b32 s35, s35, 6\ns_add_u32 s99, s99, s35")
    A(f"s_mul_i32 s35, s33, 52429\ns_lshr_b32 s35, s35, 19\ns_mul_i32 s35, s35, 14\ns_add_u32 s33, s33, s35\ns_add_u32 s33, s33, 14\ns_mul_i32 s34, s34, 96\ns_add_u32 s33, s33, s34\ns_mul_i32 s100, s33, 5120\ns_add_u32 s100, s100, {WS_W2P}")
    A("s_cmp_lt_u32 s32, 160"); srd_sel(A, 24, P["bre"], P["bim"], SZ_B)
    A(f"s_cselect_b32 s33, 0, 160\ns_sub_u32 s33, s32, s33\ns_mul_i32 s97, s33, 5120\ns_lshl_b32 s98, s32, 4\ns_add_u32 s98, s98, {WS_CS}")
    c_ld = lines("v_and_b32 v2, 15, v1\nv_mul_u32_u24 v2, 1280, v2\nv_and_b32 v3, 48, v1\nv_add_u32 v2, v2, v3")
    for nb in range(5): c_ld += [f"s_add_u32 s75, s99, {nb*20480}", ("vm", "cl", f"buffer_load_dwordx4 a[{152+4*nb}:{155+4*nb}], v2, s[20:23], s75 offen")]
    c_s = [("wvm", ["cl"])]
    for nb in range(5): c_s.append(("vm", "side", f"buffer_store_dwordx4 a[{152+4*nb}:{155+4*nb}], v{28+(nb>>2)}, s[8:11], s100 offen offset:{(nb&3)*1024} sc1"))
    b_ld = lines("v_bfe_u32 v2, v1, 2, 2\nv_mul_u32_u24 v2, 1280, v2\nv_and_b32 v3, 3, v1\nv_lshl_add_u32 v2, v3, 4, v2\nv_lshrrev_b32 v3, 4, v1\nv_lshl_add_u32 v2, v3, 6, v2")
    for i in range(5): b_ld.append(("vm", "bl", f"buffer_load_dwordx4 a[{112+4*i}:{115+4*i}], v2, s[24:27], s97 offen offset:{256*i}"))
    b_c = [f"v_mov_b32 v{68+r}, 0x3f803f80" for r in range(4)] + [("wvm", ["bl"])]
    for i in range(5): b_c.append(f"{MF} v[116:119], v[68:71], a[{112+4*i}:{115+4*i}], " + ("v[116:119]" if i else "0"))
    b_c += lines("v_and_b32 v2, 51, v1\nv_lshlrev_b32 v2, 25, v2\nv_or_b32 v2, v2, v1\ns_nop 0\ns_nop 0\ns_nop 0")
    b_c += ["v_add_f32_dpp v116, v116, v116 quad_perm:[1,0,3,2] row_mask:0xf bank_mask:0xf", "v_add_f32_dpp v116, v116, v116 quad_perm:[2,3,0,1] row_mask:0xf bank_mask:0xf",
            ("vm", "side", "buffer_store_dword v116, v2, s[8:11], s98 offen sc1")]
    clr = lines("v_lshlrev_b32 v2, 8, v1\nv_lshlrev_b32 v3, 24, v1\nv_and_b32 v3, 0xfe000000, v3\nv_or_b32 v2, v2, v3\nv_mov_b32 v3, 0") + [("vm", "side", "buffer_store_dword v3, v2, s[8:11], s87 offen sc1")]
    clr += lines("s_mul_i32 s75, s68, 5120\ns_lshl_b32 s76, s69, 9\ns_add_u32 s75, s75, s76\nv_lshlrev_b32 v2, 3, v1\nv_mov_b32 v4, -1\nv_mov_b32 v5, -1") + [("vm", "side", "buffer_store_dwordx2 v[4:5], v2, s[8:11], s75 offen sc1")]
    st_ld, st_c = stats_job(32)
    NM = "LR LI CA CB L16R L16I L32R L32I L256R L256I QR QI PR PI T0 T1 CSR CSI".split()
    def Pm(cb): return dict(zip(NM, range(72+18*cb, 72+18*cb+18)))
    par_c = [("wvm", ["P"])]
    def csq(r, i, t): return lines(f"v_mul_f32 v{t}, v{i}, v{i}\nv_mul_f32 v{i}, v{r}, v{i}\nv_fma_f32 v{r}, v{r}, v{r}, -v{t}\nv_add_f32 v{i}, v{i}, v{i}")
    for cb in range(2):
        p = Pm(cb); i0 = 110 + 3*cb; t0, t1, t2, t3 = p['PR'], p['PI'], p['T0'], p['T1']
        par_c += lines(f"""v_lshlrev_b32 v{i0}, 16, v{i0}
v_lshlrev_b32 v{i0+1}, 16, v{i0+1}
v_lshlrev_b32 v{i0+2}, 16, v{i0+2}
v_mul_f32 v{t0}, 0x3fb8aa3b, v{i0+2}
v_exp_f32 v{t0}, v{t0}
v_cvt_pk_bf16_f32 v{t0}, v{t0}, v{t0}
v_and_b32 v{t0}, 0xffff0000, v{t0}
v_mul_f32 v{t1}, v{t0}, v{i0}
v_mul_f32 v{t2}, v{t0}, v{i0+1}
v_mul_f32 v{t1}, 0x3fb8aa3b, v{t1}
v_mul_f32 v{t2}, 0.15915494, v{t2}
v_exp_f32 v{t1}, v{t1}
v_fract_f32 v{t2}, v{t2}
v_cos_f32 v{p['LR']}, v{t2}
v_sin_f32 v{p['LI']}, v{t2}
v_mul_f32 v{p['LR']}, v{p['LR']}, v{t1}
v_mul_f32 v{p['LI']}, v{p['LI']}, v{t1}
v_add_f32 v{t0}, -1.0, v{p['LR']}
v_mul_f32 v{t1}, v{i0}, v{i0}
v_fmac_f32 v{t1}, v{i0+1}, v{i0+1}
v_rcp_f32 v{t1}, v{t1}
v_mul_f32 v{t2}, v{t0}, v{i0}
v_add_f32 v{t1}, v{t1}, v{t1}
v_fmac_f32 v{t2}, v{p['LI']}, v{i0+1}
v_mul_f32 v{p['CA']}, v{t2}, v{t1}
v_mul_f32 v{t2}, v{p['LI']}, v{i0}
v_fma_f32 v{t2}, -v{t0}, v{i0+1}, v{t2}
v_mul_f32 v{p['CB']}, v{t2}, v{t1}
v_mov_b32 v{p['L16R']}, v{p['LR']}
v_mov_b32 v{p['L16I']}, v{p['LI']}""")
        for _ in range(4): par_c += csq(p['L16R'], p['L16I'], t0)
        par_c += [f"v_mov_b32 v{p['L32R']}, v{p['L16R']}", f"v_mov_b32 v{p['L32I']}, v{p['L16I']}"] + csq(p['L32R'], p['L32I'], t0)
        par_c += lines(f"v_mov_b32 v{p['L256R']}, v{p['L32R']}\nv_mov_b32 v{p['L256I']}, v{p['L32I']}\nv_mov_b32 v{p['QR']}, 1.0\nv_mov_b32 v{p['QI']}, 0")
        for bit in range(3):
            par_c += lines(f"""v_and_b32 v{t0}, {1<<bit}, v31
v_cmp_ne_u32 vcc, 0, v{t0}
v_mul_f32 v{t0}, v{p['QR']}, v{p['L256R']}
v_fma_f32 v{t0}, -v{p['QI']}, v{p['L256I']}, v{t0}
v_mul_f32 v{t1}, v{p['QR']}, v{p['L256I']}
v_fmac_f32 v{t1}, v{p['QI']}, v{p['L256R']}
v_cndmask_b32 v{p['QR']}, v{p['QR']}, v{t0}, vcc
v_cndmask_b32 v{p['QI']}, v{p['QI']}, v{t1}, vcc""") + csq(p['L256R'], p['L256I'], t0)
    ep_ld = lines(f"v_lshlrev_b32 v2, 2, v0\ns_lshl_b32 s75, s68, 10\ns_add_u32 s75, s75, {WS_STAT}") + [("vm", "ep", "buffer_load_dword v32, v2, s[8:11], s75 offen sc1")]
    ep_ld += lines(f"v_lshlrev_b32 v2, 2, v30\ns_mov_b32 s75, {WS_CS}")
    for cb in range(2):
        for im in range(2): ep_ld.append(("vm", "ep", f"buffer_load_dword v{Pm(cb)['CSR']+im}, v2, s[8:11], s75 offen offset:{64*cb+2560*im} sc1"))
    ep_c = [("wvm", ["ep"])] + lines(f"""v_and_b32 v33, 0xffff0000, v32
v_rcp_f32 v33, v33
v_lshlrev_b32 v32, 16, v32
v_and_b32 v2, 15, v0
v_bfe_u32 v3, v0, 4, 1
v_lshl_add_u32 v2, v2, 1, v3
v_and_b32 v3, 0xe0, v0
v_add_u32 v2, v2, v3
v_mul_f32 v32, v32, v33
v_lshlrev_b32 v2, 2, v2
v_add_u32 v2, {S_SCR}, v2""") + [("ds", None, "ds_write_b32 v2, v33"), ("ds", None, "ds_write_b32 v2, v32 offset:1024")]
    ACC = 128
    def acc(b, c): return ACC + (c*8+b)*4
    def Xr(par, b): return par*48 + b*4
    def Br(par, c): return par*48 + 32 + c*4
    def reads(s):
        par = s & 1; sl = (s >> 1) % 3; L = []
        for c in range(4): L.append(("ds", None, f"ds_read_b128 a[{Br(par,c)}:{Br(par,c)+3}], v{120+2*sl+(s&1)} offset:{(c>>1)*8192 + (c&1)*2048}"))
        for b in range(8): L.append(("ds", None, f"ds_read_b128 a[{Xr(par,b)}:{Xr(par,b)+3}], v{22+2*sl+(s&1)} offset:{b*2048}"))
        return L
    h = len(st_c)//2; q = len(par_c)//4
    sched = {0: dma(2, (0,)) + b_ld + c_ld + clr, 1: dma(2, (1,)) + st_ld, 2: dma(3, (0,)) + b_c + c_s, 3: dma(3, (1,)) + st_c[:h], 4: dma(4, (0,)) + st_c[h:], 5: dma(4, (1,)) + dma(5, (0,)),
             6: dma(5, (1,)), 7: prep_signal() + dma(6, (0,)), 8: dma(6, (1,)) + par_c[:q], 9: dma(7, (0,)) + par_c[q:2*q], 10: dma(7, (1,)) + par_c[2*q:3*q], 11: dma(8, (0,)) + par_c[3*q:],
             12: dma(8, (1,)), 13: dma(9, (0,)), 14: dma(9, (1,)), 15: prep_poll(), 16: ep_ld + w2load(0), 17: w2load(1) + w2load(2), 18: ep_c + w2load(3), 19: w2load(4) + w2load(5)}
    A.sync([("S", 0)]); stamp(A, 1)
    A.its(reads(0))
    for s in range(20):
        tags = [("S", (s+1) >> 1)] if (s < 19 and s & 1) else []
        if s == 7: tags.append("side")
        A.sync(tags, barrier=bool(s & 1))
        if s == 16: prep_check(A, "SP")
        par = s & 1; mf = []
        for b in range(8):
            for c in range(4):
                r = acc(b, c); mf.append(f"{MF} v[{r}:{r+3}], a[{Xr(par,b)}:{Xr(par,b)+3}], a[{Br(par,c)}:{Br(par,c)+3}], " + (f"v[{r}:{r+3}]" if s else "0"))
        A.weave(mf, [(reads(s+1) if s < 19 else [], 0, 24), (sched.get(s, []), 0, 31)])
    stamp(A, 2)
    def gre(cb, j): return acc(0, cb) + 2*j
    def gim(cb, j): return acc(0, 2+cb) + 2*j
    A(f"v_lshlrev_b32 v2, 7, v31\nv_add_u32 v2, {S_SCR}, v2")
    def rload(c):
        b = 32 + 16*(c & 1)
        return [("ds", ("R", c), f"ds_read_b128 v[{b+4*k+8*t}:{b+4*k+8*t+3}], v2 offset:{1024*t + 32*c + 16*k}") for t in range(2) for k in range(2)]
    e1 = rload(0) + rload(1)
    for j in range(16):
        c = j >> 2; b = 32 + 16*(c & 1) + 2*(j & 3)
        if j & 3 == 0: e1.append(("wds", [("R", c)]))
        for cb in range(2): e1 += [pk("mul", gre(cb,j), gre(cb,j), b), pk("mul", gim(cb,j), gim(cb,j), b)]
        for cb in range(2):
            p = Pm(cb); e1 += [pk("fma", gre(cb,j), b+8, ("b", p['CSR']), gre(cb,j), neg=(0,)), pk("fma", gim(cb,j), b+8, ("b", p['CSI']), gim(cb,j), neg=(0,))]
        if j & 3 == 3 and c + 2 < 4: e1 += rload(c+2)
        if j:
            for cb in range(2):
                p = Pm(cb); e1 += [pk("fma", gre(cb,j), gre(cb,j-1), ("b", p['LR']), gre(cb,j)), pk("fma", gim(cb,j), gim(cb,j-1), ("b", p['LR']), gim(cb,j))]
            for cb in range(2):
                p = Pm(cb); e1 += [pk("fma", gre(cb,j), gim(cb,j-1), ("b", p['LI']), gre(cb,j), neg=(1,)), pk("fma", gim(cb,j), gre(cb,j-1), ("b", p['LI']), gim(cb,j))]
    pre = w2load(6) + w2load(7) + w2load(8)
    sl = interleave(e1, pre, 10, len(e1))
    for i, x in enumerate(e1):
        A.it(x)
        for y in sl[i]: A.it(y)
    def cfma(dr, di, mr, mi, xr, xi, ar, ai):
        A(f"v_fma_f32 v{dr}, v{mr}, v{xr}, v{ar}\nv_fma_f32 v{di}, v{mr}, v{xi}, v{ai}\nv_fma_f32 v{dr}, -v{mi}, v{xi}, v{dr}\nv_fma_f32 v{di}, v{mi}, v{xr}, v{di}")
    SEGB = S_SCR + 2048
    A(f"v_and_b32 v2, 63, v30\nv_lshlrev_b32 v2, 3, v2\nv_add_u32 v2, {SEGB}, v2\nv_lshl_add_u32 v3, v31, 9, v2")
    for cb in range(2):
        p = Pm(cb); cfma(64+2*cb, 65+2*cb, p['L16R'], p['L16I'], gre(cb,15), gim(cb,15), gre(cb,15)+1, gim(cb,15)+1)
        A(f"ds_write_b64 v3, v[{64+2*cb}:{65+2*cb}] offset:{128*cb}")
    A("s_waitcnt lgkmcnt(0)\ns_barrier")
    for s in range(7):
        for cb in range(2): A(f"ds_read_b64 v[{32+4*s+2*cb}:{33+4*s+2*cb}], v2 offset:{512*s+128*cb}")
    for cb in range(2): A(f"v_mov_b32 v{Pm(cb)['PR']}, 0\nv_mov_b32 v{Pm(cb)['PI']}, 0")
    A("v_lshlrev_b32 v3, 3, v30\ns_mul_i32 s75, s68, 5120\ns_waitcnt lgkmcnt(0)"); A.dd = A.nd
    for s in range(7):
        A(f"v_cmp_lt_u32 vcc, {s}, v31\ns_and_b64 exec, exec, vcc")
        for cb in range(2):
            p = Pm(cb); a = 32+4*s+2*cb
            if s: cfma(a, a+1, p['L32R'], p['L32I'], p['PR'], p['PI'], a, a+1)
            A(f"v_mov_b32 v{p['PR']}, v{a}\nv_mov_b32 v{p['PI']}, v{a+1}")
    A("s_cbranch_execz SSM_nopub")
    for cb in range(2):
        p = Pm(cb); a = 64+2*cb
        cfma(a, a+1, p['L32R'], p['L32I'], p['PR'], p['PI'], a, a+1)
        A(f"v_min_u32 v{a}, 0xfffffffe, v{a}\nv_min_u32 v{a+1}, 0xfffffffe, v{a+1}")
        A(f"buffer_store_dwordx2 v[{a}:{a+1}], v3, s[8:11], s75 offen offset:{128*cb} sc1")
    A.label("SSM_nopub")
    A("s_mov_b64 exec, -1")
    for cb in range(2): A(f"v_mov_b32 v{64+2*cb}, v{gre(cb,15)}\nv_mov_b32 v{65+2*cb}, v{gim(cb,15)}")
    e2 = []
    for j in range(16):
        for cb in range(2):
            p = Pm(cb); r, i = gre(cb,j), gim(cb,j); t = 32+4*cb
            e2 += [pk("mul", t, i, ("b", p['CB'])), pk("mul", t+2, r, ("b", p['CB'])), pk("fma", r, r, ("b", p['CA']), t, neg=(2,)), pk("fma", i, i, ("b", p['CA']), t+2, neg=(1, 2))]
    pre = w2load(9) + w2load(10) + w2load(11)
    sl = interleave(e2, pre, 0, len(e2))
    for i, x in enumerate(e2):
        A.it(x)
        for y in sl[i]: A.it(y)
    stamp(A, 3)
    A("s_sub_u32 s75, s75, 35840\nv_add_u32 v3, s75, v3")
    for i in range(7): A(f"v_add_u32 v{10+i}, {5120*i}, v3")
    A("s_mov_b32 s76, 0x40000")
    A.label("SSM_poll")
    for i in range(7):
        for cb in range(2): A(f"buffer_load_dwordx2 v[{32+4*i+2*cb}:{33+4*i+2*cb}], v{10+i}, s[8:11], 0 offen offset:{128*cb} sc1")
    A("s_waitcnt vmcnt(0)\nv_max3_u32 v2, v32, v33, v34")
    for r in range(35, 59, 2): A(f"v_max3_u32 v2, v2, v{r}, v{r+1}")
    A("v_max_u32 v2, v2, v59\nv_cmp_eq_u32 vcc, -1, v2\ns_sub_u32 s76, s76, 1\ns_cbranch_scc1 SSM_go\ns_cbranch_vccnz SSM_poll")
    A.label("SSM_go")
    stamp(A, 4)
    for i in range(1, 7):
        for cb in range(2):
            p = Pm(cb); a = 32+4*i+2*cb; cfma(a, a+1, p['L256R'], p['L256I'], a-4, a-3, a, a+1)
    for cb in range(2):
        p = Pm(cb); a = 56+2*cb; w = 12+8*cb
        cfma(p['PR'], p['PI'], p['QR'], p['QI'], a, a+1, p['PR'], p['PI'])
        cfma(64+2*cb, 65+2*cb, p['L16R'], p['L16I'], p['PR'], p['PI'], 64+2*cb, 65+2*cb)
        for k, (xr, xi) in enumerate(((p['PR'], p['PI']), (64+2*cb, 65+2*cb))):
            A(f"v_mul_f32 v{p['T0']}, v{p['CB']}, v{xi}\nv_mul_f32 v{p['T1']}, v{p['CB']}, v{xr}")
            A(f"v_fma_f32 v{w+k}, v{p['CA']}, v{xr}, -v{p['T0']}\nv_fma_f32 v{w+2+k}, -v{p['CA']}, v{xi}, -v{p['T1']}")
    PITCH = 288; IMG = 32*PITCH
    A(f"s_mul_i32 s75, s3, {2*IMG}\nv_and_b32 v2, 15, v1\nv_mul_u32_u24 v2, {PITCH}, v2\nv_lshrrev_b32 v3, 4, v1\nv_lshl_add_u32 v2, v3, 6, v2\nv_add_u32 v10, s75, v2")
    A(f"v_bfe_u32 v2, v1, 2, 2\nv_lshl_add_u32 v2, v3, 3, v2\nv_mul_u32_u24 v2, {PITCH}, v2\nv_and_b32 v3, 3, v1\nv_lshl_add_u32 v2, v3, 3, v2\nv_add_u32 v11, s75, v2")
    for j in range(16):
        cur = [12+8*cb+4*(j & 1) for cb in range(2)]; nxt = [12+8*cb+4*((j+1) & 1) for cb in range(2)]
        for cb in range(2):
            p = Pm(cb); A(pk("mul", nxt[cb], cur[cb], ("b", p['LR']))); A(pk("mul", nxt[cb]+2, cur[cb]+2, ("b", p['LR'])))
        for cb in range(2):
            p = Pm(cb); A(pk("fma", nxt[cb], cur[cb]+2, ("b", p['LI']), nxt[cb])); A(pk("fma", nxt[cb]+2, cur[cb], ("b", p['LI']), nxt[cb]+2, neg=(1,)))
        for cb in range(2):
            A(pk("add", gre(cb,j), gre(cb,j), nxt[cb])); A(pk("add", gim(cb,j), gim(cb,j), nxt[cb]+2))
        if j & 1:
            k = (j >> 1) & 3
            for cb in range(2):
                for im in range(2):
                    g = gim if im else gre
                    for hh in range(2): A(f"v_cvt_pk_bf16_f32 v{32+16*cb+8*im+4*hh+k}, v{g(cb,j-1)+hh}, v{g(cb,j)+hh}")
            if j & 7 == 7:
                for cb in range(2):
                    for im in range(2):
                        for hh in range(2):
                            r = 32+16*cb+8*im+4*hh
                            A(f"ds_write_b128 v10, v[{r}:{r+3}] offset:{im*IMG + cb*16*PITCH + hh*32 + (j>>3)*16}")
    A(f"s_add_u32 s85, s84, 4096\ns_add_u32 s86, s84, {96*4096}\ns_add_u32 s75, s84, {97*4096}")
    A("v_lshlrev_b32 v12, 8, v1\nv_lshlrev_b32 v13, 24, v1\nv_and_b32 v13, 0xfe000000, v13\nv_or_b32 v12, v12, v13\nv_mov_b32 v13, 1")
    n = 0
    for im in range(2):
        for tb in range(8):
            r = 128 + 4*n; n += 1
            for hh in range(2): A(f"ds_read_b64_tr_b16 v[{r+2*hh}:{r+2*hh+1}], v11 offset:{im*IMG + hh*4*PITCH + tb*32}")
    n = 0
    for im in range(2):
        for tb in range(8):
            r = 128 + 4*n; so = (84, 85, 86, 75)[im + 2*(tb >> 2)]
            A(f"s_waitcnt lgkmcnt({min(15, 30-2*n)})\nbuffer_store_dwordx4 v[{r}:{r+3}], v28, s[8:11], s{so} offen offset:{(tb&3)*1024} sc1"); n += 1
    stamp(A, 5)
    A("s_waitcnt vmcnt(0)\nbuffer_store_dword v13, v12, s[8:11], s87 offen sc1")

def gen_ph2(A):
    A.reset(); D = 4
    A.label("PH2")
    ACC = 176; HB = 112
    def acc(nb, tb): return ACC + (tb*5+nb)*4
    def Hr(i, tb): return HB + (i % D)*16 + tb*4
    A(f"s_lshl_b32 s84, s80, 8\ns_add_u32 s84, s84, {WS_FLG}\nv_lshlrev_b32 v10, 2, v1")
    def poll(): return [("vm", "fl", "buffer_load_dword v9, v10, s[8:11], s84 offen sc1")]
    def check(name, lo, n):
        A.it(("wvm", ["fl"]))
        A(f"s_bfm_b64 s[32:33], {n}, {lo}\nv_cmp_ne_u32 vcc, 0, v9\ns_and_b64 s[34:35], vcc, s[32:33]\ns_cmp_eq_u64 s[34:35], s[32:33]\ns_cbranch_scc1 {name}_ok\ns_mov_b32 s76, 0x40000")
        A.label(f"{name}_l")
        A(f"buffer_load_dword v9, v10, s[8:11], s84 offen sc1\ns_waitcnt vmcnt(0)\nv_cmp_ne_u32 vcc, 0, v9\ns_and_b64 s[34:35], vcc, s[32:33]\ns_sub_u32 s76, s76, 1\ns_cbranch_scc1 {name}_ok\ns_cmp_eq_u64 s[34:35], s[32:33]\ns_cbranch_scc0 {name}_l")
        A.label(f"{name}_ok")
    def hload(i):
        L = [f"s_add_u32 s85, s83, {i*4096}"]
        if i == 5: L += ["s_cmp_ge_u32 s3, 2", f"s_cselect_b32 s85, {hex(OOB)}, s85"]
        for tb in range(4): L.append(("vm", ("h", i), f"buffer_load_dwordx4 v[{Hr(i,tb)}:{Hr(i,tb)+3}], v28, s[8:11], s85 offen offset:{tb*1024} sc1"))
        return L
    A.its(poll())
    srd(A, 12, P["dsk"], 1280); srd(A, 20, P["out"], SZ_OUT)
    A("s_lshl_b32 s32, s80, 6\ns_lshl_b32 s33, s3, 4\ns_add_u32 s32, s32, s33\nv_lshrrev_b32 v2, 2, v1\nv_add_u32 v2, s32, v2\nv_lshlrev_b32 v15, 2, v2\nv_mul_u32_u24 v2, 640, v2")
    A("s_mul_i32 s32, s81, 80\nv_and_b32 v3, 3, v1\nv_lshlrev_b32 v3, 2, v3\nv_add_u32 v3, s32, v3\nv_add_u32 v2, v2, v3")
    A("v_lshlrev_b32 v12, 1, v2\nv_lshlrev_b32 v13, 2, v2\nv_lshlrev_b32 v14, 1, v3")
    check("C0", 0, 22)
    stamp(A, 6)
    for i in range(D-1): A.its(hload(i))
    fin_ld = [f"s_mov_b32 s75, {WS_STAT}", ("vm", "fin", "buffer_load_dword v16, v15, s[8:11], s75 offen sc1")]
    for nb in range(5):
        fin_ld.append(("vm", "fin", f"buffer_load_dwordx2 v[{32+2*nb}:{33+2*nb}], v12, s[16:19], 0 offen offset:{32*nb}"))
        fin_ld.append(("vm", "fin", f"buffer_load_dwordx2 v[{42+2*nb}:{43+2*nb}], v14, s[12:15], 0 offen offset:{32*nb}"))
    fin_c = [("wvm", ["fin"]), "v_and_b32 v17, 0xffff0000, v16", "v_rcp_f32 v17, v17", "v_lshlrev_b32 v16, 16, v16"]
    for k in range(10):
        o = 52+2*k
        fin_c += [f"v_lshlrev_b32 v{o}, 16, v{32+k}", f"v_and_b32 v{o+1}, 0xffff0000, v{32+k}", f"v_lshlrev_b32 v18, 16, v{42+k}", f"v_and_b32 v19, 0xffff0000, v{42+k}",
                  pk("add", 20, o, ("b", 16), neg=(1,)), pk("mul", 18, 18, ("b", 17)), pk("fma", o, 20, 18, o)]
    fin_c += lines("v_lshrrev_b32 v2, 4, v1\nv_lshlrev_b32 v3, 2, v2\nv_xor_b32 v3, v3, v1\nv_lshlrev_b32 v3, 4, v3\ns_mul_i32 s75, s3, 20480\nv_add_u32 v22, s75, v3")
    fin_c += lines("v_and_b32 v2, 3, v1\nv_lshrrev_b32 v4, 2, v1\nv_lshlrev_b32 v5, 2, v2\nv_xor_b32 v4, v4, v5\nv_lshl_add_u32 v4, v2, 4, v4\nv_lshlrev_b32 v4, 4, v4\ns_mul_i32 s75, s3, 5120\nv_add_u32 v23, s75, v4\nv_add_u32 v24, 40960, v23")
    wl = sum((w2load(i) for i in range(12, 24)), [])
    per = 4
    q = (len(fin_c)+3)//4
    for i in range(24):
        tags = [("h", i)] + ([("w2", i)] if i >= 12 else [])
        A.it(("wvm", tags))
        if i == 3: check("C1", 22, 22)
        if i == 11: check("C2", 44, 20)
        mf = []
        for nb in range(5):
            for tb in range(4):
                c = acc(nb, tb); w = w2reg(i) + 4*nb
                mf.append(f"{MF} v[{c}:{c+3}], a[{w}:{w+3}], v[{Hr(i,tb)}:{Hr(i,tb)+3}], " + (f"v[{c}:{c+3}]" if i else "0"))
        st = []
        if i in (2, 10): st += poll()
        if i+D-1 < 24: st += hload(i+D-1)
        if i >= 1: st += wl[(i-1)*per:i*per]
        if i == 4: st += fin_ld
        if 19 <= i < 23: st += fin_c[(i-19)*q:(i-18)*q]
        A.weave(mf, [(st, 0, 19)])
    stamp(A, 7)
    A("s_barrier")
    for k in range(20): A(f"ds_write_b128 v22, v[{ACC+4*k}:{ACC+4*k+3}] offset:{k*1024}")
    A("s_waitcnt lgkmcnt(0)\ns_barrier")
    for nb in range(5):
        for w in range(4):
            r = ACC + (nb*4+w)*4
            A(f"ds_read_b128 v[{r}:{r+3}], v{23+(w>>1)} offset:{(w&1)*20480 + nb*1024}")
    for nb in range(5):
        A(f"s_waitcnt lgkmcnt({min(15, 16-4*nb)})")
        r = ACC + nb*16; o = 52+4*nb
        for k in (0, 2): A(pk("add", r+k, r+k, r+4+k)); A(pk("add", r+8+k, r+8+k, r+12+k))
        for k in (0, 2): A(pk("add", o+k, o+k, r+k))
        for k in (0, 2): A(pk("add", o+k, o+k, r+8+k))
        A(f"buffer_store_dwordx4 v[{o}:{o+3}], v13, s[20:23], 0 offen offset:{64*nb}")
    if TS:
        A("s_add_u32 s94, s94, 0x10000"); stamp(A, 0)

def gen():
    A = E()
    A("s_cmp_ge_u32 s2, 256\ns_cbranch_scc1 K_end")
    A("s_load_dwordx16 s[36:51], s[0:1], 0\ns_load_dwordx16 s[52:67], s[0:1], 64")
    A("v_and_b32 v1, 63, v0\nv_lshrrev_b32 v2, 6, v0\ns_and_b32 s32, s2, 7\nv_readfirstlane_b32 s3, v2")
    A("s_lshr_b32 s33, s2, 3\ns_lshr_b32 s34, s32, 2\ns_and_b32 s35, s32, 3\ns_and_b32 s71, s3, 1\ns_lshr_b32 s72, s3, 1")
    if TS:
        A("s_lshl2_add_u32 s94, s2, s3\ns_lshl_b32 s94, s94, 6\ns_waitcnt lgkmcnt(0)"); stamp(A, 0)
    A("s_cmp_eq_u32 s35, 3\ns_cselect_b32 s75, 16, 8\ns_cmp_lt_u32 s33, s75\ns_cbranch_scc1 K_ssm")
    A("s_sub_u32 s33, s33, s75\ns_and_b32 s68, s33, 7\ns_lshl_b32 s34, s34, 3\ns_add_u32 s68, s68, s34\ns_lshr_b32 s69, s33, 3\ns_mul_i32 s35, s35, 3\ns_add_u32 s69, s69, s35")
    gen_ffn(A)
    A.label("K_ssm")
    A("s_and_b32 s68, s33, 3\ns_lshl2_add_u32 s68, s34, s68\ns_lshr_b32 s69, s33, 2\ns_lshl1_add_u32 s69, s35, s69")
    gen_ssm(A)
    gen_ph2(A)
    A.label("K_end"); A("s_endpgm")
    return A.L

def main():
    ref = open(f"cdna_kernels/{NAME}.s.ref").read().split("\n")
    hdr = [l for l in ref if l.startswith(";") and "@launch" not in l and "Override" not in l and "grid=ceil" not in l]
    out = "\n".join(hdr) + "\n; @launch grid=(256,1,1) block=(256,1,1) lds=163840\n"
    out += '.amdgcn_target "amdgcn-amd-amdhsa--gfx950"\n'
    out += kernel_text(NAME + "_kernel", hazard_pass(gen(), "v" in OPT)) + kd(NAME + "_kernel", 256, 256, 102)
    open(sys.argv[1], "w").write(out)
main()
```

```python
import sys
from asmlib import *
NAME = "parallel_sum__ssm_conv_s5__glu_gated_swiglu__prompt"
OPT = dict(a.split("=") for a in sys.argv[2:])
TS = int(OPT.get("ts", 0))
WS_AGG = 0; WS_EPOCH = 0xC000; WS_CSB = 0x10000; WS_CS = 0x1C000; WS_PREP = 0x28000; WS_FLG = 0x40000; WS_STAT = 0x80000; WS_H = 0x100000; WS_W2P = 0xE00000; WS_END = 0x11C0000; WS_TS = 0x1500000
SZ_X = 2048*640*2; SZ_B = 640*640*2; SZ_W = 640*1728*2; SZ_OUT = 2048*640*4
OOB = 0x7F000000
P = dict(x=36, lre=38, lim=40, bre=42, bim=44, cre=46, cim=48, ldt=50, dsk=52, w1=56, w3=58, w2=60, out=62, dbg=64, ws=66)
MF = "v_mfma_f32_16x16x32_bf16"

class E(Asm):
    def __init__(self): super().__init__(); self.reset()
    def reset(self): self.nv = 0; self.tv = {}; self.dv = 0; self.nd = 0; self.td = {}; self.dd = 0
    def vmw(self, tags):
        last = max(self.tv[t] for t in tags)
        if last <= self.dv: return None
        self.dv = last; return min(63, self.nv - last)
    def dsw(self, tags):
        last = max(self.td[t] for t in tags)
        if last <= self.dd: return None
        n = min(15, self.nd - last); self.dd = self.nd - n; return n
    def it(self, x):
        if isinstance(x, str): self(x)
        elif x[0] == "vm": self.nv += 1; self.tv[x[1]] = self.nv; self(x[2])
        elif x[0] == "ds": self.nd += 1; self.td[x[1]] = self.nd; self(x[2])
        elif x[0] == "wvm":
            n = self.vmw(x[1])
            if n is not None: self(f"s_waitcnt vmcnt({n})")
        elif x[0] == "wds":
            n = self.dsw(x[1])
            if n is not None: self(f"s_waitcnt lgkmcnt({n})")
        elif x[0] == "fn": x[1]()
    def its(self, L):
        for x in L: self.it(x)
    def sync(self, vtags, barrier=True):
        n = self.vmw(vtags) if vtags else None
        self.dd = self.nd
        self((f"s_waitcnt vmcnt({n}) lgkmcnt(0)" if n is not None else "s_waitcnt lgkmcnt(0)"))
        if barrier: self("s_barrier")
    def weave(self, mf, streams):
        sl = [interleave(mf, it, lo, hi) for it, lo, hi in streams if it]
        for i, m in enumerate(mf):
            self(m)
            for s in sl:
                for x in s[i]: self.it(x)
def lines(s): return [l.strip() for l in s.split("\n") if l.strip()]
def srd(A, d, lo, size):
    A(f"s_mov_b32 s{d}, s{lo}\ns_mov_b32 s{d+1}, s{lo+1}\ns_mov_b32 s{d+2}, {hex(size)}\ns_mov_b32 s{d+3}, 0x20000")
def srd_sel(A, d, lo0, lo1, size):
    A(f"s_cselect_b32 s{d}, s{lo0}, s{lo1}\ns_cselect_b32 s{d+1}, s{lo0+1}, s{lo1+1}\ns_mov_b32 s{d+2}, {hex(size)}\ns_mov_b32 s{d+3}, 0x20000")
def stamp(A, slot):
    if not TS: return
    A(f"s_memrealtime s[90:91]\ns_memtime s[88:89]\ns_waitcnt lgkmcnt(0)\ns_add_u32 s92, s94, {WS_TS + slot*8}")
    A.dd = A.nd
    A(f"v_mov_b32 v6, s90\nv_mov_b32 v7, s88\nv_mov_b32 v8, s92"); A.it(("vm", None, "global_store_dwordx2 v8, v[6:7], s[66:67]"))
def tick(A, idx, reg):
    if TS < 2: return
    if idx: A(f"v_writelane_b32 v{reg}, s88, {idx-1}")
    A("s_memtime s[88:89]")
def ptick(A, idx, reg):
    if TS < 2: return
    A(f"s_memtime s[88:89]\ns_waitcnt lgkmcnt(0)\nv_writelane_b32 v{reg}, s88, {idx}")
def tockdump(A, n, reg, area):
    if TS < 2: return
    A(f"s_waitcnt lgkmcnt(0)\nv_writelane_b32 v{reg}, s88, {n}\ns_lshl_b32 s92, s95, 8\ns_add_u32 s92, s92, {WS_TS + area}\nv_lshlrev_b32 v8, 2, v1\nv_add_u32 v8, s92, v8")
    A.it(("vm", None, f"global_store_dword v8, v{reg}, s[66:67]"))
def bc(n, which, hi=False):
    lo = [0]*n; h = [1]*n
    for w in which:
        if isinstance(w, tuple): lo[w[0]] = 1
        else: h[w] = 0
    s = ""
    if any(lo): s += " op_sel:[" + ",".join(map(str, lo)) + "]"
    s += " op_sel_hi:[" + ",".join(map(str, h)) + "]"
    return s
def B(r):
    return f"v[{r & ~1}:{(r & ~1)+1}]", (r & 1)
def pk(op, d, *src, neg=()):
    t = []; w = []
    src = list(src)
    if isinstance(src[1], tuple) and src[1][1] & 1:
        src[0], src[1] = src[1], src[0]; neg = tuple({0: 1, 1: 0}.get(n, n) for n in neg)
    for i, s in enumerate(src):
        if isinstance(s, tuple):
            x, hi = B(s[1]); t.append(x); w.append((i,) if hi else i)
        else:
            assert s % 2 == 0; t.append(f"v[{s}:{s+1}]")
    assert d % 2 == 0
    m = bc(len(src), w)
    if neg:
        nn = ",".join("1" if i in neg else "0" for i in range(len(src))); m += f" neg_lo:[{nn}] neg_hi:[{nn}]"
    return f"v_pk_{op}_f32 v[{d}:{d+1}], " + ", ".join(t) + m

def stats_job(R):
    L0, U, T = R, R+10, R+30
    ld = [f"v_mov_b32 v9, {WS_EPOCH}", ("vm", "st", "global_load_dword v9, v9, s[66:67] sc1")]
    for i in range(5): ld.append(("vm", "st", f"buffer_load_dwordx2 v[{L0+2*i}:{L0+2*i+1}], v{T}, s[16:19], s75 offen offset:{256*i}"))
    c = [("wvm", ["st"])]
    for i in range(10): c += [f"v_lshlrev_b32 v{U+2*i}, 16, v{L0+i}", f"v_and_b32 v{U+2*i+1}, 0xffff0000, v{L0+i}"]
    def red(v, t):
        o = [f"v_add_f32 v{v}, v{v}, v{v+1}"]
        for r in (8, 4, 2, 1): o.append(f"v_add_f32_dpp v{v}, v{v}, v{v} row_ror:{r} row_mask:0xf bank_mask:0xf")
        o += [f"v_mov_b32 v{t}, v{v}", f"v_permlane16_swap_b32 v{v}, v{t}", f"v_add_f32 v{v}, v{v}, v{t}", f"v_mul_f32 v{v}, 0x3acccccd, v{v}"]
        return o
    c.append(pk("add", T, U, U+2))
    for i in range(2, 10): c.append(pk("add", T, T, U+2*i))
    c += red(T, T+1)
    for i in range(10): c.append(pk("add", U+2*i, U+2*i, ("b", T), neg=(1,)))
    c.append(pk("mul", T+2, U, U))
    for i in range(1, 10): c.append(pk("fma", T+2, U+2*i, U+2*i, T+2))
    c += red(T+2, T+3)
    c += lines(f"""v_cvt_pk_bf16_f32 v{T}, v{T}, v{T+2}
v_and_b32 v{T+2}, 0xffff0000, v{T}
v_add_f32 v{T+2}, 0x3727c5ac, v{T+2}
v_cvt_pk_bf16_f32 v{T+2}, v{T+2}, v{T+2}
v_and_b32 v{T+2}, 0xffff0000, v{T+2}
v_sqrt_f32 v{T+2}, v{T+2}
v_and_b32 v{T}, 0xffff, v{T}
v_cvt_pk_bf16_f32 v{T+2}, v{T+2}, v{T+2}
v_readfirstlane_b32 s96, v9
v_and_b32 v{T+2}, 0xffff0000, v{T+2}
v_or_b32 v{T}, v{T+2}, v{T}
v_lshlrev_b32 v{T+1}, 2, v1
s_add_u32 s96, s96, 1
s_lshl_b32 s75, s95, 8
s_add_u32 s75, s75, {WS_STAT}""")
    c.append(("vm", "side1", f"buffer_store_dword v{T}, v{T+1}, s[8:11], s75 offen sc1"))
    return ld, c
def prep_signal(lvl):
    return lines(f"v_lshlrev_b32 v2, 20, v0\nv_and_b32 v2, 0xfe000000, v2\nv_lshl_add_u32 v2, v1, 2, v2\ns_add_u32 s75, s96, {lvl-1}\nv_mov_b32 v3, s75\ns_lshl_b32 s75, s2, 7\ns_add_u32 s75, s75, {WS_PREP}") + \
        [("vm", None, "buffer_store_dword v3, v2, s[8:11], s75 offen sc1")]
def prep_poll(): return ["v_lshlrev_b32 v9, 7, v0", f"s_mov_b32 s75, {WS_PREP}", ("vm", "prep", "buffer_load_dword v9, v9, s[8:11], s75 offen sc1")]
def prep_check(A, name, lvl):
    t = "v_subrev_u32 v9, s96, v9\n" + ("v_cmp_lt_u32 vcc, 1, v9" if lvl == 1 else "v_cmp_ne_u32 vcc, 1, v9")
    A.it(("wvm", ["prep"]))
    A(f"{t}\ns_cbranch_vccz {name}_ok\ns_mov_b32 s76, 0x40000\ns_mov_b32 s75, {WS_PREP}")
    A.label(f"{name}_l")
    A(f"s_sleep 1\nv_lshlrev_b32 v9, 7, v0\nbuffer_load_dword v9, v9, s[8:11], s75 offen sc1\ns_waitcnt vmcnt(0)\n{t}\ns_sub_u32 s76, s76, 1\ns_cbranch_scc1 {name}_ok\ns_cbranch_vccnz {name}_l")
    A.label(f"{name}_ok")
def w2reg(i):
    i %= 12
    return 112 + 20*i if i < 7 else 20*(i-7)
def w2load(i):
    L = [f"s_add_u32 s79, s82, {i*5120}"]
    if i == 5: L += ["s_cmp_ge_u32 s3, 2", f"s_cselect_b32 s79, {hex(OOB)}, s79"]
    for nb in range(5):
        r = w2reg(i) + 4*nb
        L.append(("vm", ("w2", i), f"buffer_load_dwordx4 a[{r}:{r+3}], v{28+(nb>>2)}, s[8:11], s79 offen offset:{(nb&3)*1024} sc1"))
    return L


def spread(A, main, extra, lo=0, hi=None):
    sl = interleave(main, extra, lo, hi) if extra else [[] for _ in main]
    for i, x in enumerate(main):
        A.it(x)
        for y in sl[i]: A.it(y)
def common_setup(A):
    srd(A, 8, P["ws"], WS_END)
    A("v_lshlrev_b32 v28, 4, v1\nv_add_u32 v29, 4096, v28")
    A("s_and_b32 s32, s2, 7\ns_lshr_b32 s33, s2, 3")
    if int(OPT.get("map2", 0)) == 0:
        A("s_lshr_b32 s34, s33, 3\ns_lshl2_add_u32 s80, s32, s34\ns_and_b32 s81, s33, 7")
    else:
        A("s_lshr_b32 s34, s32, 1\ns_lshl_b32 s34, s34, 3\ns_lshr_b32 s35, s33, 2\ns_add_u32 s80, s34, s35\ns_and_b32 s34, s32, 1\ns_and_b32 s35, s33, 3\ns_lshl2_add_u32 s81, s34, s35")
    A(f"s_mul_i32 s32, s3, 24\ns_mul_i32 s33, s81, 96\ns_add_u32 s33, s33, s32\ns_mul_i32 s82, s33, 5120\ns_add_u32 s82, s82, {WS_W2P}")
    A(f"s_mul_i32 s33, s80, 96\ns_add_u32 s33, s33, s32\ns_lshl_b32 s83, s33, 12\ns_add_u32 s83, s83, {WS_H}")
    A(f"s_lshl_b32 s93, s80, 13\ns_add_u32 s93, s93, {WS_FLG}")
D2 = 4; ACC2 = 176; HB = 112
def Hr(i, tb): return HB + (i % D2)*16 + tb*4
def fpoll(): return ["v_lshlrev_b32 v9, 7, v1", ("vm", "fl", "buffer_load_dword v9, v9, s[8:11], s93 offen sc1")]
def fcheck(A, name, lo, n):
    A.it(("wvm", ["fl"]))
    A(f"s_bfm_b64 s[32:33], {n}, {lo}\nv_cmp_ne_u32 vcc, s96, v9\ns_and_b64 s[34:35], vcc, s[32:33]\ns_cbranch_scc0 {name}_ok\ns_mov_b32 s76, 0x40000")
    A.label(f"{name}_l")
    A(f"v_lshlrev_b32 v9, 7, v1\nbuffer_load_dword v9, v9, s[8:11], s93 offen sc1\ns_waitcnt vmcnt(0)\ns_sub_u32 s76, s76, 1\ns_cbranch_scc1 {name}_ok\nv_cmp_ne_u32 vcc, s96, v9\ns_and_b64 s[34:35], vcc, s[32:33]\ns_cbranch_scc1 {name}_l")
    A.label(f"{name}_ok")
def hload(i):
    L = [f"s_add_u32 s77, s83, {i*4096}"]
    if i == 5: L += ["s_cmp_ge_u32 s3, 2", f"s_cselect_b32 s77, {hex(OOB)}, s77"]
    for tb in range(4): L.append(("vm", ("h", i), f"buffer_load_dwordx4 v[{Hr(i,tb)}:{Hr(i,tb)+3}], v28, s[8:11], s77 offen offset:{tb*1024} sc1"))
    return L
def ph2_entry(A, name, lasttag, flagstore):
    fcheck(A, name, 0, 22); stamp(A, 6)
    for i in range(D2-1): A.its(hload(i))
    A.it(("wvm", [lasttag])); A(flagstore)

W_SLOT = 20480; NWS = 4; X_BASE = NWS*W_SLOT; X_SLOT = 16384; F_SCR = X_BASE + 3*X_SLOT
def gen_ffn(A):
    import copy
    A("s_mul_i32 s70, s69, 160\ns_min_u32 s70, s70, 1568")
    A("s_lshl_b32 s32, s68, 7\ns_lshl_b32 s33, s3, 5\ns_add_u32 s32, s32, s33")
    A("v_lshrrev_b32 v2, 3, v1\nv_add_u32 v2, s32, v2\nv_mul_u32_u24 v2, 1280, v2\nv_lshrrev_b32 v3, 4, v1\nv_xor_b32 v3, v3, v1\nv_and_b32 v3, 7, v3\nv_lshlrev_b32 v3, 4, v3")
    A(f"v_add_u32 v15, v2, v3\nv_xor_b32 v3, 64, v3\nv_add_u32 v16, v2, v3\nv_add_u32 v16, {8*1280-1024}, v16\nv_add_u32 v17, {16*1280}, v15\nv_add_u32 v18, {16*1280}, v16")
    A(f"s_mul_i32 s73, s3, 5120\ns_lshl_b32 s74, s3, 12\ns_add_u32 s74, s74, {X_BASE}")
    A("s_mul_i32 s32, s71, 320\ns_lshl_b32 s33, s70, 1\ns_movk_i32 s34, 3277")
    for i in range(5):
        A(f"v_add_u32 v2, s32, v1\nv_add_u32 v2, {64*i}, v2\nv_mul_u32_u24 v3, s34, v2\nv_lshrrev_b32 v3, 16, v3")
        A("v_mul_u32_u24 v4, 20, v3\nv_sub_u32 v4, v2, v4\nv_lshrrev_b32 v5, 2, v3\nv_and_b32 v5, 2, v5\nv_xor_b32 v4, v4, v5")
        A(f"v_mul_u32_u24 v3, 3456, v3\nv_lshl_add_u32 v3, v4, 4, v3\nv_add_u32 v3, s33, v3\nv_subrev_u32 v{10+i}, {1024*(i&3)}, v3")
    def dmaW(s):
        L = [f"s_add_u32 m0, s73, {(s%NWS)*W_SLOT}", f"s_mov_b32 s77, {s*32*3456}"]
        for i in range(5):
            if i == 4: L.append(f"s_add_u32 m0, s73, {(s%NWS)*W_SLOT+4096}")
            L.append(("vm", ("W", s), f"buffer_load_dwordx4 v{10+i}, s[12:15], s77 offen offset:{1024*(i&3)} lds"))
        return L
    def dmaX(u, hs=(0, 1)):
        L = []
        for h in hs:
            L += [f"s_add_u32 m0, s74, {(u%3)*X_SLOT+2048*h}", f"s_movk_i32 s78, {u*128}"]
            for i in range(2): L.append(("vm", ("X", u), f"buffer_load_dwordx4 v{15+2*h+i}, s[16:19], s78 offen offset:{1024*i} lds"))
        return L
    st_ld, st_c = stats_job(32)
    A("s_waitcnt lgkmcnt(0)")
    if TS >= 2: A("v_writelane_b32 v19, s4, 32")
    ptick(A, 33, 19)
    srd(A, 16, P["x"], SZ_X)
    A.its(st_ld)
    A("s_cmp_eq_u32 s72, 0"); srd_sel(A, 12, P["w1"], P["w3"], SZ_W)
    A.its(dmaX(0) + dmaW(0) + dmaW(1)); ptick(A, 34, 19)
    common_setup(A)
    A("v_lshrrev_b32 v2, 4, v1\nv_bfe_u32 v3, v1, 2, 2\nv_lshl_add_u32 v3, v2, 3, v3\nv_mul_u32_u24 v3, 320, v3")
    A("v_and_b32 v4, 3, v1\nv_lshl_add_u32 v3, v4, 3, v3\nv_and_b32 v4, 1, v2\nv_lshlrev_b32 v4, 5, v4")
    A("s_mul_i32 s32, s72, 192\nv_add_u32 v5, s32, v3\nv_add_u32 v20, v5, v4\nv_sub_u32 v21, v5, v4")
    A("s_lshl_b32 s32, s72, 5\ns_add_u32 s32, s32, 128\nv_xor_b32 v5, s32, v4\nv_add_u32 v22, v3, v5")
    for i in range(3): A(f"v_add_u32 v{23+i}, {3*W_SLOT}, v{20+i}")
    A("v_and_b32 v3, 15, v1\nv_lshrrev_b32 v4, 1, v3\nv_xor_b32 v4, v4, v2\nv_lshlrev_b32 v4, 4, v4\nv_lshl_add_u32 v3, v3, 7, v4")
    A(f"s_lshl_b32 s32, s71, 13\ns_add_u32 s32, s32, {X_BASE}\nv_add_u32 v26, s32, v3\nv_xor_b32 v27, 64, v26")
    A.its(dmaX(1))
    A("s_lshl1_add_u32 s32, s69, s72\ns_mov_b32 s84, s32")
    for th, add in ((6, 18), (12, 18), (17, 19)): A(f"s_cmp_ge_u32 s32, {th}\ns_cselect_b32 s33, {add}, 0\ns_add_u32 s84, s84, s33")
    A("s_mul_i32 s33, s69, 3\ns_cmp_eq_u32 s69, 10\ns_cselect_b32 s34, 1, 0\ns_sub_u32 s33, s33, s34\ns_lshl1_add_u32 s85, s72, s33\ns_add_u32 s86, s33, 1")
    for r in (85, 86): A(f"s_lshr_b32 s34, s{r}, 3\ns_lshl_b32 s34, s34, 4\ns_add_u32 s{r}, s{r}, s34\ns_add_u32 s{r}, s{r}, 6")
    A(f"s_lshl1_add_u32 s33, s68, s71\ns_mul_i32 s34, s33, 96")
    for r in (84, 85, 86): A(f"s_add_u32 s{r}, s{r}, s34\ns_lshl_b32 s{r}, s{r}, 12\ns_add_u32 s{r}, s{r}, {WS_H}")
    A(f"s_cmp_eq_u32 s32, 19\ns_cselect_b32 s85, {hex(OOB)}, s85")
    A(f"s_lshl_b32 s87, s33, 6\ns_add_u32 s87, s87, s32\ns_lshl_b32 s87, s87, 7\ns_add_u32 s87, s87, {WS_FLG}")
    A.its(dmaW(2))
    clr = []
    ep_ld = lines(f"v_and_b32 v2, 48, v1\ns_mul_i32 s75, s72, 384\ns_lshl2_add_u32 s75, s70, s75\ns_add_u32 s75, s75, {WS_CS}\ns_add_u32 s76, s75, 6912")
    ep_ld += lines("s_mul_i32 s34, s72, 320\ns_sub_u32 s34, s75, s34\ns_add_u32 s35, s34, 6912")
    for j in range(10):
        pr, m = j >> 1, j & 1
        ep_ld.append(("vm", "ep", f"buffer_load_dwordx4 v[{56+4*j}:{59+4*j}], v2, s[8:11], s{(34 if pr == 4 else 75)+m} offen offset:{64*pr} sc1"))
    ep_l2 = lines(f"v_and_b32 v2, 15, v1\nv_lshlrev_b32 v2, 7, v2\nv_add_u32 v3, 4096, v2\ns_lshl1_add_u32 s75, s68, s71\ns_lshl_b32 s75, s75, 13\ns_add_u32 s75, s75, {WS_STAT}")
    for tb in range(4): ep_l2.append(("vm", "ep", f"buffer_load_dword v{40+tb}, v{2+(tb>>1)}, s[8:11], s75 offen offset:{2048*(tb&1)} sc1"))
    ep_c = [("wvm", ["ep"])]
    for tb in range(4):
        ep_c += lines(f"v_lshlrev_b32 v{44+tb}, 16, v{40+tb}\nv_and_b32 v{52+tb}, 0xffff0000, v{40+tb}\nv_rcp_f32 v{48+tb}, v{52+tb}\nv_mul_f32 v{52+tb}, v{52+tb}, v{52+tb}\nv_mul_f32 v{48+tb}, 0xbfb8aa3b, v{48+tb}")
    ep_a = lines("v_lshrrev_b32 v2, 4, v1\nv_and_b32 v3, 1, v2\nv_lshlrev_b32 v3, 10, v3\nv_lshrrev_b32 v2, 1, v2\nv_lshl_add_u32 v3, v2, 8, v3")
    ep_a += lines("v_and_b32 v2, 15, v1\nv_lshl_add_u32 v3, v2, 4, v3\ns_lshl_b32 s75, s72, 9\nv_add_u32 v11, s75, v3\nv_lshlrev_b32 v12, 20, v1\nv_and_b32 v12, 0xfe000000, v12\nv_lshl_add_u32 v12, v1, 2, v12\nv_mov_b32 v13, s96")
    ACC = 96
    def acc(j, tb): return ACC + (j*4+tb)*4
    def Wr(par, j): return par*56 + j*4
    def Xr(par, tb): return par*56 + 40 + tb*4
    def reads(s):
        par = s & 1; L = []; sl = s % NWS; hi = 3 if sl >= 3 else 0; so = (sl - hi)*W_SLOT
        for tb in range(4): L.append(("ds", None, f"ds_read_b128 a[{Xr(par,tb)}:{Xr(par,tb)+3}], v{26+(s&1)} offset:{((s>>1)%3)*X_SLOT + tb*2048}"))
        for j in range(10):
            pr, m = j >> 1, j & 1; ar = 22 if pr == 4 else 20 + (pr & 1); co = 0 if pr == 4 else pr*32
            for hh in range(2): L.append(("ds", None, f"ds_read_b64_tr_b16 a[{Wr(par,j)+2*hh}:{Wr(par,j)+2*hh+1}], v{ar+hi} offset:{so + m*10240 + hh*1280 + co}"))
        return L
    wl = sum((w2load(i) for i in range(7)), []); n4 = (len(wl)+3)//4
    def loop(role, side):
        sched = {0: dmaW(3) + dmaX(2), 1: dmaW(4) + dmaW(5), 2: dmaW(6) + dmaX(3), 3: prep_signal(1)}
        for s in range(3, 16):
            sched[s] = sched.get(s, []) + dmaW(s+4) + (dmaX((s+5) >> 1, ((s+1) & 1,)) if s < 15 else [])
        for s, L in side.items(): sched[s] = sched[s] + L
        sched[11] = prep_signal(2) + sched[11]; sched[13] = prep_poll() + sched[13]
        sched[15] += ep_ld; sched[16] = ep_l2 + wl[:n4]; sched[17] = wl[n4:2*n4] + ep_a; sched[18] = wl[2*n4:3*n4]; sched[19] = ep_c + wl[3*n4:]
        ptick(A, 35, 19); A.its(st_c[:1]); ptick(A, 36, 19); A.its(st_c[1:] + clr); ptick(A, 37, 19)
        A.sync([("X", 0), ("W", 0)]); ptick(A, 38, 19); stamp(A, 1)
        A.its(reads(0))
        for s in range(20):
            tags = [("W", s+1), ("X", (s+1) >> 1)] if s < 19 else []
            if s == 3: tags.append("side1")
            if s == 11: tags.append("side")
            if s == 15: prep_check(A, role + "P", 2)
            A.sync(tags, barrier=(s < 19))
            tick(A, s, 19)
            par = s & 1; mf = []
            for j in range(10):
                for tb in range(4):
                    c = acc(j, tb); mf.append(f"{MF} v[{c}:{c+3}], a[{Wr(par,j)}:{Wr(par,j)+3}], a[{Xr(par,tb)}:{Xr(par,tb)+3}], " + (f"v[{c}:{c+3}]" if s else "0"))
            A.weave(mf, [(reads(s+1) if s < 19 else [], 0, 30), (sched.get(s, []), 0, 39)])
    A("s_and_b32 s32, s68, 7\ns_lshr_b32 s33, s68, 3\ns_cmp_ge_u32 s32, 5\ns_cbranch_scc1 FB_a\ns_lshl2_add_u32 s34, s32, s69\ns_cmp_eq_u32 s69, 10\ns_cselect_b32 s34, s34, 0\ns_cmp_eq_u32 s34, 10\ns_cbranch_scc1 FB_b")
    snap = (A.nv, dict(A.tv), A.dv, A.nd, dict(A.td), A.dd)
    A("s_cmp_eq_u32 s33, 0"); srd_sel(A, 24, P["w1"], P["w3"], SZ_W)
    A(f"s_lshl_b32 s34, s32, 5\ns_add_u32 s34, s34, s70\ns_mul_i32 s35, s3, {160*3456}\ns_lshl1_add_u32 s97, s34, s35")
    A(f"s_mul_i32 s35, s33, 6912\ns_lshl2_add_u32 s98, s34, s35\ns_add_u32 s98, s98, {WS_CS}")
    A("v_lshrrev_b32 v2, 2, v1\nv_mul_u32_u24 v2, 3456, v2\nv_and_b32 v3, 3, v1\nv_lshl_add_u32 v30, v3, 4, v2\nv_and_b32 v2, 15, v1")
    for r in range(4):
        A(f"v_cmp_eq_u32 vcc, {2*r}, v2\nv_mov_b32 v3, 0x3f80\nv_cndmask_b32 v{72+r}, 0, v3, vcc\nv_cmp_eq_u32 vcc, {2*r+1}, v2\nv_lshlrev_b32 v3, 16, v3\nv_cndmask_b32 v{72+r}, v{72+r}, v3, vcc")
    A(f"v_and_b32 v2, 3, v1\nv_lshlrev_b32 v2, 5, v2\nv_and_b32 v3, 16, v1\nv_add_u32 v2, v2, v3\ns_lshl_b32 s75, s3, 7\ns_add_u32 s75, s75, {F_SCR}\nv_add_u32 v2, s75, v2\nv_and_b32 v3, 32, v1\nv_lshl_add_u32 v80, v3, 4, v2")
    A(f"v_and_b32 v2, 31, v1\nv_lshlrev_b32 v2, 2, v2\nv_add_u32 v81, {F_SCR}, v2\nv_lshlrev_b32 v3, 20, v0\nv_and_b32 v3, 0xfe000000, v3\nv_or_b32 v82, v2, v3")
    cs_ld = []
    for i in range(10): cs_ld += [f"s_add_u32 s75, s97, {i*16*3456}", ("vm", "csl", f"buffer_load_dwordx4 a[{112+4*i}:{115+4*i}], v30, s[24:27], s75 offen")]
    cs_c = [("wvm", ["csl"])]
    for i in range(10): cs_c.append(f"{MF} v[76:79], v[72:75], a[{112+4*i}:{115+4*i}], " + ("v[76:79]" if i else "0"))
    cs_c += ["s_nop 0"]*4
    for r in (4, 8):
        for e in range(4): cs_c.append(f"v_add_f32_dpp v{76+e}, v{76+e}, v{76+e} row_ror:{r} row_mask:0xf bank_mask:0xf")
    cs_c.append(("ds", None, "ds_write_b128 v80, v[76:79]"))
    cs_f = [("ds", "csf", f"ds_read_b32 v{72+w}, v81 offset:{128*w}") for w in range(4)]
    cs_g = [("wds", ["csf"]), "v_add_f32 v72, v72, v73", "v_add_f32 v74, v74, v75", "v_add_f32 v72, v72, v74", ("vm", "side", "buffer_store_dword v72, v82, s[8:11], s98 offen sc1")]
    loop("FA", {3: cs_ld[:6], 4: cs_ld[6:12], 5: cs_ld[12:], 7: cs_c, 8: cs_f + ["s_nop 0"]*2 + cs_g})
    A("s_branch FFN_EP")
    A.nv, A.tv, A.dv, A.nd, A.td, A.dd = snap
    A.label("FB_a")
    A("s_mul_i32 s34, s69, 6\ns_mul_i32 s35, s33, 3\ns_add_u32 s34, s34, s35\ns_add_u32 s34, s34, s32\ns_sub_u32 s34, s34, 5\ns_branch FB_c")
    A.label("FB_b")
    A("s_add_u32 s34, s33, 66")
    A.label("FB_c")
    srd(A, 20, P["w2"], SZ_W)
    A("s_lshl2_add_u32 s32, s34, s3\ns_mul_i32 s34, s32, 52429\ns_lshr_b32 s34, s34, 18\ns_mul_i32 s33, s34, 5\ns_sub_u32 s33, s32, s33")
    A("s_mul_i32 s99, s34, 40960\ns_lshl_b32 s35, s33, 8\ns_add_u32 s99, s99, s35")
    A("s_mul_i32 s35, s34, 52429\ns_lshr_b32 s35, s35, 18\ns_mul_i32 s75, s35, 5\ns_sub_u32 s75, s34, s75\ns_sub_u32 s76, s34, 49\ns_cmp_ge_u32 s34, 49\ns_cselect_b32 s35, 10, s35\ns_cselect_b32 s75, s76, s75")
    A("s_cmp_eq_u32 s75, 3\ns_cselect_b32 s76, 1, 0\ns_lshl1_add_u32 s76, s35, s76\ns_mov_b32 s100, s76")
    for th, add in ((6, 18), (12, 18), (17, 19)): A(f"s_cmp_ge_u32 s76, {th}\ns_cselect_b32 s79, {add}, 0\ns_add_u32 s100, s100, s79")
    A("s_mul_i32 s76, s35, 3\ns_lshr_b32 s79, s75, 1\ns_add_u32 s76, s76, s79\ns_cmp_eq_u32 s35, 10\ns_cselect_b32 s79, 1, 0\ns_sub_u32 s76, s76, s79")
    A("s_lshr_b32 s79, s76, 3\ns_lshl_b32 s79, s79, 4\ns_add_u32 s76, s76, s79\ns_add_u32 s76, s76, 6")
    A("s_lshr_b32 s79, 9, s75\ns_bitcmp1_b32 s79, 0\ns_cselect_b32 s100, s100, s76")
    A(f"s_mul_i32 s100, s100, 5120\ns_lshl_b32 s79, s33, 13\ns_add_u32 s100, s100, s79\ns_add_u32 s100, s100, {WS_W2P}")
    A(f"s_cmp_lt_u32 s32, 270\ns_cselect_b32 s99, s99, {hex(OOB)}\ns_cselect_b32 s100, s100, {hex(OOB)}")
    SO = (4, 5, 6, 7, 24, 25, 26, 27)
    for k in range(8):
        A(f"s_lshl_b32 s79, s33, 3\ns_add_u32 s79, s79, {k}\ns_mul_i32 s79, s79, 52429\ns_lshr_b32 s79, s79, 18\ns_mul_i32 s79, s79, 486400\ns_add_u32 s{SO[k]}, s100, s79")
    A("s_cmp_eq_u32 s75, 2\ns_cselect_b32 s75, 8, 4\ns_cselect_b32 s76, 1, 4\ns_lshl_b32 s76, s76, 10")
    A(f"v_lshrrev_b32 v2, 4, v1\nv_mul_u32_u24 v30, 1280, v2\nv_and_b32 v3, 15, v1\nv_lshl_add_u32 v30, v3, 4, v30")
    A(f"v_mul_u32_u24 v2, s75, v2\nv_bfe_u32 v3, v1, 2, 2\nv_add_u32 v2, v2, v3\nv_lshlrev_b32 v2, 8, v2\nv_and_b32 v3, 3, v1\nv_lshl_add_u32 v2, v3, 3, v2")
    A(f"s_lshl_b32 s101, s3, 13\ns_add_u32 s101, s101, {F_SCR}\nv_add_u32 v80, s101, v2\nv_add_u32 v81, s76, v80")
    w2_ld = []
    for i in range(8): w2_ld += [f"s_add_u32 m0, s101, {1024*i}", f"s_add_u32 s75, s99, {5120*i}", ("vm", "w2l", "buffer_load_dwordx4 v30, s[20:23], s75 offen lds")]
    w2_c = [("wvm", ["w2l"])]
    for k in range(8):
        for hh in range(2): w2_c.append(("ds", "w2t", f"ds_read_b64_tr_b16 a[{152+4*k+2*hh}:{153+4*k+2*hh}], v{80+hh} offset:{32*k}"))
    w2_s = [("vm", "side", f"buffer_store_dwordx4 a[{152+4*k}:{155+4*k}], v{28+(k>>2)}, s[8:11], s{SO[k]} offen offset:{(k&3)*1024} sc1") for k in range(8)]
    loop("FB", {2: w2_ld[:3], 3: w2_ld[3:15], 4: w2_ld[15:], 6: w2_c, 7: w2_s[:4], 8: w2_s[4:]})
    A.label("FFN_EP"); A.reset()
    A("s_waitcnt lgkmcnt(0)"); tick(A, 20, 19); tockdump(A, 20, 19, 0x40000)
    stamp(A, 2)
    A("s_nop 6")
    T = 32
    def silu(pr, tb, dst):
        g, u = acc(2*pr, tb), acc(2*pr+1, tb); cg, cu = 56+8*pr, 60+8*pr
        L = []
        for k in (0, 2): L.append(pk("fma", g+k, cg+k, ("b", 44+tb), g+k, neg=(1,)))
        for k in (0, 2): L.append(pk("mul", T+k, g+k, ("b", 48+tb)))
        for k in (0, 2): L.append(pk("fma", u+k, cu+k, ("b", 44+tb), u+k, neg=(1,)))
        for e in range(4): L.append(f"v_exp_f32 v{T+e}, v{T+e}")
        for k in (0, 2): L.append(pk("mul", g+k, g+k, u+k))
        for k in (0, 2): L.append(pk("fma", T+k, T+k, ("b", 52+tb), ("b", 52+tb)))
        for e in range(4): L.append(f"v_rcp_f32 v{T+e}, v{T+e}")
        for k in (0, 2): L.append(pk("mul", g+k, g+k, T+k))
        L += [f"v_cvt_pk_bf16_f32 v{dst}, v{g}, v{g+1}", f"v_cvt_pk_bf16_f32 v{dst+1}, v{g+2}, v{g+3}"]
        return L
    ep = []
    for fr in range(2):
        for tb in range(4):
            o = acc(4*fr+1, tb)
            ep += silu(2*fr, tb, o) + silu(2*fr+1, tb, o+2)
            if fr == 1 and tb == 3: ep += [("wvm", [("H", 0)]), ("vm", None, "buffer_store_dword v13, v12, s[8:11], s87 offen sc1")]
            ep.append(("vm", ("H", fr), f"buffer_store_dwordx4 v[{o}:{o+3}], v28, s[8:11], s{84+fr} offen offset:{tb*1024} sc1"))
    nmid = len(ep)
    for tp in range(2):
        o = acc(9, 2*tp)
        ep += silu(4, 2*tp, o) + silu(4, 2*tp+1, o+2)
        ep += [f"v_permlane16_swap_b32 v{o}, v{o+2}", f"v_permlane16_swap_b32 v{o+1}, v{o+3}"]
        if tp == 1: ep += fpoll()
        ep.append(("vm", ("H", 2), f"buffer_store_dwordx4 v[{o}:{o+3}], v11, s[8:11], s86 offen offset:{tp*2048} sc1"))
    spread(A, ep, sum((w2load(i) for i in range(7, 12)), []), 4, nmid)
    stamp(A, 3)
    ph2_entry(A, "FC0", ("H", 2), "buffer_store_dword v13, v12, s[8:11], s87 offen offset:2816 sc1")
    A("s_branch PH2")

S_SLOT = 49152; S_SCR = 3*S_SLOT
def gen_ssm(A):
    A.reset()
    A("s_lshl_b32 s32, s68, 8\ns_lshl_b32 s33, s72, 7\ns_add_u32 s32, s32, s33\ns_lshl_b32 s33, s71, 3\ns_add_u32 s32, s32, s33")
    A("v_and_b32 v2, 32, v1\nv_bfe_u32 v3, v1, 3, 1\nv_lshl_add_u32 v2, v3, 4, v2\nv_bfe_u32 v3, v1, 4, 1\nv_add3_u32 v2, v2, v3, s32\nv_mul_u32_u24 v2, 1280, v2")
    A("v_lshrrev_b32 v3, 4, v1\nv_xor_b32 v3, v3, v1\nv_and_b32 v3, 7, v3\nv_lshlrev_b32 v3, 4, v3\nv_xor_b32 v4, 64, v3\nv_add_u32 v5, v2, v3\nv_add_u32 v6, v2, v4")
    for ii in range(8): A(f"v_add_u32 v{10+ii}, {(64*(ii&1) + 2*(ii>>1))*1280 - 1024*(ii&3)}, v{5+(ii&1)}")
    A("s_lshl_b32 s32, s69, 6\ns_lshl_b32 s33, s71, 5\ns_add_u32 s32, s32, s33")
    A("v_lshrrev_b32 v2, 3, v1\nv_add_u32 v2, s32, v2\nv_mul_u32_u24 v2, 1280, v2\nv_add_u32 v5, v2, v3\nv_add_u32 v6, v2, v4")
    for i in range(4): A(f"v_add_u32 v{18+i}, {8*i*1280 - 1024*i}, v{5+(i&1)}")
    A("s_lshl_b32 s73, s3, 13\ns_lshl_b32 s74, s3, 12\ns_add_u32 s74, s74, 32768\ns_waitcnt lgkmcnt(0)")
    srd(A, 16, P["x"], SZ_X)
    st_ld, st_c = stats_job(32)
    A.its(st_ld)
    A("s_cmp_eq_u32 s72, 0"); srd_sel(A, 12, P["bre"], P["bim"], SZ_B)
    def dma(u, hs=(0, 1)):
        b = (u % 3)*S_SLOT; L = []
        for h in hs:
            L += [f"s_add_u32 m0, s73, {b+4096*h}", f"s_movk_i32 s78, {u*128}"]
            for i in range(4): L.append(("vm", ("S", u), f"buffer_load_dwordx4 v{10+4*h+i}, s[16:19], s78 offen offset:{1024*i} lds"))
            L.append(f"s_add_u32 m0, s74, {b}")
            for i in range(2): L.append(("vm", ("S", u), f"buffer_load_dwordx4 v{18+2*h+i}, s[12:15], s78 offen offset:{1024*(2*h+i)} lds"))
        return L
    A.its(dma(0))
    A("s_lshl_b32 s32, s69, 6\ns_lshl_b32 s33, s72, 5\ns_add_u32 s32, s32, s33\nv_and_b32 v2, 15, v1\nv_add_u32 v30, s32, v2\nv_lshlrev_b32 v2, 1, v30")
    for cb in range(2):
        for q, sp in enumerate((P["lre"], P["lim"], P["ldt"])):
            A.it(("vm", "P", f"global_load_ushort v{110+3*cb+q}, v2, s[{sp}:{sp+1}] offset:{32*cb}"))
    common_setup(A)
    A("v_lshrrev_b32 v2, 4, v1\nv_and_b32 v3, 15, v1\nv_lshrrev_b32 v4, 1, v3\nv_xor_b32 v4, v4, v2\nv_lshlrev_b32 v4, 4, v4\nv_lshl_add_u32 v3, v3, 7, v4")
    A("s_lshl_b32 s32, s71, 14\ns_lshl_b32 s33, s72, 12\ns_add_u32 s33, s33, 32768")
    A("v_add_u32 v22, s32, v3\nv_xor_b32 v23, 64, v22\nv_add_u32 v120, s33, v3\nv_xor_b32 v121, 64, v120")
    for sl in (1, 2):
        for ks in range(2): A(f"v_add_u32 v{22+2*sl+ks}, {sl*S_SLOT}, v{22+ks}\nv_add_u32 v{120+2*sl+ks}, {sl*S_SLOT}, v{120+ks}")
    A.its(dma(1))
    A("s_lshl_b32 s32, s71, 2\nv_lshrrev_b32 v31, 4, v1\nv_add_u32 v31, s32, v31")
    A("s_lshl1_add_u32 s32, s69, s72\ns_lshl_b32 s33, s32, 1\ns_mul_i32 s34, s33, 52429\ns_lshr_b32 s34, s34, 19\ns_mul_i32 s34, s34, 14\ns_add_u32 s33, s33, s34\ns_add_u32 s33, s33, 14")
    A(f"s_lshl1_add_u32 s34, s68, s71\ns_mul_i32 s35, s34, 192\ns_add_u32 s33, s33, s35\ns_lshl_b32 s84, s33, 12\ns_add_u32 s84, s84, {WS_H}")
    A(f"s_lshl_b32 s87, s34, 7\ns_add_u32 s87, s87, s32\ns_lshl_b32 s87, s87, 7\ns_add_u32 s87, s87, {WS_FLG+44*128}")
    A("s_mul_i32 s32, s68, 10\ns_add_u32 s32, s32, s69\ns_lshl2_add_u32 s32, s32, s3\ns_lshr_b32 s33, s32, 3\ns_and_b32 s34, s32, 7")
    A("s_bitcmp0_b32 s33, 0"); srd_sel(A, 20, P["cre"], P["cim"], SZ_B)
    A("s_mul_i32 s99, s34, 102400\ns_lshr_b32 s35, s33, 1\ns_lshl_b32 s35, s35, 6\ns_add_u32 s99, s99, s35")
    A(f"s_mul_i32 s35, s33, 52429\ns_lshr_b32 s35, s35, 19\ns_mul_i32 s35, s35, 14\ns_add_u32 s33, s33, s35\ns_add_u32 s33, s33, 14\ns_mul_i32 s34, s34, 96\ns_add_u32 s33, s33, s34\ns_mul_i32 s100, s33, 5120\ns_add_u32 s100, s100, {WS_W2P}")
    A("s_cmp_lt_u32 s32, 160"); srd_sel(A, 24, P["bre"], P["bim"], SZ_B)
    A(f"s_cselect_b32 s33, 0, 160\ns_sub_u32 s33, s32, s33\ns_mul_i32 s97, s33, 5120\ns_lshl_b32 s98, s32, 7\ns_add_u32 s98, s98, {WS_CSB}")
    A("v_lshrrev_b32 v2, 2, v1\nv_mul_u32_u24 v2, 1280, v2\nv_and_b32 v3, 3, v1\nv_lshl_add_u32 v66, v3, 4, v2")
    A("v_and_b32 v2, 15, v1\nv_lshrrev_b32 v3, 4, v1\nv_lshl_add_u32 v2, v2, 2, v3\nv_lshlrev_b32 v67, 2, v2")
    A("v_bfe_u32 v2, v1, 2, 2\nv_mul_u32_u24 v2, 1280, v2\nv_and_b32 v3, 3, v1\nv_lshl_add_u32 v2, v3, 4, v2\nv_lshrrev_b32 v3, 4, v1\nv_lshl_add_u32 v108, v3, 6, v2")
    A("v_lshlrev_b32 v2, 20, v1\nv_and_b32 v2, 0xfe000000, v2\nv_lshl_add_u32 v109, v1, 2, v2")
    for r in range(4): A(f"v_mov_b32 v{68+r}, 0x3f803f80")
    c_ld = []
    for nb in range(5): c_ld += [f"s_add_u32 s75, s99, {nb*20480}", ("vm", "cl", f"buffer_load_dwordx4 v[{32+4*nb}:{35+4*nb}], v66, s[20:23], s75 offen")]
    c_p = [("wvm", ["cl"])] + [("ds", None, f"ds_bpermute_b32 v{32+r}, v67, v{32+r}") for r in range(20)]
    c_s = [("vm", "side", f"buffer_store_dwordx4 v[{32+4*nb}:{35+4*nb}], v{28+(nb>>2)}, s[8:11], s100 offen offset:{(nb&3)*1024} sc1") for nb in range(5)]
    b_ld = [("vm", "bl", f"buffer_load_dwordx4 a[{112+4*i}:{115+4*i}], v108, s[24:27], s97 offen offset:{256*i}") for i in range(5)]
    b_c = [("wvm", ["bl"])]
    for i in range(5): b_c.append(f"{MF} v[116:119], v[68:71], a[{112+4*i}:{115+4*i}], " + ("v[116:119]" if i else "0"))
    b_c += ["s_nop 0"]*3
    b_c += ["v_add_f32_dpp v116, v116, v116 quad_perm:[1,0,3,2] row_mask:0xf bank_mask:0xf", "v_add_f32_dpp v116, v116, v116 quad_perm:[2,3,0,1] row_mask:0xf bank_mask:0xf",
            ("vm", "side", "buffer_store_dword v116, v109, s[8:11], s98 offen sc1")]
    clr = lines("s_mul_i32 s75, s68, 5120\ns_lshl_b32 s76, s69, 9\ns_add_u32 s75, s75, s76\ns_lshl_b32 s76, s3, 7\ns_add_u32 s75, s75, s76\nv_mov_b32 v4, -1") + [("vm", "side", "buffer_store_dword v4, v109, s[8:11], s75 offen sc1")]
    NM = "LR LI CA CB L16R L16I L32R L32I L256R L256I QR QI PR PI T0 T1 CSR CSI".split()
    def Pm(cb): return dict(zip(NM, range(72+18*cb, 72+18*cb+18)))
    par_c = [("wvm", ["P"])]
    def csq(r, i, t): return lines(f"v_mul_f32 v{t}, v{i}, v{i}\nv_mul_f32 v{i}, v{r}, v{i}\nv_fma_f32 v{r}, v{r}, v{r}, -v{t}\nv_add_f32 v{i}, v{i}, v{i}")
    for cb in range(2):
        p = Pm(cb); i0 = 110 + 3*cb; t0, t1, t2, t3 = p['PR'], p['PI'], p['T0'], p['T1']
        par_c += lines(f"""v_lshlrev_b32 v{i0}, 16, v{i0}
v_lshlrev_b32 v{i0+1}, 16, v{i0+1}
v_lshlrev_b32 v{i0+2}, 16, v{i0+2}
v_mul_f32 v{t0}, 0x3fb8aa3b, v{i0+2}
v_exp_f32 v{t0}, v{t0}
v_cvt_pk_bf16_f32 v{t0}, v{t0}, v{t0}
v_and_b32 v{t0}, 0xffff0000, v{t0}
v_mul_f32 v{t1}, v{t0}, v{i0}
v_mul_f32 v{t2}, v{t0}, v{i0+1}
v_mul_f32 v{t1}, 0x3fb8aa3b, v{t1}
v_mul_f32 v{t2}, 0.15915494, v{t2}
v_exp_f32 v{t1}, v{t1}
v_fract_f32 v{t2}, v{t2}
v_cos_f32 v{p['LR']}, v{t2}
v_sin_f32 v{p['LI']}, v{t2}
v_mul_f32 v{p['LR']}, v{p['LR']}, v{t1}
v_mul_f32 v{p['LI']}, v{p['LI']}, v{t1}
v_add_f32 v{t0}, -1.0, v{p['LR']}
v_mul_f32 v{t1}, v{i0}, v{i0}
v_fmac_f32 v{t1}, v{i0+1}, v{i0+1}
v_rcp_f32 v{t1}, v{t1}
v_mul_f32 v{t2}, v{t0}, v{i0}
v_add_f32 v{t1}, v{t1}, v{t1}
v_fmac_f32 v{t2}, v{p['LI']}, v{i0+1}
v_mul_f32 v{p['CA']}, v{t2}, v{t1}
v_mul_f32 v{t2}, v{p['LI']}, v{i0}
v_fma_f32 v{t2}, -v{t0}, v{i0+1}, v{t2}
v_mul_f32 v{p['CB']}, v{t2}, v{t1}
v_mov_b32 v{p['L16R']}, v{p['LR']}
v_mov_b32 v{p['L16I']}, v{p['LI']}""")
        for _ in range(4): par_c += csq(p['L16R'], p['L16I'], t0)
        par_c += [f"v_mov_b32 v{p['L32R']}, v{p['L16R']}", f"v_mov_b32 v{p['L32I']}, v{p['L16I']}"] + csq(p['L32R'], p['L32I'], t0)
        par_c += lines(f"v_mov_b32 v{p['L256R']}, v{p['L32R']}\nv_mov_b32 v{p['L256I']}, v{p['L32I']}\nv_mov_b32 v{p['QR']}, 1.0\nv_mov_b32 v{p['QI']}, 0")
        for bit in range(3):
            par_c += lines(f"""v_and_b32 v{t0}, {1<<bit}, v31
v_cmp_ne_u32 vcc, 0, v{t0}
v_mul_f32 v{t0}, v{p['QR']}, v{p['L256R']}
v_fma_f32 v{t0}, -v{p['QI']}, v{p['L256I']}, v{t0}
v_mul_f32 v{t1}, v{p['QR']}, v{p['L256I']}
v_fmac_f32 v{t1}, v{p['QI']}, v{p['L256R']}
v_cndmask_b32 v{p['QR']}, v{p['QR']}, v{t0}, vcc
v_cndmask_b32 v{p['QI']}, v{p['QI']}, v{t1}, vcc""") + csq(p['L256R'], p['L256I'], t0)
    ep_ld = lines(f"v_lshlrev_b32 v2, 7, v0\ns_lshl_b32 s75, s68, 15\ns_add_u32 s75, s75, {WS_STAT}") + [("vm", "ep", "buffer_load_dword v32, v2, s[8:11], s75 offen sc1")]
    ep_ld += lines(f"v_lshrrev_b32 v2, 2, v30\nv_lshlrev_b32 v2, 7, v2\nv_and_b32 v3, 3, v30\nv_lshl_add_u32 v2, v3, 4, v2\ns_mov_b32 s75, {WS_CSB}\ns_mov_b32 s76, {WS_CSB+20480}")
    for cb in range(2):
        for im in range(2): ep_ld.append(("vm", "ep", f"buffer_load_dword v{Pm(cb)['CSR']+im}, v2, s[8:11], s{75+im} offen offset:{512*cb} sc1"))
    ep_c = [("wvm", ["ep"])] + lines(f"""v_and_b32 v33, 0xffff0000, v32
v_rcp_f32 v33, v33
v_lshlrev_b32 v32, 16, v32
v_and_b32 v2, 15, v0
v_bfe_u32 v3, v0, 4, 1
v_lshl_add_u32 v2, v2, 1, v3
v_and_b32 v3, 0xe0, v0
v_add_u32 v2, v2, v3
v_mul_f32 v32, v32, v33
v_lshlrev_b32 v2, 2, v2
v_add_u32 v2, {S_SCR}, v2""") + [("ds", None, "ds_write_b32 v2, v33"), ("ds", None, "ds_write_b32 v2, v32 offset:1024")]
    ACC = 128
    def acc(b, c): return ACC + (c*8+b)*4
    def Xr(par, b): return par*48 + b*4
    def Br(par, c): return par*48 + 32 + c*4
    def reads(s):
        par = s & 1; sl = (s >> 1) % 3; L = []
        for c in range(4): L.append(("ds", None, f"ds_read_b128 a[{Br(par,c)}:{Br(par,c)+3}], v{120+2*sl+(s&1)} offset:{(c>>1)*8192 + (c&1)*2048}"))
        for b in range(8): L.append(("ds", None, f"ds_read_b128 a[{Xr(par,b)}:{Xr(par,b)+3}], v{22+2*sl+(s&1)} offset:{b*2048}"))
        return L
    sched = {0: dma(2, (0,)) + b_ld[:2], 1: dma(2, (1,)) + b_ld[2:], 2: dma(3, (0,)) + c_ld[:4], 3: dma(3, (1,)) + c_ld[4:] + b_c, 4: dma(4, (0,)), 5: dma(4, (1,)) + c_p,
             6: dma(5, (0,)) + c_s[:2], 7: dma(5, (1,)) + c_s[2:], 8: dma(6), 9: dma(7, (0,)), 10: dma(7, (1,)), 11: prep_signal(2) + dma(8, (0,)),
             12: dma(8, (1,)), 13: dma(9, (0,)) + prep_poll(), 14: dma(9, (1,)), 15: ep_ld, 16: [], 17: ep_c + prep_poll(), 18: [], 19: w2load(0)}
    its = [4, 9, 10, 11, 12, 13, 14, 15, 16, 16, 18, 18]; q = (len(par_c) + len(its) - 1)//len(its)
    for k, i in enumerate(its): sched[i] = sched[i] + par_c[k*q:(k+1)*q]
    A.its(st_c + clr)
    A.sync([("S", 0)]); stamp(A, 1)
    A.its(reads(0))
    for s in range(20):
        tags = [("S", (s+1) >> 1)] if (s < 19 and s & 1) else []
        if s == 11: tags.append("side")
        if s == 15: A("s_mov_b64 s[4:5], vcc"); prep_check(A, "SP", 1); A("s_mov_b64 vcc, s[4:5]")
        if s == 19: prep_check(A, "SQ", 2)
        A.sync(tags, barrier=bool(s & 1))
        tick(A, s, 127)
        par = s & 1; mf = []
        for b in range(8):
            for c in range(4):
                r = acc(b, c); mf.append(f"{MF} v[{r}:{r+3}], a[{Xr(par,b)}:{Xr(par,b)+3}], a[{Br(par,c)}:{Br(par,c)+3}], " + (f"v[{r}:{r+3}]" if s else "0"))
        A.weave(mf, [(reads(s+1) if s < 19 else [], 0, 24), (sched.get(s, []), 0, 31)])
    A("s_waitcnt lgkmcnt(0)"); tick(A, 20, 127); tockdump(A, 20, 127, 0x40000)
    stamp(A, 2)
    def gre(cb, j): return acc(0, cb) + 2*j
    def gim(cb, j): return acc(0, 2+cb) + 2*j
    A(f"v_lshlrev_b32 v2, 7, v31\nv_add_u32 v2, {S_SCR}, v2")
    def rload(c):
        b = 32 + 16*(c & 1)
        return [("ds", ("R", c), f"ds_read_b128 v[{b+4*k+8*t}:{b+4*k+8*t+3}], v2 offset:{1024*t + 32*c + 16*k}") for t in range(2) for k in range(2)]
    e1 = rload(0) + rload(1)
    for j in range(16):
        c = j >> 2; b = 32 + 16*(c & 1) + 2*(j & 3)
        if j & 3 == 0: e1.append(("wds", [("R", c)]))
        for cb in range(2): e1 += [pk("mul", gre(cb,j), gre(cb,j), b), pk("mul", gim(cb,j), gim(cb,j), b)]
        for cb in range(2):
            p = Pm(cb); e1 += [pk("fma", gre(cb,j), b+8, ("b", p['CSR']), gre(cb,j), neg=(0,)), pk("fma", gim(cb,j), b+8, ("b", p['CSI']), gim(cb,j), neg=(0,))]
        if j & 3 == 3 and c + 2 < 4: e1 += rload(c+2)
        if j:
            for cb in range(2):
                p = Pm(cb); e1 += [pk("fma", gre(cb,j), gre(cb,j-1), ("b", p['LR']), gre(cb,j)), pk("fma", gim(cb,j), gim(cb,j-1), ("b", p['LR']), gim(cb,j))]
            for cb in range(2):
                p = Pm(cb); e1 += [pk("fma", gre(cb,j), gim(cb,j-1), ("b", p['LI']), gre(cb,j), neg=(1,)), pk("fma", gim(cb,j), gre(cb,j-1), ("b", p['LI']), gim(cb,j))]
    spread(A, e1, sum((w2load(i) for i in range(1, 5)), []), 10, len(e1))
    def cfma(dr, di, mr, mi, xr, xi, ar, ai):
        A(f"v_fma_f32 v{dr}, v{mr}, v{xr}, v{ar}\nv_fma_f32 v{di}, v{mr}, v{xi}, v{ai}\nv_fma_f32 v{dr}, -v{mi}, v{xi}, v{dr}\nv_fma_f32 v{di}, v{mi}, v{xr}, v{di}")
    SEGB = S_SCR + 2048
    A(f"v_and_b32 v2, 63, v30\nv_lshlrev_b32 v2, 3, v2\nv_add_u32 v2, {SEGB}, v2\nv_lshl_add_u32 v3, v31, 9, v2")
    for cb in range(2):
        p = Pm(cb); cfma(64+2*cb, 65+2*cb, p['L16R'], p['L16I'], gre(cb,15), gim(cb,15), gre(cb,15)+1, gim(cb,15)+1)
        A(f"ds_write_b64 v3, v[{64+2*cb}:{65+2*cb}] offset:{128*cb}")
    A("s_waitcnt lgkmcnt(0)\ns_barrier")
    for s in range(7):
        for cb in range(2): A(f"ds_read_b64 v[{32+4*s+2*cb}:{33+4*s+2*cb}], v2 offset:{512*s+128*cb}")
    for cb in range(2): A(f"v_mov_b32 v{Pm(cb)['PR']}, 0\nv_mov_b32 v{Pm(cb)['PI']}, 0")
    A("v_lshlrev_b32 v3, 3, v30\ns_mul_i32 s75, s68, 5120\ns_waitcnt lgkmcnt(0)"); A.dd = A.nd
    for s in range(7):
        A(f"v_cmp_lt_u32 vcc, {s}, v31\ns_and_b64 exec, exec, vcc")
        for cb in range(2):
            p = Pm(cb); a = 32+4*s+2*cb
            if s: cfma(a, a+1, p['L32R'], p['L32I'], p['PR'], p['PI'], a, a+1)
            A(f"v_mov_b32 v{p['PR']}, v{a}\nv_mov_b32 v{p['PI']}, v{a+1}")
    A("s_cbranch_execz SSM_nopub")
    for cb in range(2):
        p = Pm(cb); a = 64+2*cb
        cfma(a, a+1, p['L32R'], p['L32I'], p['PR'], p['PI'], a, a+1)
        A(f"v_min_u32 v{a}, 0xfffffffe, v{a}\nv_min_u32 v{a+1}, 0xfffffffe, v{a+1}")
        A(f"buffer_store_dwordx2 v[{a}:{a+1}], v3, s[8:11], s75 offen offset:{128*cb} sc1")
    A.label("SSM_nopub")
    A("s_mov_b64 exec, -1")
    for cb in range(2): A(f"v_mov_b32 v{64+2*cb}, v{gre(cb,15)}\nv_mov_b32 v{65+2*cb}, v{gim(cb,15)}")
    e2 = []
    for j in range(16):
        for cb in range(2):
            p = Pm(cb); r, i = gre(cb,j), gim(cb,j); t = 32+4*cb
            e2 += [pk("mul", t, i, ("b", p['CB'])), pk("mul", t+2, r, ("b", p['CB'])), pk("fma", r, r, ("b", p['CA']), t, neg=(2,)), pk("fma", i, i, ("b", p['CA']), t+2, neg=(1, 2))]
    spread(A, e2, w2load(5), 0, 40)
    stamp(A, 3)
    A("s_sub_u32 s75, s75, 35840\nv_add_u32 v3, s75, v3")
    for i in range(7): A(f"v_add_u32 v{10+i}, {5120*i}, v3")
    A("s_mov_b32 s76, 0x40000")
    A.label("SSM_poll")
    for i in range(7):
        for cb in range(2): A(f"buffer_load_dwordx2 v[{32+4*i+2*cb}:{33+4*i+2*cb}], v{10+i}, s[8:11], 0 offen offset:{128*cb} sc1")
    A("s_waitcnt vmcnt(0)\nv_max3_u32 v2, v32, v33, v34")
    for r in range(35, 59, 2): A(f"v_max3_u32 v2, v2, v{r}, v{r+1}")
    A("v_max_u32 v2, v2, v59\nv_cmp_eq_u32 vcc, -1, v2\ns_sub_u32 s76, s76, 1\ns_cbranch_scc1 SSM_go\ns_cbranch_vccnz SSM_poll")
    A.label("SSM_go")
    stamp(A, 4)
    for i in range(1, 7):
        for cb in range(2):
            p = Pm(cb); a = 32+4*i+2*cb; cfma(a, a+1, p['L256R'], p['L256I'], a-4, a-3, a, a+1)
    for cb in range(2):
        p = Pm(cb); a = 56+2*cb; w = 12+8*cb
        cfma(p['PR'], p['PI'], p['QR'], p['QI'], a, a+1, p['PR'], p['PI'])
        cfma(64+2*cb, 65+2*cb, p['L16R'], p['L16I'], p['PR'], p['PI'], 64+2*cb, 65+2*cb)
        for k, (xr, xi) in enumerate(((p['PR'], p['PI']), (64+2*cb, 65+2*cb))):
            A(f"v_mul_f32 v{p['T0']}, v{p['CB']}, v{xi}\nv_mul_f32 v{p['T1']}, v{p['CB']}, v{xr}")
            A(f"v_fma_f32 v{w+k}, v{p['CA']}, v{xr}, -v{p['T0']}\nv_fma_f32 v{w+2+k}, -v{p['CA']}, v{xi}, -v{p['T1']}")
    PITCH = 288; IMG = 32*PITCH
    A(f"s_mul_i32 s75, s3, {2*IMG}\nv_and_b32 v2, 15, v1\nv_mul_u32_u24 v2, {PITCH}, v2\nv_lshrrev_b32 v3, 4, v1\nv_lshl_add_u32 v2, v3, 6, v2\nv_add_u32 v10, s75, v2")
    A(f"v_bfe_u32 v2, v1, 2, 2\nv_lshl_add_u32 v2, v3, 3, v2\nv_mul_u32_u24 v2, {PITCH}, v2\nv_and_b32 v3, 3, v1\nv_lshl_add_u32 v2, v3, 3, v2\nv_add_u32 v11, s75, v2")
    e3 = []; A.reset()
    for j in range(16):
        cur = [12+8*cb+4*(j & 1) for cb in range(2)]; nxt = [12+8*cb+4*((j+1) & 1) for cb in range(2)]
        for cb in range(2):
            p = Pm(cb); e3.append(pk("mul", nxt[cb], cur[cb], ("b", p['LR']))); e3.append(pk("mul", nxt[cb]+2, cur[cb]+2, ("b", p['LR'])))
        for cb in range(2):
            p = Pm(cb); e3.append(pk("fma", nxt[cb], cur[cb]+2, ("b", p['LI']), nxt[cb])); e3.append(pk("fma", nxt[cb]+2, cur[cb], ("b", p['LI']), nxt[cb]+2, neg=(1,)))
        for cb in range(2):
            e3.append(pk("add", gre(cb,j), gre(cb,j), nxt[cb])); e3.append(pk("add", gim(cb,j), gim(cb,j), nxt[cb]+2))
        if j & 1:
            k = (j >> 1) & 3
            for cb in range(2):
                for im in range(2):
                    g = gim if im else gre
                    for hh in range(2): e3.append(f"v_cvt_pk_bf16_f32 v{32+16*cb+8*im+4*hh+k}, v{g(cb,j-1)+hh}, v{g(cb,j)+hh}")
            if j & 7 == 7:
                for cb in range(2):
                    for im in range(2):
                        for hh in range(2):
                            r = 32+16*cb+8*im+4*hh
                            e3.append(f"ds_write_b128 v10, v[{r}:{r+3}] offset:{im*IMG + cb*16*PITCH + hh*32 + (j>>3)*16}")
    spread(A, e3, sum((w2load(i) for i in range(6, 12)), []), 0, len(e3))
    A.its(fpoll())
    A(f"s_add_u32 s85, s84, 4096\ns_add_u32 s86, s84, {96*4096}\ns_add_u32 s75, s84, {97*4096}")
    A("v_and_b32 v12, 31, v1\nv_lshlrev_b32 v12, 2, v12\nv_and_b32 v13, 32, v1\nv_lshl_add_u32 v12, v13, 8, v12\nv_mov_b32 v13, s96")
    n = 0
    for im in range(2):
        for tb in range(8):
            r = 128 + 4*n; n += 1
            for hh in range(2): A(f"ds_read_b64_tr_b16 v[{r+2*hh}:{r+2*hh+1}], v11 offset:{im*IMG + hh*4*PITCH + tb*32}")
    n = 0
    for im in range(2):
        for tb in range(8):
            r = 128 + 4*n; so = (84, 85, 86, 75)[im + 2*(tb >> 2)]
            A(f"s_waitcnt lgkmcnt({min(15, 30-2*n)})"); A.it(("vm", "H", f"buffer_store_dwordx4 v[{r}:{r+3}], v28, s[8:11], s{so} offen offset:{(tb&3)*1024} sc1")); n += 1
    stamp(A, 5)
    ph2_entry(A, "SC0", "H", "buffer_store_dword v13, v12, s[8:11], s87 offen sc1")

def gen_ph2(A):
    A.reset(); D = D2
    A.label("PH2")
    ACC = ACC2
    def acc(nb, tb): return ACC + (tb*5+nb)*4
    for i in range(D-1):
        A.nv += 4; A.tv[("h", i)] = A.nv
    A.nv += 1
    srd(A, 12, P["dsk"], 1280); srd(A, 20, P["out"], SZ_OUT)
    A("s_lshl_b32 s32, s80, 6\ns_lshl_b32 s33, s3, 4\ns_add_u32 s32, s32, s33\nv_lshrrev_b32 v2, 2, v1\nv_add_u32 v2, s32, v2\nv_lshlrev_b32 v15, 7, v2\nv_mul_u32_u24 v2, 640, v2")
    A("s_mul_i32 s32, s81, 80\nv_and_b32 v3, 3, v1\nv_lshlrev_b32 v3, 2, v3\nv_add_u32 v3, s32, v3\nv_add_u32 v2, v2, v3")
    A("v_lshlrev_b32 v12, 1, v2\nv_lshlrev_b32 v13, 2, v2\nv_lshlrev_b32 v14, 1, v3")
    fin_ld = [f"s_mov_b32 s75, {WS_STAT}", ("vm", "fin", "buffer_load_dword v16, v15, s[8:11], s75 offen sc1")]
    for nb in range(5):
        fin_ld.append(("vm", "fin", f"buffer_load_dwordx2 v[{32+2*nb}:{33+2*nb}], v12, s[16:19], 0 offen offset:{32*nb}"))
        fin_ld.append(("vm", "fin", f"buffer_load_dwordx2 v[{42+2*nb}:{43+2*nb}], v14, s[12:15], 0 offen offset:{32*nb}"))
    fin_ld += lines(f"v_lshlrev_b32 v2, 20, v0\nv_and_b32 v2, 0xfe000000, v2\nv_lshl_add_u32 v2, v1, 2, v2\ns_add_u32 s75, s96, 1\nv_mov_b32 v3, s75\ns_mov_b32 s75, {WS_EPOCH}\ns_cmp_eq_u32 s2, 0\ns_cselect_b32 s75, s75, {hex(OOB)}")
    fin_ld.append(("vm", None, "buffer_store_dword v3, v2, s[8:11], s75 offen sc1"))
    fin_c = [("wvm", ["fin"]), "v_and_b32 v17, 0xffff0000, v16", "v_rcp_f32 v17, v17", "v_lshlrev_b32 v16, 16, v16"]
    for k in range(10):
        o = 52+2*k
        fin_c += [f"v_lshlrev_b32 v{o}, 16, v{32+k}", f"v_and_b32 v{o+1}, 0xffff0000, v{32+k}", f"v_lshlrev_b32 v18, 16, v{42+k}", f"v_and_b32 v19, 0xffff0000, v{42+k}",
                  pk("add", 20, o, ("b", 16), neg=(1,)), pk("mul", 18, 18, ("b", 17)), pk("fma", o, 20, 18, o)]
    fin_c += lines("v_lshrrev_b32 v2, 4, v1\nv_lshlrev_b32 v3, 2, v2\nv_xor_b32 v3, v3, v1\nv_lshlrev_b32 v3, 4, v3\ns_mul_i32 s75, s3, 20480\nv_add_u32 v22, s75, v3")
    fin_c += lines("v_and_b32 v2, 3, v1\nv_lshrrev_b32 v4, 2, v1\nv_lshlrev_b32 v5, 2, v2\nv_xor_b32 v4, v4, v5\nv_lshl_add_u32 v4, v2, 4, v4\nv_lshlrev_b32 v4, 4, v4\ns_mul_i32 s75, s3, 5120\nv_add_u32 v23, s75, v4\nv_add_u32 v24, 40960, v23")
    wl = sum((w2load(i) for i in range(12, 24)), [])
    per = 4
    q = (len(fin_c)+3)//4
    for i in range(24):
        tags = [("h", i)] + ([("w2", i)] if i >= 12 else [])
        A.it(("wvm", tags))
        if TS >= 2: A("s_waitcnt lgkmcnt(0)")
        tick(A, i, 25)
        if i == 3: fcheck(A, "C1", 22, 22)
        if i == 11: fcheck(A, "C2", 44, 20)
        mf = []
        for nb in range(5):
            for tb in range(4):
                c = acc(nb, tb); w = w2reg(i) + 4*nb
                mf.append(f"{MF} v[{c}:{c+3}], a[{w}:{w+3}], v[{Hr(i,tb)}:{Hr(i,tb)+3}], " + (f"v[{c}:{c+3}]" if i else "0"))
        st = []
        if i in (1, 9): st += fpoll()
        if i+D-1 < 24: st += hload(i+D-1)
        if i >= 1: st += wl[(i-1)*per:i*per]
        if i == 4: st += fin_ld
        if 19 <= i < 23: st += fin_c[(i-19)*q:(i-18)*q]
        A.weave(mf, [(st, 0, 19)])
    A("s_waitcnt lgkmcnt(0)"); tick(A, 24, 25); tockdump(A, 24, 25, 0x80000)
    stamp(A, 7)
    A("s_barrier")
    for k in range(20): A(f"ds_write_b128 v22, v[{ACC+4*k}:{ACC+4*k+3}] offset:{k*1024}")
    A("s_waitcnt lgkmcnt(0)\ns_barrier")
    for nb in range(5):
        for w in range(4):
            r = ACC + (nb*4+w)*4
            A(f"ds_read_b128 v[{r}:{r+3}], v{23+(w>>1)} offset:{(w&1)*20480 + nb*1024}")
    for nb in range(5):
        A(f"s_waitcnt lgkmcnt({min(15, 16-4*nb)})")
        r = ACC + nb*16; o = 52+4*nb
        for k in (0, 2): A(pk("add", r+k, r+k, r+4+k)); A(pk("add", r+8+k, r+8+k, r+12+k))
        for k in (0, 2): A(pk("add", o+k, o+k, r+k))
        for k in (0, 2): A(pk("add", o+k, o+k, r+8+k))
        A(f"buffer_store_dwordx4 v[{o}:{o+3}], v13, s[20:23], 0 offen offset:{64*nb}")
    if TS:
        A("s_add_u32 s94, s94, 0x10000"); stamp(A, 0)

def gen():
    A = E()
    A("s_cmp_ge_u32 s2, 256\ns_cbranch_scc1 K_end")
    if TS >= 2: A("s_memtime s[4:5]")
    A("s_load_dwordx16 s[36:51], s[0:1], 0\ns_load_dwordx16 s[52:67], s[0:1], 64")
    A("v_and_b32 v1, 63, v0\nv_lshrrev_b32 v2, 6, v0\ns_and_b32 s32, s2, 7\nv_readfirstlane_b32 s3, v2")
    A("s_lshr_b32 s33, s2, 3\ns_lshr_b32 s34, s32, 2\ns_and_b32 s35, s32, 3\ns_and_b32 s71, s3, 1\ns_lshr_b32 s72, s3, 1")
    A("s_lshl2_add_u32 s95, s2, s3\nv_lshrrev_b32 v62, 5, v1\nv_mul_u32_u24 v62, 1280, v62\nv_and_b32 v63, 31, v1\nv_lshl_add_u32 v62, v63, 3, v62")
    if TS:
        A("s_lshl2_add_u32 s94, s2, s3\ns_lshl_b32 s94, s94, 6\ns_waitcnt lgkmcnt(0)"); stamp(A, 0)
    A("s_cmp_eq_u32 s35, 3\ns_cselect_b32 s76, 16, 8\ns_mul_i32 s75, s95, 2560\ns_cmp_lt_u32 s33, s76\ns_cbranch_scc1 K_ssm")
    A("s_sub_u32 s33, s33, s76\ns_and_b32 s68, s33, 7\ns_lshl_b32 s34, s34, 3\ns_add_u32 s68, s68, s34\ns_lshr_b32 s69, s33, 3\ns_mul_i32 s35, s35, 3\ns_add_u32 s69, s69, s35")
    gen_ffn(A)
    A.label("K_ssm")
    A("s_and_b32 s68, s33, 3\ns_lshl2_add_u32 s68, s34, s68\ns_lshr_b32 s69, s33, 2\ns_lshl1_add_u32 s69, s35, s69")
    gen_ssm(A)
    gen_ph2(A)
    A.label("K_end"); A("s_endpgm")
    return A.L

def main():
    ref = open(f"cdna_kernels/{NAME}.s.ref").read().split("\n")
    hdr = [l for l in ref if l.startswith(";") and "@launch" not in l and "Override" not in l and "grid=ceil" not in l]
    out = "\n".join(hdr) + "\n"
    extra = ""
    if "spin" in OPT:
        wg, slot = [int(v) for v in OPT["spin"].split(",")]
        off = WS_TS + wg*4*64 + (slot*8 if slot < 8 else 0x10000)
        out += f"; @launch kernel={NAME}_kernel grid=(256,1,1) block=(256,1,1) lds=163840\n; @launch kernel=spin_kernel grid=(1,1,1) block=(64,1,1) lds=0\n"
        L = ["s_load_dwordx2 s[4:5], s[0:1], 120", "s_waitcnt lgkmcnt(0)", f"s_add_u32 s4, s4, {off}", "s_addc_u32 s5, s5, 0", "s_load_dwordx2 s[6:7], s[4:5], 0", "s_mov_b32 s12, 0x100000",
             "SP_l2:", "s_memrealtime s[8:9]", "s_waitcnt lgkmcnt(0)", "s_sub_u32 s10, s8, s6", "s_sub_u32 s12, s12, 1", "s_cbranch_scc1 SP_e", "s_cmp_lt_u32 s10, 8000", "s_cbranch_scc1 SP_l2", "SP_e:", "s_endpgm"]
        extra = kernel_text("spin_kernel", L) + kd("spin_kernel", 8, 0, 32)
    else: out += "; @launch grid=(256,1,1) block=(256,1,1) lds=163840\n"
    out += '.amdgcn_target "amdgcn-amd-amdhsa--gfx950"\n'
    out += kernel_text(NAME + "_kernel", hazard_pass(gen(), "v" in OPT)) + kd(NAME + "_kernel", 256, 256, 102) + extra
    open(sys.argv[1], "w").write(out)
main()
```

```python
import sys
from asmlib import *
NAME = "parallel_sum__ssm_conv_s5__glu_gated_swiglu__prompt"
OPT = dict(a.split("=") for a in sys.argv[2:])
TS = int(OPT.get("ts", 0))
WS_AGG = 0; WS_EPOCH = 0xC000; WS_CSB = 0x10000; WS_CS = 0x1C000; WS_PREP = 0x28000; WS_STAT = 0x30000; WS_FLG = 0x40000; WS_XF = 0x80000; WS_H = 0x100000; WS_W2P = 0xE00000; WS_XCH = 0x1200000; WS_END = 0x1700000; WS_TS = 0x1800000; CS_HALF = 13824
SZ_X = 2048*640*2; SZ_B = 640*640*2; SZ_W = 640*1728*2; SZ_OUT = 2048*640*4
OOB = 0x7F000000
P = dict(x=36, lre=38, lim=40, bre=42, bim=44, cre=46, cim=48, ldt=50, dsk=52, w1=56, w3=58, w2=60, out=62, dbg=64, ws=66)
MF = "v_mfma_f32_16x16x32_bf16"

class E(Asm):
    def __init__(self): super().__init__(); self.reset()
    def reset(self): self.nv = 0; self.tv = {}; self.dv = 0; self.nd = 0; self.td = {}; self.dd = 0
    def vmw(self, tags):
        last = max(self.tv[t] for t in tags)
        if last <= self.dv: return None
        self.dv = last; return min(63, self.nv - last)
    def dsw(self, tags):
        last = max(self.td[t] for t in tags)
        if last <= self.dd: return None
        n = min(15, self.nd - last); self.dd = self.nd - n; return n
    def it(self, x):
        if isinstance(x, str): self(x)
        elif x[0] == "vm": self.nv += 1; self.tv[x[1]] = self.nv; self(x[2])
        elif x[0] == "ds": self.nd += 1; self.td[x[1]] = self.nd; self(x[2])
        elif x[0] == "wvm":
            n = self.vmw(x[1])
            if n is not None: self(f"s_waitcnt vmcnt({n})")
        elif x[0] == "wds":
            n = self.dsw(x[1])
            if n is not None: self(f"s_waitcnt lgkmcnt({n})")
        elif x[0] == "fn": x[1]()
    def its(self, L):
        for x in L: self.it(x)
    def sync(self, vtags, barrier=True):
        n = self.vmw(vtags) if vtags else None
        self.dd = self.nd
        self((f"s_waitcnt vmcnt({n}) lgkmcnt(0)" if n is not None else "s_waitcnt lgkmcnt(0)"))
        if barrier: self("s_barrier")
    def weave(self, mf, streams):
        sl = [interleave(mf, it, lo, hi) for it, lo, hi in streams if it]
        for i, m in enumerate(mf):
            self(m)
            for s in sl:
                for x in s[i]: self.it(x)
def lines(s): return [l.strip() for l in s.split("\n") if l.strip()]
def srd(A, d, lo, size):
    A(f"s_mov_b32 s{d}, s{lo}\ns_mov_b32 s{d+1}, s{lo+1}\ns_mov_b32 s{d+2}, {hex(size)}\ns_mov_b32 s{d+3}, 0x20000")
def srd_sel(A, d, lo0, lo1, size):
    A(f"s_cselect_b32 s{d}, s{lo0}, s{lo1}\ns_cselect_b32 s{d+1}, s{lo0+1}, s{lo1+1}\ns_mov_b32 s{d+2}, {hex(size)}\ns_mov_b32 s{d+3}, 0x20000")
def stamp(A, slot):
    if not TS: return
    A(f"s_memrealtime s[90:91]\ns_memtime s[88:89]\ns_waitcnt lgkmcnt(0)\ns_add_u32 s92, s94, {WS_TS + slot*8}")
    A.dd = A.nd
    A(f"v_mov_b32 v6, s90\nv_mov_b32 v7, s88\nv_mov_b32 v5, s92"); A.it(("vm", None, "global_store_dwordx2 v5, v[6:7], s[66:67]"))
def tick(A, idx, reg):
    if TS < 2: return
    if idx: A(f"v_writelane_b32 v{reg}, s88, {idx-1}")
    A("s_memtime s[88:89]")
def ptick(A, idx, reg):
    if TS < 2: return
    A(f"s_memtime s[88:89]\ns_waitcnt lgkmcnt(0)\nv_writelane_b32 v{reg}, s88, {idx}")
def tockdump(A, n, reg, area):
    if TS < 2: return
    A(f"s_waitcnt lgkmcnt(0)\nv_writelane_b32 v{reg}, s88, {n}\ns_lshl_b32 s92, s95, 8\ns_add_u32 s92, s92, {WS_TS + area}\nv_lshlrev_b32 v5, 2, v1\nv_add_u32 v5, s92, v5")
    A.it(("vm", None, f"global_store_dword v5, v{reg}, s[66:67]"))
def bc(n, which, hi=False):
    lo = [0]*n; h = [1]*n
    for w in which:
        if isinstance(w, tuple): lo[w[0]] = 1
        else: h[w] = 0
    s = ""
    if any(lo): s += " op_sel:[" + ",".join(map(str, lo)) + "]"
    s += " op_sel_hi:[" + ",".join(map(str, h)) + "]"
    return s
def B(r):
    return f"v[{r & ~1}:{(r & ~1)+1}]", (r & 1)
def pk(op, d, *src, neg=()):
    t = []; w = []
    src = list(src)
    if isinstance(src[1], tuple) and src[1][1] & 1:
        src[0], src[1] = src[1], src[0]; neg = tuple({0: 1, 1: 0}.get(n, n) for n in neg)
    for i, s in enumerate(src):
        if isinstance(s, tuple):
            x, hi = B(s[1]); t.append(x); w.append((i,) if hi else i)
        else:
            assert s % 2 == 0; t.append(f"v[{s}:{s+1}]")
    assert d % 2 == 0
    m = bc(len(src), w)
    if neg:
        nn = ",".join("1" if i in neg else "0" for i in range(len(src))); m += f" neg_lo:[{nn}] neg_hi:[{nn}]"
    return f"v_pk_{op}_f32 v[{d}:{d+1}], " + ", ".join(t) + m

def stats_job(R, scr):
    L0, U, T = R, R+10, R+30
    ld = [f"v_mov_b32 v9, {WS_EPOCH}", ("vm", "st", "global_load_dword v9, v9, s[66:67] sc1")]
    for i in range(5): ld.append(("vm", "st", f"buffer_load_dwordx2 v[{L0+2*i}:{L0+2*i+1}], v{T}, s[16:19], s75 offen offset:{256*i}"))
    c = [("wvm", ["st"])]
    for i in range(10): c += [f"v_lshlrev_b32 v{U+2*i}, 16, v{L0+i}", f"v_and_b32 v{U+2*i+1}, 0xffff0000, v{L0+i}"]
    def red(v, t):
        o = [f"v_add_f32 v{v}, v{v}, v{v+1}"]
        for r in (8, 4, 2, 1): o.append(f"v_add_f32_dpp v{v}, v{v}, v{v} row_ror:{r} row_mask:0xf bank_mask:0xf")
        o += [f"v_mov_b32 v{t}, v{v}", f"v_permlane16_swap_b32 v{v}, v{t}", f"v_add_f32 v{v}, v{v}, v{t}", f"v_mul_f32 v{v}, 0x3acccccd, v{v}"]
        return o
    c.append(pk("add", T, U, U+2))
    for i in range(2, 10): c.append(pk("add", T, T, U+2*i))
    c += red(T, T+1)
    for i in range(10): c.append(pk("add", U+2*i, U+2*i, ("b", T), neg=(1,)))
    c.append(pk("mul", T+2, U, U))
    for i in range(1, 10): c.append(pk("fma", T+2, U+2*i, U+2*i, T+2))
    c += red(T+2, T+3)
    c += lines(f"""v_cvt_pk_bf16_f32 v{T}, v{T}, v{T+2}
v_and_b32 v{T+2}, 0xffff0000, v{T}
v_add_f32 v{T+2}, 0x3727c5ac, v{T+2}
v_cvt_pk_bf16_f32 v{T+2}, v{T+2}, v{T+2}
v_and_b32 v{T+2}, 0xffff0000, v{T+2}
v_sqrt_f32 v{T+2}, v{T+2}
v_and_b32 v{T}, 0xffff, v{T}
v_cvt_pk_bf16_f32 v{T+2}, v{T+2}, v{T+2}
v_readfirstlane_b32 s96, v9
v_and_b32 v{T+2}, 0xffff0000, v{T+2}
v_or_b32 v{T}, v{T+2}, v{T}
v_lshrrev_b32 v{T+1}, 5, v0
v_lshlrev_b32 v{T+1}, 2, v{T+1}
v_add_u32 v{T+1}, {scr}, v{T+1}
s_add_u32 s96, s96, 1""")
    c.append(("ds", None, f"ds_write_b32 v{T+1}, v{T}"))
    f = lines(f"v_and_b32 v{T+1}, 7, v1\nv_lshlrev_b32 v{T+1}, 2, v{T+1}\nv_add_u32 v{T+1}, {scr}, v{T+1}") + [("ds", "stf", f"ds_read_b32 v{T}, v{T+1}")]
    f += lines(f"s_lshl_b32 s75, s2, 7\ns_add_u32 s75, s75, {WS_STAT}") + [("wds", ["stf"]), ("vm", "side", f"buffer_store_dword v{T}, v8, s[8:11], s75 offen sc1")]
    return ld, c, f
def prep_signal():
    return lines(f"v_lshlrev_b32 v2, 23, v0\nv_and_b32 v2, 0xfe000000, v2\nv_lshl_add_u32 v2, v1, 2, v2\nv_mov_b32 v3, s96\ns_lshl_b32 s75, s2, 4\ns_add_u32 s75, s75, {WS_PREP}") + \
        [("vm", None, "buffer_store_dword v3, v2, s[8:11], s75 offen sc1")]
def prep_poll(): return ["v_lshlrev_b32 v9, 4, v0", f"s_mov_b32 s75, {WS_PREP}", ("vm", "prep", "buffer_load_dword v9, v9, s[8:11], s75 offen sc1")]
def prep_check(A, name):
    A.it(("wvm", ["prep"]))
    A(f"v_cmp_ne_u32 vcc, s96, v9\ns_cbranch_vccz {name}_ok\ns_mov_b32 s76, 0x40000\ns_mov_b32 s75, {WS_PREP}")
    A.label(f"{name}_l")
    A(f"s_sleep 1\nv_lshlrev_b32 v9, 4, v0\nbuffer_load_dword v9, v9, s[8:11], s75 offen sc1\ns_waitcnt vmcnt(0)\nv_cmp_ne_u32 vcc, s96, v9\ns_sub_u32 s76, s76, 1\ns_cbranch_scc1 {name}_ok\ns_cbranch_vccnz {name}_l")
    A.label(f"{name}_ok")
def w2reg(i):
    i %= 12
    return 112 + 20*i if i < 7 else 20*(i-7)
def w2load(i):
    L = [f"s_add_u32 s79, s82, {i*5120}"]
    if i == 2: L += [f"s_cmp_eq_u32 s3, 3\ns_cselect_b32 s79, {hex(OOB)}, s79"]
    for nb in range(5):
        r = w2reg(i) + 4*nb
        L.append(("vm", ("w2", i), f"buffer_load_dwordx4 a[{r}:{r+3}], v{28+(nb>>2)}, s[8:11], s79 offen offset:{(nb&3)*1024} sc1"))
    return L


def spread(A, main, extra, lo=0, hi=None):
    sl = interleave(main, extra, lo, hi) if extra else [[] for _ in main]
    for i, x in enumerate(main):
        A.it(x)
        for y in sl[i]: A.it(y)
def sig_early(A, e, d, t):
    A(f"s_cmp_ge_u32 s{e}, 11\ns_cselect_b32 s{t}, 11, 0\ns_cselect_b32 s{d}, 48, 0\ns_sub_u32 s{t}, s{e}, s{t}\ns_add_u32 s{d}, s{d}, s{t}\ns_mul_i32 s{t}, s{t}, 43\ns_lshr_b32 s{t}, s{t}, 7\ns_mul_i32 s{t}, s{t}, 9\ns_add_u32 s{d}, s{d}, s{t}")
def sig_late(A, l, t):
    A(f"s_lshr_b32 s{t}, s{l}, 2\ns_lshl_b32 s{t}, s{t}, 3\ns_add_u32 s{l}, s{l}, s{t}\ns_add_u32 s{l}, s{l}, 3")
def sig_ssm(A, k, t):
    A(f"s_mul_i32 s{t}, s{k}, 52429\ns_lshr_b32 s{t}, s{t}, 18\ns_mul_i32 s{t}, s{t}, 7\ns_add_u32 s{k}, s{k}, s{t}\ns_add_u32 s{k}, s{k}, 7")
def common_setup(A):
    srd(A, 8, P["ws"], WS_END)
    A("v_lshlrev_b32 v28, 4, v1\nv_add_u32 v29, 4096, v28")
    A("v_lshlrev_b32 v8, 20, v0\nv_and_b32 v8, 0xfe000000, v8\nv_lshl_add_u32 v8, v1, 2, v8")
    A("s_and_b32 s28, s2, 1\ns_bfe_u32 s32, s2, 0x20001\ns_lshr_b32 s33, s2, 6\ns_lshl2_add_u32 s80, s32, s33\ns_bfe_u32 s81, s2, 0x30003\ns_lshl2_add_u32 s29, s28, s3")
    A(f"s_mul_i32 s32, s29, 12\ns_mul_i32 s33, s81, 96\ns_add_u32 s33, s33, s32\ns_mul_i32 s82, s33, 5120\ns_add_u32 s82, s82, {WS_W2P}")
    A(f"s_lshl1_add_u32 s33, s80, s28\ns_mul_i32 s34, s33, 96\ns_add_u32 s34, s34, s32\ns_lshl_b32 s83, s34, 12\ns_add_u32 s83, s83, {WS_H}")
    A(f"s_xor_b32 s33, s33, 1\ns_mul_i32 s34, s33, 96\ns_add_u32 s34, s34, s32\ns_lshl_b32 s30, s34, 12\ns_add_u32 s30, s30, {WS_H}")
    A(f"s_lshl_b32 s93, s80, 14\ns_add_u32 s93, s93, {WS_FLG}")
D2 = 4; ACCG = 96; ACCK = 176; HB = 32
STEPS = [("G",0),("K",0),("G",1),("K",1),("G",2),("K",2)] + [("G",i) for i in range(3,12)] + [("K",i) for i in range(3,12)]
def Hr(n, tb): return HB + (n % D2)*16 + tb*4
FN = {0: 6, 1: 8, 2: 3, 3: 1}
def fbase(g):
    if g == 0: return lines("s_mul_i32 s31, s28, 22\ns_mul_i32 s32, s3, 6\ns_add_u32 s31, s31, s32\ns_min_u32 s31, s31, 38\ns_lshl_b32 s31, s31, 7\ns_add_u32 s31, s31, s93")
    if g == 1: return lines("s_mul_i32 s31, s29, 172\ns_lshr_b32 s31, s31, 7\ns_lshl_b32 s31, s31, 9\ns_add_u32 s31, s31, s93\ns_add_u32 s31, s31, 5632")
    if g == 2: return lines("s_mul_i32 s31, s29, 5\ns_lshr_b32 s31, s31, 1\ns_lshl_b32 s31, s31, 7\ns_add_u32 s31, s31, s93\ns_add_u32 s31, s31, 11264")
    return lines(f"s_xor_b32 s31, s95, 4\ns_lshl_b32 s31, s31, 7\ns_add_u32 s31, s31, {WS_XF}")
def fpoll(g): return fbase(g) + [f"v_min_u32 v9, {FN[g]-1}, v1", "v_lshlrev_b32 v9, 7, v9", ("vm", "fl", "buffer_load_dword v9, v9, s[8:11], s31 offen sc1")]
def fcheck(A, name, g):
    A.it(("wvm", ["fl"]))
    A(f"v_cmp_ne_u32 vcc, s96, v9\ns_cbranch_vccz {name}_ok\ns_mov_b32 s76, 0x40000")
    A.label(f"{name}_l")
    A(f"v_min_u32 v9, {FN[g]-1}, v1\nv_lshlrev_b32 v9, 7, v9\nbuffer_load_dword v9, v9, s[8:11], s31 offen sc1\ns_waitcnt vmcnt(0)\nv_cmp_ne_u32 vcc, s96, v9\ns_sub_u32 s76, s76, 1\ns_cbranch_scc1 {name}_ok\ns_cbranch_vccnz {name}_l")
    A.label(f"{name}_ok")
def hload(n):
    hf, i = STEPS[n]
    L = [f"s_add_u32 s77, s{30 if hf == 'G' else 83}, {i*4096}"]
    if i == 2: L += [f"s_cmp_eq_u32 s3, 3\ns_cselect_b32 s77, {hex(OOB)}, s77"]
    for tb in range(4): L.append(("vm", ("h", n), f"buffer_load_dwordx4 v[{Hr(n,tb)}:{Hr(n,tb)+3}], v28, s[8:11], s77 offen offset:{tb*1024} sc1"))
    return L
def ph2_entry(A, name, lasttag, flagstore):
    fcheck(A, name, 0); stamp(A, 6)
    for i in range(D2-1): A.its(hload(i))
    A.it(("wvm", [lasttag])); A(flagstore)

W_SLOT = 20480; NWS = 4; X_BASE = NWS*W_SLOT; X_SLOT = 16384; F_SCR = X_BASE + 3*X_SLOT
def gen_ffn(A):
    import copy
    A("s_mul_i32 s70, s69, 160\ns_min_u32 s70, s70, 1568")
    A("s_lshl_b32 s32, s68, 7\ns_lshl_b32 s33, s3, 5\ns_add_u32 s32, s32, s33")
    A("v_lshrrev_b32 v2, 3, v1\nv_add_u32 v2, s32, v2\nv_mul_u32_u24 v2, 1280, v2\nv_lshrrev_b32 v3, 4, v1\nv_xor_b32 v3, v3, v1\nv_and_b32 v3, 7, v3\nv_lshlrev_b32 v3, 4, v3")
    A(f"v_add_u32 v15, v2, v3\nv_xor_b32 v3, 64, v3\nv_add_u32 v16, v2, v3\nv_add_u32 v16, {8*1280-1024}, v16\nv_add_u32 v17, {16*1280}, v15\nv_add_u32 v18, {16*1280}, v16")
    A(f"s_mul_i32 s73, s3, 5120\ns_lshl_b32 s74, s3, 12\ns_add_u32 s74, s74, {X_BASE}")
    A("s_mul_i32 s32, s71, 320\ns_lshl_b32 s33, s70, 1\ns_movk_i32 s34, 3277")
    for i in range(5):
        A(f"v_add_u32 v2, s32, v1\nv_add_u32 v2, {64*i}, v2\nv_mul_u32_u24 v3, s34, v2\nv_lshrrev_b32 v3, 16, v3")
        A("v_mul_u32_u24 v4, 20, v3\nv_sub_u32 v4, v2, v4\nv_lshrrev_b32 v5, 2, v3\nv_and_b32 v5, 2, v5\nv_xor_b32 v4, v4, v5")
        A(f"v_mul_u32_u24 v3, 3456, v3\nv_lshl_add_u32 v3, v4, 4, v3\nv_add_u32 v3, s33, v3\nv_subrev_u32 v{10+i}, {1024*(i&3)}, v3")
    def dmaW(s):
        L = [f"s_add_u32 m0, s73, {(s%NWS)*W_SLOT}", f"s_mov_b32 s77, {s*32*3456}"]
        for i in range(5):
            if i == 4: L.append(f"s_add_u32 m0, s73, {(s%NWS)*W_SLOT+4096}")
            L.append(("vm", ("W", s), f"buffer_load_dwordx4 v{10+i}, s[12:15], s77 offen offset:{1024*(i&3)} lds"))
        return L
    def dmaX(u, hs=(0, 1)):
        L = []
        for h in hs:
            L += [f"s_add_u32 m0, s74, {(u%3)*X_SLOT+2048*h}", f"s_movk_i32 s78, {u*128}"]
            for i in range(2): L.append(("vm", ("X", u), f"buffer_load_dwordx4 v{15+2*h+i}, s[16:19], s78 offen offset:{1024*i} lds"))
        return L
    st_ld, st_c, st_f = stats_job(32, X_BASE + 2*X_SLOT)
    A("s_waitcnt lgkmcnt(0)")
    if TS >= 2: A("v_writelane_b32 v19, s4, 32")
    ptick(A, 33, 19)
    srd(A, 16, P["x"], SZ_X)
    A.its(st_ld)
    A("s_cmp_eq_u32 s72, 0"); srd_sel(A, 12, P["w1"], P["w3"], SZ_W)
    A.its(dmaX(0) + dmaW(0)); ptick(A, 34, 19)
    common_setup(A)
    A("v_lshrrev_b32 v2, 4, v1\nv_bfe_u32 v3, v1, 2, 2\nv_lshl_add_u32 v3, v2, 3, v3\nv_mul_u32_u24 v3, 320, v3")
    A("v_and_b32 v4, 3, v1\nv_lshl_add_u32 v3, v4, 3, v3\nv_and_b32 v4, 1, v2\nv_lshlrev_b32 v4, 5, v4")
    A("s_mul_i32 s32, s72, 192\nv_add_u32 v5, s32, v3\nv_add_u32 v20, v5, v4\nv_sub_u32 v21, v5, v4")
    A("s_lshl_b32 s32, s72, 5\ns_add_u32 s32, s32, 128\nv_xor_b32 v5, s32, v4\nv_add_u32 v22, v3, v5")
    for i in range(3): A(f"v_add_u32 v{23+i}, {3*W_SLOT}, v{20+i}")
    A("v_and_b32 v3, 15, v1\nv_lshrrev_b32 v4, 1, v3\nv_xor_b32 v4, v4, v2\nv_lshlrev_b32 v4, 4, v4\nv_lshl_add_u32 v3, v3, 7, v4")
    A(f"s_lshl_b32 s32, s71, 13\ns_add_u32 s32, s32, {X_BASE}\nv_add_u32 v26, s32, v3\nv_xor_b32 v27, 64, v26")
    A("s_lshl1_add_u32 s32, s69, s72"); sig_early(A, 32, 84, 33)
    A("s_mul_i32 s33, s69, 3\ns_cmp_eq_u32 s69, 10\ns_cselect_b32 s34, 1, 0\ns_sub_u32 s33, s33, s34\ns_lshl1_add_u32 s85, s72, s33\ns_add_u32 s86, s33, 1")
    sig_late(A, 85, 34); sig_late(A, 86, 34)
    A(f"s_lshl1_add_u32 s33, s68, s71\ns_mul_i32 s34, s33, 96")
    for r in (84, 85, 86): A(f"s_add_u32 s{r}, s{r}, s34\ns_lshl_b32 s{r}, s{r}, 12\ns_add_u32 s{r}, s{r}, {WS_H}")
    A(f"s_cmp_eq_u32 s32, 19\ns_cselect_b32 s85, {hex(OOB)}, s85")
    A(f"s_lshl1_add_u32 s87, s32, s71\ns_lshl_b32 s33, s68, 7\ns_add_u32 s87, s87, s33\ns_lshl_b32 s87, s87, 7\ns_add_u32 s87, s87, {WS_FLG}")
    ep_ld = lines(f"s_mul_i32 s75, s3, 6912\ns_lshl2_add_u32 s75, s70, s75\ns_add_u32 s75, s75, {WS_CS}\ns_cmp_lt_u32 s3, 2\ns_cselect_b32 s75, s75, {hex(OOB)}\ns_add_u32 s76, s75, {CS_HALF}\nv_min_u32 v2, 624, v28")
    ep_ld += [("vm", "ep", "buffer_load_dwordx4 v[56:59], v2, s[8:11], s75 offen sc1"), ("vm", "ep", "buffer_load_dwordx4 v[60:63], v2, s[8:11], s76 offen sc1")]
    ep_ld += lines(f"v_and_b32 v2, 7, v1\nv_lshlrev_b32 v2, 2, v2\nv_and_b32 v3, 8, v1\nv_lshl_add_u32 v2, v3, 4, v2\ns_lshl1_add_u32 s75, s68, s71\ns_lshl_b32 s75, s75, 10\ns_add_u32 s75, s75, {WS_STAT}")
    for tb in range(4): ep_ld.append(("vm", "ep", f"buffer_load_dword v{40+tb}, v2, s[8:11], s75 offen offset:{256*tb} sc1"))
    ep_w = [("wvm", ["ep"])] + [f"v_add_f32 v{56+e}, v{56+e}, v{60+e}" for e in range(4)] + lines(f"s_lshl_b32 s75, s3, 10\ns_add_u32 s75, s75, {F_SCR}\nv_add_u32 v2, s75, v28") + [("ds", None, "ds_write_b128 v2, v[56:59]")]
    ep_r = lines(f"v_and_b32 v2, 48, v1\ns_mul_i32 s75, s72, 384\ns_add_u32 s75, s75, {F_SCR}\nv_add_u32 v3, s75, v2\ns_lshl_b32 s75, s72, 6\ns_add_u32 s75, s75, {F_SCR+256}\nv_add_u32 v2, s75, v2")
    for j in range(10):
        pr, m = j >> 1, j & 1
        ep_r.append(("ds", None, f"ds_read_b128 v[{56+4*j}:{59+4*j}], v{2 if pr == 4 else 3} offset:{1024*m + (0 if pr == 4 else 64*pr)}"))
    ep_c = [("wvm", ["ep"])]
    for tb in range(4):
        ep_c += lines(f"v_lshlrev_b32 v{44+tb}, 16, v{40+tb}\nv_and_b32 v{52+tb}, 0xffff0000, v{40+tb}\nv_rcp_f32 v{48+tb}, v{52+tb}\nv_mul_f32 v{52+tb}, v{52+tb}, v{52+tb}\nv_mul_f32 v{48+tb}, 0xbfb8aa3b, v{48+tb}")
    ep_a = lines("v_lshrrev_b32 v2, 4, v1\nv_and_b32 v3, 1, v2\nv_lshlrev_b32 v3, 10, v3\nv_lshrrev_b32 v2, 1, v2\nv_lshl_add_u32 v3, v2, 8, v3")
    ep_a += lines("v_and_b32 v2, 15, v1\nv_lshl_add_u32 v3, v2, 4, v3\ns_lshl_b32 s75, s72, 9\nv_add_u32 v11, s75, v3\nv_lshlrev_b32 v12, 20, v1\nv_and_b32 v12, 0xfe000000, v12\nv_lshl_add_u32 v12, v1, 2, v12\nv_mov_b32 v13, s96\ns_add_u32 s78, s87, 5632")
    ACC = 96
    def acc(j, tb): return ACC + (j*4+tb)*4
    def Wr(par, j): return par*56 + j*4
    def Xr(par, tb): return par*56 + 40 + tb*4
    def reads(s):
        par = s & 1; L = []; sl = s % NWS; hi = 3 if sl >= 3 else 0; so = (sl - hi)*W_SLOT
        for tb in range(4): L.append(("ds", None, f"ds_read_b128 a[{Xr(par,tb)}:{Xr(par,tb)+3}], v{26+(s&1)} offset:{((s>>1)%3)*X_SLOT + tb*2048}"))
        for j in range(10):
            pr, m = j >> 1, j & 1; ar = 22 if pr == 4 else 20 + (pr & 1); co = 0 if pr == 4 else pr*32
            for hh in range(2): L.append(("ds", None, f"ds_read_b64_tr_b16 a[{Wr(par,j)+2*hh}:{Wr(par,j)+2*hh+1}], v{ar+hi} offset:{so + m*10240 + hh*1280 + co}"))
        return L
    wl = sum((w2load(i) for i in range(7)), []); n4 = (len(wl)+3)//4
    def loop(role, side):
        sched = {0: st_f + dmaW(3), 1: dmaX(2) + dmaW(4), 2: dmaW(5), 3: dmaX(3) + dmaW(6), 4: dmaW(7) + dmaW(8), 5: dmaX(4) + dmaW(9), 6: dmaW(10) + dmaX(5)}
        for s in range(7, 16): sched[s] = dmaW(s+4) + (dmaX((s+5) >> 1, ((s+1) & 1,)) if s < 15 else [])
        sched[8] = prep_signal() + sched[8]
        for s, L in side.items(): sched[s] = sched[s] + L
        sched[13] = prep_poll() + sched[13]
        sched[15] += ep_ld; sched[16] = wl[:n4]; sched[17] = wl[n4:2*n4] + ep_w + ep_a; sched[18] = ep_r + wl[2*n4:3*n4]; sched[19] = ep_c + wl[3*n4:]
        A.its(dmaW(1))
        ptick(A, 35, 19); A.its(st_c[:1]); ptick(A, 36, 19); A.its(st_c[1:]); ptick(A, 37, 19)
        A.its(dmaX(1))
        A.sync([("X", 0), ("W", 0)]); ptick(A, 38, 19); stamp(A, 1)
        A.its(reads(0) + dmaW(2))
        for s in range(20):
            tags = [("W", s+1), ("X", (s+1) >> 1)] if s < 19 else []
            if s == 8: tags.append("side")
            if s == 15: prep_check(A, role + "P")
            A.sync(tags)
            tick(A, s, 19)
            par = s & 1; mf = []
            for j in range(10):
                for tb in range(4):
                    c = acc(j, tb); mf.append(f"{MF} v[{c}:{c+3}], a[{Wr(par,j)}:{Wr(par,j)+3}], a[{Xr(par,tb)}:{Xr(par,tb)+3}], " + (f"v[{c}:{c+3}]" if s else "0"))
            A.weave(mf, [(reads(s+1) if s < 19 else [], 0, 30), (sched.get(s, []), 0, 39)])
    A("s_mul_i32 s32, s68, 11\ns_add_u32 s32, s32, s69\ns_cmp_ge_u32 s32, 108\ns_cbranch_scc1 FB_a")
    snap = (A.nv, dict(A.tv), A.dv, A.nd, dict(A.td), A.dd)
    A("s_lshr_b32 s33, s32, 1\ns_and_b32 s34, s32, 1\ns_cmp_lt_u32 s33, 27"); srd_sel(A, 24, P["w1"], P["w3"], SZ_W)
    A(f"s_cselect_b32 s35, 0, 27\ns_sub_u32 s35, s33, s35\ns_lshl_b32 s35, s35, 7\ns_lshl2_add_u32 s97, s34, s3\ns_mul_i32 s97, s97, {80*3456}\ns_add_u32 s97, s97, s35")
    A(f"s_lshl_b32 s98, s33, 8\ns_mul_i32 s34, s34, {CS_HALF}\ns_add_u32 s98, s98, s34\ns_add_u32 s98, s98, {WS_CS}\ns_cmp_eq_u32 s3, 0\ns_cselect_b32 s98, s98, {hex(OOB)}")
    A("v_lshrrev_b32 v2, 3, v1\nv_mul_u32_u24 v2, 3456, v2\nv_and_b32 v3, 7, v1\nv_lshl_add_u32 v30, v3, 4, v2\nv_and_b32 v2, 15, v1")
    for r in range(4):
        A(f"v_cmp_eq_u32 vcc, {2*r}, v2\nv_mov_b32 v3, 0x3f80\nv_cndmask_b32 v{72+r}, 0, v3, vcc\nv_cmp_eq_u32 vcc, {2*r+1}, v2\nv_lshlrev_b32 v3, 16, v3\nv_cndmask_b32 v{72+r}, v{72+r}, v3, vcc")
    A(f"v_and_b32 v2, 7, v1\nv_lshlrev_b32 v2, 5, v2\nv_and_b32 v3, 16, v1\nv_add_u32 v2, v2, v3\ns_lshl_b32 s75, s3, 8\ns_add_u32 s75, s75, {F_SCR}\nv_add_u32 v2, s75, v2\nv_and_b32 v3, 32, v1\nv_lshl_add_u32 v80, v3, 5, v2")
    A(f"v_lshlrev_b32 v82, 2, v1\nv_add_u32 v81, {F_SCR}, v82")
    cs_ld = []
    for i in range(10): cs_ld += [f"s_add_u32 s75, s97, {i*8*3456}", ("vm", "csl", f"buffer_load_dwordx4 a[{112+4*i}:{115+4*i}], v30, s[24:27], s75 offen")]
    cs_c = [("wvm", ["csl"])]
    for i in range(10): cs_c.append(f"{MF} v[76:79], v[72:75], a[{112+4*i}:{115+4*i}], " + ("v[76:79]" if i else "0"))
    cs_c += ["s_nop 0"]*4
    for r in (8,):
        for e in range(4): cs_c.append(f"v_add_f32_dpp v{76+e}, v{76+e}, v{76+e} row_ror:{r} row_mask:0xf bank_mask:0xf")
    cs_c.append(("ds", None, "ds_write_b128 v80, v[76:79]"))
    cs_f = [("ds", "csf", f"ds_read_b32 v{72+w}, v81 offset:{256*w}") for w in range(4)]
    cs_g = [("wds", ["csf"]), "v_add_f32 v72, v72, v73", "v_add_f32 v74, v74, v75", "v_add_f32 v72, v72, v74", ("vm", "side", "buffer_store_dword v72, v82, s[8:11], s98 offen sc1")]
    loop("FA", {0: cs_ld[:8], 1: cs_ld[8:10], 2: cs_ld[10:], 4: cs_c, 5: cs_f + ["s_nop 0"]*2 + cs_g})
    A("s_branch FFN_EP")
    A.nv, A.tv, A.dv, A.nd, A.td, A.dd = snap
    A.label("FB_a")
    A("s_sub_u32 s34, s32, 108")
    srd(A, 20, P["w2"], SZ_W)
    A("s_lshl2_add_u32 s32, s34, s3\ns_mul_i32 s34, s32, 52429\ns_lshr_b32 s34, s34, 18\ns_mul_i32 s33, s34, 5\ns_sub_u32 s33, s32, s33")
    A("s_mul_i32 s99, s34, 40960\ns_lshl_b32 s35, s33, 8\ns_add_u32 s99, s99, s35")
    A("s_mul_i32 s35, s34, 52429\ns_lshr_b32 s35, s35, 18\ns_mul_i32 s75, s35, 5\ns_sub_u32 s75, s34, s75\ns_sub_u32 s76, s34, 49\ns_cmp_ge_u32 s34, 49\ns_cselect_b32 s35, 10, s35\ns_cselect_b32 s75, s76, s75")
    A("s_cmp_eq_u32 s75, 3\ns_cselect_b32 s76, 1, 0\ns_lshl1_add_u32 s76, s35, s76"); sig_early(A, 76, 100, 79)
    A("s_mul_i32 s76, s35, 3\ns_lshr_b32 s79, s75, 1\ns_add_u32 s76, s76, s79\ns_cmp_eq_u32 s35, 10\ns_cselect_b32 s79, 1, 0\ns_sub_u32 s76, s76, s79"); sig_late(A, 76, 79)
    A("s_lshr_b32 s79, 9, s75\ns_bitcmp1_b32 s79, 0\ns_cselect_b32 s100, s100, s76")
    A(f"s_mul_i32 s100, s100, 5120\ns_lshl_b32 s79, s33, 13\ns_add_u32 s100, s100, s79\ns_add_u32 s100, s100, {WS_W2P}")
    A(f"s_cmp_lt_u32 s32, 270\ns_cselect_b32 s99, s99, {hex(OOB)}\ns_cselect_b32 s100, s100, {hex(OOB)}")
    SO = (4, 5, 6, 7, 24, 25, 26, 27)
    for k in range(8):
        A(f"s_lshl_b32 s79, s33, 3\ns_add_u32 s79, s79, {k}\ns_mul_i32 s79, s79, 52429\ns_lshr_b32 s79, s79, 18\ns_mul_i32 s79, s79, 486400\ns_add_u32 s{SO[k]}, s100, s79")
    A("s_cmp_eq_u32 s75, 2\ns_cselect_b32 s75, 8, 4\ns_cselect_b32 s76, 1, 4\ns_lshl_b32 s76, s76, 10")
    A(f"v_lshrrev_b32 v2, 4, v1\nv_mul_u32_u24 v30, 1280, v2\nv_and_b32 v3, 15, v1\nv_lshl_add_u32 v30, v3, 4, v30")
    A(f"v_mul_u32_u24 v2, s75, v2\nv_bfe_u32 v3, v1, 2, 2\nv_add_u32 v2, v2, v3\nv_lshlrev_b32 v2, 8, v2\nv_and_b32 v3, 3, v1\nv_lshl_add_u32 v2, v3, 3, v2")
    A(f"s_lshl_b32 s101, s3, 13\ns_add_u32 s101, s101, {F_SCR}\nv_add_u32 v80, s101, v2\nv_add_u32 v81, s76, v80")
    w2_ld = []
    for i in range(8): w2_ld += [f"s_add_u32 m0, s101, {1024*i}", f"s_add_u32 s75, s99, {5120*i}", ("vm", "w2l", "buffer_load_dwordx4 v30, s[20:23], s75 offen lds")]
    w2_c = [("wvm", ["w2l"])]
    for k in range(8):
        for hh in range(2): w2_c.append(("ds", "w2t", f"ds_read_b64_tr_b16 a[{152+4*k+2*hh}:{153+4*k+2*hh}], v{80+hh} offset:{32*k}"))
    w2_s = [("vm", "side", f"buffer_store_dwordx4 a[{152+4*k}:{155+4*k}], v{28+(k>>2)}, s[8:11], s{SO[k]} offen offset:{(k&3)*1024} sc1") for k in range(8)]
    loop("FB", {0: w2_ld[:12], 2: w2_ld[12:], 4: w2_c, 5: w2_s})
    A.label("FFN_EP"); A.reset()
    A("s_waitcnt lgkmcnt(0)"); tick(A, 20, 19); tockdump(A, 20, 19, 0x40000)
    stamp(A, 2)
    A("s_nop 6")
    T = 32
    def silu(pr, tb, dst):
        g, u = acc(2*pr, tb), acc(2*pr+1, tb); cg, cu = 56+8*pr, 60+8*pr
        L = []
        for k in (0, 2): L.append(pk("fma", g+k, cg+k, ("b", 44+tb), g+k, neg=(1,)))
        for k in (0, 2): L.append(pk("mul", T+k, g+k, ("b", 48+tb)))
        for k in (0, 2): L.append(pk("fma", u+k, cu+k, ("b", 44+tb), u+k, neg=(1,)))
        for e in range(4): L.append(f"v_exp_f32 v{T+e}, v{T+e}")
        for k in (0, 2): L.append(pk("mul", g+k, g+k, u+k))
        for k in (0, 2): L.append(pk("fma", T+k, T+k, ("b", 52+tb), ("b", 52+tb)))
        for e in range(4): L.append(f"v_rcp_f32 v{T+e}, v{T+e}")
        for k in (0, 2): L.append(pk("mul", g+k, g+k, T+k))
        L += [f"v_cvt_pk_bf16_f32 v{dst}, v{g}, v{g+1}", f"v_cvt_pk_bf16_f32 v{dst+1}, v{g+2}, v{g+3}"]
        return L
    ep = []
    for fr in range(2):
        for tb in range(4):
            o = acc(4*fr+1, tb)
            ep += silu(2*fr, tb, o) + silu(2*fr+1, tb, o+2)
            if fr == 1 and tb == 3: ep += [("wvm", [("H", 0)]), ("vm", None, "buffer_store_dword v13, v12, s[8:11], s87 offen sc1")]
            ep.append(("vm", ("H", fr), f"buffer_store_dwordx4 v[{o}:{o+3}], v28, s[8:11], s{84+fr} offen offset:{tb*1024} sc1"))
    nmid = len(ep)
    for tp in range(2):
        o = acc(9, 2*tp)
        ep += silu(4, 2*tp, o) + silu(4, 2*tp+1, o+2)
        ep += [f"v_permlane16_swap_b32 v{o}, v{o+2}", f"v_permlane16_swap_b32 v{o+1}, v{o+3}"]
        if tp == 1: ep += fpoll(0)
        ep.append(("vm", ("H", 2), f"buffer_store_dwordx4 v[{o}:{o+3}], v11, s[8:11], s86 offen offset:{tp*2048} sc1"))
    spread(A, ep, sum((w2load(i) for i in range(7, 12)), []), 4, nmid)
    stamp(A, 3)
    ph2_entry(A, "FC0", ("H", 2), "buffer_store_dword v13, v12, s[8:11], s78 offen sc1")
    A("s_branch PH2")

S_SLOT = 49152; S_SCR = 3*S_SLOT
def gen_ssm(A):
    A.reset()
    A("s_lshl_b32 s32, s68, 8\ns_lshl_b32 s33, s72, 7\ns_add_u32 s32, s32, s33\ns_lshl_b32 s33, s71, 3\ns_add_u32 s32, s32, s33")
    A("v_and_b32 v2, 32, v1\nv_bfe_u32 v3, v1, 3, 1\nv_lshl_add_u32 v2, v3, 4, v2\nv_bfe_u32 v3, v1, 4, 1\nv_add3_u32 v2, v2, v3, s32\nv_mul_u32_u24 v2, 1280, v2")
    A("v_lshrrev_b32 v3, 4, v1\nv_xor_b32 v3, v3, v1\nv_and_b32 v3, 7, v3\nv_lshlrev_b32 v3, 4, v3\nv_xor_b32 v4, 64, v3\nv_add_u32 v5, v2, v3\nv_add_u32 v6, v2, v4")
    for ii in range(8): A(f"v_add_u32 v{10+ii}, {(64*(ii&1) + 2*(ii>>1))*1280 - 1024*(ii&3)}, v{5+(ii&1)}")
    A("s_lshl_b32 s32, s69, 6\ns_lshl_b32 s33, s71, 5\ns_add_u32 s32, s32, s33")
    A("v_lshrrev_b32 v2, 3, v1\nv_add_u32 v2, s32, v2\nv_mul_u32_u24 v2, 1280, v2\nv_add_u32 v5, v2, v3\nv_add_u32 v6, v2, v4")
    for i in range(4): A(f"v_add_u32 v{18+i}, {8*i*1280 - 1024*i}, v{5+(i&1)}")
    A("s_lshl_b32 s73, s3, 13\ns_lshl_b32 s74, s3, 12\ns_add_u32 s74, s74, 32768\ns_waitcnt lgkmcnt(0)")
    srd(A, 16, P["x"], SZ_X)
    st_ld, st_c, st_f = stats_job(32, S_SCR)
    A.its(st_ld)
    A("s_cmp_eq_u32 s72, 0"); srd_sel(A, 12, P["bre"], P["bim"], SZ_B)
    def dma(u, hs=(0, 1)):
        b = (u % 3)*S_SLOT; L = []
        for h in hs:
            L += [f"s_add_u32 m0, s73, {b+4096*h}", f"s_movk_i32 s78, {u*128}"]
            for i in range(4): L.append(("vm", ("S", u), f"buffer_load_dwordx4 v{10+4*h+i}, s[16:19], s78 offen offset:{1024*i} lds"))
            L.append(f"s_add_u32 m0, s74, {b}")
            for i in range(2): L.append(("vm", ("S", u), f"buffer_load_dwordx4 v{18+2*h+i}, s[12:15], s78 offen offset:{1024*(2*h+i)} lds"))
        return L
    A.its(dma(0))
    A("s_lshl_b32 s32, s69, 6\ns_lshl_b32 s33, s72, 5\ns_add_u32 s32, s32, s33\nv_and_b32 v2, 15, v1\nv_add_u32 v30, s32, v2\nv_lshlrev_b32 v2, 1, v30")
    for cb in range(2):
        for q, sp in enumerate((P["lre"], P["lim"], P["ldt"])):
            A.it(("vm", "P", f"global_load_ushort v{110+3*cb+q}, v2, s[{sp}:{sp+1}] offset:{32*cb}"))
    common_setup(A)
    A("v_lshrrev_b32 v2, 4, v1\nv_and_b32 v3, 15, v1\nv_lshrrev_b32 v4, 1, v3\nv_xor_b32 v4, v4, v2\nv_lshlrev_b32 v4, 4, v4\nv_lshl_add_u32 v3, v3, 7, v4")
    A("s_lshl_b32 s32, s71, 14\ns_lshl_b32 s33, s72, 12\ns_add_u32 s33, s33, 32768")
    A("v_add_u32 v22, s32, v3\nv_xor_b32 v23, 64, v22\nv_add_u32 v120, s33, v3\nv_xor_b32 v121, 64, v120")
    for sl in (1, 2):
        for ks in range(2): A(f"v_add_u32 v{22+2*sl+ks}, {sl*S_SLOT}, v{22+ks}\nv_add_u32 v{120+2*sl+ks}, {sl*S_SLOT}, v{120+ks}")
    A("s_lshl_b32 s32, s71, 2\nv_lshrrev_b32 v31, 4, v1\nv_add_u32 v31, s32, v31")
    A("s_lshl1_add_u32 s32, s69, s72\ns_lshl_b32 s84, s32, 1\ns_add_u32 s85, s84, 1"); sig_ssm(A, 84, 33); sig_ssm(A, 85, 33)
    A(f"s_lshl1_add_u32 s34, s68, s71\ns_mul_i32 s35, s34, 192")
    for r in (84, 85): A(f"s_add_u32 s{r}, s{r}, s35\ns_lshl_b32 s{r}, s{r}, 12\ns_add_u32 s{r}, s{r}, {WS_H}")
    A(f"s_lshl_b32 s87, s34, 7\ns_add_u32 s87, s87, s32\ns_lshl_b32 s87, s87, 7\ns_add_u32 s87, s87, {WS_FLG+88*128}")
    A("s_mul_i32 s32, s68, 10\ns_add_u32 s32, s32, s69\ns_lshl2_add_u32 s32, s32, s3\ns_lshr_b32 s33, s32, 3\ns_and_b32 s34, s32, 7")
    A("s_bitcmp0_b32 s33, 0"); srd_sel(A, 20, P["cre"], P["cim"], SZ_B)
    A("s_mul_i32 s99, s34, 102400\ns_lshr_b32 s35, s33, 1\ns_lshl_b32 s35, s35, 6\ns_add_u32 s99, s99, s35")
    sig_ssm(A, 33, 35)
    A(f"s_mul_i32 s34, s34, 96\ns_add_u32 s33, s33, s34\ns_mul_i32 s100, s33, 5120\ns_add_u32 s100, s100, {WS_W2P}")
    A("s_cmp_lt_u32 s32, 160"); srd_sel(A, 24, P["bre"], P["bim"], SZ_B)
    A(f"s_cselect_b32 s33, 0, 160\ns_sub_u32 s33, s32, s33\ns_mul_i32 s97, s33, 5120\ns_lshl_b32 s98, s32, 7\ns_add_u32 s98, s98, {WS_CSB}")
    A("v_lshrrev_b32 v2, 2, v1\nv_mul_u32_u24 v2, 1280, v2\nv_and_b32 v3, 3, v1\nv_lshl_add_u32 v66, v3, 4, v2")
    A("v_and_b32 v2, 15, v1\nv_lshrrev_b32 v3, 4, v1\nv_lshl_add_u32 v2, v2, 2, v3\nv_lshlrev_b32 v67, 2, v2")
    A("v_bfe_u32 v2, v1, 2, 2\nv_mul_u32_u24 v2, 1280, v2\nv_and_b32 v3, 3, v1\nv_lshl_add_u32 v2, v3, 4, v2\nv_lshrrev_b32 v3, 4, v1\nv_lshl_add_u32 v108, v3, 6, v2")
    A("v_lshlrev_b32 v2, 20, v1\nv_and_b32 v2, 0xfe000000, v2\nv_lshl_add_u32 v109, v1, 2, v2")
    for r in range(4): A(f"v_mov_b32 v{68+r}, 0x3f803f80")
    c_ld = []
    for nb in range(5): c_ld += [f"s_add_u32 s75, s99, {nb*20480}", ("vm", "cl", f"buffer_load_dwordx4 v[{32+4*nb}:{35+4*nb}], v66, s[20:23], s75 offen")]
    c_p = [("wvm", ["cl"])] + [("ds", None, f"ds_bpermute_b32 v{32+r}, v67, v{32+r}") for r in range(20)]
    c_s = [("vm", "side", f"buffer_store_dwordx4 v[{32+4*nb}:{35+4*nb}], v{28+(nb>>2)}, s[8:11], s100 offen offset:{(nb&3)*1024} sc1") for nb in range(5)]
    b_ld = [("vm", "bl", f"buffer_load_dwordx4 a[{112+4*i}:{115+4*i}], v108, s[24:27], s97 offen offset:{256*i}") for i in range(5)]
    b_c = [("wvm", ["bl"])]
    for i in range(5): b_c.append(f"{MF} v[116:119], v[68:71], a[{112+4*i}:{115+4*i}], " + ("v[116:119]" if i else "0"))
    b_c += ["s_nop 0"]*3
    b_c += ["v_add_f32_dpp v116, v116, v116 quad_perm:[1,0,3,2] row_mask:0xf bank_mask:0xf", "v_add_f32_dpp v116, v116, v116 quad_perm:[2,3,0,1] row_mask:0xf bank_mask:0xf",
            ("vm", "side", "buffer_store_dword v116, v109, s[8:11], s98 offen sc1")]
    clr = lines("s_mul_i32 s75, s68, 5120\ns_lshl_b32 s76, s69, 9\ns_add_u32 s75, s75, s76\ns_lshl_b32 s76, s3, 7\ns_add_u32 s75, s75, s76\nv_mov_b32 v4, -1") + [("vm", "side", "buffer_store_dword v4, v109, s[8:11], s75 offen sc1")]
    NM = "LR LI CA CB L16R L16I L32R L32I L256R L256I QR QI PR PI T0 T1 CSR CSI".split()
    def Pm(cb): return dict(zip(NM, range(72+18*cb, 72+18*cb+18)))
    par_c = [("wvm", ["P"])]
    def csq(r, i, t): return lines(f"v_mul_f32 v{t}, v{i}, v{i}\nv_mul_f32 v{i}, v{r}, v{i}\nv_fma_f32 v{r}, v{r}, v{r}, -v{t}\nv_add_f32 v{i}, v{i}, v{i}")
    for cb in range(2):
        p = Pm(cb); i0 = 110 + 3*cb; t0, t1, t2, t3 = p['PR'], p['PI'], p['T0'], p['T1']
        par_c += lines(f"""v_lshlrev_b32 v{i0}, 16, v{i0}
v_lshlrev_b32 v{i0+1}, 16, v{i0+1}
v_lshlrev_b32 v{i0+2}, 16, v{i0+2}
v_mul_f32 v{t0}, 0x3fb8aa3b, v{i0+2}
v_exp_f32 v{t0}, v{t0}
v_cvt_pk_bf16_f32 v{t0}, v{t0}, v{t0}
v_and_b32 v{t0}, 0xffff0000, v{t0}
v_mul_f32 v{t1}, v{t0}, v{i0}
v_mul_f32 v{t2}, v{t0}, v{i0+1}
v_mul_f32 v{t1}, 0x3fb8aa3b, v{t1}
v_mul_f32 v{t2}, 0.15915494, v{t2}
v_exp_f32 v{t1}, v{t1}
v_fract_f32 v{t2}, v{t2}
v_cos_f32 v{p['LR']}, v{t2}
v_sin_f32 v{p['LI']}, v{t2}
v_mul_f32 v{p['LR']}, v{p['LR']}, v{t1}
v_mul_f32 v{p['LI']}, v{p['LI']}, v{t1}
v_add_f32 v{t0}, -1.0, v{p['LR']}
v_mul_f32 v{t1}, v{i0}, v{i0}
v_fmac_f32 v{t1}, v{i0+1}, v{i0+1}
v_rcp_f32 v{t1}, v{t1}
v_mul_f32 v{t2}, v{t0}, v{i0}
v_add_f32 v{t1}, v{t1}, v{t1}
v_fmac_f32 v{t2}, v{p['LI']}, v{i0+1}
v_mul_f32 v{p['CA']}, v{t2}, v{t1}
v_mul_f32 v{t2}, v{p['LI']}, v{i0}
v_fma_f32 v{t2}, -v{t0}, v{i0+1}, v{t2}
v_mul_f32 v{p['CB']}, v{t2}, v{t1}
v_mov_b32 v{p['L16R']}, v{p['LR']}
v_mov_b32 v{p['L16I']}, v{p['LI']}""")
        for _ in range(4): par_c += csq(p['L16R'], p['L16I'], t0)
        par_c += [f"v_mov_b32 v{p['L32R']}, v{p['L16R']}", f"v_mov_b32 v{p['L32I']}, v{p['L16I']}"] + csq(p['L32R'], p['L32I'], t0)
        par_c += lines(f"v_mov_b32 v{p['L256R']}, v{p['L32R']}\nv_mov_b32 v{p['L256I']}, v{p['L32I']}\nv_mov_b32 v{p['QR']}, 1.0\nv_mov_b32 v{p['QI']}, 0")
        for bit in range(3):
            par_c += lines(f"""v_and_b32 v{t0}, {1<<bit}, v31
v_cmp_ne_u32 vcc, 0, v{t0}
v_mul_f32 v{t0}, v{p['QR']}, v{p['L256R']}
v_fma_f32 v{t0}, -v{p['QI']}, v{p['L256I']}, v{t0}
v_mul_f32 v{t1}, v{p['QR']}, v{p['L256I']}
v_fmac_f32 v{t1}, v{p['QI']}, v{p['L256R']}
v_cndmask_b32 v{p['QR']}, v{p['QR']}, v{t0}, vcc
v_cndmask_b32 v{p['QI']}, v{p['QI']}, v{t1}, vcc""") + csq(p['L256R'], p['L256I'], t0)
    ep_ld = lines(f"v_lshrrev_b32 v2, 3, v0\nv_lshlrev_b32 v2, 7, v2\nv_and_b32 v3, 7, v0\nv_lshl_add_u32 v2, v3, 2, v2\ns_lshl_b32 s75, s68, 12\ns_add_u32 s75, s75, {WS_STAT}") + [("vm", "ep", "buffer_load_dword v32, v2, s[8:11], s75 offen sc1")]
    ep_ld += lines(f"v_lshrrev_b32 v2, 2, v30\nv_lshlrev_b32 v2, 7, v2\nv_and_b32 v3, 3, v30\nv_lshl_add_u32 v2, v3, 4, v2\ns_mov_b32 s75, {WS_CSB}\ns_mov_b32 s76, {WS_CSB+20480}")
    for cb in range(2):
        for im in range(2): ep_ld.append(("vm", "ep", f"buffer_load_dword v{Pm(cb)['CSR']+im}, v2, s[8:11], s{75+im} offen offset:{512*cb} sc1"))
    ep_c = [("wvm", ["ep"])] + lines(f"""v_and_b32 v33, 0xffff0000, v32
v_rcp_f32 v33, v33
v_lshlrev_b32 v32, 16, v32
v_and_b32 v2, 15, v0
v_bfe_u32 v3, v0, 4, 1
v_lshl_add_u32 v2, v2, 1, v3
v_and_b32 v3, 0xe0, v0
v_add_u32 v2, v2, v3
v_mul_f32 v32, v32, v33
v_lshlrev_b32 v2, 2, v2
v_add_u32 v2, {S_SCR}, v2""") + [("ds", None, "ds_write_b32 v2, v33"), ("ds", None, "ds_write_b32 v2, v32 offset:1024")]
    ACC = 128
    def acc(b, c): return ACC + (c*8+b)*4
    def Xr(par, b): return par*48 + b*4
    def Br(par, c): return par*48 + 32 + c*4
    def reads(s):
        par = s & 1; sl = (s >> 1) % 3; L = []
        for c in range(4): L.append(("ds", None, f"ds_read_b128 a[{Br(par,c)}:{Br(par,c)+3}], v{120+2*sl+(s&1)} offset:{(c>>1)*8192 + (c&1)*2048}"))
        for b in range(8): L.append(("ds", None, f"ds_read_b128 a[{Xr(par,b)}:{Xr(par,b)+3}], v{22+2*sl+(s&1)} offset:{b*2048}"))
        return L
    wl = sum((w2load(i) for i in range(7)), []); n4 = (len(wl)+3)//4
    sched = {0: st_f + clr + dma(2, (0,)) + b_ld[:2], 1: dma(2, (1,)) + b_ld[2:], 2: dma(3, (0,)) + c_ld[:4], 3: dma(3, (1,)) + c_ld[4:] + b_c, 4: dma(4, (0,)), 5: dma(4, (1,)) + c_p,
             6: dma(5, (0,)) + c_s, 7: dma(5, (1,)), 8: dma(6), 9: prep_signal() + dma(7, (0,)), 10: dma(7, (1,)), 11: dma(8, (0,)),
             12: dma(8, (1,)), 13: dma(9, (0,)) + prep_poll(), 14: dma(9, (1,)), 15: ep_ld, 16: wl[:n4], 17: ep_c + wl[n4:2*n4], 18: wl[2*n4:3*n4], 19: wl[3*n4:]}
    its = [4, 7, 9, 10, 11, 12, 13, 14, 15, 15, 16, 18]; q = (len(par_c) + len(its) - 1)//len(its)
    for k, i in enumerate(its): sched[i] = sched[i] + par_c[k*q:(k+1)*q]
    A.its(dma(1, (0,)) + st_c + dma(1, (1,)))
    A.sync([("S", 0)]); stamp(A, 1)
    A.its(reads(0))
    for s in range(20):
        tags = [("S", (s+1) >> 1)] if (s < 19 and s & 1) else []
        if s == 9: tags.append("side")
        if s == 15: A("s_mov_b64 s[4:5], vcc"); prep_check(A, "SP"); A("s_mov_b64 vcc, s[4:5]")
        A.sync(tags, barrier=bool(s & 1))
        tick(A, s, 127)
        par = s & 1; mf = []
        for b in range(8):
            for c in range(4):
                r = acc(b, c); mf.append(f"{MF} v[{r}:{r+3}], a[{Xr(par,b)}:{Xr(par,b)+3}], a[{Br(par,c)}:{Br(par,c)+3}], " + (f"v[{r}:{r+3}]" if s else "0"))
        A.weave(mf, [(reads(s+1) if s < 19 else [], 0, 24), (sched.get(s, []), 0, 31)])
    A("s_waitcnt lgkmcnt(0)"); tick(A, 20, 127); tockdump(A, 20, 127, 0x40000)
    stamp(A, 2)
    def gre(cb, j): return acc(0, cb) + 2*j
    def gim(cb, j): return acc(0, 2+cb) + 2*j
    A(f"v_lshlrev_b32 v2, 7, v31\nv_add_u32 v2, {S_SCR}, v2")
    def rload(c):
        b = 32 + 16*(c & 1)
        return [("ds", ("R", c), f"ds_read_b128 v[{b+4*k+8*t}:{b+4*k+8*t+3}], v2 offset:{1024*t + 32*c + 16*k}") for t in range(2) for k in range(2)]
    e1 = rload(0) + rload(1)
    for j in range(16):
        c = j >> 2; b = 32 + 16*(c & 1) + 2*(j & 3)
        if j & 3 == 0: e1.append(("wds", [("R", c)]))
        for cb in range(2): e1 += [pk("mul", gre(cb,j), gre(cb,j), b), pk("mul", gim(cb,j), gim(cb,j), b)]
        for cb in range(2):
            p = Pm(cb); e1 += [pk("fma", gre(cb,j), b+8, ("b", p['CSR']), gre(cb,j), neg=(0,)), pk("fma", gim(cb,j), b+8, ("b", p['CSI']), gim(cb,j), neg=(0,))]
        if j & 3 == 3 and c + 2 < 4: e1 += rload(c+2)
        if j:
            for cb in range(2):
                p = Pm(cb); e1 += [pk("fma", gre(cb,j), gre(cb,j-1), ("b", p['LR']), gre(cb,j)), pk("fma", gim(cb,j), gim(cb,j-1), ("b", p['LR']), gim(cb,j))]
            for cb in range(2):
                p = Pm(cb); e1 += [pk("fma", gre(cb,j), gim(cb,j-1), ("b", p['LI']), gre(cb,j), neg=(1,)), pk("fma", gim(cb,j), gre(cb,j-1), ("b", p['LI']), gim(cb,j))]
    spread(A, e1, sum((w2load(i) for i in range(7, 10)), []), 10, len(e1))
    def cfma(dr, di, mr, mi, xr, xi, ar, ai):
        A(f"v_fma_f32 v{dr}, v{mr}, v{xr}, v{ar}\nv_fma_f32 v{di}, v{mr}, v{xi}, v{ai}\nv_fma_f32 v{dr}, -v{mi}, v{xi}, v{dr}\nv_fma_f32 v{di}, v{mi}, v{xr}, v{di}")
    SEGB = S_SCR + 2048
    A(f"v_and_b32 v2, 63, v30\nv_lshlrev_b32 v2, 3, v2\nv_add_u32 v2, {SEGB}, v2\nv_lshl_add_u32 v3, v31, 9, v2")
    for cb in range(2):
        p = Pm(cb); cfma(64+2*cb, 65+2*cb, p['L16R'], p['L16I'], gre(cb,15), gim(cb,15), gre(cb,15)+1, gim(cb,15)+1)
        A(f"ds_write_b64 v3, v[{64+2*cb}:{65+2*cb}] offset:{128*cb}")
    A("s_waitcnt lgkmcnt(0)\ns_barrier")
    for s in range(7):
        for cb in range(2): A(f"ds_read_b64 v[{32+4*s+2*cb}:{33+4*s+2*cb}], v2 offset:{512*s+128*cb}")
    for cb in range(2): A(f"v_mov_b32 v{Pm(cb)['PR']}, 0\nv_mov_b32 v{Pm(cb)['PI']}, 0")
    A("v_lshlrev_b32 v3, 3, v30\ns_mul_i32 s75, s68, 5120\ns_waitcnt lgkmcnt(0)"); A.dd = A.nd
    for s in range(7):
        A(f"v_cmp_lt_u32 vcc, {s}, v31\ns_and_b64 exec, exec, vcc")
        for cb in range(2):
            p = Pm(cb); a = 32+4*s+2*cb
            if s: cfma(a, a+1, p['L32R'], p['L32I'], p['PR'], p['PI'], a, a+1)
            A(f"v_mov_b32 v{p['PR']}, v{a}\nv_mov_b32 v{p['PI']}, v{a+1}")
    A("s_cbranch_execz SSM_nopub")
    for cb in range(2):
        p = Pm(cb); a = 64+2*cb
        cfma(a, a+1, p['L32R'], p['L32I'], p['PR'], p['PI'], a, a+1)
        A(f"v_min_u32 v{a}, 0xfffffffe, v{a}\nv_min_u32 v{a+1}, 0xfffffffe, v{a+1}")
        A(f"buffer_store_dwordx2 v[{a}:{a+1}], v3, s[8:11], s75 offen offset:{128*cb} sc1")
    A.label("SSM_nopub")
    A("s_mov_b64 exec, -1")
    for cb in range(2): A(f"v_mov_b32 v{64+2*cb}, v{gre(cb,15)}\nv_mov_b32 v{65+2*cb}, v{gim(cb,15)}")
    e2 = []
    for j in range(16):
        for cb in range(2):
            p = Pm(cb); r, i = gre(cb,j), gim(cb,j); t = 32+4*cb
            e2 += [pk("mul", t, i, ("b", p['CB'])), pk("mul", t+2, r, ("b", p['CB'])), pk("fma", r, r, ("b", p['CA']), t, neg=(2,)), pk("fma", i, i, ("b", p['CA']), t+2, neg=(1, 2))]
    spread(A, e2, [])
    stamp(A, 3)
    A("s_sub_u32 s75, s75, 35840\nv_add_u32 v3, s75, v3")
    for i in range(7): A(f"v_add_u32 v{10+i}, {5120*i}, v3")
    A("s_mov_b32 s76, 0x40000")
    A.label("SSM_poll")
    for i in range(7):
        for cb in range(2): A(f"buffer_load_dwordx2 v[{32+4*i+2*cb}:{33+4*i+2*cb}], v{10+i}, s[8:11], 0 offen offset:{128*cb} sc1")
    A("s_waitcnt vmcnt(0)\nv_max3_u32 v2, v32, v33, v34")
    for r in range(35, 59, 2): A(f"v_max3_u32 v2, v2, v{r}, v{r+1}")
    A("v_max_u32 v2, v2, v59\nv_cmp_eq_u32 vcc, -1, v2\ns_sub_u32 s76, s76, 1\ns_cbranch_scc1 SSM_go\ns_cbranch_vccnz SSM_poll")
    A.label("SSM_go")
    stamp(A, 4)
    for i in range(1, 7):
        for cb in range(2):
            p = Pm(cb); a = 32+4*i+2*cb; cfma(a, a+1, p['L256R'], p['L256I'], a-4, a-3, a, a+1)
    for cb in range(2):
        p = Pm(cb); a = 56+2*cb; w = 12+8*cb
        cfma(p['PR'], p['PI'], p['QR'], p['QI'], a, a+1, p['PR'], p['PI'])
        cfma(64+2*cb, 65+2*cb, p['L16R'], p['L16I'], p['PR'], p['PI'], 64+2*cb, 65+2*cb)
        for k, (xr, xi) in enumerate(((p['PR'], p['PI']), (64+2*cb, 65+2*cb))):
            A(f"v_mul_f32 v{p['T0']}, v{p['CB']}, v{xi}\nv_mul_f32 v{p['T1']}, v{p['CB']}, v{xr}")
            A(f"v_fma_f32 v{w+k}, v{p['CA']}, v{xr}, -v{p['T0']}\nv_fma_f32 v{w+2+k}, -v{p['CA']}, v{xi}, -v{p['T1']}")
    PITCH = 288; IMG = 32*PITCH
    A(f"s_mul_i32 s75, s3, 20480\nv_and_b32 v2, 15, v1\nv_mul_u32_u24 v2, {PITCH}, v2\nv_lshrrev_b32 v3, 4, v1\nv_lshl_add_u32 v2, v3, 6, v2\nv_add_u32 v10, s75, v2")
    A(f"v_bfe_u32 v2, v1, 2, 2\nv_lshl_add_u32 v2, v3, 3, v2\nv_mul_u32_u24 v2, {PITCH}, v2\nv_and_b32 v3, 3, v1\nv_lshl_add_u32 v2, v3, 3, v2\nv_add_u32 v11, s75, v2")
    e3 = []; A.reset()
    for j in range(16):
        cur = [12+8*cb+4*(j & 1) for cb in range(2)]; nxt = [12+8*cb+4*((j+1) & 1) for cb in range(2)]
        for cb in range(2):
            p = Pm(cb); e3.append(pk("mul", nxt[cb], cur[cb], ("b", p['LR']))); e3.append(pk("mul", nxt[cb]+2, cur[cb]+2, ("b", p['LR'])))
        for cb in range(2):
            p = Pm(cb); e3.append(pk("fma", nxt[cb], cur[cb]+2, ("b", p['LI']), nxt[cb])); e3.append(pk("fma", nxt[cb]+2, cur[cb], ("b", p['LI']), nxt[cb]+2, neg=(1,)))
        for cb in range(2):
            e3.append(pk("add", gre(cb,j), gre(cb,j), nxt[cb])); e3.append(pk("add", gim(cb,j), gim(cb,j), nxt[cb]+2))
        if j & 1:
            k = (j >> 1) & 3
            for cb in range(2):
                for im in range(2):
                    g = gim if im else gre
                    for hh in range(2): e3.append(f"v_cvt_pk_bf16_f32 v{32+16*cb+8*im+4*hh+k}, v{g(cb,j-1)+hh}, v{g(cb,j)+hh}")
            if j & 7 == 7:
                for cb in range(2):
                    for im in range(2):
                        for hh in range(2):
                            r = 32+16*cb+8*im+4*hh
                            e3.append(f"ds_write_b128 v10, v[{r}:{r+3}] offset:{im*IMG + cb*16*PITCH + hh*32 + (j>>3)*16}")
    spread(A, e3, w2load(10) + w2load(11), 0, 180)
    A.its(fpoll(0))
    A(f"s_add_u32 s86, s84, {96*4096}\ns_add_u32 s75, s85, {96*4096}\nv_mov_b32 v13, s96")
    n = 0
    for im in range(2):
        for tb in range(8):
            r = 128 + 4*n; n += 1
            for hh in range(2): A(f"ds_read_b64_tr_b16 v[{r+2*hh}:{r+2*hh+1}], v11 offset:{im*IMG + hh*4*PITCH + tb*32}")
    n = 0
    for im in range(2):
        for tb in range(8):
            r = 128 + 4*n; so = (84, 85, 86, 75)[im + 2*(tb >> 2)]
            A(f"s_waitcnt lgkmcnt({min(15, 30-2*n)})"); A.it(("vm", "H", f"buffer_store_dwordx4 v[{r}:{r+3}], v28, s[8:11], s{so} offen offset:{(tb&3)*1024} sc1")); n += 1
    stamp(A, 5)
    ph2_entry(A, "SC0", "H", "buffer_store_dword v13, v109, s[8:11], s87 offen sc1")

def gen_ph2(A):
    A.reset(); D = D2
    A.label("PH2")
    def acc(hf, nb, tb): return (ACCG if hf == "G" else ACCK) + (tb*5+nb)*4
    for i in range(D-1):
        A.nv += 4; A.tv[("h", i)] = A.nv
    A.nv += 1
    srd(A, 12, P["dsk"], 1280); srd(A, 20, P["out"], SZ_OUT)
    A("s_lshl1_add_u32 s32, s80, s28\ns_lshl_b32 s32, s32, 6\ns_lshl_b32 s33, s3, 4\ns_add_u32 s32, s32, s33\nv_lshrrev_b32 v2, 2, v1\nv_add_u32 v2, s32, v2")
    A("v_lshrrev_b32 v15, 3, v2\nv_lshlrev_b32 v15, 7, v15\nv_and_b32 v3, 7, v2\nv_lshl_add_u32 v15, v3, 2, v15\nv_mul_u32_u24 v2, 640, v2")
    A("s_mul_i32 s32, s81, 80\nv_and_b32 v3, 3, v1\nv_lshlrev_b32 v3, 2, v3\nv_add_u32 v3, s32, v3\nv_add_u32 v2, v2, v3")
    A("v_lshlrev_b32 v12, 1, v2\nv_lshlrev_b32 v13, 2, v2\nv_lshlrev_b32 v14, 1, v3")
    A("v_lshrrev_b32 v2, 4, v1\nv_lshlrev_b32 v3, 2, v2\nv_xor_b32 v3, v3, v1\nv_lshlrev_b32 v3, 4, v3\ns_mul_i32 s75, s3, 20480\nv_add_u32 v22, s75, v3")
    A("v_and_b32 v2, 3, v1\nv_lshrrev_b32 v4, 2, v1\nv_lshlrev_b32 v5, 2, v2\nv_xor_b32 v4, v4, v5\nv_lshl_add_u32 v4, v2, 4, v4\nv_lshlrev_b32 v4, 4, v4\ns_mul_i32 s75, s3, 5120\nv_add_u32 v23, s75, v4\nv_add_u32 v24, 40960, v23")
    A("v_lshlrev_b32 v10, 20, v1\nv_and_b32 v10, 0xfe000000, v10\nv_lshl_add_u32 v10, v1, 2, v10\nv_mov_b32 v11, s96")
    A(f"s_mul_i32 s84, s95, 5120\ns_add_u32 s84, s84, {WS_XCH}\ns_xor_b32 s85, s95, 4\ns_mul_i32 s85, s85, 5120\ns_add_u32 s85, s85, {WS_XCH}\ns_lshl_b32 s86, s95, 7\ns_add_u32 s86, s86, {WS_XF}")
    ep = [f"s_mov_b32 s75, {WS_EPOCH}\ns_cmp_eq_u32 s2, 0\ns_cselect_b32 s75, s75, {hex(OOB)}"] + [("vm", None, "buffer_store_dword v11, v8, s[8:11], s75 offen sc1")]
    g_w = [("ds", None, f"ds_write_b128 v22, v[{ACCG+4*k}:{ACCG+4*k+3}] offset:{k*1024}") for k in range(20)]
    g_r = []
    for nb in range(5):
        for w in range(4):
            r = ACCG + (nb*4+w)*4; g_r.append(("ds", ("gr", nb), f"ds_read_b128 v[{r}:{r+3}], v{23+(w>>1)} offset:{(w&1)*20480 + nb*1024}"))
    g_s = []
    for nb in range(5):
        r = ACCG + nb*16; g_s.append(("wds", [("gr", nb)]))
        for e in range(4): g_s += [f"v_add_f32 v{r+e}, v{r+e}, v{r+4+e}", f"v_add_f32 v{r+8+e}, v{r+8+e}, v{r+12+e}"]
        for e in range(4): g_s.append(f"v_add_f32 v{r+e}, v{r+e}, v{r+8+e}")
        g_s.append(("vm", "xs", f"buffer_store_dwordx4 v[{r}:{r+3}], v{28+(nb>>2)}, s[8:11], s84 offen offset:{(nb&3)*1024} sc1"))
    g_f = [("wvm", ["xs"]), ("vm", None, "buffer_store_dword v11, v10, s[8:11], s86 offen sc1")]
    fin_ld = [f"s_mov_b32 s75, {WS_STAT}", ("vm", "fin", "buffer_load_dword v16, v15, s[8:11], s75 offen sc1")]
    for nb in range(5):
        r = ACCG + nb*16
        fin_ld.append(("vm", "fin", f"buffer_load_dwordx2 v[{r+4}:{r+5}], v12, s[16:19], 0 offen offset:{32*nb}"))
        fin_ld.append(("vm", "fin", f"buffer_load_dwordx2 v[{r+6}:{r+7}], v14, s[12:15], 0 offen offset:{32*nb}"))
    fin_c = [("wvm", ["fin"]), "v_and_b32 v26, 0xffff0000, v16", "v_rcp_f32 v26, v26", "v_lshlrev_b32 v16, 16, v16"]
    for k in range(10):
        r = ACCG + (k >> 1)*16; o = r + 8 + 2*(k & 1); x = r + 4 + (k & 1); dk = r + 6 + (k & 1)
        fin_c += [f"v_lshlrev_b32 v{o}, 16, v{x}", f"v_and_b32 v{o+1}, 0xffff0000, v{x}", f"v_lshlrev_b32 v18, 16, v{dk}", f"v_and_b32 v19, 0xffff0000, v{dk}",
                  pk("add", 20, o, ("b", 16), neg=(1,)), pk("mul", 18, 18, ("b", 26)), pk("fma", o, 20, 18, o)]
    h = len(g_s)//2
    extra = {1: fpoll(1), 4: ep, 5: fpoll(2), 15: ["s_nop 0"]*2 + g_w[:10], 16: g_w[10:], 17: g_r, 18: g_s[:h], 19: g_s[h:], 20: fin_ld, 22: g_f, 23: fpoll(3)}
    seen = set()
    for n in range(24):
        hf, i = STEPS[n]
        if n == 17: A.sync([("h", n)])
        else: A.it(("wvm", [("h", n)]))
        if TS >= 2 and n not in (16, 18, 19): A("s_waitcnt lgkmcnt(0)")
        tick(A, n, 25)
        if n == 3: fcheck(A, "C1", 1)
        if n == 7: fcheck(A, "C2", 2)
        mf = []
        for nb in range(5):
            for tb in range(4):
                c = acc(hf, nb, tb); w = w2reg(i) + 4*nb
                mf.append(f"{MF} v[{c}:{c+3}], a[{w}:{w+3}], v[{Hr(n,tb)}:{Hr(n,tb)+3}], " + (f"v[{c}:{c+3}]" if hf in seen else "0"))
        seen.add(hf)
        A.weave(mf, [(hload(n+D-1) if n+D-1 < 24 else [], 0, 8), (extra.get(n, []), 2, 19)])
    A("s_waitcnt lgkmcnt(0)"); tick(A, 24, 25); tockdump(A, 24, 25, 0x80000)
    stamp(A, 7)
    A("v_add_u32 v22, 81920, v22\nv_add_u32 v23, 81920, v23\nv_add_u32 v24, 81920, v24")
    kw = [f"ds_write_b128 v22, v[{ACCK+4*k}:{ACCK+4*k+3}] offset:{k*1024}" for k in range(20)]
    spread(A, kw, fin_c)
    fcheck(A, "C3", 3)
    for nb in range(5):
        r = ACCG + nb*16 + 12
        A.it(("vm", ("xl", nb), f"buffer_load_dwordx4 v[{r}:{r+3}], v{28+(nb>>2)}, s[8:11], s85 offen offset:{(nb&3)*1024} sc1"))
    A("s_waitcnt lgkmcnt(0)\ns_barrier")
    for nb in range(5):
        for w in range(4):
            r = ACCK + (nb*4+w)*4
            A(f"ds_read_b128 v[{r}:{r+3}], v{23+(w>>1)} offset:{(w&1)*20480 + nb*1024}")
    for nb in range(5):
        A(f"s_waitcnt lgkmcnt({min(15, 16-4*nb)})")
        r = ACCK + nb*16; o = ACCG + nb*16 + 8
        for k in (0, 2): A(pk("add", r+k, r+k, r+4+k)); A(pk("add", r+8+k, r+8+k, r+12+k))
        for k in (0, 2): A(pk("add", o+k, o+k, r+k))
        for k in (0, 2): A(pk("add", o+k, o+k, r+8+k))
    for nb in range(5):
        o = ACCG + nb*16 + 8
        A.it(("wvm", [("xl", nb)]))
        for k in (0, 2): A(pk("add", o+k, o+k, o+4+k))
        A.it(("vm", None, f"buffer_store_dwordx4 v[{o}:{o+3}], v13, s[20:23], 0 offen offset:{64*nb}"))
    if TS:
        A("s_add_u32 s94, s94, 0x10000"); stamp(A, 0)

def gen():
    A = E()
    A("s_cmp_ge_u32 s2, 256\ns_cbranch_scc1 K_end")
    if TS >= 2: A("s_memtime s[4:5]")
    A("s_load_dwordx16 s[36:51], s[0:1], 0\ns_load_dwordx16 s[52:67], s[0:1], 64")
    A("v_and_b32 v1, 63, v0\nv_lshrrev_b32 v2, 6, v0\ns_and_b32 s32, s2, 7\nv_readfirstlane_b32 s3, v2")
    A("s_lshr_b32 s33, s2, 3\ns_lshr_b32 s34, s32, 2\ns_and_b32 s35, s32, 3\ns_and_b32 s71, s3, 1\ns_lshr_b32 s72, s3, 1")
    if int(OPT.get("ipf", 1)):
        A("s_getpc_b64 s[6:7]"); A.label("K_pc")
        A("s_lshl2_add_u32 s76, s33, s3\ns_and_b32 s76, s76, 7\ns_lshl_b32 s76, s76, 13\nv_lshlrev_b32 v2, 7, v1\nv_add_u32 v2, s76, v2\nv_min_u32 v2, K_end-K_pc, v2")
        A("s_cmp_ge_u32 s33, 4\ns_cbranch_scc1 K_nopf\nglobal_load_dword v64, v2, s[6:7]"); A.label("K_nopf")
    A("s_lshl2_add_u32 s95, s2, s3\nv_lshrrev_b32 v62, 5, v1\nv_mul_u32_u24 v62, 1280, v62\nv_and_b32 v63, 31, v1\nv_lshl_add_u32 v62, v63, 3, v62")
    if TS:
        A("s_lshl2_add_u32 s94, s2, s3\ns_lshl_b32 s94, s94, 6\ns_waitcnt lgkmcnt(0)"); stamp(A, 0)
    A("s_cmp_eq_u32 s35, 3\ns_cselect_b32 s76, 16, 8\ns_mul_i32 s75, s95, 2560\ns_cmp_lt_u32 s33, s76\ns_cbranch_scc1 K_ssm")
    A("s_sub_u32 s33, s33, s76\ns_and_b32 s68, s33, 7\ns_lshl_b32 s34, s34, 3\ns_add_u32 s68, s68, s34\ns_lshr_b32 s69, s33, 3\ns_mul_i32 s35, s35, 3\ns_add_u32 s69, s69, s35")
    gen_ffn(A)
    A.label("K_ssm")
    A("s_and_b32 s68, s33, 3\ns_lshl2_add_u32 s68, s34, s68\ns_lshr_b32 s69, s33, 2\ns_lshl1_add_u32 s69, s35, s69")
    gen_ssm(A)
    gen_ph2(A)
    A.label("K_end"); A("s_endpgm")
    return A.L

def main():
    ref = open(f"cdna_kernels/{NAME}.s.ref").read().split("\n")
    hdr = [l for l in ref if l.startswith(";") and "@launch" not in l and "Override" not in l and "grid=ceil" not in l]
    out = "\n".join(hdr) + "\n"
    extra = ""
    if "spin" in OPT:
        wg, slot = [int(v) for v in OPT["spin"].split(",")]
        off = WS_TS + wg*4*64 + (slot*8 if slot < 8 else 0x10000)
        out += f"; @launch kernel={NAME}_kernel grid=(256,1,1) block=(256,1,1) lds=163840\n; @launch kernel=spin_kernel grid=(1,1,1) block=(64,1,1) lds=0\n"
        L = ["s_load_dwordx2 s[4:5], s[0:1], 120", "s_waitcnt lgkmcnt(0)", f"s_add_u32 s4, s4, {off}", "s_addc_u32 s5, s5, 0", "s_load_dwordx2 s[6:7], s[4:5], 0", "s_mov_b32 s12, 0x100000",
             "SP_l2:", "s_memrealtime s[8:9]", "s_waitcnt lgkmcnt(0)", "s_sub_u32 s10, s8, s6", "s_sub_u32 s12, s12, 1", "s_cbranch_scc1 SP_e", "s_cmp_lt_u32 s10, 8000", "s_cbranch_scc1 SP_l2", "SP_e:", "s_endpgm"]
        extra = kernel_text("spin_kernel", L) + kd("spin_kernel", 8, 0, 32)
    else: out += "; @launch grid=(256,1,1) block=(256,1,1) lds=163840\n"
    out += '.amdgcn_target "amdgcn-amd-amdhsa--gfx950"\n'
    out += kernel_text(NAME + "_kernel", hazard_pass(gen(), "v" in OPT)) + kd(NAME + "_kernel", 256, 256, 102) + extra
    open(sys.argv[1], "w").write(out)
main()
```

```python
import re
class Asm:
    def __init__(self): self.L = []
    def __call__(self, s):
        for ln in s.split("\n"):
            ln = ln.strip()
            if ln: self.L.append(ln)
    def label(self, n): self.L.append(n + ":")
    def ext(self, lines):
        for l in lines: self(l)

REG = re.compile(r"\b([vas])(\d+)\b|\b([vas])\[(\d+):(\d+)\]|\b(vcc|exec|m0|scc)\b")
def regs(op):
    out = set()
    for m in REG.finditer(op):
        if m.group(1): out.add((m.group(1), int(m.group(2))))
        elif m.group(3):
            for i in range(int(m.group(4)), int(m.group(5))+1): out.add((m.group(3), i))
        else: out.add((m.group(6), 0))
    return out
TRANS = ("v_exp_f32","v_log_f32","v_rcp_f32","v_rsq_f32","v_sqrt_f32","v_sin_f32","v_cos_f32","v_rcp_iflag_f32")
def split_ops(s):
    parts = s.split(None, 1)
    mn = parts[0]; ops = []
    if len(parts) > 1:
        depth = 0; cur = ""
        for ch in parts[1]:
            if ch == "[": depth += 1
            if ch == "]": depth -= 1
            if ch == "," and depth == 0: ops.append(cur.strip()); cur = ""
            else: cur += ch
        ops.append(cur.strip())
    return mn, ops
class I:
    def __init__(self, s):
        self.s = s; mn, ops = split_ops(s.split(";")[0].strip()); self.mn = mn; self.ops = ops
        b = re.sub(r"_(e32|e64|dpp|sdwa)$", "", mn); self.b = b
        self.mfma = b.startswith("v_mfma"); self.valu = b.startswith("v_") and not self.mfma
        self.salu = b.startswith("s_"); self.trans = b in TRANS
        self.vmem = b.startswith(("buffer_","global_","flat_")); self.ds = b.startswith("ds_")
        self.dpp = mn.endswith("_dpp") or any(k in s for k in ("row_shr","row_shl","row_ror","quad_perm","row_bcast","row_mirror","row_half_mirror","wave_shr","row_newbcast"))
        self.lds_dma = self.vmem and re.search(r"\blds\b", s) is not None
        self.w = set(); self.r = set(); self.srcC = set(); self.AB = set(); self.stdata = set()
        R = [regs(o) for o in ops]
        if self.mfma:
            self.w = R[0]; self.AB = R[1] | R[2]; self.srcC = R[3]; self.r = self.AB | self.srcC
            self.passes = 4 if "16x16x32" in b else 8
        elif self.valu:
            if b.startswith("v_cmpx"): self.w = R[0] | {("exec",0)}; self.r = set().union(*R[1:])
            elif b.startswith("v_permlane") and "swap" in b: self.w = R[0] | R[1]; self.r = R[0] | R[1]
            elif b in ("v_add_co_u32","v_sub_co_u32","v_addc_co_u32","v_subb_co_u32","v_div_scale_f32","v_mad_u64_u32"):
                self.w = R[0] | R[1]; self.r = set().union(*R[2:])
            else:
                self.w = R[0]; self.r = set().union(*R[1:]) if len(R) > 1 else set()
                if b in ("v_fmac_f32","v_pk_fmac_f16","v_writelane_b32","v_dot2c_f32_bf16") or self.dpp: self.r |= R[0]
                if b == "v_div_fmas_f32": self.r |= {("vcc",0)}
        elif self.vmem:
            st = "store" in b; at = "atomic" in b
            if self.lds_dma: self.r = set().union(*R) | {("m0",0)}
            elif st or at:
                self.r = set().union(*R)
                self.stdata = R[0] if b.startswith("buffer_") else R[1]
                if at and "sc0" in s: self.w = R[0]
            else: self.w = R[0]; self.r = set().union(*R[1:])
            self.wide_store = st and ("x3" in b or "x4" in b)
        elif self.ds:
            if b.startswith(("ds_read","ds_bpermute","ds_permute","ds_swizzle")): self.w = R[0]; self.r = set().union(*R[1:])
            else: self.r = set().union(*R)
        elif self.salu:
            if b.startswith(("s_cmp","s_cbranch","s_branch","s_waitcnt","s_barrier","s_nop","s_endpgm","s_sleep","s_setprio","s_bitcmp")):
                self.r = set().union(*R) if R else set()
            else:
                self.w = R[0] if R else set(); self.r = set().union(*R[1:]) if len(R) > 1 else set()
                if "saveexec" in b: self.w |= {("exec",0)}
    def states(self):
        if self.b == "s_nop": return int(self.ops[0], 0) + 1
        return 1
def need(p, c):
    n = 0
    vw = {x for x in p.w if x[0] in "va"}; sw = {x for x in p.w if x[0] in ("s","vcc")}
    if p.valu:
        if c.mfma and vw & c.r: n = max(n, 2)
        if c.valu and c.dpp and vw & c.r: n = max(n, 2)
        if c.b.startswith("v_permlane") and vw & c.r: n = max(n, 2)
        if c.b in ("v_readfirstlane_b32","v_readlane_b32") and vw & c.r: n = max(n, 1)
        if p.trans and (c.valu or c.mfma) and vw & c.r: n = max(n, 1)
        if sw & c.r:
            if c.vmem: n = max(n, 5)
            if c.valu: n = max(n, 4 if c.b in ("v_readlane_b32","v_writelane_b32","v_div_fmas_f32") else 2)
            if c.salu: n = max(n, 1)
        if ("exec",0) in p.w:
            if c.mfma: n = max(n, 4)
            if c.valu and c.dpp: n = max(n, 5)
            if c.b.startswith(("v_readlane","v_readfirstlane","v_writelane","v_permlane")): n = max(n, 4)
    if p.salu and ("m0",0) in p.w and (c.lds_dma or "addtid" in c.b): n = max(n, 1)
    if p.vmem and getattr(p, "wide_store", False) and p.stdata & c.w: n = max(n, 2 if (c.valu or c.mfma) else 1)
    if p.mfma:
        big = p.passes == 8
        if c.mfma:
            if p.w & c.AB: n = max(n, 12 if big else 8)
            if p.w & c.srcC and p.w != c.srcC: n = max(n, 10 if big else 6)
            if p.w & c.w and not (p.w & c.srcC): n = max(n, 12 if big else 8)
        elif (p.w & (c.r | c.w)): n = max(n, 12 if big else 8)
        if c.valu and p.srcC & c.w: n = max(n, 7 if big else 3)
    return n
def hazard_pass(lines, verbose=False):
    out = []; hist = []
    ins = 0
    for s in lines:
        if s.endswith(":") or s.startswith((".", ";")): out.append(s); continue
        c = I(s); req = 0; dist = 0
        if c.mfma:
            for p in hist[-3:]:
                m = re.search(r"op_sel:\[([01,]+)\]", p.s)
                assert not (m and "1" in m.group(1).split(",")[1:]), ("op_sel hazard", p.s)
        for p in reversed(hist[-14:]):
            k = need(p, c) - dist
            if k > req: req = k
            dist += p.states()
            if dist >= 13: break
        if req > 0:
            nop = f"s_nop {req-1}"; out.append(nop); hist.append(I(nop)); ins += 1
            if verbose: print("hazard pad", req, "before", s)
        out.append(s); hist.append(c)
    return out
def interleave(mf, fill, lo=0, hi=None):
    hi = len(mf) if hi is None else hi
    slots = [[] for _ in mf]
    n = hi - lo
    for i, f in enumerate(fill): slots[lo + i*n//len(fill)].append(f)
    return slots
def kd(name, vgpr, agpr, sgpr=96):
    acc = (vgpr + 3)//4*4
    return f""".section .rodata,"a"
.p2align 6
.amdhsa_kernel {name}
  .amdhsa_next_free_vgpr {acc+agpr}
  .amdhsa_next_free_sgpr {sgpr}
  .amdhsa_accum_offset {acc}
  .amdhsa_group_segment_fixed_size 0
  .amdhsa_kernarg_size 128
  .amdhsa_user_sgpr_count 2
  .amdhsa_user_sgpr_kernarg_segment_ptr 1
  .amdhsa_system_sgpr_workgroup_id_x 1
  .amdhsa_float_denorm_mode_32 3
.end_amdhsa_kernel
"""
def kernel_text(name, lines):
    body = "\n".join(l if l.endswith(":") or l.startswith(".") else "  " + l for l in lines)
    return f".text\n.globl {name}\n.p2align 8\n.type {name},@function\n{name}:\n{body}\n"

import subprocess, os, tempfile
def sizes(lines):
    src = '.amdgcn_target "amdgcn-amd-amdhsa--gfx950"\n.text\n' + "\n".join(lines) + "\n"
    d = tempfile.mkdtemp(); open(d + "/a.s", "w").write(src)
    r = subprocess.run(["clang", "-x", "assembler", "-target", "amdgcn-amd-amdhsa", "-mcpu=gfx950", "-c", d + "/a.s", "-o", d + "/a.o"], capture_output=True, text=True)
    assert r.returncode == 0, r.stderr[:2000]
    o = subprocess.run(["llvm-objdump", "-d", "--mcpu=gfx950", d + "/a.o"], capture_output=True, text=True).stdout
    out = []
    for l in o.split("\n"):
        m = re.search(r"// [0-9A-F]{12}: ((?:[0-9A-F]{8} ?)+)", l)
        if m: out.append(4*len(m.group(1).split()))
    return out
WIDEN = ("v_mov_b32","v_add_f32","v_sub_f32","v_mul_f32","v_fmac_f32","v_exp_f32","v_rcp_f32","v_sin_f32","v_cos_f32","v_fract_f32","v_sqrt_f32","v_add_u32","v_sub_u32","v_subrev_u32",
         "v_and_b32","v_or_b32","v_xor_b32","v_lshlrev_b32","v_lshrrev_b32","v_min_u32","v_mul_u32_u24","v_cvt_f32_u32")
def align_pass(lines, win=8):
    sz = sizes(lines); idx = [i for i, l in enumerate(lines) if not (l.endswith(":") or l.startswith((".", ";")))]
    assert len(sz) == len(idx), (len(sz), len(idx))
    out = list(lines); ins = {}; addr = 0; last4 = None; nw = npad = 0
    for k, i in enumerate(idx):
        s = sz[k]
        if s == 8 and addr % win == win - 4:
            if last4 is not None:
                mn, rest = out[last4].split(None, 1); out[last4] = mn + "_e64 " + rest; nw += 1
            else: ins[i] = "s_nop 0"; npad += 1
            addr += 4; last4 = None
        if s == 4 and out[i].split()[0] in WIDEN: last4 = i
        elif s == 8 and win == 8: last4 = None
        addr += s
        if win > 8 and addr % win == 0: last4 = None
    res = []
    for i, l in enumerate(out):
        if i in ins: res.append(ins[i])
        res.append(l)
    print(f"align: widened {nw}, padded {npad}")
    return res
```

```python
import sys
from asmlib import *
NAME = "parallel_sum__ssm_conv_s5__glu_gated_swiglu__prompt"
OPT = dict(a.split("=") for a in sys.argv[2:])
TS = int(OPT.get("ts", 0))
WS_AGG = 0; WS_EPOCH = 0x28000; WS_STAT = 0x30000; WS_FLG = 0x40000; WS_XF = 0x80000; WS_CF = 0xA0000; WS_WF = 0xB0000; WS_CSB = 0xC0000; WS_CS = 0xD0000
WS_H = 0x100000; WS_W2P = 0xE00000; WS_XCH = 0x1200000; WS_END = 0x1700000; WS_TS = 0x1800000; CS_HALF = 27648
SZ_X = 2048*640*2; SZ_B = 640*640*2; SZ_W = 640*1728*2; SZ_OUT = 2048*640*4
OOB = 0x7F000000
P = dict(x=36, lre=38, lim=40, bre=42, bim=44, cre=46, cim=48, ldt=50, dsk=52, w1=56, w3=58, w2=60, out=62, dbg=64, ws=66)
MF = "v_mfma_f32_16x16x32_bf16"

class E(Asm):
    def __init__(self): super().__init__(); self.reset()
    def reset(self): self.nv = 0; self.tv = {}; self.dv = 0; self.nd = 0; self.td = {}; self.dd = 0
    def vmw(self, tags):
        last = max(self.tv[t] for t in tags)
        if last <= self.dv: return None
        self.dv = last; return min(63, self.nv - last)
    def dsw(self, tags):
        last = max(self.td[t] for t in tags)
        if last <= self.dd: return None
        n = min(15, self.nd - last); self.dd = self.nd - n; return n
    def it(self, x):
        if isinstance(x, str): self(x)
        elif x[0] == "vm": self.nv += 1; self.tv[x[1]] = self.nv; self(x[2])
        elif x[0] == "ds": self.nd += 1; self.td[x[1]] = self.nd; self(x[2])
        elif x[0] == "wvm":
            n = self.vmw(x[1])
            if n is not None: self(f"s_waitcnt vmcnt({n})")
        elif x[0] == "wds":
            n = self.dsw(x[1])
            if n is not None: self(f"s_waitcnt lgkmcnt({n})")
        elif x[0] == "fn": x[1]()
    def its(self, L):
        for x in L: self.it(x)
    def sync(self, vtags, barrier=True):
        n = self.vmw(vtags) if vtags else None
        self.dd = self.nd
        self((f"s_waitcnt vmcnt({n}) lgkmcnt(0)" if n is not None else "s_waitcnt lgkmcnt(0)"))
        if barrier: self("s_barrier")
    def weave(self, mf, streams, fixed=None, cap=2):
        q = []
        for it, lo, hi in streams:
            if it: q.append([(lo + k*(hi-lo)//len(it), x) for k, x in enumerate(it)])
        def cost(x):
            if isinstance(x, str): return sum(2 if l.startswith(TRANS) else (4 if l.startswith("v_mfma") else 1) for l in x.split("\n"))
            return {"vm": 2, "ds": 1}.get(x[0], 0.5)
        debt = 0
        for i, m in enumerate(mf):
            self(m); room = cap - debt
            for x in (fixed[i] if fixed else []): self.it(x); room -= cost(x)
            left = sum(cost(x) for st in q for _, x in st); gaps = len(mf) - i
            room = max(room, left - cap*(gaps-1))
            if left > cap*gaps: room = max(cap, left/gaps)
            while room > 0:
                c = [st for st in q if st and st[0][0] <= i]
                if not c: break
                st = min(c, key=lambda t: t[0][0]); x = st.pop(0)[1]; self.it(x); room -= cost(x)
            debt = max(0, -room)
        for st in q:
            for _, x in st: self.it(x)
def lines(s): return [l.strip() for l in s.split("\n") if l.strip()]
def glue(L):
    out = []; on = False
    for x in L:
        if isinstance(x, str) and on and x.startswith(("s_cselect", "s_mov_b32")): out[-1] += "\n" + x; continue
        on = isinstance(x, str) and x.startswith(("s_cmp", "s_bitcmp"))
        out.append(x)
    return out
def cap(f):
    B = Asm(); f(B); return glue(B.L)
def chop(L, n):
    q = (len(L) + n - 1)//n
    return [L[k*q:(k+1)*q] for k in range(n)]
FE = int(OPT.get("fe", 5)); FF = int(OPT.get("ff", 0)); SE = int(OPT.get("se", 5))
def srd(A, d, lo, size):
    A(f"s_mov_b32 s{d}, s{lo}\ns_mov_b32 s{d+1}, s{lo+1}\ns_mov_b32 s{d+2}, {hex(size)}\ns_mov_b32 s{d+3}, 0x20000")
def srd_sel(A, d, lo0, lo1, size):
    A(f"s_cselect_b32 s{d}, s{lo0}, s{lo1}\ns_cselect_b32 s{d+1}, s{lo0+1}, s{lo1+1}\ns_mov_b32 s{d+2}, {hex(size)}\ns_mov_b32 s{d+3}, 0x20000")
def stamp(A, slot):
    if not TS: return
    A(f"s_memrealtime s[90:91]\ns_memtime s[88:89]\ns_waitcnt lgkmcnt(0)\ns_add_u32 s92, s94, {WS_TS + slot*8}")
    A.dd = A.nd
    A(f"v_mov_b32 v4, s90\nv_mov_b32 v5, s88\nv_mov_b32 v2, s92"); A.it(("vm", None, "global_store_dwordx2 v2, v[4:5], s[66:67]"))
def tick(A, idx, reg):
    if TS < 2: return
    if idx: A(f"v_writelane_b32 v{reg}, s88, {idx-1}")
    A("s_memtime s[88:89]")
def ptick(A, idx, reg):
    if TS < 2: return
    A(f"s_memtime s[88:89]\ns_waitcnt lgkmcnt(0)\nv_writelane_b32 v{reg}, s88, {idx}")
def tockdump(A, n, reg, area):
    if TS < 2: return
    A(f"s_waitcnt lgkmcnt(0)\nv_writelane_b32 v{reg}, s88, {n}\ns_lshl_b32 s92, s95, 8\ns_add_u32 s92, s92, {WS_TS + area}\nv_lshlrev_b32 v5, 2, v1\nv_add_u32 v5, s92, v5")
    A.it(("vm", None, f"global_store_dword v5, v{reg}, s[66:67]"))
def bc(n, which, hi=False):
    lo = [0]*n; h = [1]*n
    for w in which:
        if isinstance(w, tuple): lo[w[0]] = 1
        else: h[w] = 0
    s = ""
    if any(lo): s += " op_sel:[" + ",".join(map(str, lo)) + "]"
    s += " op_sel_hi:[" + ",".join(map(str, h)) + "]"
    return s
def B(r):
    return f"v[{r & ~1}:{(r & ~1)+1}]", (r & 1)
def pk(op, d, *src, neg=()):
    t = []; w = []
    src = list(src)
    if isinstance(src[1], tuple) and src[1][1] & 1:
        src[0], src[1] = src[1], src[0]; neg = tuple({0: 1, 1: 0}.get(n, n) for n in neg)
    for i, s in enumerate(src):
        if isinstance(s, tuple):
            x, hi = B(s[1]); t.append(x); w.append((i,) if hi else i)
        else:
            assert s % 2 == 0; t.append(f"v[{s}:{s+1}]")
    assert d % 2 == 0
    m = bc(len(src), w)
    if neg:
        nn = ",".join("1" if i in neg else "0" for i in range(len(src))); m += f" neg_lo:[{nn}] neg_hi:[{nn}]"
    return f"v_pk_{op}_f32 v[{d}:{d+1}], " + ", ".join(t) + m

def stats_job(R, scr):
    L0, U, T = R, R+10, R+30
    ld = [f"v_mov_b32 v9, {WS_EPOCH}", ("vm", "st", "global_load_dword v9, v9, s[66:67] sc1")]
    for i in range(5): ld.append(("vm", "st", f"buffer_load_dwordx2 v[{L0+2*i}:{L0+2*i+1}], v{T}, s[16:19], s75 offen offset:{256*i}"))
    c = [("wvm", ["st"])]
    for i in range(10): c += [f"v_lshlrev_b32 v{U+2*i}, 16, v{L0+i}", f"v_and_b32 v{U+2*i+1}, 0xffff0000, v{L0+i}"]
    def red(v, t):
        o = [f"v_add_f32 v{v}, v{v}, v{v+1}"]
        for r in (8, 4, 2, 1): o.append(f"v_add_f32_dpp v{v}, v{v}, v{v} row_ror:{r} row_mask:0xf bank_mask:0xf")
        o += [f"v_mov_b32 v{t}, v{v}", f"v_permlane16_swap_b32 v{v}, v{t}", f"v_add_f32 v{v}, v{v}, v{t}", f"v_mul_f32 v{v}, 0x3acccccd, v{v}"]
        return o
    c.append(pk("add", T, U, U+2))
    for i in range(2, 10): c.append(pk("add", T, T, U+2*i))
    c += red(T, T+1)
    for i in range(10): c.append(pk("add", U+2*i, U+2*i, ("b", T), neg=(1,)))
    c.append(pk("mul", T+2, U, U))
    for i in range(1, 10): c.append(pk("fma", T+2, U+2*i, U+2*i, T+2))
    c += red(T+2, T+3)
    c += lines(f"""v_cvt_pk_bf16_f32 v{T}, v{T}, v{T+2}
v_and_b32 v{T+2}, 0xffff0000, v{T}
v_add_f32 v{T+2}, 0x3727c5ac, v{T+2}
v_cvt_pk_bf16_f32 v{T+2}, v{T+2}, v{T+2}
v_and_b32 v{T+2}, 0xffff0000, v{T+2}
v_sqrt_f32 v{T+2}, v{T+2}
v_and_b32 v{T}, 0xffff, v{T}
v_cvt_pk_bf16_f32 v{T+2}, v{T+2}, v{T+2}
v_readfirstlane_b32 s96, v9
v_and_b32 v{T+2}, 0xffff0000, v{T+2}
v_or_b32 v{T}, v{T+2}, v{T}
v_lshrrev_b32 v{T+1}, 5, v0
v_lshlrev_b32 v{T+1}, 2, v{T+1}
v_add_u32 v{T+1}, {scr}, v{T+1}
s_add_u32 s96, s96, 1""")
    c.append(("ds", None, f"ds_write_b32 v{T+1}, v{T}"))
    f = lines(f"v_and_b32 v{T+1}, 7, v1\nv_lshlrev_b32 v{T+1}, 2, v{T+1}\nv_add_u32 v{T+1}, {scr}, v{T+1}") + [("ds", "stf", f"ds_read_b32 v{T}, v{T+1}")]
    f += lines(f"v_lshlrev_b32 v{T+2}, 21, v0\nv_and_b32 v{T+2}, 0xfe000000, v{T+2}\nv_lshl_add_u32 v{T+2}, v1, 3, v{T+2}\ns_lshl_b32 s75, s2, 7\ns_add_u32 s75, s75, {WS_STAT}")
    f += [("wds", ["stf"]), f"v_mov_b32 v{T+1}, s96", ("vm", None, f"buffer_store_dwordx2 v[{T}:{T+1}], v{T+2}, s[8:11], s75 offen sc1")]
    return ld, c, f
def tagtest(tags, exp="s96"):
    L = [f"v_xor_b32 v4, {exp}, v{tags[0]}"]
    for t in tags[1:]: L += [f"v_xor_b32 v5, {exp}, v{t}", "v_or_b32 v4, v4, v5"]
    return L + ["v_cmp_ne_u32 vcc, 0, v4"]
def gcheck(A, name, loads, tags):
    A(f"s_cbranch_vccz {name}_ok\ns_mov_b32 s7, 0x40000")
    A.label(f"{name}_l")
    for x in loads: A(x if isinstance(x, str) else x[2])
    A("s_waitcnt vmcnt(0)"); A.ext(tagtest(tags))
    A(f"s_sub_u32 s7, s7, 1\ns_cbranch_scc1 {name}_ok\ns_cbranch_vccnz {name}_l")
    A.label(f"{name}_ok")
def w2reg(i):
    i %= 12
    return 112 + 20*i if i < 7 else 20*(i-7)
def w2load(i):
    L = [f"s_add_u32 s79, s82, {i*5120}"]
    if i == 2: L += [f"s_cmp_eq_u32 s3, 3\ns_cselect_b32 s79, {hex(OOB)}, s79"]
    for nb in range(5):
        r = w2reg(i) + 4*nb
        L.append(("vm", ("w2", i), f"buffer_load_dwordx4 a[{r}:{r+3}], v{28+(nb>>2)}, s[8:11], s79 offen offset:{(nb&3)*1024} sc1"))
    return L


def spread(A, main, extra, lo=0, hi=None):
    sl = interleave(main, extra, lo, hi) if extra else [[] for _ in main]
    for i, x in enumerate(main):
        A.it(x)
        for y in sl[i]: A.it(y)
def sig_early(A, e, d, t):
    A(f"s_cmp_ge_u32 s{e}, 11\ns_cselect_b32 s{t}, 11, 0\ns_cselect_b32 s{d}, 48, 0\ns_sub_u32 s{t}, s{e}, s{t}\ns_add_u32 s{d}, s{d}, s{t}\ns_mul_i32 s{t}, s{t}, 43\ns_lshr_b32 s{t}, s{t}, 7\ns_mul_i32 s{t}, s{t}, 9\ns_add_u32 s{d}, s{d}, s{t}")
def sig_late(A, l, t):
    A(f"s_lshr_b32 s{t}, s{l}, 2\ns_lshl_b32 s{t}, s{t}, 3\ns_add_u32 s{l}, s{l}, s{t}\ns_add_u32 s{l}, s{l}, 3")
def sig_ssm(A, k, t):
    A(f"s_mul_i32 s{t}, s{k}, 52429\ns_lshr_b32 s{t}, s{t}, 18\ns_mul_i32 s{t}, s{t}, 7\ns_add_u32 s{k}, s{k}, s{t}\ns_add_u32 s{k}, s{k}, 7")
def early_setup(A):
    srd(A, 8, P["ws"], WS_END)
    A("v_lshlrev_b32 v28, 4, v1\nv_add_u32 v29, 4096, v28")
    A("v_lshlrev_b32 v8, 20, v1\nv_and_b32 v8, 0xfe000000, v8\nv_lshl_add_u32 v8, v1, 2, v8")
def ph2_setup(A):
    A("s_and_b32 s28, s2, 1\ns_bfe_u32 s32, s2, 0x20001\ns_lshr_b32 s33, s2, 6\ns_lshl2_add_u32 s80, s32, s33\ns_bfe_u32 s81, s2, 0x30003\ns_lshl2_add_u32 s29, s28, s3")
    A(f"s_mul_i32 s32, s29, 12\ns_mul_i32 s33, s81, 96\ns_add_u32 s33, s33, s32\ns_mul_i32 s82, s33, 5120\ns_add_u32 s82, s82, {WS_W2P}")
    A(f"s_lshl1_add_u32 s33, s80, s28\ns_mul_i32 s34, s33, 96\ns_add_u32 s34, s34, s32\ns_lshl_b32 s83, s34, 12\ns_add_u32 s83, s83, {WS_H}")
    A(f"s_xor_b32 s33, s33, 1\ns_mul_i32 s34, s33, 96\ns_add_u32 s34, s34, s32\ns_lshl_b32 s30, s34, 12\ns_add_u32 s30, s30, {WS_H}")
    A(f"s_lshl_b32 s93, s80, 14\ns_add_u32 s93, s93, {WS_FLG}")
ACCG = 96; ACCK = 176
STEPS = [("G",0),("G",1),("G",2),("K",0),("K",1),("K",2)] + [("G",i) for i in range(3,12)] + [("K",i) for i in range(3,12)]
POOL = ["v32", "v48", "v64", "v80", "a112", "a128", "a144"]
HBUF = [0,1,2,3,0,1,2,3,0,1] + [4,5,6,2,3,0,1,4,5,6,2,3,0,1]
def Hr(n, tb):
    b = POOL[HBUF[n]]; r = int(b[1:]) + 4*tb; return f"{b[0]}[{r}:{r+3}]"
FN = {0: 6, 1: 8, 2: 3, 3: 1, 4: 5}
def fbase(g):
    if g == 0: return lines("s_mul_i32 s31, s28, 22\ns_mul_i32 s32, s3, 6\ns_add_u32 s31, s31, s32\ns_min_u32 s31, s31, 38\ns_lshl_b32 s31, s31, 7\ns_add_u32 s31, s31, s93")
    if g == 1: return lines("s_mul_i32 s31, s29, 172\ns_lshr_b32 s31, s31, 7\ns_lshl_b32 s31, s31, 9\ns_add_u32 s31, s31, s93\ns_add_u32 s31, s31, 5632")
    if g == 2: return lines("s_mul_i32 s31, s29, 5\ns_lshr_b32 s31, s31, 1\ns_lshl_b32 s31, s31, 7\ns_add_u32 s31, s31, s93\ns_add_u32 s31, s31, 11264")
    if g == 3: return lines(f"s_xor_b32 s31, s95, 4\ns_lshl_b32 s31, s31, 7\ns_add_u32 s31, s31, {WS_XF}")
    if g == 4: return lines(f"s_lshl_b32 s31, s81, 3\ns_add_u32 s31, s31, s29\ns_mul_i32 s31, s31, 640\ns_add_u32 s31, s31, {WS_CF}")
    return lines(f"s_mul_i32 s31, s29, 7680\ns_add_u32 s31, s31, {WS_WF}\ns_mul_i32 s32, s81, 5\ns_cmp_eq_u32 s3, 3\ns_cselect_b32 s33, 2, 63")
def faddr(g):
    if g < 5: return [f"v_min_u32 v9, {FN[g]-1}, v1", "v_lshlrev_b32 v9, 7, v9"]
    return lines("v_lshrrev_b32 v9, 1, v1\nv_min_u32 v9, 6, v9\nv_cmp_eq_u32 vcc, s33, v9\nv_and_b32 v2, 1, v1\nv_lshl_add_u32 v2, v2, 2, s32\nv_cndmask_b32 v9, v9, 1, vcc\nv_lshrrev_b32 v2, 3, v2\nv_mad_u32_u24 v9, v9, 5, v2\nv_lshlrev_b32 v9, 7, v9")
def fpoll(g): return glue(fbase(g)) + faddr(g) + [("vm", "fl", "buffer_load_dword v9, v9, s[8:11], s31 offen sc1")]
def fcheck(A, name, g, pre=None):
    A.it(("wvm", ["fl"]))
    A(f"v_cmp_ne_u32 vcc, s96, v9\ns_cbranch_vccz {name}_ok\ns_mov_b32 s7, 0x40000")
    if pre: A(pre)
    A.label(f"{name}_l")
    A.ext(fbase(g) + faddr(g))
    A(f"buffer_load_dword v9, v9, s[8:11], s31 offen sc1\ns_waitcnt vmcnt(0)\nv_cmp_ne_u32 vcc, s96, v9\ns_sub_u32 s7, s7, 1\ns_cbranch_scc1 {name}_ok\ns_cbranch_vccnz {name}_l")
    A.label(f"{name}_ok")
def hload(n):
    hf, i = STEPS[n]
    L = [f"s_add_u32 s77, s{30 if hf == 'G' else 83}, {i*4096}"]
    if i == 2: L += [f"s_cmp_eq_u32 s3, 3\ns_cselect_b32 s77, {hex(OOB)}, s77"]
    for tb in range(4): L.append(("vm", ("h", n), f"buffer_load_dwordx4 {Hr(n,tb)}, v28, s[8:11], s77 offen offset:{tb*1024} sc1"))
    return L
XS = 81920
def ph2_addr(A):
    srd(A, 24, P["dsk"], 1280)
    A("s_lshl1_add_u32 s32, s80, s28\ns_lshl_b32 s32, s32, 6\ns_lshl_b32 s33, s3, 4\ns_add_u32 s32, s32, s33\nv_lshrrev_b32 v2, 2, v1\nv_mul_u32_u24 v12, 160, v2\nv_add_u32 v2, s32, v2")
    A("v_lshrrev_b32 v15, 3, v2\nv_lshlrev_b32 v15, 7, v15\nv_and_b32 v3, 7, v2\nv_lshl_add_u32 v15, v3, 3, v15\nv_mul_u32_u24 v2, 2560, v2")
    A("s_mul_i32 s98, s81, 160\ns_mul_i32 s97, s32, 1280\ns_add_u32 s97, s97, s98\ns_lshl_b32 s33, s98, 1\nv_and_b32 v3, 3, v1\nv_lshl_add_u32 v13, v3, 4, v2\nv_add_u32 v13, s33, v13")
    A(f"s_mul_i32 s100, s3, 20480\ns_add_u32 s100, s100, {XS}\nv_lshl_add_u32 v14, v3, 3, s100\nv_add_u32 v12, v12, v14\ns_movk_i32 s33, 6554")
    for i in range(3):
        A(f"v_add_u32 v2, {64*i}, v1\nv_min_u32 v2, 159, v2\nv_mul_u32_u24 v3, s33, v2\nv_lshrrev_b32 v3, 16, v3\nv_mul_u32_u24 v3, 1120, v3\nv_lshl_add_u32 v{16+i}, v2, 4, v3")
    A("v_min_u32 v19, 144, v28")
def ph2_addr2(A):
    srd(A, 20, P["out"], SZ_OUT)
    A("v_lshrrev_b32 v2, 4, v1\nv_lshlrev_b32 v3, 2, v2\nv_xor_b32 v3, v3, v1\nv_lshlrev_b32 v3, 4, v3\ns_mul_i32 s75, s3, 20480\nv_add_u32 v22, s75, v3")
    A("v_and_b32 v2, 3, v1\nv_lshrrev_b32 v4, 2, v1\nv_lshlrev_b32 v5, 2, v2\nv_xor_b32 v4, v4, v5\nv_lshl_add_u32 v4, v2, 4, v4\nv_lshlrev_b32 v4, 4, v4\ns_mul_i32 s75, s3, 5120\nv_add_u32 v23, s75, v4\nv_add_u32 v24, 40960, v23")
    A(f"s_mul_i32 s4, s95, 5120\ns_add_u32 s4, s4, {WS_XCH}\ns_xor_b32 s5, s95, 4\ns_mul_i32 s5, s5, 5120\ns_add_u32 s5, s5, {WS_XCH}\ns_lshl_b32 s6, s95, 7\ns_add_u32 s6, s6, {WS_XF}")
def fin_loads():
    L = []
    for i in range(3): L += [f"s_add_u32 m0, s100, {1024*i}", ("vm", "fin", f"buffer_load_dwordx4 v{16+i}, s[16:19], s97 offen lds")]
    L += ["s_add_u32 m0, s100, 3072", ("vm", "fin", "buffer_load_dwordx4 v19, s[24:27], s98 offen lds"), f"s_mov_b32 s75, {WS_STAT}", ("vm", "fin", "buffer_load_dword v10, v15, s[8:11], s75 offen sc1")]
    return L
GROUPS = [[n] for n in range(13)] + [[13, 14]] + [[n] for n in range(15, 21)] + [[21, 22, 23]]
ISSUE = {0: (2, 3), 1: (4,), 2: (5,), 3: (6,), 4: (7,), 5: (8,), 6: (9,), 7: (10, 11), 8: (12,), 9: (13,), 10: (14,), 11: (15,), 12: (16,), 13: (17, 18, 19), 15: (20,), 16: (21,), 17: (22,), 18: (23,)}
for k_, ns_ in ISSUE.items():
    for n_ in ns_:
        prev_ = [m for m in range(n_) if HBUF[m] == HBUF[n_]]
        assert (not prev_ or prev_[-1] < k_) and (HBUF[n_] < 4 or k_ > 5)
def acc2(hf, nb, tb): return (ACCG if hf == "G" else ACCK) + (tb*5+nb)*4
def ph2_groups(A, groups, extra, pre={}, first={}):
    pend = []
    for g in groups:
        n0 = g[0]; hf = STEPS[n0][0]
        tags = [("h", n) for n in g]
        if n0 == 16: A.sync(tags)
        else: A.it(("wvm", tags))
        if TS >= 2 and n0 not in (15, 17, 18): A("s_waitcnt lgkmcnt(0)")
        if TS >= 2:
            if n0: A(f"v_writelane_b32 v25, s88, {GROUPS.index(g)-1}")
            A("s_memtime s[88:89]")
        if n0 in pre: pre[n0]()
        mf = []; wr = [[] for _ in range(20*len(g))]
        for nb in range(5):
            for tb in range(4):
                c = acc2(hf, nb, tb)
                for n in g:
                    w = w2reg(STEPS[n][1]) + 4*nb
                    mf.append(f"{MF} v[{c}:{c+3}], a[{w}:{w+3}], {Hr(n,tb)}, " + (f"v[{c}:{c+3}]" if STEPS[n][1] else "0"))
                if len(g) > 1:
                    pos = 3*(nb*4+tb) + 8
                    if int(OPT.get("w64", 1)): its = [(pos+k, ("ds", None, f"ds_write_b64 v22, v[{c+2*k}:{c+2*k+1}] offset:{(tb*5+nb)*1024+8*k}")) for k in range(2)]
                    else: its = [(pos, ("ds", None, f"ds_write_b128 v22, v[{c}:{c+3}] offset:{(tb*5+nb)*1024}"))]
                    for pos, it in its:
                        if pos < len(wr): wr[pos].append(it)
                        else: pend.append(it)
        st = [(first.get(n0, []) + sum((hload(n) for n in ISSUE.get(n0, ())), []), 0, len(mf) - 8), (extra.get(n0, []), 1, len(mf) - 1)]
        if len(g) == 1 and pend: st.append((pend, 0, 19)); pend = []
        A.weave(mf, st, fixed=wr)
    A.its(pend)
JOIN = []
def ph2_head(A, name, extra, pre={}):
    a1 = chop(cap(ph2_addr), 2); a2 = cap(ph2_addr2)
    e = {0: fpoll(1)[:-1], 1: a1[0], 2: a1[1], 3: fin_loads(), 4: fpoll(2)[:-1], 6: a2}
    for k, v in extra.items(): e[k] = e.get(k, []) + v
    p = dict(pre); p[3] = lambda: fcheck(A, name + "1", 1)
    ph2_groups(A, GROUPS[:7], e, p, {1: fpoll(1)[-1:], 5: fpoll(2)[-1:]})
    JOIN.append({t: A.nv - v for t, v in A.tv.items()})

W_SLOT = 20480; NWS = 4; X_BASE = NWS*W_SLOT; X_SLOT = 16384; F_SCR = X_BASE + 3*X_SLOT
def gen_ffn(A):
    import copy
    A("s_mul_i32 s70, s69, 160\ns_min_u32 s70, s70, 1568")
    A("s_lshl_b32 s32, s68, 7\ns_lshl_b32 s33, s3, 5\ns_add_u32 s32, s32, s33")
    A("v_lshrrev_b32 v2, 3, v1\nv_add_u32 v2, s32, v2\nv_mul_u32_u24 v2, 1280, v2\nv_lshrrev_b32 v3, 4, v1\nv_xor_b32 v3, v3, v1\nv_and_b32 v3, 7, v3\nv_lshlrev_b32 v3, 4, v3")
    A(f"v_add_u32 v15, v2, v3\nv_xor_b32 v3, 64, v3\nv_add_u32 v16, v2, v3\nv_add_u32 v16, {8*1280-1024}, v16\nv_add_u32 v17, {16*1280}, v15\nv_add_u32 v18, {16*1280}, v16")
    A(f"s_mul_i32 s73, s3, 5120\ns_lshl_b32 s74, s3, 12\ns_add_u32 s74, s74, {X_BASE}")
    A("s_mul_i32 s32, s71, 320\ns_lshl_b32 s33, s70, 1\ns_movk_i32 s34, 3277")
    for i in range(5):
        A(f"v_add_u32 v2, s32, v1\nv_add_u32 v2, {64*i}, v2\nv_mul_u32_u24 v3, s34, v2\nv_lshrrev_b32 v3, 16, v3")
        A("v_mul_u32_u24 v4, 20, v3\nv_sub_u32 v4, v2, v4\nv_lshrrev_b32 v5, 2, v3\nv_and_b32 v5, 2, v5\nv_xor_b32 v4, v4, v5")
        A(f"v_mul_u32_u24 v3, 3456, v3\nv_lshl_add_u32 v3, v4, 4, v3\nv_add_u32 v3, s33, v3\nv_subrev_u32 v{10+i}, {1024*(i&3)}, v3")
    def dmaW(s):
        L = [f"s_add_u32 m0, s73, {(s%NWS)*W_SLOT}", f"s_mov_b32 s77, {s*32*3456}"]
        for i in range(5):
            if i == 4: L.append(f"s_add_u32 m0, s73, {(s%NWS)*W_SLOT+4096}")
            L.append(("vm", ("W", s), f"buffer_load_dwordx4 v{10+i}, s[12:15], s77 offen offset:{1024*(i&3)} lds"))
        return L
    def dmaX(u, hs=(0, 1)):
        L = []
        for h in hs:
            L += [f"s_add_u32 m0, s74, {(u%3)*X_SLOT+2048*h}", f"s_movk_i32 s78, {u*128}"]
            for i in range(2): L.append(("vm", ("X", u), f"buffer_load_dwordx4 v{15+2*h+i}, s[16:19], s78 offen offset:{1024*i} lds"))
        return L
    st_ld, st_c, st_f = stats_job(32, X_BASE + 2*X_SLOT)
    A("s_waitcnt lgkmcnt(0)")
    if TS >= 2: A("v_writelane_b32 v19, s4, 32")
    ptick(A, 33, 19)
    srd(A, 16, P["x"], SZ_X)
    A.its(st_ld)
    A("s_cmp_eq_u32 s72, 0"); srd_sel(A, 12, P["w1"], P["w3"], SZ_W)
    A.its(dmaX(0) + dmaW(0)); ptick(A, 34, 19)
    early_setup(A)
    A("v_lshrrev_b32 v2, 4, v1\nv_bfe_u32 v3, v1, 2, 2\nv_lshl_add_u32 v3, v2, 3, v3\nv_mul_u32_u24 v3, 320, v3")
    A("v_and_b32 v4, 3, v1\nv_lshl_add_u32 v3, v4, 3, v3\nv_and_b32 v4, 1, v2\nv_lshlrev_b32 v4, 5, v4")
    A("s_mul_i32 s32, s72, 192\nv_add_u32 v5, s32, v3\nv_add_u32 v20, v5, v4\nv_sub_u32 v21, v5, v4")
    A("s_lshl_b32 s32, s72, 5\ns_add_u32 s32, s32, 128\nv_xor_b32 v5, s32, v4\nv_add_u32 v22, v3, v5")
    for i in range(3): A(f"v_add_u32 v{23+i}, {3*W_SLOT}, v{20+i}")
    A("v_and_b32 v3, 15, v1\nv_lshrrev_b32 v4, 1, v3\nv_xor_b32 v4, v4, v2\nv_lshlrev_b32 v4, 4, v4\nv_lshl_add_u32 v3, v3, 7, v4")
    A(f"s_lshl_b32 s32, s71, 13\ns_add_u32 s32, s32, {X_BASE}\nv_add_u32 v26, s32, v3\nv_xor_b32 v27, 64, v26")
    def hs(A):
        A("s_lshl1_add_u32 s32, s69, s72"); sig_early(A, 32, 84, 33)
        A("s_mul_i32 s33, s69, 3\ns_cmp_eq_u32 s69, 10\ns_cselect_b32 s34, 1, 0\ns_sub_u32 s33, s33, s34\ns_lshl1_add_u32 s85, s72, s33\ns_add_u32 s86, s33, 1")
        sig_late(A, 85, 34); sig_late(A, 86, 34)
        A(f"s_lshl1_add_u32 s33, s68, s71\ns_mul_i32 s34, s33, 96")
        for r in (84, 85, 86): A(f"s_add_u32 s{r}, s{r}, s34\ns_lshl_b32 s{r}, s{r}, 12\ns_add_u32 s{r}, s{r}, {WS_H}")
        A(f"s_cmp_eq_u32 s32, 19\ns_cselect_b32 s85, {hex(OOB)}, s85")
        A(f"s_lshl1_add_u32 s87, s32, s71\ns_lshl_b32 s33, s68, 7\ns_add_u32 s87, s87, s33\ns_lshl_b32 s87, s87, 7\ns_add_u32 s87, s87, {WS_FLG}")
    late_setup = [cap(ph2_setup), []] + chop(cap(hs), 2)
    ep_ld = lines(f"s_mul_i32 s75, s72, 1728\ns_mul_i32 s76, s71, 80\ns_add_u32 s75, s75, s76\ns_add_u32 s75, s75, s70\ns_lshl_b32 s75, s75, 3\ns_add_u32 s75, s75, {WS_CS}\ns_add_u32 s76, s75, {CS_HALF}\nv_min_u32 v2, 624, v28")
    ep_ld += [("vm", "ep", "buffer_load_dwordx4 v[56:59], v2, s[8:11], s75 offen sc1"), ("vm", "ep", "buffer_load_dwordx4 v[60:63], v2, s[8:11], s76 offen sc1")]
    ep_ld += lines(f"v_and_b32 v2, 7, v1\nv_lshlrev_b32 v2, 3, v2\nv_and_b32 v3, 8, v1\nv_lshl_add_u32 v2, v3, 4, v2\ns_lshl1_add_u32 s75, s68, s71\ns_lshl_b32 s75, s75, 10\ns_add_u32 s75, s75, {WS_STAT}")
    for tb in range(4): ep_ld.append(("vm", "ep", f"buffer_load_dwordx2 v[{64+2*tb}:{65+2*tb}], v2, s[8:11], s75 offen offset:{256*tb} sc1"))
    ep_tags = [57, 59, 61, 63, 65, 67, 69, 71]
    ep_t = [("wvm", ["ep"])] + tagtest(ep_tags)
    ep_w = lines(f"v_add_f32 v56, v56, v60\nv_add_f32 v57, v58, v62\ns_lshl_b32 s75, s72, 10\ns_mul_i32 s76, s71, 320\ns_add_u32 s75, s75, s76\ns_add_u32 s75, s75, {F_SCR}\nv_min_u32 v2, 39, v1\nv_lshl_add_u32 v2, v2, 3, s75")
    ep_w += [("ds", None, "ds_write_b64 v2, v[56:57]")]
    ep_r = lines(f"v_and_b32 v2, 48, v1\ns_mul_i32 s75, s72, 384\ns_add_u32 s75, s75, {F_SCR}\nv_add_u32 v3, s75, v2\ns_lshl_b32 s75, s72, 6\ns_add_u32 s75, s75, {F_SCR+256}\nv_add_u32 v2, s75, v2")
    for j in range(10):
        pr, m = j >> 1, j & 1
        ep_r.append(("ds", None, f"ds_read_b128 v[{56+4*j}:{59+4*j}], v{2 if pr == 4 else 3} offset:{1024*m + (0 if pr == 4 else 64*pr)}"))
    ep_c = []
    for tb in range(4):
        ep_c += lines(f"v_lshlrev_b32 v{44+tb}, 16, v{64+2*tb}\nv_and_b32 v{52+tb}, 0xffff0000, v{64+2*tb}\nv_rcp_f32 v{48+tb}, v{52+tb}\nv_mul_f32 v{52+tb}, v{52+tb}, v{52+tb}\nv_mul_f32 v{48+tb}, 0xbfb8aa3b, v{48+tb}")
    ep_a = lines("v_lshrrev_b32 v2, 4, v1\nv_and_b32 v3, 1, v2\nv_lshlrev_b32 v3, 10, v3\nv_lshrrev_b32 v2, 1, v2\nv_lshl_add_u32 v3, v2, 8, v3")
    ep_a += lines("v_and_b32 v2, 15, v1\nv_lshl_add_u32 v3, v2, 4, v3\ns_lshl_b32 s75, s72, 9\nv_add_u32 v36, s75, v3\nv_mov_b32 v31, s96\ns_add_u32 s99, s87, 5632")
    ACC = 96
    def acc(j, tb): return ACC + (j*4+tb)*4
    def Wr(par, j): return par*56 + j*4
    def Xr(par, tb): return par*56 + 40 + tb*4
    def reads(s):
        par = s & 1; L = []; sl = s % NWS; hi = 3 if sl >= 3 else 0; so = (sl - hi)*W_SLOT
        for tb in range(4): L.append(("ds", None, f"ds_read_b128 a[{Xr(par,tb)}:{Xr(par,tb)+3}], v{26+(s&1)} offset:{((s>>1)%3)*X_SLOT + tb*2048}"))
        for j in range(10):
            pr, m = j >> 1, j & 1; ar = 22 if pr == 4 else 20 + (pr & 1); co = 0 if pr == 4 else pr*32
            for hh in range(2): L.append(("ds", None, f"ds_read_b64_tr_b16 a[{Wr(par,j)+2*hh}:{Wr(par,j)+2*hh+1}], v{ar+hi} offset:{so + m*10240 + hh*1280 + co}"))
        return L
    wl = chop(sum((w2load(i) for i in range(7)), []), 9)
    def loop(role, mem, side):
        M = {0: dmaW(3), 1: dmaX(2) + dmaW(4), 2: dmaW(5), 3: dmaX(3) + dmaW(6), 4: dmaW(7) + dmaW(8), 5: dmaX(4) + dmaW(9), 6: dmaW(10) + dmaX(5)}
        for s in range(7, 16): M[s] = dmaW(s+4) + (dmaX((s+5) >> 1, ((s+1) & 1,)) if s < 15 else [])
        for s, L in mem.items(): M[s] = M[s] + L
        M[15] += wl[0]
        for s in range(16, 20): M[s] = wl[2*s-31] + wl[2*s-30]
        S = dict(side)
        for k, L in {5: late_setup[0], 6: late_setup[2], 8: late_setup[3], 11: ep_a, 12: fpoll(5), 14: ep_ld, 16: ep_t, 17: ep_w + ep_c, 18: ep_r}.items():
            S[k] = S.get(k, []) + L
        for s in range(20):
            tags = [("W", s+1), ("X", (s+1) >> 1)] if s < 19 else []
            if s == 15: fcheck(A, role + "P", 5)
            if s == 17: gcheck(A, role + "G", ep_ld, ep_tags)
            A.sync(tags)
            tick(A, s, 19)
            par = s & 1; mf = []
            for j in range(10):
                for tb in range(4):
                    c = acc(j, tb); mf.append(f"{MF} v[{c}:{c+3}], a[{Wr(par,j)}:{Wr(par,j)+3}], a[{Xr(par,tb)}:{Xr(par,tb)+3}], " + (f"v[{c}:{c+3}]" if s else "0"))
            A.weave(mf, [(reads(s+1) if s < 19 else [], 0, 30), (M.get(s, []), 0, 39), (S.get(s, []), 1, 39)])
    ptick(A, 35, 19); A.its(st_c[:1]); ptick(A, 36, 19)
    spread(A, st_c[1:], dmaW(1) + dmaX(1) + dmaW(2), 0, len(st_c) - 10); ptick(A, 37, 19)
    A.sync([("X", 0), ("W", 0)]); ptick(A, 38, 19); stamp(A, 1)
    A.its(reads(0))
    A("s_mul_i32 s32, s68, 11\ns_add_u32 s32, s32, s69\ns_cmp_ge_u32 s32, 108\ns_cbranch_scc1 FB_a")
    snap = (A.nv, dict(A.tv), A.dv, A.nd, dict(A.td), A.dd)
    def fa1(A):
        A("s_lshr_b32 s33, s32, 1\ns_and_b32 s34, s32, 1\ns_cmp_lt_u32 s33, 27"); srd_sel(A, 24, P["w1"], P["w3"], SZ_W)
        A(f"s_cselect_b32 s35, 0, 27\ns_sub_u32 s35, s33, s35\ns_lshl_b32 s35, s35, 7\ns_lshl2_add_u32 s97, s34, s3\ns_mul_i32 s97, s97, {80*3456}\ns_add_u32 s97, s97, s35")
        A(f"s_lshl_b32 s98, s33, 9\ns_mul_i32 s34, s34, {CS_HALF}\ns_add_u32 s98, s98, s34\ns_add_u32 s98, s98, {WS_CS}\ns_cmp_eq_u32 s3, 0\ns_cselect_b32 s98, s98, {hex(OOB)}")
        A("v_lshrrev_b32 v2, 3, v1\nv_mul_u32_u24 v2, 3456, v2\nv_and_b32 v3, 7, v1\nv_lshl_add_u32 v30, v3, 4, v2")
    def fa2(A):
        A("v_and_b32 v2, 15, v1\nv_and_b32 v3, 1, v1\nv_lshlrev_b32 v3, 4, v3\nv_mov_b32 v4, 0x3f80\nv_lshlrev_b32 v3, v3, v4\nv_lshrrev_b32 v2, 1, v2")
        for r in range(4): A(f"v_cmp_eq_u32 vcc, {r}, v2\nv_cndmask_b32 v{72+r}, 0, v3, vcc")
        A(f"v_and_b32 v2, 7, v1\nv_lshlrev_b32 v2, 5, v2\nv_and_b32 v3, 16, v1\nv_add_u32 v2, v2, v3\ns_lshl_b32 s75, s3, 8\ns_add_u32 s75, s75, {F_SCR}\nv_add_u32 v2, s75, v2\nv_and_b32 v3, 32, v1\nv_lshl_add_u32 v80, v3, 5, v2")
        A(f"v_lshlrev_b32 v82, 2, v1\nv_add_u32 v81, {F_SCR}, v82\nv_lshlrev_b32 v82, 3, v1")
    cs_ld = []
    for i in range(10): cs_ld += [f"s_add_u32 s77, s97, {i*8*3456}", ("vm", "csl", f"buffer_load_dwordx4 a[{112+4*i}:{115+4*i}], v30, s[24:27], s77 offen")]
    cs_c = [("wvm", ["csl"])]
    for i in range(10): cs_c.append(f"{MF} v[76:79], v[72:75], a[{112+4*i}:{115+4*i}], " + ("v[76:79]" if i else "0"))
    cs_c += ["s_nop 0"]*2
    for e in range(4): cs_c.append(f"v_add_f32_dpp v{76+e}, v{76+e}, v{76+e} row_ror:8 row_mask:0xf bank_mask:0xf")
    cs_c.append(("ds", None, "ds_write_b128 v80, v[76:79]"))
    cs_f = [("ds", "csf", f"ds_read_b32 v{72+w}, v81 offset:{256*w}") for w in range(4)]
    cs_f += [("wds", ["csf"]), "v_add_f32 v72, v72, v73", "v_add_f32 v74, v74, v75", "v_mov_b32 v73, s96", "v_add_f32 v72, v72, v74", ("vm", None, "buffer_store_dwordx2 v[72:73], v82, s[8:11], s98 offen sc1")]
    A0 = int(OPT.get("a0", 2))
    loop("FA", {A0+k: cs_ld[4*k:4*k+4] for k in range(5)}, {0: cap(fa1) + st_f, 2: cap(fa2), A0+7: cs_c, A0+8: cs_f})
    A("s_branch FFN_EP")
    A.nv, A.tv, A.dv, A.nd, A.td, A.dd = snap
    A.label("FB_a")
    SO = (4, 5, 6, 97, 24, 25, 26, 27)
    def fb1(A):
        srd(A, 20, P["w2"], SZ_W)
        A("s_sub_u32 s34, s32, 108\ns_lshl2_add_u32 s32, s34, s3\ns_mul_i32 s34, s32, 52429\ns_lshr_b32 s34, s34, 18\ns_mul_i32 s33, s34, 5\ns_sub_u32 s33, s32, s33")
        A(f"s_mul_i32 s99, s34, 40960\ns_lshl_b32 s35, s33, 8\ns_add_u32 s99, s99, s35\ns_lshl_b32 s101, s3, 13\ns_add_u32 s101, s101, {F_SCR}")
        A(f"v_lshrrev_b32 v2, 4, v1\nv_mul_u32_u24 v30, 1280, v2\nv_and_b32 v3, 15, v1\nv_lshl_add_u32 v30, v3, 4, v30")
    def fb2(A):
        A("s_mul_i32 s35, s34, 52429\ns_lshr_b32 s35, s35, 18\ns_mul_i32 s75, s35, 5\ns_sub_u32 s75, s34, s75\ns_sub_u32 s76, s34, 49\ns_cmp_ge_u32 s34, 49\ns_cselect_b32 s35, 10, s35\ns_cselect_b32 s75, s76, s75")
        A("s_cmp_eq_u32 s75, 3\ns_cselect_b32 s76, 1, 0\ns_lshl1_add_u32 s76, s35, s76"); sig_early(A, 76, 100, 79)
        A("s_mul_i32 s76, s35, 3\ns_lshr_b32 s79, s75, 1\ns_add_u32 s76, s76, s79\ns_cmp_eq_u32 s35, 10\ns_cselect_b32 s79, 1, 0\ns_sub_u32 s76, s76, s79"); sig_late(A, 76, 79)
        A("s_lshr_b32 s79, 9, s75\ns_bitcmp1_b32 s79, 0\ns_cselect_b32 s100, s100, s76")
        A(f"s_mul_i32 s98, s100, 5\ns_add_u32 s98, s98, s33\ns_lshl_b32 s98, s98, 7\ns_add_u32 s98, s98, {WS_WF}")
        A(f"s_mul_i32 s100, s100, 5120\ns_lshl_b32 s79, s33, 13\ns_add_u32 s100, s100, s79\ns_add_u32 s100, s100, {WS_W2P}")
        A(f"s_cmp_lt_u32 s32, 270\ns_cselect_b32 s100, s100, {hex(OOB)}\ns_cselect_b32 s98, s98, {hex(OOB)}")
        A("s_cmp_eq_u32 s75, 2\ns_cselect_b32 s75, 8, 4\ns_cselect_b32 s76, 1, 4\ns_lshl_b32 s76, s76, 10")
        A(f"v_lshrrev_b32 v2, 4, v1\nv_mul_u32_u24 v2, s75, v2\nv_bfe_u32 v3, v1, 2, 2\nv_add_u32 v2, v2, v3\nv_lshlrev_b32 v2, 8, v2\nv_and_b32 v3, 3, v1\nv_lshl_add_u32 v2, v3, 3, v2")
        A(f"v_add_u32 v80, s101, v2\nv_add_u32 v81, s76, v80\ns_mul_i32 s33, s33, {8*52429}")
        for k in range(8): A(f"s_add_u32 s79, s33, {k*52429}\ns_lshr_b32 s79, s79, 18\ns_mul_i32 s79, s79, 486400\ns_add_u32 s{SO[k]}, s100, s79")
    w2_ld = []
    for i in range(8): w2_ld += [f"s_add_u32 m0, s101, {1024*i}", f"s_add_u32 s77, s99, {5120*i}", ("vm", "w2l", "buffer_load_dwordx4 v30, s[20:23], s77 offen lds")]
    w2_c = [("wvm", ["w2l"])]
    for k in range(8):
        for hh in range(2): w2_c.append(("ds", "w2t", f"ds_read_b64_tr_b16 a[{152+4*k+2*hh}:{153+4*k+2*hh}], v{80+hh} offset:{32*k}"))
    w2_s = [("vm", "side", f"buffer_store_dwordx4 a[{152+4*k}:{155+4*k}], v{28+(k>>2)}, s[8:11], s{SO[k]} offen offset:{(k&3)*1024} sc1") for k in range(8)]
    f2 = chop(cap(fb2), 3)
    fb1(A)
    loop("FB", {0: w2_ld[:15], 1: w2_ld[15:]}, {0: st_f + f2[0], 1: f2[1], 2: f2[2], 3: w2_c, 4: w2_s, 7: ["v_mov_b32 v3, s96", ("wvm", ["side"]), ("vm", None, "buffer_store_dword v3, v8, s[8:11], s98 offen sc1")]})
    A.label("FFN_EP"); A.reset()
    A("s_waitcnt lgkmcnt(0)"); tick(A, 20, 19); tockdump(A, 20, 19, 0x40000)
    stamp(A, 2)
    A("s_nop 6")
    T = 32
    def silu(pr, tb, dst):
        g, u = acc(2*pr, tb), acc(2*pr+1, tb); cg, cu = 56+8*pr, 60+8*pr
        L = []
        for k in (0, 2): L.append(pk("fma", g+k, cg+k, ("b", 44+tb), g+k, neg=(1,)))
        for k in (0, 2): L.append(pk("mul", T+k, g+k, ("b", 48+tb)))
        for k in (0, 2): L.append(pk("fma", u+k, cu+k, ("b", 44+tb), u+k, neg=(1,)))
        for e in range(4): L.append(f"v_exp_f32 v{T+e}, v{T+e}")
        for k in (0, 2): L.append(pk("mul", g+k, g+k, u+k))
        for k in (0, 2): L.append(pk("fma", T+k, T+k, ("b", 52+tb), ("b", 52+tb)))
        for e in range(4): L.append(f"v_rcp_f32 v{T+e}, v{T+e}")
        for k in (0, 2): L.append(pk("mul", g+k, g+k, T+k))
        L += [f"v_cvt_pk_bf16_f32 v{dst}, v{g}, v{g+1}", f"v_cvt_pk_bf16_f32 v{dst+1}, v{g+2}, v{g+3}"]
        return L
    ep = []
    EF = int(OPT.get("ef", 2))
    for fr in range(2):
        for tb in range(4):
            o = acc(4*fr+1, tb)
            ep += silu(2*fr, tb, o) + silu(2*fr+1, tb, o+2)
            if fr == 1 and tb == EF: ep += [("wvm", [("H", 0)]), ("vm", None, "buffer_store_dword v31, v8, s[8:11], s87 offen sc1")]
            ep.append(("vm", ("H", fr), f"buffer_store_dwordx4 v[{o}:{o+3}], v28, s[8:11], s{84+fr} offen offset:{tb*1024} sc1"))
    for tp in range(2):
        o = acc(9, 2*tp)
        ep += silu(4, 2*tp, o) + silu(4, 2*tp+1, o+2)
        ep += [f"v_permlane16_swap_b32 v{o}, v{o+2}", f"v_permlane16_swap_b32 v{o+1}, v{o+3}"]
        if tp == 1: ep += fpoll(0)
        ep.append(("vm", ("H", 2), f"buffer_store_dwordx4 v[{o}:{o+3}], v36, s[8:11], s86 offen offset:{tp*2048} sc1"))
    A.its(fpoll(4)); A.its(ep[:90]); fcheck(A, "FC4", 4)
    spread(A, ep[90:], sum((w2load(i) for i in range(7, 7+FE)), []), 0, 280)
    stamp(A, 3)
    FBUB = int(OPT.get("fb", 0))
    A.its(sum((w2load(i) for i in range(7+FE, 7+FE+FBUB)), []))
    fs = "buffer_store_dword v31, v8, s[8:11], s99 offen sc1"
    fcheck(A, "FC0", 0, pre=f"s_waitcnt vmcnt({5*FBUB})\n" + fs)
    stamp(A, 6)
    for i in range(2): A.its(hload(i))
    A.its([("wvm", [("H", 2)]), ("vm", None, fs)])
    ph2_head(A, "FC", dict(enumerate(chop(sum((w2load(i) for i in range(7+FE+FBUB, 12)), []), 7))) if FE+FBUB < 5 else {})
    A("s_branch PH2")

S_SLOT = 49152; S_SCR = 3*S_SLOT
def gen_ssm(A):
    A.reset()
    A("s_lshl_b32 s32, s68, 8\ns_lshl_b32 s33, s72, 7\ns_add_u32 s32, s32, s33\ns_lshl_b32 s33, s71, 3\ns_add_u32 s32, s32, s33")
    A("v_and_b32 v2, 32, v1\nv_bfe_u32 v3, v1, 3, 1\nv_lshl_add_u32 v2, v3, 4, v2\nv_bfe_u32 v3, v1, 4, 1\nv_add3_u32 v2, v2, v3, s32\nv_mul_u32_u24 v2, 1280, v2")
    A("v_lshrrev_b32 v3, 4, v1\nv_xor_b32 v3, v3, v1\nv_and_b32 v3, 7, v3\nv_lshlrev_b32 v3, 4, v3\nv_xor_b32 v4, 64, v3\nv_add_u32 v5, v2, v3\nv_add_u32 v6, v2, v4")
    for ii in range(8): A(f"v_add_u32 v{10+ii}, {(64*(ii&1) + 2*(ii>>1))*1280 - 1024*(ii&3)}, v{5+(ii&1)}")
    A("s_lshl_b32 s32, s69, 6\ns_lshl_b32 s33, s71, 5\ns_add_u32 s32, s32, s33")
    A("v_lshrrev_b32 v2, 3, v1\nv_add_u32 v2, s32, v2\nv_mul_u32_u24 v2, 1280, v2\nv_add_u32 v5, v2, v3\nv_add_u32 v6, v2, v4")
    for i in range(4): A(f"v_add_u32 v{18+i}, {8*i*1280 - 1024*i}, v{5+(i&1)}")
    A("s_lshl_b32 s73, s3, 13\ns_lshl_b32 s74, s3, 12\ns_add_u32 s74, s74, 32768\ns_waitcnt lgkmcnt(0)")
    srd(A, 16, P["x"], SZ_X)
    st_ld, st_c, st_f = stats_job(32, S_SCR)
    A.its(st_ld)
    A("s_cmp_eq_u32 s72, 0"); srd_sel(A, 12, P["bre"], P["bim"], SZ_B)
    def dma(u, hs=(0, 1)):
        b = (u % 3)*S_SLOT; L = []
        for h in hs:
            L += [f"s_add_u32 m0, s73, {b+4096*h}", f"s_movk_i32 s78, {u*128}"]
            for i in range(4): L.append(("vm", ("S", u), f"buffer_load_dwordx4 v{10+4*h+i}, s[16:19], s78 offen offset:{1024*i} lds"))
            L.append(f"s_add_u32 m0, s74, {b}")
            for i in range(2): L.append(("vm", ("S", u), f"buffer_load_dwordx4 v{18+2*h+i}, s[12:15], s78 offen offset:{1024*(2*h+i)} lds"))
        return L
    A.its(dma(0))
    p_ld = lines("s_lshl_b32 s32, s69, 6\ns_lshl_b32 s33, s72, 5\ns_add_u32 s32, s32, s33\nv_and_b32 v2, 15, v1\nv_add_u32 v30, s32, v2\nv_lshlrev_b32 v2, 1, v30")
    for cb in range(2):
        for q, sp in enumerate((P["lre"], P["lim"], P["ldt"])): p_ld.append(("vm", "P", f"global_load_ushort v{112+3*cb+q}, v2, s[{sp}:{sp+1}] offset:{32*cb}"))
    early_setup(A)
    A("v_lshrrev_b32 v2, 4, v1\nv_and_b32 v3, 15, v1\nv_lshrrev_b32 v4, 1, v3\nv_xor_b32 v4, v4, v2\nv_lshlrev_b32 v4, 4, v4\nv_lshl_add_u32 v3, v3, 7, v4")
    A("s_lshl_b32 s32, s71, 14\ns_lshl_b32 s33, s72, 12\ns_add_u32 s33, s33, 32768")
    A("v_add_u32 v22, s32, v3\nv_xor_b32 v23, 64, v22\nv_add_u32 v120, s33, v3\nv_xor_b32 v121, 64, v120")
    for sl in (1, 2):
        for ks in range(2): A(f"v_add_u32 v{22+2*sl+ks}, {sl*S_SLOT}, v{22+ks}\nv_add_u32 v{120+2*sl+ks}, {sl*S_SLOT}, v{120+ks}")
    def ss1(A):
        A("s_mul_i32 s32, s68, 10\ns_add_u32 s32, s32, s69\ns_lshl2_add_u32 s32, s32, s3\ns_cmp_lt_u32 s32, 160"); srd_sel(A, 24, P["bre"], P["bim"], SZ_B)
        A(f"s_cselect_b32 s33, 0, 160\ns_sub_u32 s33, s32, s33\ns_mul_i32 s97, s33, 5120\ns_lshl_b32 s98, s32, 7\ns_add_u32 s98, s98, {WS_CSB}")
        A("v_bfe_u32 v2, v1, 2, 2\nv_mul_u32_u24 v2, 1280, v2\nv_and_b32 v3, 3, v1\nv_lshl_add_u32 v2, v3, 4, v2\nv_lshrrev_b32 v3, 4, v1\nv_lshl_add_u32 v54, v3, 6, v2")
        A("v_lshlrev_b32 v2, 21, v1\nv_and_b32 v2, 0xfe000000, v2\nv_lshl_add_u32 v55, v1, 3, v2")
    def ss2(A):
        for r in range(4): A(f"v_mov_b32 v{68+r}, 0x3f803f80")
        A("s_lshl_b32 s32, s71, 2\nv_lshrrev_b32 v31, 4, v1\nv_add_u32 v31, s32, v31")
        A("s_mul_i32 s32, s68, 10\ns_add_u32 s32, s32, s69\ns_lshl2_add_u32 s32, s32, s3\ns_lshr_b32 s33, s32, 3\ns_and_b32 s34, s32, 7")
        A("s_bitcmp0_b32 s33, 0"); srd_sel(A, 20, P["cre"], P["cim"], SZ_B)
        A("s_mul_i32 s99, s34, 102400\ns_lshr_b32 s35, s33, 1\ns_lshl_b32 s35, s35, 6\ns_add_u32 s99, s99, s35")
        A(f"s_mul_i32 s101, s34, 40\ns_add_u32 s101, s101, s33\ns_lshl_b32 s101, s101, 7\ns_add_u32 s101, s101, {WS_CF}")
        sig_ssm(A, 33, 35)
        A(f"s_mul_i32 s34, s34, 96\ns_add_u32 s33, s33, s34\ns_mul_i32 s100, s33, 5120\ns_add_u32 s100, s100, {WS_W2P}")
        A("v_lshrrev_b32 v2, 2, v1\nv_mul_u32_u24 v2, 1280, v2\nv_and_b32 v3, 3, v1\nv_lshl_add_u32 v66, v3, 4, v2")
        A("v_and_b32 v2, 15, v1\nv_lshrrev_b32 v3, 4, v1\nv_lshl_add_u32 v2, v2, 2, v3\nv_lshlrev_b32 v67, 2, v2")
    def ss3(A):
        A("s_lshl1_add_u32 s32, s69, s72\ns_lshl_b32 s84, s32, 1\ns_add_u32 s85, s84, 1"); sig_ssm(A, 84, 33); sig_ssm(A, 85, 33)
        A(f"s_lshl1_add_u32 s34, s68, s71\ns_mul_i32 s35, s34, 192")
        for r in (84, 85): A(f"s_add_u32 s{r}, s{r}, s35\ns_lshl_b32 s{r}, s{r}, 12\ns_add_u32 s{r}, s{r}, {WS_H}")
        A(f"s_lshl_b32 s87, s34, 7\ns_add_u32 s87, s87, s32\ns_lshl_b32 s87, s87, 7\ns_add_u32 s87, s87, {WS_FLG+88*128}")
        A(f"s_add_u32 s86, s84, {96*4096}\ns_add_u32 s78, s85, {96*4096}")
    c_ld = []
    for nb in range(5): c_ld += [f"s_add_u32 s77, s99, {nb*20480}", ("vm", "cl", f"buffer_load_dwordx4 v[{32+4*nb}:{35+4*nb}], v66, s[20:23], s77 offen")]
    c_p = [("wvm", ["cl"])] + [("ds", None, f"ds_bpermute_b32 v{32+r}, v67, v{32+r}") for r in range(20)]
    c_f = ["v_mov_b32 v3, s96", ("wvm", ["cs"]), ("vm", None, "buffer_store_dword v3, v8, s[8:11], s101 offen sc1")]
    c_s = [("vm", "cs", f"buffer_store_dwordx4 v[{32+4*nb}:{35+4*nb}], v{28+(nb>>2)}, s[8:11], s100 offen offset:{(nb&3)*1024} sc1") for nb in range(5)]
    b_ld = [("vm", "bl", f"buffer_load_dwordx4 a[{112+4*i}:{115+4*i}], v54, s[24:27], s97 offen offset:{256*i}") for i in range(5)]
    b_c = [("wvm", ["bl"])]
    for i in range(5): b_c.append(f"{MF} v[56:59], v[68:71], a[{112+4*i}:{115+4*i}], " + ("v[56:59]" if i else "0"))
    b_c += ["s_nop 0"]*3
    b_c += ["v_add_f32_dpp v56, v56, v56 quad_perm:[1,0,3,2] row_mask:0xf bank_mask:0xf", "v_add_f32_dpp v56, v56, v56 quad_perm:[2,3,0,1] row_mask:0xf bank_mask:0xf",
            "v_mov_b32 v57, s96", ("vm", None, "buffer_store_dwordx2 v[56:57], v55, s[8:11], s98 offen sc1")]
    NM = "LR LI CA CB L16R L16I L32R L32I L512R L512I QR QI UR UI WR WI PR PI T0 T1".split()
    def Pm(cb): return dict(zip(NM, range(72+20*cb, 72+20*cb+20)))
    par_c = [("wvm", ["P"])] + lines("v_lshrrev_b32 v60, 4, v1\nv_cvt_f32_u32 v60, v60\nv_mul_f32 v60, 0x42000000, v60\nv_sub_f32 v61, 0x42c00000, v60\nv_mul_f32 v62, 4.0, v60")
    for cb in range(2):
        p = Pm(cb); i0 = 112 + 3*cb; zr, zt, t0, t1 = p['PR'], p['PI'], p['T0'], p['T1']
        def power(d, n):
            pre = [f"v_mul_f32 v{t0}, {n}, v{zr}", f"v_mul_f32 v{t1}, {n}, v{zt}"] if n else []
            a, b = (t0, t1) if n else (zr, zt)
            return pre + lines(f"v_exp_f32 v{t0}, v{a}\nv_fract_f32 v{t1}, v{b}\nv_cos_f32 v{d}, v{t1}\nv_sin_f32 v{d+1}, v{t1}\nv_mul_f32 v{d}, v{d}, v{t0}\nv_mul_f32 v{d+1}, v{d+1}, v{t0}")
        par_c += lines(f"""v_lshlrev_b32 v{i0+2}, 16, v{i0+2}
v_mul_f32 v{t0}, 0x3fb8aa3b, v{i0+2}
v_exp_f32 v{t0}, v{t0}
v_lshlrev_b32 v{i0}, 16, v{i0}
v_lshlrev_b32 v{i0+1}, 16, v{i0+1}
v_cvt_pk_bf16_f32 v{t0}, v{t0}, v{t0}
v_and_b32 v{t0}, 0xffff0000, v{t0}
v_mul_f32 v{zr}, v{t0}, v{i0}
v_mul_f32 v{zt}, v{t0}, v{i0+1}
v_mul_f32 v{zr}, 0x3fb8aa3b, v{zr}
v_mul_f32 v{zt}, 0.15915494, v{zt}""") + power(p['LR'], None)
        par_c += lines(f"""v_mul_f32 v{t1}, v{i0}, v{i0}
v_fmac_f32 v{t1}, v{i0+1}, v{i0+1}
v_rcp_f32 v{t1}, v{t1}
v_add_f32 v{t0}, -1.0, v{p['LR']}
v_mul_f32 v{p['CA']}, v{t0}, v{i0}
v_add_f32 v{t1}, v{t1}, v{t1}
v_fmac_f32 v{p['CA']}, v{p['LI']}, v{i0+1}
v_mul_f32 v{p['CB']}, v{p['LI']}, v{i0}
v_fma_f32 v{p['CB']}, -v{t0}, v{i0+1}, v{p['CB']}
v_mul_f32 v{p['CA']}, v{p['CA']}, v{t1}
v_mul_f32 v{p['CB']}, v{p['CB']}, v{t1}""")
        par_c += power(p['L16R'], "0x41800000") + power(p['L32R'], "0x42000000") + power(p['L512R'], "0x44000000") + power(p['QR'], "v60") + power(p['UR'], "v61") + power(p['WR'], "v62")
    ep_ld = lines(f"v_lshrrev_b32 v2, 3, v0\nv_lshlrev_b32 v2, 7, v2\nv_and_b32 v3, 7, v0\nv_lshl_add_u32 v2, v3, 3, v2\ns_lshl_b32 s75, s68, 12\ns_add_u32 s75, s75, {WS_STAT}") + [("vm", "ep", "buffer_load_dwordx2 v[52:53], v2, s[8:11], s75 offen sc1")]
    ep_ld += lines(f"v_lshrrev_b32 v2, 2, v30\nv_lshlrev_b32 v2, 7, v2\nv_and_b32 v3, 3, v30\nv_lshl_add_u32 v2, v3, 5, v2\ns_mov_b32 s75, {WS_CSB}\ns_mov_b32 s76, {WS_CSB+20480}")
    def CS(cb, im): return 112 + 4*cb + 2*im
    for cb in range(2):
        for im in range(2): ep_ld.append(("vm", "ep", f"buffer_load_dwordx2 v[{CS(cb,im)}:{CS(cb,im)+1}], v2, s[8:11], s{75+im} offen offset:{512*cb} sc1"))
    ep_tags = [53, 113, 115, 117, 119]
    ep_t = [("wvm", ["ep"])] + tagtest(ep_tags)
    ep_c = lines(f"""v_and_b32 v53, 0xffff0000, v52
v_rcp_f32 v53, v53
v_lshlrev_b32 v52, 16, v52
v_and_b32 v2, 15, v0
v_bfe_u32 v3, v0, 4, 1
v_lshl_add_u32 v2, v2, 1, v3
v_and_b32 v3, 0xe0, v0
v_add_u32 v2, v2, v3
v_mul_f32 v52, v52, v53
v_lshlrev_b32 v2, 2, v2
v_add_u32 v2, {S_SCR}, v2""") + [("ds", None, "ds_write_b32 v2, v53"), ("ds", None, "ds_write_b32 v2, v52 offset:1024")]
    ACC = 128
    def acc(b, c): return ACC + (c*8+b)*4
    def Xr(par, b): return par*48 + b*4
    def Br(par, c): return par*48 + 32 + c*4
    def reads(s):
        par = s & 1; sl = (s >> 1) % 3; L = []
        for c in range(4): L.append(("ds", None, f"ds_read_b128 a[{Br(par,c)}:{Br(par,c)+3}], v{120+2*sl+(s&1)} offset:{(c>>1)*8192 + (c&1)*2048}"))
        for b in range(8): L.append(("ds", None, f"ds_read_b128 a[{Xr(par,b)}:{Xr(par,b)+3}], v{22+2*sl+(s&1)} offset:{b*2048}"))
        return L
    M = {0: dma(2)}
    for s in range(1, 15): M[s] = dma((s+5) >> 1, ((s+1) & 1,))
    for k in range(5): M[2+k] = M[2+k] + [b_ld[k]]
    SW = int(OPT.get("sw", 5)); CK = int(OPT.get("ck", 16))
    M[14] += c_ld[:4]; M[15] = c_ld[4:]; M[18] = c_s
    for k, L in enumerate(chop(sum((w2load(i) for i in range(SW)), []), 20-CK)): M[CK+k] = M.get(CK+k, []) + L
    su = chop(cap(ss2), 3); pc = chop(par_c, 8); ps = chop(cap(ph2_setup), 2)
    S = {0: st_f, 1: cap(ss1), 2: p_ld + su[0], 3: su[1], 4: su[2], 5: pc[0], 6: pc[1], 7: pc[2], 8: pc[3], 9: b_c + ps[0], 10: ps[1] + pc[4], 11: pc[5], 12: ep_ld,
         13: pc[6], 14: pc[7], 16: ep_t, 17: ep_c + c_p}
    S[CK-2] = fpoll(5) + S.get(CK-2, [])
    A.its(st_c[:1]); spread(A, st_c[1:], dma(1), 0, len(st_c) - 10)
    A.sync([("S", 0)]); stamp(A, 1)
    A.its(reads(0))
    for s in range(20):
        tags = [("S", (s+1) >> 1)] if (s < 19 and s & 1) else []
        if s == 17: gcheck(A, "SG", ep_ld, ep_tags)
        if s == CK: fcheck(A, "SP", 5)
        A.sync(tags, barrier=bool(s & 1))
        tick(A, s, 127)
        par = s & 1; mf = []
        for b in range(8):
            for c in range(4):
                r = acc(b, c); mf.append(f"{MF} v[{r}:{r+3}], a[{Xr(par,b)}:{Xr(par,b)+3}], a[{Br(par,c)}:{Br(par,c)+3}], " + (f"v[{r}:{r+3}]" if s else "0"))
        A.weave(mf, [(reads(s+1) if s < 19 else [], 0, 24), (M.get(s, []), 0, 31), (S.get(s, []), 1, 31)])
    A("s_waitcnt lgkmcnt(0)"); tick(A, 20, 127); tockdump(A, 20, 127, 0x40000)
    stamp(A, 2)
    def gre(cb, j): return acc(0, cb) + 2*j
    def gim(cb, j): return acc(0, 2+cb) + 2*j
    A(f"v_lshlrev_b32 v2, 7, v31\nv_add_u32 v2, {S_SCR}, v2")
    def rload(c):
        b = 32 + 16*(c & 1)
        return [("ds", ("R", c), f"ds_read_b128 v[{b+4*k+8*t}:{b+4*k+8*t+3}], v2 offset:{1024*t + 32*c + 16*k}") for t in range(2) for k in range(2)]
    ptick(A, 40, 126)
    e1 = rload(0) + rload(1)
    for j in range(16):
        c = j >> 2; b = 32 + 16*(c & 1) + 2*(j & 3)
        if j & 3 == 0: e1.append(("wds", [("R", c)]))
        for cb in range(2): e1 += [pk("mul", gre(cb,j), gre(cb,j), b), pk("mul", gim(cb,j), gim(cb,j), b)]
        for cb in range(2):
            p = Pm(cb); e1 += [pk("fma", gre(cb,j), b+8, ("b", CS(cb,0)), gre(cb,j), neg=(0,)), pk("fma", gim(cb,j), b+8, ("b", CS(cb,1)), gim(cb,j), neg=(0,))]
        if j & 3 == 3 and c + 2 < 4: e1 += rload(c+2)
        if j:
            for cb in range(2):
                p = Pm(cb); e1 += [pk("fma", gre(cb,j), gre(cb,j-1), ("b", p['LR']), gre(cb,j)), pk("fma", gim(cb,j), gim(cb,j-1), ("b", p['LR']), gim(cb,j))]
            for cb in range(2):
                p = Pm(cb); e1 += [pk("fma", gre(cb,j), gim(cb,j-1), ("b", p['LI']), gre(cb,j), neg=(1,)), pk("fma", gim(cb,j), gre(cb,j-1), ("b", p['LI']), gim(cb,j))]
    spread(A, e1, c_f, 150, 200)
    def cfma(dr, di, mr, mi, xr, xi, ar, ai):
        A(f"v_fma_f32 v{dr}, v{mr}, v{xr}, v{ar}\nv_fma_f32 v{di}, v{mr}, v{xi}, v{ai}\nv_fma_f32 v{dr}, -v{mi}, v{xi}, v{dr}\nv_fma_f32 v{di}, v{mi}, v{xr}, v{di}")
    ptick(A, 41, 126)
    def cmul(dr, di, mr, mi, xr, xi):
        A(f"v_mul_f32 v{dr}, v{mr}, v{xr}\nv_mul_f32 v{di}, v{mr}, v{xi}\nv_fma_f32 v{dr}, -v{mi}, v{xi}, v{dr}\nv_fmac_f32 v{di}, v{mi}, v{xr}")
    def gsum(regs, tmp):
        for sw in ("v_permlane16_swap_b32", "v_permlane32_swap_b32"):
            for k, r in enumerate(regs): A(f"v_mov_b32 v{tmp+k}, v{r}")
            for k, r in enumerate(regs): A(f"{sw} v{r}, v{tmp+k}")
            for k, r in enumerate(regs): A(f"v_add_f32 v{r}, v{r}, v{tmp+k}")
    for cb in range(2):
        p = Pm(cb); cfma(64+2*cb, 65+2*cb, p['L16R'], p['L16I'], gre(cb,15), gim(cb,15), gre(cb,15)+1, gim(cb,15)+1)
        cmul(56+4*cb, 58+4*cb, p['UR'], p['UI'], 64+2*cb, 65+2*cb)
    A("v_lshlrev_b32 v3, 4, v30\nv_lshlrev_b32 v2, 21, v1\nv_and_b32 v2, 0xfe000000, v2\nv_add_u32 v2, v2, v3\ns_lshl1_add_u32 s76, s68, s71\ns_mul_i32 s75, s76, 10240")
    gsum([56, 58, 60, 62], 48)
    A("v_mov_b32 v57, s96\nv_mov_b32 v59, s96\nv_mov_b32 v61, s96\nv_mov_b32 v63, s96")
    for cb in range(2): A.it(("vm", None, f"buffer_store_dwordx4 v[{56+4*cb}:{59+4*cb}], v2, s[8:11], s75 offen offset:{256*cb} sc1"))
    ptick(A, 42, 126)
    A.its(sum((w2load(i) for i in range(SW, 7)), [])); ss3(A)
    for d in range(3):
        A(f"v_subrev_u32 v2, {16*(d+1)}, v1\nv_lshlrev_b32 v2, 2, v2")
        for k in range(4): A(f"ds_bpermute_b32 v{40+4*d+k}, v2, v{64+k}")
    for cb in range(2): A(f"v_mov_b32 v{Pm(cb)['PR']}, 0\nv_mov_b32 v{Pm(cb)['PI']}, 0")
    A("s_waitcnt lgkmcnt(0)")
    for d in (2, 1, 0):
        A(f"s_lshl_b64 exec, -1, {16*(d+1)}")
        for cb in range(2):
            p = Pm(cb); a = 40+4*d+2*cb
            if d < 2: cfma(a, a+1, p['L32R'], p['L32I'], p['PR'], p['PI'], a, a+1)
            A(f"v_mov_b32 v{p['PR']}, v{a}\nv_mov_b32 v{p['PI']}, v{a+1}")
    A("s_mov_b64 exec, -1")
    for cb in range(2): A(f"v_mov_b32 v{64+2*cb}, v{gre(cb,15)}\nv_mov_b32 v{65+2*cb}, v{gim(cb,15)}")
    e2 = []
    for j in range(16):
        for cb in range(2):
            p = Pm(cb); r, i = gre(cb,j), gim(cb,j); t = 32+4*cb
            e2 += [pk("mul", t, i, ("b", p['CB'])), pk("mul", t+2, r, ("b", p['CB'])), pk("fma", r, r, ("b", p['CA']), t, neg=(2,)), pk("fma", i, i, ("b", p['CA']), t+2, neg=(1, 2))]
    A.its(e2)
    stamp(A, 3)
    A("v_lshrrev_b32 v2, 4, v1\nv_mul_u32_u24 v68, 10240, v2\ns_sub_u32 s75, s75, 10240\nv_sub_u32 v68, s75, v68\nv_add_u32 v68, v68, v3\nv_mov_b32 v4, s96")
    for i in range(4):
        if i: A(f"v_subrev_u32 v{68+i}, {40960*i}, v68\nv_add_u32 v2, 4, v2")
        A(f"v_cmp_gt_u32 vcc, s76, v2\nv_cndmask_b32 v{120+i}, 0, v4, vcc")
    A("s_mov_b32 s7, 0x40000")
    A.label("SSM_poll")
    for i in range(4):
        for cb in range(2): A(f"buffer_load_dwordx4 v[{32+8*i+4*cb}:{35+8*i+4*cb}], v{68+i}, s[8:11], 0 offen offset:{256*cb} sc1")
    A("s_waitcnt vmcnt(0)\nv_xor_b32 v4, v120, v33")
    for r in range(35, 64, 2): A(f"v_xor_b32 v5, v{120+(r-32)//8}, v{r}\nv_or_b32 v4, v4, v5")
    A("v_cmp_ne_u32 vcc, 0, v4\ns_sub_u32 s7, s7, 1\ns_cbranch_scc1 SSM_go\ns_cbranch_vccnz SSM_poll")
    A.label("SSM_go")
    A(f"s_cmp_lg_u32 s95, 0\ns_cbranch_scc1 EP_end\nv_lshlrev_b32 v2, 7, v1\ns_mov_b32 s7, 0x40000")
    A.label("EP_l")
    for k in range(4): A(f"s_mov_b32 s75, {WS_STAT+4+8192*k}\nbuffer_load_dword v{68+k}, v2, s[8:11], s75 offen sc1")
    A("s_waitcnt vmcnt(0)"); A.ext(tagtest([68, 69, 70, 71]))
    A(f"s_sub_u32 s7, s7, 1\ns_cbranch_scc1 EP_ok\ns_cbranch_vccnz EP_l")
    A.label("EP_ok")
    A(f"s_mov_b32 s75, {WS_EPOCH}\nv_mov_b32 v4, s96\nbuffer_store_dword v4, v8, s[8:11], s75 offen sc1")
    A.label("EP_end")
    A.reset()
    stamp(A, 4)
    for i in (2, 1, 0):
        for cb in range(2):
            p = Pm(cb); a = 32+8*i+4*cb; cfma(a, a+2, p['L512R'], p['L512I'], a+8, a+10, a, a+2)
    for cb in range(2):
        p = Pm(cb); cmul(56+2*cb, 57+2*cb, p['WR'], p['WI'], 32+4*cb, 34+4*cb)
    gsum([56, 57, 58, 59], 48)
    if TS >= 2: A("v_mov_b32 v25, v126")
    WP = 112
    for cb in range(2):
        p = Pm(cb); a = 56+2*cb; w = WP+8*cb
        cfma(p['PR'], p['PI'], p['QR'], p['QI'], a, a+1, p['PR'], p['PI'])
        cfma(64+2*cb, 65+2*cb, p['L16R'], p['L16I'], p['PR'], p['PI'], 64+2*cb, 65+2*cb)
        for k, (xr, xi) in enumerate(((p['PR'], p['PI']), (64+2*cb, 65+2*cb))):
            A(f"v_mul_f32 v{p['T0']}, v{p['CB']}, v{xi}\nv_mul_f32 v{p['T1']}, v{p['CB']}, v{xr}")
            A(f"v_fma_f32 v{w+k}, v{p['CA']}, v{xr}, -v{p['T0']}\nv_fma_f32 v{w+2+k}, -v{p['CA']}, v{xi}, -v{p['T1']}")
    IMG = 8192
    A("s_mul_i32 s75, s3, 20480\nv_and_b32 v2, 15, v1\nv_lshrrev_b32 v3, 2, v2\nv_and_b32 v4, 3, v2\nv_lshl_add_u32 v3, v4, 2, v3\nv_and_b32 v4, 8, v2\nv_lshl_add_u32 v3, v4, 1, v3")
    A("v_lshrrev_b32 v4, 4, v1\nv_lshlrev_b32 v5, 3, v4\nv_xor_b32 v3, v3, v5\nv_lshlrev_b32 v3, 3, v3\nv_lshl_add_u32 v3, v2, 8, v3\nv_add_u32 v10, s75, v3")
    A("v_bfe_u32 v2, v1, 2, 2\nv_lshlrev_b32 v3, 2, v2\nv_and_b32 v5, 1, v4\nv_mul_u32_u24 v5, 18, v5\nv_add_u32 v3, v3, v5\nv_and_b32 v5, 3, v1\nv_xor_b32 v3, v3, v5\nv_lshlrev_b32 v3, 3, v3")
    A("v_lshl_add_u32 v2, v4, 3, v2\nv_lshl_add_u32 v3, v2, 8, v3\nv_add_u32 v11, s75, v3\nv_mov_b32 v31, s96")
    ptick(A, 43, 25)
    e3 = []; pw = []
    for j in range(16):
        cur = [WP+8*cb+4*(j & 1) for cb in range(2)]; nxt = [WP+8*cb+4*((j+1) & 1) for cb in range(2)]
        for cb in range(2):
            p = Pm(cb); e3.append(pk("mul", nxt[cb], cur[cb], ("b", p['LR']))); e3.append(pk("mul", nxt[cb]+2, cur[cb]+2, ("b", p['LR'])))
        for cb in range(2):
            p = Pm(cb); e3.append(pk("fma", nxt[cb], cur[cb]+2, ("b", p['LI']), nxt[cb])); e3.append(pk("fma", nxt[cb]+2, cur[cb], ("b", p['LI']), nxt[cb]+2, neg=(1,)))
        if pw: e3.append(pw.pop(0))
        for cb in range(2):
            e3.append(pk("add", gre(cb,j), gre(cb,j), nxt[cb])); e3.append(pk("add", gim(cb,j), gim(cb,j), nxt[cb]+2))
        if pw: e3.append(pw.pop(0))
        if j & 1:
            k = (j >> 1) & 1; bank = 16*((j >> 2) & 1)
            if k: e3 += [f"v_xor_b32 v{68+2*((j>>2)&1)+hh}, {32*hh + 8*(j>>2)}, v10" for hh in range(2)]
            for cb in range(2):
                for im in range(2):
                    g = gim if im else gre
                    for hh in range(2):
                        r = 32+bank+8*cb+4*im+2*hh
                        e3.append(f"v_cvt_pk_bf16_f32 v{r+k}, v{g(cb,j-1)+hh}, v{g(cb,j)+hh}")
                        if k:
                            w = ("ds", None, f"ds_write_b64 v{68+2*((j>>2)&1)+hh}, v[{r}:{r+1}] offset:{im*IMG + cb*4096}")
                            (e3 if j == 15 else pw).append(w)
    spread(A, e3, fpoll(4), 0, 60)
    ptick(A, 44, 25)
    for tb in range(8):
        for hh in range(2): A(f"v_xor_b32 v{112+2*tb+hh}, {32*tb + 8*hh}, v11")
        for im in range(2):
            r = ACCK + 4*(2*tb+im)
            for hh in range(2): A.it(("ds", ("tr", 2*tb+im), f"ds_read_b64_tr_b16 v[{r+2*hh}:{r+2*hh+1}], v{112+2*tb+hh} offset:{im*IMG + hh*1024}"))
    ptick(A, 45, 25)
    for n in range(16):
        im, tb = n & 1, n >> 1; r = ACCK + 4*n
        A.its([("wds", [("tr", n)]), ("vm", "H", f"buffer_store_dwordx4 v[{r}:{r+3}], v28, s[8:11], s{(84, 85, 86, 78)[im + 2*(tb >> 2)]} offen offset:{(tb&3)*1024} sc1")])
    fcheck(A, "SC4", 4)
    stamp(A, 5)
    fs = "buffer_store_dword v31, v8, s[8:11], s87 offen sc1"
    A.its(w2load(7) + w2load(8) + [("wvm", ["H"]), ("vm", None, fs)] + fpoll(0) + sum((w2load(i) for i in range(9, 7+SE)), []))
    fcheck(A, "SC0", 0)
    stamp(A, 6)
    for i in range(2): A.its(hload(i))
    ph2_head(A, "SC", dict(enumerate(chop(sum((w2load(i) for i in range(7+SE, 12)), []), 7))) if SE < 5 else {})

def gen_ph2(A):
    A.label("PH2")
    A.reset(); A.nv = 200
    for t in JOIN[0]:
        if t in JOIN[1]: A.tv[t] = A.nv - min(JOIN[0][t], JOIN[1][t])
    g_r = []
    for nb in range(5):
        for w in range(4):
            r = ACCG + (nb*4+w)*4; g_r.append(("ds", ("gr", nb), f"ds_read_b128 v[{r}:{r+3}], v{23+(w>>1)} offset:{(w&1)*20480 + nb*1024}"))
    g_s = []
    for nb in range(5):
        r = ACCG + nb*16; g_s.append(("wds", [("gr", nb)]))
        for e in range(4): g_s += [f"v_add_f32 v{r+e}, v{r+e}, v{r+4+e}", f"v_add_f32 v{r+8+e}, v{r+8+e}, v{r+12+e}"]
        for e in range(4): g_s.append(f"v_add_f32 v{r+e}, v{r+e}, v{r+8+e}")
        g_s.append(("vm", "xs", f"buffer_store_dwordx4 v[{r}:{r+3}], v{28+(nb>>2)}, s[8:11], s4 offen offset:{(nb&3)*1024} sc1"))
    g_f = [("wvm", ["xs"]), ("vm", None, "buffer_store_dword v31, v8, s[8:11], s6 offen sc1")]
    PA = list(range(100, 112)) + list(range(160, 168))
    fin_c = [("wvm", ["fin"]), "v_and_b32 v11, 0xffff0000, v10", "v_rcp_f32 v11, v11", "v_lshlrev_b32 v10, 16, v10"]
    def rd(nb): return [("ds", ("fx", nb), f"ds_read_b64 v[{16+4*(nb&1)}:{17+4*(nb&1)}], v12 offset:{32*nb}"), ("ds", ("fx", nb), f"ds_read_b64 v[{(18, 26)[nb&1]}:{(19, 27)[nb&1]}], v14 offset:{3072+32*nb}")]
    fin_c += rd(0)
    for nb in range(5):
        if nb < 4: fin_c += rd(nb+1)
        fin_c.append(("wds", [("fx", nb)]))
        for h in range(2):
            x = 16+4*(nb&1)+h; d = (18, 26)[nb&1]+h
            fin_c += [f"v_lshlrev_b32 v2, 16, v{d}", f"v_and_b32 v{d}, 0xffff0000, v{d}", f"v_lshlrev_b32 v3, 16, v{x}", f"v_and_b32 v{x}, 0xffff0000, v{x}",
                      "v_mul_f32 v2, v2, v11", f"v_mul_f32 v{d}, v{d}, v11", "v_sub_f32 v4, v3, v10", f"v_sub_f32 v5, v{x}, v10", "v_fmac_f32 v3, v4, v2", f"v_fmac_f32 v{x}, v5, v{d}",
                      f"v_accvgpr_write_b32 a{PA[4*nb+2*h]}, v3", f"v_accvgpr_write_b32 a{PA[4*nb+2*h+1]}, v{x}"]
    fin_r = [f"v_accvgpr_read_b32 v{ACCG + (k>>2)*16 + 8 + (k&3)}, a{PA[k]}" for k in range(20)]
    gs = chop(g_s, 2); fc = chop(fin_c, 5)
    extra = {8: fc[0], 9: fc[1], 10: fc[2], 11: fc[3], 12: fc[4], 16: g_r, 17: gs[0], 18: gs[1],
             19: ["v_add_u32 v22, 81920, v22", "v_add_u32 v23, 81920, v23", "v_add_u32 v24, 81920, v24"] + fin_r, 20: fpoll(3)[:-1], 21: ["s_nop 0"] + g_f + ["s_nop 0"]*5 + fpoll(3)[-1:]}
    ph2_groups(A, GROUPS[7:], extra, {7: lambda: fcheck(A, "C2", 2)})
    if TS >= 2:
        A(f"s_waitcnt lgkmcnt(0)\nv_writelane_b32 v25, s88, {len(GROUPS)-1}\ns_memtime s[88:89]"); tockdump(A, len(GROUPS), 25, 0x80000)
    stamp(A, 7)
    fcheck(A, "C3", 3)
    for nb in range(5):
        r = ACCG + nb*16 + 12
        A.it(("vm", ("xl", nb), f"buffer_load_dwordx4 v[{r}:{r+3}], v{28+(nb>>2)}, s[8:11], s5 offen offset:{(nb&3)*1024} sc1"))
    A("s_waitcnt lgkmcnt(0)\ns_barrier")
    for nb in range(5):
        for w in range(4):
            r = ACCK + (nb*4+w)*4
            A(f"ds_read_b128 v[{r}:{r+3}], v{23+(w>>1)} offset:{(w&1)*20480 + nb*1024}")
    for nb in range(5):
        A(f"s_waitcnt lgkmcnt({min(15, 16-4*nb)})")
        r = ACCK + nb*16; o = ACCG + nb*16 + 8
        for k in (0, 2): A(pk("add", r+k, r+k, r+4+k)); A(pk("add", r+8+k, r+8+k, r+12+k))
        for k in (0, 2): A(pk("add", o+k, o+k, r+k))
        for k in (0, 2): A(pk("add", o+k, o+k, r+8+k))
    for nb in range(5):
        o = ACCG + nb*16 + 8
        A.it(("wvm", [("xl", nb)]))
        for k in (0, 2): A(pk("add", o+k, o+k, o+4+k))
        A.it(("vm", None, f"buffer_store_dwordx4 v[{o}:{o+3}], v13, s[20:23], 0 offen offset:{64*nb}"))
    if TS:
        A("s_add_u32 s94, s94, 0x10000"); stamp(A, 0)

def gen():
    A = E()
    A("s_cmp_ge_u32 s2, 256\ns_cbranch_scc1 K_end")
    if TS >= 2: A("s_memtime s[4:5]")
    A("s_load_dwordx16 s[36:51], s[0:1], 0\ns_load_dwordx16 s[52:67], s[0:1], 64")
    A("v_and_b32 v1, 63, v0\nv_lshrrev_b32 v2, 6, v0\ns_and_b32 s32, s2, 7\nv_readfirstlane_b32 s3, v2")
    A("s_lshr_b32 s33, s2, 3\ns_lshr_b32 s34, s32, 2\ns_and_b32 s35, s32, 3\ns_and_b32 s71, s3, 1\ns_lshr_b32 s72, s3, 1")
    if int(OPT.get("ipf", 1)):
        A("s_getpc_b64 s[6:7]"); A.label("K_pc")
        A("s_lshl2_add_u32 s76, s33, s3\ns_and_b32 s76, s76, 15\ns_lshl_b32 s76, s76, 13\nv_lshlrev_b32 v2, 7, v1\nv_add_u32 v2, s76, v2\nv_min_u32 v2, K_end-K_pc, v2")
        A("s_cmp_lt_u32 s33, 28\ns_cbranch_scc1 K_nopf\nglobal_load_dword v64, v2, s[6:7]"); A.label("K_nopf")
    A("s_lshl2_add_u32 s95, s2, s3\nv_lshrrev_b32 v62, 5, v1\nv_mul_u32_u24 v62, 1280, v62\nv_and_b32 v63, 31, v1\nv_lshl_add_u32 v62, v63, 3, v62")
    if TS:
        A("s_lshl2_add_u32 s94, s2, s3\ns_lshl_b32 s94, s94, 6\ns_waitcnt lgkmcnt(0)"); stamp(A, 0)
    A("s_mul_i32 s75, s95, 2560\ns_cmp_lt_u32 s33, 10\ns_cbranch_scc1 K_ssm")
    A("s_mul_i32 s35, s35, 22\ns_add_u32 s33, s33, s35\ns_sub_u32 s33, s33, 10\ns_and_b32 s68, s33, 7\ns_lshl_b32 s34, s34, 3\ns_add_u32 s68, s68, s34\ns_lshr_b32 s69, s33, 3")
    gen_ffn(A)
    A.label("K_ssm")
    A("s_mul_i32 s35, s35, 10\ns_add_u32 s33, s33, s35\ns_and_b32 s68, s33, 3\ns_lshl2_add_u32 s68, s34, s68\ns_lshr_b32 s69, s33, 2")
    gen_ssm(A)
    gen_ph2(A)
    A.label("K_end"); A("s_endpgm")
    return A.L

def fin(L):
    w = int(OPT.get("al", 8))
    return align_pass(L, w) if w else L
def main():
    ref = open(f"cdna_kernels/{NAME}.s.ref").read().split("\n")
    hdr = [l for l in ref if l.startswith(";") and "@launch" not in l and "Override" not in l and "grid=ceil" not in l]
    out = "\n".join(hdr) + "\n"
    extra = ""
    if "spin" in OPT:
        wg, slot = [int(v) for v in OPT["spin"].split(",")]
        off = WS_TS + wg*4*64 + (slot*8 if slot < 8 else 0x10000)
        out += f"; @launch kernel={NAME}_kernel grid=(256,1,1) block=(256,1,1) lds=163840\n; @launch kernel=spin_kernel grid=(1,1,1) block=(64,1,1) lds=0\n"
        L = ["s_load_dwordx2 s[4:5], s[0:1], 120", "s_waitcnt lgkmcnt(0)", f"s_add_u32 s4, s4, {off}", "s_addc_u32 s5, s5, 0", "s_load_dwordx2 s[6:7], s[4:5], 0", "s_mov_b32 s12, 0x100000",
             "SP_l2:", "s_memrealtime s[8:9]", "s_waitcnt lgkmcnt(0)", "s_sub_u32 s10, s8, s6", "s_sub_u32 s12, s12, 1", "s_cbranch_scc1 SP_e", "s_cmp_lt_u32 s10, 8000", "s_cbranch_scc1 SP_l2", "SP_e:", "s_endpgm"]
        extra = kernel_text("spin_kernel", L) + kd("spin_kernel", 8, 0, 32)
    else: out += "; @launch grid=(256,1,1) block=(256,1,1) lds=163840\n"
    out += '.amdgcn_target "amdgcn-amd-amdhsa--gfx950"\n'
    out += kernel_text(NAME + "_kernel", fin(hazard_pass(gen(), "v" in OPT))) + kd(NAME + "_kernel", 256, 256, 102) + extra
    open(sys.argv[1], "w").write(out)
main()
```

```python
import sys
from asmlib import *
NAME = "parallel_sum__ssm_conv_s5__glu_gated_swiglu__prompt"
OPT = dict(a.split("=") for a in sys.argv[2:])
TS = int(OPT.get("ts", 0))
WS_AGG = 0; WS_EPOCH = 0x28000; WS_STAT = 0x30000; WS_FLG = 0x40000; WS_XF = 0x80000; WS_CF = 0xA0000; WS_WF = 0xB0000; WS_CSB = 0xC0000; WS_CS = 0xD0000
WS_H = 0x100000; WS_W2P = 0xE00000; WS_XCH = 0x1200000; WS_END = 0x1700000; WS_TS = 0x1800000; CS_HALF = 27648
SZ_X = 2048*640*2; SZ_B = 640*640*2; SZ_W = 640*1728*2; SZ_OUT = 2048*640*4
OOB = 0x7F000000
P = dict(x=36, lre=38, lim=40, bre=42, bim=44, cre=46, cim=48, ldt=50, dsk=52, w1=56, w3=58, w2=60, out=62, dbg=64, ws=66)
MF = "v_mfma_f32_16x16x32_bf16"

class E(Asm):
    def __init__(self): super().__init__(); self.reset()
    def reset(self): self.nv = 0; self.tv = {}; self.dv = 0; self.nd = 0; self.td = {}; self.dd = 0
    def vmw(self, tags):
        last = max(self.tv[t] for t in tags)
        if last <= self.dv: return None
        self.dv = last; return min(63, self.nv - last)
    def dsw(self, tags):
        last = max(self.td[t] for t in tags)
        if last <= self.dd: return None
        n = min(15, self.nd - last); self.dd = self.nd - n; return n
    def it(self, x):
        if isinstance(x, str): self(x)
        elif x[0] == "vm": self.nv += 1; self.tv[x[1]] = self.nv; self(x[2])
        elif x[0] == "ds": self.nd += 1; self.td[x[1]] = self.nd; self(x[2])
        elif x[0] == "wvm":
            n = self.vmw(x[1])
            if n is not None: self(f"s_waitcnt vmcnt({n})")
        elif x[0] == "wds":
            n = self.dsw(x[1])
            if n is not None: self(f"s_waitcnt lgkmcnt({n})")
        elif x[0] == "fn": x[1]()
    def its(self, L):
        for x in L: self.it(x)
    def sync(self, vtags, barrier=True):
        n = self.vmw(vtags) if vtags else None
        self.dd = self.nd
        self((f"s_waitcnt vmcnt({n}) lgkmcnt(0)" if n is not None else "s_waitcnt lgkmcnt(0)"))
        if barrier: self("s_barrier")
    def weave(self, mf, streams, fixed=None, cap=2):
        q = []
        for it, lo, hi in streams:
            if it: q.append([(lo + k*(hi-lo)//len(it), x) for k, x in enumerate(it)])
        def cost(x):
            if isinstance(x, str): return sum(2 if l.startswith(TRANS) else (4 if l.startswith("v_mfma") else 1) for l in x.split("\n"))
            return {"vm": 2, "ds": 1}.get(x[0], 0.5)
        debt = 0
        for i, m in enumerate(mf):
            self(m); room = cap - debt
            for x in (fixed[i] if fixed else []): self.it(x); room -= cost(x)
            left = sum(cost(x) for st in q for _, x in st); gaps = len(mf) - i
            room = max(room, left - cap*(gaps-1))
            if left > cap*gaps: room = max(cap, left/gaps)
            while room > 0:
                c = [st for st in q if st and st[0][0] <= i]
                if not c: break
                st = min(c, key=lambda t: t[0][0]); x = st.pop(0)[1]; self.it(x); room -= cost(x)
            debt = max(0, -room)
        for st in q:
            for _, x in st: self.it(x)
def lines(s): return [l.strip() for l in s.split("\n") if l.strip()]
def glue(L):
    out = []; on = False
    for x in L:
        if isinstance(x, str) and on and x.startswith(("s_cselect", "s_mov_b32")): out[-1] += "\n" + x; continue
        on = isinstance(x, str) and x.startswith(("s_cmp", "s_bitcmp"))
        out.append(x)
    return out
def cap(f):
    B = Asm(); f(B); return glue(B.L)
def chop(L, n):
    q = (len(L) + n - 1)//n
    return [L[k*q:(k+1)*q] for k in range(n)]
FE = int(OPT.get("fe", 2)); FF = int(OPT.get("ff", 0)); SE = int(OPT.get("se", 0))
def srd(A, d, lo, size):
    A(f"s_mov_b32 s{d}, s{lo}\ns_mov_b32 s{d+1}, s{lo+1}\ns_mov_b32 s{d+2}, {hex(size)}\ns_mov_b32 s{d+3}, 0x20000")
def srd_sel(A, d, lo0, lo1, size):
    A(f"s_cselect_b32 s{d}, s{lo0}, s{lo1}\ns_cselect_b32 s{d+1}, s{lo0+1}, s{lo1+1}\ns_mov_b32 s{d+2}, {hex(size)}\ns_mov_b32 s{d+3}, 0x20000")
def stamp(A, slot):
    if not TS: return
    A(f"s_memrealtime s[90:91]\ns_memtime s[88:89]\ns_waitcnt lgkmcnt(0)\ns_add_u32 s92, s94, {WS_TS + slot*8}")
    A.dd = A.nd
    A(f"v_mov_b32 v4, s90\nv_mov_b32 v5, s88\nv_mov_b32 v2, s92"); A.it(("vm", None, "global_store_dwordx2 v2, v[4:5], s[66:67]"))
def tick(A, idx, reg):
    if TS < 2: return
    if idx: A(f"v_writelane_b32 v{reg}, s88, {idx-1}")
    A("s_memtime s[88:89]")
def ptick(A, idx, reg):
    if TS < 2: return
    A(f"s_memtime s[88:89]\ns_waitcnt lgkmcnt(0)\nv_writelane_b32 v{reg}, s88, {idx}")
def tockdump(A, n, reg, area):
    if TS < 2: return
    A(f"s_waitcnt lgkmcnt(0)\nv_writelane_b32 v{reg}, s88, {n}\ns_lshl_b32 s92, s95, 8\ns_add_u32 s92, s92, {WS_TS + area}\nv_lshlrev_b32 v5, 2, v1\nv_add_u32 v5, s92, v5")
    A.it(("vm", None, f"global_store_dword v5, v{reg}, s[66:67]"))
def bc(n, which, hi=False):
    lo = [0]*n; h = [1]*n
    for w in which:
        if isinstance(w, tuple): lo[w[0]] = 1
        else: h[w] = 0
    s = ""
    if any(lo): s += " op_sel:[" + ",".join(map(str, lo)) + "]"
    s += " op_sel_hi:[" + ",".join(map(str, h)) + "]"
    return s
def B(r):
    return f"v[{r & ~1}:{(r & ~1)+1}]", (r & 1)
def pk(op, d, *src, neg=()):
    t = []; w = []
    src = list(src)
    if isinstance(src[1], tuple) and src[1][1] & 1:
        src[0], src[1] = src[1], src[0]; neg = tuple({0: 1, 1: 0}.get(n, n) for n in neg)
    for i, s in enumerate(src):
        if isinstance(s, tuple):
            x, hi = B(s[1]); t.append(x); w.append((i,) if hi else i)
        else:
            assert s % 2 == 0; t.append(f"v[{s}:{s+1}]")
    assert d % 2 == 0
    m = bc(len(src), w)
    if neg:
        nn = ",".join("1" if i in neg else "0" for i in range(len(src))); m += f" neg_lo:[{nn}] neg_hi:[{nn}]"
    return f"v_pk_{op}_f32 v[{d}:{d+1}], " + ", ".join(t) + m

def stats_job(R, scr):
    L0, U, T = R, R+10, R+30
    ld = [f"v_mov_b32 v9, {WS_EPOCH}", ("vm", "st", "global_load_dword v9, v9, s[66:67] sc1")]
    for i in range(5): ld.append(("vm", "st", f"buffer_load_dwordx2 v[{L0+2*i}:{L0+2*i+1}], v{T}, s[16:19], s75 offen offset:{256*i}"))
    c = [("wvm", ["st"])]
    for i in range(10): c += [f"v_lshlrev_b32 v{U+2*i}, 16, v{L0+i}", f"v_and_b32 v{U+2*i+1}, 0xffff0000, v{L0+i}"]
    def red(v, t):
        o = [f"v_add_f32 v{v}, v{v}, v{v+1}"]
        for r in (8, 4, 2, 1): o.append(f"v_add_f32_dpp v{v}, v{v}, v{v} row_ror:{r} row_mask:0xf bank_mask:0xf")
        o += [f"v_mov_b32 v{t}, v{v}", f"v_permlane16_swap_b32 v{v}, v{t}", f"v_add_f32 v{v}, v{v}, v{t}", f"v_mul_f32 v{v}, 0x3acccccd, v{v}"]
        return o
    c.append(pk("add", T, U, U+2))
    for i in range(2, 10): c.append(pk("add", T, T, U+2*i))
    c += red(T, T+1)
    for i in range(10): c.append(pk("add", U+2*i, U+2*i, ("b", T), neg=(1,)))
    c.append(pk("mul", T+2, U, U))
    for i in range(1, 10): c.append(pk("fma", T+2, U+2*i, U+2*i, T+2))
    c += red(T+2, T+3)
    c += lines(f"""v_cvt_pk_bf16_f32 v{T}, v{T}, v{T+2}
v_and_b32 v{T+2}, 0xffff0000, v{T}
v_add_f32 v{T+2}, 0x3727c5ac, v{T+2}
v_cvt_pk_bf16_f32 v{T+2}, v{T+2}, v{T+2}
v_and_b32 v{T+2}, 0xffff0000, v{T+2}
v_sqrt_f32 v{T+2}, v{T+2}
v_and_b32 v{T}, 0xffff, v{T}
v_cvt_pk_bf16_f32 v{T+2}, v{T+2}, v{T+2}
v_readfirstlane_b32 s96, v9
v_and_b32 v{T+2}, 0xffff0000, v{T+2}
v_or_b32 v{T}, v{T+2}, v{T}
v_lshrrev_b32 v{T+1}, 5, v0
v_lshlrev_b32 v{T+1}, 2, v{T+1}
v_add_u32 v{T+1}, {scr}, v{T+1}
s_add_u32 s96, s96, 1""")
    c.append(("ds", None, f"ds_write_b32 v{T+1}, v{T}"))
    f = lines(f"v_and_b32 v{T+1}, 7, v1\nv_lshlrev_b32 v{T+1}, 2, v{T+1}\nv_add_u32 v{T+1}, {scr}, v{T+1}") + [("ds", "stf", f"ds_read_b32 v{T}, v{T+1}")]
    f += lines(f"v_lshlrev_b32 v{T+2}, 21, v0\nv_and_b32 v{T+2}, 0xfe000000, v{T+2}\nv_lshl_add_u32 v{T+2}, v1, 3, v{T+2}\ns_lshl_b32 s75, s2, 7\ns_add_u32 s75, s75, {WS_STAT}")
    f += [("wds", ["stf"]), f"v_mov_b32 v{T+1}, s96", ("vm", None, f"buffer_store_dwordx2 v[{T}:{T+1}], v{T+2}, s[8:11], s75 offen sc1")]
    return ld, c, f
def tagtest(tags, exp="s96"):
    L = [f"v_xor_b32 v4, {exp}, v{tags[0]}"]
    for t in tags[1:]: L += [f"v_xor_b32 v5, {exp}, v{t}", "v_or_b32 v4, v4, v5"]
    return L + ["v_cmp_ne_u32 vcc, 0, v4"]
def gcheck(A, name, loads, tags):
    A(f"s_cbranch_vccz {name}_ok\ns_mov_b32 s7, 0x40000")
    A.label(f"{name}_l")
    for x in loads: A(x if isinstance(x, str) else x[2])
    A("s_waitcnt vmcnt(0)"); A.ext(tagtest(tags))
    A(f"s_sub_u32 s7, s7, 1\ns_cbranch_scc1 {name}_ok\ns_cbranch_vccnz {name}_l")
    A.label(f"{name}_ok")
def w2reg(i):
    i %= 12
    return 112 + 20*i if i < 7 else 20*(i-7)
def w2load(i):
    L = [f"s_add_u32 s79, s82, {i*5120}"]
    if i == 2: L += [f"s_cmp_eq_u32 s3, 3\ns_cselect_b32 s79, {hex(OOB)}, s79"]
    for nb in range(5):
        r = w2reg(i) + 4*nb
        L.append(("vm", ("w2", i), f"buffer_load_dwordx4 a[{r}:{r+3}], v{28+(nb>>2)}, s[8:11], s79 offen offset:{(nb&3)*1024} sc1"))
    return L


def spread(A, main, extra, lo=0, hi=None):
    sl = interleave(main, extra, lo, hi) if extra else [[] for _ in main]
    for i, x in enumerate(main):
        A.it(x)
        for y in sl[i]: A.it(y)
def sig_early(A, e, d, t):
    A(f"s_cmp_ge_u32 s{e}, 11\ns_cselect_b32 s{t}, 11, 0\ns_cselect_b32 s{d}, 48, 0\ns_sub_u32 s{t}, s{e}, s{t}\ns_add_u32 s{d}, s{d}, s{t}\ns_mul_i32 s{t}, s{t}, 43\ns_lshr_b32 s{t}, s{t}, 7\ns_mul_i32 s{t}, s{t}, 9\ns_add_u32 s{d}, s{d}, s{t}")
def sig_late(A, l, t):
    A(f"s_lshr_b32 s{t}, s{l}, 2\ns_lshl_b32 s{t}, s{t}, 3\ns_add_u32 s{l}, s{l}, s{t}\ns_add_u32 s{l}, s{l}, 3")
def sig_ssm(A, k, t):
    A(f"s_mul_i32 s{t}, s{k}, 52429\ns_lshr_b32 s{t}, s{t}, 18\ns_mul_i32 s{t}, s{t}, 7\ns_add_u32 s{k}, s{k}, s{t}\ns_add_u32 s{k}, s{k}, 7")
def early_setup(A):
    srd(A, 8, P["ws"], WS_END)
    A("v_lshlrev_b32 v28, 4, v1\nv_add_u32 v29, 4096, v28")
    A("v_lshlrev_b32 v8, 20, v1\nv_and_b32 v8, 0xfe000000, v8\nv_lshl_add_u32 v8, v1, 2, v8")
def ph2_setup(A):
    A("s_and_b32 s28, s2, 1\ns_bfe_u32 s32, s2, 0x20001\ns_lshr_b32 s33, s2, 6\ns_lshl2_add_u32 s80, s32, s33\ns_bfe_u32 s81, s2, 0x30003\ns_lshl2_add_u32 s29, s28, s3")
    A(f"s_mul_i32 s32, s29, 12\ns_mul_i32 s33, s81, 96\ns_add_u32 s33, s33, s32\ns_mul_i32 s82, s33, 5120\ns_add_u32 s82, s82, {WS_W2P}")
    A(f"s_lshl1_add_u32 s33, s80, s28\ns_mul_i32 s34, s33, 96\ns_add_u32 s34, s34, s32\ns_lshl_b32 s83, s34, 12\ns_add_u32 s83, s83, {WS_H}")
    A(f"s_xor_b32 s33, s33, 1\ns_mul_i32 s34, s33, 96\ns_add_u32 s34, s34, s32\ns_lshl_b32 s30, s34, 12\ns_add_u32 s30, s30, {WS_H}")
    A(f"s_lshl_b32 s93, s80, 14\ns_add_u32 s93, s93, {WS_FLG}")
ACCG = 96; ACCK = 176
STEPS = [("G",0),("G",1),("G",2),("K",0),("K",1),("K",2)] + [("G",i) for i in range(3,12)] + [("K",i) for i in range(3,12)]
POOL = ["v32", "v48", "v64", "v80", "a112", "a128", "a144"]
HBUF = [0,1,2,3,0,1,2,3,0,1] + [4,5,6,2,3,0,1,4,5,6,2,3,0,1]
def Hr(n, tb):
    b = POOL[HBUF[n]]; r = int(b[1:]) + 4*tb; return f"{b[0]}[{r}:{r+3}]"
FN = {0: 6, 1: 8, 2: 3, 3: 1, 4: 5}
def fbase(g):
    if g == 0: return lines("s_mul_i32 s31, s28, 22\ns_mul_i32 s32, s3, 6\ns_add_u32 s31, s31, s32\ns_min_u32 s31, s31, 38\ns_lshl_b32 s31, s31, 7\ns_add_u32 s31, s31, s93")
    if g == 1: return lines("s_mul_i32 s31, s29, 172\ns_lshr_b32 s31, s31, 7\ns_lshl_b32 s31, s31, 9\ns_add_u32 s31, s31, s93\ns_add_u32 s31, s31, 5632")
    if g == 2: return lines("s_mul_i32 s31, s29, 5\ns_lshr_b32 s31, s31, 1\ns_lshl_b32 s31, s31, 7\ns_add_u32 s31, s31, s93\ns_add_u32 s31, s31, 11264")
    if g == 3: return lines(f"s_xor_b32 s31, s95, 4\ns_lshl_b32 s31, s31, 7\ns_add_u32 s31, s31, {WS_XF}")
    if g == 4: return lines(f"s_lshl_b32 s31, s81, 3\ns_add_u32 s31, s31, s29\ns_mul_i32 s31, s31, 640\ns_add_u32 s31, s31, {WS_CF}")
    return lines(f"s_mul_i32 s31, s29, 7680\ns_add_u32 s31, s31, {WS_WF}\ns_mul_i32 s32, s81, 5\ns_cmp_eq_u32 s3, 3\ns_cselect_b32 s33, 2, 63")
def faddr(g):
    if g < 5: return [f"v_min_u32 v9, {FN[g]-1}, v1", "v_lshlrev_b32 v9, 7, v9"]
    return lines("v_lshrrev_b32 v9, 1, v1\nv_min_u32 v9, 6, v9\nv_cmp_eq_u32 vcc, s33, v9\nv_and_b32 v2, 1, v1\nv_lshl_add_u32 v2, v2, 2, s32\nv_cndmask_b32 v9, v9, 1, vcc\nv_lshrrev_b32 v2, 3, v2\nv_mad_u32_u24 v9, v9, 5, v2\nv_lshlrev_b32 v9, 7, v9")
def fpoll(g): return glue(fbase(g)) + faddr(g) + [("vm", "fl", "buffer_load_dword v9, v9, s[8:11], s31 offen sc1")]
def fcheck(A, name, g, pre=None):
    A.it(("wvm", ["fl"]))
    A(f"v_cmp_ne_u32 vcc, s96, v9\ns_cbranch_vccz {name}_ok\ns_mov_b32 s7, 0x40000")
    if pre: A(pre)
    A.label(f"{name}_l")
    A.ext(fbase(g) + faddr(g))
    A(f"buffer_load_dword v9, v9, s[8:11], s31 offen sc1\ns_waitcnt vmcnt(0)\nv_cmp_ne_u32 vcc, s96, v9\ns_sub_u32 s7, s7, 1\ns_cbranch_scc1 {name}_ok\ns_cbranch_vccnz {name}_l")
    A.label(f"{name}_ok")
def hload(n):
    hf, i = STEPS[n]
    L = [f"s_add_u32 s77, s{30 if hf == 'G' else 83}, {i*4096}"]
    if i == 2: L += [f"s_cmp_eq_u32 s3, 3\ns_cselect_b32 s77, {hex(OOB)}, s77"]
    for tb in range(4): L.append(("vm", ("h", n), f"buffer_load_dwordx4 {Hr(n,tb)}, v28, s[8:11], s77 offen offset:{tb*1024} sc1"))
    return L
XS = 81920
def ph2_addr(A):
    srd(A, 24, P["dsk"], 1280)
    A("s_lshl1_add_u32 s32, s80, s28\ns_lshl_b32 s32, s32, 6\ns_lshl_b32 s33, s3, 4\ns_add_u32 s32, s32, s33\nv_lshrrev_b32 v2, 2, v1\nv_mul_u32_u24 v12, 160, v2\nv_add_u32 v2, s32, v2")
    A("v_lshrrev_b32 v15, 3, v2\nv_lshlrev_b32 v15, 7, v15\nv_and_b32 v3, 7, v2\nv_lshl_add_u32 v15, v3, 3, v15\nv_mul_u32_u24 v2, 2560, v2")
    A("s_mul_i32 s98, s81, 160\ns_mul_i32 s97, s32, 1280\ns_add_u32 s97, s97, s98\ns_lshl_b32 s33, s98, 1\nv_and_b32 v3, 3, v1\nv_lshl_add_u32 v13, v3, 4, v2\nv_add_u32 v13, s33, v13")
    A(f"s_mul_i32 s100, s3, 20480\ns_add_u32 s100, s100, {XS}\nv_lshl_add_u32 v14, v3, 3, s100\nv_add_u32 v12, v12, v14\ns_movk_i32 s33, 6554")
    for i in range(3):
        A(f"v_add_u32 v2, {64*i}, v1\nv_min_u32 v2, 159, v2\nv_mul_u32_u24 v3, s33, v2\nv_lshrrev_b32 v3, 16, v3\nv_mul_u32_u24 v3, 1120, v3\nv_lshl_add_u32 v{16+i}, v2, 4, v3")
    A("v_min_u32 v19, 144, v28")
def ph2_addr2(A):
    srd(A, 20, P["out"], SZ_OUT)
    A("v_lshrrev_b32 v2, 4, v1\nv_lshlrev_b32 v3, 2, v2\nv_xor_b32 v3, v3, v1\nv_lshlrev_b32 v3, 4, v3\ns_mul_i32 s75, s3, 20480\nv_add_u32 v22, s75, v3")
    A("v_and_b32 v2, 3, v1\nv_lshrrev_b32 v4, 2, v1\nv_lshlrev_b32 v5, 2, v2\nv_xor_b32 v4, v4, v5\nv_lshl_add_u32 v4, v2, 4, v4\nv_lshlrev_b32 v4, 4, v4\ns_mul_i32 s75, s3, 5120\nv_add_u32 v23, s75, v4\nv_add_u32 v24, 40960, v23")
    A(f"s_mul_i32 s4, s95, 5120\ns_add_u32 s4, s4, {WS_XCH}\ns_xor_b32 s5, s95, 4\ns_mul_i32 s5, s5, 5120\ns_add_u32 s5, s5, {WS_XCH}\ns_lshl_b32 s6, s95, 7\ns_add_u32 s6, s6, {WS_XF}")
def fin_loads():
    L = []
    for i in range(3): L += [f"s_add_u32 m0, s100, {1024*i}", ("vm", "fin", f"buffer_load_dwordx4 v{16+i}, s[16:19], s97 offen lds")]
    L += ["s_add_u32 m0, s100, 3072", ("vm", "fin", "buffer_load_dwordx4 v19, s[24:27], s98 offen lds"), f"s_mov_b32 s75, {WS_STAT}", ("vm", "fin", "buffer_load_dword v10, v15, s[8:11], s75 offen sc1")]
    return L
GROUPS = [[n] for n in range(13)] + [[13, 14]] + [[n] for n in range(15, 21)] + [[21, 22, 23]]
ISSUE = {0: (2, 3), 1: (4,), 2: (5,), 3: (6,), 4: (7,), 5: (8,), 6: (9,), 7: (10, 11), 8: (12,), 9: (13,), 10: (14,), 11: (15,), 12: (16,), 13: (17, 18, 19), 15: (20,), 16: (21,), 17: (22,), 18: (23,)}
for k_, ns_ in ISSUE.items():
    for n_ in ns_:
        prev_ = [m for m in range(n_) if HBUF[m] == HBUF[n_]]
        assert (not prev_ or prev_[-1] < k_) and (HBUF[n_] < 4 or k_ > 5)
def acc2(hf, nb, tb): return (ACCG if hf == "G" else ACCK) + (tb*5+nb)*4
def ph2_groups(A, groups, extra, pre={}, first={}):
    pend = []
    for g in groups:
        n0 = g[0]; hf = STEPS[n0][0]
        tags = [("h", n) for n in g]
        if n0 == 16: A.sync(tags)
        else: A.it(("wvm", tags))
        if TS >= 2 and n0 not in (15, 17, 18): A("s_waitcnt lgkmcnt(0)")
        if TS >= 2:
            if n0: A(f"v_writelane_b32 v25, s88, {GROUPS.index(g)-1}")
            A("s_memtime s[88:89]")
        if n0 in pre: pre[n0]()
        mf = []; wr = [[] for _ in range(20*len(g))]
        for nb in range(5):
            for tb in range(4):
                c = acc2(hf, nb, tb)
                for n in g:
                    w = w2reg(STEPS[n][1]) + 4*nb
                    mf.append(f"{MF} v[{c}:{c+3}], a[{w}:{w+3}], {Hr(n,tb)}, " + (f"v[{c}:{c+3}]" if STEPS[n][1] else "0"))
                if len(g) > 1:
                    pos = 3*(nb*4+tb) + 8
                    if int(OPT.get("w64", 0)): its = [(pos+k, ("ds", None, f"ds_write_b64 v22, v[{c+2*k}:{c+2*k+1}] offset:{(tb*5+nb)*1024+8*k}")) for k in range(2)]
                    else: its = [(pos, ("ds", None, f"ds_write_b128 v22, v[{c}:{c+3}] offset:{(tb*5+nb)*1024}"))]
                    for pos, it in its:
                        if pos < len(wr): wr[pos].append(it)
                        else: pend.append(it)
        st = [(first.get(n0, []) + sum((hload(n) for n in ISSUE.get(n0, ())), []), 0, len(mf) - 8), (extra.get(n0, []), 1, len(mf) - 1)]
        if len(g) == 1 and pend: st.append((pend, 0, 19)); pend = []
        A.weave(mf, st, fixed=wr)
    A.its(pend)
JOIN = []
def ph2_head(A, name, extra, pre={}):
    a1 = chop(cap(ph2_addr), 2); a2 = cap(ph2_addr2)
    e = {0: fpoll(1)[:-1], 1: a1[0], 2: a1[1], 3: fin_loads(), 4: fpoll(2)[:-1], 6: a2}
    for k, v in extra.items(): e[k] = v + e.get(k, [])
    p = dict(pre); p[3] = lambda: fcheck(A, name + "1", 1)
    ph2_groups(A, GROUPS[:7], e, p, {1: fpoll(1)[-1:], 5: fpoll(2)[-1:]})
    JOIN.append({t: A.nv - v for t, v in A.tv.items()})

W_SLOT = 20480; NWS = 4; X_BASE = NWS*W_SLOT; X_SLOT = 16384; F_SCR = X_BASE + 3*X_SLOT
def gen_ffn(A):
    import copy
    A("s_mul_i32 s70, s69, 160\ns_min_u32 s70, s70, 1568")
    A("s_lshl_b32 s32, s68, 7\ns_lshl_b32 s33, s3, 5\ns_add_u32 s32, s32, s33")
    A("v_lshrrev_b32 v2, 3, v1\nv_add_u32 v2, s32, v2\nv_mul_u32_u24 v2, 1280, v2\nv_lshrrev_b32 v3, 4, v1\nv_xor_b32 v3, v3, v1\nv_and_b32 v3, 7, v3\nv_lshlrev_b32 v3, 4, v3")
    A(f"v_add_u32 v15, v2, v3\nv_xor_b32 v3, 64, v3\nv_add_u32 v16, v2, v3\nv_add_u32 v16, {8*1280-1024}, v16\nv_add_u32 v17, {16*1280}, v15\nv_add_u32 v18, {16*1280}, v16")
    A(f"s_mul_i32 s73, s3, 5120\ns_lshl_b32 s74, s3, 12\ns_add_u32 s74, s74, {X_BASE}")
    A("s_mul_i32 s32, s71, 320\ns_lshl_b32 s33, s70, 1\ns_movk_i32 s34, 3277")
    for i in range(5):
        A(f"v_add_u32 v2, s32, v1\nv_add_u32 v2, {64*i}, v2\nv_mul_u32_u24 v3, s34, v2\nv_lshrrev_b32 v3, 16, v3")
        A("v_mul_u32_u24 v4, 20, v3\nv_sub_u32 v4, v2, v4\nv_lshrrev_b32 v5, 2, v3\nv_and_b32 v5, 2, v5\nv_xor_b32 v4, v4, v5")
        A(f"v_mul_u32_u24 v3, 3456, v3\nv_lshl_add_u32 v3, v4, 4, v3\nv_add_u32 v3, s33, v3\nv_subrev_u32 v{10+i}, {1024*(i&3)}, v3")
    def dmaW(s):
        L = [f"s_add_u32 m0, s73, {(s%NWS)*W_SLOT}", f"s_mov_b32 s77, {s*32*3456}"]
        for i in range(5):
            if i == 4: L.append(f"s_add_u32 m0, s73, {(s%NWS)*W_SLOT+4096}")
            L.append(("vm", ("W", s), f"buffer_load_dwordx4 v{10+i}, s[12:15], s77 offen offset:{1024*(i&3)} lds"))
        return L
    def dmaX(u, hs=(0, 1)):
        L = []
        for h in hs:
            L += [f"s_add_u32 m0, s74, {(u%3)*X_SLOT+2048*h}", f"s_movk_i32 s78, {u*128}"]
            for i in range(2): L.append(("vm", ("X", u), f"buffer_load_dwordx4 v{15+2*h+i}, s[16:19], s78 offen offset:{1024*i} lds"))
        return L
    st_ld, st_c, st_f = stats_job(32, X_BASE + 2*X_SLOT)
    A("s_waitcnt lgkmcnt(0)")
    srd(A, 16, P["x"], SZ_X)
    A.its(st_ld)
    A("s_cmp_eq_u32 s72, 0"); srd_sel(A, 12, P["w1"], P["w3"], SZ_W)
    A.its(dmaX(0) + dmaW(0))
    early_setup(A)
    A("v_lshrrev_b32 v2, 4, v1\nv_bfe_u32 v3, v1, 2, 2\nv_lshl_add_u32 v3, v2, 3, v3\nv_mul_u32_u24 v3, 320, v3")
    A("v_and_b32 v4, 3, v1\nv_lshl_add_u32 v3, v4, 3, v3\nv_and_b32 v4, 1, v2\nv_lshlrev_b32 v4, 5, v4")
    A("s_mul_i32 s32, s72, 192\nv_add_u32 v5, s32, v3\nv_add_u32 v20, v5, v4\nv_sub_u32 v21, v5, v4")
    A("s_lshl_b32 s32, s72, 5\ns_add_u32 s32, s32, 128\nv_xor_b32 v5, s32, v4\nv_add_u32 v22, v3, v5")
    for i in range(3): A(f"v_add_u32 v{23+i}, {3*W_SLOT}, v{20+i}")
    A("v_and_b32 v3, 15, v1\nv_lshrrev_b32 v4, 1, v3\nv_xor_b32 v4, v4, v2\nv_lshlrev_b32 v4, 4, v4\nv_lshl_add_u32 v3, v3, 7, v4")
    A(f"s_lshl_b32 s32, s71, 13\ns_add_u32 s32, s32, {X_BASE}\nv_add_u32 v26, s32, v3\nv_xor_b32 v27, 64, v26")
    def hs(A):
        A("s_lshl1_add_u32 s32, s69, s72"); sig_early(A, 32, 84, 33)
        A("s_mul_i32 s33, s69, 3\ns_cmp_eq_u32 s69, 10\ns_cselect_b32 s34, 1, 0\ns_sub_u32 s33, s33, s34\ns_lshl1_add_u32 s85, s72, s33\ns_add_u32 s86, s33, 1")
        sig_late(A, 85, 34); sig_late(A, 86, 34)
        A(f"s_lshl1_add_u32 s33, s68, s71\ns_mul_i32 s34, s33, 96")
        for r in (84, 85, 86): A(f"s_add_u32 s{r}, s{r}, s34\ns_lshl_b32 s{r}, s{r}, 12\ns_add_u32 s{r}, s{r}, {WS_H}")
        A(f"s_cmp_eq_u32 s32, 19\ns_cselect_b32 s85, {hex(OOB)}, s85")
        A(f"s_lshl1_add_u32 s87, s32, s71\ns_lshl_b32 s33, s68, 7\ns_add_u32 s87, s87, s33\ns_lshl_b32 s87, s87, 7\ns_add_u32 s87, s87, {WS_FLG}")
    late_setup = [cap(ph2_setup), []] + chop(cap(hs), 2)
    ep_ld = lines(f"s_mul_i32 s75, s72, 1728\ns_mul_i32 s76, s71, 80\ns_add_u32 s75, s75, s76\ns_add_u32 s75, s75, s70\ns_lshl_b32 s75, s75, 3\ns_add_u32 s75, s75, {WS_CS}\ns_add_u32 s76, s75, {CS_HALF}\nv_min_u32 v2, 624, v28")
    ep_ld += [("vm", "ep", "buffer_load_dwordx4 v[56:59], v2, s[8:11], s75 offen sc1"), ("vm", "ep", "buffer_load_dwordx4 v[60:63], v2, s[8:11], s76 offen sc1")]
    ep_ld += lines(f"v_and_b32 v2, 7, v1\nv_lshlrev_b32 v2, 3, v2\nv_and_b32 v3, 8, v1\nv_lshl_add_u32 v2, v3, 4, v2\ns_lshl1_add_u32 s75, s68, s71\ns_lshl_b32 s75, s75, 10\ns_add_u32 s75, s75, {WS_STAT}")
    for tb in range(4): ep_ld.append(("vm", "ep", f"buffer_load_dwordx2 v[{64+2*tb}:{65+2*tb}], v2, s[8:11], s75 offen offset:{256*tb} sc1"))
    ep_tags = [57, 59, 61, 63, 65, 67, 69, 71]
    ep_t = [("wvm", ["ep"])] + tagtest(ep_tags)
    ep_w = lines(f"v_add_f32 v56, v56, v60\nv_add_f32 v57, v58, v62\ns_lshl_b32 s75, s72, 10\ns_mul_i32 s76, s71, 320\ns_add_u32 s75, s75, s76\ns_add_u32 s75, s75, {F_SCR}\nv_min_u32 v2, 39, v1\nv_lshl_add_u32 v2, v2, 3, s75")
    ep_w += [("ds", None, "ds_write_b64 v2, v[56:57]")]
    ep_r = lines(f"v_and_b32 v2, 48, v1\ns_mul_i32 s75, s72, 384\ns_add_u32 s75, s75, {F_SCR}\nv_add_u32 v3, s75, v2\ns_lshl_b32 s75, s72, 6\ns_add_u32 s75, s75, {F_SCR+256}\nv_add_u32 v2, s75, v2")
    for j in range(10):
        pr, m = j >> 1, j & 1
        ep_r.append(("ds", None, f"ds_read_b128 v[{56+4*j}:{59+4*j}], v{2 if pr == 4 else 3} offset:{1024*m + (0 if pr == 4 else 64*pr)}"))
    ep_c = []
    for tb in range(4):
        ep_c += lines(f"v_lshlrev_b32 v{44+tb}, 16, v{64+2*tb}\nv_and_b32 v{52+tb}, 0xffff0000, v{64+2*tb}\nv_rcp_f32 v{48+tb}, v{52+tb}\nv_mul_f32 v{52+tb}, v{52+tb}, v{52+tb}\nv_mul_f32 v{48+tb}, 0xbfb8aa3b, v{48+tb}")
    ep_a = lines("v_lshrrev_b32 v2, 4, v1\nv_and_b32 v3, 1, v2\nv_lshlrev_b32 v3, 10, v3\nv_lshrrev_b32 v2, 1, v2\nv_lshl_add_u32 v3, v2, 8, v3")
    ep_a += lines("v_and_b32 v2, 15, v1\nv_lshl_add_u32 v3, v2, 4, v3\ns_lshl_b32 s75, s72, 9\nv_add_u32 v36, s75, v3\nv_mov_b32 v31, s96\ns_add_u32 s99, s87, 5632")
    ACC = 96
    def acc(j, tb): return ACC + (j*4+tb)*4
    def Wr(par, j): return par*56 + j*4
    def Xr(par, tb): return par*56 + 40 + tb*4
    def reads(s):
        par = s & 1; L = []; sl = s % NWS; hi = 3 if sl >= 3 else 0; so = (sl - hi)*W_SLOT
        for tb in range(4): L.append(("ds", None, f"ds_read_b128 a[{Xr(par,tb)}:{Xr(par,tb)+3}], v{26+(s&1)} offset:{((s>>1)%3)*X_SLOT + tb*2048}"))
        for j in range(10):
            pr, m = j >> 1, j & 1; ar = 22 if pr == 4 else 20 + (pr & 1); co = 0 if pr == 4 else pr*32
            for hh in range(2): L.append(("ds", None, f"ds_read_b64_tr_b16 a[{Wr(par,j)+2*hh}:{Wr(par,j)+2*hh+1}], v{ar+hi} offset:{so + m*10240 + hh*1280 + co}"))
        return L
    wl = chop(sum((w2load(i) for i in range(7)), []), 9)
    def loop(role, mem, side):
        M = {0: dmaW(3), 1: dmaX(2) + dmaW(4), 2: dmaW(5), 3: dmaX(3) + dmaW(6), 4: dmaW(7) + dmaW(8), 5: dmaX(4) + dmaW(9), 6: dmaW(10) + dmaX(5)}
        for s in range(7, 16): M[s] = dmaW(s+4) + (dmaX((s+5) >> 1, ((s+1) & 1,)) if s < 15 else [])
        if "flat" in OPT:
            F = int(OPT["flat"])
            M = {s: (dmaW(s+3) if s+3 < 20 else []) + (dmaX((s+4) >> 1, (s & 1,)) if (s+4) >> 1 < 10 else []) for s in range(20)}
        for s, L in mem.items(): M[s] = M[s] + ([x if isinstance(x, str) else (x[0], x[1], x[2].replace("s77 offen", "s76 offen")) for x in L] if "noside" in OPT else L)
        M[15] += wl[0]
        for s in range(16, 20): M[s] = M.get(s, []) + wl[2*s-31] + wl[2*s-30]
        S = dict(side)
        for k, L in {5: late_setup[0], 6: late_setup[2], 8: late_setup[3], 11: ep_a, 12: fpoll(5), 14: ep_ld, 16: ep_t, 17: ep_w + ep_c, 18: ep_r}.items():
            S[k] = S.get(k, []) + L
        A.sync([("X", 0), ("W", 0)]); stamp(A, 1)
        A.its(reads(0))
        for s in range(20):
            tags = [("W", s+1), ("X", (s+1) >> 1)] if s < 19 else []
            if s == 15: fcheck(A, role + "P", 5)
            if s == 17: gcheck(A, role + "G", ep_ld, ep_tags)
            A.sync(tags)
            tick(A, s, 19)
            par = s & 1; mf = []
            for j in range(10):
                for tb in range(4):
                    c = acc(j, tb); mf.append(f"{MF} v[{c}:{c+3}], a[{Wr(par,j)}:{Wr(par,j)+3}], a[{Xr(par,tb)}:{Xr(par,tb)+3}], " + (f"v[{c}:{c+3}]" if s else "0"))
            A.weave(mf, [(reads(s+1) if s < 19 else [], 0, 30), (M.get(s, []), 0, 39), (S.get(s, []), 1, 39)])
    A("s_mul_i32 s98, s68, 11\ns_add_u32 s98, s98, s69")
    A.L.append(";@TOUCH F")
    A.its(st_c[:1])
    spread(A, st_c[1:], dmaW(1) + dmaX(1) + dmaW(2), 0, len(st_c) - 10)
    A("s_mov_b32 s32, s98\ns_cmp_ge_u32 s98, 108\ns_cbranch_scc1 FB_a\ns_branch FA_a")
    snap = (A.nv, dict(A.tv), A.dv, A.nd, dict(A.td), A.dd)
    A.L.append(";@SEG FA"); A.label("FA_a")
    def fa1(A):
        A("s_lshr_b32 s33, s32, 1\ns_and_b32 s34, s32, 1\ns_cmp_lt_u32 s33, 27"); srd_sel(A, 24, P["w1"], P["w3"], SZ_W)
        A(f"s_cselect_b32 s35, 0, 27\ns_sub_u32 s35, s33, s35\ns_lshl_b32 s35, s35, 7\ns_lshl2_add_u32 s97, s34, s3\ns_mul_i32 s97, s97, {80*3456}\ns_add_u32 s97, s97, s35")
        A(f"s_lshl_b32 s98, s33, 9\ns_mul_i32 s34, s34, {CS_HALF}\ns_add_u32 s98, s98, s34\ns_add_u32 s98, s98, {WS_CS}\ns_cmp_eq_u32 s3, 0\ns_cselect_b32 s98, s98, {hex(OOB)}")
        A("v_lshrrev_b32 v2, 3, v1\nv_mul_u32_u24 v2, 3456, v2\nv_and_b32 v3, 7, v1\nv_lshl_add_u32 v30, v3, 4, v2")
    def fa2(A):
        A("v_and_b32 v2, 15, v1\nv_and_b32 v3, 1, v1\nv_lshlrev_b32 v3, 4, v3\nv_mov_b32 v4, 0x3f80\nv_lshlrev_b32 v3, v3, v4\nv_lshrrev_b32 v2, 1, v2")
        for r in range(4): A(f"v_cmp_eq_u32 vcc, {r}, v2\nv_cndmask_b32 v{72+r}, 0, v3, vcc")
        A(f"v_and_b32 v2, 7, v1\nv_lshlrev_b32 v2, 5, v2\nv_and_b32 v3, 16, v1\nv_add_u32 v2, v2, v3\ns_lshl_b32 s75, s3, 8\ns_add_u32 s75, s75, {F_SCR}\nv_add_u32 v2, s75, v2\nv_and_b32 v3, 32, v1\nv_lshl_add_u32 v80, v3, 5, v2")
        A(f"v_lshlrev_b32 v82, 2, v1\nv_add_u32 v81, {F_SCR}, v82\nv_lshlrev_b32 v82, 3, v1")
    cs_ld = []
    for i in range(10): cs_ld += [f"s_add_u32 s77, s97, {i*8*3456}", ("vm", "csl", f"buffer_load_dwordx4 a[{112+4*i}:{115+4*i}], v30, s[24:27], s77 offen")]
    cs_c = [("wvm", ["csl"])]
    for i in range(10): cs_c.append(f"{MF} v[76:79], v[72:75], a[{112+4*i}:{115+4*i}], " + ("v[76:79]" if i else "0"))
    cs_c += ["s_nop 0"]*2
    for e in range(4): cs_c.append(f"v_add_f32_dpp v{76+e}, v{76+e}, v{76+e} row_ror:8 row_mask:0xf bank_mask:0xf")
    cs_c.append(("ds", None, "ds_write_b128 v80, v[76:79]"))
    cs_f = [("ds", "csf", f"ds_read_b32 v{72+w}, v81 offset:{256*w}") for w in range(4)]
    cs_f += [("wds", ["csf"]), "v_add_f32 v72, v72, v73", "v_add_f32 v74, v74, v75", "v_mov_b32 v73, s96", "v_add_f32 v72, v72, v74", ("vm", None, "buffer_store_dwordx2 v[72:73], v82, s[8:11], s98 offen sc1")]
    A0 = int(OPT.get("a0", 2))
    if "noside" in OPT: A(f"s_mov_b32 s76, {hex(OOB)}")
    loop("FA", {A0+k: cs_ld[4*k:4*k+4] for k in range(5)}, {0: cap(fa1) + st_f, 2: cap(fa2), A0+7: cs_c, A0+8: cs_f})
    A("s_branch FFN_EP")
    A.nv, A.tv, A.dv, A.nd, A.td, A.dd = snap
    A.L.append(";@SEG FB"); A.label("FB_a")
    SO = (4, 5, 6, 97, 24, 25, 26, 27)
    def fb1(A):
        srd(A, 20, P["w2"], SZ_W)
        A("s_sub_u32 s34, s32, 108\ns_lshl2_add_u32 s32, s34, s3\ns_mul_i32 s34, s32, 52429\ns_lshr_b32 s34, s34, 18\ns_mul_i32 s33, s34, 5\ns_sub_u32 s33, s32, s33")
        A(f"s_mul_i32 s99, s34, 40960\ns_lshl_b32 s35, s33, 8\ns_add_u32 s99, s99, s35\ns_lshl_b32 s101, s3, 13\ns_add_u32 s101, s101, {F_SCR}")
        A(f"v_lshrrev_b32 v2, 4, v1\nv_mul_u32_u24 v30, 1280, v2\nv_and_b32 v3, 15, v1\nv_lshl_add_u32 v30, v3, 4, v30")
    def fb2(A):
        A("s_mul_i32 s35, s34, 52429\ns_lshr_b32 s35, s35, 18\ns_mul_i32 s75, s35, 5\ns_sub_u32 s75, s34, s75\ns_sub_u32 s76, s34, 49\ns_cmp_ge_u32 s34, 49\ns_cselect_b32 s35, 10, s35\ns_cselect_b32 s75, s76, s75")
        A("s_cmp_eq_u32 s75, 3\ns_cselect_b32 s76, 1, 0\ns_lshl1_add_u32 s76, s35, s76"); sig_early(A, 76, 100, 79)
        A("s_mul_i32 s76, s35, 3\ns_lshr_b32 s79, s75, 1\ns_add_u32 s76, s76, s79\ns_cmp_eq_u32 s35, 10\ns_cselect_b32 s79, 1, 0\ns_sub_u32 s76, s76, s79"); sig_late(A, 76, 79)
        A("s_lshr_b32 s79, 9, s75\ns_bitcmp1_b32 s79, 0\ns_cselect_b32 s100, s100, s76")
        A(f"s_mul_i32 s98, s100, 5\ns_add_u32 s98, s98, s33\ns_lshl_b32 s98, s98, 7\ns_add_u32 s98, s98, {WS_WF}")
        A(f"s_mul_i32 s100, s100, 5120\ns_lshl_b32 s79, s33, 13\ns_add_u32 s100, s100, s79\ns_add_u32 s100, s100, {WS_W2P}")
        A(f"s_cmp_lt_u32 s32, 270\ns_cselect_b32 s100, s100, {hex(OOB)}\ns_cselect_b32 s98, s98, {hex(OOB)}")
        A("s_cmp_eq_u32 s75, 2\ns_cselect_b32 s75, 8, 4\ns_cselect_b32 s76, 1, 4\ns_lshl_b32 s76, s76, 10")
        A(f"v_lshrrev_b32 v2, 4, v1\nv_mul_u32_u24 v2, s75, v2\nv_bfe_u32 v3, v1, 2, 2\nv_add_u32 v2, v2, v3\nv_lshlrev_b32 v2, 8, v2\nv_and_b32 v3, 3, v1\nv_lshl_add_u32 v2, v3, 3, v2")
        A(f"v_add_u32 v80, s101, v2\nv_add_u32 v81, s76, v80\ns_mul_i32 s33, s33, {8*52429}")
        for k in range(8): A(f"s_add_u32 s79, s33, {k*52429}\ns_lshr_b32 s79, s79, 18\ns_mul_i32 s79, s79, 486400\ns_add_u32 s{SO[k]}, s100, s79")
    w2_ld = []
    for i in range(8): w2_ld += [f"s_add_u32 m0, s101, {1024*i}", f"s_add_u32 s77, s99, {5120*i}", ("vm", "w2l", "buffer_load_dwordx4 v30, s[20:23], s77 offen lds")]
    w2_c = [("wvm", ["w2l"])]
    for k in range(8):
        for hh in range(2): w2_c.append(("ds", "w2t", f"ds_read_b64_tr_b16 a[{152+4*k+2*hh}:{153+4*k+2*hh}], v{80+hh} offset:{32*k}"))
    w2_s = [("vm", "side", f"buffer_store_dwordx4 a[{152+4*k}:{155+4*k}], v{28+(k>>2)}, s[8:11], s{SO[k]} offen offset:{(k&3)*1024} sc1") for k in range(8)]
    f2 = chop(cap(fb2), 3)
    fb1(A)
    loop("FB", {0: w2_ld[:15], 1: w2_ld[15:]}, {0: st_f + f2[0], 1: f2[1], 2: f2[2], 3: w2_c, 4: w2_s, 7: ["v_mov_b32 v3, s96", ("wvm", ["side"]), ("vm", None, "buffer_store_dword v3, v8, s[8:11], s98 offen sc1")]})
    A.L.append(";@SEG EP"); A.label("FFN_EP"); A.reset()
    A("s_waitcnt lgkmcnt(0)"); tick(A, 20, 19); tockdump(A, 20, 19, 0x40000)
    stamp(A, 2)
    A("s_nop 6")
    T = 32
    def silu(pr, tb, dst):
        g, u = acc(2*pr, tb), acc(2*pr+1, tb); cg, cu = 56+8*pr, 60+8*pr
        L = []
        for k in (0, 2): L.append(pk("fma", g+k, cg+k, ("b", 44+tb), g+k, neg=(1,)))
        for k in (0, 2): L.append(pk("mul", T+k, g+k, ("b", 48+tb)))
        for k in (0, 2): L.append(pk("fma", u+k, cu+k, ("b", 44+tb), u+k, neg=(1,)))
        for e in range(4): L.append(f"v_exp_f32 v{T+e}, v{T+e}")
        for k in (0, 2): L.append(pk("mul", g+k, g+k, u+k))
        for k in (0, 2): L.append(pk("fma", T+k, T+k, ("b", 52+tb), ("b", 52+tb)))
        for e in range(4): L.append(f"v_rcp_f32 v{T+e}, v{T+e}")
        for k in (0, 2): L.append(pk("mul", g+k, g+k, T+k))
        L += [f"v_cvt_pk_bf16_f32 v{dst}, v{g}, v{g+1}", f"v_cvt_pk_bf16_f32 v{dst+1}, v{g+2}, v{g+3}"]
        return L
    ep = []
    EF = int(OPT.get("ef", 2))
    for fr in range(2):
        for tb in range(4):
            o = acc(4*fr+1, tb)
            ep += silu(2*fr, tb, o) + silu(2*fr+1, tb, o+2)
            if fr == 1 and tb == EF: ep += [("wvm", [("H", 0)]), ("vm", None, "buffer_store_dword v31, v8, s[8:11], s87 offen sc1")]
            ep.append(("vm", ("H", fr), f"buffer_store_dwordx4 v[{o}:{o+3}], v28, s[8:11], s{84+fr} offen offset:{tb*1024} sc1"))
    for tp in range(2):
        o = acc(9, 2*tp)
        ep += silu(4, 2*tp, o) + silu(4, 2*tp+1, o+2)
        ep += [f"v_permlane16_swap_b32 v{o}, v{o+2}", f"v_permlane16_swap_b32 v{o+1}, v{o+3}"]
        if tp == 1: ep += fpoll(0)
        ep.append(("vm", ("H", 2), f"buffer_store_dwordx4 v[{o}:{o+3}], v36, s[8:11], s86 offen offset:{tp*2048} sc1"))
    A.its(fpoll(4)); A.its(ep[:90]); fcheck(A, "FC4", 4)
    spread(A, ep[90:], sum((w2load(i) for i in range(7, 7+FE)), []), 0, 280)
    stamp(A, 3)
    A.L.append(";@TOUCH P0")
    FBUB = int(OPT.get("fb", 3))
    A.its(sum((w2load(i) for i in range(7+FE, 7+FE+FBUB)), []))
    fs = "buffer_store_dword v31, v8, s[8:11], s99 offen sc1"
    fcheck(A, "FC0", 0, pre=f"s_waitcnt vmcnt({5*FBUB})\n" + fs)
    stamp(A, 6)
    for i in range(2): A.its(hload(i))
    A.its([("wvm", [("H", 2)]), ("vm", None, fs)])
    ph2_head(A, "FC", dict(enumerate(chop(sum((w2load(i) for i in range(7+FE+FBUB, 12)), []), 7))) if FE+FBUB < 5 else {})
    A("s_branch PH2")

S_SLOT = 49152; S_SCR = 3*S_SLOT
def gen_ssm(A):
    A.reset()
    A("s_lshl_b32 s32, s68, 8\ns_lshl_b32 s33, s72, 7\ns_add_u32 s32, s32, s33\ns_lshl_b32 s33, s71, 3\ns_add_u32 s32, s32, s33")
    A("v_and_b32 v2, 32, v1\nv_bfe_u32 v3, v1, 3, 1\nv_lshl_add_u32 v2, v3, 4, v2\nv_bfe_u32 v3, v1, 4, 1\nv_add3_u32 v2, v2, v3, s32\nv_mul_u32_u24 v2, 1280, v2")
    A("v_lshrrev_b32 v3, 4, v1\nv_xor_b32 v3, v3, v1\nv_and_b32 v3, 7, v3\nv_lshlrev_b32 v3, 4, v3\nv_xor_b32 v4, 64, v3\nv_add_u32 v5, v2, v3\nv_add_u32 v6, v2, v4")
    for ii in range(8): A(f"v_add_u32 v{10+ii}, {(64*(ii&1) + 2*(ii>>1))*1280 - 1024*(ii&3)}, v{5+(ii&1)}")
    A("s_lshl_b32 s32, s69, 6\ns_lshl_b32 s33, s71, 5\ns_add_u32 s32, s32, s33")
    A("v_lshrrev_b32 v2, 3, v1\nv_add_u32 v2, s32, v2\nv_mul_u32_u24 v2, 1280, v2\nv_add_u32 v5, v2, v3\nv_add_u32 v6, v2, v4")
    for i in range(4): A(f"v_add_u32 v{18+i}, {8*i*1280 - 1024*i}, v{5+(i&1)}")
    A("s_lshl_b32 s73, s3, 13\ns_lshl_b32 s74, s3, 12\ns_add_u32 s74, s74, 32768\ns_waitcnt lgkmcnt(0)")
    srd(A, 16, P["x"], SZ_X)
    st_ld, st_c, st_f = stats_job(32, S_SCR)
    A.its(st_ld)
    A("s_cmp_eq_u32 s72, 0"); srd_sel(A, 12, P["bre"], P["bim"], SZ_B)
    def dma(u, hs=(0, 1)):
        b = (u % 3)*S_SLOT; L = []
        for h in hs:
            L += [f"s_add_u32 m0, s73, {b+4096*h}", f"s_movk_i32 s78, {u*128}"]
            for i in range(4): L.append(("vm", ("S", u), f"buffer_load_dwordx4 v{10+4*h+i}, s[16:19], s78 offen offset:{1024*i} lds"))
            L.append(f"s_add_u32 m0, s74, {b}")
            for i in range(2): L.append(("vm", ("S", u), f"buffer_load_dwordx4 v{18+2*h+i}, s[12:15], s78 offen offset:{1024*(2*h+i)} lds"))
        return L
    A.its(dma(0))
    p_ld = lines("s_lshl_b32 s32, s69, 6\ns_lshl_b32 s33, s72, 5\ns_add_u32 s32, s32, s33\nv_and_b32 v2, 15, v1\nv_add_u32 v30, s32, v2\nv_lshlrev_b32 v2, 1, v30")
    for cb in range(2):
        for q, sp in enumerate((P["lre"], P["lim"], P["ldt"])): p_ld.append(("vm", "P", f"global_load_ushort v{112+3*cb+q}, v2, s[{sp}:{sp+1}] offset:{32*cb}"))
    early_setup(A)
    A("v_lshrrev_b32 v2, 4, v1\nv_and_b32 v3, 15, v1\nv_lshrrev_b32 v4, 1, v3\nv_xor_b32 v4, v4, v2\nv_lshlrev_b32 v4, 4, v4\nv_lshl_add_u32 v3, v3, 7, v4")
    A("s_lshl_b32 s32, s71, 14\ns_lshl_b32 s33, s72, 12\ns_add_u32 s33, s33, 32768")
    A("v_add_u32 v22, s32, v3\nv_xor_b32 v23, 64, v22\nv_add_u32 v120, s33, v3\nv_xor_b32 v121, 64, v120")
    for sl in (1, 2):
        for ks in range(2): A(f"v_add_u32 v{22+2*sl+ks}, {sl*S_SLOT}, v{22+ks}\nv_add_u32 v{120+2*sl+ks}, {sl*S_SLOT}, v{120+ks}")
    def ss1(A):
        A("s_mul_i32 s32, s68, 10\ns_add_u32 s32, s32, s69\ns_lshl2_add_u32 s32, s32, s3\ns_cmp_lt_u32 s32, 160"); srd_sel(A, 24, P["bre"], P["bim"], SZ_B)
        A(f"s_cselect_b32 s33, 0, 160\ns_sub_u32 s33, s32, s33\ns_mul_i32 s97, s33, 5120\ns_lshl_b32 s98, s32, 7\ns_add_u32 s98, s98, {WS_CSB}")
        A("v_bfe_u32 v2, v1, 2, 2\nv_mul_u32_u24 v2, 1280, v2\nv_and_b32 v3, 3, v1\nv_lshl_add_u32 v2, v3, 4, v2\nv_lshrrev_b32 v3, 4, v1\nv_lshl_add_u32 v54, v3, 6, v2")
        A("v_lshlrev_b32 v2, 21, v1\nv_and_b32 v2, 0xfe000000, v2\nv_lshl_add_u32 v55, v1, 3, v2")
    def ss2(A):
        for r in range(4): A(f"v_mov_b32 v{68+r}, 0x3f803f80")
        A("s_lshl_b32 s32, s71, 2\nv_lshrrev_b32 v31, 4, v1\nv_add_u32 v31, s32, v31")
        A("s_mul_i32 s32, s68, 10\ns_add_u32 s32, s32, s69\ns_lshl2_add_u32 s32, s32, s3\ns_lshr_b32 s33, s32, 3\ns_and_b32 s34, s32, 7")
        A("s_bitcmp0_b32 s33, 0"); srd_sel(A, 20, P["cre"], P["cim"], SZ_B)
        A("s_mul_i32 s99, s34, 102400\ns_lshr_b32 s35, s33, 1\ns_lshl_b32 s35, s35, 6\ns_add_u32 s99, s99, s35")
        A(f"s_mul_i32 s101, s34, 40\ns_add_u32 s101, s101, s33\ns_lshl_b32 s101, s101, 7\ns_add_u32 s101, s101, {WS_CF}")
        sig_ssm(A, 33, 35)
        A(f"s_mul_i32 s34, s34, 96\ns_add_u32 s33, s33, s34\ns_mul_i32 s100, s33, 5120\ns_add_u32 s100, s100, {WS_W2P}")
        A("v_lshrrev_b32 v2, 2, v1\nv_mul_u32_u24 v2, 1280, v2\nv_and_b32 v3, 3, v1\nv_lshl_add_u32 v66, v3, 4, v2")
        A("v_and_b32 v2, 15, v1\nv_lshrrev_b32 v3, 4, v1\nv_lshl_add_u32 v2, v2, 2, v3\nv_lshlrev_b32 v67, 2, v2")
    def ss3(A):
        A("s_lshl1_add_u32 s32, s69, s72\ns_lshl_b32 s84, s32, 1\ns_add_u32 s85, s84, 1"); sig_ssm(A, 84, 33); sig_ssm(A, 85, 33)
        A(f"s_lshl1_add_u32 s34, s68, s71\ns_mul_i32 s35, s34, 192")
        for r in (84, 85): A(f"s_add_u32 s{r}, s{r}, s35\ns_lshl_b32 s{r}, s{r}, 12\ns_add_u32 s{r}, s{r}, {WS_H}")
        A(f"s_lshl_b32 s87, s34, 7\ns_add_u32 s87, s87, s32\ns_lshl_b32 s87, s87, 7\ns_add_u32 s87, s87, {WS_FLG+88*128}")
        A(f"s_add_u32 s86, s84, {96*4096}\ns_add_u32 s78, s85, {96*4096}")
    def ss4(A):
        A("s_mul_i32 s75, s3, 20480\nv_and_b32 v2, 15, v1\nv_bfe_u32 v3, v2, 2, 1\nv_and_b32 v4, 3, v2\nv_lshl_add_u32 v3, v4, 1, v3\nv_and_b32 v4, 8, v2\nv_or_b32 v3, v3, v4")
        A("v_lshrrev_b32 v4, 4, v1\nv_lshlrev_b32 v5, 2, v4\nv_xor_b32 v3, v3, v5\nv_lshlrev_b32 v3, 4, v3\nv_lshl_add_u32 v3, v2, 8, v3\nv_add_u32 v10, s75, v3")
        A("v_bfe_u32 v2, v1, 2, 2\nv_lshlrev_b32 v3, 5, v2\nv_and_b32 v5, 1, v4\nv_lshl_add_u32 v3, v5, 7, v3\nv_and_b32 v5, 3, v1\nv_lshl_add_u32 v3, v5, 3, v3")
        A("v_lshl_add_u32 v2, v4, 3, v2\nv_lshl_add_u32 v3, v2, 8, v3\nv_add_u32 v11, s75, v3")
    def ss5(A):
        A("v_lshlrev_b32 v3, 4, v30\nv_lshlrev_b32 v2, 21, v1\nv_and_b32 v2, 0xfe000000, v2\nv_add_u32 v12, v2, v3\ns_lshl1_add_u32 s76, s68, s71\ns_mul_i32 s97, s76, 10240")
        A("v_lshrrev_b32 v2, 4, v1\nv_mul_u32_u24 v13, 10240, v2\ns_sub_u32 s75, s97, 10240\nv_sub_u32 v13, s75, v13\nv_add_u32 v13, v13, v3\nv_mov_b32 v21, s96")
        for i in range(4):
            if i: A(f"v_subrev_u32 v{13+i}, {40960*i}, v13\nv_add_u32 v2, 4, v2")
            A(f"v_cmp_gt_u32 vcc, s76, v2\nv_cndmask_b32 v{17+i}, 0, v21, vcc")
    c_ld = []
    for nb in range(5): c_ld += [f"s_add_u32 s77, s99, {nb*20480}", ("vm", "cl", f"buffer_load_dwordx4 v[{32+4*nb}:{35+4*nb}], v66, s[20:23], s77 offen")]
    c_p = [("wvm", ["cl"])] + [("ds", None, f"ds_bpermute_b32 v{32+r}, v67, v{32+r}") for r in range(20)]
    c_f = ["v_mov_b32 v3, s96", ("wvm", ["cs"]), ("vm", None, "buffer_store_dword v3, v8, s[8:11], s101 offen sc1")]
    c_s = [("vm", "cs", f"buffer_store_dwordx4 v[{32+4*nb}:{35+4*nb}], v{28+(nb>>2)}, s[8:11], s100 offen offset:{(nb&3)*1024} sc1") for nb in range(5)]
    b_ld = [("vm", "bl", f"buffer_load_dwordx4 a[{112+4*i}:{115+4*i}], v54, s[24:27], s97 offen offset:{256*i}") for i in range(5)]
    b_c = [("wvm", ["bl"])]
    for i in range(5): b_c.append(f"{MF} v[56:59], v[68:71], a[{112+4*i}:{115+4*i}], " + ("v[56:59]" if i else "0"))
    b_c += ["s_nop 0"]*3
    b_c += ["v_add_f32_dpp v56, v56, v56 quad_perm:[1,0,3,2] row_mask:0xf bank_mask:0xf", "v_add_f32_dpp v56, v56, v56 quad_perm:[2,3,0,1] row_mask:0xf bank_mask:0xf",
            "v_mov_b32 v57, s96", ("vm", None, "buffer_store_dwordx2 v[56:57], v55, s[8:11], s98 offen sc1")]
    NM = "LR LI CA CB L16R L16I L32R L32I L512R L512I QR QI UR UI WR WI PR PI T0 T1".split()
    def Pm(cb): return dict(zip(NM, range(72+20*cb, 72+20*cb+20)))
    par_c = [("wvm", ["P"])] + lines("v_lshrrev_b32 v60, 4, v1\nv_cvt_f32_u32 v60, v60\nv_mul_f32 v60, 0x42000000, v60\nv_sub_f32 v61, 0x42c00000, v60\nv_mul_f32 v62, 4.0, v60")
    for cb in range(2):
        p = Pm(cb); i0 = 112 + 3*cb; zr, zt, t0, t1 = p['PR'], p['PI'], p['T0'], p['T1']
        def power(d, n):
            pre = [f"v_mul_f32 v{t0}, {n}, v{zr}", f"v_mul_f32 v{t1}, {n}, v{zt}"] if n else []
            a, b = (t0, t1) if n else (zr, zt)
            return pre + lines(f"v_exp_f32 v{t0}, v{a}\nv_fract_f32 v{t1}, v{b}\nv_cos_f32 v{d}, v{t1}\nv_sin_f32 v{d+1}, v{t1}\nv_mul_f32 v{d}, v{d}, v{t0}\nv_mul_f32 v{d+1}, v{d+1}, v{t0}")
        par_c += lines(f"""v_lshlrev_b32 v{i0+2}, 16, v{i0+2}
v_mul_f32 v{t0}, 0x3fb8aa3b, v{i0+2}
v_exp_f32 v{t0}, v{t0}
v_lshlrev_b32 v{i0}, 16, v{i0}
v_lshlrev_b32 v{i0+1}, 16, v{i0+1}
v_cvt_pk_bf16_f32 v{t0}, v{t0}, v{t0}
v_and_b32 v{t0}, 0xffff0000, v{t0}
v_mul_f32 v{zr}, v{t0}, v{i0}
v_mul_f32 v{zt}, v{t0}, v{i0+1}
v_mul_f32 v{zr}, 0x3fb8aa3b, v{zr}
v_mul_f32 v{zt}, 0.15915494, v{zt}""") + power(p['LR'], None)
        par_c += lines(f"""v_mul_f32 v{t1}, v{i0}, v{i0}
v_fmac_f32 v{t1}, v{i0+1}, v{i0+1}
v_rcp_f32 v{t1}, v{t1}
v_add_f32 v{t0}, -1.0, v{p['LR']}
v_mul_f32 v{p['CA']}, v{t0}, v{i0}
v_add_f32 v{t1}, v{t1}, v{t1}
v_fmac_f32 v{p['CA']}, v{p['LI']}, v{i0+1}
v_mul_f32 v{p['CB']}, v{p['LI']}, v{i0}
v_fma_f32 v{p['CB']}, -v{t0}, v{i0+1}, v{p['CB']}
v_mul_f32 v{p['CA']}, v{p['CA']}, v{t1}
v_mul_f32 v{p['CB']}, v{p['CB']}, v{t1}""")
        par_c += power(p['L16R'], "0x41800000") + power(p['L32R'], "0x42000000") + power(p['L512R'], "0x44000000") + power(p['QR'], "v60") + power(p['UR'], "v61") + power(p['WR'], "v62")
    ep_ld = lines(f"v_lshrrev_b32 v2, 3, v0\nv_lshlrev_b32 v2, 7, v2\nv_and_b32 v3, 7, v0\nv_lshl_add_u32 v2, v3, 3, v2\ns_lshl_b32 s75, s68, 12\ns_add_u32 s75, s75, {WS_STAT}") + [("vm", "ep", "buffer_load_dwordx2 v[52:53], v2, s[8:11], s75 offen sc1")]
    ep_ld += lines(f"v_lshrrev_b32 v2, 2, v30\nv_lshlrev_b32 v2, 7, v2\nv_and_b32 v3, 3, v30\nv_lshl_add_u32 v2, v3, 5, v2\ns_mov_b32 s75, {WS_CSB}\ns_mov_b32 s76, {WS_CSB+20480}")
    def CS(cb, im): return 112 + 4*cb + 2*im
    for cb in range(2):
        for im in range(2): ep_ld.append(("vm", "ep", f"buffer_load_dwordx2 v[{CS(cb,im)}:{CS(cb,im)+1}], v2, s[8:11], s{75+im} offen offset:{512*cb} sc1"))
    ep_tags = [53, 113, 115, 117, 119]
    ep_t = [("wvm", ["ep"])] + tagtest(ep_tags)
    ep_c = lines(f"""v_and_b32 v53, 0xffff0000, v52
v_rcp_f32 v53, v53
v_lshlrev_b32 v52, 16, v52
v_and_b32 v2, 15, v0
v_bfe_u32 v3, v0, 4, 1
v_lshl_add_u32 v2, v2, 1, v3
v_and_b32 v3, 0xe0, v0
v_add_u32 v2, v2, v3
v_mul_f32 v52, v52, v53
v_lshlrev_b32 v2, 2, v2
v_add_u32 v2, {S_SCR}, v2""") + [("ds", None, "ds_write_b32 v2, v53"), ("ds", None, "ds_write_b32 v2, v52 offset:1024")]
    ACC = 128
    def acc(b, c): return ACC + (c*8+b)*4
    def Xr(par, b): return par*48 + b*4
    def Br(par, c): return par*48 + 32 + c*4
    def reads(s):
        par = s & 1; sl = (s >> 1) % 3; L = []
        for c in range(4): L.append(("ds", None, f"ds_read_b128 a[{Br(par,c)}:{Br(par,c)+3}], v{120+2*sl+(s&1)} offset:{(c>>1)*8192 + (c&1)*2048}"))
        for b in range(8): L.append(("ds", None, f"ds_read_b128 a[{Xr(par,b)}:{Xr(par,b)+3}], v{22+2*sl+(s&1)} offset:{b*2048}"))
        return L
    M = {0: dma(2)}
    for s in range(1, 15): M[s] = dma((s+5) >> 1, ((s+1) & 1,))
    for k in range(5): M[2+k] = M[2+k] + [b_ld[k]]
    SW = int(OPT.get("sw", 6)); CK = int(OPT.get("ck", 16))
    M[14] += c_ld[:4]; M[15] = c_ld[4:]; M[18] = c_s
    for k, L in enumerate(chop(sum((w2load(i) for i in range(SW)), []), 20-CK)): M[CK+k] = M.get(CK+k, []) + L
    su = chop(cap(ss2), 3); pc = chop(par_c, 8); ps = chop(cap(ph2_setup), 2)
    S = {0: st_f, 1: cap(ss1), 2: p_ld + su[0], 3: su[1], 4: su[2], 5: pc[0], 6: pc[1], 7: pc[2], 8: pc[3], 9: b_c + ps[0], 10: ps[1] + pc[4], 11: pc[5], 12: ep_ld,
         13: pc[6], 14: pc[7], 15: cap(ss3), 16: ep_t, 17: ep_c + c_p, 18: cap(ss4), 19: cap(ss5)}
    S[CK-2] = fpoll(5) + S.get(CK-2, [])
    A.L.append(";@TOUCH S")
    A("s_branch SSM_a"); A.L.append(";@SEG SSM"); A.label("SSM_a")
    A.its(st_c[:1]); spread(A, st_c[1:], dma(1), 0, len(st_c) - 10)
    A.sync([("S", 0)]); stamp(A, 1)
    A.its(reads(0))
    for s in range(20):
        tags = [("S", (s+1) >> 1)] if (s < 19 and s & 1) else []
        if s == 17: gcheck(A, "SG", ep_ld, ep_tags)
        if s == CK: fcheck(A, "SP", 5)
        A.sync(tags, barrier=bool(s & 1))
        tick(A, s, 127)
        par = s & 1; mf = []
        for b in range(8):
            for c in range(4):
                r = acc(b, c); mf.append(f"{MF} v[{r}:{r+3}], a[{Xr(par,b)}:{Xr(par,b)+3}], a[{Br(par,c)}:{Br(par,c)+3}], " + (f"v[{r}:{r+3}]" if s else "0"))
        A.weave(mf, [(reads(s+1) if s < 19 else [], 0, 24), (M.get(s, []), 0, 31), (S.get(s, []), 1, 31)])
    A("s_waitcnt lgkmcnt(0)"); tick(A, 20, 127); tockdump(A, 20, 127, 0x40000)
    stamp(A, 2)
    def gre(cb, j): return acc(0, cb) + 2*j
    def gim(cb, j): return acc(0, 2+cb) + 2*j
    A(f"v_lshlrev_b32 v2, 7, v31\nv_add_u32 v2, {S_SCR}, v2")
    def rload(c):
        b = 32 + 16*(c & 1)
        return [("ds", ("R", c), f"ds_read_b128 v[{b+4*k+8*t}:{b+4*k+8*t+3}], v2 offset:{1024*t + 32*c + 16*k}") for t in range(2) for k in range(2)]
    ptick(A, 40, 126)
    e1 = rload(0) + rload(1)
    for j in range(16):
        c = j >> 2; b = 32 + 16*(c & 1) + 2*(j & 3)
        if j & 3 == 0: e1.append(("wds", [("R", c)]))
        for cb in range(2): e1 += [pk("mul", gre(cb,j), gre(cb,j), b), pk("mul", gim(cb,j), gim(cb,j), b)]
        for cb in range(2):
            p = Pm(cb); e1 += [pk("fma", gre(cb,j), b+8, ("b", CS(cb,0)), gre(cb,j), neg=(0,)), pk("fma", gim(cb,j), b+8, ("b", CS(cb,1)), gim(cb,j), neg=(0,))]
        if j & 3 == 3 and c + 2 < 4: e1 += rload(c+2)
        if j:
            for cb in range(2):
                p = Pm(cb); e1 += [pk("fma", gre(cb,j), gre(cb,j-1), ("b", p['LR']), gre(cb,j)), pk("fma", gim(cb,j), gim(cb,j-1), ("b", p['LR']), gim(cb,j))]
            for cb in range(2):
                p = Pm(cb); e1 += [pk("fma", gre(cb,j), gim(cb,j-1), ("b", p['LI']), gre(cb,j), neg=(1,)), pk("fma", gim(cb,j), gre(cb,j-1), ("b", p['LI']), gim(cb,j))]
    spread(A, e1, c_f, 150, 200)
    def cfma(dr, di, mr, mi, xr, xi, ar, ai):
        A(f"v_fma_f32 v{dr}, v{mr}, v{xr}, v{ar}\nv_fma_f32 v{di}, v{mr}, v{xi}, v{ai}\nv_fma_f32 v{dr}, -v{mi}, v{xi}, v{dr}\nv_fma_f32 v{di}, v{mi}, v{xr}, v{di}")
    ptick(A, 41, 126)
    def cmul(dr, di, mr, mi, xr, xi):
        A(f"v_mul_f32 v{dr}, v{mr}, v{xr}\nv_mul_f32 v{di}, v{mr}, v{xi}\nv_fma_f32 v{dr}, -v{mi}, v{xi}, v{dr}\nv_fmac_f32 v{di}, v{mi}, v{xr}")
    def gsum(regs, tmp):
        for sw in ("v_permlane16_swap_b32", "v_permlane32_swap_b32"):
            for k, r in enumerate(regs): A(f"v_mov_b32 v{tmp+k}, v{r}")
            for k, r in enumerate(regs): A(f"{sw} v{r}, v{tmp+k}")
            for k, r in enumerate(regs): A(f"v_add_f32 v{r}, v{r}, v{tmp+k}")
    for cb in range(2):
        p = Pm(cb); cfma(64+2*cb, 65+2*cb, p['L16R'], p['L16I'], gre(cb,15), gim(cb,15), gre(cb,15)+1, gim(cb,15)+1)
        cmul(56+4*cb, 58+4*cb, p['UR'], p['UI'], 64+2*cb, 65+2*cb)
    gsum([56, 58, 60, 62], 48)
    A("v_mov_b32 v57, s96\nv_mov_b32 v59, s96\nv_mov_b32 v61, s96\nv_mov_b32 v63, s96")
    for cb in range(2): A.it(("vm", None, f"buffer_store_dwordx4 v[{56+4*cb}:{59+4*cb}], v12, s[8:11], s97 offen offset:{256*cb} sc1"))
    ptick(A, 42, 126)
    A.its(sum((w2load(i) for i in range(SW, 7)), []))
    for d in range(3):
        A(f"v_subrev_u32 v2, {16*(d+1)}, v1\nv_lshlrev_b32 v2, 2, v2")
        for k in range(4): A(f"ds_bpermute_b32 v{40+4*d+k}, v2, v{64+k}")
    for cb in range(2): A(f"v_mov_b32 v{Pm(cb)['PR']}, 0\nv_mov_b32 v{Pm(cb)['PI']}, 0")
    A("s_waitcnt lgkmcnt(0)")
    for d in (2, 1, 0):
        A(f"s_lshl_b64 exec, -1, {16*(d+1)}")
        for cb in range(2):
            p = Pm(cb); a = 40+4*d+2*cb
            if d < 2: cfma(a, a+1, p['L32R'], p['L32I'], p['PR'], p['PI'], a, a+1)
            A(f"v_mov_b32 v{p['PR']}, v{a}\nv_mov_b32 v{p['PI']}, v{a+1}")
    A("s_mov_b64 exec, -1")
    for cb in range(2): A(f"v_mov_b32 v{64+2*cb}, v{gre(cb,15)}\nv_mov_b32 v{65+2*cb}, v{gim(cb,15)}")
    e2 = []
    for j in range(16):
        for cb in range(2):
            p = Pm(cb); r, i = gre(cb,j), gim(cb,j); t = 112+4*cb
            e2 += [pk("mul", t, i, ("b", p['CB'])), pk("mul", t+2, r, ("b", p['CB'])), pk("fma", r, r, ("b", p['CA']), t, neg=(2,)), pk("fma", i, i, ("b", p['CA']), t+2, neg=(1, 2))]
    lb = [("vm", "lb", f"buffer_load_dwordx4 v[{32+8*i+4*cb}:{35+8*i+4*cb}], v{13+i}, s[8:11], 0 offen offset:{256*cb} sc1") for i in range(4) for cb in range(2)]
    lt = ["v_xor_b32 v4, v17, v33"] + sum(([f"v_xor_b32 v5, v{17+(r-32)//8}, v{r}", "v_or_b32 v4, v4, v5"] for r in range(35, 64, 2)), []) + ["v_cmp_ne_u32 vcc, 0, v4"]
    LBP = int(OPT.get("lbp", 40))
    A.its(e2[:LBP] + lb + e2[LBP:])
    stamp(A, 3)
    A.its([("wvm", ["lb"])] + lt)
    A("s_cbranch_vccz SSM_go\ns_mov_b32 s7, 0x40000")
    A.label("SSM_poll")
    for x in lb: A(x[2])
    A("s_waitcnt vmcnt(0)"); A.ext(lt)
    A("s_sub_u32 s7, s7, 1\ns_cbranch_scc1 SSM_go\ns_cbranch_vccnz SSM_poll")
    A.label("SSM_go")
    A(f"s_cmp_lg_u32 s95, 0\ns_cbranch_scc1 EP_end\nv_lshlrev_b32 v2, 7, v1\ns_mov_b32 s7, 0x40000")
    A.label("EP_l")
    for k in range(4): A(f"s_mov_b32 s75, {WS_STAT+4+8192*k}\nbuffer_load_dword v{68+k}, v2, s[8:11], s75 offen sc1")
    A("s_waitcnt vmcnt(0)"); A.ext(tagtest([68, 69, 70, 71]))
    A(f"s_sub_u32 s7, s7, 1\ns_cbranch_scc1 EP_ok\ns_cbranch_vccnz EP_l")
    A.label("EP_ok")
    A(f"s_mov_b32 s75, {WS_EPOCH}\nv_mov_b32 v4, s96\nbuffer_store_dword v4, v8, s[8:11], s75 offen sc1")
    A.label("EP_end")
    A.reset()
    stamp(A, 4)
    for i in (2, 1, 0):
        for cb in range(2):
            p = Pm(cb); a = 32+8*i+4*cb; cfma(a, a+2, p['L512R'], p['L512I'], a+8, a+10, a, a+2)
    for cb in range(2):
        p = Pm(cb); cmul(56+2*cb, 57+2*cb, p['WR'], p['WI'], 32+4*cb, 34+4*cb)
    gsum([56, 57, 58, 59], 48)
    if TS >= 2: A("v_mov_b32 v25, v126")
    WP = 112
    for cb in range(2):
        p = Pm(cb); a = 56+2*cb; w = WP+8*cb
        cfma(p['PR'], p['PI'], p['QR'], p['QI'], a, a+1, p['PR'], p['PI'])
        cfma(64+2*cb, 65+2*cb, p['L16R'], p['L16I'], p['PR'], p['PI'], 64+2*cb, 65+2*cb)
        for k, (xr, xi) in enumerate(((p['PR'], p['PI']), (64+2*cb, 65+2*cb))):
            A(f"v_mul_f32 v{p['T0']}, v{p['CB']}, v{xi}\nv_mul_f32 v{p['T1']}, v{p['CB']}, v{xr}")
            A(f"v_fma_f32 v{w+k}, v{p['CA']}, v{xr}, -v{p['T0']}\nv_fma_f32 v{w+2+k}, -v{p['CA']}, v{xi}, -v{p['T1']}")
    IMG = 8192
    A("v_mov_b32 v31, s96")
    ptick(A, 43, 25)
    e3 = []; pw = []
    for j in range(16):
        cur = [WP+8*cb+4*(j & 1) for cb in range(2)]; nxt = [WP+8*cb+4*((j+1) & 1) for cb in range(2)]
        for cb in range(2):
            p = Pm(cb); e3.append(pk("mul", nxt[cb], cur[cb], ("b", p['LR']))); e3.append(pk("mul", nxt[cb]+2, cur[cb]+2, ("b", p['LR'])))
        for cb in range(2):
            p = Pm(cb); e3.append(pk("fma", nxt[cb], cur[cb]+2, ("b", p['LI']), nxt[cb])); e3.append(pk("fma", nxt[cb]+2, cur[cb], ("b", p['LI']), nxt[cb]+2, neg=(1,)))
        if pw: e3.append(pw.pop(0))
        for cb in range(2):
            e3.append(pk("add", gre(cb,j), gre(cb,j), nxt[cb])); e3.append(pk("add", gim(cb,j), gim(cb,j), nxt[cb]+2))
        if j & 1:
            k = (j >> 1) & 3
            if k == 3: e3 += [f"v_xor_b32 v{68+2*(j>>3)+hh}, {32*hh + 16*(j>>3)}, v10" for hh in range(2)]
            for cb in range(2):
                for im in range(2):
                    g = gim if im else gre
                    for hh in range(2):
                        r = (32+16*cb+8*im+4*hh) if j < 8 else (g(cb, 0) + 4*hh)
                        e3.append(f"v_cvt_pk_bf16_f32 v{r+k}, v{g(cb,j-1)+hh}, v{g(cb,j)+hh}")
                        if k == 3: (e3 if j == 15 else pw).append(("ds", None, f"ds_write_b128 v{68+2*(j>>3)+hh}, v[{r}:{r+3}] offset:{im*IMG + cb*4096}"))
    spread(A, e3, fpoll(4), 0, 40)
    ptick(A, 44, 25)
    A("s_waitcnt lgkmcnt(0)"); A.dd = A.nd
    for tb in range(8):
        for hh in range(2): A(f"v_xor_b32 v{112+2*tb+hh}, {32*tb + 16*hh}, v11")
        for im in range(2):
            r = ACCK + 4*(2*tb+im)
            for hh in range(2): A.it(("ds", ("tr", 2*tb+im), f"ds_read_b64_tr_b16 v[{r+2*hh}:{r+2*hh+1}], v{112+2*tb+hh} offset:{im*IMG + hh*1024}"))
    ptick(A, 45, 25)
    st = []
    for n in range(16):
        im, tb = n & 1, n >> 1; r = ACCK + 4*n
        st += [("wds", [("tr", n)]), ("vm", "H", f"buffer_store_dwordx4 v[{r}:{r+3}], v28, s[8:11], s{(84, 85, 86, 78)[im + 2*(tb >> 2)]} offen offset:{(tb&3)*1024} sc1")]
    fs = "buffer_store_dword v31, v8, s[8:11], s87 offen sc1"
    S1 = int(OPT.get("s1", 2)); S2 = int(OPT.get("s2", 5))
    A.its(st)
    stamp(A, 5)
    A.L.append(";@TOUCH P1")
    fcheck(A, "SC4", 4)
    A.its(sum((w2load(i) for i in range(7, 7+S1)), []) + [("wvm", ["H"]), ("vm", None, fs)] + fpoll(0) + sum((w2load(i) for i in range(7+S1, 7+S2)), []))
    fcheck(A, "SC0", 0)
    stamp(A, 6)
    for i in range(2): A.its(hload(i))
    ph2_head(A, "SC", dict(enumerate(chop(sum((w2load(i) for i in range(7+S2, 12)), []), 7))) if S2 < 5 else {})

def gen_ph2(A):
    A.L.append(";@SEG PH2"); A.label("PH2")
    A.reset(); A.nv = 200
    for t in JOIN[0]:
        if t in JOIN[1]: A.tv[t] = A.nv - min(JOIN[0][t], JOIN[1][t])
    g_r = []
    for nb in range(5):
        for w in range(4):
            r = ACCG + (nb*4+w)*4; g_r.append(("ds", ("gr", nb), f"ds_read_b128 v[{r}:{r+3}], v{23+(w>>1)} offset:{(w&1)*20480 + nb*1024}"))
    g_s = []
    for nb in range(5):
        r = ACCG + nb*16; g_s.append(("wds", [("gr", nb)]))
        for e in range(4): g_s += [f"v_add_f32 v{r+e}, v{r+e}, v{r+4+e}", f"v_add_f32 v{r+8+e}, v{r+8+e}, v{r+12+e}"]
        for e in range(4): g_s.append(f"v_add_f32 v{r+e}, v{r+e}, v{r+8+e}")
        g_s.append(("vm", "xs", f"buffer_store_dwordx4 v[{r}:{r+3}], v{28+(nb>>2)}, s[8:11], s4 offen offset:{(nb&3)*1024} sc1"))
    g_f = [("wvm", ["xs"]), ("vm", None, "buffer_store_dword v31, v8, s[8:11], s6 offen sc1")]
    PA = list(range(100, 112)) + list(range(160, 168))
    fin_c = [("wvm", ["fin"]), "v_and_b32 v11, 0xffff0000, v10", "v_rcp_f32 v11, v11", "v_lshlrev_b32 v10, 16, v10"]
    def rd(nb): return [("ds", ("fx", nb), f"ds_read_b64 v[{16+4*(nb&1)}:{17+4*(nb&1)}], v12 offset:{32*nb}"), ("ds", ("fx", nb), f"ds_read_b64 v[{(18, 26)[nb&1]}:{(19, 27)[nb&1]}], v14 offset:{3072+32*nb}")]
    fin_c += rd(0)
    for nb in range(5):
        if nb < 4: fin_c += rd(nb+1)
        fin_c.append(("wds", [("fx", nb)]))
        for h in range(2):
            x = 16+4*(nb&1)+h; d = (18, 26)[nb&1]+h
            fin_c += [f"v_lshlrev_b32 v2, 16, v{d}", f"v_and_b32 v{d}, 0xffff0000, v{d}", f"v_lshlrev_b32 v3, 16, v{x}", f"v_and_b32 v{x}, 0xffff0000, v{x}",
                      "v_mul_f32 v2, v2, v11", f"v_mul_f32 v{d}, v{d}, v11", "v_sub_f32 v4, v3, v10", f"v_sub_f32 v5, v{x}, v10", "v_fmac_f32 v3, v4, v2", f"v_fmac_f32 v{x}, v5, v{d}",
                      f"v_accvgpr_write_b32 a{PA[4*nb+2*h]}, v3", f"v_accvgpr_write_b32 a{PA[4*nb+2*h+1]}, v{x}"]
    fin_r = [f"v_accvgpr_read_b32 v{ACCG + (k>>2)*16 + 8 + (k&3)}, a{PA[k]}" for k in range(20)]
    gs = chop(g_s, 2); fc = chop(fin_c, 5)
    extra = {8: fc[0], 9: fc[1], 10: fc[2], 11: fc[3], 12: fc[4], 16: g_r, 17: gs[0], 18: gs[1],
             19: ["v_add_u32 v22, 81920, v22", "v_add_u32 v23, 81920, v23", "v_add_u32 v24, 81920, v24"] + fin_r, 20: fpoll(3)[:-1], 21: ["s_nop 0"] + g_f + ["s_nop 0"]*5 + fpoll(3)[-1:]}
    ph2_groups(A, GROUPS[7:], extra, {7: lambda: fcheck(A, "C2", 2)})
    if TS >= 2:
        A(f"s_waitcnt lgkmcnt(0)\nv_writelane_b32 v25, s88, {len(GROUPS)-1}\ns_memtime s[88:89]"); tockdump(A, len(GROUPS), 25, 0x80000)
    stamp(A, 7)
    fcheck(A, "C3", 3)
    for nb in range(5):
        r = ACCG + nb*16 + 12
        A.it(("vm", ("xl", nb), f"buffer_load_dwordx4 v[{r}:{r+3}], v{28+(nb>>2)}, s[8:11], s5 offen offset:{(nb&3)*1024} sc1"))
    A("s_waitcnt lgkmcnt(0)\ns_barrier")
    for nb in range(5):
        for w in range(4):
            r = ACCK + (nb*4+w)*4
            A(f"ds_read_b128 v[{r}:{r+3}], v{23+(w>>1)} offset:{(w&1)*20480 + nb*1024}")
    for nb in range(5):
        A(f"s_waitcnt lgkmcnt({min(15, 16-4*nb)})")
        r = ACCK + nb*16; o = ACCG + nb*16 + 8
        for k in (0, 2): A(pk("add", r+k, r+k, r+4+k)); A(pk("add", r+8+k, r+8+k, r+12+k))
        for k in (0, 2): A(pk("add", o+k, o+k, r+k))
        for k in (0, 2): A(pk("add", o+k, o+k, r+8+k))
    for nb in range(5):
        o = ACCG + nb*16 + 8
        A.it(("wvm", [("xl", nb)]))
        for k in (0, 2): A(pk("add", o+k, o+k, o+4+k))
        A.it(("vm", None, f"buffer_store_dwordx4 v[{o}:{o+3}], v13, s[20:23], 0 offen offset:{64*nb}"))
    if TS:
        A("s_add_u32 s94, s94, 0x10000"); stamp(A, 0)

def gen():
    A = E()
    A("s_cmp_ge_u32 s2, 256\ns_cbranch_scc1 K_end")
    if TS >= 2: A("s_memtime s[4:5]")
    A("s_load_dwordx16 s[36:51], s[0:1], 0\ns_load_dwordx16 s[52:67], s[0:1], 64")
    A("v_and_b32 v1, 63, v0\nv_lshrrev_b32 v2, 6, v0\ns_and_b32 s32, s2, 7\nv_readfirstlane_b32 s3, v2")
    A("s_lshr_b32 s33, s2, 3\ns_lshr_b32 s34, s32, 2\ns_and_b32 s35, s32, 3\ns_and_b32 s71, s3, 1\ns_lshr_b32 s72, s3, 1")
    if int(OPT.get("ipf", 1)):
        A("s_getpc_b64 s[6:7]"); A.label("K_pc")
        A("s_lshl2_add_u32 s76, s33, s3\ns_and_b32 s76, s76, 15\ns_lshl_b32 s76, s76, 13\nv_lshlrev_b32 v2, 7, v1\nv_add_u32 v2, s76, v2\nv_min_u32 v2, K_end-K_pc, v2")
        A("s_cmp_lt_u32 s33, 28\ns_cbranch_scc1 K_nopf\nglobal_load_dword v64, v2, s[6:7]"); A.label("K_nopf")
    A("s_lshl2_add_u32 s95, s2, s3\nv_lshrrev_b32 v62, 5, v1\nv_mul_u32_u24 v62, 1280, v62\nv_and_b32 v63, 31, v1\nv_lshl_add_u32 v62, v63, 3, v62")
    if TS:
        A("s_lshl2_add_u32 s94, s2, s3\ns_lshl_b32 s94, s94, 6\ns_waitcnt lgkmcnt(0)"); stamp(A, 0)
    A("s_mul_i32 s75, s95, 2560\ns_cmp_lt_u32 s33, 10\ns_cbranch_scc1 K_ssm")
    A("s_mul_i32 s35, s35, 22\ns_add_u32 s33, s33, s35\ns_sub_u32 s33, s33, 10\ns_and_b32 s68, s33, 7\ns_lshl_b32 s34, s34, 3\ns_add_u32 s68, s68, s34\ns_lshr_b32 s69, s33, 3")
    gen_ffn(A)
    A.L.append(";@SEG SPRO"); A.label("K_ssm")
    A("s_mul_i32 s35, s35, 10\ns_add_u32 s33, s33, s35\ns_and_b32 s68, s33, 3\ns_lshl2_add_u32 s68, s34, s68\ns_lshr_b32 s69, s33, 2")
    gen_ssm(A)
    gen_ph2(A)
    A.label("K_end"); A("s_endpgm")
    return A.L

def fin(L):
    seg = {"E": []}; cur = "E"
    for l in L:
        if l.startswith(";@SEG"): cur = l.split()[1]; seg[cur] = []
        else: seg[cur].append(l)
    def dispatch(name, chains, ret):
        o = []
        for w in range(3): o += [f"s_cmp_eq_u32 s3, {w}", f"s_cbranch_scc1 {chains[w]}"]
        return o + [f"s_branch {chains[3]}"]
    TCH = int(OPT.get("tch", 1))
    order = ["FA", "FB", "EP", "SSM", "PH2"]
    def expand(lines, heads):
        o = []
        for l in lines:
            if not l.startswith(";@TOUCH"): o.append(l); continue
            if not TCH: continue
            n = l.split()[1]
            o.append("s_mov_b64 exec, 0")
            if n == "F": o += ["s_cmp_ge_u32 s98, 108", "s_cbranch_scc1 TD_FB"] + dispatch(n, heads["FA"], None) + ["TD_FB:"] + dispatch(n, heads["FB"], None)
            elif n == "S": o += dispatch(n, heads["SSM"], None)
            else: o += [f"s_mov_b32 s35, {n[1]}"] + dispatch(n, heads["PH2"], None)
            if n == "P1": o += ["TR_P:", "s_cmp_eq_u32 s35, 0", "s_cbranch_scc1 TR_P0"]
            else: o.append(f"TR_{n}:")
            o.append("s_mov_b64 exec, -1")
        return o
    dummy = {k: ["K_end"]*4 for k in order}
    body = []
    for k in order: body += [(k, l) for l in expand(seg[k], dummy)]
    pro = expand(seg["E"] + seg["SPRO"], dummy)
    sz = sizes(pro + ["K_pad:"] + [l for _, l in body]); npro = sum(1 for l in pro if not (l.endswith(":") or l.startswith((".", ";"))))
    print("prologue bytes", sum(sz[:npro])); sz = sz[npro:]
    stubs = {k: [] for k in order}; pos = {}; addr = 0; page = -1; ii = 0; seen = set()
    for i, (k, l) in enumerate(body):
        if l.endswith(":") or l.startswith((".", ";")): continue
        if TCH and (addr >> 12 != page or k not in seen):
            page = addr >> 12; seen.add(k); name = f"TS_{len(pos)}"; pos[i] = name; stubs[k].append(name); addr += 4
        addr += sz[ii]; ii += 1
    print({k: len(v) for k, v in stubs.items()}, "bytes", addr)
    nxt = {}; heads = {}
    def chains(lst, tails):
        h = []
        for w in range(4):
            c = lst[w::4]
            for a, b in zip(c, c[1:] + [tails[w]]): nxt[a] = b
            h.append(c[0] if c else tails[w])
        return h
    ep = chains(stubs["EP"][::-1], ["TR_F"]*4)[::-1]
    heads["FA"] = chains(stubs["FA"], ep); heads["FB"] = chains(stubs["FB"], ep)
    heads["SSM"] = chains(stubs["SSM"], ["TR_S"]*4); heads["PH2"] = chains(stubs["PH2"], ["TR_P"]*4)
    body2 = []
    for k in order: body2 += expand(seg[k], heads)
    out = expand(seg["E"] + seg["SPRO"], heads) + [".p2align 12"]
    for i, l in enumerate(body2):
        if i in pos: out += [pos[i] + ":", f"s_cbranch_execz {nxt[pos[i]]}"]
        out.append(l)
    return out
def main():
    ref = open(f"cdna_kernels/{NAME}.s.ref").read().split("\n")
    hdr = [l for l in ref if l.startswith(";") and "@launch" not in l and "Override" not in l and "grid=ceil" not in l]
    out = "\n".join(hdr) + "\n"
    extra = ""
    if "spin" in OPT:
        wg, slot = [int(v) for v in OPT["spin"].split(",")]
        off = WS_TS + wg*4*64 + (slot*8 if slot < 8 else 0x10000)
        out += f"; @launch kernel={NAME}_kernel grid=(256,1,1) block=(256,1,1) lds=163840\n; @launch kernel=spin_kernel grid=(1,1,1) block=(64,1,1) lds=0\n"
        L = ["s_load_dwordx2 s[4:5], s[0:1], 120", "s_waitcnt lgkmcnt(0)", f"s_add_u32 s4, s4, {off}", "s_addc_u32 s5, s5, 0", "s_load_dwordx2 s[6:7], s[4:5], 0", "s_mov_b32 s12, 0x100000",
             "SP_l2:", "s_memrealtime s[8:9]", "s_waitcnt lgkmcnt(0)", "s_sub_u32 s10, s8, s6", "s_sub_u32 s12, s12, 1", "s_cbranch_scc1 SP_e", "s_cmp_lt_u32 s10, 8000", "s_cbranch_scc1 SP_l2", "SP_e:", "s_endpgm"]
        extra = kernel_text("spin_kernel", L) + kd("spin_kernel", 8, 0, 32)
    else: out += "; @launch grid=(256,1,1) block=(256,1,1) lds=163840\n"
    out += '.amdgcn_target "amdgcn-amd-amdhsa--gfx950"\n'
    out += kernel_text(NAME + "_kernel", fin(hazard_pass(gen(), "v" in OPT))) + kd(NAME + "_kernel", 256, 256, 102) + extra
    open(sys.argv[1], "w").write(out)
main()
```

```python
import sys
from asmlib import *
NAME = "parallel_sum__ssm_conv_s5__glu_gated_swiglu__prompt"
OPT = dict(a.split("=") for a in sys.argv[2:])
TS = int(OPT.get("ts", 0))
WS_AGG = 0; WS_EPOCH = 0x28000; WS_STAT = 0x30000; WS_FLG = 0x40000; WS_XF = 0x80000; WS_CF = 0xA0000; WS_WF = 0xB0000; WS_CSB = 0xC0000; WS_CS = 0xD0000
WS_H = 0x100000; WS_W2P = 0xE00000; WS_XCH = 0x1200000; WS_END = 0x1700000; WS_TS = 0x1800000; CS_HALF = 27648
SZ_X = 2048*640*2; SZ_B = 640*640*2; SZ_W = 640*1728*2; SZ_OUT = 2048*640*4
OOB = 0x7F000000
P = dict(x=36, lre=38, lim=40, bre=42, bim=44, cre=46, cim=48, ldt=50, dsk=52, w1=56, w3=58, w2=60, out=62, dbg=64, ws=66)
MF = "v_mfma_f32_16x16x32_bf16"

class E(Asm):
    def __init__(self): super().__init__(); self.reset()
    def reset(self): self.nv = 0; self.tv = {}; self.dv = 0; self.nd = 0; self.td = {}; self.dd = 0
    def vmw(self, tags):
        last = max(self.tv[t] for t in tags)
        if last <= self.dv: return None
        self.dv = last; return min(63, self.nv - last)
    def dsw(self, tags):
        last = max(self.td[t] for t in tags)
        if last <= self.dd: return None
        n = min(15, self.nd - last); self.dd = self.nd - n; return n
    def it(self, x):
        if isinstance(x, str): self(x)
        elif x[0] == "vm": self.nv += 1; self.tv[x[1]] = self.nv; self(x[2])
        elif x[0] == "ds": self.nd += 1; self.td[x[1]] = self.nd; self(x[2])
        elif x[0] == "wvm":
            n = self.vmw(x[1])
            if n is not None: self(f"s_waitcnt vmcnt({n})")
        elif x[0] == "wds":
            n = self.dsw(x[1])
            if n is not None: self(f"s_waitcnt lgkmcnt({n})")
        elif x[0] == "fn": x[1]()
    def its(self, L):
        for x in L: self.it(x)
    def sync(self, vtags, barrier=True):
        n = self.vmw(vtags) if vtags else None
        self.dd = self.nd
        self((f"s_waitcnt vmcnt({n}) lgkmcnt(0)" if n is not None else "s_waitcnt lgkmcnt(0)"))
        if barrier: self("s_barrier")
    def weave(self, mf, streams, fixed=None, cap=2):
        q = []
        for it, lo, hi in streams:
            if it: q.append([(lo + k*(hi-lo)//len(it), x) for k, x in enumerate(it)])
        def cost(x):
            if isinstance(x, str): return sum(2 if l.startswith(TRANS) else (4 if l.startswith("v_mfma") else 1) for l in x.split("\n"))
            return {"vm": 2, "ds": 1}.get(x[0], 0.5)
        debt = 0
        for i, m in enumerate(mf):
            self(m); room = cap - debt
            for x in (fixed[i] if fixed else []): self.it(x); room -= cost(x)
            left = sum(cost(x) for st in q for _, x in st); gaps = len(mf) - i
            room = max(room, left - cap*(gaps-1))
            if left > cap*gaps: room = max(cap, left/gaps)
            while room > 0:
                c = [st for st in q if st and st[0][0] <= i]
                if not c: break
                st = min(c, key=lambda t: t[0][0]); x = st.pop(0)[1]; self.it(x); room -= cost(x)
            debt = max(0, -room)
        for st in q:
            for _, x in st: self.it(x)
def lines(s): return [l.strip() for l in s.split("\n") if l.strip()]
def glue(L):
    out = []; on = False
    for x in L:
        if isinstance(x, str) and on and x.startswith(("s_cselect", "s_mov_b32")): out[-1] += "\n" + x; continue
        on = isinstance(x, str) and x.startswith(("s_cmp", "s_bitcmp"))
        out.append(x)
    return out
def cap(f):
    B = Asm(); f(B); return glue(B.L)
def chop(L, n):
    q = (len(L) + n - 1)//n
    return [L[k*q:(k+1)*q] for k in range(n)]
FE = int(OPT.get("fe", 2)); FF = int(OPT.get("ff", 0)); SE = int(OPT.get("se", 0))
def srd(A, d, lo, size):
    A(f"s_mov_b32 s{d}, s{lo}\ns_mov_b32 s{d+1}, s{lo+1}\ns_mov_b32 s{d+2}, {hex(size)}\ns_mov_b32 s{d+3}, 0x20000")
def srd_sel(A, d, lo0, lo1, size):
    A(f"s_cselect_b32 s{d}, s{lo0}, s{lo1}\ns_cselect_b32 s{d+1}, s{lo0+1}, s{lo1+1}\ns_mov_b32 s{d+2}, {hex(size)}\ns_mov_b32 s{d+3}, 0x20000")
def stamp(A, slot):
    if not TS: return
    A(f"s_memrealtime s[90:91]\ns_memtime s[88:89]\ns_waitcnt lgkmcnt(0)\ns_add_u32 s92, s94, {WS_TS + slot*8}")
    A.dd = A.nd
    A(f"v_mov_b32 v4, s90\nv_mov_b32 v5, s88\nv_mov_b32 v2, s92"); A.it(("vm", None, "global_store_dwordx2 v2, v[4:5], s[66:67]"))
def tick(A, idx, reg):
    if TS < 2: return
    if idx: A(f"v_writelane_b32 v{reg}, s88, {idx-1}")
    A("s_memtime s[88:89]")
def ptick(A, idx, reg):
    if TS < 2: return
    A(f"s_memtime s[88:89]\ns_waitcnt lgkmcnt(0)\nv_writelane_b32 v{reg}, s88, {idx}")
def tockdump(A, n, reg, area):
    if TS < 2: return
    A(f"s_waitcnt lgkmcnt(0)\nv_writelane_b32 v{reg}, s88, {n}\ns_lshl_b32 s92, s95, 8\ns_add_u32 s92, s92, {WS_TS + area}\nv_lshlrev_b32 v5, 2, v1\nv_add_u32 v5, s92, v5")
    A.it(("vm", None, f"global_store_dword v5, v{reg}, s[66:67]"))
def bc(n, which, hi=False):
    lo = [0]*n; h = [1]*n
    for w in which:
        if isinstance(w, tuple): lo[w[0]] = 1
        else: h[w] = 0
    s = ""
    if any(lo): s += " op_sel:[" + ",".join(map(str, lo)) + "]"
    s += " op_sel_hi:[" + ",".join(map(str, h)) + "]"
    return s
def B(r):
    return f"v[{r & ~1}:{(r & ~1)+1}]", (r & 1)
def pk(op, d, *src, neg=()):
    t = []; w = []
    src = list(src)
    if isinstance(src[1], tuple) and src[1][1] & 1:
        src[0], src[1] = src[1], src[0]; neg = tuple({0: 1, 1: 0}.get(n, n) for n in neg)
    for i, s in enumerate(src):
        if isinstance(s, tuple):
            x, hi = B(s[1]); t.append(x); w.append((i,) if hi else i)
        else:
            assert s % 2 == 0; t.append(f"v[{s}:{s+1}]")
    assert d % 2 == 0
    m = bc(len(src), w)
    if neg:
        nn = ",".join("1" if i in neg else "0" for i in range(len(src))); m += f" neg_lo:[{nn}] neg_hi:[{nn}]"
    return f"v_pk_{op}_f32 v[{d}:{d+1}], " + ", ".join(t) + m

def stats_job(R, scr):
    L0, U, T = R, R+10, R+30
    ld = [f"v_mov_b32 v9, {WS_EPOCH}", ("vm", "st", "global_load_dword v9, v9, s[66:67] sc1")]
    for i in range(5): ld.append(("vm", "st", f"buffer_load_dwordx2 v[{L0+2*i}:{L0+2*i+1}], v{T}, s[16:19], s75 offen offset:{256*i}"))
    c = [("wvm", ["st"])]
    for i in range(10): c += [f"v_lshlrev_b32 v{U+2*i}, 16, v{L0+i}", f"v_and_b32 v{U+2*i+1}, 0xffff0000, v{L0+i}"]
    def red(v, t):
        o = [f"v_add_f32 v{v}, v{v}, v{v+1}"]
        for r in (8, 4, 2, 1): o.append(f"v_add_f32_dpp v{v}, v{v}, v{v} row_ror:{r} row_mask:0xf bank_mask:0xf")
        o += [f"v_mov_b32 v{t}, v{v}", f"v_permlane16_swap_b32 v{v}, v{t}", f"v_add_f32 v{v}, v{v}, v{t}", f"v_mul_f32 v{v}, 0x3acccccd, v{v}"]
        return o
    c.append(pk("add", T, U, U+2))
    for i in range(2, 10): c.append(pk("add", T, T, U+2*i))
    c += red(T, T+1)
    for i in range(10): c.append(pk("add", U+2*i, U+2*i, ("b", T), neg=(1,)))
    c.append(pk("mul", T+2, U, U))
    for i in range(1, 10): c.append(pk("fma", T+2, U+2*i, U+2*i, T+2))
    c += red(T+2, T+3)
    c += lines(f"""v_cvt_pk_bf16_f32 v{T}, v{T}, v{T+2}
v_and_b32 v{T+2}, 0xffff0000, v{T}
v_add_f32 v{T+2}, 0x3727c5ac, v{T+2}
v_cvt_pk_bf16_f32 v{T+2}, v{T+2}, v{T+2}
v_and_b32 v{T+2}, 0xffff0000, v{T+2}
v_sqrt_f32 v{T+2}, v{T+2}
v_and_b32 v{T}, 0xffff, v{T}
v_cvt_pk_bf16_f32 v{T+2}, v{T+2}, v{T+2}
v_readfirstlane_b32 s96, v9
v_and_b32 v{T+2}, 0xffff0000, v{T+2}
v_or_b32 v{T}, v{T+2}, v{T}
v_lshrrev_b32 v{T+1}, 5, v0
v_lshlrev_b32 v{T+1}, 2, v{T+1}
v_add_u32 v{T+1}, {scr}, v{T+1}
s_add_u32 s96, s96, 1""")
    c.append(("ds", None, f"ds_write_b32 v{T+1}, v{T}"))
    f = lines(f"v_and_b32 v{T+1}, 7, v1\nv_lshlrev_b32 v{T+1}, 2, v{T+1}\nv_add_u32 v{T+1}, {scr}, v{T+1}") + [("ds", "stf", f"ds_read_b32 v{T}, v{T+1}")]
    f += lines(f"v_lshlrev_b32 v{T+2}, 21, v0\nv_and_b32 v{T+2}, 0xfe000000, v{T+2}\nv_lshl_add_u32 v{T+2}, v1, 3, v{T+2}\ns_lshl_b32 s75, s2, 7\ns_add_u32 s75, s75, {WS_STAT}")
    f += [("wds", ["stf"]), f"v_mov_b32 v{T+1}, s96", ("vm", None, f"buffer_store_dwordx2 v[{T}:{T+1}], v{T+2}, s[8:11], s75 offen sc1")]
    return ld, c, f
def tagtest(tags, exp="s96"):
    L = [f"v_xor_b32 v4, {exp}, v{tags[0]}"]
    for t in tags[1:]: L += [f"v_xor_b32 v5, {exp}, v{t}", "v_or_b32 v4, v4, v5"]
    return L + ["v_cmp_ne_u32 vcc, 0, v4"]
def gcheck(A, name, loads, tags):
    A(f"s_cbranch_vccz {name}_ok\ns_mov_b32 s7, 0x40000")
    A.label(f"{name}_l")
    for x in loads: A(x if isinstance(x, str) else x[2])
    A("s_waitcnt vmcnt(0)"); A.ext(tagtest(tags))
    A(f"s_sub_u32 s7, s7, 1\ns_cbranch_scc1 {name}_ok\ns_cbranch_vccnz {name}_l")
    A.label(f"{name}_ok")
def w2reg(i):
    i %= 12
    return 112 + 20*i if i < 7 else 20*(i-7)
def w2load(i):
    L = [f"s_add_u32 s79, s82, {i*5120}"]
    if i == 2: L += [f"s_cmp_eq_u32 s3, 3\ns_cselect_b32 s79, {hex(OOB)}, s79"]
    for nb in range(5):
        r = w2reg(i) + 4*nb
        L.append(("vm", ("w2", i), f"buffer_load_dwordx4 a[{r}:{r+3}], v{28+(nb>>2)}, s[8:11], s79 offen offset:{(nb&3)*1024} sc1"))
    return L


def spread(A, main, extra, lo=0, hi=None):
    sl = interleave(main, extra, lo, hi) if extra else [[] for _ in main]
    for i, x in enumerate(main):
        A.it(x)
        for y in sl[i]: A.it(y)
def sig_early(A, e, d, t):
    A(f"s_cmp_ge_u32 s{e}, 11\ns_cselect_b32 s{t}, 11, 0\ns_cselect_b32 s{d}, 48, 0\ns_sub_u32 s{t}, s{e}, s{t}\ns_add_u32 s{d}, s{d}, s{t}\ns_mul_i32 s{t}, s{t}, 43\ns_lshr_b32 s{t}, s{t}, 7\ns_mul_i32 s{t}, s{t}, 9\ns_add_u32 s{d}, s{d}, s{t}")
def sig_late(A, l, t):
    A(f"s_lshr_b32 s{t}, s{l}, 2\ns_lshl_b32 s{t}, s{t}, 3\ns_add_u32 s{l}, s{l}, s{t}\ns_add_u32 s{l}, s{l}, 3")
def sig_ssm(A, k, t):
    A(f"s_mul_i32 s{t}, s{k}, 52429\ns_lshr_b32 s{t}, s{t}, 18\ns_mul_i32 s{t}, s{t}, 7\ns_add_u32 s{k}, s{k}, s{t}\ns_add_u32 s{k}, s{k}, 7")
def tlb_touch():
    T = int(OPT.get("tlb", 0))
    if not T: return []
    return lines(f"v_mul_u32_u24 v6, {hex(T*1024)}, v0\nv_min_u32 v7, {SZ_OUT-4}, v6") + [("vm", None, "buffer_load_dword v6, v6, s[8:11], 0 offen sc1"), ("vm", None, "global_load_dword v7, v7, s[62:63]")]
def early_setup(A):
    srd(A, 8, P["ws"], WS_END)
    A("v_lshlrev_b32 v28, 4, v1\nv_add_u32 v29, 4096, v28")
    A("v_lshlrev_b32 v8, 20, v1\nv_and_b32 v8, 0xfe000000, v8\nv_lshl_add_u32 v8, v1, 2, v8")
def ph2_setup(A):
    A("s_and_b32 s28, s2, 1\ns_bfe_u32 s32, s2, 0x20001\ns_lshr_b32 s33, s2, 6\ns_lshl2_add_u32 s80, s32, s33\ns_bfe_u32 s81, s2, 0x30003\ns_lshl2_add_u32 s29, s28, s3")
    A(f"s_mul_i32 s32, s29, 12\ns_mul_i32 s33, s81, 96\ns_add_u32 s33, s33, s32\ns_mul_i32 s82, s33, 5120\ns_add_u32 s82, s82, {WS_W2P}")
    A(f"s_lshl1_add_u32 s33, s80, s28\ns_mul_i32 s34, s33, 96\ns_add_u32 s34, s34, s32\ns_lshl_b32 s83, s34, 12\ns_add_u32 s83, s83, {WS_H}")
    A(f"s_xor_b32 s33, s33, 1\ns_mul_i32 s34, s33, 96\ns_add_u32 s34, s34, s32\ns_lshl_b32 s30, s34, 12\ns_add_u32 s30, s30, {WS_H}")
    A(f"s_lshl_b32 s93, s80, 14\ns_add_u32 s93, s93, {WS_FLG}")
ACCG = 96; ACCK = 176
STEPS = [("G",0),("G",1),("G",2),("K",0),("K",1),("K",2)] + [("G",i) for i in range(3,12)] + [("K",i) for i in range(3,12)]
POOL = ["v32", "v48", "v64", "v80", "a112", "a128", "a144"]
HBUF = [0,1,2,3,0,1,2,3,0,1] + [4,5,6,2,3,0,1,4,5,6,2,3,0,1]
def Hr(n, tb):
    b = POOL[HBUF[n]]; r = int(b[1:]) + 4*tb; return f"{b[0]}[{r}:{r+3}]"
FN = {0: 6, 1: 8, 2: 3, 3: 1, 4: 5}
def fbase(g):
    if g == 0: return lines("s_mul_i32 s31, s28, 22\ns_mul_i32 s32, s3, 6\ns_add_u32 s31, s31, s32\ns_min_u32 s31, s31, 38\ns_lshl_b32 s31, s31, 7\ns_add_u32 s31, s31, s93")
    if g == 1: return lines("s_mul_i32 s31, s29, 172\ns_lshr_b32 s31, s31, 7\ns_lshl_b32 s31, s31, 9\ns_add_u32 s31, s31, s93\ns_add_u32 s31, s31, 5632")
    if g == 2: return lines("s_mul_i32 s31, s29, 5\ns_lshr_b32 s31, s31, 1\ns_lshl_b32 s31, s31, 7\ns_add_u32 s31, s31, s93\ns_add_u32 s31, s31, 11264")
    if g == 3: return lines(f"s_xor_b32 s31, s95, 4\ns_lshl_b32 s31, s31, 7\ns_add_u32 s31, s31, {WS_XF}")
    if g == 4: return lines(f"s_lshl_b32 s31, s81, 3\ns_add_u32 s31, s31, s29\ns_mul_i32 s31, s31, 640\ns_add_u32 s31, s31, {WS_CF}")
    return lines(f"s_mul_i32 s31, s29, 7680\ns_add_u32 s31, s31, {WS_WF}\ns_mul_i32 s32, s81, 5\ns_cmp_eq_u32 s3, 3\ns_cselect_b32 s33, 2, 63")
def faddr(g):
    if g < 5: return [f"v_min_u32 v9, {FN[g]-1}, v1", "v_lshlrev_b32 v9, 7, v9"]
    return lines("v_lshrrev_b32 v9, 1, v1\nv_min_u32 v9, 6, v9\nv_cmp_eq_u32 vcc, s33, v9\nv_and_b32 v2, 1, v1\nv_lshl_add_u32 v2, v2, 2, s32\nv_cndmask_b32 v9, v9, 1, vcc\nv_lshrrev_b32 v2, 3, v2\nv_mad_u32_u24 v9, v9, 5, v2\nv_lshlrev_b32 v9, 7, v9")
def fpoll(g): return glue(fbase(g)) + faddr(g) + [("vm", "fl", "buffer_load_dword v9, v9, s[8:11], s31 offen sc1")]
def fcheck(A, name, g, pre=None):
    A.it(("wvm", ["fl"]))
    A(f"v_cmp_ne_u32 vcc, s96, v9\ns_cbranch_vccz {name}_ok\ns_mov_b32 s7, 0x40000")
    if pre: A(pre)
    A.label(f"{name}_l")
    A.ext(fbase(g) + faddr(g))
    A(f"buffer_load_dword v9, v9, s[8:11], s31 offen sc1\ns_waitcnt vmcnt(0)\nv_cmp_ne_u32 vcc, s96, v9\ns_sub_u32 s7, s7, 1\ns_cbranch_scc1 {name}_ok\ns_cbranch_vccnz {name}_l")
    A.label(f"{name}_ok")
def hload(n):
    hf, i = STEPS[n]
    L = [f"s_add_u32 s77, s{30 if hf == 'G' else 83}, {i*4096}"]
    if i == 2: L += [f"s_cmp_eq_u32 s3, 3\ns_cselect_b32 s77, {hex(OOB)}, s77"]
    for tb in range(4): L.append(("vm", ("h", n), f"buffer_load_dwordx4 {Hr(n,tb)}, v28, s[8:11], s77 offen offset:{tb*1024} sc1"))
    return L
XS = 81920
def ph2_addr(A):
    srd(A, 24, P["dsk"], 1280)
    A("s_lshl1_add_u32 s32, s80, s28\ns_lshl_b32 s32, s32, 6\ns_lshl_b32 s33, s3, 4\ns_add_u32 s32, s32, s33\nv_lshrrev_b32 v2, 2, v1\nv_mul_u32_u24 v12, 160, v2\nv_add_u32 v2, s32, v2")
    A("v_lshrrev_b32 v15, 3, v2\nv_lshlrev_b32 v15, 7, v15\nv_and_b32 v3, 7, v2\nv_lshl_add_u32 v15, v3, 3, v15\nv_mul_u32_u24 v2, 2560, v2")
    A("s_mul_i32 s98, s81, 160\ns_mul_i32 s97, s32, 1280\ns_add_u32 s97, s97, s98\ns_lshl_b32 s33, s98, 1\nv_and_b32 v3, 3, v1\nv_lshl_add_u32 v13, v3, 4, v2\nv_add_u32 v13, s33, v13")
    A(f"s_mul_i32 s100, s3, 20480\ns_add_u32 s100, s100, {XS}\nv_lshl_add_u32 v14, v3, 3, s100\nv_add_u32 v12, v12, v14\ns_movk_i32 s33, 6554")
    for i in range(3):
        A(f"v_add_u32 v2, {64*i}, v1\nv_min_u32 v2, 159, v2\nv_mul_u32_u24 v3, s33, v2\nv_lshrrev_b32 v3, 16, v3\nv_mul_u32_u24 v3, 1120, v3\nv_lshl_add_u32 v{16+i}, v2, 4, v3")
    A("v_min_u32 v19, 144, v28")
def ph2_addr2(A):
    srd(A, 20, P["out"], SZ_OUT)
    A("v_lshrrev_b32 v2, 4, v1\nv_lshlrev_b32 v3, 2, v2\nv_xor_b32 v3, v3, v1\nv_lshlrev_b32 v3, 4, v3\ns_mul_i32 s75, s3, 20480\nv_add_u32 v22, s75, v3")
    A("v_and_b32 v2, 3, v1\nv_lshrrev_b32 v4, 2, v1\nv_lshlrev_b32 v5, 2, v2\nv_xor_b32 v4, v4, v5\nv_lshl_add_u32 v4, v2, 4, v4\nv_lshlrev_b32 v4, 4, v4\ns_mul_i32 s75, s3, 5120\nv_add_u32 v23, s75, v4\nv_add_u32 v24, 40960, v23")
    A(f"s_mul_i32 s4, s95, 5120\ns_add_u32 s4, s4, {WS_XCH}\ns_xor_b32 s5, s95, 4\ns_mul_i32 s5, s5, 5120\ns_add_u32 s5, s5, {WS_XCH}\ns_lshl_b32 s6, s95, 7\ns_add_u32 s6, s6, {WS_XF}")
def fin_loads():
    L = []
    for i in range(3): L += [f"s_add_u32 m0, s100, {1024*i}", ("vm", "fin", f"buffer_load_dwordx4 v{16+i}, s[16:19], s97 offen lds")]
    L += ["s_add_u32 m0, s100, 3072", ("vm", "fin", "buffer_load_dwordx4 v19, s[24:27], s98 offen lds"), f"s_mov_b32 s75, {WS_STAT}", ("vm", "fin", "buffer_load_dword v10, v15, s[8:11], s75 offen sc1")]
    return L
GROUPS = [[n] for n in range(13)] + [[13, 14]] + [[n] for n in range(15, 21)] + [[21, 22, 23]]
ISSUE = {0: (2, 3), 1: (4,), 2: (5,), 3: (6,), 4: (7,), 5: (8,), 6: (9,), 7: (10, 11), 8: (12,), 9: (13,), 10: (14,), 11: (15,), 12: (16,), 13: (17, 18, 19), 15: (20,), 16: (21,), 17: (22,), 18: (23,)}
for k_, ns_ in ISSUE.items():
    for n_ in ns_:
        prev_ = [m for m in range(n_) if HBUF[m] == HBUF[n_]]
        assert (not prev_ or prev_[-1] < k_) and (HBUF[n_] < 4 or k_ > 5)
def acc2(hf, nb, tb): return (ACCG if hf == "G" else ACCK) + (tb*5+nb)*4
def ph2_groups(A, groups, extra, pre={}, first={}):
    pend = []
    for g in groups:
        n0 = g[0]; hf = STEPS[n0][0]
        tags = [("h", n) for n in g]
        if n0 == 16: A.sync(tags)
        else: A.it(("wvm", tags))
        if TS >= 2 and n0 not in (15, 17, 18): A("s_waitcnt lgkmcnt(0)")
        if TS >= 2:
            if n0: A(f"v_writelane_b32 v25, s88, {GROUPS.index(g)-1}")
            A("s_memtime s[88:89]")
        if n0 in pre: pre[n0]()
        mf = []; wr = [[] for _ in range(20*len(g))]
        for nb in range(5):
            for tb in range(4):
                c = acc2(hf, nb, tb)
                for n in g:
                    w = w2reg(STEPS[n][1]) + 4*nb
                    mf.append(f"{MF} v[{c}:{c+3}], a[{w}:{w+3}], {Hr(n,tb)}, " + (f"v[{c}:{c+3}]" if STEPS[n][1] else "0"))
                if len(g) > 1:
                    pos = 3*(nb*4+tb) + 8
                    if int(OPT.get("w64", 0)): its = [(pos+k, ("ds", None, f"ds_write_b64 v22, v[{c+2*k}:{c+2*k+1}] offset:{(tb*5+nb)*1024+8*k}")) for k in range(2)]
                    else: its = [(pos, ("ds", None, f"ds_write_b128 v22, v[{c}:{c+3}] offset:{(tb*5+nb)*1024}"))]
                    for pos, it in its:
                        if pos < len(wr): wr[pos].append(it)
                        else: pend.append(it)
        st = [(first.get(n0, []) + sum((hload(n) for n in ISSUE.get(n0, ())), []), 0, len(mf) - 8), (extra.get(n0, []), 1, len(mf) - 1)]
        if len(g) == 1 and pend: st.append((pend, 0, 19)); pend = []
        A.weave(mf, st, fixed=wr)
    A.its(pend)
JOIN = []
def ph2_head(A, name, extra, pre={}):
    a1 = chop(cap(ph2_addr), 2); a2 = cap(ph2_addr2)
    e = {0: fpoll(1)[:-1], 1: a1[0], 2: a1[1], 3: fin_loads(), 4: fpoll(2)[:-1], 6: a2}
    for k, v in extra.items(): e[k] = v + e.get(k, [])
    p = dict(pre); p[3] = lambda: fcheck(A, name + "1", 1)
    ph2_groups(A, GROUPS[:7], e, p, {1: fpoll(1)[-1:], 5: fpoll(2)[-1:]})
    JOIN.append({t: A.nv - v for t, v in A.tv.items()})

W_SLOT = 20480; NWS = 4; X_BASE = NWS*W_SLOT; X_SLOT = 16384; F_SCR = X_BASE + 3*X_SLOT
def gen_ffn(A):
    import copy
    A("s_mul_i32 s70, s69, 160\ns_min_u32 s70, s70, 1568")
    A("s_lshl_b32 s32, s68, 7\ns_lshl_b32 s33, s3, 5\ns_add_u32 s32, s32, s33")
    A("v_lshrrev_b32 v2, 3, v1\nv_add_u32 v2, s32, v2\nv_mul_u32_u24 v2, 1280, v2\nv_lshrrev_b32 v3, 4, v1\nv_xor_b32 v3, v3, v1\nv_and_b32 v3, 7, v3\nv_lshlrev_b32 v3, 4, v3")
    A(f"v_add_u32 v15, v2, v3\nv_xor_b32 v3, 64, v3\nv_add_u32 v16, v2, v3\nv_add_u32 v16, {8*1280-1024}, v16\nv_add_u32 v17, {16*1280}, v15\nv_add_u32 v18, {16*1280}, v16")
    A(f"s_mul_i32 s73, s3, 5120\ns_lshl_b32 s74, s3, 12\ns_add_u32 s74, s74, {X_BASE}")
    A("s_mul_i32 s32, s71, 320\ns_lshl_b32 s33, s70, 1\ns_movk_i32 s34, 3277")
    for i in range(5):
        A(f"v_add_u32 v2, s32, v1\nv_add_u32 v2, {64*i}, v2\nv_mul_u32_u24 v3, s34, v2\nv_lshrrev_b32 v3, 16, v3")
        A("v_mul_u32_u24 v4, 20, v3\nv_sub_u32 v4, v2, v4\nv_lshrrev_b32 v5, 2, v3\nv_and_b32 v5, 2, v5\nv_xor_b32 v4, v4, v5")
        A(f"v_mul_u32_u24 v3, 3456, v3\nv_lshl_add_u32 v3, v4, 4, v3\nv_add_u32 v3, s33, v3\nv_subrev_u32 v{10+i}, {1024*(i&3)}, v3")
    def dmaW(s):
        L = [f"s_add_u32 m0, s73, {(s%NWS)*W_SLOT}", f"s_mov_b32 s77, {s*32*3456}"]
        for i in range(5):
            if i == 4: L.append(f"s_add_u32 m0, s73, {(s%NWS)*W_SLOT+4096}")
            L.append(("vm", ("W", s), f"buffer_load_dwordx4 v{10+i}, s[12:15], s77 offen offset:{1024*(i&3)} lds"))
        return L
    def dmaX(u, hs=(0, 1)):
        L = []
        for h in hs:
            L += [f"s_add_u32 m0, s74, {(u%3)*X_SLOT+2048*h}", f"s_movk_i32 s78, {u*128}"]
            for i in range(2): L.append(("vm", ("X", u), f"buffer_load_dwordx4 v{15+2*h+i}, s[16:19], s78 offen offset:{1024*i} lds"))
        return L
    st_ld, st_c, st_f = stats_job(32, X_BASE + 2*X_SLOT)
    A("s_waitcnt lgkmcnt(0)")
    srd(A, 16, P["x"], SZ_X)
    A.its(st_ld)
    A("s_cmp_eq_u32 s72, 0"); srd_sel(A, 12, P["w1"], P["w3"], SZ_W)
    A.its(dmaX(0) + dmaW(0))
    early_setup(A)
    A("v_lshrrev_b32 v2, 4, v1\nv_bfe_u32 v3, v1, 2, 2\nv_lshl_add_u32 v3, v2, 3, v3\nv_mul_u32_u24 v3, 320, v3")
    A("v_and_b32 v4, 3, v1\nv_lshl_add_u32 v3, v4, 3, v3\nv_and_b32 v4, 1, v2\nv_lshlrev_b32 v4, 5, v4")
    A("s_mul_i32 s32, s72, 192\nv_add_u32 v5, s32, v3\nv_add_u32 v20, v5, v4\nv_sub_u32 v21, v5, v4")
    A("s_lshl_b32 s32, s72, 5\ns_add_u32 s32, s32, 128\nv_xor_b32 v5, s32, v4\nv_add_u32 v22, v3, v5")
    for i in range(3): A(f"v_add_u32 v{23+i}, {3*W_SLOT}, v{20+i}")
    A("v_and_b32 v3, 15, v1\nv_lshrrev_b32 v4, 1, v3\nv_xor_b32 v4, v4, v2\nv_lshlrev_b32 v4, 4, v4\nv_lshl_add_u32 v3, v3, 7, v4")
    A(f"s_lshl_b32 s32, s71, 13\ns_add_u32 s32, s32, {X_BASE}\nv_add_u32 v26, s32, v3\nv_xor_b32 v27, 64, v26")
    def hs(A):
        A("s_lshl1_add_u32 s32, s69, s72"); sig_early(A, 32, 84, 33)
        A("s_mul_i32 s33, s69, 3\ns_cmp_eq_u32 s69, 10\ns_cselect_b32 s34, 1, 0\ns_sub_u32 s33, s33, s34\ns_lshl1_add_u32 s85, s72, s33\ns_add_u32 s86, s33, 1")
        sig_late(A, 85, 34); sig_late(A, 86, 34)
        A(f"s_lshl1_add_u32 s33, s68, s71\ns_mul_i32 s34, s33, 96")
        for r in (84, 85, 86): A(f"s_add_u32 s{r}, s{r}, s34\ns_lshl_b32 s{r}, s{r}, 12\ns_add_u32 s{r}, s{r}, {WS_H}")
        A(f"s_cmp_eq_u32 s32, 19\ns_cselect_b32 s85, {hex(OOB)}, s85")
        A(f"s_lshl1_add_u32 s87, s32, s71\ns_lshl_b32 s33, s68, 7\ns_add_u32 s87, s87, s33\ns_lshl_b32 s87, s87, 7\ns_add_u32 s87, s87, {WS_FLG}")
    late_setup = [cap(ph2_setup), []] + chop(cap(hs), 2)
    ep_ld = lines(f"s_mul_i32 s75, s72, 1728\ns_mul_i32 s76, s71, 80\ns_add_u32 s75, s75, s76\ns_add_u32 s75, s75, s70\ns_lshl_b32 s75, s75, 3\ns_add_u32 s75, s75, {WS_CS}\ns_add_u32 s76, s75, {CS_HALF}\nv_min_u32 v2, 624, v28")
    ep_ld += [("vm", "ep", "buffer_load_dwordx4 v[56:59], v2, s[8:11], s75 offen sc1"), ("vm", "ep", "buffer_load_dwordx4 v[60:63], v2, s[8:11], s76 offen sc1")]
    ep_ld += lines(f"v_and_b32 v2, 7, v1\nv_lshlrev_b32 v2, 3, v2\nv_and_b32 v3, 8, v1\nv_lshl_add_u32 v2, v3, 4, v2\ns_lshl1_add_u32 s75, s68, s71\ns_lshl_b32 s75, s75, 10\ns_add_u32 s75, s75, {WS_STAT}")
    for tb in range(4): ep_ld.append(("vm", "ep", f"buffer_load_dwordx2 v[{64+2*tb}:{65+2*tb}], v2, s[8:11], s75 offen offset:{256*tb} sc1"))
    ep_tags = [57, 59, 61, 63, 65, 67, 69, 71]
    ep_t = [("wvm", ["ep"])] + tagtest(ep_tags)
    ep_w = lines(f"v_add_f32 v56, v56, v60\nv_add_f32 v57, v58, v62\ns_lshl_b32 s75, s72, 10\ns_mul_i32 s76, s71, 320\ns_add_u32 s75, s75, s76\ns_add_u32 s75, s75, {F_SCR}\nv_min_u32 v2, 39, v1\nv_lshl_add_u32 v2, v2, 3, s75")
    ep_w += [("ds", None, "ds_write_b64 v2, v[56:57]")]
    ep_r = lines(f"v_and_b32 v2, 48, v1\ns_mul_i32 s75, s72, 384\ns_add_u32 s75, s75, {F_SCR}\nv_add_u32 v3, s75, v2\ns_lshl_b32 s75, s72, 6\ns_add_u32 s75, s75, {F_SCR+256}\nv_add_u32 v2, s75, v2")
    for j in range(10):
        pr, m = j >> 1, j & 1
        ep_r.append(("ds", None, f"ds_read_b128 v[{56+4*j}:{59+4*j}], v{2 if pr == 4 else 3} offset:{1024*m + (0 if pr == 4 else 64*pr)}"))
    ep_c = []
    for tb in range(4):
        ep_c += lines(f"v_lshlrev_b32 v{44+tb}, 16, v{64+2*tb}\nv_and_b32 v{52+tb}, 0xffff0000, v{64+2*tb}\nv_rcp_f32 v{48+tb}, v{52+tb}\nv_mul_f32 v{52+tb}, v{52+tb}, v{52+tb}\nv_mul_f32 v{48+tb}, 0xbfb8aa3b, v{48+tb}")
    ep_a = lines("v_lshrrev_b32 v2, 4, v1\nv_and_b32 v3, 1, v2\nv_lshlrev_b32 v3, 10, v3\nv_lshrrev_b32 v2, 1, v2\nv_lshl_add_u32 v3, v2, 8, v3")
    ep_a += lines("v_and_b32 v2, 15, v1\nv_lshl_add_u32 v3, v2, 4, v3\ns_lshl_b32 s75, s72, 9\nv_add_u32 v36, s75, v3\nv_mov_b32 v31, s96\ns_add_u32 s99, s87, 5632")
    ACC = 96
    def acc(j, tb): return ACC + (j*4+tb)*4
    def Wr(par, j): return par*56 + j*4
    def Xr(par, tb): return par*56 + 40 + tb*4
    def reads(s):
        par = s & 1; L = []; sl = s % NWS; hi = 3 if sl >= 3 else 0; so = (sl - hi)*W_SLOT
        for tb in range(4): L.append(("ds", None, f"ds_read_b128 a[{Xr(par,tb)}:{Xr(par,tb)+3}], v{26+(s&1)} offset:{((s>>1)%3)*X_SLOT + tb*2048}"))
        for j in range(10):
            pr, m = j >> 1, j & 1; ar = 22 if pr == 4 else 20 + (pr & 1); co = 0 if pr == 4 else pr*32
            for hh in range(2): L.append(("ds", None, f"ds_read_b64_tr_b16 a[{Wr(par,j)+2*hh}:{Wr(par,j)+2*hh+1}], v{ar+hi} offset:{so + m*10240 + hh*1280 + co}"))
        return L
    wl = chop(sum((w2load(i) for i in range(7)), []), 9)
    def loop(role, mem, side):
        M = {0: dmaW(3), 1: dmaX(2) + dmaW(4), 2: dmaW(5), 3: dmaX(3) + dmaW(6), 4: dmaW(7) + dmaW(8), 5: dmaX(4) + dmaW(9), 6: dmaW(10) + dmaX(5)}
        for s in range(7, 16): M[s] = dmaW(s+4) + (dmaX((s+5) >> 1, ((s+1) & 1,)) if s < 15 else [])
        if "flat" in OPT:
            F = int(OPT["flat"])
            M = {s: (dmaW(s+3) if s+3 < 20 else []) + (dmaX((s+4) >> 1, (s & 1,)) if (s+4) >> 1 < 10 else []) for s in range(20)}
        for s, L in mem.items(): M[s] = M[s] + ([x if isinstance(x, str) else (x[0], x[1], x[2].replace("s77 offen", "s76 offen")) for x in L] if "noside" in OPT else L)
        M[15] += wl[0]
        for s in range(16, 20): M[s] = M.get(s, []) + wl[2*s-31] + wl[2*s-30]
        S = dict(side)
        for k, L in {5: late_setup[0], 6: late_setup[2], 8: late_setup[3], 10: tlb_touch(), 11: ep_a, 12: fpoll(5), 14: ep_ld, 16: ep_t, 17: ep_w + ep_c, 18: ep_r}.items():
            S[k] = S.get(k, []) + L
        A.sync([("X", 0), ("W", 0)]); stamp(A, 1)
        A.its(reads(0))
        for s in range(20):
            tags = [("W", s+1), ("X", (s+1) >> 1)] if s < 19 else []
            if s == 15: fcheck(A, role + "P", 5)
            if s == 17: gcheck(A, role + "G", ep_ld, ep_tags)
            A.sync(tags)
            tick(A, s, 19)
            par = s & 1; mf = []
            for j in range(10):
                for tb in range(4):
                    c = acc(j, tb); mf.append(f"{MF} v[{c}:{c+3}], a[{Wr(par,j)}:{Wr(par,j)+3}], a[{Xr(par,tb)}:{Xr(par,tb)+3}], " + (f"v[{c}:{c+3}]" if s else "0"))
            A.weave(mf, [(reads(s+1) if s < 19 else [], 0, 30), (M.get(s, []), 0, 39), (S.get(s, []), 1, 39)])
    A("s_mul_i32 s98, s68, 11\ns_add_u32 s98, s98, s69")
    A.L.append(";@TOUCH F")
    A.its(st_c[:1])
    spread(A, st_c[1:], dmaW(1) + dmaX(1) + dmaW(2), 0, len(st_c) - 10)
    A("s_mov_b32 s32, s98\ns_cmp_ge_u32 s98, 108\ns_cbranch_scc1 FB_a\ns_branch FA_a")
    snap = (A.nv, dict(A.tv), A.dv, A.nd, dict(A.td), A.dd)
    A.L.append(";@SEG FA"); A.label("FA_a")
    def fa1(A):
        A("s_lshr_b32 s33, s32, 1\ns_and_b32 s34, s32, 1\ns_cmp_lt_u32 s33, 27"); srd_sel(A, 24, P["w1"], P["w3"], SZ_W)
        A(f"s_cselect_b32 s35, 0, 27\ns_sub_u32 s35, s33, s35\ns_lshl_b32 s35, s35, 7\ns_lshl2_add_u32 s97, s34, s3\ns_mul_i32 s97, s97, {80*3456}\ns_add_u32 s97, s97, s35")
        A(f"s_lshl_b32 s98, s33, 9\ns_mul_i32 s34, s34, {CS_HALF}\ns_add_u32 s98, s98, s34\ns_add_u32 s98, s98, {WS_CS}\ns_cmp_eq_u32 s3, 0\ns_cselect_b32 s98, s98, {hex(OOB)}")
        A("v_lshrrev_b32 v2, 3, v1\nv_mul_u32_u24 v2, 3456, v2\nv_and_b32 v3, 7, v1\nv_lshl_add_u32 v30, v3, 4, v2")
    def fa2(A):
        A("v_and_b32 v2, 15, v1\nv_and_b32 v3, 1, v1\nv_lshlrev_b32 v3, 4, v3\nv_mov_b32 v4, 0x3f80\nv_lshlrev_b32 v3, v3, v4\nv_lshrrev_b32 v2, 1, v2")
        for r in range(4): A(f"v_cmp_eq_u32 vcc, {r}, v2\nv_cndmask_b32 v{72+r}, 0, v3, vcc")
        A(f"v_and_b32 v2, 7, v1\nv_lshlrev_b32 v2, 5, v2\nv_and_b32 v3, 16, v1\nv_add_u32 v2, v2, v3\ns_lshl_b32 s75, s3, 8\ns_add_u32 s75, s75, {F_SCR}\nv_add_u32 v2, s75, v2\nv_and_b32 v3, 32, v1\nv_lshl_add_u32 v80, v3, 5, v2")
        A(f"v_lshlrev_b32 v82, 2, v1\nv_add_u32 v81, {F_SCR}, v82\nv_lshlrev_b32 v82, 3, v1")
    cs_ld = []
    for i in range(10): cs_ld += [f"s_add_u32 s77, s97, {i*8*3456}", ("vm", "csl", f"buffer_load_dwordx4 a[{112+4*i}:{115+4*i}], v30, s[24:27], s77 offen")]
    cs_c = [("wvm", ["csl"])]
    for i in range(10): cs_c.append(f"{MF} v[76:79], v[72:75], a[{112+4*i}:{115+4*i}], " + ("v[76:79]" if i else "0"))
    cs_c += ["s_nop 0"]*2
    for e in range(4): cs_c.append(f"v_add_f32_dpp v{76+e}, v{76+e}, v{76+e} row_ror:8 row_mask:0xf bank_mask:0xf")
    cs_c.append(("ds", None, "ds_write_b128 v80, v[76:79]"))
    cs_f = [("ds", "csf", f"ds_read_b32 v{72+w}, v81 offset:{256*w}") for w in range(4)]
    cs_f += [("wds", ["csf"]), "v_add_f32 v72, v72, v73", "v_add_f32 v74, v74, v75", "v_mov_b32 v73, s96", "v_add_f32 v72, v72, v74", ("vm", None, "buffer_store_dwordx2 v[72:73], v82, s[8:11], s98 offen sc1")]
    A0 = int(OPT.get("a0", 2))
    if "noside" in OPT: A(f"s_mov_b32 s76, {hex(OOB)}")
    loop("FA", {A0+k: cs_ld[4*k:4*k+4] for k in range(5)}, {0: cap(fa1) + st_f, 2: cap(fa2), A0+7: cs_c, A0+8: cs_f})
    A("s_branch FFN_EP")
    A.nv, A.tv, A.dv, A.nd, A.td, A.dd = snap
    A.L.append(";@SEG FB"); A.label("FB_a")
    SO = (4, 5, 6, 97, 24, 25, 26, 27)
    def fb1(A):
        srd(A, 20, P["w2"], SZ_W)
        A("s_sub_u32 s34, s32, 108\ns_lshl2_add_u32 s32, s34, s3\ns_mul_i32 s34, s32, 52429\ns_lshr_b32 s34, s34, 18\ns_mul_i32 s33, s34, 5\ns_sub_u32 s33, s32, s33")
        A(f"s_mul_i32 s99, s34, 40960\ns_lshl_b32 s35, s33, 8\ns_add_u32 s99, s99, s35\ns_lshl_b32 s101, s3, 13\ns_add_u32 s101, s101, {F_SCR}")
        A(f"v_lshrrev_b32 v2, 4, v1\nv_mul_u32_u24 v30, 1280, v2\nv_and_b32 v3, 15, v1\nv_lshl_add_u32 v30, v3, 4, v30")
    def fb2(A):
        A("s_mul_i32 s35, s34, 52429\ns_lshr_b32 s35, s35, 18\ns_mul_i32 s75, s35, 5\ns_sub_u32 s75, s34, s75\ns_sub_u32 s76, s34, 49\ns_cmp_ge_u32 s34, 49\ns_cselect_b32 s35, 10, s35\ns_cselect_b32 s75, s76, s75")
        A("s_cmp_eq_u32 s75, 3\ns_cselect_b32 s76, 1, 0\ns_lshl1_add_u32 s76, s35, s76"); sig_early(A, 76, 100, 79)
        A("s_mul_i32 s76, s35, 3\ns_lshr_b32 s79, s75, 1\ns_add_u32 s76, s76, s79\ns_cmp_eq_u32 s35, 10\ns_cselect_b32 s79, 1, 0\ns_sub_u32 s76, s76, s79"); sig_late(A, 76, 79)
        A("s_lshr_b32 s79, 9, s75\ns_bitcmp1_b32 s79, 0\ns_cselect_b32 s100, s100, s76")
        A(f"s_mul_i32 s98, s100, 5\ns_add_u32 s98, s98, s33\ns_lshl_b32 s98, s98, 7\ns_add_u32 s98, s98, {WS_WF}")
        A(f"s_mul_i32 s100, s100, 5120\ns_lshl_b32 s79, s33, 13\ns_add_u32 s100, s100, s79\ns_add_u32 s100, s100, {WS_W2P}")
        A(f"s_cmp_lt_u32 s32, 270\ns_cselect_b32 s100, s100, {hex(OOB)}\ns_cselect_b32 s98, s98, {hex(OOB)}")
        A("s_cmp_eq_u32 s75, 2\ns_cselect_b32 s75, 8, 4\ns_cselect_b32 s76, 1, 4\ns_lshl_b32 s76, s76, 10")
        A(f"v_lshrrev_b32 v2, 4, v1\nv_mul_u32_u24 v2, s75, v2\nv_bfe_u32 v3, v1, 2, 2\nv_add_u32 v2, v2, v3\nv_lshlrev_b32 v2, 8, v2\nv_and_b32 v3, 3, v1\nv_lshl_add_u32 v2, v3, 3, v2")
        A(f"v_add_u32 v80, s101, v2\nv_add_u32 v81, s76, v80\ns_mul_i32 s33, s33, {8*52429}")
        for k in range(8): A(f"s_add_u32 s79, s33, {k*52429}\ns_lshr_b32 s79, s79, 18\ns_mul_i32 s79, s79, 486400\ns_add_u32 s{SO[k]}, s100, s79")
    w2_ld = []
    for i in range(8): w2_ld += [f"s_add_u32 m0, s101, {1024*i}", f"s_add_u32 s77, s99, {5120*i}", ("vm", "w2l", "buffer_load_dwordx4 v30, s[20:23], s77 offen lds")]
    w2_c = [("wvm", ["w2l"])]
    for k in range(8):
        for hh in range(2): w2_c.append(("ds", "w2t", f"ds_read_b64_tr_b16 a[{152+4*k+2*hh}:{153+4*k+2*hh}], v{80+hh} offset:{32*k}"))
    w2_s = [("vm", "side", f"buffer_store_dwordx4 a[{152+4*k}:{155+4*k}], v{28+(k>>2)}, s[8:11], s{SO[k]} offen offset:{(k&3)*1024} sc1") for k in range(8)]
    f2 = chop(cap(fb2), 3)
    fb1(A)
    loop("FB", {0: w2_ld[:15], 1: w2_ld[15:]}, {0: st_f + f2[0], 1: f2[1], 2: f2[2], 3: w2_c, 4: w2_s, 7: ["v_mov_b32 v3, s96", ("wvm", ["side"]), ("vm", None, "buffer_store_dword v3, v8, s[8:11], s98 offen sc1")]})
    A.L.append(";@SEG EP"); A.label("FFN_EP"); A.reset()
    A("s_waitcnt lgkmcnt(0)"); tick(A, 20, 19); tockdump(A, 20, 19, 0x40000)
    stamp(A, 2)
    A("s_nop 6")
    T = 32
    def silu(pr, tb, dst):
        g, u = acc(2*pr, tb), acc(2*pr+1, tb); cg, cu = 56+8*pr, 60+8*pr
        L = []
        for k in (0, 2): L.append(pk("fma", g+k, cg+k, ("b", 44+tb), g+k, neg=(1,)))
        for k in (0, 2): L.append(pk("mul", T+k, g+k, ("b", 48+tb)))
        for k in (0, 2): L.append(pk("fma", u+k, cu+k, ("b", 44+tb), u+k, neg=(1,)))
        for e in range(4): L.append(f"v_exp_f32 v{T+e}, v{T+e}")
        for k in (0, 2): L.append(pk("mul", g+k, g+k, u+k))
        for k in (0, 2): L.append(pk("fma", T+k, T+k, ("b", 52+tb), ("b", 52+tb)))
        for e in range(4): L.append(f"v_rcp_f32 v{T+e}, v{T+e}")
        for k in (0, 2): L.append(pk("mul", g+k, g+k, T+k))
        L += [f"v_cvt_pk_bf16_f32 v{dst}, v{g}, v{g+1}", f"v_cvt_pk_bf16_f32 v{dst+1}, v{g+2}, v{g+3}"]
        return L
    ep = []
    EF = int(OPT.get("ef", 2))
    for fr in range(2):
        for tb in range(4):
            o = acc(4*fr+1, tb)
            ep += silu(2*fr, tb, o) + silu(2*fr+1, tb, o+2)
            if fr == 1 and tb == EF: ep += [("wvm", [("H", 0)]), ("vm", None, "buffer_store_dword v31, v8, s[8:11], s87 offen sc1")]
            ep.append(("vm", ("H", fr), f"buffer_store_dwordx4 v[{o}:{o+3}], v28, s[8:11], s{84+fr} offen offset:{tb*1024} sc1"))
    for tp in range(2):
        o = acc(9, 2*tp)
        ep += silu(4, 2*tp, o) + silu(4, 2*tp+1, o+2)
        ep += [f"v_permlane16_swap_b32 v{o}, v{o+2}", f"v_permlane16_swap_b32 v{o+1}, v{o+3}"]
        if tp == 1: ep += fpoll(0)
        ep.append(("vm", ("H", 2), f"buffer_store_dwordx4 v[{o}:{o+3}], v36, s[8:11], s86 offen offset:{tp*2048} sc1"))
    A.its(fpoll(4)); A.its(ep[:90]); fcheck(A, "FC4", 4)
    spread(A, ep[90:], sum((w2load(i) for i in range(7, 7+FE)), []), 0, 280)
    stamp(A, 3)
    A.L.append(";@TOUCH P0")
    FBUB = int(OPT.get("fb", 3))
    A.its(sum((w2load(i) for i in range(7+FE, 7+FE+FBUB)), []))
    fs = "buffer_store_dword v31, v8, s[8:11], s99 offen sc1"
    fcheck(A, "FC0", 0, pre=f"s_waitcnt vmcnt({5*FBUB})\n" + fs)
    stamp(A, 6)
    for i in range(2): A.its(hload(i))
    A.its([("wvm", [("H", 2)]), ("vm", None, fs)])
    ph2_head(A, "FC", dict(enumerate(chop(sum((w2load(i) for i in range(7+FE+FBUB, 12)), []), 7))) if FE+FBUB < 5 else {})
    A("s_branch PH2")

S_SLOT = 49152; S_SCR = 3*S_SLOT
def gen_ssm(A):
    A.reset()
    A("s_lshl_b32 s32, s68, 8\ns_lshl_b32 s33, s72, 7\ns_add_u32 s32, s32, s33\ns_lshl_b32 s33, s71, 3\ns_add_u32 s32, s32, s33")
    A("v_and_b32 v2, 32, v1\nv_bfe_u32 v3, v1, 3, 1\nv_lshl_add_u32 v2, v3, 4, v2\nv_bfe_u32 v3, v1, 4, 1\nv_add3_u32 v2, v2, v3, s32\nv_mul_u32_u24 v2, 1280, v2")
    A("v_lshrrev_b32 v3, 4, v1\nv_xor_b32 v3, v3, v1\nv_and_b32 v3, 7, v3\nv_lshlrev_b32 v3, 4, v3\nv_xor_b32 v4, 64, v3\nv_add_u32 v5, v2, v3\nv_add_u32 v6, v2, v4")
    for ii in range(8): A(f"v_add_u32 v{10+ii}, {(64*(ii&1) + 2*(ii>>1))*1280 - 1024*(ii&3)}, v{5+(ii&1)}")
    A("s_lshl_b32 s32, s69, 6\ns_lshl_b32 s33, s71, 5\ns_add_u32 s32, s32, s33")
    A("v_lshrrev_b32 v2, 3, v1\nv_add_u32 v2, s32, v2\nv_mul_u32_u24 v2, 1280, v2\nv_add_u32 v5, v2, v3\nv_add_u32 v6, v2, v4")
    for i in range(4): A(f"v_add_u32 v{18+i}, {8*i*1280 - 1024*i}, v{5+(i&1)}")
    A("s_lshl_b32 s73, s3, 13\ns_lshl_b32 s74, s3, 12\ns_add_u32 s74, s74, 32768\ns_waitcnt lgkmcnt(0)")
    srd(A, 16, P["x"], SZ_X)
    st_ld, st_c, st_f = stats_job(32, S_SCR)
    A.its(st_ld)
    A("s_cmp_eq_u32 s72, 0"); srd_sel(A, 12, P["bre"], P["bim"], SZ_B)
    def dma(u, hs=(0, 1)):
        b = (u % 3)*S_SLOT; L = []
        for h in hs:
            L += [f"s_add_u32 m0, s73, {b+4096*h}", f"s_movk_i32 s78, {u*128}"]
            for i in range(4): L.append(("vm", ("S", u), f"buffer_load_dwordx4 v{10+4*h+i}, s[16:19], s78 offen offset:{1024*i} lds"))
            L.append(f"s_add_u32 m0, s74, {b}")
            for i in range(2): L.append(("vm", ("S", u), f"buffer_load_dwordx4 v{18+2*h+i}, s[12:15], s78 offen offset:{1024*(2*h+i)} lds"))
        return L
    A.its(dma(0))
    p_ld = lines("s_lshl_b32 s32, s69, 6\ns_lshl_b32 s33, s72, 5\ns_add_u32 s32, s32, s33\nv_and_b32 v2, 15, v1\nv_add_u32 v30, s32, v2\nv_lshlrev_b32 v2, 1, v30")
    for cb in range(2):
        for q, sp in enumerate((P["lre"], P["lim"], P["ldt"])): p_ld.append(("vm", "P", f"global_load_ushort v{112+3*cb+q}, v2, s[{sp}:{sp+1}] offset:{32*cb}"))
    early_setup(A)
    A("v_lshrrev_b32 v2, 4, v1\nv_and_b32 v3, 15, v1\nv_lshrrev_b32 v4, 1, v3\nv_xor_b32 v4, v4, v2\nv_lshlrev_b32 v4, 4, v4\nv_lshl_add_u32 v3, v3, 7, v4")
    A("s_lshl_b32 s32, s71, 14\ns_lshl_b32 s33, s72, 12\ns_add_u32 s33, s33, 32768")
    A("v_add_u32 v22, s32, v3\nv_xor_b32 v23, 64, v22\nv_add_u32 v120, s33, v3\nv_xor_b32 v121, 64, v120")
    for sl in (1, 2):
        for ks in range(2): A(f"v_add_u32 v{22+2*sl+ks}, {sl*S_SLOT}, v{22+ks}\nv_add_u32 v{120+2*sl+ks}, {sl*S_SLOT}, v{120+ks}")
    def ss1(A):
        A("s_mul_i32 s32, s68, 10\ns_add_u32 s32, s32, s69\ns_lshl2_add_u32 s32, s32, s3\ns_cmp_lt_u32 s32, 160"); srd_sel(A, 24, P["bre"], P["bim"], SZ_B)
        A(f"s_cselect_b32 s33, 0, 160\ns_sub_u32 s33, s32, s33\ns_mul_i32 s97, s33, 5120\ns_lshl_b32 s98, s32, 7\ns_add_u32 s98, s98, {WS_CSB}")
        A("v_bfe_u32 v2, v1, 2, 2\nv_mul_u32_u24 v2, 1280, v2\nv_and_b32 v3, 3, v1\nv_lshl_add_u32 v2, v3, 4, v2\nv_lshrrev_b32 v3, 4, v1\nv_lshl_add_u32 v54, v3, 6, v2")
        A("v_lshlrev_b32 v2, 21, v1\nv_and_b32 v2, 0xfe000000, v2\nv_lshl_add_u32 v55, v1, 3, v2")
    def ss2(A):
        for r in range(4): A(f"v_mov_b32 v{68+r}, 0x3f803f80")
        A("s_lshl_b32 s32, s71, 2\nv_lshrrev_b32 v31, 4, v1\nv_add_u32 v31, s32, v31")
        A("s_mul_i32 s32, s68, 10\ns_add_u32 s32, s32, s69\ns_lshl2_add_u32 s32, s32, s3\ns_lshr_b32 s33, s32, 3\ns_and_b32 s34, s32, 7")
        A("s_bitcmp0_b32 s33, 0"); srd_sel(A, 20, P["cre"], P["cim"], SZ_B)
        A("s_mul_i32 s99, s34, 102400\ns_lshr_b32 s35, s33, 1\ns_lshl_b32 s35, s35, 6\ns_add_u32 s99, s99, s35")
        A(f"s_mul_i32 s101, s34, 40\ns_add_u32 s101, s101, s33\ns_lshl_b32 s101, s101, 7\ns_add_u32 s101, s101, {WS_CF}")
        sig_ssm(A, 33, 35)
        A(f"s_mul_i32 s34, s34, 96\ns_add_u32 s33, s33, s34\ns_mul_i32 s100, s33, 5120\ns_add_u32 s100, s100, {WS_W2P}")
        A("v_lshrrev_b32 v2, 2, v1\nv_mul_u32_u24 v2, 1280, v2\nv_and_b32 v3, 3, v1\nv_lshl_add_u32 v66, v3, 4, v2")
        A("v_and_b32 v2, 15, v1\nv_lshrrev_b32 v3, 4, v1\nv_lshl_add_u32 v2, v2, 2, v3\nv_lshlrev_b32 v67, 2, v2")
    def ss3(A):
        A("s_lshl1_add_u32 s32, s69, s72\ns_lshl_b32 s84, s32, 1\ns_add_u32 s85, s84, 1"); sig_ssm(A, 84, 33); sig_ssm(A, 85, 33)
        A(f"s_lshl1_add_u32 s34, s68, s71\ns_mul_i32 s35, s34, 192")
        for r in (84, 85): A(f"s_add_u32 s{r}, s{r}, s35\ns_lshl_b32 s{r}, s{r}, 12\ns_add_u32 s{r}, s{r}, {WS_H}")
        A(f"s_lshl_b32 s87, s34, 7\ns_add_u32 s87, s87, s32\ns_lshl_b32 s87, s87, 7\ns_add_u32 s87, s87, {WS_FLG+88*128}")
        A(f"s_add_u32 s86, s84, {96*4096}\ns_add_u32 s78, s85, {96*4096}")
    def ss4(A):
        A("s_mul_i32 s75, s3, 20480\nv_and_b32 v2, 15, v1\nv_bfe_u32 v3, v2, 2, 1\nv_and_b32 v4, 3, v2\nv_lshl_add_u32 v3, v4, 1, v3\nv_and_b32 v4, 8, v2\nv_or_b32 v3, v3, v4")
        A("v_lshrrev_b32 v4, 4, v1\nv_lshlrev_b32 v5, 2, v4\nv_xor_b32 v3, v3, v5\nv_lshlrev_b32 v3, 4, v3\nv_lshl_add_u32 v3, v2, 8, v3\nv_add_u32 v10, s75, v3")
        A("v_bfe_u32 v2, v1, 2, 2\nv_lshlrev_b32 v3, 5, v2\nv_and_b32 v5, 1, v4\nv_lshl_add_u32 v3, v5, 7, v3\nv_and_b32 v5, 3, v1\nv_lshl_add_u32 v3, v5, 3, v3")
        A("v_lshl_add_u32 v2, v4, 3, v2\nv_lshl_add_u32 v3, v2, 8, v3\nv_add_u32 v11, s75, v3")
    def ss5(A):
        A("v_lshlrev_b32 v3, 4, v30\nv_lshlrev_b32 v2, 21, v1\nv_and_b32 v2, 0xfe000000, v2\nv_add_u32 v12, v2, v3\ns_lshl1_add_u32 s76, s68, s71\ns_mul_i32 s97, s76, 10240")
        A("v_lshrrev_b32 v2, 4, v1\nv_mul_u32_u24 v13, 10240, v2\ns_sub_u32 s75, s97, 10240\nv_sub_u32 v13, s75, v13\nv_add_u32 v13, v13, v3\nv_mov_b32 v21, s96")
        for i in range(4):
            if i: A(f"v_subrev_u32 v{13+i}, {40960*i}, v13\nv_add_u32 v2, 4, v2")
            A(f"v_cmp_gt_u32 vcc, s76, v2\nv_cndmask_b32 v{17+i}, 0, v21, vcc")
    c_ld = []
    for nb in range(5): c_ld += [f"s_add_u32 s77, s99, {nb*20480}", ("vm", "cl", f"buffer_load_dwordx4 v[{32+4*nb}:{35+4*nb}], v66, s[20:23], s77 offen")]
    c_p = [("wvm", ["cl"])] + [("ds", None, f"ds_bpermute_b32 v{32+r}, v67, v{32+r}") for r in range(20)]
    c_f = ["v_mov_b32 v3, s96", ("wvm", ["cs"]), ("vm", None, "buffer_store_dword v3, v8, s[8:11], s101 offen sc1")]
    c_s = [("vm", "cs", f"buffer_store_dwordx4 v[{32+4*nb}:{35+4*nb}], v{28+(nb>>2)}, s[8:11], s100 offen offset:{(nb&3)*1024} sc1") for nb in range(5)]
    b_ld = [("vm", "bl", f"buffer_load_dwordx4 a[{112+4*i}:{115+4*i}], v54, s[24:27], s97 offen offset:{256*i}") for i in range(5)]
    b_c = [("wvm", ["bl"])]
    for i in range(5): b_c.append(f"{MF} v[56:59], v[68:71], a[{112+4*i}:{115+4*i}], " + ("v[56:59]" if i else "0"))
    b_c += ["s_nop 0"]*3
    b_c += ["v_add_f32_dpp v56, v56, v56 quad_perm:[1,0,3,2] row_mask:0xf bank_mask:0xf", "v_add_f32_dpp v56, v56, v56 quad_perm:[2,3,0,1] row_mask:0xf bank_mask:0xf",
            "v_mov_b32 v57, s96", ("vm", None, "buffer_store_dwordx2 v[56:57], v55, s[8:11], s98 offen sc1")]
    NM = "LR LI CA CB L16R L16I L32R L32I L512R L512I QR QI UR UI WR WI PR PI T0 T1".split()
    def Pm(cb): return dict(zip(NM, range(72+20*cb, 72+20*cb+20)))
    par_c = [("wvm", ["P"])] + lines("v_lshrrev_b32 v60, 4, v1\nv_cvt_f32_u32 v60, v60\nv_mul_f32 v60, 0x42000000, v60\nv_sub_f32 v61, 0x42c00000, v60\nv_mul_f32 v62, 4.0, v60")
    for cb in range(2):
        p = Pm(cb); i0 = 112 + 3*cb; zr, zt, t0, t1 = p['PR'], p['PI'], p['T0'], p['T1']
        def power(d, n):
            pre = [f"v_mul_f32 v{t0}, {n}, v{zr}", f"v_mul_f32 v{t1}, {n}, v{zt}"] if n else []
            a, b = (t0, t1) if n else (zr, zt)
            return pre + lines(f"v_exp_f32 v{t0}, v{a}\nv_fract_f32 v{t1}, v{b}\nv_cos_f32 v{d}, v{t1}\nv_sin_f32 v{d+1}, v{t1}\nv_mul_f32 v{d}, v{d}, v{t0}\nv_mul_f32 v{d+1}, v{d+1}, v{t0}")
        par_c += lines(f"""v_lshlrev_b32 v{i0+2}, 16, v{i0+2}
v_mul_f32 v{t0}, 0x3fb8aa3b, v{i0+2}
v_exp_f32 v{t0}, v{t0}
v_lshlrev_b32 v{i0}, 16, v{i0}
v_lshlrev_b32 v{i0+1}, 16, v{i0+1}
v_cvt_pk_bf16_f32 v{t0}, v{t0}, v{t0}
v_and_b32 v{t0}, 0xffff0000, v{t0}
v_mul_f32 v{zr}, v{t0}, v{i0}
v_mul_f32 v{zt}, v{t0}, v{i0+1}
v_mul_f32 v{zr}, 0x3fb8aa3b, v{zr}
v_mul_f32 v{zt}, 0.15915494, v{zt}""") + power(p['LR'], None)
        par_c += lines(f"""v_mul_f32 v{t1}, v{i0}, v{i0}
v_fmac_f32 v{t1}, v{i0+1}, v{i0+1}
v_rcp_f32 v{t1}, v{t1}
v_add_f32 v{t0}, -1.0, v{p['LR']}
v_mul_f32 v{p['CA']}, v{t0}, v{i0}
v_add_f32 v{t1}, v{t1}, v{t1}
v_fmac_f32 v{p['CA']}, v{p['LI']}, v{i0+1}
v_mul_f32 v{p['CB']}, v{p['LI']}, v{i0}
v_fma_f32 v{p['CB']}, -v{t0}, v{i0+1}, v{p['CB']}
v_mul_f32 v{p['CA']}, v{p['CA']}, v{t1}
v_mul_f32 v{p['CB']}, v{p['CB']}, v{t1}""")
        par_c += power(p['L16R'], "0x41800000") + power(p['L32R'], "0x42000000") + power(p['L512R'], "0x44000000") + power(p['QR'], "v60") + power(p['UR'], "v61") + power(p['WR'], "v62")
    ep_ld = lines(f"v_lshrrev_b32 v2, 3, v0\nv_lshlrev_b32 v2, 7, v2\nv_and_b32 v3, 7, v0\nv_lshl_add_u32 v2, v3, 3, v2\ns_lshl_b32 s75, s68, 12\ns_add_u32 s75, s75, {WS_STAT}") + [("vm", "ep", "buffer_load_dwordx2 v[52:53], v2, s[8:11], s75 offen sc1")]
    ep_ld += lines(f"v_lshrrev_b32 v2, 2, v30\nv_lshlrev_b32 v2, 7, v2\nv_and_b32 v3, 3, v30\nv_lshl_add_u32 v2, v3, 5, v2\ns_mov_b32 s75, {WS_CSB}\ns_mov_b32 s76, {WS_CSB+20480}")
    def CS(cb, im): return 112 + 4*cb + 2*im
    for cb in range(2):
        for im in range(2): ep_ld.append(("vm", "ep", f"buffer_load_dwordx2 v[{CS(cb,im)}:{CS(cb,im)+1}], v2, s[8:11], s{75+im} offen offset:{512*cb} sc1"))
    ep_tags = [53, 113, 115, 117, 119]
    ep_t = [("wvm", ["ep"])] + tagtest(ep_tags)
    ep_c = lines(f"""v_and_b32 v53, 0xffff0000, v52
v_rcp_f32 v53, v53
v_lshlrev_b32 v52, 16, v52
v_and_b32 v2, 15, v0
v_bfe_u32 v3, v0, 4, 1
v_lshl_add_u32 v2, v2, 1, v3
v_and_b32 v3, 0xe0, v0
v_add_u32 v2, v2, v3
v_mul_f32 v52, v52, v53
v_lshlrev_b32 v2, 2, v2
v_add_u32 v2, {S_SCR}, v2""") + [("ds", None, "ds_write_b32 v2, v53"), ("ds", None, "ds_write_b32 v2, v52 offset:1024")]
    ACC = 128
    def acc(b, c): return ACC + (c*8+b)*4
    def Xr(par, b): return par*48 + b*4
    def Br(par, c): return par*48 + 32 + c*4
    def reads(s):
        par = s & 1; sl = (s >> 1) % 3; L = []
        for c in range(4): L.append(("ds", None, f"ds_read_b128 a[{Br(par,c)}:{Br(par,c)+3}], v{120+2*sl+(s&1)} offset:{(c>>1)*8192 + (c&1)*2048}"))
        for b in range(8): L.append(("ds", None, f"ds_read_b128 a[{Xr(par,b)}:{Xr(par,b)+3}], v{22+2*sl+(s&1)} offset:{b*2048}"))
        return L
    M = {0: dma(2)}
    for s in range(1, 15): M[s] = dma((s+5) >> 1, ((s+1) & 1,))
    for k in range(5): M[2+k] = M[2+k] + [b_ld[k]]
    SW = int(OPT.get("sw", 6)); CK = int(OPT.get("ck", 16))
    M[14] += c_ld[:4]; M[15] = c_ld[4:]; M[18] = c_s
    for k, L in enumerate(chop(sum((w2load(i) for i in range(SW)), []), 20-CK)): M[CK+k] = M.get(CK+k, []) + L
    su = chop(cap(ss2), 3); pc = chop(par_c, 8); ps = chop(cap(ph2_setup), 2)
    S = {0: st_f, 1: cap(ss1), 2: p_ld + su[0], 3: su[1], 4: su[2] + tlb_touch(), 5: pc[0], 6: pc[1], 7: pc[2], 8: pc[3], 9: b_c + ps[0], 10: ps[1] + pc[4], 11: pc[5], 12: ep_ld,
         13: pc[6], 14: pc[7], 15: cap(ss3), 16: ep_t, 17: ep_c + c_p, 18: cap(ss4), 19: cap(ss5)}
    S[CK-2] = fpoll(5) + S.get(CK-2, [])
    A.L.append(";@TOUCH S")
    A("s_branch SSM_a"); A.L.append(";@SEG SSM"); A.label("SSM_a")
    A.its(st_c[:1]); spread(A, st_c[1:], dma(1), 0, len(st_c) - 10)
    A.sync([("S", 0)]); stamp(A, 1)
    A.its(reads(0))
    for s in range(20):
        tags = [("S", (s+1) >> 1)] if (s < 19 and s & 1) else []
        if s == 17: gcheck(A, "SG", ep_ld, ep_tags)
        if s == CK: fcheck(A, "SP", 5)
        A.sync(tags, barrier=bool(s & 1))
        tick(A, s, 127)
        par = s & 1; mf = []
        for b in range(8):
            for c in range(4):
                r = acc(b, c); mf.append(f"{MF} v[{r}:{r+3}], a[{Xr(par,b)}:{Xr(par,b)+3}], a[{Br(par,c)}:{Br(par,c)+3}], " + (f"v[{r}:{r+3}]" if s else "0"))
        A.weave(mf, [(reads(s+1) if s < 19 else [], 0, 24), (M.get(s, []), 0, 31), (S.get(s, []), 1, 31)])
    A("s_waitcnt lgkmcnt(0)"); tick(A, 20, 127); tockdump(A, 20, 127, 0x40000)
    stamp(A, 2)
    def gre(cb, j): return acc(0, cb) + 2*j
    def gim(cb, j): return acc(0, 2+cb) + 2*j
    A(f"v_lshlrev_b32 v2, 7, v31\nv_add_u32 v2, {S_SCR}, v2")
    def rload(c):
        b = 32 + 16*(c & 1)
        return [("ds", ("R", c), f"ds_read_b128 v[{b+4*k+8*t}:{b+4*k+8*t+3}], v2 offset:{1024*t + 32*c + 16*k}") for t in range(2) for k in range(2)]
    ptick(A, 40, 126)
    e1 = rload(0) + rload(1)
    for j in range(16):
        c = j >> 2; b = 32 + 16*(c & 1) + 2*(j & 3)
        if j & 3 == 0: e1.append(("wds", [("R", c)]))
        for cb in range(2): e1 += [pk("mul", gre(cb,j), gre(cb,j), b), pk("mul", gim(cb,j), gim(cb,j), b)]
        for cb in range(2):
            p = Pm(cb); e1 += [pk("fma", gre(cb,j), b+8, ("b", CS(cb,0)), gre(cb,j), neg=(0,)), pk("fma", gim(cb,j), b+8, ("b", CS(cb,1)), gim(cb,j), neg=(0,))]
        if j & 3 == 3 and c + 2 < 4: e1 += rload(c+2)
        if j:
            for cb in range(2):
                p = Pm(cb); e1 += [pk("fma", gre(cb,j), gre(cb,j-1), ("b", p['LR']), gre(cb,j)), pk("fma", gim(cb,j), gim(cb,j-1), ("b", p['LR']), gim(cb,j))]
            for cb in range(2):
                p = Pm(cb); e1 += [pk("fma", gre(cb,j), gim(cb,j-1), ("b", p['LI']), gre(cb,j), neg=(1,)), pk("fma", gim(cb,j), gre(cb,j-1), ("b", p['LI']), gim(cb,j))]
    spread(A, e1, c_f, 150, 200)
    def cfma(dr, di, mr, mi, xr, xi, ar, ai):
        A(f"v_fma_f32 v{dr}, v{mr}, v{xr}, v{ar}\nv_fma_f32 v{di}, v{mr}, v{xi}, v{ai}\nv_fma_f32 v{dr}, -v{mi}, v{xi}, v{dr}\nv_fma_f32 v{di}, v{mi}, v{xr}, v{di}")
    ptick(A, 41, 126)
    def cmul(dr, di, mr, mi, xr, xi):
        A(f"v_mul_f32 v{dr}, v{mr}, v{xr}\nv_mul_f32 v{di}, v{mr}, v{xi}\nv_fma_f32 v{dr}, -v{mi}, v{xi}, v{dr}\nv_fmac_f32 v{di}, v{mi}, v{xr}")
    def gsum(regs, tmp):
        for sw in ("v_permlane16_swap_b32", "v_permlane32_swap_b32"):
            for k, r in enumerate(regs): A(f"v_mov_b32 v{tmp+k}, v{r}")
            for k, r in enumerate(regs): A(f"{sw} v{r}, v{tmp+k}")
            for k, r in enumerate(regs): A(f"v_add_f32 v{r}, v{r}, v{tmp+k}")
    for cb in range(2):
        p = Pm(cb); cfma(64+2*cb, 65+2*cb, p['L16R'], p['L16I'], gre(cb,15), gim(cb,15), gre(cb,15)+1, gim(cb,15)+1)
        cmul(56+4*cb, 58+4*cb, p['UR'], p['UI'], 64+2*cb, 65+2*cb)
    gsum([56, 58, 60, 62], 48)
    A("v_mov_b32 v57, s96\nv_mov_b32 v59, s96\nv_mov_b32 v61, s96\nv_mov_b32 v63, s96")
    for cb in range(2): A.it(("vm", None, f"buffer_store_dwordx4 v[{56+4*cb}:{59+4*cb}], v12, s[8:11], s97 offen offset:{256*cb} sc1"))
    ptick(A, 42, 126)
    A.its(sum((w2load(i) for i in range(SW, 7)), []))
    for d in range(3):
        A(f"v_subrev_u32 v2, {16*(d+1)}, v1\nv_lshlrev_b32 v2, 2, v2")
        for k in range(4): A(f"ds_bpermute_b32 v{40+4*d+k}, v2, v{64+k}")
    for cb in range(2): A(f"v_mov_b32 v{Pm(cb)['PR']}, 0\nv_mov_b32 v{Pm(cb)['PI']}, 0")
    A("s_waitcnt lgkmcnt(0)")
    for d in (2, 1, 0):
        A(f"s_lshl_b64 exec, -1, {16*(d+1)}")
        for cb in range(2):
            p = Pm(cb); a = 40+4*d+2*cb
            if d < 2: cfma(a, a+1, p['L32R'], p['L32I'], p['PR'], p['PI'], a, a+1)
            A(f"v_mov_b32 v{p['PR']}, v{a}\nv_mov_b32 v{p['PI']}, v{a+1}")
    A("s_mov_b64 exec, -1")
    for cb in range(2): A(f"v_mov_b32 v{64+2*cb}, v{gre(cb,15)}\nv_mov_b32 v{65+2*cb}, v{gim(cb,15)}")
    e2 = []
    for j in range(16):
        for cb in range(2):
            p = Pm(cb); r, i = gre(cb,j), gim(cb,j); t = 112+4*cb
            e2 += [pk("mul", t, i, ("b", p['CB'])), pk("mul", t+2, r, ("b", p['CB'])), pk("fma", r, r, ("b", p['CA']), t, neg=(2,)), pk("fma", i, i, ("b", p['CA']), t+2, neg=(1, 2))]
    lb = [("vm", "lb", f"buffer_load_dwordx4 v[{32+8*i+4*cb}:{35+8*i+4*cb}], v{13+i}, s[8:11], 0 offen offset:{256*cb} sc1") for i in range(4) for cb in range(2)]
    lt = ["v_xor_b32 v4, v17, v33"] + sum(([f"v_xor_b32 v5, v{17+(r-32)//8}, v{r}", "v_or_b32 v4, v4, v5"] for r in range(35, 64, 2)), []) + ["v_cmp_ne_u32 vcc, 0, v4"]
    LBP = int(OPT.get("lbp", 40))
    A.its(e2[:LBP] + lb + e2[LBP:])
    stamp(A, 3)
    A.its([("wvm", ["lb"])] + lt)
    A("s_cbranch_vccz SSM_go\ns_mov_b32 s7, 0x40000")
    A.label("SSM_poll")
    for x in lb: A(x[2])
    A("s_waitcnt vmcnt(0)"); A.ext(lt)
    A("s_sub_u32 s7, s7, 1\ns_cbranch_scc1 SSM_go\ns_cbranch_vccnz SSM_poll")
    A.label("SSM_go")
    A(f"s_cmp_lg_u32 s95, 0\ns_cbranch_scc1 EP_end\nv_lshlrev_b32 v2, 7, v1\ns_mov_b32 s7, 0x40000")
    A.label("EP_l")
    for k in range(4): A(f"s_mov_b32 s75, {WS_STAT+4+8192*k}\nbuffer_load_dword v{68+k}, v2, s[8:11], s75 offen sc1")
    A("s_waitcnt vmcnt(0)"); A.ext(tagtest([68, 69, 70, 71]))
    A(f"s_sub_u32 s7, s7, 1\ns_cbranch_scc1 EP_ok\ns_cbranch_vccnz EP_l")
    A.label("EP_ok")
    A(f"s_mov_b32 s75, {WS_EPOCH}\nv_mov_b32 v4, s96\nbuffer_store_dword v4, v8, s[8:11], s75 offen sc1")
    A.label("EP_end")
    A.reset()
    stamp(A, 4)
    for i in (2, 1, 0):
        for cb in range(2):
            p = Pm(cb); a = 32+8*i+4*cb; cfma(a, a+2, p['L512R'], p['L512I'], a+8, a+10, a, a+2)
    for cb in range(2):
        p = Pm(cb); cmul(56+2*cb, 57+2*cb, p['WR'], p['WI'], 32+4*cb, 34+4*cb)
    gsum([56, 57, 58, 59], 48)
    if TS >= 2: A("v_mov_b32 v25, v126")
    WP = 112
    for cb in range(2):
        p = Pm(cb); a = 56+2*cb; w = WP+8*cb
        cfma(p['PR'], p['PI'], p['QR'], p['QI'], a, a+1, p['PR'], p['PI'])
        cfma(64+2*cb, 65+2*cb, p['L16R'], p['L16I'], p['PR'], p['PI'], 64+2*cb, 65+2*cb)
        for k, (xr, xi) in enumerate(((p['PR'], p['PI']), (64+2*cb, 65+2*cb))):
            A(f"v_mul_f32 v{p['T0']}, v{p['CB']}, v{xi}\nv_mul_f32 v{p['T1']}, v{p['CB']}, v{xr}")
            A(f"v_fma_f32 v{w+k}, v{p['CA']}, v{xr}, -v{p['T0']}\nv_fma_f32 v{w+2+k}, -v{p['CA']}, v{xi}, -v{p['T1']}")
    IMG = 8192
    A("v_mov_b32 v31, s96")
    ptick(A, 43, 25)
    e3 = []; pw = []
    for j in range(16):
        cur = [WP+8*cb+4*(j & 1) for cb in range(2)]; nxt = [WP+8*cb+4*((j+1) & 1) for cb in range(2)]
        for cb in range(2):
            p = Pm(cb); e3.append(pk("mul", nxt[cb], cur[cb], ("b", p['LR']))); e3.append(pk("mul", nxt[cb]+2, cur[cb]+2, ("b", p['LR'])))
        for cb in range(2):
            p = Pm(cb); e3.append(pk("fma", nxt[cb], cur[cb]+2, ("b", p['LI']), nxt[cb])); e3.append(pk("fma", nxt[cb]+2, cur[cb], ("b", p['LI']), nxt[cb]+2, neg=(1,)))
        if pw: e3.append(pw.pop(0))
        for cb in range(2):
            e3.append(pk("add", gre(cb,j), gre(cb,j), nxt[cb])); e3.append(pk("add", gim(cb,j), gim(cb,j), nxt[cb]+2))
        if j & 1:
            k = (j >> 1) & 3
            if k == 3: e3 += [f"v_xor_b32 v{68+2*(j>>3)+hh}, {32*hh + 16*(j>>3)}, v10" for hh in range(2)]
            for cb in range(2):
                for im in range(2):
                    g = gim if im else gre
                    for hh in range(2):
                        r = (32+16*cb+8*im+4*hh) if j < 8 else (g(cb, 0) + 4*hh)
                        e3.append(f"v_cvt_pk_bf16_f32 v{r+k}, v{g(cb,j-1)+hh}, v{g(cb,j)+hh}")
                        if k == 3: (e3 if j == 15 else pw).append(("ds", None, f"ds_write_b128 v{68+2*(j>>3)+hh}, v[{r}:{r+3}] offset:{im*IMG + cb*4096}"))
    spread(A, e3, fpoll(4), 0, 40)
    ptick(A, 44, 25)
    A("s_waitcnt lgkmcnt(0)"); A.dd = A.nd
    for tb in range(8):
        for hh in range(2): A(f"v_xor_b32 v{112+2*tb+hh}, {32*tb + 16*hh}, v11")
        for im in range(2):
            r = ACCK + 4*(2*tb+im)
            for hh in range(2): A.it(("ds", ("tr", 2*tb+im), f"ds_read_b64_tr_b16 v[{r+2*hh}:{r+2*hh+1}], v{112+2*tb+hh} offset:{im*IMG + hh*1024}"))
    ptick(A, 45, 25)
    st = []
    for n in range(16):
        im, tb = n & 1, n >> 1; r = ACCK + 4*n
        st += [("wds", [("tr", n)]), ("vm", "H", f"buffer_store_dwordx4 v[{r}:{r+3}], v28, s[8:11], s{(84, 85, 86, 78)[im + 2*(tb >> 2)]} offen offset:{(tb&3)*1024} sc1")]
    fs = "buffer_store_dword v31, v8, s[8:11], s87 offen sc1"
    S1 = int(OPT.get("s1", 2)); S2 = int(OPT.get("s2", 5))
    A.its(st)
    stamp(A, 5)
    A.L.append(";@TOUCH P1")
    fcheck(A, "SC4", 4)
    A.its(sum((w2load(i) for i in range(7, 7+S1)), []) + [("wvm", ["H"]), ("vm", None, fs)] + fpoll(0) + sum((w2load(i) for i in range(7+S1, 7+S2)), []))
    fcheck(A, "SC0", 0)
    stamp(A, 6)
    for i in range(2): A.its(hload(i))
    ph2_head(A, "SC", dict(enumerate(chop(sum((w2load(i) for i in range(7+S2, 12)), []), 7))) if S2 < 5 else {})

def gen_ph2(A):
    A.L.append(";@SEG PH2"); A.label("PH2")
    A.reset(); A.nv = 200
    for t in JOIN[0]:
        if t in JOIN[1]: A.tv[t] = A.nv - min(JOIN[0][t], JOIN[1][t])
    g_r = []
    for nb in range(5):
        for w in range(4):
            r = ACCG + (nb*4+w)*4; g_r.append(("ds", ("gr", nb), f"ds_read_b128 v[{r}:{r+3}], v{23+(w>>1)} offset:{(w&1)*20480 + nb*1024}"))
    g_s = []
    for nb in range(5):
        r = ACCG + nb*16; g_s.append(("wds", [("gr", nb)]))
        for e in range(4): g_s += [f"v_add_f32 v{r+e}, v{r+e}, v{r+4+e}", f"v_add_f32 v{r+8+e}, v{r+8+e}, v{r+12+e}"]
        for e in range(4): g_s.append(f"v_add_f32 v{r+e}, v{r+e}, v{r+8+e}")
        g_s.append(("vm", "xs", f"buffer_store_dwordx4 v[{r}:{r+3}], v{28+(nb>>2)}, s[8:11], s4 offen offset:{(nb&3)*1024} sc1"))
    g_f = [("wvm", ["xs"]), ("vm", None, "buffer_store_dword v31, v8, s[8:11], s6 offen sc1")]
    PA = list(range(100, 112)) + list(range(160, 168))
    fin_c = [("wvm", ["fin"]), "v_and_b32 v11, 0xffff0000, v10", "v_rcp_f32 v11, v11", "v_lshlrev_b32 v10, 16, v10"]
    def rd(nb): return [("ds", ("fx", nb), f"ds_read_b64 v[{16+4*(nb&1)}:{17+4*(nb&1)}], v12 offset:{32*nb}"), ("ds", ("fx", nb), f"ds_read_b64 v[{(18, 26)[nb&1]}:{(19, 27)[nb&1]}], v14 offset:{3072+32*nb}")]
    fin_c += rd(0)
    for nb in range(5):
        if nb < 4: fin_c += rd(nb+1)
        fin_c.append(("wds", [("fx", nb)]))
        for h in range(2):
            x = 16+4*(nb&1)+h; d = (18, 26)[nb&1]+h
            fin_c += [f"v_lshlrev_b32 v2, 16, v{d}", f"v_and_b32 v{d}, 0xffff0000, v{d}", f"v_lshlrev_b32 v3, 16, v{x}", f"v_and_b32 v{x}, 0xffff0000, v{x}",
                      "v_mul_f32 v2, v2, v11", f"v_mul_f32 v{d}, v{d}, v11", "v_sub_f32 v4, v3, v10", f"v_sub_f32 v5, v{x}, v10", "v_fmac_f32 v3, v4, v2", f"v_fmac_f32 v{x}, v5, v{d}",
                      f"v_accvgpr_write_b32 a{PA[4*nb+2*h]}, v3", f"v_accvgpr_write_b32 a{PA[4*nb+2*h+1]}, v{x}"]
    fin_r = [f"v_accvgpr_read_b32 v{ACCG + (k>>2)*16 + 8 + (k&3)}, a{PA[k]}" for k in range(20)]
    gs = chop(g_s, 2); fc = chop(fin_c, 5)
    extra = {8: fc[0], 9: fc[1], 10: fc[2], 11: fc[3], 12: fc[4], 16: g_r, 17: gs[0], 18: gs[1],
             19: ["v_add_u32 v22, 81920, v22", "v_add_u32 v23, 81920, v23", "v_add_u32 v24, 81920, v24"] + fin_r, 20: fpoll(3)[:-1], 21: ["s_nop 0"] + g_f + ["s_nop 0"]*5 + fpoll(3)[-1:]}
    ph2_groups(A, GROUPS[7:], extra, {7: lambda: fcheck(A, "C2", 2)})
    if TS >= 2:
        A(f"s_waitcnt lgkmcnt(0)\nv_writelane_b32 v25, s88, {len(GROUPS)-1}\ns_memtime s[88:89]"); tockdump(A, len(GROUPS), 25, 0x80000)
    stamp(A, 7)
    fcheck(A, "C3", 3)
    for nb in range(5):
        r = ACCG + nb*16 + 12
        A.it(("vm", ("xl", nb), f"buffer_load_dwordx4 v[{r}:{r+3}], v{28+(nb>>2)}, s[8:11], s5 offen offset:{(nb&3)*1024} sc1"))
    A("s_waitcnt lgkmcnt(0)\ns_barrier")
    for nb in range(5):
        for w in range(4):
            r = ACCK + (nb*4+w)*4
            A(f"ds_read_b128 v[{r}:{r+3}], v{23+(w>>1)} offset:{(w&1)*20480 + nb*1024}")
    for nb in range(5):
        A(f"s_waitcnt lgkmcnt({min(15, 16-4*nb)})")
        r = ACCK + nb*16; o = ACCG + nb*16 + 8
        for k in (0, 2): A(pk("add", r+k, r+k, r+4+k)); A(pk("add", r+8+k, r+8+k, r+12+k))
        for k in (0, 2): A(pk("add", o+k, o+k, r+k))
        for k in (0, 2): A(pk("add", o+k, o+k, r+8+k))
    for nb in range(5):
        o = ACCG + nb*16 + 8
        A.it(("wvm", [("xl", nb)]))
        for k in (0, 2): A(pk("add", o+k, o+k, o+4+k))
        A.it(("vm", None, f"buffer_store_dwordx4 v[{o}:{o+3}], v13, s[20:23], 0 offen offset:{64*nb}"))
    if TS:
        A("s_add_u32 s94, s94, 0x10000"); stamp(A, 0)

def gen():
    A = E()
    A("s_cmp_ge_u32 s2, 256\ns_cbranch_scc1 K_end")
    if TS >= 2: A("s_memtime s[4:5]")
    A("s_load_dwordx16 s[36:51], s[0:1], 0\ns_load_dwordx16 s[52:67], s[0:1], 64")
    A("v_and_b32 v1, 63, v0\nv_lshrrev_b32 v2, 6, v0\ns_and_b32 s32, s2, 7\nv_readfirstlane_b32 s3, v2")
    A("s_lshr_b32 s33, s2, 3\ns_lshr_b32 s34, s32, 2\ns_and_b32 s35, s32, 3\ns_and_b32 s71, s3, 1\ns_lshr_b32 s72, s3, 1")
    if int(OPT.get("ipf", 1)):
        A("s_getpc_b64 s[6:7]"); A.label("K_pc")
        A("s_lshl2_add_u32 s76, s33, s3\ns_and_b32 s76, s76, 15\ns_lshl_b32 s76, s76, 13\nv_lshlrev_b32 v2, 7, v1\nv_add_u32 v2, s76, v2\nv_min_u32 v2, K_end-K_pc, v2")
        A("s_cmp_lt_u32 s33, 28\ns_cbranch_scc1 K_nopf\nglobal_load_dword v64, v2, s[6:7]"); A.label("K_nopf")
    A("s_lshl2_add_u32 s95, s2, s3\nv_lshrrev_b32 v62, 5, v1\nv_mul_u32_u24 v62, 1280, v62\nv_and_b32 v63, 31, v1\nv_lshl_add_u32 v62, v63, 3, v62")
    if TS:
        A("s_lshl2_add_u32 s94, s2, s3\ns_lshl_b32 s94, s94, 6\ns_waitcnt lgkmcnt(0)"); stamp(A, 0)
    A("s_mul_i32 s75, s95, 2560\ns_cmp_lt_u32 s33, 10\ns_cbranch_scc1 K_ssm")
    A("s_mul_i32 s35, s35, 22\ns_add_u32 s33, s33, s35\ns_sub_u32 s33, s33, 10\ns_and_b32 s68, s33, 7\ns_lshl_b32 s34, s34, 3\ns_add_u32 s68, s68, s34\ns_lshr_b32 s69, s33, 3")
    gen_ffn(A)
    A.L.append(";@SEG SPRO"); A.label("K_ssm")
    A("s_mul_i32 s35, s35, 10\ns_add_u32 s33, s33, s35\ns_and_b32 s68, s33, 3\ns_lshl2_add_u32 s68, s34, s68\ns_lshr_b32 s69, s33, 2")
    gen_ssm(A)
    gen_ph2(A)
    A.label("K_end"); A("s_endpgm")
    return A.L

def fin(L):
    seg = {"E": []}; cur = "E"
    for l in L:
        if l.startswith(";@SEG"): cur = l.split()[1]; seg[cur] = []
        else: seg[cur].append(l)
    def dispatch(name, chains, ret):
        o = []
        for w in range(3): o += [f"s_cmp_eq_u32 s3, {w}", f"s_cbranch_scc1 {chains[w]}"]
        return o + [f"s_branch {chains[3]}"]
    TCH = int(OPT.get("tch", 1))
    order = ["FA", "FB", "EP", "SSM", "PH2"]
    def expand(lines, heads):
        o = []
        for l in lines:
            if not l.startswith(";@TOUCH"): o.append(l); continue
            if not TCH: continue
            n = l.split()[1]
            o.append("s_mov_b64 exec, 0")
            if n == "F": o += ["s_cmp_ge_u32 s98, 108", "s_cbranch_scc1 TD_FB"] + dispatch(n, heads["FA"], None) + ["TD_FB:"] + dispatch(n, heads["FB"], None)
            elif n == "S": o += dispatch(n, heads["SSM"], None)
            else: o += [f"s_mov_b32 s35, {n[1]}"] + dispatch(n, heads["PH2"], None)
            if n == "P1": o += ["TR_P:", "s_cmp_eq_u32 s35, 0", "s_cbranch_scc1 TR_P0"]
            else: o.append(f"TR_{n}:")
            o.append("s_mov_b64 exec, -1")
        return o
    dummy = {k: ["K_end"]*4 for k in order}
    body = []
    for k in order: body += [(k, l) for l in expand(seg[k], dummy)]
    pro = expand(seg["E"] + seg["SPRO"], dummy)
    sz = sizes(pro + ["K_pad:"] + [l for _, l in body]); npro = sum(1 for l in pro if not (l.endswith(":") or l.startswith((".", ";"))))
    print("prologue bytes", sum(sz[:npro])); sz = sz[npro:]
    stubs = {k: [] for k in order}; pos = {}; addr = 0; page = -1; ii = 0; seen = set()
    for i, (k, l) in enumerate(body):
        if l.endswith(":") or l.startswith((".", ";")): continue
        if TCH and (addr >> 12 != page or k not in seen):
            page = addr >> 12; seen.add(k); name = f"TS_{len(pos)}"; pos[i] = name; stubs[k].append(name); addr += 4
        addr += sz[ii]; ii += 1
    print({k: len(v) for k, v in stubs.items()}, "bytes", addr)
    nxt = {}; heads = {}
    def chains(lst, tails):
        h = []
        for w in range(4):
            c = lst[w::4]
            for a, b in zip(c, c[1:] + [tails[w]]): nxt[a] = b
            h.append(c[0] if c else tails[w])
        return h
    ep = chains(stubs["EP"][::-1], ["TR_F"]*4)[::-1]
    heads["FA"] = chains(stubs["FA"], ep); heads["FB"] = chains(stubs["FB"], ep)
    heads["SSM"] = chains(stubs["SSM"], ["TR_S"]*4); heads["PH2"] = chains(stubs["PH2"], ["TR_P"]*4)
    body2 = []
    for k in order: body2 += expand(seg[k], heads)
    out = expand(seg["E"] + seg["SPRO"], heads) + [".p2align 12"]
    for i, l in enumerate(body2):
        if i in pos: out += [pos[i] + ":", f"s_cbranch_execz {nxt[pos[i]]}"]
        out.append(l)
    return out
def main():
    ref = open(f"cdna_kernels/{NAME}.s.ref").read().split("\n")
    hdr = [l for l in ref if l.startswith(";") and "@launch" not in l and "Override" not in l and "grid=ceil" not in l]
    out = "\n".join(hdr) + "\n"
    extra = ""
    if "spin" in OPT:
        op, slot = OPT["spin"].split(","); slot = int(slot)
        off = WS_TS + (slot*8 if slot < 8 else 0x10000)
        out += f"; @launch kernel={NAME}_kernel grid=(256,1,1) block=(256,1,1) lds=163840\n; @launch kernel=spin_kernel grid=(1,1,1) block=(64,1,1) lds=0\n"
        L = ["s_load_dwordx2 s[4:5], s[0:1], 120", "s_waitcnt lgkmcnt(0)", f"s_add_u32 s4, s4, {off}", "s_addc_u32 s5, s5, 0", "v_lshlrev_b32 v1, 6, v0"]
        for k in range(16): L += [f"v_add_u32 v2, {4096*k}, v1", f"global_load_dword v{4+k}, v2, s[4:5]"]
        L += ["s_waitcnt vmcnt(0)"] + [f"v_{op}_u32 v4, v4, v{4+k}" for k in range(1, 16)] + ["s_nop 1", "v_readlane_b32 s6, v4, 0"]
        for k in range(1, 64): L += [f"v_readlane_b32 s7, v4, {k}", "s_nop 0", f"s_{op}_u32 s6, s6, s7"]
        L += ["s_mov_b32 s12, 0x100000", "SP_l2:", "s_memrealtime s[8:9]", "s_waitcnt lgkmcnt(0)", "s_sub_u32 s10, s8, s6", "s_sub_u32 s12, s12, 1", "s_cbranch_scc1 SP_e", "s_cmp_lt_u32 s10, 8000", "s_cbranch_scc1 SP_l2", "SP_e:", "s_endpgm"]
        extra = kernel_text("spin_kernel", L) + kd("spin_kernel", 32, 0, 32)
    else: out += "; @launch grid=(256,1,1) block=(256,1,1) lds=163840\n"
    out += '.amdgcn_target "amdgcn-amd-amdhsa--gfx950"\n'
    out += kernel_text(NAME + "_kernel", fin(hazard_pass(gen(), "v" in OPT))) + kd(NAME + "_kernel", 256, 256, 102) + extra
    open(sys.argv[1], "w").write(out)
main()
```

```python
import sys
from asmlib import *
NAME = "parallel_sum__ssm_conv_s5__glu_gated_swiglu__prompt"
OPT = dict(a.split("=") for a in sys.argv[2:])
TS = int(OPT.get("ts", 0))
WS_AGG = 0; WS_EPOCH = 0x28000; WS_STAT = 0x30000; WS_FLG = 0x40000; WS_XF = 0x80000; WS_CF = 0xA0000; WS_WF = 0xB0000; WS_CSB = 0xC0000; WS_CS = 0xD0000
WS_H = 0x100000; WS_W2P = 0xE00000; WS_XCH = 0x1200000; WS_END = 0x1700000; WS_TS = 0x1800000; CS_HALF = 27648
SZ_X = 2048*640*2; SZ_B = 640*640*2; SZ_W = 640*1728*2; SZ_OUT = 2048*640*4
OOB = 0x7F000000
P = dict(x=36, lre=38, lim=40, bre=42, bim=44, cre=46, cim=48, ldt=50, dsk=52, w1=56, w3=58, w2=60, out=62, dbg=64, ws=66)
MF = "v_mfma_f32_16x16x32_bf16"

class E(Asm):
    def __init__(self): super().__init__(); self.reset()
    def reset(self): self.nv = 0; self.tv = {}; self.dv = 0; self.nd = 0; self.td = {}; self.dd = 0
    def vmw(self, tags):
        last = max(self.tv[t] for t in tags)
        if last <= self.dv: return None
        self.dv = last; return min(63, self.nv - last)
    def dsw(self, tags):
        last = max(self.td[t] for t in tags)
        if last <= self.dd: return None
        n = min(15, self.nd - last); self.dd = self.nd - n; return n
    def it(self, x):
        if isinstance(x, str): self(x)
        elif x[0] == "vm": self.nv += 1; self.tv[x[1]] = self.nv; self(x[2])
        elif x[0] == "ds": self.nd += 1; self.td[x[1]] = self.nd; self(x[2])
        elif x[0] == "wvm":
            n = self.vmw(x[1])
            if n is not None: self(f"s_waitcnt vmcnt({n})")
        elif x[0] == "wds":
            n = self.dsw(x[1])
            if n is not None: self(f"s_waitcnt lgkmcnt({n})")
        elif x[0] == "fn": x[1]()
    def its(self, L):
        for x in L: self.it(x)
    def sync(self, vtags, barrier=True):
        n = self.vmw(vtags) if vtags else None
        self.dd = self.nd
        self((f"s_waitcnt vmcnt({n}) lgkmcnt(0)" if n is not None else "s_waitcnt lgkmcnt(0)"))
        if barrier: self("s_barrier")
    def weave(self, mf, streams, fixed=None, cap=2):
        q = []
        for it, lo, hi in streams:
            if it: q.append([(lo + k*(hi-lo)//len(it), x) for k, x in enumerate(it)])
        def cost(x):
            if isinstance(x, str): return sum(2 if l.startswith(TRANS) else (4 if l.startswith("v_mfma") else 1) for l in x.split("\n"))
            return {"vm": 2, "ds": 1}.get(x[0], 0.5)
        debt = 0
        for i, m in enumerate(mf):
            self(m); room = cap - debt
            for x in (fixed[i] if fixed else []): self.it(x); room -= cost(x)
            left = sum(cost(x) for st in q for _, x in st); gaps = len(mf) - i
            room = max(room, left - cap*(gaps-1))
            if left > cap*gaps: room = max(cap, left/gaps)
            while room > 0:
                c = [st for st in q if st and st[0][0] <= i]
                if not c: break
                st = min(c, key=lambda t: t[0][0]); x = st.pop(0)[1]; self.it(x); room -= cost(x)
            debt = max(0, -room)
        for st in q:
            for _, x in st: self.it(x)
def lines(s): return [l.strip() for l in s.split("\n") if l.strip()]
def glue(L):
    out = []; on = False
    for x in L:
        if isinstance(x, str) and on and x.startswith(("s_cselect", "s_mov_b32")): out[-1] += "\n" + x; continue
        on = isinstance(x, str) and x.startswith(("s_cmp", "s_bitcmp"))
        out.append(x)
    return out
def cap(f):
    B = Asm(); f(B); return glue(B.L)
def chop(L, n):
    q = (len(L) + n - 1)//n
    return [L[k*q:(k+1)*q] for k in range(n)]
FE = int(OPT.get("fe", 3)); FF = int(OPT.get("ff", 0)); SE = int(OPT.get("se", 0))
def srd(A, d, lo, size):
    A(f"s_mov_b32 s{d}, s{lo}\ns_mov_b32 s{d+1}, s{lo+1}\ns_mov_b32 s{d+2}, {hex(size)}\ns_mov_b32 s{d+3}, 0x20000")
def srd_sel(A, d, lo0, lo1, size):
    A(f"s_cselect_b32 s{d}, s{lo0}, s{lo1}\ns_cselect_b32 s{d+1}, s{lo0+1}, s{lo1+1}\ns_mov_b32 s{d+2}, {hex(size)}\ns_mov_b32 s{d+3}, 0x20000")
def stamp(A, slot):
    if not TS: return
    A(f"s_memrealtime s[90:91]\ns_memtime s[88:89]\ns_waitcnt lgkmcnt(0)\ns_add_u32 s92, s94, {WS_TS + slot*8}")
    A.dd = A.nd
    A(f"v_mov_b32 v4, s90\nv_mov_b32 v5, s88\nv_mov_b32 v2, s92"); A.it(("vm", None, "global_store_dwordx2 v2, v[4:5], s[66:67]"))
def tick(A, idx, reg):
    if TS < 2: return
    if idx: A(f"v_writelane_b32 v{reg}, s88, {idx-1}")
    A("s_memtime s[88:89]")
def ptick(A, idx, reg):
    if TS < 2: return
    A(f"s_memtime s[88:89]\ns_waitcnt lgkmcnt(0)\nv_writelane_b32 v{reg}, s88, {idx}")
def tockdump(A, n, reg, area):
    if TS < 2: return
    A(f"s_waitcnt lgkmcnt(0)\nv_writelane_b32 v{reg}, s88, {n}\ns_lshl_b32 s92, s95, 8\ns_add_u32 s92, s92, {WS_TS + area}\nv_lshlrev_b32 v5, 2, v1\nv_add_u32 v5, s92, v5")
    A.it(("vm", None, f"global_store_dword v5, v{reg}, s[66:67]"))
def bc(n, which, hi=False):
    lo = [0]*n; h = [1]*n
    for w in which:
        if isinstance(w, tuple): lo[w[0]] = 1
        else: h[w] = 0
    s = ""
    if any(lo): s += " op_sel:[" + ",".join(map(str, lo)) + "]"
    s += " op_sel_hi:[" + ",".join(map(str, h)) + "]"
    return s
def B(r):
    return f"v[{r & ~1}:{(r & ~1)+1}]", (r & 1)
def pk(op, d, *src, neg=()):
    t = []; w = []
    src = list(src)
    if isinstance(src[1], tuple) and src[1][1] & 1:
        src[0], src[1] = src[1], src[0]; neg = tuple({0: 1, 1: 0}.get(n, n) for n in neg)
    for i, s in enumerate(src):
        if isinstance(s, tuple):
            x, hi = B(s[1]); t.append(x); w.append((i,) if hi else i)
        else:
            assert s % 2 == 0; t.append(f"v[{s}:{s+1}]")
    assert d % 2 == 0
    m = bc(len(src), w)
    if neg:
        nn = ",".join("1" if i in neg else "0" for i in range(len(src))); m += f" neg_lo:[{nn}] neg_hi:[{nn}]"
    return f"v_pk_{op}_f32 v[{d}:{d+1}], " + ", ".join(t) + m

def stats_job(R, scr):
    L0, U, T = R, R+10, R+30
    ld = [f"v_mov_b32 v9, {WS_EPOCH}", ("vm", "st", "global_load_dword v9, v9, s[66:67] sc1")]
    for i in range(5): ld.append(("vm", "st", f"buffer_load_dwordx2 v[{L0+2*i}:{L0+2*i+1}], v{T}, s[16:19], s75 offen offset:{256*i}"))
    c = [("wvm", ["st"])]
    for i in range(10): c += [f"v_lshlrev_b32 v{U+2*i}, 16, v{L0+i}", f"v_and_b32 v{U+2*i+1}, 0xffff0000, v{L0+i}"]
    def red(v, t):
        o = [f"v_add_f32 v{v}, v{v}, v{v+1}"]
        for r in (8, 4, 2, 1): o.append(f"v_add_f32_dpp v{v}, v{v}, v{v} row_ror:{r} row_mask:0xf bank_mask:0xf")
        o += [f"v_mov_b32 v{t}, v{v}", f"v_permlane16_swap_b32 v{v}, v{t}", f"v_add_f32 v{v}, v{v}, v{t}", f"v_mul_f32 v{v}, 0x3acccccd, v{v}"]
        return o
    c.append(pk("add", T, U, U+2))
    for i in range(2, 10): c.append(pk("add", T, T, U+2*i))
    c += red(T, T+1)
    for i in range(10): c.append(pk("add", U+2*i, U+2*i, ("b", T), neg=(1,)))
    c.append(pk("mul", T+2, U, U))
    for i in range(1, 10): c.append(pk("fma", T+2, U+2*i, U+2*i, T+2))
    c += red(T+2, T+3)
    c += lines(f"""v_cvt_pk_bf16_f32 v{T}, v{T}, v{T+2}
v_and_b32 v{T+2}, 0xffff0000, v{T}
v_add_f32 v{T+2}, 0x3727c5ac, v{T+2}
v_cvt_pk_bf16_f32 v{T+2}, v{T+2}, v{T+2}
v_and_b32 v{T+2}, 0xffff0000, v{T+2}
v_sqrt_f32 v{T+2}, v{T+2}
v_and_b32 v{T}, 0xffff, v{T}
v_cvt_pk_bf16_f32 v{T+2}, v{T+2}, v{T+2}
v_readfirstlane_b32 s96, v9
v_and_b32 v{T+2}, 0xffff0000, v{T+2}
v_or_b32 v{T}, v{T+2}, v{T}
v_lshrrev_b32 v{T+1}, 5, v0
v_lshlrev_b32 v{T+1}, 2, v{T+1}
v_add_u32 v{T+1}, {scr}, v{T+1}
s_add_u32 s96, s96, 1""")
    c.append(("ds", None, f"ds_write_b32 v{T+1}, v{T}"))
    f = lines(f"v_and_b32 v{T+1}, 7, v1\nv_lshlrev_b32 v{T+1}, 2, v{T+1}\nv_add_u32 v{T+1}, {scr}, v{T+1}") + [("ds", "stf", f"ds_read_b32 v{T}, v{T+1}")]
    f += lines(f"v_lshlrev_b32 v{T+2}, 21, v0\nv_and_b32 v{T+2}, 0xfe000000, v{T+2}\nv_lshl_add_u32 v{T+2}, v1, 3, v{T+2}\ns_lshl_b32 s75, s2, 7\ns_add_u32 s75, s75, {WS_STAT}")
    f += [("wds", ["stf"]), f"v_mov_b32 v{T+1}, s96", ("vm", None, f"buffer_store_dwordx2 v[{T}:{T+1}], v{T+2}, s[8:11], s75 offen sc1")]
    return ld, c, f
def tagtest(tags, exp="s96"):
    L = [f"v_xor_b32 v4, {exp}, v{tags[0]}"]
    for t in tags[1:]: L += [f"v_xor_b32 v5, {exp}, v{t}", "v_or_b32 v4, v4, v5"]
    return L + ["v_cmp_ne_u32 vcc, 0, v4"]
def gcheck(A, name, loads, tags):
    A(f"s_cbranch_vccz {name}_ok\ns_mov_b32 s7, 0x40000")
    A.label(f"{name}_l")
    for x in loads: A(x if isinstance(x, str) else x[2])
    A("s_waitcnt vmcnt(0)"); A.ext(tagtest(tags))
    A(f"s_sub_u32 s7, s7, 1\ns_cbranch_scc1 {name}_ok\ns_cbranch_vccnz {name}_l")
    A.label(f"{name}_ok")
U = [7, 8, 9, 10, 11, 0, 1, 2, 3, 4, 5, 6]
def w2reg(i):
    p = U.index(i)
    return 112 + 20*p if p < 7 else (48 + 20*(p-7) if p < 10 else 20*(p-10))
def w2load(p, base=82):
    i = U[p]
    L = [f"s_add_u32 s79, s{base}, {i*5120}"]
    if i == 2: L += [f"s_cmp_eq_u32 s3, 3\ns_cselect_b32 s79, {hex(OOB)}, s79"]
    for nb in range(5):
        r = w2reg(i) + 4*nb
        L.append(("vm", ("w2", i), f"buffer_load_dwordx4 a[{r}:{r+3}], v{28+(nb>>2)}, s[8:11], s79 offen offset:{(nb&3)*1024} sc1"))
    return L
def w2loads(a, b, base=82): return sum((w2load(p, base) for p in range(a, b)), [])
def spread(A, main, extra, lo=0, hi=None):
    sl = interleave(main, extra, lo, hi) if extra else [[] for _ in main]
    for i, x in enumerate(main):
        A.it(x)
        for y in sl[i]: A.it(y)
def sig_early(A, e, d, t):
    A(f"s_cmp_ge_u32 s{e}, 11\ns_cselect_b32 s{t}, 11, 0\ns_cselect_b32 s{d}, 48, 0\ns_sub_u32 s{t}, s{e}, s{t}\ns_add_u32 s{d}, s{d}, s{t}\ns_mul_i32 s{t}, s{t}, 43\ns_lshr_b32 s{t}, s{t}, 7\ns_mul_i32 s{t}, s{t}, 9\ns_add_u32 s{d}, s{d}, s{t}")
def sig_late(A, l, t):
    A(f"s_lshr_b32 s{t}, s{l}, 2\ns_lshl_b32 s{t}, s{t}, 3\ns_add_u32 s{l}, s{l}, s{t}\ns_add_u32 s{l}, s{l}, 3")
def sig_ssm(A, k, t):
    A(f"s_mul_i32 s{t}, s{k}, 52429\ns_lshr_b32 s{t}, s{t}, 18\ns_mul_i32 s{t}, s{t}, 7\ns_add_u32 s{k}, s{k}, s{t}\ns_add_u32 s{k}, s{k}, 7")
def tlb_touch():
    T = int(OPT.get("tlb", 0))
    if not T: return []
    return lines(f"v_mul_u32_u24 v6, {hex(T*1024)}, v0\nv_min_u32 v7, {SZ_OUT-4}, v6") + [("vm", None, "buffer_load_dword v6, v6, s[8:11], 0 offen sc1"), ("vm", None, "global_load_dword v7, v7, s[62:63]")]
ORD = OPT.get("ord", "A")
def early_setup(A):
    srd(A, 8, P["ws"], WS_END)
    A("v_lshlrev_b32 v28, 4, v1\nv_add_u32 v29, 4096, v28")
    A("v_lshlrev_b32 v8, 20, v1\nv_and_b32 v8, 0xfe000000, v8\nv_lshl_add_u32 v8, v1, 2, v8")
def ph2_setup(A):
    A("s_and_b32 s28, s2, 1\ns_bfe_u32 s32, s2, 0x20001\ns_lshr_b32 s33, s2, 6\ns_lshl2_add_u32 s80, s32, s33\ns_bfe_u32 s81, s2, 0x30003\ns_lshl2_add_u32 s29, s28, s3")
    A(f"s_mul_i32 s32, s29, 12\ns_mul_i32 s33, s81, 96\ns_add_u32 s33, s33, s32\ns_mul_i32 s82, s33, 5120\ns_add_u32 s82, s82, {WS_W2P}")
    A(f"s_lshl1_add_u32 s33, s80, s28\ns_mul_i32 s34, s33, 96\ns_add_u32 s34, s34, s32\ns_lshl_b32 s83, s34, 12\ns_add_u32 s83, s83, {WS_H}")
    A(f"s_xor_b32 s33, s33, 1\ns_mul_i32 s34, s33, 96\ns_add_u32 s34, s34, s32\ns_lshl_b32 s30, s34, 12\ns_add_u32 s30, s30, {WS_H}")
    A(f"s_lshl_b32 s93, s80, 14\ns_add_u32 s93, s93, {WS_FLG}")
ACCG = 96; ACCK = 176
STEPS = [("G",i) for i in U[:5]] + [("K",i) for i in U[:3]] + [("G",i) for i in U[5:]] + [("K",i) for i in U[3:]]
POOL = ["v32", "v48", "v64", "v80", "a112", "a128", "a144", "a0", "a16", "a32"]
HBUF = [7,8,9,0,1,2,3,0,1,2,3,4,5,6,0,1,2,3,4,5,6,0,1,2]
def Hr(n, tb):
    b = POOL[HBUF[n]]; r = int(b[1:]) + 4*tb; return f"{b[0]}[{r}:{r+3}]"
FN = {0: 6, 1: 8, 2: 3, 3: 1, 4: 5}
def fbase(g):
    if g == 0: return lines("s_mul_i32 s31, s28, 22\ns_mul_i32 s32, s3, 6\ns_add_u32 s31, s31, s32\ns_min_u32 s31, s31, 38\ns_lshl_b32 s31, s31, 7\ns_add_u32 s31, s31, s93")
    if g == 1: return lines("s_mul_i32 s31, s29, 172\ns_lshr_b32 s31, s31, 7\ns_lshl_b32 s31, s31, 9\ns_add_u32 s31, s31, s93\ns_add_u32 s31, s31, 5632")
    if g == 2: return lines("s_mul_i32 s31, s29, 5\ns_lshr_b32 s31, s31, 1\ns_lshl_b32 s31, s31, 7\ns_add_u32 s31, s31, s93\ns_add_u32 s31, s31, 11264")
    if g == 3: return lines(f"s_xor_b32 s31, s95, 4\ns_lshl_b32 s31, s31, 7\ns_add_u32 s31, s31, {WS_XF}")
    if g == 4: return lines(f"s_lshl_b32 s31, s81, 3\ns_add_u32 s31, s31, s29\ns_mul_i32 s31, s31, 640\ns_add_u32 s31, s31, {WS_CF}")
    return lines(f"s_mul_i32 s31, s29, 7680\ns_add_u32 s31, s31, {WS_WF}\ns_mul_i32 s32, s81, 5\ns_cmp_eq_u32 s3, 3\ns_cselect_b32 s33, 2, 63")
def faddr(g):
    if g < 5: return [f"v_min_u32 v9, {FN[g]-1}, v1", "v_lshlrev_b32 v9, 7, v9"]
    return lines("v_lshrrev_b32 v9, 1, v1\nv_min_u32 v9, 6, v9\nv_cmp_eq_u32 vcc, s33, v9\nv_and_b32 v2, 1, v1\nv_lshl_add_u32 v2, v2, 2, s32\nv_cndmask_b32 v9, v9, 1, vcc\nv_lshrrev_b32 v2, 3, v2\nv_mad_u32_u24 v9, v9, 5, v2\nv_lshlrev_b32 v9, 7, v9")
def fpoll(g): return glue(fbase(g)) + faddr(g) + [("vm", "fl", "buffer_load_dword v9, v9, s[8:11], s31 offen sc1")]
def fcheck(A, name, g, pre=None):
    A.it(("wvm", ["fl"]))
    A(f"v_cmp_ne_u32 vcc, s96, v9\ns_cbranch_vccz {name}_ok\ns_mov_b32 s7, 0x40000")
    if pre: A(pre)
    A.label(f"{name}_l")
    A.ext(fbase(g) + faddr(g))
    A(f"buffer_load_dword v9, v9, s[8:11], s31 offen sc1\ns_waitcnt vmcnt(0)\nv_cmp_ne_u32 vcc, s96, v9\ns_sub_u32 s7, s7, 1\ns_cbranch_scc1 {name}_ok\ns_cbranch_vccnz {name}_l")
    A.label(f"{name}_ok")
def ftest(dst, src):
    return [("wvm", ["fl"]), f"v_cmp_ne_u32 vcc, s96, v9\ns_nop 0\ns_cmp_eq_u64 vcc, 0\ns_cselect_b32 s{dst}, s{src}, {hex(OOB)}"]
def fredo(A, name, g, dst, src, loads, pre=None):
    A(f"s_cmp_eq_u32 s{dst}, s{src}\ns_cbranch_scc1 {name}_done\ns_mov_b32 s7, 0x40000")
    if pre: A(pre)
    A.label(f"{name}_l")
    A.ext(fbase(g) + faddr(g))
    A(f"buffer_load_dword v9, v9, s[8:11], s31 offen sc1\ns_waitcnt vmcnt(0)\nv_cmp_ne_u32 vcc, s96, v9\ns_sub_u32 s7, s7, 1\ns_cbranch_scc1 {name}_ok\ns_cbranch_vccnz {name}_l")
    A.label(f"{name}_ok")
    for x in loads: A(x if isinstance(x, str) else x[2])
    if name == "FR": A("s_waitcnt vmcnt(0)")
    A.label(f"{name}_done")
def hload(n, base=None):
    hf, i = STEPS[n]
    L = [f"s_add_u32 s77, s{base or (30 if hf == 'G' else 83)}, {i*4096}"]
    if i == 2: L += [f"s_cmp_eq_u32 s3, 3\ns_cselect_b32 s77, {hex(OOB)}, s77"]
    for tb in range(4): L.append(("vm", ("h", n), f"buffer_load_dwordx4 {Hr(n,tb)}, v28, s[8:11], s77 offen offset:{tb*1024} sc1"))
    return L
XS = 81920
def ph2_addr(A):
    srd(A, 24, P["dsk"], 1280)
    A("s_lshl1_add_u32 s32, s80, s28\ns_lshl_b32 s32, s32, 6\ns_lshl_b32 s33, s3, 4\ns_add_u32 s32, s32, s33\nv_lshrrev_b32 v2, 2, v1\nv_mul_u32_u24 v12, 160, v2\nv_add_u32 v2, s32, v2")
    A("v_lshrrev_b32 v15, 3, v2\nv_lshlrev_b32 v15, 7, v15\nv_and_b32 v3, 7, v2\nv_lshl_add_u32 v15, v3, 3, v15\nv_mul_u32_u24 v2, 2560, v2")
    A("s_mul_i32 s98, s81, 160\ns_mul_i32 s97, s32, 1280\ns_add_u32 s97, s97, s98\ns_lshl_b32 s33, s98, 1\nv_and_b32 v3, 3, v1\nv_lshl_add_u32 v13, v3, 4, v2\nv_add_u32 v13, s33, v13")
    A(f"s_mul_i32 s100, s3, 20480\ns_add_u32 s100, s100, {XS}\nv_lshl_add_u32 v14, v3, 3, s100\nv_add_u32 v12, v12, v14\ns_movk_i32 s33, 6554")
    for i in range(3):
        A(f"v_add_u32 v2, {64*i}, v1\nv_min_u32 v2, 159, v2\nv_mul_u32_u24 v3, s33, v2\nv_lshrrev_b32 v3, 16, v3\nv_mul_u32_u24 v3, 1120, v3\nv_lshl_add_u32 v{16+i}, v2, 4, v3")
    A("v_min_u32 v19, 144, v28")
def ph2_addr2(A):
    srd(A, 20, P["out"], SZ_OUT)
    A("v_lshrrev_b32 v2, 4, v1\nv_lshlrev_b32 v3, 2, v2\nv_xor_b32 v3, v3, v1\nv_lshlrev_b32 v3, 4, v3\ns_mul_i32 s75, s3, 20480\nv_add_u32 v22, s75, v3")
    A("v_and_b32 v2, 3, v1\nv_lshrrev_b32 v4, 2, v1\nv_lshlrev_b32 v5, 2, v2\nv_xor_b32 v4, v4, v5\nv_lshl_add_u32 v4, v2, 4, v4\nv_lshlrev_b32 v4, 4, v4\ns_mul_i32 s75, s3, 5120\nv_add_u32 v23, s75, v4\nv_add_u32 v24, 40960, v23")
    A(f"s_mul_i32 s4, s95, 5120\ns_add_u32 s4, s4, {WS_XCH}\ns_xor_b32 s5, s95, 4\ns_mul_i32 s5, s5, 5120\ns_add_u32 s5, s5, {WS_XCH}\ns_lshl_b32 s6, s95, 7\ns_add_u32 s6, s6, {WS_XF}")
def fin_loads():
    L = []
    for i in range(3): L += [f"s_add_u32 m0, s100, {1024*i}", ("vm", "fin", f"buffer_load_dwordx4 v{16+i}, s[16:19], s97 offen lds")]
    L += ["s_add_u32 m0, s100, 3072", ("vm", "fin", "buffer_load_dwordx4 v19, s[24:27], s98 offen lds"), f"s_mov_b32 s75, {WS_STAT}", ("vm", "fin", "buffer_load_dword v10, v15, s[8:11], s75 offen sc1")]
    return L
GROUPS = [[n] for n in range(13)] + [[13, 14]] + [[n] for n in range(15, 21)] + [[21, 22, 23]]
ISSUE = {0: (3, 4), 1: (5,), 2: (6,), 4: (7,), 5: (8,), 6: (9,), 7: (10,), 8: (11, 12), 9: (13,), 10: (14,), 11: (15,), 12: (16,), 13: (17, 18, 19), 15: (20,), 16: (21,), 17: (22,), 18: (23,)}
for k_, ns_ in ISSUE.items():
    for n_ in ns_:
        prev_ = [m for m in range(n_) if HBUF[m] == HBUF[n_]]
        assert (not prev_ or prev_[-1] < k_) and (HBUF[n_] < 4 or k_ > 7)
def acc2(hf, nb, tb): return (ACCG if hf == "G" else ACCK) + (tb*5+nb)*4
def ph2_groups(A, groups, extra, pre={}, first={}):
    pend = []
    for g in groups:
        n0 = g[0]; hf = STEPS[n0][0]
        tags = [("h", n) for n in g] + [("w2", STEPS[n][1]) for n in g if ("w2", STEPS[n][1]) in A.tv]
        if n0 == 16: A.sync(tags)
        else: A.it(("wvm", tags))
        if TS >= 2 and n0 not in (15, 17, 18): A("s_waitcnt lgkmcnt(0)")
        if TS >= 2:
            if n0: A(f"v_writelane_b32 v25, s88, {GROUPS.index(g)-1}")
            A("s_memtime s[88:89]")
        if n0 in pre: pre[n0]()
        mf = []; wr = [[] for _ in range(20*len(g))]
        for nb in range(5):
            for tb in range(4):
                c = acc2(hf, nb, tb)
                for n in g:
                    w = w2reg(STEPS[n][1]) + 4*nb
                    mf.append(f"{MF} v[{c}:{c+3}], a[{w}:{w+3}], {Hr(n,tb)}, " + (f"v[{c}:{c+3}]" if STEPS[n][1] != U[0] else "0"))
                if len(g) > 1:
                    pos = 3*(nb*4+tb) + 8
                    if int(OPT.get("w64", 0)): its = [(pos+k, ("ds", None, f"ds_write_b64 v22, v[{c+2*k}:{c+2*k+1}] offset:{(tb*5+nb)*1024+8*k}")) for k in range(2)]
                    else: its = [(pos, ("ds", None, f"ds_write_b128 v22, v[{c}:{c+3}] offset:{(tb*5+nb)*1024}"))]
                    for pos, it in its:
                        if pos < len(wr): wr[pos].append(it)
                        else: pend.append(it)
        st = [(first.get(n0, []) + sum((hload(n) for n in ISSUE.get(n0, ())), []), 0, len(mf) - 8), (extra.get(n0, []), 1, len(mf) - 1)]
        if len(g) == 1 and pend: st.append((pend, 0, 19)); pend = []
        A.weave(mf, st, fixed=wr)
    A.its(pend)
JOIN = []
def ph2_head(A, name, extra):
    a1 = chop(cap(ph2_addr), 2); a2 = cap(ph2_addr2); w = chop(w2loads(10, 12), 4)
    e = {0: a1[0], 1: a1[1], 2: fpoll(0)[:-1], 3: w[0] + w[1], 4: a2, 5: fpoll(1)[:-1] + fin_loads(), 6: w[2], 7: w[3]}
    for k, v in extra.items(): e[k] = v + e.get(k, [])
    ph2_groups(A, GROUPS[:8], e, {5: lambda: fcheck(A, name + "0", 0)}, {3: fpoll(0)[-1:], 6: fpoll(1)[-1:]})
    JOIN.append({t: A.nv - v for t, v in A.tv.items()})

W_SLOT = 20480; NWS = 4; X_BASE = NWS*W_SLOT; X_SLOT = 16384; F_SCR = X_BASE + 3*X_SLOT
def gen_ffn(A):
    import copy
    A("s_mul_i32 s70, s69, 160\ns_min_u32 s70, s70, 1568")
    A("s_lshl_b32 s32, s68, 7\ns_lshl_b32 s33, s3, 5\ns_add_u32 s32, s32, s33")
    A("v_lshrrev_b32 v2, 3, v1\nv_add_u32 v2, s32, v2\nv_mul_u32_u24 v2, 1280, v2\nv_lshrrev_b32 v3, 4, v1\nv_xor_b32 v3, v3, v1\nv_and_b32 v3, 7, v3\nv_lshlrev_b32 v3, 4, v3")
    A(f"v_add_u32 v15, v2, v3\nv_xor_b32 v3, 64, v3\nv_add_u32 v16, v2, v3\nv_add_u32 v16, {8*1280-1024}, v16\nv_add_u32 v17, {16*1280}, v15\nv_add_u32 v18, {16*1280}, v16")
    A(f"s_mul_i32 s73, s3, 5120\ns_lshl_b32 s74, s3, 12\ns_add_u32 s74, s74, {X_BASE}")
    A("s_mul_i32 s32, s71, 320\ns_lshl_b32 s33, s70, 1\ns_movk_i32 s34, 3277")
    for i in range(5):
        A(f"v_add_u32 v2, s32, v1\nv_add_u32 v2, {64*i}, v2\nv_mul_u32_u24 v3, s34, v2\nv_lshrrev_b32 v3, 16, v3")
        A("v_mul_u32_u24 v4, 20, v3\nv_sub_u32 v4, v2, v4\nv_lshrrev_b32 v5, 2, v3\nv_and_b32 v5, 2, v5\nv_xor_b32 v4, v4, v5")
        A(f"v_mul_u32_u24 v3, 3456, v3\nv_lshl_add_u32 v3, v4, 4, v3\nv_add_u32 v3, s33, v3\nv_subrev_u32 v{10+i}, {1024*(i&3)}, v3")
    def dmaW(s):
        L = [f"s_add_u32 m0, s73, {(s%NWS)*W_SLOT}", f"s_mov_b32 s77, {s*32*3456}"]
        for i in range(5):
            if i == 4: L.append(f"s_add_u32 m0, s73, {(s%NWS)*W_SLOT+4096}")
            L.append(("vm", ("W", s), f"buffer_load_dwordx4 v{10+i}, s[12:15], s77 offen offset:{1024*(i&3)} lds"))
        return L
    def dmaX(u, hs=(0, 1)):
        L = []
        for h in hs:
            L += [f"s_add_u32 m0, s74, {(u%3)*X_SLOT+2048*h}", f"s_movk_i32 s78, {u*128}"]
            for i in range(2): L.append(("vm", ("X", u), f"buffer_load_dwordx4 v{15+2*h+i}, s[16:19], s78 offen offset:{1024*i} lds"))
        return L
    st_ld, st_c, st_f = stats_job(32, X_BASE + 2*X_SLOT)
    def lds_setup(A):
        early_setup(A)
        A("v_lshrrev_b32 v2, 4, v1\nv_bfe_u32 v3, v1, 2, 2\nv_lshl_add_u32 v3, v2, 3, v3\nv_mul_u32_u24 v3, 320, v3")
        A("v_and_b32 v4, 3, v1\nv_lshl_add_u32 v3, v4, 3, v3\nv_and_b32 v4, 1, v2\nv_lshlrev_b32 v4, 5, v4")
        A("s_mul_i32 s75, s72, 192\nv_add_u32 v5, s75, v3\nv_add_u32 v20, v5, v4\nv_sub_u32 v21, v5, v4")
        A("s_lshl_b32 s75, s72, 5\ns_add_u32 s75, s75, 128\nv_xor_b32 v5, s75, v4\nv_add_u32 v22, v3, v5")
        for i in range(3): A(f"v_add_u32 v{23+i}, {3*W_SLOT}, v{20+i}")
        A("v_and_b32 v3, 15, v1\nv_lshrrev_b32 v4, 1, v3\nv_xor_b32 v4, v4, v2\nv_lshlrev_b32 v4, 4, v4\nv_lshl_add_u32 v3, v3, 7, v4")
        A(f"s_lshl_b32 s75, s71, 13\ns_add_u32 s75, s75, {X_BASE}\nv_add_u32 v26, s75, v3\nv_xor_b32 v27, 64, v26")
    PEND = []
    def start(role, pre, post, side):
        pre(A)
        A("s_waitcnt lgkmcnt(0)")
        srd(A, 16, P["x"], SZ_X); A.its(st_ld); post(A)
        A("s_cmp_eq_u32 s72, 0"); srd_sel(A, 12, P["w1"], P["w3"], SZ_W)
        main = dmaX(0) + dmaW(0)
        first, second = (side, main) if (ORD == "B" and side) else (main, side)
        A.its(first)
        A.L.append(f";@TOUCH {role}")
        A(f"s_branch {role}_a"); A.L.append(f";@SEG {role}"); A.label(f"{role}_a")
        lds_setup(A)
        A.its(st_c[:1])
        if ORD == "B": spread(A, st_c[1:], second + dmaW(1), 0, len(st_c) - 10)
        elif ORD == "A": spread(A, st_c[1:], dmaW(1) + second, 0, len(st_c) - 10)
        else: spread(A, st_c[1:], dmaW(1) + dmaX(1) + dmaW(2), 0, len(st_c) - 4); PEND[:] = second
    def hs(A):
        A("s_lshl1_add_u32 s32, s69, s72"); sig_early(A, 32, 84, 33)
        A("s_mul_i32 s33, s69, 3\ns_cmp_eq_u32 s69, 10\ns_cselect_b32 s34, 1, 0\ns_sub_u32 s33, s33, s34\ns_lshl1_add_u32 s85, s72, s33\ns_add_u32 s86, s33, 1")
        sig_late(A, 85, 34); sig_late(A, 86, 34)
        A(f"s_lshl1_add_u32 s33, s68, s71\ns_mul_i32 s34, s33, 96")
        for r in (84, 85, 86): A(f"s_add_u32 s{r}, s{r}, s34\ns_lshl_b32 s{r}, s{r}, 12\ns_add_u32 s{r}, s{r}, {WS_H}")
        A(f"s_cmp_eq_u32 s32, 19\ns_cselect_b32 s85, {hex(OOB)}, s85")
        A(f"s_lshl1_add_u32 s87, s32, s71\ns_lshl_b32 s33, s68, 7\ns_add_u32 s87, s87, s33\ns_lshl_b32 s87, s87, 7\ns_add_u32 s87, s87, {WS_FLG}")
    late_setup = [cap(ph2_setup), []] + chop(cap(hs), 2)
    ep_ld = lines(f"s_mul_i32 s75, s72, 1728\ns_mul_i32 s76, s71, 80\ns_add_u32 s75, s75, s76\ns_add_u32 s75, s75, s70\ns_lshl_b32 s75, s75, 3\ns_add_u32 s75, s75, {WS_CS}\ns_add_u32 s76, s75, {CS_HALF}\nv_min_u32 v2, 624, v28")
    ep_ld += [("vm", "ep", "buffer_load_dwordx4 v[56:59], v2, s[8:11], s75 offen sc1"), ("vm", "ep", "buffer_load_dwordx4 v[60:63], v2, s[8:11], s76 offen sc1")]
    ep_ld += lines(f"v_and_b32 v2, 7, v1\nv_lshlrev_b32 v2, 3, v2\nv_and_b32 v3, 8, v1\nv_lshl_add_u32 v2, v3, 4, v2\ns_lshl1_add_u32 s75, s68, s71\ns_lshl_b32 s75, s75, 10\ns_add_u32 s75, s75, {WS_STAT}")
    for tb in range(4): ep_ld.append(("vm", "ep", f"buffer_load_dwordx2 v[{64+2*tb}:{65+2*tb}], v2, s[8:11], s75 offen offset:{256*tb} sc1"))
    ep_tags = [57, 59, 61, 63, 65, 67, 69, 71]
    ep_t = [("wvm", ["ep"])] + tagtest(ep_tags)
    ep_w = lines(f"v_add_f32 v56, v56, v60\nv_add_f32 v57, v58, v62\ns_lshl_b32 s75, s72, 10\ns_mul_i32 s76, s71, 320\ns_add_u32 s75, s75, s76\ns_add_u32 s75, s75, {F_SCR}\nv_min_u32 v2, 39, v1\nv_lshl_add_u32 v2, v2, 3, s75")
    ep_w += [("ds", None, "ds_write_b64 v2, v[56:57]")]
    ep_r = lines(f"v_and_b32 v2, 48, v1\ns_mul_i32 s75, s72, 384\ns_add_u32 s75, s75, {F_SCR}\nv_add_u32 v3, s75, v2\ns_lshl_b32 s75, s72, 6\ns_add_u32 s75, s75, {F_SCR+256}\nv_add_u32 v2, s75, v2")
    for j in range(10):
        pr, m = j >> 1, j & 1
        ep_r.append(("ds", None, f"ds_read_b128 v[{56+4*j}:{59+4*j}], v{2 if pr == 4 else 3} offset:{1024*m + (0 if pr == 4 else 64*pr)}"))
    ep_c = []
    for tb in range(4):
        ep_c += lines(f"v_lshlrev_b32 v{44+tb}, 16, v{64+2*tb}\nv_and_b32 v{52+tb}, 0xffff0000, v{64+2*tb}\nv_rcp_f32 v{48+tb}, v{52+tb}\nv_mul_f32 v{52+tb}, v{52+tb}, v{52+tb}\nv_mul_f32 v{48+tb}, 0xbfb8aa3b, v{48+tb}")
    ep_a = lines("v_lshrrev_b32 v2, 4, v1\nv_and_b32 v3, 1, v2\nv_lshlrev_b32 v3, 10, v3\nv_lshrrev_b32 v2, 1, v2\nv_lshl_add_u32 v3, v2, 8, v3")
    ep_a += lines("v_and_b32 v2, 15, v1\nv_lshl_add_u32 v3, v2, 4, v3\ns_lshl_b32 s75, s72, 9\nv_add_u32 v30, s75, v3\nv_mov_b32 v31, s96\ns_add_u32 s99, s87, 5632")
    ACC = 96
    def acc(j, tb): return ACC + (j*4+tb)*4
    def Wr(par, j): return par*56 + j*4
    def Xr(par, tb): return par*56 + 40 + tb*4
    def reads(s):
        par = s & 1; L = []; sl = s % NWS; hi = 3 if sl >= 3 else 0; so = (sl - hi)*W_SLOT
        for tb in range(4): L.append(("ds", None, f"ds_read_b128 a[{Xr(par,tb)}:{Xr(par,tb)+3}], v{26+(s&1)} offset:{((s>>1)%3)*X_SLOT + tb*2048}"))
        for j in range(10):
            pr, m = j >> 1, j & 1; ar = 22 if pr == 4 else 20 + (pr & 1); co = 0 if pr == 4 else pr*32
            for hh in range(2): L.append(("ds", None, f"ds_read_b64_tr_b16 a[{Wr(par,j)+2*hh}:{Wr(par,j)+2*hh+1}], v{ar+hi} offset:{so + m*10240 + hh*1280 + co}"))
        return L
    wl = chop(w2loads(0, 7), 9)
    def loop(role, mem, side, xt={}):
        M = {0: dmaX(1) + dmaW(2), 1: dmaW(3) + dmaX(2), 2: dmaW(4) + dmaW(5), 3: dmaX(3) + dmaW(6), 4: dmaW(7) + dmaW(8), 5: dmaX(4) + dmaW(9), 6: dmaW(10) + dmaX(5)}
        for s in range(7, 16): M[s] = dmaW(s+4) + (dmaX((s+5) >> 1, ((s+1) & 1,)) if s < 15 else [])
        if ORD == "C": M[0] = PEND + dmaW(3); M[1] = dmaX(2) + dmaW(4); M[2] = dmaW(5)
        if "flat" in OPT:
            F = int(OPT["flat"])
            M = {s: (dmaW(s+3) if s+3 < 20 else []) + (dmaX((s+4) >> 1, (s & 1,)) if (s+4) >> 1 < 10 else []) for s in range(20)}
        for s, L in mem.items(): M[s] = M[s] + ([x if isinstance(x, str) else (x[0], x[1], x[2].replace("s77 offen", "s76 offen")) for x in L] if "noside" in OPT else L)
        M[15] += wl[0]
        for s in range(16, 20): M[s] = M.get(s, []) + wl[2*s-31] + wl[2*s-30]
        S = dict(side)
        for k, L in {5: late_setup[0], 6: late_setup[2], 8: late_setup[3], 11: ep_a, 12: fpoll(4), 13: ep_ld, 15: fpoll(5), 16: ep_t, 17: ep_w + ep_c, 18: ep_r}.items():
            S[k] = S.get(k, []) + L
        A.L.append(f";@TOUCH P{0 if role == 'FA' else 2}")
        A.sync([("X", 0), ("W", 0)]); stamp(A, 1)
        A.its(reads(0))
        for s in range(20):
            tags = ([("W", s+1), ("X", (s+1) >> 1)] if s < 19 else []) + xt.get(s, [])
            if s == 15: fcheck(A, role + "C", 4)
            if s == 17: gcheck(A, role + "G", ep_ld, ep_tags); fcheck(A, role + "P", 5)
            A.sync(tags)
            tick(A, s, 19)
            par = s & 1; mf = []
            for j in range(10):
                for tb in range(4):
                    c = acc(j, tb); mf.append(f"{MF} v[{c}:{c+3}], a[{Wr(par,j)}:{Wr(par,j)+3}], a[{Xr(par,tb)}:{Xr(par,tb)+3}], " + (f"v[{c}:{c+3}]" if s else "0"))
            A.weave(mf, [(reads(s+1) if s < 19 else [], 0, 30), (M.get(s, []), 0, 39), (S.get(s, []), 1, 39)])
    A("s_mul_i32 s32, s68, 11\ns_add_u32 s32, s32, s69\ns_cmp_ge_u32 s32, 108\ns_cbranch_scc1 FB_p")
    snap = (A.nv, dict(A.tv), A.dv, A.nd, dict(A.td), A.dd)
    def fa0(A):
        A(f"s_lshr_b32 s33, s32, 1\ns_and_b32 s34, s32, 1\ns_cmp_lt_u32 s33, 27\ns_cselect_b32 s35, 0, 27\ns_sub_u32 s35, s33, s35\ns_lshl_b32 s35, s35, 7\ns_lshl2_add_u32 s97, s34, s3\ns_mul_i32 s97, s97, {8*3456}\ns_add_u32 s97, s97, s35")
        A("v_lshrrev_b32 v2, 3, v1\nv_mul_u32_u24 v2, 3456, v2\nv_and_b32 v3, 7, v1\nv_lshl_add_u32 v30, v3, 4, v2")
    def fa1(A):
        A("s_cmp_lt_u32 s33, 27"); srd_sel(A, 24, P["w1"], P["w3"], SZ_W)
    def fa2(A):
        A(f"s_lshl_b32 s98, s33, 9\ns_mul_i32 s34, s34, {CS_HALF}\ns_add_u32 s98, s98, s34\ns_add_u32 s98, s98, {WS_CS}\ns_cmp_eq_u32 s3, 0\ns_cselect_b32 s98, s98, {hex(OOB)}")
        A("v_and_b32 v2, 15, v1\nv_and_b32 v3, 1, v1\nv_lshlrev_b32 v3, 4, v3\nv_mov_b32 v4, 0x3f80\nv_lshlrev_b32 v3, v3, v4\nv_lshrrev_b32 v2, 1, v2")
        for r in range(4): A(f"v_cmp_eq_u32 vcc, {r}, v2\nv_cndmask_b32 v{72+r}, 0, v3, vcc")
        A(f"v_and_b32 v2, 7, v1\nv_lshlrev_b32 v2, 5, v2\nv_and_b32 v3, 16, v1\nv_add_u32 v2, v2, v3\ns_lshl_b32 s75, s3, 8\ns_add_u32 s75, s75, {F_SCR}\nv_add_u32 v2, s75, v2\nv_and_b32 v3, 32, v1\nv_lshl_add_u32 v80, v3, 5, v2")
        A(f"v_lshlrev_b32 v82, 2, v1\nv_add_u32 v81, {F_SCR}, v82\nv_lshlrev_b32 v82, 3, v1")
    cs_ld = []
    for i in range(10): cs_ld += [f"s_add_u32 s77, s97, {i*64*3456}", ("vm", "csl", f"buffer_load_dwordx4 a[{112+4*i}:{115+4*i}], v30, s[24:27], s77 offen")]
    cs_c = [("wvm", ["csl"])]
    for i in range(10): cs_c.append(f"{MF} v[76:79], v[72:75], a[{112+4*i}:{115+4*i}], " + ("v[76:79]" if i else "0"))
    cs_c += ["s_nop 0"]*2
    for e in range(4): cs_c.append(f"v_add_f32_dpp v{76+e}, v{76+e}, v{76+e} row_ror:8 row_mask:0xf bank_mask:0xf")
    cs_c.append(("ds", None, "ds_write_b128 v80, v[76:79]"))
    cs_f = [("ds", "csf", f"ds_read_b32 v{72+w}, v81 offset:{256*w}") for w in range(4)]
    cs_f += [("wds", ["csf"]), "v_add_f32 v72, v72, v73", "v_add_f32 v74, v74, v75", "v_mov_b32 v73, s96", "v_add_f32 v72, v72, v74", ("vm", None, "buffer_store_dwordx2 v[72:73], v82, s[8:11], s98 offen sc1")]
    CB = F_SCR + 4096
    def fc1(A):
        A("s_cmp_eq_u32 s72, 0"); srd_sel(A, 20, P["cre"], P["cim"], SZ_B)
        A(f"s_and_b32 s4, s32, 7\ns_lshr_b32 s5, s32, 3\ns_lshl1_add_u32 s99, s4, s71\ns_mul_i32 s99, s99, 51200\ns_lshl_b32 s75, s5, 7\ns_add_u32 s99, s99, s75\ns_cmp_lt_u32 s32, 80\ns_cselect_b32 s99, s99, {hex(OOB)}")
        A(f"s_add_u32 s101, s73, {CB}\nv_lshrrev_b32 v2, 3, v1\nv_mul_u32_u24 v2, 1280, v2\nv_lshrrev_b32 v3, 4, v1\nv_xor_b32 v3, v3, v1\nv_and_b32 v3, 7, v3\nv_lshl_add_u32 v2, v3, 4, v2\ns_lshl_b32 s75, s71, 6\nv_xor_b32 v84, s75, v2\nv_xor_b32 v85, 64, v84")
    def fc2(A):
        A(f"s_lshl1_add_u32 s5, s5, s71\ns_lshl1_add_u32 s5, s5, s72\ns_mul_i32 s6, s4, 40\ns_add_u32 s6, s6, s5\ns_lshl_b32 s6, s6, 7\ns_add_u32 s6, s6, {WS_CF}")
        sig_ssm(A, 5, 75)
        A(f"s_mul_i32 s4, s4, 96\ns_add_u32 s5, s5, s4\ns_mul_i32 s100, s5, 5120\ns_add_u32 s100, s100, {WS_W2P}\ns_cmp_lt_u32 s32, 80\ns_cselect_b32 s100, s100, {hex(OOB)}\ns_cselect_b32 s6, s6, {hex(OOB)}")
        A(f"s_mul_i32 s75, s71, 8128\ns_mul_i32 s76, s72, 10240\ns_sub_u32 s76, s76, s75\ns_add_u32 s76, s76, {CB - X_BASE}\ns_lshl_b32 s75, s71, 6\ns_sub_u32 s76, s76, s75\nv_xor_b32 v86, s75, v26\nv_add_u32 v86, s76, v86")
    c_ld = []
    for i in range(5): c_ld += [f"s_add_u32 m0, s101, {1024*i}", f"s_add_u32 s77, s99, {10240*i}", ("vm", "cl", f"buffer_load_dwordx4 v{84+(i&1)}, s[20:23], s77 offen lds")]
    c_r = [("ds", None, f"ds_read_b128 a[{152+4*nb}:{155+4*nb}], v86 offset:{2048*nb}") for nb in range(5)]
    c_s = [("vm", "cs", f"buffer_store_dwordx4 a[{152+4*nb}:{155+4*nb}], v{28+(nb>>2)}, s[8:11], s100 offen offset:{(nb&3)*1024} sc1") for nb in range(5)]
    c_f = ["v_mov_b32 v3, s96", ("wvm", ["cs"]), ("vm", None, "buffer_store_dword v3, v8, s[8:11], s6 offen sc1")]
    CD = int(OPT.get("cd", 0))
    start("FA", fa0, fa1, cs_ld)
    fc1(A)
    loop("FA", {CD: c_ld, CD+2: c_r, CD+3: c_s[:3], CD+4: c_s[3:]}, {0: st_f + cap(fc2), 1: cap(fa2), CD+7: c_f, 9: cs_c, 10: cs_f}, {CD+2: ["cl"]})
    A("s_branch FFN_EP")
    A.nv, A.tv, A.dv, A.nd, A.td, A.dd = snap
    A.L.append(";@SEG FBP"); A.label("FB_p")
    SO = (4, 5, 6, 97, 24, 25, 26, 27)
    def fb1(A):
        A("s_sub_u32 s34, s32, 108\ns_lshl2_add_u32 s32, s34, s3\ns_mul_i32 s34, s32, 52429\ns_lshr_b32 s34, s34, 18\ns_mul_i32 s33, s34, 5\ns_sub_u32 s33, s32, s33")
        A(f"s_mul_i32 s99, s34, 40960\ns_lshl_b32 s35, s33, 8\ns_add_u32 s99, s99, s35\ns_lshl_b32 s101, s3, 13\ns_add_u32 s101, s101, {F_SCR}")
        A(f"v_lshrrev_b32 v2, 4, v1\nv_mul_u32_u24 v30, 1280, v2\nv_and_b32 v3, 15, v1\nv_lshlrev_b32 v2, 1, v2\nv_xor_b32 v3, v3, v2\nv_lshl_add_u32 v30, v3, 4, v30\nv_xor_b32 v31, 128, v30")
    def fb2(A):
        A("s_mul_i32 s35, s34, 52429\ns_lshr_b32 s35, s35, 18\ns_mul_i32 s75, s35, 5\ns_sub_u32 s75, s34, s75\ns_sub_u32 s76, s34, 49\ns_cmp_ge_u32 s34, 49\ns_cselect_b32 s35, 10, s35\ns_cselect_b32 s75, s76, s75")
        A("s_cmp_eq_u32 s75, 3\ns_cselect_b32 s76, 1, 0\ns_lshl1_add_u32 s76, s35, s76"); sig_early(A, 76, 100, 79)
        A("s_mul_i32 s76, s35, 3\ns_lshr_b32 s79, s75, 1\ns_add_u32 s76, s76, s79\ns_cmp_eq_u32 s35, 10\ns_cselect_b32 s79, 1, 0\ns_sub_u32 s76, s76, s79"); sig_late(A, 76, 79)
        A("s_lshr_b32 s79, 9, s75\ns_bitcmp1_b32 s79, 0\ns_cselect_b32 s100, s100, s76")
        A(f"s_mul_i32 s98, s100, 5\ns_add_u32 s98, s98, s33\ns_lshl_b32 s98, s98, 7\ns_add_u32 s98, s98, {WS_WF}")
        A(f"s_mul_i32 s100, s100, 5120\ns_lshl_b32 s79, s33, 13\ns_add_u32 s100, s100, s79\ns_add_u32 s100, s100, {WS_W2P}")
        A(f"s_cmp_lt_u32 s32, 270\ns_cselect_b32 s100, s100, {hex(OOB)}\ns_cselect_b32 s98, s98, {hex(OOB)}")
        A("s_cmp_eq_u32 s75, 2\ns_cselect_b32 s75, 8, 4\ns_cselect_b32 s76, 1, 4\ns_lshl_b32 s76, s76, 10")
        A(f"v_lshrrev_b32 v2, 4, v1\nv_mul_u32_u24 v2, s75, v2\nv_bfe_u32 v3, v1, 2, 2\nv_add_u32 v2, v2, v3\nv_lshlrev_b32 v2, 8, v2\nv_and_b32 v3, 3, v1\nv_lshl_add_u32 v2, v3, 3, v2")
        for r in (80, 81):
            A((f"v_mov_b32 v{r}, v2" if r == 80 else f"v_add_u32 v{r}, s76, v2") + f"\nv_lshrrev_b32 v3, 1, v{r}\nv_and_b32 v3, 0x400, v3\nv_xor_b32 v3, v3, v{r}\nv_bfe_u32 v3, v3, 8, 3\nv_lshl_add_u32 v{r}, v3, 5, v{r}\nv_add_u32 v{r}, s101, v{r}")
        A(f"s_mul_i32 s33, s33, {8*52429}")
        for k in range(8): A(f"s_add_u32 s79, s33, {k*52429}\ns_lshr_b32 s79, s79, 18\ns_mul_i32 s79, s79, 486400\ns_add_u32 s{SO[k]}, s100, s79")
    w2_ld = []
    for i in range(8): w2_ld += [f"s_add_u32 m0, s101, {1024*i}", f"s_add_u32 s77, s99, {5120*i}", ("vm", "w2l", f"buffer_load_dwordx4 v{30 + ((i ^ (i >> 1)) & 1)}, s[20:23], s77 offen lds")]
    w2_c = [("wvm", ["w2l"])]
    for k in range(8):
        for hh in range(2): w2_c += [f"v_xor_b32 v{82+hh}, {32*k}, v{80+hh}", ("ds", "w2t", f"ds_read_b64_tr_b16 a[{152+4*k+2*hh}:{153+4*k+2*hh}], v{82+hh}")]
    w2_s = [("vm", "side", f"buffer_store_dwordx4 a[{152+4*k}:{155+4*k}], v{28+(k>>2)}, s[8:11], s{SO[k]} offen offset:{(k&3)*1024} sc1") for k in range(8)]
    f2 = chop(cap(fb2), 3)
    BD = int(OPT.get("bd", 0))
    start("FB", fb1, lambda A: srd(A, 20, P["w2"], SZ_W), w2_ld if BD < 0 else [])
    fl = ["v_mov_b32 v3, s96", ("wvm", ["side"]), ("vm", None, "buffer_store_dword v3, v8, s[8:11], s98 offen sc1")]
    if BD < 0: loop("FB", {}, {0: st_f + f2[0], 1: f2[1], 2: f2[2], 3: w2_c, 4: w2_s[:4], 5: w2_s[4:], 8: fl})
    else: loop("FB", {BD: w2_ld}, {0: st_f + f2[0], 1: f2[1], 2: f2[2], BD+3: w2_c, BD+4: w2_s[:3], BD+5: w2_s[3:6], BD+6: w2_s[6:], BD+9: fl})
    A.L.append(";@SEG EP"); A.label("FFN_EP"); A.reset()
    A("s_waitcnt lgkmcnt(0)"); tick(A, 20, 19); tockdump(A, 20, 19, 0x40000)
    stamp(A, 2)
    A("s_nop 6")
    T = 32
    def silu(pr, tb, dst):
        g, u = acc(2*pr, tb), acc(2*pr+1, tb); cg, cu = 56+8*pr, 60+8*pr
        L = []
        for k in (0, 2): L.append(pk("fma", g+k, cg+k, ("b", 44+tb), g+k, neg=(1,)))
        for k in (0, 2): L.append(pk("mul", T+k, g+k, ("b", 48+tb)))
        for k in (0, 2): L.append(pk("fma", u+k, cu+k, ("b", 44+tb), u+k, neg=(1,)))
        for e in range(4): L.append(f"v_exp_f32 v{T+e}, v{T+e}")
        for k in (0, 2): L.append(pk("mul", g+k, g+k, u+k))
        for k in (0, 2): L.append(pk("fma", T+k, T+k, ("b", 52+tb), ("b", 52+tb)))
        for e in range(4): L.append(f"v_rcp_f32 v{T+e}, v{T+e}")
        for k in (0, 2): L.append(pk("mul", g+k, g+k, T+k))
        L += [f"v_cvt_pk_bf16_f32 v{dst}, v{g}, v{g+1}", f"v_cvt_pk_bf16_f32 v{dst+1}, v{g+2}, v{g+3}"]
        return L
    ep = []
    PP = int(OPT.get("pp", 6)); PC = int(OPT.get("pc", 8)); EF = int(OPT.get("ef", 9)); LF = int(OPT.get("lf", 2))
    grp = []
    for fr in range(2):
        for tb in range(4):
            o = acc(4*fr+1, tb)
            grp.append((silu(2*fr, tb, o) + silu(2*fr+1, tb, o+2), ("vm", ("H", fr), f"buffer_store_dwordx4 v[{o}:{o+3}], v28, s[8:11], s{84+fr} offen offset:{tb*1024} sc1")))
    for tp in range(2):
        o = acc(9, 2*tp)
        grp.append((silu(4, 2*tp, o) + silu(4, 2*tp+1, o+2) + [f"v_permlane16_swap_b32 v{o}, v{o+2}", f"v_permlane16_swap_b32 v{o+1}, v{o+3}"],
                    ("vm", ("H", 2), f"buffer_store_dwordx4 v[{o}:{o+3}], v30, s[8:11], s86 offen offset:{tp*2048} sc1")))
    h3 = hload(0, 34) + hload(1, 34) + hload(2, 34)
    we = chop(w2loads(7, 7+FE), 6) if FE else [[]]*6; hl = chop(h3, 9-PC) if PC < 9 else []
    for k, (c, st) in enumerate(grp):
        spread(A, c, we[k] if k < 6 else (hl[k-PC-1] if k > PC else []))
        if k == PP: A.its(fpoll(2))
        if k == EF: A.its([("wvm", [("H", 0)]), ("vm", None, "buffer_store_dword v31, v8, s[8:11], s87 offen sc1")])
        if k == PC: A.its(ftest(34, 30))
        A.it(st)
    if PC >= 9:
        if PC > 9: A.its(ftest(34, 30))
        A.its(h3)
    stamp(A, 3)
    fs = "buffer_store_dword v31, v8, s[8:11], s99 offen sc1"
    fredo(A, "FR", 2, 34, 30, hload(0) + hload(1) + hload(2), pre="s_waitcnt vmcnt(0)\n" + fs)
    stamp(A, 6)
    ex = dict(enumerate(chop(w2loads(7+FE, 10), 3))) if FE < 3 else {}
    ex[LF] = ex.get(LF, []) + [("wvm", [("H", 2)]), ("vm", None, fs)]
    ph2_head(A, "FC", ex)
    A("s_branch PH2")

S_SLOT = 49152; S_SCR = 3*S_SLOT
def gen_ssm(A):
    A.reset()
    A("s_lshl_b32 s32, s68, 8\ns_lshl_b32 s33, s72, 7\ns_add_u32 s32, s32, s33\ns_lshl_b32 s33, s71, 3\ns_add_u32 s32, s32, s33")
    A("v_and_b32 v2, 32, v1\nv_bfe_u32 v3, v1, 3, 1\nv_lshl_add_u32 v2, v3, 4, v2\nv_bfe_u32 v3, v1, 4, 1\nv_add3_u32 v2, v2, v3, s32\nv_mul_u32_u24 v2, 1280, v2")
    A("v_lshrrev_b32 v3, 4, v1\nv_xor_b32 v3, v3, v1\nv_and_b32 v3, 7, v3\nv_lshlrev_b32 v3, 4, v3\nv_xor_b32 v4, 64, v3\nv_add_u32 v5, v2, v3\nv_add_u32 v6, v2, v4")
    for ii in range(8): A(f"v_add_u32 v{10+ii}, {(64*(ii&1) + 2*(ii>>1))*1280 - 1024*(ii&3)}, v{5+(ii&1)}")
    A("s_lshl_b32 s32, s69, 6\ns_lshl_b32 s33, s71, 5\ns_add_u32 s32, s32, s33")
    A("v_lshrrev_b32 v2, 3, v1\nv_add_u32 v2, s32, v2\nv_mul_u32_u24 v2, 1280, v2\nv_add_u32 v5, v2, v3\nv_add_u32 v6, v2, v4")
    for i in range(4): A(f"v_add_u32 v{18+i}, {8*i*1280 - 1024*i}, v{5+(i&1)}")
    A("s_lshl_b32 s73, s3, 13\ns_lshl_b32 s74, s3, 12\ns_add_u32 s74, s74, 32768")
    st_ld, st_c, st_f = stats_job(32, S_SCR)
    def dma(u, hs=(0, 1)):
        b = (u % 3)*S_SLOT; L = []
        for h in hs:
            L += [f"s_add_u32 m0, s73, {b+4096*h}", f"s_movk_i32 s78, {u*128}"]
            for i in range(4): L.append(("vm", ("S", u), f"buffer_load_dwordx4 v{10+4*h+i}, s[16:19], s78 offen offset:{1024*i} lds"))
            L.append(f"s_add_u32 m0, s74, {b}")
            for i in range(2): L.append(("vm", ("S", u), f"buffer_load_dwordx4 v{18+2*h+i}, s[12:15], s78 offen offset:{1024*(2*h+i)} lds"))
        return L
    p_ld = lines("s_lshl_b32 s32, s69, 6\ns_lshl_b32 s33, s72, 5\ns_add_u32 s32, s32, s33\nv_and_b32 v2, 15, v1\nv_add_u32 v30, s32, v2\nv_lshlrev_b32 v2, 1, v30")
    for cb in range(2):
        for q, sp in enumerate((P["lre"], P["lim"], P["ldt"])): p_ld.append(("vm", "P", f"global_load_ushort v{112+3*cb+q}, v2, s[{sp}:{sp+1}] offset:{32*cb}"))
    def lds_setup(A):
        early_setup(A)
        A("v_lshrrev_b32 v2, 4, v1\nv_and_b32 v3, 15, v1\nv_lshrrev_b32 v4, 1, v3\nv_xor_b32 v4, v4, v2\nv_lshlrev_b32 v4, 4, v4\nv_lshl_add_u32 v3, v3, 7, v4")
        A("s_lshl_b32 s75, s71, 14\ns_lshl_b32 s76, s72, 12\ns_add_u32 s76, s76, 32768")
        A("v_add_u32 v22, s75, v3\nv_xor_b32 v23, 64, v22\nv_add_u32 v120, s76, v3\nv_xor_b32 v121, 64, v120")
        for sl in (1, 2):
            for ks in range(2): A(f"v_add_u32 v{22+2*sl+ks}, {sl*S_SLOT}, v{22+ks}\nv_add_u32 v{120+2*sl+ks}, {sl*S_SLOT}, v{120+ks}")
    def ss0(A):
        A("s_mul_i32 s32, s68, 10\ns_add_u32 s32, s32, s69\ns_lshl2_add_u32 s35, s32, s3\ns_cmp_lt_u32 s35, 160\ns_cselect_b32 s33, 0, 160\ns_sub_u32 s33, s35, s33\ns_mul_i32 s97, s33, 5120")
        A("v_bfe_u32 v2, v1, 2, 2\nv_mul_u32_u24 v2, 1280, v2\nv_and_b32 v3, 3, v1\nv_lshl_add_u32 v2, v3, 4, v2\nv_lshrrev_b32 v4, 4, v1\nv_lshl_add_u32 v67, v4, 6, v2")
    def ss1(A):
        A(f"s_lshl_b32 s98, s35, 7\ns_add_u32 s98, s98, {WS_CSB}")
        A("v_lshlrev_b32 v2, 21, v1\nv_and_b32 v2, 0xfe000000, v2\nv_lshl_add_u32 v55, v1, 3, v2")
        for r in range(4): A(f"v_mov_b32 v{68+r}, 0x3f803f80")
        A("s_lshl_b32 s32, s71, 2\nv_lshrrev_b32 v31, 4, v1\nv_add_u32 v31, s32, v31")
    def ss3(A):
        A("s_lshl1_add_u32 s32, s69, s72\ns_lshl_b32 s84, s32, 1\ns_add_u32 s85, s84, 1"); sig_ssm(A, 84, 33); sig_ssm(A, 85, 33)
        A(f"s_lshl1_add_u32 s34, s68, s71\ns_mul_i32 s35, s34, 192")
        for r in (84, 85): A(f"s_add_u32 s{r}, s{r}, s35\ns_lshl_b32 s{r}, s{r}, 12\ns_add_u32 s{r}, s{r}, {WS_H}")
        A(f"s_lshl_b32 s87, s34, 7\ns_add_u32 s87, s87, s32\ns_lshl_b32 s87, s87, 7\ns_add_u32 s87, s87, {WS_FLG+88*128}")
        A(f"s_add_u32 s86, s84, {96*4096}\ns_add_u32 s78, s85, {96*4096}")
    def ss4(A):
        A("s_mul_i32 s75, s3, 20480\nv_and_b32 v2, 15, v1\nv_bfe_u32 v3, v2, 2, 1\nv_and_b32 v4, 3, v2\nv_lshl_add_u32 v3, v4, 1, v3\nv_and_b32 v4, 8, v2\nv_or_b32 v3, v3, v4")
        A("v_lshrrev_b32 v4, 4, v1\nv_lshlrev_b32 v5, 2, v4\nv_xor_b32 v3, v3, v5\nv_lshlrev_b32 v3, 4, v3\nv_lshl_add_u32 v3, v2, 8, v3\nv_add_u32 v10, s75, v3")
        A("v_bfe_u32 v2, v1, 2, 2\nv_lshlrev_b32 v3, 5, v2\nv_and_b32 v5, 1, v4\nv_lshl_add_u32 v3, v5, 7, v3\nv_and_b32 v5, 3, v1\nv_lshl_add_u32 v3, v5, 3, v3")
        A("v_lshl_add_u32 v2, v4, 3, v2\nv_lshl_add_u32 v3, v2, 8, v3\nv_add_u32 v11, s75, v3")
    def ss5(A):
        A("v_lshlrev_b32 v3, 4, v30\nv_lshlrev_b32 v2, 21, v1\nv_and_b32 v2, 0xfe000000, v2\nv_add_u32 v12, v2, v3\ns_lshl1_add_u32 s76, s68, s71\ns_mul_i32 s97, s76, 10240")
        A("v_lshrrev_b32 v2, 4, v1\nv_mul_u32_u24 v13, 10240, v2\ns_sub_u32 s75, s97, 10240\nv_sub_u32 v13, s75, v13\nv_add_u32 v13, v13, v3\nv_mov_b32 v21, s96")
        for i in range(4):
            if i: A(f"v_subrev_u32 v{13+i}, {40960*i}, v13\nv_add_u32 v2, 4, v2")
            A(f"v_cmp_gt_u32 vcc, s76, v2\nv_cndmask_b32 v{17+i}, 0, v21, vcc")
    b_ld = [("vm", "bl", f"buffer_load_dwordx4 a[{112+4*i}:{115+4*i}], v67, s[24:27], s97 offen offset:{256*i}") for i in range(5)]
    b_c = [("wvm", ["bl"])]
    for i in range(5): b_c.append(f"{MF} v[56:59], v[68:71], a[{112+4*i}:{115+4*i}], " + ("v[56:59]" if i else "0"))
    b_c += ["s_nop 0"]*3
    b_c += ["v_add_f32_dpp v56, v56, v56 quad_perm:[1,0,3,2] row_mask:0xf bank_mask:0xf", "v_add_f32_dpp v56, v56, v56 quad_perm:[2,3,0,1] row_mask:0xf bank_mask:0xf",
            "v_mov_b32 v57, s96", ("vm", None, "buffer_store_dwordx2 v[56:57], v55, s[8:11], s98 offen sc1")]
    NM = "LR LI CA CB L16R L16I L32R L32I L512R L512I QR QI UR UI WR WI PR PI T0 T1".split()
    def Pm(cb): return dict(zip(NM, range(72+20*cb, 72+20*cb+20)))
    par_c = [("wvm", ["P"])] + lines("v_lshrrev_b32 v60, 4, v1\nv_cvt_f32_u32 v60, v60\nv_mul_f32 v60, 0x42000000, v60\nv_sub_f32 v61, 0x42c00000, v60\nv_mul_f32 v62, 4.0, v60")
    for cb in range(2):
        p = Pm(cb); i0 = 112 + 3*cb; zr, zt, t0, t1 = p['PR'], p['PI'], p['T0'], p['T1']
        def power(d, n):
            pre = [f"v_mul_f32 v{t0}, {n}, v{zr}", f"v_mul_f32 v{t1}, {n}, v{zt}"] if n else []
            a, b = (t0, t1) if n else (zr, zt)
            return pre + lines(f"v_exp_f32 v{t0}, v{a}\nv_fract_f32 v{t1}, v{b}\nv_cos_f32 v{d}, v{t1}\nv_sin_f32 v{d+1}, v{t1}\nv_mul_f32 v{d}, v{d}, v{t0}\nv_mul_f32 v{d+1}, v{d+1}, v{t0}")
        par_c += lines(f"""v_lshlrev_b32 v{i0+2}, 16, v{i0+2}
v_mul_f32 v{t0}, 0x3fb8aa3b, v{i0+2}
v_exp_f32 v{t0}, v{t0}
v_lshlrev_b32 v{i0}, 16, v{i0}
v_lshlrev_b32 v{i0+1}, 16, v{i0+1}
v_cvt_pk_bf16_f32 v{t0}, v{t0}, v{t0}
v_and_b32 v{t0}, 0xffff0000, v{t0}
v_mul_f32 v{zr}, v{t0}, v{i0}
v_mul_f32 v{zt}, v{t0}, v{i0+1}
v_mul_f32 v{zr}, 0x3fb8aa3b, v{zr}
v_mul_f32 v{zt}, 0.15915494, v{zt}""") + power(p['LR'], None)
        par_c += lines(f"""v_mul_f32 v{t1}, v{i0}, v{i0}
v_fmac_f32 v{t1}, v{i0+1}, v{i0+1}
v_rcp_f32 v{t1}, v{t1}
v_add_f32 v{t0}, -1.0, v{p['LR']}
v_mul_f32 v{p['CA']}, v{t0}, v{i0}
v_add_f32 v{t1}, v{t1}, v{t1}
v_fmac_f32 v{p['CA']}, v{p['LI']}, v{i0+1}
v_mul_f32 v{p['CB']}, v{p['LI']}, v{i0}
v_fma_f32 v{p['CB']}, -v{t0}, v{i0+1}, v{p['CB']}
v_mul_f32 v{p['CA']}, v{p['CA']}, v{t1}
v_mul_f32 v{p['CB']}, v{p['CB']}, v{t1}""")
        par_c += power(p['L16R'], "0x41800000") + power(p['L32R'], "0x42000000") + power(p['L512R'], "0x44000000") + power(p['QR'], "v60") + power(p['UR'], "v61") + power(p['WR'], "v62")
    ep_ld = lines(f"v_lshrrev_b32 v2, 3, v0\nv_lshlrev_b32 v2, 7, v2\nv_and_b32 v3, 7, v0\nv_lshl_add_u32 v2, v3, 3, v2\ns_lshl_b32 s75, s68, 12\ns_add_u32 s75, s75, {WS_STAT}") + [("vm", "ep", "buffer_load_dwordx2 v[52:53], v2, s[8:11], s75 offen sc1")]
    ep_ld += lines(f"v_lshrrev_b32 v2, 2, v30\nv_lshlrev_b32 v2, 7, v2\nv_and_b32 v3, 3, v30\nv_lshl_add_u32 v2, v3, 5, v2\ns_mov_b32 s75, {WS_CSB}\ns_mov_b32 s76, {WS_CSB+20480}")
    def CS(cb, im): return 112 + 4*cb + 2*im
    for cb in range(2):
        for im in range(2): ep_ld.append(("vm", "ep", f"buffer_load_dwordx2 v[{CS(cb,im)}:{CS(cb,im)+1}], v2, s[8:11], s{75+im} offen offset:{512*cb} sc1"))
    ep_tags = [53, 113, 115, 117, 119]
    ep_t = [("wvm", ["ep"])] + tagtest(ep_tags)
    ep_c = lines(f"""v_and_b32 v53, 0xffff0000, v52
v_rcp_f32 v53, v53
v_lshlrev_b32 v52, 16, v52
v_and_b32 v2, 15, v0
v_bfe_u32 v3, v0, 4, 1
v_lshl_add_u32 v2, v2, 1, v3
v_and_b32 v3, 0xe0, v0
v_add_u32 v2, v2, v3
v_mul_f32 v52, v52, v53
v_lshlrev_b32 v2, 2, v2
v_add_u32 v2, {S_SCR}, v2""") + [("ds", None, "ds_write_b32 v2, v53"), ("ds", None, "ds_write_b32 v2, v52 offset:1024")]
    ACC = 128
    def acc(b, c): return ACC + (c*8+b)*4
    def Xr(par, b): return par*48 + b*4
    def Br(par, c): return par*48 + 32 + c*4
    def reads(s):
        par = s & 1; sl = (s >> 1) % 3; L = []
        for c in range(4): L.append(("ds", None, f"ds_read_b128 a[{Br(par,c)}:{Br(par,c)+3}], v{120+2*sl+(s&1)} offset:{(c>>1)*8192 + (c&1)*2048}"))
        for b in range(8): L.append(("ds", None, f"ds_read_b128 a[{Xr(par,b)}:{Xr(par,b)+3}], v{22+2*sl+(s&1)} offset:{b*2048}"))
        return L
    SORD = OPT.get("sord", "A")
    M = {0: (b_ld if SORD == "C" else []) + dma(2)}
    for s in range(1, 15): M[s] = dma((s+5) >> 1, ((s+1) & 1,))
    CK = int(OPT.get("ck", 16))
    for k, L in enumerate(chop(w2loads(0, 5, 99), 20-CK)): M[CK+k] = M.get(CK+k, []) + L
    pc = chop(par_c, 8); ps = chop(cap(ph2_setup), 2)
    pc = chop(par_c, 9)
    S = {0: cap(ss1), 1: st_f + p_ld, 2: ps[0], 3: ps[1] + b_c, 4: pc[0], 5: pc[1], 6: pc[2], 7: pc[3], 8: pc[4], 9: pc[5], 10: pc[6], 11: pc[7], 12: pc[8],
         13: ep_ld, 15: cap(ss3), 16: ep_t, 17: ep_c, 18: cap(ss4), 19: cap(ss5)}
    S[CK-2] = fpoll(4) + S.get(CK-2, [])
    PF = int(OPT.get("pf", 5)); PFI = int(OPT.get("pfi", 19))
    if PF:
        pf = lines(f"s_lshr_b32 s32, s2, 3\ns_lshl2_add_u32 s32, s32, s3\ns_lshr_b32 s33, s32, 2\ns_mul_i32 s33, s33, 96\ns_mul_i32 s34, s29, 12\ns_add_u32 s33, s33, s34\ns_mul_i32 s33, s33, 5120\ns_add_u32 s33, s33, {WS_W2P + 35840 - PF*8192}")
        pf += [f"s_cmp_lt_u32 s32, 32\ns_cselect_b32 s33, s33, {hex(OOB)}", "v_lshlrev_b32 v6, 7, v1"]
        for k in range(PF): pf += [("vm", None, "buffer_load_dword v7, v6, s[8:11], s33 offen sc1"), "s_add_u32 s33, s33, 8192"]
        S[PFI] = S.get(PFI, []) + pf
    ss0(A)
    A("s_waitcnt lgkmcnt(0)")
    srd(A, 16, P["x"], SZ_X); A.its(st_ld)
    A("s_cmp_lt_u32 s35, 160"); srd_sel(A, 24, P["bre"], P["bim"], SZ_B)
    A("s_cmp_eq_u32 s72, 0"); srd_sel(A, 12, P["bre"], P["bim"], SZ_B)
    first, second = {"B": (b_ld + dma(0, (0,)), dma(0, (1,)) + dma(1)), "A": (dma(0), b_ld + dma(1)), "C": (dma(0), dma(1))}[SORD]
    A.its(first)
    A.L.append(";@TOUCH S")
    A("s_branch SSM_a"); A.L.append(";@SEG SSM"); A.label("SSM_a")
    lds_setup(A)
    A.its(st_c[:1]); spread(A, st_c[1:], second, 0, len(st_c) - 2)
    A.sync([("S", 0)]); stamp(A, 1)
    A.its(reads(0))
    for s in range(20):
        tags = [("S", (s+1) >> 1)] if (s < 19 and s & 1) else []
        if s == 17: gcheck(A, "SG", ep_ld, ep_tags)
        if s == CK: A.its(ftest(99, 82))
        A.sync(tags, barrier=bool(s & 1))
        tick(A, s, 127)
        par = s & 1; mf = []
        for b in range(8):
            for c in range(4):
                r = acc(b, c); mf.append(f"{MF} v[{r}:{r+3}], a[{Xr(par,b)}:{Xr(par,b)+3}], a[{Br(par,c)}:{Br(par,c)+3}], " + (f"v[{r}:{r+3}]" if s else "0"))
        A.weave(mf, [(reads(s+1) if s < 19 else [], 0, 24), (M.get(s, []), 0, 31), (S.get(s, []), 1, 31)])
    A("s_waitcnt lgkmcnt(0)"); tick(A, 20, 127); tockdump(A, 20, 127, 0x40000)
    stamp(A, 2)
    def gre(cb, j): return acc(0, cb) + 2*j
    def gim(cb, j): return acc(0, 2+cb) + 2*j
    A(f"v_lshlrev_b32 v2, 7, v31\nv_add_u32 v2, {S_SCR}, v2")
    def rload(c):
        b = 32 + 16*(c & 1)
        return [("ds", ("R", c), f"ds_read_b128 v[{b+4*k+8*t}:{b+4*k+8*t+3}], v2 offset:{1024*t + 32*c + 16*k}") for t in range(2) for k in range(2)]
    ptick(A, 40, 126)
    e1 = rload(0) + rload(1)
    for j in range(16):
        c = j >> 2; b = 32 + 16*(c & 1) + 2*(j & 3)
        if j & 3 == 0: e1.append(("wds", [("R", c)]))
        for cb in range(2): e1 += [pk("mul", gre(cb,j), gre(cb,j), b), pk("mul", gim(cb,j), gim(cb,j), b)]
        for cb in range(2):
            p = Pm(cb); e1 += [pk("fma", gre(cb,j), b+8, ("b", CS(cb,0)), gre(cb,j), neg=(0,)), pk("fma", gim(cb,j), b+8, ("b", CS(cb,1)), gim(cb,j), neg=(0,))]
        if j & 3 == 3 and c + 2 < 4: e1 += rload(c+2)
        if j:
            for cb in range(2):
                p = Pm(cb); e1 += [pk("fma", gre(cb,j), gre(cb,j-1), ("b", p['LR']), gre(cb,j)), pk("fma", gim(cb,j), gim(cb,j-1), ("b", p['LR']), gim(cb,j))]
            for cb in range(2):
                p = Pm(cb); e1 += [pk("fma", gre(cb,j), gim(cb,j-1), ("b", p['LI']), gre(cb,j), neg=(1,)), pk("fma", gim(cb,j), gre(cb,j-1), ("b", p['LI']), gim(cb,j))]
    A.its(e1)
    def cfma(dr, di, mr, mi, xr, xi, ar, ai):
        A(f"v_fma_f32 v{dr}, v{mr}, v{xr}, v{ar}\nv_fma_f32 v{di}, v{mr}, v{xi}, v{ai}\nv_fma_f32 v{dr}, -v{mi}, v{xi}, v{dr}\nv_fma_f32 v{di}, v{mi}, v{xr}, v{di}")
    ptick(A, 41, 126)
    def cmul(dr, di, mr, mi, xr, xi):
        A(f"v_mul_f32 v{dr}, v{mr}, v{xr}\nv_mul_f32 v{di}, v{mr}, v{xi}\nv_fma_f32 v{dr}, -v{mi}, v{xi}, v{dr}\nv_fmac_f32 v{di}, v{mi}, v{xr}")
    def gsum(regs, tmp):
        for sw in ("v_permlane16_swap_b32", "v_permlane32_swap_b32"):
            for k, r in enumerate(regs): A(f"v_mov_b32 v{tmp+k}, v{r}")
            for k, r in enumerate(regs): A(f"{sw} v{r}, v{tmp+k}")
            for k, r in enumerate(regs): A(f"v_add_f32 v{r}, v{r}, v{tmp+k}")
    for cb in range(2):
        p = Pm(cb); cfma(64+2*cb, 65+2*cb, p['L16R'], p['L16I'], gre(cb,15), gim(cb,15), gre(cb,15)+1, gim(cb,15)+1)
        cmul(56+4*cb, 58+4*cb, p['UR'], p['UI'], 64+2*cb, 65+2*cb)
    gsum([56, 58, 60, 62], 48)
    A("v_mov_b32 v57, s96\nv_mov_b32 v59, s96\nv_mov_b32 v61, s96\nv_mov_b32 v63, s96")
    for cb in range(2): A.it(("vm", None, f"buffer_store_dwordx4 v[{56+4*cb}:{59+4*cb}], v12, s[8:11], s97 offen offset:{256*cb} sc1"))
    ptick(A, 42, 126)
    for d in range(3):
        A(f"v_subrev_u32 v2, {16*(d+1)}, v1\nv_lshlrev_b32 v2, 2, v2")
        for k in range(4): A(f"ds_bpermute_b32 v{40+4*d+k}, v2, v{64+k}")
    for cb in range(2): A(f"v_mov_b32 v{Pm(cb)['PR']}, 0\nv_mov_b32 v{Pm(cb)['PI']}, 0")
    A("s_waitcnt lgkmcnt(0)")
    for d in (2, 1, 0):
        A(f"s_lshl_b64 exec, -1, {16*(d+1)}")
        for cb in range(2):
            p = Pm(cb); a = 40+4*d+2*cb
            if d < 2: cfma(a, a+1, p['L32R'], p['L32I'], p['PR'], p['PI'], a, a+1)
            A(f"v_mov_b32 v{p['PR']}, v{a}\nv_mov_b32 v{p['PI']}, v{a+1}")
    A("s_mov_b64 exec, -1")
    for cb in range(2): A(f"v_mov_b32 v{64+2*cb}, v{gre(cb,15)}\nv_mov_b32 v{65+2*cb}, v{gim(cb,15)}")
    e2 = []
    for j in range(16):
        for cb in range(2):
            p = Pm(cb); r, i = gre(cb,j), gim(cb,j); t = 112+4*cb
            e2 += [pk("mul", t, i, ("b", p['CB'])), pk("mul", t+2, r, ("b", p['CB'])), pk("fma", r, r, ("b", p['CA']), t, neg=(2,)), pk("fma", i, i, ("b", p['CA']), t+2, neg=(1, 2))]
    lb = [("vm", "lb", f"buffer_load_dwordx4 v[{32+8*i+4*cb}:{35+8*i+4*cb}], v{13+i}, s[8:11], 0 offen offset:{256*cb} sc1") for i in range(4) for cb in range(2)]
    lt = ["v_xor_b32 v4, v17, v33"] + sum(([f"v_xor_b32 v5, v{17+(r-32)//8}, v{r}", "v_or_b32 v4, v4, v5"] for r in range(35, 64, 2)), []) + ["v_cmp_ne_u32 vcc, 0, v4"]
    LBP = int(OPT.get("lbp", 40))
    A.its(e2[:LBP] + lb + e2[LBP:])
    stamp(A, 3)
    A.its([("wvm", ["lb"])] + lt)
    A("s_cbranch_vccz SSM_go\ns_mov_b32 s7, 0x40000")
    A.label("SSM_poll")
    for x in lb: A(x[2])
    A("s_waitcnt vmcnt(0)"); A.ext(lt)
    A("s_sub_u32 s7, s7, 1\ns_cbranch_scc1 SSM_go\ns_cbranch_vccnz SSM_poll")
    A.label("SSM_go")
    A(f"s_cmp_lg_u32 s95, 0\ns_cbranch_scc1 EP_end\nv_lshlrev_b32 v2, 7, v1\ns_mov_b32 s7, 0x40000")
    A.label("EP_l")
    for k in range(4): A(f"s_mov_b32 s75, {WS_STAT+4+8192*k}\nbuffer_load_dword v{68+k}, v2, s[8:11], s75 offen sc1")
    A("s_waitcnt vmcnt(0)"); A.ext(tagtest([68, 69, 70, 71]))
    A(f"s_sub_u32 s7, s7, 1\ns_cbranch_scc1 EP_ok\ns_cbranch_vccnz EP_l")
    A.label("EP_ok")
    A(f"s_mov_b32 s75, {WS_EPOCH}\nv_mov_b32 v4, s96\nbuffer_store_dword v4, v8, s[8:11], s75 offen sc1")
    A.label("EP_end")
    A.reset()
    stamp(A, 4)
    for i in (2, 1, 0):
        for cb in range(2):
            p = Pm(cb); a = 32+8*i+4*cb; cfma(a, a+2, p['L512R'], p['L512I'], a+8, a+10, a, a+2)
    for cb in range(2):
        p = Pm(cb); cmul(56+2*cb, 57+2*cb, p['WR'], p['WI'], 32+4*cb, 34+4*cb)
    gsum([56, 57, 58, 59], 48)
    if TS >= 2: A("v_mov_b32 v25, v126")
    WP = 112
    for cb in range(2):
        p = Pm(cb); a = 56+2*cb; w = WP+8*cb
        cfma(p['PR'], p['PI'], p['QR'], p['QI'], a, a+1, p['PR'], p['PI'])
        cfma(64+2*cb, 65+2*cb, p['L16R'], p['L16I'], p['PR'], p['PI'], 64+2*cb, 65+2*cb)
        for k, (xr, xi) in enumerate(((p['PR'], p['PI']), (64+2*cb, 65+2*cb))):
            A(f"v_mul_f32 v{p['T0']}, v{p['CB']}, v{xi}\nv_mul_f32 v{p['T1']}, v{p['CB']}, v{xr}")
            A(f"v_fma_f32 v{w+k}, v{p['CA']}, v{xr}, -v{p['T0']}\nv_fma_f32 v{w+2+k}, -v{p['CA']}, v{xi}, -v{p['T1']}")
    IMG = 8192
    A("v_mov_b32 v31, s96")
    ptick(A, 43, 25)
    e3 = []; pw = []
    for j in range(16):
        cur = [WP+8*cb+4*(j & 1) for cb in range(2)]; nxt = [WP+8*cb+4*((j+1) & 1) for cb in range(2)]
        for cb in range(2):
            p = Pm(cb); e3.append(pk("mul", nxt[cb], cur[cb], ("b", p['LR']))); e3.append(pk("mul", nxt[cb]+2, cur[cb]+2, ("b", p['LR'])))
        for cb in range(2):
            p = Pm(cb); e3.append(pk("fma", nxt[cb], cur[cb]+2, ("b", p['LI']), nxt[cb])); e3.append(pk("fma", nxt[cb]+2, cur[cb], ("b", p['LI']), nxt[cb]+2, neg=(1,)))
        if pw: e3.append(pw.pop(0))
        for cb in range(2):
            e3.append(pk("add", gre(cb,j), gre(cb,j), nxt[cb])); e3.append(pk("add", gim(cb,j), gim(cb,j), nxt[cb]+2))
        if j & 1:
            k = (j >> 1) & 3
            if k == 3: e3 += [f"v_xor_b32 v{68+2*(j>>3)+hh}, {32*hh + 16*(j>>3)}, v10" for hh in range(2)]
            for cb in range(2):
                for im in range(2):
                    g = gim if im else gre
                    for hh in range(2):
                        r = (32+16*cb+8*im+4*hh) if j < 8 else (g(cb, 0) + 4*hh)
                        e3.append(f"v_cvt_pk_bf16_f32 v{r+k}, v{g(cb,j-1)+hh}, v{g(cb,j)+hh}")
                        if k == 3: (e3 if j == 15 else pw).append(("ds", None, f"ds_write_b128 v{68+2*(j>>3)+hh}, v[{r}:{r+3}] offset:{im*IMG + cb*4096}"))
    spread(A, e3, fpoll(5), 0, 60)
    ptick(A, 44, 25)
    A("s_waitcnt lgkmcnt(0)"); A.dd = A.nd
    for tb in range(8):
        for hh in range(2): A(f"v_xor_b32 v{112+2*tb+hh}, {32*tb + 16*hh}, v11")
        for im in range(2):
            r = ACCK + 4*(2*tb+im)
            for hh in range(2): A.it(("ds", ("tr", 2*tb+im), f"ds_read_b64_tr_b16 v[{r+2*hh}:{r+2*hh+1}], v{112+2*tb+hh} offset:{im*IMG + hh*1024}"))
    ptick(A, 45, 25)
    st = []
    for n in range(16):
        im, tb = n & 1, n >> 1; r = ACCK + 4*n
        st += [("wds", [("tr", n)]), ("vm", "H", f"buffer_store_dwordx4 v[{r}:{r+3}], v28, s[8:11], s{(84, 85, 86, 78)[im + 2*(tb >> 2)]} offen offset:{(tb&3)*1024} sc1")]
    fs = "buffer_store_dword v31, v8, s[8:11], s87 offen sc1"
    S1 = int(OPT.get("s1", 7)); S2 = int(OPT.get("s2", 10))
    A.its(st)
    stamp(A, 5)
    A.L.append(";@TOUCH P1")
    fcheck(A, "SC5", 5, pre="s_waitcnt vmcnt(0)\n" + fs)
    A.its(w2loads(5, S1) + [("wvm", ["H"]), ("vm", None, fs)])
    fredo(A, "SR", 4, 99, 82, w2loads(0, 5))
    A.its(w2loads(S1, S2) + fpoll(2))
    fcheck(A, "SC2", 2)
    stamp(A, 6)
    for i in range(3): A.its(hload(i))
    ph2_head(A, "SC", dict(enumerate(chop(w2loads(S2, 10), 3))) if S2 < 10 else {})

def gen_ph2(A):
    A.L.append(";@SEG PH2"); A.label("PH2")
    A.reset(); A.nv = 200
    for t in set(JOIN[0]) | set(JOIN[1]): A.tv[t] = A.nv - min(J[t] for J in JOIN if t in J)
    g_r = []
    for nb in range(5):
        for w in range(4):
            r = ACCG + (nb*4+w)*4; g_r.append(("ds", ("gr", nb), f"ds_read_b128 v[{r}:{r+3}], v{23+(w>>1)} offset:{(w&1)*20480 + nb*1024}"))
    g_s = []
    for nb in range(5):
        r = ACCG + nb*16; g_s.append(("wds", [("gr", nb)]))
        for e in range(4): g_s += [f"v_add_f32 v{r+e}, v{r+e}, v{r+4+e}", f"v_add_f32 v{r+8+e}, v{r+8+e}, v{r+12+e}"]
        for e in range(4): g_s.append(f"v_add_f32 v{r+e}, v{r+e}, v{r+8+e}")
        g_s.append(("vm", "xs", f"buffer_store_dwordx4 v[{r}:{r+3}], v{28+(nb>>2)}, s[8:11], s4 offen offset:{(nb&3)*1024} sc1"))
    g_f = [("wvm", ["xs"]), ("vm", None, "buffer_store_dword v31, v8, s[8:11], s6 offen sc1")]
    PA = list(range(108, 112)) + list(range(252, 256)) + list(range(160, 172))
    fin_c = [("wvm", ["fin"]), "v_and_b32 v11, 0xffff0000, v10", "v_rcp_f32 v11, v11", "v_lshlrev_b32 v10, 16, v10"]
    def rd(nb): return [("ds", ("fx", nb), f"ds_read_b64 v[{16+4*(nb&1)}:{17+4*(nb&1)}], v12 offset:{32*nb}"), ("ds", ("fx", nb), f"ds_read_b64 v[{(18, 26)[nb&1]}:{(19, 27)[nb&1]}], v14 offset:{3072+32*nb}")]
    fin_c += rd(0)
    for nb in range(5):
        if nb < 4: fin_c += rd(nb+1)
        fin_c.append(("wds", [("fx", nb)]))
        for h in range(2):
            x = 16+4*(nb&1)+h; d = (18, 26)[nb&1]+h
            fin_c += [f"v_lshlrev_b32 v2, 16, v{d}", f"v_and_b32 v{d}, 0xffff0000, v{d}", f"v_lshlrev_b32 v3, 16, v{x}", f"v_and_b32 v{x}, 0xffff0000, v{x}",
                      "v_mul_f32 v2, v2, v11", f"v_mul_f32 v{d}, v{d}, v11", "v_sub_f32 v4, v3, v10", f"v_sub_f32 v5, v{x}, v10", "v_fmac_f32 v3, v4, v2", f"v_fmac_f32 v{x}, v5, v{d}",
                      f"v_accvgpr_write_b32 a{PA[4*nb+2*h]}, v3", f"v_accvgpr_write_b32 a{PA[4*nb+2*h+1]}, v{x}"]
    fin_r = [f"v_accvgpr_read_b32 v{ACCG + (k>>2)*16 + 8 + (k&3)}, a{PA[k]}" for k in range(20)]
    gs = chop(g_s, 2); fc = chop(fin_c, 5)
    extra = {8: fc[0], 9: fc[1], 10: fc[2], 11: fc[3], 12: fc[4], 16: g_r, 17: gs[0], 18: gs[1],
             19: ["v_add_u32 v22, 81920, v22", "v_add_u32 v23, 81920, v23", "v_add_u32 v24, 81920, v24"] + fin_r, 20: fpoll(3)[:-1], 21: ["s_nop 0"] + g_f + ["s_nop 0"]*5 + fpoll(3)[-1:]}
    ph2_groups(A, GROUPS[8:], extra, {8: lambda: fcheck(A, "C1", 1)})
    if TS >= 2:
        A(f"s_waitcnt lgkmcnt(0)\nv_writelane_b32 v25, s88, {len(GROUPS)-1}\ns_memtime s[88:89]"); tockdump(A, len(GROUPS), 25, 0x80000)
    stamp(A, 7)
    fcheck(A, "C3", 3)
    for nb in range(5):
        r = ACCG + nb*16 + 12
        A.it(("vm", ("xl", nb), f"buffer_load_dwordx4 v[{r}:{r+3}], v{28+(nb>>2)}, s[8:11], s5 offen offset:{(nb&3)*1024} sc1"))
    A("s_waitcnt lgkmcnt(0)\ns_barrier")
    for nb in range(5):
        for w in range(4):
            r = ACCK + (nb*4+w)*4
            A(f"ds_read_b128 v[{r}:{r+3}], v{23+(w>>1)} offset:{(w&1)*20480 + nb*1024}")
    for nb in range(5):
        A(f"s_waitcnt lgkmcnt({min(15, 16-4*nb)})")
        r = ACCK + nb*16; o = ACCG + nb*16 + 8
        for k in (0, 2): A(pk("add", r+k, r+k, r+4+k)); A(pk("add", r+8+k, r+8+k, r+12+k))
        for k in (0, 2): A(pk("add", o+k, o+k, r+k))
        for k in (0, 2): A(pk("add", o+k, o+k, r+8+k))
    for nb in range(5):
        o = ACCG + nb*16 + 8
        A.it(("wvm", [("xl", nb)]))
        for k in (0, 2): A(pk("add", o+k, o+k, o+4+k))
        A.it(("vm", None, f"buffer_store_dwordx4 v[{o}:{o+3}], v13, s[20:23], 0 offen offset:{64*nb}"))
    if TS:
        A("s_add_u32 s94, s94, 0x10000"); stamp(A, 0)

def gen():
    A = E()
    A("s_cmp_ge_u32 s2, 256\ns_cbranch_scc1 K_end")
    if TS >= 2: A("s_memtime s[4:5]")
    A("s_load_dwordx16 s[36:51], s[0:1], 0\ns_load_dwordx16 s[52:67], s[0:1], 64")
    A("v_and_b32 v1, 63, v0\nv_lshrrev_b32 v2, 6, v0\ns_and_b32 s32, s2, 7\nv_readfirstlane_b32 s3, v2")
    A("s_lshr_b32 s33, s2, 3\ns_lshr_b32 s34, s32, 2\ns_and_b32 s35, s32, 3\ns_and_b32 s71, s3, 1\ns_lshr_b32 s72, s3, 1")
    if int(OPT.get("ipf", 1)):
        A("s_getpc_b64 s[6:7]"); A.label("K_pc")
        A("s_lshl2_add_u32 s76, s33, s3\ns_and_b32 s76, s76, 15\ns_lshl_b32 s76, s76, 13\nv_lshlrev_b32 v2, 7, v1\nv_add_u32 v2, s76, v2\nv_min_u32 v2, K_end-K_pc, v2")
        A("s_cmp_lt_u32 s33, 28\ns_cbranch_scc1 K_nopf\nglobal_load_dword v64, v2, s[6:7]"); A.label("K_nopf")
    A("s_lshl2_add_u32 s95, s2, s3\nv_lshrrev_b32 v62, 5, v1\nv_mul_u32_u24 v62, 1280, v62\nv_and_b32 v63, 31, v1\nv_lshl_add_u32 v62, v63, 3, v62")
    if TS:
        A("s_lshl2_add_u32 s94, s2, s3\ns_lshl_b32 s94, s94, 6\ns_waitcnt lgkmcnt(0)"); stamp(A, 0)
    A("s_mul_i32 s75, s95, 2560\ns_cmp_lt_u32 s33, 10\ns_cbranch_scc1 K_ssm")
    A("s_mul_i32 s35, s35, 22\ns_add_u32 s33, s33, s35\ns_sub_u32 s33, s33, 10\ns_and_b32 s68, s33, 7\ns_lshl_b32 s34, s34, 3\ns_add_u32 s68, s68, s34\ns_lshr_b32 s69, s33, 3")
    gen_ffn(A)
    A.L.append(";@SEG SPRO"); A.label("K_ssm")
    A("s_mul_i32 s35, s35, 10\ns_add_u32 s33, s33, s35\ns_and_b32 s68, s33, 3\ns_lshl2_add_u32 s68, s34, s68\ns_lshr_b32 s69, s33, 2")
    gen_ssm(A)
    gen_ph2(A)
    A.label("K_end"); A("s_endpgm")
    return A.L

def fin(L):
    seg = {"E": []}; cur = "E"
    for l in L:
        if l.startswith(";@SEG"): cur = l.split()[1]; seg[cur] = []
        else: seg[cur].append(l)
    def dispatch(name, chains, ret):
        o = []
        for w in range(3): o += [f"s_cmp_eq_u32 s3, {w}", f"s_cbranch_scc1 {chains[w]}"]
        return o + [f"s_branch {chains[3]}"]
    TCH = int(OPT.get("tch", 1))
    order = ["FA", "FB", "EP", "SSM", "PH2"]
    def expand(lines, heads):
        o = []
        for l in lines:
            if not l.startswith(";@TOUCH"): o.append(l); continue
            if not TCH: continue
            n = l.split()[1]
            o.append("s_mov_b64 exec, 0")
            if n in ("FA", "FB"): o += dispatch(n, heads[n], None)
            elif n == "S": o += dispatch(n, heads["SSM"], None)
            else: o += [f"s_mov_b32 s35, {n[1]}"] + dispatch(n, heads["PH2" if n == "P1" else "EP"], None)
            o.append(f"TR_{n}:")
            o.append("s_mov_b64 exec, -1")
        return o
    if TCH: seg["SPRO"] += ["TR_P:", "s_cmp_eq_u32 s35, 0", "s_cbranch_scc1 TR_P0", "s_cmp_eq_u32 s35, 2", "s_cbranch_scc1 TR_P2", "s_branch TR_P1"]
    dummy = {k: ["K_end"]*4 for k in order}
    body = []
    for k in order: body += [(k, l) for l in expand(seg[k], dummy)]
    pro = expand(seg["E"] + seg["FBP"] + seg["SPRO"], dummy)
    sz = sizes(pro + ["K_pad:"] + [l for _, l in body]); npro = sum(1 for l in pro if not (l.endswith(":") or l.startswith((".", ";"))))
    print("prologue bytes", sum(sz[:npro])); sz = sz[npro:]
    stubs = {k: [] for k in order}; pos = {}; addr = 0; page = -1; ii = 0; seen = set()
    for i, (k, l) in enumerate(body):
        if l.endswith(":") or l.startswith((".", ";")): continue
        if TCH and (addr >> 12 != page or k not in seen):
            page = addr >> 12; seen.add(k); name = f"TS_{len(pos)}"; pos[i] = name; stubs[k].append(name); addr += 4
        addr += sz[ii]; ii += 1
    print({k: len(v) for k, v in stubs.items()}, "bytes", addr)
    nxt = {}; heads = {}
    def chains(lst, tails):
        h = []
        for w in range(4):
            c = lst[w::4]
            for a, b in zip(c, c[1:] + [tails[w]]): nxt[a] = b
            h.append(c[0] if c else tails[w])
        return h
    heads["FA"] = chains(stubs["FA"], ["TR_FA"]*4); heads["FB"] = chains(stubs["FB"], ["TR_FB"]*4)
    heads["SSM"] = chains(stubs["SSM"], ["TR_S"]*4); heads["PH2"] = chains(stubs["PH2"], ["TR_P"]*4); heads["EP"] = chains(stubs["EP"], heads["PH2"][::-1])
    body2 = []
    for k in order: body2 += expand(seg[k], heads)
    out = expand(seg["E"] + seg["FBP"] + seg["SPRO"], heads) + [".p2align 12"]
    for i, l in enumerate(body2):
        if i in pos: out += [pos[i] + ":", f"s_cbranch_execz {nxt[pos[i]]}"]
        out.append(l)
    return out
def main():
    ref = open(f"cdna_kernels/{NAME}.s.ref").read().split("\n")
    hdr = [l for l in ref if l.startswith(";") and "@launch" not in l and "Override" not in l and "grid=ceil" not in l]
    out = "\n".join(hdr) + "\n"
    extra = ""
    if "spin" in OPT:
        op, slot = OPT["spin"].split(","); slot = int(slot)
        off = WS_TS + (slot*8 if slot < 8 else 0x10000)
        out += f"; @launch kernel={NAME}_kernel grid=(256,1,1) block=(256,1,1) lds=163840\n; @launch kernel=spin_kernel grid=(1,1,1) block=(64,1,1) lds=0\n"
        L = ["s_load_dwordx2 s[4:5], s[0:1], 120", "s_waitcnt lgkmcnt(0)", f"s_add_u32 s4, s4, {off}", "s_addc_u32 s5, s5, 0", "v_lshlrev_b32 v1, 6, v0"]
        for k in range(16): L += [f"v_add_u32 v2, {4096*k}, v1", f"global_load_dword v{4+k}, v2, s[4:5]"]
        L += ["s_waitcnt vmcnt(0)"] + [f"v_{op}_u32 v4, v4, v{4+k}" for k in range(1, 16)] + ["s_nop 1", "v_readlane_b32 s6, v4, 0"]
        for k in range(1, 64): L += [f"v_readlane_b32 s7, v4, {k}", "s_nop 0", f"s_{op}_u32 s6, s6, s7"]
        L += ["s_mov_b32 s12, 0x100000", "SP_l2:", "s_memrealtime s[8:9]", "s_waitcnt lgkmcnt(0)", "s_sub_u32 s10, s8, s6", "s_sub_u32 s12, s12, 1", "s_cbranch_scc1 SP_e", "s_cmp_lt_u32 s10, 8000", "s_cbranch_scc1 SP_l2", "SP_e:", "s_endpgm"]
        extra = kernel_text("spin_kernel", L) + kd("spin_kernel", 32, 0, 32)
    else: out += "; @launch grid=(256,1,1) block=(256,1,1) lds=163840\n"
    out += '.amdgcn_target "amdgcn-amd-amdhsa--gfx950"\n'
    out += kernel_text(NAME + "_kernel", fin(hazard_pass(gen(), "v" in OPT))) + kd(NAME + "_kernel", 256, 256, 102) + extra
    open(sys.argv[1], "w").write(out)
main()
```

```python
import sys
from asmlib import *
NAME = "parallel_sum__ssm_conv_s5__glu_gated_swiglu__prompt"
OPT = dict(a.split("=") for a in sys.argv[2:])
TS = int(OPT.get("ts", 0))
WS_AGG = 0; WS_EPOCH = 0x28000; WS_STAT = 0x30000; WS_FLG = 0x40000; WS_XF = 0x80000; WS_CF = 0xA0000; WS_WF = 0xB0000; WS_CSB = 0xC0000; WS_CS = 0xD0000
WS_H = 0x100000; WS_W2P = 0xE00000; WS_XCH = 0x1200000; WS_END = 0x1700000; WS_TS = 0x1800000; CS_HALF = 27648
SZ_X = 2048*640*2; SZ_B = 640*640*2; SZ_W = 640*1728*2; SZ_OUT = 2048*640*4
OOB = 0x7F000000
P = dict(x=36, lre=38, lim=40, bre=42, bim=44, cre=46, cim=48, ldt=50, dsk=52, w1=56, w3=58, w2=60, out=62, dbg=64, ws=66)
MF = "v_mfma_f32_16x16x32_bf16"

class E(Asm):
    def __init__(self): super().__init__(); self.reset()
    def reset(self): self.nv = 0; self.tv = {}; self.dv = 0; self.nd = 0; self.td = {}; self.dd = 0
    def vmw(self, tags):
        last = max(self.tv[t] for t in tags)
        if last <= self.dv: return None
        self.dv = last; return min(63, self.nv - last)
    def dsw(self, tags):
        last = max(self.td[t] for t in tags)
        if last <= self.dd: return None
        n = min(15, self.nd - last); self.dd = self.nd - n; return n
    def it(self, x):
        if isinstance(x, str): self(x)
        elif x[0] == "vm": self.nv += 1; self.tv[x[1]] = self.nv; self(x[2])
        elif x[0] == "ds": self.nd += 1; self.td[x[1]] = self.nd; self(x[2])
        elif x[0] == "wvm":
            n = self.vmw(x[1])
            if n is not None: self(f"s_waitcnt vmcnt({n})")
        elif x[0] == "wds":
            n = self.dsw(x[1])
            if n is not None: self(f"s_waitcnt lgkmcnt({n})")
        elif x[0] == "fn": x[1]()
    def its(self, L):
        for x in L: self.it(x)
    def sync(self, vtags, barrier=True):
        n = self.vmw(vtags) if vtags else None
        self.dd = self.nd
        self((f"s_waitcnt vmcnt({n}) lgkmcnt(0)" if n is not None else "s_waitcnt lgkmcnt(0)"))
        if barrier: self("s_barrier")
    def weave(self, mf, streams, fixed=None, cap=2):
        q = []
        for it, lo, hi in streams:
            if it: q.append([(lo + k*(hi-lo)//len(it), x) for k, x in enumerate(it)])
        def cost(x):
            if isinstance(x, str): return sum(2 if l.startswith(TRANS) else (4 if l.startswith("v_mfma") else 1) for l in x.split("\n"))
            return {"vm": 2, "ds": 1}.get(x[0], 0.5)
        debt = 0
        for i, m in enumerate(mf):
            self(m); room = cap - debt
            for x in (fixed[i] if fixed else []): self.it(x); room -= cost(x)
            left = sum(cost(x) for st in q for _, x in st); gaps = len(mf) - i
            room = max(room, left - cap*(gaps-1))
            if left > cap*gaps: room = max(cap, left/gaps)
            while room > 0:
                c = [st for st in q if st and st[0][0] <= i]
                if not c: break
                st = min(c, key=lambda t: t[0][0]); x = st.pop(0)[1]; self.it(x); room -= cost(x)
            debt = max(0, -room)
        for st in q:
            for _, x in st: self.it(x)
def lines(s): return [l.strip() for l in s.split("\n") if l.strip()]
def glue(L):
    out = []; on = False
    for x in L:
        if isinstance(x, str) and on and x.startswith(("s_cselect", "s_mov_b32")): out[-1] += "\n" + x; continue
        on = isinstance(x, str) and x.startswith(("s_cmp", "s_bitcmp"))
        out.append(x)
    return out
def cap(f):
    B = Asm(); f(B); return glue(B.L)
def chop(L, n):
    q = (len(L) + n - 1)//n
    return [L[k*q:(k+1)*q] for k in range(n)]
FE = int(OPT.get("fe", 3)); FF = int(OPT.get("ff", 0)); SE = int(OPT.get("se", 0))
def srd(A, d, lo, size):
    A(f"s_mov_b32 s{d}, s{lo}\ns_mov_b32 s{d+1}, s{lo+1}\ns_mov_b32 s{d+2}, {hex(size)}\ns_mov_b32 s{d+3}, 0x20000")
def srd_sel(A, d, lo0, lo1, size):
    A(f"s_cselect_b32 s{d}, s{lo0}, s{lo1}\ns_cselect_b32 s{d+1}, s{lo0+1}, s{lo1+1}\ns_mov_b32 s{d+2}, {hex(size)}\ns_mov_b32 s{d+3}, 0x20000")
def stamp(A, slot):
    if not TS: return
    A(f"s_memrealtime s[90:91]\ns_memtime s[88:89]\ns_waitcnt lgkmcnt(0)\ns_add_u32 s92, s94, {WS_TS + slot*8}")
    A.dd = A.nd
    A(f"v_mov_b32 v4, s90\nv_mov_b32 v5, s88\nv_mov_b32 v2, s92"); A.it(("vm", None, "global_store_dwordx2 v2, v[4:5], s[66:67]"))
def tick(A, idx, reg):
    if TS < 2: return
    if idx: A(f"v_writelane_b32 v{reg}, s88, {idx-1}")
    A("s_memtime s[88:89]")
def ptick(A, idx, reg):
    if TS < 2: return
    A(f"s_memtime s[88:89]\ns_waitcnt lgkmcnt(0)\nv_writelane_b32 v{reg}, s88, {idx}")
def tockdump(A, n, reg, area):
    if TS < 2: return
    A(f"s_waitcnt lgkmcnt(0)\nv_writelane_b32 v{reg}, s88, {n}\ns_lshl_b32 s92, s95, 8\ns_add_u32 s92, s92, {WS_TS + area}\nv_lshlrev_b32 v5, 2, v1\nv_add_u32 v5, s92, v5")
    A.it(("vm", None, f"global_store_dword v5, v{reg}, s[66:67]"))
def bc(n, which, hi=False):
    lo = [0]*n; h = [1]*n
    for w in which:
        if isinstance(w, tuple): lo[w[0]] = 1
        else: h[w] = 0
    s = ""
    if any(lo): s += " op_sel:[" + ",".join(map(str, lo)) + "]"
    s += " op_sel_hi:[" + ",".join(map(str, h)) + "]"
    return s
def B(r):
    return f"v[{r & ~1}:{(r & ~1)+1}]", (r & 1)
def pk(op, d, *src, neg=()):
    t = []; w = []
    src = list(src)
    if isinstance(src[1], tuple) and src[1][1] & 1:
        src[0], src[1] = src[1], src[0]; neg = tuple({0: 1, 1: 0}.get(n, n) for n in neg)
    for i, s in enumerate(src):
        if isinstance(s, tuple):
            x, hi = B(s[1]); t.append(x); w.append((i,) if hi else i)
        else:
            assert s % 2 == 0; t.append(f"v[{s}:{s+1}]")
    assert d % 2 == 0
    m = bc(len(src), w)
    if neg:
        nn = ",".join("1" if i in neg else "0" for i in range(len(src))); m += f" neg_lo:[{nn}] neg_hi:[{nn}]"
    return f"v_pk_{op}_f32 v[{d}:{d+1}], " + ", ".join(t) + m

def stats_job(R, scr):
    L0, U, T = R, R+10, R+30
    ld = [f"v_mov_b32 v9, {WS_EPOCH}", ("vm", "st", "global_load_dword v9, v9, s[66:67] sc1")]
    for i in range(5): ld.append(("vm", "st", f"buffer_load_dwordx2 v[{L0+2*i}:{L0+2*i+1}], v{T}, s[16:19], s75 offen offset:{256*i}"))
    c = [("wvm", ["st"])]
    for i in range(10): c += [f"v_lshlrev_b32 v{U+2*i}, 16, v{L0+i}", f"v_and_b32 v{U+2*i+1}, 0xffff0000, v{L0+i}"]
    def red(v, t):
        o = [f"v_add_f32 v{v}, v{v}, v{v+1}"]
        for r in (8, 4, 2, 1): o.append(f"v_add_f32_dpp v{v}, v{v}, v{v} row_ror:{r} row_mask:0xf bank_mask:0xf")
        o += [f"v_mov_b32 v{t}, v{v}", f"v_permlane16_swap_b32 v{v}, v{t}", f"v_add_f32 v{v}, v{v}, v{t}", f"v_mul_f32 v{v}, 0x3acccccd, v{v}"]
        return o
    c.append(pk("add", T, U, U+2))
    for i in range(2, 10): c.append(pk("add", T, T, U+2*i))
    c += red(T, T+1)
    for i in range(10): c.append(pk("add", U+2*i, U+2*i, ("b", T), neg=(1,)))
    c.append(pk("mul", T+2, U, U))
    for i in range(1, 10): c.append(pk("fma", T+2, U+2*i, U+2*i, T+2))
    c += red(T+2, T+3)
    c += lines(f"""v_cvt_pk_bf16_f32 v{T}, v{T}, v{T+2}
v_and_b32 v{T+2}, 0xffff0000, v{T}
v_add_f32 v{T+2}, 0x3727c5ac, v{T+2}
v_cvt_pk_bf16_f32 v{T+2}, v{T+2}, v{T+2}
v_and_b32 v{T+2}, 0xffff0000, v{T+2}
v_sqrt_f32 v{T+2}, v{T+2}
v_and_b32 v{T}, 0xffff, v{T}
v_cvt_pk_bf16_f32 v{T+2}, v{T+2}, v{T+2}
v_readfirstlane_b32 s96, v9
v_and_b32 v{T+2}, 0xffff0000, v{T+2}
v_or_b32 v{T}, v{T+2}, v{T}
v_lshrrev_b32 v{T+1}, 5, v0
v_lshlrev_b32 v{T+1}, 2, v{T+1}
v_add_u32 v{T+1}, {scr}, v{T+1}
s_add_u32 s96, s96, 1""")
    c.append(("ds", None, f"ds_write_b32 v{T+1}, v{T}"))
    f = lines(f"v_and_b32 v{T+1}, 7, v1\nv_lshlrev_b32 v{T+1}, 2, v{T+1}\nv_add_u32 v{T+1}, {scr}, v{T+1}") + [("ds", "stf", f"ds_read_b32 v{T}, v{T+1}")]
    f += lines(f"v_lshlrev_b32 v{T+2}, 21, v0\nv_and_b32 v{T+2}, 0xfe000000, v{T+2}\nv_lshl_add_u32 v{T+2}, v1, 3, v{T+2}\ns_lshl_b32 s75, s2, 7\ns_add_u32 s75, s75, {WS_STAT}")
    f += [("wds", ["stf"]), f"v_mov_b32 v{T+1}, s96", ("vm", None, f"buffer_store_dwordx2 v[{T}:{T+1}], v{T+2}, s[8:11], s75 offen sc1")]
    return ld, c, f
def tagtest(tags, exp="s96"):
    L = [f"v_xor_b32 v4, {exp}, v{tags[0]}"]
    for t in tags[1:]: L += [f"v_xor_b32 v5, {exp}, v{t}", "v_or_b32 v4, v4, v5"]
    return L + ["v_cmp_ne_u32 vcc, 0, v4"]
def gcheck(A, name, loads, tags):
    A(f"s_cbranch_vccz {name}_ok\ns_mov_b32 s7, 0x40000")
    A.label(f"{name}_l")
    for x in loads: A(x if isinstance(x, str) else x[2])
    A("s_waitcnt vmcnt(0)"); A.ext(tagtest(tags))
    A(f"s_sub_u32 s7, s7, 1\ns_cbranch_scc1 {name}_ok\ns_cbranch_vccnz {name}_l")
    A.label(f"{name}_ok")
U = [7, 8, 9, 10, 11, 0, 1, 2, 3, 4, 5, 6]
def w2reg(i):
    p = U.index(i)
    return 112 + 20*p if p < 7 else (48 + 20*(p-7) if p < 10 else 20*(p-10))
def w2load(p, base=82):
    i = U[p]
    L = [f"s_add_u32 s79, s{base}, {i*5120}"]
    if i == 2: L += [f"s_cmp_eq_u32 s3, 3\ns_cselect_b32 s79, {hex(OOB)}, s79"]
    for nb in range(5):
        r = w2reg(i) + 4*nb
        L.append(("vm", ("w2", i), f"buffer_load_dwordx4 a[{r}:{r+3}], v{28+(nb>>2)}, s[8:11], s79 offen offset:{(nb&3)*1024} sc1"))
    return L
def w2loads(a, b, base=82): return sum((w2load(p, base) for p in range(a, b)), [])
def spread(A, main, extra, lo=0, hi=None):
    sl = interleave(main, extra, lo, hi) if extra else [[] for _ in main]
    for i, x in enumerate(main):
        A.it(x)
        for y in sl[i]: A.it(y)
def sig_early(A, e, d, t):
    A(f"s_cmp_ge_u32 s{e}, 11\ns_cselect_b32 s{t}, 11, 0\ns_cselect_b32 s{d}, 48, 0\ns_sub_u32 s{t}, s{e}, s{t}\ns_add_u32 s{d}, s{d}, s{t}\ns_mul_i32 s{t}, s{t}, 43\ns_lshr_b32 s{t}, s{t}, 7\ns_mul_i32 s{t}, s{t}, 9\ns_add_u32 s{d}, s{d}, s{t}")
def sig_late(A, l, t):
    A(f"s_lshr_b32 s{t}, s{l}, 2\ns_lshl_b32 s{t}, s{t}, 3\ns_add_u32 s{l}, s{l}, s{t}\ns_add_u32 s{l}, s{l}, 3")
def sig_ssm(A, k, t):
    A(f"s_mul_i32 s{t}, s{k}, 52429\ns_lshr_b32 s{t}, s{t}, 18\ns_mul_i32 s{t}, s{t}, 7\ns_add_u32 s{k}, s{k}, s{t}\ns_add_u32 s{k}, s{k}, 7")
def tlb_touch():
    T = int(OPT.get("tlb", 0))
    if not T: return []
    return lines(f"v_mul_u32_u24 v6, {hex(T*1024)}, v0\nv_min_u32 v7, {SZ_OUT-4}, v6") + [("vm", None, "buffer_load_dword v6, v6, s[8:11], 0 offen sc1"), ("vm", None, "global_load_dword v7, v7, s[62:63]")]
ORD = OPT.get("ord", "A")
def early_setup(A):
    srd(A, 8, P["ws"], WS_END)
    A("v_lshlrev_b32 v28, 4, v1\nv_add_u32 v29, 4096, v28")
    A("v_lshlrev_b32 v8, 20, v1\nv_and_b32 v8, 0xfe000000, v8\nv_lshl_add_u32 v8, v1, 2, v8")
def ph2_setup(A):
    A("s_and_b32 s28, s2, 1\ns_bfe_u32 s32, s2, 0x20001\ns_lshr_b32 s33, s2, 6\ns_lshl2_add_u32 s80, s32, s33\ns_bfe_u32 s81, s2, 0x30003\ns_lshl2_add_u32 s29, s28, s3")
    A(f"s_mul_i32 s32, s29, 12\ns_mul_i32 s33, s81, 96\ns_add_u32 s33, s33, s32\ns_mul_i32 s82, s33, 5120\ns_add_u32 s82, s82, {WS_W2P}")
    A(f"s_lshl1_add_u32 s33, s80, s28\ns_mul_i32 s34, s33, 96\ns_add_u32 s34, s34, s32\ns_lshl_b32 s83, s34, 12\ns_add_u32 s83, s83, {WS_H}")
    A(f"s_xor_b32 s33, s33, 1\ns_mul_i32 s34, s33, 96\ns_add_u32 s34, s34, s32\ns_lshl_b32 s30, s34, 12\ns_add_u32 s30, s30, {WS_H}")
    A(f"s_lshl_b32 s93, s80, 14\ns_add_u32 s93, s93, {WS_FLG}")
ACCG = 96; ACCK = 176
STEPS = [("G",i) for i in U[:5]] + [("K",i) for i in U[:3]] + [("G",i) for i in U[5:]] + [("K",i) for i in U[3:]]
POOL = ["v32", "v48", "v64", "v80", "a112", "a128", "a144", "a0", "a16", "a32"]
HBUF = [7,8,9,0,1,2,3,0,1,2,3,4,5,6,0,1,2,3,4,5,6,0,1,2]
def Hr(n, tb):
    b = POOL[HBUF[n]]; r = int(b[1:]) + 4*tb; return f"{b[0]}[{r}:{r+3}]"
FN = {0: 6, 1: 8, 2: 3, 3: 1, 4: 5}
def fbase(g):
    if g == 0: return lines("s_mul_i32 s31, s28, 22\ns_mul_i32 s32, s3, 6\ns_add_u32 s31, s31, s32\ns_min_u32 s31, s31, 38\ns_lshl_b32 s31, s31, 7\ns_add_u32 s31, s31, s93")
    if g == 1: return lines("s_mul_i32 s31, s29, 172\ns_lshr_b32 s31, s31, 7\ns_lshl_b32 s31, s31, 9\ns_add_u32 s31, s31, s93\ns_add_u32 s31, s31, 5632")
    if g == 2: return lines("s_mul_i32 s31, s29, 5\ns_lshr_b32 s31, s31, 1\ns_lshl_b32 s31, s31, 7\ns_add_u32 s31, s31, s93\ns_add_u32 s31, s31, 11264")
    if g == 3: return lines(f"s_xor_b32 s31, s95, 4\ns_lshl_b32 s31, s31, 7\ns_add_u32 s31, s31, {WS_XF}")
    if g == 4: return lines(f"s_lshl_b32 s31, s81, 3\ns_add_u32 s31, s31, s29\ns_mul_i32 s31, s31, 640\ns_add_u32 s31, s31, {WS_CF}")
    return lines(f"s_mul_i32 s31, s29, 7680\ns_add_u32 s31, s31, {WS_WF}\ns_mul_i32 s32, s81, 5\ns_cmp_eq_u32 s3, 3\ns_cselect_b32 s33, 2, 63")
def faddr(g):
    if g < 5: return [f"v_min_u32 v9, {FN[g]-1}, v1", "v_lshlrev_b32 v9, 7, v9"]
    return lines("v_lshrrev_b32 v9, 1, v1\nv_min_u32 v9, 6, v9\nv_cmp_eq_u32 vcc, s33, v9\nv_and_b32 v2, 1, v1\nv_lshl_add_u32 v2, v2, 2, s32\nv_cndmask_b32 v9, v9, 1, vcc\nv_lshrrev_b32 v2, 3, v2\nv_mad_u32_u24 v9, v9, 5, v2\nv_lshlrev_b32 v9, 7, v9")
def fpoll(g): return glue(fbase(g)) + faddr(g) + [("vm", "fl", "buffer_load_dword v9, v9, s[8:11], s31 offen sc1")]
def fcheck(A, name, g, pre=None):
    A.it(("wvm", ["fl"]))
    A(f"v_cmp_ne_u32 vcc, s96, v9\ns_cbranch_vccz {name}_ok\ns_mov_b32 s7, 0x40000")
    if pre: A(pre)
    A.label(f"{name}_l")
    A.ext(fbase(g) + faddr(g))
    A(f"buffer_load_dword v9, v9, s[8:11], s31 offen sc1\ns_waitcnt vmcnt(0)\nv_cmp_ne_u32 vcc, s96, v9\ns_sub_u32 s7, s7, 1\ns_cbranch_scc1 {name}_ok\ns_cbranch_vccnz {name}_l")
    A.label(f"{name}_ok")
def ftest(dst, src):
    return [("wvm", ["fl"]), f"v_cmp_ne_u32 vcc, s96, v9\ns_nop 0\ns_cmp_eq_u64 vcc, 0\ns_cselect_b32 s{dst}, s{src}, {hex(OOB)}"]
def fredo(A, name, g, dst, src, loads, pre=None):
    A(f"s_cmp_eq_u32 s{dst}, s{src}\ns_cbranch_scc1 {name}_done\ns_mov_b32 s7, 0x40000")
    if pre: A(pre)
    A.label(f"{name}_l")
    A.ext(fbase(g) + faddr(g))
    A(f"buffer_load_dword v9, v9, s[8:11], s31 offen sc1\ns_waitcnt vmcnt(0)\nv_cmp_ne_u32 vcc, s96, v9\ns_sub_u32 s7, s7, 1\ns_cbranch_scc1 {name}_ok\ns_cbranch_vccnz {name}_l")
    A.label(f"{name}_ok")
    for x in loads: A(x if isinstance(x, str) else x[2])
    if name == "FR": A("s_waitcnt vmcnt(0)")
    A.label(f"{name}_done")
def hload(n, base=None):
    hf, i = STEPS[n]
    L = [f"s_add_u32 s77, s{base or (30 if hf == 'G' else 83)}, {i*4096}"]
    if i == 2: L += [f"s_cmp_eq_u32 s3, 3\ns_cselect_b32 s77, {hex(OOB)}, s77"]
    for tb in range(4): L.append(("vm", ("h", n), f"buffer_load_dwordx4 {Hr(n,tb)}, v28, s[8:11], s77 offen offset:{tb*1024} sc1"))
    return L
XS = 81920
def ph2_addr(A):
    srd(A, 24, P["dsk"], 1280)
    A("s_lshl1_add_u32 s32, s80, s28\ns_lshl_b32 s32, s32, 6\ns_lshl_b32 s33, s3, 4\ns_add_u32 s32, s32, s33\nv_lshrrev_b32 v2, 2, v1\nv_mul_u32_u24 v12, 160, v2\nv_add_u32 v2, s32, v2")
    A("v_lshrrev_b32 v15, 3, v2\nv_lshlrev_b32 v15, 7, v15\nv_and_b32 v3, 7, v2\nv_lshl_add_u32 v15, v3, 3, v15\nv_mul_u32_u24 v2, 2560, v2")
    A("s_mul_i32 s98, s81, 160\ns_mul_i32 s97, s32, 1280\ns_add_u32 s97, s97, s98\ns_lshl_b32 s33, s98, 1\nv_and_b32 v3, 3, v1\nv_lshl_add_u32 v13, v3, 4, v2\nv_add_u32 v13, s33, v13")
    A(f"s_mul_i32 s100, s3, 20480\ns_add_u32 s100, s100, {XS}\nv_lshl_add_u32 v14, v3, 3, s100\nv_add_u32 v12, v12, v14\ns_movk_i32 s33, 6554")
    for i in range(3):
        A(f"v_add_u32 v2, {64*i}, v1\nv_min_u32 v2, 159, v2\nv_mul_u32_u24 v3, s33, v2\nv_lshrrev_b32 v3, 16, v3\nv_mul_u32_u24 v3, 1120, v3\nv_lshl_add_u32 v{16+i}, v2, 4, v3")
    A("v_min_u32 v19, 144, v28")
def ph2_addr2(A):
    srd(A, 20, P["out"], SZ_OUT)
    A("v_lshrrev_b32 v2, 4, v1\nv_lshlrev_b32 v3, 2, v2\nv_xor_b32 v3, v3, v1\nv_lshlrev_b32 v3, 4, v3\ns_mul_i32 s75, s3, 20480\nv_add_u32 v22, s75, v3")
    A("v_and_b32 v2, 3, v1\nv_lshrrev_b32 v4, 2, v1\nv_lshlrev_b32 v5, 2, v2\nv_xor_b32 v4, v4, v5\nv_lshl_add_u32 v4, v2, 4, v4\nv_lshlrev_b32 v4, 4, v4\ns_mul_i32 s75, s3, 5120\nv_add_u32 v23, s75, v4\nv_add_u32 v24, 40960, v23")
    A(f"s_mul_i32 s4, s95, 5120\ns_add_u32 s4, s4, {WS_XCH}\ns_xor_b32 s5, s95, 4\ns_mul_i32 s5, s5, 5120\ns_add_u32 s5, s5, {WS_XCH}\ns_lshl_b32 s6, s95, 7\ns_add_u32 s6, s6, {WS_XF}")
def fin_loads():
    L = []
    for i in range(3): L += [f"s_add_u32 m0, s100, {1024*i}", ("vm", "fin", f"buffer_load_dwordx4 v{16+i}, s[16:19], s97 offen lds")]
    L += ["s_add_u32 m0, s100, 3072", ("vm", "fin", "buffer_load_dwordx4 v19, s[24:27], s98 offen lds"), f"s_mov_b32 s75, {WS_STAT}", ("vm", "fin", "buffer_load_dword v10, v15, s[8:11], s75 offen sc1")]
    return L
GROUPS = [[n] for n in range(13)] + [[13, 14]] + [[n] for n in range(15, 21)] + [[21, 22, 23]]
ISSUE = {0: (3, 4), 1: (5,), 2: (6,), 4: (7,), 5: (8,), 6: (9,), 7: (10,), 8: (11, 12), 9: (13,), 10: (14,), 11: (15,), 12: (16,), 13: (17, 18, 19), 15: (20,), 16: (21,), 17: (22,), 18: (23,)}
for k_, ns_ in ISSUE.items():
    for n_ in ns_:
        prev_ = [m for m in range(n_) if HBUF[m] == HBUF[n_]]
        assert (not prev_ or prev_[-1] < k_) and (HBUF[n_] < 4 or k_ > 7)
def acc2(hf, nb, tb): return (ACCG if hf == "G" else ACCK) + (tb*5+nb)*4
def ph2_groups(A, groups, extra, pre={}, first={}):
    pend = []
    for g in groups:
        n0 = g[0]; hf = STEPS[n0][0]
        tags = [("h", n) for n in g] + [("w2", STEPS[n][1]) for n in g if ("w2", STEPS[n][1]) in A.tv]
        if n0 == 16: A.sync(tags)
        else: A.it(("wvm", tags))
        if TS >= 2 and n0 not in (15, 17, 18): A("s_waitcnt lgkmcnt(0)")
        if TS >= 2:
            if n0: A(f"v_writelane_b32 v25, s88, {GROUPS.index(g)-1}")
            A("s_memtime s[88:89]")
        if n0 in pre: pre[n0]()
        mf = []; wr = [[] for _ in range(20*len(g))]
        for nb in range(5):
            for tb in range(4):
                c = acc2(hf, nb, tb)
                for n in g:
                    w = w2reg(STEPS[n][1]) + 4*nb
                    mf.append(f"{MF} v[{c}:{c+3}], a[{w}:{w+3}], {Hr(n,tb)}, " + (f"v[{c}:{c+3}]" if STEPS[n][1] != U[0] else "0"))
                if len(g) > 1:
                    pos = 3*(nb*4+tb) + 8
                    if int(OPT.get("w64", 0)): its = [(pos+k, ("ds", None, f"ds_write_b64 v22, v[{c+2*k}:{c+2*k+1}] offset:{(tb*5+nb)*1024+8*k}")) for k in range(2)]
                    else: its = [(pos, ("ds", None, f"ds_write_b128 v22, v[{c}:{c+3}] offset:{(tb*5+nb)*1024}"))]
                    for pos, it in its:
                        if pos < len(wr): wr[pos].append(it)
                        else: pend.append(it)
        st = [(first.get(n0, []) + sum((hload(n) for n in ISSUE.get(n0, ())), []), 0, len(mf) - 8), (extra.get(n0, []), 1, len(mf) - 1)]
        if len(g) == 1 and pend: st.append((pend, 0, 19)); pend = []
        A.weave(mf, st, fixed=wr)
    A.its(pend)
JOIN = []
def ph2_head(A, name, extra):
    a1 = chop(cap(ph2_addr), 2); a2 = cap(ph2_addr2); w = chop(w2loads(10, 12), 4)
    e = {0: a1[0], 1: a1[1], 2: fpoll(0)[:-1], 3: w[0] + w[1], 4: a2, 5: fpoll(1)[:-1] + fin_loads(), 6: w[2], 7: w[3]}
    for k, v in extra.items(): e[k] = v + e.get(k, [])
    ph2_groups(A, GROUPS[:8], e, {5: lambda: fcheck(A, name + "0", 0)}, {3: fpoll(0)[-1:], 6: fpoll(1)[-1:]})
    JOIN.append({t: A.nv - v for t, v in A.tv.items()})

W_SLOT = 20480; NWS = 4; X_BASE = NWS*W_SLOT; X_SLOT = 16384; F_SCR = X_BASE + 3*X_SLOT
def gen_ffn(A):
    import copy
    A("s_mul_i32 s70, s69, 160\ns_min_u32 s70, s70, 1568")
    A("s_lshl_b32 s32, s68, 7\ns_lshl_b32 s33, s3, 5\ns_add_u32 s32, s32, s33")
    A("v_lshrrev_b32 v2, 3, v1\nv_add_u32 v2, s32, v2\nv_mul_u32_u24 v2, 1280, v2\nv_lshrrev_b32 v3, 4, v1\nv_xor_b32 v3, v3, v1\nv_and_b32 v3, 7, v3\nv_lshlrev_b32 v3, 4, v3")
    A(f"v_add_u32 v15, v2, v3\nv_xor_b32 v3, 64, v3\nv_add_u32 v16, v2, v3\nv_add_u32 v16, {8*1280-1024}, v16\nv_add_u32 v17, {16*1280}, v15\nv_add_u32 v18, {16*1280}, v16")
    A(f"s_mul_i32 s73, s3, 5120\ns_lshl_b32 s74, s3, 12\ns_add_u32 s74, s74, {X_BASE}")
    A("s_mul_i32 s32, s71, 320\ns_lshl_b32 s33, s70, 1\ns_movk_i32 s34, 3277")
    for i in range(5):
        A(f"v_add_u32 v2, s32, v1\nv_add_u32 v2, {64*i}, v2\nv_mul_u32_u24 v3, s34, v2\nv_lshrrev_b32 v3, 16, v3")
        A("v_mul_u32_u24 v4, 20, v3\nv_sub_u32 v4, v2, v4\nv_lshrrev_b32 v5, 2, v3\nv_and_b32 v5, 2, v5\nv_xor_b32 v4, v4, v5")
        A(f"v_mul_u32_u24 v3, 3456, v3\nv_lshl_add_u32 v3, v4, 4, v3\nv_add_u32 v3, s33, v3\nv_subrev_u32 v{10+i}, {1024*(i&3)}, v3")
    def dmaW(s):
        L = [f"s_add_u32 m0, s73, {(s%NWS)*W_SLOT}", f"s_mov_b32 s77, {s*32*3456}"]
        for i in range(5):
            if i == 4: L.append(f"s_add_u32 m0, s73, {(s%NWS)*W_SLOT+4096}")
            L.append(("vm", ("W", s), f"buffer_load_dwordx4 v{10+i}, s[12:15], s77 offen offset:{1024*(i&3)} lds"))
        return L
    def dmaX(u, hs=(0, 1)):
        L = []
        for h in hs:
            L += [f"s_add_u32 m0, s74, {(u%3)*X_SLOT+2048*h}", f"s_movk_i32 s78, {u*128}"]
            for i in range(2): L.append(("vm", ("X", u), f"buffer_load_dwordx4 v{15+2*h+i}, s[16:19], s78 offen offset:{1024*i} lds"))
        return L
    st_ld, st_c, st_f = stats_job(32, X_BASE + 2*X_SLOT)
    def lds_setup(A):
        early_setup(A)
        A("v_lshrrev_b32 v2, 4, v1\nv_bfe_u32 v3, v1, 2, 2\nv_lshl_add_u32 v3, v2, 3, v3\nv_mul_u32_u24 v3, 320, v3")
        A("v_and_b32 v4, 3, v1\nv_lshl_add_u32 v3, v4, 3, v3\nv_and_b32 v4, 1, v2\nv_lshlrev_b32 v4, 5, v4")
        A("s_mul_i32 s75, s72, 192\nv_add_u32 v5, s75, v3\nv_add_u32 v20, v5, v4\nv_sub_u32 v21, v5, v4")
        A("s_lshl_b32 s75, s72, 5\ns_add_u32 s75, s75, 128\nv_xor_b32 v5, s75, v4\nv_add_u32 v22, v3, v5")
        for i in range(3): A(f"v_add_u32 v{23+i}, {3*W_SLOT}, v{20+i}")
        A("v_and_b32 v3, 15, v1\nv_lshrrev_b32 v4, 1, v3\nv_xor_b32 v4, v4, v2\nv_lshlrev_b32 v4, 4, v4\nv_lshl_add_u32 v3, v3, 7, v4")
        A(f"s_lshl_b32 s75, s71, 13\ns_add_u32 s75, s75, {X_BASE}\nv_add_u32 v26, s75, v3\nv_xor_b32 v27, 64, v26")
    PEND = []
    def start(role, pre, post, side):
        pre(A)
        A("s_waitcnt lgkmcnt(0)")
        srd(A, 16, P["x"], SZ_X); A.its(st_ld); post(A)
        A("s_cmp_eq_u32 s72, 0"); srd_sel(A, 12, P["w1"], P["w3"], SZ_W)
        main = dmaX(0) + dmaW(0)
        first, second = (side, main) if (ORD == "B" and side) else (main, side)
        A.its(first)
        A.L.append(f";@TOUCH {role}")
        A(f"s_branch {role}_a"); A.L.append(f";@SEG {role}"); A.label(f"{role}_a")
        lds_setup(A)
        A.its(st_c[:1])
        if ORD == "B": spread(A, st_c[1:], second + dmaW(1), 0, len(st_c) - 10)
        elif ORD == "A": spread(A, st_c[1:], dmaW(1) + second, 0, len(st_c) - 10)
        else: spread(A, st_c[1:], dmaW(1) + dmaX(1) + dmaW(2), 0, len(st_c) - 4); PEND[:] = second
    def hs(A):
        A("s_lshl1_add_u32 s32, s69, s72"); sig_early(A, 32, 84, 33)
        A("s_mul_i32 s33, s69, 3\ns_cmp_eq_u32 s69, 10\ns_cselect_b32 s34, 1, 0\ns_sub_u32 s33, s33, s34\ns_lshl1_add_u32 s85, s72, s33\ns_add_u32 s86, s33, 1")
        sig_late(A, 85, 34); sig_late(A, 86, 34)
        A(f"s_lshl1_add_u32 s33, s68, s71\ns_mul_i32 s34, s33, 96")
        for r in (84, 85, 86): A(f"s_add_u32 s{r}, s{r}, s34\ns_lshl_b32 s{r}, s{r}, 12\ns_add_u32 s{r}, s{r}, {WS_H}")
        A(f"s_cmp_eq_u32 s32, 19\ns_cselect_b32 s85, {hex(OOB)}, s85")
        A(f"s_lshl1_add_u32 s87, s32, s71\ns_lshl_b32 s33, s68, 7\ns_add_u32 s87, s87, s33\ns_lshl_b32 s87, s87, 7\ns_add_u32 s87, s87, {WS_FLG}")
    late_setup = [cap(ph2_setup), []] + chop(cap(hs), 2)
    ep_ld = lines(f"s_mul_i32 s75, s72, 1728\ns_mul_i32 s76, s71, 80\ns_add_u32 s75, s75, s76\ns_add_u32 s75, s75, s70\ns_lshl_b32 s75, s75, 3\ns_add_u32 s75, s75, {WS_CS}\ns_add_u32 s76, s75, {CS_HALF}\nv_min_u32 v2, 624, v28")
    ep_ld += [("vm", "ep", "buffer_load_dwordx4 v[56:59], v2, s[8:11], s75 offen sc1"), ("vm", "ep", "buffer_load_dwordx4 v[60:63], v2, s[8:11], s76 offen sc1")]
    ep_ld += lines(f"v_and_b32 v2, 7, v1\nv_lshlrev_b32 v2, 3, v2\nv_and_b32 v3, 8, v1\nv_lshl_add_u32 v2, v3, 4, v2\ns_lshl1_add_u32 s75, s68, s71\ns_lshl_b32 s75, s75, 10\ns_add_u32 s75, s75, {WS_STAT}")
    for tb in range(4): ep_ld.append(("vm", "ep", f"buffer_load_dwordx2 v[{64+2*tb}:{65+2*tb}], v2, s[8:11], s75 offen offset:{256*tb} sc1"))
    ep_tags = [57, 59, 61, 63, 65, 67, 69, 71]
    ep_t = [("wvm", ["ep"])] + tagtest(ep_tags)
    ep_w = lines(f"v_add_f32 v56, v56, v60\nv_add_f32 v57, v58, v62\ns_lshl_b32 s75, s72, 10\ns_mul_i32 s76, s71, 320\ns_add_u32 s75, s75, s76\ns_add_u32 s75, s75, {F_SCR}\nv_min_u32 v2, 39, v1\nv_lshl_add_u32 v2, v2, 3, s75")
    ep_w += [("ds", None, "ds_write_b64 v2, v[56:57]")]
    ep_r = lines(f"v_and_b32 v2, 48, v1\ns_mul_i32 s75, s72, 384\ns_add_u32 s75, s75, {F_SCR}\nv_add_u32 v3, s75, v2\ns_lshl_b32 s75, s72, 6\ns_add_u32 s75, s75, {F_SCR+256}\nv_add_u32 v2, s75, v2")
    for j in range(10):
        pr, m = j >> 1, j & 1
        ep_r.append(("ds", None, f"ds_read_b128 v[{56+4*j}:{59+4*j}], v{2 if pr == 4 else 3} offset:{1024*m + (0 if pr == 4 else 64*pr)}"))
    ep_c = []
    for tb in range(4):
        ep_c += lines(f"v_lshlrev_b32 v{44+tb}, 16, v{64+2*tb}\nv_and_b32 v{52+tb}, 0xffff0000, v{64+2*tb}\nv_rcp_f32 v{48+tb}, v{52+tb}\nv_mul_f32 v{52+tb}, v{52+tb}, v{52+tb}\nv_mul_f32 v{48+tb}, 0xbfb8aa3b, v{48+tb}")
    ep_a = lines("v_lshrrev_b32 v2, 4, v1\nv_and_b32 v3, 1, v2\nv_lshlrev_b32 v3, 10, v3\nv_lshrrev_b32 v2, 1, v2\nv_lshl_add_u32 v3, v2, 8, v3")
    ep_a += lines("v_and_b32 v2, 15, v1\nv_lshl_add_u32 v3, v2, 4, v3\ns_lshl_b32 s75, s72, 9\nv_add_u32 v30, s75, v3\nv_mov_b32 v31, s96\ns_add_u32 s99, s87, 5632")
    ACC = 96
    def acc(j, tb): return ACC + (j*4+tb)*4
    def Wr(par, j): return par*56 + j*4
    def Xr(par, tb): return par*56 + 40 + tb*4
    def reads(s):
        par = s & 1; L = []; sl = s % NWS; hi = 3 if sl >= 3 else 0; so = (sl - hi)*W_SLOT
        for tb in range(4): L.append(("ds", None, f"ds_read_b128 a[{Xr(par,tb)}:{Xr(par,tb)+3}], v{26+(s&1)} offset:{((s>>1)%3)*X_SLOT + tb*2048}"))
        for j in range(10):
            pr, m = j >> 1, j & 1; ar = 22 if pr == 4 else 20 + (pr & 1); co = 0 if pr == 4 else pr*32
            for hh in range(2): L.append(("ds", None, f"ds_read_b64_tr_b16 a[{Wr(par,j)+2*hh}:{Wr(par,j)+2*hh+1}], v{ar+hi} offset:{so + m*10240 + hh*1280 + co}"))
        return L
    wl = chop(w2loads(0, 7), 9)
    def loop(role, mem, side, xt={}):
        M = {0: dmaX(1) + dmaW(2), 1: dmaW(3) + dmaX(2), 2: dmaW(4) + dmaW(5), 3: dmaX(3) + dmaW(6), 4: dmaW(7) + dmaW(8), 5: dmaX(4) + dmaW(9), 6: dmaW(10) + dmaX(5)}
        for s in range(7, 16): M[s] = dmaW(s+4) + (dmaX((s+5) >> 1, ((s+1) & 1,)) if s < 15 else [])
        if ORD == "C": M[0] = PEND + dmaW(3); M[1] = dmaX(2) + dmaW(4); M[2] = dmaW(5)
        if "flat" in OPT:
            F = int(OPT["flat"])
            M = {s: (dmaW(s+3) if s+3 < 20 else []) + (dmaX((s+4) >> 1, (s & 1,)) if (s+4) >> 1 < 10 else []) for s in range(20)}
        for s, L in mem.items(): M[s] = M[s] + ([x if isinstance(x, str) else (x[0], x[1], x[2].replace("s77 offen", "s76 offen")) for x in L] if "noside" in OPT else L)
        M[15] += wl[0]
        for s in range(16, 20): M[s] = M.get(s, []) + wl[2*s-31] + wl[2*s-30]
        S = dict(side)
        for k, L in {5: late_setup[0], 6: late_setup[2], 8: late_setup[3], 11: ep_a, 12: fpoll(4), 13: ep_ld, 15: fpoll(5), 16: ep_t, 17: ep_w + ep_c, 18: ep_r}.items():
            S[k] = S.get(k, []) + L
        A.L.append(f";@TOUCH P{0 if role == 'FA' else 2}")
        A.sync([("X", 0), ("W", 0)]); stamp(A, 1)
        A.its(reads(0))
        for s in range(20):
            tags = ([("W", s+1), ("X", (s+1) >> 1)] if s < 19 else []) + xt.get(s, [])
            if s == 15: fcheck(A, role + "C", 4)
            if s == 17: gcheck(A, role + "G", ep_ld, ep_tags); fcheck(A, role + "P", 5)
            A.sync(tags)
            tick(A, s, 19)
            par = s & 1; mf = []
            for j in range(10):
                for tb in range(4):
                    c = acc(j, tb); mf.append(f"{MF} v[{c}:{c+3}], a[{Wr(par,j)}:{Wr(par,j)+3}], a[{Xr(par,tb)}:{Xr(par,tb)+3}], " + (f"v[{c}:{c+3}]" if s else "0"))
            A.weave(mf, [(reads(s+1) if s < 19 else [], 0, 30), (M.get(s, []), 0, 39), (S.get(s, []), 1, 39)])
    A("s_mul_i32 s32, s68, 11\ns_add_u32 s32, s32, s69\ns_cmp_ge_u32 s32, 108\ns_cbranch_scc1 FB_p")
    snap = (A.nv, dict(A.tv), A.dv, A.nd, dict(A.td), A.dd)
    def fa0(A):
        A(f"s_lshr_b32 s33, s32, 1\ns_and_b32 s34, s32, 1\ns_cmp_lt_u32 s33, 27\ns_cselect_b32 s35, 0, 27\ns_sub_u32 s35, s33, s35\ns_lshl_b32 s35, s35, 7\ns_lshl2_add_u32 s97, s34, s3\ns_mul_i32 s97, s97, {8*3456}\ns_add_u32 s97, s97, s35")
        A("v_lshrrev_b32 v2, 3, v1\nv_mul_u32_u24 v2, 3456, v2\nv_and_b32 v3, 7, v1\nv_lshl_add_u32 v30, v3, 4, v2")
    def fa1(A):
        A("s_cmp_lt_u32 s33, 27"); srd_sel(A, 24, P["w1"], P["w3"], SZ_W)
    def fa2(A):
        A(f"s_lshl_b32 s98, s33, 9\ns_mul_i32 s34, s34, {CS_HALF}\ns_add_u32 s98, s98, s34\ns_add_u32 s98, s98, {WS_CS}\ns_cmp_eq_u32 s3, 0\ns_cselect_b32 s98, s98, {hex(OOB)}")
        A("v_and_b32 v2, 15, v1\nv_and_b32 v3, 1, v1\nv_lshlrev_b32 v3, 4, v3\nv_mov_b32 v4, 0x3f80\nv_lshlrev_b32 v3, v3, v4\nv_lshrrev_b32 v2, 1, v2")
        for r in range(4): A(f"v_cmp_eq_u32 vcc, {r}, v2\nv_cndmask_b32 v{72+r}, 0, v3, vcc")
        A(f"v_and_b32 v2, 7, v1\nv_lshlrev_b32 v2, 5, v2\nv_and_b32 v3, 16, v1\nv_add_u32 v2, v2, v3\ns_lshl_b32 s75, s3, 8\ns_add_u32 s75, s75, {F_SCR}\nv_add_u32 v2, s75, v2\nv_and_b32 v3, 32, v1\nv_lshl_add_u32 v80, v3, 5, v2")
        A(f"v_lshlrev_b32 v82, 2, v1\nv_add_u32 v81, {F_SCR}, v82\nv_lshlrev_b32 v82, 3, v1")
    cs_ld = []
    for i in range(10): cs_ld += [f"s_add_u32 s77, s97, {i*64*3456}", ("vm", "csl", f"buffer_load_dwordx4 a[{112+4*i}:{115+4*i}], v30, s[24:27], s77 offen")]
    cs_c = [("wvm", ["csl"])]
    for i in range(10): cs_c.append(f"{MF} v[76:79], v[72:75], a[{112+4*i}:{115+4*i}], " + ("v[76:79]" if i else "0"))
    cs_c += ["s_nop 0"]*2
    for e in range(4): cs_c.append(f"v_add_f32_dpp v{76+e}, v{76+e}, v{76+e} row_ror:8 row_mask:0xf bank_mask:0xf")
    cs_c.append(("ds", None, "ds_write_b128 v80, v[76:79]"))
    cs_f = [("ds", "csf", f"ds_read_b32 v{72+w}, v81 offset:{256*w}") for w in range(4)]
    cs_f += [("wds", ["csf"]), "v_add_f32 v72, v72, v73", "v_add_f32 v74, v74, v75", "v_mov_b32 v73, s96", "v_add_f32 v72, v72, v74", ("vm", None, "buffer_store_dwordx2 v[72:73], v82, s[8:11], s98 offen sc1")]
    CB = F_SCR + 4096
    def fc1(A):
        A("s_cmp_eq_u32 s72, 0"); srd_sel(A, 20, P["cre"], P["cim"], SZ_B)
        A(f"s_and_b32 s4, s32, 7\ns_lshr_b32 s5, s32, 3\ns_lshl1_add_u32 s99, s4, s71\ns_mul_i32 s99, s99, 51200\ns_lshl_b32 s75, s5, 7\ns_add_u32 s99, s99, s75\ns_cmp_lt_u32 s32, 80\ns_cselect_b32 s99, s99, {hex(OOB)}")
        A(f"s_add_u32 s101, s73, {CB}\nv_lshrrev_b32 v2, 3, v1\nv_mul_u32_u24 v2, 1280, v2\nv_lshrrev_b32 v3, 4, v1\nv_xor_b32 v3, v3, v1\nv_and_b32 v3, 7, v3\nv_lshl_add_u32 v2, v3, 4, v2\ns_lshl_b32 s75, s71, 6\nv_xor_b32 v84, s75, v2\nv_xor_b32 v85, 64, v84")
    def fc2(A):
        A(f"s_lshl2_add_u32 s5, s5, s3\ns_mul_i32 s6, s4, 40\ns_add_u32 s6, s6, s5\ns_lshl_b32 s6, s6, 7\ns_add_u32 s6, s6, {WS_CF}")
        sig_ssm(A, 5, 75)
        A(f"s_mul_i32 s4, s4, 96\ns_add_u32 s5, s5, s4\ns_mul_i32 s100, s5, 5120\ns_add_u32 s100, s100, {WS_W2P}\ns_cmp_lt_u32 s32, 80\ns_cselect_b32 s100, s100, {hex(OOB)}\ns_cselect_b32 s6, s6, {hex(OOB)}")
        A(f"v_and_b32 v2, 15, v1\nv_bfe_u32 v3, v1, 4, 1\ns_lshl_b32 s75, s3, 1\nv_add_u32 v3, s75, v3\nv_lshrrev_b32 v4, 1, v2\nv_xor_b32 v3, v3, v4\nv_lshlrev_b32 v3, 4, v3\nv_lshl_add_u32 v3, v2, 7, v3")
        A(f"v_lshrrev_b32 v4, 5, v1\nv_mul_u32_u24 v4, 10240, v4\nv_add_u32 v3, v3, v4\nv_add_u32 v86, {CB}, v3")
    c_ld = []
    for i in range(5): c_ld += [f"s_add_u32 m0, s101, {1024*i}", f"s_add_u32 s77, s99, {10240*i}", ("vm", "cl", f"buffer_load_dwordx4 v{84+(i&1)}, s[20:23], s77 offen lds")]
    c_r = [("ds", None, f"ds_read_b128 a[{152+4*nb}:{155+4*nb}], v86 offset:{2048*nb}") for nb in range(5)]
    c_s = [("vm", "cs", f"buffer_store_dwordx4 a[{152+4*nb}:{155+4*nb}], v{28+(nb>>2)}, s[8:11], s100 offen offset:{(nb&3)*1024} sc1") for nb in range(5)]
    c_f = ["v_mov_b32 v3, s96", ("wvm", ["cs"]), ("vm", None, "buffer_store_dword v3, v8, s[8:11], s6 offen sc1")]
    CD = int(OPT.get("cd", 0))
    start("FA", fa0, fa1, cs_ld)
    fc1(A)
    loop("FA", {CD: c_ld, CD+2: c_r, CD+3: c_s[:3], CD+4: c_s[3:]}, {0: st_f + cap(fc2), 1: cap(fa2), CD+7: c_f, 9: cs_c, 10: cs_f}, {CD+2: ["cl"]})
    A("s_branch FFN_EP")
    A.nv, A.tv, A.dv, A.nd, A.td, A.dd = snap
    A.L.append(";@SEG FBP"); A.label("FB_p")
    SO = (4, 5, 6, 97, 24, 25, 26, 27)
    def fb1(A):
        A("s_sub_u32 s34, s32, 108\ns_lshl2_add_u32 s32, s34, s3\ns_mul_i32 s34, s32, 52429\ns_lshr_b32 s34, s34, 18\ns_mul_i32 s33, s34, 5\ns_sub_u32 s33, s32, s33")
        A(f"s_mul_i32 s99, s34, 40960\ns_lshl_b32 s35, s33, 8\ns_add_u32 s99, s99, s35\ns_lshl_b32 s101, s3, 13\ns_add_u32 s101, s101, {F_SCR}")
        A(f"v_lshrrev_b32 v2, 4, v1\nv_mul_u32_u24 v30, 1280, v2\nv_and_b32 v3, 15, v1\nv_lshlrev_b32 v2, 1, v2\nv_xor_b32 v3, v3, v2\nv_lshl_add_u32 v30, v3, 4, v30\nv_xor_b32 v31, 128, v30")
    def fb2(A):
        A("s_mul_i32 s35, s34, 52429\ns_lshr_b32 s35, s35, 18\ns_mul_i32 s75, s35, 5\ns_sub_u32 s75, s34, s75\ns_sub_u32 s76, s34, 49\ns_cmp_ge_u32 s34, 49\ns_cselect_b32 s35, 10, s35\ns_cselect_b32 s75, s76, s75")
        A("s_cmp_eq_u32 s75, 3\ns_cselect_b32 s76, 1, 0\ns_lshl1_add_u32 s76, s35, s76"); sig_early(A, 76, 100, 79)
        A("s_mul_i32 s76, s35, 3\ns_lshr_b32 s79, s75, 1\ns_add_u32 s76, s76, s79\ns_cmp_eq_u32 s35, 10\ns_cselect_b32 s79, 1, 0\ns_sub_u32 s76, s76, s79"); sig_late(A, 76, 79)
        A("s_lshr_b32 s79, 9, s75\ns_bitcmp1_b32 s79, 0\ns_cselect_b32 s100, s100, s76")
        A(f"s_mul_i32 s98, s100, 5\ns_add_u32 s98, s98, s33\ns_lshl_b32 s98, s98, 7\ns_add_u32 s98, s98, {WS_WF}")
        A(f"s_mul_i32 s100, s100, 5120\ns_lshl_b32 s79, s33, 13\ns_add_u32 s100, s100, s79\ns_add_u32 s100, s100, {WS_W2P}")
        A(f"s_cmp_lt_u32 s32, 270\ns_cselect_b32 s100, s100, {hex(OOB)}\ns_cselect_b32 s98, s98, {hex(OOB)}")
        A("s_cmp_eq_u32 s75, 2\ns_cselect_b32 s75, 8, 4\ns_cselect_b32 s76, 1, 4\ns_lshl_b32 s76, s76, 10")
        A(f"v_lshrrev_b32 v2, 4, v1\nv_mul_u32_u24 v2, s75, v2\nv_bfe_u32 v3, v1, 2, 2\nv_add_u32 v2, v2, v3\nv_lshlrev_b32 v2, 8, v2\nv_and_b32 v3, 3, v1\nv_lshl_add_u32 v2, v3, 3, v2")
        for r in (80, 81):
            A((f"v_mov_b32 v{r}, v2" if r == 80 else f"v_add_u32 v{r}, s76, v2") + f"\nv_lshrrev_b32 v3, 1, v{r}\nv_and_b32 v3, 0x400, v3\nv_xor_b32 v3, v3, v{r}\nv_bfe_u32 v3, v3, 8, 3\nv_lshl_add_u32 v{r}, v3, 5, v{r}\nv_add_u32 v{r}, s101, v{r}")
        A(f"s_mul_i32 s33, s33, {8*52429}")
        for k in range(8): A(f"s_add_u32 s79, s33, {k*52429}\ns_lshr_b32 s79, s79, 18\ns_mul_i32 s79, s79, 486400\ns_add_u32 s{SO[k]}, s100, s79")
    w2_ld = []
    for i in range(8): w2_ld += [f"s_add_u32 m0, s101, {1024*i}", f"s_add_u32 s77, s99, {5120*i}", ("vm", "w2l", f"buffer_load_dwordx4 v{30 + ((i ^ (i >> 1)) & 1)}, s[20:23], s77 offen lds")]
    w2_c = [("wvm", ["w2l"])]
    for k in range(8):
        for hh in range(2): w2_c += [f"v_xor_b32 v{82+hh}, {32*k}, v{80+hh}", ("ds", "w2t", f"ds_read_b64_tr_b16 a[{152+4*k+2*hh}:{153+4*k+2*hh}], v{82+hh}")]
    w2_s = [("vm", "side", f"buffer_store_dwordx4 a[{152+4*k}:{155+4*k}], v{28+(k>>2)}, s[8:11], s{SO[k]} offen offset:{(k&3)*1024} sc1") for k in range(8)]
    f2 = chop(cap(fb2), 3)
    BD = int(OPT.get("bd", 0)); BS = int(OPT.get("bs", BD+4)); BN = int(OPT.get("bn", 3))
    start("FB", fb1, lambda A: srd(A, 20, P["w2"], SZ_W), w2_ld if BD < 0 else [])
    fl = ["v_mov_b32 v3, s96", ("wvm", ["side"]), ("vm", None, "buffer_store_dword v3, v8, s[8:11], s98 offen sc1")]
    if BD < 0: loop("FB", {}, {0: st_f + f2[0], 1: f2[1], 2: f2[2], 3: w2_c, 4: w2_s[:4], 5: w2_s[4:], 8: fl})
    else: loop("FB", {BD: w2_ld}, {0: st_f + f2[0], 1: f2[1], 2: f2[2], BD+3: w2_c, **{BS+k: L for k, L in enumerate(chop(w2_s, BN))}, BS+BN+2: fl})
    A.L.append(";@SEG EP"); A.label("FFN_EP"); A.reset()
    A("s_waitcnt lgkmcnt(0)"); tick(A, 20, 19); tockdump(A, 20, 19, 0x40000)
    stamp(A, 2)
    A("s_nop 6")
    T = 32
    def silu(pr, tb, dst):
        g, u = acc(2*pr, tb), acc(2*pr+1, tb); cg, cu = 56+8*pr, 60+8*pr
        L = []
        for k in (0, 2): L.append(pk("fma", g+k, cg+k, ("b", 44+tb), g+k, neg=(1,)))
        for k in (0, 2): L.append(pk("mul", T+k, g+k, ("b", 48+tb)))
        for k in (0, 2): L.append(pk("fma", u+k, cu+k, ("b", 44+tb), u+k, neg=(1,)))
        for e in range(4): L.append(f"v_exp_f32 v{T+e}, v{T+e}")
        for k in (0, 2): L.append(pk("mul", g+k, g+k, u+k))
        for k in (0, 2): L.append(pk("fma", T+k, T+k, ("b", 52+tb), ("b", 52+tb)))
        for e in range(4): L.append(f"v_rcp_f32 v{T+e}, v{T+e}")
        for k in (0, 2): L.append(pk("mul", g+k, g+k, T+k))
        L += [f"v_cvt_pk_bf16_f32 v{dst}, v{g}, v{g+1}", f"v_cvt_pk_bf16_f32 v{dst+1}, v{g+2}, v{g+3}"]
        return L
    ep = []
    PP = int(OPT.get("pp", 99)); PC = int(OPT.get("pc", 99)); EF = int(OPT.get("ef", 99)); LF = int(OPT.get("lf", 2))
    grp = []
    for fr in range(2):
        for tb in range(4):
            o = acc(4*fr+1, tb)
            grp.append((silu(2*fr, tb, o) + silu(2*fr+1, tb, o+2), ("vm", ("H", fr), f"buffer_store_dwordx4 v[{o}:{o+3}], v28, s[8:11], s{84+fr} offen offset:{tb*1024} sc1")))
    for tp in range(2):
        o = acc(9, 2*tp)
        grp.append((silu(4, 2*tp, o) + silu(4, 2*tp+1, o+2) + [f"v_permlane16_swap_b32 v{o}, v{o+2}", f"v_permlane16_swap_b32 v{o+1}, v{o+3}"],
                    ("vm", ("H", 2), f"buffer_store_dwordx4 v[{o}:{o+3}], v30, s[8:11], s86 offen offset:{tp*2048} sc1")))
    h3 = hload(0, 34) + hload(1, 34) + hload(2, 34)
    we = chop(w2loads(7, 7+FE), 6) if FE else [[]]*6; hl = chop(h3, 9-PC) if PC < 9 else []
    for k, (c, st) in enumerate(grp):
        spread(A, c, we[k] if k < 6 else (hl[k-PC-1] if k > PC else []))
        if k == PP: A.its(fpoll(2))
        if k == EF: A.its([("wvm", [("H", 0)]), ("vm", None, "buffer_store_dword v31, v8, s[8:11], s87 offen sc1")])
        if k == PC: A.its(ftest(34, 30))
        A.it(st)
    if 9 <= PC < 99:
        if PC > 9: A.its(ftest(34, 30))
        A.its(h3)
    stamp(A, 3)
    fs = "buffer_store_dword v31, v8, s[8:11], s99 offen sc1"
    if PC == 99:
        A.its(fpoll(2) + [("wvm", [("H", 0)]), ("vm", None, "buffer_store_dword v31, v8, s[8:11], s87 offen sc1"), ("wvm", [("H", 2)]), ("vm", None, fs)])
        fcheck(A, "FR", 2); stamp(A, 6); A.its(hload(0) + hload(1) + hload(2))
        ph2_head(A, "FC", dict(enumerate(chop(w2loads(7+FE, 10), 3))) if FE < 3 else {})
        A("s_branch PH2"); return
    fredo(A, "FR", 2, 34, 30, hload(0) + hload(1) + hload(2), pre="s_waitcnt vmcnt(0)\n" + fs)
    stamp(A, 6)
    ex = dict(enumerate(chop(w2loads(7+FE, 10), 3))) if FE < 3 else {}
    ex[LF] = ex.get(LF, []) + [("wvm", [("H", 2)]), ("vm", None, fs)]
    ph2_head(A, "FC", ex)
    A("s_branch PH2")

S_SLOT = 49152; S_SCR = 3*S_SLOT
def gen_ssm(A):
    A.reset()
    A("s_lshl_b32 s32, s68, 8\ns_lshl_b32 s33, s72, 7\ns_add_u32 s32, s32, s33\ns_lshl_b32 s33, s71, 3\ns_add_u32 s32, s32, s33")
    A("v_and_b32 v2, 32, v1\nv_bfe_u32 v3, v1, 3, 1\nv_lshl_add_u32 v2, v3, 4, v2\nv_bfe_u32 v3, v1, 4, 1\nv_add3_u32 v2, v2, v3, s32\nv_mul_u32_u24 v2, 1280, v2")
    A("v_lshrrev_b32 v3, 4, v1\nv_xor_b32 v3, v3, v1\nv_and_b32 v3, 7, v3\nv_lshlrev_b32 v3, 4, v3\nv_xor_b32 v4, 64, v3\nv_add_u32 v5, v2, v3\nv_add_u32 v6, v2, v4")
    for ii in range(8): A(f"v_add_u32 v{10+ii}, {(64*(ii&1) + 2*(ii>>1))*1280 - 1024*(ii&3)}, v{5+(ii&1)}")
    A("s_lshl_b32 s32, s69, 6\ns_lshl_b32 s33, s71, 5\ns_add_u32 s32, s32, s33")
    A("v_lshrrev_b32 v2, 3, v1\nv_add_u32 v2, s32, v2\nv_mul_u32_u24 v2, 1280, v2\nv_add_u32 v5, v2, v3\nv_add_u32 v6, v2, v4")
    for i in range(4): A(f"v_add_u32 v{18+i}, {8*i*1280 - 1024*i}, v{5+(i&1)}")
    A("s_lshl_b32 s73, s3, 13\ns_lshl_b32 s74, s3, 12\ns_add_u32 s74, s74, 32768")
    st_ld, st_c, st_f = stats_job(32, S_SCR)
    def dma(u, hs=(0, 1)):
        b = (u % 3)*S_SLOT; L = []
        for h in hs:
            L += [f"s_add_u32 m0, s73, {b+4096*h}", f"s_movk_i32 s78, {u*128}"]
            for i in range(4): L.append(("vm", ("S", u), f"buffer_load_dwordx4 v{10+4*h+i}, s[16:19], s78 offen offset:{1024*i} lds"))
            L.append(f"s_add_u32 m0, s74, {b}")
            for i in range(2): L.append(("vm", ("S", u), f"buffer_load_dwordx4 v{18+2*h+i}, s[12:15], s78 offen offset:{1024*(2*h+i)} lds"))
        return L
    p_ld = lines("s_lshl_b32 s32, s69, 6\ns_lshl_b32 s33, s72, 5\ns_add_u32 s32, s32, s33\nv_and_b32 v2, 15, v1\nv_add_u32 v30, s32, v2\nv_lshlrev_b32 v2, 1, v30")
    for cb in range(2):
        for q, sp in enumerate((P["lre"], P["lim"], P["ldt"])): p_ld.append(("vm", "P", f"global_load_ushort v{112+3*cb+q}, v2, s[{sp}:{sp+1}] offset:{32*cb}"))
    def lds_setup(A):
        early_setup(A)
        A("v_lshrrev_b32 v2, 4, v1\nv_and_b32 v3, 15, v1\nv_lshrrev_b32 v4, 1, v3\nv_xor_b32 v4, v4, v2\nv_lshlrev_b32 v4, 4, v4\nv_lshl_add_u32 v3, v3, 7, v4")
        A("s_lshl_b32 s75, s71, 14\ns_lshl_b32 s76, s72, 12\ns_add_u32 s76, s76, 32768")
        A("v_add_u32 v22, s75, v3\nv_xor_b32 v23, 64, v22\nv_add_u32 v120, s76, v3\nv_xor_b32 v121, 64, v120")
        for sl in (1, 2):
            for ks in range(2): A(f"v_add_u32 v{22+2*sl+ks}, {sl*S_SLOT}, v{22+ks}\nv_add_u32 v{120+2*sl+ks}, {sl*S_SLOT}, v{120+ks}")
    def ss0(A):
        A("s_mul_i32 s32, s68, 10\ns_add_u32 s32, s32, s69\ns_lshl2_add_u32 s35, s32, s3\ns_cmp_lt_u32 s35, 160\ns_cselect_b32 s33, 0, 160\ns_sub_u32 s33, s35, s33\ns_mul_i32 s97, s33, 5120")
        A("v_bfe_u32 v2, v1, 2, 2\nv_mul_u32_u24 v2, 1280, v2\nv_and_b32 v3, 3, v1\nv_lshl_add_u32 v2, v3, 4, v2\nv_lshrrev_b32 v4, 4, v1\nv_lshl_add_u32 v67, v4, 6, v2")
    def ss1(A):
        A(f"s_lshl_b32 s98, s35, 7\ns_add_u32 s98, s98, {WS_CSB}")
        A("v_lshlrev_b32 v2, 21, v1\nv_and_b32 v2, 0xfe000000, v2\nv_lshl_add_u32 v55, v1, 3, v2")
        for r in range(4): A(f"v_mov_b32 v{68+r}, 0x3f803f80")
        A("s_lshl_b32 s32, s71, 2\nv_lshrrev_b32 v31, 4, v1\nv_add_u32 v31, s32, v31")
    def ss3(A):
        A("s_lshl1_add_u32 s32, s69, s72\ns_lshl_b32 s84, s32, 1\ns_add_u32 s85, s84, 1"); sig_ssm(A, 84, 33); sig_ssm(A, 85, 33)
        A(f"s_lshl1_add_u32 s34, s68, s71\ns_mul_i32 s35, s34, 192")
        for r in (84, 85): A(f"s_add_u32 s{r}, s{r}, s35\ns_lshl_b32 s{r}, s{r}, 12\ns_add_u32 s{r}, s{r}, {WS_H}")
        A(f"s_lshl_b32 s87, s34, 7\ns_add_u32 s87, s87, s32\ns_lshl_b32 s87, s87, 7\ns_add_u32 s87, s87, {WS_FLG+88*128}")
        A(f"s_add_u32 s86, s84, {96*4096}\ns_add_u32 s78, s85, {96*4096}")
    def ss4(A):
        A("s_mul_i32 s75, s3, 20480\nv_and_b32 v2, 15, v1\nv_bfe_u32 v3, v2, 2, 1\nv_and_b32 v4, 3, v2\nv_lshl_add_u32 v3, v4, 1, v3\nv_and_b32 v4, 8, v2\nv_or_b32 v3, v3, v4")
        A("v_lshrrev_b32 v4, 4, v1\nv_lshlrev_b32 v5, 2, v4\nv_xor_b32 v3, v3, v5\nv_lshlrev_b32 v3, 4, v3\nv_lshl_add_u32 v3, v2, 8, v3\nv_add_u32 v10, s75, v3")
        A("v_bfe_u32 v2, v1, 2, 2\nv_lshlrev_b32 v3, 5, v2\nv_and_b32 v5, 1, v4\nv_lshl_add_u32 v3, v5, 7, v3\nv_and_b32 v5, 3, v1\nv_lshl_add_u32 v3, v5, 3, v3")
        A("v_lshl_add_u32 v2, v4, 3, v2\nv_lshl_add_u32 v3, v2, 8, v3\nv_add_u32 v11, s75, v3")
    def ss5(A):
        A("v_lshlrev_b32 v3, 4, v30\nv_lshlrev_b32 v2, 21, v1\nv_and_b32 v2, 0xfe000000, v2\nv_add_u32 v12, v2, v3\ns_lshl1_add_u32 s76, s68, s71\ns_mul_i32 s97, s76, 10240")
        A("v_lshrrev_b32 v2, 4, v1\nv_mul_u32_u24 v13, 10240, v2\ns_sub_u32 s75, s97, 10240\nv_sub_u32 v13, s75, v13\nv_add_u32 v13, v13, v3\nv_mov_b32 v21, s96")
        for i in range(4):
            if i: A(f"v_subrev_u32 v{13+i}, {40960*i}, v13\nv_add_u32 v2, 4, v2")
            A(f"v_cmp_gt_u32 vcc, s76, v2\nv_cndmask_b32 v{17+i}, 0, v21, vcc")
    b_ld = [("vm", "bl", f"buffer_load_dwordx4 a[{112+4*i}:{115+4*i}], v67, s[24:27], s97 offen offset:{256*i}") for i in range(5)]
    b_c = [("wvm", ["bl"])]
    for i in range(5): b_c.append(f"{MF} v[56:59], v[68:71], a[{112+4*i}:{115+4*i}], " + ("v[56:59]" if i else "0"))
    b_c += ["s_nop 0"]*3
    b_c += ["v_add_f32_dpp v56, v56, v56 quad_perm:[1,0,3,2] row_mask:0xf bank_mask:0xf", "v_add_f32_dpp v56, v56, v56 quad_perm:[2,3,0,1] row_mask:0xf bank_mask:0xf",
            "v_mov_b32 v57, s96", ("vm", None, "buffer_store_dwordx2 v[56:57], v55, s[8:11], s98 offen sc1")]
    NM = "LR LI CA CB L16R L16I L32R L32I L512R L512I QR QI UR UI WR WI PR PI T0 T1".split()
    def Pm(cb): return dict(zip(NM, range(72+20*cb, 72+20*cb+20)))
    par_c = [("wvm", ["P"])] + lines("v_lshrrev_b32 v60, 4, v1\nv_cvt_f32_u32 v60, v60\nv_mul_f32 v60, 0x42000000, v60\nv_sub_f32 v61, 0x42c00000, v60\nv_mul_f32 v62, 4.0, v60")
    for cb in range(2):
        p = Pm(cb); i0 = 112 + 3*cb; zr, zt, t0, t1 = p['PR'], p['PI'], p['T0'], p['T1']
        def power(d, n):
            pre = [f"v_mul_f32 v{t0}, {n}, v{zr}", f"v_mul_f32 v{t1}, {n}, v{zt}"] if n else []
            a, b = (t0, t1) if n else (zr, zt)
            return pre + lines(f"v_exp_f32 v{t0}, v{a}\nv_fract_f32 v{t1}, v{b}\nv_cos_f32 v{d}, v{t1}\nv_sin_f32 v{d+1}, v{t1}\nv_mul_f32 v{d}, v{d}, v{t0}\nv_mul_f32 v{d+1}, v{d+1}, v{t0}")
        par_c += lines(f"""v_lshlrev_b32 v{i0+2}, 16, v{i0+2}
v_mul_f32 v{t0}, 0x3fb8aa3b, v{i0+2}
v_exp_f32 v{t0}, v{t0}
v_lshlrev_b32 v{i0}, 16, v{i0}
v_lshlrev_b32 v{i0+1}, 16, v{i0+1}
v_cvt_pk_bf16_f32 v{t0}, v{t0}, v{t0}
v_and_b32 v{t0}, 0xffff0000, v{t0}
v_mul_f32 v{zr}, v{t0}, v{i0}
v_mul_f32 v{zt}, v{t0}, v{i0+1}
v_mul_f32 v{zr}, 0x3fb8aa3b, v{zr}
v_mul_f32 v{zt}, 0.15915494, v{zt}""") + power(p['LR'], None)
        par_c += lines(f"""v_mul_f32 v{t1}, v{i0}, v{i0}
v_fmac_f32 v{t1}, v{i0+1}, v{i0+1}
v_rcp_f32 v{t1}, v{t1}
v_add_f32 v{t0}, -1.0, v{p['LR']}
v_mul_f32 v{p['CA']}, v{t0}, v{i0}
v_add_f32 v{t1}, v{t1}, v{t1}
v_fmac_f32 v{p['CA']}, v{p['LI']}, v{i0+1}
v_mul_f32 v{p['CB']}, v{p['LI']}, v{i0}
v_fma_f32 v{p['CB']}, -v{t0}, v{i0+1}, v{p['CB']}
v_mul_f32 v{p['CA']}, v{p['CA']}, v{t1}
v_mul_f32 v{p['CB']}, v{p['CB']}, v{t1}""")
        par_c += power(p['L16R'], "0x41800000") + power(p['L32R'], "0x42000000") + power(p['L512R'], "0x44000000") + power(p['QR'], "v60") + power(p['UR'], "v61") + power(p['WR'], "v62")
    ep_ld = lines(f"v_lshrrev_b32 v2, 3, v0\nv_lshlrev_b32 v2, 7, v2\nv_and_b32 v3, 7, v0\nv_lshl_add_u32 v2, v3, 3, v2\ns_lshl_b32 s75, s68, 12\ns_add_u32 s75, s75, {WS_STAT}") + [("vm", "ep", "buffer_load_dwordx2 v[52:53], v2, s[8:11], s75 offen sc1")]
    ep_ld += lines(f"v_lshrrev_b32 v2, 2, v30\nv_lshlrev_b32 v2, 7, v2\nv_and_b32 v3, 3, v30\nv_lshl_add_u32 v2, v3, 5, v2\ns_mov_b32 s75, {WS_CSB}\ns_mov_b32 s76, {WS_CSB+20480}")
    def CS(cb, im): return 112 + 4*cb + 2*im
    for cb in range(2):
        for im in range(2): ep_ld.append(("vm", "ep", f"buffer_load_dwordx2 v[{CS(cb,im)}:{CS(cb,im)+1}], v2, s[8:11], s{75+im} offen offset:{512*cb} sc1"))
    ep_tags = [53, 113, 115, 117, 119]
    ep_t = [("wvm", ["ep"])] + tagtest(ep_tags)
    ep_c = lines(f"""v_and_b32 v53, 0xffff0000, v52
v_rcp_f32 v53, v53
v_lshlrev_b32 v52, 16, v52
v_and_b32 v2, 15, v0
v_bfe_u32 v3, v0, 4, 1
v_lshl_add_u32 v2, v2, 1, v3
v_and_b32 v3, 0xe0, v0
v_add_u32 v2, v2, v3
v_mul_f32 v52, v52, v53
v_lshlrev_b32 v2, 2, v2
v_add_u32 v2, {S_SCR}, v2""") + [("ds", None, "ds_write_b32 v2, v53"), ("ds", None, "ds_write_b32 v2, v52 offset:1024")]
    ACC = 128
    def acc(b, c): return ACC + (c*8+b)*4
    def Xr(par, b): return par*48 + b*4
    def Br(par, c): return par*48 + 32 + c*4
    def reads(s):
        par = s & 1; sl = (s >> 1) % 3; L = []
        for c in range(4): L.append(("ds", None, f"ds_read_b128 a[{Br(par,c)}:{Br(par,c)+3}], v{120+2*sl+(s&1)} offset:{(c>>1)*8192 + (c&1)*2048}"))
        for b in range(8): L.append(("ds", None, f"ds_read_b128 a[{Xr(par,b)}:{Xr(par,b)+3}], v{22+2*sl+(s&1)} offset:{b*2048}"))
        return L
    SORD = OPT.get("sord", "A")
    M = {0: (b_ld if SORD == "C" else []) + dma(2)}
    for s in range(1, 15): M[s] = dma((s+5) >> 1, ((s+1) & 1,))
    CK = int(OPT.get("ck", 16))
    for k, L in enumerate(chop(w2loads(0, 5, 99), 20-CK)): M[CK+k] = M.get(CK+k, []) + L
    pc = chop(par_c, 8); ps = chop(cap(ph2_setup), 2)
    pc = chop(par_c, 9)
    S = {0: cap(ss1), 1: st_f + p_ld, 2: ps[0], 3: ps[1] + b_c, 4: pc[0], 5: pc[1], 6: pc[2], 7: pc[3], 8: pc[4], 9: pc[5], 10: pc[6], 11: pc[7], 12: pc[8],
         13: ep_ld, 15: cap(ss3), 16: ep_t, 17: ep_c, 18: cap(ss4), 19: cap(ss5)}
    S[CK-2] = fpoll(4) + S.get(CK-2, [])
    PF = int(OPT.get("pf", 0)); PFI = int(OPT.get("pfi", 19))
    if PF:
        pf = lines(f"s_lshr_b32 s32, s2, 3\ns_lshl2_add_u32 s32, s32, s3\ns_lshr_b32 s33, s32, 2\ns_mul_i32 s33, s33, 96\ns_mul_i32 s34, s29, 12\ns_add_u32 s33, s33, s34\ns_mul_i32 s33, s33, 5120\ns_add_u32 s33, s33, {WS_W2P + 35840 - PF*8192}")
        pf += [f"s_cmp_lt_u32 s32, 32\ns_cselect_b32 s33, s33, {hex(OOB)}", "v_lshlrev_b32 v6, 7, v1"]
        for k in range(PF): pf += [("vm", None, "buffer_load_dword v7, v6, s[8:11], s33 offen sc1"), "s_add_u32 s33, s33, 8192"]
        S[PFI] = S.get(PFI, []) + pf
    ss0(A)
    A("s_waitcnt lgkmcnt(0)")
    srd(A, 16, P["x"], SZ_X); A.its(st_ld)
    A("s_cmp_lt_u32 s35, 160"); srd_sel(A, 24, P["bre"], P["bim"], SZ_B)
    A("s_cmp_eq_u32 s72, 0"); srd_sel(A, 12, P["bre"], P["bim"], SZ_B)
    first, second = {"B": (b_ld + dma(0, (0,)), dma(0, (1,)) + dma(1)), "A": (dma(0), b_ld + dma(1)), "C": (dma(0), dma(1))}[SORD]
    A.its(first)
    A.L.append(";@TOUCH S")
    A("s_branch SSM_a"); A.L.append(";@SEG SSM"); A.label("SSM_a")
    lds_setup(A)
    A.its(st_c[:1]); spread(A, st_c[1:], second, 0, len(st_c) - 2)
    A.sync([("S", 0)]); stamp(A, 1)
    A.its(reads(0))
    for s in range(20):
        tags = [("S", (s+1) >> 1)] if (s < 19 and s & 1) else []
        if s == 17: gcheck(A, "SG", ep_ld, ep_tags)
        if s == CK: A.its(ftest(99, 82))
        A.sync(tags, barrier=bool(s & 1))
        tick(A, s, 127)
        par = s & 1; mf = []
        for b in range(8):
            for c in range(4):
                r = acc(b, c); mf.append(f"{MF} v[{r}:{r+3}], a[{Xr(par,b)}:{Xr(par,b)+3}], a[{Br(par,c)}:{Br(par,c)+3}], " + (f"v[{r}:{r+3}]" if s else "0"))
        A.weave(mf, [(reads(s+1) if s < 19 else [], 0, 24), (M.get(s, []), 0, 31), (S.get(s, []), 1, 31)])
    A("s_waitcnt lgkmcnt(0)"); tick(A, 20, 127); tockdump(A, 20, 127, 0x40000)
    stamp(A, 2)
    def gre(cb, j): return acc(0, cb) + 2*j
    def gim(cb, j): return acc(0, 2+cb) + 2*j
    def cfma(dr, di, mr, mi, xr, xi, ar, ai):
        return lines(f"v_fma_f32 v{dr}, v{mr}, v{xr}, v{ar}\nv_fma_f32 v{di}, v{mr}, v{xi}, v{ai}\nv_fma_f32 v{dr}, -v{mi}, v{xi}, v{dr}\nv_fma_f32 v{di}, v{mi}, v{xr}, v{di}")
    def cmul(dr, di, mr, mi, xr, xi):
        return lines(f"v_mul_f32 v{dr}, v{mr}, v{xr}\nv_mul_f32 v{di}, v{mr}, v{xi}\nv_fma_f32 v{dr}, -v{mi}, v{xi}, v{dr}\nv_fmac_f32 v{di}, v{mi}, v{xr}")
    def gsum(regs, tmp):
        L = []
        for sw in ("v_permlane16_swap_b32", "v_permlane32_swap_b32"):
            L += [f"v_mov_b32 v{tmp+k}, v{r}" for k, r in enumerate(regs)] + [f"{sw} v{r}, v{tmp+k}" for k, r in enumerate(regs)] + [f"v_add_f32 v{r}, v{r}, v{tmp+k}" for k, r in enumerate(regs)]
        return L
    def rload(c):
        b = 32 + 16*(c & 1)
        return [("ds", ("R", c), f"ds_read_b128 v[{b+4*k+8*t}:{b+4*k+8*t+3}], v22 offset:{1024*t + 32*(c&3) + 16*k}") for t in range(2) for k in range(2)]
    def scan(cb):
        p = Pm(cb); L = []
        for j in range(16):
            c = 4*cb + (j >> 2); b = 32 + 16*(c & 1) + 2*(j & 3)
            if j & 3 == 0: L.append(("wds", [("R", c)]))
            L += [pk("mul", gre(cb,j), gre(cb,j), b), pk("mul", gim(cb,j), gim(cb,j), b)]
            L += [pk("fma", gre(cb,j), b+8, ("b", CS(cb,0)), gre(cb,j), neg=(0,)), pk("fma", gim(cb,j), b+8, ("b", CS(cb,1)), gim(cb,j), neg=(0,))]
            if j & 3 == 3 and c + 2 < 8: L += rload(c+2)
            if j:
                L += [pk("fma", gre(cb,j), gre(cb,j-1), ("b", p['LR']), gre(cb,j)), pk("fma", gim(cb,j), gim(cb,j-1), ("b", p['LR']), gim(cb,j))]
                L += [pk("fma", gre(cb,j), gim(cb,j-1), ("b", p['LI']), gre(cb,j), neg=(1,)), pk("fma", gim(cb,j), gre(cb,j-1), ("b", p['LI']), gim(cb,j))]
        o = 120 + 4*cb
        L += cfma(64+2*cb, 65+2*cb, p['L16R'], p['L16I'], gre(cb,15), gim(cb,15), gre(cb,15)+1, gim(cb,15)+1) + cmul(o, o+2, p['UR'], p['UI'], 64+2*cb, 65+2*cb)
        L += gsum([o, o+2], 4) + [f"v_mov_b32 v{o+1}, s96", f"v_mov_b32 v{o+3}, s96", ("vm", None, f"buffer_store_dwordx4 v[{o}:{o+3}], v12, s[8:11], s97 offen offset:{256*cb} sc1")]
        return L
    def lbl(cb): return [("vm", ("lb", cb), f"buffer_load_dwordx4 v[{32+16*cb+4*i}:{35+16*cb+4*i}], v{13+i}, s[8:11], 0 offen offset:{256*cb} sc1") for i in range(4)]
    def transform(cb):
        p = Pm(cb); L = [f"v_mov_b32 v{64+2*cb}, v{gre(cb,15)}", f"v_mov_b32 v{65+2*cb}, v{gim(cb,15)}"]
        for j in range(16):
            r, i = gre(cb,j), gim(cb,j)
            L += [pk("mul", 112, i, ("b", p['CB'])), pk("mul", 114, r, ("b", p['CB'])), pk("fma", r, r, ("b", p['CA']), 112, neg=(2,)), pk("fma", i, i, ("b", p['CA']), 114, neg=(1, 2))]
        return L
    def lookback(cb):
        b = 32+16*cb
        lt = [f"v_xor_b32 v4, v17, v{b+1}"] + sum(([f"v_xor_b32 v5, v{17+(r-b)//4}, v{r}", "v_or_b32 v4, v4, v5"] for r in range(b+3, b+16, 2)), []) + ["v_cmp_ne_u32 vcc, 0, v4"]
        A.its([("wvm", [("lb", cb)])] + lt)
        A(f"s_cbranch_vccz SSM_go{cb}\ns_mov_b32 s7, 0x40000")
        A.label(f"SSM_poll{cb}")
        for x in lbl(cb): A(x[2])
        A("s_waitcnt vmcnt(0)"); A.ext(lt)
        A(f"s_sub_u32 s7, s7, 1\ns_cbranch_scc1 SSM_go{cb}\ns_cbranch_vccnz SSM_poll{cb}")
        A.label(f"SSM_go{cb}")
    WP = 112; IMG = 8192
    def second(cb):
        p = Pm(cb); b = 32+16*cb; L = []
        for i in (2, 1, 0): L += cfma(b+4*i, b+4*i+2, p['L512R'], p['L512I'], b+4*i+4, b+4*i+6, b+4*i, b+4*i+2)
        L += cmul(b+4, b+5, p['WR'], p['WI'], b, b+2) + gsum([b+4, b+5], 4)
        L += cfma(p['PR'], p['PI'], p['QR'], p['QI'], b+4, b+5, p['PR'], p['PI']) + cfma(64+2*cb, 65+2*cb, p['L16R'], p['L16I'], p['PR'], p['PI'], 64+2*cb, 65+2*cb)
        for k, (xr, xi) in enumerate(((p['PR'], p['PI']), (64+2*cb, 65+2*cb))):
            L += lines(f"v_mul_f32 v{p['T0']}, v{p['CB']}, v{xi}\nv_mul_f32 v{p['T1']}, v{p['CB']}, v{xr}\nv_fma_f32 v{WP+k}, v{p['CA']}, v{xr}, -v{p['T0']}\nv_fma_f32 v{WP+2+k}, -v{p['CA']}, v{xi}, -v{p['T1']}")
        pw = []
        for j in range(16):
            cur = WP+4*(j & 1); nxt = WP+4*((j+1) & 1)
            L += [pk("mul", nxt, cur, ("b", p['LR'])), pk("mul", nxt+2, cur+2, ("b", p['LR'])), pk("fma", nxt, cur+2, ("b", p['LI']), nxt), pk("fma", nxt+2, cur, ("b", p['LI']), nxt+2, neg=(1,))]
            L += [pk("add", gre(cb,j), gre(cb,j), nxt), pk("add", gim(cb,j), gim(cb,j), nxt+2)]
            if pw and not j & 1: L.append(pw.pop(0))
            if j & 1:
                k = (j >> 1) & 3
                for im in range(2):
                    g = gim if im else gre
                    for hh in range(2):
                        r = (b+8*im+4*hh) if j < 8 else (g(cb, 0) + 4*hh)
                        L.append(f"v_cvt_pk_bf16_f32 v{r+k}, v{g(cb,j-1)+hh}, v{g(cb,j)+hh}")
                        if k == 3: (L if j == 15 else pw).append(("ds", "iw", f"ds_write_b128 v{68+2*(j>>3)+hh}, v[{r}:{r+3}] offset:{cb*IMG + im*4096}"))
        L.append(("wds", ["iw"]))
        st = []
        for tb in range(8):
            r = gim(cb, 0) + 4*tb
            for hh in range(2): L += [f"v_xor_b32 v{2+hh}, {32*tb + 16*hh}, v11", ("ds", ("tr", cb, tb), f"ds_read_b64_tr_b16 v[{r+2*hh}:{r+2*hh+1}], v{2+hh} offset:{cb*IMG + hh*1024}")]
            st.append([("wds", [("tr", cb, tb)]), ("vm", "H", f"buffer_store_dwordx4 v[{r}:{r+3}], v28, s[8:11], s{(84, 85, 86, 78)[cb + 2*(tb >> 2)]} offen offset:{(tb&3)*1024} sc1")])
        return L, st
    A(f"v_lshlrev_b32 v22, 7, v31\nv_add_u32 v22, {S_SCR}, v22\nv_mov_b32 v31, s96")
    ptick(A, 40, 25)
    A.its(rload(0) + rload(1) + scan(0) + scan(1))
    ptick(A, 41, 25)
    A.its(lbl(0))
    for d in range(3):
        A(f"v_subrev_u32 v2, {16*(d+1)}, v1\nv_lshlrev_b32 v2, 2, v2")
        for k in range(4): A.it(("ds", "bp", f"ds_bpermute_b32 v{48+4*d+k}, v2, v{64+k}"))
    for cb in range(2): A(f"v_mov_b32 v{Pm(cb)['PR']}, 0\nv_mov_b32 v{Pm(cb)['PI']}, 0")
    for k in range(4): A(f"v_xor_b32 v{68+k}, {32*(k&1) + 16*(k>>1)}, v10")
    A.it(("wds", ["bp"]))
    for d in (2, 1, 0):
        A(f"s_lshl_b64 exec, -1, {16*(d+1)}")
        for cb in range(2):
            p = Pm(cb); a = 48+4*d+2*cb
            if d < 2: A.ext(cfma(a, a+1, p['L32R'], p['L32I'], p['PR'], p['PI'], a, a+1))
            A(f"v_mov_b32 v{p['PR']}, v{a}\nv_mov_b32 v{p['PI']}, v{a+1}")
    A("s_mov_b64 exec, -1")
    A.its(transform(0))
    stamp(A, 3); ptick(A, 42, 25)
    lookback(0)
    stamp(A, 4); ptick(A, 43, 25)
    L0, st0 = second(0); L1, st1 = second(1)
    A.its(L0[:60] + lbl(1) + fpoll(5) + L0[60:])
    ptick(A, 44, 25)
    lookback(1)
    rest = transform(1) + L1
    sl = interleave(rest, st0, 0, len(rest) - 40)
    for i, x in enumerate(rest):
        for y in sl[i]: A.its(y)
        A.it(x)
    ptick(A, 45, 25)
    for y in st1: A.its(y)
    stamp(A, 5)
    fs = "buffer_store_dword v31, v8, s[8:11], s87 offen sc1"
    S2 = int(OPT.get("s2", 7)); S3 = int(OPT.get("s3", 10))
    fcheck(A, "SC5", 5, pre="s_waitcnt vmcnt(0)\n" + fs)
    A.L.append(";@TOUCH P1")
    A.its([("wvm", ["H"]), ("vm", None, fs)])
    A(f"s_cmp_lg_u32 s95, 0\ns_cbranch_scc1 EP_end\nv_lshlrev_b32 v2, 7, v1\ns_mov_b32 s7, 0x40000")
    A.label("EP_l")
    for k in range(4): A(f"s_mov_b32 s75, {WS_STAT+4+8192*k}\nbuffer_load_dword v{68+k}, v2, s[8:11], s75 offen sc1")
    A("s_waitcnt vmcnt(0)"); A.ext(tagtest([68, 69, 70, 71]))
    A(f"s_sub_u32 s7, s7, 1\ns_cbranch_scc1 EP_ok\ns_cbranch_vccnz EP_l")
    A.label("EP_ok")
    A(f"s_mov_b32 s75, {WS_EPOCH}\nbuffer_store_dword v31, v8, s[8:11], s75 offen sc1")
    A.label("EP_end")
    fredo(A, "SR", 4, 99, 82, w2loads(0, 5))
    A.its(w2loads(5, S2) + fpoll(2) + w2loads(S2, S3))
    fcheck(A, "SC2", 2)
    stamp(A, 6)
    for i in range(3): A.its(hload(i))
    ph2_head(A, "SC", dict(enumerate(chop(w2loads(S3, 10), 3))) if S3 < 10 else {})

def gen_ph2(A):
    A.L.append(";@SEG PH2"); A.label("PH2")
    A.reset(); A.nv = 200
    for t in set(JOIN[0]) | set(JOIN[1]): A.tv[t] = A.nv - min(J[t] for J in JOIN if t in J)
    g_r = []
    for nb in range(5):
        for w in range(4):
            r = ACCG + (nb*4+w)*4; g_r.append(("ds", ("gr", nb), f"ds_read_b128 v[{r}:{r+3}], v{23+(w>>1)} offset:{(w&1)*20480 + nb*1024}"))
    g_s = []
    for nb in range(5):
        r = ACCG + nb*16; g_s.append(("wds", [("gr", nb)]))
        for e in range(4): g_s += [f"v_add_f32 v{r+e}, v{r+e}, v{r+4+e}", f"v_add_f32 v{r+8+e}, v{r+8+e}, v{r+12+e}"]
        for e in range(4): g_s.append(f"v_add_f32 v{r+e}, v{r+e}, v{r+8+e}")
        g_s.append(("vm", "xs", f"buffer_store_dwordx4 v[{r}:{r+3}], v{28+(nb>>2)}, s[8:11], s4 offen offset:{(nb&3)*1024} sc1"))
    g_f = [("wvm", ["xs"]), ("vm", None, "buffer_store_dword v31, v8, s[8:11], s6 offen sc1")]
    PA = list(range(108, 112)) + list(range(252, 256)) + list(range(160, 172))
    fin_c = [("wvm", ["fin"]), "v_and_b32 v11, 0xffff0000, v10", "v_rcp_f32 v11, v11", "v_lshlrev_b32 v10, 16, v10"]
    def rd(nb): return [("ds", ("fx", nb), f"ds_read_b64 v[{16+4*(nb&1)}:{17+4*(nb&1)}], v12 offset:{32*nb}"), ("ds", ("fx", nb), f"ds_read_b64 v[{(18, 26)[nb&1]}:{(19, 27)[nb&1]}], v14 offset:{3072+32*nb}")]
    fin_c += rd(0)
    for nb in range(5):
        if nb < 4: fin_c += rd(nb+1)
        fin_c.append(("wds", [("fx", nb)]))
        for h in range(2):
            x = 16+4*(nb&1)+h; d = (18, 26)[nb&1]+h
            fin_c += [f"v_lshlrev_b32 v2, 16, v{d}", f"v_and_b32 v{d}, 0xffff0000, v{d}", f"v_lshlrev_b32 v3, 16, v{x}", f"v_and_b32 v{x}, 0xffff0000, v{x}",
                      "v_mul_f32 v2, v2, v11", f"v_mul_f32 v{d}, v{d}, v11", "v_sub_f32 v4, v3, v10", f"v_sub_f32 v5, v{x}, v10", "v_fmac_f32 v3, v4, v2", f"v_fmac_f32 v{x}, v5, v{d}",
                      f"v_accvgpr_write_b32 a{PA[4*nb+2*h]}, v3", f"v_accvgpr_write_b32 a{PA[4*nb+2*h+1]}, v{x}"]
    fin_r = [f"v_accvgpr_read_b32 v{ACCG + (k>>2)*16 + 8 + (k&3)}, a{PA[k]}" for k in range(20)]
    gs = chop(g_s, 2); fc = chop(fin_c, 5)
    extra = {8: fc[0], 9: fc[1], 10: fc[2], 11: fc[3], 12: fc[4], 16: g_r, 17: gs[0], 18: gs[1],
             19: ["v_add_u32 v22, 81920, v22", "v_add_u32 v23, 81920, v23", "v_add_u32 v24, 81920, v24"] + fin_r, 20: fpoll(3)[:-1], 21: ["s_nop 0"] + g_f + ["s_nop 0"]*5 + fpoll(3)[-1:]}
    ph2_groups(A, GROUPS[8:], extra, {8: lambda: fcheck(A, "C1", 1)})
    if TS >= 2:
        A(f"s_waitcnt lgkmcnt(0)\nv_writelane_b32 v25, s88, {len(GROUPS)-1}\ns_memtime s[88:89]"); tockdump(A, len(GROUPS), 25, 0x80000)
    stamp(A, 7)
    fcheck(A, "C3", 3)
    for nb in range(5):
        r = ACCG + nb*16 + 12
        A.it(("vm", ("xl", nb), f"buffer_load_dwordx4 v[{r}:{r+3}], v{28+(nb>>2)}, s[8:11], s5 offen offset:{(nb&3)*1024} sc1"))
    A("s_waitcnt lgkmcnt(0)\ns_barrier")
    for nb in range(5):
        for w in range(4):
            r = ACCK + (nb*4+w)*4
            A(f"ds_read_b128 v[{r}:{r+3}], v{23+(w>>1)} offset:{(w&1)*20480 + nb*1024}")
    for nb in range(5):
        A(f"s_waitcnt lgkmcnt({min(15, 16-4*nb)})")
        r = ACCK + nb*16; o = ACCG + nb*16 + 8
        for k in (0, 2): A(pk("add", r+k, r+k, r+4+k)); A(pk("add", r+8+k, r+8+k, r+12+k))
        for k in (0, 2): A(pk("add", o+k, o+k, r+k))
        for k in (0, 2): A(pk("add", o+k, o+k, r+8+k))
    for nb in range(5):
        o = ACCG + nb*16 + 8
        A.it(("wvm", [("xl", nb)]))
        for k in (0, 2): A(pk("add", o+k, o+k, o+4+k))
        A.it(("vm", None, f"buffer_store_dwordx4 v[{o}:{o+3}], v13, s[20:23], 0 offen offset:{64*nb} " + OPT.get("of", "").replace("+", " ")))
    if TS:
        A("s_add_u32 s94, s94, 0x10000"); stamp(A, 0)

def gen():
    A = E()
    A("s_cmp_ge_u32 s2, 256\ns_cbranch_scc1 K_end")
    if TS >= 2: A("s_memtime s[4:5]")
    A("s_load_dwordx16 s[36:51], s[0:1], 0\ns_load_dwordx16 s[52:67], s[0:1], 64")
    A("v_and_b32 v1, 63, v0\nv_lshrrev_b32 v2, 6, v0\ns_and_b32 s32, s2, 7\nv_readfirstlane_b32 s3, v2")
    A("s_lshr_b32 s33, s2, 3\ns_lshr_b32 s34, s32, 2\ns_and_b32 s35, s32, 3\ns_and_b32 s71, s3, 1\ns_lshr_b32 s72, s3, 1")
    if int(OPT.get("ipf", 1)):
        A("s_getpc_b64 s[6:7]"); A.label("K_pc")
        A("s_lshl2_add_u32 s76, s33, s3\ns_and_b32 s76, s76, 15\ns_lshl_b32 s76, s76, 13\nv_lshlrev_b32 v2, 7, v1\nv_add_u32 v2, s76, v2\nv_min_u32 v2, K_end-K_pc, v2")
        A("s_cmp_lt_u32 s33, 28\ns_cbranch_scc1 K_nopf\nglobal_load_dword v64, v2, s[6:7]"); A.label("K_nopf")
    A("s_lshl2_add_u32 s95, s2, s3\nv_lshrrev_b32 v62, 5, v1\nv_mul_u32_u24 v62, 1280, v62\nv_and_b32 v63, 31, v1\nv_lshl_add_u32 v62, v63, 3, v62")
    if TS:
        A("s_lshl2_add_u32 s94, s2, s3\ns_lshl_b32 s94, s94, 6\ns_waitcnt lgkmcnt(0)"); stamp(A, 0)
    A("s_mul_i32 s75, s95, 2560\ns_cmp_lt_u32 s33, 10\ns_cbranch_scc1 K_ssm")
    A("s_mul_i32 s35, s35, 22\ns_add_u32 s33, s33, s35\ns_sub_u32 s33, s33, 10\ns_and_b32 s68, s33, 7\ns_lshl_b32 s34, s34, 3\ns_add_u32 s68, s68, s34\ns_lshr_b32 s69, s33, 3")
    gen_ffn(A)
    A.L.append(";@SEG SPRO"); A.label("K_ssm")
    A("s_mul_i32 s35, s35, 10\ns_add_u32 s33, s33, s35\ns_and_b32 s68, s33, 3\ns_lshl2_add_u32 s68, s34, s68\ns_lshr_b32 s69, s33, 2")
    gen_ssm(A)
    gen_ph2(A)
    A.label("K_end"); A("s_endpgm")
    return A.L

def hflags(L):
    f = OPT.get("hf")
    if not f: return L
    return [l.replace(" sc1", " " + f.replace("+", " ")) if l.startswith("buffer_store_dwordx4 v[") and re.search(r"s(84|85|86|78) offen", l) else l for l in L]
def fin(L):
    L = hflags(L)
    seg = {"E": []}; cur = "E"
    for l in L:
        if l.startswith(";@SEG"): cur = l.split()[1]; seg[cur] = []
        else: seg[cur].append(l)
    def dispatch(name, chains, ret):
        o = []
        for w in range(3): o += [f"s_cmp_eq_u32 s3, {w}", f"s_cbranch_scc1 {chains[w]}"]
        return o + [f"s_branch {chains[3]}"]
    TCH = int(OPT.get("tch", 1))
    order = ["FA", "FB", "EP", "SSM", "PH2"]
    def expand(lines, heads):
        o = []
        for l in lines:
            if not l.startswith(";@TOUCH"): o.append(l); continue
            if not TCH: continue
            n = l.split()[1]
            o.append("s_mov_b64 exec, 0")
            if n in ("FA", "FB"): o += dispatch(n, heads[n], None)
            elif n == "S": o += dispatch(n, heads["SSM"], None)
            else: o += [f"s_mov_b32 s35, {n[1]}"] + dispatch(n, heads["PH2" if n == "P1" else "EP"], None)
            o.append(f"TR_{n}:")
            o.append("s_mov_b64 exec, -1")
        return o
    if TCH: seg["SPRO"] += ["TR_P:", "s_cmp_eq_u32 s35, 0", "s_cbranch_scc1 TR_P0", "s_cmp_eq_u32 s35, 2", "s_cbranch_scc1 TR_P2", "s_branch TR_P1"]
    dummy = {k: ["K_end"]*4 for k in order}
    body = []
    for k in order: body += [(k, l) for l in expand(seg[k], dummy)]
    pro = expand(seg["E"] + seg["FBP"] + seg["SPRO"], dummy)
    sz = sizes(pro + ["K_pad:"] + [l for _, l in body]); npro = sum(1 for l in pro if not (l.endswith(":") or l.startswith((".", ";"))))
    print("prologue bytes", sum(sz[:npro])); sz = sz[npro:]
    stubs = {k: [] for k in order}; pos = {}; addr = 0; page = -1; ii = 0; seen = set()
    for i, (k, l) in enumerate(body):
        if l.endswith(":") or l.startswith((".", ";")): continue
        if TCH and (addr >> 12 != page or k not in seen):
            page = addr >> 12; seen.add(k); name = f"TS_{len(pos)}"; pos[i] = name; stubs[k].append(name); addr += 4
        addr += sz[ii]; ii += 1
    print({k: len(v) for k, v in stubs.items()}, "bytes", addr)
    nxt = {}; heads = {}
    def chains(lst, tails):
        h = []
        for w in range(4):
            c = lst[w::4]
            for a, b in zip(c, c[1:] + [tails[w]]): nxt[a] = b
            h.append(c[0] if c else tails[w])
        return h
    heads["FA"] = chains(stubs["FA"], ["TR_FA"]*4); heads["FB"] = chains(stubs["FB"], ["TR_FB"]*4)
    heads["SSM"] = chains(stubs["SSM"], ["TR_S"]*4); heads["PH2"] = chains(stubs["PH2"], ["TR_P"]*4); heads["EP"] = chains(stubs["EP"], heads["PH2"][::-1])
    body2 = []
    for k in order: body2 += expand(seg[k], heads)
    out = expand(seg["E"] + seg["FBP"] + seg["SPRO"], heads) + [".p2align 12"]
    for i, l in enumerate(body2):
        if i in pos: out += [pos[i] + ":", f"s_cbranch_execz {nxt[pos[i]]}"]
        out.append(l)
    return out
def main():
    ref = open(f"cdna_kernels/{NAME}.s.ref").read().split("\n")
    hdr = [l for l in ref if l.startswith(";") and "@launch" not in l and "Override" not in l and "grid=ceil" not in l]
    out = "\n".join(hdr) + "\n"
    extra = ""
    if "spin" in OPT:
        op, slot, who = (OPT["spin"].split(",") + ["A"])[:3]; slot = int(slot); ks = {"A": range(16), "S": range(5), "F": range(5, 16)}[who]
        off = WS_TS + (slot*8 if slot < 8 else 0x10000)
        out += f"; @launch kernel={NAME}_kernel grid=(256,1,1) block=(256,1,1) lds=163840\n; @launch kernel=spin_kernel grid=(1,1,1) block=(64,1,1) lds=0\n"
        L = ["s_load_dwordx2 s[4:5], s[0:1], 120", "s_waitcnt lgkmcnt(0)", f"s_add_u32 s4, s4, {off}", "s_addc_u32 s5, s5, 0", "v_lshlrev_b32 v1, 6, v0"]
        for k in range(16): L += [f"v_add_u32 v2, {4096*ks[k % len(ks)]}, v1", f"global_load_dword v{4+k}, v2, s[4:5]"]
        L += ["s_waitcnt vmcnt(0)"] + [f"v_{op}_u32 v4, v4, v{4+k}" for k in range(1, 16)] + ["s_nop 1", "v_readlane_b32 s6, v4, 0"]
        for k in range(1, 64): L += [f"v_readlane_b32 s7, v4, {k}", "s_nop 0", f"s_{op}_u32 s6, s6, s7"]
        L += ["s_mov_b32 s12, 0x100000", "SP_l2:", "s_memrealtime s[8:9]", "s_waitcnt lgkmcnt(0)", "s_sub_u32 s10, s8, s6", "s_sub_u32 s12, s12, 1", "s_cbranch_scc1 SP_e", "s_cmp_lt_u32 s10, 8000", "s_cbranch_scc1 SP_l2", "SP_e:", "s_endpgm"]
        extra = kernel_text("spin_kernel", L) + kd("spin_kernel", 32, 0, 32)
    else: out += "; @launch grid=(256,1,1) block=(256,1,1) lds=163840\n"
    out += '.amdgcn_target "amdgcn-amd-amdhsa--gfx950"\n'
    out += kernel_text(NAME + "_kernel", fin(hazard_pass(gen(), "v" in OPT))) + kd(NAME + "_kernel", 256, 256, 102) + extra
    open(sys.argv[1], "w").write(out)
main()
```

```python
import sys
from asmlib import *
NAME = "parallel_sum__ssm_conv_s5__glu_gated_swiglu__prompt"
OPT = dict(a.split("=") for a in sys.argv[2:])
TS = int(OPT.get("ts", 0))
WS_AGG = 0; WS_EPOCH = 0x28000; WS_STAT = 0x30000; WS_FLG = 0x40000; WS_XF = 0x80000; WS_CF = 0xA0000; WS_WF = 0xB0000; WS_CSB = 0xC0000; WS_CS = 0xD0000
WS_H = 0x100000; WS_W2P = 0xE00000; WS_XCH = 0x1200000; WS_END = 0x1700000; WS_TS = 0x1800000; CS_HALF = 27648
SZ_X = 2048*640*2; SZ_B = 640*640*2; SZ_W = 640*1728*2; SZ_OUT = 2048*640*4
OOB = 0x7F000000
P = dict(x=36, lre=38, lim=40, bre=42, bim=44, cre=46, cim=48, ldt=50, dsk=52, w1=56, w3=58, w2=60, out=62, dbg=64, ws=66)
MF = "v_mfma_f32_16x16x32_bf16"

class E(Asm):
    def __init__(self): super().__init__(); self.reset()
    def reset(self): self.nv = 0; self.tv = {}; self.dv = 0; self.nd = 0; self.td = {}; self.dd = 0
    def vmw(self, tags):
        last = max(self.tv[t] for t in tags)
        if last <= self.dv: return None
        self.dv = last; return min(63, self.nv - last)
    def dsw(self, tags):
        last = max(self.td[t] for t in tags)
        if last <= self.dd: return None
        n = min(15, self.nd - last); self.dd = self.nd - n; return n
    def it(self, x):
        if isinstance(x, str): self(x)
        elif x[0] == "vm": self.nv += 1; self.tv[x[1]] = self.nv; self(x[2])
        elif x[0] == "ds": self.nd += 1; self.td[x[1]] = self.nd; self(x[2])
        elif x[0] == "wvm":
            n = self.vmw(x[1])
            if n is not None: self(f"s_waitcnt vmcnt({n})")
        elif x[0] == "wds":
            n = self.dsw(x[1])
            if n is not None: self(f"s_waitcnt lgkmcnt({n})")
        elif x[0] == "fn": x[1]()
    def its(self, L):
        for x in L: self.it(x)
    def sync(self, vtags, barrier=True):
        n = self.vmw(vtags) if vtags else None
        self.dd = self.nd
        self((f"s_waitcnt vmcnt({n}) lgkmcnt(0)" if n is not None else "s_waitcnt lgkmcnt(0)"))
        if barrier: self("s_barrier")
    def weave(self, mf, streams, fixed=None, cap=2):
        q = []
        for it, lo, hi in streams:
            if it: q.append([(lo + k*(hi-lo)//len(it), x) for k, x in enumerate(it)])
        def cost(x):
            if isinstance(x, str): return sum(2 if l.startswith(TRANS) else (4 if l.startswith("v_mfma") else 1) for l in x.split("\n"))
            return {"vm": 2, "ds": 1}.get(x[0], 0.5)
        debt = 0
        for i, m in enumerate(mf):
            self(m); room = cap - debt
            for x in (fixed[i] if fixed else []): self.it(x); room -= cost(x)
            left = sum(cost(x) for st in q for _, x in st); gaps = len(mf) - i
            room = max(room, left - cap*(gaps-1))
            if left > cap*gaps: room = max(cap, left/gaps)
            while room > 0:
                c = [st for st in q if st and st[0][0] <= i]
                if not c: break
                st = min(c, key=lambda t: t[0][0]); x = st.pop(0)[1]; self.it(x); room -= cost(x)
            debt = max(0, -room)
        for st in q:
            for _, x in st: self.it(x)
def lines(s): return [l.strip() for l in s.split("\n") if l.strip()]
def glue(L):
    out = []; on = False
    for x in L:
        if isinstance(x, str) and on and x.startswith(("s_cselect", "s_mov_b32")): out[-1] += "\n" + x; continue
        on = isinstance(x, str) and x.startswith(("s_cmp", "s_bitcmp"))
        out.append(x)
    return out
def cap(f):
    B = Asm(); f(B); return glue(B.L)
def chop(L, n):
    q = (len(L) + n - 1)//n
    return [L[k*q:(k+1)*q] for k in range(n)]
FE = int(OPT.get("fe", 2)); FF = int(OPT.get("ff", 0)); SE = int(OPT.get("se", 0))
def srd(A, d, lo, size):
    A(f"s_mov_b32 s{d}, s{lo}\ns_mov_b32 s{d+1}, s{lo+1}\ns_mov_b32 s{d+2}, {hex(size)}\ns_mov_b32 s{d+3}, 0x20000")
def srd_sel(A, d, lo0, lo1, size):
    A(f"s_cselect_b32 s{d}, s{lo0}, s{lo1}\ns_cselect_b32 s{d+1}, s{lo0+1}, s{lo1+1}\ns_mov_b32 s{d+2}, {hex(size)}\ns_mov_b32 s{d+3}, 0x20000")
def stamp(A, slot):
    if not TS: return
    A(f"s_memrealtime s[90:91]\ns_memtime s[88:89]\ns_waitcnt lgkmcnt(0)\ns_add_u32 s92, s94, {WS_TS + slot*8}")
    A.dd = A.nd
    A(f"v_mov_b32 v4, s90\nv_mov_b32 v5, s88\nv_mov_b32 v2, s92"); A.it(("vm", None, "global_store_dwordx2 v2, v[4:5], s[66:67]"))
def tick(A, idx, reg):
    if TS < 2: return
    if idx: A(f"v_writelane_b32 v{reg}, s88, {idx-1}")
    A("s_memtime s[88:89]")
def ptick(A, idx, reg):
    if TS < 2: return
    A(f"s_memtime s[88:89]\ns_waitcnt lgkmcnt(0)\nv_writelane_b32 v{reg}, s88, {idx}")
def tockdump(A, n, reg, area):
    if TS < 2: return
    A(f"s_waitcnt lgkmcnt(0)\nv_writelane_b32 v{reg}, s88, {n}\ns_lshl_b32 s92, s95, 8\ns_add_u32 s92, s92, {WS_TS + area}\nv_lshlrev_b32 v5, 2, v1\nv_add_u32 v5, s92, v5")
    A.it(("vm", None, f"global_store_dword v5, v{reg}, s[66:67]"))
def bc(n, which, hi=False):
    lo = [0]*n; h = [1]*n
    for w in which:
        if isinstance(w, tuple): lo[w[0]] = 1
        else: h[w] = 0
    s = ""
    if any(lo): s += " op_sel:[" + ",".join(map(str, lo)) + "]"
    s += " op_sel_hi:[" + ",".join(map(str, h)) + "]"
    return s
def B(r):
    return f"v[{r & ~1}:{(r & ~1)+1}]", (r & 1)
def pk(op, d, *src, neg=()):
    t = []; w = []
    src = list(src)
    if isinstance(src[1], tuple) and src[1][1] & 1:
        src[0], src[1] = src[1], src[0]; neg = tuple({0: 1, 1: 0}.get(n, n) for n in neg)
    for i, s in enumerate(src):
        if isinstance(s, tuple):
            x, hi = B(s[1]); t.append(x); w.append((i,) if hi else i)
        else:
            assert s % 2 == 0; t.append(f"v[{s}:{s+1}]")
    assert d % 2 == 0
    m = bc(len(src), w)
    if neg:
        nn = ",".join("1" if i in neg else "0" for i in range(len(src))); m += f" neg_lo:[{nn}] neg_hi:[{nn}]"
    return f"v_pk_{op}_f32 v[{d}:{d+1}], " + ", ".join(t) + m

def stats_job(R, scr):
    L0, U, T = R, R+10, R+30
    ld = [f"v_mov_b32 v9, {WS_EPOCH}", ("vm", "st", "global_load_dword v9, v9, s[66:67] sc1")]
    for i in range(5): ld.append(("vm", "st", f"buffer_load_dwordx2 v[{L0+2*i}:{L0+2*i+1}], v{T}, s[16:19], s75 offen offset:{256*i}"))
    c = [("wvm", ["st"])]
    for i in range(10): c += [f"v_lshlrev_b32 v{U+2*i}, 16, v{L0+i}", f"v_and_b32 v{U+2*i+1}, 0xffff0000, v{L0+i}"]
    def red(v, t):
        o = [f"v_add_f32 v{v}, v{v}, v{v+1}"]
        for r in (8, 4, 2, 1): o.append(f"v_add_f32_dpp v{v}, v{v}, v{v} row_ror:{r} row_mask:0xf bank_mask:0xf")
        o += [f"v_mov_b32 v{t}, v{v}", f"v_permlane16_swap_b32 v{v}, v{t}", f"v_add_f32 v{v}, v{v}, v{t}", f"v_mul_f32 v{v}, 0x3acccccd, v{v}"]
        return o
    c.append(pk("add", T, U, U+2))
    for i in range(2, 10): c.append(pk("add", T, T, U+2*i))
    c += red(T, T+1)
    for i in range(10): c.append(pk("add", U+2*i, U+2*i, ("b", T), neg=(1,)))
    c.append(pk("mul", T+2, U, U))
    for i in range(1, 10): c.append(pk("fma", T+2, U+2*i, U+2*i, T+2))
    c += red(T+2, T+3)
    c += lines(f"""v_cvt_pk_bf16_f32 v{T}, v{T}, v{T+2}
v_and_b32 v{T+2}, 0xffff0000, v{T}
v_add_f32 v{T+2}, 0x3727c5ac, v{T+2}
v_cvt_pk_bf16_f32 v{T+2}, v{T+2}, v{T+2}
v_and_b32 v{T+2}, 0xffff0000, v{T+2}
v_sqrt_f32 v{T+2}, v{T+2}
v_and_b32 v{T}, 0xffff, v{T}
v_cvt_pk_bf16_f32 v{T+2}, v{T+2}, v{T+2}
v_readfirstlane_b32 s96, v9
v_and_b32 v{T+2}, 0xffff0000, v{T+2}
v_or_b32 v{T}, v{T+2}, v{T}
v_lshrrev_b32 v{T+1}, 5, v0
v_lshlrev_b32 v{T+1}, 2, v{T+1}
v_add_u32 v{T+1}, {scr}, v{T+1}
s_add_u32 s96, s96, 1""")
    c.append(("ds", None, f"ds_write_b32 v{T+1}, v{T}"))
    f = lines(f"v_and_b32 v{T+1}, 7, v1\nv_lshlrev_b32 v{T+1}, 2, v{T+1}\nv_add_u32 v{T+1}, {scr}, v{T+1}") + [("ds", "stf", f"ds_read_b32 v{T}, v{T+1}")]
    f += lines(f"v_lshlrev_b32 v{T+2}, 21, v0\nv_and_b32 v{T+2}, 0xfe000000, v{T+2}\nv_lshl_add_u32 v{T+2}, v1, 3, v{T+2}\ns_lshl_b32 s75, s70, 0\ns_lshl_b32 s75, s60, 7\ns_add_u32 s75, s75, {WS_STAT}".replace("s_lshl_b32 s75, s70, 0\n", "").replace("s60", "s31"))
    f += [("wds", ["stf"]), f"v_mov_b32 v{T+1}, s96", ("vm", None, f"buffer_store_dwordx2 v[{T}:{T+1}], v{T+2}, s[8:11], s75 offen sc1")]
    return ld, c, f
def tagtest(tags, exp="s96"):
    L = [f"v_xor_b32 v4, {exp}, v{tags[0]}"]
    for t in tags[1:]: L += [f"v_xor_b32 v5, {exp}, v{t}", "v_or_b32 v4, v4, v5"]
    return L + ["v_cmp_ne_u32 vcc, 0, v4"]
def gcheck(A, name, loads, tags):
    A(f"s_cbranch_vccz {name}_ok\ns_mov_b32 s7, 0x40000")
    A.label(f"{name}_l")
    for x in loads: A(x if isinstance(x, str) else x[2])
    A("s_waitcnt vmcnt(0)"); A.ext(tagtest(tags))
    A(f"s_sub_u32 s7, s7, 1\ns_cbranch_scc1 {name}_ok\ns_cbranch_vccnz {name}_l")
    A.label(f"{name}_ok")
U = [7, 8, 9, 10, 11, 0, 1, 2, 3, 4, 5, 6]
def w2reg(i):
    p = U.index(i)
    return 112 + 20*p if p < 7 else 20*(p-7)
def w2load(p, base=82):
    i = U[p]
    L = [f"s_add_u32 s79, s{base}, {i*5120}"]
    if i == 2: L += [f"s_cmp_eq_u32 s3, 3\ns_cselect_b32 s79, {hex(OOB)}, s79"]
    for nb in range(5):
        r = w2reg(i) + 4*nb
        L.append(("vm", ("w2", i), f"buffer_load_dwordx4 a[{r}:{r+3}], v{28+(nb>>2)}, s[8:11], s79 offen offset:{(nb&3)*1024} sc1"))
    return L
def w2loads(a, b, base=82): return sum((w2load(p, base) for p in range(a, b)), [])
def spread(A, main, extra, lo=0, hi=None):
    sl = interleave(main, extra, lo, hi) if extra else [[] for _ in main]
    for i, x in enumerate(main):
        A.it(x)
        for y in sl[i]: A.it(y)
def sig_early(A, e, d, t):
    A(f"s_cmp_ge_u32 s{e}, 11\ns_cselect_b32 s{t}, 11, 0\ns_cselect_b32 s{d}, 48, 0\ns_sub_u32 s{t}, s{e}, s{t}\ns_add_u32 s{d}, s{d}, s{t}\ns_mul_i32 s{t}, s{t}, 43\ns_lshr_b32 s{t}, s{t}, 7\ns_mul_i32 s{t}, s{t}, 9\ns_add_u32 s{d}, s{d}, s{t}")
def sig_late(A, l, t):
    A(f"s_lshr_b32 s{t}, s{l}, 2\ns_lshl_b32 s{t}, s{t}, 3\ns_add_u32 s{l}, s{l}, s{t}\ns_add_u32 s{l}, s{l}, 3")
def sig_ssm(A, k, t):
    A(f"s_mul_i32 s{t}, s{k}, 52429\ns_lshr_b32 s{t}, s{t}, 18\ns_mul_i32 s{t}, s{t}, 7\ns_add_u32 s{k}, s{k}, s{t}\ns_add_u32 s{k}, s{k}, 7")
def tlb_touch():
    T = int(OPT.get("tlb", 0))
    if not T: return []
    return lines(f"v_mul_u32_u24 v6, {hex(T*1024)}, v0\nv_min_u32 v7, {SZ_OUT-4}, v6") + [("vm", None, "buffer_load_dword v6, v6, s[8:11], 0 offen sc1"), ("vm", None, "global_load_dword v7, v7, s[62:63]")]
ORD = OPT.get("ord", "A")
def w2warm():
    return lines("s_lshr_b32 s75, s2, 6\ns_mul_i32 s75, s75, 6400\ns_add_u32 s75, s75, s82\ns_add_u32 s75, s75, 10240\nv_min_u32 v6, 49, v1\nv_lshlrev_b32 v6, 7, v6") + [("vm", None, "buffer_load_dword v7, v6, s[8:11], s75 offen sc1")]
def early_setup(A):
    srd(A, 8, P["ws"], WS_END)
    A("v_lshlrev_b32 v28, 4, v1\nv_add_u32 v29, 4096, v28")
    A("v_lshlrev_b32 v8, 20, v1\nv_and_b32 v8, 0xfe000000, v8\nv_lshl_add_u32 v8, v1, 2, v8")
def ph2_setup(A):
    A("s_and_b32 s28, s2, 1\ns_bfe_u32 s32, s2, 0x20001\ns_lshr_b32 s33, s2, 6\ns_lshl2_add_u32 s80, s32, s33\ns_bfe_u32 s81, s2, 0x30003\ns_lshl2_add_u32 s29, s28, s3")
    A(f"s_mul_i32 s32, s29, 12\ns_mul_i32 s33, s81, 96\ns_add_u32 s33, s33, s32\ns_mul_i32 s82, s33, 5120\ns_add_u32 s82, s82, {WS_W2P}")
    A(f"s_lshl1_add_u32 s33, s80, s28\ns_mul_i32 s34, s33, 96\ns_add_u32 s34, s34, s32\ns_lshl_b32 s83, s34, 12\ns_add_u32 s83, s83, {WS_H}")
    A(f"s_xor_b32 s33, s33, 1\ns_mul_i32 s34, s33, 96\ns_add_u32 s34, s34, s32\ns_lshl_b32 s30, s34, 12\ns_add_u32 s30, s30, {WS_H}")
    A(f"s_lshl_b32 s93, s80, 14\ns_add_u32 s93, s93, {WS_FLG}")
ACCG = 96; ACCK = 176
UF = OPT.get("u", "S") == "F"
if UF:
    STEPS = [("G",i) for i in range(3)] + [("K",i) for i in range(3)] + [("G",i) for i in range(3, 12)] + [("K",i) for i in range(3, 12)]
    AP = [[212, 216, 220, 224], [228, 232, 236, 240], [244, 248, 0, 4]]; G0, CHK = 0, {3: 1, 7: 2}
else:
    STEPS = [("G",i) for i in U[:5]] + [("K",i) for i in U[:3]] + [("G",i) for i in U[5:]] + [("K",i) for i in U[3:]]
    AP = [[b+4*t for t in range(4)] for b in (112, 128, 144)]; G0, CHK = 2, {5: 0, 8: 1}
POOL = [[f"v{b+4*t}" for t in range(4)] for b in (32, 48, 64, 80)] + [[f"a{r}" for r in q] for q in AP]
HBUF = [0,1,2,3,0,1,2,3,0,1,2,4,5,6,3,0,1,2,4,5,6,3,0,1]
def Hr(n, tb):
    b = POOL[HBUF[n]][tb]; r = int(b[1:]); return f"{b[0]}[{r}:{r+3}]"
FN = {0: 6, 1: 8, 2: 3, 3: 1, 4: 5}
def fbase(g):
    if g == 0: return lines("s_mul_i32 s31, s28, 22\ns_mul_i32 s32, s3, 6\ns_add_u32 s31, s31, s32\ns_min_u32 s31, s31, 38\ns_lshl_b32 s31, s31, 7\ns_add_u32 s31, s31, s93")
    if g == 1: return lines("s_mul_i32 s31, s29, 172\ns_lshr_b32 s31, s31, 7\ns_lshl_b32 s31, s31, 9\ns_add_u32 s31, s31, s93\ns_add_u32 s31, s31, 5632")
    if g == 2: return lines("s_mul_i32 s31, s29, 5\ns_lshr_b32 s31, s31, 1\ns_lshl_b32 s31, s31, 7\ns_add_u32 s31, s31, s93\ns_add_u32 s31, s31, 11264")
    if g == 3: return lines(f"s_xor_b32 s31, s95, 4\ns_lshl_b32 s31, s31, 7\ns_add_u32 s31, s31, {WS_XF}")
    if g == 4: return lines(f"s_lshl_b32 s31, s81, 3\ns_add_u32 s31, s31, s29\ns_mul_i32 s31, s31, 640\ns_add_u32 s31, s31, {WS_CF}")
    return lines(f"s_mul_i32 s31, s29, 7680\ns_add_u32 s31, s31, {WS_WF}\ns_mul_i32 s32, s81, 5\ns_cmp_eq_u32 s3, 3\ns_cselect_b32 s33, 2, 63")
def faddr(g):
    if g < 5: return [f"v_min_u32 v9, {FN[g]-1}, v1", "v_lshlrev_b32 v9, 7, v9"]
    return lines("v_lshrrev_b32 v9, 1, v1\nv_min_u32 v9, 6, v9\nv_cmp_eq_u32 vcc, s33, v9\nv_and_b32 v2, 1, v1\nv_lshl_add_u32 v2, v2, 2, s32\nv_cndmask_b32 v9, v9, 1, vcc\nv_lshrrev_b32 v2, 3, v2\nv_mad_u32_u24 v9, v9, 5, v2\nv_lshlrev_b32 v9, 7, v9")
def fpoll(g): return glue(fbase(g)) + faddr(g) + [("vm", "fl", "buffer_load_dword v9, v9, s[8:11], s31 offen sc1")]
def fcheck(A, name, g, pre=None):
    A.it(("wvm", ["fl"]))
    A(f"v_cmp_ne_u32 vcc, s96, v9\ns_cbranch_vccz {name}_ok\ns_mov_b32 s7, 0x40000")
    if pre: A(pre)
    A.label(f"{name}_l")
    A.ext(fbase(g) + faddr(g))
    A(f"buffer_load_dword v9, v9, s[8:11], s31 offen sc1\ns_waitcnt vmcnt(0)\nv_cmp_ne_u32 vcc, s96, v9\ns_sub_u32 s7, s7, 1\ns_cbranch_scc1 {name}_ok\ns_cbranch_vccnz {name}_l")
    A.label(f"{name}_ok")
def ftest(dst, src):
    return [("wvm", ["fl"]), f"v_cmp_ne_u32 vcc, s96, v9\ns_nop 0\ns_cmp_eq_u64 vcc, 0\ns_cselect_b32 s{dst}, s{src}, {hex(OOB)}"]
def fredo(A, name, g, dst, src, loads, pre=None):
    A(f"s_cmp_eq_u32 s{dst}, s{src}\ns_cbranch_scc1 {name}_done\ns_mov_b32 s7, 0x40000")
    if pre: A(pre)
    A.label(f"{name}_l")
    A.ext(fbase(g) + faddr(g))
    A(f"buffer_load_dword v9, v9, s[8:11], s31 offen sc1\ns_waitcnt vmcnt(0)\nv_cmp_ne_u32 vcc, s96, v9\ns_sub_u32 s7, s7, 1\ns_cbranch_scc1 {name}_ok\ns_cbranch_vccnz {name}_l")
    A.label(f"{name}_ok")
    for x in loads: A(x if isinstance(x, str) else x[2])
    if name == "FR": A("s_waitcnt vmcnt(0)")
    A.label(f"{name}_done")
def hload(n, base=None):
    hf, i = STEPS[n]
    L = [f"s_add_u32 s77, s{base or (30 if hf == 'G' else 83)}, {i*4096}"]
    if i == 2: L += [f"s_cmp_eq_u32 s3, 3\ns_cselect_b32 s77, {hex(OOB)}, s77"]
    for tb in range(4): L.append(("vm", ("h", n), f"buffer_load_dwordx4 {Hr(n,tb)}, v28, s[8:11], s77 offen offset:{tb*1024} sc1"))
    return L
XS = 81920
def ph2_addr(A):
    srd(A, 24, P["dsk"], 1280); srd(A, 20, P["out"], SZ_OUT)
    A("s_lshl1_add_u32 s32, s80, s28\ns_lshl_b32 s32, s32, 6\ns_lshl_b32 s33, s3, 4\ns_add_u32 s32, s32, s33\nv_and_b32 v2, 12, v1\nv_lshrrev_b32 v3, 4, v1\nv_add_u32 v2, v2, v3\nv_mul_u32_u24 v12, 160, v2\nv_add_u32 v2, s32, v2")
    A("v_lshrrev_b32 v15, 3, v2\nv_lshlrev_b32 v15, 7, v15\nv_and_b32 v3, 7, v2\nv_lshl_add_u32 v15, v3, 3, v15\nv_mul_u32_u24 v2, 2560, v2")
    A("s_mul_i32 s98, s81, 160\ns_mul_i32 s97, s32, 1280\ns_add_u32 s97, s97, s98\ns_lshl_b32 s33, s98, 1\nv_and_b32 v3, 3, v1\nv_lshl_add_u32 v13, v3, 4, v2\nv_add_u32 v13, s33, v13")
    A(f"s_mul_i32 s101, s3, 20480\ns_add_u32 s100, s101, {XS}\nv_lshl_add_u32 v14, v3, 3, s100\nv_add_u32 v12, v12, v14\ns_movk_i32 s33, 6554")
    for i in range(3):
        A(f"v_add_u32 v2, {64*i}, v1\nv_min_u32 v2, 159, v2\nv_mul_u32_u24 v3, s33, v2\nv_lshrrev_b32 v3, 16, v3\nv_mul_u32_u24 v3, 1120, v3\nv_lshl_add_u32 v{16+i}, v2, 4, v3")
    A("v_min_u32 v19, 144, v28\ns_mul_i32 s75, s3, 5120\nv_add_u32 v23, s75, v28\nv_add_u32 v24, 40960, v23")
    A(f"s_mul_i32 s4, s95, 5120\ns_add_u32 s4, s4, {WS_XCH}\ns_xor_b32 s5, s95, 4\ns_mul_i32 s5, s5, 5120\ns_add_u32 s5, s5, {WS_XCH}\ns_lshl_b32 s6, s95, 7\ns_add_u32 s6, s6, {WS_XF}")
FST = [f"s_mov_b32 s75, {WS_STAT}", ("vm", "fin", "buffer_load_dwordx2 v[10:11], v15, s[8:11], s75 offen sc1")]
def fin_loads():
    L = []
    for i in range(3): L += [f"s_add_u32 m0, s100, {1024*i}", ("vm", "fin", f"buffer_load_dwordx4 v{16+i}, s[16:19], s97 offen lds")]
    return L + ["s_add_u32 m0, s100, 3072", ("vm", "fin", "buffer_load_dwordx4 v19, s[24:27], s98 offen lds")] + FST
PARK = [f"a{r}" for r in list(range(100, 112)) + list(range(252, 256))] + ["v6", "v7", "v26", "v27"]
def fin_base(A):
    A.ext(tagtest([11])); gcheck(A, "FG", FST, [11])
    for nb in range(5):
        r = ACCG + 8*nb
        A(f"ds_read_b64 v[{r}:{r+1}], v12 offset:{32*nb}\nds_read_b64 v[{r+2}:{r+3}], v14 offset:{3072+32*nb}")
    A("v_and_b32 v16, 0xffff0000, v10\nv_rcp_f32 v16, v16\nv_lshlrev_b32 v10, 16, v10\ns_waitcnt lgkmcnt(0)")
    for k in range(10):
        r = ACCG + 8*(k >> 1); x = r + (k & 1); d = x + 2; o = r + 4 + 2*(k & 1)
        A(f"v_lshlrev_b32 v{o}, 16, v{x}\nv_and_b32 v{o+1}, 0xffff0000, v{x}\nv_lshlrev_b32 v18, 16, v{d}\nv_and_b32 v19, 0xffff0000, v{d}")
        A.ext([pk("add", 20, o, ("b", 10), neg=(1,)), pk("mul", 18, 18, ("b", 16)), pk("fma", o, 20, 18, o)])
        for e in range(2):
            p = PARK[2*k+e]; A(f"v_accvgpr_write_b32 {p}, v{o+e}" if p[0] == "a" else f"v_mov_b32 {p}, v{o+e}")
GROUPS = [[n] for n in range(13)] + [[13, 14]] + [[n] for n in range(15, 21)] + [[21, 22, 23]]
ISSUE = {0: (3,), 1: (4,), 2: (5,), 3: (6,), 4: (7,), 5: (8,), 6: (9,), 7: (10,), 8: (11, 12), 9: (13,), 10: (14,), 11: (15,), 12: (16,), 13: (17, 18, 19), 15: (20, 21), 16: (22,), 17: (23,)}
for k_, ns_ in ISSUE.items():
    for n_ in ns_:
        prev_ = [m for m in range(n_) if HBUF[m] == HBUF[n_]]
        assert (not prev_ or prev_[-1] < k_) and (HBUF[n_] < 4 or k_ > 7)
def acc2(hf, nb, tb): return (ACCG if hf == "G" else ACCK) + (tb*5+nb)*4

W_SLOT = 20480; NWS = 4; X_BASE = NWS*W_SLOT; X_SLOT = 16384; F_SCR = X_BASE + 3*X_SLOT
def gen_ffn(A):
    import copy
    A("s_mul_i32 s70, s69, 160\ns_min_u32 s70, s70, 1568")
    A("s_lshl_b32 s32, s68, 7\ns_lshl_b32 s33, s3, 5\ns_add_u32 s32, s32, s33")
    A("v_lshrrev_b32 v2, 3, v1\nv_add_u32 v2, s32, v2\nv_mul_u32_u24 v2, 1280, v2\nv_lshrrev_b32 v3, 4, v1\nv_xor_b32 v3, v3, v1\nv_and_b32 v3, 7, v3\nv_lshlrev_b32 v3, 4, v3")
    A(f"v_add_u32 v15, v2, v3\nv_xor_b32 v3, 64, v3\nv_add_u32 v16, v2, v3\nv_add_u32 v16, {8*1280-1024}, v16\nv_add_u32 v17, {16*1280}, v15\nv_add_u32 v18, {16*1280}, v16")
    A(f"s_mul_i32 s73, s3, 5120\ns_lshl_b32 s74, s3, 12\ns_add_u32 s74, s74, {X_BASE}")
    A("s_mul_i32 s32, s71, 320\ns_lshl_b32 s33, s70, 1\ns_movk_i32 s34, 3277")
    for i in range(5):
        A(f"v_add_u32 v2, s32, v1\nv_add_u32 v2, {64*i}, v2\nv_mul_u32_u24 v3, s34, v2\nv_lshrrev_b32 v3, 16, v3")
        A("v_mul_u32_u24 v4, 20, v3\nv_sub_u32 v4, v2, v4\nv_lshrrev_b32 v5, 2, v3\nv_and_b32 v5, 2, v5\nv_xor_b32 v4, v4, v5")
        A(f"v_mul_u32_u24 v3, 3456, v3\nv_lshl_add_u32 v3, v4, 4, v3\nv_add_u32 v3, s33, v3\nv_subrev_u32 v{10+i}, {1024*(i&3)}, v3")
    def dmaW(s):
        L = [f"s_add_u32 m0, s73, {(s%NWS)*W_SLOT}", f"s_mov_b32 s77, {s*32*3456}"]
        for i in range(5):
            if i == 4: L.append(f"s_add_u32 m0, s73, {(s%NWS)*W_SLOT+4096}")
            L.append(("vm", ("W", s), f"buffer_load_dwordx4 v{10+i}, s[12:15], s77 offen offset:{1024*(i&3)} lds"))
        return L
    def dmaX(u, hs=(0, 1)):
        L = []
        for h in hs:
            L += [f"s_add_u32 m0, s74, {(u%3)*X_SLOT+2048*h}", f"s_movk_i32 s78, {u*128}"]
            for i in range(2): L.append(("vm", ("X", u), f"buffer_load_dwordx4 v{15+2*h+i}, s[16:19], s78 offen offset:{1024*i} lds"))
        return L
    st_ld, st_c, st_f = stats_job(32, X_BASE + 2*X_SLOT)
    def lds_setup(A):
        early_setup(A)
        A("v_lshrrev_b32 v2, 4, v1\nv_bfe_u32 v3, v1, 2, 2\nv_lshl_add_u32 v3, v2, 3, v3\nv_mul_u32_u24 v3, 320, v3")
        A("v_and_b32 v4, 3, v1\nv_lshl_add_u32 v3, v4, 3, v3\nv_and_b32 v4, 1, v2\nv_lshlrev_b32 v4, 5, v4")
        A("s_mul_i32 s75, s72, 192\nv_add_u32 v5, s75, v3\nv_add_u32 v20, v5, v4\nv_sub_u32 v21, v5, v4")
        A("s_lshl_b32 s75, s72, 5\ns_add_u32 s75, s75, 128\nv_xor_b32 v5, s75, v4\nv_add_u32 v22, v3, v5")
        for i in range(3): A(f"v_add_u32 v{23+i}, {3*W_SLOT}, v{20+i}")
        A("v_and_b32 v3, 15, v1\nv_lshrrev_b32 v4, 1, v3\nv_xor_b32 v4, v4, v2\nv_lshlrev_b32 v4, 4, v4\nv_lshl_add_u32 v3, v3, 7, v4")
        A(f"s_lshl_b32 s75, s71, 13\ns_add_u32 s75, s75, {X_BASE}\nv_add_u32 v26, s75, v3\nv_xor_b32 v27, 64, v26")
    PEND = []
    def start(role, pre, post, side):
        pre(A)
        A("s_waitcnt lgkmcnt(0)")
        srd(A, 16, P["x"], SZ_X); A.its(st_ld); post(A)
        A("s_cmp_eq_u32 s72, 0"); srd_sel(A, 12, P["w1"], P["w3"], SZ_W)
        main = dmaX(0) + dmaW(0)
        first, second = (side, main) if (ORD == "B" and side) else (main, side)
        A.its(first)
        A.L.append(f";@TOUCH {role}")
        A(f"s_branch {role}_a"); A.L.append(f";@SEG {role}"); A.label(f"{role}_a")
        lds_setup(A)
        A.its(st_c[:1])
        if ORD == "B": spread(A, st_c[1:], second + dmaW(1), 0, len(st_c) - 10)
        elif ORD == "A": spread(A, st_c[1:], dmaW(1) + second, 0, len(st_c) - 10)
        else: spread(A, st_c[1:], dmaW(1) + dmaX(1) + dmaW(2), 0, len(st_c) - 4); PEND[:] = second
    def hs(A):
        A("s_lshl1_add_u32 s32, s69, s72"); sig_early(A, 32, 84, 33)
        A("s_mul_i32 s33, s69, 3\ns_cmp_eq_u32 s69, 10\ns_cselect_b32 s34, 1, 0\ns_sub_u32 s33, s33, s34\ns_lshl1_add_u32 s85, s72, s33\ns_add_u32 s86, s33, 1")
        sig_late(A, 85, 34); sig_late(A, 86, 34)
        A(f"s_lshl1_add_u32 s33, s68, s71\ns_mul_i32 s34, s33, 96")
        for r in (84, 85, 86): A(f"s_add_u32 s{r}, s{r}, s34\ns_lshl_b32 s{r}, s{r}, 12\ns_add_u32 s{r}, s{r}, {WS_H}")
        A(f"s_cmp_eq_u32 s32, 19\ns_cselect_b32 s85, {hex(OOB)}, s85")
        A(f"s_lshl1_add_u32 s87, s32, s71\ns_lshl_b32 s33, s68, 7\ns_add_u32 s87, s87, s33\ns_lshl_b32 s87, s87, 7\ns_add_u32 s87, s87, {WS_FLG}")
    late_setup = [cap(ph2_setup), []] + chop(cap(hs), 2)
    ep_ld = lines(f"s_mul_i32 s75, s72, 1728\ns_mul_i32 s76, s71, 80\ns_add_u32 s75, s75, s76\ns_add_u32 s75, s75, s70\ns_lshl_b32 s75, s75, 3\ns_add_u32 s75, s75, {WS_CS}\ns_add_u32 s76, s75, {CS_HALF}\nv_min_u32 v2, 624, v28")
    ep_ld += [("vm", "ep", "buffer_load_dwordx4 v[56:59], v2, s[8:11], s75 offen sc1"), ("vm", "ep", "buffer_load_dwordx4 v[60:63], v2, s[8:11], s76 offen sc1")]
    ep_ld += lines(f"v_and_b32 v2, 7, v1\nv_lshlrev_b32 v2, 3, v2\nv_and_b32 v3, 8, v1\nv_lshl_add_u32 v2, v3, 4, v2\ns_lshl1_add_u32 s75, s68, s71\ns_lshl_b32 s75, s75, 10\ns_add_u32 s75, s75, {WS_STAT}")
    for tb in range(4): ep_ld.append(("vm", "ep", f"buffer_load_dwordx2 v[{64+2*tb}:{65+2*tb}], v2, s[8:11], s75 offen offset:{256*tb} sc1"))
    ep_tags = [57, 59, 61, 63, 65, 67, 69, 71]
    ep_t = [("wvm", ["ep"])] + tagtest(ep_tags)
    ep_w = lines(f"v_add_f32 v56, v56, v60\nv_add_f32 v57, v58, v62\ns_lshl_b32 s75, s72, 10\ns_mul_i32 s76, s71, 320\ns_add_u32 s75, s75, s76\ns_add_u32 s75, s75, {F_SCR}\nv_min_u32 v2, 39, v1\nv_lshl_add_u32 v2, v2, 3, s75")
    ep_w += [("ds", None, "ds_write_b64 v2, v[56:57]")]
    ep_r = lines(f"v_and_b32 v2, 48, v1\ns_mul_i32 s75, s72, 384\ns_add_u32 s75, s75, {F_SCR}\nv_add_u32 v3, s75, v2\ns_lshl_b32 s75, s72, 6\ns_add_u32 s75, s75, {F_SCR+256}\nv_add_u32 v2, s75, v2")
    for j in range(10):
        pr, m = j >> 1, j & 1
        ep_r.append(("ds", None, f"ds_read_b128 v[{56+4*j}:{59+4*j}], v{2 if pr == 4 else 3} offset:{1024*m + (0 if pr == 4 else 64*pr)}"))
    ep_c = []
    for tb in range(4):
        ep_c += lines(f"v_lshlrev_b32 v{44+tb}, 16, v{64+2*tb}\nv_and_b32 v{52+tb}, 0xffff0000, v{64+2*tb}\nv_rcp_f32 v{48+tb}, v{52+tb}\nv_mul_f32 v{52+tb}, v{52+tb}, v{52+tb}\nv_mul_f32 v{48+tb}, 0xbfb8aa3b, v{48+tb}")
    ep_a = lines("v_lshrrev_b32 v2, 4, v1\nv_and_b32 v3, 1, v2\nv_lshlrev_b32 v3, 10, v3\nv_lshrrev_b32 v2, 1, v2\nv_lshl_add_u32 v3, v2, 8, v3")
    ep_a += lines("v_and_b32 v2, 15, v1\nv_lshl_add_u32 v3, v2, 4, v3\ns_lshl_b32 s75, s72, 9\nv_add_u32 v30, s75, v3\nv_mov_b32 v31, s96\ns_add_u32 s99, s87, 5632")
    ACC = 96
    def acc(j, tb): return ACC + (j*4+tb)*4
    def Wr(par, j): return par*56 + j*4
    def Xr(par, tb): return par*56 + 40 + tb*4
    def reads(s):
        par = s & 1; L = []; sl = s % NWS; hi = 3 if sl >= 3 else 0; so = (sl - hi)*W_SLOT
        for tb in range(4): L.append(("ds", None, f"ds_read_b128 a[{Xr(par,tb)}:{Xr(par,tb)+3}], v{26+(s&1)} offset:{((s>>1)%3)*X_SLOT + tb*2048}"))
        for j in range(10):
            pr, m = j >> 1, j & 1; ar = 22 if pr == 4 else 20 + (pr & 1); co = 0 if pr == 4 else pr*32
            for hh in range(2): L.append(("ds", None, f"ds_read_b64_tr_b16 a[{Wr(par,j)+2*hh}:{Wr(par,j)+2*hh+1}], v{ar+hi} offset:{so + m*10240 + hh*1280 + co}"))
        return L
    NL = int(OPT.get("nl", 7)); L0 = int(OPT.get("l0", 0)); wl = [[]]*L0 + chop(w2loads(0, NL), 9-L0)
    def loop(role, mem, side, xt={}):
        M = {0: dmaX(1) + dmaW(2), 1: dmaW(3) + dmaX(2), 2: dmaW(4) + dmaW(5), 3: dmaX(3) + dmaW(6), 4: dmaW(7) + dmaW(8), 5: dmaX(4) + dmaW(9), 6: dmaW(10) + dmaX(5)}
        for s in range(7, 16): M[s] = dmaW(s+4) + (dmaX((s+5) >> 1, ((s+1) & 1,)) if s < 15 else [])
        if ORD == "C": M[0] = PEND + dmaW(3); M[1] = dmaX(2) + dmaW(4); M[2] = dmaW(5)
        if "flat" in OPT:
            M = {0: dmaX(1) + dmaW(2), 1: dmaW(3) + dmaX(2), 2: dmaW(4) + dmaW(5)}
            for s in range(3, 17): M[s] = dmaW(s+3)
            M[3] += dmaX(3)
            for u in range(4, 10):
                M[2*u-4] += dmaX(u, (0,)); M[2*u-3] += dmaX(u, (1,))
        for s, L in mem.items(): M[s] = M[s] + ([x if isinstance(x, str) else (x[0], x[1], x[2].replace("s77 offen", "s76 offen")) for x in L] if "noside" in OPT else L)
        M[15] += wl[0]
        for s in range(16, 20): M[s] = M.get(s, []) + wl[2*s-31] + wl[2*s-30]
        S = dict(side)
        for k, L in {5: late_setup[0], 6: late_setup[2], 8: late_setup[3], 11: ep_a, 12: fpoll(4), 13: ep_ld, 15: fpoll(5), 16: ep_t, 17: ep_w + ep_c, 18: ep_r}.items():
            S[k] = S.get(k, []) + L
        if "wf" in OPT: S[int(OPT["wf"])] = S.get(int(OPT["wf"]), []) + w2warm()
        A.L.append(f";@TOUCH P{0 if role == 'FA' else 2}")
        A.sync([("X", 0), ("W", 0)]); stamp(A, 1)
        A.its(reads(0))
        for s in range(20):
            tags = ([("W", s+1), ("X", (s+1) >> 1)] if s < 19 else []) + xt.get(s, [])
            if s == 15: fcheck(A, role + "C", 4)
            if s == 17: gcheck(A, role + "G", ep_ld, ep_tags); fcheck(A, role + "P", 5)
            A.sync(tags)
            tick(A, s, 19)
            par = s & 1; mf = []
            for j in range(10):
                for tb in range(4):
                    c = acc(j, tb); mf.append(f"{MF} v[{c}:{c+3}], a[{Wr(par,j)}:{Wr(par,j)+3}], a[{Xr(par,tb)}:{Xr(par,tb)+3}], " + (f"v[{c}:{c+3}]" if s else "0"))
            A.weave(mf, [(reads(s+1) if s < 19 else [], 0, 30), (M.get(s, []), 0, 39), (S.get(s, []), 1, 39)])
    A("s_mul_i32 s34, s69, 5\ns_lshr_b32 s34, s34, 1\ns_and_b32 s33, s68, 7\ns_lshr_b32 s35, s68, 3\ns_lshl1_add_u32 s32, s33, s35\ns_and_b32 s76, s69, 1\ns_lshl2_add_u32 s76, s76, 8\ns_cmp_ge_u32 s32, s76\ns_cbranch_scc1 FB_p")
    snap = (A.nv, dict(A.tv), A.dv, A.nd, dict(A.td), A.dd)
    def fa0(A):
        A(f"s_lshl2_add_u32 s32, s34, s32\ns_lshr_b32 s76, s33, 1\ns_add_u32 s76, s76, s34\ns_and_b32 s33, s33, 1\ns_mul_i32 s33, s33, 27\ns_add_u32 s33, s33, s76\ns_mov_b32 s34, s35")
        A(f"s_lshl_b32 s76, s76, 7\ns_lshl2_add_u32 s97, s34, s3\ns_mul_i32 s97, s97, {8*3456}\ns_add_u32 s97, s97, s76")
        A("v_lshrrev_b32 v2, 3, v1\nv_mul_u32_u24 v2, 3456, v2\nv_and_b32 v3, 7, v1\nv_lshl_add_u32 v30, v3, 4, v2")
    def fa1(A):
        A("s_cmp_lt_u32 s33, 27"); srd_sel(A, 24, P["w1"], P["w3"], SZ_W)
    def fa2(A):
        A(f"s_lshl_b32 s98, s33, 9\ns_mul_i32 s34, s34, {CS_HALF}\ns_add_u32 s98, s98, s34\ns_add_u32 s98, s98, {WS_CS}\ns_cmp_eq_u32 s3, 0\ns_cselect_b32 s98, s98, {hex(OOB)}")
        A("v_and_b32 v2, 15, v1\nv_and_b32 v3, 1, v1\nv_lshlrev_b32 v3, 4, v3\nv_mov_b32 v4, 0x3f80\nv_lshlrev_b32 v3, v3, v4\nv_lshrrev_b32 v2, 1, v2")
        for r in range(4): A(f"v_cmp_eq_u32 vcc, {r}, v2\nv_cndmask_b32 v{72+r}, 0, v3, vcc")
        A(f"v_and_b32 v2, 7, v1\nv_lshlrev_b32 v2, 5, v2\nv_and_b32 v3, 16, v1\nv_add_u32 v2, v2, v3\ns_lshl_b32 s75, s3, 8\ns_add_u32 s75, s75, {F_SCR}\nv_add_u32 v2, s75, v2\nv_and_b32 v3, 32, v1\nv_lshl_add_u32 v80, v3, 5, v2")
        A(f"v_lshlrev_b32 v82, 2, v1\nv_add_u32 v81, {F_SCR}, v82\nv_lshlrev_b32 v82, 3, v1")
    cs_ld = []
    for i in range(10): cs_ld += [f"s_add_u32 s77, s97, {i*64*3456}", ("vm", "csl", f"buffer_load_dwordx4 a[{112+4*i}:{115+4*i}], v30, s[24:27], s77 offen")]
    cs_c = [("wvm", ["csl"])]
    for i in range(10): cs_c.append(f"{MF} v[76:79], v[72:75], a[{112+4*i}:{115+4*i}], " + ("v[76:79]" if i else "0"))
    cs_c += ["s_nop 0"]*2
    for e in range(4): cs_c.append(f"v_add_f32_dpp v{76+e}, v{76+e}, v{76+e} row_ror:8 row_mask:0xf bank_mask:0xf")
    cs_c.append(("ds", None, "ds_write_b128 v80, v[76:79]"))
    cs_f = [("ds", "csf", f"ds_read_b32 v{72+w}, v81 offset:{256*w}") for w in range(4)]
    cs_f += [("wds", ["csf"]), "v_add_f32 v72, v72, v73", "v_add_f32 v74, v74, v75", "v_mov_b32 v73, s96", "v_add_f32 v72, v72, v74", ("vm", None, "buffer_store_dwordx2 v[72:73], v82, s[8:11], s98 offen sc1")]
    CB = F_SCR + 4096
    def fc1(A):
        A("s_cmp_eq_u32 s72, 0"); srd_sel(A, 20, P["cre"], P["cim"], SZ_B)
        A(f"s_and_b32 s4, s32, 7\ns_lshr_b32 s5, s32, 3\ns_lshl1_add_u32 s99, s4, s71\ns_mul_i32 s99, s99, 51200\ns_lshl_b32 s75, s5, 7\ns_add_u32 s99, s99, s75\ns_cmp_lt_u32 s32, 80\ns_cselect_b32 s99, s99, {hex(OOB)}")
        A(f"s_add_u32 s101, s73, {CB}\nv_lshrrev_b32 v2, 3, v1\nv_mul_u32_u24 v2, 1280, v2\nv_lshrrev_b32 v3, 4, v1\nv_xor_b32 v3, v3, v1\nv_and_b32 v3, 7, v3\nv_lshl_add_u32 v2, v3, 4, v2\ns_lshl_b32 s75, s71, 6\nv_xor_b32 v84, s75, v2\nv_xor_b32 v85, 64, v84")
    def fc2(A):
        A(f"s_lshl2_add_u32 s5, s5, s3\ns_mul_i32 s6, s4, 40\ns_add_u32 s6, s6, s5\ns_lshl_b32 s6, s6, 7\ns_add_u32 s6, s6, {WS_CF}")
        sig_ssm(A, 5, 75)
        A(f"s_mul_i32 s4, s4, 96\ns_add_u32 s5, s5, s4\ns_mul_i32 s100, s5, 5120\ns_add_u32 s100, s100, {WS_W2P}\ns_cmp_lt_u32 s32, 80\ns_cselect_b32 s100, s100, {hex(OOB)}\ns_cselect_b32 s6, s6, {hex(OOB)}")
        A(f"v_and_b32 v2, 15, v1\nv_bfe_u32 v3, v1, 4, 1\ns_lshl_b32 s75, s3, 1\nv_add_u32 v3, s75, v3\nv_lshrrev_b32 v4, 1, v2\nv_xor_b32 v3, v3, v4\nv_lshlrev_b32 v3, 4, v3\nv_lshl_add_u32 v3, v2, 7, v3")
        A(f"v_lshrrev_b32 v4, 5, v1\nv_mul_u32_u24 v4, 10240, v4\nv_add_u32 v3, v3, v4\nv_add_u32 v86, {CB}, v3")
    c_ld = []
    for i in range(5): c_ld += [f"s_add_u32 m0, s101, {1024*i}", f"s_add_u32 s77, s99, {10240*i}", ("vm", "cl", f"buffer_load_dwordx4 v{84+(i&1)}, s[20:23], s77 offen lds")]
    c_r = [("ds", None, f"ds_read_b128 a[{152+4*nb}:{155+4*nb}], v86 offset:{2048*nb}") for nb in range(5)]
    c_s = [("vm", "cs", f"buffer_store_dwordx4 a[{152+4*nb}:{155+4*nb}], v{28+(nb>>2)}, s[8:11], s100 offen offset:{(nb&3)*1024} sc1") for nb in range(5)]
    c_f = ["v_mov_b32 v3, s96", ("wvm", ["cs"]), ("vm", None, "buffer_store_dword v3, v8, s[8:11], s6 offen sc1")]
    CD = int(OPT.get("cd", 0))
    start("FA", fa0, fa1, cs_ld)
    fc1(A)
    loop("FA", {CD: c_ld, CD+2: c_r, CD+3: c_s[:3], CD+4: c_s[3:]}, {0: st_f + cap(fc2), 1: cap(fa2), CD+7: c_f, 9: cs_c, 10: cs_f}, {CD+2: ["cl"]})
    A("s_branch FFN_EP")
    A.nv, A.tv, A.dv, A.nd, A.td, A.dd = snap
    A.L.append(";@SEG FBP"); A.label("FB_p")
    SO = (4, 5, 6, 97, 24, 25, 26, 27)
    def fb1(A):
        A("s_sub_u32 s32, s32, s76\ns_lshl_b32 s35, s69, 2\ns_sub_u32 s35, s35, s34\ns_lshl2_add_u32 s34, s35, s32\ns_lshl2_add_u32 s32, s34, s3\ns_mul_i32 s34, s32, 52429\ns_lshr_b32 s34, s34, 18\ns_mul_i32 s33, s34, 5\ns_sub_u32 s33, s32, s33")
        A(f"s_mul_i32 s99, s34, 40960\ns_lshl_b32 s35, s33, 8\ns_add_u32 s99, s99, s35\ns_lshl_b32 s101, s3, 13\ns_add_u32 s101, s101, {F_SCR}")
        A(f"v_lshrrev_b32 v2, 4, v1\nv_mul_u32_u24 v30, 1280, v2\nv_and_b32 v3, 15, v1\nv_lshlrev_b32 v2, 1, v2\nv_xor_b32 v3, v3, v2\nv_lshl_add_u32 v30, v3, 4, v30\nv_xor_b32 v31, 128, v30")
    def fb2(A):
        A("s_mul_i32 s35, s34, 52429\ns_lshr_b32 s35, s35, 18\ns_mul_i32 s75, s35, 5\ns_sub_u32 s75, s34, s75\ns_sub_u32 s76, s34, 49\ns_cmp_ge_u32 s34, 49\ns_cselect_b32 s35, 10, s35\ns_cselect_b32 s75, s76, s75")
        A("s_cmp_eq_u32 s75, 3\ns_cselect_b32 s76, 1, 0\ns_lshl1_add_u32 s76, s35, s76"); sig_early(A, 76, 100, 79)
        A("s_mul_i32 s76, s35, 3\ns_lshr_b32 s79, s75, 1\ns_add_u32 s76, s76, s79\ns_cmp_eq_u32 s35, 10\ns_cselect_b32 s79, 1, 0\ns_sub_u32 s76, s76, s79"); sig_late(A, 76, 79)
        A("s_lshr_b32 s79, 9, s75\ns_bitcmp1_b32 s79, 0\ns_cselect_b32 s100, s100, s76")
        A(f"s_mul_i32 s98, s100, 5\ns_add_u32 s98, s98, s33\ns_lshl_b32 s98, s98, 7\ns_add_u32 s98, s98, {WS_WF}")
        A(f"s_mul_i32 s100, s100, 5120\ns_lshl_b32 s79, s33, 13\ns_add_u32 s100, s100, s79\ns_add_u32 s100, s100, {WS_W2P}")
        A(f"s_cmp_lt_u32 s32, 270\ns_cselect_b32 s100, s100, {hex(OOB)}\ns_cselect_b32 s98, s98, {hex(OOB)}")
        A("s_cmp_eq_u32 s75, 2\ns_cselect_b32 s75, 8, 4\ns_cselect_b32 s76, 1, 4\ns_lshl_b32 s76, s76, 10")
        A(f"v_lshrrev_b32 v2, 4, v1\nv_mul_u32_u24 v2, s75, v2\nv_bfe_u32 v3, v1, 2, 2\nv_add_u32 v2, v2, v3\nv_lshlrev_b32 v2, 8, v2\nv_and_b32 v3, 3, v1\nv_lshl_add_u32 v2, v3, 3, v2")
        for r in (80, 81):
            A((f"v_mov_b32 v{r}, v2" if r == 80 else f"v_add_u32 v{r}, s76, v2") + f"\nv_lshrrev_b32 v3, 1, v{r}\nv_and_b32 v3, 0x400, v3\nv_xor_b32 v3, v3, v{r}\nv_bfe_u32 v3, v3, 8, 3\nv_lshl_add_u32 v{r}, v3, 5, v{r}\nv_add_u32 v{r}, s101, v{r}")
        A(f"s_mul_i32 s33, s33, {8*52429}")
        for k in range(8): A(f"s_add_u32 s79, s33, {k*52429}\ns_lshr_b32 s79, s79, 18\ns_mul_i32 s79, s79, 486400\ns_add_u32 s{SO[k]}, s100, s79")
    w2_ld = []
    for i in range(8): w2_ld += [f"s_add_u32 m0, s101, {1024*i}", f"s_add_u32 s77, s99, {5120*i}", ("vm", "w2l", f"buffer_load_dwordx4 v{30 + ((i ^ (i >> 1)) & 1)}, s[20:23], s77 offen lds")]
    w2_c = [("wvm", ["w2l"])]
    for k in range(8):
        for hh in range(2): w2_c += [f"v_xor_b32 v{82+hh}, {32*k}, v{80+hh}", ("ds", "w2t", f"ds_read_b64_tr_b16 a[{152+4*k+2*hh}:{153+4*k+2*hh}], v{82+hh}")]
    w2_s = [("vm", "side", f"buffer_store_dwordx4 a[{152+4*k}:{155+4*k}], v{28+(k>>2)}, s[8:11], s{SO[k]} offen offset:{(k&3)*1024} sc1") for k in range(8)]
    f2 = chop(cap(fb2), 3)
    BD = int(OPT.get("bd", 0)); BS = int(OPT.get("bs", BD+4)); BN = int(OPT.get("bn", 3))
    start("FB", fb1, lambda A: srd(A, 20, P["w2"], SZ_W), w2_ld if BD < 0 else [])
    fl = ["v_mov_b32 v3, s96", ("wvm", ["side"]), ("vm", None, "buffer_store_dword v3, v8, s[8:11], s98 offen sc1")]
    if BD < 0: loop("FB", {}, {0: st_f + f2[0], 1: f2[1], 2: f2[2], 3: w2_c, 4: w2_s[:4], 5: w2_s[4:], 8: fl})
    else: loop("FB", {BD: w2_ld}, {0: st_f + f2[0], 1: f2[1], 2: f2[2], BD+3: w2_c, **{BS+k: L for k, L in enumerate(chop(w2_s, BN))}, BS+BN+2: fl})
    A.L.append(";@SEG EP"); A.label("FFN_EP"); A.reset()
    A("s_waitcnt lgkmcnt(0)"); tick(A, 20, 19); tockdump(A, 20, 19, 0x40000)
    stamp(A, 2)
    A("s_nop 6")
    T = 32
    def silu(pr, tb, dst):
        g, u = acc(2*pr, tb), acc(2*pr+1, tb); cg, cu = 56+8*pr, 60+8*pr
        L = []
        for k in (0, 2): L.append(pk("fma", g+k, cg+k, ("b", 44+tb), g+k, neg=(1,)))
        for k in (0, 2): L.append(pk("mul", T+k, g+k, ("b", 48+tb)))
        for k in (0, 2): L.append(pk("fma", u+k, cu+k, ("b", 44+tb), u+k, neg=(1,)))
        for e in range(4): L.append(f"v_exp_f32 v{T+e}, v{T+e}")
        for k in (0, 2): L.append(pk("mul", g+k, g+k, u+k))
        for k in (0, 2): L.append(pk("fma", T+k, T+k, ("b", 52+tb), ("b", 52+tb)))
        for e in range(4): L.append(f"v_rcp_f32 v{T+e}, v{T+e}")
        for k in (0, 2): L.append(pk("mul", g+k, g+k, T+k))
        L += [f"v_cvt_pk_bf16_f32 v{dst}, v{g}, v{g+1}", f"v_cvt_pk_bf16_f32 v{dst+1}, v{g+2}, v{g+3}"]
        return L
    ep = []
    grp = []
    for fr in range(2):
        for tb in range(4):
            o = acc(4*fr+1, tb)
            grp.append((silu(2*fr, tb, o) + silu(2*fr+1, tb, o+2), ("vm", ("H", fr), f"buffer_store_dwordx4 v[{o}:{o+3}], v28, s[8:11], s{84+fr} offen offset:{tb*1024} sc1")))
    for tp in range(2):
        o = acc(9, 2*tp)
        grp.append((silu(4, 2*tp, o) + silu(4, 2*tp+1, o+2) + [f"v_permlane16_swap_b32 v{o}, v{o+2}", f"v_permlane16_swap_b32 v{o+1}, v{o+3}"],
                    ("vm", ("H", 2), f"buffer_store_dwordx4 v[{o}:{o+3}], v30, s[8:11], s86 offen offset:{tp*2048} sc1")))
    we = chop(w2loads(NL, NL+FE), 8) if FE else [[]]*8
    for k, (c, st) in enumerate(grp):
        spread(A, c, we[k] if k < 8 else [])
        if k == int(OPT.get("ef", 99)): A.its([("wvm", [("H", 0)]), ("vm", None, "buffer_store_dword v31, v8, s[8:11], s87 offen sc1")])
        A.it(st)
    stamp(A, 3)
    if "ef" not in OPT: A.its([("wvm", [("H", 0)]), ("vm", None, "buffer_store_dword v31, v8, s[8:11], s87 offen sc1")])
    ph2_addr(A)
    A.its(fin_loads() + w2loads(NL+FE, 12) + fpoll(G0) + [("wvm", [("H", 2)]), ("vm", None, "buffer_store_dword v31, v8, s[8:11], s99 offen sc1")])
    fcheck(A, "FR", G0)
    A("s_branch PH2")

S_SLOT = 49152; S_SCR = 3*S_SLOT
def gen_ssm(A):
    A.reset()
    A("s_lshl_b32 s32, s68, 8\ns_lshl_b32 s33, s72, 7\ns_add_u32 s32, s32, s33\ns_lshl_b32 s33, s71, 3\ns_add_u32 s32, s32, s33")
    A("v_and_b32 v2, 32, v1\nv_bfe_u32 v3, v1, 3, 1\nv_lshl_add_u32 v2, v3, 4, v2\nv_bfe_u32 v3, v1, 4, 1\nv_add3_u32 v2, v2, v3, s32\nv_mul_u32_u24 v2, 1280, v2")
    A("v_lshrrev_b32 v3, 4, v1\nv_xor_b32 v3, v3, v1\nv_and_b32 v3, 7, v3\nv_lshlrev_b32 v3, 4, v3\nv_xor_b32 v4, 64, v3\nv_add_u32 v5, v2, v3\nv_add_u32 v6, v2, v4")
    for ii in range(8): A(f"v_add_u32 v{10+ii}, {(64*(ii&1) + 2*(ii>>1))*1280 - 1024*(ii&3)}, v{5+(ii&1)}")
    A("s_lshl_b32 s32, s69, 6\ns_lshl_b32 s33, s71, 5\ns_add_u32 s32, s32, s33")
    A("v_lshrrev_b32 v2, 3, v1\nv_add_u32 v2, s32, v2\nv_mul_u32_u24 v2, 1280, v2\nv_add_u32 v5, v2, v3\nv_add_u32 v6, v2, v4")
    for i in range(4): A(f"v_add_u32 v{18+i}, {8*i*1280 - 1024*i}, v{5+(i&1)}")
    A("s_lshl_b32 s73, s3, 13\ns_lshl_b32 s74, s3, 12\ns_add_u32 s74, s74, 32768")
    st_ld, st_c, st_f = stats_job(32, S_SCR)
    def dma(u, hs=(0, 1)):
        b = (u % 3)*S_SLOT; L = []
        for h in hs:
            L += [f"s_add_u32 m0, s73, {b+4096*h}", f"s_movk_i32 s78, {u*128}"]
            for i in range(4): L.append(("vm", ("S", u), f"buffer_load_dwordx4 v{10+4*h+i}, s[16:19], s78 offen offset:{1024*i} lds"))
            L.append(f"s_add_u32 m0, s74, {b}")
            for i in range(2): L.append(("vm", ("S", u), f"buffer_load_dwordx4 v{18+2*h+i}, s[12:15], s78 offen offset:{1024*(2*h+i)} lds"))
        return L
    p_ld = lines("s_lshl_b32 s32, s69, 6\ns_lshl_b32 s33, s72, 5\ns_add_u32 s32, s32, s33\nv_and_b32 v2, 15, v1\nv_add_u32 v30, s32, v2\nv_lshlrev_b32 v2, 1, v30")
    for cb in range(2):
        for q, sp in enumerate((P["lre"], P["lim"], P["ldt"])): p_ld.append(("vm", "P", f"global_load_ushort v{112+3*cb+q}, v2, s[{sp}:{sp+1}] offset:{32*cb}"))
    def lds_setup(A):
        early_setup(A)
        A("v_lshrrev_b32 v2, 4, v1\nv_and_b32 v3, 15, v1\nv_lshrrev_b32 v4, 1, v3\nv_xor_b32 v4, v4, v2\nv_lshlrev_b32 v4, 4, v4\nv_lshl_add_u32 v3, v3, 7, v4")
        A("s_lshl_b32 s75, s71, 14\ns_lshl_b32 s76, s72, 12\ns_add_u32 s76, s76, 32768")
        A("v_add_u32 v22, s75, v3\nv_xor_b32 v23, 64, v22\nv_add_u32 v120, s76, v3\nv_xor_b32 v121, 64, v120")
        for sl in (1, 2):
            for ks in range(2): A(f"v_add_u32 v{22+2*sl+ks}, {sl*S_SLOT}, v{22+ks}\nv_add_u32 v{120+2*sl+ks}, {sl*S_SLOT}, v{120+ks}")
    def ss0(A):
        A("s_and_b32 s33, s68, 3\ns_lshl2_add_u32 s33, s69, s33\ns_lshl2_add_u32 s33, s33, s3\ns_lshr_b32 s35, s68, 2\ns_mul_i32 s35, s35, 160\ns_add_u32 s35, s35, s33\ns_mul_i32 s97, s33, 5120")
        A("v_bfe_u32 v2, v1, 2, 2\nv_mul_u32_u24 v2, 1280, v2\nv_and_b32 v3, 3, v1\nv_lshl_add_u32 v2, v3, 4, v2\nv_lshrrev_b32 v4, 4, v1\nv_lshl_add_u32 v67, v4, 6, v2")
    def ss1(A):
        A(f"s_lshl_b32 s98, s35, 7\ns_add_u32 s98, s98, {WS_CSB}")
        A("v_lshlrev_b32 v2, 21, v1\nv_and_b32 v2, 0xfe000000, v2\nv_lshl_add_u32 v55, v1, 3, v2")
        for r in range(4): A(f"v_mov_b32 v{68+r}, 0x3f803f80")
        A("s_lshl_b32 s32, s71, 2\nv_lshrrev_b32 v31, 4, v1\nv_add_u32 v31, s32, v31")
    def ss3(A):
        A("s_lshl1_add_u32 s32, s69, s72\ns_lshl_b32 s84, s32, 1\ns_add_u32 s85, s84, 1"); sig_ssm(A, 84, 33); sig_ssm(A, 85, 33)
        A(f"s_lshl1_add_u32 s34, s68, s71\ns_mul_i32 s35, s34, 192")
        for r in (84, 85): A(f"s_add_u32 s{r}, s{r}, s35\ns_lshl_b32 s{r}, s{r}, 12\ns_add_u32 s{r}, s{r}, {WS_H}")
        A(f"s_lshl_b32 s87, s34, 7\ns_add_u32 s87, s87, s32\ns_lshl_b32 s87, s87, 7\ns_add_u32 s87, s87, {WS_FLG+88*128}")
        A(f"s_add_u32 s86, s84, {96*4096}\ns_add_u32 s78, s85, {96*4096}")
    def ss4(A):
        A("s_mul_i32 s75, s3, 20480\nv_and_b32 v2, 15, v1\nv_bfe_u32 v3, v2, 2, 1\nv_and_b32 v4, 3, v2\nv_lshl_add_u32 v3, v4, 1, v3\nv_and_b32 v4, 8, v2\nv_or_b32 v3, v3, v4")
        A("v_lshrrev_b32 v4, 4, v1\nv_lshlrev_b32 v5, 2, v4\nv_xor_b32 v3, v3, v5\nv_lshlrev_b32 v3, 4, v3\nv_lshl_add_u32 v3, v2, 8, v3\nv_add_u32 v10, s75, v3")
        A("v_bfe_u32 v2, v1, 2, 2\nv_lshlrev_b32 v3, 5, v2\nv_and_b32 v5, 1, v4\nv_lshl_add_u32 v3, v5, 7, v3\nv_and_b32 v5, 3, v1\nv_lshl_add_u32 v3, v5, 3, v3")
        A("v_lshl_add_u32 v2, v4, 3, v2\nv_lshl_add_u32 v3, v2, 8, v3\nv_add_u32 v11, s75, v3")
    def ss5(A):
        A("v_lshlrev_b32 v3, 4, v30\nv_lshlrev_b32 v2, 21, v1\nv_and_b32 v2, 0xfe000000, v2\nv_add_u32 v12, v2, v3\ns_lshl1_add_u32 s76, s68, s71\ns_mul_i32 s97, s76, 10240")
        A("v_lshrrev_b32 v2, 4, v1\nv_mul_u32_u24 v13, 10240, v2\ns_sub_u32 s75, s97, 10240\nv_sub_u32 v13, s75, v13\nv_add_u32 v13, v13, v3\nv_mov_b32 v21, s96")
        for i in range(4):
            if i: A(f"v_subrev_u32 v{13+i}, {40960*i}, v13\nv_add_u32 v2, 4, v2")
            A(f"v_cmp_gt_u32 vcc, s76, v2\nv_cndmask_b32 v{17+i}, 0, v21, vcc")
    b_ld = [("vm", "bl", f"buffer_load_dwordx4 a[{112+4*i}:{115+4*i}], v67, s[24:27], s97 offen offset:{256*i}") for i in range(5)]
    b_c = [("wvm", ["bl"])]
    for i in range(5): b_c.append(f"{MF} v[56:59], v[68:71], a[{112+4*i}:{115+4*i}], " + ("v[56:59]" if i else "0"))
    b_c += ["s_nop 0"]*3
    b_c += ["v_add_f32_dpp v56, v56, v56 quad_perm:[1,0,3,2] row_mask:0xf bank_mask:0xf", "v_add_f32_dpp v56, v56, v56 quad_perm:[2,3,0,1] row_mask:0xf bank_mask:0xf",
            "v_mov_b32 v57, s96", ("vm", None, "buffer_store_dwordx2 v[56:57], v55, s[8:11], s98 offen sc1")]
    NM = "LR LI CA CB L16R L16I L32R L32I L512R L512I QR QI UR UI WR WI PR PI T0 T1".split()
    def Pm(cb): return dict(zip(NM, range(72+20*cb, 72+20*cb+20)))
    par_c = [("wvm", ["P"])] + lines("v_lshrrev_b32 v60, 4, v1\nv_cvt_f32_u32 v60, v60\nv_mul_f32 v60, 0x42000000, v60\nv_sub_f32 v61, 0x42c00000, v60\nv_mul_f32 v62, 4.0, v60")
    for cb in range(2):
        p = Pm(cb); i0 = 112 + 3*cb; zr, zt, t0, t1 = p['PR'], p['PI'], p['T0'], p['T1']
        def power(d, n):
            pre = [f"v_mul_f32 v{t0}, {n}, v{zr}", f"v_mul_f32 v{t1}, {n}, v{zt}"] if n else []
            a, b = (t0, t1) if n else (zr, zt)
            return pre + lines(f"v_exp_f32 v{t0}, v{a}\nv_fract_f32 v{t1}, v{b}\nv_cos_f32 v{d}, v{t1}\nv_sin_f32 v{d+1}, v{t1}\nv_mul_f32 v{d}, v{d}, v{t0}\nv_mul_f32 v{d+1}, v{d+1}, v{t0}")
        par_c += lines(f"""v_lshlrev_b32 v{i0+2}, 16, v{i0+2}
v_mul_f32 v{t0}, 0x3fb8aa3b, v{i0+2}
v_exp_f32 v{t0}, v{t0}
v_lshlrev_b32 v{i0}, 16, v{i0}
v_lshlrev_b32 v{i0+1}, 16, v{i0+1}
v_cvt_pk_bf16_f32 v{t0}, v{t0}, v{t0}
v_and_b32 v{t0}, 0xffff0000, v{t0}
v_mul_f32 v{zr}, v{t0}, v{i0}
v_mul_f32 v{zt}, v{t0}, v{i0+1}
v_mul_f32 v{zr}, 0x3fb8aa3b, v{zr}
v_mul_f32 v{zt}, 0.15915494, v{zt}""") + power(p['LR'], None)
        par_c += lines(f"""v_mul_f32 v{t1}, v{i0}, v{i0}
v_fmac_f32 v{t1}, v{i0+1}, v{i0+1}
v_rcp_f32 v{t1}, v{t1}
v_add_f32 v{t0}, -1.0, v{p['LR']}
v_mul_f32 v{p['CA']}, v{t0}, v{i0}
v_add_f32 v{t1}, v{t1}, v{t1}
v_fmac_f32 v{p['CA']}, v{p['LI']}, v{i0+1}
v_mul_f32 v{p['CB']}, v{p['LI']}, v{i0}
v_fma_f32 v{p['CB']}, -v{t0}, v{i0+1}, v{p['CB']}
v_mul_f32 v{p['CA']}, v{p['CA']}, v{t1}
v_mul_f32 v{p['CB']}, v{p['CB']}, v{t1}""")
        par_c += power(p['L16R'], "0x41800000") + power(p['L32R'], "0x42000000") + power(p['L512R'], "0x44000000") + power(p['QR'], "v60") + power(p['UR'], "v61") + power(p['WR'], "v62")
    ep_ld = lines(f"v_lshrrev_b32 v2, 3, v0\nv_lshlrev_b32 v2, 7, v2\nv_and_b32 v3, 7, v0\nv_lshl_add_u32 v2, v3, 3, v2\ns_lshl_b32 s75, s68, 12\ns_add_u32 s75, s75, {WS_STAT}") + [("vm", "ep", "buffer_load_dwordx2 v[52:53], v2, s[8:11], s75 offen sc1")]
    ep_ld += lines(f"v_lshrrev_b32 v2, 2, v30\nv_lshlrev_b32 v2, 7, v2\nv_and_b32 v3, 3, v30\nv_lshl_add_u32 v2, v3, 5, v2\ns_mov_b32 s75, {WS_CSB}\ns_mov_b32 s76, {WS_CSB+20480}")
    def CS(cb, im): return 112 + 4*cb + 2*im
    for cb in range(2):
        for im in range(2): ep_ld.append(("vm", "ep", f"buffer_load_dwordx2 v[{CS(cb,im)}:{CS(cb,im)+1}], v2, s[8:11], s{75+im} offen offset:{512*cb} sc1"))
    ep_tags = [53, 113, 115, 117, 119]
    ep_t = [("wvm", ["ep"])] + tagtest(ep_tags)
    ep_c = lines(f"""v_and_b32 v53, 0xffff0000, v52
v_rcp_f32 v53, v53
v_lshlrev_b32 v52, 16, v52
v_and_b32 v2, 15, v0
v_bfe_u32 v3, v0, 4, 1
v_lshl_add_u32 v2, v2, 1, v3
v_and_b32 v3, 0xe0, v0
v_add_u32 v2, v2, v3
v_mul_f32 v52, v52, v53
v_lshlrev_b32 v2, 2, v2
v_add_u32 v2, {S_SCR}, v2""") + [("ds", None, "ds_write_b32 v2, v53"), ("ds", None, "ds_write_b32 v2, v52 offset:1024")]
    ACC = 128
    def acc(b, c): return ACC + (c*8+b)*4
    def Xr(par, b): return par*48 + b*4
    def Br(par, c): return par*48 + 32 + c*4
    def reads(s):
        par = s & 1; sl = (s >> 1) % 3; L = []
        for c in range(4): L.append(("ds", None, f"ds_read_b128 a[{Br(par,c)}:{Br(par,c)+3}], v{120+2*sl+(s&1)} offset:{(c>>1)*8192 + (c&1)*2048}"))
        for b in range(8): L.append(("ds", None, f"ds_read_b128 a[{Xr(par,b)}:{Xr(par,b)+3}], v{22+2*sl+(s&1)} offset:{b*2048}"))
        return L
    SORD = OPT.get("sord", "A")
    M = {0: (b_ld if SORD == "C" else []) + dma(2)}
    for s in range(1, 15): M[s] = dma((s+5) >> 1, ((s+1) & 1,))
    CK = int(OPT.get("ck", 16))
    for k, L in enumerate(chop(w2loads(0, 5, 99), 20-CK)): M[CK+k] = M.get(CK+k, []) + L
    pc = chop(par_c, 8); ps = chop(cap(ph2_setup), 2)
    pc = chop(par_c, 9)
    S = {0: cap(ss1), 1: st_f + p_ld, 2: ps[0], 3: ps[1] + b_c, 4: pc[0], 5: pc[1], 6: pc[2], 7: pc[3], 8: pc[4], 9: pc[5], 10: pc[6], 11: pc[7], 12: pc[8],
         13: ep_ld, 15: cap(ss3), 16: ep_t, 17: ep_c, 18: cap(ss4), 19: cap(ss5)}
    S[CK-2] = fpoll(4) + S.get(CK-2, [])
    if "wf" in OPT: S[19] = w2warm() + S[19]
    PF = int(OPT.get("pf", 0)); PFI = int(OPT.get("pfi", 19))
    if PF:
        pf = lines(f"s_lshr_b32 s32, s2, 3\ns_lshl2_add_u32 s32, s32, s3\ns_lshr_b32 s33, s32, 2\ns_mul_i32 s33, s33, 96\ns_mul_i32 s34, s29, 12\ns_add_u32 s33, s33, s34\ns_mul_i32 s33, s33, 5120\ns_add_u32 s33, s33, {WS_W2P + 35840 - PF*8192}")
        pf += [f"s_cmp_lt_u32 s32, 32\ns_cselect_b32 s33, s33, {hex(OOB)}", "v_lshlrev_b32 v6, 7, v1"]
        for k in range(PF): pf += [("vm", None, "buffer_load_dword v7, v6, s[8:11], s33 offen sc1"), "s_add_u32 s33, s33, 8192"]
        S[PFI] = S.get(PFI, []) + pf
    ss0(A)
    A("s_waitcnt lgkmcnt(0)")
    srd(A, 16, P["x"], SZ_X); A.its(st_ld)
    A("s_cmp_lt_u32 s35, 160"); srd_sel(A, 24, P["bre"], P["bim"], SZ_B)
    A("s_cmp_eq_u32 s72, 0"); srd_sel(A, 12, P["bre"], P["bim"], SZ_B)
    first, second = {"B": (b_ld + dma(0, (0,)), dma(0, (1,)) + dma(1)), "A": (dma(0), b_ld + dma(1)), "C": (dma(0), dma(1))}[SORD]
    A.its(first)
    A.L.append(";@TOUCH S")
    A("s_branch SSM_a"); A.L.append(";@SEG SSM"); A.label("SSM_a")
    lds_setup(A)
    A.its(st_c[:1]); spread(A, st_c[1:], second, 0, len(st_c) - 2)
    A.sync([("S", 0)]); stamp(A, 1)
    A.its(reads(0))
    for s in range(20):
        tags = [("S", (s+1) >> 1)] if (s < 19 and s & 1) else []
        if s == 17: gcheck(A, "SG", ep_ld, ep_tags)
        if s == CK: A.its(ftest(99, 82))
        A.sync(tags, barrier=bool(s & 1))
        tick(A, s, 127)
        par = s & 1; mf = []
        for b in range(8):
            for c in range(4):
                r = acc(b, c); mf.append(f"{MF} v[{r}:{r+3}], a[{Xr(par,b)}:{Xr(par,b)+3}], a[{Br(par,c)}:{Br(par,c)+3}], " + (f"v[{r}:{r+3}]" if s else "0"))
        A.weave(mf, [(reads(s+1) if s < 19 else [], 0, 24), (M.get(s, []), 0, 31), (S.get(s, []), 1, 31)])
    A("s_waitcnt lgkmcnt(0)"); tick(A, 20, 127); tockdump(A, 20, 127, 0x40000)
    stamp(A, 2)
    def gre(cb, j): return acc(0, cb) + 2*j
    def gim(cb, j): return acc(0, 2+cb) + 2*j
    def cfma(dr, di, mr, mi, xr, xi, ar, ai):
        return lines(f"v_fma_f32 v{dr}, v{mr}, v{xr}, v{ar}\nv_fma_f32 v{di}, v{mr}, v{xi}, v{ai}\nv_fma_f32 v{dr}, -v{mi}, v{xi}, v{dr}\nv_fma_f32 v{di}, v{mi}, v{xr}, v{di}")
    def cmul(dr, di, mr, mi, xr, xi):
        return lines(f"v_mul_f32 v{dr}, v{mr}, v{xr}\nv_mul_f32 v{di}, v{mr}, v{xi}\nv_fma_f32 v{dr}, -v{mi}, v{xi}, v{dr}\nv_fmac_f32 v{di}, v{mi}, v{xr}")
    def gsum(regs, tmp):
        L = []
        for sw in ("v_permlane16_swap_b32", "v_permlane32_swap_b32"):
            L += [f"v_mov_b32 v{tmp+k}, v{r}" for k, r in enumerate(regs)] + [f"{sw} v{r}, v{tmp+k}" for k, r in enumerate(regs)] + [f"v_add_f32 v{r}, v{r}, v{tmp+k}" for k, r in enumerate(regs)]
        return L
    def rload(c):
        b = 32 + 16*(c & 1)
        return [("ds", ("R", c), f"ds_read_b128 v[{b+4*k+8*t}:{b+4*k+8*t+3}], v22 offset:{1024*t + 32*(c&3) + 16*k}") for t in range(2) for k in range(2)]
    def scan(cb):
        p = Pm(cb); L = []
        for j in range(16):
            c = 4*cb + (j >> 2); b = 32 + 16*(c & 1) + 2*(j & 3)
            if j & 3 == 0: L.append(("wds", [("R", c)]))
            L += [pk("mul", gre(cb,j), gre(cb,j), b), pk("mul", gim(cb,j), gim(cb,j), b)]
            L += [pk("fma", gre(cb,j), b+8, ("b", CS(cb,0)), gre(cb,j), neg=(0,)), pk("fma", gim(cb,j), b+8, ("b", CS(cb,1)), gim(cb,j), neg=(0,))]
            if j & 3 == 3 and c + 2 < 8: L += rload(c+2)
            if j:
                L += [pk("fma", gre(cb,j), gre(cb,j-1), ("b", p['LR']), gre(cb,j)), pk("fma", gim(cb,j), gim(cb,j-1), ("b", p['LR']), gim(cb,j))]
                L += [pk("fma", gre(cb,j), gim(cb,j-1), ("b", p['LI']), gre(cb,j), neg=(1,)), pk("fma", gim(cb,j), gre(cb,j-1), ("b", p['LI']), gim(cb,j))]
        o = 120 + 4*cb
        L += cfma(64+2*cb, 65+2*cb, p['L16R'], p['L16I'], gre(cb,15), gim(cb,15), gre(cb,15)+1, gim(cb,15)+1) + cmul(o, o+2, p['UR'], p['UI'], 64+2*cb, 65+2*cb)
        L += gsum([o, o+2], 4) + [f"v_mov_b32 v{o+1}, s96", f"v_mov_b32 v{o+3}, s96", ("vm", None, f"buffer_store_dwordx4 v[{o}:{o+3}], v12, s[8:11], s97 offen offset:{256*cb} sc1")]
        return L
    def lbl(cb): return [("vm", ("lb", cb), f"buffer_load_dwordx4 v[{32+16*cb+4*i}:{35+16*cb+4*i}], v{13+i}, s[8:11], 0 offen offset:{256*cb} sc1") for i in range(4)]
    def transform(cb):
        p = Pm(cb); L = [f"v_mov_b32 v{64+2*cb}, v{gre(cb,15)}", f"v_mov_b32 v{65+2*cb}, v{gim(cb,15)}"]
        for j in range(16):
            r, i = gre(cb,j), gim(cb,j)
            L += [pk("mul", 112, i, ("b", p['CB'])), pk("mul", 114, r, ("b", p['CB'])), pk("fma", r, r, ("b", p['CA']), 112, neg=(2,)), pk("fma", i, i, ("b", p['CA']), 114, neg=(1, 2))]
        return L
    def lookback(cb):
        b = 32+16*cb
        lt = [f"v_xor_b32 v4, v17, v{b+1}"] + sum(([f"v_xor_b32 v5, v{17+(r-b)//4}, v{r}", "v_or_b32 v4, v4, v5"] for r in range(b+3, b+16, 2)), []) + ["v_cmp_ne_u32 vcc, 0, v4"]
        A.its([("wvm", [("lb", cb)])] + lt)
        A(f"s_cbranch_vccz SSM_go{cb}\ns_mov_b32 s7, 0x40000")
        A.label(f"SSM_poll{cb}")
        for x in lbl(cb): A(x[2])
        A("s_waitcnt vmcnt(0)"); A.ext(lt)
        A(f"s_sub_u32 s7, s7, 1\ns_cbranch_scc1 SSM_go{cb}\ns_cbranch_vccnz SSM_poll{cb}")
        A.label(f"SSM_go{cb}")
    WP = 112; IMG = 8192
    def second(cb):
        p = Pm(cb); b = 32+16*cb; L = []
        for i in (2, 1, 0): L += cfma(b+4*i, b+4*i+2, p['L512R'], p['L512I'], b+4*i+4, b+4*i+6, b+4*i, b+4*i+2)
        L += cmul(b+4, b+5, p['WR'], p['WI'], b, b+2) + gsum([b+4, b+5], 4)
        L += cfma(p['PR'], p['PI'], p['QR'], p['QI'], b+4, b+5, p['PR'], p['PI']) + cfma(64+2*cb, 65+2*cb, p['L16R'], p['L16I'], p['PR'], p['PI'], 64+2*cb, 65+2*cb)
        for k, (xr, xi) in enumerate(((p['PR'], p['PI']), (64+2*cb, 65+2*cb))):
            L += lines(f"v_mul_f32 v{p['T0']}, v{p['CB']}, v{xi}\nv_mul_f32 v{p['T1']}, v{p['CB']}, v{xr}\nv_fma_f32 v{WP+k}, v{p['CA']}, v{xr}, -v{p['T0']}\nv_fma_f32 v{WP+2+k}, -v{p['CA']}, v{xi}, -v{p['T1']}")
        pw = []
        for j in range(16):
            cur = WP+4*(j & 1); nxt = WP+4*((j+1) & 1)
            L += [pk("mul", nxt, cur, ("b", p['LR'])), pk("mul", nxt+2, cur+2, ("b", p['LR'])), pk("fma", nxt, cur+2, ("b", p['LI']), nxt), pk("fma", nxt+2, cur, ("b", p['LI']), nxt+2, neg=(1,))]
            L += [pk("add", gre(cb,j), gre(cb,j), nxt), pk("add", gim(cb,j), gim(cb,j), nxt+2)]
            if pw and not j & 1: L.append(pw.pop(0))
            if j & 1:
                k = (j >> 1) & 3
                for im in range(2):
                    g = gim if im else gre
                    for hh in range(2):
                        r = (b+8*im+4*hh) if j < 8 else (g(cb, 0) + 4*hh)
                        L.append(f"v_cvt_pk_bf16_f32 v{r+k}, v{g(cb,j-1)+hh}, v{g(cb,j)+hh}")
                        if k == 3: (L if j == 15 else pw).append(("ds", "iw", f"ds_write_b128 v{68+2*(j>>3)+hh}, v[{r}:{r+3}] offset:{cb*IMG + im*4096}"))
        L.append(("wds", ["iw"]))
        st = []
        for tb in range(8):
            r = gim(cb, 0) + 4*tb
            for hh in range(2): L += [f"v_xor_b32 v{2+hh}, {32*tb + 16*hh}, v11", ("ds", ("tr", cb, tb), f"ds_read_b64_tr_b16 v[{r+2*hh}:{r+2*hh+1}], v{2+hh} offset:{cb*IMG + hh*1024}")]
            st.append([("wds", [("tr", cb, tb)]), ("vm", "H", f"buffer_store_dwordx4 v[{r}:{r+3}], v28, s[8:11], s{(84, 85, 86, 78)[cb + 2*(tb >> 2)]} offen offset:{(tb&3)*1024} sc1")])
        return L, st
    A(f"v_lshlrev_b32 v22, 7, v31\nv_add_u32 v22, {S_SCR}, v22\nv_mov_b32 v31, s96")
    ptick(A, 40, 25)
    A.its(rload(0) + rload(1) + scan(0) + scan(1))
    ptick(A, 41, 25)
    A.its((fpoll(5) if int(OPT.get("sb", 5)) > 5 else []) + lbl(0))
    for d in range(3):
        A(f"v_subrev_u32 v2, {16*(d+1)}, v1\nv_lshlrev_b32 v2, 2, v2")
        for k in range(4): A.it(("ds", "bp", f"ds_bpermute_b32 v{48+4*d+k}, v2, v{64+k}"))
    for cb in range(2): A(f"v_mov_b32 v{Pm(cb)['PR']}, 0\nv_mov_b32 v{Pm(cb)['PI']}, 0")
    for k in range(4): A(f"v_xor_b32 v{68+k}, {32*(k&1) + 16*(k>>1)}, v10")
    A.it(("wds", ["bp"]))
    for d in (2, 1, 0):
        A(f"s_lshl_b64 exec, -1, {16*(d+1)}")
        for cb in range(2):
            p = Pm(cb); a = 48+4*d+2*cb
            if d < 2: A.ext(cfma(a, a+1, p['L32R'], p['L32I'], p['PR'], p['PI'], a, a+1))
            A(f"v_mov_b32 v{p['PR']}, v{a}\nv_mov_b32 v{p['PI']}, v{a+1}")
    A("s_mov_b64 exec, -1")
    A.its(transform(0))
    stamp(A, 3); ptick(A, 42, 25)
    lookback(0)
    stamp(A, 4); ptick(A, 43, 25)
    L0, st0 = second(0); L1, st1 = second(1)
    SB = int(OPT.get("sb", 5))
    if SB > 5:
        fcheck(A, "SC5a", 5); A.its(L0[:60] + lbl(1)); spread(A, L0[60:], w2loads(5, SB), 0, 120)
    else: A.its(L0[:60] + lbl(1) + fpoll(5) + L0[60:])
    ptick(A, 44, 25)
    lookback(1)
    rest = transform(1) + L1
    sl = interleave(rest, st0, 0, len(rest) - 40)
    for i, x in enumerate(rest):
        for y in sl[i]: A.its(y)
        A.it(x)
    ptick(A, 45, 25)
    for y in st1: A.its(y)
    stamp(A, 5)
    fs = "buffer_store_dword v31, v8, s[8:11], s87 offen sc1"
    fcheck(A, "SC5", 5, pre="s_waitcnt vmcnt(0)\n" + fs)
    A.L.append(";@TOUCH P1")
    ph2_addr(A)
    S1 = int(OPT.get("s1", 7))
    ptick(A, 46, 25)
    A.its(w2loads(SB, S1) + [("wvm", ["H"]), ("vm", None, fs)])
    ptick(A, 47, 25)
    A(f"s_cmp_lg_u32 s95, 0\ns_cbranch_scc1 EP_end\nv_lshlrev_b32 v2, 7, v1\ns_mov_b32 s7, 0x40000")
    A.label("EP_l")
    for k in range(4): A(f"s_mov_b32 s75, {WS_STAT+4+8192*k}\nbuffer_load_dword v{68+k}, v2, s[8:11], s75 offen sc1")
    A("s_waitcnt vmcnt(0)"); A.ext(tagtest([68, 69, 70, 71]))
    A(f"s_sub_u32 s7, s7, 1\ns_cbranch_scc1 EP_ok\ns_cbranch_vccnz EP_l")
    A.label("EP_ok")
    A(f"s_mov_b32 s75, {WS_EPOCH}\nbuffer_store_dword v31, v8, s[8:11], s75 offen sc1")
    A.label("EP_end")
    fredo(A, "SR", 4, 99, 82, w2loads(0, 5))
    A.its(fin_loads() + w2loads(S1, 12) + fpoll(G0))
    fcheck(A, "SC2", G0)

def gen_ph2(A):
    A.L.append(";@SEG PH2"); A.label("PH2")
    A.reset()
    stamp(A, 6)
    for i in range(3): A.its(hload(i))
    fin_base(A)
    g_r = []
    for nb in range(5):
        for w in range(4):
            r = ACCG + (nb*4+w)*4; g_r.append(("ds", ("gr", nb), f"ds_read_b128 v[{r}:{r+3}], v{23+(w>>1)} offset:{(w&1)*20480 + nb*1024}"))
    g_s = []; g_t = []
    for nb in range(5):
        r = ACCG + nb*16; g_s.append(("wds", [("gr", nb)]))
        for e in range(4): g_s += [f"v_add_f32 v{r+e}, v{r+e}, v{r+4+e}", f"v_add_f32 v{r+8+e}, v{r+8+e}, v{r+12+e}"]
        for e in range(4): g_s.append(f"v_add_f32 v{r+e}, v{r+e}, v{r+8+e}")
        g_t.append(("vm", "xs", f"buffer_store_dwordx4 v[{r}:{r+3}], v{28+(nb>>2)}, s[8:11], s4 offen offset:{(nb&3)*1024} sc1"))
    g_f = [("wvm", ["xs"]), ("vm", None, "buffer_store_dword v31, v8, s[8:11], s6 offen sc1")]
    fin_r = [(f"v_accvgpr_read_b32 v{ACCG + (k>>2)*16 + 8 + (k&3)}, {PARK[k]}" if PARK[k][0] == "a" else f"v_mov_b32 v{ACCG + (k>>2)*16 + 8 + (k&3)}, {PARK[k]}") for k in range(20)]
    GF = int(OPT.get("gf", 12))
    extra = {**{k-3: fpoll(g)[:-1] for k, g in CHK.items()}, 12: ["s_mov_b32 m0, s101"], 16: g_r + g_s[:13], 17: g_s[13:39] + g_t[:2], 18: g_s[39:52] + g_t[2:3] + g_s[52:] + g_t[3:],
             19: ["v_add_u32 v23, 81920, v23", "v_add_u32 v24, 81920, v24", "s_mov_b32 m0, s100"] + fin_r, 20: fpoll(3)[:-1]}
    first = {k-2: fpoll(g)[-1:] for k, g in CHK.items()}
    pend = []
    for g in GROUPS:
        n0 = g[0]; hf = STEPS[n0][0]
        tags = [("h", n) for n in g]
        if n0 == 16: A.sync(tags)
        else: A.it(("wvm", tags))
        if TS >= 2 and n0 not in (15, 17, 18): A("s_waitcnt lgkmcnt(0)")
        if TS >= 2:
            if n0: A(f"v_writelane_b32 v25, s88, {GROUPS.index(g)-1}")
            A("s_memtime s[88:89]")
        if n0 in CHK: fcheck(A, f"CK{n0}", CHK[n0])
        mf = []; wr = [[] for _ in range(20*len(g))]
        for k, x in enumerate(pend): wr[k*18//len(pend)].append(x)
        pend = []
        for nb in range(5):
            for tb in range(4):
                c = acc2(hf, nb, tb)
                for n in g:
                    w = w2reg(STEPS[n][1]) + 4*nb
                    mf.append(f"{MF} v[{c}:{c+3}], {Hr(n,tb)}, a[{w}:{w+3}], " + (f"v[{c}:{c+3}]" if STEPS[n][1] != STEPS[0][1] else "0"))
                if len(g) > 1:
                    for e in range(4):
                        pos = (11*(4*(nb*4+tb)+e))//16 + 6 if len(g) == 2 else 3*(nb*4+tb) + 6 + (3*e)//4
                        it = ("ds", None, f"ds_write_addtid_b32 v{c+e} offset:{(tb*5+nb)*1024+256*e}")
                        (wr[pos] if pos < len(wr) else pend).append(it)
        if n0 == 21: wr[GF] += g_f; wr[56] += fpoll(3)[-1:]
        A.weave(mf, [(first.get(n0, []) + sum((hload(n) for n in ISSUE.get(n0, ())), []), 0, len(mf) - 8), (extra.get(n0, []), 1, len(mf) - 1)], fixed=wr)
    A.its(pend)
    if TS >= 2:
        A(f"s_waitcnt lgkmcnt(0)\nv_writelane_b32 v25, s88, {len(GROUPS)-1}\ns_memtime s[88:89]"); tockdump(A, len(GROUPS), 25, 0x80000)
    stamp(A, 7)
    A("s_waitcnt lgkmcnt(0)\ns_barrier")
    for nb in range(5):
        for w in range(4):
            r = ACCK + (nb*4+w)*4
            A(f"ds_read_b128 v[{r}:{r+3}], v{23+(w>>1)} offset:{(w&1)*20480 + nb*1024}")
    fcheck(A, "C3", 3)
    for nb in range(5):
        r = ACCG + nb*16 + 12
        A.it(("vm", ("xl", nb), f"buffer_load_dwordx4 v[{r}:{r+3}], v{28+(nb>>2)}, s[8:11], s5 offen offset:{(nb&3)*1024} sc1"))
    A("s_waitcnt lgkmcnt(0)")
    for nb in range(5):
        r = ACCK + nb*16; o = ACCG + nb*16 + 8
        for k in (0, 2): A(pk("add", r+k, r+k, r+4+k)); A(pk("add", r+8+k, r+8+k, r+12+k))
        for k in (0, 2): A(pk("add", o+k, o+k, r+k))
        for k in (0, 2): A(pk("add", o+k, o+k, r+8+k))
    for nb in range(5):
        o = ACCG + nb*16 + 8
        A.it(("wvm", [("xl", nb)]))
        for k in (0, 2): A(pk("add", o+k, o+k, o+4+k))
        A.it(("vm", None, f"buffer_store_dwordx4 v[{o}:{o+3}], v13, s[20:23], 0 offen offset:{64*nb} " + OPT.get("of", "").replace("+", " ")))
    if TS:
        A("s_add_u32 s94, s94, 0x10000"); stamp(A, 0)

def gen():
    A = E()
    A("s_cmp_ge_u32 s2, 256\ns_cbranch_scc1 K_end")
    if TS >= 2: A("s_memtime s[4:5]")
    A("s_load_dwordx16 s[36:51], s[0:1], 0\ns_load_dwordx16 s[52:67], s[0:1], 64")
    A("v_and_b32 v1, 63, v0\nv_lshrrev_b32 v2, 6, v0\ns_and_b32 s32, s2, 7\nv_readfirstlane_b32 s3, v2")
    A("s_lshr_b32 s33, s2, 3\ns_lshr_b32 s34, s32, 2\ns_and_b32 s35, s32, 3\ns_and_b32 s71, s3, 1\ns_lshr_b32 s72, s3, 1")
    if int(OPT.get("ipf", 1)):
        A("s_getpc_b64 s[6:7]"); A.label("K_pc")
        A("s_lshl2_add_u32 s76, s33, s3\ns_and_b32 s76, s76, 15\ns_lshl_b32 s76, s76, 13\nv_lshlrev_b32 v2, 7, v1\nv_add_u32 v2, s76, v2\nv_min_u32 v2, K_end-K_pc, v2")
        A("s_cmp_lt_u32 s33, 28\ns_cbranch_scc1 K_nopf\nglobal_load_dword v64, v2, s[6:7]"); A.label("K_nopf")
    A("s_lshl2_add_u32 s95, s2, s3\nv_lshrrev_b32 v62, 5, v1\nv_mul_u32_u24 v62, 1280, v62\nv_and_b32 v63, 31, v1\nv_lshl_add_u32 v62, v63, 3, v62")
    if TS:
        A("s_lshl2_add_u32 s94, s2, s3\ns_lshl_b32 s94, s94, 6\ns_waitcnt lgkmcnt(0)"); stamp(A, 0)
    A("s_lshl_b32 s31, s32, 5\ns_add_u32 s31, s31, s33\ns_lshl2_add_u32 s75, s31, s3\ns_mul_i32 s75, s75, 2560")
    UNEV = int(OPT.get("unev", 0))
    if UNEV: A("s_cmp_eq_u32 s35, 3\ns_cselect_b32 s76, 16, 8\ns_cmp_lt_u32 s33, s76\ns_cbranch_scc1 K_ssm\ns_sub_u32 s33, s33, s76\ns_add_u32 s33, s33, 10")
    else: A("s_cmp_lt_u32 s33, 10\ns_cbranch_scc1 K_ssm")
    A(f"s_mul_i32 s35, s35, {24 if UNEV else 22}\ns_add_u32 s33, s33, s35\ns_sub_u32 s33, s33, 10\ns_and_b32 s68, s33, 7\ns_lshl_b32 s34, s34, 3\ns_add_u32 s68, s68, s34\ns_lshr_b32 s69, s33, 3")
    gen_ffn(A)
    A.L.append(";@SEG SPRO"); A.label("K_ssm")
    A(f"s_mul_i32 s35, s35, {8 if UNEV else 10}\ns_add_u32 s33, s33, s35\ns_and_b32 s68, s33, 3\ns_lshl2_add_u32 s68, s34, s68\ns_lshr_b32 s69, s33, 2")
    gen_ssm(A)
    gen_ph2(A)
    A.label("K_end"); A("s_endpgm")
    return A.L

def hflags(L):
    f = OPT.get("hf")
    if not f: return L
    return [l.replace(" sc1", " " + f.replace("+", " ")) if l.startswith("buffer_store_dwordx4 v[") and re.search(r"s(84|85|86|78) offen", l) else l for l in L]
def nulls(L):
    n = OPT.get("null", "")
    o = []
    for l in L:
        if l.startswith("buffer_load"):
            if ("c" in n and "s[24:27], s77" in l) or ("w" in n and "s[20:23], s77" in l) or ("b" in n and "s[24:27], s97" in l) or ("s" in n and l.startswith("buffer_load_dwordx2") and "s[16:19]" in l):
                o.append("s_mov_b32 s7, 0x7f000000"); l = re.sub(r"\], s\d+ offen", "], s7 offen", l)
        o.append(l)
    return o
def fin(L):
    L = nulls(hflags(L))
    seg = {"E": []}; cur = "E"
    for l in L:
        if l.startswith(";@SEG"): cur = l.split()[1]; seg[cur] = []
        else: seg[cur].append(l)
    def dispatch(name, chains, ret):
        o = []
        for w in range(3): o += [f"s_cmp_eq_u32 s3, {w}", f"s_cbranch_scc1 {chains[w]}"]
        return o + [f"s_branch {chains[3]}"]
    TCH = int(OPT.get("tch", 1))
    order = ["FA", "FB", "EP", "SSM", "PH2"]
    def expand(lines, heads):
        o = []
        for l in lines:
            if not l.startswith(";@TOUCH"): o.append(l); continue
            if not TCH: continue
            n = l.split()[1]
            o.append("s_mov_b64 exec, 0")
            if n in ("FA", "FB"): o += dispatch(n, heads[n], None)
            elif n == "S": o += dispatch(n, heads["SSM"], None)
            else: o += [f"s_mov_b32 s35, {n[1]}"] + dispatch(n, heads["PH2" if n == "P1" else "EP"], None)
            o.append(f"TR_{n}:")
            o.append("s_mov_b64 exec, -1")
        return o
    if TCH: seg["SPRO"] += ["TR_P:", "s_cmp_eq_u32 s35, 0", "s_cbranch_scc1 TR_P0", "s_cmp_eq_u32 s35, 2", "s_cbranch_scc1 TR_P2", "s_branch TR_P1"]
    dummy = {k: ["K_end"]*4 for k in order}
    body = []
    for k in order: body += [(k, l) for l in expand(seg[k], dummy)]
    pro = expand(seg["E"] + seg["FBP"] + seg["SPRO"], dummy)
    sz = sizes(pro + ["K_pad:"] + [l for _, l in body]); npro = sum(1 for l in pro if not (l.endswith(":") or l.startswith((".", ";"))))
    print("prologue bytes", sum(sz[:npro])); sz = sz[npro:]
    stubs = {k: [] for k in order}; pos = {}; addr = 0; page = -1; ii = 0; seen = set()
    for i, (k, l) in enumerate(body):
        if l.endswith(":") or l.startswith((".", ";")): continue
        if TCH and (addr >> 12 != page or k not in seen):
            page = addr >> 12; seen.add(k); name = f"TS_{len(pos)}"; pos[i] = name; stubs[k].append(name); addr += 4
        addr += sz[ii]; ii += 1
    print({k: len(v) for k, v in stubs.items()}, "bytes", addr)
    nxt = {}; heads = {}
    def chains(lst, tails):
        h = []
        for w in range(4):
            c = lst[w::4]
            for a, b in zip(c, c[1:] + [tails[w]]): nxt[a] = b
            h.append(c[0] if c else tails[w])
        return h
    heads["FA"] = chains(stubs["FA"], ["TR_FA"]*4); heads["FB"] = chains(stubs["FB"], ["TR_FB"]*4)
    heads["SSM"] = chains(stubs["SSM"], ["TR_S"]*4); heads["PH2"] = chains(stubs["PH2"], ["TR_P"]*4); heads["EP"] = chains(stubs["EP"], heads["PH2"][::-1])
    body2 = []
    for k in order: body2 += expand(seg[k], heads)
    out = expand(seg["E"] + seg["FBP"] + seg["SPRO"], heads) + [".p2align 12"]
    for i, l in enumerate(body2):
        if i in pos: out += [pos[i] + ":", f"s_cbranch_execz {nxt[pos[i]]}"]
        out.append(l)
    return out
def main():
    ref = open(f"cdna_kernels/{NAME}.s.ref").read().split("\n")
    hdr = [l for l in ref if l.startswith(";") and "@launch" not in l and "Override" not in l and "grid=ceil" not in l]
    out = "\n".join(hdr) + "\n"
    extra = ""
    if "spin" in OPT:
        op, slot, who = (OPT["spin"].split(",") + ["A"])[:3]; slot = int(slot); ks = {"A": range(16), "S": range(5), "F": range(5, 16)}[who]
        off = WS_TS + (slot*8 if slot < 8 else 0x10000)
        out += f"; @launch kernel={NAME}_kernel grid=(256,1,1) block=(256,1,1) lds=163840\n; @launch kernel=spin_kernel grid=(1,1,1) block=(64,1,1) lds=0\n"
        L = ["s_load_dwordx2 s[4:5], s[0:1], 120", "s_waitcnt lgkmcnt(0)", f"s_add_u32 s4, s4, {off}", "s_addc_u32 s5, s5, 0", "v_lshlrev_b32 v1, 6, v0"]
        for k in range(16): L += [f"v_add_u32 v2, {4096*ks[k % len(ks)]}, v1", f"global_load_dword v{4+k}, v2, s[4:5]"]
        L += ["s_waitcnt vmcnt(0)"] + [f"v_{op}_u32 v4, v4, v{4+k}" for k in range(1, 16)] + ["s_nop 1", "v_readlane_b32 s6, v4, 0"]
        for k in range(1, 64): L += [f"v_readlane_b32 s7, v4, {k}", "s_nop 0", f"s_{op}_u32 s6, s6, s7"]
        L += ["s_mov_b32 s12, 0x100000", "SP_l2:", "s_memrealtime s[8:9]", "s_waitcnt lgkmcnt(0)", "s_sub_u32 s10, s8, s6", "s_sub_u32 s12, s12, 1", "s_cbranch_scc1 SP_e", "s_cmp_lt_u32 s10, 8000", "s_cbranch_scc1 SP_l2", "SP_e:", "s_endpgm"]
        extra = kernel_text("spin_kernel", L) + kd("spin_kernel", 32, 0, 32)
    else: out += "; @launch grid=(256,1,1) block=(256,1,1) lds=163840\n"
    out += '.amdgcn_target "amdgcn-amd-amdhsa--gfx950"\n'
    out += kernel_text(NAME + "_kernel", fin(hazard_pass(gen(), "v" in OPT))) + kd(NAME + "_kernel", 256, 256, 102) + extra
    open(sys.argv[1], "w").write(out)
main()
```

```python
import sys
from asmlib import *
NAME = "parallel_sum__ssm_conv_s5__glu_gated_swiglu__prompt"
OPT = dict(wf="19", u="F", ef="7", sb="7", s1="9", fe="3"); OPT.update(a.split("=") for a in sys.argv[2:])
TS = int(OPT.get("ts", 0))
WS_AGG = 0; WS_EPOCH = 0x28000; WS_STAT = 0x30000; WS_FLG = 0x40000; WS_XF = 0x80000; WS_CF = 0xA0000; WS_WF = 0xB0000; WS_CSB = 0xC0000; WS_CS = 0xD0000
HS = int(OPT.get("hs", 4096)); WS_W2P = 0x100000; WS_XCH = 0x500000; WS_H = 0xA00000; WS_END = 0x1A00000; WS_TS = 0x1A00000; CS_HALF = 27648
SZ_X = 2048*640*2; SZ_B = 640*640*2; SZ_W = 640*1728*2; SZ_OUT = 2048*640*4
OOB = 0x7F000000
P = dict(x=36, lre=38, lim=40, bre=42, bim=44, cre=46, cim=48, ldt=50, dsk=52, w1=56, w3=58, w2=60, out=62, dbg=64, ws=66)
MF = "v_mfma_f32_16x16x32_bf16"

class E(Asm):
    def __init__(self): super().__init__(); self.reset()
    def reset(self): self.nv = 0; self.tv = {}; self.dv = 0; self.nd = 0; self.td = {}; self.dd = 0
    def vmw(self, tags):
        last = max(self.tv[t] for t in tags)
        if last <= self.dv: return None
        self.dv = last; return min(63, self.nv - last)
    def dsw(self, tags):
        last = max(self.td[t] for t in tags)
        if last <= self.dd: return None
        n = min(15, self.nd - last); self.dd = self.nd - n; return n
    def it(self, x):
        if isinstance(x, str): self(x)
        elif x[0] == "vm": self.nv += 1; self.tv[x[1]] = self.nv; self(x[2])
        elif x[0] == "ds": self.nd += 1; self.td[x[1]] = self.nd; self(x[2])
        elif x[0] == "wvm":
            n = self.vmw(x[1])
            if n is not None: self(f"s_waitcnt vmcnt({n})")
        elif x[0] == "wds":
            n = self.dsw(x[1])
            if n is not None: self(f"s_waitcnt lgkmcnt({n})")
        elif x[0] == "fn": x[1]()
    def its(self, L):
        for x in L: self.it(x)
    def sync(self, vtags, barrier=True):
        n = self.vmw(vtags) if vtags else None
        self.dd = self.nd
        self((f"s_waitcnt vmcnt({n}) lgkmcnt(0)" if n is not None else "s_waitcnt lgkmcnt(0)"))
        if barrier: self("s_barrier")
    def weave(self, mf, streams, fixed=None, cap=2):
        q = []
        for it, lo, hi in streams:
            if it: q.append([(lo + k*(hi-lo)//len(it), x) for k, x in enumerate(it)])
        def cost(x):
            if isinstance(x, str): return sum(2 if l.startswith(TRANS) else (0 if l.startswith("v_mfma") else 1) for l in x.split("\n"))
            return {"vm": 2, "ds": 1}.get(x[0], 0.5)
        debt = 0
        for i, m in enumerate(mf):
            self(m); room = cap - debt
            for x in (fixed[i] if fixed else []): self.it(x); room -= cost(x)
            left = sum(cost(x) for st in q for _, x in st); gaps = len(mf) - i
            room = max(room, left - cap*(gaps-1))
            if left > cap*gaps: room = max(cap, left/gaps)
            while room > 0:
                c = [st for st in q if st and st[0][0] <= i]
                if not c: break
                if int(OPT.get("wv", 1)) and left <= cap*gaps - 2:
                    isvm = lambda t: not isinstance(t[0][1], str) and t[0][1][0] == "vm"
                    if room >= cap and any(isvm(t) for t in c): c = [t for t in c if isvm(t)]
                    else:
                        c = [t for t in c if not isvm(t)]
                        if not c: break
                st = min(c, key=lambda t: t[0][0]); x = st.pop(0)[1]; self.it(x); room -= cost(x)
            debt = max(0, -room)
        for st in q:
            for _, x in st: self.it(x)
def lines(s): return [l.strip() for l in s.split("\n") if l.strip()]
def glue(L):
    out = []; on = False
    for x in L:
        if isinstance(x, str) and on and x.startswith(("s_cselect", "s_mov_b32")): out[-1] += "\n" + x; continue
        on = isinstance(x, str) and x.startswith(("s_cmp", "s_bitcmp"))
        out.append(x)
    return out
def cap(f):
    B = Asm(); f(B); return glue(B.L)
def chop(L, n):
    q = (len(L) + n - 1)//n
    return [L[k*q:(k+1)*q] for k in range(n)]
FE = int(OPT.get("fe", 2)); FF = int(OPT.get("ff", 0)); SE = int(OPT.get("se", 0))
def srd(A, d, lo, size):
    A(f"s_mov_b32 s{d}, s{lo}\ns_mov_b32 s{d+1}, s{lo+1}\ns_mov_b32 s{d+2}, {hex(size)}\ns_mov_b32 s{d+3}, 0x20000")
def srd_sel(A, d, lo0, lo1, size):
    A(f"s_cselect_b32 s{d}, s{lo0}, s{lo1}\ns_cselect_b32 s{d+1}, s{lo0+1}, s{lo1+1}\ns_mov_b32 s{d+2}, {hex(size)}\ns_mov_b32 s{d+3}, 0x20000")
def stamp(A, slot):
    if not TS: return
    A(f"s_memrealtime s[90:91]\ns_memtime s[88:89]\ns_waitcnt lgkmcnt(0)\ns_add_u32 s92, s94, {WS_TS + slot*8}")
    A.dd = A.nd
    A(f"v_mov_b32 v4, s90\nv_mov_b32 v5, s88\nv_mov_b32 v2, s92"); A.it(("vm", None, "global_store_dwordx2 v2, v[4:5], s[66:67]"))
def tick(A, idx, reg):
    if TS < 2: return
    if idx: A(f"v_writelane_b32 v{reg}, s88, {idx-1}")
    A("s_memtime s[88:89]")
def ptick(A, idx, reg):
    if TS < 2: return
    A(f"s_memtime s[88:89]\ns_waitcnt lgkmcnt(0)\nv_writelane_b32 v{reg}, s88, {idx}")
def tockdump(A, n, reg, area):
    if TS < 2: return
    A(f"s_waitcnt lgkmcnt(0)\nv_writelane_b32 v{reg}, s88, {n}\ns_lshl_b32 s92, s95, 8\ns_add_u32 s92, s92, {WS_TS + area}\nv_lshlrev_b32 v5, 2, v1\nv_add_u32 v5, s92, v5")
    A.it(("vm", None, f"global_store_dword v5, v{reg}, s[66:67]"))
def bc(n, which, hi=False):
    lo = [0]*n; h = [1]*n
    for w in which:
        if isinstance(w, tuple): lo[w[0]] = 1
        else: h[w] = 0
    s = ""
    if any(lo): s += " op_sel:[" + ",".join(map(str, lo)) + "]"
    s += " op_sel_hi:[" + ",".join(map(str, h)) + "]"
    return s
def B(r):
    return f"v[{r & ~1}:{(r & ~1)+1}]", (r & 1)
def pk(op, d, *src, neg=()):
    t = []; w = []
    src = list(src)
    if isinstance(src[1], tuple) and src[1][1] & 1:
        src[0], src[1] = src[1], src[0]; neg = tuple({0: 1, 1: 0}.get(n, n) for n in neg)
    for i, s in enumerate(src):
        if isinstance(s, tuple):
            x, hi = B(s[1]); t.append(x); w.append((i,) if hi else i)
        else:
            assert s % 2 == 0; t.append(f"v[{s}:{s+1}]")
    assert d % 2 == 0
    m = bc(len(src), w)
    if neg:
        nn = ",".join("1" if i in neg else "0" for i in range(len(src))); m += f" neg_lo:[{nn}] neg_hi:[{nn}]"
    return f"v_pk_{op}_f32 v[{d}:{d+1}], " + ", ".join(t) + m

def stats_job(R, scr):
    L0, U, T = R, R+10, R+30
    ld = [f"v_mov_b32 v9, {WS_EPOCH}", ("vm", "st", "global_load_dword v9, v9, s[66:67] sc1")]
    for i in range(5): ld.append(("vm", "st", f"buffer_load_dwordx2 v[{L0+2*i}:{L0+2*i+1}], v{T}, s[16:19], s75 offen offset:{256*i}"))
    if int(OPT.get("pg", 0)):
        ld += lines("s_cmp_eq_u32 s3, 1\ns_cselect_b64 s[4:5], s[46:47], s[60:61]\ns_cselect_b32 s6, 0, 0x200000\ns_cmp_eq_u32 s3, 2\ns_cselect_b64 s[4:5], s[48:49], s[4:5]\ns_cselect_b32 s6, 0, s6\ns_cmp_eq_u32 s3, 3\ns_cselect_b64 s[4:5], s[66:67], s[4:5]\ns_cselect_b32 s6, 0x1800000, s6")
        ld += ["v_lshlrev_b32 v66, 21, v1", "v_min_u32 v66, s6, v66", ("vm", None, "global_load_dword v66, v66, s[4:5]")]
    c = [("wvm", ["st"])]
    for i in range(10): c += [f"v_lshlrev_b32 v{U+2*i}, 16, v{L0+i}", f"v_and_b32 v{U+2*i+1}, 0xffff0000, v{L0+i}"]
    def red(v, t):
        o = [f"v_add_f32 v{v}, v{v}, v{v+1}"]
        for r in (8, 4, 2, 1): o.append(f"v_add_f32_dpp v{v}, v{v}, v{v} row_ror:{r} row_mask:0xf bank_mask:0xf")
        o += [f"v_mov_b32 v{t}, v{v}", f"v_permlane16_swap_b32 v{v}, v{t}", f"v_add_f32 v{v}, v{v}, v{t}", f"v_mul_f32 v{v}, 0x3acccccd, v{v}"]
        return o
    c.append(pk("add", T, U, U+2))
    for i in range(2, 10): c.append(pk("add", T, T, U+2*i))
    c += red(T, T+1)
    for i in range(10): c.append(pk("add", U+2*i, U+2*i, ("b", T), neg=(1,)))
    c.append(pk("mul", T+2, U, U))
    for i in range(1, 10): c.append(pk("fma", T+2, U+2*i, U+2*i, T+2))
    c += red(T+2, T+3)
    c += lines(f"""v_cvt_pk_bf16_f32 v{T}, v{T}, v{T+2}
v_and_b32 v{T+2}, 0xffff0000, v{T}
v_add_f32 v{T+2}, 0x3727c5ac, v{T+2}
v_cvt_pk_bf16_f32 v{T+2}, v{T+2}, v{T+2}
v_and_b32 v{T+2}, 0xffff0000, v{T+2}
v_sqrt_f32 v{T+2}, v{T+2}
v_and_b32 v{T}, 0xffff, v{T}
v_cvt_pk_bf16_f32 v{T+2}, v{T+2}, v{T+2}
v_readfirstlane_b32 s96, v9
v_and_b32 v{T+2}, 0xffff0000, v{T+2}
v_or_b32 v{T}, v{T+2}, v{T}
v_lshrrev_b32 v{T+1}, 5, v0
v_lshlrev_b32 v{T+1}, 2, v{T+1}
v_add_u32 v{T+1}, {scr}, v{T+1}
s_add_u32 s96, s96, 1""")
    c.append(("ds", None, f"ds_write_b32 v{T+1}, v{T}"))
    f = lines(f"v_and_b32 v{T+1}, 7, v1\nv_lshlrev_b32 v{T+1}, 2, v{T+1}\nv_add_u32 v{T+1}, {scr}, v{T+1}") + [("ds", "stf", f"ds_read_b32 v{T}, v{T+1}")]
    f += lines(f"v_lshlrev_b32 v{T+2}, 21, v0\nv_and_b32 v{T+2}, 0xfe000000, v{T+2}\nv_lshl_add_u32 v{T+2}, v1, 3, v{T+2}\ns_lshl_b32 s75, s70, 0\ns_lshl_b32 s75, s60, 7\ns_add_u32 s75, s75, {WS_STAT}".replace("s_lshl_b32 s75, s70, 0\n", "").replace("s60", "s31"))
    f += [("wds", ["stf"]), f"v_mov_b32 v{T+1}, s96", ("vm", None, f"buffer_store_dwordx2 v[{T}:{T+1}], v{T+2}, s[8:11], s75 offen sc1")]
    return ld, c, f
def tagtest(tags, exp="s96"):
    L = [f"v_xor_b32 v4, {exp}, v{tags[0]}"]
    for t in tags[1:]: L += [f"v_xor_b32 v5, {exp}, v{t}", "v_or_b32 v4, v4, v5"]
    return L + ["v_cmp_ne_u32 vcc, 0, v4"]
def gcheck(A, name, loads, tags):
    A(f"s_cbranch_vccz {name}_ok\ns_mov_b32 s7, 0x40000")
    A.label(f"{name}_l")
    for x in loads: A(x if isinstance(x, str) else x[2])
    A("s_waitcnt vmcnt(0)"); A.ext(tagtest(tags))
    A(f"s_sub_u32 s7, s7, 1\ns_cbranch_scc1 {name}_ok\ns_cbranch_vccnz {name}_l")
    A.label(f"{name}_ok")
WO = int(OPT.get("wo", 0)); NH = int(OPT.get("nh", 2))
U = [7, 8, 9, 10, 11, 0, 1, 2, 3, 4, 5, 6]
def w2reg(i):
    p = U.index(i)
    return 112 + 20*p if p < 7 else 20*(p-7)
def w2load(p, base=82):
    i = U[p]
    L = [f"s_add_u32 s79, s{base}, {i*5120}"]
    if i == 2: L += [f"s_cmp_eq_u32 s3, 3\ns_cselect_b32 s79, {hex(OOB)}, s79"]
    for nb in range(5):
        r = w2reg(i) + 4*nb
        L.append(("vm", ("w2", i), f"buffer_load_dwordx4 a[{r}:{r+3}], v{28+(nb>>2)}, s[8:11], s79 offen offset:{(nb&3)*1024} sc1"))
    return L
def w2loads(a, b, base=82): return sum((w2load(p, base) for p in range(a, b)), [])
def spread(A, main, extra, lo=0, hi=None):
    sl = interleave(main, extra, lo, hi) if extra else [[] for _ in main]
    for i, x in enumerate(main):
        A.it(x)
        for y in sl[i]: A.it(y)
def sig_early(A, e, d, t):
    A(f"s_cmp_ge_u32 s{e}, 11\ns_cselect_b32 s{t}, 11, 0\ns_cselect_b32 s{d}, 48, 0\ns_sub_u32 s{t}, s{e}, s{t}\ns_add_u32 s{d}, s{d}, s{t}\ns_mul_i32 s{t}, s{t}, 43\ns_lshr_b32 s{t}, s{t}, 7\ns_mul_i32 s{t}, s{t}, 9\ns_add_u32 s{d}, s{d}, s{t}")
def sig_late(A, l, t):
    A(f"s_lshr_b32 s{t}, s{l}, 2\ns_lshl_b32 s{t}, s{t}, 3\ns_add_u32 s{l}, s{l}, s{t}\ns_add_u32 s{l}, s{l}, 3")
def sig_ssm(A, k, t):
    A(f"s_mul_i32 s{t}, s{k}, 52429\ns_lshr_b32 s{t}, s{t}, 18\ns_mul_i32 s{t}, s{t}, 7\ns_add_u32 s{k}, s{k}, s{t}\ns_add_u32 s{k}, s{k}, 7")
def tlb_touch():
    T = int(OPT.get("tlb", 0))
    if not T: return []
    return lines(f"v_mul_u32_u24 v6, {hex(T*1024)}, v0\nv_min_u32 v7, {SZ_OUT-4}, v6") + [("vm", None, "buffer_load_dword v6, v6, s[8:11], 0 offen sc1"), ("vm", None, "global_load_dword v7, v7, s[62:63]")]
ORD = OPT.get("ord", "A")
def w2warm():
    return lines("s_lshr_b32 s75, s2, 6\ns_mul_i32 s75, s75, 6400\ns_add_u32 s75, s75, s82\ns_add_u32 s75, s75, 10240\nv_min_u32 v6, 49, v1\nv_lshlrev_b32 v6, 7, v6") + [("vm", None, "buffer_load_dword v7, v6, s[8:11], s75 offen sc1")]
def early_setup(A):
    srd(A, 8, P["ws"], WS_END)
    A("v_lshlrev_b32 v28, 4, v1\nv_add_u32 v29, 4096, v28")
    A("v_lshlrev_b32 v8, 20, v1\nv_and_b32 v8, 0xfe000000, v8\nv_lshl_add_u32 v8, v1, 2, v8")
def ph2_setup(A):
    A("s_and_b32 s28, s2, 1\ns_bfe_u32 s32, s2, 0x20001\ns_lshr_b32 s33, s2, 6\ns_lshl2_add_u32 s80, s32, s33\ns_bfe_u32 s81, s2, 0x30003\ns_lshl2_add_u32 s29, s28, s3")
    A(f"s_mul_i32 s32, s29, 12\ns_mul_i32 s33, s81, 96\ns_add_u32 s33, s33, s32\ns_mul_i32 s82, s33, 5120\ns_add_u32 s82, s82, {WS_W2P}")
    A(f"s_lshl1_add_u32 s33, s80, s28\ns_mul_i32 s34, s33, 96\ns_add_u32 s34, s34, s32\ns_mul_i32 s83, s34, {HS}\ns_add_u32 s83, s83, {WS_H}")
    A(f"s_xor_b32 s33, s33, 1\ns_mul_i32 s34, s33, 96\ns_add_u32 s34, s34, s32\ns_mul_i32 s30, s34, {HS}\ns_add_u32 s30, s30, {WS_H}")
    A(f"s_lshl_b32 s93, s80, 14\ns_add_u32 s93, s93, {WS_FLG}")
ACCG = 96; ACCK = 176
UF = OPT.get("u", "S") == "F"
if UF:
    STEPS = [("G",i) for i in range(3)] + [("K",i) for i in range(3)] + [("G",i) for i in range(3, 12)] + [("K",i) for i in range(3, 12)]
    AP = [[212, 216, 220, 224], [228, 232, 236, 240], [244, 248, 0, 4]]; G0, CHK = 0, {3: 1, 7: 2}
else:
    STEPS = [("G",i) for i in U[:5]] + [("K",i) for i in U[:3]] + [("G",i) for i in U[5:]] + [("K",i) for i in U[3:]]
    AP = [[b+4*t for t in range(4)] for b in (112, 128, 144)]; G0, CHK = 2, {5: 0, 8: 1}
POOL = [[f"v{b+4*t}" for t in range(4)] for b in (32, 48, 64, 80)] + [[f"a{r}" for r in q] for q in AP]
HBUF = [0,1,2,3,0,1,2,3,0,1,2,4,5,6,3,0,1,2,4,5,6,3,0,1]
def Hr(n, tb):
    b = POOL[HBUF[n]][tb]; r = int(b[1:]); return f"{b[0]}[{r}:{r+3}]"
FN = {0: 6, 1: 8, 2: 3, 3: 1, 4: 5}
def fbase(g):
    if g == 0: return lines("s_mul_i32 s31, s28, 22\ns_mul_i32 s32, s3, 6\ns_add_u32 s31, s31, s32\ns_min_u32 s31, s31, 38\ns_lshl_b32 s31, s31, 7\ns_add_u32 s31, s31, s93")
    if g == 1: return lines("s_mul_i32 s31, s29, 172\ns_lshr_b32 s31, s31, 7\ns_lshl_b32 s31, s31, 9\ns_add_u32 s31, s31, s93\ns_add_u32 s31, s31, 5632")
    if g == 2: return lines("s_mul_i32 s31, s29, 5\ns_lshr_b32 s31, s31, 1\ns_lshl_b32 s31, s31, 7\ns_add_u32 s31, s31, s93\ns_add_u32 s31, s31, 11264")
    if g == 3: return lines(f"s_xor_b32 s31, s95, 4\ns_lshl_b32 s31, s31, 7\ns_add_u32 s31, s31, {WS_XF}")
    if g == 4: return lines(f"s_lshl_b32 s31, s81, 3\ns_add_u32 s31, s31, s29\ns_mul_i32 s31, s31, 640\ns_add_u32 s31, s31, {WS_CF}")
    return lines(f"s_mul_i32 s31, s29, 7680\ns_add_u32 s31, s31, {WS_WF}\ns_mul_i32 s32, s81, 5\ns_cmp_eq_u32 s3, 3\ns_cselect_b32 s33, 2, 63")
def faddr(g):
    if g < 5: return [f"v_min_u32 v9, {FN[g]-1}, v1", "v_lshlrev_b32 v9, 7, v9"]
    return lines("v_lshrrev_b32 v9, 1, v1\nv_min_u32 v9, 6, v9\nv_cmp_eq_u32 vcc, s33, v9\nv_and_b32 v2, 1, v1\nv_lshl_add_u32 v2, v2, 2, s32\nv_cndmask_b32 v9, v9, 1, vcc\nv_lshrrev_b32 v2, 3, v2\nv_mad_u32_u24 v9, v9, 5, v2\nv_lshlrev_b32 v9, 7, v9")
def fpoll(g): return glue(fbase(g)) + faddr(g) + [("vm", "fl", "buffer_load_dword v9, v9, s[8:11], s31 offen sc1")]
def fcheck(A, name, g, pre=None):
    A.it(("wvm", ["fl"]))
    A(f"v_cmp_ne_u32 vcc, s96, v9\ns_cbranch_vccz {name}_ok\ns_mov_b32 s7, 0x40000")
    if pre: A(pre)
    A.label(f"{name}_l")
    A.ext(fbase(g) + faddr(g))
    A(f"buffer_load_dword v9, v9, s[8:11], s31 offen sc1\ns_waitcnt vmcnt(0)\nv_cmp_ne_u32 vcc, s96, v9\ns_sub_u32 s7, s7, 1\ns_cbranch_scc1 {name}_ok\ns_cbranch_vccnz {name}_l")
    A.label(f"{name}_ok")
def ftest(dst, src):
    return [("wvm", ["fl"]), f"v_cmp_ne_u32 vcc, s96, v9\ns_nop 0\ns_cmp_eq_u64 vcc, 0\ns_cselect_b32 s{dst}, s{src}, {hex(OOB)}"]
def fredo(A, name, g, dst, src, loads, pre=None):
    A(f"s_cmp_eq_u32 s{dst}, s{src}\ns_cbranch_scc1 {name}_done\ns_mov_b32 s7, 0x40000")
    if pre: A(pre)
    A.label(f"{name}_l")
    A.ext(fbase(g) + faddr(g))
    A(f"buffer_load_dword v9, v9, s[8:11], s31 offen sc1\ns_waitcnt vmcnt(0)\nv_cmp_ne_u32 vcc, s96, v9\ns_sub_u32 s7, s7, 1\ns_cbranch_scc1 {name}_ok\ns_cbranch_vccnz {name}_l")
    A.label(f"{name}_ok")
    for x in loads: A(x if isinstance(x, str) else x[2])
    if name == "FR": A("s_waitcnt vmcnt(0)")
    A.label(f"{name}_done")
def hload(n, base=None):
    hf, i = STEPS[n]
    L = [f"s_add_u32 s77, s{base or (30 if hf == 'G' else 83)}, {i*HS}"]
    if i == 2: L += [f"s_cmp_eq_u32 s3, 3\ns_cselect_b32 s77, {hex(OOB)}, s77"]
    for tb in range(4): L.append(("vm", ("h", n), f"buffer_load_dwordx4 {Hr(n,tb)}, v28, s[8:11], s77 offen offset:{tb*1024} sc1"))
    return L
XS = 81920
def ph2_addr(A):
    srd(A, 24, P["dsk"], 1280); srd(A, 20, P["out"], SZ_OUT)
    A("s_lshl1_add_u32 s32, s80, s28\ns_lshl_b32 s32, s32, 6\ns_lshl_b32 s33, s3, 4\ns_add_u32 s32, s32, s33\nv_and_b32 v2, 12, v1\nv_lshrrev_b32 v3, 4, v1\nv_add_u32 v2, v2, v3\nv_mul_u32_u24 v12, 160, v2\nv_add_u32 v2, s32, v2")
    A("v_lshrrev_b32 v15, 3, v2\nv_lshlrev_b32 v15, 7, v15\nv_and_b32 v3, 7, v2\nv_lshl_add_u32 v15, v3, 3, v15\nv_mul_u32_u24 v2, 2560, v2")
    A("s_mul_i32 s98, s81, 160\ns_mul_i32 s97, s32, 1280\ns_add_u32 s97, s97, s98\ns_lshl_b32 s33, s98, 1\nv_and_b32 v3, 3, v1\nv_lshl_add_u32 v13, v3, 4, v2\nv_add_u32 v13, s33, v13")
    A(f"s_mul_i32 s101, s3, 20480\ns_add_u32 s100, s101, {XS}\nv_lshl_add_u32 v14, v3, 3, s100\nv_add_u32 v12, v12, v14\ns_movk_i32 s33, 6554")
    for i in range(3):
        A(f"v_add_u32 v2, {64*i}, v1\nv_min_u32 v2, 159, v2\nv_mul_u32_u24 v3, s33, v2\nv_lshrrev_b32 v3, 16, v3\nv_mul_u32_u24 v3, 1120, v3\nv_lshl_add_u32 v{16+i}, v2, 4, v3")
    A("v_min_u32 v19, 144, v28\ns_mul_i32 s75, s3, 5120\nv_add_u32 v23, s75, v28\nv_add_u32 v24, 40960, v23")
    A(f"s_mul_i32 s4, s95, 5120\ns_add_u32 s4, s4, {WS_XCH}\ns_xor_b32 s5, s95, 4\ns_mul_i32 s5, s5, 5120\ns_add_u32 s5, s5, {WS_XCH}\ns_lshl_b32 s6, s95, 7\ns_add_u32 s6, s6, {WS_XF}")
FST = [f"s_mov_b32 s75, {WS_STAT}", ("vm", "fin", "buffer_load_dwordx2 v[10:11], v15, s[8:11], s75 offen sc1")]
def fin_loads():
    L = []
    for i in range(3): L += [f"s_add_u32 m0, s100, {1024*i}", ("vm", "fin", f"buffer_load_dwordx4 v{16+i}, s[16:19], s97 offen lds")]
    return L + ["s_add_u32 m0, s100, 3072", ("vm", "fin", "buffer_load_dwordx4 v19, s[24:27], s98 offen lds")] + FST
PARK = [f"a{r}" for r in list(range(100, 112)) + list(range(252, 256))] + ["v6", "v7", "v26", "v27"]
def fin_base(A):
    A.ext(tagtest([11])); gcheck(A, "FG", FST, [11])
    for nb in range(5):
        r = ACCG + 8*nb
        A(f"ds_read_b64 v[{r}:{r+1}], v12 offset:{32*nb}\nds_read_b64 v[{r+2}:{r+3}], v14 offset:{3072+32*nb}")
    A("v_and_b32 v16, 0xffff0000, v10\nv_rcp_f32 v16, v16\nv_lshlrev_b32 v10, 16, v10\ns_waitcnt lgkmcnt(0)")
    for k in range(10):
        r = ACCG + 8*(k >> 1); x = r + (k & 1); d = x + 2; o = r + 4 + 2*(k & 1)
        A(f"v_lshlrev_b32 v{o}, 16, v{x}\nv_and_b32 v{o+1}, 0xffff0000, v{x}\nv_lshlrev_b32 v18, 16, v{d}\nv_and_b32 v19, 0xffff0000, v{d}")
        A.ext([pk("add", 20, o, ("b", 10), neg=(1,)), pk("mul", 18, 18, ("b", 16)), pk("fma", o, 20, 18, o)])
        for e in range(2):
            p = PARK[2*k+e]; A(f"v_accvgpr_write_b32 {p}, v{o+e}" if p[0] == "a" else f"v_mov_b32 {p}, v{o+e}")
GROUPS = [[n] for n in range(13)] + [[13, 14]] + [[n] for n in range(15, 21)] + [[21, 22, 23]]
ISSUE = {0: (3,), 1: (4,), 2: (5,), 3: (6,), 4: (7,), 5: (8,), 6: (9,), 7: (10,), 8: (11, 12), 9: (13,), 10: (14,), 11: (15,), 12: (16,), 13: (17, 18, 19), 15: (20, 21), 16: (22,), 17: (23,)}
for k_, ns_ in ISSUE.items():
    for n_ in ns_:
        prev_ = [m for m in range(n_) if HBUF[m] == HBUF[n_]]
        assert (not prev_ or prev_[-1] < k_) and (HBUF[n_] < 4 or k_ > 7)
def acc2(hf, nb, tb): return (ACCG if hf == "G" else ACCK) + (tb*5+nb)*4

W_SLOT = 20480; NWS = 4; X_BASE = NWS*W_SLOT; X_SLOT = 16384; F_SCR = X_BASE + 3*X_SLOT
def gen_ffn(A):
    import copy
    A("s_mul_i32 s70, s69, 160\ns_min_u32 s70, s70, 1568")
    A("s_lshl_b32 s32, s68, 7\ns_lshl_b32 s33, s3, 5\ns_add_u32 s32, s32, s33")
    A("v_lshrrev_b32 v2, 3, v1\nv_add_u32 v2, s32, v2\nv_mul_u32_u24 v2, 1280, v2\nv_lshrrev_b32 v3, 4, v1\nv_xor_b32 v3, v3, v1\nv_and_b32 v3, 7, v3\nv_lshlrev_b32 v3, 4, v3")
    A(f"v_add_u32 v15, v2, v3\nv_xor_b32 v3, 64, v3\nv_add_u32 v16, v2, v3\nv_add_u32 v16, {8*1280-1024}, v16\nv_add_u32 v17, {16*1280}, v15\nv_add_u32 v18, {16*1280}, v16")
    A(f"s_mul_i32 s73, s3, 5120\ns_lshl_b32 s74, s3, 12\ns_add_u32 s74, s74, {X_BASE}")
    A("s_mul_i32 s32, s71, 320\ns_lshl_b32 s33, s70, 1\ns_movk_i32 s34, 3277")
    for i in range(5):
        A(f"v_add_u32 v2, s32, v1\nv_add_u32 v2, {64*i}, v2\nv_mul_u32_u24 v3, s34, v2\nv_lshrrev_b32 v3, 16, v3")
        A("v_mul_u32_u24 v4, 20, v3\nv_sub_u32 v4, v2, v4\nv_lshrrev_b32 v5, 2, v3\nv_and_b32 v5, 2, v5\nv_xor_b32 v4, v4, v5")
        A(f"v_mul_u32_u24 v3, 3456, v3\nv_lshl_add_u32 v3, v4, 4, v3\nv_add_u32 v3, s33, v3\nv_subrev_u32 v{10+i}, {1024*(i&3)}, v3")
    def dmaW(s):
        L = [f"s_add_u32 m0, s73, {(s%NWS)*W_SLOT}", f"s_mov_b32 s77, {s*32*3456}"]
        for i in range(5):
            if i == 4: L.append(f"s_add_u32 m0, s73, {(s%NWS)*W_SLOT+4096}")
            L.append(("vm", ("W", s), f"buffer_load_dwordx4 v{10+i}, s[12:15], s77 offen offset:{1024*(i&3)} lds"))
        return L
    def dmaX(u, hs=(0, 1)):
        L = []
        for h in hs:
            L += [f"s_add_u32 m0, s74, {(u%3)*X_SLOT+2048*h}", f"s_movk_i32 s78, {u*128}"]
            for i in range(2): L.append(("vm", ("X", u), f"buffer_load_dwordx4 v{15+2*h+i}, s[16:19], s78 offen offset:{1024*i} lds"))
        return L
    st_ld, st_c, st_f = stats_job(32, X_BASE + 2*X_SLOT)
    def lds_setup(A):
        early_setup(A)
        A("v_lshrrev_b32 v2, 4, v1\nv_bfe_u32 v3, v1, 2, 2\nv_lshl_add_u32 v3, v2, 3, v3\nv_mul_u32_u24 v3, 320, v3")
        A("v_and_b32 v4, 3, v1\nv_lshl_add_u32 v3, v4, 3, v3\nv_and_b32 v4, 1, v2\nv_lshlrev_b32 v4, 5, v4")
        A("s_mul_i32 s75, s72, 192\nv_add_u32 v5, s75, v3\nv_add_u32 v20, v5, v4\nv_sub_u32 v21, v5, v4")
        A("s_lshl_b32 s75, s72, 5\ns_add_u32 s75, s75, 128\nv_xor_b32 v5, s75, v4\nv_add_u32 v22, v3, v5")
        for i in range(3): A(f"v_add_u32 v{23+i}, {3*W_SLOT}, v{20+i}")
        A("v_and_b32 v3, 15, v1\nv_lshrrev_b32 v4, 1, v3\nv_xor_b32 v4, v4, v2\nv_lshlrev_b32 v4, 4, v4\nv_lshl_add_u32 v3, v3, 7, v4")
        A(f"s_lshl_b32 s75, s71, 13\ns_add_u32 s75, s75, {X_BASE}\nv_add_u32 v26, s75, v3\nv_xor_b32 v27, 64, v26")
    PEND = []
    def start(role, pre, post, side):
        pre(A)
        A("s_waitcnt lgkmcnt(0)")
        srd(A, 16, P["x"], SZ_X); A.its(st_ld); post(A)
        A("s_cmp_eq_u32 s72, 0"); srd_sel(A, 12, P["w1"], P["w3"], SZ_W)
        main = dmaX(0) + dmaW(0)
        first, second = (side, main) if (ORD == "B" and side) else (main, side)
        A.its(first)
        A.L.append(f";@TOUCH {role}")
        A(f"s_branch {role}_a"); A.L.append(f";@SEG {role}"); A.label(f"{role}_a")
        lds_setup(A)
        A.its(st_c[:1])
        if ORD == "B": spread(A, st_c[1:], second + dmaW(1), 0, len(st_c) - 10)
        elif ORD == "A": spread(A, st_c[1:], dmaW(1) + second, 0, len(st_c) - 10)
        else: spread(A, st_c[1:], dmaW(1) + dmaX(1) + dmaW(2), 0, len(st_c) - 4); PEND[:] = second
    def hs(A):
        A("s_lshl1_add_u32 s32, s69, s72"); sig_early(A, 32, 84, 33)
        A("s_mul_i32 s33, s69, 3\ns_cmp_eq_u32 s69, 10\ns_cselect_b32 s34, 1, 0\ns_sub_u32 s33, s33, s34\ns_lshl1_add_u32 s85, s72, s33\ns_add_u32 s86, s33, 1")
        sig_late(A, 85, 34); sig_late(A, 86, 34)
        A(f"s_lshl1_add_u32 s33, s68, s71\ns_mul_i32 s34, s33, 96")
        for r in (84, 85, 86): A(f"s_add_u32 s{r}, s{r}, s34\ns_mul_i32 s{r}, s{r}, {HS}\ns_add_u32 s{r}, s{r}, {WS_H}")
        A(f"s_cmp_eq_u32 s32, 19\ns_cselect_b32 s85, {hex(OOB)}, s85")
        A(f"s_lshl1_add_u32 s87, s32, s71\ns_lshl_b32 s33, s68, 7\ns_add_u32 s87, s87, s33\ns_lshl_b32 s87, s87, 7\ns_add_u32 s87, s87, {WS_FLG}")
    late_setup = [cap(ph2_setup), []] + chop(cap(hs), 2)
    ep_ld = lines(f"s_mul_i32 s75, s72, 1728\ns_mul_i32 s76, s71, 80\ns_add_u32 s75, s75, s76\ns_add_u32 s75, s75, s70\ns_lshl_b32 s75, s75, 3\ns_add_u32 s75, s75, {WS_CS}\ns_add_u32 s76, s75, {CS_HALF}\nv_min_u32 v2, 624, v28")
    ep_ld += [("vm", "ep", "buffer_load_dwordx4 v[56:59], v2, s[8:11], s75 offen sc1"), ("vm", "ep", "buffer_load_dwordx4 v[60:63], v2, s[8:11], s76 offen sc1")]
    ep_ld += lines(f"v_and_b32 v2, 7, v1\nv_lshlrev_b32 v2, 3, v2\nv_and_b32 v3, 8, v1\nv_lshl_add_u32 v2, v3, 4, v2\ns_lshl1_add_u32 s75, s68, s71\ns_lshl_b32 s75, s75, 10\ns_add_u32 s75, s75, {WS_STAT}")
    for tb in range(4): ep_ld.append(("vm", "ep", f"buffer_load_dwordx2 v[{64+2*tb}:{65+2*tb}], v2, s[8:11], s75 offen offset:{256*tb} sc1"))
    ep_tags = [57, 59, 61, 63, 65, 67, 69, 71]
    ep_t = [("wvm", ["ep"])] + tagtest(ep_tags)
    ep_w = lines(f"v_add_f32 v56, v56, v60\nv_add_f32 v57, v58, v62\ns_lshl_b32 s75, s72, 10\ns_mul_i32 s76, s71, 320\ns_add_u32 s75, s75, s76\ns_add_u32 s75, s75, {F_SCR}\nv_min_u32 v2, 39, v1\nv_lshl_add_u32 v2, v2, 3, s75")
    ep_w += [("ds", None, "ds_write_b64 v2, v[56:57]")]
    ep_r = lines(f"v_and_b32 v2, 48, v1\ns_mul_i32 s75, s72, 384\ns_add_u32 s75, s75, {F_SCR}\nv_add_u32 v3, s75, v2\ns_lshl_b32 s75, s72, 6\ns_add_u32 s75, s75, {F_SCR+256}\nv_add_u32 v2, s75, v2")
    for j in range(10):
        pr, m = j >> 1, j & 1
        ep_r.append(("ds", None, f"ds_read_b128 v[{56+4*j}:{59+4*j}], v{2 if pr == 4 else 3} offset:{1024*m + (0 if pr == 4 else 64*pr)}"))
    ep_c = []
    for tb in range(4):
        ep_c += lines(f"v_lshlrev_b32 v{44+tb}, 16, v{64+2*tb}\nv_and_b32 v{52+tb}, 0xffff0000, v{64+2*tb}\nv_rcp_f32 v{48+tb}, v{52+tb}\nv_mul_f32 v{52+tb}, v{52+tb}, v{52+tb}\nv_mul_f32 v{48+tb}, 0xbfb8aa3b, v{48+tb}")
    ep_a = lines("v_lshrrev_b32 v2, 4, v1\nv_and_b32 v3, 1, v2\nv_lshlrev_b32 v3, 10, v3\nv_lshrrev_b32 v2, 1, v2\nv_lshl_add_u32 v3, v2, 8, v3")
    ep_a += lines("v_and_b32 v2, 15, v1\nv_lshl_add_u32 v3, v2, 4, v3\ns_lshl_b32 s75, s72, 9\nv_add_u32 v30, s75, v3\nv_mov_b32 v31, s96\ns_add_u32 s99, s87, 5632")
    ACC = 96
    def acc(j, tb): return ACC + (j*4+tb)*4
    def Wr(par, j): return par*56 + j*4
    def Xr(par, tb): return par*56 + 40 + tb*4
    def reads(s):
        par = s & 1; L = []; sl = s % NWS; hi = 3 if sl >= 3 else 0; so = (sl - hi)*W_SLOT
        for tb in range(4): L.append(("ds", None, f"ds_read_b128 a[{Xr(par,tb)}:{Xr(par,tb)+3}], v{26+(s&1)} offset:{((s>>1)%3)*X_SLOT + tb*2048}"))
        for j in range(10):
            pr, m = j >> 1, j & 1; ar = 22 if pr == 4 else 20 + (pr & 1); co = 0 if pr == 4 else pr*32
            for hh in range(2): L.append(("ds", None, f"ds_read_b64_tr_b16 a[{Wr(par,j)+2*hh}:{Wr(par,j)+2*hh+1}], v{ar+hi} offset:{so + m*10240 + hh*1280 + co}"))
        return L
    NL = int(OPT.get("nl", 7)); L0 = int(OPT.get("l0", 0)); wl = [[]]*L0 + chop(w2loads(0, NL), 9-L0)
    def loop(role, mem, side, xt={}):
        M = {0: dmaX(1) + dmaW(2), 1: dmaW(3) + dmaX(2), 2: dmaW(4) + dmaW(5), 3: dmaX(3) + dmaW(6), 4: dmaW(7) + dmaW(8), 5: dmaX(4) + dmaW(9), 6: dmaW(10) + dmaX(5)}
        for s in range(7, 16): M[s] = dmaW(s+4) + (dmaX((s+5) >> 1, ((s+1) & 1,)) if s < 15 else [])
        if ORD == "C": M[0] = PEND + dmaW(3); M[1] = dmaX(2) + dmaW(4); M[2] = dmaW(5)
        if "flat" in OPT:
            M = {0: dmaX(1) + dmaW(2), 1: dmaW(3) + dmaX(2), 2: dmaW(4) + dmaW(5)}
            for s in range(3, 17): M[s] = dmaW(s+3)
            M[3] += dmaX(3)
            for u in range(4, 10):
                M[2*u-4] += dmaX(u, (0,)); M[2*u-3] += dmaX(u, (1,))
        for s, L in mem.items(): M[s] = M[s] + ([x if isinstance(x, str) else (x[0], x[1], x[2].replace("s77 offen", "s76 offen")) for x in L] if "noside" in OPT else L)
        M[15] += wl[0]
        for s in range(16, 20): M[s] = M.get(s, []) + wl[2*s-31] + wl[2*s-30]
        S = dict(side)
        for k, L in {5: late_setup[0], 6: late_setup[2], 8: late_setup[3], 11: ep_a, 12: fpoll(4) + ep_ld[10:], 13: ep_ld[:10], 15: fpoll(5), 16: ep_t, 17: ep_w + ep_c, 18: ep_r}.items():
            S[k] = S.get(k, []) + L
        if "wf" in OPT: S[int(OPT["wf"])] = S.get(int(OPT["wf"]), []) + w2warm()
        A.L.append(f";@TOUCH P{0 if role == 'FA' else 2}")
        A.sync([("X", 0), ("W", 0)]); stamp(A, 1)
        A.its(reads(0))
        for s in range(20):
            tags = ([("W", s+1), ("X", (s+1) >> 1)] if s < 19 else []) + xt.get(s, [])
            if s == 15: fcheck(A, role + "C", 4)
            if s == 17: gcheck(A, role + "G", ep_ld, ep_tags); fcheck(A, role + "P", 5)
            A.sync(tags)
            tick(A, s, 19)
            par = s & 1; mf = []
            for j in range(10):
                for tb in range(4):
                    c = acc(j, tb); mf.append(f"{MF} v[{c}:{c+3}], a[{Wr(par,j)}:{Wr(par,j)+3}], a[{Xr(par,tb)}:{Xr(par,tb)+3}], " + (f"v[{c}:{c+3}]" if s else "0"))
            A.weave(mf, [(reads(s+1) if s < 19 else [], 0, 30), (M.get(s, []), 0, 39), (S.get(s, []), 1, 39)])
    A("s_mul_i32 s34, s69, 5\ns_lshr_b32 s34, s34, 1\ns_and_b32 s33, s68, 7\ns_lshr_b32 s35, s68, 3\ns_lshl1_add_u32 s32, s33, s35\ns_and_b32 s76, s69, 1\ns_lshl2_add_u32 s76, s76, 8\ns_cmp_ge_u32 s32, s76\ns_cbranch_scc1 FB_p")
    snap = (A.nv, dict(A.tv), A.dv, A.nd, dict(A.td), A.dd)
    def fa0(A):
        A(f"s_lshl2_add_u32 s32, s34, s32\ns_lshr_b32 s76, s33, 1\ns_add_u32 s76, s76, s34\ns_and_b32 s33, s33, 1\ns_mul_i32 s33, s33, 27\ns_add_u32 s33, s33, s76\ns_mov_b32 s34, s35")
        A(f"s_lshl_b32 s76, s76, 7\ns_lshl2_add_u32 s97, s34, s3\ns_mul_i32 s97, s97, {8*3456}\ns_add_u32 s97, s97, s76")
        A("v_lshrrev_b32 v2, 3, v1\nv_mul_u32_u24 v2, 3456, v2\nv_and_b32 v3, 7, v1\nv_lshl_add_u32 v30, v3, 4, v2")
    def fa1(A):
        A("s_cmp_lt_u32 s33, 27"); srd_sel(A, 24, P["w1"], P["w3"], SZ_W)
    def fa2(A):
        A(f"s_lshl_b32 s98, s33, 9\ns_mul_i32 s34, s34, {CS_HALF}\ns_add_u32 s98, s98, s34\ns_add_u32 s98, s98, {WS_CS}\ns_cmp_eq_u32 s3, 0\ns_cselect_b32 s98, s98, {hex(OOB)}")
        A("v_and_b32 v2, 15, v1\nv_and_b32 v3, 1, v1\nv_lshlrev_b32 v3, 4, v3\nv_mov_b32 v4, 0x3f80\nv_lshlrev_b32 v3, v3, v4\nv_lshrrev_b32 v2, 1, v2")
        for r in range(4): A(f"v_cmp_eq_u32 vcc, {r}, v2\nv_cndmask_b32 v{72+r}, 0, v3, vcc")
        A(f"v_and_b32 v2, 7, v1\nv_lshlrev_b32 v2, 5, v2\nv_and_b32 v3, 16, v1\nv_add_u32 v2, v2, v3\ns_lshl_b32 s75, s3, 8\ns_add_u32 s75, s75, {F_SCR}\nv_add_u32 v2, s75, v2\nv_and_b32 v3, 32, v1\nv_lshl_add_u32 v80, v3, 5, v2")
        A(f"v_lshlrev_b32 v82, 2, v1\nv_add_u32 v81, {F_SCR}, v82\nv_lshlrev_b32 v82, 3, v1")
    cs_ld = []
    for i in range(10): cs_ld += [f"s_add_u32 s77, s97, {i*64*3456}", ("vm", "csl", f"buffer_load_dwordx4 a[{112+4*i}:{115+4*i}], v30, s[24:27], s77 offen")]
    cs_c = [("wvm", ["csl"])]
    for i in range(10): cs_c.append(f"{MF} v[76:79], v[72:75], a[{112+4*i}:{115+4*i}], " + ("v[76:79]" if i else "0"))
    cs_c += ["s_nop 0"]*2
    for e in range(4): cs_c.append(f"v_add_f32_dpp v{76+e}, v{76+e}, v{76+e} row_ror:8 row_mask:0xf bank_mask:0xf")
    cs_c.append(("ds", None, "ds_write_b128 v80, v[76:79]"))
    cs_f = [("ds", "csf", f"ds_read_b32 v{72+w}, v81 offset:{256*w}") for w in range(4)]
    cs_f += [("wds", ["csf"]), "v_add_f32 v72, v72, v73", "v_add_f32 v74, v74, v75", "v_mov_b32 v73, s96", "v_add_f32 v72, v72, v74", ("vm", None, "buffer_store_dwordx2 v[72:73], v82, s[8:11], s98 offen sc1")]
    CB = F_SCR + 4096
    def fc1(A):
        A("s_cmp_eq_u32 s72, 0"); srd_sel(A, 20, P["cre"], P["cim"], SZ_B)
        A(f"s_and_b32 s4, s32, 7\ns_lshr_b32 s5, s32, 3\ns_lshl1_add_u32 s99, s4, s71\ns_mul_i32 s99, s99, 51200\ns_lshl_b32 s75, s5, 7\ns_add_u32 s99, s99, s75\ns_cmp_lt_u32 s32, 80\ns_cselect_b32 s99, s99, {hex(OOB)}")
        A(f"s_add_u32 s101, s73, {CB}\nv_lshrrev_b32 v2, 3, v1\nv_mul_u32_u24 v2, 1280, v2\nv_lshrrev_b32 v3, 4, v1\nv_xor_b32 v3, v3, v1\nv_and_b32 v3, 7, v3\nv_lshl_add_u32 v2, v3, 4, v2\ns_lshl_b32 s75, s71, 6\nv_xor_b32 v84, s75, v2\nv_xor_b32 v85, 64, v84")
    def fc2(A):
        A(f"s_lshl2_add_u32 s5, s5, s3\ns_mul_i32 s6, s4, 40\ns_add_u32 s6, s6, s5\ns_lshl_b32 s6, s6, 7\ns_add_u32 s6, s6, {WS_CF}")
        sig_ssm(A, 5, 75)
        A(f"s_mul_i32 s4, s4, 96\ns_add_u32 s5, s5, s4\ns_mul_i32 s100, s5, 5120\ns_add_u32 s100, s100, {WS_W2P}\ns_cmp_lt_u32 s32, 80\ns_cselect_b32 s100, s100, {hex(OOB)}\ns_cselect_b32 s6, s6, {hex(OOB)}")
        A(f"v_and_b32 v2, 15, v1\nv_bfe_u32 v3, v1, 4, 1\ns_lshl_b32 s75, s3, 1\nv_add_u32 v3, s75, v3\nv_lshrrev_b32 v4, 1, v2\nv_xor_b32 v3, v3, v4\nv_lshlrev_b32 v3, 4, v3\nv_lshl_add_u32 v3, v2, 7, v3")
        A(f"v_lshrrev_b32 v4, 5, v1\nv_mul_u32_u24 v4, 10240, v4\nv_add_u32 v3, v3, v4\nv_add_u32 v86, {CB}, v3")
    c_ld = []
    for i in range(5): c_ld += [f"s_add_u32 m0, s101, {1024*i}", f"s_add_u32 s77, s99, {10240*i}", ("vm", "cl", f"buffer_load_dwordx4 v{84+(i&1)}, s[20:23], s77 offen lds")]
    c_r = [("ds", None, f"ds_read_b128 a[{152+4*nb}:{155+4*nb}], v86 offset:{2048*nb}") for nb in range(5)]
    c_s = [("vm", "cs", f"buffer_store_dwordx4 a[{152+4*nb}:{155+4*nb}], v{28+(nb>>2)}, s[8:11], s100 offen offset:{(nb&3)*1024} sc1") for nb in range(5)]
    c_f = ["v_mov_b32 v3, s96", ("wvm", ["cs"]), ("vm", None, "buffer_store_dword v3, v8, s[8:11], s6 offen sc1")]
    CD = int(OPT.get("cd", 0))
    start("FA", fa0, fa1, cs_ld)
    fc1(A)
    loop("FA", {CD: c_ld, CD+2: c_r, CD+3: c_s[:3], CD+4: c_s[3:]}, {0: st_f + cap(fc2), 1: cap(fa2), CD+7: c_f, 2: cs_c[:11], 9: cs_c[13:] + ["s_nop 0"]*6, 10: cs_f}, {CD+2: ["cl"]})
    A("s_branch FFN_EP")
    A.nv, A.tv, A.dv, A.nd, A.td, A.dd = snap
    A.L.append(";@SEG FBP"); A.label("FB_p")
    SO = (4, 5, 6, 97, 24, 25, 26, 27)
    def fb1(A):
        A("s_sub_u32 s32, s32, s76\ns_lshl_b32 s35, s69, 2\ns_sub_u32 s35, s35, s34\ns_lshl2_add_u32 s34, s35, s32\ns_lshl2_add_u32 s32, s34, s3\ns_mul_i32 s34, s32, 52429\ns_lshr_b32 s34, s34, 18\ns_mul_i32 s33, s34, 5\ns_sub_u32 s33, s32, s33")
        A(f"s_mul_i32 s99, s34, 40960\ns_lshl_b32 s35, s33, 8\ns_add_u32 s99, s99, s35\ns_lshl_b32 s101, s3, 13\ns_add_u32 s101, s101, {F_SCR}")
        A(f"v_lshrrev_b32 v2, 4, v1\nv_mul_u32_u24 v30, 1280, v2\nv_and_b32 v3, 15, v1\nv_lshlrev_b32 v2, 1, v2\nv_xor_b32 v3, v3, v2\nv_lshl_add_u32 v30, v3, 4, v30\nv_xor_b32 v31, 128, v30")
    def fb2(A):
        A("s_mul_i32 s35, s34, 52429\ns_lshr_b32 s35, s35, 18\ns_mul_i32 s75, s35, 5\ns_sub_u32 s75, s34, s75\ns_sub_u32 s76, s34, 49\ns_cmp_ge_u32 s34, 49\ns_cselect_b32 s35, 10, s35\ns_cselect_b32 s75, s76, s75")
        A("s_cmp_eq_u32 s75, 3\ns_cselect_b32 s76, 1, 0\ns_lshl1_add_u32 s76, s35, s76"); sig_early(A, 76, 100, 79)
        A("s_mul_i32 s76, s35, 3\ns_lshr_b32 s79, s75, 1\ns_add_u32 s76, s76, s79\ns_cmp_eq_u32 s35, 10\ns_cselect_b32 s79, 1, 0\ns_sub_u32 s76, s76, s79"); sig_late(A, 76, 79)
        A("s_lshr_b32 s79, 9, s75\ns_bitcmp1_b32 s79, 0\ns_cselect_b32 s100, s100, s76")
        A(f"s_mul_i32 s98, s100, 5\ns_add_u32 s98, s98, s33\ns_lshl_b32 s98, s98, 7\ns_add_u32 s98, s98, {WS_WF}")
        A(f"s_mul_i32 s100, s100, 5120\ns_lshl_b32 s79, s33, 13\ns_add_u32 s100, s100, s79\ns_add_u32 s100, s100, {WS_W2P}")
        A(f"s_cmp_lt_u32 s32, 270\ns_cselect_b32 s100, s100, {hex(OOB)}\ns_cselect_b32 s98, s98, {hex(OOB)}")
        A("s_cmp_eq_u32 s75, 2\ns_cselect_b32 s75, 8, 4\ns_cselect_b32 s76, 1, 4\ns_lshl_b32 s76, s76, 10")
        A(f"v_lshrrev_b32 v2, 4, v1\nv_mul_u32_u24 v2, s75, v2\nv_bfe_u32 v3, v1, 2, 2\nv_add_u32 v2, v2, v3\nv_lshlrev_b32 v2, 8, v2\nv_and_b32 v3, 3, v1\nv_lshl_add_u32 v2, v3, 3, v2")
        for r in (80, 81):
            A((f"v_mov_b32 v{r}, v2" if r == 80 else f"v_add_u32 v{r}, s76, v2") + f"\nv_lshrrev_b32 v3, 1, v{r}\nv_and_b32 v3, 0x400, v3\nv_xor_b32 v3, v3, v{r}\nv_bfe_u32 v3, v3, 8, 3\nv_lshl_add_u32 v{r}, v3, 5, v{r}\nv_add_u32 v{r}, s101, v{r}")
        A(f"s_mul_i32 s33, s33, {8*52429}")
        for k in range(8): A(f"s_add_u32 s79, s33, {k*52429}\ns_lshr_b32 s79, s79, 18\ns_mul_i32 s79, s79, 486400\ns_add_u32 s{SO[k]}, s100, s79")
    w2_ld = []
    for i in range(8): w2_ld += [f"s_add_u32 m0, s101, {1024*i}", f"s_add_u32 s77, s99, {5120*i}", ("vm", "w2l", f"buffer_load_dwordx4 v{30 + ((i ^ (i >> 1)) & 1)}, s[20:23], s77 offen lds")]
    w2_c = [("wvm", ["w2l"])]
    for k in range(8):
        for hh in range(2): w2_c += [f"v_xor_b32 v{82+hh}, {32*k}, v{80+hh}", ("ds", "w2t", f"ds_read_b64_tr_b16 a[{152+4*k+2*hh}:{153+4*k+2*hh}], v{82+hh}")]
    w2_s = [("vm", "side", f"buffer_store_dwordx4 a[{152+4*k}:{155+4*k}], v{28+(k>>2)}, s[8:11], s{SO[k]} offen offset:{(k&3)*1024} sc1") for k in range(8)]
    f2 = chop(cap(fb2), 3)
    BD = int(OPT.get("bd", 0)); BS = int(OPT.get("bs", BD+4)); BN = int(OPT.get("bn", 3))
    start("FB", fb1, lambda A: srd(A, 20, P["w2"], SZ_W), w2_ld if BD < 0 else [])
    fl = ["v_mov_b32 v3, s96", ("wvm", ["side"]), ("vm", None, "buffer_store_dword v3, v8, s[8:11], s98 offen sc1")]
    if BD < 0: loop("FB", {}, {0: st_f + f2[0], 1: f2[1], 2: f2[2], 3: w2_c, 4: w2_s[:4], 5: w2_s[4:], 8: fl})
    else: loop("FB", {BD: w2_ld}, {0: st_f + f2[0], 1: f2[1], 2: f2[2], BD+3: w2_c, **{BS+k: L for k, L in enumerate(chop(w2_s, BN))}, BS+BN+2: fl})
    A.L.append(";@SEG EP"); A.label("FFN_EP"); A.reset()
    A("s_waitcnt lgkmcnt(0)"); tick(A, 20, 19); tockdump(A, 20, 19, 0x40000)
    stamp(A, 2)
    A("s_nop 6")
    T = 32
    def silu(pr, tb, dst):
        g, u = acc(2*pr, tb), acc(2*pr+1, tb); cg, cu = 56+8*pr, 60+8*pr
        L = []
        for k in (0, 2): L.append(pk("fma", g+k, cg+k, ("b", 44+tb), g+k, neg=(1,)))
        for k in (0, 2): L.append(pk("mul", T+k, g+k, ("b", 48+tb)))
        for k in (0, 2): L.append(pk("fma", u+k, cu+k, ("b", 44+tb), u+k, neg=(1,)))
        for e in range(4): L.append(f"v_exp_f32 v{T+e}, v{T+e}")
        for k in (0, 2): L.append(pk("mul", g+k, g+k, u+k))
        for k in (0, 2): L.append(pk("fma", T+k, T+k, ("b", 52+tb), ("b", 52+tb)))
        for e in range(4): L.append(f"v_rcp_f32 v{T+e}, v{T+e}")
        for k in (0, 2): L.append(pk("mul", g+k, g+k, T+k))
        L += [f"v_cvt_pk_bf16_f32 v{dst}, v{g}, v{g+1}", f"v_cvt_pk_bf16_f32 v{dst+1}, v{g+2}, v{g+3}"]
        return L
    ep = []
    grp = []
    for fr in range(2):
        for tb in range(4):
            o = acc(4*fr+1, tb)
            grp.append((silu(2*fr, tb, o) + silu(2*fr+1, tb, o+2), ("vm", ("H", fr), f"buffer_store_dwordx4 v[{o}:{o+3}], v28, s[8:11], s{84+fr} offen offset:{tb*1024} sc1")))
    for tp in range(2):
        o = acc(9, 2*tp)
        grp.append((silu(4, 2*tp, o) + silu(4, 2*tp+1, o+2) + [f"v_permlane16_swap_b32 v{o}, v{o+2}", f"v_permlane16_swap_b32 v{o+1}, v{o+3}"],
                    ("vm", ("H", 2), f"buffer_store_dwordx4 v[{o}:{o+3}], v30, s[8:11], s86 offen offset:{tp*2048} sc1")))
    we = chop(w2loads(NL, NL+FE), 8) if FE else [[]]*8
    for k, (c, st) in enumerate(grp):
        spread(A, c, we[k] if k < 8 else [])
        if k == int(OPT.get("ef", 99)): A.its([("wvm", [("H", 0)]), ("vm", None, "buffer_store_dword v31, v8, s[8:11], s87 offen sc1")])
        A.it(st)
    stamp(A, 3)
    if "ef" not in OPT: A.its([("wvm", [("H", 0)]), ("vm", None, "buffer_store_dword v31, v8, s[8:11], s87 offen sc1")])
    ph2_addr(A)
    A.its((w2loads(NL+FE, 12-NH) if WO else fin_loads() + w2loads(NL+FE, 12)) + fpoll(G0) + [("wvm", [("H", 2)]), ("vm", None, "buffer_store_dword v31, v8, s[8:11], s99 offen sc1")])
    fcheck(A, "FR", G0)
    A("s_branch PH2")

S_SLOT = 49152; S_SCR = 3*S_SLOT
def gen_ssm(A):
    A.reset()
    A("s_lshl_b32 s32, s68, 8\ns_lshl_b32 s33, s72, 7\ns_add_u32 s32, s32, s33\ns_lshl_b32 s33, s71, 3\ns_add_u32 s32, s32, s33")
    A("v_and_b32 v2, 32, v1\nv_bfe_u32 v3, v1, 3, 1\nv_lshl_add_u32 v2, v3, 4, v2\nv_bfe_u32 v3, v1, 4, 1\nv_add3_u32 v2, v2, v3, s32\nv_mul_u32_u24 v2, 1280, v2")
    A("v_lshrrev_b32 v3, 4, v1\nv_xor_b32 v3, v3, v1\nv_and_b32 v3, 7, v3\nv_lshlrev_b32 v3, 4, v3\nv_xor_b32 v4, 64, v3\nv_add_u32 v5, v2, v3\nv_add_u32 v6, v2, v4")
    for ii in range(8): A(f"v_add_u32 v{10+ii}, {(64*(ii&1) + 2*(ii>>1))*1280 - 1024*(ii&3)}, v{5+(ii&1)}")
    A("s_lshl_b32 s32, s69, 6\ns_lshl_b32 s33, s71, 5\ns_add_u32 s32, s32, s33")
    A("v_lshrrev_b32 v2, 3, v1\nv_add_u32 v2, s32, v2\nv_mul_u32_u24 v2, 1280, v2\nv_add_u32 v5, v2, v3\nv_add_u32 v6, v2, v4")
    for i in range(4): A(f"v_add_u32 v{18+i}, {8*i*1280 - 1024*i}, v{5+(i&1)}")
    A("s_lshl_b32 s73, s3, 13\ns_lshl_b32 s74, s3, 12\ns_add_u32 s74, s74, 32768")
    st_ld, st_c, st_f = stats_job(32, S_SCR)
    def dma(u, hs=(0, 1)):
        b = (u % 3)*S_SLOT; L = []
        for h in hs:
            L += [f"s_add_u32 m0, s73, {b+4096*h}", f"s_movk_i32 s78, {u*128}"]
            for i in range(4): L.append(("vm", ("S", u), f"buffer_load_dwordx4 v{10+4*h+i}, s[16:19], s78 offen offset:{1024*i} lds"))
            L.append(f"s_add_u32 m0, s74, {b}")
            for i in range(2): L.append(("vm", ("S", u), f"buffer_load_dwordx4 v{18+2*h+i}, s[12:15], s78 offen offset:{1024*(2*h+i)} lds"))
        return L
    p_ld = lines("s_lshl_b32 s32, s69, 6\ns_lshl_b32 s33, s72, 5\ns_add_u32 s32, s32, s33\nv_and_b32 v2, 15, v1\nv_add_u32 v30, s32, v2\nv_lshlrev_b32 v2, 1, v30")
    for cb in range(2):
        for q, sp in enumerate((P["lre"], P["lim"], P["ldt"])): p_ld.append(("vm", "P", f"global_load_ushort v{112+3*cb+q}, v2, s[{sp}:{sp+1}] offset:{32*cb}"))
    def lds_setup(A):
        early_setup(A)
        A("v_lshrrev_b32 v2, 4, v1\nv_and_b32 v3, 15, v1\nv_lshrrev_b32 v4, 1, v3\nv_xor_b32 v4, v4, v2\nv_lshlrev_b32 v4, 4, v4\nv_lshl_add_u32 v3, v3, 7, v4")
        A("s_lshl_b32 s75, s71, 14\ns_lshl_b32 s76, s72, 12\ns_add_u32 s76, s76, 32768")
        A("v_add_u32 v22, s75, v3\nv_xor_b32 v23, 64, v22\nv_add_u32 v120, s76, v3\nv_xor_b32 v121, 64, v120")
        for sl in (1, 2):
            for ks in range(2): A(f"v_add_u32 v{22+2*sl+ks}, {sl*S_SLOT}, v{22+ks}\nv_add_u32 v{120+2*sl+ks}, {sl*S_SLOT}, v{120+ks}")
    def ss0(A):
        A("s_and_b32 s33, s68, 3\ns_lshl2_add_u32 s33, s69, s33\ns_lshl2_add_u32 s33, s33, s3\ns_lshr_b32 s35, s68, 2\ns_mul_i32 s35, s35, 160\ns_add_u32 s35, s35, s33\ns_mul_i32 s97, s33, 5120")
        A("v_bfe_u32 v2, v1, 2, 2\nv_mul_u32_u24 v2, 1280, v2\nv_and_b32 v3, 3, v1\nv_lshl_add_u32 v2, v3, 4, v2\nv_lshrrev_b32 v4, 4, v1\nv_lshl_add_u32 v67, v4, 6, v2")
    def ss1(A):
        A(f"s_lshl_b32 s98, s35, 7\ns_add_u32 s98, s98, {WS_CSB}")
        A("v_lshlrev_b32 v2, 21, v1\nv_and_b32 v2, 0xfe000000, v2\nv_lshl_add_u32 v55, v1, 3, v2")
        for r in range(4): A(f"v_mov_b32 v{68+r}, 0x3f803f80")
        A("s_lshl_b32 s32, s71, 2\nv_lshrrev_b32 v31, 4, v1\nv_add_u32 v31, s32, v31")
    def ss3(A):
        A("s_lshl1_add_u32 s32, s69, s72\ns_lshl_b32 s84, s32, 1\ns_add_u32 s85, s84, 1"); sig_ssm(A, 84, 33); sig_ssm(A, 85, 33)
        A(f"s_lshl1_add_u32 s34, s68, s71\ns_mul_i32 s35, s34, 192")
        for r in (84, 85): A(f"s_add_u32 s{r}, s{r}, s35\ns_mul_i32 s{r}, s{r}, {HS}\ns_add_u32 s{r}, s{r}, {WS_H}")
        A(f"s_lshl_b32 s87, s34, 7\ns_add_u32 s87, s87, s32\ns_lshl_b32 s87, s87, 7\ns_add_u32 s87, s87, {WS_FLG+88*128}")
        A(f"s_add_u32 s86, s84, {96*HS}\ns_add_u32 s78, s85, {96*HS}")
    def ss4(A):
        A("s_mul_i32 s75, s3, 20480\nv_and_b32 v2, 15, v1\nv_bfe_u32 v3, v2, 2, 1\nv_and_b32 v4, 3, v2\nv_lshl_add_u32 v3, v4, 1, v3\nv_and_b32 v4, 8, v2\nv_or_b32 v3, v3, v4")
        A("v_lshrrev_b32 v4, 4, v1\nv_lshlrev_b32 v5, 2, v4\nv_xor_b32 v3, v3, v5\nv_lshlrev_b32 v3, 4, v3\nv_lshl_add_u32 v3, v2, 8, v3\nv_add_u32 v10, s75, v3")
        A("v_bfe_u32 v2, v1, 2, 2\nv_lshlrev_b32 v3, 5, v2\nv_and_b32 v5, 1, v4\nv_lshl_add_u32 v3, v5, 7, v3\nv_and_b32 v5, 3, v1\nv_lshl_add_u32 v3, v5, 3, v3")
        A("v_lshl_add_u32 v2, v4, 3, v2\nv_lshl_add_u32 v3, v2, 8, v3\nv_add_u32 v11, s75, v3")
    def ss5(A):
        A("v_lshlrev_b32 v3, 4, v30\nv_lshlrev_b32 v2, 21, v1\nv_and_b32 v2, 0xfe000000, v2\nv_add_u32 v12, v2, v3\ns_lshl1_add_u32 s76, s68, s71\ns_mul_i32 s97, s76, 10240")
        A("v_lshrrev_b32 v2, 4, v1\nv_mul_u32_u24 v13, 10240, v2\ns_sub_u32 s75, s97, 10240\nv_sub_u32 v13, s75, v13\nv_add_u32 v13, v13, v3\nv_mov_b32 v21, s96")
        for i in range(4):
            if i: A(f"v_subrev_u32 v{13+i}, {40960*i}, v13\nv_add_u32 v2, 4, v2")
            A(f"v_cmp_gt_u32 vcc, s76, v2\nv_cndmask_b32 v{17+i}, 0, v21, vcc")
    b_ld = [("vm", "bl", f"buffer_load_dwordx4 a[{112+4*i}:{115+4*i}], v67, s[24:27], s97 offen offset:{256*i}") for i in range(5)]
    b_c = [("wvm", ["bl"])]
    for i in range(5): b_c.append(f"{MF} v[56:59], v[68:71], a[{112+4*i}:{115+4*i}], " + ("v[56:59]" if i else "0"))
    b_c += ["s_nop 0"]*3
    b_c += ["v_add_f32_dpp v56, v56, v56 quad_perm:[1,0,3,2] row_mask:0xf bank_mask:0xf", "v_add_f32_dpp v56, v56, v56 quad_perm:[2,3,0,1] row_mask:0xf bank_mask:0xf",
            "v_mov_b32 v57, s96", ("vm", None, "buffer_store_dwordx2 v[56:57], v55, s[8:11], s98 offen sc1")]
    NM = "LR LI CA CB L16R L16I L32R L32I L512R L512I QR QI UR UI WR WI PR PI T0 T1".split()
    def Pm(cb): return dict(zip(NM, range(72+20*cb, 72+20*cb+20)))
    par_c = [("wvm", ["P"])] + lines("v_lshrrev_b32 v60, 4, v1\nv_cvt_f32_u32 v60, v60\nv_mul_f32 v60, 0x42000000, v60\nv_sub_f32 v61, 0x42c00000, v60\nv_mul_f32 v62, 4.0, v60")
    for cb in range(2):
        p = Pm(cb); i0 = 112 + 3*cb; zr, zt, t0, t1 = p['PR'], p['PI'], p['T0'], p['T1']
        def power(d, n):
            pre = [f"v_mul_f32 v{t0}, {n}, v{zr}", f"v_mul_f32 v{t1}, {n}, v{zt}"] if n else []
            a, b = (t0, t1) if n else (zr, zt)
            return pre + lines(f"v_exp_f32 v{t0}, v{a}\nv_fract_f32 v{t1}, v{b}\nv_cos_f32 v{d}, v{t1}\nv_sin_f32 v{d+1}, v{t1}\nv_mul_f32 v{d}, v{d}, v{t0}\nv_mul_f32 v{d+1}, v{d+1}, v{t0}")
        par_c += lines(f"""v_lshlrev_b32 v{i0+2}, 16, v{i0+2}
v_mul_f32 v{t0}, 0x3fb8aa3b, v{i0+2}
v_exp_f32 v{t0}, v{t0}
v_lshlrev_b32 v{i0}, 16, v{i0}
v_lshlrev_b32 v{i0+1}, 16, v{i0+1}
v_cvt_pk_bf16_f32 v{t0}, v{t0}, v{t0}
v_and_b32 v{t0}, 0xffff0000, v{t0}
v_mul_f32 v{zr}, v{t0}, v{i0}
v_mul_f32 v{zt}, v{t0}, v{i0+1}
v_mul_f32 v{zr}, 0x3fb8aa3b, v{zr}
v_mul_f32 v{zt}, 0.15915494, v{zt}""") + power(p['LR'], None)
        par_c += lines(f"""v_mul_f32 v{t1}, v{i0}, v{i0}
v_fmac_f32 v{t1}, v{i0+1}, v{i0+1}
v_rcp_f32 v{t1}, v{t1}
v_add_f32 v{t0}, -1.0, v{p['LR']}
v_mul_f32 v{p['CA']}, v{t0}, v{i0}
v_add_f32 v{t1}, v{t1}, v{t1}
v_fmac_f32 v{p['CA']}, v{p['LI']}, v{i0+1}
v_mul_f32 v{p['CB']}, v{p['LI']}, v{i0}
v_fma_f32 v{p['CB']}, -v{t0}, v{i0+1}, v{p['CB']}
v_mul_f32 v{p['CA']}, v{p['CA']}, v{t1}
v_mul_f32 v{p['CB']}, v{p['CB']}, v{t1}""")
        par_c += power(p['L16R'], "0x41800000") + power(p['L32R'], "0x42000000") + power(p['L512R'], "0x44000000") + power(p['QR'], "v60") + power(p['UR'], "v61") + power(p['WR'], "v62")
    ep_ld = lines(f"v_lshrrev_b32 v2, 3, v0\nv_lshlrev_b32 v2, 7, v2\nv_and_b32 v3, 7, v0\nv_lshl_add_u32 v2, v3, 3, v2\ns_lshl_b32 s75, s68, 12\ns_add_u32 s75, s75, {WS_STAT}") + [("vm", "ep", "buffer_load_dwordx2 v[52:53], v2, s[8:11], s75 offen sc1")]
    ep_ld += lines(f"v_lshrrev_b32 v2, 2, v30\nv_lshlrev_b32 v2, 7, v2\nv_and_b32 v3, 3, v30\nv_lshl_add_u32 v2, v3, 5, v2\ns_mov_b32 s75, {WS_CSB}\ns_mov_b32 s76, {WS_CSB+20480}")
    def CS(cb, im): return 112 + 4*cb + 2*im
    for cb in range(2):
        for im in range(2): ep_ld.append(("vm", "ep", f"buffer_load_dwordx2 v[{CS(cb,im)}:{CS(cb,im)+1}], v2, s[8:11], s{75+im} offen offset:{512*cb} sc1"))
    ep_tags = [53, 113, 115, 117, 119]
    ep_t = [("wvm", ["ep"])] + tagtest(ep_tags)
    ep_c = lines(f"""v_and_b32 v53, 0xffff0000, v52
v_rcp_f32 v53, v53
v_lshlrev_b32 v52, 16, v52
v_and_b32 v2, 15, v0
v_bfe_u32 v3, v0, 4, 1
v_lshl_add_u32 v2, v2, 1, v3
v_and_b32 v3, 0xe0, v0
v_add_u32 v2, v2, v3
v_mul_f32 v52, v52, v53
v_lshlrev_b32 v2, 2, v2
v_add_u32 v2, {S_SCR}, v2""") + [("ds", None, "ds_write_b32 v2, v53"), ("ds", None, "ds_write_b32 v2, v52 offset:1024")]
    ACC = 128
    def acc(b, c): return ACC + (c*8+b)*4
    def Xr(par, b): return par*48 + b*4
    def Br(par, c): return par*48 + 32 + c*4
    def reads(s):
        par = s & 1; sl = (s >> 1) % 3; L = []
        for c in range(4): L.append(("ds", None, f"ds_read_b128 a[{Br(par,c)}:{Br(par,c)+3}], v{120+2*sl+(s&1)} offset:{(c>>1)*8192 + (c&1)*2048}"))
        for b in range(8): L.append(("ds", None, f"ds_read_b128 a[{Xr(par,b)}:{Xr(par,b)+3}], v{22+2*sl+(s&1)} offset:{b*2048}"))
        return L
    SORD = OPT.get("sord", "A")
    M = {0: (b_ld if SORD == "C" else []) + dma(2)}
    for s in range(1, 15): M[s] = dma((s+5) >> 1, ((s+1) & 1,))
    CK = int(OPT.get("ck", 16))
    for k, L in enumerate(chop(w2loads(0, 5, 99), 20-CK)): M[CK+k] = M.get(CK+k, []) + L
    pc = chop(par_c, 8); ps = chop(cap(ph2_setup), 2)
    pc = chop(par_c, 9)
    S = {0: cap(ss1), 1: st_f + p_ld, 2: ps[0], 3: ps[1] + b_c, 4: pc[0], 5: pc[1], 6: pc[2], 7: pc[3], 8: pc[4], 9: pc[5], 10: pc[6], 11: pc[7], 12: pc[8],
         13: ep_ld, 15: cap(ss3), 16: ep_t, 17: ep_c, 18: cap(ss4), 19: cap(ss5)}
    S[CK-2] = fpoll(4) + S.get(CK-2, [])
    if "wf" in OPT: S[19] = w2warm() + S[19]
    PF = int(OPT.get("pf", 0)); PFI = int(OPT.get("pfi", 19))
    if PF:
        pf = lines(f"s_lshr_b32 s32, s2, 3\ns_lshl2_add_u32 s32, s32, s3\ns_lshr_b32 s33, s32, 2\ns_mul_i32 s33, s33, 96\ns_mul_i32 s34, s29, 12\ns_add_u32 s33, s33, s34\ns_mul_i32 s33, s33, 5120\ns_add_u32 s33, s33, {WS_W2P + 35840 - PF*8192}")
        pf += [f"s_cmp_lt_u32 s32, 32\ns_cselect_b32 s33, s33, {hex(OOB)}", "v_lshlrev_b32 v6, 7, v1"]
        for k in range(PF): pf += [("vm", None, "buffer_load_dword v7, v6, s[8:11], s33 offen sc1"), "s_add_u32 s33, s33, 8192"]
        S[PFI] = S.get(PFI, []) + pf
    ss0(A)
    A("s_waitcnt lgkmcnt(0)")
    srd(A, 16, P["x"], SZ_X); A.its(st_ld)
    A("s_cmp_lt_u32 s35, 160"); srd_sel(A, 24, P["bre"], P["bim"], SZ_B)
    A("s_cmp_eq_u32 s72, 0"); srd_sel(A, 12, P["bre"], P["bim"], SZ_B)
    first, second = {"B": (b_ld + dma(0, (0,)), dma(0, (1,)) + dma(1)), "A": (dma(0), b_ld + dma(1)), "C": (dma(0), dma(1))}[SORD]
    A.its(first)
    A.L.append(";@TOUCH S")
    A("s_branch SSM_a"); A.L.append(";@SEG SSM"); A.label("SSM_a")
    lds_setup(A)
    A.its(st_c[:1]); spread(A, st_c[1:], second, 0, len(st_c) - 2)
    A.sync([("S", 0)]); stamp(A, 1)
    A.its(reads(0))
    for s in range(20):
        tags = [("S", (s+1) >> 1)] if (s < 19 and s & 1) else []
        if s == 17: gcheck(A, "SG", ep_ld, ep_tags)
        if s == CK: A.its(ftest(99, 82))
        A.sync(tags, barrier=bool(s & 1))
        tick(A, s, 127)
        par = s & 1; mf = []
        for b in range(8):
            for c in range(4):
                r = acc(b, c); mf.append(f"{MF} v[{r}:{r+3}], a[{Xr(par,b)}:{Xr(par,b)+3}], a[{Br(par,c)}:{Br(par,c)+3}], " + (f"v[{r}:{r+3}]" if s else "0"))
        A.weave(mf, [(reads(s+1) if s < 19 else [], 0, 24), (M.get(s, []), 0, 31), (S.get(s, []), 1, 31)])
    A("s_waitcnt lgkmcnt(0)"); tick(A, 20, 127); tockdump(A, 20, 127, 0x40000)
    stamp(A, 2)
    def gre(cb, j): return acc(0, cb) + 2*j
    def gim(cb, j): return acc(0, 2+cb) + 2*j
    def cfma(dr, di, mr, mi, xr, xi, ar, ai):
        return lines(f"v_fma_f32 v{dr}, v{mr}, v{xr}, v{ar}\nv_fma_f32 v{di}, v{mr}, v{xi}, v{ai}\nv_fma_f32 v{dr}, -v{mi}, v{xi}, v{dr}\nv_fma_f32 v{di}, v{mi}, v{xr}, v{di}")
    def cmul(dr, di, mr, mi, xr, xi):
        return lines(f"v_mul_f32 v{dr}, v{mr}, v{xr}\nv_mul_f32 v{di}, v{mr}, v{xi}\nv_fma_f32 v{dr}, -v{mi}, v{xi}, v{dr}\nv_fmac_f32 v{di}, v{mi}, v{xr}")
    def gsum(regs, tmp):
        L = []
        for sw in ("v_permlane16_swap_b32", "v_permlane32_swap_b32"):
            L += [f"v_mov_b32 v{tmp+k}, v{r}" for k, r in enumerate(regs)] + [f"{sw} v{r}, v{tmp+k}" for k, r in enumerate(regs)] + [f"v_add_f32 v{r}, v{r}, v{tmp+k}" for k, r in enumerate(regs)]
        return L
    def rload(c):
        b = 32 + 16*(c & 1)
        return [("ds", ("R", c), f"ds_read_b128 v[{b+4*k+8*t}:{b+4*k+8*t+3}], v22 offset:{1024*t + 32*(c&3) + 16*k}") for t in range(2) for k in range(2)]
    def scan(cb):
        p = Pm(cb); L = []
        for j in range(16):
            c = 4*cb + (j >> 2); b = 32 + 16*(c & 1) + 2*(j & 3)
            if j & 3 == 0: L.append(("wds", [("R", c)]))
            L += [pk("mul", gre(cb,j), gre(cb,j), b), pk("mul", gim(cb,j), gim(cb,j), b)]
            L += [pk("fma", gre(cb,j), b+8, ("b", CS(cb,0)), gre(cb,j), neg=(0,)), pk("fma", gim(cb,j), b+8, ("b", CS(cb,1)), gim(cb,j), neg=(0,))]
            if j & 3 == 3 and c + 2 < 8: L += rload(c+2)
            if j:
                L += [pk("fma", gre(cb,j), gre(cb,j-1), ("b", p['LR']), gre(cb,j)), pk("fma", gim(cb,j), gim(cb,j-1), ("b", p['LR']), gim(cb,j))]
                L += [pk("fma", gre(cb,j), gim(cb,j-1), ("b", p['LI']), gre(cb,j), neg=(1,)), pk("fma", gim(cb,j), gre(cb,j-1), ("b", p['LI']), gim(cb,j))]
        o = 120 + 4*cb
        L += cfma(64+2*cb, 65+2*cb, p['L16R'], p['L16I'], gre(cb,15), gim(cb,15), gre(cb,15)+1, gim(cb,15)+1) + cmul(o, o+2, p['UR'], p['UI'], 64+2*cb, 65+2*cb)
        L += gsum([o, o+2], 4) + [f"v_mov_b32 v{o+1}, s96", f"v_mov_b32 v{o+3}, s96", ("vm", None, f"buffer_store_dwordx4 v[{o}:{o+3}], v12, s[8:11], s97 offen offset:{256*cb} sc1")]
        return L
    def lbl(cb): return [("vm", ("lb", cb), f"buffer_load_dwordx4 v[{32+16*cb+4*i}:{35+16*cb+4*i}], v{13+i}, s[8:11], 0 offen offset:{256*cb} sc1") for i in range(4)]
    def transform(cb):
        p = Pm(cb); L = [f"v_mov_b32 v{64+2*cb}, v{gre(cb,15)}", f"v_mov_b32 v{65+2*cb}, v{gim(cb,15)}"]
        for j in range(16):
            r, i = gre(cb,j), gim(cb,j)
            L += [pk("mul", 112, i, ("b", p['CB'])), pk("mul", 114, r, ("b", p['CB'])), pk("fma", r, r, ("b", p['CA']), 112, neg=(2,)), pk("fma", i, i, ("b", p['CA']), 114, neg=(1, 2))]
        return L
    def lookback(cb):
        b = 32+16*cb
        lt = [f"v_xor_b32 v4, v17, v{b+1}"] + sum(([f"v_xor_b32 v5, v{17+(r-b)//4}, v{r}", "v_or_b32 v4, v4, v5"] for r in range(b+3, b+16, 2)), []) + ["v_cmp_ne_u32 vcc, 0, v4"]
        A.its([("wvm", [("lb", cb)])] + lt)
        A(f"s_cbranch_vccz SSM_go{cb}\ns_mov_b32 s7, 0x40000")
        A.label(f"SSM_poll{cb}")
        for x in lbl(cb): A(x[2])
        A("s_waitcnt vmcnt(0)"); A.ext(lt)
        A(f"s_sub_u32 s7, s7, 1\ns_cbranch_scc1 SSM_go{cb}\ns_cbranch_vccnz SSM_poll{cb}")
        A.label(f"SSM_go{cb}")
    WP = 112; IMG = 8192
    def second(cb):
        p = Pm(cb); b = 32+16*cb; L = []
        for i in (2, 1, 0): L += cfma(b+4*i, b+4*i+2, p['L512R'], p['L512I'], b+4*i+4, b+4*i+6, b+4*i, b+4*i+2)
        L += cmul(b+4, b+5, p['WR'], p['WI'], b, b+2) + gsum([b+4, b+5], 4)
        L += cfma(p['PR'], p['PI'], p['QR'], p['QI'], b+4, b+5, p['PR'], p['PI']) + cfma(64+2*cb, 65+2*cb, p['L16R'], p['L16I'], p['PR'], p['PI'], 64+2*cb, 65+2*cb)
        for k, (xr, xi) in enumerate(((p['PR'], p['PI']), (64+2*cb, 65+2*cb))):
            L += lines(f"v_mul_f32 v{p['T0']}, v{p['CB']}, v{xi}\nv_mul_f32 v{p['T1']}, v{p['CB']}, v{xr}\nv_fma_f32 v{WP+k}, v{p['CA']}, v{xr}, -v{p['T0']}\nv_fma_f32 v{WP+2+k}, -v{p['CA']}, v{xi}, -v{p['T1']}")
        pw = []
        for j in range(16):
            cur = WP+4*(j & 1); nxt = WP+4*((j+1) & 1)
            L += [pk("mul", nxt, cur, ("b", p['LR'])), pk("mul", nxt+2, cur+2, ("b", p['LR'])), pk("fma", nxt, cur+2, ("b", p['LI']), nxt), pk("fma", nxt+2, cur, ("b", p['LI']), nxt+2, neg=(1,))]
            L += [pk("add", gre(cb,j), gre(cb,j), nxt), pk("add", gim(cb,j), gim(cb,j), nxt+2)]
            if pw and not j & 1: L.append(pw.pop(0))
            if j & 1:
                k = (j >> 1) & 3
                for im in range(2):
                    g = gim if im else gre
                    for hh in range(2):
                        r = (b+8*im+4*hh) if j < 8 else (g(cb, 0) + 4*hh)
                        L.append(f"v_cvt_pk_bf16_f32 v{r+k}, v{g(cb,j-1)+hh}, v{g(cb,j)+hh}")
                        if k == 3: (L if j == 15 else pw).append(("ds", "iw", f"ds_write_b128 v{68+2*(j>>3)+hh}, v[{r}:{r+3}] offset:{cb*IMG + im*4096}"))
        L.append(("wds", ["iw"]))
        st = []
        for tb in range(8):
            r = gim(cb, 0) + 4*tb
            for hh in range(2): L += [f"v_xor_b32 v{2+hh}, {32*tb + 16*hh}, v11", ("ds", ("tr", cb, tb), f"ds_read_b64_tr_b16 v[{r+2*hh}:{r+2*hh+1}], v{2+hh} offset:{cb*IMG + hh*1024}")]
            st.append([("wds", [("tr", cb, tb)]), ("vm", "H", f"buffer_store_dwordx4 v[{r}:{r+3}], v28, s[8:11], s{(84, 85, 86, 78)[cb + 2*(tb >> 2)]} offen offset:{(tb&3)*1024} sc1")])
        return L, st
    A(f"v_lshlrev_b32 v22, 7, v31\nv_add_u32 v22, {S_SCR}, v22\nv_mov_b32 v31, s96")
    ptick(A, 40, 25)
    A.its(rload(0) + rload(1) + scan(0) + scan(1))
    ptick(A, 41, 25)
    A.its((fpoll(5) if int(OPT.get("sb", 5)) > 5 else []) + lbl(0))
    for d in range(3):
        A(f"v_subrev_u32 v2, {16*(d+1)}, v1\nv_lshlrev_b32 v2, 2, v2")
        for k in range(4): A.it(("ds", "bp", f"ds_bpermute_b32 v{48+4*d+k}, v2, v{64+k}"))
    for cb in range(2): A(f"v_mov_b32 v{Pm(cb)['PR']}, 0\nv_mov_b32 v{Pm(cb)['PI']}, 0")
    for k in range(4): A(f"v_xor_b32 v{68+k}, {32*(k&1) + 16*(k>>1)}, v10")
    A.it(("wds", ["bp"]))
    for d in (2, 1, 0):
        A(f"s_lshl_b64 exec, -1, {16*(d+1)}")
        for cb in range(2):
            p = Pm(cb); a = 48+4*d+2*cb
            if d < 2: A.ext(cfma(a, a+1, p['L32R'], p['L32I'], p['PR'], p['PI'], a, a+1))
            A(f"v_mov_b32 v{p['PR']}, v{a}\nv_mov_b32 v{p['PI']}, v{a+1}")
    A("s_mov_b64 exec, -1")
    A.its(transform(0))
    stamp(A, 3); ptick(A, 42, 25)
    lookback(0)
    stamp(A, 4); ptick(A, 43, 25)
    L0, st0 = second(0); L1, st1 = second(1)
    SB = int(OPT.get("sb", 5))
    if SB > 5:
        fcheck(A, "SC5a", 5); A.its(L0[:60] + lbl(1)); spread(A, L0[60:], w2loads(5, SB), 0, 120)
    else: A.its(L0[:60] + lbl(1) + fpoll(5) + L0[60:])
    ptick(A, 44, 25)
    lookback(1)
    rest = transform(1) + L1
    sl = interleave(rest, st0, 0, len(rest) - 40)
    for i, x in enumerate(rest):
        for y in sl[i]: A.its(y)
        A.it(x)
    ptick(A, 45, 25)
    for y in st1: A.its(y)
    stamp(A, 5)
    fs = "buffer_store_dword v31, v8, s[8:11], s87 offen sc1"
    fcheck(A, "SC5", 5, pre="s_waitcnt vmcnt(0)\n" + fs)
    A.L.append(";@TOUCH P1")
    ph2_addr(A)
    S1 = int(OPT.get("s1", 7))
    ptick(A, 46, 25)
    A.its(w2loads(SB, S1) + [("wvm", ["H"]), ("vm", None, fs)])
    ptick(A, 47, 25)
    A(f"s_cmp_lg_u32 s95, 0\ns_cbranch_scc1 EP_end\nv_lshlrev_b32 v2, 7, v1\ns_mov_b32 s7, 0x40000")
    A.label("EP_l")
    for k in range(4): A(f"s_mov_b32 s75, {WS_STAT+4+8192*k}\nbuffer_load_dword v{68+k}, v2, s[8:11], s75 offen sc1")
    A("s_waitcnt vmcnt(0)"); A.ext(tagtest([68, 69, 70, 71]))
    A(f"s_sub_u32 s7, s7, 1\ns_cbranch_scc1 EP_ok\ns_cbranch_vccnz EP_l")
    A.label("EP_ok")
    A(f"s_mov_b32 s75, {WS_EPOCH}\nbuffer_store_dword v31, v8, s[8:11], s75 offen sc1")
    A.label("EP_end")
    fredo(A, "SR", 4, 99, 82, w2loads(0, 5))
    A.its((w2loads(S1, 12-NH) if WO else fin_loads() + w2loads(S1, 12)) + fpoll(G0))
    fcheck(A, "SC2", G0)

def gen_ph2(A):
    A.L.append(";@SEG PH2"); A.label("PH2")
    A.reset()
    stamp(A, 6)
    for i in range(3): A.its(hload(i))
    if not WO: fin_base(A)
    g_r = []
    for nb in range(5):
        for w in range(4):
            r = ACCG + (nb*4+w)*4; g_r.append(("ds", ("gr", nb), f"ds_read_b128 v[{r}:{r+3}], v{23+(w>>1)} offset:{(w&1)*20480 + nb*1024}"))
    g_s = []; g_t = []
    for nb in range(5):
        r = ACCG + nb*16; g_s.append(("wds", [("gr", nb)]))
        for e in range(4): g_s += [f"v_add_f32 v{r+e}, v{r+e}, v{r+4+e}", f"v_add_f32 v{r+8+e}, v{r+8+e}, v{r+12+e}"]
        for e in range(4): g_s.append(f"v_add_f32 v{r+e}, v{r+e}, v{r+8+e}")
        g_t.append(("vm", "xs", f"buffer_store_dwordx4 v[{r}:{r+3}], v{28+(nb>>2)}, s[8:11], s4 offen offset:{(nb&3)*1024} sc1"))
    g_f = [("wvm", ["xs"]), ("vm", None, "buffer_store_dword v31, v8, s[8:11], s6 offen sc1")]
    fin_r = [(f"v_accvgpr_read_b32 v{ACCG + (k>>2)*16 + 8 + (k&3)}, {PARK[k]}" if PARK[k][0] == "a" else f"v_mov_b32 v{ACCG + (k>>2)*16 + 8 + (k&3)}, {PARK[k]}") for k in range(20)]
    GF = int(OPT.get("gf", 12))
    extra = {**{k-3: fpoll(g)[:-1] for k, g in CHK.items()}, 12: ["s_mov_b32 m0, s101"], 16: g_r + g_s[:13], 17: g_s[13:39] + g_t[:2], 18: g_s[39:52] + g_t[2:3] + g_s[52:] + g_t[3:],
             19: ["v_add_u32 v23, 81920, v23", "v_add_u32 v24, 81920, v24", "s_mov_b32 m0, s100"] + fin_r, 20: fpoll(3)[:-1]}
    first = {k-2: fpoll(g)[-1:] for k, g in CHK.items()}
    if WO:
        fin_c = [("wvm", ["fin"]), "v_and_b32 v11, 0xffff0000, v10", "v_rcp_f32 v11, v11", "v_lshlrev_b32 v10, 16, v10"]
        def rd(nb): return [("ds", ("fx", nb), f"ds_read_b64 v[{16+4*(nb&1)}:{17+4*(nb&1)}], v12 offset:{32*nb}"), ("ds", ("fx", nb), f"ds_read_b64 v[{(18, 26)[nb&1]}:{(19, 27)[nb&1]}], v14 offset:{3072+32*nb}")]
        fin_c += rd(0)
        for nb in range(5):
            if nb < 4: fin_c += rd(nb+1)
            fin_c.append(("wds", [("fx", nb)]))
            for h in range(2):
                x = 16+4*(nb&1)+h; d = (18, 26)[nb&1]+h
                fin_c += [f"v_lshlrev_b32 v2, 16, v{d}", f"v_and_b32 v{d}, 0xffff0000, v{d}", f"v_lshlrev_b32 v3, 16, v{x}", f"v_and_b32 v{x}, 0xffff0000, v{x}",
                          "v_mul_f32 v2, v2, v11", f"v_mul_f32 v{d}, v{d}, v11", "v_sub_f32 v4, v3, v10", f"v_sub_f32 v5, v{x}, v10", "v_fmac_f32 v3, v4, v2", f"v_fmac_f32 v{x}, v5, v{d}"]
                for e, src in ((0, 3), (1, x)):
                    p = PARK[4*nb+2*h+e]; fin_c.append(f"v_accvgpr_write_b32 {p}, v{src}" if p[0] == "a" else f"v_mov_b32 {p}, v{src}")
        wl = chop(w2loads(12-NH, 12), 4) if NH else [[]]*4
        for k in range(4): extra[k] = extra.get(k, []) + wl[k]
        extra[5] = extra.get(5, []) + fin_loads()
        for k, L in enumerate(chop(fin_c, 5)): extra[8+k] = L + extra.get(8+k, [])
    pend = []
    for g in GROUPS:
        n0 = g[0]; hf = STEPS[n0][0]
        tags = [("h", n) for n in g] + [("w2", STEPS[n][1]) for n in g if ("w2", STEPS[n][1]) in A.tv]
        if n0 == 16: A.sync(tags)
        else: A.it(("wvm", tags))
        if TS >= 2 and n0 not in (15, 17, 18): A("s_waitcnt lgkmcnt(0)")
        if TS >= 2:
            if n0: A(f"v_writelane_b32 v25, s88, {GROUPS.index(g)-1}")
            A("s_memtime s[88:89]")
        if n0 in CHK: fcheck(A, f"CK{n0}", CHK[n0])
        mf = []; wr = [[] for _ in range(20*len(g))]
        for k, x in enumerate(pend): wr[k*18//len(pend)].append(x)
        pend = []
        for nb in range(5):
            for tb in range(4):
                c = acc2(hf, nb, tb)
                for n in g:
                    w = w2reg(STEPS[n][1]) + 4*nb
                    mf.append(f"{MF} v[{c}:{c+3}], {Hr(n,tb)}, a[{w}:{w+3}], " + (f"v[{c}:{c+3}]" if STEPS[n][1] != STEPS[0][1] else "0"))
                if len(g) > 1:
                    for e in range(4):
                        pos = (11*(4*(nb*4+tb)+e))//16 + 6 if len(g) == 2 else 3*(nb*4+tb) + 6 + (3*e)//4
                        it = ("ds", None, f"ds_write_addtid_b32 v{c+e} offset:{(tb*5+nb)*1024+256*e}")
                        (wr[pos] if pos < len(wr) else pend).append(it)
        if n0 == 21: wr[GF] += g_f; wr[56] += fpoll(3)[-1:]
        A.weave(mf, [(first.get(n0, []) + sum((hload(n) for n in ISSUE.get(n0, ())), []), 0, len(mf) - 8), (extra.get(n0, []), 1, len(mf) - 1)], fixed=wr)
    A.its(pend)
    if TS >= 2:
        A(f"s_waitcnt lgkmcnt(0)\nv_writelane_b32 v25, s88, {len(GROUPS)-1}\ns_memtime s[88:89]"); tockdump(A, len(GROUPS), 25, 0x80000)
    stamp(A, 7)
    A("s_waitcnt lgkmcnt(0)\ns_barrier")
    for nb in range(5):
        for w in range(4):
            r = ACCK + (nb*4+w)*4
            A(f"ds_read_b128 v[{r}:{r+3}], v{23+(w>>1)} offset:{(w&1)*20480 + nb*1024}")
    fcheck(A, "C3", 3)
    for nb in range(5):
        r = ACCG + nb*16 + 12
        A.it(("vm", ("xl", nb), f"buffer_load_dwordx4 v[{r}:{r+3}], v{28+(nb>>2)}, s[8:11], s5 offen offset:{(nb&3)*1024} sc1"))
    A("s_waitcnt lgkmcnt(0)")
    for nb in range(5):
        r = ACCK + nb*16; o = ACCG + nb*16 + 8
        for k in (0, 2): A(pk("add", r+k, r+k, r+4+k)); A(pk("add", r+8+k, r+8+k, r+12+k))
        for k in (0, 2): A(pk("add", o+k, o+k, r+k))
        for k in (0, 2): A(pk("add", o+k, o+k, r+8+k))
    for nb in range(5):
        o = ACCG + nb*16 + 8
        A.it(("wvm", [("xl", nb)]))
        for k in (0, 2): A(pk("add", o+k, o+k, o+4+k))
        A.it(("vm", None, f"buffer_store_dwordx4 v[{o}:{o+3}], v13, s[20:23], 0 offen offset:{64*nb} " + OPT.get("of", "").replace("+", " ")))
    if TS:
        A("s_add_u32 s94, s94, 0x10000"); stamp(A, 0)
    WB = int(OPT.get("wb", 0))
    if WB:
        A(f"s_and_b32 s32, s95, {WB}\ns_cmp_lg_u32 s32, {int(OPT.get('wbv', 0))}\ns_cbranch_scc1 K_end\ns_waitcnt vmcnt(0)\nbuffer_wbl2 sc1")

def gen():
    A = E()
    A("s_cmp_ge_u32 s2, 256\ns_cbranch_scc1 K_end")
    if TS >= 2: A("s_memtime s[4:5]")
    A("s_load_dwordx16 s[36:51], s[0:1], 0\ns_load_dwordx16 s[52:67], s[0:1], 64")
    A("v_and_b32 v1, 63, v0\nv_lshrrev_b32 v2, 6, v0\ns_and_b32 s32, s2, 7\nv_readfirstlane_b32 s3, v2")
    A("s_lshr_b32 s33, s2, 3\ns_lshr_b32 s34, s32, 2\ns_and_b32 s35, s32, 3\ns_and_b32 s71, s3, 1\ns_lshr_b32 s72, s3, 1")
    if int(OPT.get("ipf", 1)):
        A("s_getpc_b64 s[6:7]"); A.label("K_pc")
        A("s_lshl2_add_u32 s76, s33, s3\ns_and_b32 s76, s76, 15\ns_lshl_b32 s76, s76, 13\nv_lshlrev_b32 v2, 7, v1\nv_add_u32 v2, s76, v2\nv_min_u32 v2, K_end-K_pc, v2")
        A("s_cmp_lt_u32 s33, 28\ns_cbranch_scc1 K_nopf\nglobal_load_dword v64, v2, s[6:7]"); A.label("K_nopf")
    A("s_lshl2_add_u32 s95, s2, s3\nv_lshrrev_b32 v62, 5, v1\nv_mul_u32_u24 v62, 1280, v62\nv_and_b32 v63, 31, v1\nv_lshl_add_u32 v62, v63, 3, v62")
    if TS:
        A("s_lshl2_add_u32 s94, s2, s3\ns_lshl_b32 s94, s94, 6\ns_waitcnt lgkmcnt(0)"); stamp(A, 0)
    A("s_lshl_b32 s31, s32, 5\ns_add_u32 s31, s31, s33\ns_lshl2_add_u32 s75, s31, s3\ns_mul_i32 s75, s75, 2560")
    UNEV = int(OPT.get("unev", 1))
    if UNEV: A("s_cmp_eq_u32 s35, 3\ns_cselect_b32 s76, 16, 8\ns_cmp_lt_u32 s33, s76\ns_cbranch_scc1 K_ssm\ns_sub_u32 s33, s33, s76\ns_add_u32 s33, s33, 10")
    else: A("s_cmp_lt_u32 s33, 10\ns_cbranch_scc1 K_ssm")
    A(f"s_mul_i32 s35, s35, {24 if UNEV else 22}\ns_add_u32 s33, s33, s35\ns_sub_u32 s33, s33, 10\ns_and_b32 s68, s33, 7\ns_lshl_b32 s34, s34, 3\ns_add_u32 s68, s68, s34\ns_lshr_b32 s69, s33, 3")
    gen_ffn(A)
    A.L.append(";@SEG SPRO"); A.label("K_ssm")
    A(f"s_mul_i32 s35, s35, {8 if UNEV else 10}\ns_add_u32 s33, s33, s35\ns_and_b32 s68, s33, 3\ns_lshl2_add_u32 s68, s34, s68\ns_lshr_b32 s69, s33, 2")
    gen_ssm(A)
    gen_ph2(A)
    A.label("K_end"); A("s_endpgm")
    return A.L

def hflags(L):
    f = OPT.get("hf")
    if not f: return L
    return [l.replace(" sc1", " " + f.replace("+", " ")) if l.startswith("buffer_store_dwordx4 v[") and re.search(r"s(84|85|86|78) offen", l) else l for l in L]
def nulls(L):
    n = OPT.get("null", "")
    o = []
    for l in L:
        if l.startswith("buffer_load"):
            if ("c" in n and "s[24:27], s77" in l) or ("w" in n and "s[20:23], s77" in l) or ("b" in n and "s[24:27], s97" in l) or ("s" in n and l.startswith("buffer_load_dwordx2") and "s[16:19]" in l):
                o.append("s_mov_b32 s7, 0x7f000000"); l = re.sub(r"\], s\d+ offen", "], s7 offen", l)
        o.append(l)
    return o
def fin(L):
    L = nulls(hflags(L))
    seg = {"E": []}; cur = "E"
    for l in L:
        if l.startswith(";@SEG"): cur = l.split()[1]; seg[cur] = []
        else: seg[cur].append(l)
    def dispatch(name, chains, ret):
        o = []
        for w in range(3): o += [f"s_cmp_eq_u32 s3, {w}", f"s_cbranch_scc1 {chains[w]}"]
        return o + [f"s_branch {chains[3]}"]
    TCH = int(OPT.get("tch", 1))
    order = ["FA", "FB", "EP", "SSM", "PH2"]
    def expand(lines, heads):
        o = []
        for l in lines:
            if not l.startswith(";@TOUCH"): o.append(l); continue
            if not TCH: continue
            n = l.split()[1]
            o.append("s_mov_b64 exec, 0")
            if n in ("FA", "FB"): o += dispatch(n, heads[n], None)
            elif n == "S": o += dispatch(n, heads["SSM"], None)
            else: o += [f"s_mov_b32 s35, {n[1]}"] + dispatch(n, heads["PH2" if n == "P1" else "EP"], None)
            o.append(f"TR_{n}:")
            o.append("s_mov_b64 exec, -1")
        return o
    if TCH: seg["SPRO"] += ["TR_P:", "s_cmp_eq_u32 s35, 0", "s_cbranch_scc1 TR_P0", "s_cmp_eq_u32 s35, 2", "s_cbranch_scc1 TR_P2", "s_branch TR_P1"]
    dummy = {k: ["K_end"]*4 for k in order}
    body = []
    for k in order: body += [(k, l) for l in expand(seg[k], dummy)]
    pro = expand(seg["E"] + seg["FBP"] + seg["SPRO"], dummy)
    sz = sizes(pro + ["K_pad:"] + [l for _, l in body]); npro = sum(1 for l in pro if not (l.endswith(":") or l.startswith((".", ";"))))
    print("prologue bytes", sum(sz[:npro])); sz = sz[npro:]
    stubs = {k: [] for k in order}; pos = {}; addr = 0; page = -1; ii = 0; seen = set()
    for i, (k, l) in enumerate(body):
        if l.endswith(":") or l.startswith((".", ";")): continue
        if TCH and (addr >> 12 != page or k not in seen):
            page = addr >> 12; seen.add(k); name = f"TS_{len(pos)}"; pos[i] = name; stubs[k].append(name); addr += 4
        addr += sz[ii]; ii += 1
    print({k: len(v) for k, v in stubs.items()}, "bytes", addr)
    nxt = {}; heads = {}
    def chains(lst, tails):
        h = []
        for w in range(4):
            c = lst[w::4]
            for a, b in zip(c, c[1:] + [tails[w]]): nxt[a] = b
            h.append(c[0] if c else tails[w])
        return h
    heads["FA"] = chains(stubs["FA"], ["TR_FA"]*4); heads["FB"] = chains(stubs["FB"], ["TR_FB"]*4)
    heads["SSM"] = chains(stubs["SSM"], ["TR_S"]*4); heads["PH2"] = chains(stubs["PH2"], ["TR_P"]*4); heads["EP"] = chains(stubs["EP"], heads["PH2"][::-1])
    body2 = []
    for k in order: body2 += expand(seg[k], heads)
    out = expand(seg["E"] + seg["FBP"] + seg["SPRO"], heads) + [".p2align 12"]
    for i, l in enumerate(body2):
        if i in pos: out += [pos[i] + ":", f"s_cbranch_execz {nxt[pos[i]]}"]
        out.append(l)
    return out
def main():
    ref = open(f"cdna_kernels/{NAME}.s.ref").read().split("\n")
    hdr = [l for l in ref if l.startswith(";") and "@launch" not in l and "Override" not in l and "grid=ceil" not in l]
    out = "\n".join(hdr) + "\n"
    extra = ""
    if "spin" in OPT:
        op, slot, who = (OPT["spin"].split(",") + ["A"])[:3]; slot = int(slot); ks = {"A": range(16), "S": range(5), "F": range(5, 16)}[who]
        off = WS_TS + (slot*8 if slot < 8 else 0x10000)
        out += f"; @launch kernel={NAME}_kernel grid=(256,1,1) block=(256,1,1) lds=163840\n; @launch kernel=spin_kernel grid=(1,1,1) block=(64,1,1) lds=0\n"
        L = ["s_load_dwordx2 s[4:5], s[0:1], 120", "s_waitcnt lgkmcnt(0)", f"s_add_u32 s4, s4, {off}", "s_addc_u32 s5, s5, 0", "v_lshlrev_b32 v1, 6, v0"]
        for k in range(16): L += [f"v_add_u32 v2, {4096*ks[k % len(ks)]}, v1", f"global_load_dword v{4+k}, v2, s[4:5]"]
        L += ["s_waitcnt vmcnt(0)"] + [f"v_{op}_u32 v4, v4, v{4+k}" for k in range(1, 16)] + ["s_nop 1", "v_readlane_b32 s6, v4, 0"]
        for k in range(1, 64): L += [f"v_readlane_b32 s7, v4, {k}", "s_nop 0", f"s_{op}_u32 s6, s6, s7"]
        L += ["s_mov_b32 s12, 0x100000", "SP_l2:", "s_memrealtime s[8:9]", "s_waitcnt lgkmcnt(0)", "s_sub_u32 s10, s8, s6", "s_sub_u32 s12, s12, 1", "s_cbranch_scc1 SP_e", "s_cmp_lt_u32 s10, 8000", "s_cbranch_scc1 SP_l2", "SP_e:", "s_endpgm"]
        extra = kernel_text("spin_kernel", L) + kd("spin_kernel", 32, 0, 32)
    else: out += "; @launch grid=(256,1,1) block=(256,1,1) lds=163840\n"
    out += '.amdgcn_target "amdgcn-amd-amdhsa--gfx950"\n'
    out += kernel_text(NAME + "_kernel", fin(hazard_pass(gen(), "v" in OPT))) + kd(NAME + "_kernel", 256, 256, 102) + extra
    open(sys.argv[1], "w").write(out)
main()
```

```python
import sys
from asmlib import *
NAME = "parallel_sum__ssm_conv_s5__glu_gated_swiglu__prompt"
OPT = dict(wf="19", u="F", ef="8", sb="8", s1="10", fe="1", cw="3", bs="7", bn="4", pq="2", sq="2", lfe="1"); OPT.update(a.split("=") for a in sys.argv[2:])
TS = int(OPT.get("ts", 0)); SN = int(OPT.get("sn", 1))
for k_ in [k for k, v in OPT.items() if v == "x"]: del OPT[k_]
WS_AGG = 0; WS_EPOCH = 0x28000; WS_STAT = 0x30000; WS_FLG = 0x40000; WS_XF = 0x80000; WS_CF = 0xA0000; WS_WF = 0xB0000; WS_CSB = 0xC0000; WS_CS = 0xD0000
HS = int(OPT.get("hs", 4096)); WS_W2P = 0x100000; WS_XCH = 0x500000; WS_H = 0xA00000; WS_END = 0x1A00000; WS_TS = 0x1A00000; CS_HALF = 27648
SZ_X = 2048*640*2; SZ_B = 640*640*2; SZ_W = 640*1728*2; SZ_OUT = 2048*640*4
OOB = 0x7F000000
P = dict(x=36, lre=38, lim=40, bre=42, bim=44, cre=46, cim=48, ldt=50, dsk=52, w1=56, w3=58, w2=60, out=62, dbg=64, ws=66)
MF = "v_mfma_f32_16x16x32_bf16"

class E(Asm):
    def __init__(self): super().__init__(); self.reset()
    def reset(self): self.nv = 0; self.tv = {}; self.dv = 0; self.nd = 0; self.td = {}; self.dd = 0
    def vmw(self, tags):
        last = max(self.tv[t] for t in tags)
        if last <= self.dv: return None
        self.dv = last; return min(63, self.nv - last)
    def dsw(self, tags):
        last = max(self.td[t] for t in tags)
        if last <= self.dd: return None
        n = min(15, self.nd - last); self.dd = self.nd - n; return n
    def it(self, x):
        if isinstance(x, str): self(x)
        elif x[0] == "vm": self.nv += 1; self.tv[x[1]] = self.nv; self(x[2])
        elif x[0] == "ds": self.nd += 1; self.td[x[1]] = self.nd; self(x[2])
        elif x[0] == "wvm":
            n = self.vmw(x[1])
            if n is not None: self(f"s_waitcnt vmcnt({n})")
        elif x[0] == "wds":
            n = self.dsw(x[1])
            if n is not None: self(f"s_waitcnt lgkmcnt({n})")
        elif x[0] == "fn": x[1]()
    def its(self, L):
        for x in L: self.it(x)
    def sync(self, vtags, barrier=True):
        n = self.vmw(vtags) if vtags else None
        self.dd = self.nd
        self((f"s_waitcnt vmcnt({n}) lgkmcnt(0)" if n is not None else "s_waitcnt lgkmcnt(0)"))
        if barrier: self("s_barrier")
    def weave(self, mf, streams, fixed=None, cap=2):
        q = []
        for it, lo, hi in streams:
            if it: q.append([(lo + k*(hi-lo)//len(it), x) for k, x in enumerate(it)])
        def cost(x):
            if isinstance(x, str): return sum(2 if l.startswith(TRANS) else (0 if l.startswith("v_mfma") else 1) for l in x.split("\n"))
            return {"vm": 2, "ds": 1}.get(x[0], 0.5)
        debt = 0
        for i, m in enumerate(mf):
            self(m); room = cap - debt
            for x in (fixed[i] if fixed else []): self.it(x); room -= cost(x)
            left = sum(cost(x) for st in q for _, x in st); gaps = len(mf) - i
            room = max(room, left - cap*(gaps-1))
            if left > cap*gaps: room = max(cap, left/gaps)
            while room > 0:
                c = [st for st in q if st and st[0][0] <= i]
                if not c: break
                if int(OPT.get("wv", 1)) and left <= cap*gaps - 2:
                    isvm = lambda t: not isinstance(t[0][1], str) and t[0][1][0] == "vm"
                    if room >= cap and any(isvm(t) for t in c): c = [t for t in c if isvm(t)]
                    else:
                        c = [t for t in c if not isvm(t)]
                        if not c: break
                st = min(c, key=lambda t: t[0][0]); x = st.pop(0)[1]; self.it(x); room -= cost(x)
            debt = max(0, -room)
        for st in q:
            for _, x in st: self.it(x)
def lines(s): return [l.strip() for l in s.split("\n") if l.strip()]
def glue(L):
    out = []; on = False
    for x in L:
        if isinstance(x, str) and on and x.startswith(("s_cselect", "s_mov_b32")): out[-1] += "\n" + x; continue
        on = isinstance(x, str) and x.startswith(("s_cmp", "s_bitcmp"))
        out.append(x)
    return out
def cap(f):
    B = Asm(); f(B); return glue(B.L)
def chop(L, n):
    q = (len(L) + n - 1)//n
    return [L[k*q:(k+1)*q] for k in range(n)]
FE = int(OPT.get("fe", 2)); FF = int(OPT.get("ff", 0)); SE = int(OPT.get("se", 0))
def srd(A, d, lo, size):
    A(f"s_mov_b32 s{d}, s{lo}\ns_mov_b32 s{d+1}, s{lo+1}\ns_mov_b32 s{d+2}, {hex(size)}\ns_mov_b32 s{d+3}, 0x20000")
def srd_sel(A, d, lo0, lo1, size):
    A(f"s_cselect_b32 s{d}, s{lo0}, s{lo1}\ns_cselect_b32 s{d+1}, s{lo0+1}, s{lo1+1}\ns_mov_b32 s{d+2}, {hex(size)}\ns_mov_b32 s{d+3}, 0x20000")
def stamp(A, slot):
    if not TS: return
    A(f"s_memrealtime s[90:91]\ns_memtime s[88:89]\ns_waitcnt lgkmcnt(0)\ns_add_u32 s92, s94, {WS_TS + slot*8}")
    A.dd = A.nd
    A(f"v_mov_b32 v4, s90\nv_mov_b32 v5, s88\nv_mov_b32 v2, s92"); A.it(("vm", None, "global_store_dwordx2 v2, v[4:5], s[66:67]"))
def tick(A, idx, reg):
    if TS < 2: return
    if idx: A(f"v_writelane_b32 v{reg}, s88, {idx-1}")
    A("s_memtime s[88:89]")
def ptick(A, idx, reg):
    if TS < 2: return
    A(f"s_memtime s[88:89]\ns_waitcnt lgkmcnt(0)\nv_writelane_b32 v{reg}, s88, {idx}")
def tockdump(A, n, reg, area):
    if TS < 2: return
    A(f"s_waitcnt lgkmcnt(0)\nv_writelane_b32 v{reg}, s88, {n}\ns_lshl_b32 s92, s95, 8\ns_add_u32 s92, s92, {WS_TS + area}\nv_lshlrev_b32 v5, 2, v1\nv_add_u32 v5, s92, v5")
    A.it(("vm", None, f"global_store_dword v5, v{reg}, s[66:67]"))
def bc(n, which, hi=False):
    lo = [0]*n; h = [1]*n
    for w in which:
        if isinstance(w, tuple): lo[w[0]] = 1
        else: h[w] = 0
    s = ""
    if any(lo): s += " op_sel:[" + ",".join(map(str, lo)) + "]"
    s += " op_sel_hi:[" + ",".join(map(str, h)) + "]"
    return s
def B(r):
    return f"v[{r & ~1}:{(r & ~1)+1}]", (r & 1)
def pk(op, d, *src, neg=()):
    t = []; w = []
    src = list(src)
    if isinstance(src[1], tuple) and src[1][1] & 1:
        src[0], src[1] = src[1], src[0]; neg = tuple({0: 1, 1: 0}.get(n, n) for n in neg)
    for i, s in enumerate(src):
        if isinstance(s, tuple):
            x, hi = B(s[1]); t.append(x); w.append((i,) if hi else i)
        else:
            assert s % 2 == 0; t.append(f"v[{s}:{s+1}]")
    assert d % 2 == 0
    m = bc(len(src), w)
    if neg:
        nn = ",".join("1" if i in neg else "0" for i in range(len(src))); m += f" neg_lo:[{nn}] neg_hi:[{nn}]"
    return f"v_pk_{op}_f32 v[{d}:{d+1}], " + ", ".join(t) + m

def stats_job(R, scr):
    L0, U, T = R, R+10, R+30
    ld = [f"v_mov_b32 v9, {WS_EPOCH}", ("vm", "st", "global_load_dword v9, v9, s[66:67] sc1")]
    for i in range(5): ld.append(("vm", "st", f"buffer_load_dwordx2 v[{L0+2*i}:{L0+2*i+1}], v{T}, s[16:19], s75 offen offset:{256*i}"))
    if int(OPT.get("el", 0)): ld = ld[2:] + ld[:2]
    if int(OPT.get("pg", 0)):
        ld += lines("s_cmp_eq_u32 s3, 1\ns_cselect_b64 s[4:5], s[46:47], s[60:61]\ns_cselect_b32 s6, 0, 0x200000\ns_cmp_eq_u32 s3, 2\ns_cselect_b64 s[4:5], s[48:49], s[4:5]\ns_cselect_b32 s6, 0, s6\ns_cmp_eq_u32 s3, 3\ns_cselect_b64 s[4:5], s[66:67], s[4:5]\ns_cselect_b32 s6, 0x1800000, s6")
        ld += ["v_lshlrev_b32 v66, 21, v1", "v_min_u32 v66, s6, v66", ("vm", None, "global_load_dword v66, v66, s[4:5]")]
    c = [("wvm", ["st"])]
    for i in range(10): c += [f"v_lshlrev_b32 v{U+2*i}, 16, v{L0+i}", f"v_and_b32 v{U+2*i+1}, 0xffff0000, v{L0+i}"]
    def red(v, t):
        o = [f"v_add_f32 v{v}, v{v}, v{v+1}"]
        for r in (8, 4, 2, 1): o.append(f"v_add_f32_dpp v{v}, v{v}, v{v} row_ror:{r} row_mask:0xf bank_mask:0xf")
        o += [f"v_mov_b32 v{t}, v{v}", f"v_permlane16_swap_b32 v{v}, v{t}", f"v_add_f32 v{v}, v{v}, v{t}", f"v_mul_f32 v{v}, 0x3acccccd, v{v}"]
        return o
    c.append(pk("add", T, U, U+2))
    for i in range(2, 10): c.append(pk("add", T, T, U+2*i))
    c += red(T, T+1)
    for i in range(10): c.append(pk("add", U+2*i, U+2*i, ("b", T), neg=(1,)))
    c.append(pk("mul", T+2, U, U))
    for i in range(1, 10): c.append(pk("fma", T+2, U+2*i, U+2*i, T+2))
    c += red(T+2, T+3)
    c += lines(f"""v_cvt_pk_bf16_f32 v{T}, v{T}, v{T+2}
v_and_b32 v{T+2}, 0xffff0000, v{T}
v_add_f32 v{T+2}, 0x3727c5ac, v{T+2}
v_cvt_pk_bf16_f32 v{T+2}, v{T+2}, v{T+2}
v_and_b32 v{T+2}, 0xffff0000, v{T+2}
v_sqrt_f32 v{T+2}, v{T+2}
v_and_b32 v{T}, 0xffff, v{T}
v_cvt_pk_bf16_f32 v{T+2}, v{T+2}, v{T+2}
v_readfirstlane_b32 s96, v9
v_and_b32 v{T+2}, 0xffff0000, v{T+2}
v_or_b32 v{T}, v{T+2}, v{T}
v_lshrrev_b32 v{T+1}, 5, v0
v_lshlrev_b32 v{T+1}, 2, v{T+1}
v_add_u32 v{T+1}, {scr}, v{T+1}
s_add_u32 s96, s96, 1""")
    c.append(("ds", None, f"ds_write_b32 v{T+1}, v{T}"))
    f = lines(f"v_and_b32 v{T+1}, 7, v1\nv_lshlrev_b32 v{T+1}, 2, v{T+1}\nv_add_u32 v{T+1}, {scr}, v{T+1}") + [("ds", "stf", f"ds_read_b32 v{T}, v{T+1}")]
    f += lines(f"v_lshlrev_b32 v{T+2}, 21, v0\nv_and_b32 v{T+2}, 0xfe000000, v{T+2}\nv_lshl_add_u32 v{T+2}, v1, 3, v{T+2}\ns_lshl_b32 s75, s70, 0\ns_lshl_b32 s75, s60, 7\ns_add_u32 s75, s75, {WS_STAT}".replace("s_lshl_b32 s75, s70, 0\n", "").replace("s60", "s31"))
    f += [("wds", ["stf"]), f"v_mov_b32 v{T+1}, s96", ("vm", None, f"buffer_store_dwordx2 v[{T}:{T+1}], v{T+2}, s[8:11], s75 offen sc1")]
    return ld, c, f
def tagtest(tags, exp="s96"):
    L = [f"v_xor_b32 v4, {exp}, v{tags[0]}"]
    for t in tags[1:]: L += [f"v_xor_b32 v5, {exp}, v{t}", "v_or_b32 v4, v4, v5"]
    return L + ["v_cmp_ne_u32 vcc, 0, v4"]
def gcheck(A, name, loads, tags):
    A(f"s_cbranch_vccz {name}_ok\ns_mov_b32 s7, 0x40000")
    A.label(f"{name}_l")
    for x in loads: A(x if isinstance(x, str) else x[2])
    A("s_waitcnt vmcnt(0)"); A.ext(tagtest(tags))
    A(f"s_sub_u32 s7, s7, 1\ns_cbranch_scc1 {name}_ok\ns_cbranch_vccnz {name}_l")
    A.label(f"{name}_ok")
WO = int(OPT.get("wo", 0)); NH = int(OPT.get("nh", 2))
U = [7, 8, 9, 10, 11, 0, 1, 2, 3, 4, 5, 6]
def w2reg(i):
    p = U.index(i)
    return 112 + 20*p if p < 7 else 20*(p-7)
def w2load(p, base=82):
    i = U[p]
    L = [f"s_add_u32 s79, s{base}, {i*5120}"]
    if i == 2: L += [f"s_cmp_eq_u32 s3, 3\ns_cselect_b32 s79, {hex(OOB)}, s79"]
    for nb in range(5):
        r = w2reg(i) + 4*nb
        L.append(("vm", ("w2", i), f"buffer_load_dwordx4 a[{r}:{r+3}], v{28+(nb>>2)}, s[8:11], s79 offen offset:{(nb&3)*1024} sc1"))
    return L
def w2loads(a, b, base=82): return sum((w2load(p, base) for p in range(a, b)), [])
def spread(A, main, extra, lo=0, hi=None):
    sl = interleave(main, extra, lo, hi) if extra else [[] for _ in main]
    for i, x in enumerate(main):
        A.it(x)
        for y in sl[i]: A.it(y)
def sig_early(A, e, d, t):
    A(f"s_cmp_ge_u32 s{e}, 11\ns_cselect_b32 s{t}, 11, 0\ns_cselect_b32 s{d}, 48, 0\ns_sub_u32 s{t}, s{e}, s{t}\ns_add_u32 s{d}, s{d}, s{t}\ns_mul_i32 s{t}, s{t}, 43\ns_lshr_b32 s{t}, s{t}, 7\ns_mul_i32 s{t}, s{t}, 9\ns_add_u32 s{d}, s{d}, s{t}")
def sig_late(A, l, t):
    A(f"s_lshr_b32 s{t}, s{l}, 2\ns_lshl_b32 s{t}, s{t}, 3\ns_add_u32 s{l}, s{l}, s{t}\ns_add_u32 s{l}, s{l}, 3")
def sig_ssm(A, k, t):
    A(f"s_mul_i32 s{t}, s{k}, 52429\ns_lshr_b32 s{t}, s{t}, 18\ns_mul_i32 s{t}, s{t}, 7\ns_add_u32 s{k}, s{k}, s{t}\ns_add_u32 s{k}, s{k}, 7")
def tlb_touch():
    T = int(OPT.get("tlb", 0))
    if not T: return []
    return lines(f"v_mul_u32_u24 v6, {hex(T*1024)}, v0\nv_min_u32 v7, {SZ_OUT-4}, v6") + [("vm", None, "buffer_load_dword v6, v6, s[8:11], 0 offen sc1"), ("vm", None, "global_load_dword v7, v7, s[62:63]")]
ORD = OPT.get("ord", "A")
def w2warm():
    return lines("s_lshr_b32 s75, s2, 6\ns_mul_i32 s75, s75, 6400\ns_add_u32 s75, s75, s82\ns_add_u32 s75, s75, 10240\nv_min_u32 v6, 49, v1\nv_lshlrev_b32 v6, 7, v6") + [("vm", None, "buffer_load_dword v7, v6, s[8:11], s75 offen sc1")]
def early_setup(A):
    srd(A, 8, P["ws"], WS_END)
    A("v_lshlrev_b32 v28, 4, v1\nv_add_u32 v29, 4096, v28")
    A("v_lshlrev_b32 v8, 20, v1\nv_and_b32 v8, 0xfe000000, v8\nv_lshl_add_u32 v8, v1, 2, v8")
def ph2_setup(A):
    A("s_and_b32 s28, s2, 1\ns_bfe_u32 s32, s2, 0x20001\ns_lshr_b32 s33, s2, 6\ns_lshl2_add_u32 s80, s32, s33\ns_bfe_u32 s81, s2, 0x30003\ns_lshl2_add_u32 s29, s28, s3")
    A(f"s_mul_i32 s32, s29, 12\ns_mul_i32 s33, s81, 96\ns_add_u32 s33, s33, s32\ns_mul_i32 s82, s33, 5120\ns_add_u32 s82, s82, {WS_W2P}")
    A(f"s_lshl1_add_u32 s33, s80, s28\ns_mul_i32 s34, s33, 96\ns_add_u32 s34, s34, s32\ns_mul_i32 s83, s34, {HS}\ns_add_u32 s83, s83, {WS_H}")
    A(f"s_xor_b32 s33, s33, 1\ns_mul_i32 s34, s33, 96\ns_add_u32 s34, s34, s32\ns_mul_i32 s30, s34, {HS}\ns_add_u32 s30, s30, {WS_H}")
    A(f"s_lshl_b32 s93, s80, 14\ns_add_u32 s93, s93, {WS_FLG}")
ACCG = 96; ACCK = 176
UF = OPT.get("u", "S") == "F"
if UF:
    STEPS = [("G",i) for i in range(3)] + [("K",i) for i in range(3)] + [("G",i) for i in range(3, 12)] + [("K",i) for i in range(3, 12)]
    AP = [[212, 216, 220, 224], [228, 232, 236, 240], [244, 248, 0, 4]]; G0, CHK = 0, {3: 1, 7: 2}
else:
    STEPS = [("G",i) for i in U[:5]] + [("K",i) for i in U[:3]] + [("G",i) for i in U[5:]] + [("K",i) for i in U[3:]]
    AP = [[b+4*t for t in range(4)] for b in (112, 128, 144)]; G0, CHK = 2, {5: 0, 8: 1}
POOL = [[f"v{b+4*t}" for t in range(4)] for b in (32, 48, 64, 80)] + [[f"a{r}" for r in q] for q in AP]
HBUF = [0,1,2,3,0,1,2,3,0,1,2,4,5,6,3,0,1,2,4,5,6,3,0,1]
def Hr(n, tb):
    b = POOL[HBUF[n]][tb]; r = int(b[1:]); return f"{b[0]}[{r}:{r+3}]"
FN = {0: 6, 1: 8, 2: 3, 3: 1, 4: 5}
def fbase(g):
    if g == 0: return lines("s_mul_i32 s31, s28, 22\ns_mul_i32 s32, s3, 6\ns_add_u32 s31, s31, s32\ns_min_u32 s31, s31, 38\ns_lshl_b32 s31, s31, 7\ns_add_u32 s31, s31, s93")
    if g == 1: return lines("s_mul_i32 s31, s29, 172\ns_lshr_b32 s31, s31, 7\ns_lshl_b32 s31, s31, 9\ns_add_u32 s31, s31, s93\ns_add_u32 s31, s31, 5632")
    if g == 2: return lines("s_mul_i32 s31, s29, 5\ns_lshr_b32 s31, s31, 1\ns_lshl_b32 s31, s31, 7\ns_add_u32 s31, s31, s93\ns_add_u32 s31, s31, 11264")
    if g == 3: return lines(f"s_xor_b32 s31, s95, 4\ns_lshl_b32 s31, s31, 7\ns_add_u32 s31, s31, {WS_XF}")
    if g == 4: return lines(f"s_lshl_b32 s31, s81, 3\ns_add_u32 s31, s31, s29\ns_mul_i32 s31, s31, 640\ns_add_u32 s31, s31, {WS_CF}")
    return lines(f"s_mul_i32 s31, s29, 7680\ns_add_u32 s31, s31, {WS_WF}\ns_mul_i32 s32, s81, 5\ns_cmp_eq_u32 s3, 3\ns_cselect_b32 s33, 2, 63")
def faddr(g):
    if g < 5: return [f"v_min_u32 v9, {FN[g]-1}, v1", "v_lshlrev_b32 v9, 7, v9"]
    return lines("v_lshrrev_b32 v9, 1, v1\nv_min_u32 v9, 6, v9\nv_cmp_eq_u32 vcc, s33, v9\nv_and_b32 v2, 1, v1\nv_lshl_add_u32 v2, v2, 2, s32\nv_cndmask_b32 v9, v9, 1, vcc\nv_lshrrev_b32 v2, 3, v2\nv_mad_u32_u24 v9, v9, 5, v2\nv_lshlrev_b32 v9, 7, v9")
def fpoll(g): return glue(fbase(g)) + faddr(g) + [("vm", "fl", "buffer_load_dword v9, v9, s[8:11], s31 offen sc1")]
def fcheck(A, name, g, pre=None):
    A.it(("wvm", ["fl"]))
    A(f"v_cmp_ne_u32 vcc, s96, v9\ns_cbranch_vccz {name}_ok\ns_mov_b32 s7, 0x40000")
    if pre: A(pre)
    A.label(f"{name}_l")
    A.ext(fbase(g) + faddr(g))
    A(f"buffer_load_dword v9, v9, s[8:11], s31 offen sc1\ns_waitcnt vmcnt(0)\nv_cmp_ne_u32 vcc, s96, v9\ns_sub_u32 s7, s7, 1\ns_cbranch_scc1 {name}_ok\ns_cbranch_vccnz {name}_l")
    A.label(f"{name}_ok")
def ftest(dst, src):
    return [("wvm", ["fl"]), f"v_cmp_ne_u32 vcc, s96, v9\ns_nop 0\ns_cmp_eq_u64 vcc, 0\ns_cselect_b32 s{dst}, s{src}, {hex(OOB)}"]
def fredo(A, name, g, dst, src, loads, pre=None):
    A(f"s_cmp_eq_u32 s{dst}, s{src}\ns_cbranch_scc1 {name}_done\ns_mov_b32 s7, 0x40000")
    if pre: A(pre)
    A.label(f"{name}_l")
    A.ext(fbase(g) + faddr(g))
    A(f"buffer_load_dword v9, v9, s[8:11], s31 offen sc1\ns_waitcnt vmcnt(0)\nv_cmp_ne_u32 vcc, s96, v9\ns_sub_u32 s7, s7, 1\ns_cbranch_scc1 {name}_ok\ns_cbranch_vccnz {name}_l")
    A.label(f"{name}_ok")
    for x in loads: A(x if isinstance(x, str) else x[2])
    if name == "FR": A("s_waitcnt vmcnt(0)")
    A.label(f"{name}_done")
def hload(n, base=None):
    hf, i = STEPS[n]
    L = [f"s_add_u32 s77, s{base or (30 if hf == 'G' else 83)}, {i*HS}"]
    if i == 2: L += [f"s_cmp_eq_u32 s3, 3\ns_cselect_b32 s77, {hex(OOB)}, s77"]
    for tb in range(4): L.append(("vm", ("h", n), f"buffer_load_dwordx4 {Hr(n,tb)}, v28, s[8:11], s77 offen offset:{tb*1024} sc1"))
    return L
XS = 81920
def ph2_addr(A):
    srd(A, 24, P["dsk"], 1280); srd(A, 20, P["out"], SZ_OUT)
    A("s_lshl1_add_u32 s32, s80, s28\ns_lshl_b32 s32, s32, 6\ns_lshl_b32 s33, s3, 4\ns_add_u32 s32, s32, s33\nv_and_b32 v2, 12, v1\nv_lshrrev_b32 v3, 4, v1\nv_add_u32 v2, v2, v3\nv_mul_u32_u24 v12, 160, v2\nv_add_u32 v2, s32, v2")
    A("v_lshrrev_b32 v15, 3, v2\nv_lshlrev_b32 v15, 7, v15\nv_and_b32 v3, 7, v2\nv_lshl_add_u32 v15, v3, 3, v15\nv_mul_u32_u24 v2, 2560, v2")
    A("s_mul_i32 s98, s81, 160\ns_mul_i32 s97, s32, 1280\ns_add_u32 s97, s97, s98\ns_lshl_b32 s33, s98, 1\nv_and_b32 v3, 3, v1\nv_lshl_add_u32 v13, v3, 4, v2\nv_add_u32 v13, s33, v13")
    A(f"s_mul_i32 s101, s3, 20480\ns_add_u32 s100, s101, {XS}\nv_lshl_add_u32 v14, v3, 3, s100\nv_add_u32 v12, v12, v14\ns_movk_i32 s33, 6554")
    for i in range(3):
        A(f"v_add_u32 v2, {64*i}, v1\nv_min_u32 v2, 159, v2\nv_mul_u32_u24 v3, s33, v2\nv_lshrrev_b32 v3, 16, v3\nv_mul_u32_u24 v3, 1120, v3\nv_lshl_add_u32 v{16+i}, v2, 4, v3")
    A("v_min_u32 v19, 144, v28\ns_mul_i32 s75, s3, 5120\nv_add_u32 v23, s75, v28\nv_add_u32 v24, 40960, v23")
    A(f"s_mul_i32 s4, s95, 5120\ns_add_u32 s4, s4, {WS_XCH}\ns_xor_b32 s5, s95, 4\ns_mul_i32 s5, s5, 5120\ns_add_u32 s5, s5, {WS_XCH}\ns_lshl_b32 s6, s95, 7\ns_add_u32 s6, s6, {WS_XF}")
FST = [f"s_mov_b32 s75, {WS_STAT}", ("vm", "fin", "buffer_load_dwordx2 v[10:11], v15, s[8:11], s75 offen sc1")]
def fin_loads():
    L = []
    for i in range(3): L += [f"s_add_u32 m0, s100, {1024*i}", ("vm", "fin", f"buffer_load_dwordx4 v{16+i}, s[16:19], s97 offen lds")]
    return L + ["s_add_u32 m0, s100, 3072", ("vm", "fin", "buffer_load_dwordx4 v19, s[24:27], s98 offen lds")] + FST
PARK = [f"a{r}" for r in list(range(100, 112)) + list(range(252, 256))] + ["v6", "v7", "v26", "v27"]
def fin_base(A):
    A.ext(tagtest([11])); gcheck(A, "FG", FST, [11])
    for nb in range(5):
        r = ACCG + 8*nb
        A(f"ds_read_b64 v[{r}:{r+1}], v12 offset:{32*nb}\nds_read_b64 v[{r+2}:{r+3}], v14 offset:{3072+32*nb}")
    A("v_and_b32 v16, 0xffff0000, v10\nv_rcp_f32 v16, v16\nv_lshlrev_b32 v10, 16, v10\ns_waitcnt lgkmcnt(0)")
    for k in range(10):
        r = ACCG + 8*(k >> 1); x = r + (k & 1); d = x + 2; o = r + 4 + 2*(k & 1)
        A(f"v_lshlrev_b32 v{o}, 16, v{x}\nv_and_b32 v{o+1}, 0xffff0000, v{x}\nv_lshlrev_b32 v18, 16, v{d}\nv_and_b32 v19, 0xffff0000, v{d}")
        A.ext([pk("add", 20, o, ("b", 10), neg=(1,)), pk("mul", 18, 18, ("b", 16)), pk("fma", o, 20, 18, o)])
        for e in range(2):
            p = PARK[2*k+e]; A(f"v_accvgpr_write_b32 {p}, v{o+e}" if p[0] == "a" else f"v_mov_b32 {p}, v{o+e}")
GROUPS = [[n] for n in range(13)] + [[13, 14]] + [[n] for n in range(15, 21)] + [[21, 22, 23]]
ISSUE = {0: (3,), 1: (4,), 2: (5,), 3: (6,), 4: (7,), 5: (8,), 6: (9,), 7: (10,), 8: (11, 12), 9: (13,), 10: (14,), 11: (15,), 12: (16,), 13: (17, 18, 19), 15: (20, 21), 16: (22,), 17: (23,)}
for k_, ns_ in ISSUE.items():
    for n_ in ns_:
        prev_ = [m for m in range(n_) if HBUF[m] == HBUF[n_]]
        assert (not prev_ or prev_[-1] < k_) and (HBUF[n_] < 4 or k_ > 7)
def acc2(hf, nb, tb): return (ACCG if hf == "G" else ACCK) + (tb*5+nb)*4

W_SLOT = 20480; NWS = 4; X_BASE = NWS*W_SLOT; X_SLOT = 16384; F_SCR = X_BASE + 3*X_SLOT
def gen_ffn(A):
    import copy
    A("s_mul_i32 s70, s69, 160\ns_min_u32 s70, s70, 1568")
    A("s_lshl_b32 s32, s68, 7\ns_lshl_b32 s33, s3, 5\ns_add_u32 s32, s32, s33")
    A("v_lshrrev_b32 v2, 3, v1\nv_add_u32 v2, s32, v2\nv_mul_u32_u24 v2, 1280, v2\nv_lshrrev_b32 v3, 4, v1\nv_xor_b32 v3, v3, v1\nv_and_b32 v3, 7, v3\nv_lshlrev_b32 v3, 4, v3")
    A(f"v_add_u32 v15, v2, v3\nv_xor_b32 v3, 64, v3\nv_add_u32 v16, v2, v3\nv_add_u32 v16, {8*1280-1024}, v16\nv_add_u32 v17, {16*1280}, v15\nv_add_u32 v18, {16*1280}, v16")
    A(f"s_mul_i32 s73, s3, 5120\ns_lshl_b32 s74, s3, 12\ns_add_u32 s74, s74, {X_BASE}")
    A("s_mul_i32 s32, s71, 320\ns_lshl_b32 s33, s70, 1\ns_movk_i32 s34, 3277")
    for i in range(5):
        A(f"v_add_u32 v2, s32, v1\nv_add_u32 v2, {64*i}, v2\nv_mul_u32_u24 v3, s34, v2\nv_lshrrev_b32 v3, 16, v3")
        A("v_mul_u32_u24 v4, 20, v3\nv_sub_u32 v4, v2, v4\nv_lshrrev_b32 v5, 2, v3\nv_and_b32 v5, 2, v5\nv_xor_b32 v4, v4, v5")
        A(f"v_mul_u32_u24 v3, 3456, v3\nv_lshl_add_u32 v3, v4, 4, v3\nv_add_u32 v3, s33, v3\nv_subrev_u32 v{10+i}, {1024*(i&3)}, v3")
    def dmaW(s):
        L = [f"s_add_u32 m0, s73, {(s%NWS)*W_SLOT}", f"s_mov_b32 s77, {s*32*3456}"]
        for i in range(5):
            if i == 4: L.append(f"s_add_u32 m0, s73, {(s%NWS)*W_SLOT+4096}")
            L.append(("vm", ("W", s), f"buffer_load_dwordx4 v{10+i}, s[12:15], s77 offen offset:{1024*(i&3)} lds"))
        return L
    def dmaX(u, hs=(0, 1)):
        L = []
        for h in hs:
            L += [f"s_add_u32 m0, s74, {(u%3)*X_SLOT+2048*h}", f"s_movk_i32 s78, {u*128}"]
            for i in range(2): L.append(("vm", ("X", u), f"buffer_load_dwordx4 v{15+2*h+i}, s[16:19], s78 offen offset:{1024*i} lds"))
        return L
    st_ld, st_c, st_f = stats_job(32, X_BASE + 2*X_SLOT)
    def lds_setup(A):
        early_setup(A)
        A("v_lshrrev_b32 v2, 4, v1\nv_bfe_u32 v3, v1, 2, 2\nv_lshl_add_u32 v3, v2, 3, v3\nv_mul_u32_u24 v3, 320, v3")
        A("v_and_b32 v4, 3, v1\nv_lshl_add_u32 v3, v4, 3, v3\nv_and_b32 v4, 1, v2\nv_lshlrev_b32 v4, 5, v4")
        A("s_mul_i32 s75, s72, 192\nv_add_u32 v5, s75, v3\nv_add_u32 v20, v5, v4\nv_sub_u32 v21, v5, v4")
        A("s_lshl_b32 s75, s72, 5\ns_add_u32 s75, s75, 128\nv_xor_b32 v5, s75, v4\nv_add_u32 v22, v3, v5")
        for i in range(3): A(f"v_add_u32 v{23+i}, {3*W_SLOT}, v{20+i}")
        A("v_and_b32 v3, 15, v1\nv_lshrrev_b32 v4, 1, v3\nv_xor_b32 v4, v4, v2\nv_lshlrev_b32 v4, 4, v4\nv_lshl_add_u32 v3, v3, 7, v4")
        A(f"s_lshl_b32 s75, s71, 13\ns_add_u32 s75, s75, {X_BASE}\nv_add_u32 v26, s75, v3\nv_xor_b32 v27, 64, v26")
    PEND = []
    def start(role, pre, post, side):
        pre(A)
        A("s_waitcnt lgkmcnt(0)")
        srd(A, 16, P["x"], SZ_X); A.its(st_ld); post(A)
        A("s_cmp_eq_u32 s72, 0"); srd_sel(A, 12, P["w1"], P["w3"], SZ_W)
        main = dmaX(0) + dmaW(0)
        first, second = (side, main) if (ORD == "B" and side) else (main, side)
        A.its(first)
        A.L.append(f";@TOUCH {role}")
        A(f"s_branch {role}_a"); A.L.append(f";@SEG {role}"); A.label(f"{role}_a")
        lds_setup(A)
        A.its(st_c[:1])
        if ORD == "B": spread(A, st_c[1:], second + dmaW(1), 0, len(st_c) - 10)
        elif ORD == "A": spread(A, st_c[1:], dmaW(1) + second, 0, len(st_c) - 10)
        else: spread(A, st_c[1:], dmaW(1) + dmaX(1) + dmaW(2), 0, len(st_c) - 4); PEND[:] = second
    def hs(A):
        A("s_lshl1_add_u32 s32, s69, s72"); sig_early(A, 32, 84, 33)
        A("s_mul_i32 s33, s69, 3\ns_cmp_eq_u32 s69, 10\ns_cselect_b32 s34, 1, 0\ns_sub_u32 s33, s33, s34\ns_lshl1_add_u32 s85, s72, s33\ns_add_u32 s86, s33, 1")
        sig_late(A, 85, 34); sig_late(A, 86, 34)
        A(f"s_lshl1_add_u32 s33, s68, s71\ns_mul_i32 s34, s33, 96")
        for r in (84, 85, 86): A(f"s_add_u32 s{r}, s{r}, s34\ns_mul_i32 s{r}, s{r}, {HS}\ns_add_u32 s{r}, s{r}, {WS_H}")
        A(f"s_cmp_eq_u32 s32, 19\ns_cselect_b32 s85, {hex(OOB)}, s85")
        A(f"s_lshl1_add_u32 s87, s32, s71\ns_lshl_b32 s33, s68, 7\ns_add_u32 s87, s87, s33\ns_lshl_b32 s87, s87, 7\ns_add_u32 s87, s87, {WS_FLG}")
    late_setup = [cap(ph2_setup), []] + chop(cap(hs), 2)
    ep_ld = lines(f"s_mul_i32 s75, s72, 1728\ns_mul_i32 s76, s71, 80\ns_add_u32 s75, s75, s76\ns_add_u32 s75, s75, s70\ns_lshl_b32 s75, s75, 3\ns_add_u32 s75, s75, {WS_CS}\ns_add_u32 s76, s75, {CS_HALF}\nv_min_u32 v2, 624, v28")
    ep_ld += [("vm", "ep", "buffer_load_dwordx4 v[56:59], v2, s[8:11], s75 offen sc1"), ("vm", "ep", "buffer_load_dwordx4 v[60:63], v2, s[8:11], s76 offen sc1")]
    ep_ld += lines(f"v_and_b32 v2, 7, v1\nv_lshlrev_b32 v2, 3, v2\nv_and_b32 v3, 8, v1\nv_lshl_add_u32 v2, v3, 4, v2\ns_lshl1_add_u32 s75, s68, s71\ns_lshl_b32 s75, s75, 10\ns_add_u32 s75, s75, {WS_STAT}")
    for tb in range(4): ep_ld.append(("vm", "ep", f"buffer_load_dwordx2 v[{64+2*tb}:{65+2*tb}], v2, s[8:11], s75 offen offset:{256*tb} sc1"))
    ep_tags = [57, 59, 61, 63, 65, 67, 69, 71]
    ep_t = [("wvm", ["ep"])] + tagtest(ep_tags)
    ep_w = lines(f"v_add_f32 v56, v56, v60\nv_add_f32 v57, v58, v62\ns_lshl_b32 s75, s72, 10\ns_mul_i32 s76, s71, 320\ns_add_u32 s75, s75, s76\ns_add_u32 s75, s75, {F_SCR}\nv_min_u32 v2, 39, v1\nv_lshl_add_u32 v2, v2, 3, s75")
    ep_w += [("ds", None, "ds_write_b64 v2, v[56:57]")]
    ep_r = lines(f"v_and_b32 v2, 48, v1\ns_mul_i32 s75, s72, 384\ns_add_u32 s75, s75, {F_SCR}\nv_add_u32 v3, s75, v2\ns_lshl_b32 s75, s72, 6\ns_add_u32 s75, s75, {F_SCR+256}\nv_add_u32 v2, s75, v2")
    for j in range(10):
        pr, m = j >> 1, j & 1
        ep_r.append(("ds", None, f"ds_read_b128 v[{56+4*j}:{59+4*j}], v{2 if pr == 4 else 3} offset:{1024*m + (0 if pr == 4 else 64*pr)}"))
    ep_c = []
    for tb in range(4):
        ep_c += lines(f"v_lshlrev_b32 v{44+tb}, 16, v{64+2*tb}\nv_and_b32 v{52+tb}, 0xffff0000, v{64+2*tb}\nv_rcp_f32 v{48+tb}, v{52+tb}\nv_mul_f32 v{52+tb}, v{52+tb}, v{52+tb}\nv_mul_f32 v{48+tb}, 0xbfb8aa3b, v{48+tb}")
    ep_a = lines("v_lshrrev_b32 v2, 4, v1\nv_and_b32 v3, 1, v2\nv_lshlrev_b32 v3, 10, v3\nv_lshrrev_b32 v2, 1, v2\nv_lshl_add_u32 v3, v2, 8, v3")
    ep_a += lines("v_and_b32 v2, 15, v1\nv_lshl_add_u32 v3, v2, 4, v3\ns_lshl_b32 s75, s72, 9\nv_add_u32 v30, s75, v3\nv_mov_b32 v31, s96\ns_add_u32 s99, s87, 5632")
    ACC = 96
    def acc(j, tb): return ACC + (j*4+tb)*4
    def Wr(par, j): return par*56 + j*4
    def Xr(par, tb): return par*56 + 40 + tb*4
    def reads(s):
        par = s & 1; L = []; sl = s % NWS; hi = 3 if sl >= 3 else 0; so = (sl - hi)*W_SLOT
        for tb in range(4): L.append(("ds", None, f"ds_read_b128 a[{Xr(par,tb)}:{Xr(par,tb)+3}], v{26+(s&1)} offset:{((s>>1)%3)*X_SLOT + tb*2048}"))
        for j in range(10):
            pr, m = j >> 1, j & 1; ar = 22 if pr == 4 else 20 + (pr & 1); co = 0 if pr == 4 else pr*32
            for hh in range(2): L.append(("ds", None, f"ds_read_b64_tr_b16 a[{Wr(par,j)+2*hh}:{Wr(par,j)+2*hh+1}], v{ar+hi} offset:{so + m*10240 + hh*1280 + co}"))
        return L
    NL = int(OPT.get("nl", 7)); L0 = int(OPT.get("l0", 0)); wl = [[]]*L0 + chop(w2loads(0, NL), 9-L0)
    def loop(role, mem, side, xt={}):
        M = {0: dmaX(1) + dmaW(2), 1: dmaW(3) + dmaX(2), 2: dmaW(4) + dmaW(5), 3: dmaX(3) + dmaW(6), 4: dmaW(7) + dmaW(8), 5: dmaX(4) + dmaW(9), 6: dmaW(10) + dmaX(5)}
        for s in range(7, 16): M[s] = dmaW(s+4) + (dmaX((s+5) >> 1, ((s+1) & 1,)) if s < 15 else [])
        if ORD == "C": M[0] = PEND + dmaW(3); M[1] = dmaX(2) + dmaW(4); M[2] = dmaW(5)
        if "flat" in OPT:
            M = {0: dmaX(1) + dmaW(2), 1: dmaW(3) + dmaX(2), 2: dmaW(4) + dmaW(5)}
            for s in range(3, 17): M[s] = dmaW(s+3)
            M[3] += dmaX(3)
            for u in range(4, 10):
                M[2*u-4] += dmaX(u, (0,)); M[2*u-3] += dmaX(u, (1,))
        for s, L in mem.items(): M[s] = M[s] + ([x if isinstance(x, str) else (x[0], x[1], x[2].replace("s77 offen", "s76 offen")) for x in L] if "noside" in OPT else L)
        M[15] += wl[0]
        for s in range(16, 20): M[s] = M.get(s, []) + wl[2*s-31] + wl[2*s-30]
        S = dict(side)
        for k, L in {5: late_setup[0], 6: late_setup[2], 8: late_setup[3], 11: ep_a, 12: fpoll(4) + ep_ld[10:], 13: ep_ld[:10], 15: fpoll(5), 16: ep_t, 17: ep_w + ep_c, 18: ep_r}.items():
            S[k] = S.get(k, []) + L
        if "wf" in OPT: S[int(OPT["wf"])] = S.get(int(OPT["wf"]), []) + w2warm()
        A.L.append(f";@TOUCH P{0 if role == 'FA' else 2}")
        A.sync([("X", 0), ("W", 0)]); stamp(A, 1)
        A.its(reads(0))
        for s in range(20):
            tags = ([("W", s+1), ("X", (s+1) >> 1)] if s < 19 else []) + xt.get(s, [])
            if s == 15: fcheck(A, role + "C", 4)
            if s == 17: gcheck(A, role + "G", ep_ld, ep_tags); fcheck(A, role + "P", 5)
            A.sync(tags)
            tick(A, s, 19)
            par = s & 1; mf = []
            for j in range(10):
                for tb in (range(4) if j % 2 == 0 or not SN else range(3, -1, -1)):
                    c = acc(j, tb); mf.append(f"{MF} v[{c}:{c+3}], a[{Wr(par,j)}:{Wr(par,j)+3}], a[{Xr(par,tb)}:{Xr(par,tb)+3}], " + (f"v[{c}:{c+3}]" if s else "0"))
            A.weave(mf, [(reads(s+1) if s < 19 else [], 0, 30), (M.get(s, []), 0, 39), (S.get(s, []), 1, 39)])
    A("s_mul_i32 s34, s69, 5\ns_lshr_b32 s34, s34, 1\ns_and_b32 s33, s68, 7\ns_lshr_b32 s35, s68, 3\ns_lshl1_add_u32 s32, s33, s35\ns_and_b32 s76, s69, 1\ns_lshl2_add_u32 s76, s76, 8\ns_cmp_ge_u32 s32, s76\ns_cbranch_scc1 FB_p")
    snap = (A.nv, dict(A.tv), A.dv, A.nd, dict(A.td), A.dd)
    def fa0(A):
        A(f"s_lshl2_add_u32 s32, s34, s32\ns_lshr_b32 s76, s33, 1\ns_add_u32 s76, s76, s34\ns_and_b32 s33, s33, 1\ns_mul_i32 s33, s33, 27\ns_add_u32 s33, s33, s76\ns_mov_b32 s34, s35")
        A(f"s_lshl_b32 s76, s76, 7\ns_lshl2_add_u32 s97, s34, s3\ns_mul_i32 s97, s97, {8*3456}\ns_add_u32 s97, s97, s76")
        A("v_lshrrev_b32 v2, 3, v1\nv_mul_u32_u24 v2, 3456, v2\nv_and_b32 v3, 7, v1\nv_lshl_add_u32 v30, v3, 4, v2")
    def fa1(A):
        A("s_cmp_lt_u32 s33, 27"); srd_sel(A, 24, P["w1"], P["w3"], SZ_W)
    def fa2(A):
        A(f"s_lshl_b32 s98, s33, 9\ns_mul_i32 s34, s34, {CS_HALF}\ns_add_u32 s98, s98, s34\ns_add_u32 s98, s98, {WS_CS}\ns_cmp_eq_u32 s3, 0\ns_cselect_b32 s98, s98, {hex(OOB)}")
        A("v_and_b32 v2, 15, v1\nv_and_b32 v3, 1, v1\nv_lshlrev_b32 v3, 4, v3\nv_mov_b32 v4, 0x3f80\nv_lshlrev_b32 v3, v3, v4\nv_lshrrev_b32 v2, 1, v2")
        for r in range(4): A(f"v_cmp_eq_u32 vcc, {r}, v2\nv_cndmask_b32 v{72+r}, 0, v3, vcc")
        A(f"v_and_b32 v2, 7, v1\nv_lshlrev_b32 v2, 5, v2\nv_and_b32 v3, 16, v1\nv_add_u32 v2, v2, v3\ns_lshl_b32 s75, s3, 8\ns_add_u32 s75, s75, {F_SCR}\nv_add_u32 v2, s75, v2\nv_and_b32 v3, 32, v1\nv_lshl_add_u32 v80, v3, 5, v2")
        A(f"v_lshlrev_b32 v82, 2, v1\nv_add_u32 v81, {F_SCR}, v82\nv_lshlrev_b32 v82, 3, v1")
    cs_ld = []
    for i in range(10): cs_ld += [f"s_add_u32 s77, s97, {i*64*3456}", ("vm", "csl", f"buffer_load_dwordx4 a[{112+4*i}:{115+4*i}], v30, s[24:27], s77 offen")]
    cs_c = [("wvm", ["csl"])]
    for i in range(10): cs_c.append(f"{MF} v[76:79], v[72:75], a[{112+4*i}:{115+4*i}], " + ("v[76:79]" if i else "0"))
    cs_c += ["s_nop 0"]*2
    for e in range(4): cs_c.append(f"v_add_f32_dpp v{76+e}, v{76+e}, v{76+e} row_ror:8 row_mask:0xf bank_mask:0xf")
    cs_c.append(("ds", None, "ds_write_b128 v80, v[76:79]"))
    cs_f = [("ds", "csf", f"ds_read_b32 v{72+w}, v81 offset:{256*w}") for w in range(4)]
    cs_f += [("wds", ["csf"]), "v_add_f32 v72, v72, v73", "v_add_f32 v74, v74, v75", "v_mov_b32 v73, s96", "v_add_f32 v72, v72, v74", ("vm", None, "buffer_store_dwordx2 v[72:73], v82, s[8:11], s98 offen sc1")]
    CB = F_SCR + 4096
    def fc1(A):
        A("s_cmp_eq_u32 s72, 0"); srd_sel(A, 20, P["cre"], P["cim"], SZ_B)
        A(f"s_and_b32 s4, s32, 7\ns_lshr_b32 s5, s32, 3\ns_lshl1_add_u32 s99, s4, s71\ns_mul_i32 s99, s99, 51200\ns_lshl_b32 s75, s5, 7\ns_add_u32 s99, s99, s75\ns_cmp_lt_u32 s32, 80\ns_cselect_b32 s99, s99, {hex(OOB)}")
        A(f"s_add_u32 s101, s73, {CB}\nv_lshrrev_b32 v2, 3, v1\nv_mul_u32_u24 v2, 1280, v2\nv_lshrrev_b32 v3, 4, v1\nv_xor_b32 v3, v3, v1\nv_and_b32 v3, 7, v3\nv_lshl_add_u32 v2, v3, 4, v2\ns_lshl_b32 s75, s71, 6\nv_xor_b32 v84, s75, v2\nv_xor_b32 v85, 64, v84")
    def fc2(A):
        A(f"s_lshl2_add_u32 s5, s5, s3\ns_mul_i32 s6, s4, 40\ns_add_u32 s6, s6, s5\ns_lshl_b32 s6, s6, 7\ns_add_u32 s6, s6, {WS_CF}")
        sig_ssm(A, 5, 75)
        A(f"s_mul_i32 s4, s4, 96\ns_add_u32 s5, s5, s4\ns_mul_i32 s100, s5, 5120\ns_add_u32 s100, s100, {WS_W2P}\ns_cmp_lt_u32 s32, 80\ns_cselect_b32 s100, s100, {hex(OOB)}\ns_cselect_b32 s6, s6, {hex(OOB)}")
        A(f"v_and_b32 v2, 15, v1\nv_bfe_u32 v3, v1, 4, 1\ns_lshl_b32 s75, s3, 1\nv_add_u32 v3, s75, v3\nv_lshrrev_b32 v4, 1, v2\nv_xor_b32 v3, v3, v4\nv_lshlrev_b32 v3, 4, v3\nv_lshl_add_u32 v3, v2, 7, v3")
        A(f"v_lshrrev_b32 v4, 5, v1\nv_mul_u32_u24 v4, 10240, v4\nv_add_u32 v3, v3, v4\nv_add_u32 v86, {CB}, v3")
    c_ld = []
    for i in range(5): c_ld += [f"s_add_u32 m0, s101, {1024*i}", f"s_add_u32 s77, s99, {10240*i}", ("vm", "cl", f"buffer_load_dwordx4 v{84+(i&1)}, s[20:23], s77 offen lds")]
    c_r = [("ds", None, f"ds_read_b128 a[{152+4*nb}:{155+4*nb}], v86 offset:{2048*nb}") for nb in range(5)]
    c_s = [("vm", "cs", f"buffer_store_dwordx4 a[{152+4*nb}:{155+4*nb}], v{28+(nb>>2)}, s[8:11], s100 offen offset:{(nb&3)*1024} sc1") for nb in range(5)]
    c_f = ["v_mov_b32 v3, s96", ("wvm", ["cs"]), ("vm", None, "buffer_store_dword v3, v8, s[8:11], s6 offen sc1")]
    CD = int(OPT.get("cd", 0))
    start("FA", fa0, fa1, cs_ld)
    fc1(A)
    loop("FA", {CD: c_ld, CD+2: c_r, CD+3: c_s[:3], CD+4: c_s[3:]}, {0: st_f + cap(fc2), 1: cap(fa2), int(OPT.get("cf", 7)): c_f, 2: cs_c[:11], int(OPT.get("cw", 9)): cs_c[13:] + ["s_nop 0"]*6, int(OPT.get("cw", 9))+1: cs_f}, {CD+2: ["cl"]})
    A("s_branch FFN_EP")
    A.nv, A.tv, A.dv, A.nd, A.td, A.dd = snap
    A.L.append(";@SEG FBP"); A.label("FB_p")
    SO = (4, 5, 6, 97, 24, 25, 26, 27)
    def fb1(A):
        A("s_sub_u32 s32, s32, s76\ns_lshl_b32 s35, s69, 2\ns_sub_u32 s35, s35, s34\ns_lshl2_add_u32 s34, s35, s32\ns_lshl2_add_u32 s32, s34, s3\ns_mul_i32 s34, s32, 52429\ns_lshr_b32 s34, s34, 18\ns_mul_i32 s33, s34, 5\ns_sub_u32 s33, s32, s33")
        A(f"s_mul_i32 s99, s34, 40960\ns_lshl_b32 s35, s33, 8\ns_add_u32 s99, s99, s35\ns_lshl_b32 s101, s3, 13\ns_add_u32 s101, s101, {F_SCR}")
        A(f"v_lshrrev_b32 v2, 4, v1\nv_mul_u32_u24 v30, 1280, v2\nv_and_b32 v3, 15, v1\nv_lshlrev_b32 v2, 1, v2\nv_xor_b32 v3, v3, v2\nv_lshl_add_u32 v30, v3, 4, v30\nv_xor_b32 v31, 128, v30")
    def fb2(A):
        A("s_mul_i32 s35, s34, 52429\ns_lshr_b32 s35, s35, 18\ns_mul_i32 s75, s35, 5\ns_sub_u32 s75, s34, s75\ns_sub_u32 s76, s34, 49\ns_cmp_ge_u32 s34, 49\ns_cselect_b32 s35, 10, s35\ns_cselect_b32 s75, s76, s75")
        A("s_cmp_eq_u32 s75, 3\ns_cselect_b32 s76, 1, 0\ns_lshl1_add_u32 s76, s35, s76"); sig_early(A, 76, 100, 79)
        A("s_mul_i32 s76, s35, 3\ns_lshr_b32 s79, s75, 1\ns_add_u32 s76, s76, s79\ns_cmp_eq_u32 s35, 10\ns_cselect_b32 s79, 1, 0\ns_sub_u32 s76, s76, s79"); sig_late(A, 76, 79)
        A("s_lshr_b32 s79, 9, s75\ns_bitcmp1_b32 s79, 0\ns_cselect_b32 s100, s100, s76")
        A(f"s_mul_i32 s98, s100, 5\ns_add_u32 s98, s98, s33\ns_lshl_b32 s98, s98, 7\ns_add_u32 s98, s98, {WS_WF}")
        A(f"s_mul_i32 s100, s100, 5120\ns_lshl_b32 s79, s33, 13\ns_add_u32 s100, s100, s79\ns_add_u32 s100, s100, {WS_W2P}")
        A(f"s_cmp_lt_u32 s32, 270\ns_cselect_b32 s100, s100, {hex(OOB)}\ns_cselect_b32 s98, s98, {hex(OOB)}")
        A("s_cmp_eq_u32 s75, 2\ns_cselect_b32 s75, 8, 4\ns_cselect_b32 s76, 1, 4\ns_lshl_b32 s76, s76, 10")
        A(f"v_lshrrev_b32 v2, 4, v1\nv_mul_u32_u24 v2, s75, v2\nv_bfe_u32 v3, v1, 2, 2\nv_add_u32 v2, v2, v3\nv_lshlrev_b32 v2, 8, v2\nv_and_b32 v3, 3, v1\nv_lshl_add_u32 v2, v3, 3, v2")
        for r in (80, 81):
            A((f"v_mov_b32 v{r}, v2" if r == 80 else f"v_add_u32 v{r}, s76, v2") + f"\nv_lshrrev_b32 v3, 1, v{r}\nv_and_b32 v3, 0x400, v3\nv_xor_b32 v3, v3, v{r}\nv_bfe_u32 v3, v3, 8, 3\nv_lshl_add_u32 v{r}, v3, 5, v{r}\nv_add_u32 v{r}, s101, v{r}")
        A(f"s_mul_i32 s33, s33, {8*52429}")
        for k in range(8): A(f"s_add_u32 s79, s33, {k*52429}\ns_lshr_b32 s79, s79, 18\ns_mul_i32 s79, s79, 486400\ns_add_u32 s{SO[k]}, s100, s79")
    w2_ld = []
    for i in range(8): w2_ld += [f"s_add_u32 m0, s101, {1024*i}", f"s_add_u32 s77, s99, {5120*i}", ("vm", "w2l", f"buffer_load_dwordx4 v{30 + ((i ^ (i >> 1)) & 1)}, s[20:23], s77 offen lds")]
    w2_c = [("wvm", ["w2l"])]
    for k in range(8):
        for hh in range(2): w2_c += [f"v_xor_b32 v{82+hh}, {32*k}, v{80+hh}", ("ds", "w2t", f"ds_read_b64_tr_b16 a[{152+4*k+2*hh}:{153+4*k+2*hh}], v{82+hh}")]
    w2_s = [("vm", "side", f"buffer_store_dwordx4 a[{152+4*k}:{155+4*k}], v{28+(k>>2)}, s[8:11], s{SO[k]} offen offset:{(k&3)*1024} sc1") for k in range(8)]
    f2 = chop(cap(fb2), 3)
    BD = int(OPT.get("bd", 0)); BS = int(OPT.get("bs", BD+4)); BN = int(OPT.get("bn", 3))
    start("FB", fb1, lambda A: srd(A, 20, P["w2"], SZ_W), w2_ld if BD < 0 else [])
    fl = ["v_mov_b32 v3, s96", ("wvm", ["side"]), ("vm", None, "buffer_store_dword v3, v8, s[8:11], s98 offen sc1")]
    if BD < 0: loop("FB", {}, {0: st_f + f2[0], 1: f2[1], 2: f2[2], 3: w2_c, 4: w2_s[:4], 5: w2_s[4:], 8: fl})
    else: loop("FB", {BD: w2_ld}, {0: st_f + f2[0], 1: f2[1], 2: f2[2], BD+3: w2_c, **{BS+k: L for k, L in enumerate(chop(w2_s, BN))}, BS+BN+2: fl})
    A.L.append(";@SEG EP"); A.label("FFN_EP"); A.reset()
    A("s_waitcnt lgkmcnt(0)"); tick(A, 20, 19); tockdump(A, 20, 19, 0x40000)
    stamp(A, 2)
    A("s_nop 6")
    T = 32
    def silu(pr, tb, dst):
        g, u = acc(2*pr, tb), acc(2*pr+1, tb); cg, cu = 56+8*pr, 60+8*pr
        L = []
        for k in (0, 2): L.append(pk("fma", g+k, cg+k, ("b", 44+tb), g+k, neg=(1,)))
        for k in (0, 2): L.append(pk("mul", T+k, g+k, ("b", 48+tb)))
        for k in (0, 2): L.append(pk("fma", u+k, cu+k, ("b", 44+tb), u+k, neg=(1,)))
        for e in range(4): L.append(f"v_exp_f32 v{T+e}, v{T+e}")
        for k in (0, 2): L.append(pk("mul", g+k, g+k, u+k))
        for k in (0, 2): L.append(pk("fma", T+k, T+k, ("b", 52+tb), ("b", 52+tb)))
        for e in range(4): L.append(f"v_rcp_f32 v{T+e}, v{T+e}")
        for k in (0, 2): L.append(pk("mul", g+k, g+k, T+k))
        L += [f"v_cvt_pk_bf16_f32 v{dst}, v{g}, v{g+1}", f"v_cvt_pk_bf16_f32 v{dst+1}, v{g+2}, v{g+3}"]
        return L
    ep = []
    grp = []
    for fr in range(2):
        for tb in range(4):
            o = acc(4*fr+1, tb)
            grp.append((silu(2*fr, tb, o) + silu(2*fr+1, tb, o+2), ("vm", ("H", fr), f"buffer_store_dwordx4 v[{o}:{o+3}], v28, s[8:11], s{84+fr} offen offset:{tb*1024} sc1")))
    for tp in range(2):
        o = acc(9, 2*tp)
        grp.append((silu(4, 2*tp, o) + silu(4, 2*tp+1, o+2) + [f"v_permlane16_swap_b32 v{o}, v{o+2}", f"v_permlane16_swap_b32 v{o+1}, v{o+3}"],
                    ("vm", ("H", 2), f"buffer_store_dwordx4 v[{o}:{o+3}], v30, s[8:11], s86 offen offset:{tp*2048} sc1")))
    we = chop(w2loads(NL, NL+FE), 8) if FE else [[]]*8
    for k, (c, st) in enumerate(grp):
        spread(A, c, we[k] if k < 8 else [])
        if k == int(OPT.get("ef", 99)): A.its([("wvm", [("H", 0)]), ("vm", None, "buffer_store_dword v31, v8, s[8:11], s87 offen sc1")])
        A.it(st)
    stamp(A, 3)
    if "ef" not in OPT: A.its([("wvm", [("H", 0)]), ("vm", None, "buffer_store_dword v31, v8, s[8:11], s87 offen sc1")])
    ph2_addr(A)
    PQ = int(OPT.get("pq", 0)); lf = [("wvm", [("H", 2)]), ("vm", None, "buffer_store_dword v31, v8, s[8:11], s99 offen sc1")]
    pt = lambda i: [("fn", lambda: ptick(A, i, 25))]
    if TS >= 2: A("s_mov_b32 s7, 0x40001")
    if int(OPT.get("lfe", 0)): A.its(pt(50) + fin_loads() + w2loads(NL+FE, 12-PQ) + pt(51) + lf + pt(52) + fpoll(G0) + w2loads(12-PQ, 12) + pt(53) + [("wvm", ["fl"])] + pt(54))
    else: A.its(fin_loads() + w2loads(NL+FE, 12-PQ) + fpoll(G0) + w2loads(12-PQ, 12) + lf)
    fcheck(A, "FR", G0)
    if TS >= 2: A("v_writelane_b32 v25, s7, 56"); ptick(A, 55, 25)
    A("s_branch PH2")

S_SLOT = 49152; S_SCR = 3*S_SLOT
def gen_ssm(A):
    A.reset()
    A("s_lshl_b32 s32, s68, 8\ns_lshl_b32 s33, s72, 7\ns_add_u32 s32, s32, s33\ns_lshl_b32 s33, s71, 3\ns_add_u32 s32, s32, s33")
    A("v_and_b32 v2, 32, v1\nv_bfe_u32 v3, v1, 3, 1\nv_lshl_add_u32 v2, v3, 4, v2\nv_bfe_u32 v3, v1, 4, 1\nv_add3_u32 v2, v2, v3, s32\nv_mul_u32_u24 v2, 1280, v2")
    A("v_lshrrev_b32 v3, 4, v1\nv_xor_b32 v3, v3, v1\nv_and_b32 v3, 7, v3\nv_lshlrev_b32 v3, 4, v3\nv_xor_b32 v4, 64, v3\nv_add_u32 v5, v2, v3\nv_add_u32 v6, v2, v4")
    for ii in range(8): A(f"v_add_u32 v{10+ii}, {(64*(ii&1) + 2*(ii>>1))*1280 - 1024*(ii&3)}, v{5+(ii&1)}")
    A("s_lshl_b32 s32, s69, 6\ns_lshl_b32 s33, s71, 5\ns_add_u32 s32, s32, s33")
    A("v_lshrrev_b32 v2, 3, v1\nv_add_u32 v2, s32, v2\nv_mul_u32_u24 v2, 1280, v2\nv_add_u32 v5, v2, v3\nv_add_u32 v6, v2, v4")
    for i in range(4): A(f"v_add_u32 v{18+i}, {8*i*1280 - 1024*i}, v{5+(i&1)}")
    A("s_lshl_b32 s73, s3, 13\ns_lshl_b32 s74, s3, 12\ns_add_u32 s74, s74, 32768")
    st_ld, st_c, st_f = stats_job(32, S_SCR)
    def dma(u, hs=(0, 1)):
        b = (u % 3)*S_SLOT; L = []
        for h in hs:
            L += [f"s_add_u32 m0, s73, {b+4096*h}", f"s_movk_i32 s78, {u*128}"]
            for i in range(4): L.append(("vm", ("S", u), f"buffer_load_dwordx4 v{10+4*h+i}, s[16:19], s78 offen offset:{1024*i} lds"))
            L.append(f"s_add_u32 m0, s74, {b}")
            for i in range(2): L.append(("vm", ("S", u), f"buffer_load_dwordx4 v{18+2*h+i}, s[12:15], s78 offen offset:{1024*(2*h+i)} lds"))
        return L
    p_ld = lines("s_lshl_b32 s32, s69, 6\ns_lshl_b32 s33, s72, 5\ns_add_u32 s32, s32, s33\nv_and_b32 v2, 15, v1\nv_add_u32 v30, s32, v2\nv_lshlrev_b32 v2, 1, v30")
    for cb in range(2):
        for q, sp in enumerate((P["lre"], P["lim"], P["ldt"])): p_ld.append(("vm", "P", f"global_load_ushort v{112+3*cb+q}, v2, s[{sp}:{sp+1}] offset:{32*cb}"))
    def lds_setup(A):
        early_setup(A)
        A("v_lshrrev_b32 v2, 4, v1\nv_and_b32 v3, 15, v1\nv_lshrrev_b32 v4, 1, v3\nv_xor_b32 v4, v4, v2\nv_lshlrev_b32 v4, 4, v4\nv_lshl_add_u32 v3, v3, 7, v4")
        A("s_lshl_b32 s75, s71, 14\ns_lshl_b32 s76, s72, 12\ns_add_u32 s76, s76, 32768")
        A("v_add_u32 v22, s75, v3\nv_xor_b32 v23, 64, v22\nv_add_u32 v120, s76, v3\nv_xor_b32 v121, 64, v120")
        for sl in (1, 2):
            for ks in range(2): A(f"v_add_u32 v{22+2*sl+ks}, {sl*S_SLOT}, v{22+ks}\nv_add_u32 v{120+2*sl+ks}, {sl*S_SLOT}, v{120+ks}")
    def ss0(A):
        A("s_and_b32 s33, s68, 3\ns_lshl2_add_u32 s33, s69, s33\ns_lshl2_add_u32 s33, s33, s3\ns_lshr_b32 s35, s68, 2\ns_mul_i32 s35, s35, 160\ns_add_u32 s35, s35, s33\ns_mul_i32 s97, s33, 5120")
        A("v_bfe_u32 v2, v1, 2, 2\nv_mul_u32_u24 v2, 1280, v2\nv_and_b32 v3, 3, v1\nv_lshl_add_u32 v2, v3, 4, v2\nv_lshrrev_b32 v4, 4, v1\nv_lshl_add_u32 v67, v4, 6, v2")
    def ss1(A):
        A(f"s_lshl_b32 s98, s35, 7\ns_add_u32 s98, s98, {WS_CSB}")
        A("v_lshlrev_b32 v2, 21, v1\nv_and_b32 v2, 0xfe000000, v2\nv_lshl_add_u32 v55, v1, 3, v2")
        for r in range(4): A(f"v_mov_b32 v{68+r}, 0x3f803f80")
        A("s_lshl_b32 s32, s71, 2\nv_lshrrev_b32 v31, 4, v1\nv_add_u32 v31, s32, v31")
    def ss3(A):
        A("s_lshl1_add_u32 s32, s69, s72\ns_lshl_b32 s84, s32, 1\ns_add_u32 s85, s84, 1"); sig_ssm(A, 84, 33); sig_ssm(A, 85, 33)
        A(f"s_lshl1_add_u32 s34, s68, s71\ns_mul_i32 s35, s34, 192")
        for r in (84, 85): A(f"s_add_u32 s{r}, s{r}, s35\ns_mul_i32 s{r}, s{r}, {HS}\ns_add_u32 s{r}, s{r}, {WS_H}")
        A(f"s_lshl_b32 s87, s34, 7\ns_add_u32 s87, s87, s32\ns_lshl_b32 s87, s87, 7\ns_add_u32 s87, s87, {WS_FLG+88*128}")
        A(f"s_add_u32 s86, s84, {96*HS}\ns_add_u32 s78, s85, {96*HS}")
    def ss4(A):
        A("s_mul_i32 s75, s3, 20480\nv_and_b32 v2, 15, v1\nv_bfe_u32 v3, v2, 2, 1\nv_and_b32 v4, 3, v2\nv_lshl_add_u32 v3, v4, 1, v3\nv_and_b32 v4, 8, v2\nv_or_b32 v3, v3, v4")
        A("v_lshrrev_b32 v4, 4, v1\nv_lshlrev_b32 v5, 2, v4\nv_xor_b32 v3, v3, v5\nv_lshlrev_b32 v3, 4, v3\nv_lshl_add_u32 v3, v2, 8, v3\nv_add_u32 v10, s75, v3")
        A("v_bfe_u32 v2, v1, 2, 2\nv_lshlrev_b32 v3, 5, v2\nv_and_b32 v5, 1, v4\nv_lshl_add_u32 v3, v5, 7, v3\nv_and_b32 v5, 3, v1\nv_lshl_add_u32 v3, v5, 3, v3")
        A("v_lshl_add_u32 v2, v4, 3, v2\nv_lshl_add_u32 v3, v2, 8, v3\nv_add_u32 v11, s75, v3")
    def ss5(A):
        A("v_lshlrev_b32 v3, 4, v30\nv_lshlrev_b32 v2, 21, v1\nv_and_b32 v2, 0xfe000000, v2\nv_add_u32 v12, v2, v3\ns_lshl1_add_u32 s76, s68, s71\ns_mul_i32 s97, s76, 10240")
        A("v_lshrrev_b32 v2, 4, v1\nv_mul_u32_u24 v13, 10240, v2\ns_sub_u32 s75, s97, 10240\nv_sub_u32 v13, s75, v13\nv_add_u32 v13, v13, v3\nv_mov_b32 v21, s96")
        for i in range(4):
            if i: A(f"v_subrev_u32 v{13+i}, {40960*i}, v13\nv_add_u32 v2, 4, v2")
            A(f"v_cmp_gt_u32 vcc, s76, v2\nv_cndmask_b32 v{17+i}, 0, v21, vcc")
    b_ld = [("vm", "bl", f"buffer_load_dwordx4 a[{112+4*i}:{115+4*i}], v67, s[24:27], s97 offen offset:{256*i}") for i in range(5)]
    b_c = [("wvm", ["bl"])]
    for i in range(5): b_c.append(f"{MF} v[56:59], v[68:71], a[{112+4*i}:{115+4*i}], " + ("v[56:59]" if i else "0"))
    b_c += ["s_nop 0"]*3
    b_c += ["v_add_f32_dpp v56, v56, v56 quad_perm:[1,0,3,2] row_mask:0xf bank_mask:0xf", "v_add_f32_dpp v56, v56, v56 quad_perm:[2,3,0,1] row_mask:0xf bank_mask:0xf",
            "v_mov_b32 v57, s96", ("vm", None, "buffer_store_dwordx2 v[56:57], v55, s[8:11], s98 offen sc1")]
    NM = "LR LI CA CB L16R L16I L32R L32I L512R L512I QR QI UR UI WR WI PR PI T0 T1".split()
    def Pm(cb): return dict(zip(NM, range(72+20*cb, 72+20*cb+20)))
    par_c = [("wvm", ["P"])] + lines("v_lshrrev_b32 v60, 4, v1\nv_cvt_f32_u32 v60, v60\nv_mul_f32 v60, 0x42000000, v60\nv_sub_f32 v61, 0x42c00000, v60\nv_mul_f32 v62, 4.0, v60")
    for cb in range(2):
        p = Pm(cb); i0 = 112 + 3*cb; zr, zt, t0, t1 = p['PR'], p['PI'], p['T0'], p['T1']
        def power(d, n):
            pre = [f"v_mul_f32 v{t0}, {n}, v{zr}", f"v_mul_f32 v{t1}, {n}, v{zt}"] if n else []
            a, b = (t0, t1) if n else (zr, zt)
            return pre + lines(f"v_exp_f32 v{t0}, v{a}\nv_fract_f32 v{t1}, v{b}\nv_cos_f32 v{d}, v{t1}\nv_sin_f32 v{d+1}, v{t1}\nv_mul_f32 v{d}, v{d}, v{t0}\nv_mul_f32 v{d+1}, v{d+1}, v{t0}")
        par_c += lines(f"""v_lshlrev_b32 v{i0+2}, 16, v{i0+2}
v_mul_f32 v{t0}, 0x3fb8aa3b, v{i0+2}
v_exp_f32 v{t0}, v{t0}
v_lshlrev_b32 v{i0}, 16, v{i0}
v_lshlrev_b32 v{i0+1}, 16, v{i0+1}
v_cvt_pk_bf16_f32 v{t0}, v{t0}, v{t0}
v_and_b32 v{t0}, 0xffff0000, v{t0}
v_mul_f32 v{zr}, v{t0}, v{i0}
v_mul_f32 v{zt}, v{t0}, v{i0+1}
v_mul_f32 v{zr}, 0x3fb8aa3b, v{zr}
v_mul_f32 v{zt}, 0.15915494, v{zt}""") + power(p['LR'], None)
        par_c += lines(f"""v_mul_f32 v{t1}, v{i0}, v{i0}
v_fmac_f32 v{t1}, v{i0+1}, v{i0+1}
v_rcp_f32 v{t1}, v{t1}
v_add_f32 v{t0}, -1.0, v{p['LR']}
v_mul_f32 v{p['CA']}, v{t0}, v{i0}
v_add_f32 v{t1}, v{t1}, v{t1}
v_fmac_f32 v{p['CA']}, v{p['LI']}, v{i0+1}
v_mul_f32 v{p['CB']}, v{p['LI']}, v{i0}
v_fma_f32 v{p['CB']}, -v{t0}, v{i0+1}, v{p['CB']}
v_mul_f32 v{p['CA']}, v{p['CA']}, v{t1}
v_mul_f32 v{p['CB']}, v{p['CB']}, v{t1}""")
        par_c += power(p['L16R'], "0x41800000") + power(p['L32R'], "0x42000000") + power(p['L512R'], "0x44000000") + power(p['QR'], "v60") + power(p['UR'], "v61") + power(p['WR'], "v62")
    ep_ld = lines(f"v_lshrrev_b32 v2, 3, v0\nv_lshlrev_b32 v2, 7, v2\nv_and_b32 v3, 7, v0\nv_lshl_add_u32 v2, v3, 3, v2\ns_lshl_b32 s75, s68, 12\ns_add_u32 s75, s75, {WS_STAT}") + [("vm", "ep", "buffer_load_dwordx2 v[52:53], v2, s[8:11], s75 offen sc1")]
    ep_ld += lines(f"v_lshrrev_b32 v2, 2, v30\nv_lshlrev_b32 v2, 7, v2\nv_and_b32 v3, 3, v30\nv_lshl_add_u32 v2, v3, 5, v2\ns_mov_b32 s75, {WS_CSB}\ns_mov_b32 s76, {WS_CSB+20480}")
    def CS(cb, im): return 112 + 4*cb + 2*im
    for cb in range(2):
        for im in range(2): ep_ld.append(("vm", "ep", f"buffer_load_dwordx2 v[{CS(cb,im)}:{CS(cb,im)+1}], v2, s[8:11], s{75+im} offen offset:{512*cb} sc1"))
    ep_tags = [53, 113, 115, 117, 119]
    ep_t = [("wvm", ["ep"])] + tagtest(ep_tags)
    ep_c = lines(f"""v_and_b32 v53, 0xffff0000, v52
v_rcp_f32 v53, v53
v_lshlrev_b32 v52, 16, v52
v_and_b32 v2, 15, v0
v_bfe_u32 v3, v0, 4, 1
v_lshl_add_u32 v2, v2, 1, v3
v_and_b32 v3, 0xe0, v0
v_add_u32 v2, v2, v3
v_mul_f32 v52, v52, v53
v_lshlrev_b32 v2, 2, v2
v_add_u32 v2, {S_SCR}, v2""") + [("ds", None, "ds_write_b32 v2, v53"), ("ds", None, "ds_write_b32 v2, v52 offset:1024")]
    ACC = 128
    def acc(b, c): return ACC + (c*8+b)*4
    def Xr(par, b): return par*48 + b*4
    def Br(par, c): return par*48 + 32 + c*4
    def reads(s):
        par = s & 1; sl = (s >> 1) % 3; L = []
        for c in range(4): L.append(("ds", None, f"ds_read_b128 a[{Br(par,c)}:{Br(par,c)+3}], v{120+2*sl+(s&1)} offset:{(c>>1)*8192 + (c&1)*2048}"))
        for b in range(8): L.append(("ds", None, f"ds_read_b128 a[{Xr(par,b)}:{Xr(par,b)+3}], v{22+2*sl+(s&1)} offset:{b*2048}"))
        return L
    SORD = OPT.get("sord", "A")
    M = {0: (b_ld if SORD == "C" else []) + dma(2)}
    for s in range(1, 15): M[s] = dma((s+5) >> 1, ((s+1) & 1,))
    CK = int(OPT.get("ck", 16))
    for k, L in enumerate(chop(w2loads(0, 5, 99), 20-CK)): M[CK+k] = M.get(CK+k, []) + L
    pc = chop(par_c, 8); ps = chop(cap(ph2_setup), 2)
    pc = chop(par_c, 9)
    S = {0: cap(ss1), 1: st_f + p_ld, 2: ps[0], 3: ps[1] + b_c, 4: pc[0], 5: pc[1], 6: pc[2], 7: pc[3], 8: pc[4], 9: pc[5], 10: pc[6], 11: pc[7], 12: pc[8],
         13: ep_ld, 15: cap(ss3), 16: ep_t, 17: ep_c, 18: cap(ss4), 19: cap(ss5)}
    S[CK-2] = fpoll(4) + S.get(CK-2, [])
    if "wf" in OPT: S[19] = w2warm() + S[19]
    PF = int(OPT.get("pf", 0)); PFI = int(OPT.get("pfi", 19))
    if PF:
        pf = lines(f"s_lshr_b32 s32, s2, 3\ns_lshl2_add_u32 s32, s32, s3\ns_lshr_b32 s33, s32, 2\ns_mul_i32 s33, s33, 96\ns_mul_i32 s34, s29, 12\ns_add_u32 s33, s33, s34\ns_mul_i32 s33, s33, 5120\ns_add_u32 s33, s33, {WS_W2P + 35840 - PF*8192}")
        pf += [f"s_cmp_lt_u32 s32, 32\ns_cselect_b32 s33, s33, {hex(OOB)}", "v_lshlrev_b32 v6, 7, v1"]
        for k in range(PF): pf += [("vm", None, "buffer_load_dword v7, v6, s[8:11], s33 offen sc1"), "s_add_u32 s33, s33, 8192"]
        S[PFI] = S.get(PFI, []) + pf
    ss0(A)
    A("s_waitcnt lgkmcnt(0)")
    srd(A, 16, P["x"], SZ_X); A.its(st_ld)
    A("s_cmp_lt_u32 s35, 160"); srd_sel(A, 24, P["bre"], P["bim"], SZ_B)
    A("s_cmp_eq_u32 s72, 0"); srd_sel(A, 12, P["bre"], P["bim"], SZ_B)
    first, second = {"B": (b_ld + dma(0, (0,)), dma(0, (1,)) + dma(1)), "A": (dma(0), b_ld + dma(1)), "C": (dma(0), dma(1))}[SORD]
    A.its(first)
    A.L.append(";@TOUCH S")
    A("s_branch SSM_a"); A.L.append(";@SEG SSM"); A.label("SSM_a")
    lds_setup(A)
    A.its(st_c[:1]); spread(A, st_c[1:], second, 0, len(st_c) - 2)
    A.sync([("S", 0)]); stamp(A, 1)
    A.its(reads(0))
    for s in range(20):
        tags = [("S", (s+1) >> 1)] if (s < 19 and s & 1) else []
        if s == 17: gcheck(A, "SG", ep_ld, ep_tags)
        if s == CK: A.its(ftest(99, 82))
        A.sync(tags, barrier=bool(s & 1))
        tick(A, s, 127)
        par = s & 1; mf = []
        for b in range(8):
            for c in (range(4) if b % 2 == 0 or not SN else range(3, -1, -1)):
                r = acc(b, c); mf.append(f"{MF} v[{r}:{r+3}], a[{Xr(par,b)}:{Xr(par,b)+3}], a[{Br(par,c)}:{Br(par,c)+3}], " + (f"v[{r}:{r+3}]" if s else "0"))
        A.weave(mf, [(reads(s+1) if s < 19 else [], 0, 24), (M.get(s, []), 0, 31), (S.get(s, []), 1, 31)])
    A("s_waitcnt lgkmcnt(0)"); tick(A, 20, 127); tockdump(A, 20, 127, 0x40000)
    stamp(A, 2)
    def gre(cb, j): return acc(0, cb) + 2*j
    def gim(cb, j): return acc(0, 2+cb) + 2*j
    def cfma(dr, di, mr, mi, xr, xi, ar, ai):
        return lines(f"v_fma_f32 v{dr}, v{mr}, v{xr}, v{ar}\nv_fma_f32 v{di}, v{mr}, v{xi}, v{ai}\nv_fma_f32 v{dr}, -v{mi}, v{xi}, v{dr}\nv_fma_f32 v{di}, v{mi}, v{xr}, v{di}")
    def cmul(dr, di, mr, mi, xr, xi):
        return lines(f"v_mul_f32 v{dr}, v{mr}, v{xr}\nv_mul_f32 v{di}, v{mr}, v{xi}\nv_fma_f32 v{dr}, -v{mi}, v{xi}, v{dr}\nv_fmac_f32 v{di}, v{mi}, v{xr}")
    def gsum(regs, tmp):
        L = []
        for sw in ("v_permlane16_swap_b32", "v_permlane32_swap_b32"):
            L += [f"v_mov_b32 v{tmp+k}, v{r}" for k, r in enumerate(regs)] + [f"{sw} v{r}, v{tmp+k}" for k, r in enumerate(regs)] + [f"v_add_f32 v{r}, v{r}, v{tmp+k}" for k, r in enumerate(regs)]
        return L
    def rload(c):
        b = 32 + 16*(c & 1)
        return [("ds", ("R", c), f"ds_read_b128 v[{b+4*k+8*t}:{b+4*k+8*t+3}], v22 offset:{1024*t + 32*(c&3) + 16*k}") for t in range(2) for k in range(2)]
    def scan(cb):
        p = Pm(cb); L = []
        for j in range(16):
            c = 4*cb + (j >> 2); b = 32 + 16*(c & 1) + 2*(j & 3)
            if j & 3 == 0: L.append(("wds", [("R", c)]))
            L += [pk("mul", gre(cb,j), gre(cb,j), b), pk("mul", gim(cb,j), gim(cb,j), b)]
            L += [pk("fma", gre(cb,j), b+8, ("b", CS(cb,0)), gre(cb,j), neg=(0,)), pk("fma", gim(cb,j), b+8, ("b", CS(cb,1)), gim(cb,j), neg=(0,))]
            if j & 3 == 3 and c + 2 < 8: L += rload(c+2)
            if j:
                L += [pk("fma", gre(cb,j), gre(cb,j-1), ("b", p['LR']), gre(cb,j)), pk("fma", gim(cb,j), gim(cb,j-1), ("b", p['LR']), gim(cb,j))]
                L += [pk("fma", gre(cb,j), gim(cb,j-1), ("b", p['LI']), gre(cb,j), neg=(1,)), pk("fma", gim(cb,j), gre(cb,j-1), ("b", p['LI']), gim(cb,j))]
        o = 120 + 4*cb
        L += cfma(64+2*cb, 65+2*cb, p['L16R'], p['L16I'], gre(cb,15), gim(cb,15), gre(cb,15)+1, gim(cb,15)+1) + cmul(o, o+2, p['UR'], p['UI'], 64+2*cb, 65+2*cb)
        L += gsum([o, o+2], 4) + [f"v_mov_b32 v{o+1}, s96", f"v_mov_b32 v{o+3}, s96", ("vm", None, f"buffer_store_dwordx4 v[{o}:{o+3}], v12, s[8:11], s97 offen offset:{256*cb} sc1")]
        return L
    def lbl(cb): return [("vm", ("lb", cb), f"buffer_load_dwordx4 v[{32+16*cb+4*i}:{35+16*cb+4*i}], v{13+i}, s[8:11], 0 offen offset:{256*cb} sc1") for i in range(4)]
    def transform(cb):
        p = Pm(cb); L = [f"v_mov_b32 v{64+2*cb}, v{gre(cb,15)}", f"v_mov_b32 v{65+2*cb}, v{gim(cb,15)}"]
        for j in range(16):
            r, i = gre(cb,j), gim(cb,j)
            L += [pk("mul", 112, i, ("b", p['CB'])), pk("mul", 114, r, ("b", p['CB'])), pk("fma", r, r, ("b", p['CA']), 112, neg=(2,)), pk("fma", i, i, ("b", p['CA']), 114, neg=(1, 2))]
        return L
    def lookback(cb):
        b = 32+16*cb
        lt = [f"v_xor_b32 v4, v17, v{b+1}"] + sum(([f"v_xor_b32 v5, v{17+(r-b)//4}, v{r}", "v_or_b32 v4, v4, v5"] for r in range(b+3, b+16, 2)), []) + ["v_cmp_ne_u32 vcc, 0, v4"]
        A.its([("wvm", [("lb", cb)])] + lt)
        A(f"s_cbranch_vccz SSM_go{cb}\ns_mov_b32 s7, 0x40000")
        A.label(f"SSM_poll{cb}")
        for x in lbl(cb): A(x[2])
        A("s_waitcnt vmcnt(0)"); A.ext(lt)
        A(f"s_sub_u32 s7, s7, 1\ns_cbranch_scc1 SSM_go{cb}\ns_cbranch_vccnz SSM_poll{cb}")
        A.label(f"SSM_go{cb}")
    WP = 112; IMG = 8192
    def second(cb):
        p = Pm(cb); b = 32+16*cb; L = []
        for i in (2, 1, 0): L += cfma(b+4*i, b+4*i+2, p['L512R'], p['L512I'], b+4*i+4, b+4*i+6, b+4*i, b+4*i+2)
        L += cmul(b+4, b+5, p['WR'], p['WI'], b, b+2) + gsum([b+4, b+5], 4)
        L += cfma(p['PR'], p['PI'], p['QR'], p['QI'], b+4, b+5, p['PR'], p['PI']) + cfma(64+2*cb, 65+2*cb, p['L16R'], p['L16I'], p['PR'], p['PI'], 64+2*cb, 65+2*cb)
        for k, (xr, xi) in enumerate(((p['PR'], p['PI']), (64+2*cb, 65+2*cb))):
            L += lines(f"v_mul_f32 v{p['T0']}, v{p['CB']}, v{xi}\nv_mul_f32 v{p['T1']}, v{p['CB']}, v{xr}\nv_fma_f32 v{WP+k}, v{p['CA']}, v{xr}, -v{p['T0']}\nv_fma_f32 v{WP+2+k}, -v{p['CA']}, v{xi}, -v{p['T1']}")
        pw = []
        for j in range(16):
            cur = WP+4*(j & 1); nxt = WP+4*((j+1) & 1)
            L += [pk("mul", nxt, cur, ("b", p['LR'])), pk("mul", nxt+2, cur+2, ("b", p['LR'])), pk("fma", nxt, cur+2, ("b", p['LI']), nxt), pk("fma", nxt+2, cur, ("b", p['LI']), nxt+2, neg=(1,))]
            L += [pk("add", gre(cb,j), gre(cb,j), nxt), pk("add", gim(cb,j), gim(cb,j), nxt+2)]
            if pw and not j & 1: L.append(pw.pop(0))
            if j & 1:
                k = (j >> 1) & 3
                for im in range(2):
                    g = gim if im else gre
                    for hh in range(2):
                        r = (b+8*im+4*hh) if j < 8 else (g(cb, 0) + 4*hh)
                        L.append(f"v_cvt_pk_bf16_f32 v{r+k}, v{g(cb,j-1)+hh}, v{g(cb,j)+hh}")
                        if k == 3: (L if j == 15 else pw).append(("ds", "iw", f"ds_write_b128 v{68+2*(j>>3)+hh}, v[{r}:{r+3}] offset:{cb*IMG + im*4096}"))
        L.append(("wds", ["iw"]))
        st = []
        for tb in range(8):
            r = gim(cb, 0) + 4*tb
            for hh in range(2): L += [f"v_xor_b32 v{2+hh}, {32*tb + 16*hh}, v11", ("ds", ("tr", cb, tb), f"ds_read_b64_tr_b16 v[{r+2*hh}:{r+2*hh+1}], v{2+hh} offset:{cb*IMG + hh*1024}")]
            st.append([("wds", [("tr", cb, tb)]), ("vm", "H", f"buffer_store_dwordx4 v[{r}:{r+3}], v28, s[8:11], s{(84, 85, 86, 78)[cb + 2*(tb >> 2)]} offen offset:{(tb&3)*1024} sc1")])
        return L, st
    A(f"v_lshlrev_b32 v22, 7, v31\nv_add_u32 v22, {S_SCR}, v22\nv_mov_b32 v31, s96")
    A("s_cmp_lg_u32 s95, 0\ns_cbranch_scc1 EP_no\nv_lshlrev_b32 v2, 7, v1")
    for k in range(4): A(f"s_mov_b32 s75, {WS_STAT+4+8192*k}\nbuffer_load_dword a{100+k}, v2, s[8:11], s75 offen sc1")
    A.label("EP_no")
    ptick(A, 40, 25)
    A.its(rload(0) + rload(1) + scan(0) + scan(1))
    ptick(A, 41, 25)
    A.its((fpoll(5) if int(OPT.get("sb", 5)) > 5 else []) + lbl(0))
    for d in range(3):
        A(f"v_subrev_u32 v2, {16*(d+1)}, v1\nv_lshlrev_b32 v2, 2, v2")
        for k in range(4): A.it(("ds", "bp", f"ds_bpermute_b32 v{48+4*d+k}, v2, v{64+k}"))
    for cb in range(2): A(f"v_mov_b32 v{Pm(cb)['PR']}, 0\nv_mov_b32 v{Pm(cb)['PI']}, 0")
    for k in range(4): A(f"v_xor_b32 v{68+k}, {32*(k&1) + 16*(k>>1)}, v10")
    A.it(("wds", ["bp"]))
    for d in (2, 1, 0):
        A(f"s_lshl_b64 exec, -1, {16*(d+1)}")
        for cb in range(2):
            p = Pm(cb); a = 48+4*d+2*cb
            if d < 2: A.ext(cfma(a, a+1, p['L32R'], p['L32I'], p['PR'], p['PI'], a, a+1))
            A(f"v_mov_b32 v{p['PR']}, v{a}\nv_mov_b32 v{p['PI']}, v{a+1}")
    A("s_mov_b64 exec, -1")
    A.its(transform(0))
    stamp(A, 3); ptick(A, 42, 25)
    lookback(0)
    stamp(A, 4); ptick(A, 43, 25)
    L0, st0 = second(0); L1, st1 = second(1)
    SB = int(OPT.get("sb", 5))
    if SB > 5:
        fcheck(A, "SC5a", 5); A.its(L0[:60] + lbl(1)); spread(A, L0[60:], w2loads(5, SB), 0, 120)
    else: A.its(L0[:60] + lbl(1) + fpoll(5) + L0[60:])
    ptick(A, 44, 25)
    lookback(1)
    rest = transform(1) + L1
    sl = interleave(rest, st0, 0, len(rest) - 40)
    for i, x in enumerate(rest):
        for y in sl[i]: A.its(y)
        A.it(x)
    ptick(A, 45, 25)
    for y in st1: A.its(y)
    stamp(A, 5)
    fs = "buffer_store_dword v31, v8, s[8:11], s87 offen sc1"
    fcheck(A, "SC5", 5, pre="s_waitcnt vmcnt(0)\n" + fs)
    A.L.append(";@TOUCH P1")
    ph2_addr(A)
    S1 = int(OPT.get("s1", 7))
    ptick(A, 46, 25)
    A.its(w2loads(SB, S1) + [("wvm", ["H"]), ("vm", None, fs)])
    ptick(A, 47, 25)
    A(f"s_cmp_lg_u32 s95, 0\ns_cbranch_scc1 EP_end")
    for k in range(4): A(f"v_accvgpr_read_b32 v{68+k}, a{100+k}")
    A.ext(tagtest([68, 69, 70, 71]))
    A("s_cbranch_vccz EP_ok\nv_lshlrev_b32 v2, 7, v1\ns_mov_b32 s7, 0x40000")
    A.label("EP_l")
    for k in range(4): A(f"s_mov_b32 s75, {WS_STAT+4+8192*k}\nbuffer_load_dword v{68+k}, v2, s[8:11], s75 offen sc1")
    A("s_waitcnt vmcnt(0)"); A.ext(tagtest([68, 69, 70, 71]))
    A(f"s_sub_u32 s7, s7, 1\ns_cbranch_scc1 EP_ok\ns_cbranch_vccnz EP_l")
    A.label("EP_ok")
    A(f"s_mov_b32 s75, {WS_EPOCH}\nbuffer_store_dword v31, v8, s[8:11], s75 offen sc1")
    A.label("EP_end")
    fredo(A, "SR", 4, 99, 82, w2loads(0, 5))
    SQ = int(OPT.get("sq", 0))
    A.its(fin_loads() + w2loads(S1, 12-SQ) + fpoll(G0) + w2loads(12-SQ, 12))
    fcheck(A, "SC2", G0)

def gen_ph2(A):
    A.L.append(";@SEG PH2"); A.label("PH2")
    A.reset()
    stamp(A, 6)
    for i in range(3): A.its(hload(i))
    if not WO: fin_base(A)
    g_r = []
    for nb in range(5):
        for w in range(4):
            r = ACCG + (nb*4+w)*4; g_r.append(("ds", ("gr", nb), f"ds_read_b128 v[{r}:{r+3}], v{23+(w>>1)} offset:{(w&1)*20480 + nb*1024}"))
    g_s = []; g_t = []
    for nb in range(5):
        r = ACCG + nb*16; g_s.append(("wds", [("gr", nb)]))
        for e in range(4): g_s += [f"v_add_f32 v{r+e}, v{r+e}, v{r+4+e}", f"v_add_f32 v{r+8+e}, v{r+8+e}, v{r+12+e}"]
        for e in range(4): g_s.append(f"v_add_f32 v{r+e}, v{r+e}, v{r+8+e}")
        g_t.append(("vm", "xs", f"buffer_store_dwordx4 v[{r}:{r+3}], v{28+(nb>>2)}, s[8:11], s4 offen offset:{(nb&3)*1024} sc1"))
    g_f = [("wvm", ["xs"]), ("vm", None, "buffer_store_dword v31, v8, s[8:11], s6 offen sc1")]
    fin_r = [(f"v_accvgpr_read_b32 v{ACCG + (k>>2)*16 + 8 + (k&3)}, {PARK[k]}" if PARK[k][0] == "a" else f"v_mov_b32 v{ACCG + (k>>2)*16 + 8 + (k&3)}, {PARK[k]}") for k in range(20)]
    GF = int(OPT.get("gf", 12))
    extra = {**{k-3: fpoll(g)[:-1] for k, g in CHK.items()}, 12: ["s_mov_b32 m0, s101"], 16: g_r + g_s[:13], 17: g_s[13:39] + g_t[:2], 18: g_s[39:52] + g_t[2:3] + g_s[52:] + g_t[3:],
             19: ["v_add_u32 v23, 81920, v23", "v_add_u32 v24, 81920, v24", "s_mov_b32 m0, s100"] + fin_r, 20: fpoll(3)[:-1]}
    first = {k-2: fpoll(g)[-1:] for k, g in CHK.items()}
    if WO:
        fin_c = [("wvm", ["fin"]), "v_and_b32 v11, 0xffff0000, v10", "v_rcp_f32 v11, v11", "v_lshlrev_b32 v10, 16, v10"]
        def rd(nb): return [("ds", ("fx", nb), f"ds_read_b64 v[{16+4*(nb&1)}:{17+4*(nb&1)}], v12 offset:{32*nb}"), ("ds", ("fx", nb), f"ds_read_b64 v[{(18, 26)[nb&1]}:{(19, 27)[nb&1]}], v14 offset:{3072+32*nb}")]
        fin_c += rd(0)
        for nb in range(5):
            if nb < 4: fin_c += rd(nb+1)
            fin_c.append(("wds", [("fx", nb)]))
            for h in range(2):
                x = 16+4*(nb&1)+h; d = (18, 26)[nb&1]+h
                fin_c += [f"v_lshlrev_b32 v2, 16, v{d}", f"v_and_b32 v{d}, 0xffff0000, v{d}", f"v_lshlrev_b32 v3, 16, v{x}", f"v_and_b32 v{x}, 0xffff0000, v{x}",
                          "v_mul_f32 v2, v2, v11", f"v_mul_f32 v{d}, v{d}, v11", "v_sub_f32 v4, v3, v10", f"v_sub_f32 v5, v{x}, v10", "v_fmac_f32 v3, v4, v2", f"v_fmac_f32 v{x}, v5, v{d}"]
                for e, src in ((0, 3), (1, x)):
                    p = PARK[4*nb+2*h+e]; fin_c.append(f"v_accvgpr_write_b32 {p}, v{src}" if p[0] == "a" else f"v_mov_b32 {p}, v{src}")
        wl = chop(w2loads(12-NH, 12), 4) if NH else [[]]*4
        for k in range(4): extra[k] = extra.get(k, []) + wl[k]
        extra[5] = extra.get(5, []) + fin_loads()
        for k, L in enumerate(chop(fin_c, 5)): extra[8+k] = L + extra.get(8+k, [])
    pend = []
    for g in GROUPS:
        n0 = g[0]; hf = STEPS[n0][0]
        tags = [("h", n) for n in g] + [("w2", STEPS[n][1]) for n in g if ("w2", STEPS[n][1]) in A.tv]
        if n0 == 16: A.sync(tags)
        else: A.it(("wvm", tags))
        if TS >= 2 and n0 not in (15, 17, 18): A("s_waitcnt lgkmcnt(0)")
        if TS >= 2:
            if n0: A(f"v_writelane_b32 v25, s88, {GROUPS.index(g)-1}")
            A("s_memtime s[88:89]")
        if n0 in CHK: fcheck(A, f"CK{n0}", CHK[n0])
        mf = []; wr = [[] for _ in range(20*len(g))]
        for k, x in enumerate(pend): wr[k*18//len(pend)].append(x)
        pend = []
        for nb in range(5):
            for tb in (range(4) if nb % 2 == 0 or not SN or len(g) > 1 else range(3, -1, -1)):
                c = acc2(hf, nb, tb)
                for n in g:
                    w = w2reg(STEPS[n][1]) + 4*nb
                    mf.append(f"{MF} v[{c}:{c+3}], {Hr(n,tb)}, a[{w}:{w+3}], " + (f"v[{c}:{c+3}]" if STEPS[n][1] != STEPS[0][1] else "0"))
                if len(g) > 1:
                    for e in range(4):
                        pos = (11*(4*(nb*4+tb)+e))//16 + 6 if len(g) == 2 else 3*(nb*4+tb) + 6 + (3*e)//4
                        it = ("ds", None, f"ds_write_addtid_b32 v{c+e} offset:{(tb*5+nb)*1024+256*e}")
                        (wr[pos] if pos < len(wr) else pend).append(it)
        if n0 == 21: wr[GF] += g_f; wr[56] += fpoll(3)[-1:]
        A.weave(mf, [(first.get(n0, []) + sum((hload(n) for n in ISSUE.get(n0, ())), []), 0, len(mf) - 8), (extra.get(n0, []), 1, len(mf) - 1)], fixed=wr)
    A.its(pend)
    if TS >= 2:
        A(f"s_waitcnt lgkmcnt(0)\nv_writelane_b32 v25, s88, {len(GROUPS)-1}\ns_memtime s[88:89]"); tockdump(A, len(GROUPS), 25, 0x80000)
    stamp(A, 7)
    A("s_waitcnt lgkmcnt(0)\ns_barrier")
    for nb in range(5):
        for w in range(4):
            r = ACCK + (nb*4+w)*4
            A(f"ds_read_b128 v[{r}:{r+3}], v{23+(w>>1)} offset:{(w&1)*20480 + nb*1024}")
    fcheck(A, "C3", 3)
    for nb in range(5):
        r = ACCG + nb*16 + 12
        A.it(("vm", ("xl", nb), f"buffer_load_dwordx4 v[{r}:{r+3}], v{28+(nb>>2)}, s[8:11], s5 offen offset:{(nb&3)*1024} sc1"))
    A("s_waitcnt lgkmcnt(0)")
    for nb in range(5):
        r = ACCK + nb*16; o = ACCG + nb*16 + 8
        for k in (0, 2): A(pk("add", r+k, r+k, r+4+k)); A(pk("add", r+8+k, r+8+k, r+12+k))
        for k in (0, 2): A(pk("add", o+k, o+k, r+k))
        for k in (0, 2): A(pk("add", o+k, o+k, r+8+k))
    for nb in range(5):
        o = ACCG + nb*16 + 8
        A.it(("wvm", [("xl", nb)]))
        for k in (0, 2): A(pk("add", o+k, o+k, o+4+k))
        A.it(("vm", None, f"buffer_store_dwordx4 v[{o}:{o+3}], v13, s[20:23], 0 offen offset:{64*nb} " + OPT.get("of", "").replace("+", " ")))
    if TS:
        A("s_add_u32 s94, s94, 0x10000"); stamp(A, 0)
    WB = int(OPT.get("wb", 0))
    if WB:
        A(f"s_and_b32 s32, s95, {WB}\ns_cmp_lg_u32 s32, {int(OPT.get('wbv', 0))}\ns_cbranch_scc1 K_end\ns_waitcnt vmcnt(0)\nbuffer_wbl2 sc1")

def gen():
    A = E()
    A("s_cmp_ge_u32 s2, 256\ns_cbranch_scc1 K_end")
    if TS >= 2: A("s_memtime s[4:5]")
    A("s_load_dwordx16 s[36:51], s[0:1], 0\ns_load_dwordx16 s[52:67], s[0:1], 64")
    A("v_and_b32 v1, 63, v0\nv_lshrrev_b32 v2, 6, v0\ns_and_b32 s32, s2, 7\nv_readfirstlane_b32 s3, v2")
    A("s_lshr_b32 s33, s2, 3\ns_lshr_b32 s34, s32, 2\ns_and_b32 s35, s32, 3\ns_and_b32 s71, s3, 1\ns_lshr_b32 s72, s3, 1")
    if int(OPT.get("ipf", 1)):
        A("s_getpc_b64 s[6:7]"); A.label("K_pc")
        A("s_lshl2_add_u32 s76, s33, s3\ns_and_b32 s76, s76, 15\ns_lshl_b32 s76, s76, 13\nv_lshlrev_b32 v2, 7, v1\nv_add_u32 v2, s76, v2\nv_min_u32 v2, K_end-K_pc, v2")
        A("s_cmp_lt_u32 s33, 28\ns_cbranch_scc1 K_nopf\nglobal_load_dword v64, v2, s[6:7]"); A.label("K_nopf")
    A("s_lshl2_add_u32 s95, s2, s3\nv_lshrrev_b32 v62, 5, v1\nv_mul_u32_u24 v62, 1280, v62\nv_and_b32 v63, 31, v1\nv_lshl_add_u32 v62, v63, 3, v62")
    if TS:
        A("s_lshl2_add_u32 s94, s2, s3\ns_lshl_b32 s94, s94, 6\ns_waitcnt lgkmcnt(0)"); stamp(A, 0)
    A("s_lshl_b32 s31, s32, 5\ns_add_u32 s31, s31, s33\ns_lshl2_add_u32 s75, s31, s3\ns_mul_i32 s75, s75, 2560")
    UNEV = int(OPT.get("unev", 1))
    if UNEV: A("s_cmp_eq_u32 s35, 3\ns_cselect_b32 s76, 16, 8\ns_cmp_lt_u32 s33, s76\ns_cbranch_scc1 K_ssm\ns_sub_u32 s33, s33, s76\ns_add_u32 s33, s33, 10")
    else: A("s_cmp_lt_u32 s33, 10\ns_cbranch_scc1 K_ssm")
    A(f"s_mul_i32 s35, s35, {24 if UNEV else 22}\ns_add_u32 s33, s33, s35\ns_sub_u32 s33, s33, 10\ns_and_b32 s68, s33, 7\ns_lshl_b32 s34, s34, 3\ns_add_u32 s68, s68, s34\ns_lshr_b32 s69, s33, 3")
    gen_ffn(A)
    A.L.append(";@SEG SPRO"); A.label("K_ssm")
    A(f"s_mul_i32 s35, s35, {8 if UNEV else 10}\ns_add_u32 s33, s33, s35\ns_and_b32 s68, s33, 3\ns_lshl2_add_u32 s68, s34, s68\ns_lshr_b32 s69, s33, 2")
    gen_ssm(A)
    gen_ph2(A)
    A.label("K_end"); A("s_endpgm")
    return A.L

def hflags(L):
    f = OPT.get("hf")
    if not f: return L
    return [l.replace(" sc1", " " + f.replace("+", " ")) if l.startswith("buffer_store_dwordx4 v[") and re.search(r"s(84|85|86|78) offen", l) else l for l in L]
def nulls(L):
    n = OPT.get("null", "")
    o = []
    for l in L:
        if l.startswith("buffer_load"):
            if ("c" in n and "s[24:27], s77" in l) or ("w" in n and "s[20:23], s77" in l) or ("b" in n and "s[24:27], s97" in l) or ("s" in n and l.startswith("buffer_load_dwordx2") and "s[16:19]" in l):
                o.append("s_mov_b32 s7, 0x7f000000"); l = re.sub(r"\], s\d+ offen", "], s7 offen", l)
        o.append(l)
    return o
def fin(L):
    L = nulls(hflags(L))
    seg = {"E": []}; cur = "E"
    for l in L:
        if l.startswith(";@SEG"): cur = l.split()[1]; seg[cur] = []
        else: seg[cur].append(l)
    def dispatch(name, chains, ret):
        o = []
        for w in range(3): o += [f"s_cmp_eq_u32 s3, {w}", f"s_cbranch_scc1 {chains[w]}"]
        return o + [f"s_branch {chains[3]}"]
    TCH = int(OPT.get("tch", 1))
    order = ["FA", "FB", "EP", "SSM", "PH2"]
    def expand(lines, heads):
        o = []
        for l in lines:
            if not l.startswith(";@TOUCH"): o.append(l); continue
            if not TCH: continue
            n = l.split()[1]
            o.append("s_mov_b64 exec, 0")
            if n in ("FA", "FB"): o += dispatch(n, heads[n], None)
            elif n == "S": o += dispatch(n, heads["SSM"], None)
            else: o += [f"s_mov_b32 s35, {n[1]}"] + dispatch(n, heads["PH2" if n == "P1" else "EP"], None)
            o.append(f"TR_{n}:")
            o.append("s_mov_b64 exec, -1")
        return o
    if TCH: seg["SPRO"] += ["TR_P:", "s_cmp_eq_u32 s35, 0", "s_cbranch_scc1 TR_P0", "s_cmp_eq_u32 s35, 2", "s_cbranch_scc1 TR_P2", "s_branch TR_P1"]
    dummy = {k: ["K_end"]*4 for k in order}
    body = []
    for k in order: body += [(k, l) for l in expand(seg[k], dummy)]
    pro = expand(seg["E"] + seg["FBP"] + seg["SPRO"], dummy)
    sz = sizes(pro + ["K_pad:"] + [l for _, l in body]); npro = sum(1 for l in pro if not (l.endswith(":") or l.startswith((".", ";"))))
    print("prologue bytes", sum(sz[:npro])); sz = sz[npro:]
    stubs = {k: [] for k in order}; pos = {}; addr = 0; page = -1; ii = 0; seen = set()
    for i, (k, l) in enumerate(body):
        if l.endswith(":") or l.startswith((".", ";")): continue
        if TCH and (addr >> 12 != page or k not in seen):
            page = addr >> 12; seen.add(k); name = f"TS_{len(pos)}"; pos[i] = name; stubs[k].append(name); addr += 4
        addr += sz[ii]; ii += 1
    print({k: len(v) for k, v in stubs.items()}, "bytes", addr)
    nxt = {}; heads = {}
    def chains(lst, tails):
        h = []
        for w in range(4):
            c = lst[w::4]
            for a, b in zip(c, c[1:] + [tails[w]]): nxt[a] = b
            h.append(c[0] if c else tails[w])
        return h
    heads["FA"] = chains(stubs["FA"], ["TR_FA"]*4); heads["FB"] = chains(stubs["FB"], ["TR_FB"]*4)
    heads["SSM"] = chains(stubs["SSM"], ["TR_S"]*4); heads["PH2"] = chains(stubs["PH2"], ["TR_P"]*4); heads["EP"] = chains(stubs["EP"], heads["PH2"][::-1])
    body2 = []
    for k in order: body2 += expand(seg[k], heads)
    out = expand(seg["E"] + seg["FBP"] + seg["SPRO"], heads) + [".p2align 12"]
    for i, l in enumerate(body2):
        if i in pos: out += [pos[i] + ":", f"s_cbranch_execz {nxt[pos[i]]}"]
        out.append(l)
    return out
def main():
    ref = open(f"cdna_kernels/{NAME}.s.ref").read().split("\n")
    hdr = [l for l in ref if l.startswith(";") and "@launch" not in l and "Override" not in l and "grid=ceil" not in l]
    out = "\n".join(hdr) + "\n"
    extra = ""
    if "spin" in OPT:
        op, slot, who = (OPT["spin"].split(",") + ["A"])[:3]; slot = int(slot); ks = {"A": range(16), "S": range(5), "F": range(5, 16)}[who]
        off = WS_TS + (slot*8 if slot < 8 else 0x10000)
        out += f"; @launch kernel={NAME}_kernel grid=(256,1,1) block=(256,1,1) lds=163840\n; @launch kernel=spin_kernel grid=(1,1,1) block=(64,1,1) lds=0\n"
        L = ["s_load_dwordx2 s[4:5], s[0:1], 120", "s_waitcnt lgkmcnt(0)", f"s_add_u32 s4, s4, {off}", "s_addc_u32 s5, s5, 0", "v_lshlrev_b32 v1, 6, v0"]
        for k in range(16): L += [f"v_add_u32 v2, {4096*ks[k % len(ks)]}, v1", f"global_load_dword v{4+k}, v2, s[4:5]"]
        L += ["s_waitcnt vmcnt(0)"] + [f"v_{op}_u32 v4, v4, v{4+k}" for k in range(1, 16)] + ["s_nop 1", "v_readlane_b32 s6, v4, 0"]
        for k in range(1, 64): L += [f"v_readlane_b32 s7, v4, {k}", "s_nop 0", f"s_{op}_u32 s6, s6, s7"]
        L += ["s_mov_b32 s12, 0x100000", "SP_l2:", "s_memrealtime s[8:9]", "s_waitcnt lgkmcnt(0)", "s_sub_u32 s10, s8, s6", "s_sub_u32 s12, s12, 1", "s_cbranch_scc1 SP_e", "s_cmp_lt_u32 s10, 8000", "s_cbranch_scc1 SP_l2", "SP_e:", "s_endpgm"]
        extra = kernel_text("spin_kernel", L) + kd("spin_kernel", 32, 0, 32)
    else: out += "; @launch grid=(256,1,1) block=(256,1,1) lds=163840\n"
    out += '.amdgcn_target "amdgcn-amd-amdhsa--gfx950"\n'
    out += kernel_text(NAME + "_kernel", fin(hazard_pass(gen(), "v" in OPT))) + kd(NAME + "_kernel", 256, 256, 102) + extra
    open(sys.argv[1], "w").write(out)
main()
```

```python
import sys
from asmlib import *
NAME = "parallel_sum__ssm_conv_s5__glu_gated_swiglu__prompt"
OPT = dict(wf="19", u="F", ef="8", sb="8", s1="10", fe="1", cw="3", bs="7", bn="4", pq="2", sq="2", lfe="1"); OPT.update(a.split("=") for a in sys.argv[2:])
TS = int(OPT.get("ts", 0)); SN = int(OPT.get("sn", 1))
for k_ in [k for k, v in OPT.items() if v == "x"]: del OPT[k_]
WS_AGG = 0; WS_EPOCH = 0x28000; WS_STAT = 0x30000; WS_FLG = 0x40000; WS_XF = 0x80000; WS_CF = 0xA0000; WS_WF = 0xB0000; WS_CSB = 0xC0000; WS_CS = 0xD0000
HS = int(OPT.get("hs", 4096)); WS_W2P = 0x100000; WS_XCH = 0x500000; WS_H = 0xA00000; WS_END = 0x1A00000; WS_TS = 0x1A00000; CS_HALF = 27648
SZ_X = 2048*640*2; SZ_B = 640*640*2; SZ_W = 640*1728*2; SZ_OUT = 2048*640*4
OOB = 0x7F000000
P = dict(x=36, lre=38, lim=40, bre=42, bim=44, cre=46, cim=48, ldt=50, dsk=52, w1=56, w3=58, w2=60, out=62, dbg=64, ws=66)
MF = "v_mfma_f32_16x16x32_bf16"

class E(Asm):
    def __init__(self): super().__init__(); self.reset()
    def reset(self): self.nv = 0; self.tv = {}; self.dv = 0; self.nd = 0; self.td = {}; self.dd = 0
    def vmw(self, tags):
        last = max(self.tv[t] for t in tags)
        if last <= self.dv: return None
        self.dv = last; return min(63, self.nv - last)
    def dsw(self, tags):
        last = max(self.td[t] for t in tags)
        if last <= self.dd: return None
        n = min(15, self.nd - last); self.dd = self.nd - n; return n
    def it(self, x):
        if isinstance(x, str): self(x)
        elif x[0] == "vm": self.nv += 1; self.tv[x[1]] = self.nv; self(x[2])
        elif x[0] == "ds": self.nd += 1; self.td[x[1]] = self.nd; self(x[2])
        elif x[0] == "wvm":
            n = self.vmw(x[1])
            if n is not None: self(f"s_waitcnt vmcnt({n})")
        elif x[0] == "wds":
            n = self.dsw(x[1])
            if n is not None: self(f"s_waitcnt lgkmcnt({n})")
        elif x[0] == "fn": x[1]()
    def its(self, L):
        for x in L: self.it(x)
    def sync(self, vtags, barrier=True):
        n = self.vmw(vtags) if vtags else None
        self.dd = self.nd
        self((f"s_waitcnt vmcnt({n}) lgkmcnt(0)" if n is not None else "s_waitcnt lgkmcnt(0)"))
        if barrier: self("s_barrier")
    def weave(self, mf, streams, fixed=None, cap=2):
        q = []
        for it, lo, hi in streams:
            if it: q.append([(lo + k*(hi-lo)//len(it), x) for k, x in enumerate(it)])
        def cost(x):
            if isinstance(x, str): return sum(2 if l.startswith(TRANS) else (0 if l.startswith("v_mfma") else 1) for l in x.split("\n"))
            return {"vm": 2, "ds": 1}.get(x[0], 0.5)
        debt = 0
        for i, m in enumerate(mf):
            self(m); room = cap - debt
            for x in (fixed[i] if fixed else []): self.it(x); room -= cost(x)
            left = sum(cost(x) for st in q for _, x in st); gaps = len(mf) - i
            room = max(room, left - cap*(gaps-1))
            if left > cap*gaps: room = max(cap, left/gaps)
            while room > 0:
                c = [st for st in q if st and st[0][0] <= i]
                if not c: break
                if int(OPT.get("wv", 1)) and left <= cap*gaps - 2:
                    isvm = lambda t: not isinstance(t[0][1], str) and t[0][1][0] == "vm"
                    if room >= cap and any(isvm(t) for t in c): c = [t for t in c if isvm(t)]
                    else:
                        c = [t for t in c if not isvm(t)]
                        if not c: break
                st = min(c, key=lambda t: t[0][0]); x = st.pop(0)[1]; self.it(x); room -= cost(x)
            debt = max(0, -room)
        for st in q:
            for _, x in st: self.it(x)
def lines(s): return [l.strip() for l in s.split("\n") if l.strip()]
def glue(L):
    out = []; on = False
    for x in L:
        if isinstance(x, str) and on and x.startswith(("s_cselect", "s_mov_b32")): out[-1] += "\n" + x; continue
        on = isinstance(x, str) and x.startswith(("s_cmp", "s_bitcmp"))
        out.append(x)
    return out
def cap(f):
    B = Asm(); f(B); return glue(B.L)
def chop(L, n):
    q = (len(L) + n - 1)//n
    return [L[k*q:(k+1)*q] for k in range(n)]
FE = int(OPT.get("fe", 2)); FF = int(OPT.get("ff", 0)); SE = int(OPT.get("se", 0))
def srd(A, d, lo, size):
    A(f"s_mov_b32 s{d}, s{lo}\ns_mov_b32 s{d+1}, s{lo+1}\ns_mov_b32 s{d+2}, {hex(size)}\ns_mov_b32 s{d+3}, 0x20000")
def srd_sel(A, d, lo0, lo1, size):
    A(f"s_cselect_b32 s{d}, s{lo0}, s{lo1}\ns_cselect_b32 s{d+1}, s{lo0+1}, s{lo1+1}\ns_mov_b32 s{d+2}, {hex(size)}\ns_mov_b32 s{d+3}, 0x20000")
def stamp(A, slot):
    if not TS: return
    A(f"s_memrealtime s[90:91]\ns_memtime s[88:89]\ns_waitcnt lgkmcnt(0)\ns_add_u32 s92, s94, {WS_TS + slot*8}")
    A.dd = A.nd
    A(f"v_mov_b32 v4, s90\nv_mov_b32 v5, s88\nv_mov_b32 v2, s92"); A.it(("vm", None, "global_store_dwordx2 v2, v[4:5], s[66:67]"))
def tick(A, idx, reg):
    if TS < 2: return
    if idx: A(f"v_writelane_b32 v{reg}, s88, {idx-1}")
    A("s_memtime s[88:89]")
def ptick(A, idx, reg):
    if TS < 2: return
    A(f"s_memtime s[88:89]\ns_waitcnt lgkmcnt(0)\nv_writelane_b32 v{reg}, s88, {idx}")
def tockdump(A, n, reg, area):
    if TS < 2: return
    A(f"s_waitcnt lgkmcnt(0)\nv_writelane_b32 v{reg}, s88, {n}\ns_lshl_b32 s92, s95, 8\ns_add_u32 s92, s92, {WS_TS + area}\nv_lshlrev_b32 v5, 2, v1\nv_add_u32 v5, s92, v5")
    A.it(("vm", None, f"global_store_dword v5, v{reg}, s[66:67]"))
def bc(n, which, hi=False):
    lo = [0]*n; h = [1]*n
    for w in which:
        if isinstance(w, tuple): lo[w[0]] = 1
        else: h[w] = 0
    s = ""
    if any(lo): s += " op_sel:[" + ",".join(map(str, lo)) + "]"
    s += " op_sel_hi:[" + ",".join(map(str, h)) + "]"
    return s
def B(r):
    return f"v[{r & ~1}:{(r & ~1)+1}]", (r & 1)
def pk(op, d, *src, neg=()):
    t = []; w = []
    src = list(src)
    if isinstance(src[1], tuple) and src[1][1] & 1:
        src[0], src[1] = src[1], src[0]; neg = tuple({0: 1, 1: 0}.get(n, n) for n in neg)
    for i, s in enumerate(src):
        if isinstance(s, tuple):
            x, hi = B(s[1]); t.append(x); w.append((i,) if hi else i)
        else:
            assert s % 2 == 0; t.append(f"v[{s}:{s+1}]")
    assert d % 2 == 0
    m = bc(len(src), w)
    if neg:
        nn = ",".join("1" if i in neg else "0" for i in range(len(src))); m += f" neg_lo:[{nn}] neg_hi:[{nn}]"
    return f"v_pk_{op}_f32 v[{d}:{d+1}], " + ", ".join(t) + m

def stats_job(R, scr):
    L0, U, T = R, R+10, R+30
    ld = [f"v_mov_b32 v9, {WS_EPOCH}", ("vm", "st", "global_load_dword v9, v9, s[66:67] sc1")]
    for i in range(5): ld.append(("vm", "st", f"buffer_load_dwordx2 v[{L0+2*i}:{L0+2*i+1}], v{T}, s[16:19], s75 offen offset:{256*i}"))
    if int(OPT.get("el", 0)): ld = ld[2:] + ld[:2]
    if int(OPT.get("pg", 0)):
        ld += lines("s_cmp_eq_u32 s3, 1\ns_cselect_b64 s[4:5], s[46:47], s[60:61]\ns_cselect_b32 s6, 0, 0x200000\ns_cmp_eq_u32 s3, 2\ns_cselect_b64 s[4:5], s[48:49], s[4:5]\ns_cselect_b32 s6, 0, s6\ns_cmp_eq_u32 s3, 3\ns_cselect_b64 s[4:5], s[66:67], s[4:5]\ns_cselect_b32 s6, 0x1800000, s6")
        ld += ["v_lshlrev_b32 v66, 21, v1", "v_min_u32 v66, s6, v66", ("vm", None, "global_load_dword v66, v66, s[4:5]")]
    c = [("wvm", ["st"])]
    for i in range(10): c += [f"v_lshlrev_b32 v{U+2*i}, 16, v{L0+i}", f"v_and_b32 v{U+2*i+1}, 0xffff0000, v{L0+i}"]
    def red(v, t):
        o = [f"v_add_f32 v{v}, v{v}, v{v+1}"]
        for r in (8, 4, 2, 1): o.append(f"v_add_f32_dpp v{v}, v{v}, v{v} row_ror:{r} row_mask:0xf bank_mask:0xf")
        o += [f"v_mov_b32 v{t}, v{v}", f"v_permlane16_swap_b32 v{v}, v{t}", f"v_add_f32 v{v}, v{v}, v{t}", f"v_mul_f32 v{v}, 0x3acccccd, v{v}"]
        return o
    c.append(pk("add", T, U, U+2))
    for i in range(2, 10): c.append(pk("add", T, T, U+2*i))
    c += red(T, T+1)
    for i in range(10): c.append(pk("add", U+2*i, U+2*i, ("b", T), neg=(1,)))
    c.append(pk("mul", T+2, U, U))
    for i in range(1, 10): c.append(pk("fma", T+2, U+2*i, U+2*i, T+2))
    c += red(T+2, T+3)
    c += lines(f"""v_cvt_pk_bf16_f32 v{T}, v{T}, v{T+2}
v_and_b32 v{T+2}, 0xffff0000, v{T}
v_add_f32 v{T+2}, 0x3727c5ac, v{T+2}
v_cvt_pk_bf16_f32 v{T+2}, v{T+2}, v{T+2}
v_and_b32 v{T+2}, 0xffff0000, v{T+2}
v_sqrt_f32 v{T+2}, v{T+2}
v_and_b32 v{T}, 0xffff, v{T}
v_cvt_pk_bf16_f32 v{T+2}, v{T+2}, v{T+2}
v_readfirstlane_b32 s96, v9
v_and_b32 v{T+2}, 0xffff0000, v{T+2}
v_or_b32 v{T}, v{T+2}, v{T}
v_lshrrev_b32 v{T+1}, 5, v0
v_lshlrev_b32 v{T+1}, 2, v{T+1}
v_add_u32 v{T+1}, {scr}, v{T+1}
s_add_u32 s96, s96, 1""")
    c.append(("ds", None, f"ds_write_b32 v{T+1}, v{T}"))
    f = lines(f"v_and_b32 v{T+1}, 7, v1\nv_lshlrev_b32 v{T+1}, 2, v{T+1}\nv_add_u32 v{T+1}, {scr}, v{T+1}") + [("ds", "stf", f"ds_read_b32 v{T}, v{T+1}")]
    f += lines(f"v_lshlrev_b32 v{T+2}, 21, v0\nv_and_b32 v{T+2}, 0xfe000000, v{T+2}\nv_lshl_add_u32 v{T+2}, v1, 3, v{T+2}\ns_lshl_b32 s75, s70, 0\ns_lshl_b32 s75, s60, 7\ns_add_u32 s75, s75, {WS_STAT}".replace("s_lshl_b32 s75, s70, 0\n", "").replace("s60", "s31"))
    f += [("wds", ["stf"]), f"v_mov_b32 v{T+1}, s96", ("vm", None, f"buffer_store_dwordx2 v[{T}:{T+1}], v{T+2}, s[8:11], s75 offen sc1")]
    return ld, c, f
def tagtest(tags, exp="s96"):
    L = [f"v_xor_b32 v4, {exp}, v{tags[0]}"]
    for t in tags[1:]: L += [f"v_xor_b32 v5, {exp}, v{t}", "v_or_b32 v4, v4, v5"]
    return L + ["v_cmp_ne_u32 vcc, 0, v4"]
def gcheck(A, name, loads, tags):
    A(f"s_cbranch_vccz {name}_ok\ns_mov_b32 s7, 0x40000")
    A.label(f"{name}_l")
    for x in loads: A(x if isinstance(x, str) else x[2])
    A("s_waitcnt vmcnt(0)"); A.ext(tagtest(tags))
    A(f"s_sub_u32 s7, s7, 1\ns_cbranch_scc1 {name}_ok\ns_cbranch_vccnz {name}_l")
    A.label(f"{name}_ok")
WO = int(OPT.get("wo", 0)); NH = int(OPT.get("nh", 2))
U = [7, 8, 9, 10, 11, 0, 1, 2, 3, 4, 5, 6]
def w2reg(i):
    p = U.index(i)
    return 116 + 20*p if p < 7 else (96 if p == 7 else 20*(p-8))
def w2load(p, base=82):
    i = U[p]
    L = [f"s_add_u32 s79, s{base}, {i*5120}"]
    if i == 2: L += [f"s_cmp_eq_u32 s3, 3\ns_cselect_b32 s79, {hex(OOB)}, s79"]
    for nb in range(5):
        r = w2reg(i) + 4*nb
        L.append(("vm", ("w2", i), f"buffer_load_dwordx4 a[{r}:{r+3}], v{28+(nb>>2)}, s[8:11], s79 offen offset:{(nb&3)*1024} sc1"))
    return L
def w2loads(a, b, base=82): return sum((w2load(p, base) for p in range(a, b)), [])
def spread(A, main, extra, lo=0, hi=None):
    sl = interleave(main, extra, lo, hi) if extra else [[] for _ in main]
    for i, x in enumerate(main):
        A.it(x)
        for y in sl[i]: A.it(y)
def sig_early(A, e, d, t):
    A(f"s_cmp_ge_u32 s{e}, 11\ns_cselect_b32 s{t}, 11, 0\ns_cselect_b32 s{d}, 48, 0\ns_sub_u32 s{t}, s{e}, s{t}\ns_add_u32 s{d}, s{d}, s{t}\ns_mul_i32 s{t}, s{t}, 43\ns_lshr_b32 s{t}, s{t}, 7\ns_mul_i32 s{t}, s{t}, 9\ns_add_u32 s{d}, s{d}, s{t}")
def sig_late(A, l, t):
    A(f"s_lshr_b32 s{t}, s{l}, 2\ns_lshl_b32 s{t}, s{t}, 3\ns_add_u32 s{l}, s{l}, s{t}\ns_add_u32 s{l}, s{l}, 3")
def sig_ssm(A, k, t):
    A(f"s_mul_i32 s{t}, s{k}, 52429\ns_lshr_b32 s{t}, s{t}, 18\ns_mul_i32 s{t}, s{t}, 7\ns_add_u32 s{k}, s{k}, s{t}\ns_add_u32 s{k}, s{k}, 7")
def tlb_touch():
    T = int(OPT.get("tlb", 0))
    if not T: return []
    return lines(f"v_mul_u32_u24 v6, {hex(T*1024)}, v0\nv_min_u32 v7, {SZ_OUT-4}, v6") + [("vm", None, "buffer_load_dword v6, v6, s[8:11], 0 offen sc1"), ("vm", None, "global_load_dword v7, v7, s[62:63]")]
ORD = OPT.get("ord", "A")
def w2warm():
    return lines("s_lshr_b32 s75, s2, 6\ns_mul_i32 s75, s75, 6400\ns_add_u32 s75, s75, s82\ns_add_u32 s75, s75, 10240\nv_min_u32 v6, 49, v1\nv_lshlrev_b32 v6, 7, v6") + [("vm", None, "buffer_load_dword v7, v6, s[8:11], s75 offen sc1")]
def early_setup(A):
    srd(A, 8, P["ws"], WS_END)
    A("v_lshlrev_b32 v28, 4, v1\nv_add_u32 v29, 4096, v28")
    A("v_lshlrev_b32 v8, 20, v1\nv_and_b32 v8, 0xfe000000, v8\nv_lshl_add_u32 v8, v1, 2, v8")
def ph2_setup(A):
    A("s_and_b32 s28, s2, 1\ns_bfe_u32 s32, s2, 0x20001\ns_lshr_b32 s33, s2, 6\ns_lshl2_add_u32 s80, s32, s33\ns_bfe_u32 s81, s2, 0x30003\ns_lshl2_add_u32 s29, s28, s3")
    A(f"s_mul_i32 s32, s29, 12\ns_mul_i32 s33, s81, 96\ns_add_u32 s33, s33, s32\ns_mul_i32 s82, s33, 5120\ns_add_u32 s82, s82, {WS_W2P}")
    A(f"s_lshl1_add_u32 s33, s80, s28\ns_mul_i32 s34, s33, 96\ns_add_u32 s34, s34, s32\ns_mul_i32 s83, s34, {HS}\ns_add_u32 s83, s83, {WS_H}")
    A(f"s_xor_b32 s33, s33, 1\ns_mul_i32 s34, s33, 96\ns_add_u32 s34, s34, s32\ns_mul_i32 s30, s34, {HS}\ns_add_u32 s30, s30, {WS_H}")
    A(f"s_lshl_b32 s93, s80, 14\ns_add_u32 s93, s93, {WS_FLG}")
ACCG = 96; ACCK = 176
UF = OPT.get("u", "S") == "F"
if UF:
    STEPS = [("G",i) for i in range(3)] + [("K",i) for i in range(3)] + [("G",i) for i in range(3, 12)] + [("K",i) for i in range(3, 12)]
    AP = [[216, 220, 224, 228], [232, 236, 240, 244], [96, 100, 104, 108]]; G0, CHK = 0, {3: 1, 7: 2}
else:
    STEPS = [("G",i) for i in U[:5]] + [("K",i) for i in U[:3]] + [("G",i) for i in U[5:]] + [("K",i) for i in U[3:]]
    AP = [[b+4*t for t in range(4)] for b in (112, 128, 144)]; G0, CHK = 2, {5: 0, 8: 1}
POOL = [[f"v{b+4*t}" for t in range(4)] for b in (32, 48, 64, 80)] + [[f"a{r}" for r in q] for q in AP]
HBUF = [0,1,2,3,0,1,2,3,0,1,2,4,5,6,3,0,1,2,4,5,6,3,0,1]
def Hr(n, tb):
    b = POOL[HBUF[n]][tb]; r = int(b[1:]); return f"{b[0]}[{r}:{r+3}]"
FN = {0: 6, 1: 8, 2: 3, 3: 1, 4: 5}
def fbase(g):
    if g == 0: return lines("s_mul_i32 s31, s28, 22\ns_mul_i32 s32, s3, 6\ns_add_u32 s31, s31, s32\ns_min_u32 s31, s31, 38\ns_lshl_b32 s31, s31, 7\ns_add_u32 s31, s31, s93")
    if g == 1: return lines("s_mul_i32 s31, s29, 172\ns_lshr_b32 s31, s31, 7\ns_lshl_b32 s31, s31, 9\ns_add_u32 s31, s31, s93\ns_add_u32 s31, s31, 5632")
    if g == 2: return lines("s_mul_i32 s31, s29, 5\ns_lshr_b32 s31, s31, 1\ns_lshl_b32 s31, s31, 7\ns_add_u32 s31, s31, s93\ns_add_u32 s31, s31, 11264")
    if g == 3: return lines(f"s_xor_b32 s31, s95, 4\ns_lshl_b32 s31, s31, 7\ns_add_u32 s31, s31, {WS_XF}")
    if g == 4: return lines(f"s_lshl_b32 s31, s81, 3\ns_add_u32 s31, s31, s29\ns_mul_i32 s31, s31, 640\ns_add_u32 s31, s31, {WS_CF}")
    return lines(f"s_mul_i32 s31, s29, 7680\ns_add_u32 s31, s31, {WS_WF}\ns_mul_i32 s32, s81, 5\ns_cmp_eq_u32 s3, 3\ns_cselect_b32 s33, 2, 63")
def faddr(g):
    if g < 5: return [f"v_min_u32 v9, {FN[g]-1}, v1", "v_lshlrev_b32 v9, 7, v9"]
    return lines("v_lshrrev_b32 v9, 1, v1\nv_min_u32 v9, 6, v9\nv_cmp_eq_u32 vcc, s33, v9\nv_and_b32 v2, 1, v1\nv_lshl_add_u32 v2, v2, 2, s32\nv_cndmask_b32 v9, v9, 1, vcc\nv_lshrrev_b32 v2, 3, v2\nv_mad_u32_u24 v9, v9, 5, v2\nv_lshlrev_b32 v9, 7, v9")
def fpoll(g): return glue(fbase(g)) + faddr(g) + [("vm", "fl", "buffer_load_dword v9, v9, s[8:11], s31 offen sc1")]
def fcheck(A, name, g, pre=None):
    A.it(("wvm", ["fl"]))
    A(f"v_cmp_ne_u32 vcc, s96, v9\ns_cbranch_vccz {name}_ok\ns_mov_b32 s7, 0x40000")
    if pre: A(pre)
    A.label(f"{name}_l")
    A.ext(fbase(g) + faddr(g))
    A(f"buffer_load_dword v9, v9, s[8:11], s31 offen sc1\ns_waitcnt vmcnt(0)\nv_cmp_ne_u32 vcc, s96, v9\ns_sub_u32 s7, s7, 1\ns_cbranch_scc1 {name}_ok\ns_cbranch_vccnz {name}_l")
    A.label(f"{name}_ok")
def ftest(dst, src):
    return [("wvm", ["fl"]), f"v_cmp_ne_u32 vcc, s96, v9\ns_nop 0\ns_cmp_eq_u64 vcc, 0\ns_cselect_b32 s{dst}, s{src}, {hex(OOB)}"]
def fredo(A, name, g, dst, src, loads, pre=None):
    A(f"s_cmp_eq_u32 s{dst}, s{src}\ns_cbranch_scc1 {name}_done\ns_mov_b32 s7, 0x40000")
    if pre: A(pre)
    A.label(f"{name}_l")
    A.ext(fbase(g) + faddr(g))
    A(f"buffer_load_dword v9, v9, s[8:11], s31 offen sc1\ns_waitcnt vmcnt(0)\nv_cmp_ne_u32 vcc, s96, v9\ns_sub_u32 s7, s7, 1\ns_cbranch_scc1 {name}_ok\ns_cbranch_vccnz {name}_l")
    A.label(f"{name}_ok")
    for x in loads: A(x if isinstance(x, str) else x[2])
    if name == "FR": A("s_waitcnt vmcnt(0)")
    A.label(f"{name}_done")
def hload(n, base=None):
    hf, i = STEPS[n]
    L = [f"s_add_u32 s77, s{base or (30 if hf == 'G' else 83)}, {i*HS}"]
    if i == 2: L += [f"s_cmp_eq_u32 s3, 3\ns_cselect_b32 s77, {hex(OOB)}, s77"]
    for tb in range(4): L.append(("vm", ("h", n), f"buffer_load_dwordx4 {Hr(n,tb)}, v28, s[8:11], s77 offen offset:{tb*1024} sc1"))
    return L
XS = 81920
def ph2_addr(A):
    srd(A, 24, P["dsk"], 1280); srd(A, 20, P["out"], SZ_OUT)
    A("s_lshl1_add_u32 s32, s80, s28\ns_lshl_b32 s32, s32, 6\ns_lshl_b32 s33, s3, 4\ns_add_u32 s32, s32, s33\nv_and_b32 v2, 12, v1\nv_lshrrev_b32 v3, 4, v1\nv_add_u32 v2, v2, v3\nv_mul_u32_u24 v12, 160, v2\nv_add_u32 v2, s32, v2")
    A("v_lshrrev_b32 v15, 3, v2\nv_lshlrev_b32 v15, 7, v15\nv_and_b32 v3, 7, v2\nv_lshl_add_u32 v15, v3, 3, v15\nv_mul_u32_u24 v2, 2560, v2")
    A("s_mul_i32 s98, s81, 160\ns_mul_i32 s97, s32, 1280\ns_add_u32 s97, s97, s98\ns_lshl_b32 s33, s98, 1\nv_and_b32 v3, 3, v1\nv_lshl_add_u32 v13, v3, 4, v2\nv_add_u32 v13, s33, v13")
    A(f"s_mul_i32 s101, s3, 20480\ns_add_u32 s100, s101, {XS}\nv_lshl_add_u32 v14, v3, 3, s100\nv_add_u32 v12, v12, v14\ns_movk_i32 s33, 6554")
    for i in range(3):
        A(f"v_add_u32 v2, {64*i}, v1\nv_min_u32 v2, 159, v2\nv_mul_u32_u24 v3, s33, v2\nv_lshrrev_b32 v3, 16, v3\nv_mul_u32_u24 v3, 1120, v3\nv_lshl_add_u32 v{16+i}, v2, 4, v3")
    A("v_min_u32 v19, 144, v28\ns_mul_i32 s75, s3, 5120\nv_add_u32 v23, s75, v28\nv_add_u32 v24, 40960, v23")
    A(f"s_mul_i32 s4, s95, 5120\ns_add_u32 s4, s4, {WS_XCH}\ns_xor_b32 s5, s95, 4\ns_mul_i32 s5, s5, 5120\ns_add_u32 s5, s5, {WS_XCH}\ns_lshl_b32 s6, s95, 7\ns_add_u32 s6, s6, {WS_XF}")
FST = [f"s_mov_b32 s75, {WS_STAT}", ("vm", "fin", "buffer_load_dwordx2 v[10:11], v15, s[8:11], s75 offen sc1")]
def fin_loads():
    L = []
    for i in range(3): L += [f"s_add_u32 m0, s100, {1024*i}", ("vm", "fin", f"buffer_load_dwordx4 v{16+i}, s[16:19], s97 offen lds")]
    return L + ["s_add_u32 m0, s100, 3072", ("vm", "fin", "buffer_load_dwordx4 v19, s[24:27], s98 offen lds")] + FST
PARK = [f"a{r}" for r in range(80, 96)] + ["v6", "v7", "v26", "v27"]
def fin_base(A, name):
    A.ext(tagtest([11])); gcheck(A, name, FST, [11])
    for nb in range(5):
        r = ACCG + 8*nb
        A(f"ds_read_b64 v[{r}:{r+1}], v12 offset:{32*nb}\nds_read_b64 v[{r+2}:{r+3}], v14 offset:{3072+32*nb}")
    A("v_and_b32 v16, 0xffff0000, v10\nv_rcp_f32 v16, v16\nv_lshlrev_b32 v10, 16, v10\ns_waitcnt lgkmcnt(0)")
    for k in range(10):
        r = ACCG + 8*(k >> 1); x = r + (k & 1); d = x + 2; o = r + 4 + 2*(k & 1)
        A(f"v_lshlrev_b32 v{o}, 16, v{x}\nv_and_b32 v{o+1}, 0xffff0000, v{x}\nv_lshlrev_b32 v18, 16, v{d}\nv_and_b32 v19, 0xffff0000, v{d}")
        A.ext([pk("add", 20, o, ("b", 10), neg=(1,)), pk("mul", 18, 18, ("b", 16)), pk("fma", o, 20, 18, o)])
        for e in range(2):
            p = PARK[2*k+e]; A(f"v_accvgpr_write_b32 {p}, v{o+e}" if p[0] == "a" else f"v_mov_b32 {p}, v{o+e}")
GROUPS = [[n] for n in range(13)] + [[13, 14]] + [[n] for n in range(15, 21)] + [[21, 22, 23]]
ISSUE = {0: (3,), 1: (4,), 2: (5,), 3: (6,), 4: (7,), 5: (8,), 6: (9,), 7: (10,), 8: (11, 12), 9: (13,), 10: (14,), 11: (15,), 12: (16,), 13: (17, 18, 19), 15: (20, 21), 16: (22,), 17: (23,)}
for k_, ns_ in ISSUE.items():
    for n_ in ns_:
        prev_ = [m for m in range(n_) if HBUF[m] == HBUF[n_]]
        assert (not prev_ or prev_[-1] < k_) and (HBUF[n_] < 4 or k_ > 7)
def acc2(hf, nb, tb): return (ACCG if hf == "G" else ACCK) + (tb*5+nb)*4

W_SLOT = 20480; NWS = 4; X_BASE = NWS*W_SLOT; X_SLOT = 16384; F_SCR = X_BASE + 3*X_SLOT
def gen_ffn(A):
    import copy
    A("s_mul_i32 s70, s69, 160\ns_min_u32 s70, s70, 1568")
    A("s_lshl_b32 s32, s68, 7\ns_lshl_b32 s33, s3, 5\ns_add_u32 s32, s32, s33")
    A("v_lshrrev_b32 v2, 3, v1\nv_add_u32 v2, s32, v2\nv_mul_u32_u24 v2, 1280, v2\nv_lshrrev_b32 v3, 4, v1\nv_xor_b32 v3, v3, v1\nv_and_b32 v3, 7, v3\nv_lshlrev_b32 v3, 4, v3")
    A(f"v_add_u32 v15, v2, v3\nv_xor_b32 v3, 64, v3\nv_add_u32 v16, v2, v3\nv_add_u32 v16, {8*1280-1024}, v16\nv_add_u32 v17, {16*1280}, v15\nv_add_u32 v18, {16*1280}, v16")
    A(f"s_mul_i32 s73, s3, 5120\ns_lshl_b32 s74, s3, 12\ns_add_u32 s74, s74, {X_BASE}")
    A("s_mul_i32 s32, s71, 320\ns_lshl_b32 s33, s70, 1\ns_movk_i32 s34, 3277")
    for i in range(5):
        A(f"v_add_u32 v2, s32, v1\nv_add_u32 v2, {64*i}, v2\nv_mul_u32_u24 v3, s34, v2\nv_lshrrev_b32 v3, 16, v3")
        A("v_mul_u32_u24 v4, 20, v3\nv_sub_u32 v4, v2, v4\nv_lshrrev_b32 v5, 2, v3\nv_and_b32 v5, 2, v5\nv_xor_b32 v4, v4, v5")
        A(f"v_mul_u32_u24 v3, 3456, v3\nv_lshl_add_u32 v3, v4, 4, v3\nv_add_u32 v3, s33, v3\nv_subrev_u32 v{10+i}, {1024*(i&3)}, v3")
    def dmaW(s):
        L = [f"s_add_u32 m0, s73, {(s%NWS)*W_SLOT}", f"s_mov_b32 s77, {s*32*3456}"]
        for i in range(5):
            if i == 4: L.append(f"s_add_u32 m0, s73, {(s%NWS)*W_SLOT+4096}")
            L.append(("vm", ("W", s), f"buffer_load_dwordx4 v{10+i}, s[12:15], s77 offen offset:{1024*(i&3)} lds"))
        return L
    def dmaX(u, hs=(0, 1)):
        L = []
        for h in hs:
            L += [f"s_add_u32 m0, s74, {(u%3)*X_SLOT+2048*h}", f"s_movk_i32 s78, {u*128}"]
            for i in range(2): L.append(("vm", ("X", u), f"buffer_load_dwordx4 v{15+2*h+i}, s[16:19], s78 offen offset:{1024*i} lds"))
        return L
    st_ld, st_c, st_f = stats_job(32, X_BASE + 2*X_SLOT)
    def lds_setup(A):
        early_setup(A)
        A("v_lshrrev_b32 v2, 4, v1\nv_bfe_u32 v3, v1, 2, 2\nv_lshl_add_u32 v3, v2, 3, v3\nv_mul_u32_u24 v3, 320, v3")
        A("v_and_b32 v4, 3, v1\nv_lshl_add_u32 v3, v4, 3, v3\nv_and_b32 v4, 1, v2\nv_lshlrev_b32 v4, 5, v4")
        A("s_mul_i32 s75, s72, 192\nv_add_u32 v5, s75, v3\nv_add_u32 v20, v5, v4\nv_sub_u32 v21, v5, v4")
        A("s_lshl_b32 s75, s72, 5\ns_add_u32 s75, s75, 128\nv_xor_b32 v5, s75, v4\nv_add_u32 v22, v3, v5")
        for i in range(3): A(f"v_add_u32 v{23+i}, {3*W_SLOT}, v{20+i}")
        A("v_and_b32 v3, 15, v1\nv_lshrrev_b32 v4, 1, v3\nv_xor_b32 v4, v4, v2\nv_lshlrev_b32 v4, 4, v4\nv_lshl_add_u32 v3, v3, 7, v4")
        A(f"s_lshl_b32 s75, s71, 13\ns_add_u32 s75, s75, {X_BASE}\nv_add_u32 v26, s75, v3\nv_xor_b32 v27, 64, v26")
    PEND = []
    def start(role, pre, post, side):
        pre(A)
        A("s_waitcnt lgkmcnt(0)")
        srd(A, 16, P["x"], SZ_X); A.its(st_ld); post(A)
        A("s_cmp_eq_u32 s72, 0"); srd_sel(A, 12, P["w1"], P["w3"], SZ_W)
        main = dmaX(0) + dmaW(0)
        first, second = (side, main) if (ORD == "B" and side) else (main, side)
        A.its(first)
        A.L.append(f";@TOUCH {role}")
        A(f"s_branch {role}_a"); A.L.append(f";@SEG {role}"); A.label(f"{role}_a")
        lds_setup(A)
        A.its(st_c[:1])
        if ORD == "B": spread(A, st_c[1:], second + dmaW(1), 0, len(st_c) - 10)
        elif ORD == "A": spread(A, st_c[1:], dmaW(1) + second, 0, len(st_c) - 10)
        else: spread(A, st_c[1:], dmaW(1) + dmaX(1) + dmaW(2), 0, len(st_c) - 4); PEND[:] = second
    def hs(A):
        A("s_lshl1_add_u32 s32, s69, s72"); sig_early(A, 32, 84, 33)
        A("s_mul_i32 s33, s69, 3\ns_cmp_eq_u32 s69, 10\ns_cselect_b32 s34, 1, 0\ns_sub_u32 s33, s33, s34\ns_lshl1_add_u32 s85, s72, s33\ns_add_u32 s86, s33, 1")
        sig_late(A, 85, 34); sig_late(A, 86, 34)
        A(f"s_lshl1_add_u32 s33, s68, s71\ns_mul_i32 s34, s33, 96")
        for r in (84, 85, 86): A(f"s_add_u32 s{r}, s{r}, s34\ns_mul_i32 s{r}, s{r}, {HS}\ns_add_u32 s{r}, s{r}, {WS_H}")
        A(f"s_cmp_eq_u32 s32, 19\ns_cselect_b32 s85, {hex(OOB)}, s85")
        A(f"s_lshl1_add_u32 s87, s32, s71\ns_lshl_b32 s33, s68, 7\ns_add_u32 s87, s87, s33\ns_lshl_b32 s87, s87, 7\ns_add_u32 s87, s87, {WS_FLG}")
    late_setup = [cap(ph2_setup), []] + chop(cap(hs), 2)
    ep_ld = lines(f"s_mul_i32 s75, s72, 1728\ns_mul_i32 s76, s71, 80\ns_add_u32 s75, s75, s76\ns_add_u32 s75, s75, s70\ns_lshl_b32 s75, s75, 3\ns_add_u32 s75, s75, {WS_CS}\ns_add_u32 s76, s75, {CS_HALF}\nv_min_u32 v2, 624, v28")
    ep_ld += [("vm", "ep", "buffer_load_dwordx4 v[56:59], v2, s[8:11], s75 offen sc1"), ("vm", "ep", "buffer_load_dwordx4 v[60:63], v2, s[8:11], s76 offen sc1")]
    ep_ld += lines(f"v_and_b32 v2, 7, v1\nv_lshlrev_b32 v2, 3, v2\nv_and_b32 v3, 8, v1\nv_lshl_add_u32 v2, v3, 4, v2\ns_lshl1_add_u32 s75, s68, s71\ns_lshl_b32 s75, s75, 10\ns_add_u32 s75, s75, {WS_STAT}")
    for tb in range(4): ep_ld.append(("vm", "ep", f"buffer_load_dwordx2 v[{64+2*tb}:{65+2*tb}], v2, s[8:11], s75 offen offset:{256*tb} sc1"))
    ep_tags = [57, 59, 61, 63, 65, 67, 69, 71]
    ep_t = [("wvm", ["ep"])] + tagtest(ep_tags)
    ep_w = lines(f"v_add_f32 v56, v56, v60\nv_add_f32 v57, v58, v62\ns_lshl_b32 s75, s72, 10\ns_mul_i32 s76, s71, 320\ns_add_u32 s75, s75, s76\ns_add_u32 s75, s75, {F_SCR}\nv_min_u32 v2, 39, v1\nv_lshl_add_u32 v2, v2, 3, s75")
    ep_w += [("ds", None, "ds_write_b64 v2, v[56:57]")]
    ep_r = lines(f"v_and_b32 v2, 48, v1\ns_mul_i32 s75, s72, 384\ns_add_u32 s75, s75, {F_SCR}\nv_add_u32 v3, s75, v2\ns_lshl_b32 s75, s72, 6\ns_add_u32 s75, s75, {F_SCR+256}\nv_add_u32 v2, s75, v2")
    for j in range(10):
        pr, m = j >> 1, j & 1
        ep_r.append(("ds", None, f"ds_read_b128 v[{56+4*j}:{59+4*j}], v{2 if pr == 4 else 3} offset:{1024*m + (0 if pr == 4 else 64*pr)}"))
    ep_c = []
    for tb in range(4):
        ep_c += lines(f"v_lshlrev_b32 v{44+tb}, 16, v{64+2*tb}\nv_and_b32 v{52+tb}, 0xffff0000, v{64+2*tb}\nv_rcp_f32 v{48+tb}, v{52+tb}\nv_mul_f32 v{52+tb}, v{52+tb}, v{52+tb}\nv_mul_f32 v{48+tb}, 0xbfb8aa3b, v{48+tb}")
    ep_a = lines("v_lshrrev_b32 v2, 4, v1\nv_and_b32 v3, 1, v2\nv_lshlrev_b32 v3, 10, v3\nv_lshrrev_b32 v2, 1, v2\nv_lshl_add_u32 v3, v2, 8, v3")
    ep_a += lines("v_and_b32 v2, 15, v1\nv_lshl_add_u32 v3, v2, 4, v3\ns_lshl_b32 s75, s72, 9\nv_add_u32 v30, s75, v3\nv_mov_b32 v31, s96\ns_add_u32 s99, s87, 5632")
    ACC = 96
    def acc(j, tb): return ACC + (j*4+tb)*4
    def Wr(par, j): return par*56 + j*4
    def Xr(par, tb): return par*56 + 40 + tb*4
    def reads(s):
        par = s & 1; L = []; sl = s % NWS; hi = 3 if sl >= 3 else 0; so = (sl - hi)*W_SLOT
        for tb in range(4): L.append(("ds", None, f"ds_read_b128 a[{Xr(par,tb)}:{Xr(par,tb)+3}], v{26+(s&1)} offset:{((s>>1)%3)*X_SLOT + tb*2048}"))
        for j in range(10):
            pr, m = j >> 1, j & 1; ar = 22 if pr == 4 else 20 + (pr & 1); co = 0 if pr == 4 else pr*32
            for hh in range(2): L.append(("ds", None, f"ds_read_b64_tr_b16 a[{Wr(par,j)+2*hh}:{Wr(par,j)+2*hh+1}], v{ar+hi} offset:{so + m*10240 + hh*1280 + co}"))
        return L
    NL = int(OPT.get("nl", 7)); L0 = int(OPT.get("l0", 0)); wl = [[]]*L0 + chop(w2loads(0, NL), 9-L0)
    def loop(role, mem, side, xt={}):
        M = {0: dmaX(1) + dmaW(2), 1: dmaW(3) + dmaX(2), 2: dmaW(4) + dmaW(5), 3: dmaX(3) + dmaW(6), 4: dmaW(7) + dmaW(8), 5: dmaX(4) + dmaW(9), 6: dmaW(10) + dmaX(5)}
        for s in range(7, 16): M[s] = dmaW(s+4) + (dmaX((s+5) >> 1, ((s+1) & 1,)) if s < 15 else [])
        if ORD == "C": M[0] = PEND + dmaW(3); M[1] = dmaX(2) + dmaW(4); M[2] = dmaW(5)
        if "flat" in OPT:
            M = {0: dmaX(1) + dmaW(2), 1: dmaW(3) + dmaX(2), 2: dmaW(4) + dmaW(5)}
            for s in range(3, 17): M[s] = dmaW(s+3)
            M[3] += dmaX(3)
            for u in range(4, 10):
                M[2*u-4] += dmaX(u, (0,)); M[2*u-3] += dmaX(u, (1,))
        for s, L in mem.items(): M[s] = M[s] + ([x if isinstance(x, str) else (x[0], x[1], x[2].replace("s77 offen", "s76 offen")) for x in L] if "noside" in OPT else L)
        M[15] += wl[0]
        for s in range(16, 20): M[s] = M.get(s, []) + wl[2*s-31] + wl[2*s-30]
        S = dict(side)
        for k, L in {5: late_setup[0], 6: late_setup[2], 8: late_setup[3], 11: ep_a, 12: fpoll(4) + ep_ld[10:], 13: ep_ld[:10], 15: fpoll(5), 16: ep_t, 17: ep_w + ep_c, 18: ep_r, 19: cap(ph2_addr)}.items():
            S[k] = S.get(k, []) + L
        if "wf" in OPT: S[int(OPT["wf"])] = S.get(int(OPT["wf"]), []) + w2warm()
        A.L.append(f";@TOUCH P{0 if role == 'FA' else 2}")
        A.sync([("X", 0), ("W", 0)]); stamp(A, 1)
        A.its(reads(0))
        for s in range(20):
            tags = ([("W", s+1), ("X", (s+1) >> 1)] if s < 19 else []) + xt.get(s, [])
            if s == 15: fcheck(A, role + "C", 4)
            if s == 17: gcheck(A, role + "G", ep_ld, ep_tags); fcheck(A, role + "P", 5)
            A.sync(tags)
            tick(A, s, 39)
            par = s & 1; mf = []
            for j in range(10):
                for tb in (range(4) if j % 2 == 0 or not SN else range(3, -1, -1)):
                    c = acc(j, tb); mf.append(f"{MF} v[{c}:{c+3}], a[{Wr(par,j)}:{Wr(par,j)+3}], a[{Xr(par,tb)}:{Xr(par,tb)+3}], " + (f"v[{c}:{c+3}]" if s else "0"))
            A.weave(mf, [(reads(s+1) if s < 19 else [], 0, 30), (M.get(s, []), 0, 39), (S.get(s, []), 1, 39)])
    A("s_mul_i32 s34, s69, 5\ns_lshr_b32 s34, s34, 1\ns_and_b32 s33, s68, 7\ns_lshr_b32 s35, s68, 3\ns_lshl1_add_u32 s32, s33, s35\ns_and_b32 s76, s69, 1\ns_lshl2_add_u32 s76, s76, 8\ns_cmp_ge_u32 s32, s76\ns_cbranch_scc1 FB_p")
    snap = (A.nv, dict(A.tv), A.dv, A.nd, dict(A.td), A.dd)
    def fa0(A):
        A(f"s_lshl2_add_u32 s32, s34, s32\ns_lshr_b32 s76, s33, 1\ns_add_u32 s76, s76, s34\ns_and_b32 s33, s33, 1\ns_mul_i32 s33, s33, 27\ns_add_u32 s33, s33, s76\ns_mov_b32 s34, s35")
        A(f"s_lshl_b32 s76, s76, 7\ns_lshl2_add_u32 s97, s34, s3\ns_mul_i32 s97, s97, {8*3456}\ns_add_u32 s97, s97, s76")
        A("v_lshrrev_b32 v2, 3, v1\nv_mul_u32_u24 v2, 3456, v2\nv_and_b32 v3, 7, v1\nv_lshl_add_u32 v30, v3, 4, v2")
    def fa1(A):
        A("s_cmp_lt_u32 s33, 27"); srd_sel(A, 24, P["w1"], P["w3"], SZ_W)
    def fa2(A):
        A(f"s_lshl_b32 s98, s33, 9\ns_mul_i32 s34, s34, {CS_HALF}\ns_add_u32 s98, s98, s34\ns_add_u32 s98, s98, {WS_CS}\ns_cmp_eq_u32 s3, 0\ns_cselect_b32 s98, s98, {hex(OOB)}")
        A("v_and_b32 v2, 15, v1\nv_and_b32 v3, 1, v1\nv_lshlrev_b32 v3, 4, v3\nv_mov_b32 v4, 0x3f80\nv_lshlrev_b32 v3, v3, v4\nv_lshrrev_b32 v2, 1, v2")
        for r in range(4): A(f"v_cmp_eq_u32 vcc, {r}, v2\nv_cndmask_b32 v{72+r}, 0, v3, vcc")
        A(f"v_and_b32 v2, 7, v1\nv_lshlrev_b32 v2, 5, v2\nv_and_b32 v3, 16, v1\nv_add_u32 v2, v2, v3\ns_lshl_b32 s75, s3, 8\ns_add_u32 s75, s75, {F_SCR}\nv_add_u32 v2, s75, v2\nv_and_b32 v3, 32, v1\nv_lshl_add_u32 v80, v3, 5, v2")
        A(f"v_lshlrev_b32 v82, 2, v1\nv_add_u32 v81, {F_SCR}, v82\nv_lshlrev_b32 v82, 3, v1")
    cs_ld = []
    for i in range(10): cs_ld += [f"s_add_u32 s77, s97, {i*64*3456}", ("vm", "csl", f"buffer_load_dwordx4 a[{112+4*i}:{115+4*i}], v30, s[24:27], s77 offen")]
    cs_c = [("wvm", ["csl"])]
    for i in range(10): cs_c.append(f"{MF} v[76:79], v[72:75], a[{112+4*i}:{115+4*i}], " + ("v[76:79]" if i else "0"))
    cs_c += ["s_nop 0"]*2
    for e in range(4): cs_c.append(f"v_add_f32_dpp v{76+e}, v{76+e}, v{76+e} row_ror:8 row_mask:0xf bank_mask:0xf")
    cs_c.append(("ds", None, "ds_write_b128 v80, v[76:79]"))
    cs_f = [("ds", "csf", f"ds_read_b32 v{72+w}, v81 offset:{256*w}") for w in range(4)]
    cs_f += [("wds", ["csf"]), "v_add_f32 v72, v72, v73", "v_add_f32 v74, v74, v75", "v_mov_b32 v73, s96", "v_add_f32 v72, v72, v74", ("vm", None, "buffer_store_dwordx2 v[72:73], v82, s[8:11], s98 offen sc1")]
    CB = F_SCR + 4096
    def fc1(A):
        A("s_cmp_eq_u32 s72, 0"); srd_sel(A, 20, P["cre"], P["cim"], SZ_B)
        A(f"s_and_b32 s4, s32, 7\ns_lshr_b32 s5, s32, 3\ns_lshl1_add_u32 s99, s4, s71\ns_mul_i32 s99, s99, 51200\ns_lshl_b32 s75, s5, 7\ns_add_u32 s99, s99, s75\ns_cmp_lt_u32 s32, 80\ns_cselect_b32 s99, s99, {hex(OOB)}")
        A(f"s_add_u32 s101, s73, {CB}\nv_lshrrev_b32 v2, 3, v1\nv_mul_u32_u24 v2, 1280, v2\nv_lshrrev_b32 v3, 4, v1\nv_xor_b32 v3, v3, v1\nv_and_b32 v3, 7, v3\nv_lshl_add_u32 v2, v3, 4, v2\ns_lshl_b32 s75, s71, 6\nv_xor_b32 v84, s75, v2\nv_xor_b32 v85, 64, v84")
    def fc2(A):
        A(f"s_lshl2_add_u32 s5, s5, s3\ns_mul_i32 s6, s4, 40\ns_add_u32 s6, s6, s5\ns_lshl_b32 s6, s6, 7\ns_add_u32 s6, s6, {WS_CF}")
        sig_ssm(A, 5, 75)
        A(f"s_mul_i32 s4, s4, 96\ns_add_u32 s5, s5, s4\ns_mul_i32 s100, s5, 5120\ns_add_u32 s100, s100, {WS_W2P}\ns_cmp_lt_u32 s32, 80\ns_cselect_b32 s100, s100, {hex(OOB)}\ns_cselect_b32 s6, s6, {hex(OOB)}")
        A(f"v_and_b32 v2, 15, v1\nv_bfe_u32 v3, v1, 4, 1\ns_lshl_b32 s75, s3, 1\nv_add_u32 v3, s75, v3\nv_lshrrev_b32 v4, 1, v2\nv_xor_b32 v3, v3, v4\nv_lshlrev_b32 v3, 4, v3\nv_lshl_add_u32 v3, v2, 7, v3")
        A(f"v_lshrrev_b32 v4, 5, v1\nv_mul_u32_u24 v4, 10240, v4\nv_add_u32 v3, v3, v4\nv_add_u32 v86, {CB}, v3")
    c_ld = []
    for i in range(5): c_ld += [f"s_add_u32 m0, s101, {1024*i}", f"s_add_u32 s77, s99, {10240*i}", ("vm", "cl", f"buffer_load_dwordx4 v{84+(i&1)}, s[20:23], s77 offen lds")]
    c_r = [("ds", None, f"ds_read_b128 a[{152+4*nb}:{155+4*nb}], v86 offset:{2048*nb}") for nb in range(5)]
    c_s = [("vm", "cs", f"buffer_store_dwordx4 a[{152+4*nb}:{155+4*nb}], v{28+(nb>>2)}, s[8:11], s100 offen offset:{(nb&3)*1024} sc1") for nb in range(5)]
    c_f = ["v_mov_b32 v3, s96", ("wvm", ["cs"]), ("vm", None, "buffer_store_dword v3, v8, s[8:11], s6 offen sc1")]
    CD = int(OPT.get("cd", 0))
    start("FA", fa0, fa1, cs_ld)
    fc1(A)
    loop("FA", {CD: c_ld, CD+2: c_r, CD+3: c_s[:3], CD+4: c_s[3:]}, {0: st_f + cap(fc2), 1: cap(fa2), int(OPT.get("cf", 7)): c_f, 2: cs_c[:11], int(OPT.get("cw", 9)): cs_c[13:] + ["s_nop 0"]*6, int(OPT.get("cw", 9))+1: cs_f}, {CD+2: ["cl"]})
    A("s_branch FFN_EP")
    A.nv, A.tv, A.dv, A.nd, A.td, A.dd = snap
    A.L.append(";@SEG FBP"); A.label("FB_p")
    SO = (4, 5, 6, 97, 24, 25, 26, 27)
    def fb1(A):
        A("s_sub_u32 s32, s32, s76\ns_lshl_b32 s35, s69, 2\ns_sub_u32 s35, s35, s34\ns_lshl2_add_u32 s34, s35, s32\ns_lshl2_add_u32 s32, s34, s3\ns_mul_i32 s34, s32, 52429\ns_lshr_b32 s34, s34, 18\ns_mul_i32 s33, s34, 5\ns_sub_u32 s33, s32, s33")
        A(f"s_mul_i32 s99, s34, 40960\ns_lshl_b32 s35, s33, 8\ns_add_u32 s99, s99, s35\ns_lshl_b32 s101, s3, 13\ns_add_u32 s101, s101, {F_SCR}")
        A(f"v_lshrrev_b32 v2, 4, v1\nv_mul_u32_u24 v30, 1280, v2\nv_and_b32 v3, 15, v1\nv_lshlrev_b32 v2, 1, v2\nv_xor_b32 v3, v3, v2\nv_lshl_add_u32 v30, v3, 4, v30\nv_xor_b32 v31, 128, v30")
    def fb2(A):
        A("s_mul_i32 s35, s34, 52429\ns_lshr_b32 s35, s35, 18\ns_mul_i32 s75, s35, 5\ns_sub_u32 s75, s34, s75\ns_sub_u32 s76, s34, 49\ns_cmp_ge_u32 s34, 49\ns_cselect_b32 s35, 10, s35\ns_cselect_b32 s75, s76, s75")
        A("s_cmp_eq_u32 s75, 3\ns_cselect_b32 s76, 1, 0\ns_lshl1_add_u32 s76, s35, s76"); sig_early(A, 76, 100, 79)
        A("s_mul_i32 s76, s35, 3\ns_lshr_b32 s79, s75, 1\ns_add_u32 s76, s76, s79\ns_cmp_eq_u32 s35, 10\ns_cselect_b32 s79, 1, 0\ns_sub_u32 s76, s76, s79"); sig_late(A, 76, 79)
        A("s_lshr_b32 s79, 9, s75\ns_bitcmp1_b32 s79, 0\ns_cselect_b32 s100, s100, s76")
        A(f"s_mul_i32 s98, s100, 5\ns_add_u32 s98, s98, s33\ns_lshl_b32 s98, s98, 7\ns_add_u32 s98, s98, {WS_WF}")
        A(f"s_mul_i32 s100, s100, 5120\ns_lshl_b32 s79, s33, 13\ns_add_u32 s100, s100, s79\ns_add_u32 s100, s100, {WS_W2P}")
        A(f"s_cmp_lt_u32 s32, 270\ns_cselect_b32 s100, s100, {hex(OOB)}\ns_cselect_b32 s98, s98, {hex(OOB)}")
        A("s_cmp_eq_u32 s75, 2\ns_cselect_b32 s75, 8, 4\ns_cselect_b32 s76, 1, 4\ns_lshl_b32 s76, s76, 10")
        A(f"v_lshrrev_b32 v2, 4, v1\nv_mul_u32_u24 v2, s75, v2\nv_bfe_u32 v3, v1, 2, 2\nv_add_u32 v2, v2, v3\nv_lshlrev_b32 v2, 8, v2\nv_and_b32 v3, 3, v1\nv_lshl_add_u32 v2, v3, 3, v2")
        for r in (80, 81):
            A((f"v_mov_b32 v{r}, v2" if r == 80 else f"v_add_u32 v{r}, s76, v2") + f"\nv_lshrrev_b32 v3, 1, v{r}\nv_and_b32 v3, 0x400, v3\nv_xor_b32 v3, v3, v{r}\nv_bfe_u32 v3, v3, 8, 3\nv_lshl_add_u32 v{r}, v3, 5, v{r}\nv_add_u32 v{r}, s101, v{r}")
        A(f"s_mul_i32 s33, s33, {8*52429}")
        for k in range(8): A(f"s_add_u32 s79, s33, {k*52429}\ns_lshr_b32 s79, s79, 18\ns_mul_i32 s79, s79, 486400\ns_add_u32 s{SO[k]}, s100, s79")
    w2_ld = []
    for i in range(8): w2_ld += [f"s_add_u32 m0, s101, {1024*i}", f"s_add_u32 s77, s99, {5120*i}", ("vm", "w2l", f"buffer_load_dwordx4 v{30 + ((i ^ (i >> 1)) & 1)}, s[20:23], s77 offen lds")]
    w2_c = [("wvm", ["w2l"])]
    for k in range(8):
        for hh in range(2): w2_c += [f"v_xor_b32 v{82+hh}, {32*k}, v{80+hh}", ("ds", "w2t", f"ds_read_b64_tr_b16 a[{152+4*k+2*hh}:{153+4*k+2*hh}], v{82+hh}")]
    w2_s = [("vm", "side", f"buffer_store_dwordx4 a[{152+4*k}:{155+4*k}], v{28+(k>>2)}, s[8:11], s{SO[k]} offen offset:{(k&3)*1024} sc1") for k in range(8)]
    f2 = chop(cap(fb2), 3)
    BD = int(OPT.get("bd", 0)); BS = int(OPT.get("bs", BD+4)); BN = int(OPT.get("bn", 3))
    start("FB", fb1, lambda A: srd(A, 20, P["w2"], SZ_W), w2_ld if BD < 0 else [])
    fl = ["v_mov_b32 v3, s96", ("wvm", ["side"]), ("vm", None, "buffer_store_dword v3, v8, s[8:11], s98 offen sc1")]
    if BD < 0: loop("FB", {}, {0: st_f + f2[0], 1: f2[1], 2: f2[2], 3: w2_c, 4: w2_s[:4], 5: w2_s[4:], 8: fl})
    else: loop("FB", {BD: w2_ld}, {0: st_f + f2[0] + f2[1], 1: f2[2], BD+int(OPT.get("bt", 3)): w2_c, **{BS+k: L for k, L in enumerate(chop(w2_s, BN))}, BS+BN+int(OPT.get("bf", 2)): fl})
    A.L.append(";@SEG EP"); A.label("FFN_EP"); A.reset()
    A("s_waitcnt lgkmcnt(0)"); tick(A, 20, 39); tockdump(A, 20, 39, 0x40000)
    stamp(A, 2)
    A("s_nop 6")
    T = 32
    def silu(pr, tb, dst):
        g, u = acc(2*pr, tb), acc(2*pr+1, tb); cg, cu = 56+8*pr, 60+8*pr
        L = []
        for k in (0, 2): L.append(pk("fma", g+k, cg+k, ("b", 44+tb), g+k, neg=(1,)))
        for k in (0, 2): L.append(pk("mul", T+k, g+k, ("b", 48+tb)))
        for k in (0, 2): L.append(pk("fma", u+k, cu+k, ("b", 44+tb), u+k, neg=(1,)))
        for e in range(4): L.append(f"v_exp_f32 v{T+e}, v{T+e}")
        for k in (0, 2): L.append(pk("mul", g+k, g+k, u+k))
        for k in (0, 2): L.append(pk("fma", T+k, T+k, ("b", 52+tb), ("b", 52+tb)))
        for e in range(4): L.append(f"v_rcp_f32 v{T+e}, v{T+e}")
        for k in (0, 2): L.append(pk("mul", g+k, g+k, T+k))
        L += [f"v_cvt_pk_bf16_f32 v{dst}, v{g}, v{g+1}", f"v_cvt_pk_bf16_f32 v{dst+1}, v{g+2}, v{g+3}"]
        return L
    ep = []
    grp = []
    for fr in range(2):
        for tb in range(4):
            o = acc(4*fr+1, tb)
            grp.append((silu(2*fr, tb, o) + silu(2*fr+1, tb, o+2), ("vm", ("H", fr), f"buffer_store_dwordx4 v[{o}:{o+3}], v28, s[8:11], s{84+fr} offen offset:{tb*1024} sc1")))
    for tp in range(2):
        o = acc(9, 2*tp)
        grp.append((silu(4, 2*tp, o) + silu(4, 2*tp+1, o+2) + [f"v_permlane16_swap_b32 v{o}, v{o+2}", f"v_permlane16_swap_b32 v{o+1}, v{o+3}"],
                    ("vm", ("H", 2), f"buffer_store_dwordx4 v[{o}:{o+3}], v30, s[8:11], s86 offen offset:{tp*2048} sc1")))
    FI = int(OPT.get("fi", 1)); we = chop((fin_loads() if FI else []) + w2loads(NL, NL+FE), 8)
    for k, (c, st) in enumerate(grp):
        spread(A, c, we[k] if k < 8 else [])
        if k == int(OPT.get("ef", 99)): A.its([("wvm", [("H", 0)]), ("vm", None, "buffer_store_dword v31, v8, s[8:11], s87 offen sc1")])
        A.it(st)
    stamp(A, 3)
    if "ef" not in OPT: A.its([("wvm", [("H", 0)]), ("vm", None, "buffer_store_dword v31, v8, s[8:11], s87 offen sc1")])
    PQ = int(OPT.get("pq", 0)); lf = [("wvm", [("H", 2)]), ("vm", None, "buffer_store_dword v31, v8, s[8:11], s99 offen sc1")]
    pt = lambda i: [("fn", lambda: ptick(A, i, 25))]
    if TS >= 2: A("s_mov_b32 s7, 0x40001")
    fb = [("wvm", ["fin"]), ("fn", lambda: fin_base(A, "FGF"))]
    A.its(pt(50) + ([] if FI else fin_loads()) + w2loads(NL+FE, 12-PQ) + pt(51) + fb + pt(52) + fpoll(G0) + lf + w2loads(12-PQ, 12) + pt(53) + [("wvm", ["fl"])] + pt(54))
    fcheck(A, "FR", G0)
    if TS >= 2: A("v_writelane_b32 v25, s7, 56"); ptick(A, 55, 25)
    A("s_branch PH2")

S_SLOT = 49152; S_SCR = 3*S_SLOT
def gen_ssm(A):
    A.reset()
    A("s_lshl_b32 s32, s68, 8\ns_lshl_b32 s33, s72, 7\ns_add_u32 s32, s32, s33\ns_lshl_b32 s33, s71, 3\ns_add_u32 s32, s32, s33")
    A("v_and_b32 v2, 32, v1\nv_bfe_u32 v3, v1, 3, 1\nv_lshl_add_u32 v2, v3, 4, v2\nv_bfe_u32 v3, v1, 4, 1\nv_add3_u32 v2, v2, v3, s32\nv_mul_u32_u24 v2, 1280, v2")
    A("v_lshrrev_b32 v3, 4, v1\nv_xor_b32 v3, v3, v1\nv_and_b32 v3, 7, v3\nv_lshlrev_b32 v3, 4, v3\nv_xor_b32 v4, 64, v3\nv_add_u32 v5, v2, v3\nv_add_u32 v6, v2, v4")
    for ii in range(8): A(f"v_add_u32 v{10+ii}, {(64*(ii&1) + 2*(ii>>1))*1280 - 1024*(ii&3)}, v{5+(ii&1)}")
    A("s_lshl_b32 s32, s69, 6\ns_lshl_b32 s33, s71, 5\ns_add_u32 s32, s32, s33")
    A("v_lshrrev_b32 v2, 3, v1\nv_add_u32 v2, s32, v2\nv_mul_u32_u24 v2, 1280, v2\nv_add_u32 v5, v2, v3\nv_add_u32 v6, v2, v4")
    for i in range(4): A(f"v_add_u32 v{18+i}, {8*i*1280 - 1024*i}, v{5+(i&1)}")
    A("s_lshl_b32 s73, s3, 13\ns_lshl_b32 s74, s3, 12\ns_add_u32 s74, s74, 32768")
    st_ld, st_c, st_f = stats_job(32, S_SCR)
    def dma(u, hs=(0, 1)):
        b = (u % 3)*S_SLOT; L = []
        for h in hs:
            L += [f"s_add_u32 m0, s73, {b+4096*h}", f"s_movk_i32 s78, {u*128}"]
            for i in range(4): L.append(("vm", ("S", u), f"buffer_load_dwordx4 v{10+4*h+i}, s[16:19], s78 offen offset:{1024*i} lds"))
            L.append(f"s_add_u32 m0, s74, {b}")
            for i in range(2): L.append(("vm", ("S", u), f"buffer_load_dwordx4 v{18+2*h+i}, s[12:15], s78 offen offset:{1024*(2*h+i)} lds"))
        return L
    p_ld = lines("s_lshl_b32 s32, s69, 6\ns_lshl_b32 s33, s72, 5\ns_add_u32 s32, s32, s33\nv_and_b32 v2, 15, v1\nv_add_u32 v30, s32, v2\nv_lshlrev_b32 v2, 1, v30")
    for cb in range(2):
        for q, sp in enumerate((P["lre"], P["lim"], P["ldt"])): p_ld.append(("vm", "P", f"global_load_ushort v{112+3*cb+q}, v2, s[{sp}:{sp+1}] offset:{32*cb}"))
    def lds_setup(A):
        early_setup(A)
        A("v_lshrrev_b32 v2, 4, v1\nv_and_b32 v3, 15, v1\nv_lshrrev_b32 v4, 1, v3\nv_xor_b32 v4, v4, v2\nv_lshlrev_b32 v4, 4, v4\nv_lshl_add_u32 v3, v3, 7, v4")
        A("s_lshl_b32 s75, s71, 14\ns_lshl_b32 s76, s72, 12\ns_add_u32 s76, s76, 32768")
        A("v_add_u32 v22, s75, v3\nv_xor_b32 v23, 64, v22\nv_add_u32 v120, s76, v3\nv_xor_b32 v121, 64, v120")
        for sl in (1, 2):
            for ks in range(2): A(f"v_add_u32 v{22+2*sl+ks}, {sl*S_SLOT}, v{22+ks}\nv_add_u32 v{120+2*sl+ks}, {sl*S_SLOT}, v{120+ks}")
    def ss0(A):
        A("s_and_b32 s33, s68, 3\ns_lshl2_add_u32 s33, s69, s33\ns_lshl2_add_u32 s33, s33, s3\ns_lshr_b32 s35, s68, 2\ns_mul_i32 s35, s35, 160\ns_add_u32 s35, s35, s33\ns_mul_i32 s97, s33, 5120")
        A("v_bfe_u32 v2, v1, 2, 2\nv_mul_u32_u24 v2, 1280, v2\nv_and_b32 v3, 3, v1\nv_lshl_add_u32 v2, v3, 4, v2\nv_lshrrev_b32 v4, 4, v1\nv_lshl_add_u32 v67, v4, 6, v2")
        A(f"s_lshl_b32 s98, s35, 7\ns_add_u32 s98, s98, {WS_CSB}")
    def ss1(A):
        A("v_lshlrev_b32 v2, 21, v1\nv_and_b32 v2, 0xfe000000, v2\nv_lshl_add_u32 v55, v1, 3, v2")
        for r in range(4): A(f"v_mov_b32 v{68+r}, 0x3f803f80")
        A("s_lshl_b32 s32, s71, 2\nv_lshrrev_b32 v31, 4, v1\nv_add_u32 v31, s32, v31")
    def ss3(A):
        A("s_lshl1_add_u32 s32, s69, s72\ns_lshl_b32 s84, s32, 1\ns_add_u32 s85, s84, 1"); sig_ssm(A, 84, 33); sig_ssm(A, 85, 33)
        A(f"s_lshl1_add_u32 s34, s68, s71\ns_mul_i32 s35, s34, 192")
        for r in (84, 85): A(f"s_add_u32 s{r}, s{r}, s35\ns_mul_i32 s{r}, s{r}, {HS}\ns_add_u32 s{r}, s{r}, {WS_H}")
        A(f"s_lshl_b32 s87, s34, 7\ns_add_u32 s87, s87, s32\ns_lshl_b32 s87, s87, 7\ns_add_u32 s87, s87, {WS_FLG+88*128}")
        A(f"s_add_u32 s86, s84, {96*HS}\ns_add_u32 s78, s85, {96*HS}")
    def ss4(A):
        A("s_mul_i32 s75, s3, 20480\nv_and_b32 v2, 15, v1\nv_bfe_u32 v3, v2, 2, 1\nv_and_b32 v4, 3, v2\nv_lshl_add_u32 v3, v4, 1, v3\nv_and_b32 v4, 8, v2\nv_or_b32 v3, v3, v4")
        A("v_lshrrev_b32 v4, 4, v1\nv_lshlrev_b32 v5, 2, v4\nv_xor_b32 v3, v3, v5\nv_lshlrev_b32 v3, 4, v3\nv_lshl_add_u32 v3, v2, 8, v3\nv_add_u32 v10, s75, v3")
        A("v_bfe_u32 v2, v1, 2, 2\nv_lshlrev_b32 v3, 5, v2\nv_and_b32 v5, 1, v4\nv_lshl_add_u32 v3, v5, 7, v3\nv_and_b32 v5, 3, v1\nv_lshl_add_u32 v3, v5, 3, v3")
        A("v_lshl_add_u32 v2, v4, 3, v2\nv_lshl_add_u32 v3, v2, 8, v3\nv_add_u32 v11, s75, v3")
    def ss5(A):
        A("v_lshlrev_b32 v3, 4, v30\nv_lshlrev_b32 v2, 21, v1\nv_and_b32 v2, 0xfe000000, v2\nv_add_u32 v12, v2, v3\ns_lshl1_add_u32 s76, s68, s71\ns_mul_i32 s97, s76, 10240")
        A("v_lshrrev_b32 v2, 4, v1\nv_mul_u32_u24 v13, 10240, v2\ns_sub_u32 s75, s97, 10240\nv_sub_u32 v13, s75, v13\nv_add_u32 v13, v13, v3\nv_mov_b32 v21, s96")
        for i in range(4):
            if i: A(f"v_subrev_u32 v{13+i}, {40960*i}, v13\nv_add_u32 v2, 4, v2")
            A(f"v_cmp_gt_u32 vcc, s76, v2\nv_cndmask_b32 v{17+i}, 0, v21, vcc")
    b_ld = [("vm", "bl", f"buffer_load_dwordx4 a[{112+4*i}:{115+4*i}], v67, s[24:27], s97 offen offset:{256*i}") for i in range(5)]
    b_c = [("wvm", ["bl"])]
    for i in range(5): b_c.append(f"{MF} v[56:59], v[68:71], a[{112+4*i}:{115+4*i}], " + ("v[56:59]" if i else "0"))
    b_c += ["s_nop 0"]*3
    b_c += ["v_add_f32_dpp v56, v56, v56 quad_perm:[1,0,3,2] row_mask:0xf bank_mask:0xf", "v_add_f32_dpp v56, v56, v56 quad_perm:[2,3,0,1] row_mask:0xf bank_mask:0xf",
            "v_mov_b32 v57, s96", ("vm", None, "buffer_store_dwordx2 v[56:57], v55, s[8:11], s98 offen sc1")]
    NM = "LR LI CA CB L16R L16I L32R L32I L512R L512I QR QI UR UI WR WI PR PI T0 T1".split()
    def Pm(cb): return dict(zip(NM, range(72+20*cb, 72+20*cb+20)))
    par_c = [("wvm", ["P"])] + lines("v_lshrrev_b32 v60, 4, v1\nv_cvt_f32_u32 v60, v60\nv_mul_f32 v60, 0x42000000, v60\nv_sub_f32 v61, 0x42c00000, v60\nv_mul_f32 v62, 4.0, v60")
    for cb in range(2):
        p = Pm(cb); i0 = 112 + 3*cb; zr, zt, t0, t1 = p['PR'], p['PI'], p['T0'], p['T1']
        def power(d, n):
            pre = [f"v_mul_f32 v{t0}, {n}, v{zr}", f"v_mul_f32 v{t1}, {n}, v{zt}"] if n else []
            a, b = (t0, t1) if n else (zr, zt)
            return pre + lines(f"v_exp_f32 v{t0}, v{a}\nv_fract_f32 v{t1}, v{b}\nv_cos_f32 v{d}, v{t1}\nv_sin_f32 v{d+1}, v{t1}\nv_mul_f32 v{d}, v{d}, v{t0}\nv_mul_f32 v{d+1}, v{d+1}, v{t0}")
        par_c += lines(f"""v_lshlrev_b32 v{i0+2}, 16, v{i0+2}
v_mul_f32 v{t0}, 0x3fb8aa3b, v{i0+2}
v_exp_f32 v{t0}, v{t0}
v_lshlrev_b32 v{i0}, 16, v{i0}
v_lshlrev_b32 v{i0+1}, 16, v{i0+1}
v_cvt_pk_bf16_f32 v{t0}, v{t0}, v{t0}
v_and_b32 v{t0}, 0xffff0000, v{t0}
v_mul_f32 v{zr}, v{t0}, v{i0}
v_mul_f32 v{zt}, v{t0}, v{i0+1}
v_mul_f32 v{zr}, 0x3fb8aa3b, v{zr}
v_mul_f32 v{zt}, 0.15915494, v{zt}""") + power(p['LR'], None)
        par_c += lines(f"""v_mul_f32 v{t1}, v{i0}, v{i0}
v_fmac_f32 v{t1}, v{i0+1}, v{i0+1}
v_rcp_f32 v{t1}, v{t1}
v_add_f32 v{t0}, -1.0, v{p['LR']}
v_mul_f32 v{p['CA']}, v{t0}, v{i0}
v_add_f32 v{t1}, v{t1}, v{t1}
v_fmac_f32 v{p['CA']}, v{p['LI']}, v{i0+1}
v_mul_f32 v{p['CB']}, v{p['LI']}, v{i0}
v_fma_f32 v{p['CB']}, -v{t0}, v{i0+1}, v{p['CB']}
v_mul_f32 v{p['CA']}, v{p['CA']}, v{t1}
v_mul_f32 v{p['CB']}, v{p['CB']}, v{t1}""")
        par_c += power(p['L16R'], "0x41800000") + power(p['L32R'], "0x42000000") + power(p['L512R'], "0x44000000") + power(p['QR'], "v60") + power(p['UR'], "v61") + power(p['WR'], "v62")
    ep_ld = lines(f"v_lshrrev_b32 v2, 3, v0\nv_lshlrev_b32 v2, 7, v2\nv_and_b32 v3, 7, v0\nv_lshl_add_u32 v2, v3, 3, v2\ns_lshl_b32 s75, s68, 12\ns_add_u32 s75, s75, {WS_STAT}") + [("vm", "ep", "buffer_load_dwordx2 v[52:53], v2, s[8:11], s75 offen sc1")]
    ep_ld += lines(f"v_lshrrev_b32 v2, 2, v30\nv_lshlrev_b32 v2, 7, v2\nv_and_b32 v3, 3, v30\nv_lshl_add_u32 v2, v3, 5, v2\ns_mov_b32 s75, {WS_CSB}\ns_mov_b32 s76, {WS_CSB+20480}")
    def CS(cb, im): return 112 + 4*cb + 2*im
    for cb in range(2):
        for im in range(2): ep_ld.append(("vm", "ep", f"buffer_load_dwordx2 v[{CS(cb,im)}:{CS(cb,im)+1}], v2, s[8:11], s{75+im} offen offset:{512*cb} sc1"))
    ep_tags = [53, 113, 115, 117, 119]
    ep_t = [("wvm", ["ep"])] + tagtest(ep_tags)
    ep_c = lines(f"""v_and_b32 v53, 0xffff0000, v52
v_rcp_f32 v53, v53
v_lshlrev_b32 v52, 16, v52
v_and_b32 v2, 15, v0
v_bfe_u32 v3, v0, 4, 1
v_lshl_add_u32 v2, v2, 1, v3
v_and_b32 v3, 0xe0, v0
v_add_u32 v2, v2, v3
v_mul_f32 v52, v52, v53
v_lshlrev_b32 v2, 2, v2
v_add_u32 v2, {S_SCR}, v2""") + [("ds", None, "ds_write_b32 v2, v53"), ("ds", None, "ds_write_b32 v2, v52 offset:1024")]
    ACC = 128
    def acc(b, c): return ACC + (c*8+b)*4
    def Xr(par, b): return par*48 + b*4
    def Br(par, c): return par*48 + 32 + c*4
    def reads(s):
        par = s & 1; sl = (s >> 1) % 3; L = []
        for c in range(4): L.append(("ds", None, f"ds_read_b128 a[{Br(par,c)}:{Br(par,c)+3}], v{120+2*sl+(s&1)} offset:{(c>>1)*8192 + (c&1)*2048}"))
        for b in range(8): L.append(("ds", None, f"ds_read_b128 a[{Xr(par,b)}:{Xr(par,b)+3}], v{22+2*sl+(s&1)} offset:{b*2048}"))
        return L
    SORD = OPT.get("sord", "A")
    M = {0: (b_ld if SORD == "C" else []) + dma(2)}
    for s in range(1, 15): M[s] = dma((s+5) >> 1, ((s+1) & 1,))
    CK = int(OPT.get("ck", 16))
    SX = int(OPT.get("sx", 0))
    CW = int(OPT.get("cw2", 18))
    if SX:
        for k, L in enumerate(chop(w2loads(0, 5, 99), CW-CK)): M[CK+k] = M.get(CK+k, []) + L
        for k, L in enumerate(chop(w2loads(5, 5+SX, 98), 20-CW)): M[CW+k] = L
    else:
        for k, L in enumerate(chop(w2loads(0, 5, 99), 20-CK)): M[CK+k] = M.get(CK+k, []) + L
    pc = chop(par_c, 8); ps = chop(cap(ph2_setup), 2)
    pc = chop(par_c, 9)
    S = {0: cap(ss1), 1: st_f + p_ld, 2: ps[0], 3: ps[1] + b_c, 4: pc[0], 5: pc[1], 6: pc[2], 7: pc[3], 8: pc[4], 9: pc[5], 10: pc[6], 11: pc[7], 12: pc[8],
         13: ep_ld, 15: cap(ss3), 16: ep_t, 17: ep_c, 18: cap(ss4), 19: cap(ss5)}
    S[CK-2] = fpoll(4) + S.get(CK-2, [])
    if SX: S[CW-2] = fpoll(5) + S[CW-2]
    if "wf" in OPT: S[19] = w2warm() + S[19]
    PF = int(OPT.get("pf", 0)); PFI = int(OPT.get("pfi", 19))
    if PF:
        pf = lines(f"s_lshr_b32 s32, s2, 3\ns_lshl2_add_u32 s32, s32, s3\ns_lshr_b32 s33, s32, 2\ns_mul_i32 s33, s33, 96\ns_mul_i32 s34, s29, 12\ns_add_u32 s33, s33, s34\ns_mul_i32 s33, s33, 5120\ns_add_u32 s33, s33, {WS_W2P + 35840 - PF*8192}")
        pf += [f"s_cmp_lt_u32 s32, 32\ns_cselect_b32 s33, s33, {hex(OOB)}", "v_lshlrev_b32 v6, 7, v1"]
        for k in range(PF): pf += [("vm", None, "buffer_load_dword v7, v6, s[8:11], s33 offen sc1"), "s_add_u32 s33, s33, 8192"]
        S[PFI] = S.get(PFI, []) + pf
    ss0(A)
    A("s_waitcnt lgkmcnt(0)")
    srd(A, 16, P["x"], SZ_X); A.its(st_ld)
    A("s_cmp_lt_u32 s35, 160"); srd_sel(A, 24, P["bre"], P["bim"], SZ_B)
    A("s_cmp_eq_u32 s72, 0"); srd_sel(A, 12, P["bre"], P["bim"], SZ_B)
    first, second = {"B": (b_ld + dma(0, (0,)), dma(0, (1,)) + dma(1)), "A": (dma(0), b_ld + dma(1)), "C": (dma(0), dma(1))}[SORD]
    A.its(first)
    A.L.append(";@TOUCH S")
    A("s_branch SSM_a"); A.L.append(";@SEG SSM"); A.label("SSM_a")
    lds_setup(A)
    A.its(st_c[:1]); spread(A, st_c[1:], second, 0, len(st_c) - 2)
    A.L.append(";@TOUCH P1")
    A.sync([("S", 0)]); stamp(A, 1)
    A.its(reads(0))
    for s in range(20):
        tags = [("S", (s+1) >> 1)] if (s < 19 and s & 1) else []
        if s == 17: gcheck(A, "SG", ep_ld, ep_tags)
        if s == CK: A.its(ftest(99, 82))
        if s == CW and SX: A.its(ftest(98, 82))
        A.sync(tags, barrier=bool(s & 1))
        tick(A, s, 127)
        par = s & 1; mf = []
        for b in range(8):
            for c in (range(4) if b % 2 == 0 or not SN else range(3, -1, -1)):
                r = acc(b, c); mf.append(f"{MF} v[{r}:{r+3}], a[{Xr(par,b)}:{Xr(par,b)+3}], a[{Br(par,c)}:{Br(par,c)+3}], " + (f"v[{r}:{r+3}]" if s else "0"))
        A.weave(mf, [(reads(s+1) if s < 19 else [], 0, 24), (M.get(s, []), 0, 31), (S.get(s, []), 1, 31)])
    A("s_waitcnt lgkmcnt(0)"); tick(A, 20, 127); tockdump(A, 20, 127, 0x40000)
    stamp(A, 2)
    def gre(cb, j): return acc(0, cb) + 2*j
    def gim(cb, j): return acc(0, 2+cb) + 2*j
    def cfma(dr, di, mr, mi, xr, xi, ar, ai):
        return lines(f"v_fma_f32 v{dr}, v{mr}, v{xr}, v{ar}\nv_fma_f32 v{di}, v{mr}, v{xi}, v{ai}\nv_fma_f32 v{dr}, -v{mi}, v{xi}, v{dr}\nv_fma_f32 v{di}, v{mi}, v{xr}, v{di}")
    def cmul(dr, di, mr, mi, xr, xi):
        return lines(f"v_mul_f32 v{dr}, v{mr}, v{xr}\nv_mul_f32 v{di}, v{mr}, v{xi}\nv_fma_f32 v{dr}, -v{mi}, v{xi}, v{dr}\nv_fmac_f32 v{di}, v{mi}, v{xr}")
    def gsum(regs, tmp):
        L = []
        for sw in ("v_permlane16_swap_b32", "v_permlane32_swap_b32"):
            L += [f"v_mov_b32 v{tmp+k}, v{r}" for k, r in enumerate(regs)] + [f"{sw} v{r}, v{tmp+k}" for k, r in enumerate(regs)] + [f"v_add_f32 v{r}, v{r}, v{tmp+k}" for k, r in enumerate(regs)]
        return L
    def rload(c):
        b = 32 + 16*(c & 1)
        return [("ds", ("R", c), f"ds_read_b128 v[{b+4*k+8*t}:{b+4*k+8*t+3}], v22 offset:{1024*t + 32*(c&3) + 16*k}") for t in range(2) for k in range(2)]
    def scan(cb):
        p = Pm(cb); L = []
        for j in range(16):
            c = 4*cb + (j >> 2); b = 32 + 16*(c & 1) + 2*(j & 3)
            if j & 3 == 0: L.append(("wds", [("R", c)]))
            L += [pk("mul", gre(cb,j), gre(cb,j), b), pk("mul", gim(cb,j), gim(cb,j), b)]
            L += [pk("fma", gre(cb,j), b+8, ("b", CS(cb,0)), gre(cb,j), neg=(0,)), pk("fma", gim(cb,j), b+8, ("b", CS(cb,1)), gim(cb,j), neg=(0,))]
            if j & 3 == 3 and c + 2 < 8: L += rload(c+2)
            if j:
                L += [pk("fma", gre(cb,j), gre(cb,j-1), ("b", p['LR']), gre(cb,j)), pk("fma", gim(cb,j), gim(cb,j-1), ("b", p['LR']), gim(cb,j))]
                L += [pk("fma", gre(cb,j), gim(cb,j-1), ("b", p['LI']), gre(cb,j), neg=(1,)), pk("fma", gim(cb,j), gre(cb,j-1), ("b", p['LI']), gim(cb,j))]
        o = 120 + 4*cb
        L += cfma(64+2*cb, 65+2*cb, p['L16R'], p['L16I'], gre(cb,15), gim(cb,15), gre(cb,15)+1, gim(cb,15)+1) + cmul(o, o+2, p['UR'], p['UI'], 64+2*cb, 65+2*cb)
        L += gsum([o, o+2], 4) + [f"v_mov_b32 v{o+1}, s96", f"v_mov_b32 v{o+3}, s96", ("vm", None, f"buffer_store_dwordx4 v[{o}:{o+3}], v12, s[8:11], s97 offen offset:{256*cb} sc1")]
        return L
    def lbl(cb): return [("vm", ("lb", cb), f"buffer_load_dwordx4 v[{32+16*cb+4*i}:{35+16*cb+4*i}], v{13+i}, s[8:11], 0 offen offset:{256*cb} sc1") for i in range(4)]
    def transform(cb):
        p = Pm(cb); L = [f"v_mov_b32 v{64+2*cb}, v{gre(cb,15)}", f"v_mov_b32 v{65+2*cb}, v{gim(cb,15)}"]
        for j in range(16):
            r, i = gre(cb,j), gim(cb,j)
            L += [pk("mul", 112, i, ("b", p['CB'])), pk("mul", 114, r, ("b", p['CB'])), pk("fma", r, r, ("b", p['CA']), 112, neg=(2,)), pk("fma", i, i, ("b", p['CA']), 114, neg=(1, 2))]
        return L
    def lookback(cb):
        b = 32+16*cb
        lt = [f"v_xor_b32 v4, v17, v{b+1}"] + sum(([f"v_xor_b32 v5, v{17+(r-b)//4}, v{r}", "v_or_b32 v4, v4, v5"] for r in range(b+3, b+16, 2)), []) + ["v_cmp_ne_u32 vcc, 0, v4"]
        A.its([("wvm", [("lb", cb)])] + lt)
        A(f"s_cbranch_vccz SSM_go{cb}\ns_mov_b32 s7, 0x40000")
        A.label(f"SSM_poll{cb}")
        for x in lbl(cb): A(x[2])
        A("s_waitcnt vmcnt(0)"); A.ext(lt)
        A(f"s_sub_u32 s7, s7, 1\ns_cbranch_scc1 SSM_go{cb}\ns_cbranch_vccnz SSM_poll{cb}")
        A.label(f"SSM_go{cb}")
    WP = 112; IMG = 8192
    def second(cb):
        p = Pm(cb); b = 32+16*cb; L = []
        for i in (2, 1, 0): L += cfma(b+4*i, b+4*i+2, p['L512R'], p['L512I'], b+4*i+4, b+4*i+6, b+4*i, b+4*i+2)
        L += cmul(b+4, b+5, p['WR'], p['WI'], b, b+2) + gsum([b+4, b+5], 4)
        L += cfma(p['PR'], p['PI'], p['QR'], p['QI'], b+4, b+5, p['PR'], p['PI']) + cfma(64+2*cb, 65+2*cb, p['L16R'], p['L16I'], p['PR'], p['PI'], 64+2*cb, 65+2*cb)
        for k, (xr, xi) in enumerate(((p['PR'], p['PI']), (64+2*cb, 65+2*cb))):
            L += lines(f"v_mul_f32 v{p['T0']}, v{p['CB']}, v{xi}\nv_mul_f32 v{p['T1']}, v{p['CB']}, v{xr}\nv_fma_f32 v{WP+k}, v{p['CA']}, v{xr}, -v{p['T0']}\nv_fma_f32 v{WP+2+k}, -v{p['CA']}, v{xi}, -v{p['T1']}")
        pw = []
        for j in range(16):
            cur = WP+4*(j & 1); nxt = WP+4*((j+1) & 1)
            L += [pk("mul", nxt, cur, ("b", p['LR'])), pk("mul", nxt+2, cur+2, ("b", p['LR'])), pk("fma", nxt, cur+2, ("b", p['LI']), nxt), pk("fma", nxt+2, cur, ("b", p['LI']), nxt+2, neg=(1,))]
            L += [pk("add", gre(cb,j), gre(cb,j), nxt), pk("add", gim(cb,j), gim(cb,j), nxt+2)]
            if pw and not j & 1: L.append(pw.pop(0))
            if j & 1:
                k = (j >> 1) & 3
                for im in range(2):
                    g = gim if im else gre
                    for hh in range(2):
                        r = (b+8*im+4*hh) if j < 8 else (g(cb, 0) + 4*hh)
                        L.append(f"v_cvt_pk_bf16_f32 v{r+k}, v{g(cb,j-1)+hh}, v{g(cb,j)+hh}")
                        if k == 3: (L if j == 15 else pw).append(("ds", "iw", f"ds_write_b128 v{68+2*(j>>3)+hh}, v[{r}:{r+3}] offset:{cb*IMG + im*4096}"))
        L.append(("wds", ["iw"]))
        st = []
        for tb in range(8):
            r = gim(cb, 0) + 4*tb
            for hh in range(2): L += [f"v_xor_b32 v{2+hh}, {32*tb + 16*hh}, v11", ("ds", ("tr", cb, tb), f"ds_read_b64_tr_b16 v[{r+2*hh}:{r+2*hh+1}], v{2+hh} offset:{cb*IMG + hh*1024}")]
            st.append([("wds", [("tr", cb, tb)]), ("vm", "H", f"buffer_store_dwordx4 v[{r}:{r+3}], v28, s[8:11], s{(84, 85, 86, 78)[cb + 2*(tb >> 2)]} offen offset:{(tb&3)*1024} sc1")])
        return L, st
    A(f"v_lshlrev_b32 v22, 7, v31\nv_add_u32 v22, {S_SCR}, v22\nv_mov_b32 v31, s96")
    A("s_cmp_lg_u32 s95, 0\ns_cbranch_scc1 EP_no\nv_lshlrev_b32 v2, 7, v1")
    for k in range(4): A(f"s_mov_b32 s75, {WS_STAT+4+8192*k}\nbuffer_load_dword a{80+k}, v2, s[8:11], s75 offen sc1")
    A.label("EP_no")
    ptick(A, 40, 25)
    A.its(rload(0) + rload(1) + scan(0) + scan(1))
    ptick(A, 41, 25)
    A.its((fpoll(5) if int(OPT.get("sb", 5)) > 5 else []) + lbl(0))
    for d in range(3):
        A(f"v_subrev_u32 v2, {16*(d+1)}, v1\nv_lshlrev_b32 v2, 2, v2")
        for k in range(4): A.it(("ds", "bp", f"ds_bpermute_b32 v{48+4*d+k}, v2, v{64+k}"))
    for cb in range(2): A(f"v_mov_b32 v{Pm(cb)['PR']}, 0\nv_mov_b32 v{Pm(cb)['PI']}, 0")
    for k in range(4): A(f"v_xor_b32 v{68+k}, {32*(k&1) + 16*(k>>1)}, v10")
    A.it(("wds", ["bp"]))
    for d in (2, 1, 0):
        A(f"s_lshl_b64 exec, -1, {16*(d+1)}")
        for cb in range(2):
            p = Pm(cb); a = 48+4*d+2*cb
            if d < 2: A.ext(cfma(a, a+1, p['L32R'], p['L32I'], p['PR'], p['PI'], a, a+1))
            A(f"v_mov_b32 v{p['PR']}, v{a}\nv_mov_b32 v{p['PI']}, v{a+1}")
    A("s_mov_b64 exec, -1")
    A.its(transform(0))
    stamp(A, 3); ptick(A, 42, 25)
    lookback(0)
    stamp(A, 4); ptick(A, 43, 25)
    L0, st0 = second(0); L1, st1 = second(1)
    SB = int(OPT.get("sb", 5))
    if SB > 5:
        fcheck(A, "SC5a", 5)
        if SX: fredo(A, "SR5", 5, 98, 82, w2loads(5, 5+SX))
        A.its(L0[:60] + lbl(1)); spread(A, L0[60:], w2loads(5+SX, SB), 0, 120)
    else: A.its(L0[:60] + lbl(1) + fpoll(5) + L0[60:])
    ptick(A, 44, 25)
    lookback(1)
    fredo(A, "SR", 4, 99, 82, w2loads(0, 5))
    rest = transform(1) + L1
    sl = interleave(rest, st0, 0, len(rest) - 40)
    for i, x in enumerate(rest):
        for y in sl[i]: A.its(y)
        A.it(x)
    ptick(A, 45, 25)
    for y in st1: A.its(y)
    stamp(A, 5)
    fs = "buffer_store_dword v31, v8, s[8:11], s87 offen sc1"
    ph2_addr(A)
    S1 = int(OPT.get("s1", 7))
    ptick(A, 46, 25)
    A.its(fin_loads() + w2loads(SB, S1) + fpoll(G0) + [("wvm", ["H"]), ("vm", None, fs)] + w2loads(S1, 12) + [("wvm", ["fin"])])
    ptick(A, 47, 25)
    A(f"s_cmp_lg_u32 s95, 0\ns_cbranch_scc1 EP_end")
    for k in range(4): A(f"v_accvgpr_read_b32 v{68+k}, a{80+k}")
    A.ext(tagtest([68, 69, 70, 71]))
    A("s_cbranch_vccz EP_ok\nv_lshlrev_b32 v2, 7, v1\ns_mov_b32 s7, 0x40000")
    A.label("EP_l")
    for k in range(4): A(f"s_mov_b32 s75, {WS_STAT+4+8192*k}\nbuffer_load_dword v{68+k}, v2, s[8:11], s75 offen sc1")
    A("s_waitcnt vmcnt(0)"); A.ext(tagtest([68, 69, 70, 71]))
    A(f"s_sub_u32 s7, s7, 1\ns_cbranch_scc1 EP_ok\ns_cbranch_vccnz EP_l")
    A.label("EP_ok")
    A(f"s_mov_b32 s75, {WS_EPOCH}\nbuffer_store_dword v31, v8, s[8:11], s75 offen sc1")
    A.label("EP_end")
    fin_base(A, "FGS")
    fcheck(A, "SC2", G0)

def gen_ph2(A):
    A.L.append(";@SEG PH2"); A.label("PH2")
    A.reset()
    stamp(A, 6)
    for i in range(3): A.its(hload(i))
    g_r = []
    for nb in range(5):
        for w in range(4):
            r = ACCG + (nb*4+w)*4; g_r.append(("ds", ("gr", nb), f"ds_read_b128 v[{r}:{r+3}], v{23+(w>>1)} offset:{(w&1)*20480 + nb*1024}"))
    g_s = []; g_t = []
    for nb in range(5):
        r = ACCG + nb*16; g_s.append(("wds", [("gr", nb)]))
        for e in range(4): g_s += [f"v_add_f32 v{r+e}, v{r+e}, v{r+4+e}", f"v_add_f32 v{r+8+e}, v{r+8+e}, v{r+12+e}"]
        for e in range(4): g_s.append(f"v_add_f32 v{r+e}, v{r+e}, v{r+8+e}")
        g_t.append(("vm", "xs", f"buffer_store_dwordx4 v[{r}:{r+3}], v{28+(nb>>2)}, s[8:11], s4 offen offset:{(nb&3)*1024} sc1"))
    g_f = [("wvm", ["xs"]), ("vm", None, "buffer_store_dword v31, v8, s[8:11], s6 offen sc1")]
    fin_r = [(f"v_accvgpr_read_b32 v{ACCG + (k>>2)*16 + 8 + (k&3)}, {PARK[k]}" if PARK[k][0] == "a" else f"v_mov_b32 v{ACCG + (k>>2)*16 + 8 + (k&3)}, {PARK[k]}") for k in range(20)]
    GF = int(OPT.get("gf", 12))
    extra = {**{k-3: fpoll(g)[:-1] for k, g in CHK.items()}, 12: ["s_mov_b32 m0, s101"], 16: g_r + g_s[:13], 17: g_s[13:39] + g_t[:2], 18: g_s[39:52] + g_t[2:3] + g_s[52:] + g_t[3:],
             19: ["v_add_u32 v23, 81920, v23", "v_add_u32 v24, 81920, v24", "s_mov_b32 m0, s100"] + fin_r, 20: fpoll(3)[:-1]}
    first = {k-2: fpoll(g)[-1:] for k, g in CHK.items()}
    if WO:
        fin_c = [("wvm", ["fin"]), "v_and_b32 v11, 0xffff0000, v10", "v_rcp_f32 v11, v11", "v_lshlrev_b32 v10, 16, v10"]
        def rd(nb): return [("ds", ("fx", nb), f"ds_read_b64 v[{16+4*(nb&1)}:{17+4*(nb&1)}], v12 offset:{32*nb}"), ("ds", ("fx", nb), f"ds_read_b64 v[{(18, 26)[nb&1]}:{(19, 27)[nb&1]}], v14 offset:{3072+32*nb}")]
        fin_c += rd(0)
        for nb in range(5):
            if nb < 4: fin_c += rd(nb+1)
            fin_c.append(("wds", [("fx", nb)]))
            for h in range(2):
                x = 16+4*(nb&1)+h; d = (18, 26)[nb&1]+h
                fin_c += [f"v_lshlrev_b32 v2, 16, v{d}", f"v_and_b32 v{d}, 0xffff0000, v{d}", f"v_lshlrev_b32 v3, 16, v{x}", f"v_and_b32 v{x}, 0xffff0000, v{x}",
                          "v_mul_f32 v2, v2, v11", f"v_mul_f32 v{d}, v{d}, v11", "v_sub_f32 v4, v3, v10", f"v_sub_f32 v5, v{x}, v10", "v_fmac_f32 v3, v4, v2", f"v_fmac_f32 v{x}, v5, v{d}"]
                for e, src in ((0, 3), (1, x)):
                    p = PARK[4*nb+2*h+e]; fin_c.append(f"v_accvgpr_write_b32 {p}, v{src}" if p[0] == "a" else f"v_mov_b32 {p}, v{src}")
        wl = chop(w2loads(12-NH, 12), 4) if NH else [[]]*4
        for k in range(4): extra[k] = extra.get(k, []) + wl[k]
        extra[5] = extra.get(5, []) + fin_loads()
        for k, L in enumerate(chop(fin_c, 5)): extra[8+k] = L + extra.get(8+k, [])
    pend = []
    for g in GROUPS:
        n0 = g[0]; hf = STEPS[n0][0]
        tags = [("h", n) for n in g] + [("w2", STEPS[n][1]) for n in g if ("w2", STEPS[n][1]) in A.tv]
        if n0 == 16: A.sync(tags)
        else: A.it(("wvm", tags))
        if TS >= 2 and n0 not in (15, 17, 18): A("s_waitcnt lgkmcnt(0)")
        if TS >= 2:
            if n0: A(f"v_writelane_b32 v25, s88, {GROUPS.index(g)-1}")
            A("s_memtime s[88:89]")
        if n0 in CHK: fcheck(A, f"CK{n0}", CHK[n0])
        mf = []; wr = [[] for _ in range(20*len(g))]
        for k, x in enumerate(pend): wr[k*18//len(pend)].append(x)
        pend = []
        for nb in range(5):
            for tb in (range(4) if nb % 2 == 0 or not SN or len(g) > 1 else range(3, -1, -1)):
                c = acc2(hf, nb, tb)
                for n in g:
                    w = w2reg(STEPS[n][1]) + 4*nb
                    mf.append(f"{MF} v[{c}:{c+3}], {Hr(n,tb)}, a[{w}:{w+3}], " + (f"v[{c}:{c+3}]" if STEPS[n][1] != STEPS[0][1] else "0"))
                if len(g) > 1:
                    for e in range(4):
                        pos = (11*(4*(nb*4+tb)+e))//16 + 6 if len(g) == 2 else 3*(nb*4+tb) + 6 + (3*e)//4
                        it = ("ds", None, f"ds_write_addtid_b32 v{c+e} offset:{(tb*5+nb)*1024+256*e}")
                        (wr[pos] if pos < len(wr) else pend).append(it)
        if n0 == 21: wr[GF] += g_f; wr[56] += fpoll(3)[-1:]
        A.weave(mf, [(first.get(n0, []) + sum((hload(n) for n in ISSUE.get(n0, ())), []), 0, len(mf) - 8), (extra.get(n0, []), 1, len(mf) - 1)], fixed=wr)
    A.its(pend)
    if TS >= 2:
        A(f"s_waitcnt lgkmcnt(0)\nv_writelane_b32 v25, s88, {len(GROUPS)-1}\ns_memtime s[88:89]"); tockdump(A, len(GROUPS), 25, 0x80000)
    stamp(A, 7)
    A("s_waitcnt lgkmcnt(0)\ns_barrier")
    for nb in range(5):
        for w in range(4):
            r = ACCK + (nb*4+w)*4
            A(f"ds_read_b128 v[{r}:{r+3}], v{23+(w>>1)} offset:{(w&1)*20480 + nb*1024}")
    fcheck(A, "C3", 3)
    for nb in range(5):
        r = ACCG + nb*16 + 12
        A.it(("vm", ("xl", nb), f"buffer_load_dwordx4 v[{r}:{r+3}], v{28+(nb>>2)}, s[8:11], s5 offen offset:{(nb&3)*1024} sc1"))
    A("s_waitcnt lgkmcnt(0)")
    for nb in range(5):
        r = ACCK + nb*16; o = ACCG + nb*16 + 8
        for k in (0, 2): A(pk("add", r+k, r+k, r+4+k)); A(pk("add", r+8+k, r+8+k, r+12+k))
        for k in (0, 2): A(pk("add", o+k, o+k, r+k))
        for k in (0, 2): A(pk("add", o+k, o+k, r+8+k))
    for nb in range(5):
        o = ACCG + nb*16 + 8
        A.it(("wvm", [("xl", nb)]))
        for k in (0, 2): A(pk("add", o+k, o+k, o+4+k))
        A.it(("vm", None, f"buffer_store_dwordx4 v[{o}:{o+3}], v13, s[20:23], 0 offen offset:{64*nb} " + OPT.get("of", "").replace("+", " ")))
    if TS:
        A("s_add_u32 s94, s94, 0x10000"); stamp(A, 0)
    WB = int(OPT.get("wb", 0))
    if WB:
        A(f"s_and_b32 s32, s95, {WB}\ns_cmp_lg_u32 s32, {int(OPT.get('wbv', 0))}\ns_cbranch_scc1 K_end\ns_waitcnt vmcnt(0)\nbuffer_wbl2 sc1")

def gen():
    A = E()
    A("s_cmp_ge_u32 s2, 256\ns_cbranch_scc1 K_end")
    if TS >= 2: A("s_memtime s[4:5]")
    A("s_load_dwordx16 s[36:51], s[0:1], 0\ns_load_dwordx16 s[52:67], s[0:1], 64")
    A("v_and_b32 v1, 63, v0\nv_lshrrev_b32 v2, 6, v0\ns_and_b32 s32, s2, 7\nv_readfirstlane_b32 s3, v2")
    A("s_lshr_b32 s33, s2, 3\ns_lshr_b32 s34, s32, 2\ns_and_b32 s35, s32, 3\ns_and_b32 s71, s3, 1\ns_lshr_b32 s72, s3, 1")
    if int(OPT.get("ipf", 1)):
        A("s_getpc_b64 s[6:7]"); A.label("K_pc")
        A("s_lshl2_add_u32 s76, s33, s3\ns_and_b32 s76, s76, 15\ns_lshl_b32 s76, s76, 13\nv_lshlrev_b32 v2, 7, v1\nv_add_u32 v2, s76, v2\nv_min_u32 v2, K_end-K_pc, v2")
        A("s_cmp_lt_u32 s33, 28\ns_cbranch_scc1 K_nopf\nglobal_load_dword v64, v2, s[6:7]"); A.label("K_nopf")
    A("s_lshl2_add_u32 s95, s2, s3\nv_lshrrev_b32 v62, 5, v1\nv_mul_u32_u24 v62, 1280, v62\nv_and_b32 v63, 31, v1\nv_lshl_add_u32 v62, v63, 3, v62")
    if TS:
        A("s_lshl2_add_u32 s94, s2, s3\ns_lshl_b32 s94, s94, 6\ns_waitcnt lgkmcnt(0)"); stamp(A, 0)
    A("s_lshl_b32 s31, s32, 5\ns_add_u32 s31, s31, s33\ns_lshl2_add_u32 s75, s31, s3\ns_mul_i32 s75, s75, 2560")
    UNEV = int(OPT.get("unev", 1))
    if UNEV: A("s_cmp_eq_u32 s35, 3\ns_cselect_b32 s76, 16, 8\ns_cmp_lt_u32 s33, s76\ns_cbranch_scc1 K_ssm\ns_sub_u32 s33, s33, s76\ns_add_u32 s33, s33, 10")
    else: A("s_cmp_lt_u32 s33, 10\ns_cbranch_scc1 K_ssm")
    A(f"s_mul_i32 s35, s35, {24 if UNEV else 22}\ns_add_u32 s33, s33, s35\ns_sub_u32 s33, s33, 10\ns_and_b32 s68, s33, 7\ns_lshl_b32 s34, s34, 3\ns_add_u32 s68, s68, s34\ns_lshr_b32 s69, s33, 3")
    gen_ffn(A)
    A.L.append(";@SEG SPRO"); A.label("K_ssm")
    A(f"s_mul_i32 s35, s35, {8 if UNEV else 10}\ns_add_u32 s33, s33, s35\ns_and_b32 s68, s33, 3\ns_lshl2_add_u32 s68, s34, s68\ns_lshr_b32 s69, s33, 2")
    gen_ssm(A)
    gen_ph2(A)
    A.label("K_end"); A("s_endpgm")
    return A.L

def hflags(L):
    f = OPT.get("hf")
    if not f: return L
    return [l.replace(" sc1", " " + f.replace("+", " ")) if l.startswith("buffer_store_dwordx4 v[") and re.search(r"s(84|85|86|78) offen", l) else l for l in L]
def nulls(L):
    n = OPT.get("null", "")
    o = []
    for l in L:
        if l.startswith("buffer_load"):
            if ("c" in n and "s[24:27], s77" in l) or ("w" in n and "s[20:23], s77" in l) or ("b" in n and "s[24:27], s97" in l) or ("s" in n and l.startswith("buffer_load_dwordx2") and "s[16:19]" in l):
                o.append("s_mov_b32 s7, 0x7f000000"); l = re.sub(r"\], s\d+ offen", "], s7 offen", l)
        o.append(l)
    return o
def fin(L):
    L = nulls(hflags(L))
    seg = {"E": []}; cur = "E"
    for l in L:
        if l.startswith(";@SEG"): cur = l.split()[1]; seg[cur] = []
        else: seg[cur].append(l)
    def dispatch(name, chains, ret):
        o = []
        for w in range(3): o += [f"s_cmp_eq_u32 s3, {w}", f"s_cbranch_scc1 {chains[w]}"]
        return o + [f"s_branch {chains[3]}"]
    TCH = int(OPT.get("tch", 1))
    order = ["FA", "FB", "EP", "SSM", "PH2"]
    def expand(lines, heads):
        o = []
        for l in lines:
            if not l.startswith(";@TOUCH"): o.append(l); continue
            if not TCH: continue
            n = l.split()[1]
            o.append("s_mov_b64 exec, 0")
            if n in ("FA", "FB"): o += dispatch(n, heads[n], None)
            elif n == "S": o += dispatch(n, heads["SSM"], None)
            else: o += [f"s_mov_b32 s92, {n[1]}"] + dispatch(n, heads["PH2" if n == "P1" else "EP"], None)
            o.append(f"TR_{n}:")
            o.append("s_mov_b64 exec, -1")
        return o
    if TCH: seg["SPRO"] += ["TR_P:", "s_cmp_eq_u32 s92, 0", "s_cbranch_scc1 TR_P0", "s_cmp_eq_u32 s92, 2", "s_cbranch_scc1 TR_P2", "s_branch TR_P1"]
    dummy = {k: ["K_end"]*4 for k in order}
    body = []
    for k in order: body += [(k, l) for l in expand(seg[k], dummy)]
    pro = expand(seg["E"] + seg["FBP"] + seg["SPRO"], dummy)
    sz = sizes(pro + ["K_pad:"] + [l for _, l in body]); npro = sum(1 for l in pro if not (l.endswith(":") or l.startswith((".", ";"))))
    print("prologue bytes", sum(sz[:npro])); sz = sz[npro:]
    stubs = {k: [] for k in order}; pos = {}; addr = 0; page = -1; ii = 0; seen = set()
    for i, (k, l) in enumerate(body):
        if l.endswith(":") or l.startswith((".", ";")): continue
        if TCH and (addr >> 12 != page or k not in seen):
            page = addr >> 12; seen.add(k); name = f"TS_{len(pos)}"; pos[i] = name; stubs[k].append(name); addr += 4
        addr += sz[ii]; ii += 1
    print({k: len(v) for k, v in stubs.items()}, "bytes", addr)
    nxt = {}; heads = {}
    def chains(lst, tails):
        h = []
        for w in range(4):
            c = lst[w::4]
            for a, b in zip(c, c[1:] + [tails[w]]): nxt[a] = b
            h.append(c[0] if c else tails[w])
        return h
    heads["FA"] = chains(stubs["FA"], ["TR_FA"]*4); heads["FB"] = chains(stubs["FB"], ["TR_FB"]*4)
    heads["SSM"] = chains(stubs["SSM"], ["TR_S"]*4); heads["PH2"] = chains(stubs["PH2"], ["TR_P"]*4); heads["EP"] = chains(stubs["EP"], heads["PH2"][::-1])
    body2 = []
    for k in order: body2 += expand(seg[k], heads)
    out = expand(seg["E"] + seg["FBP"] + seg["SPRO"], heads) + [".p2align 12"]
    for i, l in enumerate(body2):
        if i in pos: out += [pos[i] + ":", f"s_cbranch_execz {nxt[pos[i]]}"]
        out.append(l)
    return out
def main():
    ref = open(f"cdna_kernels/{NAME}.s.ref").read().split("\n")
    hdr = [l for l in ref if l.startswith(";") and "@launch" not in l and "Override" not in l and "grid=ceil" not in l]
    out = "\n".join(hdr) + "\n"
    extra = ""
    if "spin" in OPT:
        op, slot, who = (OPT["spin"].split(",") + ["A"])[:3]; slot = int(slot); ks = {"A": range(16), "S": range(5), "F": range(5, 16)}[who]
        off = WS_TS + (slot*8 if slot < 8 else 0x10000)
        out += f"; @launch kernel={NAME}_kernel grid=(256,1,1) block=(256,1,1) lds=163840\n; @launch kernel=spin_kernel grid=(1,1,1) block=(64,1,1) lds=0\n"
        L = ["s_load_dwordx2 s[4:5], s[0:1], 120", "s_waitcnt lgkmcnt(0)", f"s_add_u32 s4, s4, {off}", "s_addc_u32 s5, s5, 0", "v_lshlrev_b32 v1, 6, v0"]
        for k in range(16): L += [f"v_add_u32 v2, {4096*ks[k % len(ks)]}, v1", f"global_load_dword v{4+k}, v2, s[4:5]"]
        L += ["s_waitcnt vmcnt(0)"] + [f"v_{op}_u32 v4, v4, v{4+k}" for k in range(1, 16)] + ["s_nop 1", "v_readlane_b32 s6, v4, 0"]
        for k in range(1, 64): L += [f"v_readlane_b32 s7, v4, {k}", "s_nop 0", f"s_{op}_u32 s6, s6, s7"]
        L += ["s_mov_b32 s12, 0x100000", "SP_l2:", "s_memrealtime s[8:9]", "s_waitcnt lgkmcnt(0)", "s_sub_u32 s10, s8, s6", "s_sub_u32 s12, s12, 1", "s_cbranch_scc1 SP_e", "s_cmp_lt_u32 s10, 8000", "s_cbranch_scc1 SP_l2", "SP_e:", "s_endpgm"]
        extra = kernel_text("spin_kernel", L) + kd("spin_kernel", 32, 0, 32)
    else: out += "; @launch grid=(256,1,1) block=(256,1,1) lds=163840\n"
    out += '.amdgcn_target "amdgcn-amd-amdhsa--gfx950"\n'
    out += kernel_text(NAME + "_kernel", fin(hazard_pass(gen(), "v" in OPT))) + kd(NAME + "_kernel", 256, 256, 102) + extra
    open(sys.argv[1], "w").write(out)
main()
```

```python
import sys
from asmlib import *
NAME = "parallel_sum__ssm_conv_s5__glu_gated_swiglu__prompt"
OPT = dict(u="F", ef="7", sb="10", s1="12", fe="1", cw="3", pq="2", sx="3", ck="15", cf="5", c3="5", bt="2", bs="3", bn="3", bf="1"); OPT.update(a.split("=") for a in sys.argv[2:])
TS = int(OPT.get("ts", 0)); SN = int(OPT.get("sn", 1))
for k_ in [k for k, v in OPT.items() if v == "x"]: del OPT[k_]
WS_AGG = 0; WS_EPOCH = 0x28000; WS_STAT = 0x30000; WS_FLG = 0x40000; WS_XF = 0x80000; WS_CF = 0xA0000; WS_WF = 0xB0000; WS_CSB = 0xC0000; WS_CS = 0xD0000
HS = int(OPT.get("hs", 4096)); WS_W2P = 0x100000; WS_XCH = 0x500000; WS_H = 0xA00000; WS_END = 0x1A00000; WS_TS = 0x1A00000; CS_HALF = 27648
SZ_X = 2048*640*2; SZ_B = 640*640*2; SZ_W = 640*1728*2; SZ_OUT = 2048*640*4
OOB = 0x7F000000
P = dict(x=36, lre=38, lim=40, bre=42, bim=44, cre=46, cim=48, ldt=50, dsk=52, w1=56, w3=58, w2=60, out=62, dbg=64, ws=66)
MF = "v_mfma_f32_16x16x32_bf16"

class E(Asm):
    def __init__(self): super().__init__(); self.reset()
    def reset(self): self.nv = 0; self.tv = {}; self.dv = 0; self.nd = 0; self.td = {}; self.dd = 0
    def vmw(self, tags):
        last = max(self.tv[t] for t in tags)
        if last <= self.dv: return None
        self.dv = last; return min(63, self.nv - last)
    def dsw(self, tags):
        last = max(self.td[t] for t in tags)
        if last <= self.dd: return None
        n = min(15, self.nd - last); self.dd = self.nd - n; return n
    def it(self, x):
        if isinstance(x, str): self(x)
        elif x[0] == "vm": self.nv += 1; self.tv[x[1]] = self.nv; self(x[2])
        elif x[0] == "ds": self.nd += 1; self.td[x[1]] = self.nd; self(x[2])
        elif x[0] == "wvm":
            n = self.vmw(x[1])
            if n is not None: self(f"s_waitcnt vmcnt({n})")
        elif x[0] == "wds":
            n = self.dsw(x[1])
            if n is not None: self(f"s_waitcnt lgkmcnt({n})")
        elif x[0] == "fn": x[1]()
    def its(self, L):
        for x in L: self.it(x)
    def sync(self, vtags, barrier=True):
        n = self.vmw(vtags) if vtags else None
        self.dd = self.nd
        self((f"s_waitcnt vmcnt({n}) lgkmcnt(0)" if n is not None else "s_waitcnt lgkmcnt(0)"))
        if barrier: self("s_barrier")
    def weave(self, mf, streams, fixed=None, cap=2):
        q = []
        for it, lo, hi in streams:
            if it: q.append([(lo + k*(hi-lo)//len(it), x) for k, x in enumerate(it)])
        def cost(x):
            if isinstance(x, str): return sum(2 if l.startswith(TRANS) else (0 if l.startswith("v_mfma") else 1) for l in x.split("\n"))
            return {"vm": 2, "ds": 1}.get(x[0], 0.5)
        debt = 0
        for i, m in enumerate(mf):
            self(m); room = cap - debt
            for x in (fixed[i] if fixed else []): self.it(x); room -= cost(x)
            left = sum(cost(x) for st in q for _, x in st); gaps = len(mf) - i
            room = max(room, left - cap*(gaps-1))
            if left > cap*gaps: room = max(cap, left/gaps)
            while room > 0:
                c = [st for st in q if st and st[0][0] <= i]
                if not c: break
                if int(OPT.get("wv", 1)) and left <= cap*gaps - 2:
                    isvm = lambda t: not isinstance(t[0][1], str) and t[0][1][0] == "vm"
                    if room >= cap and any(isvm(t) for t in c): c = [t for t in c if isvm(t)]
                    else:
                        c = [t for t in c if not isvm(t)]
                        if not c: break
                st = min(c, key=lambda t: t[0][0]); x = st.pop(0)[1]; self.it(x); room -= cost(x)
            debt = max(0, -room)
        for st in q:
            for _, x in st: self.it(x)
def lines(s): return [l.strip() for l in s.split("\n") if l.strip()]
def glue(L):
    out = []; on = False
    for x in L:
        if isinstance(x, str) and on and x.startswith(("s_cselect", "s_mov_b32")): out[-1] += "\n" + x; continue
        on = isinstance(x, str) and x.startswith(("s_cmp", "s_bitcmp"))
        out.append(x)
    return out
def cap(f):
    B = Asm(); f(B); return glue(B.L)
def chop(L, n):
    q = (len(L) + n - 1)//n
    return [L[k*q:(k+1)*q] for k in range(n)]
FE = int(OPT.get("fe", 2)); FF = int(OPT.get("ff", 0)); SE = int(OPT.get("se", 0))
def srd(A, d, lo, size):
    A(f"s_mov_b32 s{d}, s{lo}\ns_mov_b32 s{d+1}, s{lo+1}\ns_mov_b32 s{d+2}, {hex(size)}\ns_mov_b32 s{d+3}, 0x20000")
def srd_sel(A, d, lo0, lo1, size):
    A(f"s_cselect_b32 s{d}, s{lo0}, s{lo1}\ns_cselect_b32 s{d+1}, s{lo0+1}, s{lo1+1}\ns_mov_b32 s{d+2}, {hex(size)}\ns_mov_b32 s{d+3}, 0x20000")
def stamp(A, slot):
    if not TS: return
    A(f"s_memrealtime s[90:91]\ns_memtime s[88:89]\ns_waitcnt lgkmcnt(0)\ns_add_u32 s92, s94, {WS_TS + slot*8}")
    A.dd = A.nd
    A(f"v_mov_b32 v4, s90\nv_mov_b32 v5, s88\nv_mov_b32 v2, s92"); A.it(("vm", None, "global_store_dwordx2 v2, v[4:5], s[66:67]"))
def tick(A, idx, reg):
    if TS < 2: return
    if idx: A(f"v_writelane_b32 v{reg}, s88, {idx-1}")
    A("s_memtime s[88:89]")
def ptick(A, idx, reg):
    if TS < 2: return
    A(f"s_memtime s[88:89]\ns_waitcnt lgkmcnt(0)\nv_writelane_b32 v{reg}, s88, {idx}")
def tockdump(A, n, reg, area):
    if TS < 2: return
    A(f"s_waitcnt lgkmcnt(0)\nv_writelane_b32 v{reg}, s88, {n}\ns_lshl_b32 s92, s95, 8\ns_add_u32 s92, s92, {WS_TS + area}\nv_lshlrev_b32 v5, 2, v1\nv_add_u32 v5, s92, v5")
    A.it(("vm", None, f"global_store_dword v5, v{reg}, s[66:67]"))
def bc(n, which, hi=False):
    lo = [0]*n; h = [1]*n
    for w in which:
        if isinstance(w, tuple): lo[w[0]] = 1
        else: h[w] = 0
    s = ""
    if any(lo): s += " op_sel:[" + ",".join(map(str, lo)) + "]"
    s += " op_sel_hi:[" + ",".join(map(str, h)) + "]"
    return s
def B(r):
    return f"v[{r & ~1}:{(r & ~1)+1}]", (r & 1)
def pk(op, d, *src, neg=()):
    t = []; w = []
    src = list(src)
    if isinstance(src[1], tuple) and src[1][1] & 1:
        src[0], src[1] = src[1], src[0]; neg = tuple({0: 1, 1: 0}.get(n, n) for n in neg)
    for i, s in enumerate(src):
        if isinstance(s, tuple):
            x, hi = B(s[1]); t.append(x); w.append((i,) if hi else i)
        else:
            assert s % 2 == 0; t.append(f"v[{s}:{s+1}]")
    assert d % 2 == 0
    m = bc(len(src), w)
    if neg:
        nn = ",".join("1" if i in neg else "0" for i in range(len(src))); m += f" neg_lo:[{nn}] neg_hi:[{nn}]"
    return f"v_pk_{op}_f32 v[{d}:{d+1}], " + ", ".join(t) + m

def stats_job(R, scr):
    L0, U, T = R, R+10, R+30
    ld = [f"v_mov_b32 v9, {WS_EPOCH}", ("vm", "st", "global_load_dword v9, v9, s[66:67] sc1")]
    for i in range(5): ld.append(("vm", "st", f"buffer_load_dwordx2 v[{L0+2*i}:{L0+2*i+1}], v{T}, s[16:19], s75 offen offset:{256*i}"))
    if int(OPT.get("el", 0)): ld = ld[2:] + ld[:2]
    if int(OPT.get("pg", 0)):
        ld += lines("s_cmp_eq_u32 s3, 1\ns_cselect_b64 s[4:5], s[46:47], s[60:61]\ns_cselect_b32 s6, 0, 0x200000\ns_cmp_eq_u32 s3, 2\ns_cselect_b64 s[4:5], s[48:49], s[4:5]\ns_cselect_b32 s6, 0, s6\ns_cmp_eq_u32 s3, 3\ns_cselect_b64 s[4:5], s[66:67], s[4:5]\ns_cselect_b32 s6, 0x1800000, s6")
        ld += ["v_lshlrev_b32 v66, 21, v1", "v_min_u32 v66, s6, v66", ("vm", None, "global_load_dword v66, v66, s[4:5]")]
    c = [("wvm", ["st"])]
    for i in range(10): c += [f"v_lshlrev_b32 v{U+2*i}, 16, v{L0+i}", f"v_and_b32 v{U+2*i+1}, 0xffff0000, v{L0+i}"]
    def red(v, t):
        o = [f"v_add_f32 v{v}, v{v}, v{v+1}"]
        for r in (8, 4, 2, 1): o.append(f"v_add_f32_dpp v{v}, v{v}, v{v} row_ror:{r} row_mask:0xf bank_mask:0xf")
        o += [f"v_mov_b32 v{t}, v{v}", f"v_permlane16_swap_b32 v{v}, v{t}", f"v_add_f32 v{v}, v{v}, v{t}", f"v_mul_f32 v{v}, 0x3acccccd, v{v}"]
        return o
    c.append(pk("add", T, U, U+2))
    for i in range(2, 10): c.append(pk("add", T, T, U+2*i))
    c += red(T, T+1)
    for i in range(10): c.append(pk("add", U+2*i, U+2*i, ("b", T), neg=(1,)))
    c.append(pk("mul", T+2, U, U))
    for i in range(1, 10): c.append(pk("fma", T+2, U+2*i, U+2*i, T+2))
    c += red(T+2, T+3)
    c += lines(f"""v_cvt_pk_bf16_f32 v{T}, v{T}, v{T+2}
v_and_b32 v{T+2}, 0xffff0000, v{T}
v_add_f32 v{T+2}, 0x3727c5ac, v{T+2}
v_cvt_pk_bf16_f32 v{T+2}, v{T+2}, v{T+2}
v_and_b32 v{T+2}, 0xffff0000, v{T+2}
v_sqrt_f32 v{T+2}, v{T+2}
v_and_b32 v{T}, 0xffff, v{T}
v_cvt_pk_bf16_f32 v{T+2}, v{T+2}, v{T+2}
v_readfirstlane_b32 s96, v9
v_and_b32 v{T+2}, 0xffff0000, v{T+2}
v_or_b32 v{T}, v{T+2}, v{T}
v_lshrrev_b32 v{T+1}, 5, v0
v_lshlrev_b32 v{T+1}, 2, v{T+1}
v_add_u32 v{T+1}, {scr}, v{T+1}
s_add_u32 s96, s96, 1""")
    c.append(("ds", None, f"ds_write_b32 v{T+1}, v{T}"))
    f = lines(f"v_and_b32 v{T+1}, 7, v1\nv_lshlrev_b32 v{T+1}, 2, v{T+1}\nv_add_u32 v{T+1}, {scr}, v{T+1}") + [("ds", "stf", f"ds_read_b32 v{T}, v{T+1}")]
    f += lines(f"v_lshlrev_b32 v{T+2}, 21, v0\nv_and_b32 v{T+2}, 0xfe000000, v{T+2}\nv_lshl_add_u32 v{T+2}, v1, 3, v{T+2}\ns_lshl_b32 s75, s70, 0\ns_lshl_b32 s75, s60, 7\ns_add_u32 s75, s75, {WS_STAT}".replace("s_lshl_b32 s75, s70, 0\n", "").replace("s60", "s31"))
    f += [("wds", ["stf"]), f"v_mov_b32 v{T+1}, s96", ("vm", None, f"buffer_store_dwordx2 v[{T}:{T+1}], v{T+2}, s[8:11], s75 offen sc1")]
    return ld, c, f
def tagtest(tags, exp="s96"):
    L = [f"v_xor_b32 v4, {exp}, v{tags[0]}"]
    for t in tags[1:]: L += [f"v_xor_b32 v5, {exp}, v{t}", "v_or_b32 v4, v4, v5"]
    return L + ["v_cmp_ne_u32 vcc, 0, v4"]
def gcheck(A, name, loads, tags):
    A(f"s_cbranch_vccz {name}_ok\ns_mov_b32 s7, 0x40000")
    A.label(f"{name}_l")
    for x in loads: A(x if isinstance(x, str) else x[2])
    A("s_waitcnt vmcnt(0)"); A.ext(tagtest(tags))
    A(f"s_sub_u32 s7, s7, 1\ns_cbranch_scc1 {name}_ok\ns_cbranch_vccnz {name}_l")
    A.label(f"{name}_ok")
WO = int(OPT.get("wo", 0)); NH = int(OPT.get("nh", 2))
U = [7, 8, 9, 10, 11, 0, 1, 2, 3, 4, 5, 6]
def w2reg(i):
    p = U.index(i)
    return 116 + 20*p if p < 7 else (96 if p == 7 else 20*(p-8))
def w2load(p, base=82):
    i = U[p]
    L = [f"s_add_u32 s79, s{base}, {i*5120}"]
    if i == 2: L += [f"s_cmp_eq_u32 s3, 3\ns_cselect_b32 s79, {hex(OOB)}, s79"]
    for nb in range(5):
        r = w2reg(i) + 4*nb
        L.append(("vm", ("w2", i), f"buffer_load_dwordx4 a[{r}:{r+3}], v{28+(nb>>2)}, s[8:11], s79 offen offset:{(nb&3)*1024} sc1"))
    return L
def w2loads(a, b, base=82): return sum((w2load(p, base) for p in range(a, b)), [])
def spread(A, main, extra, lo=0, hi=None):
    sl = interleave(main, extra, lo, hi) if extra else [[] for _ in main]
    for i, x in enumerate(main):
        A.it(x)
        for y in sl[i]: A.it(y)
def sig_early(A, e, d, t):
    A(f"s_cmp_ge_u32 s{e}, 11\ns_cselect_b32 s{t}, 11, 0\ns_cselect_b32 s{d}, 48, 0\ns_sub_u32 s{t}, s{e}, s{t}\ns_add_u32 s{d}, s{d}, s{t}\ns_mul_i32 s{t}, s{t}, 43\ns_lshr_b32 s{t}, s{t}, 7\ns_mul_i32 s{t}, s{t}, 9\ns_add_u32 s{d}, s{d}, s{t}")
def sig_late(A, l, t):
    A(f"s_lshr_b32 s{t}, s{l}, 2\ns_lshl_b32 s{t}, s{t}, 3\ns_add_u32 s{l}, s{l}, s{t}\ns_add_u32 s{l}, s{l}, 3")
def sig_ssm(A, k, t):
    A(f"s_mul_i32 s{t}, s{k}, 52429\ns_lshr_b32 s{t}, s{t}, 18\ns_mul_i32 s{t}, s{t}, 7\ns_add_u32 s{k}, s{k}, s{t}\ns_add_u32 s{k}, s{k}, 7")
def tlb_touch():
    T = int(OPT.get("tlb", 0))
    if not T: return []
    return lines(f"v_mul_u32_u24 v6, {hex(T*1024)}, v0\nv_min_u32 v7, {SZ_OUT-4}, v6") + [("vm", None, "buffer_load_dword v6, v6, s[8:11], 0 offen sc1"), ("vm", None, "global_load_dword v7, v7, s[62:63]")]
ORD = OPT.get("ord", "A")
def w2warm():
    return lines("s_lshr_b32 s75, s2, 6\ns_mul_i32 s75, s75, 6400\ns_add_u32 s75, s75, s82\ns_add_u32 s75, s75, 10240\nv_min_u32 v6, 49, v1\nv_lshlrev_b32 v6, 7, v6") + [("vm", None, "buffer_load_dword v7, v6, s[8:11], s75 offen sc1")]
def early_setup(A):
    srd(A, 8, P["ws"], WS_END)
    A("v_lshlrev_b32 v28, 4, v1\nv_add_u32 v29, 4096, v28")
    A("v_lshlrev_b32 v8, 20, v1\nv_and_b32 v8, 0xfe000000, v8\nv_lshl_add_u32 v8, v1, 2, v8")
def ph2_setup(A):
    A("s_and_b32 s28, s2, 1\ns_bfe_u32 s32, s2, 0x20001\ns_lshr_b32 s33, s2, 6\ns_lshl2_add_u32 s80, s32, s33\ns_bfe_u32 s81, s2, 0x30003\ns_lshl2_add_u32 s29, s28, s3")
    A(f"s_mul_i32 s32, s29, 12\ns_mul_i32 s33, s81, 96\ns_add_u32 s33, s33, s32\ns_mul_i32 s82, s33, 5120\ns_add_u32 s82, s82, {WS_W2P}")
    A(f"s_lshl1_add_u32 s33, s80, s28\ns_mul_i32 s34, s33, 96\ns_add_u32 s34, s34, s32\ns_mul_i32 s83, s34, {HS}\ns_add_u32 s83, s83, {WS_H}")
    A(f"s_xor_b32 s33, s33, 1\ns_mul_i32 s34, s33, 96\ns_add_u32 s34, s34, s32\ns_mul_i32 s30, s34, {HS}\ns_add_u32 s30, s30, {WS_H}")
    A(f"s_lshl_b32 s93, s80, 14\ns_add_u32 s93, s93, {WS_FLG}")
ACCG = 96; ACCK = 176
UF = OPT.get("u", "S") == "F"
if UF:
    STEPS = [("G",i) for i in range(3)] + [("K",i) for i in range(3)] + [("G",i) for i in range(3, 12)] + [("K",i) for i in range(3, 12)]
    AP = [[216, 220, 224, 228], [232, 236, 240, 244], [96, 100, 104, 108]]; G0, CHK = 0, {3: 1, 7: 2}
else:
    STEPS = [("G",i) for i in U[:5]] + [("K",i) for i in U[:3]] + [("G",i) for i in U[5:]] + [("K",i) for i in U[3:]]
    AP = [[b+4*t for t in range(4)] for b in (112, 128, 144)]; G0, CHK = 2, {5: 0, 8: 1}
POOL = [[f"v{b+4*t}" for t in range(4)] for b in (32, 48, 64, 80)] + [[f"a{r}" for r in q] for q in AP]
HBUF = [0,1,2,3,0,1,2,3,0,1,2,4,5,6,3,0,1,2,4,5,6,3,0,1]
def Hr(n, tb):
    b = POOL[HBUF[n]][tb]; r = int(b[1:]); return f"{b[0]}[{r}:{r+3}]"
FN = {0: 6, 1: 8, 2: 3, 3: 1, 4: 5}
def fbase(g):
    if g == 0: return lines("s_mul_i32 s31, s28, 22\ns_mul_i32 s32, s3, 6\ns_add_u32 s31, s31, s32\ns_min_u32 s31, s31, 38\ns_lshl_b32 s31, s31, 7\ns_add_u32 s31, s31, s93")
    if g == 1: return lines("s_mul_i32 s31, s29, 172\ns_lshr_b32 s31, s31, 7\ns_lshl_b32 s31, s31, 9\ns_add_u32 s31, s31, s93\ns_add_u32 s31, s31, 5632")
    if g == 2: return lines("s_mul_i32 s31, s29, 5\ns_lshr_b32 s31, s31, 1\ns_lshl_b32 s31, s31, 7\ns_add_u32 s31, s31, s93\ns_add_u32 s31, s31, 11264")
    if g == 3: return lines(f"s_xor_b32 s31, s95, 4\ns_lshl_b32 s31, s31, 7\ns_add_u32 s31, s31, {WS_XF}")
    if g == 4: return lines(f"s_lshl_b32 s31, s81, 3\ns_add_u32 s31, s31, s29\ns_mul_i32 s31, s31, 640\ns_add_u32 s31, s31, {WS_CF}")
    return lines(f"s_mul_i32 s31, s29, 7680\ns_add_u32 s31, s31, {WS_WF}\ns_mul_i32 s32, s81, 5\ns_cmp_eq_u32 s3, 3\ns_cselect_b32 s33, 2, 63")
def faddr(g):
    if g < 5: return [f"v_min_u32 v9, {FN[g]-1}, v1", "v_lshlrev_b32 v9, 7, v9"]
    return lines("v_lshrrev_b32 v9, 1, v1\nv_min_u32 v9, 6, v9\nv_cmp_eq_u32 vcc, s33, v9\nv_and_b32 v2, 1, v1\nv_lshl_add_u32 v2, v2, 2, s32\nv_cndmask_b32 v9, v9, 1, vcc\nv_lshrrev_b32 v2, 3, v2\nv_mad_u32_u24 v9, v9, 5, v2\nv_lshlrev_b32 v9, 7, v9")
def fpoll(g): return glue(fbase(g)) + faddr(g) + [("vm", "fl", "buffer_load_dword v9, v9, s[8:11], s31 offen sc1")]
def fcheck(A, name, g, pre=None):
    A.it(("wvm", ["fl"]))
    A(f"v_cmp_ne_u32 vcc, s96, v9\ns_cbranch_vccz {name}_ok\ns_mov_b32 s7, 0x40000")
    if pre: A(pre)
    A.label(f"{name}_l")
    A.ext(fbase(g) + faddr(g))
    A(f"buffer_load_dword v9, v9, s[8:11], s31 offen sc1\ns_waitcnt vmcnt(0)\nv_cmp_ne_u32 vcc, s96, v9\ns_sub_u32 s7, s7, 1\ns_cbranch_scc1 {name}_ok\ns_cbranch_vccnz {name}_l")
    A.label(f"{name}_ok")
def ftest(dst, src):
    return [("wvm", ["fl"]), f"v_cmp_ne_u32 vcc, s96, v9\ns_nop 0\ns_cmp_eq_u64 vcc, 0\ns_cselect_b32 s{dst}, s{src}, {hex(OOB)}"]
def fredo(A, name, g, dst, src, loads, pre=None):
    A(f"s_cmp_eq_u32 s{dst}, s{src}\ns_cbranch_scc1 {name}_done\ns_mov_b32 s7, 0x40000")
    if pre: A(pre)
    A.label(f"{name}_l")
    A.ext(fbase(g) + faddr(g))
    A(f"buffer_load_dword v9, v9, s[8:11], s31 offen sc1\ns_waitcnt vmcnt(0)\nv_cmp_ne_u32 vcc, s96, v9\ns_sub_u32 s7, s7, 1\ns_cbranch_scc1 {name}_ok\ns_cbranch_vccnz {name}_l")
    A.label(f"{name}_ok")
    for x in loads: A(x if isinstance(x, str) else x[2])
    if name == "FR": A("s_waitcnt vmcnt(0)")
    A.label(f"{name}_done")
def hload(n, base=None):
    hf, i = STEPS[n]
    L = [f"s_add_u32 s77, s{base or (30 if hf == 'G' else 83)}, {i*HS}"]
    if i == 2: L += [f"s_cmp_eq_u32 s3, 3\ns_cselect_b32 s77, {hex(OOB)}, s77"]
    for tb in range(4): L.append(("vm", ("h", n), f"buffer_load_dwordx4 {Hr(n,tb)}, v28, s[8:11], s77 offen offset:{tb*1024} sc1"))
    return L
XS = 81920
def ph2_addr(A):
    srd(A, 24, P["dsk"], 1280); srd(A, 20, P["out"], SZ_OUT)
    A("s_lshl1_add_u32 s32, s80, s28\ns_lshl_b32 s32, s32, 6\ns_lshl_b32 s33, s3, 4\ns_add_u32 s32, s32, s33\nv_and_b32 v2, 12, v1\nv_lshrrev_b32 v3, 4, v1\nv_add_u32 v2, v2, v3\nv_mul_u32_u24 v12, 160, v2\nv_add_u32 v2, s32, v2")
    A("v_lshrrev_b32 v15, 3, v2\nv_lshlrev_b32 v15, 7, v15\nv_and_b32 v3, 7, v2\nv_lshl_add_u32 v15, v3, 3, v15\nv_mul_u32_u24 v2, 2560, v2")
    A("s_mul_i32 s98, s81, 160\ns_mul_i32 s97, s32, 1280\ns_add_u32 s97, s97, s98\ns_lshl_b32 s33, s98, 1\nv_and_b32 v3, 3, v1\nv_lshl_add_u32 v13, v3, 4, v2\nv_add_u32 v13, s33, v13")
    A(f"s_mul_i32 s101, s3, 20480\ns_add_u32 s100, s101, {XS}\nv_lshl_add_u32 v14, v3, 3, s100\nv_add_u32 v12, v12, v14\ns_movk_i32 s33, 6554")
    for i in range(3):
        A(f"v_add_u32 v2, {64*i}, v1\nv_min_u32 v2, 159, v2\nv_mul_u32_u24 v3, s33, v2\nv_lshrrev_b32 v3, 16, v3\nv_mul_u32_u24 v3, 1120, v3\nv_lshl_add_u32 v{16+i}, v2, 4, v3")
    A("v_min_u32 v19, 144, v28\ns_mul_i32 s75, s3, 5120\nv_add_u32 v23, s75, v28\nv_add_u32 v24, 40960, v23")
    A(f"s_mul_i32 s4, s95, 5120\ns_add_u32 s4, s4, {WS_XCH}\ns_xor_b32 s5, s95, 4\ns_mul_i32 s5, s5, 5120\ns_add_u32 s5, s5, {WS_XCH}\ns_lshl_b32 s6, s95, 7\ns_add_u32 s6, s6, {WS_XF}")
FST = [f"s_mov_b32 s75, {WS_STAT}", ("vm", "fin", "buffer_load_dwordx2 v[10:11], v15, s[8:11], s75 offen sc1")]
def fin_loads():
    L = []
    for i in range(3): L += [f"s_add_u32 m0, s100, {1024*i}", ("vm", "fin", f"buffer_load_dwordx4 v{16+i}, s[16:19], s97 offen lds")]
    return L + ["s_add_u32 m0, s100, 3072", ("vm", "fin", "buffer_load_dwordx4 v19, s[24:27], s98 offen lds")] + FST
PARK = [f"a{r}" for r in range(80, 96)] + ["v6", "v7", "v26", "v27"]
def fin_base(A, name):
    A.ext(tagtest([11])); gcheck(A, name, FST, [11])
    for nb in range(5):
        r = ACCG + 8*nb
        A(f"ds_read_b64 v[{r}:{r+1}], v12 offset:{32*nb}\nds_read_b64 v[{r+2}:{r+3}], v14 offset:{3072+32*nb}")
    A("v_and_b32 v16, 0xffff0000, v10\nv_rcp_f32 v16, v16\nv_lshlrev_b32 v10, 16, v10\ns_waitcnt lgkmcnt(0)")
    for k in range(10):
        r = ACCG + 8*(k >> 1); x = r + (k & 1); d = x + 2; o = r + 4 + 2*(k & 1)
        A(f"v_lshlrev_b32 v{o}, 16, v{x}\nv_and_b32 v{o+1}, 0xffff0000, v{x}\nv_lshlrev_b32 v18, 16, v{d}\nv_and_b32 v19, 0xffff0000, v{d}")
        A.ext([pk("add", 20, o, ("b", 10), neg=(1,)), pk("mul", 18, 18, ("b", 16)), pk("fma", o, 20, 18, o)])
        for e in range(2):
            p = PARK[2*k+e]; A(f"v_accvgpr_write_b32 {p}, v{o+e}" if p[0] == "a" else f"v_mov_b32 {p}, v{o+e}")
GROUPS = [[n] for n in range(13)] + [[13, 14]] + [[n] for n in range(15, 21)] + [[21, 22, 23]]
ISSUE = {0: (3,), 1: (4,), 2: (5,), 3: (6,), 4: (7,), 5: (8,), 6: (9,), 7: (10,), 8: (11, 12), 9: (13,), 10: (14,), 11: (15,), 12: (16,), 13: (17, 18, 19), 15: (20, 21), 16: (22,), 17: (23,)}
for k_, ns_ in ISSUE.items():
    for n_ in ns_:
        prev_ = [m for m in range(n_) if HBUF[m] == HBUF[n_]]
        assert (not prev_ or prev_[-1] < k_) and (HBUF[n_] < 4 or k_ > 7)
def acc2(hf, nb, tb): return (ACCG if hf == "G" else ACCK) + (tb*5+nb)*4

W_SLOT = 20480; NWS = 4; X_BASE = NWS*W_SLOT; X_SLOT = 16384; F_SCR = X_BASE + 3*X_SLOT
def gen_ffn(A):
    import copy
    A("s_mul_i32 s70, s69, 160\ns_min_u32 s70, s70, 1568")
    A("s_lshl_b32 s32, s68, 7\ns_lshl_b32 s33, s3, 5\ns_add_u32 s32, s32, s33")
    A("v_lshrrev_b32 v2, 3, v1\nv_add_u32 v2, s32, v2\nv_mul_u32_u24 v2, 1280, v2\nv_lshrrev_b32 v3, 4, v1\nv_xor_b32 v3, v3, v1\nv_and_b32 v3, 7, v3\nv_lshlrev_b32 v3, 4, v3")
    A(f"v_add_u32 v15, v2, v3\nv_xor_b32 v3, 64, v3\nv_add_u32 v16, v2, v3\nv_add_u32 v16, {8*1280-1024}, v16\nv_add_u32 v17, {16*1280}, v15\nv_add_u32 v18, {16*1280}, v16")
    A(f"s_mul_i32 s73, s3, 5120\ns_lshl_b32 s74, s3, 12\ns_add_u32 s74, s74, {X_BASE}")
    A("s_mul_i32 s32, s71, 320\ns_lshl_b32 s33, s70, 1\ns_movk_i32 s34, 3277")
    for i in range(5):
        A(f"v_add_u32 v2, s32, v1\nv_add_u32 v2, {64*i}, v2\nv_mul_u32_u24 v3, s34, v2\nv_lshrrev_b32 v3, 16, v3")
        A("v_mul_u32_u24 v4, 20, v3\nv_sub_u32 v4, v2, v4\nv_lshrrev_b32 v5, 2, v3\nv_and_b32 v5, 2, v5\nv_xor_b32 v4, v4, v5")
        A(f"v_mul_u32_u24 v3, 3456, v3\nv_lshl_add_u32 v3, v4, 4, v3\nv_add_u32 v3, s33, v3\nv_subrev_u32 v{10+i}, {1024*(i&3)}, v3")
    def dmaW(s):
        L = [f"s_add_u32 m0, s73, {(s%NWS)*W_SLOT}", f"s_mov_b32 s77, {s*32*3456}"]
        for i in range(5):
            if i == 4: L.append(f"s_add_u32 m0, s73, {(s%NWS)*W_SLOT+4096}")
            L.append(("vm", ("W", s), f"buffer_load_dwordx4 v{10+i}, s[12:15], s77 offen offset:{1024*(i&3)} lds"))
        return L
    def dmaX(u, hs=(0, 1)):
        L = []
        for h in hs:
            L += [f"s_add_u32 m0, s74, {(u%3)*X_SLOT+2048*h}", f"s_movk_i32 s78, {u*128}"]
            for i in range(2): L.append(("vm", ("X", u), f"buffer_load_dwordx4 v{15+2*h+i}, s[16:19], s78 offen offset:{1024*i} lds"))
        return L
    st_ld, st_c, st_f = stats_job(32, X_BASE + 2*X_SLOT)
    def lds_setup(A):
        early_setup(A)
        A("v_lshrrev_b32 v2, 4, v1\nv_bfe_u32 v3, v1, 2, 2\nv_lshl_add_u32 v3, v2, 3, v3\nv_mul_u32_u24 v3, 320, v3")
        A("v_and_b32 v4, 3, v1\nv_lshl_add_u32 v3, v4, 3, v3\nv_and_b32 v4, 1, v2\nv_lshlrev_b32 v4, 5, v4")
        A("s_mul_i32 s75, s72, 192\nv_add_u32 v5, s75, v3\nv_add_u32 v20, v5, v4\nv_sub_u32 v21, v5, v4")
        A("s_lshl_b32 s75, s72, 5\ns_add_u32 s75, s75, 128\nv_xor_b32 v5, s75, v4\nv_add_u32 v22, v3, v5")
        for i in range(3): A(f"v_add_u32 v{23+i}, {3*W_SLOT}, v{20+i}")
        A("v_and_b32 v3, 15, v1\nv_lshrrev_b32 v4, 1, v3\nv_xor_b32 v4, v4, v2\nv_lshlrev_b32 v4, 4, v4\nv_lshl_add_u32 v3, v3, 7, v4")
        A(f"s_lshl_b32 s75, s71, 13\ns_add_u32 s75, s75, {X_BASE}\nv_add_u32 v26, s75, v3\nv_xor_b32 v27, 64, v26")
    PEND = []
    def start(role, pre, post, side):
        pre(A)
        A("s_waitcnt lgkmcnt(0)")
        srd(A, 16, P["x"], SZ_X); A.its(st_ld); post(A)
        A("s_cmp_eq_u32 s72, 0"); srd_sel(A, 12, P["w1"], P["w3"], SZ_W)
        main = dmaX(0) + dmaW(0)
        first, second = (side, main) if (ORD == "B" and side) else (main, side)
        A.its(first)
        A.L.append(f";@TOUCH {role}")
        A(f"s_branch {role}_a"); A.L.append(f";@SEG {role}"); A.label(f"{role}_a")
        lds_setup(A)
        A.its(st_c[:1])
        if ORD == "B": spread(A, st_c[1:], second + dmaW(1), 0, len(st_c) - 10)
        elif ORD == "A": spread(A, st_c[1:], dmaW(1) + second, 0, len(st_c) - 10)
        else: spread(A, st_c[1:], dmaW(1) + dmaX(1) + dmaW(2), 0, len(st_c) - 4); PEND[:] = second
    def hs(A):
        A("s_lshl1_add_u32 s32, s69, s72"); sig_early(A, 32, 84, 33)
        A("s_mul_i32 s33, s69, 3\ns_cmp_eq_u32 s69, 10\ns_cselect_b32 s34, 1, 0\ns_sub_u32 s33, s33, s34\ns_lshl1_add_u32 s85, s72, s33\ns_add_u32 s86, s33, 1")
        sig_late(A, 85, 34); sig_late(A, 86, 34)
        A(f"s_lshl1_add_u32 s33, s68, s71\ns_mul_i32 s34, s33, 96")
        for r in (84, 85, 86): A(f"s_add_u32 s{r}, s{r}, s34\ns_mul_i32 s{r}, s{r}, {HS}\ns_add_u32 s{r}, s{r}, {WS_H}")
        A(f"s_cmp_eq_u32 s32, 19\ns_cselect_b32 s85, {hex(OOB)}, s85")
        A(f"s_lshl1_add_u32 s87, s32, s71\ns_lshl_b32 s33, s68, 7\ns_add_u32 s87, s87, s33\ns_lshl_b32 s87, s87, 7\ns_add_u32 s87, s87, {WS_FLG}")
    late_setup = [cap(ph2_setup), []] + chop(cap(hs), 2)
    ep_ld = lines(f"s_mul_i32 s75, s72, 1728\ns_mul_i32 s76, s71, 80\ns_add_u32 s75, s75, s76\ns_add_u32 s75, s75, s70\ns_lshl_b32 s75, s75, 3\ns_add_u32 s75, s75, {WS_CS}\ns_add_u32 s76, s75, {CS_HALF}\nv_min_u32 v2, 624, v28")
    ep_ld += [("vm", "ep", "buffer_load_dwordx4 v[56:59], v2, s[8:11], s75 offen sc1"), ("vm", "ep", "buffer_load_dwordx4 v[60:63], v2, s[8:11], s76 offen sc1")]
    ep_ld += lines(f"v_and_b32 v2, 7, v1\nv_lshlrev_b32 v2, 3, v2\nv_and_b32 v3, 8, v1\nv_lshl_add_u32 v2, v3, 4, v2\ns_lshl1_add_u32 s75, s68, s71\ns_lshl_b32 s75, s75, 10\ns_add_u32 s75, s75, {WS_STAT}")
    for tb in range(4): ep_ld.append(("vm", "ep", f"buffer_load_dwordx2 v[{64+2*tb}:{65+2*tb}], v2, s[8:11], s75 offen offset:{256*tb} sc1"))
    ep_tags = [57, 59, 61, 63, 65, 67, 69, 71]
    ep_t = [("wvm", ["ep"])] + tagtest(ep_tags)
    ep_w = lines(f"v_add_f32 v56, v56, v60\nv_add_f32 v57, v58, v62\ns_lshl_b32 s75, s72, 10\ns_mul_i32 s76, s71, 320\ns_add_u32 s75, s75, s76\ns_add_u32 s75, s75, {F_SCR}\nv_min_u32 v2, 39, v1\nv_lshl_add_u32 v2, v2, 3, s75")
    ep_w += [("ds", None, "ds_write_b64 v2, v[56:57]")]
    ep_r = lines(f"v_and_b32 v2, 48, v1\ns_mul_i32 s75, s72, 384\ns_add_u32 s75, s75, {F_SCR}\nv_add_u32 v3, s75, v2\ns_lshl_b32 s75, s72, 6\ns_add_u32 s75, s75, {F_SCR+256}\nv_add_u32 v2, s75, v2")
    for j in range(10):
        pr, m = j >> 1, j & 1
        ep_r.append(("ds", None, f"ds_read_b128 v[{56+4*j}:{59+4*j}], v{2 if pr == 4 else 3} offset:{1024*m + (0 if pr == 4 else 64*pr)}"))
    ep_c = []
    for tb in range(4):
        ep_c += lines(f"v_lshlrev_b32 v{44+tb}, 16, v{64+2*tb}\nv_and_b32 v{52+tb}, 0xffff0000, v{64+2*tb}\nv_rcp_f32 v{48+tb}, v{52+tb}\nv_mul_f32 v{52+tb}, v{52+tb}, v{52+tb}\nv_mul_f32 v{48+tb}, 0xbfb8aa3b, v{48+tb}")
    ep_a = lines("v_lshrrev_b32 v2, 4, v1\nv_and_b32 v3, 1, v2\nv_lshlrev_b32 v3, 10, v3\nv_lshrrev_b32 v2, 1, v2\nv_lshl_add_u32 v3, v2, 8, v3")
    ep_a += lines("v_and_b32 v2, 15, v1\nv_lshl_add_u32 v3, v2, 4, v3\ns_lshl_b32 s75, s72, 9\nv_add_u32 v30, s75, v3\nv_mov_b32 v31, s96\ns_add_u32 s99, s87, 5632")
    ACC = 96
    def acc(j, tb): return ACC + (j*4+tb)*4
    def Wr(par, j): return par*56 + j*4
    def Xr(par, tb): return par*56 + 40 + tb*4
    def reads(s):
        par = s & 1; L = []; sl = s % NWS; hi = 3 if sl >= 3 else 0; so = (sl - hi)*W_SLOT
        for tb in range(4): L.append(("ds", None, f"ds_read_b128 a[{Xr(par,tb)}:{Xr(par,tb)+3}], v{26+(s&1)} offset:{((s>>1)%3)*X_SLOT + tb*2048}"))
        for j in range(10):
            pr, m = j >> 1, j & 1; ar = 22 if pr == 4 else 20 + (pr & 1); co = 0 if pr == 4 else pr*32
            for hh in range(2): L.append(("ds", None, f"ds_read_b64_tr_b16 a[{Wr(par,j)+2*hh}:{Wr(par,j)+2*hh+1}], v{ar+hi} offset:{so + m*10240 + hh*1280 + co}"))
        return L
    NL = int(OPT.get("nl", 7)); L0 = int(OPT.get("l0", 0)); wl = [[]]*L0 + chop(w2loads(0, NL), 9-L0)
    def loop(role, mem, side, xt={}):
        M = {0: dmaX(1) + dmaW(2), 1: dmaW(3) + dmaX(2), 2: dmaW(4) + dmaW(5), 3: dmaX(3) + dmaW(6), 4: dmaW(7) + dmaW(8), 5: dmaX(4) + dmaW(9), 6: dmaW(10) + dmaX(5)}
        for s in range(7, 16): M[s] = dmaW(s+4) + (dmaX((s+5) >> 1, ((s+1) & 1,)) if s < 15 else [])
        if ORD == "C": M[0] = PEND + dmaW(3); M[1] = dmaX(2) + dmaW(4); M[2] = dmaW(5)
        if "flat" in OPT:
            M = {0: dmaX(1) + dmaW(2), 1: dmaW(3) + dmaX(2), 2: dmaW(4) + dmaW(5)}
            for s in range(3, 17): M[s] = dmaW(s+3)
            M[3] += dmaX(3)
            for u in range(4, 10):
                M[2*u-4] += dmaX(u, (0,)); M[2*u-3] += dmaX(u, (1,))
        for s, L in mem.items(): M[s] = M[s] + ([x if isinstance(x, str) else (x[0], x[1], x[2].replace("s77 offen", "s76 offen")) for x in L] if "noside" in OPT else L)
        M[15] += wl[0]
        for s in range(16, 20): M[s] = M.get(s, []) + wl[2*s-31] + wl[2*s-30]
        S = dict(side)
        for k, L in {5: late_setup[0], 6: late_setup[2], 8: late_setup[3], 11: ep_a, 12: fpoll(4) + ep_ld[10:], 13: ep_ld[:10], 15: fpoll(5), 16: ep_t, 17: ep_w + ep_c, 18: ep_r, 19: cap(ph2_addr)}.items():
            S[k] = S.get(k, []) + L
        if "wf" in OPT: S[int(OPT["wf"])] = S.get(int(OPT["wf"]), []) + w2warm()
        A.L.append(f";@TOUCH P{0 if role == 'FA' else 2}")
        A.sync([("X", 0), ("W", 0)]); stamp(A, 1)
        A.its(reads(0))
        for s in range(20):
            tags = ([("W", s+1), ("X", (s+1) >> 1)] if s < 19 else []) + xt.get(s, [])
            if s == 15: fcheck(A, role + "C", 4)
            if s == 17: gcheck(A, role + "G", ep_ld, ep_tags); fcheck(A, role + "P", 5)
            A.sync(tags)
            tick(A, s, 39)
            par = s & 1; mf = []
            for j in range(10):
                for tb in (range(4) if j % 2 == 0 or not SN else range(3, -1, -1)):
                    c = acc(j, tb); mf.append(f"{MF} v[{c}:{c+3}], a[{Wr(par,j)}:{Wr(par,j)+3}], a[{Xr(par,tb)}:{Xr(par,tb)+3}], " + (f"v[{c}:{c+3}]" if s else "0"))
            A.weave(mf, [(reads(s+1) if s < 19 else [], 0, 30), (M.get(s, []), 0, 39), (S.get(s, []), 1, 39)])
    A("s_mul_i32 s34, s69, 5\ns_lshr_b32 s34, s34, 1\ns_and_b32 s33, s68, 7\ns_lshr_b32 s35, s68, 3\ns_lshl1_add_u32 s32, s33, s35\ns_and_b32 s76, s69, 1\ns_lshl2_add_u32 s76, s76, 8\ns_cmp_ge_u32 s32, s76\ns_cbranch_scc1 FB_p")
    snap = (A.nv, dict(A.tv), A.dv, A.nd, dict(A.td), A.dd)
    def fa0(A):
        A(f"s_lshl2_add_u32 s32, s34, s32\ns_lshr_b32 s76, s33, 1\ns_add_u32 s76, s76, s34\ns_and_b32 s33, s33, 1\ns_mul_i32 s33, s33, 27\ns_add_u32 s33, s33, s76\ns_mov_b32 s34, s35")
        A(f"s_lshl_b32 s76, s76, 7\ns_lshl2_add_u32 s97, s34, s3\ns_mul_i32 s97, s97, {8*3456}\ns_add_u32 s97, s97, s76")
        A("v_lshrrev_b32 v2, 3, v1\nv_mul_u32_u24 v2, 3456, v2\nv_and_b32 v3, 7, v1\nv_lshl_add_u32 v30, v3, 4, v2")
    def fa1(A):
        A("s_cmp_lt_u32 s33, 27"); srd_sel(A, 24, P["w1"], P["w3"], SZ_W)
    def fa2(A):
        A(f"s_lshl_b32 s98, s33, 9\ns_mul_i32 s34, s34, {CS_HALF}\ns_add_u32 s98, s98, s34\ns_add_u32 s98, s98, {WS_CS}\ns_cmp_eq_u32 s3, 0\ns_cselect_b32 s98, s98, {hex(OOB)}")
        A("v_and_b32 v2, 15, v1\nv_and_b32 v3, 1, v1\nv_lshlrev_b32 v3, 4, v3\nv_mov_b32 v4, 0x3f80\nv_lshlrev_b32 v3, v3, v4\nv_lshrrev_b32 v2, 1, v2")
        for r in range(4): A(f"v_cmp_eq_u32 vcc, {r}, v2\nv_cndmask_b32 v{72+r}, 0, v3, vcc")
        A(f"v_and_b32 v2, 7, v1\nv_lshlrev_b32 v2, 5, v2\nv_and_b32 v3, 16, v1\nv_add_u32 v2, v2, v3\ns_lshl_b32 s75, s3, 8\ns_add_u32 s75, s75, {F_SCR}\nv_add_u32 v2, s75, v2\nv_and_b32 v3, 32, v1\nv_lshl_add_u32 v80, v3, 5, v2")
        A(f"v_lshlrev_b32 v82, 2, v1\nv_add_u32 v81, {F_SCR}, v82\nv_lshlrev_b32 v82, 3, v1")
    cs_ld = []
    for i in range(10): cs_ld += [f"s_add_u32 s77, s97, {i*64*3456}", ("vm", "csl", f"buffer_load_dwordx4 a[{112+4*i}:{115+4*i}], v30, s[24:27], s77 offen")]
    cs_c = [("wvm", ["csl"])]
    for i in range(10): cs_c.append(f"{MF} v[76:79], v[72:75], a[{112+4*i}:{115+4*i}], " + ("v[76:79]" if i else "0"))
    cs_c += ["s_nop 0"]*2
    for e in range(4): cs_c.append(f"v_add_f32_dpp v{76+e}, v{76+e}, v{76+e} row_ror:8 row_mask:0xf bank_mask:0xf")
    cs_c.append(("ds", None, "ds_write_b128 v80, v[76:79]"))
    cs_f = [("ds", "csf", f"ds_read_b32 v{72+w}, v81 offset:{256*w}") for w in range(4)]
    cs_f += [("wds", ["csf"]), "v_add_f32 v72, v72, v73", "v_add_f32 v74, v74, v75", "v_mov_b32 v73, s96", "v_add_f32 v72, v72, v74", ("vm", None, "buffer_store_dwordx2 v[72:73], v82, s[8:11], s98 offen sc1")]
    CB = F_SCR + 4096
    def fc1(A):
        A("s_cmp_eq_u32 s72, 0"); srd_sel(A, 20, P["cre"], P["cim"], SZ_B)
        A(f"s_and_b32 s4, s32, 7\ns_lshr_b32 s5, s32, 3\ns_lshl1_add_u32 s99, s4, s71\ns_mul_i32 s99, s99, 51200\ns_lshl_b32 s75, s5, 7\ns_add_u32 s99, s99, s75\ns_cmp_lt_u32 s32, 80\ns_cselect_b32 s99, s99, {hex(OOB)}")
        A(f"s_add_u32 s101, s73, {CB}\nv_lshrrev_b32 v2, 3, v1\nv_mul_u32_u24 v2, 1280, v2\nv_lshrrev_b32 v3, 4, v1\nv_xor_b32 v3, v3, v1\nv_and_b32 v3, 7, v3\nv_lshl_add_u32 v2, v3, 4, v2\ns_lshl_b32 s75, s71, 6\nv_xor_b32 v84, s75, v2\nv_xor_b32 v85, 64, v84")
    def fc2(A):
        A(f"s_lshl2_add_u32 s5, s5, s3\ns_mul_i32 s6, s4, 40\ns_add_u32 s6, s6, s5\ns_lshl_b32 s6, s6, 7\ns_add_u32 s6, s6, {WS_CF}")
        sig_ssm(A, 5, 75)
        A(f"s_mul_i32 s4, s4, 96\ns_add_u32 s5, s5, s4\ns_mul_i32 s100, s5, 5120\ns_add_u32 s100, s100, {WS_W2P}\ns_cmp_lt_u32 s32, 80\ns_cselect_b32 s100, s100, {hex(OOB)}\ns_cselect_b32 s6, s6, {hex(OOB)}")
        A(f"v_and_b32 v2, 15, v1\nv_bfe_u32 v3, v1, 4, 1\ns_lshl_b32 s75, s3, 1\nv_add_u32 v3, s75, v3\nv_lshrrev_b32 v4, 1, v2\nv_xor_b32 v3, v3, v4\nv_lshlrev_b32 v3, 4, v3\nv_lshl_add_u32 v3, v2, 7, v3")
        A(f"v_lshrrev_b32 v4, 5, v1\nv_mul_u32_u24 v4, 10240, v4\nv_add_u32 v3, v3, v4\nv_add_u32 v86, {CB}, v3")
    c_ld = []
    for i in range(5): c_ld += [f"s_add_u32 m0, s101, {1024*i}", f"s_add_u32 s77, s99, {10240*i}", ("vm", "cl", f"buffer_load_dwordx4 v{84+(i&1)}, s[20:23], s77 offen lds")]
    c_r = [("ds", None, f"ds_read_b128 a[{152+4*nb}:{155+4*nb}], v86 offset:{2048*nb}") for nb in range(5)]
    c_s = [("vm", "cs", f"buffer_store_dwordx4 a[{152+4*nb}:{155+4*nb}], v{28+(nb>>2)}, s[8:11], s100 offen offset:{(nb&3)*1024} sc1") for nb in range(5)]
    c_f = ["v_mov_b32 v3, s96", ("wvm", ["cs"]), ("vm", None, "buffer_store_dword v3, v8, s[8:11], s6 offen sc1")]
    CD = int(OPT.get("cd", 0))
    start("FA", fa0, fa1, cs_ld)
    fc1(A)
    loop("FA", {CD: c_ld, CD+2: c_r, CD+3: c_s[:int(OPT.get("c3", 3))], CD+4: c_s[int(OPT.get("c3", 3)):]}, {0: st_f + cap(fc2), 1: cap(fa2), int(OPT.get("cf", 7)): c_f, 2: cs_c[:11], int(OPT.get("cw", 9)): cs_c[13:] + ["s_nop 0"]*6, int(OPT.get("cw", 9))+1: cs_f}, {CD+2: ["cl"]})
    A("s_branch FFN_EP")
    A.nv, A.tv, A.dv, A.nd, A.td, A.dd = snap
    A.L.append(";@SEG FBP"); A.label("FB_p")
    SO = (4, 5, 6, 97, 24, 25, 26, 27)
    def fb1(A):
        A("s_sub_u32 s32, s32, s76\ns_lshl_b32 s35, s69, 2\ns_sub_u32 s35, s35, s34\ns_lshl2_add_u32 s34, s35, s32\ns_lshl2_add_u32 s32, s34, s3\ns_mul_i32 s34, s32, 52429\ns_lshr_b32 s34, s34, 18\ns_mul_i32 s33, s34, 5\ns_sub_u32 s33, s32, s33")
        A(f"s_mul_i32 s99, s34, 40960\ns_lshl_b32 s35, s33, 8\ns_add_u32 s99, s99, s35\ns_lshl_b32 s101, s3, 13\ns_add_u32 s101, s101, {F_SCR}")
        A(f"v_lshrrev_b32 v2, 4, v1\nv_mul_u32_u24 v30, 1280, v2\nv_and_b32 v3, 15, v1\nv_lshlrev_b32 v2, 1, v2\nv_xor_b32 v3, v3, v2\nv_lshl_add_u32 v30, v3, 4, v30\nv_xor_b32 v31, 128, v30")
    def fb2(A):
        A("s_mul_i32 s35, s34, 52429\ns_lshr_b32 s35, s35, 18\ns_mul_i32 s75, s35, 5\ns_sub_u32 s75, s34, s75\ns_sub_u32 s76, s34, 49\ns_cmp_ge_u32 s34, 49\ns_cselect_b32 s35, 10, s35\ns_cselect_b32 s75, s76, s75")
        A("s_cmp_eq_u32 s75, 3\ns_cselect_b32 s76, 1, 0\ns_lshl1_add_u32 s76, s35, s76"); sig_early(A, 76, 100, 79)
        A("s_mul_i32 s76, s35, 3\ns_lshr_b32 s79, s75, 1\ns_add_u32 s76, s76, s79\ns_cmp_eq_u32 s35, 10\ns_cselect_b32 s79, 1, 0\ns_sub_u32 s76, s76, s79"); sig_late(A, 76, 79)
        A("s_lshr_b32 s79, 9, s75\ns_bitcmp1_b32 s79, 0\ns_cselect_b32 s100, s100, s76")
        A(f"s_mul_i32 s98, s100, 5\ns_add_u32 s98, s98, s33\ns_lshl_b32 s98, s98, 7\ns_add_u32 s98, s98, {WS_WF}")
        A(f"s_mul_i32 s100, s100, 5120\ns_lshl_b32 s79, s33, 13\ns_add_u32 s100, s100, s79\ns_add_u32 s100, s100, {WS_W2P}")
        A(f"s_cmp_lt_u32 s32, 270\ns_cselect_b32 s100, s100, {hex(OOB)}\ns_cselect_b32 s98, s98, {hex(OOB)}")
        A("s_cmp_eq_u32 s75, 2\ns_cselect_b32 s75, 8, 4\ns_cselect_b32 s76, 1, 4\ns_lshl_b32 s76, s76, 10")
        A(f"v_lshrrev_b32 v2, 4, v1\nv_mul_u32_u24 v2, s75, v2\nv_bfe_u32 v3, v1, 2, 2\nv_add_u32 v2, v2, v3\nv_lshlrev_b32 v2, 8, v2\nv_and_b32 v3, 3, v1\nv_lshl_add_u32 v2, v3, 3, v2")
        for r in (80, 81):
            A((f"v_mov_b32 v{r}, v2" if r == 80 else f"v_add_u32 v{r}, s76, v2") + f"\nv_lshrrev_b32 v3, 1, v{r}\nv_and_b32 v3, 0x400, v3\nv_xor_b32 v3, v3, v{r}\nv_bfe_u32 v3, v3, 8, 3\nv_lshl_add_u32 v{r}, v3, 5, v{r}\nv_add_u32 v{r}, s101, v{r}")
        A(f"s_mul_i32 s33, s33, {8*52429}")
        for k in range(8): A(f"s_add_u32 s79, s33, {k*52429}\ns_lshr_b32 s79, s79, 18\ns_mul_i32 s79, s79, 486400\ns_add_u32 s{SO[k]}, s100, s79")
    w2_ld = []
    for i in range(8): w2_ld += [f"s_add_u32 m0, s101, {1024*i}", f"s_add_u32 s77, s99, {5120*i}", ("vm", "w2l", f"buffer_load_dwordx4 v{30 + ((i ^ (i >> 1)) & 1)}, s[20:23], s77 offen lds")]
    w2_c = [("wvm", ["w2l"])]
    for k in range(8):
        for hh in range(2): w2_c += [f"v_xor_b32 v{82+hh}, {32*k}, v{80+hh}", ("ds", "w2t", f"ds_read_b64_tr_b16 a[{152+4*k+2*hh}:{153+4*k+2*hh}], v{82+hh}")]
    w2_s = [("vm", "side", f"buffer_store_dwordx4 a[{152+4*k}:{155+4*k}], v{28+(k>>2)}, s[8:11], s{SO[k]} offen offset:{(k&3)*1024} sc1") for k in range(8)]
    f2 = chop(cap(fb2), 3)
    BD = int(OPT.get("bd", 0)); BS = int(OPT.get("bs", BD+4)); BN = int(OPT.get("bn", 3))
    start("FB", fb1, lambda A: srd(A, 20, P["w2"], SZ_W), w2_ld if BD < 0 else [])
    fl = ["v_mov_b32 v3, s96", ("wvm", ["side"]), ("vm", None, "buffer_store_dword v3, v8, s[8:11], s98 offen sc1")]
    if BD < 0: loop("FB", {}, {0: st_f + f2[0], 1: f2[1], 2: f2[2], 3: w2_c, 4: w2_s[:4], 5: w2_s[4:], 8: fl})
    else: loop("FB", {BD: w2_ld}, {0: st_f + f2[0] + f2[1], 1: f2[2], BD+int(OPT.get("bt", 3)): w2_c, **{BS+k: L for k, L in enumerate(chop(w2_s, BN))}, BS+BN+int(OPT.get("bf", 2)): fl})
    A.L.append(";@SEG EP"); A.label("FFN_EP"); A.reset()
    A("s_waitcnt lgkmcnt(0)"); tick(A, 20, 39); tockdump(A, 20, 39, 0x40000)
    stamp(A, 2)
    A("s_nop 6")
    T = 32
    def silu(pr, tb, dst):
        g, u = acc(2*pr, tb), acc(2*pr+1, tb); cg, cu = 56+8*pr, 60+8*pr
        L = []
        for k in (0, 2): L.append(pk("fma", g+k, cg+k, ("b", 44+tb), g+k, neg=(1,)))
        for k in (0, 2): L.append(pk("mul", T+k, g+k, ("b", 48+tb)))
        for k in (0, 2): L.append(pk("fma", u+k, cu+k, ("b", 44+tb), u+k, neg=(1,)))
        for e in range(4): L.append(f"v_exp_f32 v{T+e}, v{T+e}")
        for k in (0, 2): L.append(pk("mul", g+k, g+k, u+k))
        for k in (0, 2): L.append(pk("fma", T+k, T+k, ("b", 52+tb), ("b", 52+tb)))
        for e in range(4): L.append(f"v_rcp_f32 v{T+e}, v{T+e}")
        for k in (0, 2): L.append(pk("mul", g+k, g+k, T+k))
        L += [f"v_cvt_pk_bf16_f32 v{dst}, v{g}, v{g+1}", f"v_cvt_pk_bf16_f32 v{dst+1}, v{g+2}, v{g+3}"]
        return L
    ep = []
    grp = []
    for fr in range(2):
        for tb in range(4):
            o = acc(4*fr+1, tb)
            grp.append((silu(2*fr, tb, o) + silu(2*fr+1, tb, o+2), ("vm", ("H", fr), f"buffer_store_dwordx4 v[{o}:{o+3}], v28, s[8:11], s{84+fr} offen offset:{tb*1024} sc1")))
    for tp in range(2):
        o = acc(9, 2*tp)
        grp.append((silu(4, 2*tp, o) + silu(4, 2*tp+1, o+2) + [f"v_permlane16_swap_b32 v{o}, v{o+2}", f"v_permlane16_swap_b32 v{o+1}, v{o+3}"],
                    ("vm", ("H", 2), f"buffer_store_dwordx4 v[{o}:{o+3}], v30, s[8:11], s86 offen offset:{tp*2048} sc1")))
    FI = int(OPT.get("fi", 1)); we = chop((fin_loads() if FI else []) + w2loads(NL, NL+FE), 8)
    for k, (c, st) in enumerate(grp):
        spread(A, c, we[k] if k < 8 else [])
        if k == int(OPT.get("ef", 99)): A.its([("wvm", [("H", 0)]), ("vm", None, "buffer_store_dword v31, v8, s[8:11], s87 offen sc1")])
        A.it(st)
    stamp(A, 3)
    if "ef" not in OPT: A.its([("wvm", [("H", 0)]), ("vm", None, "buffer_store_dword v31, v8, s[8:11], s87 offen sc1")])
    PQ = int(OPT.get("pq", 0)); lf = [("wvm", [("H", 2)]), ("vm", None, "buffer_store_dword v31, v8, s[8:11], s99 offen sc1")]
    pt = lambda i: [("fn", lambda: ptick(A, i, 25))]
    if TS >= 2: A("s_mov_b32 s7, 0x40001")
    fb = [("wvm", ["fin"]), ("fn", lambda: fin_base(A, "FGF"))]
    A.its(pt(50) + ([] if FI else fin_loads()) + w2loads(NL+FE, 12-PQ) + pt(51) + fb + pt(52) + fpoll(G0) + lf + w2loads(12-PQ, 12) + pt(53) + [("wvm", ["fl"])] + pt(54))
    fcheck(A, "FR", G0)
    if TS >= 2: A("v_writelane_b32 v25, s7, 56"); ptick(A, 55, 25)
    A("s_branch PH2")

S_SLOT = 49152; S_SCR = 3*S_SLOT
def gen_ssm(A):
    A.reset()
    A("s_lshl_b32 s32, s68, 8\ns_lshl_b32 s33, s72, 7\ns_add_u32 s32, s32, s33\ns_lshl_b32 s33, s71, 3\ns_add_u32 s32, s32, s33")
    A("v_and_b32 v2, 32, v1\nv_bfe_u32 v3, v1, 3, 1\nv_lshl_add_u32 v2, v3, 4, v2\nv_bfe_u32 v3, v1, 4, 1\nv_add3_u32 v2, v2, v3, s32\nv_mul_u32_u24 v2, 1280, v2")
    A("v_lshrrev_b32 v3, 4, v1\nv_xor_b32 v3, v3, v1\nv_and_b32 v3, 7, v3\nv_lshlrev_b32 v3, 4, v3\nv_xor_b32 v4, 64, v3\nv_add_u32 v5, v2, v3\nv_add_u32 v6, v2, v4")
    for ii in range(8): A(f"v_add_u32 v{10+ii}, {(64*(ii&1) + 2*(ii>>1))*1280 - 1024*(ii&3)}, v{5+(ii&1)}")
    A("s_lshl_b32 s32, s69, 6\ns_lshl_b32 s33, s71, 5\ns_add_u32 s32, s32, s33")
    A("v_lshrrev_b32 v2, 3, v1\nv_add_u32 v2, s32, v2\nv_mul_u32_u24 v2, 1280, v2\nv_add_u32 v5, v2, v3\nv_add_u32 v6, v2, v4")
    for i in range(4): A(f"v_add_u32 v{18+i}, {8*i*1280 - 1024*i}, v{5+(i&1)}")
    A("s_lshl_b32 s73, s3, 13\ns_lshl_b32 s74, s3, 12\ns_add_u32 s74, s74, 32768")
    st_ld, st_c, st_f = stats_job(32, S_SCR)
    def dma(u, hs=(0, 1)):
        b = (u % 3)*S_SLOT; L = []
        for h in hs:
            L += [f"s_add_u32 m0, s73, {b+4096*h}", f"s_movk_i32 s78, {u*128}"]
            for i in range(4): L.append(("vm", ("S", u), f"buffer_load_dwordx4 v{10+4*h+i}, s[16:19], s78 offen offset:{1024*i} lds"))
            L.append(f"s_add_u32 m0, s74, {b}")
            for i in range(2): L.append(("vm", ("S", u), f"buffer_load_dwordx4 v{18+2*h+i}, s[12:15], s78 offen offset:{1024*(2*h+i)} lds"))
        return L
    p_ld = lines("s_lshl_b32 s32, s69, 6\ns_lshl_b32 s33, s72, 5\ns_add_u32 s32, s32, s33\nv_and_b32 v2, 15, v1\nv_add_u32 v30, s32, v2\nv_lshlrev_b32 v2, 1, v30")
    for cb in range(2):
        for q, sp in enumerate((P["lre"], P["lim"], P["ldt"])): p_ld.append(("vm", "P", f"global_load_ushort v{112+3*cb+q}, v2, s[{sp}:{sp+1}] offset:{32*cb}"))
    def lds_setup(A):
        early_setup(A)
        A("v_lshrrev_b32 v2, 4, v1\nv_and_b32 v3, 15, v1\nv_lshrrev_b32 v4, 1, v3\nv_xor_b32 v4, v4, v2\nv_lshlrev_b32 v4, 4, v4\nv_lshl_add_u32 v3, v3, 7, v4")
        A("s_lshl_b32 s75, s71, 14\ns_lshl_b32 s76, s72, 12\ns_add_u32 s76, s76, 32768")
        A("v_add_u32 v22, s75, v3\nv_xor_b32 v23, 64, v22\nv_add_u32 v120, s76, v3\nv_xor_b32 v121, 64, v120")
        for sl in (1, 2):
            for ks in range(2): A(f"v_add_u32 v{22+2*sl+ks}, {sl*S_SLOT}, v{22+ks}\nv_add_u32 v{120+2*sl+ks}, {sl*S_SLOT}, v{120+ks}")
    def ss0(A):
        A("s_and_b32 s33, s68, 3\ns_lshl2_add_u32 s33, s69, s33\ns_lshl2_add_u32 s33, s33, s3\ns_lshr_b32 s35, s68, 2\ns_mul_i32 s35, s35, 160\ns_add_u32 s35, s35, s33\ns_mul_i32 s97, s33, 5120")
        A("v_bfe_u32 v2, v1, 2, 2\nv_mul_u32_u24 v2, 1280, v2\nv_and_b32 v3, 3, v1\nv_lshl_add_u32 v2, v3, 4, v2\nv_lshrrev_b32 v4, 4, v1\nv_lshl_add_u32 v67, v4, 6, v2")
        A(f"s_lshl_b32 s98, s35, 7\ns_add_u32 s98, s98, {WS_CSB}")
    def ss1(A):
        A("v_lshlrev_b32 v2, 21, v1\nv_and_b32 v2, 0xfe000000, v2\nv_lshl_add_u32 v55, v1, 3, v2")
        for r in range(4): A(f"v_mov_b32 v{68+r}, 0x3f803f80")
        A("s_lshl_b32 s32, s71, 2\nv_lshrrev_b32 v31, 4, v1\nv_add_u32 v31, s32, v31")
    def ss3(A):
        A("s_lshl1_add_u32 s32, s69, s72\ns_lshl_b32 s84, s32, 1\ns_add_u32 s85, s84, 1"); sig_ssm(A, 84, 33); sig_ssm(A, 85, 33)
        A(f"s_lshl1_add_u32 s34, s68, s71\ns_mul_i32 s35, s34, 192")
        for r in (84, 85): A(f"s_add_u32 s{r}, s{r}, s35\ns_mul_i32 s{r}, s{r}, {HS}\ns_add_u32 s{r}, s{r}, {WS_H}")
        A(f"s_lshl_b32 s87, s34, 7\ns_add_u32 s87, s87, s32\ns_lshl_b32 s87, s87, 7\ns_add_u32 s87, s87, {WS_FLG+88*128}")
        A(f"s_add_u32 s86, s84, {96*HS}\ns_add_u32 s78, s85, {96*HS}")
    def ss4(A):
        A("s_mul_i32 s75, s3, 20480\nv_and_b32 v2, 15, v1\nv_bfe_u32 v3, v2, 2, 1\nv_and_b32 v4, 3, v2\nv_lshl_add_u32 v3, v4, 1, v3\nv_and_b32 v4, 8, v2\nv_or_b32 v3, v3, v4")
        A("v_lshrrev_b32 v4, 4, v1\nv_lshlrev_b32 v5, 2, v4\nv_xor_b32 v3, v3, v5\nv_lshlrev_b32 v3, 4, v3\nv_lshl_add_u32 v3, v2, 8, v3\nv_add_u32 v10, s75, v3")
        A("v_bfe_u32 v2, v1, 2, 2\nv_lshlrev_b32 v3, 5, v2\nv_and_b32 v5, 1, v4\nv_lshl_add_u32 v3, v5, 7, v3\nv_and_b32 v5, 3, v1\nv_lshl_add_u32 v3, v5, 3, v3")
        A("v_lshl_add_u32 v2, v4, 3, v2\nv_lshl_add_u32 v3, v2, 8, v3\nv_add_u32 v11, s75, v3")
    def ss5(A):
        A("v_lshlrev_b32 v3, 4, v30\nv_lshlrev_b32 v2, 21, v1\nv_and_b32 v2, 0xfe000000, v2\nv_add_u32 v12, v2, v3\ns_lshl1_add_u32 s76, s68, s71\ns_mul_i32 s97, s76, 10240")
        A("v_lshrrev_b32 v2, 4, v1\nv_mul_u32_u24 v13, 10240, v2\ns_sub_u32 s75, s97, 10240\nv_sub_u32 v13, s75, v13\nv_add_u32 v13, v13, v3\nv_mov_b32 v21, s96")
        for i in range(4):
            if i: A(f"v_subrev_u32 v{13+i}, {40960*i}, v13\nv_add_u32 v2, 4, v2")
            A(f"v_cmp_gt_u32 vcc, s76, v2\nv_cndmask_b32 v{17+i}, 0, v21, vcc")
    b_ld = [("vm", "bl", f"buffer_load_dwordx4 a[{112+4*i}:{115+4*i}], v67, s[24:27], s97 offen offset:{256*i}") for i in range(5)]
    b_c = [("wvm", ["bl"])]
    for i in range(5): b_c.append(f"{MF} v[56:59], v[68:71], a[{112+4*i}:{115+4*i}], " + ("v[56:59]" if i else "0"))
    b_c += ["s_nop 0"]*3
    b_c += ["v_add_f32_dpp v56, v56, v56 quad_perm:[1,0,3,2] row_mask:0xf bank_mask:0xf", "v_add_f32_dpp v56, v56, v56 quad_perm:[2,3,0,1] row_mask:0xf bank_mask:0xf",
            "v_mov_b32 v57, s96", ("vm", None, "buffer_store_dwordx2 v[56:57], v55, s[8:11], s98 offen sc1")]
    NM = "LR LI CA CB L16R L16I L32R L32I L512R L512I QR QI UR UI WR WI PR PI T0 T1".split()
    def Pm(cb): return dict(zip(NM, range(72+20*cb, 72+20*cb+20)))
    par_c = [("wvm", ["P"])] + lines("v_lshrrev_b32 v60, 4, v1\nv_cvt_f32_u32 v60, v60\nv_mul_f32 v60, 0x42000000, v60\nv_sub_f32 v61, 0x42c00000, v60\nv_mul_f32 v62, 4.0, v60")
    for cb in range(2):
        p = Pm(cb); i0 = 112 + 3*cb; zr, zt, t0, t1 = p['PR'], p['PI'], p['T0'], p['T1']
        def power(d, n):
            pre = [f"v_mul_f32 v{t0}, {n}, v{zr}", f"v_mul_f32 v{t1}, {n}, v{zt}"] if n else []
            a, b = (t0, t1) if n else (zr, zt)
            return pre + lines(f"v_exp_f32 v{t0}, v{a}\nv_fract_f32 v{t1}, v{b}\nv_cos_f32 v{d}, v{t1}\nv_sin_f32 v{d+1}, v{t1}\nv_mul_f32 v{d}, v{d}, v{t0}\nv_mul_f32 v{d+1}, v{d+1}, v{t0}")
        par_c += lines(f"""v_lshlrev_b32 v{i0+2}, 16, v{i0+2}
v_mul_f32 v{t0}, 0x3fb8aa3b, v{i0+2}
v_exp_f32 v{t0}, v{t0}
v_lshlrev_b32 v{i0}, 16, v{i0}
v_lshlrev_b32 v{i0+1}, 16, v{i0+1}
v_cvt_pk_bf16_f32 v{t0}, v{t0}, v{t0}
v_and_b32 v{t0}, 0xffff0000, v{t0}
v_mul_f32 v{zr}, v{t0}, v{i0}
v_mul_f32 v{zt}, v{t0}, v{i0+1}
v_mul_f32 v{zr}, 0x3fb8aa3b, v{zr}
v_mul_f32 v{zt}, 0.15915494, v{zt}""") + power(p['LR'], None)
        par_c += lines(f"""v_mul_f32 v{t1}, v{i0}, v{i0}
v_fmac_f32 v{t1}, v{i0+1}, v{i0+1}
v_rcp_f32 v{t1}, v{t1}
v_add_f32 v{t0}, -1.0, v{p['LR']}
v_mul_f32 v{p['CA']}, v{t0}, v{i0}
v_add_f32 v{t1}, v{t1}, v{t1}
v_fmac_f32 v{p['CA']}, v{p['LI']}, v{i0+1}
v_mul_f32 v{p['CB']}, v{p['LI']}, v{i0}
v_fma_f32 v{p['CB']}, -v{t0}, v{i0+1}, v{p['CB']}
v_mul_f32 v{p['CA']}, v{p['CA']}, v{t1}
v_mul_f32 v{p['CB']}, v{p['CB']}, v{t1}""")
        par_c += power(p['L16R'], "0x41800000") + power(p['L32R'], "0x42000000") + power(p['L512R'], "0x44000000") + power(p['QR'], "v60") + power(p['UR'], "v61") + power(p['WR'], "v62")
    ep_ld = lines(f"v_lshrrev_b32 v2, 3, v0\nv_lshlrev_b32 v2, 7, v2\nv_and_b32 v3, 7, v0\nv_lshl_add_u32 v2, v3, 3, v2\ns_lshl_b32 s75, s68, 12\ns_add_u32 s75, s75, {WS_STAT}") + [("vm", "ep", "buffer_load_dwordx2 v[52:53], v2, s[8:11], s75 offen sc1")]
    ep_ld += lines(f"v_lshrrev_b32 v2, 2, v30\nv_lshlrev_b32 v2, 7, v2\nv_and_b32 v3, 3, v30\nv_lshl_add_u32 v2, v3, 5, v2\ns_mov_b32 s75, {WS_CSB}\ns_mov_b32 s76, {WS_CSB+20480}")
    def CS(cb, im): return 112 + 4*cb + 2*im
    for cb in range(2):
        for im in range(2): ep_ld.append(("vm", "ep", f"buffer_load_dwordx2 v[{CS(cb,im)}:{CS(cb,im)+1}], v2, s[8:11], s{75+im} offen offset:{512*cb} sc1"))
    ep_tags = [53, 113, 115, 117, 119]
    ep_t = [("wvm", ["ep"])] + tagtest(ep_tags)
    ep_c = lines(f"""v_and_b32 v53, 0xffff0000, v52
v_rcp_f32 v53, v53
v_lshlrev_b32 v52, 16, v52
v_and_b32 v2, 15, v0
v_bfe_u32 v3, v0, 4, 1
v_lshl_add_u32 v2, v2, 1, v3
v_and_b32 v3, 0xe0, v0
v_add_u32 v2, v2, v3
v_mul_f32 v52, v52, v53
v_lshlrev_b32 v2, 2, v2
v_add_u32 v2, {S_SCR}, v2""") + [("ds", None, "ds_write_b32 v2, v53"), ("ds", None, "ds_write_b32 v2, v52 offset:1024")]
    ACC = 128
    def acc(b, c): return ACC + (c*8+b)*4
    def Xr(par, b): return par*48 + b*4
    def Br(par, c): return par*48 + 32 + c*4
    def reads(s):
        par = s & 1; sl = (s >> 1) % 3; L = []
        for c in range(4): L.append(("ds", None, f"ds_read_b128 a[{Br(par,c)}:{Br(par,c)+3}], v{120+2*sl+(s&1)} offset:{(c>>1)*8192 + (c&1)*2048}"))
        for b in range(8): L.append(("ds", None, f"ds_read_b128 a[{Xr(par,b)}:{Xr(par,b)+3}], v{22+2*sl+(s&1)} offset:{b*2048}"))
        return L
    SORD = OPT.get("sord", "A")
    M = {0: (b_ld if SORD == "C" else []) + dma(2)}
    for s in range(1, 15): M[s] = dma((s+5) >> 1, ((s+1) & 1,))
    CK = int(OPT.get("ck", 16))
    SX = int(OPT.get("sx", 0))
    CW = int(OPT.get("cw2", 18))
    if SX:
        for k, L in enumerate(chop(w2loads(0, 5, 99), CW-CK)): M[CK+k] = M.get(CK+k, []) + L
        for k, L in enumerate(chop(w2loads(5, 5+SX, 98), 20-CW)): M[CW+k] = L
    else:
        for k, L in enumerate(chop(w2loads(0, 5, 99), 20-CK)): M[CK+k] = M.get(CK+k, []) + L
    pc = chop(par_c, 8); ps = chop(cap(ph2_setup), 2)
    pc = chop(par_c, 9)
    S = {0: cap(ss1), 1: st_f + p_ld, 2: ps[0], 3: ps[1] + b_c, 4: pc[0], 5: pc[1], 6: pc[2], 7: pc[3], 8: pc[4], 9: pc[5], 10: pc[6], 11: pc[7], 12: pc[8],
         13: ep_ld, 15: cap(ss3), 16: ep_t, 17: ep_c, 18: cap(ss4), 19: cap(ss5)}
    S[CK-2] = fpoll(4) + S.get(CK-2, [])
    if SX: S[CW-2] = fpoll(5) + S[CW-2]
    if "wf" in OPT: S[19] = w2warm() + S[19]
    PF = int(OPT.get("pf", 0)); PFI = int(OPT.get("pfi", 19))
    if PF:
        pf = lines(f"s_lshr_b32 s32, s2, 3\ns_lshl2_add_u32 s32, s32, s3\ns_lshr_b32 s33, s32, 2\ns_mul_i32 s33, s33, 96\ns_mul_i32 s34, s29, 12\ns_add_u32 s33, s33, s34\ns_mul_i32 s33, s33, 5120\ns_add_u32 s33, s33, {WS_W2P + 35840 - PF*8192}")
        pf += [f"s_cmp_lt_u32 s32, 32\ns_cselect_b32 s33, s33, {hex(OOB)}", "v_lshlrev_b32 v6, 7, v1"]
        for k in range(PF): pf += [("vm", None, "buffer_load_dword v7, v6, s[8:11], s33 offen sc1"), "s_add_u32 s33, s33, 8192"]
        S[PFI] = S.get(PFI, []) + pf
    ss0(A)
    A("s_waitcnt lgkmcnt(0)")
    srd(A, 16, P["x"], SZ_X); A.its(st_ld)
    A("s_cmp_lt_u32 s35, 160"); srd_sel(A, 24, P["bre"], P["bim"], SZ_B)
    A("s_cmp_eq_u32 s72, 0"); srd_sel(A, 12, P["bre"], P["bim"], SZ_B)
    first, second = {"B": (b_ld + dma(0, (0,)), dma(0, (1,)) + dma(1)), "A": (dma(0), b_ld + dma(1)), "C": (dma(0), dma(1))}[SORD]
    A.its(first)
    A.L.append(";@TOUCH S")
    A("s_branch SSM_a"); A.L.append(";@SEG SSM"); A.label("SSM_a")
    lds_setup(A)
    A.its(st_c[:1]); spread(A, st_c[1:], second, 0, len(st_c) - 2)
    A.L.append(";@TOUCH P1")
    A.sync([("S", 0)]); stamp(A, 1)
    A.its(reads(0))
    for s in range(20):
        tags = [("S", (s+1) >> 1)] if (s < 19 and s & 1) else []
        if s == 17: gcheck(A, "SG", ep_ld, ep_tags)
        if s == CK: A.its(ftest(99, 82))
        if s == CW and SX: A.its(ftest(98, 82))
        A.sync(tags, barrier=bool(s & 1))
        tick(A, s, 127)
        par = s & 1; mf = []
        for b in range(8):
            for c in (range(4) if b % 2 == 0 or not SN else range(3, -1, -1)):
                r = acc(b, c); mf.append(f"{MF} v[{r}:{r+3}], a[{Xr(par,b)}:{Xr(par,b)+3}], a[{Br(par,c)}:{Br(par,c)+3}], " + (f"v[{r}:{r+3}]" if s else "0"))
        A.weave(mf, [(reads(s+1) if s < 19 else [], 0, 24), (M.get(s, []), 0, 31), (S.get(s, []), 1, 31)])
    A("s_waitcnt lgkmcnt(0)"); tick(A, 20, 127); tockdump(A, 20, 127, 0x40000)
    stamp(A, 2)
    def gre(cb, j): return acc(0, cb) + 2*j
    def gim(cb, j): return acc(0, 2+cb) + 2*j
    def cfma(dr, di, mr, mi, xr, xi, ar, ai):
        return lines(f"v_fma_f32 v{dr}, v{mr}, v{xr}, v{ar}\nv_fma_f32 v{di}, v{mr}, v{xi}, v{ai}\nv_fma_f32 v{dr}, -v{mi}, v{xi}, v{dr}\nv_fma_f32 v{di}, v{mi}, v{xr}, v{di}")
    def cmul(dr, di, mr, mi, xr, xi):
        return lines(f"v_mul_f32 v{dr}, v{mr}, v{xr}\nv_mul_f32 v{di}, v{mr}, v{xi}\nv_fma_f32 v{dr}, -v{mi}, v{xi}, v{dr}\nv_fmac_f32 v{di}, v{mi}, v{xr}")
    def gsum(regs, tmp):
        L = []
        for sw in ("v_permlane16_swap_b32", "v_permlane32_swap_b32"):
            L += [f"v_mov_b32 v{tmp+k}, v{r}" for k, r in enumerate(regs)] + [f"{sw} v{r}, v{tmp+k}" for k, r in enumerate(regs)] + [f"v_add_f32 v{r}, v{r}, v{tmp+k}" for k, r in enumerate(regs)]
        return L
    def rload(c):
        b = 32 + 16*(c & 1)
        return [("ds", ("R", c), f"ds_read_b128 v[{b+4*k+8*t}:{b+4*k+8*t+3}], v22 offset:{1024*t + 32*(c&3) + 16*k}") for t in range(2) for k in range(2)]
    def scan(cb):
        p = Pm(cb); L = []
        for j in range(16):
            c = 4*cb + (j >> 2); b = 32 + 16*(c & 1) + 2*(j & 3)
            if j & 3 == 0: L.append(("wds", [("R", c)]))
            L += [pk("mul", gre(cb,j), gre(cb,j), b), pk("mul", gim(cb,j), gim(cb,j), b)]
            L += [pk("fma", gre(cb,j), b+8, ("b", CS(cb,0)), gre(cb,j), neg=(0,)), pk("fma", gim(cb,j), b+8, ("b", CS(cb,1)), gim(cb,j), neg=(0,))]
            if j & 3 == 3 and c + 2 < 8: L += rload(c+2)
            if j:
                L += [pk("fma", gre(cb,j), gre(cb,j-1), ("b", p['LR']), gre(cb,j)), pk("fma", gim(cb,j), gim(cb,j-1), ("b", p['LR']), gim(cb,j))]
                L += [pk("fma", gre(cb,j), gim(cb,j-1), ("b", p['LI']), gre(cb,j), neg=(1,)), pk("fma", gim(cb,j), gre(cb,j-1), ("b", p['LI']), gim(cb,j))]
        o = 120 + 4*cb
        L += cfma(64+2*cb, 65+2*cb, p['L16R'], p['L16I'], gre(cb,15), gim(cb,15), gre(cb,15)+1, gim(cb,15)+1) + cmul(o, o+2, p['UR'], p['UI'], 64+2*cb, 65+2*cb)
        L += gsum([o, o+2], 4) + [f"v_mov_b32 v{o+1}, s96", f"v_mov_b32 v{o+3}, s96", ("vm", None, f"buffer_store_dwordx4 v[{o}:{o+3}], v12, s[8:11], s97 offen offset:{256*cb} sc1")]
        return L
    def lbl(cb): return [("vm", ("lb", cb), f"buffer_load_dwordx4 v[{32+16*cb+4*i}:{35+16*cb+4*i}], v{13+i}, s[8:11], 0 offen offset:{256*cb} sc1") for i in range(4)]
    def transform(cb):
        p = Pm(cb); L = [f"v_mov_b32 v{64+2*cb}, v{gre(cb,15)}", f"v_mov_b32 v{65+2*cb}, v{gim(cb,15)}"]
        for j in range(16):
            r, i = gre(cb,j), gim(cb,j)
            L += [pk("mul", 112, i, ("b", p['CB'])), pk("mul", 114, r, ("b", p['CB'])), pk("fma", r, r, ("b", p['CA']), 112, neg=(2,)), pk("fma", i, i, ("b", p['CA']), 114, neg=(1, 2))]
        return L
    def lookback(cb):
        b = 32+16*cb
        lt = [f"v_xor_b32 v4, v17, v{b+1}"] + sum(([f"v_xor_b32 v5, v{17+(r-b)//4}, v{r}", "v_or_b32 v4, v4, v5"] for r in range(b+3, b+16, 2)), []) + ["v_cmp_ne_u32 vcc, 0, v4"]
        A.its([("wvm", [("lb", cb)])] + lt)
        A(f"s_cbranch_vccz SSM_go{cb}\ns_mov_b32 s7, 0x40000")
        A.label(f"SSM_poll{cb}")
        for x in lbl(cb): A(x[2])
        A("s_waitcnt vmcnt(0)"); A.ext(lt)
        A(f"s_sub_u32 s7, s7, 1\ns_cbranch_scc1 SSM_go{cb}\ns_cbranch_vccnz SSM_poll{cb}")
        A.label(f"SSM_go{cb}")
    WP = 112; IMG = 8192
    def second(cb):
        p = Pm(cb); b = 32+16*cb; L = []
        for i in (2, 1, 0): L += cfma(b+4*i, b+4*i+2, p['L512R'], p['L512I'], b+4*i+4, b+4*i+6, b+4*i, b+4*i+2)
        L += cmul(b+4, b+5, p['WR'], p['WI'], b, b+2) + gsum([b+4, b+5], 4)
        L += cfma(p['PR'], p['PI'], p['QR'], p['QI'], b+4, b+5, p['PR'], p['PI']) + cfma(64+2*cb, 65+2*cb, p['L16R'], p['L16I'], p['PR'], p['PI'], 64+2*cb, 65+2*cb)
        for k, (xr, xi) in enumerate(((p['PR'], p['PI']), (64+2*cb, 65+2*cb))):
            L += lines(f"v_mul_f32 v{p['T0']}, v{p['CB']}, v{xi}\nv_mul_f32 v{p['T1']}, v{p['CB']}, v{xr}\nv_fma_f32 v{WP+k}, v{p['CA']}, v{xr}, -v{p['T0']}\nv_fma_f32 v{WP+2+k}, -v{p['CA']}, v{xi}, -v{p['T1']}")
        pw = []
        for j in range(16):
            cur = WP+4*(j & 1); nxt = WP+4*((j+1) & 1)
            L += [pk("mul", nxt, cur, ("b", p['LR'])), pk("mul", nxt+2, cur+2, ("b", p['LR'])), pk("fma", nxt, cur+2, ("b", p['LI']), nxt), pk("fma", nxt+2, cur, ("b", p['LI']), nxt+2, neg=(1,))]
            L += [pk("add", gre(cb,j), gre(cb,j), nxt), pk("add", gim(cb,j), gim(cb,j), nxt+2)]
            if pw and not j & 1: L.append(pw.pop(0))
            if j & 1:
                k = (j >> 1) & 3
                for im in range(2):
                    g = gim if im else gre
                    for hh in range(2):
                        r = (b+8*im+4*hh) if j < 8 else (g(cb, 0) + 4*hh)
                        L.append(f"v_cvt_pk_bf16_f32 v{r+k}, v{g(cb,j-1)+hh}, v{g(cb,j)+hh}")
                        if k == 3: (L if j == 15 else pw).append(("ds", "iw", f"ds_write_b128 v{68+2*(j>>3)+hh}, v[{r}:{r+3}] offset:{cb*IMG + im*4096}"))
        L.append(("wds", ["iw"]))
        st = []
        for tb in range(8):
            r = gim(cb, 0) + 4*tb
            for hh in range(2): L += [f"v_xor_b32 v{2+hh}, {32*tb + 16*hh}, v11", ("ds", ("tr", cb, tb), f"ds_read_b64_tr_b16 v[{r+2*hh}:{r+2*hh+1}], v{2+hh} offset:{cb*IMG + hh*1024}")]
            st.append([("wds", [("tr", cb, tb)]), ("vm", "H", f"buffer_store_dwordx4 v[{r}:{r+3}], v28, s[8:11], s{(84, 85, 86, 78)[cb + 2*(tb >> 2)]} offen offset:{(tb&3)*1024} sc1")])
        return L, st
    A(f"v_lshlrev_b32 v22, 7, v31\nv_add_u32 v22, {S_SCR}, v22\nv_mov_b32 v31, s96")
    A("s_cmp_lg_u32 s95, 0\ns_cbranch_scc1 EP_no\nv_lshlrev_b32 v2, 7, v1")
    for k in range(4): A(f"s_mov_b32 s75, {WS_STAT+4+8192*k}\nbuffer_load_dword a{80+k}, v2, s[8:11], s75 offen sc1")
    A.label("EP_no")
    ptick(A, 40, 25)
    A.its(rload(0) + rload(1) + scan(0) + scan(1))
    ptick(A, 41, 25)
    A.its((fpoll(5) if int(OPT.get("sb", 5)) > 5 else []) + lbl(0))
    for d in range(3):
        A(f"v_subrev_u32 v2, {16*(d+1)}, v1\nv_lshlrev_b32 v2, 2, v2")
        for k in range(4): A.it(("ds", "bp", f"ds_bpermute_b32 v{48+4*d+k}, v2, v{64+k}"))
    for cb in range(2): A(f"v_mov_b32 v{Pm(cb)['PR']}, 0\nv_mov_b32 v{Pm(cb)['PI']}, 0")
    for k in range(4): A(f"v_xor_b32 v{68+k}, {32*(k&1) + 16*(k>>1)}, v10")
    A.it(("wds", ["bp"]))
    for d in (2, 1, 0):
        A(f"s_lshl_b64 exec, -1, {16*(d+1)}")
        for cb in range(2):
            p = Pm(cb); a = 48+4*d+2*cb
            if d < 2: A.ext(cfma(a, a+1, p['L32R'], p['L32I'], p['PR'], p['PI'], a, a+1))
            A(f"v_mov_b32 v{p['PR']}, v{a}\nv_mov_b32 v{p['PI']}, v{a+1}")
    A("s_mov_b64 exec, -1")
    A.its(transform(0))
    stamp(A, 3); ptick(A, 42, 25)
    lookback(0)
    stamp(A, 4); ptick(A, 43, 25)
    L0, st0 = second(0); L1, st1 = second(1)
    SB = int(OPT.get("sb", 5))
    if SB > 5:
        fcheck(A, "SC5a", 5)
        A("s_mov_b32 s35, s98")
        A.its(L0[:60] + lbl(1)); spread(A, L0[60:], w2loads(5+SX, SB), 0, 120)
    else: A.its(L0[:60] + lbl(1) + fpoll(5) + L0[60:])
    ptick(A, 44, 25)
    lookback(1)
    rest = transform(1) + L1
    sl = interleave(rest, st0, 0, len(rest) - 40)
    for i, x in enumerate(rest):
        for y in sl[i]: A.its(y)
        A.it(x)
    ptick(A, 45, 25)
    for y in st1: A.its(y)
    stamp(A, 5)
    fs = "buffer_store_dword v31, v8, s[8:11], s87 offen sc1"
    ph2_addr(A)
    S1 = int(OPT.get("s1", 7))
    ptick(A, 46, 25)
    A.its(fin_loads() + w2loads(SB, S1) + fpoll(G0) + [("wvm", ["H"]), ("vm", None, fs)] + w2loads(S1, 12) + [("wvm", ["fin"])])
    ptick(A, 47, 25)
    A(f"s_cmp_lg_u32 s95, 0\ns_cbranch_scc1 EP_end")
    for k in range(4): A(f"v_accvgpr_read_b32 v{68+k}, a{80+k}")
    A.ext(tagtest([68, 69, 70, 71]))
    A("s_cbranch_vccz EP_ok\nv_lshlrev_b32 v2, 7, v1\ns_mov_b32 s7, 0x40000")
    A.label("EP_l")
    for k in range(4): A(f"s_mov_b32 s75, {WS_STAT+4+8192*k}\nbuffer_load_dword v{68+k}, v2, s[8:11], s75 offen sc1")
    A("s_waitcnt vmcnt(0)"); A.ext(tagtest([68, 69, 70, 71]))
    A(f"s_sub_u32 s7, s7, 1\ns_cbranch_scc1 EP_ok\ns_cbranch_vccnz EP_l")
    A.label("EP_ok")
    A(f"s_mov_b32 s75, {WS_EPOCH}\nbuffer_store_dword v31, v8, s[8:11], s75 offen sc1")
    A.label("EP_end")
    fin_base(A, "FGS")
    fcheck(A, "SC2", G0)
    if TS >= 2: A("v_writelane_b32 v25, s99, 57\nv_writelane_b32 v25, s35, 58")
    fredo(A, "SR", 4, 99, 82, w2loads(0, 5))
    if SX: fredo(A, "SR5", 5, 35, 82, w2loads(5, 5+SX))

def gen_ph2(A):
    A.L.append(";@SEG PH2"); A.label("PH2")
    A.reset()
    stamp(A, 6)
    for i in range(3): A.its(hload(i))
    g_r = []
    for nb in range(5):
        for w in range(4):
            r = ACCG + (nb*4+w)*4; g_r.append(("ds", ("gr", nb), f"ds_read_b128 v[{r}:{r+3}], v{23+(w>>1)} offset:{(w&1)*20480 + nb*1024}"))
    g_s = []; g_t = []
    for nb in range(5):
        r = ACCG + nb*16; g_s.append(("wds", [("gr", nb)]))
        for e in range(4): g_s += [f"v_add_f32 v{r+e}, v{r+e}, v{r+4+e}", f"v_add_f32 v{r+8+e}, v{r+8+e}, v{r+12+e}"]
        for e in range(4): g_s.append(f"v_add_f32 v{r+e}, v{r+e}, v{r+8+e}")
        g_t.append(("vm", "xs", f"buffer_store_dwordx4 v[{r}:{r+3}], v{28+(nb>>2)}, s[8:11], s4 offen offset:{(nb&3)*1024} sc1"))
    g_f = [("wvm", ["xs"]), ("vm", None, "buffer_store_dword v31, v8, s[8:11], s6 offen sc1")]
    fin_r = [(f"v_accvgpr_read_b32 v{ACCG + (k>>2)*16 + 8 + (k&3)}, {PARK[k]}" if PARK[k][0] == "a" else f"v_mov_b32 v{ACCG + (k>>2)*16 + 8 + (k&3)}, {PARK[k]}") for k in range(20)]
    GF = int(OPT.get("gf", 12))
    extra = {**{k-3: fpoll(g)[:-1] for k, g in CHK.items()}, 12: ["s_mov_b32 m0, s101"], 16: g_r + g_s[:13], 17: g_s[13:39] + g_t[:2], 18: g_s[39:52] + g_t[2:3] + g_s[52:] + g_t[3:],
             19: ["v_add_u32 v23, 81920, v23", "v_add_u32 v24, 81920, v24", "s_mov_b32 m0, s100"] + fin_r, 20: fpoll(3)[:-1]}
    first = {k-2: fpoll(g)[-1:] for k, g in CHK.items()}
    if WO:
        fin_c = [("wvm", ["fin"]), "v_and_b32 v11, 0xffff0000, v10", "v_rcp_f32 v11, v11", "v_lshlrev_b32 v10, 16, v10"]
        def rd(nb): return [("ds", ("fx", nb), f"ds_read_b64 v[{16+4*(nb&1)}:{17+4*(nb&1)}], v12 offset:{32*nb}"), ("ds", ("fx", nb), f"ds_read_b64 v[{(18, 26)[nb&1]}:{(19, 27)[nb&1]}], v14 offset:{3072+32*nb}")]
        fin_c += rd(0)
        for nb in range(5):
            if nb < 4: fin_c += rd(nb+1)
            fin_c.append(("wds", [("fx", nb)]))
            for h in range(2):
                x = 16+4*(nb&1)+h; d = (18, 26)[nb&1]+h
                fin_c += [f"v_lshlrev_b32 v2, 16, v{d}", f"v_and_b32 v{d}, 0xffff0000, v{d}", f"v_lshlrev_b32 v3, 16, v{x}", f"v_and_b32 v{x}, 0xffff0000, v{x}",
                          "v_mul_f32 v2, v2, v11", f"v_mul_f32 v{d}, v{d}, v11", "v_sub_f32 v4, v3, v10", f"v_sub_f32 v5, v{x}, v10", "v_fmac_f32 v3, v4, v2", f"v_fmac_f32 v{x}, v5, v{d}"]
                for e, src in ((0, 3), (1, x)):
                    p = PARK[4*nb+2*h+e]; fin_c.append(f"v_accvgpr_write_b32 {p}, v{src}" if p[0] == "a" else f"v_mov_b32 {p}, v{src}")
        wl = chop(w2loads(12-NH, 12), 4) if NH else [[]]*4
        for k in range(4): extra[k] = extra.get(k, []) + wl[k]
        extra[5] = extra.get(5, []) + fin_loads()
        for k, L in enumerate(chop(fin_c, 5)): extra[8+k] = L + extra.get(8+k, [])
    pend = []
    for g in GROUPS:
        n0 = g[0]; hf = STEPS[n0][0]
        tags = [("h", n) for n in g] + [("w2", STEPS[n][1]) for n in g if ("w2", STEPS[n][1]) in A.tv]
        if n0 == 16: A.sync(tags)
        else: A.it(("wvm", tags))
        if TS >= 2 and n0 not in (15, 17, 18): A("s_waitcnt lgkmcnt(0)")
        if TS >= 2:
            if n0: A(f"v_writelane_b32 v25, s88, {GROUPS.index(g)-1}")
            A("s_memtime s[88:89]")
        if n0 in CHK: fcheck(A, f"CK{n0}", CHK[n0])
        mf = []; wr = [[] for _ in range(20*len(g))]
        for k, x in enumerate(pend): wr[k*18//len(pend)].append(x)
        pend = []
        for nb in range(5):
            for tb in (range(4) if nb % 2 == 0 or not SN or len(g) > 1 else range(3, -1, -1)):
                c = acc2(hf, nb, tb)
                for n in g:
                    w = w2reg(STEPS[n][1]) + 4*nb
                    mf.append(f"{MF} v[{c}:{c+3}], {Hr(n,tb)}, a[{w}:{w+3}], " + (f"v[{c}:{c+3}]" if STEPS[n][1] != STEPS[0][1] else "0"))
                if len(g) > 1:
                    for e in range(4):
                        pos = (11*(4*(nb*4+tb)+e))//16 + 6 if len(g) == 2 else 3*(nb*4+tb) + 6 + (3*e)//4
                        it = ("ds", None, f"ds_write_addtid_b32 v{c+e} offset:{(tb*5+nb)*1024+256*e}")
                        (wr[pos] if pos < len(wr) else pend).append(it)
        if n0 == 21: wr[GF] += g_f; wr[56] += fpoll(3)[-1:]
        A.weave(mf, [(first.get(n0, []) + sum((hload(n) for n in ISSUE.get(n0, ())), []), 0, len(mf) - 8), (extra.get(n0, []), 1, len(mf) - 1)], fixed=wr)
    A.its(pend)
    if TS >= 2:
        A(f"s_waitcnt lgkmcnt(0)\nv_writelane_b32 v25, s88, {len(GROUPS)-1}\ns_memtime s[88:89]"); tockdump(A, len(GROUPS), 25, 0x80000)
    stamp(A, 7)
    A("s_waitcnt lgkmcnt(0)\ns_barrier")
    for nb in range(5):
        for w in range(4):
            r = ACCK + (nb*4+w)*4
            A(f"ds_read_b128 v[{r}:{r+3}], v{23+(w>>1)} offset:{(w&1)*20480 + nb*1024}")
    fcheck(A, "C3", 3)
    for nb in range(5):
        r = ACCG + nb*16 + 12
        A.it(("vm", ("xl", nb), f"buffer_load_dwordx4 v[{r}:{r+3}], v{28+(nb>>2)}, s[8:11], s5 offen offset:{(nb&3)*1024} sc1"))
    A("s_waitcnt lgkmcnt(0)")
    for nb in range(5):
        r = ACCK + nb*16; o = ACCG + nb*16 + 8
        for k in (0, 2): A(pk("add", r+k, r+k, r+4+k)); A(pk("add", r+8+k, r+8+k, r+12+k))
        for k in (0, 2): A(pk("add", o+k, o+k, r+k))
        for k in (0, 2): A(pk("add", o+k, o+k, r+8+k))
    for nb in range(5):
        o = ACCG + nb*16 + 8
        A.it(("wvm", [("xl", nb)]))
        for k in (0, 2): A(pk("add", o+k, o+k, o+4+k))
        A.it(("vm", None, f"buffer_store_dwordx4 v[{o}:{o+3}], v13, s[20:23], 0 offen offset:{64*nb} " + OPT.get("of", "").replace("+", " ")))
    if TS:
        A("s_add_u32 s94, s94, 0x10000"); stamp(A, 0)
    WB = int(OPT.get("wb", 0))
    if WB:
        A(f"s_and_b32 s32, s95, {WB}\ns_cmp_lg_u32 s32, {int(OPT.get('wbv', 0))}\ns_cbranch_scc1 K_end\ns_waitcnt vmcnt(0)\nbuffer_wbl2 sc1")

def gen():
    A = E()
    A("s_cmp_ge_u32 s2, 256\ns_cbranch_scc1 K_end")
    if TS >= 2: A("s_memtime s[4:5]")
    A("s_load_dwordx16 s[36:51], s[0:1], 0\ns_load_dwordx16 s[52:67], s[0:1], 64")
    A("v_and_b32 v1, 63, v0\nv_lshrrev_b32 v2, 6, v0\ns_and_b32 s32, s2, 7\nv_readfirstlane_b32 s3, v2")
    A("s_lshr_b32 s33, s2, 3\ns_lshr_b32 s34, s32, 2\ns_and_b32 s35, s32, 3\ns_and_b32 s71, s3, 1\ns_lshr_b32 s72, s3, 1")
    if int(OPT.get("ipf", 1)):
        A("s_getpc_b64 s[6:7]"); A.label("K_pc")
        A("s_lshl2_add_u32 s76, s33, s3\ns_and_b32 s76, s76, 15\ns_lshl_b32 s76, s76, 13\nv_lshlrev_b32 v2, 7, v1\nv_add_u32 v2, s76, v2\nv_min_u32 v2, K_end-K_pc, v2")
        A("s_cmp_lt_u32 s33, 28\ns_cbranch_scc1 K_nopf\nglobal_load_dword v64, v2, s[6:7]"); A.label("K_nopf")
    A("s_lshl2_add_u32 s95, s2, s3\nv_lshrrev_b32 v62, 5, v1\nv_mul_u32_u24 v62, 1280, v62\nv_and_b32 v63, 31, v1\nv_lshl_add_u32 v62, v63, 3, v62")
    if TS:
        A("s_lshl2_add_u32 s94, s2, s3\ns_lshl_b32 s94, s94, 6\ns_waitcnt lgkmcnt(0)"); stamp(A, 0)
    A("s_lshl_b32 s31, s32, 5\ns_add_u32 s31, s31, s33\ns_lshl2_add_u32 s75, s31, s3\ns_mul_i32 s75, s75, 2560")
    UNEV = int(OPT.get("unev", 1))
    if UNEV: A("s_cmp_eq_u32 s35, 3\ns_cselect_b32 s76, 16, 8\ns_cmp_lt_u32 s33, s76\ns_cbranch_scc1 K_ssm\ns_sub_u32 s33, s33, s76\ns_add_u32 s33, s33, 10")
    else: A("s_cmp_lt_u32 s33, 10\ns_cbranch_scc1 K_ssm")
    A(f"s_mul_i32 s35, s35, {24 if UNEV else 22}\ns_add_u32 s33, s33, s35\ns_sub_u32 s33, s33, 10\ns_and_b32 s68, s33, 7\ns_lshl_b32 s34, s34, 3\ns_add_u32 s68, s68, s34\ns_lshr_b32 s69, s33, 3")
    gen_ffn(A)
    A.L.append(";@SEG SPRO"); A.label("K_ssm")
    A(f"s_mul_i32 s35, s35, {8 if UNEV else 10}\ns_add_u32 s33, s33, s35\ns_and_b32 s68, s33, 3\ns_lshl2_add_u32 s68, s34, s68\ns_lshr_b32 s69, s33, 2")
    gen_ssm(A)
    gen_ph2(A)
    A.label("K_end"); A("s_endpgm")
    return A.L

def hflags(L):
    f = OPT.get("hf")
    if not f: return L
    return [l.replace(" sc1", " " + f.replace("+", " ")) if l.startswith("buffer_store_dwordx4 v[") and re.search(r"s(84|85|86|78) offen", l) else l for l in L]
def nulls(L):
    n = OPT.get("null", "")
    o = []
    for l in L:
        if l.startswith("buffer_load"):
            if ("c" in n and "s[24:27], s77" in l) or ("w" in n and "s[20:23], s77" in l) or ("b" in n and "s[24:27], s97" in l) or ("s" in n and l.startswith("buffer_load_dwordx2") and "s[16:19]" in l):
                o.append("s_mov_b32 s7, 0x7f000000"); l = re.sub(r"\], s\d+ offen", "], s7 offen", l)
        o.append(l)
    return o
def fin(L):
    L = nulls(hflags(L))
    seg = {"E": []}; cur = "E"
    for l in L:
        if l.startswith(";@SEG"): cur = l.split()[1]; seg[cur] = []
        else: seg[cur].append(l)
    def dispatch(name, chains, ret):
        o = []
        for w in range(3): o += [f"s_cmp_eq_u32 s3, {w}", f"s_cbranch_scc1 {chains[w]}"]
        return o + [f"s_branch {chains[3]}"]
    TCH = int(OPT.get("tch", 1))
    order = ["FA", "FB", "EP", "SSM", "PH2"]
    def expand(lines, heads):
        o = []
        for l in lines:
            if not l.startswith(";@TOUCH"): o.append(l); continue
            if not TCH: continue
            n = l.split()[1]
            o.append("s_mov_b64 exec, 0")
            if n in ("FA", "FB"): o += dispatch(n, heads[n], None)
            elif n == "S": o += dispatch(n, heads["SSM"], None)
            else: o += [f"s_mov_b32 s92, {n[1]}"] + dispatch(n, heads["PH2" if n == "P1" else "EP"], None)
            o.append(f"TR_{n}:")
            o.append("s_mov_b64 exec, -1")
        return o
    if TCH: seg["SPRO"] += ["TR_P:", "s_cmp_eq_u32 s92, 0", "s_cbranch_scc1 TR_P0", "s_cmp_eq_u32 s92, 2", "s_cbranch_scc1 TR_P2", "s_branch TR_P1"]
    dummy = {k: ["K_end"]*4 for k in order}
    body = []
    for k in order: body += [(k, l) for l in expand(seg[k], dummy)]
    pro = expand(seg["E"] + seg["FBP"] + seg["SPRO"], dummy)
    sz = sizes(pro + ["K_pad:"] + [l for _, l in body]); npro = sum(1 for l in pro if not (l.endswith(":") or l.startswith((".", ";"))))
    print("prologue bytes", sum(sz[:npro])); sz = sz[npro:]
    stubs = {k: [] for k in order}; pos = {}; addr = 0; page = -1; ii = 0; seen = set()
    for i, (k, l) in enumerate(body):
        if l.endswith(":") or l.startswith((".", ";")): continue
        if TCH and (addr >> 12 != page or k not in seen):
            page = addr >> 12; seen.add(k); name = f"TS_{len(pos)}"; pos[i] = name; stubs[k].append(name); addr += 4
        addr += sz[ii]; ii += 1
    print({k: len(v) for k, v in stubs.items()}, "bytes", addr)
    nxt = {}; heads = {}
    def chains(lst, tails):
        h = []
        for w in range(4):
            c = lst[w::4]
            for a, b in zip(c, c[1:] + [tails[w]]): nxt[a] = b
            h.append(c[0] if c else tails[w])
        return h
    heads["FA"] = chains(stubs["FA"], ["TR_FA"]*4); heads["FB"] = chains(stubs["FB"], ["TR_FB"]*4)
    heads["SSM"] = chains(stubs["SSM"], ["TR_S"]*4); heads["PH2"] = chains(stubs["PH2"], ["TR_P"]*4); heads["EP"] = chains(stubs["EP"], heads["PH2"][::-1])
    body2 = []
    for k in order: body2 += expand(seg[k], heads)
    out = expand(seg["E"] + seg["FBP"] + seg["SPRO"], heads) + [".p2align 12"]
    for i, l in enumerate(body2):
        if i in pos: out += [pos[i] + ":", f"s_cbranch_execz {nxt[pos[i]]}"]
        out.append(l)
    return out
def main():
    ref = open(f"cdna_kernels/{NAME}.s.ref").read().split("\n")
    hdr = [l for l in ref if l.startswith(";") and "@launch" not in l and "Override" not in l and "grid=ceil" not in l]
    out = "\n".join(hdr) + "\n"
    extra = ""
    if "spin" in OPT:
        op, slot, who = (OPT["spin"].split(",") + ["A"])[:3]; slot = int(slot); ks = {"A": range(16), "S": range(4), "F": range(8, 16), "L": range(15, 16), "M": range(8, 9)}[who]
        off = WS_TS + (slot*8 if slot < 8 else 0x10000)
        out += f"; @launch kernel={NAME}_kernel grid=(256,1,1) block=(256,1,1) lds=163840\n; @launch kernel=spin_kernel grid=(1,1,1) block=(64,1,1) lds=0\n"
        L = ["s_load_dwordx2 s[4:5], s[0:1], 120", "s_waitcnt lgkmcnt(0)", f"s_add_u32 s4, s4, {off}", "s_addc_u32 s5, s5, 0", "v_lshlrev_b32 v1, 6, v0"]
        for k in range(16): L += [f"v_add_u32 v2, {4096*ks[k % len(ks)]}, v1", f"global_load_dword v{4+k}, v2, s[4:5]"]
        L += ["s_waitcnt vmcnt(0)"] + [f"v_{op}_u32 v4, v4, v{4+k}" for k in range(1, 16)] + ["s_nop 1", "v_readlane_b32 s6, v4, 0"]
        for k in range(1, 64): L += [f"v_readlane_b32 s7, v4, {k}", "s_nop 0", f"s_{op}_u32 s6, s6, s7"]
        L += ["s_mov_b32 s12, 0x100000", "SP_l2:", "s_memrealtime s[8:9]", "s_waitcnt lgkmcnt(0)", "s_sub_u32 s10, s8, s6", "s_sub_u32 s12, s12, 1", "s_cbranch_scc1 SP_e", "s_cmp_lt_u32 s10, 8000", "s_cbranch_scc1 SP_l2", "SP_e:", "s_endpgm"]
        extra = kernel_text("spin_kernel", L) + kd("spin_kernel", 32, 0, 32)
    else: out += "; @launch grid=(256,1,1) block=(256,1,1) lds=163840\n"
    out += '.amdgcn_target "amdgcn-amd-amdhsa--gfx950"\n'
    out += kernel_text(NAME + "_kernel", fin(hazard_pass(gen(), "v" in OPT))) + kd(NAME + "_kernel", 256, 256, 102) + extra
    open(sys.argv[1], "w").write(out)
main()
```

```python
import sys
from asmlib import *
NAME = "parallel_sum__ssm_conv_s5__glu_gated_swiglu__prompt"
OPT = dict(u="F", ef="7", sb="10", s1="12", fe="1", cw="3", pq="2", sx="3", ck="15", cf="5", c3="5", bt="2", bs="3", bn="3", bf="1"); OPT.update(a.split("=") for a in sys.argv[2:])
TS = int(OPT.get("ts", 0)); SN = int(OPT.get("sn", 1))
for k_ in [k for k, v in OPT.items() if v == "x"]: del OPT[k_]
WS_AGG = 0; WS_EPOCH = 0x28000; WS_STAT = 0x30000; WS_FLG = 0x40000; WS_XF = 0x80000; WS_CF = 0xA0000; WS_WF = 0xB0000; WS_CSB = 0xC0000; WS_CS = 0xD0000
HS = int(OPT.get("hs", 4096)); WS_W2P = 0x100000; WS_XCH = 0x500000; WS_H = 0xA00000; WS_END = 0x1A00000; WS_TS = 0x1A00000; CS_HALF = 27648
SZ_X = 2048*640*2; SZ_B = 640*640*2; SZ_W = 640*1728*2; SZ_OUT = 2048*640*4
OOB = 0x7F000000
P = dict(x=36, lre=38, lim=40, bre=42, bim=44, cre=46, cim=48, ldt=50, dsk=52, w1=56, w3=58, w2=60, out=62, dbg=64, ws=66)
MF = "v_mfma_f32_16x16x32_bf16"

class E(Asm):
    def __init__(self): super().__init__(); self.reset()
    def reset(self): self.nv = 0; self.tv = {}; self.dv = 0; self.nd = 0; self.td = {}; self.dd = 0
    def vmw(self, tags):
        last = max(self.tv[t] for t in tags)
        if last <= self.dv: return None
        self.dv = last; return min(63, self.nv - last)
    def dsw(self, tags):
        last = max(self.td[t] for t in tags)
        if last <= self.dd: return None
        n = min(15, self.nd - last); self.dd = self.nd - n; return n
    def it(self, x):
        if isinstance(x, str): self(x)
        elif x[0] == "vm": self.nv += 1; self.tv[x[1]] = self.nv; self(x[2])
        elif x[0] == "ds": self.nd += 1; self.td[x[1]] = self.nd; self(x[2])
        elif x[0] == "wvm":
            n = self.vmw(x[1])
            if n is not None: self(f"s_waitcnt vmcnt({n})")
        elif x[0] == "wds":
            n = self.dsw(x[1])
            if n is not None: self(f"s_waitcnt lgkmcnt({n})")
        elif x[0] == "fn": x[1]()
    def its(self, L):
        for x in L: self.it(x)
    def sync(self, vtags, barrier=True):
        n = self.vmw(vtags) if vtags else None
        self.dd = self.nd
        self((f"s_waitcnt vmcnt({n}) lgkmcnt(0)" if n is not None else "s_waitcnt lgkmcnt(0)"))
        if barrier: self("s_barrier")
    def weave(self, mf, streams, fixed=None, cap=2):
        q = []
        for it, lo, hi in streams:
            if it: q.append([(lo + k*(hi-lo)//len(it), x) for k, x in enumerate(it)])
        def cost(x):
            if isinstance(x, str): return sum(2 if l.startswith(TRANS) else (0 if l.startswith("v_mfma") else 1) for l in x.split("\n"))
            return {"vm": 2, "ds": 1}.get(x[0], 0.5)
        debt = 0
        for i, m in enumerate(mf):
            self(m); room = cap - debt
            for x in (fixed[i] if fixed else []): self.it(x); room -= cost(x)
            left = sum(cost(x) for st in q for _, x in st); gaps = len(mf) - i
            room = max(room, left - cap*(gaps-1))
            if left > cap*gaps: room = max(cap, left/gaps)
            while room > 0:
                c = [st for st in q if st and st[0][0] <= i]
                if not c: break
                if int(OPT.get("wv", 1)) and left <= cap*gaps - 2:
                    isvm = lambda t: not isinstance(t[0][1], str) and t[0][1][0] == "vm"
                    if room >= cap and any(isvm(t) for t in c): c = [t for t in c if isvm(t)]
                    else:
                        c = [t for t in c if not isvm(t)]
                        if not c: break
                st = min(c, key=lambda t: t[0][0]); x = st.pop(0)[1]; self.it(x); room -= cost(x)
            debt = max(0, -room)
        for st in q:
            for _, x in st: self.it(x)
def lines(s): return [l.strip() for l in s.split("\n") if l.strip()]
def glue(L):
    out = []; on = False
    for x in L:
        if isinstance(x, str) and on and x.startswith(("s_cselect", "s_mov_b32")): out[-1] += "\n" + x; continue
        on = isinstance(x, str) and x.startswith(("s_cmp", "s_bitcmp"))
        out.append(x)
    return out
def cap(f):
    B = Asm(); f(B); return glue(B.L)
def chop(L, n):
    q = (len(L) + n - 1)//n
    return [L[k*q:(k+1)*q] for k in range(n)]
FE = int(OPT.get("fe", 2)); FF = int(OPT.get("ff", 0)); SE = int(OPT.get("se", 0))
def srd(A, d, lo, size):
    A(f"s_mov_b32 s{d}, s{lo}\ns_mov_b32 s{d+1}, s{lo+1}\ns_mov_b32 s{d+2}, {hex(size)}\ns_mov_b32 s{d+3}, 0x20000")
def srd_sel(A, d, lo0, lo1, size):
    A(f"s_cselect_b32 s{d}, s{lo0}, s{lo1}\ns_cselect_b32 s{d+1}, s{lo0+1}, s{lo1+1}\ns_mov_b32 s{d+2}, {hex(size)}\ns_mov_b32 s{d+3}, 0x20000")
def stamp(A, slot):
    if not TS: return
    A(f"s_memrealtime s[90:91]\ns_memtime s[88:89]\ns_waitcnt lgkmcnt(0)\ns_add_u32 s92, s94, {WS_TS + slot*8}")
    A.dd = A.nd
    A(f"v_mov_b32 v4, s90\nv_mov_b32 v5, s88\nv_mov_b32 v2, s92"); A.it(("vm", None, "global_store_dwordx2 v2, v[4:5], s[66:67]"))
def tick(A, idx, reg):
    if TS < 2: return
    if idx: A(f"v_writelane_b32 v{reg}, s88, {idx-1}")
    A("s_memtime s[88:89]")
def ptick(A, idx, reg):
    if TS < 2: return
    A(f"s_memtime s[88:89]\ns_waitcnt lgkmcnt(0)\nv_writelane_b32 v{reg}, s88, {idx}")
def tockdump(A, n, reg, area):
    if TS < 2: return
    A(f"s_waitcnt lgkmcnt(0)\nv_writelane_b32 v{reg}, s88, {n}\ns_lshl_b32 s92, s95, 8\ns_add_u32 s92, s92, {WS_TS + area}\nv_lshlrev_b32 v5, 2, v1\nv_add_u32 v5, s92, v5")
    A.it(("vm", None, f"global_store_dword v5, v{reg}, s[66:67]"))
def bc(n, which, hi=False):
    lo = [0]*n; h = [1]*n
    for w in which:
        if isinstance(w, tuple): lo[w[0]] = 1
        else: h[w] = 0
    s = ""
    if any(lo): s += " op_sel:[" + ",".join(map(str, lo)) + "]"
    s += " op_sel_hi:[" + ",".join(map(str, h)) + "]"
    return s
def B(r):
    return f"v[{r & ~1}:{(r & ~1)+1}]", (r & 1)
def pk(op, d, *src, neg=()):
    t = []; w = []
    src = list(src)
    if isinstance(src[1], tuple) and src[1][1] & 1:
        src[0], src[1] = src[1], src[0]; neg = tuple({0: 1, 1: 0}.get(n, n) for n in neg)
    for i, s in enumerate(src):
        if isinstance(s, tuple):
            x, hi = B(s[1]); t.append(x); w.append((i,) if hi else i)
        else:
            assert s % 2 == 0; t.append(f"v[{s}:{s+1}]")
    assert d % 2 == 0
    m = bc(len(src), w)
    if neg:
        nn = ",".join("1" if i in neg else "0" for i in range(len(src))); m += f" neg_lo:[{nn}] neg_hi:[{nn}]"
    return f"v_pk_{op}_f32 v[{d}:{d+1}], " + ", ".join(t) + m

def stats_job(R, scr):
    L0, U, T = R, R+10, R+30
    ld = [f"v_mov_b32 v9, {WS_EPOCH}", ("vm", "st", "global_load_dword v9, v9, s[66:67] sc1")]
    for i in range(5): ld.append(("vm", "st", f"buffer_load_dwordx2 v[{L0+2*i}:{L0+2*i+1}], v{T}, s[16:19], s75 offen offset:{256*i}"))
    if int(OPT.get("el", 0)): ld = ld[2:] + ld[:2]
    if int(OPT.get("pg", 0)):
        ld += lines("s_cmp_eq_u32 s3, 1\ns_cselect_b64 s[4:5], s[46:47], s[60:61]\ns_cselect_b32 s6, 0, 0x200000\ns_cmp_eq_u32 s3, 2\ns_cselect_b64 s[4:5], s[48:49], s[4:5]\ns_cselect_b32 s6, 0, s6\ns_cmp_eq_u32 s3, 3\ns_cselect_b64 s[4:5], s[66:67], s[4:5]\ns_cselect_b32 s6, 0x1800000, s6")
        ld += ["v_lshlrev_b32 v66, 21, v1", "v_min_u32 v66, s6, v66", ("vm", None, "global_load_dword v66, v66, s[4:5]")]
    c = [("wvm", ["st"])]
    for i in range(10): c += [f"v_lshlrev_b32 v{U+2*i}, 16, v{L0+i}", f"v_and_b32 v{U+2*i+1}, 0xffff0000, v{L0+i}"]
    def red(v, t):
        o = [f"v_add_f32 v{v}, v{v}, v{v+1}"]
        for r in (8, 4, 2, 1): o.append(f"v_add_f32_dpp v{v}, v{v}, v{v} row_ror:{r} row_mask:0xf bank_mask:0xf")
        o += [f"v_mov_b32 v{t}, v{v}", f"v_permlane16_swap_b32 v{v}, v{t}", f"v_add_f32 v{v}, v{v}, v{t}", f"v_mul_f32 v{v}, 0x3acccccd, v{v}"]
        return o
    c.append(pk("add", T, U, U+2))
    for i in range(2, 10): c.append(pk("add", T, T, U+2*i))
    c += red(T, T+1)
    for i in range(10): c.append(pk("add", U+2*i, U+2*i, ("b", T), neg=(1,)))
    c.append(pk("mul", T+2, U, U))
    for i in range(1, 10): c.append(pk("fma", T+2, U+2*i, U+2*i, T+2))
    c += red(T+2, T+3)
    c += lines(f"""v_cvt_pk_bf16_f32 v{T}, v{T}, v{T+2}
v_and_b32 v{T+2}, 0xffff0000, v{T}
v_add_f32 v{T+2}, 0x3727c5ac, v{T+2}
v_cvt_pk_bf16_f32 v{T+2}, v{T+2}, v{T+2}
v_and_b32 v{T+2}, 0xffff0000, v{T+2}
v_sqrt_f32 v{T+2}, v{T+2}
v_and_b32 v{T}, 0xffff, v{T}
v_cvt_pk_bf16_f32 v{T+2}, v{T+2}, v{T+2}
v_readfirstlane_b32 s96, v9
v_and_b32 v{T+2}, 0xffff0000, v{T+2}
v_or_b32 v{T}, v{T+2}, v{T}
v_lshrrev_b32 v{T+1}, 5, v0
v_lshlrev_b32 v{T+1}, 2, v{T+1}
v_add_u32 v{T+1}, {scr}, v{T+1}
s_add_u32 s96, s96, 1""")
    c.append(("ds", None, f"ds_write_b32 v{T+1}, v{T}"))
    f = lines(f"v_and_b32 v{T+1}, 7, v1\nv_lshlrev_b32 v{T+1}, 2, v{T+1}\nv_add_u32 v{T+1}, {scr}, v{T+1}") + [("ds", "stf", f"ds_read_b32 v{T}, v{T+1}")]
    f += lines(f"v_lshlrev_b32 v{T+2}, 21, v0\nv_and_b32 v{T+2}, 0xfe000000, v{T+2}\nv_lshl_add_u32 v{T+2}, v1, 3, v{T+2}\ns_lshl_b32 s75, s70, 0\ns_lshl_b32 s75, s60, 7\ns_add_u32 s75, s75, {WS_STAT}".replace("s_lshl_b32 s75, s70, 0\n", "").replace("s60", "s31"))
    f += [("wds", ["stf"]), f"v_mov_b32 v{T+1}, s96", ("vm", None, f"buffer_store_dwordx2 v[{T}:{T+1}], v{T+2}, s[8:11], s75 offen sc1")]
    return ld, c, f
def tagtest(tags, exp="s96"):
    L = [f"v_xor_b32 v4, {exp}, v{tags[0]}"]
    for t in tags[1:]: L += [f"v_xor_b32 v5, {exp}, v{t}", "v_or_b32 v4, v4, v5"]
    return L + ["v_cmp_ne_u32 vcc, 0, v4"]
def gcheck(A, name, loads, tags):
    A(f"s_cbranch_vccz {name}_ok\ns_mov_b32 s7, 0x40000")
    A.label(f"{name}_l")
    for x in loads: A(x if isinstance(x, str) else x[2])
    A("s_waitcnt vmcnt(0)"); A.ext(tagtest(tags))
    A(f"s_sub_u32 s7, s7, 1\ns_cbranch_scc1 {name}_ok\ns_cbranch_vccnz {name}_l")
    A.label(f"{name}_ok")
WO = int(OPT.get("wo", 0)); NH = int(OPT.get("nh", 2))
U = [7, 8, 9, 10, 11, 0, 1, 2, 3, 4, 5, 6]
def w2reg(i):
    p = U.index(i)
    return 116 + 20*p if p < 7 else (96 if p == 7 else 20*(p-8))
def w2load(p, base=82):
    i = U[p]
    L = [f"s_add_u32 s79, s{base}, {i*5120}"]
    if i == 2: L += [f"s_cmp_eq_u32 s3, 3\ns_cselect_b32 s79, {hex(OOB)}, s79"]
    for nb in range(5):
        r = w2reg(i) + 4*nb
        L.append(("vm", ("w2", i), f"buffer_load_dwordx4 a[{r}:{r+3}], v{28+(nb>>2)}, s[8:11], s79 offen offset:{(nb&3)*1024} sc1"))
    return L
def w2loads(a, b, base=82): return sum((w2load(p, base) for p in range(a, b)), [])
def spread(A, main, extra, lo=0, hi=None):
    sl = interleave(main, extra, lo, hi) if extra else [[] for _ in main]
    for i, x in enumerate(main):
        A.it(x)
        for y in sl[i]: A.it(y)
def sig_early(A, e, d, t):
    A(f"s_cmp_ge_u32 s{e}, 11\ns_cselect_b32 s{t}, 11, 0\ns_cselect_b32 s{d}, 48, 0\ns_sub_u32 s{t}, s{e}, s{t}\ns_add_u32 s{d}, s{d}, s{t}\ns_mul_i32 s{t}, s{t}, 43\ns_lshr_b32 s{t}, s{t}, 7\ns_mul_i32 s{t}, s{t}, 9\ns_add_u32 s{d}, s{d}, s{t}")
def sig_late(A, l, t):
    A(f"s_lshr_b32 s{t}, s{l}, 2\ns_lshl_b32 s{t}, s{t}, 3\ns_add_u32 s{l}, s{l}, s{t}\ns_add_u32 s{l}, s{l}, 3")
def sig_ssm(A, k, t):
    A(f"s_mul_i32 s{t}, s{k}, 52429\ns_lshr_b32 s{t}, s{t}, 18\ns_mul_i32 s{t}, s{t}, 7\ns_add_u32 s{k}, s{k}, s{t}\ns_add_u32 s{k}, s{k}, 7")
def tlb_touch():
    T = int(OPT.get("tlb", 0))
    if not T: return []
    return lines(f"v_mul_u32_u24 v6, {hex(T*1024)}, v0\nv_min_u32 v7, {SZ_OUT-4}, v6") + [("vm", None, "buffer_load_dword v6, v6, s[8:11], 0 offen sc1"), ("vm", None, "global_load_dword v7, v7, s[62:63]")]
ORD = OPT.get("ord", "A")
def w2warm():
    return lines("s_lshr_b32 s75, s2, 6\ns_mul_i32 s75, s75, 6400\ns_add_u32 s75, s75, s82\ns_add_u32 s75, s75, 10240\nv_min_u32 v6, 49, v1\nv_lshlrev_b32 v6, 7, v6") + [("vm", None, "buffer_load_dword v7, v6, s[8:11], s75 offen sc1")]
def early_setup(A):
    srd(A, 8, P["ws"], WS_END)
    A("v_lshlrev_b32 v28, 4, v1\nv_add_u32 v29, 4096, v28")
    A("v_lshlrev_b32 v8, 20, v1\nv_and_b32 v8, 0xfe000000, v8\nv_lshl_add_u32 v8, v1, 2, v8")
def ph2_setup(A):
    A("s_and_b32 s28, s2, 1\ns_bfe_u32 s32, s2, 0x20001\ns_lshr_b32 s33, s2, 6\ns_lshl2_add_u32 s80, s32, s33\ns_bfe_u32 s81, s2, 0x30003\ns_lshl2_add_u32 s29, s28, s3")
    A(f"s_mul_i32 s32, s29, 12\ns_mul_i32 s33, s81, 96\ns_add_u32 s33, s33, s32\ns_mul_i32 s82, s33, 5120\ns_add_u32 s82, s82, {WS_W2P}")
    A(f"s_lshl1_add_u32 s33, s80, s28\ns_mul_i32 s34, s33, 96\ns_add_u32 s34, s34, s32\ns_mul_i32 s83, s34, {HS}\ns_add_u32 s83, s83, {WS_H}")
    A(f"s_xor_b32 s33, s33, 1\ns_mul_i32 s34, s33, 96\ns_add_u32 s34, s34, s32\ns_mul_i32 s30, s34, {HS}\ns_add_u32 s30, s30, {WS_H}")
    A(f"s_lshl_b32 s93, s80, 14\ns_add_u32 s93, s93, {WS_FLG}")
ACCG = 96; ACCK = 176
UF = OPT.get("u", "S") == "F"
if UF:
    STEPS = [("G",i) for i in range(3)] + [("K",i) for i in range(3)] + [("G",i) for i in range(3, 12)] + [("K",i) for i in range(3, 12)]
    AP = [[216, 220, 224, 228], [232, 236, 240, 244], [96, 100, 104, 108]]; G0, CHK = 0, {3: 1, 7: 2}
else:
    STEPS = [("G",i) for i in U[:5]] + [("K",i) for i in U[:3]] + [("G",i) for i in U[5:]] + [("K",i) for i in U[3:]]
    AP = [[b+4*t for t in range(4)] for b in (112, 128, 144)]; G0, CHK = 2, {5: 0, 8: 1}
POOL = [[f"v{b+4*t}" for t in range(4)] for b in (32, 48, 64, 80)] + [[f"a{r}" for r in q] for q in AP]
HBUF = [0,1,2,3,0,1,2,3,0,1,2,4,5,6,3,0,1,2,4,5,6,3,0,1]
def Hr(n, tb):
    b = POOL[HBUF[n]][tb]; r = int(b[1:]); return f"{b[0]}[{r}:{r+3}]"
FN = {0: 6, 1: 8, 2: 3, 3: 1, 4: 5}
def fbase(g):
    if g == 0: return lines("s_mul_i32 s31, s28, 22\ns_mul_i32 s32, s3, 6\ns_add_u32 s31, s31, s32\ns_min_u32 s31, s31, 38\ns_lshl_b32 s31, s31, 7\ns_add_u32 s31, s31, s93")
    if g == 1: return lines("s_mul_i32 s31, s29, 172\ns_lshr_b32 s31, s31, 7\ns_lshl_b32 s31, s31, 9\ns_add_u32 s31, s31, s93\ns_add_u32 s31, s31, 5632")
    if g == 2: return lines("s_mul_i32 s31, s29, 5\ns_lshr_b32 s31, s31, 1\ns_lshl_b32 s31, s31, 7\ns_add_u32 s31, s31, s93\ns_add_u32 s31, s31, 11264")
    if g == 3: return lines(f"s_xor_b32 s31, s95, 4\ns_lshl_b32 s31, s31, 7\ns_add_u32 s31, s31, {WS_XF}")
    if g == 4: return lines(f"s_lshl_b32 s31, s81, 3\ns_add_u32 s31, s31, s29\ns_mul_i32 s31, s31, 640\ns_add_u32 s31, s31, {WS_CF}")
    return lines(f"s_mul_i32 s31, s29, 7680\ns_add_u32 s31, s31, {WS_WF}\ns_mul_i32 s32, s81, 5\ns_cmp_eq_u32 s3, 3\ns_cselect_b32 s33, 2, 63")
def faddr(g):
    if g < 5: return [f"v_min_u32 v9, {FN[g]-1}, v1", "v_lshlrev_b32 v9, 7, v9"]
    return lines("v_lshrrev_b32 v9, 1, v1\nv_min_u32 v9, 6, v9\nv_cmp_eq_u32 vcc, s33, v9\nv_and_b32 v2, 1, v1\nv_lshl_add_u32 v2, v2, 2, s32\nv_cndmask_b32 v9, v9, 1, vcc\nv_lshrrev_b32 v2, 3, v2\nv_mad_u32_u24 v9, v9, 5, v2\nv_lshlrev_b32 v9, 7, v9")
def fpoll(g): return glue(fbase(g)) + faddr(g) + [("vm", "fl", "buffer_load_dword v9, v9, s[8:11], s31 offen sc1")]
def fcheck(A, name, g, pre=None):
    A.it(("wvm", ["fl"]))
    A(f"v_cmp_ne_u32 vcc, s96, v9\ns_cbranch_vccz {name}_ok\ns_mov_b32 s7, 0x40000")
    if pre: A(pre)
    A.label(f"{name}_l")
    A.ext(fbase(g) + faddr(g))
    A(f"buffer_load_dword v9, v9, s[8:11], s31 offen sc1\ns_waitcnt vmcnt(0)\nv_cmp_ne_u32 vcc, s96, v9\ns_sub_u32 s7, s7, 1\ns_cbranch_scc1 {name}_ok\ns_cbranch_vccnz {name}_l")
    A.label(f"{name}_ok")
def ftest(dst, src):
    return [("wvm", ["fl"]), f"v_cmp_ne_u32 vcc, s96, v9\ns_nop 0\ns_cmp_eq_u64 vcc, 0\ns_cselect_b32 s{dst}, s{src}, {hex(OOB)}"]
def fredo(A, name, g, dst, src, loads, pre=None):
    A(f"s_cmp_eq_u32 s{dst}, s{src}\ns_cbranch_scc1 {name}_done\ns_mov_b32 s7, 0x40000")
    if pre: A(pre)
    A.label(f"{name}_l")
    A.ext(fbase(g) + faddr(g))
    A(f"buffer_load_dword v9, v9, s[8:11], s31 offen sc1\ns_waitcnt vmcnt(0)\nv_cmp_ne_u32 vcc, s96, v9\ns_sub_u32 s7, s7, 1\ns_cbranch_scc1 {name}_ok\ns_cbranch_vccnz {name}_l")
    A.label(f"{name}_ok")
    for x in loads: A(x if isinstance(x, str) else x[2])
    if name == "FR": A("s_waitcnt vmcnt(0)")
    A.label(f"{name}_done")
def hload(n, base=None):
    hf, i = STEPS[n]
    L = [f"s_add_u32 s77, s{base or (30 if hf == 'G' else 83)}, {i*HS}"]
    if i == 2: L += [f"s_cmp_eq_u32 s3, 3\ns_cselect_b32 s77, {hex(OOB)}, s77"]
    for tb in range(4): L.append(("vm", ("h", n), f"buffer_load_dwordx4 {Hr(n,tb)}, v28, s[8:11], s77 offen offset:{tb*1024} sc1"))
    return L
XS = 81920
def ph2_addr(A):
    srd(A, 24, P["dsk"], 1280); srd(A, 20, P["out"], SZ_OUT)
    A("s_lshl1_add_u32 s32, s80, s28\ns_lshl_b32 s32, s32, 6\ns_lshl_b32 s33, s3, 4\ns_add_u32 s32, s32, s33\nv_and_b32 v2, 12, v1\nv_lshrrev_b32 v3, 4, v1\nv_add_u32 v2, v2, v3\nv_mul_u32_u24 v12, 160, v2\nv_add_u32 v2, s32, v2")
    A("v_lshrrev_b32 v15, 3, v2\nv_lshlrev_b32 v15, 7, v15\nv_and_b32 v3, 7, v2\nv_lshl_add_u32 v15, v3, 3, v15\nv_mul_u32_u24 v2, 2560, v2")
    A("s_mul_i32 s98, s81, 160\ns_mul_i32 s97, s32, 1280\ns_add_u32 s97, s97, s98\ns_lshl_b32 s33, s98, 1\nv_and_b32 v3, 3, v1\nv_lshl_add_u32 v13, v3, 4, v2\nv_add_u32 v13, s33, v13")
    A(f"s_mul_i32 s101, s3, 20480\ns_add_u32 s100, s101, {XS}\nv_lshl_add_u32 v14, v3, 3, s100\nv_add_u32 v12, v12, v14\ns_movk_i32 s33, 6554")
    for i in range(3):
        A(f"v_add_u32 v2, {64*i}, v1\nv_min_u32 v2, 159, v2\nv_mul_u32_u24 v3, s33, v2\nv_lshrrev_b32 v3, 16, v3\nv_mul_u32_u24 v3, 1120, v3\nv_lshl_add_u32 v{16+i}, v2, 4, v3")
    A("v_min_u32 v19, 144, v28\ns_mul_i32 s75, s3, 5120\nv_add_u32 v23, s75, v28\nv_add_u32 v24, 40960, v23")
    A(f"s_mul_i32 s4, s95, 5120\ns_add_u32 s4, s4, {WS_XCH}\ns_xor_b32 s5, s95, 4\ns_mul_i32 s5, s5, 5120\ns_add_u32 s5, s5, {WS_XCH}\ns_lshl_b32 s6, s95, 7\ns_add_u32 s6, s6, {WS_XF}")
FST = [f"s_mov_b32 s75, {WS_STAT}", ("vm", "fin", "buffer_load_dwordx2 v[10:11], v15, s[8:11], s75 offen sc1")]
def fin_loads():
    L = []
    for i in range(3): L += [f"s_add_u32 m0, s100, {1024*i}", ("vm", "fin", f"buffer_load_dwordx4 v{16+i}, s[16:19], s97 offen lds")]
    return L + ["s_add_u32 m0, s100, 3072", ("vm", "fin", "buffer_load_dwordx4 v19, s[24:27], s98 offen lds")] + FST
PARK = [f"a{r}" for r in range(80, 96)] + ["v6", "v7", "v26", "v27"]
def fin_base(A, name):
    A.ext(tagtest([11])); gcheck(A, name, FST, [11])
    for nb in range(5):
        r = ACCG + 8*nb
        A(f"ds_read_b64 v[{r}:{r+1}], v12 offset:{32*nb}\nds_read_b64 v[{r+2}:{r+3}], v14 offset:{3072+32*nb}")
    A("v_and_b32 v16, 0xffff0000, v10\nv_rcp_f32 v16, v16\nv_lshlrev_b32 v10, 16, v10\ns_waitcnt lgkmcnt(0)")
    for k in range(10):
        r = ACCG + 8*(k >> 1); x = r + (k & 1); d = x + 2; o = r + 4 + 2*(k & 1)
        A(f"v_lshlrev_b32 v{o}, 16, v{x}\nv_and_b32 v{o+1}, 0xffff0000, v{x}\nv_lshlrev_b32 v18, 16, v{d}\nv_and_b32 v19, 0xffff0000, v{d}")
        A.ext([pk("add", 20, o, ("b", 10), neg=(1,)), pk("mul", 18, 18, ("b", 16)), pk("fma", o, 20, 18, o)])
        for e in range(2):
            p = PARK[2*k+e]; A(f"v_accvgpr_write_b32 {p}, v{o+e}" if p[0] == "a" else f"v_mov_b32 {p}, v{o+e}")
GROUPS = [[n] for n in range(13)] + [[13, 14]] + [[n] for n in range(15, 21)] + [[21, 22, 23]]
ISSUE = {0: (3,), 1: (4,), 2: (5,), 3: (6,), 4: (7,), 5: (8,), 6: (9,), 7: (10,), 8: (11, 12), 9: (13,), 10: (14,), 11: (15,), 12: (16,), 13: (17, 18, 19), 15: (20, 21), 16: (22,), 17: (23,)}
for k_, ns_ in ISSUE.items():
    for n_ in ns_:
        prev_ = [m for m in range(n_) if HBUF[m] == HBUF[n_]]
        assert (not prev_ or prev_[-1] < k_) and (HBUF[n_] < 4 or k_ > 7)
def acc2(hf, nb, tb): return (ACCG if hf == "G" else ACCK) + (tb*5+nb)*4

W_SLOT = 20480; NWS = 4; X_BASE = NWS*W_SLOT; X_SLOT = 16384; F_SCR = X_BASE + 3*X_SLOT
def gen_ffn(A):
    import copy
    A("s_mul_i32 s70, s69, 160\ns_min_u32 s70, s70, 1568")
    A("s_lshl_b32 s32, s68, 7\ns_lshl_b32 s33, s3, 5\ns_add_u32 s32, s32, s33")
    A("v_lshrrev_b32 v2, 3, v1\nv_add_u32 v2, s32, v2\nv_mul_u32_u24 v2, 1280, v2\nv_lshrrev_b32 v3, 4, v1\nv_xor_b32 v3, v3, v1\nv_and_b32 v3, 7, v3\nv_lshlrev_b32 v3, 4, v3")
    A(f"v_add_u32 v15, v2, v3\nv_xor_b32 v3, 64, v3\nv_add_u32 v16, v2, v3\nv_add_u32 v16, {8*1280-1024}, v16\nv_add_u32 v17, {16*1280}, v15\nv_add_u32 v18, {16*1280}, v16")
    A(f"s_mul_i32 s73, s3, 5120\ns_lshl_b32 s74, s3, 12\ns_add_u32 s74, s74, {X_BASE}")
    A("s_mul_i32 s32, s71, 320\ns_lshl_b32 s33, s70, 1\ns_movk_i32 s34, 3277")
    for i in range(5):
        A(f"v_add_u32 v2, s32, v1\nv_add_u32 v2, {64*i}, v2\nv_mul_u32_u24 v3, s34, v2\nv_lshrrev_b32 v3, 16, v3")
        A("v_mul_u32_u24 v4, 20, v3\nv_sub_u32 v4, v2, v4\nv_lshrrev_b32 v5, 2, v3\nv_and_b32 v5, 2, v5\nv_xor_b32 v4, v4, v5")
        A(f"v_mul_u32_u24 v3, 3456, v3\nv_lshl_add_u32 v3, v4, 4, v3\nv_add_u32 v3, s33, v3\nv_subrev_u32 v{10+i}, {1024*(i&3)}, v3")
    def dmaW(s):
        L = [f"s_add_u32 m0, s73, {(s%NWS)*W_SLOT}", f"s_mov_b32 s77, {s*32*3456}"]
        for i in range(5):
            if i == 4: L.append(f"s_add_u32 m0, s73, {(s%NWS)*W_SLOT+4096}")
            L.append(("vm", ("W", s), f"buffer_load_dwordx4 v{10+i}, s[12:15], s77 offen offset:{1024*(i&3)} lds"))
        return L
    def dmaX(u, hs=(0, 1)):
        L = []
        for h in hs:
            L += [f"s_add_u32 m0, s74, {(u%3)*X_SLOT+2048*h}", f"s_movk_i32 s78, {u*128}"]
            for i in range(2): L.append(("vm", ("X", u), f"buffer_load_dwordx4 v{15+2*h+i}, s[16:19], s78 offen offset:{1024*i} lds"))
        return L
    st_ld, st_c, st_f = stats_job(32, X_BASE + 2*X_SLOT)
    def lds_setup(A):
        early_setup(A)
        A("v_lshrrev_b32 v2, 4, v1\nv_bfe_u32 v3, v1, 2, 2\nv_lshl_add_u32 v3, v2, 3, v3\nv_mul_u32_u24 v3, 320, v3")
        A("v_and_b32 v4, 3, v1\nv_lshl_add_u32 v3, v4, 3, v3\nv_and_b32 v4, 1, v2\nv_lshlrev_b32 v4, 5, v4")
        A("s_mul_i32 s75, s72, 192\nv_add_u32 v5, s75, v3\nv_add_u32 v20, v5, v4\nv_sub_u32 v21, v5, v4")
        A("s_lshl_b32 s75, s72, 5\ns_add_u32 s75, s75, 128\nv_xor_b32 v5, s75, v4\nv_add_u32 v22, v3, v5")
        for i in range(3): A(f"v_add_u32 v{23+i}, {3*W_SLOT}, v{20+i}")
        A("v_and_b32 v3, 15, v1\nv_lshrrev_b32 v4, 1, v3\nv_xor_b32 v4, v4, v2\nv_lshlrev_b32 v4, 4, v4\nv_lshl_add_u32 v3, v3, 7, v4")
        A(f"s_lshl_b32 s75, s71, 13\ns_add_u32 s75, s75, {X_BASE}\nv_add_u32 v26, s75, v3\nv_xor_b32 v27, 64, v26")
    PEND = []
    def start(role, pre, post, side):
        pre(A)
        A("s_waitcnt lgkmcnt(0)")
        srd(A, 16, P["x"], SZ_X); A.its(st_ld); post(A)
        A("s_cmp_eq_u32 s72, 0"); srd_sel(A, 12, P["w1"], P["w3"], SZ_W)
        main = dmaX(0) + dmaW(0)
        first, second = (side, main) if (ORD == "B" and side) else (main, side)
        A.its(first)
        if not int(OPT.get("td", 0)): A.L.append(f";@TOUCH {role}")
        A(f"s_branch {role}_a"); A.L.append(f";@SEG {role}"); A.label(f"{role}_a")
        lds_setup(A)
        A.its(st_c[:1])
        if ORD == "B": spread(A, st_c[1:], second + dmaW(1), 0, len(st_c) - 10)
        elif ORD == "A": spread(A, st_c[1:], dmaW(1) + second, 0, len(st_c) - 10)
        else: spread(A, st_c[1:], dmaW(1) + dmaX(1) + dmaW(2), 0, len(st_c) - 4); PEND[:] = second
    def hs(A):
        A("s_lshl1_add_u32 s32, s69, s72"); sig_early(A, 32, 84, 33)
        A("s_mul_i32 s33, s69, 3\ns_cmp_eq_u32 s69, 10\ns_cselect_b32 s34, 1, 0\ns_sub_u32 s33, s33, s34\ns_lshl1_add_u32 s85, s72, s33\ns_add_u32 s86, s33, 1")
        sig_late(A, 85, 34); sig_late(A, 86, 34)
        A(f"s_lshl1_add_u32 s33, s68, s71\ns_mul_i32 s34, s33, 96")
        for r in (84, 85, 86): A(f"s_add_u32 s{r}, s{r}, s34\ns_mul_i32 s{r}, s{r}, {HS}\ns_add_u32 s{r}, s{r}, {WS_H}")
        A(f"s_cmp_eq_u32 s32, 19\ns_cselect_b32 s85, {hex(OOB)}, s85")
        A(f"s_lshl1_add_u32 s87, s32, s71\ns_lshl_b32 s33, s68, 7\ns_add_u32 s87, s87, s33\ns_lshl_b32 s87, s87, 7\ns_add_u32 s87, s87, {WS_FLG}")
    late_setup = [cap(ph2_setup), []] + chop(cap(hs), 2)
    ep_ld = lines(f"s_mul_i32 s75, s72, 1728\ns_mul_i32 s76, s71, 80\ns_add_u32 s75, s75, s76\ns_add_u32 s75, s75, s70\ns_lshl_b32 s75, s75, 3\ns_add_u32 s75, s75, {WS_CS}\ns_add_u32 s76, s75, {CS_HALF}\nv_min_u32 v2, 624, v28")
    ep_ld += [("vm", "ep", "buffer_load_dwordx4 v[56:59], v2, s[8:11], s75 offen sc1"), ("vm", "ep", "buffer_load_dwordx4 v[60:63], v2, s[8:11], s76 offen sc1")]
    ep_ld += lines(f"v_and_b32 v2, 7, v1\nv_lshlrev_b32 v2, 3, v2\nv_and_b32 v3, 8, v1\nv_lshl_add_u32 v2, v3, 4, v2\ns_lshl1_add_u32 s75, s68, s71\ns_lshl_b32 s75, s75, 10\ns_add_u32 s75, s75, {WS_STAT}")
    for tb in range(4): ep_ld.append(("vm", "ep", f"buffer_load_dwordx2 v[{64+2*tb}:{65+2*tb}], v2, s[8:11], s75 offen offset:{256*tb} sc1"))
    ep_tags = [57, 59, 61, 63, 65, 67, 69, 71]
    ep_t = [("wvm", ["ep"])] + tagtest(ep_tags)
    ep_w = lines(f"v_add_f32 v56, v56, v60\nv_add_f32 v57, v58, v62\ns_lshl_b32 s75, s72, 10\ns_mul_i32 s76, s71, 320\ns_add_u32 s75, s75, s76\ns_add_u32 s75, s75, {F_SCR}\nv_min_u32 v2, 39, v1\nv_lshl_add_u32 v2, v2, 3, s75")
    ep_w += [("ds", None, "ds_write_b64 v2, v[56:57]")]
    ep_r = lines(f"v_and_b32 v2, 48, v1\ns_mul_i32 s75, s72, 384\ns_add_u32 s75, s75, {F_SCR}\nv_add_u32 v3, s75, v2\ns_lshl_b32 s75, s72, 6\ns_add_u32 s75, s75, {F_SCR+256}\nv_add_u32 v2, s75, v2")
    for j in range(10):
        pr, m = j >> 1, j & 1
        ep_r.append(("ds", None, f"ds_read_b128 v[{56+4*j}:{59+4*j}], v{2 if pr == 4 else 3} offset:{1024*m + (0 if pr == 4 else 64*pr)}"))
    ep_c = []
    for tb in range(4):
        ep_c += lines(f"v_lshlrev_b32 v{44+tb}, 16, v{64+2*tb}\nv_and_b32 v{52+tb}, 0xffff0000, v{64+2*tb}\nv_rcp_f32 v{48+tb}, v{52+tb}\nv_mul_f32 v{52+tb}, v{52+tb}, v{52+tb}\nv_mul_f32 v{48+tb}, 0xbfb8aa3b, v{48+tb}")
    ep_a = lines("v_lshrrev_b32 v2, 4, v1\nv_and_b32 v3, 1, v2\nv_lshlrev_b32 v3, 10, v3\nv_lshrrev_b32 v2, 1, v2\nv_lshl_add_u32 v3, v2, 8, v3")
    ep_a += lines("v_and_b32 v2, 15, v1\nv_lshl_add_u32 v3, v2, 4, v3\ns_lshl_b32 s75, s72, 9\nv_add_u32 v30, s75, v3\nv_mov_b32 v31, s96\ns_add_u32 s99, s87, 5632")
    ACC = 96
    def acc(j, tb): return ACC + (j*4+tb)*4
    def Wr(par, j): return par*56 + j*4
    def Xr(par, tb): return par*56 + 40 + tb*4
    def reads(s):
        par = s & 1; L = []; sl = s % NWS; hi = 3 if sl >= 3 else 0; so = (sl - hi)*W_SLOT
        for tb in range(4): L.append(("ds", None, f"ds_read_b128 a[{Xr(par,tb)}:{Xr(par,tb)+3}], v{26+(s&1)} offset:{((s>>1)%3)*X_SLOT + tb*2048}"))
        for j in range(10):
            pr, m = j >> 1, j & 1; ar = 22 if pr == 4 else 20 + (pr & 1); co = 0 if pr == 4 else pr*32
            for hh in range(2): L.append(("ds", None, f"ds_read_b64_tr_b16 a[{Wr(par,j)+2*hh}:{Wr(par,j)+2*hh+1}], v{ar+hi} offset:{so + m*10240 + hh*1280 + co}"))
        return L
    NL = int(OPT.get("nl", 7)); L0 = int(OPT.get("l0", 0)); wl = [[]]*L0 + chop(w2loads(0, NL), 9-L0)
    def loop(role, mem, side, xt={}):
        M = {0: dmaX(1) + dmaW(2), 1: dmaW(3) + dmaX(2), 2: dmaW(4) + dmaW(5), 3: dmaX(3) + dmaW(6), 4: dmaW(7) + dmaW(8), 5: dmaX(4) + dmaW(9), 6: dmaW(10) + dmaX(5)}
        for s in range(7, 16): M[s] = dmaW(s+4) + (dmaX((s+5) >> 1, ((s+1) & 1,)) if s < 15 else [])
        if ORD == "C": M[0] = PEND + dmaW(3); M[1] = dmaX(2) + dmaW(4); M[2] = dmaW(5)
        if "flat" in OPT:
            M = {0: dmaX(1) + dmaW(2), 1: dmaW(3) + dmaX(2), 2: dmaW(4) + dmaW(5)}
            for s in range(3, 17): M[s] = dmaW(s+3)
            M[3] += dmaX(3)
            for u in range(4, 10):
                M[2*u-4] += dmaX(u, (0,)); M[2*u-3] += dmaX(u, (1,))
        for s, L in mem.items(): M[s] = M[s] + ([x if isinstance(x, str) else (x[0], x[1], x[2].replace("s77 offen", "s76 offen")) for x in L] if "noside" in OPT else L)
        M[15] += wl[0]
        for s in range(16, 20): M[s] = M.get(s, []) + wl[2*s-31] + wl[2*s-30]
        S = dict(side)
        for k, L in {5: late_setup[0], 6: late_setup[2], 8: late_setup[3], 11: ep_a, 12: fpoll(4) + ep_ld[10:], 13: ep_ld[:10], 15: fpoll(5), 16: ep_t, 17: ep_w + ep_c, 18: ep_r, 19: cap(ph2_addr)}.items():
            S[k] = S.get(k, []) + L
        if "wf" in OPT: S[int(OPT["wf"])] = S.get(int(OPT["wf"]), []) + w2warm()
        if int(OPT.get("td", 0)): A.L.append(f";@TOUCH {role}")
        A.L.append(f";@TOUCH P{0 if role == 'FA' else 2}")
        A.sync([("X", 0), ("W", 0)]); stamp(A, 1)
        A.its(reads(0))
        for s in range(20):
            tags = ([("W", s+1), ("X", (s+1) >> 1)] if s < 19 else []) + xt.get(s, [])
            if s == 15: fcheck(A, role + "C", 4)
            if s == 17: gcheck(A, role + "G", ep_ld, ep_tags); fcheck(A, role + "P", 5)
            A.sync(tags)
            tick(A, s, 39)
            par = s & 1; mf = []
            for j in range(10):
                for tb in (range(4) if j % 2 == 0 or not SN else range(3, -1, -1)):
                    c = acc(j, tb); mf.append(f"{MF} v[{c}:{c+3}], a[{Wr(par,j)}:{Wr(par,j)+3}], a[{Xr(par,tb)}:{Xr(par,tb)+3}], " + (f"v[{c}:{c+3}]" if s else "0"))
            A.weave(mf, [(reads(s+1) if s < 19 else [], 0, 30), (M.get(s, []), 0, 39), (S.get(s, []), 1, 39)])
    A("s_mul_i32 s34, s69, 5\ns_lshr_b32 s34, s34, 1\ns_and_b32 s33, s68, 7\ns_lshr_b32 s35, s68, 3\ns_lshl1_add_u32 s32, s33, s35\ns_and_b32 s76, s69, 1\ns_lshl2_add_u32 s76, s76, 8\ns_cmp_ge_u32 s32, s76\ns_cbranch_scc1 FB_p")
    snap = (A.nv, dict(A.tv), A.dv, A.nd, dict(A.td), A.dd)
    def fa0(A):
        A(f"s_lshl2_add_u32 s32, s34, s32\ns_lshr_b32 s76, s33, 1\ns_add_u32 s76, s76, s34\ns_and_b32 s33, s33, 1\ns_mul_i32 s33, s33, 27\ns_add_u32 s33, s33, s76\ns_mov_b32 s34, s35")
        A(f"s_lshl_b32 s76, s76, 7\ns_lshl2_add_u32 s97, s34, s3\ns_mul_i32 s97, s97, {8*3456}\ns_add_u32 s97, s97, s76")
        A("v_lshrrev_b32 v2, 3, v1\nv_mul_u32_u24 v2, 3456, v2\nv_and_b32 v3, 7, v1\nv_lshl_add_u32 v30, v3, 4, v2")
    def fa1(A):
        A("s_cmp_lt_u32 s33, 27"); srd_sel(A, 24, P["w1"], P["w3"], SZ_W)
    def fa2(A):
        A(f"s_lshl_b32 s98, s33, 9\ns_mul_i32 s34, s34, {CS_HALF}\ns_add_u32 s98, s98, s34\ns_add_u32 s98, s98, {WS_CS}\ns_cmp_eq_u32 s3, 0\ns_cselect_b32 s98, s98, {hex(OOB)}")
        A("v_and_b32 v2, 15, v1\nv_and_b32 v3, 1, v1\nv_lshlrev_b32 v3, 4, v3\nv_mov_b32 v4, 0x3f80\nv_lshlrev_b32 v3, v3, v4\nv_lshrrev_b32 v2, 1, v2")
        for r in range(4): A(f"v_cmp_eq_u32 vcc, {r}, v2\nv_cndmask_b32 v{72+r}, 0, v3, vcc")
        A(f"v_and_b32 v2, 7, v1\nv_lshlrev_b32 v2, 5, v2\nv_and_b32 v3, 16, v1\nv_add_u32 v2, v2, v3\ns_lshl_b32 s75, s3, 8\ns_add_u32 s75, s75, {F_SCR}\nv_add_u32 v2, s75, v2\nv_and_b32 v3, 32, v1\nv_lshl_add_u32 v80, v3, 5, v2")
        A(f"v_lshlrev_b32 v82, 2, v1\nv_add_u32 v81, {F_SCR}, v82\nv_lshlrev_b32 v82, 3, v1")
    cs_ld = []
    for i in range(10): cs_ld += [f"s_add_u32 s77, s97, {i*64*3456}", ("vm", "csl", f"buffer_load_dwordx4 a[{112+4*i}:{115+4*i}], v30, s[24:27], s77 offen")]
    cs_c = [("wvm", ["csl"])]
    for i in range(10): cs_c.append(f"{MF} v[76:79], v[72:75], a[{112+4*i}:{115+4*i}], " + ("v[76:79]" if i else "0"))
    cs_c += ["s_nop 0"]*2
    for e in range(4): cs_c.append(f"v_add_f32_dpp v{76+e}, v{76+e}, v{76+e} row_ror:8 row_mask:0xf bank_mask:0xf")
    cs_c.append(("ds", None, "ds_write_b128 v80, v[76:79]"))
    cs_f = [("ds", "csf", f"ds_read_b32 v{72+w}, v81 offset:{256*w}") for w in range(4)]
    cs_f += [("wds", ["csf"]), "v_add_f32 v72, v72, v73", "v_add_f32 v74, v74, v75", "v_mov_b32 v73, s96", "v_add_f32 v72, v72, v74", ("vm", None, "buffer_store_dwordx2 v[72:73], v82, s[8:11], s98 offen sc1")]
    CB = F_SCR + 4096
    def fc1(A):
        A("s_cmp_eq_u32 s72, 0"); srd_sel(A, 20, P["cre"], P["cim"], SZ_B)
        A(f"s_and_b32 s4, s32, 7\ns_lshr_b32 s5, s32, 3\ns_lshl1_add_u32 s99, s4, s71\ns_mul_i32 s99, s99, 51200\ns_lshl_b32 s75, s5, 7\ns_add_u32 s99, s99, s75\ns_cmp_lt_u32 s32, 80\ns_cselect_b32 s99, s99, {hex(OOB)}")
        A(f"s_add_u32 s101, s73, {CB}\nv_lshrrev_b32 v2, 3, v1\nv_mul_u32_u24 v2, 1280, v2\nv_lshrrev_b32 v3, 4, v1\nv_xor_b32 v3, v3, v1\nv_and_b32 v3, 7, v3\nv_lshl_add_u32 v2, v3, 4, v2\ns_lshl_b32 s75, s71, 6\nv_xor_b32 v84, s75, v2\nv_xor_b32 v85, 64, v84")
    def fc2(A):
        A(f"s_lshl2_add_u32 s5, s5, s3\ns_mul_i32 s6, s4, 40\ns_add_u32 s6, s6, s5\ns_lshl_b32 s6, s6, 7\ns_add_u32 s6, s6, {WS_CF}")
        sig_ssm(A, 5, 75)
        A(f"s_mul_i32 s4, s4, 96\ns_add_u32 s5, s5, s4\ns_mul_i32 s100, s5, 5120\ns_add_u32 s100, s100, {WS_W2P}\ns_cmp_lt_u32 s32, 80\ns_cselect_b32 s100, s100, {hex(OOB)}\ns_cselect_b32 s6, s6, {hex(OOB)}")
        A(f"v_and_b32 v2, 15, v1\nv_bfe_u32 v3, v1, 4, 1\ns_lshl_b32 s75, s3, 1\nv_add_u32 v3, s75, v3\nv_lshrrev_b32 v4, 1, v2\nv_xor_b32 v3, v3, v4\nv_lshlrev_b32 v3, 4, v3\nv_lshl_add_u32 v3, v2, 7, v3")
        A(f"v_lshrrev_b32 v4, 5, v1\nv_mul_u32_u24 v4, 10240, v4\nv_add_u32 v3, v3, v4\nv_add_u32 v86, {CB}, v3")
    c_ld = []
    for i in range(5): c_ld += [f"s_add_u32 m0, s101, {1024*i}", f"s_add_u32 s77, s99, {10240*i}", ("vm", "cl", f"buffer_load_dwordx4 v{84+(i&1)}, s[20:23], s77 offen lds")]
    c_r = [("ds", None, f"ds_read_b128 a[{152+4*nb}:{155+4*nb}], v86 offset:{2048*nb}") for nb in range(5)]
    c_s = [("vm", "cs", f"buffer_store_dwordx4 a[{152+4*nb}:{155+4*nb}], v{28+(nb>>2)}, s[8:11], s100 offen offset:{(nb&3)*1024} sc1") for nb in range(5)]
    c_f = ["v_mov_b32 v3, s96", ("wvm", ["cs"]), ("vm", None, "buffer_store_dword v3, v8, s[8:11], s6 offen sc1")]
    CD = int(OPT.get("cd", 0))
    start("FA", fa0, fa1, cs_ld)
    fc1(A)
    loop("FA", {CD: c_ld, CD+2: c_r, CD+3: c_s[:int(OPT.get("c3", 3))], CD+4: c_s[int(OPT.get("c3", 3)):]}, {0: st_f + cap(fc2), 1: cap(fa2), int(OPT.get("cf", 7)): c_f, 2: cs_c[:11], int(OPT.get("cw", 9)): cs_c[13:] + ["s_nop 0"]*6, int(OPT.get("cw", 9))+1: cs_f}, {CD+2: ["cl"]})
    A("s_branch FFN_EP")
    A.nv, A.tv, A.dv, A.nd, A.td, A.dd = snap
    A.L.append(";@SEG FBP"); A.label("FB_p")
    SO = (4, 5, 6, 97, 24, 25, 26, 27)
    def fb1(A):
        A("s_sub_u32 s32, s32, s76\ns_lshl_b32 s35, s69, 2\ns_sub_u32 s35, s35, s34\ns_lshl2_add_u32 s34, s35, s32\ns_lshl2_add_u32 s32, s34, s3\ns_mul_i32 s34, s32, 52429\ns_lshr_b32 s34, s34, 18\ns_mul_i32 s33, s34, 5\ns_sub_u32 s33, s32, s33")
        A(f"s_mul_i32 s99, s34, 40960\ns_lshl_b32 s35, s33, 8\ns_add_u32 s99, s99, s35\ns_lshl_b32 s101, s3, 13\ns_add_u32 s101, s101, {F_SCR}")
        A(f"v_lshrrev_b32 v2, 4, v1\nv_mul_u32_u24 v30, 1280, v2\nv_and_b32 v3, 15, v1\nv_lshlrev_b32 v2, 1, v2\nv_xor_b32 v3, v3, v2\nv_lshl_add_u32 v30, v3, 4, v30\nv_xor_b32 v31, 128, v30")
    def fb2(A):
        A("s_mul_i32 s35, s34, 52429\ns_lshr_b32 s35, s35, 18\ns_mul_i32 s75, s35, 5\ns_sub_u32 s75, s34, s75\ns_sub_u32 s76, s34, 49\ns_cmp_ge_u32 s34, 49\ns_cselect_b32 s35, 10, s35\ns_cselect_b32 s75, s76, s75")
        A("s_cmp_eq_u32 s75, 3\ns_cselect_b32 s76, 1, 0\ns_lshl1_add_u32 s76, s35, s76"); sig_early(A, 76, 100, 79)
        A("s_mul_i32 s76, s35, 3\ns_lshr_b32 s79, s75, 1\ns_add_u32 s76, s76, s79\ns_cmp_eq_u32 s35, 10\ns_cselect_b32 s79, 1, 0\ns_sub_u32 s76, s76, s79"); sig_late(A, 76, 79)
        A("s_lshr_b32 s79, 9, s75\ns_bitcmp1_b32 s79, 0\ns_cselect_b32 s100, s100, s76")
        A(f"s_mul_i32 s98, s100, 5\ns_add_u32 s98, s98, s33\ns_lshl_b32 s98, s98, 7\ns_add_u32 s98, s98, {WS_WF}")
        A(f"s_mul_i32 s100, s100, 5120\ns_lshl_b32 s79, s33, 13\ns_add_u32 s100, s100, s79\ns_add_u32 s100, s100, {WS_W2P}")
        A(f"s_cmp_lt_u32 s32, 270\ns_cselect_b32 s100, s100, {hex(OOB)}\ns_cselect_b32 s98, s98, {hex(OOB)}")
        A("s_cmp_eq_u32 s75, 2\ns_cselect_b32 s75, 8, 4\ns_cselect_b32 s76, 1, 4\ns_lshl_b32 s76, s76, 10")
        A(f"v_lshrrev_b32 v2, 4, v1\nv_mul_u32_u24 v2, s75, v2\nv_bfe_u32 v3, v1, 2, 2\nv_add_u32 v2, v2, v3\nv_lshlrev_b32 v2, 8, v2\nv_and_b32 v3, 3, v1\nv_lshl_add_u32 v2, v3, 3, v2")
        for r in (80, 81):
            A((f"v_mov_b32 v{r}, v2" if r == 80 else f"v_add_u32 v{r}, s76, v2") + f"\nv_lshrrev_b32 v3, 1, v{r}\nv_and_b32 v3, 0x400, v3\nv_xor_b32 v3, v3, v{r}\nv_bfe_u32 v3, v3, 8, 3\nv_lshl_add_u32 v{r}, v3, 5, v{r}\nv_add_u32 v{r}, s101, v{r}")
        A(f"s_mul_i32 s33, s33, {8*52429}")
        for k in range(8): A(f"s_add_u32 s79, s33, {k*52429}\ns_lshr_b32 s79, s79, 18\ns_mul_i32 s79, s79, 486400\ns_add_u32 s{SO[k]}, s100, s79")
    w2_ld = []
    for i in range(8): w2_ld += [f"s_add_u32 m0, s101, {1024*i}", f"s_add_u32 s77, s99, {5120*i}", ("vm", "w2l", f"buffer_load_dwordx4 v{30 + ((i ^ (i >> 1)) & 1)}, s[20:23], s77 offen lds")]
    w2_c = [("wvm", ["w2l"])]
    for k in range(8):
        for hh in range(2): w2_c += [f"v_xor_b32 v{82+hh}, {32*k}, v{80+hh}", ("ds", "w2t", f"ds_read_b64_tr_b16 a[{152+4*k+2*hh}:{153+4*k+2*hh}], v{82+hh}")]
    w2_s = [("vm", "side", f"buffer_store_dwordx4 a[{152+4*k}:{155+4*k}], v{28+(k>>2)}, s[8:11], s{SO[k]} offen offset:{(k&3)*1024} sc1") for k in range(8)]
    f2 = chop(cap(fb2), 3)
    BD = int(OPT.get("bd", 0)); BS = int(OPT.get("bs", BD+4)); BN = int(OPT.get("bn", 3))
    start("FB", fb1, lambda A: srd(A, 20, P["w2"], SZ_W), w2_ld if BD < 0 else [])
    fl = ["v_mov_b32 v3, s96", ("wvm", ["side"]), ("vm", None, "buffer_store_dword v3, v8, s[8:11], s98 offen sc1")]
    if BD < 0: loop("FB", {}, {0: st_f + f2[0], 1: f2[1], 2: f2[2], 3: w2_c, 4: w2_s[:4], 5: w2_s[4:], 8: fl})
    else: loop("FB", {BD: w2_ld}, {0: st_f + f2[0] + f2[1], 1: f2[2], BD+int(OPT.get("bt", 3)): w2_c, **{BS+k: L for k, L in enumerate(chop(w2_s, BN))}, BS+BN+int(OPT.get("bf", 2)): fl})
    A.L.append(";@SEG EP"); A.label("FFN_EP"); A.reset()
    A("s_waitcnt lgkmcnt(0)"); tick(A, 20, 39); tockdump(A, 20, 39, 0x40000)
    stamp(A, 2)
    A("s_nop 6")
    T = 32
    def silu(pr, tb, dst):
        g, u = acc(2*pr, tb), acc(2*pr+1, tb); cg, cu = 56+8*pr, 60+8*pr
        L = []
        for k in (0, 2): L.append(pk("fma", g+k, cg+k, ("b", 44+tb), g+k, neg=(1,)))
        for k in (0, 2): L.append(pk("mul", T+k, g+k, ("b", 48+tb)))
        for k in (0, 2): L.append(pk("fma", u+k, cu+k, ("b", 44+tb), u+k, neg=(1,)))
        for e in range(4): L.append(f"v_exp_f32 v{T+e}, v{T+e}")
        for k in (0, 2): L.append(pk("mul", g+k, g+k, u+k))
        for k in (0, 2): L.append(pk("fma", T+k, T+k, ("b", 52+tb), ("b", 52+tb)))
        for e in range(4): L.append(f"v_rcp_f32 v{T+e}, v{T+e}")
        for k in (0, 2): L.append(pk("mul", g+k, g+k, T+k))
        L += [f"v_cvt_pk_bf16_f32 v{dst}, v{g}, v{g+1}", f"v_cvt_pk_bf16_f32 v{dst+1}, v{g+2}, v{g+3}"]
        return L
    ep = []
    grp = []
    for fr in range(2):
        for tb in range(4):
            o = acc(4*fr+1, tb)
            grp.append((silu(2*fr, tb, o) + silu(2*fr+1, tb, o+2), ("vm", ("H", fr), f"buffer_store_dwordx4 v[{o}:{o+3}], v28, s[8:11], s{84+fr} offen offset:{tb*1024} sc1")))
    for tp in range(2):
        o = acc(9, 2*tp)
        grp.append((silu(4, 2*tp, o) + silu(4, 2*tp+1, o+2) + [f"v_permlane16_swap_b32 v{o}, v{o+2}", f"v_permlane16_swap_b32 v{o+1}, v{o+3}"],
                    ("vm", ("H", 2), f"buffer_store_dwordx4 v[{o}:{o+3}], v30, s[8:11], s86 offen offset:{tp*2048} sc1")))
    FI = int(OPT.get("fi", 1)); we = chop((fin_loads() if FI else []) + w2loads(NL, NL+FE), 8)
    for k, (c, st) in enumerate(grp):
        spread(A, c, we[k] if k < 8 else [])
        if k == int(OPT.get("ef", 99)): A.its([("wvm", [("H", 0)]), ("vm", None, "buffer_store_dword v31, v8, s[8:11], s87 offen sc1")])
        A.it(st)
    stamp(A, 3)
    if "ef" not in OPT: A.its([("wvm", [("H", 0)]), ("vm", None, "buffer_store_dword v31, v8, s[8:11], s87 offen sc1")])
    PQ = int(OPT.get("pq", 0)); lf = [("wvm", [("H", 2)]), ("vm", None, "buffer_store_dword v31, v8, s[8:11], s99 offen sc1")]
    pt = lambda i: [("fn", lambda: ptick(A, i, 25))]
    if TS >= 2: A("s_mov_b32 s7, 0x40001")
    fb = [("wvm", ["fin"]), ("fn", lambda: fin_base(A, "FGF"))]
    A.its(pt(50) + ([] if FI else fin_loads()) + w2loads(NL+FE, 12-PQ) + pt(51) + fb + pt(52) + fpoll(G0) + lf + w2loads(12-PQ, 12) + pt(53) + [("wvm", ["fl"])] + pt(54))
    fcheck(A, "FR", G0)
    if TS >= 2: A("v_writelane_b32 v25, s7, 56"); ptick(A, 55, 25)
    A("s_branch PH2")

S_SLOT = 49152; S_SCR = 3*S_SLOT
def gen_ssm(A):
    A.reset()
    A("s_lshl_b32 s32, s68, 8\ns_lshl_b32 s33, s72, 7\ns_add_u32 s32, s32, s33\ns_lshl_b32 s33, s71, 3\ns_add_u32 s32, s32, s33")
    A("v_and_b32 v2, 32, v1\nv_bfe_u32 v3, v1, 3, 1\nv_lshl_add_u32 v2, v3, 4, v2\nv_bfe_u32 v3, v1, 4, 1\nv_add3_u32 v2, v2, v3, s32\nv_mul_u32_u24 v2, 1280, v2")
    A("v_lshrrev_b32 v3, 4, v1\nv_xor_b32 v3, v3, v1\nv_and_b32 v3, 7, v3\nv_lshlrev_b32 v3, 4, v3\nv_xor_b32 v4, 64, v3\nv_add_u32 v5, v2, v3\nv_add_u32 v6, v2, v4")
    for ii in range(8): A(f"v_add_u32 v{10+ii}, {(64*(ii&1) + 2*(ii>>1))*1280 - 1024*(ii&3)}, v{5+(ii&1)}")
    A("s_lshl_b32 s32, s69, 6\ns_lshl_b32 s33, s71, 5\ns_add_u32 s32, s32, s33")
    A("v_lshrrev_b32 v2, 3, v1\nv_add_u32 v2, s32, v2\nv_mul_u32_u24 v2, 1280, v2\nv_add_u32 v5, v2, v3\nv_add_u32 v6, v2, v4")
    for i in range(4): A(f"v_add_u32 v{18+i}, {8*i*1280 - 1024*i}, v{5+(i&1)}")
    A("s_lshl_b32 s73, s3, 13\ns_lshl_b32 s74, s3, 12\ns_add_u32 s74, s74, 32768")
    st_ld, st_c, st_f = stats_job(32, S_SCR)
    def dma(u, hs=(0, 1)):
        b = (u % 3)*S_SLOT; L = []
        for h in hs:
            L += [f"s_add_u32 m0, s73, {b+4096*h}", f"s_movk_i32 s78, {u*128}"]
            for i in range(4): L.append(("vm", ("S", u), f"buffer_load_dwordx4 v{10+4*h+i}, s[16:19], s78 offen offset:{1024*i} lds"))
            L.append(f"s_add_u32 m0, s74, {b}")
            for i in range(2): L.append(("vm", ("S", u), f"buffer_load_dwordx4 v{18+2*h+i}, s[12:15], s78 offen offset:{1024*(2*h+i)} lds"))
        return L
    p_ld = lines("s_lshl_b32 s32, s69, 6\ns_lshl_b32 s33, s72, 5\ns_add_u32 s32, s32, s33\nv_and_b32 v2, 15, v1\nv_add_u32 v30, s32, v2\nv_lshlrev_b32 v2, 1, v30")
    for cb in range(2):
        for q, sp in enumerate((P["lre"], P["lim"], P["ldt"])): p_ld.append(("vm", "P", f"global_load_ushort v{112+3*cb+q}, v2, s[{sp}:{sp+1}] offset:{32*cb}"))
    def lds_setup(A):
        early_setup(A)
        A("v_lshrrev_b32 v2, 4, v1\nv_and_b32 v3, 15, v1\nv_lshrrev_b32 v4, 1, v3\nv_xor_b32 v4, v4, v2\nv_lshlrev_b32 v4, 4, v4\nv_lshl_add_u32 v3, v3, 7, v4")
        A("s_lshl_b32 s75, s71, 14\ns_lshl_b32 s76, s72, 12\ns_add_u32 s76, s76, 32768")
        A("v_add_u32 v22, s75, v3\nv_xor_b32 v23, 64, v22\nv_add_u32 v120, s76, v3\nv_xor_b32 v121, 64, v120")
        for sl in (1, 2):
            for ks in range(2): A(f"v_add_u32 v{22+2*sl+ks}, {sl*S_SLOT}, v{22+ks}\nv_add_u32 v{120+2*sl+ks}, {sl*S_SLOT}, v{120+ks}")
    def ss0(A):
        A("s_and_b32 s33, s68, 3\ns_lshl2_add_u32 s33, s69, s33\ns_lshl2_add_u32 s33, s33, s3\ns_lshr_b32 s35, s68, 2\ns_mul_i32 s35, s35, 160\ns_add_u32 s35, s35, s33\ns_mul_i32 s97, s33, 5120")
        A("v_bfe_u32 v2, v1, 2, 2\nv_mul_u32_u24 v2, 1280, v2\nv_and_b32 v3, 3, v1\nv_lshl_add_u32 v2, v3, 4, v2\nv_lshrrev_b32 v4, 4, v1\nv_lshl_add_u32 v67, v4, 6, v2")
        A(f"s_lshl_b32 s98, s35, 7\ns_add_u32 s98, s98, {WS_CSB}")
    def ss1(A):
        A("v_lshlrev_b32 v2, 21, v1\nv_and_b32 v2, 0xfe000000, v2\nv_lshl_add_u32 v55, v1, 3, v2")
        for r in range(4): A(f"v_mov_b32 v{68+r}, 0x3f803f80")
        A("s_lshl_b32 s32, s71, 2\nv_lshrrev_b32 v31, 4, v1\nv_add_u32 v31, s32, v31")
    def ss3(A):
        A("s_lshl1_add_u32 s32, s69, s72\ns_lshl_b32 s84, s32, 1\ns_add_u32 s85, s84, 1"); sig_ssm(A, 84, 33); sig_ssm(A, 85, 33)
        A(f"s_lshl1_add_u32 s34, s68, s71\ns_mul_i32 s35, s34, 192")
        for r in (84, 85): A(f"s_add_u32 s{r}, s{r}, s35\ns_mul_i32 s{r}, s{r}, {HS}\ns_add_u32 s{r}, s{r}, {WS_H}")
        A(f"s_lshl_b32 s87, s34, 7\ns_add_u32 s87, s87, s32\ns_lshl_b32 s87, s87, 7\ns_add_u32 s87, s87, {WS_FLG+88*128}")
        A(f"s_add_u32 s86, s84, {96*HS}\ns_add_u32 s78, s85, {96*HS}")
    def ss4(A):
        A("s_mul_i32 s75, s3, 20480\nv_and_b32 v2, 15, v1\nv_bfe_u32 v3, v2, 2, 1\nv_and_b32 v4, 3, v2\nv_lshl_add_u32 v3, v4, 1, v3\nv_and_b32 v4, 8, v2\nv_or_b32 v3, v3, v4")
        A("v_lshrrev_b32 v4, 4, v1\nv_lshlrev_b32 v5, 2, v4\nv_xor_b32 v3, v3, v5\nv_lshlrev_b32 v3, 4, v3\nv_lshl_add_u32 v3, v2, 8, v3\nv_add_u32 v10, s75, v3")
        A("v_bfe_u32 v2, v1, 2, 2\nv_lshlrev_b32 v3, 5, v2\nv_and_b32 v5, 1, v4\nv_lshl_add_u32 v3, v5, 7, v3\nv_and_b32 v5, 3, v1\nv_lshl_add_u32 v3, v5, 3, v3")
        A("v_lshl_add_u32 v2, v4, 3, v2\nv_lshl_add_u32 v3, v2, 8, v3\nv_add_u32 v11, s75, v3")
    def ss5(A):
        A("v_lshlrev_b32 v3, 4, v30\nv_lshlrev_b32 v2, 21, v1\nv_and_b32 v2, 0xfe000000, v2\nv_add_u32 v12, v2, v3\ns_lshl1_add_u32 s76, s68, s71\ns_mul_i32 s97, s76, 10240")
        A("v_lshrrev_b32 v2, 4, v1\nv_mul_u32_u24 v13, 10240, v2\ns_sub_u32 s75, s97, 10240\nv_sub_u32 v13, s75, v13\nv_add_u32 v13, v13, v3\nv_mov_b32 v21, s96")
        for i in range(4):
            if i: A(f"v_subrev_u32 v{13+i}, {40960*i}, v13\nv_add_u32 v2, 4, v2")
            A(f"v_cmp_gt_u32 vcc, s76, v2\nv_cndmask_b32 v{17+i}, 0, v21, vcc")
    b_ld = [("vm", "bl", f"buffer_load_dwordx4 a[{112+4*i}:{115+4*i}], v67, s[24:27], s97 offen offset:{256*i}") for i in range(5)]
    b_c = [("wvm", ["bl"])]
    for i in range(5): b_c.append(f"{MF} v[56:59], v[68:71], a[{112+4*i}:{115+4*i}], " + ("v[56:59]" if i else "0"))
    b_c += ["s_nop 0"]*3
    b_c += ["v_add_f32_dpp v56, v56, v56 quad_perm:[1,0,3,2] row_mask:0xf bank_mask:0xf", "v_add_f32_dpp v56, v56, v56 quad_perm:[2,3,0,1] row_mask:0xf bank_mask:0xf",
            "v_mov_b32 v57, s96", ("vm", None, "buffer_store_dwordx2 v[56:57], v55, s[8:11], s98 offen sc1")]
    NM = "LR LI CA CB L16R L16I L32R L32I L512R L512I QR QI UR UI WR WI PR PI T0 T1".split()
    def Pm(cb): return dict(zip(NM, range(72+20*cb, 72+20*cb+20)))
    par_c = [("wvm", ["P"])] + lines("v_lshrrev_b32 v60, 4, v1\nv_cvt_f32_u32 v60, v60\nv_mul_f32 v60, 0x42000000, v60\nv_sub_f32 v61, 0x42c00000, v60\nv_mul_f32 v62, 4.0, v60")
    for cb in range(2):
        p = Pm(cb); i0 = 112 + 3*cb; zr, zt, t0, t1 = p['PR'], p['PI'], p['T0'], p['T1']
        def power(d, n):
            pre = [f"v_mul_f32 v{t0}, {n}, v{zr}", f"v_mul_f32 v{t1}, {n}, v{zt}"] if n else []
            a, b = (t0, t1) if n else (zr, zt)
            return pre + lines(f"v_exp_f32 v{t0}, v{a}\nv_fract_f32 v{t1}, v{b}\nv_cos_f32 v{d}, v{t1}\nv_sin_f32 v{d+1}, v{t1}\nv_mul_f32 v{d}, v{d}, v{t0}\nv_mul_f32 v{d+1}, v{d+1}, v{t0}")
        par_c += lines(f"""v_lshlrev_b32 v{i0+2}, 16, v{i0+2}
v_mul_f32 v{t0}, 0x3fb8aa3b, v{i0+2}
v_exp_f32 v{t0}, v{t0}
v_lshlrev_b32 v{i0}, 16, v{i0}
v_lshlrev_b32 v{i0+1}, 16, v{i0+1}
v_cvt_pk_bf16_f32 v{t0}, v{t0}, v{t0}
v_and_b32 v{t0}, 0xffff0000, v{t0}
v_mul_f32 v{zr}, v{t0}, v{i0}
v_mul_f32 v{zt}, v{t0}, v{i0+1}
v_mul_f32 v{zr}, 0x3fb8aa3b, v{zr}
v_mul_f32 v{zt}, 0.15915494, v{zt}""") + power(p['LR'], None)
        par_c += lines(f"""v_mul_f32 v{t1}, v{i0}, v{i0}
v_fmac_f32 v{t1}, v{i0+1}, v{i0+1}
v_rcp_f32 v{t1}, v{t1}
v_add_f32 v{t0}, -1.0, v{p['LR']}
v_mul_f32 v{p['CA']}, v{t0}, v{i0}
v_add_f32 v{t1}, v{t1}, v{t1}
v_fmac_f32 v{p['CA']}, v{p['LI']}, v{i0+1}
v_mul_f32 v{p['CB']}, v{p['LI']}, v{i0}
v_fma_f32 v{p['CB']}, -v{t0}, v{i0+1}, v{p['CB']}
v_mul_f32 v{p['CA']}, v{p['CA']}, v{t1}
v_mul_f32 v{p['CB']}, v{p['CB']}, v{t1}""")
        par_c += power(p['L16R'], "0x41800000") + power(p['L32R'], "0x42000000") + power(p['L512R'], "0x44000000") + power(p['QR'], "v60") + power(p['UR'], "v61") + power(p['WR'], "v62")
    ep_ld = lines(f"v_lshrrev_b32 v2, 3, v0\nv_lshlrev_b32 v2, 7, v2\nv_and_b32 v3, 7, v0\nv_lshl_add_u32 v2, v3, 3, v2\ns_lshl_b32 s75, s68, 12\ns_add_u32 s75, s75, {WS_STAT}") + [("vm", "ep", "buffer_load_dwordx2 v[52:53], v2, s[8:11], s75 offen sc1")]
    ep_ld += lines(f"v_lshrrev_b32 v2, 2, v30\nv_lshlrev_b32 v2, 7, v2\nv_and_b32 v3, 3, v30\nv_lshl_add_u32 v2, v3, 5, v2\ns_mov_b32 s75, {WS_CSB}\ns_mov_b32 s76, {WS_CSB+20480}")
    def CS(cb, im): return 112 + 4*cb + 2*im
    for cb in range(2):
        for im in range(2): ep_ld.append(("vm", "ep", f"buffer_load_dwordx2 v[{CS(cb,im)}:{CS(cb,im)+1}], v2, s[8:11], s{75+im} offen offset:{512*cb} sc1"))
    ep_tags = [53, 113, 115, 117, 119]
    ep_t = [("wvm", ["ep"])] + tagtest(ep_tags)
    ep_c = lines(f"""v_and_b32 v53, 0xffff0000, v52
v_rcp_f32 v53, v53
v_lshlrev_b32 v52, 16, v52
v_and_b32 v2, 15, v0
v_bfe_u32 v3, v0, 4, 1
v_lshl_add_u32 v2, v2, 1, v3
v_and_b32 v3, 0xe0, v0
v_add_u32 v2, v2, v3
v_mul_f32 v52, v52, v53
v_lshlrev_b32 v2, 2, v2
v_add_u32 v2, {S_SCR}, v2""") + [("ds", None, "ds_write_b32 v2, v53"), ("ds", None, "ds_write_b32 v2, v52 offset:1024")]
    ACC = 128
    def acc(b, c): return ACC + (c*8+b)*4
    def Xr(par, b): return par*48 + b*4
    def Br(par, c): return par*48 + 32 + c*4
    def reads(s):
        par = s & 1; sl = (s >> 1) % 3; L = []
        for c in range(4): L.append(("ds", None, f"ds_read_b128 a[{Br(par,c)}:{Br(par,c)+3}], v{120+2*sl+(s&1)} offset:{(c>>1)*8192 + (c&1)*2048}"))
        for b in range(8): L.append(("ds", None, f"ds_read_b128 a[{Xr(par,b)}:{Xr(par,b)+3}], v{22+2*sl+(s&1)} offset:{b*2048}"))
        return L
    SORD = OPT.get("sord", "A")
    M = {0: (b_ld if SORD == "C" else []) + dma(2)}
    for s in range(1, 15): M[s] = dma((s+5) >> 1, ((s+1) & 1,))
    CK = int(OPT.get("ck", 16))
    SX = int(OPT.get("sx", 0))
    CW = int(OPT.get("cw2", 18))
    if SX:
        for k, L in enumerate(chop(w2loads(0, 5, 99), CW-CK)): M[CK+k] = M.get(CK+k, []) + L
        for k, L in enumerate(chop(w2loads(5, 5+SX, 98), 20-CW)): M[CW+k] = L
    else:
        for k, L in enumerate(chop(w2loads(0, 5, 99), 20-CK)): M[CK+k] = M.get(CK+k, []) + L
    pc = chop(par_c, 8); ps = chop(cap(ph2_setup), 2)
    pc = chop(par_c, 9)
    S = {0: cap(ss1), 1: st_f + p_ld, 2: ps[0], 3: ps[1] + b_c, 4: pc[0], 5: pc[1], 6: pc[2], 7: pc[3], 8: pc[4], 9: pc[5], 10: pc[6], 11: pc[7], 12: pc[8],
         13: ep_ld, 15: cap(ss3), 16: ep_t, 17: ep_c, 18: cap(ss4), 19: cap(ss5)}
    S[CK-2] = fpoll(4) + S.get(CK-2, [])
    if SX: S[CW-2] = fpoll(5) + S[CW-2]
    if "wf" in OPT: S[19] = w2warm() + S[19]
    PF = int(OPT.get("pf", 0)); PFI = int(OPT.get("pfi", 19))
    if PF:
        pf = lines(f"s_lshr_b32 s32, s2, 3\ns_lshl2_add_u32 s32, s32, s3\ns_lshr_b32 s33, s32, 2\ns_mul_i32 s33, s33, 96\ns_mul_i32 s34, s29, 12\ns_add_u32 s33, s33, s34\ns_mul_i32 s33, s33, 5120\ns_add_u32 s33, s33, {WS_W2P + 35840 - PF*8192}")
        pf += [f"s_cmp_lt_u32 s32, 32\ns_cselect_b32 s33, s33, {hex(OOB)}", "v_lshlrev_b32 v6, 7, v1"]
        for k in range(PF): pf += [("vm", None, "buffer_load_dword v7, v6, s[8:11], s33 offen sc1"), "s_add_u32 s33, s33, 8192"]
        S[PFI] = S.get(PFI, []) + pf
    ss0(A)
    A("s_waitcnt lgkmcnt(0)")
    srd(A, 16, P["x"], SZ_X); A.its(st_ld)
    A("s_cmp_lt_u32 s35, 160"); srd_sel(A, 24, P["bre"], P["bim"], SZ_B)
    A("s_cmp_eq_u32 s72, 0"); srd_sel(A, 12, P["bre"], P["bim"], SZ_B)
    first, second = {"B": (b_ld + dma(0, (0,)), dma(0, (1,)) + dma(1)), "A": (dma(0), b_ld + dma(1)), "C": (dma(0), dma(1))}[SORD]
    A.its(first)
    if not int(OPT.get("td", 0)): A.L.append(";@TOUCH S")
    A("s_branch SSM_a"); A.L.append(";@SEG SSM"); A.label("SSM_a")
    lds_setup(A)
    A.its(st_c[:1]); spread(A, st_c[1:], second, 0, len(st_c) - 2)
    if int(OPT.get("td", 0)): A.L.append(";@TOUCH S")
    A.L.append(";@TOUCH P1")
    A.sync([("S", 0)]); stamp(A, 1)
    A.its(reads(0))
    for s in range(20):
        tags = [("S", (s+1) >> 1)] if (s < 19 and s & 1) else []
        if s == 17: gcheck(A, "SG", ep_ld, ep_tags)
        if s == CK: A.its(ftest(99, 82))
        if s == CW and SX: A.its(ftest(98, 82))
        A.sync(tags, barrier=bool(s & 1))
        tick(A, s, 127)
        par = s & 1; mf = []
        for b in range(8):
            for c in (range(4) if b % 2 == 0 or not SN else range(3, -1, -1)):
                r = acc(b, c); mf.append(f"{MF} v[{r}:{r+3}], a[{Xr(par,b)}:{Xr(par,b)+3}], a[{Br(par,c)}:{Br(par,c)+3}], " + (f"v[{r}:{r+3}]" if s else "0"))
        A.weave(mf, [(reads(s+1) if s < 19 else [], 0, 24), (M.get(s, []), 0, 31), (S.get(s, []), 1, 31)])
    A("s_waitcnt lgkmcnt(0)"); tick(A, 20, 127); tockdump(A, 20, 127, 0x40000)
    stamp(A, 2)
    def gre(cb, j): return acc(0, cb) + 2*j
    def gim(cb, j): return acc(0, 2+cb) + 2*j
    def cfma(dr, di, mr, mi, xr, xi, ar, ai):
        return lines(f"v_fma_f32 v{dr}, v{mr}, v{xr}, v{ar}\nv_fma_f32 v{di}, v{mr}, v{xi}, v{ai}\nv_fma_f32 v{dr}, -v{mi}, v{xi}, v{dr}\nv_fma_f32 v{di}, v{mi}, v{xr}, v{di}")
    def cmul(dr, di, mr, mi, xr, xi):
        return lines(f"v_mul_f32 v{dr}, v{mr}, v{xr}\nv_mul_f32 v{di}, v{mr}, v{xi}\nv_fma_f32 v{dr}, -v{mi}, v{xi}, v{dr}\nv_fmac_f32 v{di}, v{mi}, v{xr}")
    def gsum(regs, tmp):
        L = []
        for sw in ("v_permlane16_swap_b32", "v_permlane32_swap_b32"):
            L += [f"v_mov_b32 v{tmp+k}, v{r}" for k, r in enumerate(regs)] + [f"{sw} v{r}, v{tmp+k}" for k, r in enumerate(regs)] + [f"v_add_f32 v{r}, v{r}, v{tmp+k}" for k, r in enumerate(regs)]
        return L
    def rload(c):
        b = 32 + 16*(c & 1)
        return [("ds", ("R", c), f"ds_read_b128 v[{b+4*k+8*t}:{b+4*k+8*t+3}], v22 offset:{1024*t + 32*(c&3) + 16*k}") for t in range(2) for k in range(2)]
    def scan(cb):
        p = Pm(cb); L = []
        for j in range(16):
            c = 4*cb + (j >> 2); b = 32 + 16*(c & 1) + 2*(j & 3)
            if j & 3 == 0: L.append(("wds", [("R", c)]))
            L += [pk("mul", gre(cb,j), gre(cb,j), b), pk("mul", gim(cb,j), gim(cb,j), b)]
            L += [pk("fma", gre(cb,j), b+8, ("b", CS(cb,0)), gre(cb,j), neg=(0,)), pk("fma", gim(cb,j), b+8, ("b", CS(cb,1)), gim(cb,j), neg=(0,))]
            if j & 3 == 3 and c + 2 < 8: L += rload(c+2)
            if j:
                L += [pk("fma", gre(cb,j), gre(cb,j-1), ("b", p['LR']), gre(cb,j)), pk("fma", gim(cb,j), gim(cb,j-1), ("b", p['LR']), gim(cb,j))]
                L += [pk("fma", gre(cb,j), gim(cb,j-1), ("b", p['LI']), gre(cb,j), neg=(1,)), pk("fma", gim(cb,j), gre(cb,j-1), ("b", p['LI']), gim(cb,j))]
        o = 120 + 4*cb
        L += cfma(64+2*cb, 65+2*cb, p['L16R'], p['L16I'], gre(cb,15), gim(cb,15), gre(cb,15)+1, gim(cb,15)+1) + cmul(o, o+2, p['UR'], p['UI'], 64+2*cb, 65+2*cb)
        L += gsum([o, o+2], 4) + [f"v_mov_b32 v{o+1}, s96", f"v_mov_b32 v{o+3}, s96", ("vm", None, f"buffer_store_dwordx4 v[{o}:{o+3}], v12, s[8:11], s97 offen offset:{256*cb} sc1")]
        return L
    def lbl(cb): return [("vm", ("lb", cb), f"buffer_load_dwordx4 v[{32+16*cb+4*i}:{35+16*cb+4*i}], v{13+i}, s[8:11], 0 offen offset:{256*cb} sc1") for i in range(4)]
    def transform(cb):
        p = Pm(cb); L = [f"v_mov_b32 v{64+2*cb}, v{gre(cb,15)}", f"v_mov_b32 v{65+2*cb}, v{gim(cb,15)}"]
        for j in range(16):
            r, i = gre(cb,j), gim(cb,j)
            L += [pk("mul", 112, i, ("b", p['CB'])), pk("mul", 114, r, ("b", p['CB'])), pk("fma", r, r, ("b", p['CA']), 112, neg=(2,)), pk("fma", i, i, ("b", p['CA']), 114, neg=(1, 2))]
        return L
    def lookback(cb):
        b = 32+16*cb
        lt = [f"v_xor_b32 v4, v17, v{b+1}"] + sum(([f"v_xor_b32 v5, v{17+(r-b)//4}, v{r}", "v_or_b32 v4, v4, v5"] for r in range(b+3, b+16, 2)), []) + ["v_cmp_ne_u32 vcc, 0, v4"]
        A.its([("wvm", [("lb", cb)])] + lt)
        A(f"s_cbranch_vccz SSM_go{cb}\ns_mov_b32 s7, 0x40000")
        A.label(f"SSM_poll{cb}")
        for x in lbl(cb): A(x[2])
        A("s_waitcnt vmcnt(0)"); A.ext(lt)
        A(f"s_sub_u32 s7, s7, 1\ns_cbranch_scc1 SSM_go{cb}\ns_cbranch_vccnz SSM_poll{cb}")
        A.label(f"SSM_go{cb}")
    WP = 112; IMG = 8192
    def second(cb):
        p = Pm(cb); b = 32+16*cb; L = []
        for i in (2, 1, 0): L += cfma(b+4*i, b+4*i+2, p['L512R'], p['L512I'], b+4*i+4, b+4*i+6, b+4*i, b+4*i+2)
        L += cmul(b+4, b+5, p['WR'], p['WI'], b, b+2) + gsum([b+4, b+5], 4)
        L += cfma(p['PR'], p['PI'], p['QR'], p['QI'], b+4, b+5, p['PR'], p['PI']) + cfma(64+2*cb, 65+2*cb, p['L16R'], p['L16I'], p['PR'], p['PI'], 64+2*cb, 65+2*cb)
        for k, (xr, xi) in enumerate(((p['PR'], p['PI']), (64+2*cb, 65+2*cb))):
            L += lines(f"v_mul_f32 v{p['T0']}, v{p['CB']}, v{xi}\nv_mul_f32 v{p['T1']}, v{p['CB']}, v{xr}\nv_fma_f32 v{WP+k}, v{p['CA']}, v{xr}, -v{p['T0']}\nv_fma_f32 v{WP+2+k}, -v{p['CA']}, v{xi}, -v{p['T1']}")
        pw = []
        for j in range(16):
            cur = WP+4*(j & 1); nxt = WP+4*((j+1) & 1)
            L += [pk("mul", nxt, cur, ("b", p['LR'])), pk("mul", nxt+2, cur+2, ("b", p['LR'])), pk("fma", nxt, cur+2, ("b", p['LI']), nxt), pk("fma", nxt+2, cur, ("b", p['LI']), nxt+2, neg=(1,))]
            L += [pk("add", gre(cb,j), gre(cb,j), nxt), pk("add", gim(cb,j), gim(cb,j), nxt+2)]
            if pw and not j & 1: L.append(pw.pop(0))
            if j & 1:
                k = (j >> 1) & 3
                for im in range(2):
                    g = gim if im else gre
                    for hh in range(2):
                        r = (b+8*im+4*hh) if j < 8 else (g(cb, 0) + 4*hh)
                        L.append(f"v_cvt_pk_bf16_f32 v{r+k}, v{g(cb,j-1)+hh}, v{g(cb,j)+hh}")
                        if k == 3: (L if j == 15 else pw).append(("ds", "iw", f"ds_write_b128 v{68+2*(j>>3)+hh}, v[{r}:{r+3}] offset:{cb*IMG + im*4096}"))
        L.append(("wds", ["iw"]))
        st = []
        for tb in range(8):
            r = gim(cb, 0) + 4*tb
            for hh in range(2): L += [f"v_xor_b32 v{2+hh}, {32*tb + 16*hh}, v11", ("ds", ("tr", cb, tb), f"ds_read_b64_tr_b16 v[{r+2*hh}:{r+2*hh+1}], v{2+hh} offset:{cb*IMG + hh*1024}")]
            st.append([("wds", [("tr", cb, tb)]), ("vm", "H", f"buffer_store_dwordx4 v[{r}:{r+3}], v28, s[8:11], s{(84, 85, 86, 78)[cb + 2*(tb >> 2)]} offen offset:{(tb&3)*1024} sc1")])
        return L, st
    A(f"v_lshlrev_b32 v22, 7, v31\nv_add_u32 v22, {S_SCR}, v22\nv_mov_b32 v31, s96")
    A("s_cmp_lg_u32 s95, 0\ns_cbranch_scc1 EP_no\nv_lshlrev_b32 v2, 7, v1")
    for k in range(4): A(f"s_mov_b32 s75, {WS_STAT+4+8192*k}\nbuffer_load_dword a{80+k}, v2, s[8:11], s75 offen sc1")
    A.label("EP_no")
    ptick(A, 40, 25)
    A.its(rload(0) + rload(1) + scan(0) + scan(1))
    ptick(A, 41, 25)
    A.its((fpoll(5) if int(OPT.get("sb", 5)) > 5 else []) + lbl(0))
    for d in range(3):
        A(f"v_subrev_u32 v2, {16*(d+1)}, v1\nv_lshlrev_b32 v2, 2, v2")
        for k in range(4): A.it(("ds", "bp", f"ds_bpermute_b32 v{48+4*d+k}, v2, v{64+k}"))
    for cb in range(2): A(f"v_mov_b32 v{Pm(cb)['PR']}, 0\nv_mov_b32 v{Pm(cb)['PI']}, 0")
    for k in range(4): A(f"v_xor_b32 v{68+k}, {32*(k&1) + 16*(k>>1)}, v10")
    A.it(("wds", ["bp"]))
    for d in (2, 1, 0):
        A(f"s_lshl_b64 exec, -1, {16*(d+1)}")
        for cb in range(2):
            p = Pm(cb); a = 48+4*d+2*cb
            if d < 2: A.ext(cfma(a, a+1, p['L32R'], p['L32I'], p['PR'], p['PI'], a, a+1))
            A(f"v_mov_b32 v{p['PR']}, v{a}\nv_mov_b32 v{p['PI']}, v{a+1}")
    A("s_mov_b64 exec, -1")
    A.its(transform(0))
    stamp(A, 3); ptick(A, 42, 25)
    lookback(0)
    stamp(A, 4); ptick(A, 43, 25)
    L0, st0 = second(0); L1, st1 = second(1)
    SB = int(OPT.get("sb", 5))
    if SB > 5:
        fcheck(A, "SC5a", 5)
        A("s_mov_b32 s35, s98")
        A.its(L0[:60] + lbl(1)); spread(A, L0[60:], w2loads(5+SX, SB), 0, 120)
    else: A.its(L0[:60] + lbl(1) + fpoll(5) + L0[60:])
    ptick(A, 44, 25)
    lookback(1)
    rest = transform(1) + L1
    sl = interleave(rest, st0, 0, len(rest) - 40)
    for i, x in enumerate(rest):
        for y in sl[i]: A.its(y)
        A.it(x)
    ptick(A, 45, 25)
    for y in st1: A.its(y)
    stamp(A, 5)
    fs = "buffer_store_dword v31, v8, s[8:11], s87 offen sc1"
    ph2_addr(A)
    S1 = int(OPT.get("s1", 7))
    ptick(A, 46, 25)
    A.its(fin_loads() + w2loads(SB, S1) + fpoll(G0) + [("wvm", ["H"]), ("vm", None, fs)] + w2loads(S1, 12) + [("wvm", ["fin"])])
    ptick(A, 47, 25)
    A(f"s_cmp_lg_u32 s95, 0\ns_cbranch_scc1 EP_end")
    for k in range(4): A(f"v_accvgpr_read_b32 v{68+k}, a{80+k}")
    A.ext(tagtest([68, 69, 70, 71]))
    A("s_cbranch_vccz EP_ok\nv_lshlrev_b32 v2, 7, v1\ns_mov_b32 s7, 0x40000")
    A.label("EP_l")
    for k in range(4): A(f"s_mov_b32 s75, {WS_STAT+4+8192*k}\nbuffer_load_dword v{68+k}, v2, s[8:11], s75 offen sc1")
    A("s_waitcnt vmcnt(0)"); A.ext(tagtest([68, 69, 70, 71]))
    A(f"s_sub_u32 s7, s7, 1\ns_cbranch_scc1 EP_ok\ns_cbranch_vccnz EP_l")
    A.label("EP_ok")
    A(f"s_mov_b32 s75, {WS_EPOCH}\nbuffer_store_dword v31, v8, s[8:11], s75 offen sc1")
    A.label("EP_end")
    fin_base(A, "FGS")
    fcheck(A, "SC2", G0)
    if TS >= 2: A("v_writelane_b32 v25, s99, 57\nv_writelane_b32 v25, s35, 58")
    fredo(A, "SR", 4, 99, 82, w2loads(0, 5))
    if SX: fredo(A, "SR5", 5, 35, 82, w2loads(5, 5+SX))

def gen_ph2(A):
    A.L.append(";@SEG PH2"); A.label("PH2")
    A.reset()
    stamp(A, 6)
    for i in range(3): A.its(hload(i))
    g_r = []
    for nb in range(5):
        for w in range(4):
            r = ACCG + (nb*4+w)*4; g_r.append(("ds", ("gr", nb), f"ds_read_b128 v[{r}:{r+3}], v{23+(w>>1)} offset:{(w&1)*20480 + nb*1024}"))
    g_s = []; g_t = []
    for nb in range(5):
        r = ACCG + nb*16; g_s.append(("wds", [("gr", nb)]))
        for e in range(4): g_s += [f"v_add_f32 v{r+e}, v{r+e}, v{r+4+e}", f"v_add_f32 v{r+8+e}, v{r+8+e}, v{r+12+e}"]
        for e in range(4): g_s.append(f"v_add_f32 v{r+e}, v{r+e}, v{r+8+e}")
        g_t.append(("vm", "xs", f"buffer_store_dwordx4 v[{r}:{r+3}], v{28+(nb>>2)}, s[8:11], s4 offen offset:{(nb&3)*1024} sc1"))
    g_f = [("wvm", ["xs"]), ("vm", None, "buffer_store_dword v31, v8, s[8:11], s6 offen sc1")]
    fin_r = [(f"v_accvgpr_read_b32 v{ACCG + (k>>2)*16 + 8 + (k&3)}, {PARK[k]}" if PARK[k][0] == "a" else f"v_mov_b32 v{ACCG + (k>>2)*16 + 8 + (k&3)}, {PARK[k]}") for k in range(20)]
    GF = int(OPT.get("gf", 12))
    extra = {**{k-3: fpoll(g)[:-1] for k, g in CHK.items()}, 12: ["s_mov_b32 m0, s101"], 16: g_r + g_s[:13], 17: g_s[13:39] + g_t[:2], 18: g_s[39:52] + g_t[2:3] + g_s[52:] + g_t[3:],
             19: ["v_add_u32 v23, 81920, v23", "v_add_u32 v24, 81920, v24", "s_mov_b32 m0, s100"] + fin_r, 20: fpoll(3)[:-1]}
    first = {k-2: fpoll(g)[-1:] for k, g in CHK.items()}
    if WO:
        fin_c = [("wvm", ["fin"]), "v_and_b32 v11, 0xffff0000, v10", "v_rcp_f32 v11, v11", "v_lshlrev_b32 v10, 16, v10"]
        def rd(nb): return [("ds", ("fx", nb), f"ds_read_b64 v[{16+4*(nb&1)}:{17+4*(nb&1)}], v12 offset:{32*nb}"), ("ds", ("fx", nb), f"ds_read_b64 v[{(18, 26)[nb&1]}:{(19, 27)[nb&1]}], v14 offset:{3072+32*nb}")]
        fin_c += rd(0)
        for nb in range(5):
            if nb < 4: fin_c += rd(nb+1)
            fin_c.append(("wds", [("fx", nb)]))
            for h in range(2):
                x = 16+4*(nb&1)+h; d = (18, 26)[nb&1]+h
                fin_c += [f"v_lshlrev_b32 v2, 16, v{d}", f"v_and_b32 v{d}, 0xffff0000, v{d}", f"v_lshlrev_b32 v3, 16, v{x}", f"v_and_b32 v{x}, 0xffff0000, v{x}",
                          "v_mul_f32 v2, v2, v11", f"v_mul_f32 v{d}, v{d}, v11", "v_sub_f32 v4, v3, v10", f"v_sub_f32 v5, v{x}, v10", "v_fmac_f32 v3, v4, v2", f"v_fmac_f32 v{x}, v5, v{d}"]
                for e, src in ((0, 3), (1, x)):
                    p = PARK[4*nb+2*h+e]; fin_c.append(f"v_accvgpr_write_b32 {p}, v{src}" if p[0] == "a" else f"v_mov_b32 {p}, v{src}")
        wl = chop(w2loads(12-NH, 12), 4) if NH else [[]]*4
        for k in range(4): extra[k] = extra.get(k, []) + wl[k]
        extra[5] = extra.get(5, []) + fin_loads()
        for k, L in enumerate(chop(fin_c, 5)): extra[8+k] = L + extra.get(8+k, [])
    pend = []
    for g in GROUPS:
        n0 = g[0]; hf = STEPS[n0][0]
        tags = [("h", n) for n in g] + [("w2", STEPS[n][1]) for n in g if ("w2", STEPS[n][1]) in A.tv]
        if n0 == 16: A.sync(tags)
        else: A.it(("wvm", tags))
        if TS >= 2 and n0 not in (15, 17, 18): A("s_waitcnt lgkmcnt(0)")
        if TS >= 2:
            if n0: A(f"v_writelane_b32 v25, s88, {GROUPS.index(g)-1}")
            A("s_memtime s[88:89]")
        if n0 in CHK: fcheck(A, f"CK{n0}", CHK[n0])
        mf = []; wr = [[] for _ in range(20*len(g))]
        for k, x in enumerate(pend): wr[k*18//len(pend)].append(x)
        pend = []
        for nb in range(5):
            for tb in (range(4) if nb % 2 == 0 or not SN or len(g) > 1 else range(3, -1, -1)):
                c = acc2(hf, nb, tb)
                for n in g:
                    w = w2reg(STEPS[n][1]) + 4*nb
                    mf.append(f"{MF} v[{c}:{c+3}], {Hr(n,tb)}, a[{w}:{w+3}], " + (f"v[{c}:{c+3}]" if STEPS[n][1] != STEPS[0][1] else "0"))
                if len(g) > 1:
                    for e in range(4):
                        pos = (11*(4*(nb*4+tb)+e))//16 + 6 if len(g) == 2 else 3*(nb*4+tb) + 6 + (3*e)//4
                        it = ("ds", None, f"ds_write_addtid_b32 v{c+e} offset:{(tb*5+nb)*1024+256*e}")
                        (wr[pos] if pos < len(wr) else pend).append(it)
        if n0 == 21: wr[GF] += g_f; wr[56] += fpoll(3)[-1:]
        A.weave(mf, [(first.get(n0, []) + sum((hload(n) for n in ISSUE.get(n0, ())), []), 0, len(mf) - 8), (extra.get(n0, []), 1, len(mf) - 1)], fixed=wr)
    A.its(pend)
    if TS >= 2:
        A(f"s_waitcnt lgkmcnt(0)\nv_writelane_b32 v25, s88, {len(GROUPS)-1}\ns_memtime s[88:89]"); tockdump(A, len(GROUPS), 25, 0x80000)
    stamp(A, 7)
    A("s_waitcnt lgkmcnt(0)\ns_barrier")
    for nb in range(5):
        for w in range(4):
            r = ACCK + (nb*4+w)*4
            A(f"ds_read_b128 v[{r}:{r+3}], v{23+(w>>1)} offset:{(w&1)*20480 + nb*1024}")
    fcheck(A, "C3", 3)
    for nb in range(5):
        r = ACCG + nb*16 + 12
        A.it(("vm", ("xl", nb), f"buffer_load_dwordx4 v[{r}:{r+3}], v{28+(nb>>2)}, s[8:11], s5 offen offset:{(nb&3)*1024} sc1"))
    A("s_waitcnt lgkmcnt(0)")
    for nb in range(5):
        r = ACCK + nb*16; o = ACCG + nb*16 + 8
        for k in (0, 2): A(pk("add", r+k, r+k, r+4+k)); A(pk("add", r+8+k, r+8+k, r+12+k))
        for k in (0, 2): A(pk("add", o+k, o+k, r+k))
        for k in (0, 2): A(pk("add", o+k, o+k, r+8+k))
    for nb in range(5):
        o = ACCG + nb*16 + 8
        A.it(("wvm", [("xl", nb)]))
        for k in (0, 2): A(pk("add", o+k, o+k, o+4+k))
        A.it(("vm", None, f"buffer_store_dwordx4 v[{o}:{o+3}], v13, s[20:23], 0 offen offset:{64*nb} " + OPT.get("of", "").replace("+", " ")))
    if TS:
        A("s_add_u32 s94, s94, 0x10000"); stamp(A, 0)
    WB = int(OPT.get("wb", 0))
    if WB:
        A(f"s_and_b32 s32, s95, {WB}\ns_cmp_lg_u32 s32, {int(OPT.get('wbv', 0))}\ns_cbranch_scc1 K_end\ns_waitcnt vmcnt(0)\nbuffer_wbl2 sc1")

def gen():
    A = E()
    A("s_cmp_ge_u32 s2, 256\ns_cbranch_scc1 K_end")
    IPF = int(OPT.get("ipf", 1))
    A("s_load_dwordx16 s[36:51], s[0:1], 0\ns_load_dwordx16 s[52:67], s[0:1], 64")
    if IPF >= 2:
        A("s_getpc_b64 s[6:7]"); A.label("K_pc")
        n = IPF; A(f"s_lshr_b32 s33, s2, 3\nv_lshrrev_b32 v2, 6, v0\nv_lshl_add_u32 v3, s33, 2, v2\nv_and_b32 v1, 63, v0\nv_min_u32 v4, {n-1}, v1\nv_mad_u32_u24 v3, v3, {n}, v4\nv_lshlrev_b32 v3, 7, v3\nv_add_u32 v3, K_body-K_pc, v3\nv_min_u32 v3, K_end-K_pc, v3\nglobal_load_dword v64, v3, s[6:7]")
    A("v_and_b32 v1, 63, v0\nv_lshrrev_b32 v2, 6, v0\ns_and_b32 s32, s2, 7\nv_readfirstlane_b32 s3, v2")
    A("s_lshr_b32 s33, s2, 3\ns_lshr_b32 s34, s32, 2\ns_and_b32 s35, s32, 3\ns_and_b32 s71, s3, 1\ns_lshr_b32 s72, s3, 1")
    if IPF == 1:
        A("s_getpc_b64 s[6:7]"); A.label("K_pc")
        A("s_lshl2_add_u32 s76, s33, s3\ns_and_b32 s76, s76, 15\ns_lshl_b32 s76, s76, 13\nv_lshlrev_b32 v2, 7, v1\nv_add_u32 v2, s76, v2\nv_min_u32 v2, K_end-K_pc, v2")
        A("s_cmp_lt_u32 s33, 28\ns_cbranch_scc1 K_nopf\nglobal_load_dword v64, v2, s[6:7]"); A.label("K_nopf")
    A("s_lshl2_add_u32 s95, s2, s3\nv_lshrrev_b32 v62, 5, v1\nv_mul_u32_u24 v62, 1280, v62\nv_and_b32 v63, 31, v1\nv_lshl_add_u32 v62, v63, 3, v62")
    if TS:
        A("s_lshl2_add_u32 s94, s2, s3\ns_lshl_b32 s94, s94, 6\ns_waitcnt lgkmcnt(0)"); stamp(A, 0)
    A("s_lshl_b32 s31, s32, 5\ns_add_u32 s31, s31, s33\ns_lshl2_add_u32 s75, s31, s3\ns_mul_i32 s75, s75, 2560")
    UNEV = int(OPT.get("unev", 1))
    if UNEV: A("s_cmp_eq_u32 s35, 3\ns_cselect_b32 s76, 16, 8\ns_cmp_lt_u32 s33, s76\ns_cbranch_scc1 K_ssm\ns_sub_u32 s33, s33, s76\ns_add_u32 s33, s33, 10")
    else: A("s_cmp_lt_u32 s33, 10\ns_cbranch_scc1 K_ssm")
    A(f"s_mul_i32 s35, s35, {24 if UNEV else 22}\ns_add_u32 s33, s33, s35\ns_sub_u32 s33, s33, 10\ns_and_b32 s68, s33, 7\ns_lshl_b32 s34, s34, 3\ns_add_u32 s68, s68, s34\ns_lshr_b32 s69, s33, 3")
    gen_ffn(A)
    A.L.append(";@SEG SPRO"); A.label("K_ssm")
    A(f"s_mul_i32 s35, s35, {8 if UNEV else 10}\ns_add_u32 s33, s33, s35\ns_and_b32 s68, s33, 3\ns_lshl2_add_u32 s68, s34, s68\ns_lshr_b32 s69, s33, 2")
    gen_ssm(A)
    gen_ph2(A)
    A.label("K_end"); A("s_endpgm")
    return A.L

def hflags(L):
    f = OPT.get("hf")
    if not f: return L
    return [l.replace(" sc1", " " + f.replace("+", " ")) if l.startswith("buffer_store_dwordx4 v[") and re.search(r"s(84|85|86|78) offen", l) else l for l in L]
def nulls(L):
    n = OPT.get("null", "")
    o = []
    for l in L:
        if l.startswith("buffer_load"):
            if ("c" in n and "s[24:27], s77" in l) or ("w" in n and "s[20:23], s77" in l) or ("b" in n and "s[24:27], s97" in l) or ("s" in n and l.startswith("buffer_load_dwordx2") and "s[16:19]" in l):
                o.append("s_mov_b32 s7, 0x7f000000"); l = re.sub(r"\], s\d+ offen", "], s7 offen", l)
        o.append(l)
    return o
def fin(L):
    L = nulls(hflags(L))
    seg = {"E": []}; cur = "E"
    for l in L:
        if l.startswith(";@SEG"): cur = l.split()[1]; seg[cur] = []
        else: seg[cur].append(l)
    def dispatch(name, chains, ret):
        o = []
        for w in range(3): o += [f"s_cmp_eq_u32 s3, {w}", f"s_cbranch_scc1 {chains[w]}"]
        return o + [f"s_branch {chains[3]}"]
    TCH = int(OPT.get("tch", 1))
    order = ["FA", "FB", "EP", "SSM", "PH2"]
    def expand(lines, heads):
        o = []
        for l in lines:
            if not l.startswith(";@TOUCH"): o.append(l); continue
            if not TCH: continue
            n = l.split()[1]
            o.append("s_mov_b64 exec, 0")
            if n in ("FA", "FB"): o += dispatch(n, heads[n], None)
            elif n == "S": o += dispatch(n, heads["SSM"], None)
            else: o += [f"s_mov_b32 s92, {n[1]}"] + dispatch(n, heads["PH2" if n == "P1" else "EP"], None)
            o.append(f"TR_{n}:")
            o.append("s_mov_b64 exec, -1")
        return o
    if TCH: seg["SPRO"] += ["TR_P:", "s_cmp_eq_u32 s92, 0", "s_cbranch_scc1 TR_P0", "s_cmp_eq_u32 s92, 2", "s_cbranch_scc1 TR_P2", "s_branch TR_P1"]
    dummy = {k: ["K_end"]*4 for k in order}
    body = []
    for k in order: body += [(k, l) for l in expand(seg[k], dummy)]
    pro = expand(seg["E"] + seg["FBP"] + seg["SPRO"], dummy)
    sz = sizes(pro + ["K_body:"] + [l for _, l in body]); npro = sum(1 for l in pro if not (l.endswith(":") or l.startswith((".", ";"))))
    print("prologue bytes", sum(sz[:npro])); sz = sz[npro:]
    stubs = {k: [] for k in order}; pos = {}; addr = 0; page = -1; ii = 0; seen = set()
    for i, (k, l) in enumerate(body):
        if l.endswith(":") or l.startswith((".", ";")): continue
        if TCH and (addr >> 12 != page or k not in seen):
            page = addr >> 12; seen.add(k); name = f"TS_{len(pos)}"; pos[i] = name; stubs[k].append(name); addr += 4
        addr += sz[ii]; ii += 1
    print({k: len(v) for k, v in stubs.items()}, "bytes", addr)
    nxt = {}; heads = {}
    def chains(lst, tails):
        h = []
        for w in range(4):
            c = lst[w::4]
            for a, b in zip(c, c[1:] + [tails[w]]): nxt[a] = b
            h.append(c[0] if c else tails[w])
        return h
    heads["FA"] = chains(stubs["FA"], ["TR_FA"]*4); heads["FB"] = chains(stubs["FB"], ["TR_FB"]*4)
    heads["SSM"] = chains(stubs["SSM"], ["TR_S"]*4); heads["PH2"] = chains(stubs["PH2"], ["TR_P"]*4); heads["EP"] = chains(stubs["EP"], heads["PH2"][::-1])
    body2 = []
    for k in order: body2 += expand(seg[k], heads)
    out = expand(seg["E"] + seg["FBP"] + seg["SPRO"], heads) + [".p2align 12", "K_body:"]
    for i, l in enumerate(body2):
        if i in pos: out += [pos[i] + ":", f"s_cbranch_execz {nxt[pos[i]]}"]
        out.append(l)
    return out
def main():
    ref = open(f"cdna_kernels/{NAME}.s.ref").read().split("\n")
    hdr = [l for l in ref if l.startswith(";") and "@launch" not in l and "Override" not in l and "grid=ceil" not in l]
    out = "\n".join(hdr) + "\n"
    extra = ""
    if "spin" in OPT:
        op, slot, who = (OPT["spin"].split(",") + ["A"])[:3]; slot = int(slot); ks = {"A": range(16), "S": range(4), "F": range(8, 16), "L": range(15, 16), "M": range(8, 9)}[who]
        off = WS_TS + (slot*8 if slot < 8 else 0x10000)
        out += f"; @launch kernel={NAME}_kernel grid=(256,1,1) block=(256,1,1) lds=163840\n; @launch kernel=spin_kernel grid=(1,1,1) block=(64,1,1) lds=0\n"
        L = ["s_load_dwordx2 s[4:5], s[0:1], 120", "s_waitcnt lgkmcnt(0)", f"s_add_u32 s4, s4, {off}", "s_addc_u32 s5, s5, 0", "v_lshlrev_b32 v1, 6, v0"]
        for k in range(16): L += [f"v_add_u32 v2, {4096*ks[k % len(ks)]}, v1", f"global_load_dword v{4+k}, v2, s[4:5]"]
        L += ["s_waitcnt vmcnt(0)"] + [f"v_{op}_u32 v4, v4, v{4+k}" for k in range(1, 16)] + ["s_nop 1", "v_readlane_b32 s6, v4, 0"]
        for k in range(1, 64): L += [f"v_readlane_b32 s7, v4, {k}", "s_nop 0", f"s_{op}_u32 s6, s6, s7"]
        L += ["s_mov_b32 s12, 0x100000", "SP_l2:", "s_memrealtime s[8:9]", "s_waitcnt lgkmcnt(0)", "s_sub_u32 s10, s8, s6", "s_sub_u32 s12, s12, 1", "s_cbranch_scc1 SP_e", "s_cmp_lt_u32 s10, 8000", "s_cbranch_scc1 SP_l2", "SP_e:", "s_endpgm"]
        extra = kernel_text("spin_kernel", L) + kd("spin_kernel", 32, 0, 32)
    else: out += "; @launch grid=(256,1,1) block=(256,1,1) lds=163840\n"
    out += '.amdgcn_target "amdgcn-amd-amdhsa--gfx950"\n'
    out += kernel_text(NAME + "_kernel", fin(hazard_pass(gen(), "v" in OPT))) + kd(NAME + "_kernel", 256, 256, 102) + extra
    open(sys.argv[1], "w").write(out)
main()
```

```python
import sys
from asmlib import *
NAME = "parallel_sum__ssm_conv_s5__glu_gated_swiglu__prompt"
OPT = dict(u="F", ef="7", sb="10", s1="12", fe="1", cw="3", pq="2", sx="2", ck="16", cw2="19", cf="5", c3="10", bt="2", bs="3", bn="1", bf="3"); OPT.update(a.split("=") for a in sys.argv[2:])
TS = int(OPT.get("ts", 0)); SN = int(OPT.get("sn", 1))
for k_ in [k for k, v in OPT.items() if v == "x"]: del OPT[k_]
WS_AGG = 0; WS_EPOCH = 0x28000; WS_STAT = 0x30000; WS_FLG = 0x40000; WS_XF = 0x80000; WS_CF = 0xA0000; WS_WF = 0xB0000; WS_CSB = 0xC0000; WS_CS = 0xD0000
HS = int(OPT.get("hs", 4096)); WS_W2P = 0x100000; WS_XCH = 0x500000; WS_H = 0xA00000; WS_END = 0x1A00000; WS_TS = 0x1A00000; CS_HALF = 27648
SZ_X = 2048*640*2; SZ_B = 640*640*2; SZ_W = 640*1728*2; SZ_OUT = 2048*640*4
OOB = 0x7F000000
P = dict(x=36, lre=38, lim=40, bre=42, bim=44, cre=46, cim=48, ldt=50, dsk=52, w1=56, w3=58, w2=60, out=62, dbg=64, ws=66)
MF = "v_mfma_f32_16x16x32_bf16"

class E(Asm):
    def __init__(self): super().__init__(); self.reset()
    def reset(self): self.nv = 0; self.tv = {}; self.dv = 0; self.nd = 0; self.td = {}; self.dd = 0
    def vmw(self, tags):
        last = max(self.tv[t] for t in tags)
        if last <= self.dv: return None
        self.dv = last; return min(63, self.nv - last)
    def dsw(self, tags):
        last = max(self.td[t] for t in tags)
        if last <= self.dd: return None
        n = min(15, self.nd - last); self.dd = self.nd - n; return n
    def it(self, x):
        if isinstance(x, str): self(x)
        elif x[0] == "vm": self.nv += 1; self.tv[x[1]] = self.nv; self(x[2])
        elif x[0] == "ds": self.nd += 1; self.td[x[1]] = self.nd; self(x[2])
        elif x[0] == "wvm":
            n = self.vmw(x[1])
            if n is not None: self(f"s_waitcnt vmcnt({n})")
        elif x[0] == "wds":
            n = self.dsw(x[1])
            if n is not None: self(f"s_waitcnt lgkmcnt({n})")
        elif x[0] == "fn": x[1]()
    def its(self, L):
        for x in L: self.it(x)
    def sync(self, vtags, barrier=True):
        n = self.vmw(vtags) if vtags else None
        self.dd = self.nd
        self((f"s_waitcnt vmcnt({n}) lgkmcnt(0)" if n is not None else "s_waitcnt lgkmcnt(0)"))
        if barrier: self("s_barrier")
    def weave(self, mf, streams, fixed=None, cap=2):
        q = []
        for it, lo, hi in streams:
            if it: q.append([(lo + k*(hi-lo)//len(it), x) for k, x in enumerate(it)])
        def cost(x):
            if isinstance(x, str): return sum(2 if l.startswith(TRANS) else (0 if l.startswith("v_mfma") else 1) for l in x.split("\n"))
            return {"vm": 2, "ds": 1}.get(x[0], 0.5)
        debt = 0
        for i, m in enumerate(mf):
            self(m); room = cap - debt
            for x in (fixed[i] if fixed else []): self.it(x); room -= cost(x)
            left = sum(cost(x) for st in q for _, x in st); gaps = len(mf) - i
            room = max(room, left - cap*(gaps-1))
            if left > cap*gaps: room = max(cap, left/gaps)
            while room > 0:
                c = [st for st in q if st and st[0][0] <= i]
                if not c: break
                if int(OPT.get("wv", 1)) and left <= cap*gaps - 2:
                    isvm = lambda t: not isinstance(t[0][1], str) and t[0][1][0] == "vm"
                    if room >= cap and any(isvm(t) for t in c): c = [t for t in c if isvm(t)]
                    else:
                        c = [t for t in c if not isvm(t)]
                        if not c: break
                st = min(c, key=lambda t: t[0][0]); x = st.pop(0)[1]; self.it(x); room -= cost(x)
            debt = max(0, -room)
        for st in q:
            for _, x in st: self.it(x)
def lines(s): return [l.strip() for l in s.split("\n") if l.strip()]
def glue(L):
    out = []; on = False
    for x in L:
        if isinstance(x, str) and on and x.startswith(("s_cselect", "s_mov_b32")): out[-1] += "\n" + x; continue
        on = isinstance(x, str) and x.startswith(("s_cmp", "s_bitcmp"))
        out.append(x)
    return out
def cap(f):
    B = Asm(); f(B); return glue(B.L)
def chop(L, n):
    q = (len(L) + n - 1)//n
    return [L[k*q:(k+1)*q] for k in range(n)]
FE = int(OPT.get("fe", 2)); FF = int(OPT.get("ff", 0)); SE = int(OPT.get("se", 0))
def srd(A, d, lo, size):
    A(f"s_mov_b32 s{d}, s{lo}\ns_mov_b32 s{d+1}, s{lo+1}\ns_mov_b32 s{d+2}, {hex(size)}\ns_mov_b32 s{d+3}, 0x20000")
def srd_sel(A, d, lo0, lo1, size):
    A(f"s_cselect_b32 s{d}, s{lo0}, s{lo1}\ns_cselect_b32 s{d+1}, s{lo0+1}, s{lo1+1}\ns_mov_b32 s{d+2}, {hex(size)}\ns_mov_b32 s{d+3}, 0x20000")
def stamp(A, slot):
    if not TS: return
    A(f"s_memrealtime s[90:91]\ns_memtime s[88:89]\ns_waitcnt lgkmcnt(0)\ns_add_u32 s92, s94, {WS_TS + slot*8}")
    A.dd = A.nd
    A(f"v_mov_b32 v4, s90\nv_mov_b32 v5, s88\nv_mov_b32 v2, s92"); A.it(("vm", None, "global_store_dwordx2 v2, v[4:5], s[66:67]"))
def tick(A, idx, reg):
    if TS < 2: return
    if idx: A(f"v_writelane_b32 v{reg}, s88, {idx-1}")
    A("s_memtime s[88:89]")
def ptick(A, idx, reg):
    if TS < 2: return
    A(f"s_memtime s[88:89]\ns_waitcnt lgkmcnt(0)\nv_writelane_b32 v{reg}, s88, {idx}")
def tockdump(A, n, reg, area):
    if TS < 2: return
    A(f"s_waitcnt lgkmcnt(0)\nv_writelane_b32 v{reg}, s88, {n}\ns_lshl_b32 s92, s95, 8\ns_add_u32 s92, s92, {WS_TS + area}\nv_lshlrev_b32 v5, 2, v1\nv_add_u32 v5, s92, v5")
    A.it(("vm", None, f"global_store_dword v5, v{reg}, s[66:67]"))
def bc(n, which, hi=False):
    lo = [0]*n; h = [1]*n
    for w in which:
        if isinstance(w, tuple): lo[w[0]] = 1
        else: h[w] = 0
    s = ""
    if any(lo): s += " op_sel:[" + ",".join(map(str, lo)) + "]"
    s += " op_sel_hi:[" + ",".join(map(str, h)) + "]"
    return s
def B(r):
    return f"v[{r & ~1}:{(r & ~1)+1}]", (r & 1)
def pk(op, d, *src, neg=()):
    t = []; w = []
    src = list(src)
    if isinstance(src[1], tuple) and src[1][1] & 1:
        src[0], src[1] = src[1], src[0]; neg = tuple({0: 1, 1: 0}.get(n, n) for n in neg)
    for i, s in enumerate(src):
        if isinstance(s, tuple):
            x, hi = B(s[1]); t.append(x); w.append((i,) if hi else i)
        else:
            assert s % 2 == 0; t.append(f"v[{s}:{s+1}]")
    assert d % 2 == 0
    m = bc(len(src), w)
    if neg:
        nn = ",".join("1" if i in neg else "0" for i in range(len(src))); m += f" neg_lo:[{nn}] neg_hi:[{nn}]"
    return f"v_pk_{op}_f32 v[{d}:{d+1}], " + ", ".join(t) + m

def stats_job(R, scr):
    L0, U, T = R, R+10, R+30
    ld = [f"v_mov_b32 v9, {WS_EPOCH}", ("vm", "st", "global_load_dword v9, v9, s[66:67] sc1")]
    for i in range(5): ld.append(("vm", "st", f"buffer_load_dwordx2 v[{L0+2*i}:{L0+2*i+1}], v{T}, s[16:19], s75 offen offset:{256*i}"))
    if int(OPT.get("el", 0)): ld = ld[2:] + ld[:2]
    if int(OPT.get("pg", 0)):
        ld += lines("s_cmp_eq_u32 s3, 1\ns_cselect_b64 s[4:5], s[46:47], s[60:61]\ns_cselect_b32 s6, 0, 0x200000\ns_cmp_eq_u32 s3, 2\ns_cselect_b64 s[4:5], s[48:49], s[4:5]\ns_cselect_b32 s6, 0, s6\ns_cmp_eq_u32 s3, 3\ns_cselect_b64 s[4:5], s[66:67], s[4:5]\ns_cselect_b32 s6, 0x1800000, s6")
        ld += ["v_lshlrev_b32 v66, 21, v1", "v_min_u32 v66, s6, v66", ("vm", None, "global_load_dword v66, v66, s[4:5]")]
    c = [("wvm", ["st"])]
    for i in range(10): c += [f"v_lshlrev_b32 v{U+2*i}, 16, v{L0+i}", f"v_and_b32 v{U+2*i+1}, 0xffff0000, v{L0+i}"]
    def red(v, t):
        o = [f"v_add_f32 v{v}, v{v}, v{v+1}"]
        for r in (8, 4, 2, 1): o.append(f"v_add_f32_dpp v{v}, v{v}, v{v} row_ror:{r} row_mask:0xf bank_mask:0xf")
        o += [f"v_mov_b32 v{t}, v{v}", f"v_permlane16_swap_b32 v{v}, v{t}", f"v_add_f32 v{v}, v{v}, v{t}", f"v_mul_f32 v{v}, 0x3acccccd, v{v}"]
        return o
    c.append(pk("add", T, U, U+2))
    for i in range(2, 10): c.append(pk("add", T, T, U+2*i))
    c += red(T, T+1)
    for i in range(10): c.append(pk("add", U+2*i, U+2*i, ("b", T), neg=(1,)))
    c.append(pk("mul", T+2, U, U))
    for i in range(1, 10): c.append(pk("fma", T+2, U+2*i, U+2*i, T+2))
    c += red(T+2, T+3)
    c += lines(f"""v_cvt_pk_bf16_f32 v{T}, v{T}, v{T+2}
v_and_b32 v{T+2}, 0xffff0000, v{T}
v_add_f32 v{T+2}, 0x3727c5ac, v{T+2}
v_cvt_pk_bf16_f32 v{T+2}, v{T+2}, v{T+2}
v_and_b32 v{T+2}, 0xffff0000, v{T+2}
v_sqrt_f32 v{T+2}, v{T+2}
v_and_b32 v{T}, 0xffff, v{T}
v_cvt_pk_bf16_f32 v{T+2}, v{T+2}, v{T+2}
v_readfirstlane_b32 s96, v9
v_and_b32 v{T+2}, 0xffff0000, v{T+2}
v_or_b32 v{T}, v{T+2}, v{T}
v_lshrrev_b32 v{T+1}, 5, v0
v_lshlrev_b32 v{T+1}, 2, v{T+1}
v_add_u32 v{T+1}, {scr}, v{T+1}
s_add_u32 s96, s96, 1""")
    c.append(("ds", None, f"ds_write_b32 v{T+1}, v{T}"))
    f = lines(f"v_and_b32 v{T+1}, 7, v1\nv_lshlrev_b32 v{T+1}, 2, v{T+1}\nv_add_u32 v{T+1}, {scr}, v{T+1}") + [("ds", "stf", f"ds_read_b32 v{T}, v{T+1}")]
    f += lines(f"v_lshlrev_b32 v{T+2}, 21, v0\nv_and_b32 v{T+2}, 0xfe000000, v{T+2}\nv_lshl_add_u32 v{T+2}, v1, 3, v{T+2}\ns_lshl_b32 s75, s70, 0\ns_lshl_b32 s75, s60, 7\ns_add_u32 s75, s75, {WS_STAT}".replace("s_lshl_b32 s75, s70, 0\n", "").replace("s60", "s31"))
    f += [("wds", ["stf"]), f"v_mov_b32 v{T+1}, s96", ("vm", None, f"buffer_store_dwordx2 v[{T}:{T+1}], v{T+2}, s[8:11], s75 offen sc1")]
    return ld, c, f
def tagtest(tags, exp="s96"):
    L = [f"v_xor_b32 v4, {exp}, v{tags[0]}"]
    for t in tags[1:]: L += [f"v_xor_b32 v5, {exp}, v{t}", "v_or_b32 v4, v4, v5"]
    return L + ["v_cmp_ne_u32 vcc, 0, v4"]
def gcheck(A, name, loads, tags):
    A(f"s_cbranch_vccz {name}_ok\ns_mov_b32 s7, 0x40000")
    A.label(f"{name}_l")
    for x in loads: A(x if isinstance(x, str) else x[2])
    A("s_waitcnt vmcnt(0)"); A.ext(tagtest(tags))
    A(f"s_sub_u32 s7, s7, 1\ns_cbranch_scc1 {name}_ok\ns_cbranch_vccnz {name}_l")
    A.label(f"{name}_ok")
WO = int(OPT.get("wo", 0)); NH = int(OPT.get("nh", 2))
U = [7, 8, 9, 10, 11, 0, 1, 2, 3, 4, 5, 6]
def w2reg(i):
    p = U.index(i)
    return 116 + 20*p if p < 7 else (96 if p == 7 else 20*(p-8))
def w2load(p, base=82):
    i = U[p]
    L = [f"s_add_u32 s79, s{base}, {i*5120}"]
    if i == 2: L += [f"s_cmp_eq_u32 s3, 3\ns_cselect_b32 s79, {hex(OOB)}, s79"]
    for nb in range(5):
        r = w2reg(i) + 4*nb
        L.append(("vm", ("w2", i), f"buffer_load_dwordx4 a[{r}:{r+3}], v{28+(nb>>2)}, s[8:11], s79 offen offset:{(nb&3)*1024} sc1"))
    return L
def w2loads(a, b, base=82): return sum((w2load(p, base) for p in range(a, b)), [])
def spread(A, main, extra, lo=0, hi=None):
    sl = interleave(main, extra, lo, hi) if extra else [[] for _ in main]
    for i, x in enumerate(main):
        A.it(x)
        for y in sl[i]: A.it(y)
def sig_early(A, e, d, t):
    A(f"s_cmp_ge_u32 s{e}, 11\ns_cselect_b32 s{t}, 11, 0\ns_cselect_b32 s{d}, 48, 0\ns_sub_u32 s{t}, s{e}, s{t}\ns_add_u32 s{d}, s{d}, s{t}\ns_mul_i32 s{t}, s{t}, 43\ns_lshr_b32 s{t}, s{t}, 7\ns_mul_i32 s{t}, s{t}, 9\ns_add_u32 s{d}, s{d}, s{t}")
def sig_late(A, l, t):
    A(f"s_lshr_b32 s{t}, s{l}, 2\ns_lshl_b32 s{t}, s{t}, 3\ns_add_u32 s{l}, s{l}, s{t}\ns_add_u32 s{l}, s{l}, 3")
def sig_ssm(A, k, t):
    A(f"s_mul_i32 s{t}, s{k}, 52429\ns_lshr_b32 s{t}, s{t}, 18\ns_mul_i32 s{t}, s{t}, 7\ns_add_u32 s{k}, s{k}, s{t}\ns_add_u32 s{k}, s{k}, 7")
def tlb_touch():
    T = int(OPT.get("tlb", 0))
    if not T: return []
    return lines(f"v_mul_u32_u24 v6, {hex(T*1024)}, v0\nv_min_u32 v7, {SZ_OUT-4}, v6") + [("vm", None, "buffer_load_dword v6, v6, s[8:11], 0 offen sc1"), ("vm", None, "global_load_dword v7, v7, s[62:63]")]
ORD = OPT.get("ord", "A")
def w2warm():
    return lines("s_lshr_b32 s75, s2, 6\ns_mul_i32 s75, s75, 6400\ns_add_u32 s75, s75, s82\ns_add_u32 s75, s75, 10240\nv_min_u32 v6, 49, v1\nv_lshlrev_b32 v6, 7, v6") + [("vm", None, "buffer_load_dword v7, v6, s[8:11], s75 offen sc1")]
def early_setup(A):
    srd(A, 8, P["ws"], WS_END)
    A("v_lshlrev_b32 v28, 4, v1\nv_add_u32 v29, 4096, v28")
    A("v_lshlrev_b32 v8, 20, v1\nv_and_b32 v8, 0xfe000000, v8\nv_lshl_add_u32 v8, v1, 2, v8")
def ph2_setup(A):
    A("s_and_b32 s28, s2, 1\ns_bfe_u32 s32, s2, 0x20001\ns_lshr_b32 s33, s2, 6\ns_lshl2_add_u32 s80, s32, s33\ns_bfe_u32 s81, s2, 0x30003\ns_lshl2_add_u32 s29, s28, s3")
    A(f"s_mul_i32 s32, s29, 12\ns_mul_i32 s33, s81, 96\ns_add_u32 s33, s33, s32\ns_mul_i32 s82, s33, 5120\ns_add_u32 s82, s82, {WS_W2P}")
    A(f"s_lshl1_add_u32 s33, s80, s28\ns_mul_i32 s34, s33, 96\ns_add_u32 s34, s34, s32\ns_mul_i32 s83, s34, {HS}\ns_add_u32 s83, s83, {WS_H}")
    A(f"s_xor_b32 s33, s33, 1\ns_mul_i32 s34, s33, 96\ns_add_u32 s34, s34, s32\ns_mul_i32 s30, s34, {HS}\ns_add_u32 s30, s30, {WS_H}")
    A(f"s_lshl_b32 s93, s80, 14\ns_add_u32 s93, s93, {WS_FLG}")
ACCG = 96; ACCK = 176
UF = OPT.get("u", "S") == "F"
if UF:
    STEPS = [("G",i) for i in range(3)] + [("K",i) for i in range(3)] + [("G",i) for i in range(3, 12)] + [("K",i) for i in range(3, 12)]
    AP = [[216, 220, 224, 228], [232, 236, 240, 244], [96, 100, 104, 108]]; G0, CHK = 0, {3: 1, 7: 2}
else:
    STEPS = [("G",i) for i in U[:5]] + [("K",i) for i in U[:3]] + [("G",i) for i in U[5:]] + [("K",i) for i in U[3:]]
    AP = [[b+4*t for t in range(4)] for b in (112, 128, 144)]; G0, CHK = 2, {5: 0, 8: 1}
POOL = [[f"v{b+4*t}" for t in range(4)] for b in (32, 48, 64, 80)] + [[f"a{r}" for r in q] for q in AP]
HBUF = [0,1,2,3,0,1,2,3,0,1,2,4,5,6,3,0,1,2,4,5,6,3,0,1]
def Hr(n, tb):
    b = POOL[HBUF[n]][tb]; r = int(b[1:]); return f"{b[0]}[{r}:{r+3}]"
FN = {0: 6, 1: 8, 2: 3, 3: 1, 4: 5}
def fbase(g):
    if g == 0: return lines("s_mul_i32 s31, s28, 22\ns_mul_i32 s32, s3, 6\ns_add_u32 s31, s31, s32\ns_min_u32 s31, s31, 38\ns_lshl_b32 s31, s31, 7\ns_add_u32 s31, s31, s93")
    if g == 1: return lines("s_mul_i32 s31, s29, 172\ns_lshr_b32 s31, s31, 7\ns_lshl_b32 s31, s31, 9\ns_add_u32 s31, s31, s93\ns_add_u32 s31, s31, 5632")
    if g == 2: return lines("s_mul_i32 s31, s29, 5\ns_lshr_b32 s31, s31, 1\ns_lshl_b32 s31, s31, 7\ns_add_u32 s31, s31, s93\ns_add_u32 s31, s31, 11264")
    if g == 3: return lines(f"s_xor_b32 s31, s95, 4\ns_lshl_b32 s31, s31, 7\ns_add_u32 s31, s31, {WS_XF}")
    if g == 4: return lines(f"s_lshl_b32 s31, s81, 3\ns_add_u32 s31, s31, s29\ns_mul_i32 s31, s31, 640\ns_add_u32 s31, s31, {WS_CF}")
    return lines(f"s_mul_i32 s31, s29, 7680\ns_add_u32 s31, s31, {WS_WF}\ns_mul_i32 s32, s81, 5\ns_cmp_eq_u32 s3, 3\ns_cselect_b32 s33, 2, 63")
def faddr(g):
    if g < 5: return [f"v_min_u32 v9, {FN[g]-1}, v1", "v_lshlrev_b32 v9, 7, v9"]
    return lines("v_lshrrev_b32 v9, 1, v1\nv_min_u32 v9, 6, v9\nv_cmp_eq_u32 vcc, s33, v9\nv_and_b32 v2, 1, v1\nv_lshl_add_u32 v2, v2, 2, s32\nv_cndmask_b32 v9, v9, 1, vcc\nv_lshrrev_b32 v2, 3, v2\nv_mad_u32_u24 v9, v9, 5, v2\nv_lshlrev_b32 v9, 7, v9")
def fpoll(g): return glue(fbase(g)) + faddr(g) + [("vm", "fl", "buffer_load_dword v9, v9, s[8:11], s31 offen sc1")]
def fcheck(A, name, g, pre=None):
    A.it(("wvm", ["fl"]))
    A(f"v_cmp_ne_u32 vcc, s96, v9\ns_cbranch_vccz {name}_ok\ns_mov_b32 s7, 0x40000")
    if pre: A(pre)
    A.label(f"{name}_l")
    A.ext(fbase(g) + faddr(g))
    A(f"buffer_load_dword v9, v9, s[8:11], s31 offen sc1\ns_waitcnt vmcnt(0)\nv_cmp_ne_u32 vcc, s96, v9\ns_sub_u32 s7, s7, 1\ns_cbranch_scc1 {name}_ok\ns_cbranch_vccnz {name}_l")
    A.label(f"{name}_ok")
def ftest(dst, src):
    return [("wvm", ["fl"]), f"v_cmp_ne_u32 vcc, s96, v9\ns_nop 0\ns_cmp_eq_u64 vcc, 0\ns_cselect_b32 s{dst}, s{src}, {hex(OOB)}"]
def fredo(A, name, g, dst, src, loads, pre=None):
    A(f"s_cmp_eq_u32 s{dst}, s{src}\ns_cbranch_scc1 {name}_done\ns_mov_b32 s7, 0x40000")
    if pre: A(pre)
    A.label(f"{name}_l")
    A.ext(fbase(g) + faddr(g))
    A(f"buffer_load_dword v9, v9, s[8:11], s31 offen sc1\ns_waitcnt vmcnt(0)\nv_cmp_ne_u32 vcc, s96, v9\ns_sub_u32 s7, s7, 1\ns_cbranch_scc1 {name}_ok\ns_cbranch_vccnz {name}_l")
    A.label(f"{name}_ok")
    for x in loads: A(x if isinstance(x, str) else x[2])
    if name == "FR": A("s_waitcnt vmcnt(0)")
    A.label(f"{name}_done")
def hload(n, base=None):
    hf, i = STEPS[n]
    L = [f"s_add_u32 s77, s{base or (30 if hf == 'G' else 83)}, {i*HS}"]
    if i == 2: L += [f"s_cmp_eq_u32 s3, 3\ns_cselect_b32 s77, {hex(OOB)}, s77"]
    for tb in range(4): L.append(("vm", ("h", n), f"buffer_load_dwordx4 {Hr(n,tb)}, v28, s[8:11], s77 offen offset:{tb*1024} sc1"))
    return L
XS = 81920
def ph2_addr(A):
    srd(A, 24, P["dsk"], 1280); srd(A, 20, P["out"], SZ_OUT)
    A("s_lshl1_add_u32 s32, s80, s28\ns_lshl_b32 s32, s32, 6\ns_lshl_b32 s33, s3, 4\ns_add_u32 s32, s32, s33\nv_and_b32 v2, 12, v1\nv_lshrrev_b32 v3, 4, v1\nv_add_u32 v2, v2, v3\nv_mul_u32_u24 v12, 160, v2\nv_add_u32 v2, s32, v2")
    A("v_lshrrev_b32 v15, 3, v2\nv_lshlrev_b32 v15, 7, v15\nv_and_b32 v3, 7, v2\nv_lshl_add_u32 v15, v3, 3, v15\nv_mul_u32_u24 v2, 2560, v2")
    A("s_mul_i32 s98, s81, 160\ns_mul_i32 s97, s32, 1280\ns_add_u32 s97, s97, s98\ns_lshl_b32 s33, s98, 1\nv_and_b32 v3, 3, v1\nv_lshl_add_u32 v13, v3, 4, v2\nv_add_u32 v13, s33, v13")
    A(f"s_mul_i32 s101, s3, 20480\ns_add_u32 s100, s101, {XS}\nv_lshl_add_u32 v14, v3, 3, s100\nv_add_u32 v12, v12, v14\ns_movk_i32 s33, 6554")
    for i in range(3):
        A(f"v_add_u32 v2, {64*i}, v1\nv_min_u32 v2, 159, v2\nv_mul_u32_u24 v3, s33, v2\nv_lshrrev_b32 v3, 16, v3\nv_mul_u32_u24 v3, 1120, v3\nv_lshl_add_u32 v{16+i}, v2, 4, v3")
    A("v_min_u32 v19, 144, v28\ns_mul_i32 s75, s3, 5120\nv_add_u32 v23, s75, v28\nv_add_u32 v24, 40960, v23")
    A(f"s_mul_i32 s4, s95, 5120\ns_add_u32 s4, s4, {WS_XCH}\ns_xor_b32 s5, s95, 4\ns_mul_i32 s5, s5, 5120\ns_add_u32 s5, s5, {WS_XCH}\ns_lshl_b32 s6, s95, 7\ns_add_u32 s6, s6, {WS_XF}")
FST = [f"s_mov_b32 s75, {WS_STAT}", ("vm", "fin", "buffer_load_dwordx2 v[10:11], v15, s[8:11], s75 offen sc1")]
def fin_loads():
    L = []
    for i in range(3): L += [f"s_add_u32 m0, s100, {1024*i}", ("vm", "fin", f"buffer_load_dwordx4 v{16+i}, s[16:19], s97 offen lds")]
    return L + ["s_add_u32 m0, s100, 3072", ("vm", "fin", "buffer_load_dwordx4 v19, s[24:27], s98 offen lds")] + FST
PARK = [f"a{r}" for r in range(80, 96)] + ["v6", "v7", "v26", "v27"]
def fin_base(A, name):
    A.ext(tagtest([11])); gcheck(A, name, FST, [11])
    for nb in range(5):
        r = ACCG + 8*nb
        A(f"ds_read_b64 v[{r}:{r+1}], v12 offset:{32*nb}\nds_read_b64 v[{r+2}:{r+3}], v14 offset:{3072+32*nb}")
    A("v_and_b32 v16, 0xffff0000, v10\nv_rcp_f32 v16, v16\nv_lshlrev_b32 v10, 16, v10\ns_waitcnt lgkmcnt(0)")
    for k in range(10):
        r = ACCG + 8*(k >> 1); x = r + (k & 1); d = x + 2; o = r + 4 + 2*(k & 1)
        A(f"v_lshlrev_b32 v{o}, 16, v{x}\nv_and_b32 v{o+1}, 0xffff0000, v{x}\nv_lshlrev_b32 v18, 16, v{d}\nv_and_b32 v19, 0xffff0000, v{d}")
        A.ext([pk("add", 20, o, ("b", 10), neg=(1,)), pk("mul", 18, 18, ("b", 16)), pk("fma", o, 20, 18, o)])
        for e in range(2):
            p = PARK[2*k+e]; A(f"v_accvgpr_write_b32 {p}, v{o+e}" if p[0] == "a" else f"v_mov_b32 {p}, v{o+e}")
GROUPS = [[n] for n in range(13)] + [[13, 14]] + [[n] for n in range(15, 21)] + [[21, 22, 23]]
ISSUE = {0: (3,), 1: (4,), 2: (5,), 3: (6,), 4: (7,), 5: (8,), 6: (9,), 7: (10,), 8: (11, 12), 9: (13,), 10: (14,), 11: (15,), 12: (16,), 13: (17, 18, 19), 15: (20, 21), 16: (22,), 17: (23,)}
for k_, ns_ in ISSUE.items():
    for n_ in ns_:
        prev_ = [m for m in range(n_) if HBUF[m] == HBUF[n_]]
        assert (not prev_ or prev_[-1] < k_) and (HBUF[n_] < 4 or k_ > 7)
def acc2(hf, nb, tb): return (ACCG if hf == "G" else ACCK) + (tb*5+nb)*4

W_SLOT = 20480; NWS = 4; X_BASE = NWS*W_SLOT; X_SLOT = 16384; F_SCR = X_BASE + 3*X_SLOT
def gen_ffn(A):
    import copy
    A("s_mul_i32 s70, s69, 160\ns_min_u32 s70, s70, 1568")
    A("s_lshl_b32 s32, s68, 7\ns_lshl_b32 s33, s3, 5\ns_add_u32 s32, s32, s33")
    A("v_lshrrev_b32 v2, 3, v1\nv_add_u32 v2, s32, v2\nv_mul_u32_u24 v2, 1280, v2\nv_lshrrev_b32 v3, 4, v1\nv_xor_b32 v3, v3, v1\nv_and_b32 v3, 7, v3\nv_lshlrev_b32 v3, 4, v3")
    A(f"v_add_u32 v15, v2, v3\nv_xor_b32 v3, 64, v3\nv_add_u32 v16, v2, v3\nv_add_u32 v16, {8*1280-1024}, v16\nv_add_u32 v17, {16*1280}, v15\nv_add_u32 v18, {16*1280}, v16")
    A(f"s_mul_i32 s73, s3, 5120\ns_lshl_b32 s74, s3, 12\ns_add_u32 s74, s74, {X_BASE}")
    wc = lines("s_mul_i32 s32, s71, 320\ns_lshl_b32 s33, s70, 1\ns_movk_i32 s34, 3277\nv_add_u32 v6, s32, v1")
    wce = []
    for i in range(5):
        wc += lines(f"v_add_u32 v2, {64*i}, v6\nv_mul_u32_u24 v3, s34, v2\nv_lshrrev_b32 v3, 16, v3\nv_lshrrev_b32 v5, 2, v3\nv_and_b32 v5, 2, v5\nv_xor_b32 v2, v2, v5")
        wc += lines(f"v_mul_u32_u24 v3, 3136, v3\nv_lshl_add_u32 v3, v2, 4, v3\nv_add_u32 v{10+i}, s33, v3") + ([f"v_subrev_u32 v{10+i}, {1024*(i&3)}, v{10+i}"] if i & 3 else [])
        wce.append(len(wc))
    def dmaW(s):
        L = [f"s_add_u32 m0, s73, {(s%NWS)*W_SLOT}", f"s_mov_b32 s77, {s*32*3456}"]
        for i in range(5):
            if i == 4: L.append(f"s_add_u32 m0, s73, {(s%NWS)*W_SLOT+4096}")
            L.append(("vm", ("W", s), f"buffer_load_dwordx4 v{10+i}, s[12:15], s77 offen offset:{1024*(i&3)} lds"))
        return L
    def dmaX(u, hs=(0, 1)):
        L = []
        for h in hs:
            L += [f"s_add_u32 m0, s74, {(u%3)*X_SLOT+2048*h}", f"s_movk_i32 s78, {u*128}"]
            for i in range(2): L.append(("vm", ("X", u), f"buffer_load_dwordx4 v{15+2*h+i}, s[16:19], s78 offen offset:{1024*i} lds"))
        return L
    st_ld, st_c, st_f = stats_job(32, X_BASE + 2*X_SLOT)
    def lds_setup(A):
        early_setup(A)
        A("v_lshrrev_b32 v2, 4, v1\nv_bfe_u32 v3, v1, 2, 2\nv_lshl_add_u32 v3, v2, 3, v3\nv_mul_u32_u24 v3, 320, v3")
        A("v_and_b32 v4, 3, v1\nv_lshl_add_u32 v3, v4, 3, v3\nv_and_b32 v4, 1, v2\nv_lshlrev_b32 v4, 5, v4")
        A("s_mul_i32 s75, s72, 192\nv_add_u32 v5, s75, v3\nv_add_u32 v20, v5, v4\nv_sub_u32 v21, v5, v4")
        A("s_lshl_b32 s75, s72, 5\ns_add_u32 s75, s75, 128\nv_xor_b32 v5, s75, v4\nv_add_u32 v22, v3, v5")
        for i in range(3): A(f"v_add_u32 v{23+i}, {3*W_SLOT}, v{20+i}")
        A("v_and_b32 v3, 15, v1\nv_lshrrev_b32 v4, 1, v3\nv_xor_b32 v4, v4, v2\nv_lshlrev_b32 v4, 4, v4\nv_lshl_add_u32 v3, v3, 7, v4")
        A(f"s_lshl_b32 s75, s71, 13\ns_add_u32 s75, s75, {X_BASE}\nv_add_u32 v26, s75, v3\nv_xor_b32 v27, 64, v26")
    PEND = []
    A.reset(); A.nv = 6; A.tv["st"] = 6
    spread(A, wc[:wce[2]], dmaX(0))
    A("s_cmp_eq_u32 s72, 0"); srd_sel(A, 12, P["w1"], P["w3"], SZ_W)
    w0 = dmaW(0); spread(A, wc[wce[2]:], w0[:5]); A.its(w0[5:])
    def start(role, pre, post, side):
        A.L.append(f";@TOUCH {role}")
        A(f"s_branch {role}_a"); A.L.append(f";@SEG {role}"); A.label(f"{role}_a")
        pre(A); post(A); lds_setup(A)
        A.its(st_c[:1])
        spread(A, st_c[1:], dmaW(1) + side, 0, len(st_c) - 10)
    def hs(A):
        A("s_lshl1_add_u32 s32, s69, s72"); sig_early(A, 32, 84, 33)
        A("s_mul_i32 s33, s69, 3\ns_cmp_eq_u32 s69, 10\ns_cselect_b32 s34, 1, 0\ns_sub_u32 s33, s33, s34\ns_lshl1_add_u32 s85, s72, s33\ns_add_u32 s86, s33, 1")
        sig_late(A, 85, 34); sig_late(A, 86, 34)
        A(f"s_lshl1_add_u32 s33, s68, s71\ns_mul_i32 s34, s33, 96")
        for r in (84, 85, 86): A(f"s_add_u32 s{r}, s{r}, s34\ns_mul_i32 s{r}, s{r}, {HS}\ns_add_u32 s{r}, s{r}, {WS_H}")
        A(f"s_cmp_eq_u32 s32, 19\ns_cselect_b32 s85, {hex(OOB)}, s85")
        A(f"s_lshl1_add_u32 s87, s32, s71\ns_lshl_b32 s33, s68, 7\ns_add_u32 s87, s87, s33\ns_lshl_b32 s87, s87, 7\ns_add_u32 s87, s87, {WS_FLG}")
    late_setup = [cap(ph2_setup), []] + chop(cap(hs), 2)
    ep_ld = lines(f"s_mul_i32 s75, s72, 1728\ns_mul_i32 s76, s71, 80\ns_add_u32 s75, s75, s76\ns_add_u32 s75, s75, s70\ns_lshl_b32 s75, s75, 3\ns_add_u32 s75, s75, {WS_CS}\ns_add_u32 s76, s75, {CS_HALF}\nv_min_u32 v2, 624, v28")
    ep_ld += [("vm", "ep", "buffer_load_dwordx4 v[56:59], v2, s[8:11], s75 offen sc1"), ("vm", "ep", "buffer_load_dwordx4 v[60:63], v2, s[8:11], s76 offen sc1")]
    ep_ld += lines(f"v_and_b32 v2, 7, v1\nv_lshlrev_b32 v2, 3, v2\nv_and_b32 v3, 8, v1\nv_lshl_add_u32 v2, v3, 4, v2\ns_lshl1_add_u32 s75, s68, s71\ns_lshl_b32 s75, s75, 10\ns_add_u32 s75, s75, {WS_STAT}")
    for tb in range(4): ep_ld.append(("vm", "ep", f"buffer_load_dwordx2 v[{64+2*tb}:{65+2*tb}], v2, s[8:11], s75 offen offset:{256*tb} sc1"))
    ep_tags = [57, 59, 61, 63, 65, 67, 69, 71]
    ep_t = [("wvm", ["ep"])] + tagtest(ep_tags)
    ep_w = lines(f"v_add_f32 v56, v56, v60\nv_add_f32 v57, v58, v62\ns_lshl_b32 s75, s72, 10\ns_mul_i32 s76, s71, 320\ns_add_u32 s75, s75, s76\ns_add_u32 s75, s75, {F_SCR}\nv_min_u32 v2, 39, v1\nv_lshl_add_u32 v2, v2, 3, s75")
    ep_w += [("ds", None, "ds_write_b64 v2, v[56:57]")]
    ep_r = lines(f"v_and_b32 v2, 48, v1\ns_mul_i32 s75, s72, 384\ns_add_u32 s75, s75, {F_SCR}\nv_add_u32 v3, s75, v2\ns_lshl_b32 s75, s72, 6\ns_add_u32 s75, s75, {F_SCR+256}\nv_add_u32 v2, s75, v2")
    for j in range(10):
        pr, m = j >> 1, j & 1
        ep_r.append(("ds", None, f"ds_read_b128 v[{56+4*j}:{59+4*j}], v{2 if pr == 4 else 3} offset:{1024*m + (0 if pr == 4 else 64*pr)}"))
    ep_c = []
    for tb in range(4):
        ep_c += lines(f"v_lshlrev_b32 v{44+tb}, 16, v{64+2*tb}\nv_and_b32 v{52+tb}, 0xffff0000, v{64+2*tb}\nv_rcp_f32 v{48+tb}, v{52+tb}\nv_mul_f32 v{52+tb}, v{52+tb}, v{52+tb}\nv_mul_f32 v{48+tb}, 0xbfb8aa3b, v{48+tb}")
    ep_a = lines("v_lshrrev_b32 v2, 4, v1\nv_and_b32 v3, 1, v2\nv_lshlrev_b32 v3, 10, v3\nv_lshrrev_b32 v2, 1, v2\nv_lshl_add_u32 v3, v2, 8, v3")
    ep_a += lines("v_and_b32 v2, 15, v1\nv_lshl_add_u32 v3, v2, 4, v3\ns_lshl_b32 s75, s72, 9\nv_add_u32 v30, s75, v3\nv_mov_b32 v31, s96\ns_add_u32 s99, s87, 5632")
    ACC = 96
    def acc(j, tb): return ACC + (j*4+tb)*4
    def Wr(par, j): return par*56 + j*4
    def Xr(par, tb): return par*56 + 40 + tb*4
    def reads(s):
        par = s & 1; L = []; sl = s % NWS; hi = 3 if sl >= 3 else 0; so = (sl - hi)*W_SLOT
        for tb in range(4): L.append(("ds", None, f"ds_read_b128 a[{Xr(par,tb)}:{Xr(par,tb)+3}], v{26+(s&1)} offset:{((s>>1)%3)*X_SLOT + tb*2048}"))
        for j in range(10):
            pr, m = j >> 1, j & 1; ar = 22 if pr == 4 else 20 + (pr & 1); co = 0 if pr == 4 else pr*32
            for hh in range(2): L.append(("ds", None, f"ds_read_b64_tr_b16 a[{Wr(par,j)+2*hh}:{Wr(par,j)+2*hh+1}], v{ar+hi} offset:{so + m*10240 + hh*1280 + co}"))
        return L
    NL = int(OPT.get("nl", 7)); L0 = int(OPT.get("l0", 0)); wl = [[]]*L0 + chop(w2loads(0, NL), 9-L0)
    def loop(role, mem, side, xt={}):
        M = {0: dmaX(1) + dmaW(2), 1: dmaW(3) + dmaX(2), 2: dmaW(4) + dmaW(5), 3: dmaX(3) + dmaW(6), 4: dmaW(7) + dmaW(8), 5: dmaX(4) + dmaW(9), 6: dmaW(10) + dmaX(5)}
        for s in range(7, 16): M[s] = dmaW(s+4) + (dmaX((s+5) >> 1, ((s+1) & 1,)) if s < 15 else [])
        if ORD == "C": M[0] = PEND + dmaW(3); M[1] = dmaX(2) + dmaW(4); M[2] = dmaW(5)
        if "flat" in OPT:
            M = {0: dmaX(1) + dmaW(2), 1: dmaW(3) + dmaX(2), 2: dmaW(4) + dmaW(5)}
            for s in range(3, 17): M[s] = dmaW(s+3)
            M[3] += dmaX(3)
            for u in range(4, 10):
                M[2*u-4] += dmaX(u, (0,)); M[2*u-3] += dmaX(u, (1,))
        for s, L in mem.items(): M[s] = M[s] + ([x if isinstance(x, str) else (x[0], x[1], x[2].replace("s77 offen", "s76 offen")) for x in L] if "noside" in OPT else L)
        M[15] += wl[0]
        for s in range(16, 20): M[s] = M.get(s, []) + wl[2*s-31] + wl[2*s-30]
        S = dict(side)
        for k, L in {5: late_setup[0], 6: late_setup[2], 8: late_setup[3], 11: ep_a, 12: fpoll(4) + ep_ld[10:], 13: ep_ld[:10], 15: fpoll(5), 16: ep_t, 17: ep_w + ep_c, 18: ep_r, 19: cap(ph2_addr)}.items():
            S[k] = S.get(k, []) + L
        if "wf" in OPT: S[int(OPT["wf"])] = S.get(int(OPT["wf"]), []) + w2warm()
        A.L.append(f";@TOUCH P{0 if role == 'FA' else 2}")
        A.sync([("X", 0), ("W", 0)]); stamp(A, 1)
        A.its(reads(0))
        for s in range(20):
            tags = ([("W", s+1), ("X", (s+1) >> 1)] if s < 19 else []) + xt.get(s, [])
            if s == 15: fcheck(A, role + "C", 4)
            if s == 17: gcheck(A, role + "G", ep_ld, ep_tags); fcheck(A, role + "P", 5)
            A.sync(tags)
            tick(A, s, 7)
            par = s & 1; mf = []
            for j in range(10):
                for tb in (range(4) if j % 2 == 0 or not SN else range(3, -1, -1)):
                    c = acc(j, tb); mf.append(f"{MF} v[{c}:{c+3}], a[{Wr(par,j)}:{Wr(par,j)+3}], a[{Xr(par,tb)}:{Xr(par,tb)+3}], " + (f"v[{c}:{c+3}]" if s else "0"))
            A.weave(mf, [(reads(s+1) if s < 19 else [], 0, 30), (M.get(s, []), 0, 39), (S.get(s, []), 1, 39)])
    A("s_mul_i32 s34, s69, 5\ns_lshr_b32 s34, s34, 1\ns_and_b32 s33, s68, 7\ns_lshr_b32 s35, s68, 3\ns_lshl1_add_u32 s32, s33, s35\ns_and_b32 s76, s69, 1\ns_lshl2_add_u32 s76, s76, 8\ns_cmp_ge_u32 s32, s76\ns_cbranch_scc1 FB_p")
    snap = (A.nv, dict(A.tv), A.dv, A.nd, dict(A.td), A.dd)
    def fa0(A):
        A(f"s_lshl2_add_u32 s32, s34, s32\ns_lshr_b32 s76, s33, 1\ns_add_u32 s76, s76, s34\ns_and_b32 s33, s33, 1\ns_mul_i32 s33, s33, 27\ns_add_u32 s33, s33, s76\ns_mov_b32 s34, s35")
        A(f"s_lshl_b32 s76, s76, 7\ns_lshl2_add_u32 s97, s34, s3\ns_mul_i32 s97, s97, {8*3456}\ns_add_u32 s97, s97, s76")
        A("v_lshrrev_b32 v2, 3, v1\nv_mul_u32_u24 v2, 3456, v2\nv_and_b32 v3, 7, v1\nv_lshl_add_u32 v30, v3, 4, v2")
    def fa1(A):
        A("s_cmp_lt_u32 s33, 27"); srd_sel(A, 24, P["w1"], P["w3"], SZ_W)
    def fa2(A):
        A(f"s_lshl_b32 s98, s33, 9\ns_mul_i32 s34, s34, {CS_HALF}\ns_add_u32 s98, s98, s34\ns_add_u32 s98, s98, {WS_CS}\ns_cmp_eq_u32 s3, 0\ns_cselect_b32 s98, s98, {hex(OOB)}")
        A("v_and_b32 v2, 15, v1\nv_and_b32 v3, 1, v1\nv_lshlrev_b32 v3, 4, v3\nv_mov_b32 v4, 0x3f80\nv_lshlrev_b32 v3, v3, v4\nv_lshrrev_b32 v2, 1, v2")
        for r in range(4): A(f"v_cmp_eq_u32 vcc, {r}, v2\nv_cndmask_b32 v{72+r}, 0, v3, vcc")
        A(f"v_and_b32 v2, 7, v1\nv_lshlrev_b32 v2, 5, v2\nv_and_b32 v3, 16, v1\nv_add_u32 v2, v2, v3\ns_lshl_b32 s75, s3, 8\ns_add_u32 s75, s75, {F_SCR}\nv_add_u32 v2, s75, v2\nv_and_b32 v3, 32, v1\nv_lshl_add_u32 v80, v3, 5, v2")
        A(f"v_lshlrev_b32 v82, 2, v1\nv_add_u32 v81, {F_SCR}, v82\nv_lshlrev_b32 v82, 3, v1")
    cs_ld = []
    for i in range(10): cs_ld += [f"s_add_u32 s77, s97, {i*64*3456}", ("vm", "csl", f"buffer_load_dwordx4 a[{112+4*i}:{115+4*i}], v30, s[24:27], s77 offen")]
    cs_c = [("wvm", ["csl"])]
    for i in range(10): cs_c.append(f"{MF} v[76:79], v[72:75], a[{112+4*i}:{115+4*i}], " + ("v[76:79]" if i else "0"))
    cs_c += ["s_nop 0"]*2
    for e in range(4): cs_c.append(f"v_add_f32_dpp v{76+e}, v{76+e}, v{76+e} row_ror:8 row_mask:0xf bank_mask:0xf")
    cs_c.append(("ds", None, "ds_write_b128 v80, v[76:79]"))
    cs_f = [("ds", "csf", f"ds_read_b32 v{72+w}, v81 offset:{256*w}") for w in range(4)]
    cs_f += [("wds", ["csf"]), "v_add_f32 v72, v72, v73", "v_add_f32 v74, v74, v75", "v_mov_b32 v73, s96", "v_add_f32 v72, v72, v74", ("vm", None, "buffer_store_dwordx2 v[72:73], v82, s[8:11], s98 offen sc1")]
    CB = F_SCR + 4096
    def fc1(A):
        A("s_cmp_eq_u32 s72, 0"); srd_sel(A, 20, P["cre"], P["cim"], SZ_B)
        A(f"s_and_b32 s4, s32, 7\ns_lshr_b32 s5, s32, 3\ns_lshl1_add_u32 s99, s4, s71\ns_mul_i32 s99, s99, 51200\ns_lshl_b32 s75, s5, 7\ns_add_u32 s99, s99, s75\ns_cmp_lt_u32 s32, 80\ns_cselect_b32 s99, s99, {hex(OOB)}")
        A(f"s_add_u32 s101, s73, {CB}\nv_lshrrev_b32 v2, 3, v1\nv_mul_u32_u24 v2, 1280, v2\nv_lshrrev_b32 v3, 4, v1\nv_xor_b32 v3, v3, v1\nv_and_b32 v3, 7, v3\nv_lshl_add_u32 v2, v3, 4, v2\ns_lshl_b32 s75, s71, 6\nv_xor_b32 v84, s75, v2\nv_xor_b32 v85, 64, v84")
    def fc2(A):
        A(f"s_lshl2_add_u32 s5, s5, s3\ns_mul_i32 s6, s4, 40\ns_add_u32 s6, s6, s5\ns_lshl_b32 s6, s6, 7\ns_add_u32 s6, s6, {WS_CF}")
        sig_ssm(A, 5, 75)
        A(f"s_mul_i32 s4, s4, 96\ns_add_u32 s5, s5, s4\ns_mul_i32 s100, s5, 5120\ns_add_u32 s100, s100, {WS_W2P}\ns_cmp_lt_u32 s32, 80\ns_cselect_b32 s100, s100, {hex(OOB)}\ns_cselect_b32 s6, s6, {hex(OOB)}")
        A(f"v_and_b32 v2, 15, v1\nv_lshrrev_b32 v3, 5, v1\ns_lshl_b32 s75, s3, 1\nv_add_u32 v3, s75, v3\nv_lshrrev_b32 v4, 1, v2\nv_xor_b32 v3, v3, v4\nv_lshlrev_b32 v3, 4, v3\nv_lshl_add_u32 v3, v2, 7, v3")
        A(f"v_bfe_u32 v4, v1, 4, 1\nv_lshl_add_u32 v3, v4, 3, v3\nv_add_u32 v86, {CB}, v3\ns_mov_b32 s4, 0x05040100\ns_mov_b32 s5, 0x07060302")
    c_ld = []
    for i in range(5): c_ld += [f"s_add_u32 m0, s101, {1024*i}", f"s_add_u32 s77, s99, {10240*i}", ("vm", "cl", f"buffer_load_dwordx4 v{84+(i&1)}, s[20:23], s77 offen lds")]
    c_r = [("ds", None, f"ds_read_b64 v[{32+4*nb+2*m}:{33+4*nb+2*m}], v86 offset:{2048*nb + 10240*m}") for nb in range(5) for m in range(2)]
    c_s = []
    for nb in range(5):
        c_s.append("\n".join(f"v_perm_b32 v{52+4*nb+k}, v{34+4*nb+(k>>1)}, v{32+4*nb+(k>>1)}, s{4+(k&1)}" for k in range(4)))
        c_s.append(("vm", "cs", f"buffer_store_dwordx4 v[{52+4*nb}:{55+4*nb}], v{28+(nb>>2)}, s[8:11], s100 offen offset:{(nb&3)*1024} sc1"))
    c_f = ["v_mov_b32 v3, s96", ("wvm", ["cs"]), ("vm", None, "buffer_store_dword v3, v8, s[8:11], s6 offen sc1")]
    CD = int(OPT.get("cd", 0))
    start("FA", fa0, fa1, cs_ld)
    fc1(A)
    loop("FA", {CD: c_ld, CD+2: c_r, CD+3: c_s[:int(OPT.get("c3", 3))], CD+4: c_s[int(OPT.get("c3", 3)):]}, {0: st_f + cap(fc2), 1: cap(fa2), int(OPT.get("cf", 7)): c_f, 2: cs_c[:11], int(OPT.get("cw", 9)): cs_c[13:] + ["s_nop 0"]*6, int(OPT.get("cw", 9))+1: cs_f}, {CD+2: ["cl"]})
    A("s_branch FFN_EP")
    A.nv, A.tv, A.dv, A.nd, A.td, A.dd = snap
    A.L.append(";@SEG FBP"); A.label("FB_p")
    SO = (4, 5, 6, 97, 24, 25, 26, 27)
    def fb1(A):
        A("s_sub_u32 s32, s32, s76\ns_lshl_b32 s35, s69, 2\ns_sub_u32 s35, s35, s34\ns_lshl2_add_u32 s34, s35, s32\ns_lshl2_add_u32 s32, s34, s3\ns_mul_i32 s34, s32, 52429\ns_lshr_b32 s34, s34, 18\ns_mul_i32 s33, s34, 5\ns_sub_u32 s33, s32, s33")
        A(f"s_mul_i32 s99, s34, 40960\ns_lshl_b32 s35, s33, 8\ns_add_u32 s99, s99, s35\ns_lshl_b32 s101, s3, 13\ns_add_u32 s101, s101, {F_SCR}")
        A(f"v_lshrrev_b32 v2, 4, v1\nv_mul_u32_u24 v30, 1280, v2\nv_and_b32 v3, 15, v1\nv_lshlrev_b32 v2, 1, v2\nv_xor_b32 v3, v3, v2\nv_lshl_add_u32 v30, v3, 4, v30\nv_xor_b32 v31, 128, v30")
    def fb2(A):
        A("s_mul_i32 s35, s34, 52429\ns_lshr_b32 s35, s35, 18\ns_mul_i32 s75, s35, 5\ns_sub_u32 s75, s34, s75\ns_sub_u32 s76, s34, 49\ns_cmp_ge_u32 s34, 49\ns_cselect_b32 s35, 10, s35\ns_cselect_b32 s75, s76, s75")
        A("s_cmp_eq_u32 s75, 3\ns_cselect_b32 s76, 1, 0\ns_lshl1_add_u32 s76, s35, s76"); sig_early(A, 76, 100, 79)
        A("s_mul_i32 s76, s35, 3\ns_lshr_b32 s79, s75, 1\ns_add_u32 s76, s76, s79\ns_cmp_eq_u32 s35, 10\ns_cselect_b32 s79, 1, 0\ns_sub_u32 s76, s76, s79"); sig_late(A, 76, 79)
        A("s_lshr_b32 s79, 9, s75\ns_bitcmp1_b32 s79, 0\ns_cselect_b32 s100, s100, s76")
        A(f"s_mul_i32 s98, s100, 5\ns_add_u32 s98, s98, s33\ns_lshl_b32 s98, s98, 7\ns_add_u32 s98, s98, {WS_WF}")
        A(f"s_mul_i32 s100, s100, 5120\ns_lshl_b32 s79, s33, 13\ns_add_u32 s100, s100, s79\ns_add_u32 s100, s100, {WS_W2P}")
        A(f"s_cmp_lt_u32 s32, 270\ns_cselect_b32 s100, s100, {hex(OOB)}\ns_cselect_b32 s98, s98, {hex(OOB)}")
        A("s_cmp_eq_u32 s75, 2\ns_cselect_b32 s75, 8, 4\ns_cselect_b32 s76, 1, 4\ns_lshl_b32 s76, s76, 10")
        A(f"v_lshrrev_b32 v2, 4, v1\nv_mul_u32_u24 v2, s75, v2\nv_bfe_u32 v3, v1, 2, 2\nv_add_u32 v2, v2, v3\nv_lshlrev_b32 v2, 8, v2\nv_and_b32 v3, 3, v1\nv_lshl_add_u32 v2, v3, 3, v2")
        for r in (80, 81):
            A((f"v_mov_b32 v{r}, v2" if r == 80 else f"v_add_u32 v{r}, s76, v2") + f"\nv_lshrrev_b32 v3, 1, v{r}\nv_and_b32 v3, 0x400, v3\nv_xor_b32 v3, v3, v{r}\nv_bfe_u32 v3, v3, 8, 3\nv_lshl_add_u32 v{r}, v3, 5, v{r}\nv_add_u32 v{r}, s101, v{r}")
        A(f"s_mul_i32 s33, s33, {8*52429}")
        for k in range(8): A(f"s_add_u32 s79, s33, {k*52429}\ns_lshr_b32 s79, s79, 18\ns_mul_i32 s79, s79, 486400\ns_add_u32 s{SO[k]}, s100, s79")
    w2_ld = []
    for i in range(8): w2_ld += [f"s_add_u32 m0, s101, {1024*i}", f"s_add_u32 s77, s99, {5120*i}", ("vm", "w2l", f"buffer_load_dwordx4 v{30 + ((i ^ (i >> 1)) & 1)}, s[20:23], s77 offen lds")]
    w2_c = [("wvm", ["w2l"])]
    for k in range(8):
        for hh in range(2): w2_c += [f"v_xor_b32 v{82+hh}, {32*k}, v{80+hh}", ("ds", "w2t", f"ds_read_b64_tr_b16 a[{152+4*k+2*hh}:{153+4*k+2*hh}], v{82+hh}")]
    w2_s = [("vm", "side", f"buffer_store_dwordx4 a[{152+4*k}:{155+4*k}], v{28+(k>>2)}, s[8:11], s{SO[k]} offen offset:{(k&3)*1024} sc1") for k in range(8)]
    f2 = chop(cap(fb2), 3)
    BD = int(OPT.get("bd", 0)); BS = int(OPT.get("bs", BD+4)); BN = int(OPT.get("bn", 3))
    start("FB", fb1, lambda A: srd(A, 20, P["w2"], SZ_W), w2_ld if BD < 0 else [])
    fl = ["v_mov_b32 v3, s96", ("wvm", ["side"]), ("vm", None, "buffer_store_dword v3, v8, s[8:11], s98 offen sc1")]
    if BD < 0: loop("FB", {}, {0: st_f + f2[0], 1: f2[1], 2: f2[2], 3: w2_c, 4: w2_s[:4], 5: w2_s[4:], 8: fl})
    else: loop("FB", {BD: w2_ld}, {0: st_f + f2[0] + f2[1], 1: f2[2], BD+int(OPT.get("bt", 3)): w2_c, **{BS+k: L for k, L in enumerate(chop(w2_s, BN))}, BS+BN+int(OPT.get("bf", 2)): fl})
    A.L.append(";@SEG EP"); A.label("FFN_EP"); A.reset()
    A("s_waitcnt lgkmcnt(0)"); tick(A, 20, 7); tockdump(A, 20, 7, 0x40000)
    stamp(A, 2)
    A("s_nop 6")
    T = 32
    def silu(pr, tb, dst):
        g, u = acc(2*pr, tb), acc(2*pr+1, tb); cg, cu = 56+8*pr, 60+8*pr
        L = []
        for k in (0, 2): L.append(pk("fma", g+k, cg+k, ("b", 44+tb), g+k, neg=(1,)))
        for k in (0, 2): L.append(pk("mul", T+k, g+k, ("b", 48+tb)))
        for k in (0, 2): L.append(pk("fma", u+k, cu+k, ("b", 44+tb), u+k, neg=(1,)))
        for e in range(4): L.append(f"v_exp_f32 v{T+e}, v{T+e}")
        for k in (0, 2): L.append(pk("mul", g+k, g+k, u+k))
        for k in (0, 2): L.append(pk("fma", T+k, T+k, ("b", 52+tb), ("b", 52+tb)))
        for e in range(4): L.append(f"v_rcp_f32 v{T+e}, v{T+e}")
        for k in (0, 2): L.append(pk("mul", g+k, g+k, T+k))
        L += [f"v_cvt_pk_bf16_f32 v{dst}, v{g}, v{g+1}", f"v_cvt_pk_bf16_f32 v{dst+1}, v{g+2}, v{g+3}"]
        return L
    ep = []
    grp = []
    for fr in range(2):
        for tb in range(4):
            o = acc(4*fr+1, tb)
            grp.append((silu(2*fr, tb, o) + silu(2*fr+1, tb, o+2), ("vm", ("H", fr), f"buffer_store_dwordx4 v[{o}:{o+3}], v28, s[8:11], s{84+fr} offen offset:{tb*1024} sc1")))
    for tp in range(2):
        o = acc(9, 2*tp)
        grp.append((silu(4, 2*tp, o) + silu(4, 2*tp+1, o+2) + [f"v_permlane16_swap_b32 v{o}, v{o+2}", f"v_permlane16_swap_b32 v{o+1}, v{o+3}"],
                    ("vm", ("H", 2), f"buffer_store_dwordx4 v[{o}:{o+3}], v30, s[8:11], s86 offen offset:{tp*2048} sc1")))
    FI = int(OPT.get("fi", 1)); we = chop((fin_loads() if FI else []) + w2loads(NL, NL+FE), 8)
    for k, (c, st) in enumerate(grp):
        spread(A, c, we[k] if k < 8 else [])
        if k == int(OPT.get("ef", 99)): A.its([("wvm", [("H", 0)]), ("vm", None, "buffer_store_dword v31, v8, s[8:11], s87 offen sc1")])
        A.it(st)
    stamp(A, 3)
    if "ef" not in OPT: A.its([("wvm", [("H", 0)]), ("vm", None, "buffer_store_dword v31, v8, s[8:11], s87 offen sc1")])
    PQ = int(OPT.get("pq", 0)); lf = [("wvm", [("H", 2)]), ("vm", None, "buffer_store_dword v31, v8, s[8:11], s99 offen sc1")]
    pt = lambda i: [("fn", lambda: ptick(A, i, 25))]
    if TS >= 2: A("s_mov_b32 s7, 0x40001")
    FBL = int(OPT.get("fbl", 0))
    fb = [] if FBL else [("wvm", ["fin"]), ("fn", lambda: fin_base(A, "FGF"))]
    A.its(pt(50) + ([] if FI else fin_loads()) + w2loads(NL+FE, 12-PQ) + pt(51) + fb + pt(52) + fpoll(G0) + lf + w2loads(12-PQ, 12) + pt(53) + [("wvm", ["fl"])] + pt(54))
    fcheck(A, "FR", G0)
    if TS >= 2: A("v_writelane_b32 v25, s7, 56"); ptick(A, 55, 25)
    stamp(A, 6)
    for i in range(3): A.its(hload(i))
    if FBL: fin_base(A, "FGF")
    A("s_branch PH2")

S_SLOT = 49152; S_SCR = 3*S_SLOT
def gen_ssm(A):
    A.reset()
    A("s_lshl_b32 s32, s68, 8\ns_lshl_b32 s33, s72, 7\ns_add_u32 s32, s32, s33\ns_lshl_b32 s33, s71, 3\ns_add_u32 s32, s32, s33")
    A("v_and_b32 v2, 32, v1\nv_bfe_u32 v3, v1, 3, 1\nv_lshl_add_u32 v2, v3, 4, v2\nv_bfe_u32 v3, v1, 4, 1\nv_add3_u32 v2, v2, v3, s32\nv_mul_u32_u24 v2, 1280, v2")
    A("v_lshrrev_b32 v3, 4, v1\nv_xor_b32 v3, v3, v1\nv_and_b32 v3, 7, v3\nv_lshlrev_b32 v3, 4, v3\nv_xor_b32 v4, 64, v3\nv_add_u32 v5, v2, v3\nv_add_u32 v6, v2, v4")
    for ii in range(8): A(f"v_add_u32 v{10+ii}, {(64*(ii&1) + 2*(ii>>1))*1280 - 1024*(ii&3)}, v{5+(ii&1)}")
    A("s_lshl_b32 s32, s69, 6\ns_lshl_b32 s33, s71, 5\ns_add_u32 s32, s32, s33")
    A("v_lshrrev_b32 v2, 3, v1\nv_add_u32 v2, s32, v2\nv_mul_u32_u24 v2, 1280, v2\nv_add_u32 v5, v2, v3\nv_add_u32 v6, v2, v4")
    for i in range(4): A(f"v_add_u32 v{18+i}, {8*i*1280 - 1024*i}, v{5+(i&1)}")
    A("s_lshl_b32 s73, s3, 13\ns_lshl_b32 s74, s3, 12\ns_add_u32 s74, s74, 32768")
    st_ld, st_c, st_f = stats_job(32, S_SCR)
    def dma(u, hs=(0, 1)):
        b = (u % 3)*S_SLOT; L = []
        for h in hs:
            L += [f"s_add_u32 m0, s73, {b+4096*h}", f"s_movk_i32 s78, {u*128}"]
            for i in range(4): L.append(("vm", ("S", u), f"buffer_load_dwordx4 v{10+4*h+i}, s[16:19], s78 offen offset:{1024*i} lds"))
            L.append(f"s_add_u32 m0, s74, {b}")
            for i in range(2): L.append(("vm", ("S", u), f"buffer_load_dwordx4 v{18+2*h+i}, s[12:15], s78 offen offset:{1024*(2*h+i)} lds"))
        return L
    p_ld = lines("s_lshl_b32 s32, s69, 6\ns_lshl_b32 s33, s72, 5\ns_add_u32 s32, s32, s33\nv_and_b32 v2, 15, v1\nv_add_u32 v30, s32, v2\nv_lshlrev_b32 v2, 1, v30")
    for cb in range(2):
        for q, sp in enumerate((P["lre"], P["lim"], P["ldt"])): p_ld.append(("vm", "P", f"global_load_ushort v{112+3*cb+q}, v2, s[{sp}:{sp+1}] offset:{32*cb}"))
    def lds_setup(A):
        early_setup(A)
        A("v_lshrrev_b32 v2, 4, v1\nv_and_b32 v3, 15, v1\nv_lshrrev_b32 v4, 1, v3\nv_xor_b32 v4, v4, v2\nv_lshlrev_b32 v4, 4, v4\nv_lshl_add_u32 v3, v3, 7, v4")
        A("s_lshl_b32 s75, s71, 14\ns_lshl_b32 s76, s72, 12\ns_add_u32 s76, s76, 32768")
        A("v_add_u32 v22, s75, v3\nv_xor_b32 v23, 64, v22\nv_add_u32 v120, s76, v3\nv_xor_b32 v121, 64, v120")
        for sl in (1, 2):
            for ks in range(2): A(f"v_add_u32 v{22+2*sl+ks}, {sl*S_SLOT}, v{22+ks}\nv_add_u32 v{120+2*sl+ks}, {sl*S_SLOT}, v{120+ks}")
    def ss0(A):
        A("s_and_b32 s33, s68, 3\ns_lshl2_add_u32 s33, s69, s33\ns_lshl2_add_u32 s33, s33, s3\ns_lshr_b32 s35, s68, 2\ns_mul_i32 s35, s35, 160\ns_add_u32 s35, s35, s33\ns_mul_i32 s97, s33, 5120")
        A("v_bfe_u32 v2, v1, 2, 2\nv_mul_u32_u24 v2, 1280, v2\nv_and_b32 v3, 3, v1\nv_lshl_add_u32 v2, v3, 4, v2\nv_lshrrev_b32 v4, 4, v1\nv_lshl_add_u32 v67, v4, 6, v2")
        A(f"s_lshl_b32 s98, s35, 7\ns_add_u32 s98, s98, {WS_CSB}")
    def ss1(A):
        A("v_lshlrev_b32 v2, 21, v1\nv_and_b32 v2, 0xfe000000, v2\nv_lshl_add_u32 v55, v1, 3, v2")
        for r in range(4): A(f"v_mov_b32 v{68+r}, 0x3f803f80")
        A("s_lshl_b32 s32, s71, 2\nv_lshrrev_b32 v31, 4, v1\nv_add_u32 v31, s32, v31")
    def ss3(A):
        A("s_lshl1_add_u32 s32, s69, s72\ns_lshl_b32 s84, s32, 1\ns_add_u32 s85, s84, 1"); sig_ssm(A, 84, 33); sig_ssm(A, 85, 33)
        A(f"s_lshl1_add_u32 s34, s68, s71\ns_mul_i32 s35, s34, 192")
        for r in (84, 85): A(f"s_add_u32 s{r}, s{r}, s35\ns_mul_i32 s{r}, s{r}, {HS}\ns_add_u32 s{r}, s{r}, {WS_H}")
        A(f"s_lshl_b32 s87, s34, 7\ns_add_u32 s87, s87, s32\ns_lshl_b32 s87, s87, 7\ns_add_u32 s87, s87, {WS_FLG+88*128}")
        A(f"s_add_u32 s86, s84, {96*HS}\ns_add_u32 s78, s85, {96*HS}")
    def ss4(A):
        A("s_mul_i32 s75, s3, 20480\nv_and_b32 v2, 15, v1\nv_mul_u32_u24 v2, 272, v2\nv_and_b32 v3, 48, v1\nv_add3_u32 v11, v2, v3, s75")
    def ss5(A):
        A("v_lshlrev_b32 v3, 4, v30\nv_lshlrev_b32 v2, 21, v1\nv_and_b32 v2, 0xfe000000, v2\nv_add_u32 v12, v2, v3\ns_lshl1_add_u32 s76, s68, s71\ns_mul_i32 s97, s76, 10240")
        A("v_lshrrev_b32 v2, 4, v1\nv_mul_u32_u24 v13, 10240, v2\ns_sub_u32 s75, s97, 10240\nv_sub_u32 v13, s75, v13\nv_add_u32 v13, v13, v3\nv_mov_b32 v21, s96")
        for i in range(4):
            if i: A(f"v_subrev_u32 v{13+i}, {40960*i}, v13\nv_add_u32 v2, 4, v2")
            A(f"v_cmp_gt_u32 vcc, s76, v2\nv_cndmask_b32 v{17+i}, 0, v21, vcc")
    b_ld = [("vm", "bl", f"buffer_load_dwordx4 a[{112+4*i}:{115+4*i}], v67, s[24:27], s97 offen offset:{256*i}") for i in range(5)]
    b_c = [("wvm", ["bl"])]
    for i in range(5): b_c.append(f"{MF} v[56:59], v[68:71], a[{112+4*i}:{115+4*i}], " + ("v[56:59]" if i else "0"))
    b_c += ["s_nop 0"]*3
    b_c += ["v_add_f32_dpp v56, v56, v56 quad_perm:[1,0,3,2] row_mask:0xf bank_mask:0xf", "v_add_f32_dpp v56, v56, v56 quad_perm:[2,3,0,1] row_mask:0xf bank_mask:0xf",
            "v_mov_b32 v57, s96", ("vm", None, "buffer_store_dwordx2 v[56:57], v55, s[8:11], s98 offen sc1")]
    NM = "LR LI CA CB L16R L16I L32R L32I L512R L512I QR QI UR UI WR WI PR PI T0 T1".split()
    def Pm(cb): return dict(zip(NM, range(72+20*cb, 72+20*cb+20)))
    par_c = [("wvm", ["P"])] + lines("v_lshrrev_b32 v60, 4, v1\nv_cvt_f32_u32 v60, v60\nv_mul_f32 v60, 0x42000000, v60\nv_sub_f32 v61, 0x42c00000, v60\nv_mul_f32 v62, 4.0, v60")
    for cb in range(2):
        p = Pm(cb); i0 = 112 + 3*cb; zr, zt, t0, t1 = p['PR'], p['PI'], p['T0'], p['T1']
        def power(d, n):
            pre = [f"v_mul_f32 v{t0}, {n}, v{zr}", f"v_mul_f32 v{t1}, {n}, v{zt}"] if n else []
            a, b = (t0, t1) if n else (zr, zt)
            return pre + lines(f"v_exp_f32 v{t0}, v{a}\nv_fract_f32 v{t1}, v{b}\nv_cos_f32 v{d}, v{t1}\nv_sin_f32 v{d+1}, v{t1}\nv_mul_f32 v{d}, v{d}, v{t0}\nv_mul_f32 v{d+1}, v{d+1}, v{t0}")
        par_c += lines(f"""v_lshlrev_b32 v{i0+2}, 16, v{i0+2}
v_mul_f32 v{t0}, 0x3fb8aa3b, v{i0+2}
v_exp_f32 v{t0}, v{t0}
v_lshlrev_b32 v{i0}, 16, v{i0}
v_lshlrev_b32 v{i0+1}, 16, v{i0+1}
v_cvt_pk_bf16_f32 v{t0}, v{t0}, v{t0}
v_and_b32 v{t0}, 0xffff0000, v{t0}
v_mul_f32 v{zr}, v{t0}, v{i0}
v_mul_f32 v{zt}, v{t0}, v{i0+1}
v_mul_f32 v{zr}, 0x3fb8aa3b, v{zr}
v_mul_f32 v{zt}, 0.15915494, v{zt}""") + power(p['LR'], None)
        par_c += lines(f"""v_mul_f32 v{t1}, v{i0}, v{i0}
v_fmac_f32 v{t1}, v{i0+1}, v{i0+1}
v_rcp_f32 v{t1}, v{t1}
v_add_f32 v{t0}, -1.0, v{p['LR']}
v_mul_f32 v{p['CA']}, v{t0}, v{i0}
v_add_f32 v{t1}, v{t1}, v{t1}
v_fmac_f32 v{p['CA']}, v{p['LI']}, v{i0+1}
v_mul_f32 v{p['CB']}, v{p['LI']}, v{i0}
v_fma_f32 v{p['CB']}, -v{t0}, v{i0+1}, v{p['CB']}
v_mul_f32 v{p['CA']}, v{p['CA']}, v{t1}
v_mul_f32 v{p['CB']}, v{p['CB']}, v{t1}""")
        par_c += [f"v_sub_f32 v{p['LI']}, 0, v{p['LI']}", f"v_sub_f32 v{zt}, 0, v{zt}"]
        par_c += power(p['L16R'], "0x41800000") + power(p['L32R'], "0x42000000") + power(p['L512R'], "0x44000000") + power(p['QR'], "v60") + power(p['UR'], "v61") + power(p['WR'], "v62")
    ep_ld = lines(f"v_lshrrev_b32 v2, 3, v0\nv_lshlrev_b32 v2, 7, v2\nv_and_b32 v3, 7, v0\nv_lshl_add_u32 v2, v3, 3, v2\ns_lshl_b32 s75, s68, 12\ns_add_u32 s75, s75, {WS_STAT}") + [("vm", "ep", "buffer_load_dwordx2 v[52:53], v2, s[8:11], s75 offen sc1")]
    ep_ld += lines(f"v_lshrrev_b32 v2, 2, v30\nv_lshlrev_b32 v2, 7, v2\nv_and_b32 v3, 3, v30\nv_lshl_add_u32 v2, v3, 5, v2\ns_mov_b32 s75, {WS_CSB}\ns_mov_b32 s76, {WS_CSB+20480}")
    def CS(cb, im): return 112 + 4*cb + 2*im
    for cb in range(2):
        for im in range(2): ep_ld.append(("vm", "ep", f"buffer_load_dwordx2 v[{CS(cb,im)}:{CS(cb,im)+1}], v2, s[8:11], s{75+im} offen offset:{512*cb} sc1"))
    ep_tags = [53, 113, 115, 117, 119]
    ep_t = [("wvm", ["ep"])] + tagtest(ep_tags)
    ep_c = lines(f"""v_and_b32 v53, 0xffff0000, v52
v_rcp_f32 v53, v53
v_lshlrev_b32 v52, 16, v52
v_and_b32 v2, 15, v0
v_bfe_u32 v3, v0, 4, 1
v_lshl_add_u32 v2, v2, 1, v3
v_and_b32 v3, 0xe0, v0
v_add_u32 v2, v2, v3
v_mul_f32 v52, v52, v53
v_lshlrev_b32 v2, 2, v2
v_add_u32 v2, {S_SCR}, v2""") + [("ds", None, "ds_write_b32 v2, v53"), ("ds", None, "ds_write_b32 v2, v52 offset:1024")]
    ACC = 128
    def acc(b, c): return ACC + (c*8+b)*4
    def Xr(par, b): return par*48 + b*4
    def Br(par, c): return par*48 + 32 + c*4
    def reads(s):
        par = s & 1; sl = (s >> 1) % 3; L = []
        for c in range(4): L.append(("ds", None, f"ds_read_b128 a[{Br(par,c)}:{Br(par,c)+3}], v{120+2*sl+(s&1)} offset:{(c>>1)*8192 + (c&1)*2048}"))
        for b in range(8): L.append(("ds", None, f"ds_read_b128 a[{Xr(par,b)}:{Xr(par,b)+3}], v{22+2*sl+(s&1)} offset:{b*2048}"))
        return L
    SORD = OPT.get("sord", "A")
    M = {0: (b_ld if SORD == "C" else []) + dma(2)}
    for s in range(1, 15): M[s] = dma((s+5) >> 1, ((s+1) & 1,))
    CK = int(OPT.get("ck", 16))
    SX = int(OPT.get("sx", 0))
    CW = int(OPT.get("cw2", 18))
    if SX:
        for k, L in enumerate(chop(w2loads(0, 5, 99), CW-CK)): M[CK+k] = M.get(CK+k, []) + L
        for k, L in enumerate(chop(w2loads(5, 5+SX, 98), 20-CW)): M[CW+k] = L
    else:
        for k, L in enumerate(chop(w2loads(0, 5, 99), 20-CK)): M[CK+k] = M.get(CK+k, []) + L
    pc = chop(par_c, 8); ps = chop(cap(ph2_setup), 2)
    pc = chop(par_c, 9)
    S = {0: cap(ss1), 1: st_f + p_ld, 2: ps[0], 3: ps[1] + b_c, 4: pc[0], 5: pc[1], 6: pc[2], 7: pc[3], 8: pc[4], 9: pc[5], 10: pc[6], 11: pc[7], 12: pc[8],
         13: ep_ld, 15: cap(ss3), 16: ep_t, 17: ep_c, 18: cap(ss4), 19: cap(ss5)}
    S[CK-2] = fpoll(4) + S.get(CK-2, [])
    if SX: S[CW-2] = fpoll(5) + S[CW-2]
    if "wf" in OPT: S[19] = w2warm() + S[19]
    PF = int(OPT.get("pf", 0)); PFI = int(OPT.get("pfi", 19))
    if PF:
        pf = lines(f"s_lshr_b32 s32, s2, 3\ns_lshl2_add_u32 s32, s32, s3\ns_lshr_b32 s33, s32, 2\ns_mul_i32 s33, s33, 96\ns_mul_i32 s34, s29, 12\ns_add_u32 s33, s33, s34\ns_mul_i32 s33, s33, 5120\ns_add_u32 s33, s33, {WS_W2P + 35840 - PF*8192}")
        pf += [f"s_cmp_lt_u32 s32, 32\ns_cselect_b32 s33, s33, {hex(OOB)}", "v_lshlrev_b32 v6, 7, v1"]
        for k in range(PF): pf += [("vm", None, "buffer_load_dword v7, v6, s[8:11], s33 offen sc1"), "s_add_u32 s33, s33, 8192"]
        S[PFI] = S.get(PFI, []) + pf
    A("s_waitcnt lgkmcnt(0)")
    srd(A, 16, P["x"], SZ_X); A.its(st_ld)
    A("s_cmp_lg_u32 s70, 0\ns_cbranch_scc1 K_ffn")
    A("s_cmp_eq_u32 s72, 0"); srd_sel(A, 12, P["bre"], P["bim"], SZ_B)
    first, second = {"B": (b_ld + dma(0, (0,)), dma(0, (1,)) + dma(1)), "A": (dma(0), b_ld + dma(1)), "C": (dma(0), dma(1))}[SORD]
    A.its(first)
    if not int(OPT.get("td", 0)): A.L.append(";@TOUCH S")
    A("s_branch SSM_a"); A.L.append(";@SEG SSM"); A.label("SSM_a")
    assert SORD == "A"
    ss0(A); A("s_cmp_lt_u32 s35, 160"); srd_sel(A, 24, P["bre"], P["bim"], SZ_B)
    lds_setup(A)
    A.its(st_c[:1]); spread(A, st_c[1:], second, 0, len(st_c) - 2)
    if int(OPT.get("td", 0)): A.L.append(";@TOUCH S")
    A.L.append(";@TOUCH P1")
    A.sync([("S", 0)]); stamp(A, 1)
    A.its(reads(0))
    for s in range(20):
        tags = [("S", (s+1) >> 1)] if (s < 19 and s & 1) else []
        if s == 17: gcheck(A, "SG", ep_ld, ep_tags)
        if s == CK: A.its(ftest(99, 82))
        if s == CW and SX: A.its(ftest(98, 82))
        A.sync(tags, barrier=bool(s & 1))
        tick(A, s, 127)
        par = s & 1; mf = []
        for b in range(8):
            for c in (range(4) if b % 2 == 0 or not SN else range(3, -1, -1)):
                r = acc(b, c); mf.append(f"{MF} v[{r}:{r+3}], a[{Xr(par,b)}:{Xr(par,b)+3}], a[{Br(par,c)}:{Br(par,c)+3}], " + (f"v[{r}:{r+3}]" if s else "0"))
        A.weave(mf, [(reads(s+1) if s < 19 else [], 0, 24), (M.get(s, []), 0, 31), (S.get(s, []), 1, 31)])
    A("s_waitcnt lgkmcnt(0)"); tick(A, 20, 127); tockdump(A, 20, 127, 0x40000)
    stamp(A, 2)
    def gre(cb, j): return acc(0, cb) + 2*j
    def gim(cb, j): return acc(0, 2+cb) + 2*j
    def cfma(dr, di, mr, mi, xr, xi, ar, ai):
        return lines(f"v_fma_f32 v{dr}, v{mr}, v{xr}, v{ar}\nv_fma_f32 v{di}, v{mr}, v{xi}, v{ai}\nv_fma_f32 v{dr}, -v{mi}, v{xi}, v{dr}\nv_fma_f32 v{di}, v{mi}, v{xr}, v{di}")
    def cmul(dr, di, mr, mi, xr, xi):
        return lines(f"v_mul_f32 v{dr}, v{mr}, v{xr}\nv_mul_f32 v{di}, v{mr}, v{xi}\nv_fma_f32 v{dr}, -v{mi}, v{xi}, v{dr}\nv_fmac_f32 v{di}, v{mi}, v{xr}")
    def gsum(regs, tmp):
        L = []
        for sw in ("v_permlane16_swap_b32", "v_permlane32_swap_b32"):
            L += [f"v_mov_b32 v{tmp+k}, v{r}" for k, r in enumerate(regs)] + [f"{sw} v{r}, v{tmp+k}" for k, r in enumerate(regs)] + [f"v_add_f32 v{r}, v{r}, v{tmp+k}" for k, r in enumerate(regs)]
        return L
    def rload(c):
        b = 32 + 16*(c & 1)
        return [("ds", ("R", c), f"ds_read_b128 v[{b+4*k+8*t}:{b+4*k+8*t+3}], v22 offset:{1024*t + 32*(c&3) + 16*k}") for t in range(2) for k in range(2)]
    def scan(cb):
        p = Pm(cb); L = []; SP = (24, 68)
        for j in range(16):
            c = 4*cb + (j >> 2); b = 32 + 16*(c & 1) + 2*(j & 3); r, i = gre(cb,j), gim(cb,j)
            if j & 3 == 0: L.append(("wds", [("R", c)]))
            L += [pk("mul", r, r, b), pk("mul", i, i, b), pk("fma", r, b+8, ("b", CS(cb,0)), r, neg=(0,)), pk("fma", i, b+8, ("b", CS(cb,1)), i, neg=(0,))]
            if j & 3 == 3 and c + 2 < 8: L += rload(c+2)
            L += [pk("mul", 4, i, ("b", p['CB'])), pk("mul", 6, r, ("b", p['CB'])), pk("fma", r, r, ("b", p['CA']), 4, neg=(2,)), pk("fma", i, i, ("b", p['CA']), 6, neg=(1, 2))]
            if j:
                cr, ci = (gre(cb,0), gim(cb,0)) if j == 1 else (SP[j & 1], SP[j & 1]+2); n = SP[(j+1) & 1]
                L += [pk("fma", n, cr, ("b", p['LR']), r), pk("fma", n+2, ci, ("b", p['LR']), i), pk("fma", n, ci, ("b", p['LI']), n, neg=(1,)), pk("fma", n+2, cr, ("b", p['LI']), n+2)]
        n = SP[0]; o = 120 + 4*cb
        L += cfma(64+2*cb, 65+2*cb, p['L16R'], p['L16I'], n, n+2, n+1, n+3) + cmul(o, o+2, p['UR'], p['UI'], 64+2*cb, 65+2*cb)
        L += gsum([o, o+2], 4) + [f"v_mov_b32 v{o+1}, s96", f"v_mov_b32 v{o+3}, s96", ("vm", None, f"buffer_store_dwordx4 v[{o}:{o+3}], v12, s[8:11], s97 offen offset:{256*cb} sc1")]
        return L + [f"v_mov_b32 v{p['T0']}, v{n}", f"v_mov_b32 v{p['T1']}, v{n+2}"]
    def lbl(cb): return [("vm", ("lb", cb), f"buffer_load_dwordx4 v[{32+16*cb+4*i}:{35+16*cb+4*i}], v{13+i}, s[8:11], 0 offen offset:{256*cb} sc1") for i in range(4)]
    def lookback(cb):
        b = 32+16*cb
        lt = [f"v_xor_b32 v4, v17, v{b+1}"] + sum(([f"v_xor_b32 v5, v{17+(r-b)//4}, v{r}", "v_or_b32 v4, v4, v5"] for r in range(b+3, b+16, 2)), []) + ["v_cmp_ne_u32 vcc, 0, v4"]
        A.its([("wvm", [("lb", cb)])] + lt)
        A(f"s_cbranch_vccz SSM_go{cb}\ns_mov_b32 s7, 0x40000")
        A.label(f"SSM_poll{cb}")
        for x in lbl(cb): A(x[2])
        A("s_waitcnt vmcnt(0)"); A.ext(lt)
        A(f"s_sub_u32 s7, s7, 1\ns_cbranch_scc1 SSM_go{cb}\ns_cbranch_vccnz SSM_poll{cb}")
        A.label(f"SSM_go{cb}")
    WP = 112
    def second(cb):
        p = Pm(cb); b = 32+16*cb; L = []
        for i in (2, 1, 0): L += cfma(b+4*i, b+4*i+2, p['L512R'], p['L512I'], b+4*i+4, b+4*i+6, b+4*i, b+4*i+2)
        L += cmul(b+4, b+5, p['WR'], p['WI'], b, b+2) + gsum([b+4, b+5], 4)
        L += cfma(WP, WP+2, p['QR'], p['QI'], b+4, b+5, p['PR'], p['PI']) + cfma(WP+1, WP+3, p['L16R'], p['L16I'], WP, WP+2, p['T0'], p['T1'])
        def cvt(j): return [f"v_cvt_pk_bf16_f32 v{gre(cb,j)+hh}, v{gre(cb,j)+hh}, v{gim(cb,j)+hh}" for hh in range(2)]
        for j in range(16):
            cr, ci = (gre(cb,j-1), gim(cb,j-1)) if j else (WP, WP+2); r, i = gre(cb,j), gim(cb,j)
            L += [pk("fma", r, cr, ("b", p['LR']), r), pk("fma", i, ci, ("b", p['LR']), i), pk("fma", r, ci, ("b", p['LI']), r, neg=(1,)), pk("fma", i, cr, ("b", p['LI']), i)]
            if j: L += cvt(j-1)
        L += cvt(15)
        T = [("ds", None, f"ds_write_addtid_b32 v{gre(cb,j)+hh} offset:{cb*8704 + (16*hh+j)*272}") for hh in range(2) for j in range(16)]
        st = []
        for tb in (0, 2, 4, 6, 1, 3, 5, 7):
            r = gim(cb, 0) + 4*tb
            T.append(("ds", ("tr", cb, tb), f"ds_read_b128 v[{r}:{r+3}], v11 offset:{cb*8704 + (tb&1)*4352 + (tb>>1)*64}"))
            st.append([("wds", [("tr", cb, tb)]), ("vm", "H", f"buffer_store_dwordx4 v[{r}:{r+3}], v28, s[8:11], s{(84, 85, 86, 78)[cb + 2*(tb >> 2)]} offen offset:{(tb&3)*1024} sc1")])
        return L + T, st
    A(f"v_lshlrev_b32 v22, 7, v31\nv_add_u32 v22, {S_SCR}, v22\nv_mov_b32 v31, s96\ns_mul_i32 m0, s3, 20480")
    A("s_cmp_lg_u32 s95, 0\ns_cbranch_scc1 EP_no\nv_lshlrev_b32 v2, 7, v1")
    for k in range(4): A(f"s_mov_b32 s75, {WS_STAT+4+8192*k}\nbuffer_load_dword a{80+k}, v2, s[8:11], s75 offen sc1")
    A.label("EP_no")
    ptick(A, 40, 23)
    s1_ = scan(1); kk = max(i for i, x in enumerate(s1_) if isinstance(x, tuple) and x[0] == "wds")
    A.its(rload(0) + rload(1) + scan(0) + s1_[:kk] + lbl(0) + s1_[kk:])
    ptick(A, 41, 23); TS >= 2 and A("v_mov_b32 v25, v23")
    A.its(fpoll(5))
    for d in range(3):
        A(f"v_subrev_u32 v2, {16*(d+1)}, v1\nv_lshlrev_b32 v2, 2, v2")
        for k in range(4): A.it(("ds", "bp", f"ds_bpermute_b32 v{48+4*d+k}, v2, v{64+k}"))
    for cb in range(2): A(f"v_mov_b32 v{Pm(cb)['PR']}, 0\nv_mov_b32 v{Pm(cb)['PI']}, 0")
    A.it(("wds", ["bp"]))
    for d in (2, 1, 0):
        A(f"s_lshl_b64 exec, -1, {16*(d+1)}")
        for cb in range(2):
            p = Pm(cb); a = 48+4*d+2*cb
            if d < 2: A.ext(cfma(a, a+1, p['L32R'], p['L32I'], p['PR'], p['PI'], a, a+1))
            A(f"v_mov_b32 v{p['PR']}, v{a}\nv_mov_b32 v{p['PI']}, v{a+1}")
    A("s_mov_b64 exec, -1")
    stamp(A, 3); ptick(A, 42, 25)
    lookback(0)
    stamp(A, 4); ptick(A, 43, 25)
    L0, st0 = second(0); L1, st1 = second(1)
    SB = int(OPT.get("sb", 5))
    if SB > 5:
        fcheck(A, "SC5a", 5)
        A("s_mov_b32 s35, s98")
        A.its(L0[:40] + lbl(1)); spread(A, L0[40:], w2loads(5+SX, SB), 0, 85)
    else: A.its(L0[:60] + lbl(1) + fpoll(5) + L0[60:])
    ptick(A, 44, 25)
    lookback(1)
    rest = L1
    sl = interleave(rest, st0, 0, len(rest) - 42)
    for i, x in enumerate(rest):
        for y in sl[i]: A.its(y)
        A.it(x)
    ptick(A, 45, 25)
    for y, z in zip(st1, chop(cap(ph2_addr), 8)): A.its(y + z)
    stamp(A, 5)
    fs = "buffer_store_dword v31, v8, s[8:11], s87 offen sc1"
    S1 = int(OPT.get("s1", 7))
    ptick(A, 46, 25)
    A.its(fin_loads() + w2loads(SB, S1) + fpoll(G0) + [("wvm", ["H"]), ("vm", None, fs)] + w2loads(S1, 12) + [("wvm", ["fin"])])
    ptick(A, 47, 25)
    A(f"s_cmp_lg_u32 s95, 0\ns_cbranch_scc1 EP_end")
    for k in range(4): A(f"v_accvgpr_read_b32 v{68+k}, a{80+k}")
    A.ext(tagtest([68, 69, 70, 71]))
    A("s_cbranch_vccz EP_ok\nv_lshlrev_b32 v2, 7, v1\ns_mov_b32 s7, 0x40000")
    A.label("EP_l")
    for k in range(4): A(f"s_mov_b32 s75, {WS_STAT+4+8192*k}\nbuffer_load_dword v{68+k}, v2, s[8:11], s75 offen sc1")
    A("s_waitcnt vmcnt(0)"); A.ext(tagtest([68, 69, 70, 71]))
    A(f"s_sub_u32 s7, s7, 1\ns_cbranch_scc1 EP_ok\ns_cbranch_vccnz EP_l")
    A.label("EP_ok")
    A(f"s_mov_b32 s75, {WS_EPOCH}\nbuffer_store_dword v31, v8, s[8:11], s75 offen sc1")
    A.label("EP_end")
    fcheck(A, "SC2", G0)
    if TS >= 2: A("v_writelane_b32 v25, s99, 57\nv_writelane_b32 v25, s35, 58")
    fredo(A, "SR", 4, 99, 82, w2loads(0, 5))
    if SX: fredo(A, "SR5", 5, 35, 82, w2loads(5, 5+SX))
    stamp(A, 6)
    for i in range(3): A.its(hload(i))
    fin_base(A, "FGS")

def gen_ph2(A):
    A.L.append(";@SEG PH2"); A.label("PH2")
    A.reset(); A.nv = 12
    for i in range(3): A.tv[("h", i)] = 4*i + 4
    g_r = []
    for nb in range(5):
        for w in range(4):
            r = ACCG + (nb*4+w)*4; g_r.append(("ds", ("gr", nb), f"ds_read_b128 v[{r}:{r+3}], v{23+(w>>1)} offset:{(w&1)*20480 + nb*1024}"))
    g_s = []; g_t = []
    for nb in range(5):
        r = ACCG + nb*16; g_s.append(("wds", [("gr", nb)]))
        for e in range(4): g_s += [f"v_add_f32 v{r+e}, v{r+e}, v{r+4+e}", f"v_add_f32 v{r+8+e}, v{r+8+e}, v{r+12+e}"]
        for e in range(4): g_s.append(f"v_add_f32 v{r+e}, v{r+e}, v{r+8+e}")
        g_t.append(("vm", "xs", f"buffer_store_dwordx4 v[{r}:{r+3}], v{28+(nb>>2)}, s[8:11], s4 offen offset:{(nb&3)*1024} sc1"))
    g_f = [("wvm", ["xs"]), ("vm", None, "buffer_store_dword v31, v8, s[8:11], s6 offen sc1")]
    fin_r = [(f"v_accvgpr_read_b32 v{ACCG + (k>>2)*16 + 8 + (k&3)}, {PARK[k]}" if PARK[k][0] == "a" else f"v_mov_b32 v{ACCG + (k>>2)*16 + 8 + (k&3)}, {PARK[k]}") for k in range(20)]
    GF = int(OPT.get("gf", 12))
    extra = {**{k-3: fpoll(g)[:-1] for k, g in CHK.items()}, 12: ["s_mov_b32 m0, s101"], 16: g_r + g_s[:13], 17: g_s[13:39] + g_t[:2], 18: g_s[39:52] + g_t[2:3] + g_s[52:] + g_t[3:],
             19: ["v_add_u32 v23, 81920, v23", "v_add_u32 v24, 81920, v24", "s_mov_b32 m0, s100"] + fin_r, 20: fpoll(3)[:-1]}
    first = {k-2: fpoll(g)[-1:] for k, g in CHK.items()}
    if WO:
        fin_c = [("wvm", ["fin"]), "v_and_b32 v11, 0xffff0000, v10", "v_rcp_f32 v11, v11", "v_lshlrev_b32 v10, 16, v10"]
        def rd(nb): return [("ds", ("fx", nb), f"ds_read_b64 v[{16+4*(nb&1)}:{17+4*(nb&1)}], v12 offset:{32*nb}"), ("ds", ("fx", nb), f"ds_read_b64 v[{(18, 26)[nb&1]}:{(19, 27)[nb&1]}], v14 offset:{3072+32*nb}")]
        fin_c += rd(0)
        for nb in range(5):
            if nb < 4: fin_c += rd(nb+1)
            fin_c.append(("wds", [("fx", nb)]))
            for h in range(2):
                x = 16+4*(nb&1)+h; d = (18, 26)[nb&1]+h
                fin_c += [f"v_lshlrev_b32 v2, 16, v{d}", f"v_and_b32 v{d}, 0xffff0000, v{d}", f"v_lshlrev_b32 v3, 16, v{x}", f"v_and_b32 v{x}, 0xffff0000, v{x}",
                          "v_mul_f32 v2, v2, v11", f"v_mul_f32 v{d}, v{d}, v11", "v_sub_f32 v4, v3, v10", f"v_sub_f32 v5, v{x}, v10", "v_fmac_f32 v3, v4, v2", f"v_fmac_f32 v{x}, v5, v{d}"]
                for e, src in ((0, 3), (1, x)):
                    p = PARK[4*nb+2*h+e]; fin_c.append(f"v_accvgpr_write_b32 {p}, v{src}" if p[0] == "a" else f"v_mov_b32 {p}, v{src}")
        wl = chop(w2loads(12-NH, 12), 4) if NH else [[]]*4
        for k in range(4): extra[k] = extra.get(k, []) + wl[k]
        extra[5] = extra.get(5, []) + fin_loads()
        for k, L in enumerate(chop(fin_c, 5)): extra[8+k] = L + extra.get(8+k, [])
    pend = []
    for g in GROUPS:
        n0 = g[0]; hf = STEPS[n0][0]
        tags = [("h", n) for n in g] + [("w2", STEPS[n][1]) for n in g if ("w2", STEPS[n][1]) in A.tv]
        if n0 == 16: A.sync(tags)
        else: A.it(("wvm", tags))
        if TS >= 2 and n0 not in (15, 17, 18): A("s_waitcnt lgkmcnt(0)")
        if TS >= 2:
            if n0: A(f"v_writelane_b32 v25, s88, {GROUPS.index(g)-1}")
            A("s_memtime s[88:89]")
        if n0 in CHK: fcheck(A, f"CK{n0}", CHK[n0])
        mf = []; wr = [[] for _ in range(20*len(g))]
        for k, x in enumerate(pend): wr[k*18//len(pend)].append(x)
        pend = []
        for nb in range(5):
            for tb in (range(4) if nb % 2 == 0 or not SN or len(g) > 1 else range(3, -1, -1)):
                c = acc2(hf, nb, tb)
                for n in g:
                    w = w2reg(STEPS[n][1]) + 4*nb
                    mf.append(f"{MF} v[{c}:{c+3}], {Hr(n,tb)}, a[{w}:{w+3}], " + (f"v[{c}:{c+3}]" if STEPS[n][1] != STEPS[0][1] else "0"))
                if len(g) > 1:
                    for e in range(4):
                        pos = (11*(4*(nb*4+tb)+e))//16 + 6 if len(g) == 2 else 3*(nb*4+tb) + 6 + (3*e)//4
                        it = ("ds", None, f"ds_write_addtid_b32 v{c+e} offset:{(tb*5+nb)*1024+256*e}")
                        (wr[pos] if pos < len(wr) else pend).append(it)
        if n0 == 21: wr[GF] += g_f; wr[56] += fpoll(3)[-1:]
        A.weave(mf, [(first.get(n0, []) + sum((hload(n) for n in ISSUE.get(n0, ())), []), 0, len(mf) - 8), (extra.get(n0, []), 1, len(mf) - 1)], fixed=wr)
    A.its(pend)
    if TS >= 2:
        A(f"s_waitcnt lgkmcnt(0)\nv_writelane_b32 v25, s88, {len(GROUPS)-1}\ns_memtime s[88:89]"); tockdump(A, len(GROUPS), 25, 0x80000)
    stamp(A, 7)
    A("s_waitcnt lgkmcnt(0)\ns_barrier")
    for nb in range(5):
        for w in range(4):
            r = ACCK + (nb*4+w)*4
            A(f"ds_read_b128 v[{r}:{r+3}], v{23+(w>>1)} offset:{(w&1)*20480 + nb*1024}")
    fcheck(A, "C3", 3)
    for nb in range(5):
        r = ACCG + nb*16 + 12
        A.it(("vm", ("xl", nb), f"buffer_load_dwordx4 v[{r}:{r+3}], v{28+(nb>>2)}, s[8:11], s5 offen offset:{(nb&3)*1024} sc1"))
    A("s_waitcnt lgkmcnt(0)")
    for nb in range(5):
        r = ACCK + nb*16; o = ACCG + nb*16 + 8
        for k in (0, 2): A(pk("add", r+k, r+k, r+4+k)); A(pk("add", r+8+k, r+8+k, r+12+k))
        for k in (0, 2): A(pk("add", o+k, o+k, r+k))
        for k in (0, 2): A(pk("add", o+k, o+k, r+8+k))
    for nb in range(5):
        o = ACCG + nb*16 + 8
        A.it(("wvm", [("xl", nb)]))
        for k in (0, 2): A(pk("add", o+k, o+k, o+4+k))
        A.it(("vm", None, f"buffer_store_dwordx4 v[{o}:{o+3}], v13, s[20:23], 0 offen offset:{64*nb} " + OPT.get("of", "").replace("+", " ")))
    if TS:
        A("s_add_u32 s94, s94, 0x10000"); stamp(A, 0)
    WB = int(OPT.get("wb", 0))
    if WB:
        A(f"s_and_b32 s32, s95, {WB}\ns_cmp_lg_u32 s32, {int(OPT.get('wbv', 0))}\ns_cbranch_scc1 K_end\ns_waitcnt vmcnt(0)\nbuffer_wbl2 sc1")

def gen():
    A = E()
    A("s_cmp_ge_u32 s2, 256\ns_cbranch_scc1 K_end")
    IPF = int(OPT.get("ipf", 1))
    if "dly" in OPT:
        m, v = OPT["dly"].split(",")
        A(f"s_and_b32 s4, s2, {m}\ns_cmp_lg_u32 s4, {v}\ns_cbranch_scc1 K_nod\n" + "s_sleep 127\n"*4); A.label("K_nod")
    A("s_load_dwordx16 s[36:51], s[0:1], 0\ns_load_dwordx16 s[52:67], s[0:1], 64")
    if IPF >= 2:
        A("s_getpc_b64 s[6:7]"); A.label("K_pc")
        n = IPF; A(f"s_lshr_b32 s33, s2, 3\nv_lshrrev_b32 v2, 6, v0\nv_lshl_add_u32 v3, s33, 2, v2\nv_and_b32 v1, 63, v0\nv_min_u32 v4, {n-1}, v1\nv_mad_u32_u24 v3, v3, {n}, v4\nv_lshlrev_b32 v3, 7, v3\nv_add_u32 v3, K_body-K_pc, v3\nv_min_u32 v3, K_end-K_pc, v3\nglobal_load_dword v64, v3, s[6:7]")
    A(("" if IPF >= 2 else "v_and_b32 v1, 63, v0\nv_lshrrev_b32 v2, 6, v0\n") + "s_and_b32 s32, s2, 7\nv_readfirstlane_b32 s3, v2")
    A("s_lshr_b32 s33, s2, 3\ns_lshr_b32 s34, s32, 2\ns_and_b32 s35, s32, 3\ns_and_b32 s71, s3, 1\ns_lshr_b32 s72, s3, 1")
    if IPF == 1:
        A("s_getpc_b64 s[6:7]"); A.label("K_pc")
        A("s_lshl2_add_u32 s76, s33, s3\ns_and_b32 s76, s76, 15\ns_lshl_b32 s76, s76, 13\nv_lshlrev_b32 v2, 7, v1\nv_add_u32 v2, s76, v2\nv_min_u32 v2, K_end-K_pc, v2")
        A("s_cmp_lt_u32 s33, 28\ns_cbranch_scc1 K_nopf\nglobal_load_dword v64, v2, s[6:7]"); A.label("K_nopf")
    A("s_lshl2_add_u32 s95, s2, s3\nv_lshrrev_b32 v62, 5, v1\nv_mul_u32_u24 v62, 1280, v62\nv_and_b32 v63, 31, v1\nv_lshl_add_u32 v62, v63, 3, v62")
    if TS:
        A("s_lshl2_add_u32 s94, s2, s3\ns_lshl_b32 s94, s94, 6\ns_waitcnt lgkmcnt(0)"); stamp(A, 0)
    A("s_lshl_b32 s31, s32, 5\ns_add_u32 s31, s31, s33\ns_lshl2_add_u32 s75, s31, s3\ns_mul_i32 s75, s75, 2560")
    A("s_cmp_eq_u32 s35, 3\ns_cselect_b32 s76, 16, 8\ns_cmp_ge_u32 s33, s76\ns_cselect_b32 s70, 1, 0")
    A("s_lshl_b32 s35, s35, 3\ns_add_u32 s33, s33, s35\ns_and_b32 s68, s33, 3\ns_lshl2_add_u32 s68, s34, s68\ns_lshr_b32 s69, s33, 2")
    gen_ssm(A)
    A.L.append(";@SEG SPRO"); A.label("K_ffn")
    A("s_and_b32 s35, s2, 3\ns_lshr_b32 s33, s2, 3\ns_mul_i32 s35, s35, 24\ns_add_u32 s33, s33, s35\ns_sub_u32 s33, s33, s76\ns_and_b32 s68, s33, 7\ns_and_b32 s34, s2, 4\ns_lshl1_add_u32 s68, s34, s68\ns_lshr_b32 s69, s33, 3")
    gen_ffn(A)
    gen_ph2(A)
    A.label("K_end"); A("s_endpgm")
    return A.L

def hflags(L):
    f = OPT.get("hf")
    if not f: return L
    return [l.replace(" sc1", " " + f.replace("+", " ")) if l.startswith("buffer_store_dwordx4 v[") and re.search(r"s(84|85|86|78) offen", l) else l for l in L]
def nulls(L):
    n = OPT.get("null", "")
    o = []
    for l in L:
        if l.startswith("buffer_load"):
            if ("c" in n and "s[24:27], s77" in l) or ("w" in n and "s[20:23], s77" in l) or ("b" in n and "s[24:27], s97" in l) or ("s" in n and l.startswith("buffer_load_dwordx2") and "s[16:19]" in l):
                o.append("s_mov_b32 s7, 0x7f000000"); l = re.sub(r"\], s\d+ offen", "], s7 offen", l)
        o.append(l)
    return o
def fin(L):
    L = nulls(hflags(L))
    seg = {"E": []}; cur = "E"
    for l in L:
        if l.startswith(";@SEG"): cur = l.split()[1]; seg[cur] = []
        else: seg[cur].append(l)
    def dispatch(name, chains, ret):
        o = []
        for w in range(3): o += [f"s_cmp_eq_u32 s3, {w}", f"s_cbranch_scc1 {chains[w]}"]
        return o + [f"s_branch {chains[3]}"]
    TCH = int(OPT.get("tch", 1))
    order = ["FA", "FB", "EP", "SSM", "PH2"]
    def expand(lines, heads):
        o = []
        for l in lines:
            if not l.startswith(";@TOUCH"): o.append(l); continue
            if not TCH: continue
            n = l.split()[1]
            o.append("s_mov_b64 exec, 0")
            if n in ("FA", "FB"): o += dispatch(n, heads[n], None)
            elif n == "S": o += dispatch(n, heads["SSM"], None)
            else: o += [f"s_mov_b32 s92, {n[1]}"] + dispatch(n, heads["PH2" if n == "P1" else "EP"], None)
            o.append(f"TR_{n}:")
            o.append("s_mov_b64 exec, -1")
        return o
    if TCH: seg["FBP"] += ["TR_P:", "s_cmp_eq_u32 s92, 0", "s_cbranch_scc1 TR_P0", "s_cmp_eq_u32 s92, 2", "s_cbranch_scc1 TR_P2", "s_branch TR_P1"]
    dummy = {k: ["K_end"]*4 for k in order}
    body = []
    for k in order: body += [(k, l) for l in expand(seg[k], dummy)]
    pro = expand(seg["E"] + seg["SPRO"] + seg["FBP"], dummy)
    sz = sizes(pro + ["K_body:"] + [l for _, l in body]); npro = sum(1 for l in pro if not (l.endswith(":") or l.startswith((".", ";"))))
    print("prologue bytes", sum(sz[:npro])); sz = sz[npro:]
    stubs = {k: [] for k in order}; pos = {}; addr = 0; page = -1; ii = 0; seen = set(); dark = False
    for i, (k, l) in enumerate(body):
        if l.endswith(":") or l.startswith((".", ";")): continue
        if TCH and not dark and (addr >> 12 != page or k not in seen):
            page = addr >> 12; seen.add(k); name = f"TS_{len(pos)}"; pos[i] = name; stubs[k].append(name); addr += 4
        addr += sz[ii]; ii += 1
        if l == "s_mov_b64 exec, 0": dark = True
        if l == "s_mov_b64 exec, -1": dark = False
    print({k: len(v) for k, v in stubs.items()}, "bytes", addr)
    nxt = {}; heads = {}
    def chains(lst, tails):
        h = []
        for w in range(4):
            c = lst[w::4]
            for a, b in zip(c, c[1:] + [tails[w]]): nxt[a] = b
            h.append(c[0] if c else tails[w])
        return h
    heads["FA"] = chains(stubs["FA"], ["TR_FA"]*4); heads["FB"] = chains(stubs["FB"], ["TR_FB"]*4)
    heads["SSM"] = chains(stubs["SSM"], ["TR_S"]*4); heads["PH2"] = chains(stubs["PH2"], ["TR_P"]*4); heads["EP"] = chains(stubs["EP"], heads["PH2"][::-1])
    body2 = []
    for k in order: body2 += expand(seg[k], heads)
    out = expand(seg["E"] + seg["SPRO"] + seg["FBP"], heads) + [".p2align 12", "K_body:"]
    for i, l in enumerate(body2):
        if i in pos: out += [pos[i] + ":", f"s_cbranch_execz {nxt[pos[i]]}"]
        out.append(l)
    return out
def main():
    ref = open(f"cdna_kernels/{NAME}.s.ref").read().split("\n")
    hdr = [l for l in ref if l.startswith(";") and "@launch" not in l and "Override" not in l and "grid=ceil" not in l]
    out = "\n".join(hdr) + "\n"
    extra = ""
    if "spin" in OPT:
        op, slot, who = (OPT["spin"].split(",") + ["A"])[:3]; slot = int(slot); ks = {"A": range(16), "S": range(4), "F": range(8, 16), "L": range(15, 16), "M": range(8, 9)}[who]
        off = WS_TS + (slot*8 if slot < 8 else 0x10000)
        out += f"; @launch kernel={NAME}_kernel grid=(256,1,1) block=(256,1,1) lds=163840\n; @launch kernel=spin_kernel grid=(1,1,1) block=(64,1,1) lds=0\n"
        L = ["s_load_dwordx2 s[4:5], s[0:1], 120", "s_waitcnt lgkmcnt(0)", f"s_add_u32 s4, s4, {off}", "s_addc_u32 s5, s5, 0", "v_lshlrev_b32 v1, 6, v0"]
        for k in range(16): L += [f"v_add_u32 v2, {4096*ks[k % len(ks)]}, v1", f"global_load_dword v{4+k}, v2, s[4:5]"]
        L += ["s_waitcnt vmcnt(0)"] + [f"v_{op}_u32 v4, v4, v{4+k}" for k in range(1, 16)] + ["s_nop 1", "v_readlane_b32 s6, v4, 0"]
        for k in range(1, 64): L += [f"v_readlane_b32 s7, v4, {k}", "s_nop 0", f"s_{op}_u32 s6, s6, s7"]
        L += ["s_mov_b32 s12, 0x100000", "SP_l2:", "s_memrealtime s[8:9]", "s_waitcnt lgkmcnt(0)", "s_sub_u32 s10, s8, s6", "s_sub_u32 s12, s12, 1", "s_cbranch_scc1 SP_e", "s_cmp_lt_u32 s10, 8000", "s_cbranch_scc1 SP_l2", "SP_e:", "s_endpgm"]
        extra = kernel_text("spin_kernel", L) + kd("spin_kernel", 32, 0, 32)
    else: out += "; @launch grid=(256,1,1) block=(256,1,1) lds=163840\n"
    out += '.amdgcn_target "amdgcn-amd-amdhsa--gfx950"\n'
    out += kernel_text(NAME + "_kernel", fin(hazard_pass(gen(), "v" in OPT))) + kd(NAME + "_kernel", 256, 256, 102) + extra
    open(sys.argv[1], "w").write(out)
main()
```
